```python
import torch

def _softmax(x, axis=-1):
    return torch.softmax(x, dim=axis)
def _gelu(x):
    return torch.nn.functional.gelu(x, approximate="tanh")
def _silu(x):
    return torch.nn.functional.silu(x)
def _sigmoid(x):
    return torch.sigmoid(x)
def _layernorm(x, axis=-1, eps=1e-5):
    m = x.mean(dim=axis, keepdim=True)
    v = x.var(dim=axis, keepdim=True, unbiased=False)
    return (x - m) / torch.sqrt(v + eps)
def _scatter_add(tgt, idx, src, axis=0):
    return tgt.clone().index_add_(axis, idx, src)
def _segment_sum(src, seg, n):
    out = torch.zeros((n,) + src.shape[1:], dtype=src.dtype)
    return out.index_add_(0, seg, src)
def _pad(x, pw):
    flat = tuple(v for pair in reversed(pw) for v in pair)
    return torch.nn.functional.pad(x, flat)

kernel_name = 'sequential_preLN__ssm_conv_s4d__geglu_ffn__prompt'

def setup_inputs():

    _w = (lambda a: (lambda t: t.to(torch.bfloat16) if t.is_floating_point() else t)(torch.as_tensor(a)))
    def _A_setup():
        Bsz, L, D, N = 1, 2048, 448, 256
        return {
            "u": _w((lambda *s: torch.randn(*s, dtype=torch.bfloat16) * 0.05)(Bsz, L, D)),
            "log_A_real": _w((lambda *s: torch.randn(*s, dtype=torch.bfloat16) * 6.4)(D, N) * 0.5),
            "A_imag": _w((lambda *s: torch.randn(*s, dtype=torch.bfloat16) * 0.05)(D, N) * 3.14),
            "C_real": _w((lambda *s: torch.randn(*s, dtype=torch.bfloat16) * 0.05)(D, N) / N ** 0.5),
            "C_imag": _w((lambda *s: torch.randn(*s, dtype=torch.bfloat16) * 0.05)(D, N) / N ** 0.5),
            "log_dt": _w((lambda *s: torch.randn(*s, dtype=torch.bfloat16) * 0.05)(D) * 0.5 - 4.0),
            "D_skip": _w((lambda *s: torch.randn(*s, dtype=torch.bfloat16) * 0.05)(D)),
        }
    _A_in = _A_setup()

    def _B_setup():
        B, S, D, F = 1, 2048, 448, 1792
        return {
            "x": _w((lambda *s: torch.randn(*s, dtype=torch.bfloat16) * 0.05)(B, S, D)),
            "w_gate": _w((lambda *s: torch.randn(*s, dtype=torch.bfloat16) * 0.05)(D, F)),
            "w_up": _w((lambda *s: torch.randn(*s, dtype=torch.bfloat16) * 0.05)(D, F)),
            "w_down": _w((lambda *s: torch.randn(*s, dtype=torch.bfloat16) * 0.05)(F, D)),
        }
    _B_in = _B_setup()

    return {
        "A_u": _A_in["u"],
        "A_log_A_real": _A_in["log_A_real"],
        "A_A_imag": _A_in["A_imag"],
        "A_C_real": _A_in["C_real"],
        "A_C_imag": _A_in["C_imag"],
        "A_log_dt": _A_in["log_dt"],
        "A_D_skip": _A_in["D_skip"],
        "B_x": _B_in["x"],
        "B_w_gate": _B_in["w_gate"],
        "B_w_up": _B_in["w_up"],
        "B_w_down": _B_in["w_down"],
    }

def reference(A_u, A_log_A_real, A_A_imag, A_C_real, A_C_imag, A_log_dt, A_D_skip, B_x, B_w_gate, B_w_up, B_w_down):
    def _A_ref(u, log_A_real, A_imag, C_real, C_imag, log_dt, D_skip):
        L = u.shape[1]
        dt = torch.exp(log_dt)
        A = -torch.exp(log_A_real) + 1j * A_imag
        C = (C_real + 1j * C_imag) * dt[:, None]
        pos = (lambda x, dt: x.to(dt))(torch.arange(L), log_dt.dtype)
        P = torch.exp((A * dt[:, None])[:, :, None] * pos[None, None, :])
        K = 2.0 * torch.einsum("dn,dnl->dl", C, P).real
        L2 = 2 * L
        u_t = (lambda x, *d: x.permute(*d))(u, 0, 2, 1)
        Kf = (lambda x, *a, **k: torch.fft.rfft(x.float(), *a, **k))(K, L2)
        Uf = (lambda x, *a, **k: torch.fft.rfft(x.float(), *a, **k))(u_t, L2)
        y = (lambda x, *a, **k: torch.fft.irfft(x, *a, **k).to(torch.bfloat16))(Uf * Kf[None, :, :], L2)[:, :, :L]
        y = (lambda x, *d: x.permute(*d))(y, 0, 2, 1)
        return y + u * D_skip[None, None, :]

    def _B_ref(x, w_gate, w_up, w_down):
        return (_gelu(x @ w_gate) * (x @ w_up)) @ w_down

    x = A_u
    h = x + _A_ref(_layernorm(x, axis=-1), A_log_A_real, A_A_imag, A_C_real, A_C_imag, A_log_dt, A_D_skip)
    h2 = h + _B_ref(_layernorm(h, axis=-1), B_w_gate, B_w_up, B_w_down)
    return h2
```

```python
import struct
class Asm:
    def __init__(s):
        s.L = []
        s.nl = 0
    def __call__(s, t):
        for l in t.split("\n"):
            l = l.strip()
            if not l: continue
            s.L.append(l if l.endswith(":") or l.startswith(".") else "    " + l)
    def label(s, p="L"):
        s.nl += 1
        return "%s_%d" % (p, s.nl)
def f32(x): return "0x%08x" % struct.unpack("<I", struct.pack("<f", x))[0]
def v(a, n=1): return "v%d" % a if n == 1 else "v[%d:%d]" % (a, a + n - 1)
def a_(a, n=1): return "a%d" % a if n == 1 else "a[%d:%d]" % (a, a + n - 1)
def s_(a, n=1): return "s%d" % a if n == 1 else "s[%d:%d]" % (a, a + n - 1)
def merge(*streams):
    streams = [list(x) for x in streams if x]
    out = []
    tot = [len(x) for x in streams]; pos = [0] * len(streams)
    while any(pos[i] < tot[i] for i in range(len(streams))):
        i = min((i for i in range(len(streams)) if pos[i] < tot[i]), key=lambda i: (pos[i] + 0.5) / tot[i])
        out.append(streams[i][pos[i]]); pos[i] += 1
    return out
def srd(A, d, b, nbytes, off=0):
    if off:
        A(f"s_add_u32 s{d}, s{b}, {off}\ns_addc_u32 s{d+1}, s{b+1}, 0")
    else:
        A(f"s_mov_b32 s{d}, s{b}\ns_mov_b32 s{d+1}, s{b+1}")
    A(f"s_mov_b32 s{d+2}, {nbytes}\ns_mov_b32 s{d+3}, 0x20000")
def kernel_head(A, name):
    A(f".globl {name}\n.p2align 8\n.type {name},@function\n{name}:")
def kernel_desc(name, vgpr, sgpr, accum=None):
    if accum is None: accum = (vgpr + 3) // 4 * 4
    return f""".p2align 6
.amdhsa_kernel {name}
  .amdhsa_next_free_vgpr {vgpr}
  .amdhsa_next_free_sgpr {sgpr}
  .amdhsa_accum_offset {accum}
  .amdhsa_group_segment_fixed_size 0
  .amdhsa_kernarg_size 112
  .amdhsa_user_sgpr_count 2
  .amdhsa_user_sgpr_kernarg_segment_ptr 1
  .amdhsa_system_sgpr_workgroup_id_x 1
.end_amdhsa_kernel
"""
L_, D_, N_, F_ = 2048, 448, 256, 1792
WS_STATS = 0
WS_CS = 0x8000
WS_HT = 0x10000
WS_ACT = 0x200000
X_BYTES = L_ * D_ * 2
P_BYTES = D_ * N_ * 2
W_BYTES = D_ * F_ * 2
ACT_BYTES = L_ * F_ * 2
LOG2E = 1.4426950408889634
DPP = " row_mask:0xf bank_mask:0xf"
def reduce32(A, r, t):
    A(f"v_add_f32_dpp v{r}, v{r}, v{r} quad_perm:[1,0,3,2]{DPP}")
    A(f"v_add_f32_dpp v{r}, v{r}, v{r} quad_perm:[2,3,0,1]{DPP}")
    A(f"v_add_f32_dpp v{r}, v{r}, v{r} row_half_mirror{DPP}")
    A(f"v_add_f32_dpp v{r}, v{r}, v{r} row_mirror{DPP}")
    A(f"v_mov_b32 v{t}, v{r}")
    A(f"v_permlane16_swap_b32 v{r}, v{t}")
    A(f"v_add_f32 v{r}, v{r}, v{t}")
```

```python
import re
TRANS = ("v_exp_f32", "v_log_f32", "v_rcp_f32", "v_rsq_f32", "v_sqrt_f32", "v_sin_f32", "v_cos_f32", "v_rcp_iflag_f32")
REG = re.compile(r"(?<![\w.])(-?)(?:abs\()?([vas])(?:(\d+)|\[(\d+):(\d+)\])")
def regs_of(op):
    out = set()
    op = op.strip()
    if op in ("vcc",): return {("s", 106), ("s", 107)}
    if op == "vcc_lo": return {("s", 106)}
    if op == "vcc_hi": return {("s", 107)}
    if op == "exec": return {("s", 126), ("s", 127)}
    if op == "m0": return {("s", 124)}
    m = REG.match(op.lstrip("|"))
    if not m: return out
    k = m.group(2)
    if m.group(3) is not None: out.add((k, int(m.group(3))))
    else:
        for i in range(int(m.group(4)), int(m.group(5)) + 1): out.add((k, i))
    return out
class I:
    def __init__(s, text):
        s.text = text
        t = text.split(";")[0].strip()
        s.label = None; s.mn = None; s.ops = []; s.directive = False
        if not t: return
        if t.endswith(":"):
            s.label = t[:-1]; return
        if t.startswith("."):
            s.directive = True; return
        parts = t.split(None, 1)
        s.mn = parts[0]
        rest = parts[1] if len(parts) > 1 else ""
        ops = []; depth = 0; cur = ""
        for ch in rest:
            if ch in "[(": depth += 1
            if ch in "])": depth -= 1
            if ch == "," and depth == 0: ops.append(cur.strip()); cur = ""
            else: cur += ch
        if cur.strip(): ops.append(cur.strip())
        s.mods = ""
        if ops:
            last = ops[-1].split(None, 1)
            ops[-1] = last[0]
            if len(last) > 1: s.mods = last[1]
        s.ops = ops
        mn = s.mn
        s.mfma = mn.startswith("v_mfma")
        s.valu = mn.startswith("v_") and not s.mfma
        s.trans = any(mn.startswith(x) for x in TRANS)
        s.dot = mn.startswith("v_dot")
        s.vmem = mn.startswith(("buffer_", "global_", "flat_"))
        s.ds = mn.startswith("ds_")
        s.salu = mn.startswith("s_")
        s.dpp = "_dpp" in mn or "row_" in s.mods or "quad_perm" in s.mods
        s.perml = mn.startswith("v_permlane")
        s.rdlane = mn.startswith(("v_readlane", "v_readfirstlane"))
        s.ldsdma = s.vmem and (" lds" in " " + s.mods + " " or "_lds_" in mn)
        R = [regs_of(o) for o in ops]
        s.w = set(); s.r = set()
        if s.mfma:
            s.w = R[0]; s.A = R[1] | R[2]; s.C = R[3]; s.r = s.A | s.C
            s.passes = 8 if "32x32x16" in mn else 4 if "16x16x32" in mn else 16
        elif s.valu:
            if mn.startswith("v_cmp"):
                s.w = R[0]; s.r = set().union(*R[1:])
            elif s.perml:
                s.w = R[0] | R[1]; s.r = R[0] | R[1]
            elif mn.startswith(("v_add_co", "v_sub_co", "v_addc_co", "v_subb_co", "v_mad_u64")):
                s.w = R[0] | R[1]; s.r = set().union(*R[2:])
            else:
                s.w = R[0]; s.r = set().union(*R[1:]) if len(R) > 1 else set()
                if mn.startswith(("v_fmac", "v_dot2c", "v_writelane")) or s.dpp: s.r |= R[0]
                if mn.startswith("v_cndmask") and len(ops) == 3: s.r |= regs_of("vcc")
        elif s.vmem:
            if s.ldsdma or mn.startswith(("buffer_wbl2", "buffer_inv")): s.r = set().union(*R) if R else set()
            elif "_load" in mn: s.w = R[0]; s.r = set().union(*R[1:])
            elif "atomic" in mn and "sc0" in s.mods and mn.startswith("global"): s.w = R[0]; s.r = set().union(*R[1:])
            else: s.r = set().union(*R)
            s.wide_store = "store" in mn and ("x3" in mn or "x4" in mn)
            if s.wide_store: s.sdata = R[0] if mn.startswith("buffer") else R[1]
        elif s.ds:
            if mn.startswith(("ds_read", "ds_bpermute", "ds_permute", "ds_swizzle")): s.w = R[0]; s.r = set().union(*R[1:])
            else: s.r = set().union(*R)
        elif s.salu:
            if mn.startswith(("s_cmp", "s_cbranch", "s_branch", "s_waitcnt", "s_nop", "s_barrier", "s_endpgm", "s_sleep", "s_setprio", "s_bitcmp")):
                s.r = set().union(*R) if R else set()
            else:
                s.w = R[0] if R else set(); s.r = set().union(*R[1:]) if len(R) > 1 else set()
    def states(s):
        if s.mn == "s_nop": return int(s.ops[0], 0) + 1
        return 1
def isv(rs): return {x for x in rs if x[0] in "va"}
def iss(rs): return {x for x in rs if x[0] == "s"}
def need(p, c):
    n = 0
    if p.mfma:
        tab = {4: (6, 8, 8, 3), 8: (10, 12, 12, 7), 16: (18, 20, 20, 15)}[p.passes]
        if c.mfma:
            if p.w & c.C and not (p.w == c.C and p.passes == c.passes): n = max(n, tab[0])
            if p.w & c.A: n = max(n, tab[1])
            if p.w & c.w and not (p.w == c.C): n = max(n, tab[0])
        elif c.valu:
            if p.w & (c.r | c.w): n = max(n, tab[2])
            if p.C & c.w: n = max(n, tab[3])
        elif c.vmem or c.ds:
            if p.w & (c.r | c.w): n = max(n, tab[2])
            if p.C & c.w: n = max(n, tab[3])
    elif p.valu:
        wv = isv(p.w); ws = iss(p.w)
        if c.mfma and wv & c.r: n = max(n, 3 if p.dot else 2)
        if c.valu:
            if p.trans and not c.trans and wv & c.r: n = max(n, 1)
            if c.rdlane and wv & c.r: n = max(n, 1)
            if (c.dpp or c.perml) and wv & c.r: n = max(n, 2)
            if ws & c.r: n = max(n, 4 if c.mn.startswith(("v_readlane", "v_writelane")) else 2)
            if p.dot and wv & (c.r | c.w):
                same_acc = c.mn == p.mn and not (wv & set().union(*[regs_of(o) for o in c.ops[1:3]]))
                if not same_acc: n = max(n, 3)
            if ("sdwa" in p.mn or "op_sel" in p.mods and not p.mn.startswith("v_pk")) and wv & (c.r | c.w): n = max(n, 1)
        if (c.vmem or c.ds) and p.dot and wv & c.r: n = max(n, 3)
        if (c.vmem or c.ds) and p.trans and wv & c.r: n = max(n, 1)
        if c.vmem and ws & c.r: n = max(n, 5)
        if c.salu and ws & c.r: n = max(n, 1)
    elif p.salu:
        if ("s", 124) in p.w and (c.ldsdma if c.vmem else False): n = max(n, 1)
    elif p.vmem and getattr(p, "wide_store", False):
        if p.sdata & c.w: n = max(n, 2 if (c.valu or c.mfma) else 1)
    return n
MAXD = 21
def fix(lines, verbose=False):
    total = 0
    while True:
        ins = [I(l) for l in lines]
        idx = [i for i, x in enumerate(ins) if x.mn or x.label]
        labels = {x.label: i for i, x in enumerate(ins) if x.label}
        brs = {}
        for i, x in enumerate(ins):
            if x.mn and x.mn.startswith(("s_branch", "s_cbranch")) and x.ops[0] in labels:
                brs.setdefault(labels[x.ops[0]], []).append(i)
        def preds(i):
            out = []
            if ins[i].label: out += brs.get(i, [])
            j = i - 1
            while j >= 0 and not (ins[j].mn or ins[j].label): j -= 1
            if j >= 0 and ins[j].mn not in ("s_branch", "s_endpgm", "s_setpc_b64"): out.append(j)
            return out
        edits = []
        for i, c in enumerate(ins):
            if not c.mn or c.mn in ("s_nop", "s_waitcnt", "s_barrier"): continue
            worst = 0; why = None
            seen = {}
            stack = [(p, 0) for p in preds(i)]
            while stack:
                j, d = stack.pop()
                if d >= MAXD or seen.get(j, 99) <= d: continue
                seen[j] = d
                p = ins[j]
                if p.mn:
                    n = need(p, c)
                    if n - d > worst: worst = n - d; why = p.text
                    d2 = d + p.states()
                else: d2 = d
                for q in preds(j): stack.append((q, d2))
            if worst > 0:
                if edits and i - edits[-1][0] < 24: continue
                edits.append((i, worst, why))
        if not edits: break
        for i, n, why in reversed(edits):
            if verbose: print("hz: +%d before '%s' (after '%s')" % (n, lines[i].strip(), why.strip()))
            k = n; new = []
            while k > 0:
                t = min(k, 16); new.append("    s_nop %d" % (t - 1)); k -= t
            lines[i:i] = new
            total += n
    return lines
```

```python
from base import *

def load_ptrs(A):
    A("s_load_dwordx16 s[4:19], s[0:1], 0")
    A("s_load_dwordx8 s[20:27], s[0:1], 64")
    A("s_load_dwordx4 s[28:31], s[0:1], 96")

def stats_issue(A, vX, vT):
    A(f"""
    v_and_b32 v{vT}, 31, v0
    v_lshrrev_b32 v{vT+1}, 5, v0
    v_lshl_add_u32 v{vT+1}, s2, 3, v{vT+1}
    v_mul_u32_u24 v{vT+1}, 896, v{vT+1}
    v_lshl_add_u32 v{vT+1}, v{vT}, 4, v{vT+1}
    v_cmp_gt_u32 s[40:41], 28, v{vT}
    v_mov_b32 v{vT}, 0x40000000
    v_cndmask_b32 v{vT+1}, v{vT}, v{vT+1}, s[40:41]
    buffer_load_dwordx4 {v(vX,4)}, v{vT+1}, s[32:35], 0 offen
    buffer_load_dwordx4 {v(vX+4,4)}, v{vT+1}, s[32:35], 0 offen offset:448
    """)
def stats_compute(A, vX, vW, tagreg):
    a0, a1, m, t = vW, vW + 1, vW + 2, vW + 4
    U = vW + 6
    A("s_mov_b32 s42, 0x3f803f80\ns_mov_b32 s43, 0xffff0000")
    A(f"v_dot2_f32_bf16 v{a0}, v{vX}, s42, 0\nv_dot2_f32_bf16 v{a1}, v{vX+1}, s42, 0")
    for i in range(2, 8):
        A(f"v_dot2_f32_bf16 v{a0+(i&1)}, v{vX+i}, s42, v{a0+(i&1)}")
    for i in range(8):
        A(f"v_lshlrev_b32 v{U+2*i}, 16, v{vX+i}\nv_and_b32 v{U+2*i+1}, s43, v{vX+i}")
    A(f"v_add_f32 v{m}, v{a0}, v{a1}")
    reduce32(A, m, t)
    A(f"v_mul_f32 v{m}, {f32(1.0/448)}, v{m}")
    for i in range(8):
        A(f"v_pk_add_f32 {v(U+2*i,2)}, {v(U+2*i,2)}, {v(m,2)} op_sel_hi:[1,0] neg_lo:[0,1] neg_hi:[0,1]")
    A(f"v_pk_mul_f32 {v(a0,2)}, {v(U,2)}, {v(U,2)}")
    for i in range(1, 8):
        A(f"v_pk_fma_f32 {v(a0,2)}, {v(U+2*i,2)}, {v(U+2*i,2)}, {v(a0,2)}")
    A(f"v_add_f32 v{a0}, v{a0}, v{a1}\nv_cndmask_b32 v{a0}, 0, v{a0}, s[40:41]")
    reduce32(A, a0, t)
    A(f"""
    v_mul_f32 v{a0}, {f32(1.0/448)}, v{a0}
    v_cvt_pk_bf16_f32 v{a0}, v{a0}, v{a0}
    v_and_b32 v{a0}, s43, v{a0}
    v_add_f32 v{a0}, {f32(1e-5)}, v{a0}
    v_cvt_pk_bf16_f32 v{a0}, v{a0}, v{a0}
    v_and_b32 v{a0}, s43, v{a0}
    v_sqrt_f32 v{a0}, v{a0}
    v_cvt_pk_bf16_f32 v{a0}, v{m}, v{a0}
    v_mov_b32 v{a1}, {tagreg}
    v_lshrrev_b32 v{t}, 5, v0
    v_lshl_add_u32 v{t}, s2, 3, v{t}
    v_lshlrev_b32 v{t}, 3, v{t}
    v_and_b32 v{t+1}, 31, v0
    v_cmp_eq_u32 vcc, 0, v{t+1}
    s_and_saveexec_b64 s[44:45], vcc
    global_store_dwordx2 v{t}, {v(a0,2)}, s[30:31] sc0 sc1
    s_mov_b64 exec, s[44:45]
    """)

def gen_k0(A, name):
    kernel_head(A, name)
    end = A.label("K0end")
    A(f"s_cmp_ge_u32 s2, 256\ns_cbranch_scc1 {end}")
    load_ptrs(A)
    A("s_waitcnt lgkmcnt(0)")
    srd(A, 32, 4, X_BYTES)
    stats_issue(A, 8, 2)
    A("s_waitcnt vmcnt(0)")
    stats_compute(A, 8, 16, "0")
    A(f"{end}:\ns_endpgm")
    return kernel_desc(name, 48, 64)

GH = 0
KC = 65536
KPITCH = 4160
UP = KC + 8 * KPITCH
UPITCH = 1568
XP = UP + 8 * UPITCH
XPITCH = 1056
KA_LDS = XP + 8 * XPITCH

def cmul(dst, x, w, t=None):
    if t is None: t = dst
    return [f"v_pk_mul_f32 {v(t,2)}, {v(x,2)}, {v(w,2)} op_sel_hi:[1,0]",
            f"v_pk_fma_f32 {v(dst,2)}, {v(x,2)}, {v(w,2)}, {v(t,2)} op_sel:[1,1,0] op_sel_hi:[0,1,1] neg_lo:[0,1,0]"]
def cexp(dst, a2, b2, preg, t):
    o = []
    if preg is None:
        o += [f"v_exp_f32 v{t}, v{a2}", f"v_fract_f32 v{t+1}, v{b2}"]
    else:
        o += [f"v_mul_f32 v{t}, {preg}, v{a2}", f"v_mul_f32 v{t+1}, {preg}, v{b2}", f"v_exp_f32 v{t}, v{t}", f"v_fract_f32 v{t+1}, v{t+1}"]
    o += [f"v_cos_f32 v{dst}, v{t+1}", f"v_sin_f32 v{dst+1}, v{t+1}", f"v_pk_mul_f32 {v(dst,2)}, {v(dst,2)}, {v(t,2)} op_sel_hi:[1,0]"]
    return o

def gen_helper(A, end):
    A(f"""
    s_sub_u32 s46, s2, 224
    s_cmp_ge_u32 s46, 28
    s_cbranch_scc1 {end}
    s_cmp_ge_u32 s46, 14
    s_cselect_b32 s48, s22, s20
    s_cselect_b32 s49, s23, s21
    s_cselect_b32 s47, 14, 0
    s_sub_u32 s47, s46, s47
    s_lshl_b32 s47, s47, 8
    s_mov_b32 s50, {W_BYTES}
    s_mov_b32 s51, 0x20000
    v_and_b32 v1, 15, v0
    v_lshrrev_b32 v2, 4, v0
    v_mul_u32_u24 v2, 3584, v2
    v_lshl_add_u32 v2, v1, 4, v2
    """)
    for p in range(28):
        A(f"buffer_load_dwordx4 {v(16+4*p,4)}, v2, s[48:51], s47 offen")
        if p < 27: A("s_add_u32 s47, s47, %d" % (16 * 3584))
    A("s_mov_b32 s42, 0x00003f80\ns_mov_b32 s43, 0x3f800000")
    for p in range(28):
        A(f"s_waitcnt vmcnt({27-p})")
        for q in range(4):
            for hl in range(2):
                acc = 4 + 2 * q + hl
                A(f"v_dot2_f32_bf16 v{acc}, v{16+4*p+q}, s{42+hl}, {'0' if p == 0 else 'v%d' % acc}")
    for q in range(8):
        A(f"v_mov_b32 v{16+q}, v{4+q}")
    for q in range(8):
        A(f"v_permlane16_swap_b32 v{4+q}, v{16+q}")
    for q in range(8):
        A(f"v_add_f32 v{4+q}, v{4+q}, v{16+q}")
    for q in range(8):
        A(f"v_mov_b32 v{16+q}, v{4+q}")
    for q in range(8):
        A(f"v_permlane32_swap_b32 v{4+q}, v{16+q}")
    for q in range(8):
        A(f"v_add_f32 v{4+q}, v{4+q}, v{16+q}")
    A("""
    v_lshrrev_b32 v2, 6, v0
    v_lshlrev_b32 v2, 9, v2
    v_lshl_add_u32 v2, v1, 5, v2
    ds_write_b128 v2, v[4:7]
    ds_write_b128 v2, v[8:11] offset:16
    s_waitcnt lgkmcnt(0)
    s_barrier
    v_and_b32 v1, 127, v0
    v_lshlrev_b32 v1, 2, v1
    ds_read2st64_b32 v[4:5], v1 offset0:0 offset1:2
    ds_read2st64_b32 v[6:7], v1 offset0:4 offset1:6
    s_waitcnt lgkmcnt(0)
    v_add_f32 v4, v4, v5
    v_add_f32 v6, v6, v7
    v_add_f32 v4, v4, v6
    s_lshl_b32 s46, s46, 9
    s_add_u32 s46, s46, %d
    v_add_u32 v1, s46, v1
    global_store_dword v1, v4, s[30:31]
    s_endpgm
    """ % WS_CS)

def gen_ka(A, name, dbgK=False):
    kernel_head(A, name)
    end = A.label("KAend"); conv = A.label("KAconv")
    A(f"s_cmp_ge_u32 s2, 256\ns_cbranch_scc1 {end}")
    load_ptrs(A)
    vLane, vG, vJ = 1, 2, 3
    A(f"""
    v_and_b32 v{vLane}, 63, v0
    v_lshrrev_b32 v4, 6, v0
    v_bfe_u32 v{vG}, v0, 5, 1
    v_and_b32 v{vJ}, 31, v0
    v_readfirstlane_b32 s36, v4
    s_and_b32 s37, s2, 7
    s_mul_i32 s37, s37, 28
    s_lshr_b32 s38, s2, 3
    s_add_u32 s37, s37, s38
    s_lshr_b32 s38, s36, 1
    s_and_b32 s39, s36, 1
    s_waitcnt lgkmcnt(0)
    s_cmp_lt_u32 s2, 224
    s_cbranch_scc1 {conv}
    """)
    gen_helper(A, end)
    A(f"{conv}:")
    A("""
    s_lshl_b32 s46, s37, 2
    s_load_dword s52, s[14:15], s46
    s_load_dword s53, s[16:17], s46
    """)
    vP = 8
    A(f"""
    s_lshl_b32 s46, s37, 10
    s_lshl_b32 s47, s36, 8
    s_add_u32 s46, s46, s47
    v_lshl_add_u32 v4, v{vLane}, 2, s46
    global_load_dword v{vP}, v4, s[6:7]
    global_load_dword v{vP+1}, v4, s[8:9]
    global_load_dword v{vP+2}, v4, s[10:11]
    global_load_dword v{vP+3}, v4, s[12:13]
    """)
    vXC = 12
    A(f"""
    s_lshl_b32 s46, s37, 2
    s_add_u32 s46, s46, {4*896}
    v_mul_u32_u24 v4, {8*896}, v0
    v_add_u32 v4, s46, v4
    """)
    for r in range(8):
        A(f"global_load_dword v{vXC+r}, v4, s[4:5] offset:{(r-4)*896}")
    vST = 20
    A(f"v_lshlrev_b32 v4, 6, v0")
    for q in range(4):
        A(f"global_load_dwordx4 {v(vST+4*q,4)}, v4, s[30:31] offset:{16*q} sc0 sc1")
    A(f"""
    v_mov_b32 v48, 0
    v_mov_b32 v49, 0
    v_mov_b32 v50, 0
    v_mov_b32 v51, 0
    v_lshrrev_b32 v4, 5, v0
    v_mul_u32_u24 v4, {UPITCH}, v4
    v_lshl_add_u32 v4, v{vJ}, 4, v4
    v_add_u32 v4, {UP}, v4
    ds_write_b128 v4, v[48:51]
    v_lshrrev_b32 v4, 2, v{vJ}
    v_mul_u32_u24 v4, {KPITCH}, v4
    v_and_b32 v5, 3, v0
    v_lshl_add_u32 v4, v5, 4, v4
    v_add_u32 v4, {KC}, v4
    ds_write_b128 v4, v[48:51]
    """)
    vEA = 36
    A("s_mov_b32 s43, 0xffff0000\ns_movk_i32 s42, 0xf00")
    A(f"v_lshlrev_b32 v4, 3, v0\nv_cvt_f32_u32 v4, v4")
    for r in range(0, 12, 2):
        def cst(x): return f32(float(x))
        A(f"v_add_f32 v5, {cst(r-3)}, v4\nv_add_f32 v6, {cst(r-2)}, v4")
        if r < 3: A("v_max_f32 v5, 0, v5\nv_max_f32 v6, 0, v6")
        A("v_cvt_pk_bf16_f32 v5, v5, v6\nv_and_b32 v6, s43, v5\nv_lshlrev_b32 v5, 16, v5")
        for k in range(2):
            if r + k > 10: continue
            p = 5 + k; d = vEA + r + k
            A(f"""
            v_cvt_u32_f32 v{p}, v{p}
            v_and_b32 v7, s42, v{p}
            v_bfe_u32 v{d}, v{p}, 3, 5
            v_add_lshl_u32 v{d}, v7, v{d}, 2
            v_and_b32 v7, 7, v{p}
            v_lshl_add_u32 v{d}, v7, 7, v{d}
            """)
    vWA = 48
    A(f"""
    s_lshl_b32 s46, s36, 14
    v_lshl_add_u32 v4, v{vLane}, 6, s46
    v_bfe_u32 v5, v{vLane}, 1, 2
    """)
    for c in range(4):
        A(f"v_xor_b32 v6, {c}, v5\nv_lshl_add_u32 v{vWA+c}, v6, 4, v4")
    vRA = 52
    A(f"""
    v_bfe_u32 v4, v{vLane}, 2, 2
    v_lshl_add_u32 v4, v{vG}, 3, v4
    v_bfe_u32 v5, v{vLane}, 4, 1
    v_bfe_u32 v6, v{vLane}, 1, 1
    v_lshl_add_u32 v5, v5, 1, v6
    v_bfe_u32 v6, v4, 1, 1
    v_xor_b32 v5, v5, v6
    v_lshlrev_b32 v4, 6, v4
    v_lshl_add_u32 v4, v5, 4, v4
    v_and_b32 v5, 1, v{vLane}
    v_lshl_add_u32 v4, v5, 3, v4
    v_add_u32 v{vRA}, s46, v4
    v_xor_b32 v{vRA+1}, 32, v{vRA}
    v_add_u32 v{vRA+1}, 256, v{vRA+1}
    """)
    vDT = 54
    A(f"""
    s_waitcnt lgkmcnt(0)
    s_lshl_b32 s46, s38, 4
    s_lshr_b32 s52, s52, s46
    s_lshl_b32 s52, s52, 16
    s_lshr_b32 s53, s53, s46
    s_lshl_b32 s53, s53, 16
    v_mov_b32 v{vDT}, {f32(LOG2E)}
    v_mul_f32 v{vDT}, s52, v{vDT}
    v_exp_f32 v{vDT}, v{vDT}
    v_cvt_pk_bf16_f32 v{vDT}, v{vDT}, v{vDT}
    v_and_b32 v{vDT}, s43, v{vDT}
    s_mov_b32 s54, {f32(8.0)}
    s_mov_b32 s55, {f32(256.0)}
    """)
    vACC = 56
    for i in range(16): A(f"v_mov_b32 v{vACC+i}, 0")
    A("s_waitcnt vmcnt(12)\ns_mov_b32 s56, 2")
    lp = A.label("KGloop")
    A(f"{lp}:")
    a2, b2 = 72, 73
    w1, w8, w256, w2, w512 = 74, 76, 78, 80, 82
    tA, tB, tC = 84, 86, 88
    G = 90
    G2 = 106
    Hh = 122
    W4 = 130
    HT = 132
    CV = 140
    A(f"""
    v_lshlrev_b32 v4, 16, v{vP}
    v_mul_f32 v4, {f32(LOG2E)}, v4
    v_exp_f32 v4, v4
    v_lshlrev_b32 v5, 16, v{vP+1}
    v_mul_f32 v{b2}, v5, v{vDT}
    v_cvt_pk_bf16_f32 v4, v4, v4
    v_and_b32 v4, s43, v4
    v_mul_f32 v{a2}, v4, v{vDT}
    v_mul_f32 v{b2}, 0.15915494, v{b2}
    v_mul_f32 v{a2}, {f32(-LOG2E)}, v{a2}
    v_lshlrev_b32 v{G}, 16, v{vP+2}
    v_lshlrev_b32 v{G+1}, 16, v{vP+3}
    v_mul_f32 v{G}, v{G}, v{vDT}
    v_mul_f32 v{G+1}, v{G+1}, v{vDT}
    v_add_f32 v{G}, v{G}, v{G}
    v_add_f32 v{G+1}, v{G+1}, v{G+1}
    """)
    for l in merge(cexp(w8, a2, b2, "s54", tA), cexp(w1, a2, b2, None, tB), cexp(w256, a2, b2, "s55", tC)): A(l)
    hs = []
    hs += [f"v_mov_b32 v{Hh}, 1.0", f"v_mov_b32 v{Hh+1}, 0", f"v_mov_b32 v{Hh+2}, v{w8}", f"v_mov_b32 v{Hh+3}, v{w8+1}"]
    hs += cmul(Hh+4, w8, w8) + cmul(Hh+6, Hh+4, w8) + cmul(W4, Hh+4, Hh+4)
    for q in range(8):
        buf = CV + 8 * ((q >> 1) & 1)
        o = 2 * (q & 1)
        hs += [f"v_cvt_pk_bf16_f32 v{buf+o}, v{Hh}, v{Hh+2}", f"v_cvt_pk_bf16_f32 v{buf+o+1}, v{Hh+4}, v{Hh+6}",
               f"v_cvt_pk_bf16_f32 v{buf+4+o}, v{Hh+1}, v{Hh+3}", f"v_cvt_pk_bf16_f32 v{buf+4+o+1}, v{Hh+5}, v{Hh+7}"]
        if q & 1:
            hs += [f"ds_write_b128 v{vWA+(q>>1)}, {v(buf,4)}", f"ds_write_b128 v{vWA+(q>>1)}, {v(buf+4,4)} offset:4096"]
        if q < 7:
            m = [cmul(Hh+2*r, Hh+2*r, W4, HT+2*r) for r in range(4)]
            hs += [x[0] for x in m] + [x[1] for x in m]
    gs = []
    def gchunk(base, n, ch, buf):
        o = []
        for k in range(0, n, 2):
            k2 = min(k + 1, n - 1)
            o += [f"v_cvt_pk_bf16_f32 v{buf+k//2}, v{base+2*k}, v{base+2*k2}", f"v_cvt_pk_bf16_f32 v{buf+4+k//2}, -v{base+2*k+1}, -v{base+2*k2+1}"]
        o += [f"ds_write_b128 v{vWA+ch}, {v(buf,4)} offset:8192", f"ds_write_b128 v{vWA+ch}, {v(buf+4,4)} offset:12288"]
        return o
    gs += cmul(w2, w1, w1) + cmul(G+2, G, w1) + cmul(w512, w256, w256)
    for i in range(2, 8): gs += cmul(G+2*i, G+2*(i-2), w2)
    gs += gchunk(G, 8, 0, CV+16)
    for k in range(4): gs += cmul(G2+2*k, G+4*k, w256)
    gs += cmul(G2+8, G, w512) + cmul(G2+10, G+8, w512)
    gs += cmul(G2+12, G2, w512) + cmul(G2+14, G2+4, w512)
    gs += gchunk(G2, 8, 1, CV+24)
    gs += cmul(G, G2+8, w512) + cmul(G+2, G2+12, w512)
    gs += cmul(G+4, G, w512) + cmul(G+6, G+2, w512) + cmul(G+8, G+4, w512)
    gs += gchunk(G, 5, 2, CV+16)
    for l in merge(hs, gs): A(l)
    for i in range(4): A(f"v_lshrrev_b32 v{vP+i}, 16, v{vP+i}")
    FR = 172
    steps = [(p, s) for p in range(2) for s in range(4)]
    for n, (p, s) in enumerate(steps):
        off = p * 4096 + s * 1024
        b = FR + 8 * n
        A(f"""
        ds_read_b64_tr_b16 {v(b,2)}, v{vRA} offset:{8192+off}
        ds_read_b64_tr_b16 {v(b+2,2)}, v{vRA+1} offset:{8192+off}
        ds_read_b64_tr_b16 {v(b+4,2)}, v{vRA} offset:{off}
        ds_read_b64_tr_b16 {v(b+6,2)}, v{vRA+1} offset:{off}
        """)
        if n >= 3:
            b0 = FR + 8 * (n - 3)
            A(f"s_waitcnt lgkmcnt(12)\nv_mfma_f32_32x32x16_bf16 {v(vACC,16)}, {v(b0,4)}, {v(b0+4,4)}, {v(vACC,16)}")
    for n in range(5, 8):
        b0 = FR + 8 * n
        A(f"s_waitcnt lgkmcnt({4*(7-n)})\nv_mfma_f32_32x32x16_bf16 {v(vACC,16)}, {v(b0,4)}, {v(b0+4,4)}, {v(vACC,16)}")
    A(f"s_sub_u32 s56, s56, 1\ns_cmp_lg_u32 s56, 0\ns_cbranch_scc1 {lp}")
    A(f"""
    s_lshl_b32 s46, s36, 14
    v_lshl_add_u32 v4, v{vJ}, 2, s46
    v_lshl_add_u32 v5, v{vG}, 9, v4
    v_mov_b32 v6, 128
    v_lshlrev_b32 v6, v{vG}, v6
    """)
    for b in range(4):
        A(f"v_mad_u32_u24 v{72+b}, v6, {8+2*b}, v4\nv_mad_u32_u24 v{76+b}, v6, {32+8*b}, v4")
    for b in range(4):
        A(f"ds_write_b32 v5, v{vACC+b} offset:{128*b}")
    for b in range(8):
        A(f"ds_write_b32 v{72+b}, v{vACC+4+b}")
    XB = 80
    A("s_waitcnt vmcnt(4)\ns_mov_b32 s46, 0x05040100\ns_mov_b32 s47, 0x07060302")
    for k in range(4):
        A(f"v_perm_b32 v{XB+k}, v{vXC+2*k+1}, v{vXC+2*k}, s46\nv_perm_b32 v{XB+4+k}, v{vXC+2*k+1}, v{vXC+2*k}, s47")
    A(f"""
    v_and_b32 v4, 3, v0
    v_lshrrev_b32 v5, 2, v0
    v_mul_u32_u24 v6, {XPITCH}, v4
    v_lshl_add_u32 v6, v5, 4, v6
    v_add_u32 v6, {XP}, v6
    ds_write_b128 v6, {v(XB,4)}
    ds_write_b128 v6, {v(XB+4,4)} offset:{4*XPITCH}
    v_mul_u32_u24 v6, {UPITCH}, v4
    v_lshl_add_u32 v7, v5, 4, v6
    v_add_u32 v7, {UP+512}, v7
    s_waitcnt lgkmcnt(0)
    s_barrier
    """)
    EV = 90
    for c in range(2):
        for r in range(11):
            A(f"ds_read2st64_b32 {v(EV+22*c+2*r,2)}, v{vEA+r} offset0:{128*c} offset1:{128*c+64}")
    NU = 140
    A("s_waitcnt vmcnt(0)")
    for r in range(8):
        S = vST + 2 * r
        t = 156 + 4 * (r & 1)
        A(f"""
        v_and_b32 v{t+2}, s43, v{S}
        v_rcp_f32 v{t+2}, v{t+2}
        v_lshlrev_b32 v{t}, 16, v{S}
        v_lshlrev_b32 v{NU+2*r}, 16, v{vXC+r}
        v_and_b32 v{NU+2*r+1}, s43, v{vXC+r}
        v_pk_add_f32 {v(NU+2*r,2)}, {v(NU+2*r,2)}, {v(t,2)} op_sel_hi:[1,0] neg_lo:[0,1] neg_hi:[0,1]
        v_cvt_pk_bf16_f32 v{NU+2*r+1}, v{NU+2*r}, v{NU+2*r+1}
        v_lshlrev_b32 v{NU+2*r}, 16, v{NU+2*r+1}
        v_and_b32 v{NU+2*r+1}, s43, v{NU+2*r+1}
        v_pk_mul_f32 {v(NU+2*r,2)}, {v(NU+2*r,2)}, {v(t+2,2)} op_sel_hi:[1,0]
        """)
    UB = 164
    for c in range(2):
        for k in range(4):
            A(f"v_cvt_pk_bf16_f32 v{UB+4*c+k}, v{NU+2*(7-2*k)+c}, v{NU+2*(6-2*k)+c}")
    A("s_waitcnt lgkmcnt(0)")
    A(f"ds_write_b128 v7, {v(UB,4)}\nds_write_b128 v7, {v(UB+4,4)} offset:{4*UPITCH}")
    A(f"v_cmp_ne_u32 vcc, 0, v0\nv_lshlrev_b32 v4, 4, v0\nv_add_u32 v4, {KC+64}, v4")
    CB = 172
    for c in range(2):
        E = EV + 22 * c
        for r in range(11):
            A(f"v_add_f32 v{E+2*r}, v{E+2*r}, v{E+2*r+1}")
        for r in range(3):
            A(f"v_cndmask_b32 v{E+2*r}, 0, v{E+2*r}, vcc")
        for cp in range(4):
            b = CB + 16 * c + 4 * cp
            for k in range(4):
                r0 = 3 - cp + 2 * k
                A(f"v_cvt_pk_bf16_f32 v{b+k}, v{E+2*r0}, v{E+2*r0+2}")
            A(f"ds_write_b128 v4, {v(b,4)} offset:{(4*c+cp)*KPITCH}")
    if dbgK:
        A(f"s_lshl_b32 s46, s37, 13\ns_add_u32 s46, s46, {WS_ACT}\nv_lshl_add_u32 v5, v0, 4, s46")
        A(f"global_store_dwordx4 v5, {v(CB,4)}, s[30:31]\nv_add_u32 v5, 4096, v5\nglobal_store_dwordx4 v5, {v(CB+16,4)}, s[30:31]")
    vA, vB, vE = 8, 9, 10
    A(f"""
    v_and_b32 v4, 3, v{vJ}
    v_sub_u32 v4, 3, v4
    v_mul_u32_u24 v4, {KPITCH}, v4
    v_lshrrev_b32 v5, 2, v{vJ}
    v_lshl_add_u32 v4, v5, 3, v4
    v_lshlrev_b32 v5, 4, v{vG}
    v_sub_u32 v4, v4, v5
    s_mul_i32 s46, s38, {4*KPITCH}
    s_lshl_b32 s47, s39, 5
    s_sub_u32 s46, s46, s47
    s_add_u32 s46, s46, {KC+64-8}
    v_add_u32 v{vA}, s46, v4
    s_lshl_b32 s46, s36, 1
    s_mul_i32 s46, s46, {UPITCH}
    s_add_u32 s46, s46, {UP+16}
    v_mul_u32_u24 v4, {UPITCH}, v{vG}
    v_lshl_add_u32 v4, v{vJ}, 4, v4
    v_add_u32 v{vB}, s46, v4
    """)
    A(f"""
    s_mul_i32 s46, s38, {4*UPITCH}
    s_lshl_b32 s47, s39, 9
    s_add_u32 s46, s46, s47
    s_add_u32 s46, s46, {UP+512+8}
    v_lshlrev_b32 v5, 3, v{vG}
    v_lshlrev_b32 v4, 4, v{vJ}
    v_sub_u32 v6, v4, v5
    v_add_u32 v{vE}, s46, v6
    s_mul_i32 s46, s38, {4*XPITCH}
    s_add_u32 s46, s46, s47
    s_add_u32 s46, s46, {XP}
    v_add3_u32 v{vE+1}, v4, v5, s46
    s_waitcnt lgkmcnt(0)
    s_barrier
    """)
    EU, EX, PRE = 12, 20, 28
    for a in range(4):
        A(f"ds_read_b64 {v(EU+2*a,2)}, v{vE} offset:{a*UPITCH}\nds_read_b64 {v(EX+2*a,2)}, v{vE+1} offset:{a*XPITCH}")
    AC0, AC1 = 48, 64
    BUF = 80
    def reads(d):
        b = BUF + 16 * (d % 3)
        return [f"ds_read_b64 {v(b,2)}, v{vA} offset:{64*d}", f"ds_read_b64 {v(b+2,2)}, v{vA} offset:{64*d+8}",
                f"ds_read_b128 {v(b+8,4)}, v{vB} offset:{16*(31-d)}", f"ds_read_b128 {v(b+12,4)}, v{vB} offset:{16*(31-d)+512}",
                f"ds_read_b64 {v(b+4,2)}, v{vA} offset:{64*d+2048}", f"ds_read_b64 {v(b+6,2)}, v{vA} offset:{64*d+2048+8}"]
    pre = []
    for a in range(4):
        P = PRE + 4 * a
        pre += [f"v_and_b32 v44, s43, v{EU+2*a+1}", f"v_lshlrev_b32 v45, 16, v{EU+2*a+1}",
                f"v_and_b32 v46, s43, v{EU+2*a}", f"v_lshlrev_b32 v47, 16, v{EU+2*a}",
                f"v_lshlrev_b32 v{P}, 16, v{EX+2*a}", f"v_and_b32 v{P+1}, s43, v{EX+2*a}",
                f"v_lshlrev_b32 v{P+2}, 16, v{EX+2*a+1}", f"v_and_b32 v{P+3}, s43, v{EX+2*a+1}"]
        pre += [f"v_fmac_f32 v{P+k}, s53, v{44+k}" for k in range(4)]
    for l in reads(0) + reads(1): A(l)
    for d in range(32):
        b = BUF + 16 * (d % 3)
        nr = reads(d + 2) if d + 2 < 32 else []
        A(f"s_waitcnt lgkmcnt({6 if d < 31 else 0})")
        c0 = "0" if d == 0 else v(AC0, 16)
        c1 = "0" if d == 0 else v(AC1, 16)
        m = [f"v_mfma_f32_32x32x16_bf16 {v(AC0,16)}, {v(b,4)}, {v(b+8,4)}, {c0}",
             f"v_mfma_f32_32x32x16_bf16 {v(AC1,16)}, {v(b,4)}, {v(b+12,4)}, {c1}",
             f"v_mfma_f32_32x32x16_bf16 {v(AC1,16)}, {v(b+4,4)}, {v(b+8,4)}, {v(AC1,16)}"]
        for k in range(3):
            A(m[k])
            for l in nr[2*k:2*k+2]: A(l)
            if pre: A(pre.pop(0))
    h1 = A.label("KAh1"); jn = A.label("KAjn")
    A(f"""
    s_lshl_b32 s46, s36, 12
    v_lshl_add_u32 v4, v{vLane}, 4, s46
    v_xor_b32 v5, 0x1000, v4
    s_cmp_eq_u32 s39, 1
    s_cbranch_scc1 {h1}
    """)
    for (send, keep, lab) in ((AC1, AC0, None), (AC0, AC1, h1)):
        if lab: A(f"{lab}:")
        for q in range(4): A(f"ds_write_b128 v4, {v(send+4*q,4)} offset:{1024*q}")
        for q in range(8): A(f"v_pk_add_f32 {v(PRE+2*q,2)}, {v(PRE+2*q,2)}, {v(keep+2*q,2)}")
        if not lab: A(f"s_branch {jn}")
    A(f"{jn}:\ns_waitcnt lgkmcnt(0)\ns_barrier")
    for q in range(4): A(f"ds_read_b128 {v(BUF+4*q,4)}, v5 offset:{1024*q}")
    A(f"""
    s_lshl_b32 s46, s37, 1
    s_add_u32 s46, s46, s38
    s_lshl_b32 s46, s46, 12
    s_lshl_b32 s47, s39, 11
    s_add_u32 s46, s46, s47
    s_add_u32 s46, s46, {WS_HT}
    v_lshlrev_b32 v4, 6, v{vJ}
    v_lshl_add_u32 v4, v{vG}, 4, v4
    v_add_u32 v4, s46, v4
    s_waitcnt lgkmcnt(0)
    """)
    for q in range(8): A(f"v_pk_add_f32 {v(PRE+2*q,2)}, {v(PRE+2*q,2)}, {v(BUF+2*q,2)}")
    for q in range(8): A(f"v_cvt_pk_bf16_f32 v{12+q}, v{PRE+2*q}, v{PRE+2*q+1}")
    for hq in range(2):
        A(f"v_permlane32_swap_b32 v{12+4*hq}, v{12+4*hq+2}\nv_permlane32_swap_b32 v{12+4*hq+1}, v{12+4*hq+3}")
        A(f"global_store_dwordx4 v4, {v(12+4*hq,4)}, s[30:31] offset:{32*hq}")
    A(f"{end}:\ns_endpgm")
    return kernel_desc(name, 236, 64)
```

```python
from base import *
from ka import load_ptrs
STG = 24576
NSLOT = 6
CSO = STG * NSLOT
CON = CSO + 1024
KB_LDS = CON + 2048
GK0 = -2.0 * LOG2E * 0.7978845608028654
GK1 = GK0 * 0.044715

def gen_kb(A, name):
    kernel_head(A, name)
    end = A.label("KBend"); ldr = A.label("KBldr")
    A(f"s_cmp_ge_u32 s2, 224\ns_cbranch_scc1 {end}")
    A("s_load_dwordx4 s[20:23], s[0:1], 64\ns_load_dwordx2 s[30:31], s[0:1], 104")
    vLane = 1
    A(f"""
    v_and_b32 v{vLane}, 63, v0
    v_lshrrev_b32 v4, 6, v0
    s_and_b32 s37, s2, 7
    v_readfirstlane_b32 s36, v4
    s_lshr_b32 s38, s2, 3
    s_lshr_b32 s39, s37, 1
    s_lshl_b32 s39, s39, 2
    s_and_b32 s40, s38, 3
    s_add_u32 s39, s39, s40
    s_and_b32 s37, s37, 1
    s_mul_i32 s37, s37, 7
    s_lshr_b32 s38, s38, 2
    s_add_u32 s38, s38, s37
    v_bfe_u32 v2, v{vLane}, 2, 2
    v_bfe_u32 v3, v{vLane}, 4, 1
    v_lshrrev_b32 v4, 5, v{vLane}
    v_lshl_add_u32 v5, v4, 3, v2
    v_lshlrev_b32 v5, 8, v5
    v_and_b32 v6, 3, v{vLane}
    v_lshl_add_u32 v5, v6, 3, v5
    s_cmp_ge_u32 s36, 4
    s_cbranch_scc1 {ldr}
    """)
    vB, vAa = 8, 10
    A(f"""
    s_and_b32 s40, s36, 1
    s_lshr_b32 s41, s36, 1
    s_lshl_b32 s42, s40, 1
    v_xor_b32 v6, s42, v2
    v_lshl_add_u32 v6, v6, 6, v5
    v_lshl_add_u32 v{vB}, v3, 5, v6
    v_xor_b32 v{vB+1}, 64, v{vB}
    s_lshl_b32 s42, s41, 2
    v_lshl_add_u32 v6, v3, 2, v2
    v_xor_b32 v6, s42, v6
    v_lshl_add_u32 v6, v6, 5, v5
    v_lshl_add_u32 v6, v3, 13, v6
    v_add_u32 v{vAa}, 8192, v6
    v_xor_b32 v{vAa+1}, 32, v{vAa}
    v_xor_b32 v{vAa+2}, 64, v{vAa}
    v_xor_b32 v{vAa+3}, 96, v{vAa}
    """)
    ACC = 128
    F = [16, 40]
    for i in range(128): A(f"v_mov_b32 v{ACC+i}, 0")
    def reads(f, ks):
        o = []
        off = 4096 * ks
        order = [("B", 0), ("A", 0), ("B", 1), ("A", 1), ("A", 2), ("A", 3)]
        for kind, i in order:
            r = f + (16 + 4 * i if kind == "B" else 4 * i)
            ad = (vB if kind == "B" else vAa) + i
            o += [f"ds_read_b64_tr_b16 {v(r,2)}, v{ad} offset:{off}", f"ds_read_b64_tr_b16 {v(r+2,2)}, v{ad} offset:{off+1024}"]
        return o
    def mfmas(f):
        return [f"v_mfma_f32_32x32x16_bf16 {v(ACC+32*t+16*rt,16)}, {v(f+4*t,4)}, {v(f+16+4*rt,4)}, {v(ACC+32*t+16*rt,16)}" for t in range(4) for rt in range(2)]
    def inter(m, r):
        for i in range(8):
            A(m[i])
            for l in r[2*i:2*i+2]: A(l)
    top = A.label("KBtop"); mid = A.label("KBmid")
    A("s_mov_b32 s44, 0\ns_mov_b32 s45, 0\ns_barrier")
    for l in reads(F[0], 0): A(l)
    A(f"s_branch {mid}\n.p2align 3\n{top}:\ns_barrier")
    inter(mfmas(F[1]), reads(F[0], 0))
    A(f"{mid}:\ns_waitcnt lgkmcnt(0)")
    upd = [f"v_add_u32 v{r}, s46, v{r}" for r in range(vB, vB + 6)]
    A(f"""
    s_add_u32 s45, s45, 1
    s_cmp_eq_u32 s45, {NSLOT}
    s_cselect_b32 s46, {-(NSLOT-1)*STG}, {STG}
    s_cselect_b32 s45, 0, s45
    """.replace(f"s_cselect_b32 s46, {-(NSLOT-1)*STG}, {STG}", f"s_movk_i32 s46, {STG}\ns_cselect_b32 s46, {-(NSLOT-1)*STG}, s46"))
    inter(mfmas(F[0]), reads(F[1], 1) + upd[:4])
    for l in upd[4:]: A(l)
    A(f"s_add_u32 s44, s44, 1\ns_cmp_lt_u32 s44, 14\ns_waitcnt lgkmcnt(0)\ns_cbranch_scc1 {top}")
    for l in mfmas(F[1]): A(l)
    A("s_barrier")
    CN = 16
    A(f"""
    v_and_b32 v6, 31, v{vLane}
    s_lshl_b32 s42, s40, 10
    s_add_u32 s42, s42, {CON}
    v_lshl_add_u32 v6, v6, 4, s42
    ds_read_b128 {v(CN,4)}, v6
    ds_read_b128 {v(CN+4,4)}, v6 offset:512
    s_lshl_b32 s42, s41, 8
    s_add_u32 s42, s42, {CSO}
    v_lshl_add_u32 v7, v4, 4, s42
    """)
    CS = 24
    for t in range(4):
        A(f"""
        ds_read_b128 {v(CS+16*t,4)}, v7 offset:{64*t}
        ds_read_b128 {v(CS+16*t+4,4)}, v7 offset:{64*t+32}
        ds_read_b128 {v(CS+16*t+8,4)}, v7 offset:{512+64*t}
        ds_read_b128 {v(CS+16*t+12,4)}, v7 offset:{512+64*t+32}
        """)
    A(f"""
    s_lshl_b32 s42, s39, 2
    s_lshl_b32 s43, s40, 1
    s_add_u32 s42, s42, s43
    s_mul_i32 s42, s42, 112
    s_lshl_b32 s43, s38, 3
    s_add_u32 s42, s42, s43
    s_lshl_b32 s43, s41, 2
    s_add_u32 s42, s42, s43
    s_lshl_b32 s42, s42, 10
    s_add_u32 s42, s42, {WS_ACT}
    v_lshl_add_u32 v6, v{vLane}, 4, s42
    v_add_u32 v7, {112*1024}, v6
    s_waitcnt lgkmcnt(0)
    """)
    T = 88
    n = 0
    for t in range(4):
        for rt in range(2):
            a = ACC + 32 * t + 16 * rt
            c = CN + 4 * rt
            cs = CS + 16 * t
            o = 120 + 4 * (n & 1)
            t1 = T + 16 * (n & 1); t2 = t1 + 8
            for p in range(8): A(f"v_pk_fma_f32 {v(a+2*p,2)}, {v(cs+2*p,2)}, {v(c+2,2)}, {v(a+2*p,2)} op_sel:[0,1,0] op_sel_hi:[1,1,1] neg_lo:[0,1,0] neg_hi:[0,1,0]")
            for p in range(4): A(f"v_pk_mul_f32 {v(t1+2*p,2)}, {v(a+2*p,2)}, {v(a+2*p,2)}")
            for p in range(4): A(f"v_pk_fma_f32 {v(t1+2*p,2)}, {v(t1+2*p,2)}, {v(c,2)}, {v(c,2)} op_sel:[0,1,0] op_sel_hi:[1,1,0]")
            for p in range(4): A(f"v_pk_mul_f32 {v(t1+2*p,2)}, {v(t1+2*p,2)}, {v(a+2*p,2)}")
            for p in range(8): A(f"v_exp_f32 v{t1+p}, v{t1+p}")
            for p in range(4): A(f"v_pk_mul_f32 {v(t2+2*p,2)}, {v(a+2*p,2)}, {v(a+8+2*p,2)}")
            for p in range(4): A(f"v_pk_fma_f32 {v(t1+2*p,2)}, {v(t1+2*p,2)}, {v(c+2,2)}, {v(c+2,2)} op_sel_hi:[1,0,0]")
            for p in range(8): A(f"v_rcp_f32 v{t1+p}, v{t1+p}")
            for p in range(4): A(f"v_pk_mul_f32 {v(t2+2*p,2)}, {v(t2+2*p,2)}, {v(t1+2*p,2)}")
            for p in range(4): A(f"v_cvt_pk_bf16_f32 v{o+p}, v{t2+2*p}, v{t2+2*p+1}")
            A(f"global_store_dwordx4 v{6+rt}, {v(o,4)}, s[30:31] offset:{1024*t}")
            n += 1
    A("s_endpgm")
    A(f"{ldr}:\ns_sub_u32 s36, s36, 4\ns_waitcnt lgkmcnt(0)")
    srd(A, 48, 30, X_BYTES, WS_HT)
    srd(A, 52, 20, W_BYTES)
    srd(A, 56, 22, W_BYTES)
    srd(A, 60, 30, 2 * F_ * 4, WS_CS)
    vH, vG_, vU, vS = 8, 9, 10, 11
    A(f"""
    v_lshrrev_b32 v6, 4, v{vLane}
    v_and_b32 v7, 15, v{vLane}
    v_lshlrev_b32 v12, 2, v6
    v_xor_b32 v12, v12, v7
    v_lshlrev_b32 v12, 4, v12
    v_lshl_add_u32 v{vH}, v6, 12, v12
    v_lshlrev_b32 v12, 1, v6
    v_xor_b32 v12, v12, v7
    v_mul_u32_u24 v13, 3584, v6
    v_lshl_add_u32 v{vG_}, v12, 4, v13
    v_xor_b32 v12, 8, v12
    v_lshl_add_u32 v{vU}, v12, 4, v13
    s_lshl_b32 s40, s39, 8
    s_lshl_b32 s41, s36, 14
    s_add_u32 s40, s40, s41
    s_lshl_b32 s41, s38, 8
    s_mul_i32 s42, s36, {4*3584}
    s_add_u32 s41, s41, s42
    s_lshl_b32 s42, s36, 10
    v_xor_b32 v6, s36, v2
    v_lshl_add_u32 v6, v6, 6, v5
    v_lshl_add_u32 v{vS}, v3, 5, v6
    """)
    A(f"""
    v_and_b32 v12, 31, v{vLane}
    v_mul_u32_u24 v13, {F_*4}, v4
    v_lshl_add_u32 v12, v12, 4, v13
    s_lshl_b32 s43, s38, 9
    s_mov_b32 m0, {CSO}
    buffer_load_dwordx4 v12, s[60:63], s43 offen lds
    """)
    def issue():
        A(f"""
        s_mov_b32 m0, s42
        s_add_u32 s43, s40, {16*4096}
        buffer_load_dwordx4 v{vH}, s[48:51], s40 offen lds
        s_add_u32 m0, s42, 8192
        s_add_u32 s46, s41, {16*3584}
        buffer_load_dwordx4 v{vG_}, s[52:55], s41 offen lds
        s_add_u32 m0, s42, 16384
        s_add_u32 s40, s40, {32*4096}
        buffer_load_dwordx4 v{vU}, s[56:59], s41 offen lds
        s_add_u32 m0, s42, 4096
        s_add_u32 s41, s41, {32*3584}
        buffer_load_dwordx4 v{vH}, s[48:51], s43 offen lds
        s_add_u32 m0, s42, {8192+4096}
        s_nop 0
        buffer_load_dwordx4 v{vG_}, s[52:55], s46 offen lds
        s_add_u32 m0, s42, {16384+4096}
        s_add_u32 s42, s42, {STG}
        buffer_load_dwordx4 v{vU}, s[56:59], s46 offen lds
        s_cmp_ge_u32 s42, {NSLOT*STG}
        s_cselect_b32 s43, {NSLOT*STG}, 0
        s_sub_u32 s42, s42, s43
        """)
    pl = A.label("KBpl")
    A(f"s_mov_b32 s44, 0\n{pl}:")
    issue()
    A(f"s_add_u32 s44, s44, 1\ns_cmp_lt_u32 s44, {NSLOT-1}\ns_cbranch_scc1 {pl}")
    A("s_mov_b32 s44, 0\ns_mov_b32 s45, 0\ns_mov_b32 s47, 0x3f803f80")
    for i in range(4): A(f"v_mov_b32 v{24+i}, 0")
    ll = A.label("KBll")
    A(f"{ll}:\ns_waitcnt vmcnt({6*(NSLOT-2)})\ns_barrier")
    for i in range(4): A(f"ds_read_b64_tr_b16 {v(16+2*i,2)}, v{vS} offset:{(i>>1)*4096+(i&1)*1024}")
    issue()
    A(f"""
    s_add_u32 s45, s45, 1
    s_cmp_eq_u32 s45, {NSLOT}
    s_movk_i32 s46, {STG}
    s_cselect_b32 s46, {-(NSLOT-1)*STG}, s46
    s_cselect_b32 s45, 0, s45
    v_add_u32 v{vS}, s46, v{vS}
    s_waitcnt lgkmcnt(0)
    """)
    for i in range(8):
        A(f"v_dot2_f32_bf16 v{24+(i&1)}, v{16+i}, s47, v{24+(i&1)}\nv_dot2_f32_bf16 v{26+(i&1)}, v{16+i}, v{16+i}, v{26+(i&1)}")
    A(f"s_add_u32 s44, s44, 1\ns_cmp_lt_u32 s44, 14\ns_cbranch_scc1 {ll}")
    A(f"""
    v_add_f32 v24, v24, v25
    v_add_f32 v26, v26, v27
    v_mov_b32 v25, v24
    v_mov_b32 v27, v26
    v_permlane32_swap_b32 v24, v25
    v_permlane32_swap_b32 v26, v27
    v_add_f32 v24, v24, v25
    v_add_f32 v26, v26, v27
    s_mov_b32 s43, 0xffff0000
    v_mul_f32 v24, {f32(1.0/448)}, v24
    v_mul_f32 v26, {f32(1.0/448)}, v26
    v_fma_f32 v26, -v24, v24, v26
    v_max_f32 v26, 0, v26
    v_cvt_pk_bf16_f32 v24, v26, v24
    v_lshlrev_b32 v26, 16, v24
    v_and_b32 v31, s43, v24
    v_add_f32 v26, {f32(1e-5)}, v26
    v_cvt_pk_bf16_f32 v26, v26, v26
    v_and_b32 v26, s43, v26
    v_sqrt_f32 v26, v26
    v_cvt_pk_bf16_f32 v26, v26, v26
    v_and_b32 v26, s43, v26
    v_rcp_f32 v27, v26
    v_mul_f32 v30, v26, v26
    v_mul_f32 v28, {f32(GK0)}, v27
    v_mul_f32 v29, v27, v27
    v_mul_f32 v29, v29, v27
    v_mul_f32 v29, {f32(GK1)}, v29
    v_and_b32 v6, 31, v{vLane}
    s_lshl_b32 s42, s36, 9
    s_add_u32 s42, s42, {CON}
    v_lshl_add_u32 v6, v6, 4, s42
    ds_write_b128 v6, v[28:31]
    s_waitcnt lgkmcnt(0)
    s_barrier
    """)
    A(f"{end}:\ns_endpgm")
    return kernel_desc(name, 256, 72)
```

```python
from base import *
STG = 16384
NSLOT = 7
HO = STG * NSLOT
KC_LDS = HO + 8192

def gen_kc(A, name):
    kernel_head(A, name)
    end = A.label("KCend")
    A(f"s_cmp_ge_u32 s2, 224\ns_cbranch_scc1 {end}")
    A("s_load_dwordx4 s[24:27], s[0:1], 80\ns_load_dwordx2 s[30:31], s[0:1], 104")
    vLane = 1
    A(f"""
    v_and_b32 v{vLane}, 63, v0
    v_lshrrev_b32 v4, 6, v0
    s_and_b32 s37, s2, 7
    v_readfirstlane_b32 s36, v4
    s_lshr_b32 s38, s2, 3
    s_lshl_b32 s39, s37, 2
    s_and_b32 s40, s38, 3
    s_add_u32 s39, s39, s40
    s_lshr_b32 s38, s38, 2
    s_and_b32 s40, s36, 1
    s_lshr_b32 s41, s36, 1
    """)
    vD, vAct, vA, vHh = 8, 9, 10, 12
    A(f"""
    v_lshrrev_b32 v5, 3, v{vLane}
    v_and_b32 v6, 7, v{vLane}
    v_bfe_u32 v7, v{vLane}, 4, 1
    v_lshlrev_b32 v7, 2, v7
    v_xor_b32 v6, v6, v7
    v_lshlrev_b32 v6, 4, v6
    v_mul_u32_u24 v7, 896, v5
    v_add_u32 v{vD}, v7, v6
    v_lshl_add_u32 v{vHh}, v5, 12, v6
    v_lshlrev_b32 v{vAct}, 4, v{vLane}
    s_waitcnt lgkmcnt(0)
    """)
    srd(A, 48, 24, W_BYTES)
    srd(A, 52, 30, ACT_BYTES, WS_ACT)
    srd(A, 56, 30, X_BYTES, WS_HT)
    A(f"""
    s_mul_i32 s42, s41, {896*896}
    s_mul_i32 s43, s40, {32*896}
    s_add_u32 s42, s42, s43
    s_lshl_b32 s43, s38, 7
    s_add_u32 s42, s42, s43
    s_lshl_b32 s43, s36, 12
    s_lshl_b32 s44, s39, 1
    s_add_u32 s44, s44, s40
    s_mul_i32 s44, s44, 112
    s_mul_i32 s45, s41, 56
    s_add_u32 s44, s44, s45
    s_lshl_b32 s44, s44, 10
    """)
    ACT = 128
    def issue(s):
        slot = s % NSLOT
        for i in range(4):
            A(f"s_add_u32 m0, s43, {slot*STG+i*1024}")
            if i: A(f"s_add_u32 s45, s42, {i*8*896}")
            else: A("s_nop 0")
            A(f"buffer_load_dwordx4 v{vD}, s[48:51], {'s45' if i else 's42'} offen lds")
            A(f"buffer_load_dwordx4 {v(ACT+16*slot+4*i,4)}, v{vAct}, s[52:55], s44 offen offset:{1024*i}")
        A(f"s_add_u32 s42, s42, {64*896}\ns_add_u32 s44, s44, 4096")
    A(f"""
    s_lshl_b32 s45, s38, 6
    s_lshl_b32 s46, s36, 4
    s_add_u32 s45, s45, s46
    s_lshl_b32 s45, s45, 12
    s_lshl_b32 s46, s39, 7
    s_add_u32 s45, s45, s46
    s_lshl_b32 s46, s36, 11
    s_add_u32 m0, s46, {HO}
    s_add_u32 s47, s45, {8*4096}
    buffer_load_dwordx4 v{vHh}, s[56:59], s45 offen lds
    s_add_u32 m0, s46, {HO+1024}
    s_nop 0
    buffer_load_dwordx4 v{vHh}, s[56:59], s47 offen lds
    """)
    for s in range(NSLOT - 1): issue(s)
    A(f"""
    v_bfe_u32 v2, v{vLane}, 2, 2
    v_bfe_u32 v3, v{vLane}, 4, 1
    v_lshrrev_b32 v4, 5, v{vLane}
    v_lshl_add_u32 v5, v4, 2, v2
    v_lshlrev_b32 v5, 7, v5
    v_lshrrev_b32 v6, 1, v2
    v_lshl_add_u32 v5, v6, 6, v5
    v_lshl_add_u32 v5, v3, 5, v5
    v_and_b32 v6, 3, v{vLane}
    v_lshl_add_u32 v5, v6, 3, v5
    s_lshl_b32 s45, s41, 13
    v_add_u32 v{vA}, s45, v5
    v_xor_b32 v{vA+1}, 64, v{vA}
    v_add_u32 v14, {4*STG}, v{vA}
    v_add_u32 v15, {4*STG}, v{vA+1}
    s_lshl_b32 s45, s40, 6
    v_xor_b32 v5, s45, v5
    s_lshl_b32 s45, s41, 12
    s_add_u32 s45, s45, {HO}
    v_add_u32 v13, s45, v5
    """)
    A(f"v_and_b32 v5, 31, v{vLane}\nv_lshlrev_b32 v6, 2, v4\nv_sub_u32 v5, v5, v6\nv_mov_b32 v6, 0x3f80\nv_mov_b32 v7, 1.0")
    for j in range(2):
        for i in range(4):
            d0 = 16 * j + 8 * (i >> 1) + 2 * (i & 1)
            A(f"""
            v_cmp_eq_u32 vcc, {d0}, v5
            v_cmp_eq_u32 s[46:47], {d0+1}, v5
            v_cndmask_b32 v{16+4*j+i}, 0, v6, vcc
            v_cndmask_b32 v{16+4*j+i}, v{16+4*j+i}, v7, s[46:47]
            """)
    AC = [32, 48]
    FR = 64
    for s in range(14):
        slot = s % NSLOT
        issued = min(13, s + NSLOT - 2)
        A(f"s_waitcnt vmcnt({8*(issued-s)})\ns_barrier")
        ab = (vA if slot < 4 else 14)
        so = (slot if slot < 4 else slot - 4) * STG
        for ks in range(4):
            for nt in range(2):
                r = FR + 8 * ks + 4 * nt
                A(f"ds_read_b64_tr_b16 {v(r,2)}, v{ab+nt} offset:{so+2048*ks}\nds_read_b64_tr_b16 {v(r+2,2)}, v{ab+nt} offset:{so+2048*ks+1024}")
        if s + NSLOT - 1 < 14: issue(s + NSLOT - 1)
        for ks in range(4):
            A(f"s_waitcnt lgkmcnt({12-4*ks})")
            for nt in range(2):
                c = "0" if (s == 0 and ks == 0) else v(AC[nt], 16)
                A(f"v_mfma_f32_32x32x16_bf16 {v(AC[nt],16)}, {v(FR+8*ks+4*nt,4)}, {v(ACT+16*slot+4*ks,4)}, {c}")
    for j in range(2):
        A(f"ds_read_b64_tr_b16 {v(24+4*j,2)}, v13 offset:{2048*j}\nds_read_b64_tr_b16 {v(26+4*j,2)}, v13 offset:{2048*j+1024}")
    k1 = A.label("KCk1"); jn = A.label("KCjn")
    A(f"""
    s_barrier
    s_lshl_b32 s46, s36, 12
    v_lshl_add_u32 v5, v{vLane}, 4, s46
    v_xor_b32 v6, 0x2000, v5
    s_waitcnt lgkmcnt(0)
    s_cmp_eq_u32 s41, 1
    s_cbranch_scc1 {k1}
    """)
    R = 96
    for (send, keep, lab) in ((AC[1], AC[0], None), (AC[0], AC[1], k1)):
        if lab: A(f"{lab}:")
        A(f"v_mfma_f32_32x32x16_bf16 {v(keep,16)}, {v(16,4)}, {v(24,4)}, {v(keep,16)}")
        A(f"v_mfma_f32_32x32x16_bf16 {v(R,16)}, {v(20,4)}, {v(28,4)}, {v(keep,16)}")
        for q in range(4): A(f"ds_write_b128 v5, {v(send+4*q,4)} offset:{1024*q}")
        if not lab: A(f"s_branch {jn}")
    A(f"{jn}:\ns_waitcnt lgkmcnt(0)\ns_barrier")
    for q in range(4): A(f"ds_read_b128 {v(FR+4*q,4)}, v6 offset:{1024*q}")
    A(f"""
    s_lshl_b32 s45, s39, 1
    s_add_u32 s45, s45, s40
    s_mul_i32 s45, s45, {32*896}
    s_lshl_b32 s46, s38, 7
    s_add_u32 s45, s45, s46
    s_lshl_b32 s46, s41, 6
    s_add_u32 s45, s45, s46
    v_and_b32 v5, 31, v{vLane}
    v_mul_u32_u24 v5, 896, v5
    v_lshl_add_u32 v5, v4, 4, v5
    v_add_u32 v5, s45, v5
    s_waitcnt lgkmcnt(0)
    """)
    for q in range(8): A(f"v_pk_add_f32 {v(R+2*q,2)}, {v(R+2*q,2)}, {v(FR+2*q,2)}")
    for q in range(8): A(f"v_cvt_pk_bf16_f32 v{16+q}, v{R+2*q}, v{R+2*q+1}")
    for hq in range(2):
        A(f"v_permlane32_swap_b32 v{16+4*hq}, v{16+4*hq+2}\nv_permlane32_swap_b32 v{16+4*hq+1}, v{16+4*hq+3}")
        A(f"global_store_dwordx4 v5, {v(16+4*hq,4)}, s[26:27] offset:{32*hq}")
    A(f"{end}:\ns_endpgm")
    return kernel_desc(name, 240, 72)
```

```python
import sys
from base import *
import hz, ka, kb, kc
HEAD = open("sequential_preLN__ssm_conv_s4d__geglu_ffn__prompt.s.ref").read().split("; Override launch")[0]
def build(kernels, path, verbose=False):
    A = Asm()
    descs = []
    done = set()
    for name, fn, g, b, lds in kernels:
        if name in done: continue
        done.add(name)
        descs.append(fn(A, name))
    lines = hz.fix(A.L, verbose)
    s = HEAD
    for name, fn, g, b, lds in kernels:
        s += f"; @launch kernel={name} grid=({g},1,1) block=({b},1,1) lds={lds}\n"
    s += '.amdgcn_target "amdgcn-amd-amdhsa--gfx950"\n.text\n' + "\n".join(lines) + '\n.section .rodata,"a"\n' + "".join(descs)
    open(path, "w").write(s)
def gen_nop(A, name):
    kernel_head(A, name); A("s_endpgm"); return kernel_desc(name, 8, 16)
K0 = ("k0_kernel", ka.gen_k0, 256, 256, 0)
KA = ("ka_kernel", ka.gen_ka, 256, 256, ka.KA_LDS)
KB = ("kb_kernel", kb.gen_kb, 224, 512, kb.KB_LDS)
KC = ("kc_kernel", kc.gen_kc, 224, 256, kc.KC_LDS)
NOP = ("nop_kernel", gen_nop, 256, 256, 0)
if __name__ == "__main__":
    build([K0, KA, KB, KC], "v1.s", True)
    build([K0, KA, KB, KC, NOP], "v1_nop1.s")
    build([K0, KA, KB, KC, NOP, NOP, NOP, NOP], "v1_nop4.s")
```

```python
import struct
class Asm:
    def __init__(s):
        s.L = []
        s.nl = 0
    def __call__(s, t):
        for l in t.split("\n"):
            l = l.strip()
            if not l: continue
            s.L.append(l if l.endswith(":") or l.startswith(".") else "    " + l)
    def label(s, p="L"):
        s.nl += 1
        return "%s_%d" % (p, s.nl)
def f32(x): return "0x%08x" % struct.unpack("<I", struct.pack("<f", x))[0]
def v(a, n=1): return "v%d" % a if n == 1 else "v[%d:%d]" % (a, a + n - 1)
def a_(a, n=1): return "a%d" % a if n == 1 else "a[%d:%d]" % (a, a + n - 1)
def s_(a, n=1): return "s%d" % a if n == 1 else "s[%d:%d]" % (a, a + n - 1)
def merge(*streams):
    streams = [list(x) for x in streams if x]
    out = []
    tot = [len(x) for x in streams]; pos = [0] * len(streams)
    while any(pos[i] < tot[i] for i in range(len(streams))):
        i = min((i for i in range(len(streams)) if pos[i] < tot[i]), key=lambda i: (pos[i] + 0.5) / tot[i])
        out.append(streams[i][pos[i]]); pos[i] += 1
    return out
def srd(A, d, b, nbytes, off=0):
    if off:
        A(f"s_add_u32 s{d}, s{b}, {off}\ns_addc_u32 s{d+1}, s{b+1}, 0")
    else:
        A(f"s_mov_b32 s{d}, s{b}\ns_mov_b32 s{d+1}, s{b+1}")
    A(f"s_mov_b32 s{d+2}, {nbytes}\ns_mov_b32 s{d+3}, 0x20000")
def kernel_head(A, name):
    A(f".globl {name}\n.p2align 8\n.type {name},@function\n{name}:")
def kernel_desc(name, vgpr, sgpr, accum=None):
    if accum is None: accum = (vgpr + 3) // 4 * 4
    return f""".p2align 6
.amdhsa_kernel {name}
  .amdhsa_next_free_vgpr {vgpr}
  .amdhsa_next_free_sgpr {sgpr}
  .amdhsa_accum_offset {accum}
  .amdhsa_group_segment_fixed_size 0
  .amdhsa_kernarg_size 112
  .amdhsa_user_sgpr_count 2
  .amdhsa_user_sgpr_kernarg_segment_ptr 1
  .amdhsa_system_sgpr_workgroup_id_x 1
.end_amdhsa_kernel
"""
L_, D_, N_, F_ = 2048, 448, 256, 1792
WS_STATS = 0
WS_CS = 0x8000
WS_HT = 0x10000
WS_ACT = 0x200000
WS_FLAGS = 0x1E0000
X_BYTES = L_ * D_ * 2
P_BYTES = D_ * N_ * 2
W_BYTES = D_ * F_ * 2
ACT_BYTES = L_ * F_ * 2
LOG2E = 1.4426950408889634
DPP = " row_mask:0xf bank_mask:0xf"
def reduce32(A, r, t):
    A(f"v_add_f32_dpp v{r}, v{r}, v{r} quad_perm:[1,0,3,2]{DPP}")
    A(f"v_add_f32_dpp v{r}, v{r}, v{r} quad_perm:[2,3,0,1]{DPP}")
    A(f"v_add_f32_dpp v{r}, v{r}, v{r} row_half_mirror{DPP}")
    A(f"v_add_f32_dpp v{r}, v{r}, v{r} row_mirror{DPP}")
    A(f"v_mov_b32 v{t}, v{r}")
    A(f"v_permlane16_swap_b32 v{r}, v{t}")
    A(f"v_add_f32 v{r}, v{r}, v{t}")

PROF = False
WS_PROF = 0x1000000
class Prof:
    def __init__(s, A, kid): s.A = A; s.kid = kid
    def stamp(s, i):
        if PROF: s.A(f"s_memrealtime s[{72+2*i}:{73+2*i}]")
    def flush(s, n, wsreg=30):
        if not PROF: return
        A = s.A
        A("s_waitcnt vmcnt(0)")
        s.stamp(n)
        A("s_waitcnt lgkmcnt(0)")
        A(f"v_lshrrev_b32 v2, 6, v0\nv_lshl_add_u32 v2, s2, 3, v2\nv_lshlrev_b32 v2, 6, v2\nv_add_u32 v2, {WS_PROF + s.kid*0x20000}, v2")
        for i in range(n + 1):
            A(f"v_mov_b32 v3, s{72+2*i}\nglobal_store_dword v2, v3, s[{wsreg}:{wsreg+1}] offset:{4*i}")
```

```python
import sys
from base import *
import hz, ka, kb, kc
HEAD = open("sequential_preLN__ssm_conv_s4d__geglu_ffn__prompt.s.ref").read().split("; Override launch")[0]
def build(kernels, path, verbose=False):
    A = Asm()
    descs = []
    done = set()
    for name, fn, g, b, lds in kernels:
        if name in done: continue
        done.add(name)
        descs.append(fn(A, name))
    lines = hz.fix(A.L, verbose)
    s = HEAD
    for name, fn, g, b, lds in kernels:
        s += f"; @launch kernel={name} grid=({g},1,1) block=({b},1,1) lds={lds}\n"
    s += '.amdgcn_target "amdgcn-amd-amdhsa--gfx950"\n.text\n' + "\n".join(lines) + '\n.section .rodata,"a"\n' + "".join(descs)
    open(path, "w").write(s)
def gen_nop(A, name):
    kernel_head(A, name); A("s_endpgm"); return kernel_desc(name, 8, 16)
K0 = ("k0_kernel", ka.gen_k0, 256, 256, 0)
KA = ("ka_kernel", ka.gen_ka, 256, 256, ka.KA_LDS)
KB = ("kb_kernel", kb.gen_kb, 224, 512, kb.KB_LDS)
KC = ("kc_kernel", kc.gen_kc, 224, 256, kc.KC_LDS)
NOP = ("nop_kernel", gen_nop, 256, 256, 0)
if __name__ == "__main__":
    import base
    build([K0, KA, KB, KC], "v1.s")
    base.PROF = True
    build([K0, KA, KB, KC], "v1_prof.s")
```

```python
from base import *

def load_ptrs(A):
    A("s_load_dwordx16 s[4:19], s[0:1], 0")
    A("s_load_dwordx8 s[20:27], s[0:1], 64")
    A("s_load_dwordx4 s[28:31], s[0:1], 96")

def stats_issue(A, vX, vT):
    A(f"""
    v_and_b32 v{vT}, 31, v0
    v_lshrrev_b32 v{vT+1}, 5, v0
    v_lshl_add_u32 v{vT+1}, s2, 3, v{vT+1}
    v_mul_u32_u24 v{vT+1}, 896, v{vT+1}
    v_lshl_add_u32 v{vT+1}, v{vT}, 4, v{vT+1}
    v_cmp_gt_u32 s[40:41], 28, v{vT}
    v_mov_b32 v{vT}, 0x40000000
    v_cndmask_b32 v{vT+1}, v{vT}, v{vT+1}, s[40:41]
    buffer_load_dwordx4 {v(vX,4)}, v{vT+1}, s[32:35], 0 offen
    buffer_load_dwordx4 {v(vX+4,4)}, v{vT+1}, s[32:35], 0 offen offset:448
    """)
def stats_compute(A, vX, vW, tagreg):
    a0, a1, m, t = vW, vW + 1, vW + 2, vW + 4
    U = vW + 6
    A("s_mov_b32 s42, 0x3f803f80\ns_mov_b32 s43, 0xffff0000")
    A(f"v_dot2_f32_bf16 v{a0}, v{vX}, s42, 0\nv_dot2_f32_bf16 v{a1}, v{vX+1}, s42, 0")
    for i in range(2, 8):
        A(f"v_dot2_f32_bf16 v{a0+(i&1)}, v{vX+i}, s42, v{a0+(i&1)}")
    for i in range(8):
        A(f"v_lshlrev_b32 v{U+2*i}, 16, v{vX+i}\nv_and_b32 v{U+2*i+1}, s43, v{vX+i}")
    A(f"v_add_f32 v{m}, v{a0}, v{a1}")
    reduce32(A, m, t)
    A(f"v_mul_f32 v{m}, {f32(1.0/448)}, v{m}")
    for i in range(8):
        A(f"v_pk_add_f32 {v(U+2*i,2)}, {v(U+2*i,2)}, {v(m,2)} op_sel_hi:[1,0] neg_lo:[0,1] neg_hi:[0,1]")
    A(f"v_pk_mul_f32 {v(a0,2)}, {v(U,2)}, {v(U,2)}")
    for i in range(1, 8):
        A(f"v_pk_fma_f32 {v(a0,2)}, {v(U+2*i,2)}, {v(U+2*i,2)}, {v(a0,2)}")
    A(f"v_add_f32 v{a0}, v{a0}, v{a1}\nv_cndmask_b32 v{a0}, 0, v{a0}, s[40:41]")
    reduce32(A, a0, t)
    A(f"""
    v_mul_f32 v{a0}, {f32(1.0/448)}, v{a0}
    v_cvt_pk_bf16_f32 v{a0}, v{a0}, v{a0}
    v_and_b32 v{a0}, s43, v{a0}
    v_add_f32 v{a0}, {f32(1e-5)}, v{a0}
    v_cvt_pk_bf16_f32 v{a0}, v{a0}, v{a0}
    v_and_b32 v{a0}, s43, v{a0}
    v_sqrt_f32 v{a0}, v{a0}
    v_cvt_pk_bf16_f32 v{a0}, v{m}, v{a0}
    v_mov_b32 v{a1}, {tagreg}
    v_lshrrev_b32 v{t}, 5, v0
    v_lshl_add_u32 v{t}, s2, 3, v{t}
    v_lshlrev_b32 v{t}, 3, v{t}
    v_and_b32 v{t+1}, 31, v0
    v_cmp_eq_u32 vcc, 0, v{t+1}
    s_and_saveexec_b64 s[44:45], vcc
    global_store_dwordx2 v{t}, {v(a0,2)}, s[30:31] sc0 sc1
    s_mov_b64 exec, s[44:45]
    """)

def gen_k0(A, name):
    kernel_head(A, name)
    end = A.label("K0end")
    A(f"s_cmp_ge_u32 s2, 256\ns_cbranch_scc1 {end}")
    P = Prof(A, 0); P.stamp(0)
    load_ptrs(A)
    A("s_waitcnt lgkmcnt(0)")
    P.stamp(1)
    srd(A, 32, 4, X_BYTES)
    stats_issue(A, 8, 2)
    A("s_waitcnt vmcnt(0)")
    P.stamp(2)
    stats_compute(A, 8, 16, "0")
    P.stamp(3)
    P.flush(4)
    A(f"{end}:\ns_endpgm")
    return kernel_desc(name, 48, 100)

GH = 0
KC = 65536
KPITCH = 4160
UP = KC + 8 * KPITCH
UPITCH = 1568
XP = UP + 8 * UPITCH
XPITCH = 1056
KA_LDS = XP + 8 * XPITCH

def cmul(dst, x, w, t=None):
    if t is None: t = dst
    return [f"v_pk_mul_f32 {v(t,2)}, {v(x,2)}, {v(w,2)} op_sel_hi:[1,0]",
            f"v_pk_fma_f32 {v(dst,2)}, {v(x,2)}, {v(w,2)}, {v(t,2)} op_sel:[1,1,0] op_sel_hi:[0,1,1] neg_lo:[0,1,0]"]
def cexp(dst, a2, b2, preg, t):
    o = []
    if preg is None:
        o += [f"v_exp_f32 v{t}, v{a2}", f"v_fract_f32 v{t+1}, v{b2}"]
    else:
        o += [f"v_mul_f32 v{t}, {preg}, v{a2}", f"v_mul_f32 v{t+1}, {preg}, v{b2}", f"v_exp_f32 v{t}, v{t}", f"v_fract_f32 v{t+1}, v{t+1}"]
    o += [f"v_cos_f32 v{dst}, v{t+1}", f"v_sin_f32 v{dst+1}, v{t+1}", f"v_pk_mul_f32 {v(dst,2)}, {v(dst,2)}, {v(t,2)} op_sel_hi:[1,0]"]
    return o

def gen_helper(A, end):
    A(f"""
    s_sub_u32 s46, s2, 224
    s_cmp_ge_u32 s46, 28
    s_cbranch_scc1 {end}
    s_cmp_ge_u32 s46, 14
    s_cselect_b32 s48, s22, s20
    s_cselect_b32 s49, s23, s21
    s_cselect_b32 s47, 14, 0
    s_sub_u32 s47, s46, s47
    s_lshl_b32 s47, s47, 8
    s_mov_b32 s50, {W_BYTES}
    s_mov_b32 s51, 0x20000
    v_and_b32 v1, 15, v0
    v_lshrrev_b32 v2, 4, v0
    v_mul_u32_u24 v2, 3584, v2
    v_lshl_add_u32 v2, v1, 4, v2
    """)
    for p in range(28):
        A(f"buffer_load_dwordx4 {v(16+4*p,4)}, v2, s[48:51], s47 offen")
        if p < 27: A("s_add_u32 s47, s47, %d" % (16 * 3584))
    A("s_mov_b32 s42, 0x00003f80\ns_mov_b32 s43, 0x3f800000")
    for p in range(28):
        A(f"s_waitcnt vmcnt({27-p})")
        for q in range(4):
            for hl in range(2):
                acc = 4 + 2 * q + hl
                A(f"v_dot2_f32_bf16 v{acc}, v{16+4*p+q}, s{42+hl}, {'0' if p == 0 else 'v%d' % acc}")
    for q in range(8):
        A(f"v_mov_b32 v{16+q}, v{4+q}")
    for q in range(8):
        A(f"v_permlane16_swap_b32 v{4+q}, v{16+q}")
    for q in range(8):
        A(f"v_add_f32 v{4+q}, v{4+q}, v{16+q}")
    for q in range(8):
        A(f"v_mov_b32 v{16+q}, v{4+q}")
    for q in range(8):
        A(f"v_permlane32_swap_b32 v{4+q}, v{16+q}")
    for q in range(8):
        A(f"v_add_f32 v{4+q}, v{4+q}, v{16+q}")
    A("""
    v_lshrrev_b32 v2, 6, v0
    v_lshlrev_b32 v2, 9, v2
    v_lshl_add_u32 v2, v1, 5, v2
    ds_write_b128 v2, v[4:7]
    ds_write_b128 v2, v[8:11] offset:16
    s_waitcnt lgkmcnt(0)
    s_barrier
    v_and_b32 v1, 127, v0
    v_lshlrev_b32 v1, 2, v1
    ds_read2st64_b32 v[4:5], v1 offset0:0 offset1:2
    ds_read2st64_b32 v[6:7], v1 offset0:4 offset1:6
    s_waitcnt lgkmcnt(0)
    v_add_f32 v4, v4, v5
    v_add_f32 v6, v6, v7
    v_add_f32 v4, v4, v6
    s_lshl_b32 s46, s46, 9
    s_add_u32 s46, s46, %d
    v_add_u32 v1, s46, v1
    global_store_dword v1, v4, s[30:31]
    s_endpgm
    """ % WS_CS)

def gen_ka(A, name, dbgK=False):
    kernel_head(A, name)
    end = A.label("KAend"); conv = A.label("KAconv")
    A(f"s_cmp_ge_u32 s2, 256\ns_cbranch_scc1 {end}")
    P = Prof(A, 1); P.stamp(0)
    load_ptrs(A)
    vLane, vG, vJ = 1, 2, 3
    A(f"""
    v_and_b32 v{vLane}, 63, v0
    v_lshrrev_b32 v4, 6, v0
    v_bfe_u32 v{vG}, v0, 5, 1
    v_and_b32 v{vJ}, 31, v0
    v_readfirstlane_b32 s36, v4
    s_and_b32 s37, s2, 7
    s_mul_i32 s37, s37, 28
    s_lshr_b32 s38, s2, 3
    s_add_u32 s37, s37, s38
    s_lshr_b32 s38, s36, 1
    s_and_b32 s39, s36, 1
    s_waitcnt lgkmcnt(0)
    s_cmp_lt_u32 s2, 224
    s_cbranch_scc1 {conv}
    """)
    gen_helper(A, end)
    A(f"{conv}:")
    P.stamp(1)
    A("""
    s_lshl_b32 s46, s37, 2
    s_load_dword s52, s[14:15], s46
    s_load_dword s53, s[16:17], s46
    """)
    vP = 8
    A(f"""
    s_lshl_b32 s46, s37, 10
    s_lshl_b32 s47, s36, 8
    s_add_u32 s46, s46, s47
    v_lshl_add_u32 v4, v{vLane}, 2, s46
    global_load_dword v{vP}, v4, s[6:7]
    global_load_dword v{vP+1}, v4, s[8:9]
    global_load_dword v{vP+2}, v4, s[10:11]
    global_load_dword v{vP+3}, v4, s[12:13]
    """)
    vXC = 12
    A(f"""
    s_lshl_b32 s46, s37, 2
    s_add_u32 s46, s46, {4*896}
    v_mul_u32_u24 v4, {8*896}, v0
    v_add_u32 v4, s46, v4
    """)
    for r in range(8):
        A(f"global_load_dword v{vXC+r}, v4, s[4:5] offset:{(r-4)*896}")
    vST = 20
    A(f"v_lshlrev_b32 v4, 6, v0")
    for q in range(4):
        A(f"global_load_dwordx4 {v(vST+4*q,4)}, v4, s[30:31] offset:{16*q} sc0 sc1")
    A(f"""
    v_mov_b32 v48, 0
    v_mov_b32 v49, 0
    v_mov_b32 v50, 0
    v_mov_b32 v51, 0
    v_lshrrev_b32 v4, 5, v0
    v_mul_u32_u24 v4, {UPITCH}, v4
    v_lshl_add_u32 v4, v{vJ}, 4, v4
    v_add_u32 v4, {UP}, v4
    ds_write_b128 v4, v[48:51]
    v_lshrrev_b32 v4, 2, v{vJ}
    v_mul_u32_u24 v4, {KPITCH}, v4
    v_and_b32 v5, 3, v0
    v_lshl_add_u32 v4, v5, 4, v4
    v_add_u32 v4, {KC}, v4
    ds_write_b128 v4, v[48:51]
    """)
    vEA = 36
    A("s_mov_b32 s43, 0xffff0000\ns_movk_i32 s42, 0xf00")
    A(f"v_lshlrev_b32 v4, 3, v0\nv_cvt_f32_u32 v4, v4")
    for r in range(0, 12, 2):
        def cst(x): return f32(float(x))
        A(f"v_add_f32 v5, {cst(r-3)}, v4\nv_add_f32 v6, {cst(r-2)}, v4")
        if r < 3: A("v_max_f32 v5, 0, v5\nv_max_f32 v6, 0, v6")
        A("v_cvt_pk_bf16_f32 v5, v5, v6\nv_and_b32 v6, s43, v5\nv_lshlrev_b32 v5, 16, v5")
        for k in range(2):
            if r + k > 10: continue
            p = 5 + k; d = vEA + r + k
            A(f"""
            v_cvt_u32_f32 v{p}, v{p}
            v_and_b32 v7, s42, v{p}
            v_bfe_u32 v{d}, v{p}, 3, 5
            v_add_lshl_u32 v{d}, v7, v{d}, 2
            v_and_b32 v7, 7, v{p}
            v_lshl_add_u32 v{d}, v7, 7, v{d}
            """)
    vWA = 48
    A(f"""
    s_lshl_b32 s46, s36, 14
    v_lshl_add_u32 v4, v{vLane}, 6, s46
    v_bfe_u32 v5, v{vLane}, 1, 2
    """)
    for c in range(4):
        A(f"v_xor_b32 v6, {c}, v5\nv_lshl_add_u32 v{vWA+c}, v6, 4, v4")
    vRA = 52
    A(f"""
    v_bfe_u32 v4, v{vLane}, 2, 2
    v_lshl_add_u32 v4, v{vG}, 3, v4
    v_bfe_u32 v5, v{vLane}, 4, 1
    v_bfe_u32 v6, v{vLane}, 1, 1
    v_lshl_add_u32 v5, v5, 1, v6
    v_bfe_u32 v6, v4, 1, 1
    v_xor_b32 v5, v5, v6
    v_lshlrev_b32 v4, 6, v4
    v_lshl_add_u32 v4, v5, 4, v4
    v_and_b32 v5, 1, v{vLane}
    v_lshl_add_u32 v4, v5, 3, v4
    v_add_u32 v{vRA}, s46, v4
    v_xor_b32 v{vRA+1}, 32, v{vRA}
    v_add_u32 v{vRA+1}, 256, v{vRA+1}
    """)
    vDT = 54
    A(f"""
    s_waitcnt lgkmcnt(0)
    s_lshl_b32 s46, s38, 4
    s_lshr_b32 s52, s52, s46
    s_lshl_b32 s52, s52, 16
    s_lshr_b32 s53, s53, s46
    s_lshl_b32 s53, s53, 16
    v_mov_b32 v{vDT}, {f32(LOG2E)}
    v_mul_f32 v{vDT}, s52, v{vDT}
    v_exp_f32 v{vDT}, v{vDT}
    v_cvt_pk_bf16_f32 v{vDT}, v{vDT}, v{vDT}
    v_and_b32 v{vDT}, s43, v{vDT}
    s_mov_b32 s54, {f32(8.0)}
    s_mov_b32 s55, {f32(256.0)}
    """)
    vACC = 56
    for i in range(16): A(f"v_mov_b32 v{vACC+i}, 0")
    P.stamp(2)
    A("s_waitcnt vmcnt(12)\ns_mov_b32 s56, 2")
    P.stamp(3)
    lp = A.label("KGloop")
    A(f"{lp}:")
    a2, b2 = 72, 73
    w1, w8, w256, w2, w512 = 74, 76, 78, 80, 82
    tA, tB, tC = 84, 86, 88
    G = 90
    G2 = 106
    Hh = 122
    W4 = 130
    HT = 132
    CV = 140
    A(f"""
    v_lshlrev_b32 v4, 16, v{vP}
    v_mul_f32 v4, {f32(LOG2E)}, v4
    v_exp_f32 v4, v4
    v_lshlrev_b32 v5, 16, v{vP+1}
    v_mul_f32 v{b2}, v5, v{vDT}
    v_cvt_pk_bf16_f32 v4, v4, v4
    v_and_b32 v4, s43, v4
    v_mul_f32 v{a2}, v4, v{vDT}
    v_mul_f32 v{b2}, 0.15915494, v{b2}
    v_mul_f32 v{a2}, {f32(-LOG2E)}, v{a2}
    v_lshlrev_b32 v{G}, 16, v{vP+2}
    v_lshlrev_b32 v{G+1}, 16, v{vP+3}
    v_mul_f32 v{G}, v{G}, v{vDT}
    v_mul_f32 v{G+1}, v{G+1}, v{vDT}
    v_add_f32 v{G}, v{G}, v{G}
    v_add_f32 v{G+1}, v{G+1}, v{G+1}
    """)
    for l in merge(cexp(w8, a2, b2, "s54", tA), cexp(w1, a2, b2, None, tB), cexp(w256, a2, b2, "s55", tC)): A(l)
    hs = []
    hs += [f"v_mov_b32 v{Hh}, 1.0", f"v_mov_b32 v{Hh+1}, 0", f"v_mov_b32 v{Hh+2}, v{w8}", f"v_mov_b32 v{Hh+3}, v{w8+1}"]
    hs += cmul(Hh+4, w8, w8) + cmul(Hh+6, Hh+4, w8) + cmul(W4, Hh+4, Hh+4)
    for q in range(8):
        buf = CV + 8 * ((q >> 1) & 1)
        o = 2 * (q & 1)
        hs += [f"v_cvt_pk_bf16_f32 v{buf+o}, v{Hh}, v{Hh+2}", f"v_cvt_pk_bf16_f32 v{buf+o+1}, v{Hh+4}, v{Hh+6}",
               f"v_cvt_pk_bf16_f32 v{buf+4+o}, v{Hh+1}, v{Hh+3}", f"v_cvt_pk_bf16_f32 v{buf+4+o+1}, v{Hh+5}, v{Hh+7}"]
        if q & 1:
            hs += [f"ds_write_b128 v{vWA+(q>>1)}, {v(buf,4)}", f"ds_write_b128 v{vWA+(q>>1)}, {v(buf+4,4)} offset:4096"]
        if q < 7:
            m = [cmul(Hh+2*r, Hh+2*r, W4, HT+2*r) for r in range(4)]
            hs += [x[0] for x in m] + [x[1] for x in m]
    gs = []
    def gchunk(base, n, ch, buf):
        o = []
        for k in range(0, n, 2):
            k2 = min(k + 1, n - 1)
            o += [f"v_cvt_pk_bf16_f32 v{buf+k//2}, v{base+2*k}, v{base+2*k2}", f"v_cvt_pk_bf16_f32 v{buf+4+k//2}, -v{base+2*k+1}, -v{base+2*k2+1}"]
        o += [f"ds_write_b128 v{vWA+ch}, {v(buf,4)} offset:8192", f"ds_write_b128 v{vWA+ch}, {v(buf+4,4)} offset:12288"]
        return o
    gs += cmul(w2, w1, w1) + cmul(G+2, G, w1) + cmul(w512, w256, w256)
    for i in range(2, 8): gs += cmul(G+2*i, G+2*(i-2), w2)
    gs += gchunk(G, 8, 0, CV+16)
    for k in range(4): gs += cmul(G2+2*k, G+4*k, w256)
    gs += cmul(G2+8, G, w512) + cmul(G2+10, G+8, w512)
    gs += cmul(G2+12, G2, w512) + cmul(G2+14, G2+4, w512)
    gs += gchunk(G2, 8, 1, CV+24)
    gs += cmul(G, G2+8, w512) + cmul(G+2, G2+12, w512)
    gs += cmul(G+4, G, w512) + cmul(G+6, G+2, w512) + cmul(G+8, G+4, w512)
    gs += gchunk(G, 5, 2, CV+16)
    for l in merge(hs, gs): A(l)
    for i in range(4): A(f"v_lshrrev_b32 v{vP+i}, 16, v{vP+i}")
    FR = 172
    steps = [(p, s) for p in range(2) for s in range(4)]
    for n, (p, s) in enumerate(steps):
        off = p * 4096 + s * 1024
        b = FR + 8 * n
        A(f"""
        ds_read_b64_tr_b16 {v(b,2)}, v{vRA} offset:{8192+off}
        ds_read_b64_tr_b16 {v(b+2,2)}, v{vRA+1} offset:{8192+off}
        ds_read_b64_tr_b16 {v(b+4,2)}, v{vRA} offset:{off}
        ds_read_b64_tr_b16 {v(b+6,2)}, v{vRA+1} offset:{off}
        """)
        if n >= 3:
            b0 = FR + 8 * (n - 3)
            A(f"s_waitcnt lgkmcnt(12)\nv_mfma_f32_32x32x16_bf16 {v(vACC,16)}, {v(b0,4)}, {v(b0+4,4)}, {v(vACC,16)}")
    for n in range(5, 8):
        b0 = FR + 8 * n
        A(f"s_waitcnt lgkmcnt({4*(7-n)})\nv_mfma_f32_32x32x16_bf16 {v(vACC,16)}, {v(b0,4)}, {v(b0+4,4)}, {v(vACC,16)}")
    A(f"s_sub_u32 s56, s56, 1\ns_cmp_lg_u32 s56, 0\ns_cbranch_scc1 {lp}")
    P.stamp(4)
    A(f"""
    s_lshl_b32 s46, s36, 14
    v_lshl_add_u32 v4, v{vJ}, 2, s46
    v_lshl_add_u32 v5, v{vG}, 9, v4
    v_mov_b32 v6, 128
    v_lshlrev_b32 v6, v{vG}, v6
    """)
    for b in range(4):
        A(f"v_mad_u32_u24 v{72+b}, v6, {8+2*b}, v4\nv_mad_u32_u24 v{76+b}, v6, {32+8*b}, v4")
    for b in range(4):
        A(f"ds_write_b32 v5, v{vACC+b} offset:{128*b}")
    for b in range(8):
        A(f"ds_write_b32 v{72+b}, v{vACC+4+b}")
    XB = 80
    A("s_waitcnt vmcnt(4)\ns_mov_b32 s46, 0x05040100\ns_mov_b32 s47, 0x07060302")
    for k in range(4):
        A(f"v_perm_b32 v{XB+k}, v{vXC+2*k+1}, v{vXC+2*k}, s46\nv_perm_b32 v{XB+4+k}, v{vXC+2*k+1}, v{vXC+2*k}, s47")
    A(f"""
    v_and_b32 v4, 3, v0
    v_lshrrev_b32 v5, 2, v0
    v_mul_u32_u24 v6, {XPITCH}, v4
    v_lshl_add_u32 v6, v5, 4, v6
    v_add_u32 v6, {XP}, v6
    ds_write_b128 v6, {v(XB,4)}
    ds_write_b128 v6, {v(XB+4,4)} offset:{4*XPITCH}
    v_mul_u32_u24 v6, {UPITCH}, v4
    v_lshl_add_u32 v7, v5, 4, v6
    v_add_u32 v7, {UP+512}, v7
    s_waitcnt lgkmcnt(0)
    s_barrier
    """)
    P.stamp(5)
    EV = 90
    for c in range(2):
        for r in range(11):
            A(f"ds_read2st64_b32 {v(EV+22*c+2*r,2)}, v{vEA+r} offset0:{128*c} offset1:{128*c+64}")
    NU = 140
    A("s_waitcnt vmcnt(0)")
    for r in range(8):
        S = vST + 2 * r
        t = 156 + 4 * (r & 1)
        A(f"""
        v_and_b32 v{t+2}, s43, v{S}
        v_rcp_f32 v{t+2}, v{t+2}
        v_lshlrev_b32 v{t}, 16, v{S}
        v_lshlrev_b32 v{NU+2*r}, 16, v{vXC+r}
        v_and_b32 v{NU+2*r+1}, s43, v{vXC+r}
        v_pk_add_f32 {v(NU+2*r,2)}, {v(NU+2*r,2)}, {v(t,2)} op_sel_hi:[1,0] neg_lo:[0,1] neg_hi:[0,1]
        v_cvt_pk_bf16_f32 v{NU+2*r+1}, v{NU+2*r}, v{NU+2*r+1}
        v_lshlrev_b32 v{NU+2*r}, 16, v{NU+2*r+1}
        v_and_b32 v{NU+2*r+1}, s43, v{NU+2*r+1}
        v_pk_mul_f32 {v(NU+2*r,2)}, {v(NU+2*r,2)}, {v(t+2,2)} op_sel_hi:[1,0]
        """)
    UB = 164
    for c in range(2):
        for k in range(4):
            A(f"v_cvt_pk_bf16_f32 v{UB+4*c+k}, v{NU+2*(7-2*k)+c}, v{NU+2*(6-2*k)+c}")
    A("s_waitcnt lgkmcnt(0)")
    A(f"ds_write_b128 v7, {v(UB,4)}\nds_write_b128 v7, {v(UB+4,4)} offset:{4*UPITCH}")
    A(f"v_cmp_ne_u32 vcc, 0, v0\nv_lshlrev_b32 v4, 4, v0\nv_add_u32 v4, {KC+64}, v4")
    CB = 172
    for c in range(2):
        E = EV + 22 * c
        for r in range(11):
            A(f"v_add_f32 v{E+2*r}, v{E+2*r}, v{E+2*r+1}")
        for r in range(3):
            A(f"v_cndmask_b32 v{E+2*r}, 0, v{E+2*r}, vcc")
        for cp in range(4):
            b = CB + 16 * c + 4 * cp
            for k in range(4):
                r0 = 3 - cp + 2 * k
                A(f"v_cvt_pk_bf16_f32 v{b+k}, v{E+2*r0}, v{E+2*r0+2}")
            A(f"ds_write_b128 v4, {v(b,4)} offset:{(4*c+cp)*KPITCH}")
    if dbgK:
        A(f"s_lshl_b32 s46, s37, 13\ns_add_u32 s46, s46, {WS_ACT}\nv_lshl_add_u32 v5, v0, 4, s46")
        A(f"global_store_dwordx4 v5, {v(CB,4)}, s[30:31]\nv_add_u32 v5, 4096, v5\nglobal_store_dwordx4 v5, {v(CB+16,4)}, s[30:31]")
    vA, vB, vE = 8, 9, 10
    A(f"""
    v_and_b32 v4, 3, v{vJ}
    v_sub_u32 v4, 3, v4
    v_mul_u32_u24 v4, {KPITCH}, v4
    v_lshrrev_b32 v5, 2, v{vJ}
    v_lshl_add_u32 v4, v5, 3, v4
    v_lshlrev_b32 v5, 4, v{vG}
    v_sub_u32 v4, v4, v5
    s_mul_i32 s46, s38, {4*KPITCH}
    s_lshl_b32 s47, s39, 5
    s_sub_u32 s46, s46, s47
    s_add_u32 s46, s46, {KC+64-8}
    v_add_u32 v{vA}, s46, v4
    s_lshl_b32 s46, s36, 1
    s_mul_i32 s46, s46, {UPITCH}
    s_add_u32 s46, s46, {UP+16}
    v_mul_u32_u24 v4, {UPITCH}, v{vG}
    v_lshl_add_u32 v4, v{vJ}, 4, v4
    v_add_u32 v{vB}, s46, v4
    """)
    A(f"""
    s_mul_i32 s46, s38, {4*UPITCH}
    s_lshl_b32 s47, s39, 9
    s_add_u32 s46, s46, s47
    s_add_u32 s46, s46, {UP+512+8}
    v_lshlrev_b32 v5, 3, v{vG}
    v_lshlrev_b32 v4, 4, v{vJ}
    v_sub_u32 v6, v4, v5
    v_add_u32 v{vE}, s46, v6
    s_mul_i32 s46, s38, {4*XPITCH}
    s_add_u32 s46, s46, s47
    s_add_u32 s46, s46, {XP}
    v_add3_u32 v{vE+1}, v4, v5, s46
    s_waitcnt lgkmcnt(0)
    s_barrier
    """)
    P.stamp(6)
    EU, EX, PRE = 12, 20, 28
    for a in range(4):
        A(f"ds_read_b64 {v(EU+2*a,2)}, v{vE} offset:{a*UPITCH}\nds_read_b64 {v(EX+2*a,2)}, v{vE+1} offset:{a*XPITCH}")
    AC0, AC1 = 48, 64
    BUF = 80
    def reads(d):
        b = BUF + 16 * (d % 3)
        return [f"ds_read_b64 {v(b,2)}, v{vA} offset:{64*d}", f"ds_read_b64 {v(b+2,2)}, v{vA} offset:{64*d+8}",
                f"ds_read_b128 {v(b+8,4)}, v{vB} offset:{16*(31-d)}", f"ds_read_b128 {v(b+12,4)}, v{vB} offset:{16*(31-d)+512}",
                f"ds_read_b64 {v(b+4,2)}, v{vA} offset:{64*d+2048}", f"ds_read_b64 {v(b+6,2)}, v{vA} offset:{64*d+2048+8}"]
    pre = []
    for a in range(4):
        Q = PRE + 4 * a
        pre += [f"v_and_b32 v44, s43, v{EU+2*a+1}", f"v_lshlrev_b32 v45, 16, v{EU+2*a+1}",
                f"v_and_b32 v46, s43, v{EU+2*a}", f"v_lshlrev_b32 v47, 16, v{EU+2*a}",
                f"v_lshlrev_b32 v{Q}, 16, v{EX+2*a}", f"v_and_b32 v{Q+1}, s43, v{EX+2*a}",
                f"v_lshlrev_b32 v{Q+2}, 16, v{EX+2*a+1}", f"v_and_b32 v{Q+3}, s43, v{EX+2*a+1}"]
        pre += [f"v_fmac_f32 v{Q+k}, s53, v{44+k}" for k in range(4)]
    for l in reads(0) + reads(1): A(l)
    for d in range(32):
        b = BUF + 16 * (d % 3)
        nr = reads(d + 2) if d + 2 < 32 else []
        A(f"s_waitcnt lgkmcnt({6 if d < 31 else 0})")
        c0 = "0" if d == 0 else v(AC0, 16)
        c1 = "0" if d == 0 else v(AC1, 16)
        m = [f"v_mfma_f32_32x32x16_bf16 {v(AC0,16)}, {v(b,4)}, {v(b+8,4)}, {c0}",
             f"v_mfma_f32_32x32x16_bf16 {v(AC1,16)}, {v(b,4)}, {v(b+12,4)}, {c1}",
             f"v_mfma_f32_32x32x16_bf16 {v(AC1,16)}, {v(b+4,4)}, {v(b+8,4)}, {v(AC1,16)}"]
        for k in range(3):
            A(m[k])
            for l in nr[2*k:2*k+2]: A(l)
            if pre: A(pre.pop(0))
    P.stamp(7)
    h1 = A.label("KAh1"); jn = A.label("KAjn")
    A(f"""
    s_lshl_b32 s46, s36, 12
    v_lshl_add_u32 v4, v{vLane}, 4, s46
    v_xor_b32 v5, 0x1000, v4
    s_cmp_eq_u32 s39, 1
    s_cbranch_scc1 {h1}
    """)
    for (send, keep, lab) in ((AC1, AC0, None), (AC0, AC1, h1)):
        if lab: A(f"{lab}:")
        for q in range(4): A(f"ds_write_b128 v4, {v(send+4*q,4)} offset:{1024*q}")
        for q in range(8): A(f"v_pk_add_f32 {v(PRE+2*q,2)}, {v(PRE+2*q,2)}, {v(keep+2*q,2)}")
        if not lab: A(f"s_branch {jn}")
    A(f"{jn}:\ns_waitcnt lgkmcnt(0)\ns_barrier")
    for q in range(4): A(f"ds_read_b128 {v(BUF+4*q,4)}, v5 offset:{1024*q}")
    A(f"""
    s_lshl_b32 s46, s37, 1
    s_add_u32 s46, s46, s38
    s_lshl_b32 s46, s46, 12
    s_lshl_b32 s47, s39, 11
    s_add_u32 s46, s46, s47
    s_add_u32 s46, s46, {WS_HT}
    v_lshlrev_b32 v4, 6, v{vJ}
    v_lshl_add_u32 v4, v{vG}, 4, v4
    v_add_u32 v4, s46, v4
    s_waitcnt lgkmcnt(0)
    """)
    for q in range(8): A(f"v_pk_add_f32 {v(PRE+2*q,2)}, {v(PRE+2*q,2)}, {v(BUF+2*q,2)}")
    for q in range(8): A(f"v_cvt_pk_bf16_f32 v{12+q}, v{PRE+2*q}, v{PRE+2*q+1}")
    for hq in range(2):
        A(f"v_permlane32_swap_b32 v{12+4*hq}, v{12+4*hq+2}\nv_permlane32_swap_b32 v{12+4*hq+1}, v{12+4*hq+3}")
        A(f"global_store_dwordx4 v4, {v(12+4*hq,4)}, s[30:31] offset:{32*hq}")
    P.stamp(8)
    P.flush(9)
    A(f"{end}:\ns_endpgm")
    return kernel_desc(name, 236, 100)
```

```python
from base import *
from ka import load_ptrs
STG = 24576
NSLOT = 6
CSO = STG * NSLOT
CON = CSO + 1024
KB_LDS = CON + 2048
GK0 = -2.0 * LOG2E * 0.7978845608028654
GK1 = GK0 * 0.044715

def gen_kb(A, name):
    kernel_head(A, name)
    end = A.label("KBend"); ldr = A.label("KBldr")
    A(f"s_cmp_ge_u32 s2, 224\ns_cbranch_scc1 {end}")
    P = Prof(A, 2); P.stamp(0)
    A("s_load_dwordx4 s[20:23], s[0:1], 64\ns_load_dwordx2 s[30:31], s[0:1], 104")
    vLane = 1
    A(f"""
    v_and_b32 v{vLane}, 63, v0
    v_lshrrev_b32 v4, 6, v0
    s_and_b32 s37, s2, 7
    v_readfirstlane_b32 s36, v4
    s_lshr_b32 s38, s2, 3
    s_lshr_b32 s39, s37, 1
    s_lshl_b32 s39, s39, 2
    s_and_b32 s40, s38, 3
    s_add_u32 s39, s39, s40
    s_and_b32 s37, s37, 1
    s_mul_i32 s37, s37, 7
    s_lshr_b32 s38, s38, 2
    s_add_u32 s38, s38, s37
    v_bfe_u32 v2, v{vLane}, 2, 2
    v_bfe_u32 v3, v{vLane}, 4, 1
    v_lshrrev_b32 v4, 5, v{vLane}
    v_lshl_add_u32 v5, v4, 3, v2
    v_lshlrev_b32 v5, 8, v5
    v_and_b32 v6, 3, v{vLane}
    v_lshl_add_u32 v5, v6, 3, v5
    s_cmp_ge_u32 s36, 4
    s_cbranch_scc1 {ldr}
    """)
    vB, vAa = 8, 10
    A(f"""
    s_and_b32 s40, s36, 1
    s_lshr_b32 s41, s36, 1
    s_lshl_b32 s42, s40, 1
    v_xor_b32 v6, s42, v2
    v_lshl_add_u32 v6, v6, 6, v5
    v_lshl_add_u32 v{vB}, v3, 5, v6
    v_xor_b32 v{vB+1}, 64, v{vB}
    s_lshl_b32 s42, s41, 2
    v_lshl_add_u32 v6, v3, 2, v2
    v_xor_b32 v6, s42, v6
    v_lshl_add_u32 v6, v6, 5, v5
    v_lshl_add_u32 v6, v3, 13, v6
    v_add_u32 v{vAa}, 8192, v6
    v_xor_b32 v{vAa+1}, 32, v{vAa}
    v_xor_b32 v{vAa+2}, 64, v{vAa}
    v_xor_b32 v{vAa+3}, 96, v{vAa}
    """)
    ACC = 128
    F = [16, 40]
    for i in range(128): A(f"v_mov_b32 v{ACC+i}, 0")
    def reads(f, ks):
        o = []
        off = 4096 * ks
        order = [("B", 0), ("A", 0), ("B", 1), ("A", 1), ("A", 2), ("A", 3)]
        for kind, i in order:
            r = f + (16 + 4 * i if kind == "B" else 4 * i)
            ad = (vB if kind == "B" else vAa) + i
            o += [f"ds_read_b64_tr_b16 {v(r,2)}, v{ad} offset:{off}", f"ds_read_b64_tr_b16 {v(r+2,2)}, v{ad} offset:{off+1024}"]
        return o
    def mfmas(f):
        return [f"v_mfma_f32_32x32x16_bf16 {v(ACC+32*t+16*rt,16)}, {v(f+4*t,4)}, {v(f+16+4*rt,4)}, {v(ACC+32*t+16*rt,16)}" for t in range(4) for rt in range(2)]
    def inter(m, r):
        for i in range(8):
            A(m[i])
            for l in r[2*i:2*i+2]: A(l)
    top = A.label("KBtop"); mid = A.label("KBmid")
    P.stamp(1)
    A("s_mov_b32 s44, 0\ns_mov_b32 s45, 0\ns_barrier")
    P.stamp(2)
    for l in reads(F[0], 0): A(l)
    A(f"s_branch {mid}\n.p2align 3\n{top}:\ns_barrier")
    inter(mfmas(F[1]), reads(F[0], 0))
    A(f"{mid}:\ns_waitcnt lgkmcnt(0)")
    upd = [f"v_add_u32 v{r}, s46, v{r}" for r in range(vB, vB + 6)]
    A(f"""
    s_add_u32 s45, s45, 1
    s_cmp_eq_u32 s45, {NSLOT}
    s_cselect_b32 s46, {-(NSLOT-1)*STG}, {STG}
    s_cselect_b32 s45, 0, s45
    """.replace(f"s_cselect_b32 s46, {-(NSLOT-1)*STG}, {STG}", f"s_movk_i32 s46, {STG}\ns_cselect_b32 s46, {-(NSLOT-1)*STG}, s46"))
    inter(mfmas(F[0]), reads(F[1], 1) + upd[:4])
    for l in upd[4:]: A(l)
    A(f"s_add_u32 s44, s44, 1\ns_cmp_lt_u32 s44, 14\ns_waitcnt lgkmcnt(0)\ns_cbranch_scc1 {top}")
    for l in mfmas(F[1]): A(l)
    P.stamp(3)
    A("s_barrier")
    P.stamp(4)
    CN = 16
    A(f"""
    v_and_b32 v6, 31, v{vLane}
    s_lshl_b32 s42, s40, 10
    s_add_u32 s42, s42, {CON}
    v_lshl_add_u32 v6, v6, 4, s42
    ds_read_b128 {v(CN,4)}, v6
    ds_read_b128 {v(CN+4,4)}, v6 offset:512
    s_lshl_b32 s42, s41, 8
    s_add_u32 s42, s42, {CSO}
    v_lshl_add_u32 v7, v4, 4, s42
    """)
    CS = 24
    for t in range(4):
        A(f"""
        ds_read_b128 {v(CS+16*t,4)}, v7 offset:{64*t}
        ds_read_b128 {v(CS+16*t+4,4)}, v7 offset:{64*t+32}
        ds_read_b128 {v(CS+16*t+8,4)}, v7 offset:{512+64*t}
        ds_read_b128 {v(CS+16*t+12,4)}, v7 offset:{512+64*t+32}
        """)
    A(f"""
    s_lshl_b32 s42, s39, 2
    s_lshl_b32 s43, s40, 1
    s_add_u32 s42, s42, s43
    s_mul_i32 s42, s42, 112
    s_lshl_b32 s43, s38, 3
    s_add_u32 s42, s42, s43
    s_lshl_b32 s43, s41, 2
    s_add_u32 s42, s42, s43
    s_lshl_b32 s42, s42, 10
    s_add_u32 s42, s42, {WS_ACT}
    v_lshl_add_u32 v6, v{vLane}, 4, s42
    v_add_u32 v7, {112*1024}, v6
    s_waitcnt lgkmcnt(0)
    """)
    T = 88
    n = 0
    for t in range(4):
        for rt in range(2):
            a = ACC + 32 * t + 16 * rt
            c = CN + 4 * rt
            cs = CS + 16 * t
            o = 120 + 4 * (n & 1)
            t1 = T + 16 * (n & 1); t2 = t1 + 8
            for p in range(8): A(f"v_pk_fma_f32 {v(a+2*p,2)}, {v(cs+2*p,2)}, {v(c+2,2)}, {v(a+2*p,2)} op_sel:[0,1,0] op_sel_hi:[1,1,1] neg_lo:[0,1,0] neg_hi:[0,1,0]")
            for p in range(4): A(f"v_pk_mul_f32 {v(t1+2*p,2)}, {v(a+2*p,2)}, {v(a+2*p,2)}")
            for p in range(4): A(f"v_pk_fma_f32 {v(t1+2*p,2)}, {v(t1+2*p,2)}, {v(c,2)}, {v(c,2)} op_sel:[0,1,0] op_sel_hi:[1,1,0]")
            for p in range(4): A(f"v_pk_mul_f32 {v(t1+2*p,2)}, {v(t1+2*p,2)}, {v(a+2*p,2)}")
            for p in range(8): A(f"v_exp_f32 v{t1+p}, v{t1+p}")
            for p in range(4): A(f"v_pk_mul_f32 {v(t2+2*p,2)}, {v(a+2*p,2)}, {v(a+8+2*p,2)}")
            for p in range(4): A(f"v_pk_fma_f32 {v(t1+2*p,2)}, {v(t1+2*p,2)}, {v(c+2,2)}, {v(c+2,2)} op_sel_hi:[1,0,0]")
            for p in range(8): A(f"v_rcp_f32 v{t1+p}, v{t1+p}")
            for p in range(4): A(f"v_pk_mul_f32 {v(t2+2*p,2)}, {v(t2+2*p,2)}, {v(t1+2*p,2)}")
            for p in range(4): A(f"v_cvt_pk_bf16_f32 v{o+p}, v{t2+2*p}, v{t2+2*p+1}")
            A(f"global_store_dwordx4 v{6+rt}, {v(o,4)}, s[30:31] offset:{1024*t}")
            n += 1
    P.stamp(5)
    P.flush(6)
    A("s_endpgm")
    A(f"{ldr}:\ns_sub_u32 s36, s36, 4\ns_waitcnt lgkmcnt(0)")
    srd(A, 48, 30, X_BYTES, WS_HT)
    srd(A, 52, 20, W_BYTES)
    srd(A, 56, 22, W_BYTES)
    srd(A, 60, 30, 2 * F_ * 4, WS_CS)
    vH, vG_, vU, vS = 8, 9, 10, 11
    A(f"""
    v_lshrrev_b32 v6, 4, v{vLane}
    v_and_b32 v7, 15, v{vLane}
    v_lshlrev_b32 v12, 2, v6
    v_xor_b32 v12, v12, v7
    v_lshlrev_b32 v12, 4, v12
    v_lshl_add_u32 v{vH}, v6, 12, v12
    v_lshlrev_b32 v12, 1, v6
    v_xor_b32 v12, v12, v7
    v_mul_u32_u24 v13, 3584, v6
    v_lshl_add_u32 v{vG_}, v12, 4, v13
    v_xor_b32 v12, 8, v12
    v_lshl_add_u32 v{vU}, v12, 4, v13
    s_lshl_b32 s40, s39, 8
    s_lshl_b32 s41, s36, 14
    s_add_u32 s40, s40, s41
    s_lshl_b32 s41, s38, 8
    s_mul_i32 s42, s36, {4*3584}
    s_add_u32 s41, s41, s42
    s_lshl_b32 s42, s36, 10
    v_xor_b32 v6, s36, v2
    v_lshl_add_u32 v6, v6, 6, v5
    v_lshl_add_u32 v{vS}, v3, 5, v6
    """)
    A(f"""
    v_and_b32 v12, 31, v{vLane}
    v_mul_u32_u24 v13, {F_*4}, v4
    v_lshl_add_u32 v12, v12, 4, v13
    s_lshl_b32 s43, s38, 9
    s_mov_b32 m0, {CSO}
    buffer_load_dwordx4 v12, s[60:63], s43 offen lds
    """)
    def issue():
        A(f"""
        s_mov_b32 m0, s42
        s_add_u32 s43, s40, {16*4096}
        buffer_load_dwordx4 v{vH}, s[48:51], s40 offen lds
        s_add_u32 m0, s42, 8192
        s_add_u32 s46, s41, {16*3584}
        buffer_load_dwordx4 v{vG_}, s[52:55], s41 offen lds
        s_add_u32 m0, s42, 16384
        s_add_u32 s40, s40, {32*4096}
        buffer_load_dwordx4 v{vU}, s[56:59], s41 offen lds
        s_add_u32 m0, s42, 4096
        s_add_u32 s41, s41, {32*3584}
        buffer_load_dwordx4 v{vH}, s[48:51], s43 offen lds
        s_add_u32 m0, s42, {8192+4096}
        s_nop 0
        buffer_load_dwordx4 v{vG_}, s[52:55], s46 offen lds
        s_add_u32 m0, s42, {16384+4096}
        s_add_u32 s42, s42, {STG}
        buffer_load_dwordx4 v{vU}, s[56:59], s46 offen lds
        s_cmp_ge_u32 s42, {NSLOT*STG}
        s_cselect_b32 s43, {NSLOT*STG}, 0
        s_sub_u32 s42, s42, s43
        """)
    P.stamp(1)
    pl = A.label("KBpl")
    A(f"s_mov_b32 s44, 0\n{pl}:")
    issue()
    A(f"s_add_u32 s44, s44, 1\ns_cmp_lt_u32 s44, {NSLOT-1}\ns_cbranch_scc1 {pl}")
    A("s_mov_b32 s44, 0\ns_mov_b32 s45, 0\ns_mov_b32 s47, 0x3f803f80")
    for i in range(4): A(f"v_mov_b32 v{24+i}, 0")
    P.stamp(2)
    ll = A.label("KBll")
    A(f"{ll}:\ns_waitcnt vmcnt({6*(NSLOT-2)})\ns_barrier")
    for i in range(4): A(f"ds_read_b64_tr_b16 {v(16+2*i,2)}, v{vS} offset:{(i>>1)*4096+(i&1)*1024}")
    issue()
    A(f"""
    s_add_u32 s45, s45, 1
    s_cmp_eq_u32 s45, {NSLOT}
    s_movk_i32 s46, {STG}
    s_cselect_b32 s46, {-(NSLOT-1)*STG}, s46
    s_cselect_b32 s45, 0, s45
    v_add_u32 v{vS}, s46, v{vS}
    s_waitcnt lgkmcnt(0)
    """)
    for i in range(8):
        A(f"v_dot2_f32_bf16 v{24+(i&1)}, v{16+i}, s47, v{24+(i&1)}\nv_dot2_f32_bf16 v{26+(i&1)}, v{16+i}, v{16+i}, v{26+(i&1)}")
    A(f"s_add_u32 s44, s44, 1\ns_cmp_lt_u32 s44, 14\ns_cbranch_scc1 {ll}")
    A(f"""
    v_add_f32 v24, v24, v25
    v_add_f32 v26, v26, v27
    v_mov_b32 v25, v24
    v_mov_b32 v27, v26
    v_permlane32_swap_b32 v24, v25
    v_permlane32_swap_b32 v26, v27
    v_add_f32 v24, v24, v25
    v_add_f32 v26, v26, v27
    s_mov_b32 s43, 0xffff0000
    v_mul_f32 v24, {f32(1.0/448)}, v24
    v_mul_f32 v26, {f32(1.0/448)}, v26
    v_fma_f32 v26, -v24, v24, v26
    v_max_f32 v26, 0, v26
    v_cvt_pk_bf16_f32 v24, v26, v24
    v_lshlrev_b32 v26, 16, v24
    v_and_b32 v31, s43, v24
    v_add_f32 v26, {f32(1e-5)}, v26
    v_cvt_pk_bf16_f32 v26, v26, v26
    v_and_b32 v26, s43, v26
    v_sqrt_f32 v26, v26
    v_cvt_pk_bf16_f32 v26, v26, v26
    v_and_b32 v26, s43, v26
    v_rcp_f32 v27, v26
    v_mul_f32 v30, v26, v26
    v_mul_f32 v28, {f32(GK0)}, v27
    v_mul_f32 v29, v27, v27
    v_mul_f32 v29, v29, v27
    v_mul_f32 v29, {f32(GK1)}, v29
    v_and_b32 v6, 31, v{vLane}
    s_lshl_b32 s42, s36, 9
    s_add_u32 s42, s42, {CON}
    v_lshl_add_u32 v6, v6, 4, s42
    ds_write_b128 v6, v[28:31]
    s_waitcnt lgkmcnt(0)
    s_barrier
    """)
    P.flush(3)
    A(f"{end}:\ns_endpgm")
    return kernel_desc(name, 256, 100)
```

```python
from base import *
STG = 16384
NSLOT = 7
HO = STG * NSLOT
KC_LDS = HO + 8192

def gen_kc(A, name):
    kernel_head(A, name)
    end = A.label("KCend")
    A(f"s_cmp_ge_u32 s2, 224\ns_cbranch_scc1 {end}")
    P = Prof(A, 3); P.stamp(0)
    A("s_load_dwordx4 s[24:27], s[0:1], 80\ns_load_dwordx2 s[30:31], s[0:1], 104")
    vLane = 1
    A(f"""
    v_and_b32 v{vLane}, 63, v0
    v_lshrrev_b32 v4, 6, v0
    s_and_b32 s37, s2, 7
    v_readfirstlane_b32 s36, v4
    s_lshr_b32 s38, s2, 3
    s_lshl_b32 s39, s37, 2
    s_and_b32 s40, s38, 3
    s_add_u32 s39, s39, s40
    s_lshr_b32 s38, s38, 2
    s_and_b32 s40, s36, 1
    s_lshr_b32 s41, s36, 1
    """)
    vD, vAct, vA, vHh = 8, 9, 10, 12
    A(f"""
    v_lshrrev_b32 v5, 3, v{vLane}
    v_and_b32 v6, 7, v{vLane}
    v_bfe_u32 v7, v{vLane}, 4, 1
    v_lshlrev_b32 v7, 2, v7
    v_xor_b32 v6, v6, v7
    v_lshlrev_b32 v6, 4, v6
    v_mul_u32_u24 v7, 896, v5
    v_add_u32 v{vD}, v7, v6
    v_lshl_add_u32 v{vHh}, v5, 12, v6
    v_lshlrev_b32 v{vAct}, 4, v{vLane}
    s_waitcnt lgkmcnt(0)
    """)
    srd(A, 48, 24, W_BYTES)
    srd(A, 52, 30, ACT_BYTES, WS_ACT)
    srd(A, 56, 30, X_BYTES, WS_HT)
    A(f"""
    s_mul_i32 s42, s41, {896*896}
    s_mul_i32 s43, s40, {32*896}
    s_add_u32 s42, s42, s43
    s_lshl_b32 s43, s38, 7
    s_add_u32 s42, s42, s43
    s_lshl_b32 s43, s36, 12
    s_lshl_b32 s44, s39, 1
    s_add_u32 s44, s44, s40
    s_mul_i32 s44, s44, 112
    s_mul_i32 s45, s41, 56
    s_add_u32 s44, s44, s45
    s_lshl_b32 s44, s44, 10
    """)
    ACT = 128
    def issue(s):
        slot = s % NSLOT
        for i in range(4):
            A(f"s_add_u32 m0, s43, {slot*STG+i*1024}")
            if i: A(f"s_add_u32 s45, s42, {i*8*896}")
            else: A("s_nop 0")
            A(f"buffer_load_dwordx4 v{vD}, s[48:51], {'s45' if i else 's42'} offen lds")
            A(f"buffer_load_dwordx4 {v(ACT+16*slot+4*i,4)}, v{vAct}, s[52:55], s44 offen offset:{1024*i}")
        A(f"s_add_u32 s42, s42, {64*896}\ns_add_u32 s44, s44, 4096")
    P.stamp(1)
    A(f"""
    s_lshl_b32 s45, s38, 6
    s_lshl_b32 s46, s36, 4
    s_add_u32 s45, s45, s46
    s_lshl_b32 s45, s45, 12
    s_lshl_b32 s46, s39, 7
    s_add_u32 s45, s45, s46
    s_lshl_b32 s46, s36, 11
    s_add_u32 m0, s46, {HO}
    s_add_u32 s47, s45, {8*4096}
    buffer_load_dwordx4 v{vHh}, s[56:59], s45 offen lds
    s_add_u32 m0, s46, {HO+1024}
    s_nop 0
    buffer_load_dwordx4 v{vHh}, s[56:59], s47 offen lds
    """)
    for s in range(NSLOT - 1): issue(s)
    P.stamp(2)
    A(f"""
    v_bfe_u32 v2, v{vLane}, 2, 2
    v_bfe_u32 v3, v{vLane}, 4, 1
    v_lshrrev_b32 v4, 5, v{vLane}
    v_lshl_add_u32 v5, v4, 2, v2
    v_lshlrev_b32 v5, 7, v5
    v_lshrrev_b32 v6, 1, v2
    v_lshl_add_u32 v5, v6, 6, v5
    v_lshl_add_u32 v5, v3, 5, v5
    v_and_b32 v6, 3, v{vLane}
    v_lshl_add_u32 v5, v6, 3, v5
    s_lshl_b32 s45, s41, 13
    v_add_u32 v{vA}, s45, v5
    v_xor_b32 v{vA+1}, 64, v{vA}
    v_add_u32 v14, {4*STG}, v{vA}
    v_add_u32 v15, {4*STG}, v{vA+1}
    s_lshl_b32 s45, s40, 6
    v_xor_b32 v5, s45, v5
    s_lshl_b32 s45, s41, 12
    s_add_u32 s45, s45, {HO}
    v_add_u32 v13, s45, v5
    """)
    A(f"v_and_b32 v5, 31, v{vLane}\nv_lshlrev_b32 v6, 2, v4\nv_sub_u32 v5, v5, v6\nv_mov_b32 v6, 0x3f80\nv_mov_b32 v7, 1.0")
    for j in range(2):
        for i in range(4):
            d0 = 16 * j + 8 * (i >> 1) + 2 * (i & 1)
            A(f"""
            v_cmp_eq_u32 vcc, {d0}, v5
            v_cmp_eq_u32 s[46:47], {d0+1}, v5
            v_cndmask_b32 v{16+4*j+i}, 0, v6, vcc
            v_cndmask_b32 v{16+4*j+i}, v{16+4*j+i}, v7, s[46:47]
            """)
    AC = [32, 48]
    FR = 64
    for s in range(14):
        slot = s % NSLOT
        issued = min(13, s + NSLOT - 2)
        A(f"s_waitcnt vmcnt({8*(issued-s)})\ns_barrier")
        if s in (0, 7): P.stamp(3 if s == 0 else 4)
        ab = (vA if slot < 4 else 14)
        so = (slot if slot < 4 else slot - 4) * STG
        for ks in range(4):
            for nt in range(2):
                r = FR + 8 * ks + 4 * nt
                A(f"ds_read_b64_tr_b16 {v(r,2)}, v{ab+nt} offset:{so+2048*ks}\nds_read_b64_tr_b16 {v(r+2,2)}, v{ab+nt} offset:{so+2048*ks+1024}")
        if s + NSLOT - 1 < 14: issue(s + NSLOT - 1)
        for ks in range(4):
            A(f"s_waitcnt lgkmcnt({12-4*ks})")
            for nt in range(2):
                c = "0" if (s == 0 and ks == 0) else v(AC[nt], 16)
                A(f"v_mfma_f32_32x32x16_bf16 {v(AC[nt],16)}, {v(FR+8*ks+4*nt,4)}, {v(ACT+16*slot+4*ks,4)}, {c}")
    P.stamp(5)
    for j in range(2):
        A(f"ds_read_b64_tr_b16 {v(24+4*j,2)}, v13 offset:{2048*j}\nds_read_b64_tr_b16 {v(26+4*j,2)}, v13 offset:{2048*j+1024}")
    k1 = A.label("KCk1"); jn = A.label("KCjn")
    A(f"""
    s_barrier
    s_lshl_b32 s46, s36, 12
    v_lshl_add_u32 v5, v{vLane}, 4, s46
    v_xor_b32 v6, 0x2000, v5
    s_waitcnt lgkmcnt(0)
    s_cmp_eq_u32 s41, 1
    s_cbranch_scc1 {k1}
    """)
    R = 96
    for (send, keep, lab) in ((AC[1], AC[0], None), (AC[0], AC[1], k1)):
        if lab: A(f"{lab}:")
        A(f"v_mfma_f32_32x32x16_bf16 {v(keep,16)}, {v(16,4)}, {v(24,4)}, {v(keep,16)}")
        A(f"v_mfma_f32_32x32x16_bf16 {v(R,16)}, {v(20,4)}, {v(28,4)}, {v(keep,16)}")
        for q in range(4): A(f"ds_write_b128 v5, {v(send+4*q,4)} offset:{1024*q}")
        if not lab: A(f"s_branch {jn}")
    A(f"{jn}:\ns_waitcnt lgkmcnt(0)\ns_barrier")
    for q in range(4): A(f"ds_read_b128 {v(FR+4*q,4)}, v6 offset:{1024*q}")
    A(f"""
    s_lshl_b32 s45, s39, 1
    s_add_u32 s45, s45, s40
    s_mul_i32 s45, s45, {32*896}
    s_lshl_b32 s46, s38, 7
    s_add_u32 s45, s45, s46
    s_lshl_b32 s46, s41, 6
    s_add_u32 s45, s45, s46
    v_and_b32 v5, 31, v{vLane}
    v_mul_u32_u24 v5, 896, v5
    v_lshl_add_u32 v5, v4, 4, v5
    v_add_u32 v5, s45, v5
    s_waitcnt lgkmcnt(0)
    """)
    for q in range(8): A(f"v_pk_add_f32 {v(R+2*q,2)}, {v(R+2*q,2)}, {v(FR+2*q,2)}")
    for q in range(8): A(f"v_cvt_pk_bf16_f32 v{16+q}, v{R+2*q}, v{R+2*q+1}")
    for hq in range(2):
        A(f"v_permlane32_swap_b32 v{16+4*hq}, v{16+4*hq+2}\nv_permlane32_swap_b32 v{16+4*hq+1}, v{16+4*hq+3}")
        A(f"global_store_dwordx4 v5, {v(16+4*hq,4)}, s[26:27] offset:{32*hq}")
    P.stamp(6)
    P.flush(7)
    A(f"{end}:\ns_endpgm")
    return kernel_desc(name, 240, 100)
```

```python
from gen import *
def gen_first(A, name):
    kernel_head(A, name)
    A("""
    s_memrealtime s[8:9]
    s_load_dwordx2 s[4:5], s[0:1], 104
    s_cmp_lg_u32 s2, 0
    s_cbranch_scc1 Lf_end
    s_waitcnt lgkmcnt(0)
    v_mov_b32 v1, 0x1800000
    v_mov_b32 v2, s8
    global_store_dword v1, v2, s[4:5]
    Lf_end:
    s_endpgm
    """)
    return kernel_desc(name, 8, 16)
def gen_last(A, name):
    kernel_head(A, name)
    A("""
    s_load_dwordx2 s[4:5], s[0:1], 104
    s_cmp_lg_u32 s2, 0
    s_cbranch_scc1 Ll_end
    s_waitcnt lgkmcnt(0)
    v_mov_b32 v1, 0x1800000
    global_load_dword v2, v1, s[4:5]
    s_waitcnt vmcnt(0)
    v_readfirstlane_b32 s10, v2
    s_mov_b32 s12, 0
    Ll_spin:
    s_memrealtime s[8:9]
    s_waitcnt lgkmcnt(0)
    s_sub_u32 s11, s8, s10
    s_add_u32 s12, s12, 1
    s_cmp_gt_u32 s12, 100000
    s_cbranch_scc1 Ll_end
    s_cmp_lt_u32 s11, 8000
    s_cbranch_scc1 Ll_spin
    Ll_end:
    s_endpgm
    """)
    return kernel_desc(name, 8, 16)
build([("first_kernel", gen_first, 1, 64, 0), K0, KA, KB, KC, ("last_kernel", gen_last, 1, 64, 0)], "diag_spin.s")
```

```python
from base import *
from ka import load_ptrs, cmul, cexp
WS_E = 0x4000
WS_FLAG = 0xC000
WS_XG = 0xA00000
XG_BYTES = 224 * 16384
REG = 16384
KCO = 8704
UO = 8 * REG
UPITCH = 4608
XT = UO + 2 * UPITCH
K1_LDS = XT + 8192
SPIN = 1 << 18
TP = 1056
GP = 272

def reduce64(A, r, t):
    reduce32(A, r, t)
    A(f"v_mov_b32 v{t}, v{r}\nv_permlane32_swap_b32 v{r}, v{t}\nv_add_f32 v{r}, v{r}, v{t}")

def code_prefetch(A, lab_start, nbytes, vt, nthreads):
    per = (nbytes // 128 + 31) // 32
    A(f"s_getpc_b64 s[60:61]\n{lab_start}_pc:")
    A(f"""
    s_lshr_b32 s62, s2, 3
    s_mul_i32 s62, s62, {per*128}
    v_min_u32 v{vt}, {per-1}, v0
    v_lshl_add_u32 v{vt}, v{vt}, 7, s62
    global_load_dword v{vt+1}, v{vt}, s[60:61]
    """)

def gen_helper(A, end, P):
    A(f"""
    s_sub_u32 s46, s2, 224
    s_cmp_ge_u32 s46, 28
    s_cbranch_scc0 Lcs_go
    v_lshlrev_b32 v2, 4, v0
    s_lshl_b32 s46, s46, 13
    s_add_u32 s46, s46, {WS_FLAGS - 28*8192}
    v_add_u32 v2, s46, v2
    v_mov_b32 v4, 0
    v_mov_b32 v5, 0
    v_mov_b32 v6, 0
    v_mov_b32 v7, 0
    global_store_dwordx4 v2, v[4:7], s[30:31]
    s_endpgm
    Lcs_go:
    s_cmp_ge_u32 s46, 14
    s_cselect_b32 s48, s22, s20
    s_cselect_b32 s49, s23, s21
    s_cselect_b32 s47, 14, 0
    s_sub_u32 s47, s46, s47
    s_lshl_b32 s47, s47, 8
    s_mov_b32 s50, {W_BYTES}
    s_mov_b32 s51, 0x20000
    v_and_b32 v1, 15, v0
    v_lshrrev_b32 v2, 4, v0
    v_mul_u32_u24 v2, 3584, v2
    v_lshl_add_u32 v2, v1, 4, v2
    """)
    for p in range(14):
        A(f"buffer_load_dwordx4 {v(16+4*p,4)}, v2, s[48:51], s47 offen")
        if p < 13: A("s_add_u32 s47, s47, %d" % (32 * 3584))
    A("s_mov_b32 s42, 0x00003f80\ns_mov_b32 s43, 0x3f800000")
    for p in range(14):
        A(f"s_waitcnt vmcnt({13-p})")
        for q in range(4):
            for hl in range(2):
                acc = 4 + 2 * q + hl
                A(f"v_dot2_f32_bf16 v{acc}, v{16+4*p+q}, s{42+hl}, {'0' if p == 0 else 'v%d' % acc}")
    for op in ("v_permlane16_swap_b32", "v_permlane32_swap_b32"):
        for q in range(8): A(f"v_mov_b32 v{16+q}, v{4+q}")
        for q in range(8): A(f"{op} v{4+q}, v{16+q}")
        for q in range(8): A(f"v_add_f32 v{4+q}, v{4+q}, v{16+q}")
    A("""
    v_lshrrev_b32 v2, 6, v0
    v_lshlrev_b32 v2, 9, v2
    v_lshl_add_u32 v2, v1, 5, v2
    ds_write_b128 v2, v[4:7]
    ds_write_b128 v2, v[8:11] offset:16
    s_waitcnt lgkmcnt(0)
    s_barrier
    v_and_b32 v1, 127, v0
    v_lshlrev_b32 v1, 2, v1
    ds_read2st64_b32 v[4:5], v1 offset0:0 offset1:2
    ds_read2st64_b32 v[6:7], v1 offset0:4 offset1:6
    ds_read2st64_b32 v[8:9], v1 offset0:8 offset1:10
    ds_read2st64_b32 v[10:11], v1 offset0:12 offset1:14
    s_waitcnt lgkmcnt(0)
    v_pk_add_f32 v[4:5], v[4:5], v[6:7]
    v_pk_add_f32 v[8:9], v[8:9], v[10:11]
    v_pk_add_f32 v[4:5], v[4:5], v[8:9]
    v_add_f32 v4, v4, v5
    s_lshl_b32 s46, s46, 9
    s_add_u32 s46, s46, %d
    v_add_u32 v1, s46, v1
    global_store_dword v1, v4, s[30:31]
    """ % WS_CS)
    P.flush(3)
    A("s_endpgm")

def gen_k1(A, name, code_bytes=12288, prefetch=None):
    kernel_head(A, name)
    end = A.label("K1end"); conv = A.label("K1conv")
    A(f"s_cmp_ge_u32 s2, 256\ns_cbranch_scc1 {end}")
    P = Prof(A, 1); P.stamp(0)
    load_ptrs(A)
    code_prefetch(A, name, code_bytes, 250, 512)
    vLane, vG, vJ = 1, 2, 3
    vXG, vP, vTB = 12, 20, 28
    vRow = 172
    tab = A.label("K1tab")
    A(f"""
    s_add_u32 s62, s60, {tab}-{name}_pc+2048
    s_addc_u32 s63, s61, 0
    v_and_b32 v{vLane}, 63, v0
    v_lshrrev_b32 v4, 6, v0
    v_bfe_u32 v{vG}, v0, 5, 1
    v_and_b32 v{vJ}, 31, v0
    v_readfirstlane_b32 s36, v4
    s_and_b32 s37, s2, 7
    s_mul_i32 s37, s37, 28
    s_lshr_b32 s38, s2, 3
    s_add_u32 s37, s37, s38
    s_min_u32 s37, s37, 223
    s_mul_i32 s46, s2, 9363
    s_lshr_b32 s46, s46, 16
    s_mul_i32 s47, s46, 7
    s_sub_u32 s47, s2, s47
    s_mul_i32 s49, s46, {64*896}
    s_lshl_b32 s48, s47, 7
    s_add_u32 s49, s49, s48
    s_lshl_b32 s47, s47, 19
    s_lshl_b32 s46, s46, 9
    s_add_u32 s51, s47, s46
    s_lshr_b32 s46, s36, 1
    s_and_b32 s47, s36, 1
    s_mul_i32 s48, s46, {16*896}
    s_add_u32 s49, s49, s48
    s_lshl_b32 s48, s47, 6
    s_add_u32 s49, s49, s48
    s_lshl_b32 s46, s46, 7
    s_lshl_b32 s47, s47, 18
    s_add_u32 s51, s51, s46
    s_add_u32 s51, s51, s47
    s_add_u32 s50, s51, {8*16384}
    s_lshl_b32 s46, s36, 10
    s_add_u32 s46, s46, {XT}
    s_mov_b32 m0, s46
    v_lshrrev_b32 v6, 2, v{vLane}
    v_mul_u32_u24 v6, 896, v6
    v_and_b32 v7, 3, v0
    v_lshl_add_u32 v7, v7, 4, v6
    v_and_b32 v6, 7, v0
    v_lshrrev_b32 v5, 3, v{vLane}
    v_lshlrev_b32 v24, 14, v5
    v_lshl_add_u32 v24, v6, 4, v24
    v_lshl_add_u32 v25, v5, 2, s46
    v_lshl_add_u32 v25, v6, 7, v25
    v_mov_b32 v{vP}, 0
    v_mov_b32 v{vP+1}, 0
    v_mov_b32 v{vP+2}, 0
    v_mov_b32 v{vP+3}, 0
    s_lshr_b32 s38, s36, 2
    s_lshl_b32 s48, s37, 10
    v_lshl_add_u32 v4, v0, 1, s48
    v_mul_u32_u24 v5, 896, v5
    v_lshl_add_u32 v5, v6, 4, v5
    s_mul_i32 s46, s2, {8*896}
    s_waitcnt lgkmcnt(0)
    """)
    P.stamp(1)
    srd(A, 32, 4, X_BYTES)
    nost = A.label("K1nost"); nost2 = A.label("K1nost")
    A(f"""
    s_lshl_b32 s48, s37, 2
    s_load_dword s52, s[14:15], s48
    s_load_dword s53, s[16:17], s48
    s_load_dword s57, s[30:31], {WS_E}
    global_load_short_d16_hi v{vP}, v4, s[6:7]
    global_load_short_d16_hi v{vP+1}, v4, s[8:9]
    global_load_short_d16_hi v{vP+2}, v4, s[10:11]
    global_load_short_d16_hi v{vP+3}, v4, s[12:13]
    s_cmp_lg_u32 s36, 0
    s_cbranch_scc1 {nost}
    """)
    for i in range(7): A(f"buffer_load_dwordx4 {v(vRow+4*i,4)}, v5, s[32:35], s46 offen offset:{128*i}")
    A(f"""
    {nost}:
    s_cmp_lt_u32 s2, 224
    s_cselect_b32 s34, s34, 0
    buffer_load_dwordx4 v7, s[32:35], s49 offen lds
    v_and_b32 v5, 255, v0
    v_lshlrev_b32 v6, 4, v5
    v_lshlrev_b32 v5, 3, v5
    global_load_dwordx4 {v(vTB,4)}, v6, s[62:63] offset:-2048
    global_load_dwordx2 {v(vTB+4,2)}, v5, s[62:63] offset:2048
    """)
    srd(A, 64, 30, XG_BYTES, WS_XG)
    A("s_cmp_lt_u32 s2, 224\ns_cselect_b32 s66, s66, 0")
    A(f"""
    v_mov_b32 v48, 0
    v_mov_b32 v49, 0
    v_mov_b32 v50, 0
    v_mov_b32 v51, 0
    v_mul_u32_u24 v4, {UPITCH}, v{vG}
    v_lshl_add_u32 v4, v{vJ}, 4, v4
    v_add_u32 v4, {UO}, v4
    ds_write_b128 v4, v[48:51]
    s_mov_b32 s43, 0xffff0000
    """)
    vEA = 36
    vRA = 52
    A(f"""
    s_lshl_b32 s56, s36, 14
    v_mul_u32_u24 v4, {GP}, v{vJ}
    v_lshl_add_u32 v4, v{vG}, 4, v4
    v_add_u32 v{vRA}, s56, v4
    """)
    vA, vB = 26, 27
    A(f"""
    s_bfe_u32 s46, s36, 0x10001
    s_and_b32 s47, s36, 1
    s_mul_i32 s48, s46, {4*(REG+64)}
    s_lshl_b32 s47, s47, 8
    s_add_u32 s48, s48, s47
    s_add_u32 s48, s48, {KCO+64-24}
    v_and_b32 v4, 3, v0
    v_sub_u32 v4, 3, v4
    v_mul_u32_u24 v4, {REG+64}, v4
    v_bfe_u32 v5, v0, 2, 2
    v_lshl_add_u32 v4, v5, 3, v4
    v_bfe_u32 v5, v0, 4, 2
    v_lshl_add_u32 v4, v5, 4, v4
    v_add_u32 v{vA}, s48, v4
    s_mul_i32 s48, s46, {UPITCH}
    s_sub_u32 s48, s48, s47
    s_add_u32 s48, s48, {UO+512+16-192}
    v_and_b32 v4, 15, v0
    v_lshlrev_b32 v4, 5, v4
    v_lshlrev_b32 v5, 4, v5
    v_sub_u32 v4, v4, v5
    v_add_u32 v{vB}, s48, v4
    s_mov_b32 s45, 0
    """)
    vDT = 54
    A(f"""
    s_waitcnt lgkmcnt(0)
    s_mul_i32 s57, s57, 0x9e3779b1
    s_add_u32 s57, s57, 0x7f4a7c15
    s_lshl_b32 s46, s38, 4
    s_lshr_b32 s52, s52, s46
    s_lshl_b32 s52, s52, 16
    s_and_b32 s59, s53, s43
    s_lshl_b32 s58, s53, 16
    v_mov_b32 v{vXG+1}, s57
    v_mov_b32 v{vXG+3}, s57
    v_mov_b32 v{vXG+5}, s57
    v_mov_b32 v{vXG+7}, s57
    v_mov_b32 v{vDT}, {f32(LOG2E)}
    v_mul_f32 v{vDT}, s52, v{vDT}
    v_exp_f32 v{vDT}, v{vDT}
    v_cvt_pk_bf16_f32 v{vDT}, v{vDT}, v{vDT}
    v_and_b32 v{vDT}, s43, v{vDT}
    s_mov_b32 s54, {f32(8.0)}
    s_mov_b32 s55, {f32(256.0)}
    """)
    P.stamp(2)
    vACC = 56
    a2, b2 = 72, 73
    w1, w8, w256, w2, w512 = 74, 76, 78, 80, 82
    tA, tB, tC = 84, 86, 88
    G, G2, Hh, W4, HT, CV = 90, 106, 122, 130, 132, 140
    w0a = A.label("K1w0"); w0b = A.label("K1w0")
    A(f"""
    s_cmp_eq_u32 s36, 0
    s_cbranch_scc1 {w0a}
    s_waitcnt vmcnt(3)
    {w0a}:
    s_waitcnt vmcnt(10)
    v_mul_f32 v4, {f32(LOG2E)}, v{vP}
    v_exp_f32 v4, v4
    v_mul_f32 v{b2}, v{vP+1}, v{vDT}
    v_add_f32 v6, v{vDT}, v{vDT}
    v_cvt_pk_bf16_f32 v4, v4, v4
    v_and_b32 v4, s43, v4
    v_mul_f32 v{a2}, v4, v{vDT}
    v_mul_f32 v{b2}, 0.15915494, v{b2}
    v_mul_f32 v{a2}, {f32(-LOG2E)}, v{a2}
    v_mul_f32 v{G}, v{vP+2}, v6
    v_mul_f32 v{G+1}, v{vP+3}, v6
    """)
    for l in merge(cexp(Hh, a2, b2, "s54", tA), cexp(w1, a2, b2, None, tB), cexp(w256, a2, b2, "s55", tC)): A(l)
    for l in cmul(w2, w1, w1) + cmul(G+2, G, w1) + cmul(w512, w256, w256): A(l)
    A(f"""
    s_waitcnt vmcnt(2)
    ds_read_b32 v{vXG}, v25
    ds_read_b32 v{vXG+2}, v25 offset:64
    ds_read_b32 v{vXG+4}, v25 offset:32
    ds_read_b32 v{vXG+6}, v25 offset:96
    """)
    for i in range(2, 8):
        for l in cmul(G+2*i, G+2*(i-2), w2): A(l)
    A(f"""
    s_mov_b32 m0, s56
    s_waitcnt lgkmcnt(0)
    buffer_store_dwordx4 {v(vXG,4)}, v24, s[64:67], s51 offen sc0 sc1
    buffer_store_dwordx4 {v(vXG+4,4)}, v24, s[64:67], s50 offen sc0 sc1
    s_cmp_lg_u32 s36, 0
    s_cbranch_scc1 {nost2}
    """)
    a0 = 56
    A("s_mov_b32 s42, 0x3f803f80")
    for i in range(28):
        z = i < 2
        A(f"v_dot2_f32_bf16 v{a0+(i&1)}, v{vRow+i}, s42, {'0' if z else 'v%d' % (a0+(i&1))}")
        A(f"v_dot2_f32_bf16 v{a0+2+(i&1)}, v{vRow+i}, v{vRow+i}, {'0' if z else 'v%d' % (a0+2+(i&1))}")
    A(f"v_lshrrev_b32 v60, 3, v0\ns_lshl_b32 s46, s2, 6\nv_lshl_add_u32 v60, v60, 3, s46")
    A(f"v_add_f32 v{a0}, v{a0}, v{a0+1}\nv_add_f32 v{a0+2}, v{a0+2}, v{a0+3}")
    for op in ("quad_perm:[1,0,3,2]", "quad_perm:[2,3,0,1]", "row_half_mirror"):
        A(f"v_add_f32_dpp v{a0}, v{a0}, v{a0} {op}{DPP}\nv_add_f32_dpp v{a0+2}, v{a0+2}, v{a0+2} {op}{DPP}")
    A(f"""
    v_mul_f32 v{a0}, {f32(1.0/448)}, v{a0}
    v_mul_f32 v{a0+2}, {f32(1.0/448)}, v{a0+2}
    v_fma_f32 v{a0+2}, -v{a0}, v{a0}, v{a0+2}
    v_max_f32 v{a0+2}, 0, v{a0+2}
    v_cvt_pk_bf16_f32 v{a0+2}, v{a0+2}, v{a0+2}
    v_and_b32 v{a0+2}, s43, v{a0+2}
    v_add_f32 v{a0+2}, {f32(1e-5)}, v{a0+2}
    v_cvt_pk_bf16_f32 v{a0+2}, v{a0+2}, v{a0+2}
    v_and_b32 v{a0+2}, s43, v{a0+2}
    v_sqrt_f32 v{a0+2}, v{a0+2}
    v_mov_b32 v{a0+1}, s57
    v_cvt_pk_bf16_f32 v{a0}, v{a0}, v{a0+2}
    s_mov_b32 exec_lo, 0x01010101
    s_mov_b32 exec_hi, 0x01010101
    global_store_dwordx2 v60, {v(a0,2)}, s[30:31] sc0 sc1
    s_mov_b64 exec, -1
    {nost2}:
    s_cmp_lt_u32 s2, 224
    s_cbranch_scc1 {conv}
    """)
    gen_helper(A, end, P)
    A(f".p2align 3\n{conv}:")
    P.stamp(3)
    nb_ = [0]
    def put(src, row, neg):
        r = CV + (nb_[0] & 7); nb_[0] += 1
        return [f"v_cvt_pk_bf16_f32 v{r}, v{src}, {'-' if neg else ''}v{src+1}", f"ds_write_addtid_b32 v{r} offset:{row*GP}"]
    def spread(puts, work):
        o = []
        while puts or work:
            if puts: p = puts.pop(0); o.append(p[0])
            else: p = None
            if work: o += work.pop(0)
            if p: o.append(p[1])
        return o
    GR = 32
    wk = [cmul(G2+2*k, G+4*k, w256) for k in range(4)] + [cmul(G2+8, G, w512), cmul(G2+10, G+8, w512), cmul(G2+12, G2, w512), cmul(G2+14, G2+4, w512)]
    for l in spread([put(G+2*i, GR+i, True) for i in range(8)], wk): A(l)
    wk = [cmul(G, G2+8, w512), cmul(G+2, G2+12, w512), cmul(G+4, G, w512), cmul(G+6, G+2, w512), cmul(G+8, G+4, w512), cmul(Hh+2, Hh, Hh), cmul(Hh+4, Hh+2, Hh), cmul(W4, Hh+2, Hh+2)]
    for l in spread([put(G2+2*i, GR+8+i, True) for i in range(8)], wk): A(l)
    A(f"v_mov_b32 v{CV+8}, 0x3f80\nds_write_addtid_b32 v{CV+8}")
    cur = [Hh, Hh+2, Hh+4, W4]; nxt = [HT, HT+2, HT+4, HT+6]; alt = [G2, G2+2, G2+4, G2+6]
    pend = [put(G+2*i, GR+16+i, True) for i in range(5)]
    j = 1
    while j < 32:
        pend += [put(cur[r], j + r, False) for r in range(4) if j + r < 32]
        wk = [cmul(nxt[r], cur[r], W4) for r in range(4) if j + 4 + r < 32]
        for l in spread(pend, wk): A(l)
        pend = []
        cur, nxt = nxt, (alt if nxt[0] == HT else [HT, HT+2, HT+4, HT+6])
        j += 4
    P.stamp(4)
    vPX, vPS, vPA = 8, 16, 24
    def poll_issue():
        A(f"""
        buffer_load_dwordx4 {v(vPX,4)}, v{vPA}, s[64:67], s44 offen sc1
        buffer_load_dwordx4 {v(vPX+4,4)}, v{vPA}, s[64:67], s44 offen offset:16 sc1
        global_load_dwordx4 {v(vPS,4)}, v{vPA}, s[30:31] sc1
        global_load_dwordx4 {v(vPS+4,4)}, v{vPA}, s[30:31] offset:16 sc1
        """)
    FR = 172
    tabprep = [f"s_lshl_b32 s46, s36, 14", f"v_lshl_add_u32 v4, v{vJ}, 2, s46", f"v_mul_u32_u24 v5, {4*TP}, v{vG}", "v_add_u32 v5, v5, v4"]
    tabprep += [f"v_xor_b32 v77, 1, v{vG}"]
    tmin = []
    for b in range(4):
        o0 = 2 * b * TP + 128; o1 = 4 * (b & 1) * TP + 256 + 128 * (b >> 1)
        tabprep += [f"v_mul_u32_u24 v{72+b}, {abs(o1-o0)}, v{vG if o1 > o0 else 77}", f"v_add_u32 v{72+b}, v{72+b}, v4"]
        tmin.append(min(o0, o1))
    tabprep += [f"v_lshl_add_u32 v76, v{vG}, 9, v4"]
    tabprep += [f"v_lshlrev_b32 v{vPA}, 5, v0", "s_lshl_b32 s44, s37, 14"]
    for n in range(8):
        b = FR + 8 * n
        A(f"ds_read_b128 {v(b,4)}, v{vRA} offset:{GR*GP+32*n}\nds_read_b128 {v(b+4,4)}, v{vRA} offset:{32*n}")
        if n == 6:
            for l in tabprep: A(l)
    A("s_waitcnt vmcnt(2)\ns_lshl_b32 s48, s38, 16\nv_mov_b32 v6, s48")
    ea = [f"v_add_u32_sdwa v{vEA+r}, v{vTB+(r>>1)}, v6 dst_sel:DWORD dst_unused:UNUSED_PAD src0_sel:WORD_{r&1} src1_sel:DWORD" for r in range(11)]
    for n in range(8):
        b0 = FR + 8 * n
        A(f"s_waitcnt lgkmcnt({2*(7-n)})\nv_mfma_f32_32x32x16_bf16 {v(vACC,16)}, {v(b0,4)}, {v(b0+4,4)}, {'0' if n == 0 else v(vACC,16)}")
        for l in ea[2*n:2*n+2]: A(l)
    poll_issue()
    for b in range(4):
        A(f"ds_write_b32 v5, v{vACC+b} offset:{TP*b}")
    for b in range(4):
        A(f"ds_write_b32 v{72+b}, v{vACC+4+b} offset:{tmin[b]}")
    A("s_mov_b32 exec_hi, 1")
    A(f"ds_write_b32 v76, v{vACC+8} offset:512")
    A("s_mov_b32 exec_hi, 0")
    for b in range(1, 4):
        A(f"ds_write_b32 v76, v{vACC+8+b} offset:{512+128*b}")
    A("s_mov_b32 exec_hi, -1")
    A("s_waitcnt lgkmcnt(0)\ns_barrier")
    P.stamp(5)
    EV = 90
    for r in range(11):
        A(f"ds_read2st64_b32 {v(EV+4*r,2)}, v{vEA+r} offset0:0 offset1:64\nds_read2st64_b32 {v(EV+4*r+2,2)}, v{vEA+r} offset0:128 offset1:192")
    A(f"""
    v_and_b32 v4, 255, v0
    v_cmp_ne_u32 vcc, 0, v4
    s_mul_i32 s46, s38, {4*(REG+64)}
    s_add_u32 s46, s46, {KCO+64}
    v_lshl_add_u32 v4, v4, 4, s46
    v_mov_b32 v140, 0
    v_mov_b32 v141, 0
    v_mov_b32 v142, 0
    v_mov_b32 v143, 0
    s_mul_i32 s46, s36, {REG+64}
    s_add_u32 s46, s46, {KCO}
    v_and_b32 v5, 3, v0
    v_lshl_add_u32 v5, v5, 4, s46
    """)
    for r in range(11):
        if r in (0, 4, 8): A(f"s_waitcnt lgkmcnt({max(0, 22-2*(r+4))})")
        A(f"v_pk_add_f32 {v(EV+4*r,2)}, {v(EV+4*r,2)}, {v(EV+4*r+2,2)}\nv_add_f32 v{EV+4*r}, v{EV+4*r}, v{EV+4*r+1}")
    for r in range(3):
        A(f"v_cndmask_b32 v{EV+4*r}, 0, v{EV+4*r}, vcc")
    A("ds_write_b128 v5, v[140:143]")
    CB = 144
    for cp in range(4):
        b = CB + 4 * cp
        for k in range(4):
            r0 = 3 - cp + 2 * k
            A(f"v_cvt_pk_bf16_f32 v{b+k}, v{EV+4*r0}, v{EV+4*r0+4}")
        A(f"ds_write_b128 v4, {v(b,4)} offset:{cp*(REG+64)}")
    P.stamp(6)
    pl = A.label("K1poll"); ok = A.label("K1ok")
    A(f"""
    {pl}:
    s_waitcnt vmcnt(0)
    v_min3_u32 v4, v{vPX+1}, v{vPX+3}, v{vPX+5}
    v_max3_u32 v5, v{vPX+1}, v{vPX+3}, v{vPX+5}
    v_min3_u32 v4, v4, v{vPX+7}, v{vPS+1}
    v_max3_u32 v5, v5, v{vPX+7}, v{vPS+1}
    v_min3_u32 v4, v4, v{vPS+3}, v{vPS+5}
    v_max3_u32 v5, v5, v{vPS+3}, v{vPS+5}
    v_min3_u32 v4, v4, v{vPS+7}, s57
    v_max3_u32 v5, v5, v{vPS+7}, s57
    v_cmp_ne_u32 vcc, v4, v5
    s_cbranch_vccz {ok}
    s_add_u32 s45, s45, 1
    s_cmp_gt_u32 s45, {SPIN}
    s_cbranch_scc1 {ok}
    s_sleep 2
    """)
    poll_issue()
    A(f"s_branch {pl}\n{ok}:")
    P.stamp(7)
    NU, PRE = 90, 28
    st = []
    for r in range(4):
        S = vPS + 2 * r; X = vPX + 2 * r
        t = 100 + 4 * r
        st.append([f"v_and_b32 v{t+2}, s43, v{S}", f"v_rcp_f32 v{t+2}, v{t+2}", f"v_lshlrev_b32 v{t}, 16, v{S}",
              f"v_lshlrev_b32 v{PRE+2*r}, 16, v{X}", f"v_and_b32 v{PRE+2*r+1}, s43, v{X}",
              f"v_pk_add_f32 {v(NU+2*r,2)}, {v(PRE+2*r,2)}, {v(t,2)} op_sel_hi:[1,0] neg_lo:[0,1] neg_hi:[0,1]",
              f"v_cvt_pk_bf16_f32 v{NU+2*r+1}, v{NU+2*r}, v{NU+2*r+1}",
              f"v_lshlrev_b32 v{NU+2*r}, 16, v{NU+2*r+1}", f"v_and_b32 v{NU+2*r+1}, s43, v{NU+2*r+1}",
              f"v_pk_mul_f32 {v(NU+2*r,2)}, {v(NU+2*r,2)}, {v(t+2,2)} op_sel_hi:[1,0]"])
    for l in merge(*st): A(l)
    UB = 120
    for c in range(2):
        A(f"v_cvt_pk_bf16_f32 v{UB+2*c}, v{NU+6+c}, v{NU+4+c}\nv_cvt_pk_bf16_f32 v{UB+2*c+1}, v{NU+2+c}, v{NU+c}")
    A(f"""
    v_xor_b32 v4, 1, v0
    v_lshlrev_b32 v4, 3, v4
    v_add_u32 v4, {UO+512}, v4
    ds_write_b64 v4, {v(UB,2)}
    ds_write_b64 v4, {v(UB+2,2)} offset:{UPITCH}
    s_waitcnt lgkmcnt(0)
    s_barrier
    """)
    P.stamp(8)
    pre = []
    for c in range(2):
        pre += [f"v_lshlrev_b32 v{NU+6+c}, 16, v{UB+2*c}", f"v_and_b32 v{NU+4+c}, s43, v{UB+2*c}", f"v_lshlrev_b32 v{NU+2+c}, 16, v{UB+2*c+1}", f"v_and_b32 v{NU+c}, s43, v{UB+2*c+1}"]
    pre += [f"v_pk_fma_f32 {v(PRE+2*r,2)}, {v(NU+2*r,2)}, s[58:59], {v(PRE+2*r,2)}" for r in range(4)]
    other = A.label("K1other"); fin = A.label("K1fin")
    A(f"s_cmp_ge_u32 s36, 4\ns_cbranch_scc1 {other}")
    AC, FB = 56, 128
    def rd(Gi):
        r, n = Gi >> 3, Gi & 7
        b = FB + 8 * (Gi & 15)
        return [f"ds_read_b64 {v(b,2)}, v{vA} offset:{512*n+64*r}", f"ds_read_b64 {v(b+2,2)}, v{vA} offset:{512*n+64*r+8}",
                f"ds_read_b128 {v(b+4,4)}, v{vB} offset:{512*n+64*(3-r)}"]
    for Gi in range(4):
        for l in rd(Gi): A(l)
    for l in pre: A(l)
    started = set()
    for Gi in range(32):
        r, n = Gi >> 3, Gi & 7
        base = FB + 64 * (r & 1)
        pairs = [(a, b) for a in range(n + 1) for b in range(n + 1) if max(a, b) == n and a + b <= 7]
        nr = rd(Gi + 4) if Gi + 4 < 32 else []
        A(f"s_waitcnt lgkmcnt({min(9, 3*(31-Gi))})")
        for k, (a, b) in enumerate(pairs):
            t = a + b
            c = v(AC + 4 * t, 4) if t in started else "0"
            started.add(t)
            A(f"v_mfma_f32_16x16x32_bf16 {v(AC+4*t,4)}, {v(base+8*a,4)}, {v(base+8*b+4,4)}, {c}")
            if nr: A(nr.pop(0))
        for l in nr: A(l)
    P.stamp(9)
    A(f"""
    v_and_b32 v4, 15, v0
    v_bfe_u32 v5, v0, 4, 2
    v_lshlrev_b32 v6, 2, v5
    v_xor_b32 v4, v4, v6
    v_lshl_add_u32 v4, v5, 4, v4
    s_lshl_b32 s46, s36, 14
    v_lshl_add_u32 v4, v4, 4, s46
    """)
    for t in range(8): A(f"ds_write_b128 v4, {v(AC+4*t,4)} offset:{1024*t}")
    A(f"s_branch {fin}\n{other}:")
    for l in pre: A(l)
    nb = A.label("K1nb")
    A(f"""
    s_lshl_b32 s46, s2, 3
    s_add_u32 s46, s46, s36
    s_cmp_lg_u32 s46, 4
    s_cbranch_scc1 {nb}
    v_mov_b32 v4, {WS_E}
    v_mov_b32 v5, s57
    global_store_dword v4, v5, s[30:31]
    {nb}:
    """)
    if prefetch: prefetch(A)
    P.stamp(9)
    A(f"""
    {fin}:
    v_and_b32 v5, 3, v0
    v_bfe_u32 v4, v0, 2, 4
    v_lshlrev_b32 v6, 2, v5
    v_xor_b32 v4, v4, v6
    v_lshl_add_u32 v4, v5, 4, v4
    s_lshl_b32 s46, s36, 10
    v_lshl_add_u32 v4, v4, 4, s46
    s_lshl_b32 s46, s37, 13
    s_add_u32 s46, s46, {WS_HT}
    v_lshl_add_u32 v5, v0, 3, s46
    v_add_u32 v6, 4096, v5
    s_waitcnt lgkmcnt(0)
    s_barrier
    """)
    for q in range(4): A(f"ds_read_b128 {v(8+4*q,4)}, v4 offset:{REG*q}")
    for c in range(2):
        A(f"s_waitcnt lgkmcnt({2-2*c})")
        y = 8 + 8 * c
        A(f"v_pk_add_f32 {v(y,2)}, {v(y,2)}, {v(y+4,2)}\nv_pk_add_f32 {v(y+2,2)}, {v(y+2,2)}, {v(y+6,2)}")
        for r in range(4): A(f"v_add_f32 v{y+r}, v{y+r}, v{PRE+2*r+c}")
        A(f"v_cvt_pk_bf16_f32 v{y}, v{y}, v{y+1}\nv_cvt_pk_bf16_f32 v{y+1}, v{y+2}, v{y+3}")
        A(f"global_store_dwordx2 v{5+c}, {v(y,2)}, s[30:31]")
    P.stamp(10)
    P.flush(11)
    A(f"{end}:\ns_endpgm")
    import numpy as np
    def rnd(l):
        u = np.float32(max(l, 0)).view(np.uint32)
        u = (int(u) + 0x7FFF + ((int(u) >> 16) & 1)) & 0xFFFF0000
        return int(np.uint32(u).view(np.float32))
    ad = [[(rnd(8 * b - 3 + r) & 7) * TP + (rnd(8 * b - 3 + r) >> 3) * 4 for r in range(12)] for b in range(256)]
    A(f".p2align 7\n.type {tab},@object\n{tab}:")
    for b in range(256): A(".long " + ", ".join("0x%08x" % (ad[b][2*k] | ad[b][2*k+1] << 16) for k in range(4)))
    for b in range(256): A(".long " + ", ".join("0x%08x" % (ad[b][2*k] | ad[b][2*k+1] << 16) for k in range(4, 6)))
    A(f".size {tab}, {256*24}")
    return kernel_desc(name, 256, 100)
```

```python
import sys
from base import *
import hz, al, ka, kb, kc, k1
HEAD = open("sequential_preLN__ssm_conv_s4d__geglu_ffn__prompt.s.ref").read().split("; Override launch")[0]
def build(kernels, path, verbose=False):
    A = Asm()
    descs = []
    done = set()
    for name, fn, g, b, lds in kernels:
        if name in done: continue
        done.add(name)
        descs.append(fn(A, name))
    lines = hz.fix(A.L, verbose)
    lines, npro, nmis = al.fix(lines)
    if verbose: print('align: promoted', npro, 'still misaligned', nmis)
    s = HEAD
    for name, fn, g, b, lds in kernels:
        s += f"; @launch kernel={name} grid=({g},1,1) block=({b},1,1) lds={lds}\n"
    s += '.amdgcn_target "amdgcn-amd-amdhsa--gfx950"\n.text\n' + "\n".join(lines) + '\n.section .rodata,"a"\n' + "".join(descs)
    open(path, "w").write(s)
def gen_nop(A, name):
    kernel_head(A, name); A("s_endpgm"); return kernel_desc(name, 8, 16)
K0 = ("k0_kernel", ka.gen_k0, 256, 256, 0)
KA = ("ka_kernel", ka.gen_ka, 256, 256, ka.KA_LDS)
KB = ("kb_kernel", kb.gen_kb, 224, 512, kb.KB_LDS)
KC = ("kc_kernel", kc.gen_kc, 224, 256, kc.KC_LDS)
K1 = ("k1_kernel", k1.gen_k1, 256, 512, k1.K1_LDS)
NOP = ("nop_kernel", gen_nop, 256, 256, 0)
if __name__ == "__main__":
    import base
    build([K1, KB, KC], "v2.s", True)
    base.PROF = True
    build([K1, KB, KC], "v2_prof.s")
```

```python
import struct
class Asm:
    def __init__(s):
        s.L = []
        s.nl = 0
    def __call__(s, t):
        for l in t.split("\n"):
            l = l.strip()
            if not l: continue
            s.L.append(l if l.endswith(":") or l.startswith(".") else "    " + l)
    def label(s, p="L"):
        s.nl += 1
        return "%s_%d" % (p, s.nl)
def f32(x): return "0x%08x" % struct.unpack("<I", struct.pack("<f", x))[0]
def v(a, n=1): return "v%d" % a if n == 1 else "v[%d:%d]" % (a, a + n - 1)
def a_(a, n=1): return "a%d" % a if n == 1 else "a[%d:%d]" % (a, a + n - 1)
def s_(a, n=1): return "s%d" % a if n == 1 else "s[%d:%d]" % (a, a + n - 1)
def merge(*streams):
    streams = [list(x) for x in streams if x]
    out = []
    tot = [len(x) for x in streams]; pos = [0] * len(streams)
    while any(pos[i] < tot[i] for i in range(len(streams))):
        i = min((i for i in range(len(streams)) if pos[i] < tot[i]), key=lambda i: (pos[i] + 0.5) / tot[i])
        out.append(streams[i][pos[i]]); pos[i] += 1
    return out
def srd(A, d, b, nbytes, off=0):
    if off:
        A(f"s_add_u32 s{d}, s{b}, {off}\ns_addc_u32 s{d+1}, s{b+1}, 0")
    else:
        A(f"s_mov_b32 s{d}, s{b}\ns_mov_b32 s{d+1}, s{b+1}")
    A(f"s_mov_b32 s{d+2}, {nbytes}\ns_mov_b32 s{d+3}, 0x20000")
def kernel_head(A, name):
    A(f".globl {name}\n.p2align 8\n.type {name},@function\n{name}:")
def kernel_desc(name, vgpr, sgpr, accum=None):
    if accum is None: accum = (vgpr + 3) // 4 * 4
    return f""".p2align 6
.amdhsa_kernel {name}
  .amdhsa_next_free_vgpr {vgpr}
  .amdhsa_next_free_sgpr {sgpr}
  .amdhsa_accum_offset {accum}
  .amdhsa_group_segment_fixed_size 0
  .amdhsa_kernarg_size 112
  .amdhsa_user_sgpr_count 2
  .amdhsa_user_sgpr_kernarg_segment_ptr 1
  .amdhsa_system_sgpr_workgroup_id_x 1
.end_amdhsa_kernel
"""
L_, D_, N_, F_ = 2048, 448, 256, 1792
WS_STATS = 0
WS_CS = 0x8000
WS_HT = 0x10000
WS_ACT = 0x200000
WS_FLAGS = 0xE00000
WS_PS = WS_FLAGS + 0x8000
ZERO_BYTES = 0x40000
X_BYTES = L_ * D_ * 2
P_BYTES = D_ * N_ * 2
W_BYTES = D_ * F_ * 2
ACT_BYTES = L_ * F_ * 2
LOG2E = 1.4426950408889634
DPP = " row_mask:0xf bank_mask:0xf"
def reduce32(A, r, t):
    A(f"v_add_f32_dpp v{r}, v{r}, v{r} quad_perm:[1,0,3,2]{DPP}")
    A(f"v_add_f32_dpp v{r}, v{r}, v{r} quad_perm:[2,3,0,1]{DPP}")
    A(f"v_add_f32_dpp v{r}, v{r}, v{r} row_half_mirror{DPP}")
    A(f"v_add_f32_dpp v{r}, v{r}, v{r} row_mirror{DPP}")
    A(f"v_mov_b32 v{t}, v{r}")
    A(f"v_permlane16_swap_b32 v{r}, v{t}")
    A(f"v_add_f32 v{r}, v{r}, v{t}")

PROF = False
WS_PROF = 0x1000000
class Prof:
    def __init__(s, A, kid): s.A = A; s.kid = kid
    def stamp(s, i):
        if PROF: s.A(f"s_memrealtime s[{72+2*i}:{73+2*i}]")
    def flush(s, n, wsreg=30):
        if not PROF: return
        A = s.A
        A("s_waitcnt vmcnt(0)")
        s.stamp(n)
        A("s_waitcnt lgkmcnt(0)")
        A(f"v_bfe_u32 v2, v0, 6, 3\nv_lshl_add_u32 v2, s2, 3, v2\nv_lshlrev_b32 v2, 6, v2\nv_add_u32 v2, {WS_PROF + s.kid*0x20000}, v2")
        for i in range(n + 1):
            A(f"v_mov_b32 v3, s{72+2*i}\nglobal_store_dword v2, v3, s[{wsreg}:{wsreg+1}] offset:{4*i}")
```

```python
import sys, base
from gen import *
import k4 as k3, k5
cP = {**{i: 8 for i in range(0, 11)}, **{i: 8 for i in range(23, 28)}}
BK2 = dict(tdepth=14, tdepth2=14, ddepth=4, drain0=(23,25), poll0=27, caps=cP, hdepth=0, gate_ahead={28:2, 42: 10}, g2_blockwise=True)
def variant(nm, prof=True, oldk1=False, **kw):
    base.PROF = prof
    C = type("C", (k3.Cfg,), {**BK2, **kw})
    k1kw = kw.get("k1kw", {})
    K = ("k1_kernel", lambda A, n: k1.gen_k1(A, n, pf2=7), 256, 512, k1.K1_LDS) if oldk1 else ("k1_kernel", lambda A, n: k5.gen_k1(A, n, **k1kw), 256, 768, k5.K5_LDS)
    build([K, ("k2_kernel", lambda A, n: k3.gen_k2(A, n, C), 256, 640, k3.K2_LDS)], f"x_{nm}.s", kw.get("verbose", False))
    if prof:
        s = open(f"x_{nm}.s").read().replace("s_memrealtime", "s_memtime")
        open(f"xc_{nm}.s", "w").write(s)
if __name__ == "__main__":
    H = "sc0 sc1"
    variant("a", k1kw=dict(hstore=H))
    variant("b", k1kw=dict(hstore=H, poll_late=6))
    variant("c", k1kw=dict(hstore=H, early=True))
    variant("d", k1kw=dict(hstore=H, poll_late=10))
```

```python
import sys
from base import *
import hz, al, ka, kb, kc, k1, k2
HEAD = open("sequential_preLN__ssm_conv_s4d__geglu_ffn__prompt.s.ref").read().split("; Override launch")[0]
def build(kernels, path, verbose=False):
    A = Asm()
    descs = []
    done = set()
    for name, fn, g, b, lds in kernels:
        if name in done: continue
        done.add(name)
        descs.append(fn(A, name))
    lines = hz.fix(A.L, verbose)
    lines, npro, nmis = al.fix(lines)
    if verbose: print('align: promoted', npro, 'still misaligned', nmis)
    s = HEAD
    for name, fn, g, b, lds in kernels:
        s += f"; @launch kernel={name} grid=({g},1,1) block=({b},1,1) lds={lds}\n"
    s += '.amdgcn_target "amdgcn-amd-amdhsa--gfx950"\n.text\n' + "\n".join(lines) + '\nLcode_end:\n.section .rodata,"a"\n' + "".join(descs)
    open(path, "w").write(s)
def gen_nop(A, name):
    kernel_head(A, name); A("s_endpgm"); return kernel_desc(name, 8, 16)
K0 = ("k0_kernel", ka.gen_k0, 256, 256, 0)
KA = ("ka_kernel", ka.gen_ka, 256, 256, ka.KA_LDS)
KB = ("kb_kernel", kb.gen_kb, 224, 512, kb.KB_LDS)
KC = ("kc_kernel", kc.gen_kc, 224, 256, kc.KC_LDS)
K1 = ("k1_kernel", k1.gen_k1, 256, 512, k1.K1_LDS)
K2 = ("k2_kernel", k2.gen_k2, 224, 448, k2.K2_LDS)
NOP = ("nop_kernel", gen_nop, 256, 256, 0)
if __name__ == "__main__":
    import base
    build([K1, K2], "v3.s", True)
    base.PROF = True
    build([K1, K2], "v3_prof.s")
```

```python
from base import *
from ka import load_ptrs, cmul, cexp
WS_E = 0x4000
WS_FLAG = 0xC000
WS_XG = 0xA00000
XG_BYTES = 224 * 16384
REG = 16384
KCO = 8704
UO = 8 * REG
UPITCH = 4608
XT = UO + 2 * UPITCH
K1_LDS = XT + 8192
SPIN = 1 << 18
TP = 1056
GP = 272

def reduce64(A, r, t):
    reduce32(A, r, t)
    A(f"v_mov_b32 v{t}, v{r}\nv_permlane32_swap_b32 v{r}, v{t}\nv_add_f32 v{r}, v{r}, v{t}")

def code_prefetch(A, lab_start, nbytes, vt, nthreads):
    per = (nbytes // 128 + 31) // 32
    A(f"s_getpc_b64 s[60:61]\n{lab_start}_pc:")
    A(f"""
    s_lshr_b32 s62, s2, 3
    s_mul_i32 s62, s62, {per*128}
    v_min_u32 v{vt}, {per-1}, v0
    v_lshl_add_u32 v{vt}, v{vt}, 7, s62
    v_min_u32 v{vt}, Lcode_end-{lab_start}_pc-4, v{vt}
    global_load_dword v{vt+1}, v{vt}, s[60:61]
    """)

def gen_helper(A, end, P):
    A(f"""
    s_sub_u32 s46, s2, 224
    s_cmp_ge_u32 s46, 28
    s_cbranch_scc0 Lcs_go
    v_lshlrev_b32 v2, 4, v0
    s_lshl_b32 s46, s46, 16
    s_add_u32 s46, s46, {WS_FLAGS - 28*65536}
    v_add_u32 v2, s46, v2
    v_mov_b32 v4, 0
    v_mov_b32 v5, 0
    v_mov_b32 v6, 0
    v_mov_b32 v7, 0
    """)
    for i in range(8):
        A("global_store_dwordx4 v2, v[4:7], s[30:31]")
        if i < 7: A("v_add_u32 v2, 8192, v2")
    A(f"""
    s_endpgm
    Lcs_go:
    s_cmp_ge_u32 s46, 14
    s_cselect_b32 s48, s22, s20
    s_cselect_b32 s49, s23, s21
    s_cselect_b32 s47, 14, 0
    s_sub_u32 s47, s46, s47
    s_lshl_b32 s47, s47, 8
    s_mov_b32 s50, {W_BYTES}
    s_mov_b32 s51, 0x20000
    v_and_b32 v1, 15, v0
    v_lshrrev_b32 v2, 4, v0
    v_mul_u32_u24 v2, 3584, v2
    v_lshl_add_u32 v2, v1, 4, v2
    """)
    for p in range(14):
        A(f"buffer_load_dwordx4 {v(16+4*p,4)}, v2, s[48:51], s47 offen")
        if p < 13: A("s_add_u32 s47, s47, %d" % (32 * 3584))
    A("s_mov_b32 s42, 0x00003f80\ns_mov_b32 s43, 0x3f800000")
    for p in range(14):
        A(f"s_waitcnt vmcnt({13-p})")
        for q in range(4):
            for hl in range(2):
                acc = 4 + 2 * q + hl
                A(f"v_dot2_f32_bf16 v{acc}, v{16+4*p+q}, s{42+hl}, {'0' if p == 0 else 'v%d' % acc}")
    for op in ("v_permlane16_swap_b32", "v_permlane32_swap_b32"):
        for q in range(8): A(f"v_mov_b32 v{16+q}, v{4+q}")
        for q in range(8): A(f"{op} v{4+q}, v{16+q}")
        for q in range(8): A(f"v_add_f32 v{4+q}, v{4+q}, v{16+q}")
    A("""
    v_lshrrev_b32 v2, 6, v0
    v_lshlrev_b32 v2, 9, v2
    v_lshl_add_u32 v2, v1, 5, v2
    ds_write_b128 v2, v[4:7]
    ds_write_b128 v2, v[8:11] offset:16
    s_waitcnt lgkmcnt(0)
    s_barrier
    v_and_b32 v1, 127, v0
    v_lshlrev_b32 v1, 2, v1
    ds_read2st64_b32 v[4:5], v1 offset0:0 offset1:2
    ds_read2st64_b32 v[6:7], v1 offset0:4 offset1:6
    ds_read2st64_b32 v[8:9], v1 offset0:8 offset1:10
    ds_read2st64_b32 v[10:11], v1 offset0:12 offset1:14
    s_waitcnt lgkmcnt(0)
    v_pk_add_f32 v[4:5], v[4:5], v[6:7]
    v_pk_add_f32 v[8:9], v[8:9], v[10:11]
    v_pk_add_f32 v[4:5], v[4:5], v[8:9]
    v_add_f32 v4, v4, v5
    s_mov_b32 s43, 0xffff0000
    v_cvt_pk_bf16_f32 v5, v4, v4
    v_and_b32 v5, s43, v5
    v_sub_f32 v6, v4, v5
    v_cvt_pk_bf16_f32 v8, v5, v6
    v_and_b32 v7, s43, v8
    v_sub_f32 v6, v6, v7
    v_cvt_pk_bf16_f32 v9, v6, 0
    s_lshl_b32 s46, s46, 10
    s_add_u32 s46, s46, %d
    v_lshl_add_u32 v1, v1, 1, s46
    global_store_dwordx2 v1, v[8:9], s[30:31]
    """ % WS_CS)
    P.flush(3)
    A("s_endpgm")

def gen_k1(A, name, code_bytes=49152, prefetch=False, pf2=0):
    kernel_head(A, name)
    end = A.label("K1end"); conv = A.label("K1conv")
    A(f"s_cmp_ge_u32 s2, 256\ns_cbranch_scc1 {end}")
    P = Prof(A, 1); P.stamp(0)
    load_ptrs(A)
    code_prefetch(A, name, code_bytes, 250, 512)
    vLane, vG, vJ = 1, 2, 3
    vXG, vP, vTB = 12, 20, 28
    vRow = 172
    tab = A.label("K1tab")
    A(f"""
    s_add_u32 s62, s60, {tab}-{name}_pc+2048
    s_addc_u32 s63, s61, 0
    v_and_b32 v{vLane}, 63, v0
    v_lshrrev_b32 v4, 6, v0
    v_bfe_u32 v{vG}, v0, 5, 1
    v_and_b32 v{vJ}, 31, v0
    v_readfirstlane_b32 s36, v4
    s_and_b32 s37, s2, 7
    s_mul_i32 s37, s37, 28
    s_lshr_b32 s38, s2, 3
    s_add_u32 s37, s37, s38
    s_min_u32 s37, s37, 223
    s_mul_i32 s46, s2, 9363
    s_lshr_b32 s46, s46, 16
    s_mul_i32 s47, s46, 7
    s_sub_u32 s47, s2, s47
    s_mul_i32 s49, s46, {64*896}
    s_lshl_b32 s48, s47, 7
    s_add_u32 s49, s49, s48
    s_lshl_b32 s47, s47, 19
    s_lshl_b32 s46, s46, 9
    s_add_u32 s51, s47, s46
    s_lshr_b32 s46, s36, 1
    s_and_b32 s47, s36, 1
    s_mul_i32 s48, s46, {16*896}
    s_add_u32 s49, s49, s48
    s_lshl_b32 s48, s47, 6
    s_add_u32 s49, s49, s48
    s_lshl_b32 s46, s46, 7
    s_lshl_b32 s47, s47, 18
    s_add_u32 s51, s51, s46
    s_add_u32 s51, s51, s47
    s_add_u32 s50, s51, {8*16384}
    s_lshl_b32 s46, s36, 10
    s_add_u32 s46, s46, {XT}
    s_mov_b32 m0, s46
    v_lshrrev_b32 v6, 2, v{vLane}
    v_mul_u32_u24 v6, 896, v6
    v_and_b32 v7, 3, v0
    v_lshl_add_u32 v7, v7, 4, v6
    v_and_b32 v6, 7, v0
    v_lshrrev_b32 v5, 3, v{vLane}
    v_lshlrev_b32 v24, 14, v5
    v_lshl_add_u32 v24, v6, 4, v24
    v_lshl_add_u32 v25, v5, 2, s46
    v_lshl_add_u32 v25, v6, 7, v25
    v_mov_b32 v{vP}, 0
    v_mov_b32 v{vP+1}, 0
    v_mov_b32 v{vP+2}, 0
    v_mov_b32 v{vP+3}, 0
    s_lshr_b32 s38, s36, 2
    s_lshl_b32 s48, s37, 10
    v_lshl_add_u32 v4, v0, 1, s48
    v_mul_u32_u24 v5, 896, v5
    v_lshl_add_u32 v5, v6, 4, v5
    s_mul_i32 s46, s2, {8*896}
    s_waitcnt lgkmcnt(0)
    """)
    P.stamp(1)
    srd(A, 32, 4, X_BYTES)
    nost = A.label("K1nost"); nost2 = A.label("K1nost")
    A(f"""
    s_lshl_b32 s48, s37, 2
    s_load_dword s52, s[14:15], s48
    s_load_dword s53, s[16:17], s48
    s_load_dword s57, s[30:31], {WS_E}
    global_load_short_d16_hi v{vP}, v4, s[6:7]
    global_load_short_d16_hi v{vP+1}, v4, s[8:9]
    global_load_short_d16_hi v{vP+2}, v4, s[10:11]
    global_load_short_d16_hi v{vP+3}, v4, s[12:13]
    s_cmp_lg_u32 s36, 0
    s_cbranch_scc1 {nost}
    """)
    for i in range(7): A(f"buffer_load_dwordx4 {v(vRow+4*i,4)}, v5, s[32:35], s46 offen offset:{128*i}")
    A(f"""
    {nost}:
    s_cmp_lt_u32 s2, 224
    s_cselect_b32 s34, s34, 0
    buffer_load_dwordx4 v7, s[32:35], s49 offen lds
    v_and_b32 v5, 255, v0
    v_lshlrev_b32 v6, 4, v5
    v_lshlrev_b32 v5, 3, v5
    global_load_dwordx4 {v(vTB,4)}, v6, s[62:63] offset:-2048
    global_load_dwordx2 {v(vTB+4,2)}, v5, s[62:63] offset:2048
    """)
    srd(A, 64, 30, XG_BYTES, WS_XG)
    A("s_cmp_lt_u32 s2, 224\ns_cselect_b32 s66, s66, 0")
    A(f"""
    v_mov_b32 v48, 0
    v_mov_b32 v49, 0
    v_mov_b32 v50, 0
    v_mov_b32 v51, 0
    v_mul_u32_u24 v4, {UPITCH}, v{vG}
    v_lshl_add_u32 v4, v{vJ}, 4, v4
    v_add_u32 v4, {UO}, v4
    ds_write_b128 v4, v[48:51]
    s_mov_b32 s43, 0xffff0000
    """)
    vEA = 36
    vRA = 52
    A(f"""
    s_lshl_b32 s56, s36, 14
    v_mul_u32_u24 v4, {GP}, v{vJ}
    v_lshl_add_u32 v4, v{vG}, 4, v4
    v_add_u32 v{vRA}, s56, v4
    """)
    vA, vB = 26, 27
    A(f"""
    s_bfe_u32 s46, s36, 0x10001
    s_and_b32 s47, s36, 1
    s_mul_i32 s48, s46, {4*(REG+64)}
    s_lshl_b32 s47, s47, 8
    s_add_u32 s48, s48, s47
    s_add_u32 s48, s48, {KCO+64-24}
    v_and_b32 v4, 3, v0
    v_sub_u32 v4, 3, v4
    v_mul_u32_u24 v4, {REG+64}, v4
    v_bfe_u32 v5, v0, 2, 2
    v_lshl_add_u32 v4, v5, 3, v4
    v_bfe_u32 v5, v0, 4, 2
    v_lshl_add_u32 v4, v5, 4, v4
    v_add_u32 v{vA}, s48, v4
    s_mul_i32 s48, s46, {UPITCH}
    s_sub_u32 s48, s48, s47
    s_add_u32 s48, s48, {UO+512+16-192}
    v_and_b32 v4, 15, v0
    v_lshlrev_b32 v4, 5, v4
    v_lshlrev_b32 v5, 4, v5
    v_sub_u32 v4, v4, v5
    v_add_u32 v{vB}, s48, v4
    s_mov_b32 s45, 0
    """)
    vDT = 54
    A(f"""
    s_waitcnt lgkmcnt(0)
    s_mul_i32 s57, s57, 0x9e3779b1
    s_add_u32 s57, s57, 0x7f4a7c15
    s_lshl_b32 s46, s38, 4
    s_lshr_b32 s52, s52, s46
    s_lshl_b32 s52, s52, 16
    s_and_b32 s59, s53, s43
    s_lshl_b32 s58, s53, 16
    v_mov_b32 v{vXG+1}, s57
    v_mov_b32 v{vXG+3}, s57
    v_mov_b32 v{vXG+5}, s57
    v_mov_b32 v{vXG+7}, s57
    v_mov_b32 v{vDT}, {f32(LOG2E)}
    v_mul_f32 v{vDT}, s52, v{vDT}
    v_exp_f32 v{vDT}, v{vDT}
    v_cvt_pk_bf16_f32 v{vDT}, v{vDT}, v{vDT}
    v_and_b32 v{vDT}, s43, v{vDT}
    s_mov_b32 s54, {f32(8.0)}
    s_mov_b32 s55, {f32(256.0)}
    """)
    P.stamp(2)
    vACC = 56
    a2, b2 = 72, 73
    w1, w8, w256, w2, w512 = 74, 76, 78, 80, 82
    tA, tB, tC = 84, 86, 88
    G, G2, Hh, W4, HT, CV = 90, 106, 122, 130, 132, 140
    w0a = A.label("K1w0"); w0b = A.label("K1w0")
    A(f"""
    s_cmp_eq_u32 s36, 0
    s_cbranch_scc1 {w0a}
    s_waitcnt vmcnt(3)
    {w0a}:
    s_waitcnt vmcnt(10)
    v_mul_f32 v4, {f32(LOG2E)}, v{vP}
    v_exp_f32 v4, v4
    v_mul_f32 v{b2}, v{vP+1}, v{vDT}
    v_add_f32 v6, v{vDT}, v{vDT}
    v_cvt_pk_bf16_f32 v4, v4, v4
    v_and_b32 v4, s43, v4
    v_mul_f32 v{a2}, v4, v{vDT}
    v_mul_f32 v{b2}, 0.15915494, v{b2}
    v_mul_f32 v{a2}, {f32(-LOG2E)}, v{a2}
    v_mul_f32 v{G}, v{vP+2}, v6
    v_mul_f32 v{G+1}, v{vP+3}, v6
    """)
    for l in merge(cexp(Hh, a2, b2, "s54", tA), cexp(w1, a2, b2, None, tB), cexp(w256, a2, b2, "s55", tC)): A(l)
    for l in cmul(w2, w1, w1) + cmul(G+2, G, w1) + cmul(w512, w256, w256): A(l)
    A(f"""
    s_waitcnt vmcnt(2)
    ds_read_b32 v{vXG}, v25
    ds_read_b32 v{vXG+2}, v25 offset:64
    ds_read_b32 v{vXG+4}, v25 offset:32
    ds_read_b32 v{vXG+6}, v25 offset:96
    """)
    for i in range(2, 8):
        for l in cmul(G+2*i, G+2*(i-2), w2): A(l)
    A(f"""
    s_mov_b32 m0, s56
    s_waitcnt lgkmcnt(0)
    buffer_store_dwordx4 {v(vXG,4)}, v24, s[64:67], s51 offen sc0 sc1
    buffer_store_dwordx4 {v(vXG+4,4)}, v24, s[64:67], s50 offen sc0 sc1
    s_cmp_lg_u32 s36, 0
    s_cbranch_scc1 {nost2}
    """)
    a0 = 56
    A("s_mov_b32 s42, 0x3f803f80")
    for i in range(28):
        z = i < 2
        A(f"v_dot2_f32_bf16 v{a0+(i&1)}, v{vRow+i}, s42, {'0' if z else 'v%d' % (a0+(i&1))}")
        A(f"v_dot2_f32_bf16 v{a0+2+(i&1)}, v{vRow+i}, v{vRow+i}, {'0' if z else 'v%d' % (a0+2+(i&1))}")
    A(f"v_lshrrev_b32 v60, 3, v0\ns_lshl_b32 s46, s2, 6\nv_lshl_add_u32 v60, v60, 3, s46")
    A(f"v_add_f32 v{a0}, v{a0}, v{a0+1}\nv_add_f32 v{a0+2}, v{a0+2}, v{a0+3}")
    for op in ("quad_perm:[1,0,3,2]", "quad_perm:[2,3,0,1]", "row_half_mirror"):
        A(f"v_add_f32_dpp v{a0}, v{a0}, v{a0} {op}{DPP}\nv_add_f32_dpp v{a0+2}, v{a0+2}, v{a0+2} {op}{DPP}")
    A(f"""
    v_mul_f32 v{a0}, {f32(1.0/448)}, v{a0}
    v_mul_f32 v{a0+2}, {f32(1.0/448)}, v{a0+2}
    v_fma_f32 v{a0+2}, -v{a0}, v{a0}, v{a0+2}
    v_max_f32 v{a0+2}, 0, v{a0+2}
    v_cvt_pk_bf16_f32 v{a0+2}, v{a0+2}, v{a0+2}
    v_and_b32 v{a0+2}, s43, v{a0+2}
    v_add_f32 v{a0+2}, {f32(1e-5)}, v{a0+2}
    v_cvt_pk_bf16_f32 v{a0+2}, v{a0+2}, v{a0+2}
    v_and_b32 v{a0+2}, s43, v{a0+2}
    v_sqrt_f32 v{a0+2}, v{a0+2}
    v_mov_b32 v{a0+1}, s57
    v_cvt_pk_bf16_f32 v{a0}, v{a0}, v{a0+2}
    s_mov_b32 exec_lo, 0x01010101
    s_mov_b32 exec_hi, 0x01010101
    global_store_dwordx2 v60, {v(a0,2)}, s[30:31] sc0 sc1
    s_mov_b64 exec, -1
    {nost2}:
    s_cmp_lt_u32 s2, 224
    s_cbranch_scc1 {conv}
    """)
    gen_helper(A, end, P)
    A(f".p2align 3\n{conv}:")
    P.stamp(3)
    nb_ = [0]
    def put(src, row, neg):
        r = CV + (nb_[0] & 7); nb_[0] += 1
        return [f"v_cvt_pk_bf16_f32 v{r}, v{src}, {'-' if neg else ''}v{src+1}", f"ds_write_addtid_b32 v{r} offset:{row*GP}"]
    def spread(puts, work):
        o = []
        while puts or work:
            if puts: p = puts.pop(0); o.append(p[0])
            else: p = None
            if work: o += work.pop(0)
            if p: o.append(p[1])
        return o
    GR = 32
    wk = [cmul(G2+2*k, G+4*k, w256) for k in range(4)] + [cmul(G2+8, G, w512), cmul(G2+10, G+8, w512), cmul(G2+12, G2, w512), cmul(G2+14, G2+4, w512)]
    for l in spread([put(G+2*i, GR+i, True) for i in range(8)], wk): A(l)
    wk = [cmul(G, G2+8, w512), cmul(G+2, G2+12, w512), cmul(G+4, G, w512), cmul(G+6, G+2, w512), cmul(G+8, G+4, w512), cmul(Hh+2, Hh, Hh), cmul(Hh+4, Hh+2, Hh), cmul(W4, Hh+2, Hh+2)]
    for l in spread([put(G2+2*i, GR+8+i, True) for i in range(8)], wk): A(l)
    A(f"v_mov_b32 v{CV+8}, 0x3f80\nds_write_addtid_b32 v{CV+8}")
    cur = [Hh, Hh+2, Hh+4, W4]; nxt = [HT, HT+2, HT+4, HT+6]; alt = [G2, G2+2, G2+4, G2+6]
    pend = [put(G+2*i, GR+16+i, True) for i in range(5)]
    j = 1
    while j < 32:
        pend += [put(cur[r], j + r, False) for r in range(4) if j + r < 32]
        wk = [cmul(nxt[r], cur[r], W4) for r in range(4) if j + 4 + r < 32]
        for l in spread(pend, wk): A(l)
        pend = []
        cur, nxt = nxt, (alt if nxt[0] == HT else [HT, HT+2, HT+4, HT+6])
        j += 4
    P.stamp(4)
    vPX, vPS, vPA = 8, 16, 24
    def poll_issue():
        A(f"""
        buffer_load_dwordx4 {v(vPX,4)}, v{vPA}, s[64:67], s44 offen sc1
        buffer_load_dwordx4 {v(vPX+4,4)}, v{vPA}, s[64:67], s44 offen offset:16 sc1
        global_load_dwordx4 {v(vPS,4)}, v{vPA}, s[30:31] sc1
        global_load_dwordx4 {v(vPS+4,4)}, v{vPA}, s[30:31] offset:16 sc1
        """)
    FR = 172
    tabprep = [f"s_lshl_b32 s46, s36, 14", f"v_lshl_add_u32 v4, v{vJ}, 2, s46", f"v_mul_u32_u24 v5, {4*TP}, v{vG}", "v_add_u32 v5, v5, v4"]
    tabprep += [f"v_xor_b32 v77, 1, v{vG}"]
    tmin = []
    for b in range(4):
        o0 = 2 * b * TP + 128; o1 = 4 * (b & 1) * TP + 256 + 128 * (b >> 1)
        tabprep += [f"v_mul_u32_u24 v{72+b}, {abs(o1-o0)}, v{vG if o1 > o0 else 77}", f"v_add_u32 v{72+b}, v{72+b}, v4"]
        tmin.append(min(o0, o1))
    tabprep += [f"v_lshl_add_u32 v76, v{vG}, 9, v4"]
    tabprep += [f"v_lshlrev_b32 v{vPA}, 5, v0", "s_lshl_b32 s44, s37, 14"]
    if prefetch:
        tabprep += """s_lshr_b32 s46, s2, 3
        s_cmp_ge_u32 s46, 14
        s_cselect_b32 s68, s22, s20
        s_cselect_b32 s69, s23, s21
        s_cselect_b32 s47, 14, 0
        s_sub_u32 s47, s46, s47
        s_mov_b32 s70, %d
        s_mov_b32 s71, 0x20000
        s_mul_i32 s47, s47, %d
        s_and_b32 s48, s2, 1
        s_mul_i32 s48, s48, 1792
        s_add_u32 s47, s47, s48
        v_lshrrev_b32 v34, 4, v0
        v_mul_u32_u24 v34, 3584, v34
        v_and_b32 v35, 15, v0
        v_min_u32 v35, 13, v35
        v_lshl_add_u32 v34, v35, 7, v34
        v_add_u32 v34, s47, v34
        s_mul_i32 s46, s46, %d
        v_min_u32 v35, 447, v0
        v_lshl_add_u32 v35, v35, 7, s46""".replace("        ", "").__mod__((W_BYTES, 32 * 3584, 448 * 128)).split("\n")
    for n in range(8):
        b = FR + 8 * n
        A(f"ds_read_b128 {v(b,4)}, v{vRA} offset:{GR*GP+32*n}\nds_read_b128 {v(b+4,4)}, v{vRA} offset:{32*n}")
        if n == 6:
            for l in tabprep: A(l)
    A("s_waitcnt vmcnt(2)\ns_lshl_b32 s48, s38, 16\nv_mov_b32 v6, s48")
    ea = [f"v_add_u32_sdwa v{vEA+r}, v{vTB+(r>>1)}, v6 dst_sel:DWORD dst_unused:UNUSED_PAD src0_sel:WORD_{r&1} src1_sel:DWORD" for r in range(11)]
    for n in range(8):
        b0 = FR + 8 * n
        A(f"s_waitcnt lgkmcnt({2*(7-n)})\nv_mfma_f32_32x32x16_bf16 {v(vACC,16)}, {v(b0,4)}, {v(b0+4,4)}, {'0' if n == 0 else v(vACC,16)}")
        for l in ea[2*n:2*n+2]: A(l)
    poll_issue()
    if prefetch:
        A(f"""
        buffer_load_dword v47, v34, s[68:71], 0 offen
        global_load_dword v25, v35, s[24:25]
        """)
    for b in range(4):
        A(f"ds_write_b32 v5, v{vACC+b} offset:{TP*b}")
    for b in range(4):
        A(f"ds_write_b32 v{72+b}, v{vACC+4+b} offset:{tmin[b]}")
    A("s_mov_b32 exec_hi, 1")
    A(f"ds_write_b32 v76, v{vACC+8} offset:512")
    A("s_mov_b32 exec_hi, 0")
    for b in range(1, 4):
        A(f"ds_write_b32 v76, v{vACC+8+b} offset:{512+128*b}")
    A("s_mov_b32 exec_hi, -1")
    A("s_waitcnt lgkmcnt(0)\ns_barrier")
    P.stamp(5)
    EV = 90
    for r in range(11):
        A(f"ds_read2st64_b32 {v(EV+4*r,2)}, v{vEA+r} offset0:0 offset1:64\nds_read2st64_b32 {v(EV+4*r+2,2)}, v{vEA+r} offset0:128 offset1:192")
    A(f"""
    v_and_b32 v4, 255, v0
    v_cmp_ne_u32 vcc, 0, v4
    s_mul_i32 s46, s38, {4*(REG+64)}
    s_add_u32 s46, s46, {KCO+64}
    v_lshl_add_u32 v4, v4, 4, s46
    v_mov_b32 v140, 0
    v_mov_b32 v141, 0
    v_mov_b32 v142, 0
    v_mov_b32 v143, 0
    s_mul_i32 s46, s36, {REG+64}
    s_add_u32 s46, s46, {KCO}
    v_and_b32 v5, 3, v0
    v_lshl_add_u32 v5, v5, 4, s46
    """)
    for r in range(11):
        if r in (0, 4, 8): A(f"s_waitcnt lgkmcnt({max(0, 22-2*(r+4))})")
        A(f"v_pk_add_f32 {v(EV+4*r,2)}, {v(EV+4*r,2)}, {v(EV+4*r+2,2)}\nv_add_f32 v{EV+4*r}, v{EV+4*r}, v{EV+4*r+1}")
    for r in range(3):
        A(f"v_cndmask_b32 v{EV+4*r}, 0, v{EV+4*r}, vcc")
    A("ds_write_b128 v5, v[140:143]")
    CB = 144
    for cp in range(4):
        b = CB + 4 * cp
        for k in range(4):
            r0 = 3 - cp + 2 * k
            A(f"v_cvt_pk_bf16_f32 v{b+k}, v{EV+4*r0}, v{EV+4*r0+4}")
        A(f"ds_write_b128 v4, {v(b,4)} offset:{cp*(REG+64)}")
    P.stamp(6)
    pl = A.label("K1poll"); ok = A.label("K1ok")
    A(f"""
    s_waitcnt vmcnt({2 if prefetch else 0})
    {pl}:
    v_min3_u32 v4, v{vPX+1}, v{vPX+3}, v{vPX+5}
    v_max3_u32 v5, v{vPX+1}, v{vPX+3}, v{vPX+5}
    v_min3_u32 v4, v4, v{vPX+7}, v{vPS+1}
    v_max3_u32 v5, v5, v{vPX+7}, v{vPS+1}
    v_min3_u32 v4, v4, v{vPS+3}, v{vPS+5}
    v_max3_u32 v5, v5, v{vPS+3}, v{vPS+5}
    v_min3_u32 v4, v4, v{vPS+7}, s57
    v_max3_u32 v5, v5, v{vPS+7}, s57
    v_cmp_ne_u32 vcc, v4, v5
    s_cbranch_vccz {ok}
    s_add_u32 s45, s45, 1
    s_cmp_gt_u32 s45, {SPIN}
    s_cbranch_scc1 {ok}
    s_sleep 2
    """)
    poll_issue()
    A(f"s_waitcnt vmcnt(0)\ns_branch {pl}\n{ok}:")
    P.stamp(7)
    NU, PRE = 90, 28
    st = []
    for r in range(4):
        S = vPS + 2 * r; X = vPX + 2 * r
        t = 100 + 4 * r
        st.append([f"v_and_b32 v{t+2}, s43, v{S}", f"v_rcp_f32 v{t+2}, v{t+2}", f"v_lshlrev_b32 v{t}, 16, v{S}",
              f"v_lshlrev_b32 v{PRE+2*r}, 16, v{X}", f"v_and_b32 v{PRE+2*r+1}, s43, v{X}",
              f"v_pk_add_f32 {v(NU+2*r,2)}, {v(PRE+2*r,2)}, {v(t,2)} op_sel_hi:[1,0] neg_lo:[0,1] neg_hi:[0,1]",
              f"v_cvt_pk_bf16_f32 v{NU+2*r+1}, v{NU+2*r}, v{NU+2*r+1}",
              f"v_lshlrev_b32 v{NU+2*r}, 16, v{NU+2*r+1}", f"v_and_b32 v{NU+2*r+1}, s43, v{NU+2*r+1}",
              f"v_pk_mul_f32 {v(NU+2*r,2)}, {v(NU+2*r,2)}, {v(t+2,2)} op_sel_hi:[1,0]"])
    for l in merge(*st): A(l)
    UB = 120
    for c in range(2):
        A(f"v_cvt_pk_bf16_f32 v{UB+2*c}, v{NU+6+c}, v{NU+4+c}\nv_cvt_pk_bf16_f32 v{UB+2*c+1}, v{NU+2+c}, v{NU+c}")
    A(f"""
    v_xor_b32 v4, 1, v0
    v_lshlrev_b32 v4, 3, v4
    v_add_u32 v4, {UO+512}, v4
    ds_write_b64 v4, {v(UB,2)}
    ds_write_b64 v4, {v(UB+2,2)} offset:{UPITCH}
    s_waitcnt lgkmcnt(0)
    s_barrier
    """)
    P.stamp(8)
    pre = []
    for c in range(2):
        pre += [f"v_lshlrev_b32 v{NU+6+c}, 16, v{UB+2*c}", f"v_and_b32 v{NU+4+c}, s43, v{UB+2*c}", f"v_lshlrev_b32 v{NU+2+c}, 16, v{UB+2*c+1}", f"v_and_b32 v{NU+c}, s43, v{UB+2*c+1}"]
    pre += [f"v_pk_fma_f32 {v(PRE+2*r,2)}, {v(NU+2*r,2)}, s[58:59], {v(PRE+2*r,2)}" for r in range(4)]
    other = A.label("K1other"); fin = A.label("K1fin")
    A(f"s_cmp_ge_u32 s36, 4\ns_cbranch_scc1 {other}")
    AC, FB = 56, 128
    def rd(Gi):
        r, n = Gi >> 3, Gi & 7
        b = FB + 8 * (Gi & 15)
        return [f"ds_read_b64 {v(b,2)}, v{vA} offset:{512*n+64*r}", f"ds_read_b64 {v(b+2,2)}, v{vA} offset:{512*n+64*r+8}",
                f"ds_read_b128 {v(b+4,4)}, v{vB} offset:{512*n+64*(3-r)}"]
    for Gi in range(4):
        for l in rd(Gi): A(l)
    for l in pre: A(l)
    started = set()
    for Gi in range(32):
        r, n = Gi >> 3, Gi & 7
        base = FB + 64 * (r & 1)
        pairs = [(a, b) for a in range(n + 1) for b in range(n + 1) if max(a, b) == n and a + b <= 7]
        nr = rd(Gi + 4) if Gi + 4 < 32 else []
        A(f"s_waitcnt lgkmcnt({min(9, 3*(31-Gi))})")
        for k, (a, b) in enumerate(pairs):
            t = a + b
            c = v(AC + 4 * t, 4) if t in started else "0"
            started.add(t)
            A(f"v_mfma_f32_16x16x32_bf16 {v(AC+4*t,4)}, {v(base+8*a,4)}, {v(base+8*b+4,4)}, {c}")
            if nr: A(nr.pop(0))
        for l in nr: A(l)
    P.stamp(9)
    A(f"""
    v_and_b32 v4, 15, v0
    v_bfe_u32 v5, v0, 4, 2
    v_lshlrev_b32 v6, 2, v5
    v_xor_b32 v4, v4, v6
    v_lshl_add_u32 v4, v5, 4, v4
    s_lshl_b32 s46, s36, 14
    v_lshl_add_u32 v4, v4, 4, s46
    """)
    for t in range(8): A(f"ds_write_b128 v4, {v(AC+4*t,4)} offset:{1024*t}")
    A(f"s_branch {fin}\n{other}:")
    for l in pre: A(l)
    if pf2:
        A(f"""
        s_lshr_b32 s46, s2, 3
        s_cmp_ge_u32 s46, 14
        s_cselect_b32 s68, s22, s20
        s_cselect_b32 s69, s23, s21
        s_cselect_b32 s47, 14, 0
        s_sub_u32 s47, s46, s47
        s_mul_i32 s47, s47, {32*3584}
        s_and_b32 s48, s2, 1
        s_mul_i32 s48, s48, 1792
        s_add_u32 s47, s47, s48
        v_bfe_u32 v4, v0, 3, 5
        v_mul_u32_u24 v4, 3584, v4
        v_and_b32 v5, 7, v0
        v_min_u32 v5, 6, v5
        v_lshl_add_u32 v4, v5, 8, v4
        v_add_u32 v4, s47, v4
        """)
        if pf2 & 4:
            A(f"""
            s_lshl_b32 s46, s2, 2
            s_add_u32 s46, s46, s36
            s_sub_u32 s46, s46, 4
            s_mul_i32 s46, s46, {14*128}
            v_min_u32 v5, 13, v{vLane}
            v_lshl_add_u32 v5, v5, 7, s46
            global_load_dword v130, v5, s[24:25]
            """)
        if pf2 & 1: A("global_load_dword v128, v4, s[68:69]")
        if pf2 & 2: A("global_load_dword v129, v4, s[68:69] offset:128")
    nb = A.label("K1nb")
    A(f"""
    s_lshl_b32 s46, s2, 3
    s_add_u32 s46, s46, s36
    s_cmp_lg_u32 s46, 4
    s_cbranch_scc1 {nb}
    v_mov_b32 v4, {WS_E}
    v_mov_b32 v5, s57
    global_store_dword v4, v5, s[30:31]
    {nb}:
    """)
    P.stamp(9)
    A(f"""
    {fin}:
    v_and_b32 v5, 3, v0
    v_bfe_u32 v4, v0, 2, 4
    v_lshlrev_b32 v6, 2, v5
    v_xor_b32 v4, v4, v6
    v_lshl_add_u32 v4, v5, 4, v4
    s_lshl_b32 s46, s36, 10
    v_lshl_add_u32 v4, v4, 4, s46
    s_lshl_b32 s46, s37, 13
    s_add_u32 s46, s46, {WS_HT}
    v_lshl_add_u32 v5, v0, 3, s46
    v_add_u32 v6, 4096, v5
    s_waitcnt lgkmcnt(0)
    s_barrier
    """)
    for q in range(4): A(f"ds_read_b128 {v(8+4*q,4)}, v4 offset:{REG*q}")
    for c in range(2):
        A(f"s_waitcnt lgkmcnt({2-2*c})")
        y = 8 + 8 * c
        A(f"v_pk_add_f32 {v(y,2)}, {v(y,2)}, {v(y+4,2)}\nv_pk_add_f32 {v(y+2,2)}, {v(y+2,2)}, {v(y+6,2)}")
        for r in range(4): A(f"v_add_f32 v{y+r}, v{y+r}, v{PRE+2*r+c}")
        A(f"v_cvt_pk_bf16_f32 v{y}, v{y}, v{y+1}\nv_cvt_pk_bf16_f32 v{y+1}, v{y+2}, v{y+3}")
        A(f"global_store_dwordx2 v{5+c}, {v(y,2)}, s[30:31]")
    P.stamp(10)
    P.flush(11)
    A(f"{end}:\ns_endpgm")
    import numpy as np
    def rnd(l):
        u = np.float32(max(l, 0)).view(np.uint32)
        u = (int(u) + 0x7FFF + ((int(u) >> 16) & 1)) & 0xFFFF0000
        return int(np.uint32(u).view(np.float32))
    ad = [[(rnd(8 * b - 3 + r) & 7) * TP + (rnd(8 * b - 3 + r) >> 3) * 4 for r in range(12)] for b in range(256)]
    A(f".p2align 7\n.type {tab},@object\n{tab}:")
    for b in range(256): A(".long " + ", ".join("0x%08x" % (ad[b][2*k] | ad[b][2*k+1] << 16) for k in range(4)))
    for b in range(256): A(".long " + ", ".join("0x%08x" % (ad[b][2*k] | ad[b][2*k+1] << 16) for k in range(4, 6)))
    A(f".size {tab}, {256*24}")
    return kernel_desc(name, 256, 100)
```

```python
from base import *
BLK = 8192
NSL = 19
CON = NSL * BLK
K2_LDS = CON + 2048
GK0 = -2.0 * LOG2E * 0.7978845608028654
GK1 = GK0 * 0.044715
SPIN = 1 << 18
NP = 28; IE = 28; IG = 30; NI = 44

class Cfg:
    gateT0 = 27
    gateT1 = 35
    e1_first, e1_last = 15, 19
    drain0 = 21
    drain1 = 31
    lead0, lead1 = 2, 1
    pre = 40
    capP, capE, capG = 7, 16, 16
    reserveT = 6
    rot = True
    gat_issue, gat_check = 6, 9
    e1w = (0.5, 0.5, 1.5, 1.5)
    il = 2
    fine_mid = False
    fine_bar = False
    x_nobar = False
    prio = 0
    x_nodma = False
    x_fine = None
    x_noe1 = False

def schedule(c):
    need = {}
    for s in range(14): need[("H", s)] = s
    for s in range(28): need[("W", s)] = s
    for t in range(28): need[("D", t)] = IG + t // 2; need[("T", t)] = IG + t // 2
    last_use = dict(need)
    for s in range(14): last_use[("H", s)] = 14 + s
    if c.fine_bar:
        for b in last_use:
            if b[0] in "HW" and last_use[b] < NP - 1: last_use[b] += 1
    free_at = {sl: -1 for sl in range(NSL)}
    slot = {}
    issue = {i: [] for i in range(-1, NI)}
    n = dict(H=0, W=0, D=0, T=0)
    cur = None
    def pick(i):
        nH, nW, nD, nT = n["H"], n["W"], n["D"], n["T"]
        canW = nW < 28 and free_at[14 + nW % 5] <= i
        if nH < 14 and (nH <= nW or not canW): return ("H", nH), nH
        if canW: return ("W", nW), 14 + nW % 5
        fr = [sl for sl in range(NSL) if free_at[sl] <= i and (sl < 14 and nH == 14 and i >= 14 or sl >= 14 and nW == 28)]
        if not fr: return None
        canT = nT < 28 and i >= (c.gateT0 if nT < 14 else c.gateT1)
        canD = nD < 28
        liveT = sum(1 for t in range(nT) if need[("T", t)] >= i)
        liveD = sum(1 for t in range(nD) if need[("D", t)] >= i)
        if canT and (liveT < c.reserveT or not canD) and (nT < nD + c.reserveT or not canD): return ("T", nT), fr[0]
        if canD and (nT == 28 or liveD < NSL - c.reserveT or nD <= nT): return ("D", nD), fr[0]
        return None
    for i in range(-1, NI):
        cap = c.pre if i < 0 else c.capP if i < IE else c.capE if i < IG else c.capG
        if hasattr(c, "caps") and i in c.caps: cap = c.caps[i]
        while cap > 0:
            if cur is None:
                p = pick(i)
                if p is None: break
                b, sl = p
                slot[b] = sl; free_at[sl] = last_use[b] + 1; n[b[0]] += 1
                cur = [b, 0]
            issue[i].append((cur[0][0], cur[0][1], cur[1])); cur[1] += 1; cap -= 1
            if cur[1] == 4: cur = None
    assert n["D"] == 28 and n["T"] == 28 and cur is None
    order = [b for i in range(-1, NI) for b in issue[i]]
    pos = {b: k for k, b in enumerate(order)}
    wait = {}
    cnt = 0
    for i in range(-1, NI - 1):
        cnt += len(issue[i])
        req = [b for b in need if need[b] == i + 1]
        wait[i] = None if not req else cnt - 1 - max(pos[b + (3,)] for b in req)
        assert wait[i] is None or wait[i] >= 0, (i, req)
    return issue, slot, wait

def gen_k2(A, name, c=Cfg, verbose=False):
    issue, slot, wait = schedule(c)
    if verbose:
        for i in range(-1, NI): print(i, ' '.join(k + str(j) + '.' + str(q) for k, j, q in issue[i]), wait.get(i))
    kernel_head(A, name)
    end = A.label("K2end"); ldr = A.label("K2ldr"); syn = A.label("K2syn")
    A(f"s_cmp_ge_u32 s2, 224\ns_cbranch_scc1 {end}")
    P = Prof(A, 2); P.stamp(0)
    class PF:
        n = 0
        def stamp(s, i):
            if c.x_fine is None: P.stamp(i)
        def bar(s):
            A("s_barrier")
            if c.x_fine and s.n in c.x_fine: P.stamp(1 + c.x_fine.index(s.n))
            s.n += 1
        def flush(s, n): P.flush(n if c.x_fine is None else 1 + len(c.x_fine))
    Q = PF()
    A("s_load_dwordx8 s[20:27], s[0:1], 64\ns_load_dwordx2 s[30:31], s[0:1], 104")
    vLane = 1
    A(f"""
    v_and_b32 v{vLane}, 63, v0
    v_lshrrev_b32 v4, 6, v0
    s_and_b32 s37, s2, 7
    v_readfirstlane_b32 s36, v4
    s_lshr_b32 s38, s2, 3
    s_and_b32 s40, s38, 3
    s_lshr_b32 s39, s37, 1
    s_lshl_b32 s39, s39, 2
    s_add_u32 s39, s39, s40
    s_and_b32 s34, s37, 1
    s_lshr_b32 s35, s38, 2
    s_mul_i32 s38, s34, 7
    s_add_u32 s38, s38, s35
    s_mul_i32 s33, s40, 3
    s_lshl_b32 s37, s35, 1
    s_add_u32 s33, s33, s37
    s_cmp_ge_u32 s33, 14
    s_cselect_b32 s37, 14, 0
    s_sub_u32 s33, s33, s37
    """)
    if not c.rot: A("s_mov_b32 s33, 0")
    A(f"s_cmp_eq_u32 s36, 6\ns_cbranch_scc1 {syn}\ns_cmp_ge_u32 s36, 4\ns_cbranch_scc1 {ldr}")
    vB, vAa, vD, vT, vS = 8, 10, 12, 15, 18
    ST, CN = 20, 24
    F = [32, 48]
    ACC = [64, 128]
    AC2, CA, MB, T1, T2, OUT = 192, 208, 218, 226, 234, 242
    ID = T1
    vH = 250
    A(f"""
    s_and_b32 s40, s36, 1
    s_lshr_b32 s41, s36, 1
    v_bfe_u32 v2, v{vLane}, 2, 2
    v_bfe_u32 v3, v{vLane}, 4, 1
    v_lshrrev_b32 v4, 5, v{vLane}
    v_and_b32 v6, 3, v{vLane}
    v_lshl_add_u32 v5, v4, 3, v2
    v_lshlrev_b32 v7, 8, v5
    v_lshl_add_u32 v7, v6, 3, v7
    v_lshl_add_u32 v7, v3, 5, v7
    s_lshl_b32 s42, s40, 1
    s_add_u32 s42, s42, s41
    v_xor_b32 v{vB}, s42, v2
    v_lshl_add_u32 v{vB}, v{vB}, 6, v7
    v_xor_b32 v{vB+1}, 64, v{vB}
    s_lshl_b32 s42, s34, 1
    s_add_u32 s42, s42, s40
    v_xor_b32 v{vH}, s42, v2
    v_lshl_add_u32 v{vH}, v{vH}, 6, v7
    s_lshl_b32 s42, s35, 1
    s_add_u32 s42, s42, s41
    s_sub_u32 s42, s42, s38
    s_cselect_b32 s43, 14, 0
    s_add_u32 s42, s42, s43
    s_lshl_b32 s42, s42, 13
    v_add_u32 v{vH}, s42, v{vH}
    v_lshlrev_b32 v7, 7, v5
    v_lshl_add_u32 v7, v6, 3, v7
    v_lshl_add_u32 v7, v3, 12, v7
    v_lshrrev_b32 v5, 1, v2
    v_lshl_add_u32 v5, v3, 1, v5
    s_lshl_b32 s42, s41, 1
    v_xor_b32 v5, s42, v5
    v_lshl_add_u32 v7, v5, 5, v7
    v_add_u32 v{vAa}, {14*BLK}, v7
    v_xor_b32 v{vAa+1}, 32, v{vAa}
    v_lshl_add_u32 v5, v4, 2, v2
    v_lshlrev_b32 v7, 7, v5
    v_lshrrev_b32 v5, 1, v2
    v_xor_b32 v5, s41, v5
    v_lshl_add_u32 v7, v5, 6, v7
    v_lshl_add_u32 v7, v3, 5, v7
    v_lshl_add_u32 v{vD}, v6, 3, v7
    v_add_u32 v{vD+1}, 0x10000, v{vD}
    v_add_u32 v{vD+2}, 0x20000, v{vD}
    s_lshl_b32 s42, s40, 12
    v_lshl_add_u32 v{vT}, v{vLane}, 4, s42
    v_add_u32 v{vT+1}, 0x10000, v{vT}
    v_add_u32 v{vT+2}, 0x20000, v{vT}
    s_lshl_b32 s42, s39, 2
    s_lshl_b32 s43, s40, 1
    s_add_u32 s42, s42, s43
    s_add_u32 s43, s42, s41
    s_xor_b32 s44, s43, 1
    s_lshl_b32 s45, s38, 3
    s_lshl_b32 s46, s41, 1
    s_add_u32 s45, s45, s46
    s_add_u32 s45, s45, {WS_ACT // 1024 + 2}
    s_mul_i32 s43, s43, 112
    s_mul_i32 s44, s44, 112
    s_add_u32 s43, s43, s45
    s_add_u32 s44, s44, s45
    s_lshl_b32 s43, s43, 10
    s_lshl_b32 s44, s44, 10
    v_lshl_add_u32 v{vS}, v{vLane}, 4, s43
    v_lshl_add_u32 v{vS+1}, v{vLane}, 4, s44
    s_mov_b32 s47, 0x3f803f80
    s_mov_b32 s48, 0xffff0000
    """)
    A(f"v_and_b32 v5, 31, v{vLane}\nv_lshlrev_b32 v6, 3, v4\nv_sub_u32 v5, v5, v6\nv_mov_b32 v6, 0x3f80\nv_mov_b32 v7, 1.0")
    for j in range(2):
        for i in range(4):
            d0 = 16 * j + 2 * i
            A(f"v_cmp_eq_u32 vcc, {d0}, v5\nv_cmp_eq_u32 s[50:51], {d0+1}, v5\nv_cndmask_b32 v{ID+4*j+i}, 0, v6, vcc\nv_cndmask_b32 v{ID+4*j+i}, v{ID+4*j+i}, v7, s[50:51]")
    vCR, vPS = 251, 253
    A(f"""
    v_and_b32 v5, 31, v{vLane}
    s_lshl_b32 s42, s40, 1
    s_add_u32 s42, s42, s41
    s_lshl_b32 s43, s42, 9
    s_add_u32 s43, s43, {CON}
    v_lshl_add_u32 v{vCR}, v5, 4, s43
    v_xor_b32 v{vCR+1}, 512, v{vCR}
    s_mul_i32 s43, s39, 14
    s_add_u32 s43, s43, s38
    s_lshl_b32 s43, s43, 10
    s_lshl_b32 s42, s42, 8
    s_add_u32 s43, s43, s42
    s_add_u32 s43, s43, {WS_PS}
    v_lshl_add_u32 v{vPS}, v5, 3, s43
    v_and_b32 v5, 15, v{vLane}
    v_mul_u32_u24 v6, {F_*8}, v3
    v_lshl_add_u32 v5, v5, 3, v6
    s_lshl_b32 s42, s38, 10
    s_lshl_b32 s43, s41, 8
    s_add_u32 s42, s42, s43
    s_add_u32 s42, s42, {WS_CS}
    v_add_u32 v5, s42, v5
    v_mov_b32 v{CA+8}, 0
    v_mov_b32 v{CA+9}, 0
    v_mov_b32 v{MB+2}, 0
    v_mov_b32 v{MB+3}, 0
    v_mov_b32 v{MB+6}, 0
    v_mov_b32 v{MB+7}, 0
    v_cmp_eq_u32 s[52:53], 0, v4
    s_waitcnt lgkmcnt(0)
    """)
    for p in range(2):
        for t in range(2):
            A(f"global_load_dwordx2 {v(CA+4*p+2*t,2)}, v5, s[30:31] offset:{512*p+128*t}")
    def preads(f, step, ks):
        h = (step % 14)
        ho = (h % 8) * BLK + 4096 * ks
        wo = (slot[("W", step)] - 14) * BLK + 2048 * ks
        o = []
        for kind, i in (("B", 0), ("A", 0), ("B", 1), ("A", 1)):
            if kind == "B": o += [f"ds_read_b64_tr_b16 {v(f+8+4*i,2)}, v{vB+i} offset:{ho}", f"ds_read_b64_tr_b16 {v(f+10+4*i,2)}, v{vB+i} offset:{ho+1024}"]
            else: o += [f"ds_read_b64_tr_b16 {v(f+4*i,2)}, v{vAa+i} offset:{wo}", f"ds_read_b64_tr_b16 {v(f+2+4*i,2)}, v{vAa+i} offset:{wo+512}"]
        return o
    def pmfma(f, p, first):
        return [f"v_mfma_f32_32x32x16_bf16 {v(ACC[p]+32*t+16*rt,16)}, {v(f+4*t,4)}, {v(f+8+4*rt,4)}, {'0' if first else v(ACC[p]+32*t+16*rt,16)}" for (t, rt) in ((0, 0), (0, 1), (1, 0), (1, 1))]
    def dots(f, first):
        o = []
        for i in range(4):
            z = first and i < 2
            o += [f"v_dot2_f32_bf16 v{ST+(i&1)}, v{f+8+i}, s47, {'0' if z else 'v%d' % (ST+(i&1))}", f"v_dot2_f32_bf16 v{ST+2+(i&1)}, v{f+8+i}, v{f+8+i}, {'0' if z else 'v%d' % (ST+2+(i&1))}"]
        return o
    def epi(p, t, rt, n, packed):
        a = ACC[p] + 32 * t + 16 * rt
        cn = CN + 4 * rt
        o_ = OUT + 4 * (n & 1)
        L = []
        if packed:
            L += [f"v_pk_mul_f32 {v(T1+2*q,2)}, {v(a+2*q,2)}, {v(a+2*q,2)}" for q in range(4)]
            L += [f"v_pk_fma_f32 {v(T1+2*q,2)}, {v(T1+2*q,2)}, {v(cn,2)}, {v(cn,2)} op_sel:[0,1,0] op_sel_hi:[1,1,0]" for q in range(4)]
            L += [f"v_pk_mul_f32 {v(T1+2*q,2)}, {v(T1+2*q,2)}, {v(a+2*q,2)}" for q in range(4)]
            L += [f"v_exp_f32 v{T1+q}, v{T1+q}" for q in range(8)]
            L += [f"v_pk_mul_f32 {v(T2+2*q,2)}, {v(a+2*q,2)}, {v(a+8+2*q,2)}" for q in range(4)]
            L += [f"v_pk_fma_f32 {v(T1+2*q,2)}, {v(T1+2*q,2)}, {v(cn+2,2)}, {v(cn+2,2)} op_sel_hi:[1,0,0]" for q in range(4)]
            L += [f"v_rcp_f32 v{T1+q}, v{T1+q}" for q in range(8)]
            L += [f"v_pk_mul_f32 {v(T2+2*q,2)}, {v(T2+2*q,2)}, {v(T1+2*q,2)}" for q in range(4)]
            L += [f"v_cvt_pk_bf16_f32 v{o_+q}, v{T2+2*q}, v{T2+2*q+1}" for q in range(4)]
        else:
            def st(q):
                return [f"v_mul_f32 v{T1+q}, v{a+q}, v{a+q}", f"v_fma_f32 v{T1+q}, v{T1+q}, v{cn+1}, v{cn}", f"v_mul_f32 v{T1+q}, v{T1+q}, v{a+q}",
                        f"v_exp_f32 v{T1+q}, v{T1+q}", f"v_mul_f32 v{T2+q}, v{a+q}, v{a+8+q}", f"v_fma_f32 v{T1+q}, v{T1+q}, v{cn+2}, v{cn+2}",
                        f"v_rcp_f32 v{T1+q}, v{T1+q}"]
            for q0 in range(0, 8, c.il):
                xs = [st(q) + [f"v_mul_f32 v{T2+q}, v{T2+q}, v{T1+q}"] for q in range(q0, q0 + c.il)]
                for k in range(8): L += [x[k] for x in xs]
                L += [f"v_cvt_pk_bf16_f32 v{o_+q//2}, v{T2+q}, v{T2+q+1}" for q in range(q0, q0 + c.il, 2)]
        L += [f"global_store_dwordx4 v{vS+rt}, {v(o_,4)}, s[30:31] offset:{4096*p+1024*t-2048} sc0 sc1"]
        return L
    def corr(p):
        return [f"v_mfma_f32_32x32x16_bf16 {v(ACC[p]+32*t+16*rt,16)}, {v(CA+4*p+2*t,4)}, {v(MB+4*rt,4)}, {v(ACC[p]+32*t+16*rt,16)}" for t in range(2) for rt in range(2)]
    publish = [f"v_add_f32 v{ST}, v{ST}, v{ST+1}", f"v_add_f32 v{ST+1}, v{ST+2}, v{ST+3}", f"v_mov_b32 v{ST+2}, v{ST}", f"v_mov_b32 v{ST+3}, v{ST+1}",
               "s_nop 0", f"v_permlane32_swap_b32 v{ST}, v{ST+2}", f"v_permlane32_swap_b32 v{ST+1}, v{ST+3}",
               f"v_add_f32 v{ST}, v{ST}, v{ST+2}", f"v_add_f32 v{ST+1}, v{ST+1}, v{ST+3}", f"v_or_b32 v{ST+1}, 1, v{ST+1}",
               "s_mov_b32 exec_hi, 0", f"global_store_dwordx2 v{vPS}, {v(ST,2)}, s[30:31] sc0 sc1", "s_mov_b32 exec_hi, -1"]
    def cost(l): return 2 if l.startswith(("v_exp", "v_rcp", "v_sqrt")) else 1
    E1 = []
    for n in range(4): E1 += [("v", x) for x in epi(0, n >> 1, n & 1, n, False)]
    tot = sum(cost(x) for k, x in E1 if k != "wait")
    ngap = 8 * (c.e1_last - c.e1_first + 1)
    budget = [0.0]
    def fill_e1(wgt):
        budget[0] += wgt * tot / ngap
        while E1 and budget[0] > 0:
            k, x = E1[0]
            if k == "wait": return
            if not c.x_noe1: A(x)
            budget[0] -= cost(x); E1.pop(0)
    def past_wait():
        if E1 and E1[0][0] == "wait": E1.pop(0)
    def half(m, r, extra, e1, fine=False):
        per = (len(extra) + 1) // 2
        for i in range(4):
            if fine and i < 3: A(f"s_waitcnt lgkmcnt({(4, 6, 8)[i]})")
            if m: A(m[i])
            for l in r[4*i:4*i+4]: A(l)
            if i >= 2:
                for l in extra[per*(i-2):per*(i-1)]: A(l)
            if e1: fill_e1(c.e1w[i])
    if c.prio: A(f"s_setprio {c.prio}")
    Q.stamp(1)
    for s in range(NP):
        p = s // 14
        Q.bar()
        if s == 0: Q.stamp(2)
        if s == 14: Q.stamp(3)
        e1 = c.e1_first <= s
        m = pmfma(F[1], (s - 1) // 14, False) if s else None
        ex = dots(F[1], False) if s == 1 else []
        r = preads(F[0], s, 0)
        if s == 14:
            r += [f"ds_read_b128 {v(CN+4*i,4)}, v{vCR+i}" for i in range(2)]
            r += [f"ds_read_b64_tr_b16 {v(ID+8+2*i,2)}, v{vH} offset:{4096*(i>>1)+1024*(i&1)}" for i in range(4)]
        half(m, r, ex, e1, c.fine_bar and s > 0)
        fm = c.fine_mid and s != 14
        if not fm: A("s_waitcnt lgkmcnt(0)")
        ex = dots(F[0], True) if s == 0 else []
        if s == 14: ex = [f"v_cndmask_b32 v{MB+4*rt+k}, 0, v{CN+4*rt+3}, s[52:53]" for rt in range(2) for k in range(2)]
        half(pmfma(F[0], p, s % 14 == 0), preads(F[1], s, 1), ex, e1, fm)
        if s == 1:
            for l in publish: A(l)
        if s == 14:
            for l in corr(0): A(l)
            A(f"v_mfma_f32_32x32x16_bf16 {v(AC2,16)}, {v(ID,4)}, {v(ID+8,4)}, 0")
            A(f"v_mfma_f32_32x32x16_bf16 {v(AC2,16)}, {v(ID+4,4)}, {v(ID+12,4)}, {v(AC2,16)}")
        if s == 15:
            for l in corr(1):
                A(l); fill_e1(1.5)
        if s % 14 == 7: A(f"v_add_u32 v{vB}, 0x10000, v{vB}\nv_add_u32 v{vB+1}, 0x10000, v{vB+1}")
        if s == 13: A(f"v_subrev_u32 v{vB}, 0x10000, v{vB}\nv_subrev_u32 v{vB+1}, 0x10000, v{vB+1}")
        if s == c.drain0: assert not E1
        if s in (12, c.drain0): A("s_waitcnt vmcnt(0)")
        if not c.fine_bar or s == NP - 1: A("s_waitcnt lgkmcnt(0)")
    Q.bar()
    Q.stamp(4)
    for l in pmfma(F[1], 1, False): A(l)
    for n in range(4):
        if n == 2: Q.bar()
        for l in epi(1, n >> 1, n & 1, n, True): A(l)
    Q.stamp(5)
    GF = [64, 96]
    def greads(f, t):
        sd, st = slot[("D", t)], slot[("T", t)]
        o = []
        for ks in range(4):
            do = (sd % 8) * BLK + 2048 * ks
            o += [f"ds_read_b128 {v(f+8*ks+4,4)}, v{vT+st//8} offset:{(st%8)*BLK+1024*ks}",
                  f"ds_read_b64_tr_b16 {v(f+8*ks,2)}, v{vD+sd//8} offset:{do}", f"ds_read_b64_tr_b16 {v(f+8*ks+2,2)}, v{vD+sd//8} offset:{do+1024}"]
        return o
    def gmfma(f): return [f"v_mfma_f32_32x32x16_bf16 {v(AC2,16)}, {v(f+8*ks,4)}, {v(f+8*ks+4,4)}, {v(AC2,16)}" for ks in range(4)]
    for g in range(14):
        Q.bar()
        if g == 0: Q.stamp(6)
        if g == 7: Q.stamp(7)
        r = greads(GF[0], 2 * g); m = gmfma(GF[1]) if g else None
        for i in range(4):
            for l in r[3*i:3*i+3]: A(l)
            if m: A(m[i])
        r = greads(GF[1], 2 * g + 1); m = gmfma(GF[0])
        for i in range(4):
            for l in r[3*i:3*i+3]: A(l)
            A(f"s_waitcnt lgkmcnt(12)")
            A(m[i])
        A("s_waitcnt vmcnt(0) lgkmcnt(0)" if IG + g == c.drain1 else "s_waitcnt lgkmcnt(0)")
    for l in gmfma(GF[1]): A(l)
    Q.stamp(8)
    A(f"""
    s_lshl_b32 s42, s39, 2
    s_lshl_b32 s43, s34, 1
    s_add_u32 s42, s42, s43
    s_add_u32 s42, s42, s40
    s_mul_i32 s42, s42, {32*896}
    s_lshl_b32 s43, s35, 7
    s_add_u32 s42, s42, s43
    s_lshl_b32 s43, s41, 6
    s_add_u32 s42, s42, s43
    v_and_b32 v5, 31, v{vLane}
    v_mul_u32_u24 v5, 896, v5
    v_lshl_add_u32 v5, v4, 4, v5
    v_add_u32 v5, s42, v5
    """)
    for q in range(8): A(f"v_cvt_pk_bf16_f32 v{32+q}, v{AC2+2*q}, v{AC2+2*q+1}")
    for hq in range(2):
        A(f"v_permlane32_swap_b32 v{32+4*hq}, v{32+4*hq+2}\nv_permlane32_swap_b32 v{32+4*hq+1}, v{32+4*hq+3}")
        A(f"global_store_dwordx4 v5, {v(32+4*hq,4)}, s[26:27] offset:{32*hq}")
    Q.stamp(9); Q.flush(10)
    A("s_endpgm")
    A(f".p2align 3\n{ldr}:")
    aH, aW, aD, aT = 8, 12, 16, 20
    A(f"""
    s_and_b32 s36, s36, 1
    v_lshrrev_b32 v6, 4, v{vLane}
    v_and_b32 v7, 15, v{vLane}
    v_lshlrev_b32 v5, 2, v6
    v_xor_b32 v5, v5, v7
    v_lshlrev_b32 v5, 4, v5
    v_lshl_add_u32 v{aH}, v6, 12, v5
    v_lshrrev_b32 v6, 3, v{vLane}
    v_and_b32 v7, 7, v{vLane}
    v_and_b32 v5, 2, v6
    v_xor_b32 v4, v5, v7
    s_lshl_b32 s32, s36, 2
    v_xor_b32 v4, s32, v4
    v_mul_u32_u24 v3, 3584, v6
    v_lshl_add_u32 v{aW}, v4, 4, v3
    v_lshlrev_b32 v5, 1, v5
    v_xor_b32 v4, v5, v7
    v_mul_u32_u24 v3, 896, v6
    v_lshl_add_u32 v{aD}, v4, 4, v3
    v_lshlrev_b32 v{aT}, 4, v{vLane}
    """)
    for i in range(1, 4):
        A(f"v_add_u32 v{aH+i}, {i*(4*4096-1024)}, v{aH}\nv_add_u32 v{aW+i}, {i*(8*3584-1024)}, v{aW}\nv_add_u32 v{aD+i}, {i*(8*896-1024)}, v{aD}")
    sH, sW, sD, sT = 40, 41, 42, 43
    eH, eW, eD, eT = 44, 45, 46, 47
    A(f"""
    s_lshl_b32 s{eH}, s39, 8
    s_lshl_b32 s32, s36, 16
    s_add_u32 s{eH}, s{eH}, s32
    s_lshl_b32 s{sH}, s38, 17
    s_add_u32 s{sH}, s{sH}, s{eH}
    s_add_u32 s{eH}, s{eH}, {14*32*4096}
    s_lshl_b32 s{eW}, s38, 8
    s_mul_i32 s{sW}, s38, {32*3584}
    s_add_u32 s{sW}, s{sW}, s{eW}
    s_add_u32 s{eW}, s{eW}, {14*32*3584}
    s_lshl_b32 s{eD}, s35, 7
    s_mul_i32 s32, s36, {32*896}
    s_add_u32 s{eD}, s{eD}, s32
    s_mul_i32 s{sD}, s33, {128*896}
    s_add_u32 s{sD}, s{sD}, s{eD}
    s_add_u32 s{eD}, s{eD}, {14*128*896}
    s_lshl_b32 s{eT}, s39, 1
    s_add_u32 s{eT}, s{eT}, s34
    s_lshl_b32 s{eT}, s{eT}, 1
    s_add_u32 s{eT}, s{eT}, s36
    s_mul_i32 s{eT}, s{eT}, {112*1024}
    s_lshl_b32 s{sT}, s33, 13
    s_add_u32 s{sT}, s{sT}, s{eT}
    s_add_u32 s{eT}, s{eT}, {14*8192}
    s_lshl_b32 s32, s36, 12
    s_cmp_eq_u32 s36, 0
    s_waitcnt lgkmcnt(0)
    s_cselect_b32 s20, s20, s22
    s_cselect_b32 s21, s21, s23
    """)
    srd(A, 48, 30, X_BYTES, WS_HT)
    srd(A, 52, 20, W_BYTES)
    srd(A, 60, 24, W_BYTES)
    srd(A, 64, 30, ACT_BYTES, WS_ACT)
    P.stamp(1)
    def dma(kind, idx, i):
        if c.x_nodma: return
        base = slot[(kind, idx)] * BLK
        a0, r0, s, e, step, fl = {"H": (aH, 48, sH, eH, 32*4096, ""), "W": (aW, 52, sW, eW, 32*3584, ""),
                                  "D": (aD, 60, sD, eD, 128*896, ""), "T": (aT, 64, sT, eT, 8192, " sc1")}[kind]
        if i == 0:
            if idx == 14 and kind != "H":
                d = {"W": 128, "D": 64*896, "T": 4096}[kind]
                A(f"s_add_u32 s{s}, s{s}, {d}\ns_add_u32 s{e}, s{e}, {d}")
            A(f"s_add_u32 m0, s32, {base}\ns_add_u32 s33, s{s}, {step}")
        inc = 0 if kind == "T" else 1
        A(f"buffer_load_dwordx4 v{a0+inc*i}, s[{r0}:{r0+3}], s{s} offen offset:{1024*i}{fl} lds")
        if i == 0: A(f"s_cmp_ge_u32 s33, s{e}\ns_cselect_b32 s34, {14*step}, 0")
        if i == 3: A(f"s_sub_u32 s{s}, s33, s34")
    for i in range(-1, NI - 1):
        for x in issue[i]: dma(*x)
        if i == -1:
            P.stamp(2)
        if wait[i] is not None:
            A(f"s_waitcnt vmcnt({min(63, wait[i])})")
        A("s_barrier")
        if i in (13, 27, 29, 36): P.stamp({13: 3, 27: 4, 29: 5, 36: 6}[i])
    P.flush(7)
    A("s_endpgm")
    A(f".p2align 3\n{syn}:")
    A(f"""
    s_mul_i32 s42, s39, {14*128}
    s_add_u32 s42, s42, {WS_FLAGS}
    v_min_u32 v4, 13, v{vLane}
    v_lshl_add_u32 v4, v4, 7, s42
    s_lshl_b32 s43, s38, 7
    s_add_u32 s42, s42, s43
    v_mov_b32 v5, s42
    v_mov_b32 v6, 1
    s_mul_i32 s43, s39, {14*1024}
    s_add_u32 s43, s43, {WS_PS + 2048}
    v_lshl_add_u32 v8, v{vLane}, 4, s43
    v_add_u32 v9, 6144, v8
    v_add_u32 v10, 12288, v8
    v_lshlrev_b32 v11, 5, v{vLane}
    v_add_u32 v11, {CON}, v11
    s_mov_b32 s48, 0xffff0000
    s_waitcnt lgkmcnt(0)
    """)
    GA = 32
    def gat():
        for j in range(14): A(f"global_load_dwordx4 {v(GA+4*j,4)}, v{8+j//6}, s[30:31] offset:{1024*(j%6)-2048} sc1")
    work = []
    for j in range(1, 14):
        work += [f"v_add_f32 v{GA+k}, v{GA+k}, v{GA+4*j+k}" for k in range(4)]
    for r in range(2):
        S, Q, O = GA + 2 * r, GA + 2 * r + 1, 16 + 4 * r
        work += [l.strip() for l in f"""
        v_mul_f32 v{S}, {f32(1.0/448)}, v{S}
        v_mul_f32 v{Q}, {f32(1.0/448)}, v{Q}
        v_fma_f32 v{Q}, -v{S}, v{S}, v{Q}
        v_max_f32 v{Q}, 0, v{Q}
        v_cvt_pk_bf16_f32 v{O+3}, -v{S}, -v{S}
        v_cvt_pk_bf16_f32 v{Q}, v{Q}, v{Q}
        v_and_b32 v{Q}, s48, v{Q}
        v_add_f32 v{Q}, {f32(1e-5)}, v{Q}
        v_cvt_pk_bf16_f32 v{Q}, v{Q}, v{Q}
        v_and_b32 v{Q}, s48, v{Q}
        v_sqrt_f32 v{Q}, v{Q}
        v_cvt_pk_bf16_f32 v{Q}, v{Q}, v{Q}
        v_and_b32 v{Q}, s48, v{Q}
        v_rcp_f32 v{S}, v{Q}
        v_mul_f32 v{O+2}, v{Q}, v{Q}
        v_mul_f32 v{O}, {f32(GK0)}, v{S}
        v_mul_f32 v{O+1}, v{S}, v{S}
        v_mul_f32 v{O+1}, v{O+1}, v{S}
        v_mul_f32 v{O+1}, {f32(GK1)}, v{O+1}
        ds_write_b128 v11, {v(O,4)} offset:{16*r}
        """.strip().split("\n")]
    nwi = 13 - c.gat_check
    wper = (len(work) + nwi - 1) // nwi
    for i in range(-1, NI - 1):
        for hf, dr in ((0, c.drain0), (1, c.drain1)):
            if i == dr + 1:
                A(f"s_mov_b64 exec, 1\nglobal_store_dword v5, v6, s[30:31] offset:{64*hf} sc0 sc1\ns_mov_b64 exec, -1")
                P.stamp(1 + 2 * hf)
        if i == c.gat_issue: gat()
        if i == c.gat_check:
            pl = A.label("K2gp"); ok = A.label("K2gok")
            A(f"s_mov_b32 s45, 0\n{pl}:\ns_waitcnt vmcnt(0)\nv_min_u32 v12, v{GA+1}, v{GA+3}")
            for j in range(1, 14): A(f"v_min3_u32 v12, v12, v{GA+4*j+1}, v{GA+4*j+3}")
            A(f"v_cmp_eq_u32 vcc, 0, v12\ns_cbranch_vccz {ok}\ns_add_u32 s45, s45, 1\ns_cmp_ge_u32 s45, {SPIN}\ns_cbranch_scc1 {ok}")
            gat()
            A(f"s_branch {pl}\n{ok}:")
            P.stamp(6)
        if c.gat_check < i <= 13:
            for l in work[:wper]: A(l)
            work = work[wper:]
            if i == 13:
                assert not work
                A("s_waitcnt lgkmcnt(0)")
        for hf, gt, ld in ((0, c.gateT0, c.lead0), (1, c.gateT1, c.lead1)):
            if i == gt - 1 - ld: A(f"global_load_dword v7, v4, s[30:31] offset:{64*hf} sc1")
            if i == gt - 1:
                pl = A.label("K2poll"); ok = A.label("K2ok")
                A(f"""
                s_mov_b32 s45, 0
                {pl}:
                s_waitcnt vmcnt(0)
                v_cmp_ne_u32 vcc, 1, v7
                s_cbranch_vccz {ok}
                global_load_dword v7, v4, s[30:31] offset:{64*hf} sc1
                s_add_u32 s45, s45, 1
                s_cmp_lt_u32 s45, {SPIN}
                s_cbranch_scc1 {pl}
                {ok}:
                """)
                P.stamp(2 + 2 * hf)
        A("s_barrier")
    P.stamp(5)
    P.flush(7)
    A(f"{end}:\ns_endpgm")
    return kernel_desc(name, 256, 100)
if __name__ == "__main__":
    gen_k2(Asm(), "x", Cfg, True)
```

```python
from base import *
BLK = 8192
NSL = 20
CON = 19 * BLK
K2_LDS = NSL * BLK
GK0 = -2.0 * LOG2E * 0.7978845608028654
GK1 = GK0 * 0.044715
SPIN = 1 << 18

SYN = 19 * BLK
class Cfg:
    e1_first, e1_last = 15, 21
    e1_packed = False
    drain0 = (23, 26)
    poll0 = 28
    g1_blockwise = True
    tdepth2 = 14
    gate_ahead = {28: 4, 42: 10}
    tdepth = 6
    ddepth = 8
    pre = 32
    capP = 7
    caps = {0: 4}
    gat_issue, gat_check = 7, 9
    il = 2
    helpers = True
    hdepth = 1
    hlead = 5
    stflag = 'sc0 sc1'
    prioB = 2
    con_write = 11
    pollT1 = (24, 30)
    g2_blockwise = False
    x_fine = None

def schedule(c):
    need = {}
    for s in range(14): need[("H", s)] = s
    for s in range(28): need[("W", s)] = s
    last_use = {}
    for s in range(14): last_use[("H", s)] = 15 + s
    for s in range(28): last_use[("W", s)] = s + 1
    for t in range(28): last_use[("D", t)] = 1000
    free_at = {sl: -1 for sl in range(NSL)}
    slot = {}
    issue = {i: [] for i in range(-1, 30)}
    n = dict(H=0, W=0, D=0)
    cur = None
    def pick(i):
        nH, nW, nD = n["H"], n["W"], n["D"]
        wf = [sl for sl in range(14, NSL) if free_at[sl] <= i and (sl != 19 or i >= 15 or nW + 1 < c.con_write)]
        canW = nW < 28 and wf
        if nH < 14 and (nH <= min(nW, i + c.hlead) or not canW): return ("H", nH), nH
        if canW: return ("W", nW), wf[0]
        fr = [sl for sl in range(20) if free_at[sl] <= i and (sl < 14 and nH == 14 and i >= 14 or sl >= 14 and nW == 28)]
        if fr: return ("D", nD), fr[0]
        return None
    for i in range(-1, 30):
        cap = c.pre if i < 0 else c.capP if i < 28 else 3 if i == 28 else 999
        cap = c.caps.get(i, cap)
        while cap > 0:
            if cur is None:
                p = pick(i)
                if p is None: break
                b, sl = p
                slot[b] = sl; free_at[sl] = last_use[b] + 1; n[b[0]] += 1
                cur = [b, 0]
            issue[i].append((cur[0][0], cur[0][1], cur[1])); cur[1] += 1; cap -= 1
            if cur[1] == 4: cur = None
    assert n["D"] == 20 and cur is None
    for t in range(20, 28): slot[("D", t)] = slot[("D", t - 20)]
    order = [b for i in range(-1, 30) for b in issue[i]]
    pos = {b: k for k, b in enumerate(order)}
    wait = {}
    cnt = 0
    landed = 0
    for i in range(-1, 29):
        cnt += len(issue[i])
        req = [b for b in need if need[b] == i + 1]
        wait[i] = None if not req else cnt - 1 - max(pos[b + (3,)] for b in req)
        if i == 28: wait[i] = cnt - 1 - pos[("D", 7, 3)]
        assert wait[i] is None or wait[i] >= 0, (i, req)
        if wait[i] is not None:
            landed = max(landed, sum(1 for t in range(20) if pos[("D", t, 3)] < cnt - wait[i]))
    return issue, slot, wait, landed

def gen_k2(A, name, c=Cfg, verbose=False):
    issue, slot, wait, landed = schedule(c)
    if verbose:
        print("landed by barriers:", landed)
        for i in range(-1, 30): print(i, ' '.join(k + str(j) + '.' + str(q) for k, j, q in issue[i]), wait.get(i))
    kernel_head(A, name)
    end = A.label("K2end"); ldr = A.label("K2ldr"); grpB = A.label("K2B")
    hlp = A.label("K2hlp")
    A(f"s_cmp_ge_u32 s2, 224\ns_cbranch_scc1 {hlp if c.helpers else end}")
    P = Prof(A, 2); P.stamp(0)
    class Bars:
        def __init__(s, marks): s.n = 0; s.marks = c.x_fine or marks
        def bar(s):
            A("s_barrier")
            if s.n in s.marks: P.stamp(1 + s.marks.index(s.n))
            s.n += 1
        def mark(s, k):
            if not c.x_fine: P.stamp(1 + len(s.marks) + k)
        def fin(s, k=0):
            k = 0 if c.x_fine else k
            P.stamp(1 + len(s.marks) + k); P.flush(2 + len(s.marks) + k)
    A("s_load_dwordx8 s[20:27], s[0:1], 64\ns_load_dwordx2 s[30:31], s[0:1], 104")
    vLane = 1
    A(f"""
    v_and_b32 v{vLane}, 63, v0
    v_lshrrev_b32 v4, 6, v0
    s_and_b32 s37, s2, 7
    v_readfirstlane_b32 s36, v4
    s_lshr_b32 s38, s2, 3
    s_and_b32 s40, s38, 3
    s_lshr_b32 s39, s37, 1
    s_lshl_b32 s39, s39, 2
    s_add_u32 s39, s39, s40
    s_and_b32 s34, s37, 1
    s_lshr_b32 s35, s38, 2
    s_mul_i32 s38, s34, 7
    s_add_u32 s38, s38, s35
    s_mul_i32 s33, s40, 3
    s_lshl_b32 s37, s35, 1
    s_add_u32 s33, s33, s37
    s_cmp_ge_u32 s33, 14
    s_cselect_b32 s37, 14, 0
    s_sub_u32 s33, s33, s37
    s_cmp_ge_u32 s36, 8
    s_cbranch_scc1 {ldr}
    """)
    vB, vAa, vS, vCR, vFL, vPL = 8, 10, 12, 14, 16, 17
    vX = 18
    CN, CA, MB = 24, 32, 38
    F = [48, 64, 80]
    ACC = 96
    T1, T2, OUT = 48, 56, 64
    A(f"""
    s_and_b32 s40, s36, 1
    s_bfe_u32 s41, s36, 0x10001
    s_lshr_b32 s49, s36, 2
    v_bfe_u32 v2, v{vLane}, 2, 2
    v_bfe_u32 v3, v{vLane}, 4, 1
    v_lshrrev_b32 v4, 5, v{vLane}
    v_and_b32 v6, 3, v{vLane}
    v_lshl_add_u32 v5, v4, 3, v2
    v_lshlrev_b32 v7, 8, v5
    v_lshl_add_u32 v7, v6, 3, v7
    v_lshl_add_u32 v7, v3, 5, v7
    s_lshl_b32 s42, s40, 1
    s_add_u32 s42, s42, s41
    v_xor_b32 v{vB}, s42, v2
    v_lshl_add_u32 v{vB}, v{vB}, 6, v7
    v_xor_b32 v{vB+1}, 64, v{vB}
    s_lshl_b32 s42, s34, 1
    s_add_u32 s42, s42, s40
    v_xor_b32 v{vX}, s42, v2
    v_lshl_add_u32 v{vX}, v{vX}, 6, v7
    v_lshlrev_b32 v7, 7, v5
    v_lshl_add_u32 v7, v6, 3, v7
    v_lshl_add_u32 v7, v3, 12, v7
    v_lshrrev_b32 v5, 1, v2
    v_lshl_add_u32 v5, v3, 1, v5
    s_lshl_b32 s42, s41, 1
    v_xor_b32 v5, s42, v5
    v_lshl_add_u32 v7, v5, 5, v7
    v_add_u32 v{vAa}, {14*BLK}, v7
    v_xor_b32 v{vAa+1}, 32, v{vAa}
    s_lshl_b32 s42, s39, 2
    s_lshl_b32 s43, s40, 1
    s_add_u32 s42, s42, s43
    s_add_u32 s43, s42, s41
    s_xor_b32 s44, s43, 1
    s_lshl_b32 s45, s38, 3
    s_lshl_b32 s46, s41, 1
    s_add_u32 s45, s45, s46
    s_lshl_b32 s46, s49, 2
    s_add_u32 s45, s45, s46
    s_lshl_b32 s46, s45, 7
    s_add_u32 s45, s45, {WS_ACT // 1024}
    s_mul_i32 s43, s43, 112
    s_mul_i32 s44, s44, 112
    s_add_u32 s43, s43, s45
    s_add_u32 s44, s44, s45
    s_lshl_b32 s43, s43, 10
    s_lshl_b32 s44, s44, 10
    v_lshl_add_u32 v{vS}, v{vLane}, 4, s43
    v_lshl_add_u32 v{vS+1}, v{vLane}, 4, s44
    v_and_b32 v5, 15, v{vLane}
    v_mul_u32_u24 v7, {F_*8}, v3
    v_lshl_add_u32 v5, v5, 3, v7
    s_add_u32 s46, s46, {WS_CS}
    v_add_u32 v7, s46, v5
    v_and_b32 v5, 31, v{vLane}
    s_lshl_b32 s42, s40, 1
    s_add_u32 s42, s42, s41
    s_lshl_b32 s43, s42, 9
    s_add_u32 s43, s43, {CON}
    v_lshl_add_u32 v{vCR}, v5, 4, s43
    v_xor_b32 v{vCR+1}, 512, v{vCR}
    s_lshl_b32 s43, s39, 11
    s_lshl_b32 s44, s41, 8
    s_add_u32 s43, s43, s44
    s_add_u32 s43, s43, {WS_FLAGS}
    s_lshl_b32 s44, s34, 10
    s_add_u32 s59, s43, s44
    s_lshl_b32 s44, s40, 10
    s_add_u32 s58, s43, s44
    s_lshl_b32 s44, s49, 9
    s_add_u32 s58, s58, s44
    v_mov_b32 v{CA+4}, 0
    v_mov_b32 v{CA+5}, 0
    v_mov_b32 v{MB+2}, 0
    v_mov_b32 v{MB+3}, 0
    v_mov_b32 v{MB+6}, 0
    v_mov_b32 v{MB+7}, 0
    v_cmp_eq_u32 s[52:53], 0, v4
    s_mov_b32 s47, 0x3f803f80
    s_mov_b32 s48, 0xffff0000
    s_waitcnt lgkmcnt(0)
    global_load_dwordx2 {v(CA,2)}, v7, s[30:31]
    global_load_dwordx2 {v(CA+2,2)}, v7, s[30:31] offset:128
    s_cmp_eq_u32 s49, 1
    s_cbranch_scc1 {grpB}
    """)
    def preads(p, j):
        s, ks = j >> 1, j & 1
        f = F[j % 3]
        ho = (s % 8) * BLK + 4096 * ks
        wo = (slot[("W", 14 * p + s)] - 14) * BLK + 2048 * ks
        o = []
        for kind, i in (("B", 0), ("A", 0), ("B", 1), ("A", 1)):
            if kind == "B": o += [f"ds_read_b64_tr_b16 {v(f+8+4*i,2)}, v{vB+i} offset:{ho}", f"ds_read_b64_tr_b16 {v(f+10+4*i,2)}, v{vB+i} offset:{ho+1024}"]
            else: o += [f"ds_read_b64_tr_b16 {v(f+4*i,2)}, v{vAa+i} offset:{wo}", f"ds_read_b64_tr_b16 {v(f+2+4*i,2)}, v{vAa+i} offset:{wo+512}"]
        return o
    def pmfma(j, first=False):
        f = F[j % 3]
        return [f"v_mfma_f32_32x32x16_bf16 {v(ACC+32*t+16*rt,16)}, {v(f+4*t,4)}, {v(f+8+4*rt,4)}, {'0' if first else v(ACC+32*t+16*rt,16)}" for (t, rt) in ((0, 0), (0, 1), (1, 0), (1, 1))]
    def corr(first):
        return [f"v_mfma_f32_32x32x16_bf16 {v(ACC+32*t+16*rt,16)}, {v(CA+2*t,4)}, {v(MB+4*rt,4)}, {'0' if first else v(ACC+32*t+16*rt,16)}" for t in range(2) for rt in range(2)]
    mkmb = [f"v_cndmask_b32 v{MB+4*rt+k}, 0, v{CN+4*rt+3}, s[52:53]" for rt in range(2) for k in range(2)]
    def inter(m, r):
        per = (len(r) + 3) // 4
        for i in range(4):
            A(m[i])
            for l in r[per*i:per*(i+1)]: A(l)
    def pstep(p, s):
        for h in range(2):
            A("s_waitcnt lgkmcnt(8)")
            inter(pmfma(2*s - 2 + h, p == 0 and s == 1 and h == 0), preads(p, 2*s + h))
        if s == 7: A(f"v_add_u32 v{vB}, 0x10000, v{vB}\nv_add_u32 v{vB+1}, 0x10000, v{vB+1}")
    def epi(t, rt, n, packed):
        a = ACC + 32 * t + 16 * rt
        cn = CN + 4 * rt
        o_ = OUT + 4 * (n & 1)
        L = []
        if packed:
            L += [f"v_pk_mul_f32 {v(T1+2*q,2)}, {v(a+2*q,2)}, {v(a+2*q,2)}" for q in range(4)]
            L += [f"v_pk_fma_f32 {v(T1+2*q,2)}, {v(T1+2*q,2)}, {v(cn,2)}, {v(cn,2)} op_sel:[0,1,0] op_sel_hi:[1,1,0]" for q in range(4)]
            L += [f"v_pk_mul_f32 {v(T1+2*q,2)}, {v(T1+2*q,2)}, {v(a+2*q,2)}" for q in range(4)]
            L += [f"v_exp_f32 v{T1+q}, v{T1+q}" for q in range(8)]
            L += [f"v_pk_mul_f32 {v(T2+2*q,2)}, {v(a+2*q,2)}, {v(a+8+2*q,2)}" for q in range(4)]
            L += [f"v_pk_fma_f32 {v(T1+2*q,2)}, {v(T1+2*q,2)}, {v(cn+2,2)}, {v(cn+2,2)} op_sel_hi:[1,0,0]" for q in range(4)]
            L += [f"v_rcp_f32 v{T1+q}, v{T1+q}" for q in range(8)]
            L += [f"v_pk_mul_f32 {v(T2+2*q,2)}, {v(T2+2*q,2)}, {v(T1+2*q,2)}" for q in range(4)]
            L += [f"v_cvt_pk_bf16_f32 v{o_+q}, v{T2+2*q}, v{T2+2*q+1}" for q in range(4)]
        else:
            def st(q):
                return [f"v_mul_f32 v{T1+q}, v{a+q}, v{a+q}", f"v_fma_f32 v{T1+q}, v{T1+q}, v{cn+1}, v{cn}", f"v_mul_f32 v{T1+q}, v{T1+q}, v{a+q}",
                        f"v_exp_f32 v{T1+q}, v{T1+q}", f"v_mul_f32 v{T2+q}, v{a+q}, v{a+8+q}", f"v_fma_f32 v{T1+q}, v{T1+q}, v{cn+2}, v{cn+2}",
                        f"v_rcp_f32 v{T1+q}, v{T1+q}", f"v_mul_f32 v{T2+q}, v{T2+q}, v{T1+q}"]
            for q0 in range(0, 8, c.il):
                xs = [st(q) for q in range(q0, q0 + c.il)]
                for k in range(8): L += [x[k] for x in xs]
                L += [f"v_cvt_pk_bf16_f32 v{o_+q//2}, v{T2+q}, v{T2+q+1}" for q in range(q0, q0 + c.il, 2)]
        L += [f"global_store_dwordx4 v{vS+rt}, {v(o_,4)}, s[30:31] offset:{1024*t} {c.stflag}"]
        return L
    def cost(l): return 2 if l.startswith(("v_exp", "v_rcp", "v_sqrt")) else 1
    def signal(t):
        A(f"s_mov_b32 s60, 1\ns_waitcnt vmcnt({2-2*t})\ns_atomic_add s60, s[30:31], s58\ns_add_u32 s58, s58, 128")
    def poll_issue(r, off):
        A(f"s_mov_b32 s{r}, 0\ns_add_u32 s68, s59, {off}\ns_atomic_add s{r}, s[30:31], s68 glc")
    def poll_wait(r, off):
        pl = A.label("K2poll"); ok = A.label("K2ok")
        A(f"s_mov_b32 s45, 0\n{pl}:\ns_waitcnt lgkmcnt(0)\ns_cmp_ge_u32 s{r}, 14\ns_cbranch_scc1 {ok}")
        poll_issue(r, off)
        A(f"s_add_u32 s45, s45, 1\ns_cmp_lt_u32 s45, {SPIN}\ns_cbranch_scc1 {pl}\ns_waitcnt lgkmcnt(0)\n{ok}:")
    Q = Bars([0, 14, c.drain0[1] + 1, 29])
    AC2 = 80
    ID = 160
    HF = F[1]
    A(f"""
    s_lshl_b32 s43, s35, 1
    s_add_u32 s43, s43, s41
    s_sub_u32 s43, s43, s38
    s_cselect_b32 s44, 14, 0
    s_add_u32 s43, s43, s44
    s_lshl_b32 s43, s43, 13
    v_add_u32 v{vX}, s43, v{vX}
    v_lshlrev_b32 v7, 3, v4
    v_sub_u32 v7, v5, v7
    v_mov_b32 v{vX+1}, 0x3f80
    v_mov_b32 v{vX+2}, 1.0
    """)
    for j in range(2):
        for i in range(4):
            d0 = 16 * j + 2 * i
            A(f"v_cmp_eq_u32 vcc, {d0}, v7\nv_cmp_eq_u32 s[50:51], {d0+1}, v7\nv_cndmask_b32 v{ID+4*j+i}, 0, v{vX+1}, vcc\nv_cndmask_b32 v{ID+4*j+i}, v{ID+4*j+i}, v{vX+2}, s[50:51]")
    A("s_setprio 2")
    Q.bar()
    for l in preads(0, 0) + preads(0, 1): A(l)
    for s in range(1, 14):
        Q.bar(); pstep(0, s)
    Q.bar()
    r = [f"ds_read_b128 {v(CN+4*i,4)}, v{vCR+i}" for i in range(2)] + [f"ds_read_b64_tr_b16 {v(HF+2*i,2)}, v{vX} offset:{4096*(i>>1)+1024*(i&1)}" for i in range(4)]
    A("s_waitcnt lgkmcnt(8)"); inter(pmfma(26), r)
    A("s_waitcnt vmcnt(0) lgkmcnt(4)"); inter(pmfma(27), mkmb)
    for l in corr(False): A(l)
    A("s_waitcnt lgkmcnt(0)")
    A(f"v_mfma_f32_32x32x16_bf16 {v(AC2,16)}, {v(ID,4)}, {v(HF,4)}, 0")
    A(f"v_mfma_f32_32x32x16_bf16 {v(AC2,16)}, {v(ID+4,4)}, {v(HF+4,4)}, {v(AC2,16)}")
    A("s_setprio 0")
    E1 = []
    for n in range(4): E1 += epi(n >> 1, n & 1, n, c.e1_packed)
    tot = sum(cost(x) for x in E1); per = tot / (c.e1_last - c.e1_first + 1); bud = 0.0
    vD, vT, vSY = 8, 14, 15
    gsetup = f"""
    v_lshl_add_u32 v7, v4, 2, v2
    v_lshlrev_b32 v7, 7, v7
    v_lshrrev_b32 v{vD}, 1, v2
    v_xor_b32 v{vD}, s41, v{vD}
    v_lshl_add_u32 v7, v{vD}, 6, v7
    v_lshl_add_u32 v7, v3, 5, v7
    v_lshl_add_u32 v7, v6, 3, v7
    s_lshl_b32 s43, s41, 12
    v_add_u32 v{vD}, s43, v7
    v_xor_b32 v{vD+1}, 64, v{vD}
    v_add_u32 v{vD+2}, 0x10000, v{vD}
    v_add_u32 v{vD+3}, 0x10000, v{vD+1}
    v_lshlrev_b32 v{vT}, 4, v{vLane}
    s_lshl_b32 s43, s39, 2
    s_lshl_b32 s44, s34, 1
    s_add_u32 s43, s43, s44
    s_add_u32 s43, s43, s40
    s_mul_i32 s55, s43, {112*1024}
    s_mul_i32 s43, s43, {32*896}
    s_lshl_b32 s44, s35, 7
    s_add_u32 s43, s43, s44
    s_lshl_b32 s44, s41, 6
    s_add_u32 s43, s43, s44
    v_mul_u32_u24 v5, 896, v5
    v_lshl_add_u32 v5, v4, 4, v5
    v_add_u32 v5, s43, v5
    s_lshl_b32 s44, s41, 11
    s_add_u32 s55, s55, s44
    s_lshl_b32 s54, s33, 13
    s_add_u32 s54, s54, s55
    s_add_u32 s55, s55, {14*8192}
    s_add_u32 s64, s30, {WS_ACT}
    s_addc_u32 s65, s31, 0
    s_mov_b32 s66, {ACT_BYTES}
    s_mov_b32 s67, 0x20000
    """
    for i in range(15, 29):
        Q.bar()
        if i >= c.e1_first:
            bud += per
            while E1 and (bud > 0 or i == c.e1_last):
                x = E1.pop(0); A(x); bud -= cost(x)
        if i == c.e1_last + 1: A(gsetup)
        if i == c.drain0[0]: signal(0)
        if i == c.drain0[1]:
            signal(1)
            A(f"v_add_u32 v{vD+4}, 0x20000, v{vD}\nv_add_u32 v{vD+5}, 0x20000, v{vD+1}")
        if i == c.poll0:
            poll_issue(61, 0); poll_issue(62, 128)
    Q.bar()
    TRQ = [96 + 4 * k for k in range(18)] + [16, 20, 24, 28]
    DB = [32, 40, 48, 56]
    AO = [AC2, 64]
    seq = [(14 * hf + b, j) for hf in range(2) for j in range(2) for b in range(14)]
    seq[:28] = [(b, j) for b in range(14) for j in range(2)]
    if c.g2_blockwise: seq[28:] = [(14 + b, j) for b in range(14) for j in range(2)]
    def tload(n):
        b, j = seq[n]
        blockwise = c.g2_blockwise or n < 28
        o = []
        if n == 28: o += ["s_add_u32 s54, s54, 4096", "s_add_u32 s55, s55, 4096"]
        o += [f"buffer_load_dwordx4 {v(TRQ[n % 22],4)}, v{vT}, s[64:67], s54 offen offset:{1024*j} sc1"]
        if not blockwise or j == 1:
            o += ["s_add_u32 s54, s54, 8192", "s_cmp_ge_u32 s54, s55", f"s_cselect_b32 s57, {14*8192}, 0", "s_sub_u32 s54, s54, s57"]
        return o
    def dreads(n):
        b, j = seq[n]
        sd = slot[("D", b)]; f = DB[n & 3]
        o = []
        for nt in range(2):
            do = (sd % 8) * BLK + 2048 * j
            ad = vD + 2 * (sd // 8) + nt
            o += [f"ds_read_b64_tr_b16 {v(f+4*nt,2)}, v{ad} offset:{do}", f"ds_read_b64_tr_b16 {v(f+4*nt+2,2)}, v{ad} offset:{do+1024}"]
        return o
    def gm(n):
        f = DB[n & 3]
        return [f"v_mfma_f32_32x32x16_bf16 {v(AO[nt],16)}, {v(f+4*nt,4)}, {v(TRQ[n % 22],4)}, {'0' if (n == 0 and nt == 1) else v(AO[nt],16)}" for nt in range(2)]
    gate = {0: 0, 28: 1} if c.g2_blockwise else {0: 0, 28: 1, 42: 2}
    issued = 0; rd = 0; mk = 0
    x2 = min(n for n, (b, j) in enumerate(seq) if b >= 20)
    for n in range(56):
        depth = c.tdepth if n < 12 else c.tdepth2
        if n == c.pollT1[0]: poll_issue(61, 512)
        if n == c.pollT1[1] or (c.g2_blockwise and n == c.pollT1[0]): poll_issue(62, 640)
        while issued < 56 and issued - n < min(depth, 22):
            if issued in gate:
                if issued - n > c.gate_ahead.get(issued, 0): break
                g_ = gate.pop(issued)
                if g_ == 0: poll_wait(61, 0); poll_wait(62, 128)
                elif g_ == 1:
                    assert n >= c.pollT1[0]
                    poll_wait(61, 512)
                    if c.g2_blockwise: poll_wait(62, 640)
                else:
                    assert n >= c.pollT1[1]
                    poll_wait(62, 640)
                Q.mark(mk); mk += 1
            for l in tload(issued): A(l)
            issued += 1
        if n == 0:
            for l in dreads(0) + dreads(1): A(l)
        if n + 2 in (16, x2):
            A("s_waitcnt lgkmcnt(0)\ns_barrier")
            Q.mark(mk); mk += 1
        r = dreads(n + 2) if n + 2 < 56 else []
        A(f"s_waitcnt vmcnt({issued-1-n}) lgkmcnt({4 if n < 55 else 0})")
        m = gm(n)
        for i in range(2):
            A(m[i])
            for l in r[2*i:2*i+2]: A(l)
    while mk < 5: Q.mark(mk); mk += 1
    Q.mark(5)
    A(f"""
    s_lshl_b32 s43, s36, 12
    v_lshl_add_u32 v2, v{vLane}, 4, s43
    v_xor_b32 v3, 0x2000, v2
    s_barrier
    """)
    for q in range(4): A(f"ds_write_b128 v2, {v(AO[1]+4*q,4)} offset:{1024*q}")
    A("s_waitcnt lgkmcnt(0)\ns_barrier")
    for q in range(4): A(f"ds_read_b128 {v(32+4*q,4)}, v3 offset:{1024*q}")
    for hq in range(2):
        A(f"s_waitcnt lgkmcnt({2-2*hq})")
        for q in range(4*hq, 4*hq+4): A(f"v_pk_add_f32 {v(AC2+2*q,2)}, {v(AC2+2*q,2)}, {v(32+2*q,2)}")
        for q in range(4*hq, 4*hq+4): A(f"v_cvt_pk_bf16_f32 v{48+q}, v{AC2+2*q}, v{AC2+2*q+1}")
        A(f"v_permlane32_swap_b32 v{48+4*hq}, v{48+4*hq+2}\nv_permlane32_swap_b32 v{48+4*hq+1}, v{48+4*hq+3}")
        A(f"global_store_dwordx4 v5, {v(48+4*hq,4)}, s[26:27] offset:{32*hq}")
    Q.fin(6)
    A("s_endpgm")
    A(f".p2align 3\n{grpB}:")
    Q = Bars([0, c.gat_check, c.gat_check + 1, 14, 28, 29])
    ST, GA = 18, 96
    vPS, vGA = 22, 23
    A(f"""
    s_mul_i32 s43, s39, {14*1024}
    s_lshl_b32 s44, s42, 8
    s_add_u32 s43, s43, s44
    s_add_u32 s43, s43, {WS_PS}
    v_lshl_add_u32 v{vPS}, v5, 3, s43
    v_mul_u32_u24 v7, 7168, v4
    v_add3_u32 v{vGA}, v{vPS}, v7, 64
    v_add_u32 v{vGA}, {3072-64}, v{vGA}
    s_lshl_b32 s44, s38, 10
    v_add_u32 v{vPS}, s44, v{vPS}
    """)
    def gat(js=range(7)):
        for j in js: A(f"global_load_dwordx2 {v(GA+2*j,2)}, v{vGA}, s[30:31] offset:{1024*j-3072} sc1")
    S, Qv = GA, GA + 1
    work = [f"v_add_f32 v{GA+k}, v{GA+k}, v{GA+2*j+k}" for j in range(1, 7) for k in range(2)]
    work += [f"v_mov_b32 v{GA+2}, v{GA}", f"v_mov_b32 v{GA+3}, v{GA+1}", f"v_permlane32_swap_b32 v{GA}, v{GA+2}", f"v_permlane32_swap_b32 v{GA+1}, v{GA+3}",
             f"v_add_f32 v{GA}, v{GA}, v{GA+2}", f"v_add_f32 v{GA+1}, v{GA+1}, v{GA+3}"]
    work += [l.strip() for l in f"""
    v_mul_f32 v{S}, {f32(1.0/448)}, v{S}
    v_mul_f32 v{Qv}, {f32(1.0/448)}, v{Qv}
    v_fma_f32 v{Qv}, -v{S}, v{S}, v{Qv}
    v_max_f32 v{Qv}, 0, v{Qv}
    v_cvt_pk_bf16_f32 v{CN+3}, -v{S}, -v{S}
    v_cvt_pk_bf16_f32 v{Qv}, v{Qv}, v{Qv}
    v_and_b32 v{Qv}, s48, v{Qv}
    v_add_f32 v{Qv}, {f32(1e-5)}, v{Qv}
    v_cvt_pk_bf16_f32 v{Qv}, v{Qv}, v{Qv}
    v_and_b32 v{Qv}, s48, v{Qv}
    v_sqrt_f32 v{Qv}, v{Qv}
    v_cvt_pk_bf16_f32 v{Qv}, v{Qv}, v{Qv}
    v_and_b32 v{Qv}, s48, v{Qv}
    v_rcp_f32 v{S}, v{Qv}
    v_mul_f32 v{CN+2}, v{Qv}, v{Qv}
    v_mul_f32 v{CN}, {f32(GK0)}, v{S}
    v_mul_f32 v{CN+1}, v{S}, v{S}
    v_mul_f32 v{CN+1}, v{CN+1}, v{S}
    v_mul_f32 v{CN+1}, {f32(GK1)}, v{CN+1}
    ds_write_b128 v{vCR}, {v(CN,4)}
    """.strip().split("\n")]
    nwi = c.con_write - c.gat_check
    wper = (len(work) + nwi - 1) // nwi
    for i in range(14):
        Q.bar()
        if i == 0:
            for k in range(4): A(f"ds_read_b64_tr_b16 {v(F[0]+2*k,2)}, v{vB} offset:{4096*(k>>1)+1024*(k&1)}")
        if i == 1:
            A("s_waitcnt lgkmcnt(0)")
            for k in range(8):
                z = k < 2
                A(f"v_dot2_f32_bf16 v{ST+(k&1)}, v{F[0]+k}, s47, {'0' if z else 'v%d' % (ST+(k&1))}\nv_dot2_f32_bf16 v{ST+2+(k&1)}, v{F[0]+k}, v{F[0]+k}, {'0' if z else 'v%d' % (ST+2+(k&1))}")
        if i == 2:
            A(f"""
            v_add_f32 v{ST}, v{ST}, v{ST+1}
            v_add_f32 v{ST+1}, v{ST+2}, v{ST+3}
            v_mov_b32 v{ST+2}, v{ST}
            v_mov_b32 v{ST+3}, v{ST+1}
            v_permlane32_swap_b32 v{ST}, v{ST+2}
            v_permlane32_swap_b32 v{ST+1}, v{ST+3}
            v_add_f32 v{ST}, v{ST}, v{ST+2}
            v_add_f32 v{ST+1}, v{ST+1}, v{ST+3}
            v_or_b32 v{ST+1}, 1, v{ST+1}
            s_mov_b32 exec_hi, 0
            global_store_dwordx2 v{vPS}, {v(ST,2)}, s[30:31] sc0 sc1
            s_mov_b32 exec_hi, -1
            """)
        if i == c.gat_issue - 1: gat(range(3))
        if i == c.gat_issue: gat(range(3, 7))
        if i == c.gat_check:
            pl = A.label("K2gp"); ok = A.label("K2gok")
            A(f"s_mov_b32 s45, 0\n{pl}:\ns_waitcnt vmcnt(0)\nv_min3_u32 v7, v{GA+1}, v{GA+3}, v{GA+5}\nv_min3_u32 v7, v7, v{GA+7}, v{GA+9}\nv_min3_u32 v7, v7, v{GA+11}, v{GA+13}")
            A(f"v_cmp_eq_u32 vcc, 0, v7\ns_cbranch_vccz {ok}\ns_add_u32 s45, s45, 1\ns_cmp_ge_u32 s45, {SPIN}\ns_cbranch_scc1 {ok}")
            gat()
            A(f"s_branch {pl}\n{ok}:")
        if c.gat_check < i <= c.con_write:
            for l in work[:wper]: A(l)
            work = work[wper:]
        if i == 13:
            assert not work
            A("s_waitcnt lgkmcnt(0)")
    Q.bar()
    A(f"ds_read_b128 {v(CN+4,4)}, v{vCR+1}")
    for l in preads(1, 0): A(l)
    A("s_waitcnt lgkmcnt(8)")
    for l in mkmb + preads(1, 1): A(l)
    for l in corr(True): A(l)
    A(f"s_setprio {c.prioB}")
    for s in range(1, 14):
        Q.bar(); pstep(1, s)
    Q.bar()
    A("s_waitcnt lgkmcnt(8)")
    for l in pmfma(26): A(l)
    A("s_waitcnt lgkmcnt(0)")
    Q.bar()
    for l in pmfma(27): A(l)
    for n in range(4):
        for l in epi(n >> 1, n & 1, n, True): A(l)
    Q.mark(0)
    signal(0)
    Q.mark(1)
    signal(1)
    Q.mark(2)
    A("s_barrier")
    Q.fin(3)
    A("s_waitcnt lgkmcnt(0)\ns_endpgm")
    A(f".p2align 3\n{ldr}:")
    aH, aW, aD, aT = 24, 28, 32, 36
    A(f"""
    s_and_b32 s36, s36, 1
    v_lshrrev_b32 v6, 4, v{vLane}
    v_and_b32 v7, 15, v{vLane}
    v_lshlrev_b32 v5, 2, v6
    v_xor_b32 v5, v5, v7
    v_lshlrev_b32 v5, 4, v5
    v_lshl_add_u32 v{aH}, v6, 12, v5
    v_lshrrev_b32 v6, 3, v{vLane}
    v_and_b32 v7, 7, v{vLane}
    v_and_b32 v5, 2, v6
    v_xor_b32 v4, v5, v7
    s_lshl_b32 s32, s36, 2
    v_xor_b32 v4, s32, v4
    v_mul_u32_u24 v3, 3584, v6
    v_lshl_add_u32 v{aW}, v4, 4, v3
    v_lshlrev_b32 v5, 1, v5
    v_xor_b32 v4, v5, v7
    v_mul_u32_u24 v3, 896, v6
    v_lshl_add_u32 v{aD}, v4, 4, v3
    """)
    for i in range(1, 4):
        A(f"v_add_u32 v{aH+i}, {i*(4*4096-1024)}, v{aH}\nv_add_u32 v{aW+i}, {i*(8*3584-1024)}, v{aW}\nv_add_u32 v{aD+i}, {i*(8*896-1024)}, v{aD}")
    sH, sW, sD, sT = 40, 41, 42, 43
    eH, eW, eD, eT = 44, 45, 46, 47
    A(f"""
    s_lshl_b32 s{eH}, s39, 8
    s_lshl_b32 s32, s36, 16
    s_add_u32 s{eH}, s{eH}, s32
    s_lshl_b32 s{sH}, s38, 17
    s_add_u32 s{sH}, s{sH}, s{eH}
    s_add_u32 s{eH}, s{eH}, {14*32*4096}
    s_lshl_b32 s{eW}, s38, 8
    s_mul_i32 s{sW}, s38, {32*3584}
    s_add_u32 s{sW}, s{sW}, s{eW}
    s_add_u32 s{eW}, s{eW}, {14*32*3584}
    s_lshl_b32 s{eD}, s35, 7
    s_mul_i32 s32, s36, {32*896}
    s_add_u32 s{eD}, s{eD}, s32
    s_mul_i32 s{sD}, s33, {128*896}
    s_add_u32 s{sD}, s{sD}, s{eD}
    s_add_u32 s{eD}, s{eD}, {14*128*896}
    s_lshl_b32 s32, s36, 12
    s_cmp_eq_u32 s36, 0
    s_waitcnt lgkmcnt(0)
    s_cselect_b32 s20, s20, s22
    s_cselect_b32 s21, s21, s23
    """)
    srd(A, 48, 30, X_BYTES, WS_HT)
    srd(A, 52, 20, W_BYTES)
    srd(A, 60, 24, W_BYTES)
    def dma(kind, idx, i):
        base = slot[(kind, idx)] * BLK
        a0, r0, s, e, step, fl = {"H": (aH, 48, sH, eH, 32*4096, ""), "W": (aW, 52, sW, eW, 32*3584, ""),
                                  "D": (aD, 60, sD, eD, 128*896, ""), "T": (aT, 64, sT, eT, 8192, " sc1")}[kind]
        if i == 0:
            if idx == 14 and kind != "H":
                d = {"W": 128, "D": 64*896, "T": 4096}[kind]
                A(f"s_add_u32 s{s}, s{s}, {d}\ns_add_u32 s{e}, s{e}, {d}")
            A(f"s_add_u32 m0, s32, {base}\ns_add_u32 s33, s{s}, {step}")
        inc = 0 if kind == "T" else 1
        A(f"buffer_load_dwordx4 v{a0+inc*i}, s[{r0}:{r0+3}], s{s} offen offset:{1024*i}{fl} lds")
        if i == 0: A(f"s_cmp_ge_u32 s33, s{e}\ns_cselect_b32 s34, {14*step}, 0")
        if i == 3: A(f"s_sub_u32 s{s}, s33, s34")
    for i in range(-1, 29):
        for x in issue[i]: dma(*x)
        if wait[i] is not None: A(f"s_waitcnt vmcnt({min(63, wait[i])})")
        A("s_barrier")
    for x in issue[29]:
        dma(*x)
        if x[2] == 3: A(f"s_waitcnt vmcnt({c.ddepth})")
    A("s_waitcnt vmcnt(0)\ns_barrier")
    for nb in range(20, 28):
        for q in range(4): dma("D", nb, q)
    A("s_waitcnt vmcnt(0)")
    A(f"{end}:\ns_endpgm")
    if c.helpers:
        hl = A.label("K2hl")
        A(f"""
        {hlp}:
        s_cmp_ge_u32 s2, 256
        s_cbranch_scc1 {end}
        s_load_dwordx2 s[24:25], s[0:1], 80
        v_cmp_gt_u32 vcc, 448, v0
        s_cbranch_vccz {end}
        s_sub_u32 s4, s2, 224
        s_lshr_b32 s4, s4, 3
        v_lshlrev_b32 v1, 7, v0
        s_mov_b32 s26, {W_BYTES}
        s_mov_b32 s27, 0x20000
        s_waitcnt lgkmcnt(0)
        {hl}:
        s_cmp_ge_u32 s4, 14
        s_cselect_b32 s5, {27*64*896}, 0
        s_mul_i32 s6, s4, {128*896}
        s_sub_u32 s6, s6, s5
        buffer_load_dword v2, v1, s[24:27], s6 offen
        s_waitcnt vmcnt({c.hdepth})
        s_add_u32 s4, s4, 4
        s_cmp_lt_u32 s4, 28
        s_cbranch_scc1 {hl}
        s_endpgm
        """)
    return kernel_desc(name, 168, 100)
if __name__ == "__main__":
    gen_k2(Asm(), "x", Cfg, True)
```

```python
from base import *
import base
from ka import load_ptrs, cmul, cexp
from k1 import WS_E, WS_XG, XG_BYTES, REG, KCO, UO, UPITCH, XT, K1_LDS, SPIN, TP, GP, code_prefetch
import numpy as np
TAGA = K1_LDS
K5_LDS = K1_LDS + 64

def gen_helper(A, P):
    go = A.label("Hgo")
    A(f"""
    s_sub_u32 s46, s2, 224
    s_cmp_ge_u32 s46, 28
    s_cbranch_scc0 {go}
    v_lshlrev_b32 v2, 4, v0
    s_lshl_b32 s46, s46, 16
    s_add_u32 s46, s46, {WS_FLAGS - 28*65536}
    v_add_u32 v2, s46, v2
    v_mov_b32 v4, 0
    v_mov_b32 v5, 0
    v_mov_b32 v6, 0
    v_mov_b32 v7, 0
    s_waitcnt lgkmcnt(0)
    """)
    for i in range(8):
        A("global_store_dwordx4 v2, v[4:7], s[30:31]")
        if i < 7: A("v_add_u32 v2, 8192, v2")
    A(f"""
    s_endpgm
    {go}:
    v_and_b32 v1, 15, v0
    v_lshrrev_b32 v2, 4, v0
    v_mul_u32_u24 v2, 3584, v2
    v_lshl_add_u32 v2, v1, 4, v2
    s_cmp_ge_u32 s46, 14
    s_cselect_b32 s47, 14, 0
    s_waitcnt lgkmcnt(0)
    s_cselect_b32 s48, s22, s20
    s_cselect_b32 s49, s23, s21
    s_sub_u32 s47, s46, s47
    s_lshl_b32 s47, s47, 8
    s_mov_b32 s50, {W_BYTES}
    s_mov_b32 s51, 0x20000
    """)
    for p in range(14):
        A(f"buffer_load_dwordx4 {v(16+4*p,4)}, v2, s[48:51], s47 offen")
        if p < 13: A("s_add_u32 s47, s47, %d" % (32 * 3584))
    A("s_mov_b32 s42, 0x00003f80\ns_mov_b32 s43, 0x3f800000")
    for p in range(14):
        A(f"s_waitcnt vmcnt({13-p})")
        for q in range(4):
            for hl in range(2):
                acc = 4 + 2 * q + hl
                A(f"v_dot2_f32_bf16 v{acc}, v{16+4*p+q}, s{42+hl}, {'0' if p == 0 else 'v%d' % acc}")
    for op in ("v_permlane16_swap_b32", "v_permlane32_swap_b32"):
        for q in range(8): A(f"v_mov_b32 v{16+q}, v{4+q}")
        for q in range(8): A(f"{op} v{4+q}, v{16+q}")
        for q in range(8): A(f"v_add_f32 v{4+q}, v{4+q}, v{16+q}")
    A("""
    v_lshrrev_b32 v2, 6, v0
    v_lshlrev_b32 v2, 9, v2
    v_lshl_add_u32 v2, v1, 5, v2
    s_mov_b64 exec, 0xffff
    ds_write_b128 v2, v[4:7]
    ds_write_b128 v2, v[8:11] offset:16
    s_mov_b64 exec, -1
    s_waitcnt lgkmcnt(0)
    s_barrier
    v_and_b32 v1, 127, v0
    v_lshlrev_b32 v1, 2, v1
    ds_read2st64_b32 v[4:5], v1 offset0:0 offset1:2
    ds_read2st64_b32 v[6:7], v1 offset0:4 offset1:6
    ds_read2st64_b32 v[8:9], v1 offset0:8 offset1:10
    ds_read2st64_b32 v[10:11], v1 offset0:12 offset1:14
    s_waitcnt lgkmcnt(0)
    v_pk_add_f32 v[4:5], v[4:5], v[6:7]
    v_pk_add_f32 v[8:9], v[8:9], v[10:11]
    v_pk_add_f32 v[4:5], v[4:5], v[8:9]
    v_add_f32 v4, v4, v5
    s_mov_b32 s43, 0xffff0000
    v_cvt_pk_bf16_f32 v5, v4, v4
    v_and_b32 v5, s43, v5
    v_sub_f32 v6, v4, v5
    v_cvt_pk_bf16_f32 v8, v5, v6
    v_and_b32 v7, s43, v8
    v_sub_f32 v6, v6, v7
    v_cvt_pk_bf16_f32 v9, v6, 0
    s_lshl_b32 s46, s46, 10
    s_add_u32 s46, s46, %d
    v_lshl_add_u32 v1, v1, 1, s46
    global_store_dwordx2 v1, v[8:9], s[30:31]
    """ % WS_CS)
    P.flush(1)
    A("s_endpgm")

def gen_k1(A, name, code_bytes=49152, pf2=7, prio_mid=26, hstore="", poll_late=False, early=False):
    kernel_head(A, name)
    end = A.label("K1end"); hlp = A.label("K1hlp"); aux = A.label("K1aux"); nw = A.label("K1n"); tab = A.label("K1tab")
    A(f"s_cmp_ge_u32 s2, 256\ns_cbranch_scc1 {end}")
    P = Prof(A, 1); P.stamp(0)
    load_ptrs(A)
    A(f"s_getpc_b64 s[60:61]\n{name}_pc:")
    vLane, vG, vJ = 1, 2, 3
    A(f"""
    v_lshrrev_b32 v4, 6, v0
    v_and_b32 v{vLane}, 63, v0
    s_and_b32 s37, s2, 7
    v_readfirstlane_b32 s36, v4
    s_mul_i32 s37, s37, 28
    s_lshr_b32 s38, s2, 3
    s_add_u32 s37, s37, s38
    s_mov_b32 s43, 0xffff0000
    s_cmp_lt_u32 s36, 8
    s_cbranch_scc1 {aux}
    """)
    auxt = A.label("K1auxt"); auxs = A.label("K1auxs")
    per = (code_bytes // 128 + 63) // 64
    vRow, vXG = 16, 48
    sta = A.label("K1sta"); fin = A.label("K1afin")
    PA = Prof(A, 3)
    A(f"""
    s_setprio 3
    v_lshrrev_b32 v5, 3, v{vLane}
    v_and_b32 v6, 7, v{vLane}
    v_mul_u32_u24 v7, 896, v5
    s_cmp_lt_u32 s36, 10
    s_cbranch_scc1 {sta}
    """)
    A(f"""
    s_and_b32 s36, s36, 1
    s_lshr_b32 s62, s2, 2
    s_and_b32 s62, s62, 62
    s_add_u32 s62, s62, s36
    s_mul_i32 s62, s62, {per*128}
    v_min_u32 v10, {per-1}, v{vLane}
    v_lshl_add_u32 v10, v10, 7, s62
    v_min_u32 v10, Lcode_end-{name}_pc-4, v10
    global_load_dword v11, v10, s[60:61]
    s_mul_i32 s47, s36, 224
    s_add_u32 s47, s47, s2
    s_cmp_ge_u32 s2, 224
    s_cbranch_scc1 {end}
    s_cmp_ge_u32 s47, 256
    s_cbranch_scc1 {end}
    s_mul_i32 s48, s47, {8*896}
    v_lshl_add_u32 v8, v6, 4, v7
    v_add_u32 v8, s48, v8
    s_waitcnt lgkmcnt(0)
    """)
    for i in range(7): A(f"global_load_dwordx4 {v(vRow+4*i,4)}, v8, s[4:5] offset:{128*i}")
    A(f"s_load_dword s57, s[30:31], {WS_E}")
    A(f"""
    s_branch {auxs}
    {sta}:
    s_cmp_ge_u32 s2, 224
    s_cbranch_scc1 {end}
    s_and_b32 s36, s36, 1
    s_mul_i32 s46, s2, 9363
    s_lshr_b32 s46, s46, 16
    s_mul_i32 s47, s46, 7
    s_sub_u32 s47, s2, s47
    s_lshl_b32 s46, s46, 1
    s_add_u32 s46, s46, s36
    s_mul_i32 s49, s46, {32*896}
    s_lshl_b32 s48, s47, 7
    s_add_u32 s49, s49, s48
    s_lshl_b32 s47, s47, 19
    s_lshl_b32 s46, s46, 8
    s_add_u32 s51, s47, s46
    s_lshl_b32 s46, s36, 12
    s_add_u32 s46, s46, {XT}
    s_mov_b32 m0, s46
    v_lshrrev_b32 v4, 1, v5
    v_xor_b32 v4, v4, v6
    v_lshl_add_u32 v12, v4, 4, v7
    v_xor_b32 v4, 4, v4
    v_lshl_add_u32 v13, v4, 4, v7
    v_add_u32 v13, {8*896-1024}, v13
    v_add_u32 v14, {16*896-2048}, v12
    v_add_u32 v15, {16*896-2048}, v13
    s_mov_b32 s34, {X_BYTES}
    s_mov_b32 s35, 0x20000
    s_waitcnt lgkmcnt(0)
    s_mov_b32 s32, s4
    s_mov_b32 s33, s5
    """)
    for i in range(4): A(f"buffer_load_dwordx4 v{12+i}, s[32:35], s49 offen offset:{1024*i} lds")
    A(f"s_load_dword s57, s[30:31], {WS_E}")
    A(f"s_branch {auxt}\n{aux}:\ns_cmp_ge_u32 s2, 224\ns_cbranch_scc1 {hlp}")
    vP, vDT = 8, 12
    a2, b2 = 14, 15
    w1, w256, w2, w512 = 16, 18, 20, 22
    tA, tB, tC = 24, 26, 28
    G, G2, Hh, W4, HT, CV = 30, 46, 62, 68, 70, 78
    vTB, vA, vB, vRA = 88, 94, 95, 96
    A(f"""
    v_mov_b32 v{vP}, 0
    v_mov_b32 v{vP+1}, 0
    v_mov_b32 v{vP+2}, 0
    v_mov_b32 v{vP+3}, 0
    s_lshl_b32 s48, s37, 10
    v_lshl_add_u32 v4, v0, 1, s48
    s_lshl_b32 s48, s37, 2
    s_lshl_b32 s56, s36, 14
    s_mov_b32 m0, s56
    s_lshr_b32 s38, s36, 2
    s_add_u32 s62, s60, {tab}-{name}_pc+2048
    s_addc_u32 s63, s61, 0
    s_waitcnt lgkmcnt(0)
    s_load_dword s52, s[14:15], s48
    global_load_short_d16_hi v{vP}, v4, s[6:7]
    global_load_short_d16_hi v{vP+1}, v4, s[8:9]
    global_load_short_d16_hi v{vP+2}, v4, s[10:11]
    global_load_short_d16_hi v{vP+3}, v4, s[12:13]
    s_load_dword s53, s[16:17], s48
    """)
    P.stamp(1)
    A(f"""
    v_bfe_u32 v{vG}, v0, 5, 1
    v_and_b32 v{vJ}, 31, v0
    s_lshl_b32 s46, s36, 15
    v_mul_u32_u24 v4, {GP}, v{vJ}
    v_lshl_add_u32 v4, v{vG}, 4, v4
    v_add_u32 v{vRA}, s46, v4
    s_bfe_u32 s39, s36, 0x10001
    s_and_b32 s40, s36, 1
    s_mul_i32 s48, s39, {4*(REG+64)}
    s_lshl_b32 s47, s40, 8
    s_add_u32 s48, s48, s47
    s_add_u32 s48, s48, {KCO+64-24}
    v_and_b32 v4, 3, v0
    v_sub_u32 v4, 3, v4
    v_mul_u32_u24 v4, {REG+64}, v4
    v_bfe_u32 v5, v0, 2, 2
    v_lshl_add_u32 v4, v5, 3, v4
    v_bfe_u32 v5, v0, 4, 2
    v_lshl_add_u32 v4, v5, 4, v4
    v_add_u32 v{vA}, s48, v4
    s_mul_i32 s48, s39, {UPITCH}
    s_sub_u32 s48, s48, s47
    s_add_u32 s48, s48, {UO+512+16-192}
    v_and_b32 v4, 15, v0
    v_lshlrev_b32 v4, 5, v4
    v_lshlrev_b32 v5, 4, v5
    v_sub_u32 v4, v4, v5
    v_add_u32 v{vB}, s48, v4
    s_mov_b32 s54, {f32(8.0)}
    s_mov_b32 s55, {f32(256.0)}
    s_lshl_b32 s46, s38, 4
    v_mov_b32 v{vDT}, {f32(LOG2E)}
    s_cmp_lt_u32 s36, 4
    s_cbranch_scc1 K1noprio
    s_setprio 1
    K1noprio:
    s_waitcnt lgkmcnt(0)
    s_lshr_b32 s52, s52, s46
    s_lshl_b32 s52, s52, 16
    v_mul_f32 v{vDT}, s52, v{vDT}
    v_exp_f32 v{vDT}, v{vDT}
    v_cvt_pk_bf16_f32 v{vDT}, v{vDT}, v{vDT}
    v_and_b32 v{vDT}, s43, v{vDT}
    s_and_b32 s59, s53, s43
    s_lshl_b32 s58, s53, 16
    v_add_f32 v6, v{vDT}, v{vDT}
    """)
    P.stamp(2)
    A(f"""
    s_waitcnt vmcnt(2)
    v_mul_f32 v4, {f32(LOG2E)}, v{vP}
    v_exp_f32 v4, v4
    v_mul_f32 v{b2}, v{vP+1}, v{vDT}
    v_cvt_pk_bf16_f32 v4, v4, v4
    v_and_b32 v4, s43, v4
    v_mul_f32 v{a2}, v4, v{vDT}
    v_mul_f32 v{b2}, 0.15915494, v{b2}
    v_mul_f32 v{a2}, {f32(-LOG2E)}, v{a2}
    """)
    P.stamp(3)
    nb_ = [0]
    def put(src, row, neg):
        r = CV + (nb_[0] & 7); nb_[0] += 1
        x = [f"v_cvt_pk_bf16_f32 v{r}, v{src}, {'-' if neg else ''}v{src+1}", f"ds_write_addtid_b32 v{r} offset:{row*GP}"]
        if nb_[0] == prio_mid: x[1] += "\ns_setprio 0"
        return x
    def spread(puts, work):
        o = []
        while puts or work:
            p = puts.pop(0) if puts else None
            if p: o.append(p[0])
            if work: o += work.pop(0)
            if p: o.append(p[1])
        return o
    GR = 32
    for l in cexp(Hh, a2, b2, "s54", tA): A(l)
    A(f"v_mov_b32 v{CV+8}, 0x3f80\nds_write_addtid_b32 v{CV+8}")
    for l in cmul(Hh+2, Hh, Hh) + cmul(Hh+4, Hh+2, Hh) + cmul(W4, Hh+2, Hh+2): A(l)
    ex = merge(cexp(w1, a2, b2, None, tB), cexp(w256, a2, b2, "s55", tC))
    ex += ["s_waitcnt vmcnt(0)", f"v_mul_f32 v{G}, v{vP+2}, v6", f"v_mul_f32 v{G+1}, v{vP+3}, v6",
           "v_min_u32 v5, 255, v0\nv_lshlrev_b32 v6, 4, v5", "v_lshlrev_b32 v5, 3, v5",
           f"global_load_dwordx4 {v(vTB,4)}, v6, s[62:63] offset:-2048", f"global_load_dwordx2 {v(vTB+4,2)}, v5, s[62:63] offset:2048"]
    ex += cmul(w2, w1, w1) + cmul(G+2, G, w1) + cmul(w512, w256, w256)
    cur = [Hh, Hh+2, Hh+4, W4]; nxt = [HT, HT+2, HT+4, HT+6]; alt = [G2, G2+2, G2+4, G2+6]
    j = 1
    while j < 32:
        pend = [put(cur[r], j + r, False) for r in range(4) if j + r < 32]
        wk = [cmul(nxt[r], cur[r], W4) + [ex.pop(0) for _ in range(1) if ex] for r in range(4) if j + 4 + r < 32]
        if j + 4 >= 32: wk = [cmul(G+2*i, G+2*(i-2), w2) for i in range(2, 5)]
        for l in spread(pend, wk): A(l)
        cur, nxt = nxt, (alt if nxt[0] == HT else [HT, HT+2, HT+4, HT+6])
        j += 4
    assert not ex
    wk = [cmul(G+2*i, G+2*(i-2), w2) for i in range(5, 8)] + [cmul(G2+2*k, G+4*k, w256) for k in range(4)] + [cmul(G2+8, G, w512)]
    for l in spread([put(G+2*i, GR+i, True) for i in range(8)], wk): A(l)
    wk = [cmul(G2+10, G+8, w512), cmul(G2+12, G2, w512), cmul(G2+14, G2+4, w512), cmul(G, G2+8, w512), cmul(G+2, G2+12, w512), cmul(G+4, G, w512), cmul(G+6, G+2, w512), cmul(G+8, G+4, w512)]
    for l in spread([put(G2+2*i, GR+8+i, True) for i in range(8)], wk): A(l)
    for l in spread([put(G+2*i, GR+16+i, True) for i in range(5)], []): A(l)
    P.stamp(4)
    A(f"s_cmp_ge_u32 s36, 4\ns_cbranch_scc1 {nw}")
    vACC, vEA, FR, TA_ = 8, 30, 100, 44
    tabprep = [f"s_lshl_b32 s46, s36, 15", f"v_lshl_add_u32 v4, v{vJ}, 2, s46", f"v_mul_u32_u24 v5, {4*TP}, v{vG}", "v_add_u32 v5, v5, v4", f"v_xor_b32 v7, 1, v{vG}"]
    tmin = []
    for b in range(4):
        o0 = 2 * b * TP + 128; o1 = 4 * (b & 1) * TP + 256 + 128 * (b >> 1)
        tabprep += [f"v_mul_u32_u24 v{TA_+b}, {abs(o1-o0)}, v{vG if o1 > o0 else 7}", f"v_add_u32 v{TA_+b}, v{TA_+b}, v4"]
        tmin.append(min(o0, o1))
    tabprep += [f"v_lshl_add_u32 v{TA_+4}, v{vG}, 9, v4", "s_waitcnt vmcnt(0)"]
    for r in range(11):
        tabprep += [f"v_and_b32 v{vEA+r}, 0xffff, v{vTB+(r>>1)}" if r % 2 == 0 else f"v_lshrrev_b32 v{vEA+r}, 16, v{vTB+(r>>1)}"]
    tabprep += ["v_cmp_ne_u32 s[44:45], 0, v0", f"v_lshlrev_b32 v6, 4, v0", f"v_add_u32 v6, {KCO+64}, v6", f"v_add_u32 v7, {4*(REG+64)}, v6"]
    A("s_waitcnt lgkmcnt(0)\ns_barrier")
    P.stamp(5)
    def frd(n):
        b = FR + 8 * (n & 7); o = (n >> 3) * REG + 32 * (n & 7)
        return f"ds_read_b128 {v(b,4)}, v{vRA} offset:{GR*GP+o}\nds_read_b128 {v(b+4,4)}, v{vRA} offset:{o}"
    for n in range(6): A(frd(n))
    for n in range(16):
        b0 = FR + 8 * (n & 7)
        A(f"s_waitcnt lgkmcnt({2*min(5, 15-n)})\nv_mfma_f32_32x32x16_bf16 {v(vACC,16)}, {v(b0,4)}, {v(b0+4,4)}, {'0' if n == 0 else v(vACC,16)}")
        if n + 6 < 16: A(frd(n + 6))
        for l in tabprep[2*n:2*n+2]: A(l)
    assert len(tabprep) <= 32
    for b in range(4): A(f"ds_write_b32 v5, v{vACC+b} offset:{TP*b}")
    for b in range(4): A(f"ds_write_b32 v{TA_+b}, v{vACC+4+b} offset:{tmin[b]}")
    A(f"s_mov_b32 exec_hi, 1\nds_write_b32 v{TA_+4}, v{vACC+8} offset:512\ns_mov_b32 exec_hi, 0")
    for b in range(1, 4): A(f"ds_write_b32 v{TA_+4}, v{vACC+8+b} offset:{512+128*b}")
    A("s_mov_b32 exec_hi, -1\ns_waitcnt lgkmcnt(0)\ns_barrier")
    P.stamp(6)
    EV, CB = 100, 44
    for r in range(11): A(f"ds_read2st64_b32 {v(EV+2*r,2)}, v{vEA+r} offset0:0 offset1:128\nv_add_u32 v{vEA+r}, 0x10000, v{vEA+r}")
    for r in range(11): A(f"ds_read2st64_b32 {v(EV+22+2*r,2)}, v{vEA+r} offset0:0 offset1:128")
    for c in range(2):
        E = EV + 22 * c
        A(f"s_waitcnt lgkmcnt({11 if c == 0 else 4})")
        for r in range(11): A(f"v_add_f32 v{E+2*r}, v{E+2*r}, v{E+2*r+1}")
        for r in range(3): A(f"v_cndmask_b32 v{E+2*r}, 0, v{E+2*r}, s[44:45]")
        for cp in range(4):
            b = CB + 16 * c + 4 * cp
            for k in range(4):
                r0 = 3 - cp + 2 * k
                A(f"v_cvt_pk_bf16_f32 v{b+k}, v{E+2*r0}, v{E+2*r0+2}")
            A(f"ds_write_b128 v{6+c}, {v(b,4)} offset:{cp*(REG+64)}")
    vW, vR, vO = 97, 98, 99
    A(f"""
    s_lshl_b32 s46, s36, 15
    v_lshl_add_u32 v{vW}, v{vLane}, 4, s46
    v_xor_b32 v{vR}, 0x8000, v{vW}
    s_lshl_b32 s46, s40, 10
    v_add_u32 v{vR}, s46, v{vR}
    s_lshl_b32 s47, s39, 15
    s_add_u32 s47, s47, s46
    s_add_u32 s47, s47, {REG}
    v_lshl_add_u32 v3, v{vLane}, 4, s47
    s_lshl_b32 s46, s37, 1
    s_add_u32 s46, s46, s39
    s_lshl_b32 s46, s46, 12
    s_lshl_b32 s47, s40, 9
    s_add_u32 s46, s46, s47
    s_add_u32 s46, s46, {WS_HT}
    v_and_b32 v4, 15, v0
    v_bfe_u32 v5, v0, 4, 2
    v_lshlrev_b32 v4, 5, v4
    v_lshl_add_u32 v4, v5, 3, v4
    v_add_u32 v{vO}, s46, v4
    s_cmp_eq_u32 s40, 0
    s_cselect_b64 s[48:49], 0, -1
    s_cselect_b64 s[50:51], -1, 0
    """)
    P.stamp(7)
    A("s_waitcnt lgkmcnt(0)\ns_barrier")
    P.stamp(8)
    AC = 8
    FBs = [40 + 8 * k for k in range(6)] + [100 + 8 * k for k in range(6)]
    def rd(Gi):
        r, n = Gi >> 3, Gi & 7
        b = FBs[Gi % 12]
        return [f"ds_read_b64 {v(b,2)}, v{vA} offset:{512*n+64*r}", f"ds_read_b64 {v(b+2,2)}, v{vA} offset:{512*n+64*r+8}",
                f"ds_read_b128 {v(b+4,4)}, v{vB} offset:{512*n+64*(3-r)}"]
    def send(t): return f"s_mov_b64 exec, s[{48+2*(t&1)}:{49+2*(t&1)}]\nds_write_b128 v{vW}, {v(AC+4*t,4)} offset:{1024*t}\ns_mov_b64 exec, -1"
    for Gi in range(4):
        for l in rd(Gi): A(l)
    started = set()
    for Gi in range(32):
        r, n = Gi >> 3, Gi & 7
        pairs = [(a, b) for a in range(n + 1) for b in range(n + 1) if max(a, b) == n and a + b <= 7]
        pairs.sort(key=lambda p: p[0] + p[1])
        nr = rd(Gi + 4) if Gi + 4 < 32 else []
        if Gi <= 28: A(f"s_waitcnt lgkmcnt({9 if Gi < 28 else 0})")
        for k, (a, b) in enumerate(pairs):
            t = a + b
            c = v(AC + 4 * t, 4) if t in started else "0"
            started.add(t)
            A(f"v_mfma_f32_16x16x32_bf16 {v(AC+4*t,4)}, {v(FBs[(8*r+a)%12],4)}, {v(FBs[(8*r+b)%12]+4,4)}, {c}")
            if nr: A(nr.pop(0))
            if Gi == 28 and k in (0, 2, 4, 6): A(send(k // 2))
            if Gi in (29, 30) and k == 1: A(send(n - 1))
        for l in nr: A(l)
    A(send(6)); A(send(7))
    P.stamp(9)
    A("s_waitcnt lgkmcnt(0)\ns_barrier")
    PR, PP = 40, 56
    for q in range(4): A(f"ds_read_b128 {v(PR+4*q,4)}, v{vR} offset:{2048*q}\nds_read_b128 {v(PP+4*q,4)}, v3 offset:{2048*q}")
    odd = A.label("K1odd"); jn = A.label("K1jn")
    A(f"s_cmp_eq_u32 s40, 1\ns_cbranch_scc1 {odd}")
    for par in range(2):
        if par: A(f"{odd}:")
        for q in range(4):
            A(f"s_waitcnt lgkmcnt({6-2*q})")
            k = AC + 4 * (2 * q + par)
            for h in range(2): A(f"v_pk_add_f32 {v(PR+4*q+2*h,2)}, {v(PR+4*q+2*h,2)}, {v(k+2*h,2)}")
            for h in range(2): A(f"v_pk_add_f32 {v(PR+4*q+2*h,2)}, {v(PR+4*q+2*h,2)}, {v(PP+4*q+2*h,2)}")
            A(f"v_cvt_pk_bf16_f32 v{PR+4*q}, v{PR+4*q}, v{PR+4*q+1}\nv_cvt_pk_bf16_f32 v{PR+4*q+1}, v{PR+4*q+2}, v{PR+4*q+3}")
            A(f"global_store_dwordx2 v{vO}, {v(PR+4*q,2)}, s[30:31] offset:{1024*q} {hstore}")
        if not par: A(f"s_branch {jn}")
    A(f"{jn}:")
    P.stamp(10); P.flush(11)
    A("s_endpgm")
    A(f".p2align 3\n{nw}:")
    vPX, vPS, vPA = 100, 116, 8
    srd(A, 64, 30, XG_BYTES, WS_XG)
    A(f"s_and_b32 s46, s36, 3\ns_lshl_b32 s47, s46, 12\nv_lshl_add_u32 v{vPA}, v{vLane}, 4, s47\ns_lshl_b32 s44, s37, 14\ns_mov_b32 s45, 0")
    def poll_issue():
        for q in range(4): A(f"buffer_load_dwordx4 {v(vPX+4*q,4)}, v{vPA}, s[64:67], s44 offen offset:{1024*q} sc1")
        for q in range(4): A(f"global_load_dwordx4 {v(vPS+4*q,4)}, v{vPA}, s[30:31] offset:{1024*q} sc1")
    A("s_waitcnt lgkmcnt(0)\ns_barrier")
    P.stamp(5)
    if poll_late: A(f"s_sleep {poll_late}")
    poll_issue()
    A(f"""
    v_mov_b32 v11, {TAGA}
    ds_read_b32 v11, v11
    s_lshl_b32 s47, s46, 10
    s_add_u32 s47, s47, {UO+512}
    v_xor_b32 v9, 3, v{vLane}
    v_lshl_add_u32 v9, v9, 2, s47
    s_lshl_b32 s47, s46, 11
    s_add_u32 s47, s47, {REG}
    v_lshrrev_b32 v5, 3, v{vLane}
    v_lshl_add_u32 v5, v5, 4, s47
    v_bfe_u32 v6, v{vLane}, 1, 2
    v_lshl_add_u32 v5, v6, 8, v5
    v_and_b32 v6, 1, v{vLane}
    v_lshl_add_u32 v10, v6, 3, v5
    """)
    def check():
        A(f"s_waitcnt vmcnt(0) lgkmcnt(0)\nv_min3_u32 v4, v{vPX+1}, v{vPX+3}, v11\nv_max3_u32 v5, v{vPX+1}, v{vPX+3}, v11")
        for q in range(1, 8): A(f"v_min3_u32 v4, v4, v{vPX+4*q+1}, v{vPX+4*q+3}\nv_max3_u32 v5, v5, v{vPX+4*q+1}, v{vPX+4*q+3}")
        A("v_cmp_ne_u32 vcc, v4, v5")
    if early:
        check()
        A("s_cbranch_vccz K1e1")
        poll_issue()
        A("K1e1:")
    A("s_barrier")
    P.stamp(6)
    pl = A.label("K1poll"); ok = A.label("K1ok")
    A(f"{pl}:\ns_waitcnt vmcnt(0) lgkmcnt(0)\nv_min3_u32 v4, v{vPX+1}, v{vPX+3}, v11\nv_max3_u32 v5, v{vPX+1}, v{vPX+3}, v11")
    for q in range(1, 8): A(f"v_min3_u32 v4, v4, v{vPX+4*q+1}, v{vPX+4*q+3}\nv_max3_u32 v5, v5, v{vPX+4*q+1}, v{vPX+4*q+3}")
    A(f"v_cmp_ne_u32 vcc, v4, v5\ns_cbranch_vccz {ok}\ns_add_u32 s45, s45, 1\ns_cmp_gt_u32 s45, {SPIN}\ns_cbranch_scc1 {ok}")
    poll_issue()
    A(f"s_branch {pl}\n{ok}:\ns_setprio 2")
    P.stamp(7)
    NU, PRE, UB = 16, 32, 48
    for half in range(2):
        st = []
        for r in range(4 * half, 4 * half + 4):
            S = vPS + 2 * r; X = vPX + 2 * r
            t = 60 + 4 * (r & 3)
            st.append([f"v_and_b32 v{t+2}, s43, v{S}", f"v_rcp_f32 v{t+2}, v{t+2}", f"v_lshlrev_b32 v{t}, 16, v{S}",
                  f"v_lshlrev_b32 v{PRE+2*r}, 16, v{X}", f"v_and_b32 v{PRE+2*r+1}, s43, v{X}",
                  f"v_pk_add_f32 {v(NU+2*r,2)}, {v(PRE+2*r,2)}, {v(t,2)} op_sel_hi:[1,0] neg_lo:[0,1] neg_hi:[0,1]",
                  f"v_cvt_pk_bf16_f32 v{NU+2*r+1}, v{NU+2*r}, v{NU+2*r+1}",
                  f"v_lshlrev_b32 v{NU+2*r}, 16, v{NU+2*r+1}", f"v_and_b32 v{NU+2*r+1}, s43, v{NU+2*r+1}",
                  f"v_pk_mul_f32 {v(NU+2*r,2)}, {v(NU+2*r,2)}, {v(t+2,2)} op_sel_hi:[1,0]"])
        for l in merge(*st): A(l)
        for c in range(2):
            for k in (2 * half, 2 * half + 1): A(f"v_cvt_pk_bf16_f32 v{UB+4*c+k}, v{NU+4*k+2+c}, v{NU+4*k+c}")
            A(f"ds_write2st64_b32 v9, v{UB+4*c+2*half}, v{UB+4*c+2*half+1} offset0:{c*UPITCH//256+2*half} offset1:{c*UPITCH//256+2*half+1}")
    A("s_setprio 0\ns_waitcnt lgkmcnt(0)\ns_barrier")
    P.stamp(8)
    PO = 60
    for c in range(2):
        for k in range(4):
            A(f"v_lshlrev_b32 v4, 16, v{UB+4*c+k}\nv_and_b32 v5, s43, v{UB+4*c+k}")
            A(f"v_fma_f32 v{PO+8*c+2*k+1}, v4, s{58+c}, v{PRE+4*k+2+c}\nv_fma_f32 v{PO+8*c+2*k}, v5, s{58+c}, v{PRE+4*k+c}")
            A(f"ds_write_b64 v10, {v(PO+8*c+2*k,2)} offset:{2*REG*c+1024*(k>>1)+128*(k&1)}")
    nb = A.label("K1nb")
    A(f"""
    s_lshl_b32 s46, s2, 3
    s_add_u32 s46, s46, s36
    s_cmp_lg_u32 s46, 4
    s_cbranch_scc1 {nb}
    v_mov_b32 v4, {WS_E}
    s_mov_b64 exec, 1
    global_store_dword v4, v11, s[30:31]
    s_mov_b64 exec, -1
    {nb}:
    """)
    if pf2 & 3:
        A(f"""
        s_lshr_b32 s46, s2, 3
        s_cmp_ge_u32 s46, 14
        s_cselect_b32 s68, s22, s20
        s_cselect_b32 s69, s23, s21
        s_cselect_b32 s47, 14, 0
        s_sub_u32 s47, s46, s47
        s_mul_i32 s47, s47, {32*3584}
        s_and_b32 s48, s2, 1
        s_mul_i32 s48, s48, 1792
        s_add_u32 s47, s47, s48
        v_bfe_u32 v4, v0, 3, 5
        v_mul_u32_u24 v4, 3584, v4
        v_and_b32 v5, 7, v0
        v_min_u32 v5, 6, v5
        v_lshl_add_u32 v4, v5, 8, v4
        v_add_u32 v4, s47, v4
        """)
        if pf2 & 1: A("global_load_dword v128, v4, s[68:69]")
        if pf2 & 2: A("global_load_dword v129, v4, s[68:69] offset:128")
    P.stamp(9)
    A("s_waitcnt lgkmcnt(0)\ns_barrier")
    P.flush(10)
    A("s_endpgm")
    A(f".p2align 3\n{auxt}:")
    PA.stamp(1)
    srd(A, 64, 30, XG_BYTES, WS_XG)
    A(f"""
    v_and_b32 v4, 15, v{vLane}
    v_lshrrev_b32 v5, 4, v{vLane}
    v_lshl_add_u32 v6, v4, 8, s46
    v_lshl_add_u32 v6, v5, 2, v6
    v_and_b32 v7, 7, v4
    v_lshl_add_u32 v6, v7, 4, v6
    v_lshlrev_b32 v9, 14, v5
    v_lshl_add_u32 v9, v4, 4, v9
    v_mov_b32 v44, 0
    v_mov_b32 v45, 0
    s_mul_i32 s46, s36, {UPITCH}
    s_add_u32 s46, s46, {UO}
    v_lshl_add_u32 v3, v{vLane}, 3, s46
    ds_write_b64 v3, v[44:45]
    s_lshl_b32 s46, s36, 2
    s_add_u32 s46, s46, {TAGA}
    v_mov_b32 v2, s46
    """)
    for k in range(1, 8): A(f"v_xor_b32 v{80+k}, {16*k}, v6")
    A("s_waitcnt lgkmcnt(0)\ns_mul_i32 s57, s57, 0x9e3779b1\ns_add_u32 s57, s57, 0x7f4a7c15")
    for k in range(16): A(f"v_mov_b32 v{vXG+2*k+1}, s57")
    A(f"s_mov_b64 exec, 1\nds_write_b32 v2, v{vXG+1}\ns_mov_b64 exec, -1\ns_waitcnt vmcnt(0)")
    PA.stamp(2)
    for k in range(8):
        ad = 6 if k == 0 else 80 + k
        A(f"ds_read_b32 v{vXG+4*k}, v{ad}\nds_read_b32 v{vXG+4*k+2}, v{ad} offset:128")
    for k in range(8):
        A(f"s_waitcnt lgkmcnt({14-2*k})\nbuffer_store_dwordx4 {v(vXG+4*k,4)}, v9, s[64:67], s51 offen sc0 sc1")
        if k < 7: A(f"s_add_u32 s51, s51, {4*16384}")
    PA.stamp(3)
    A("s_setprio 0")
    if pf2 & 4:
        A(f"""
        s_lshl_b32 s46, s2, 1
        s_add_u32 s46, s46, s36
        s_mul_i32 s46, s46, {28*128}
        v_min_u32 v5, 27, v{vLane}
        v_lshl_add_u32 v5, v5, 7, s46
        global_load_dword v11, v5, s[24:25]
        """)
    A(f"""
    v_lshrrev_b32 v4, 4, v{vLane}
    v_lshl_add_u32 v4, s36, 2, v4
    v_mul_u32_u24 v4, {REG+64}, v4
    v_and_b32 v5, 15, v{vLane}
    v_lshl_add_u32 v4, v5, 2, v4
    s_barrier
    s_barrier
    ds_write_b32 v4, v44 offset:{KCO}
    s_waitcnt lgkmcnt(0)
    s_barrier
    """)
    PA.flush(4)
    A(f"s_endpgm\n.p2align 3\n{auxs}:")
    PA.stamp(1)
    a0 = 90
    A(f"s_mov_b32 s42, 0x3f803f80\nv_and_b32 v4, 56, v{vLane}\ns_lshl_b32 s46, s47, 6\nv_add_u32 v4, s46, v4\nv_mov_b32 v2, {TAGA}")
    A("s_waitcnt lgkmcnt(0)\ns_mul_i32 s57, s57, 0x9e3779b1\ns_add_u32 s57, s57, 0x7f4a7c15\ns_mov_b32 s45, 0")
    for i in range(28):
        z = i < 2
        if i % 4 == 0: A(f"s_waitcnt vmcnt({6-i//4})")
        if i == 4: PA.stamp(2)
        if i == 24: A("ds_read_b64 v[6:7], v2")
        A(f"v_dot2_f32_bf16 v{a0+(i&1)}, v{vRow+i}, s42, {'0' if z else 'v%d' % (a0+(i&1))}")
        A(f"v_dot2_f32_bf16 v{a0+2+(i&1)}, v{vRow+i}, v{vRow+i}, {'0' if z else 'v%d' % (a0+2+(i&1))}")
    A(f"v_add_f32 v{a0}, v{a0}, v{a0+1}\nv_add_f32 v{a0+2}, v{a0+2}, v{a0+3}")
    for op in ("quad_perm:[1,0,3,2]", "quad_perm:[2,3,0,1]", "row_half_mirror"):
        A(f"v_add_f32_dpp v{a0}, v{a0}, v{a0} {op}{DPP}\nv_add_f32_dpp v{a0+2}, v{a0+2}, v{a0+2} {op}{DPP}")
    A(f"""
    v_mul_f32 v{a0}, {f32(1.0/448)}, v{a0}
    v_mul_f32 v{a0+2}, {f32(1.0/448)}, v{a0+2}
    v_fma_f32 v{a0+2}, -v{a0}, v{a0}, v{a0+2}
    v_max_f32 v{a0+2}, 0, v{a0+2}
    v_cvt_pk_bf16_f32 v{a0+2}, v{a0+2}, v{a0+2}
    v_and_b32 v{a0+2}, s43, v{a0+2}
    v_add_f32 v{a0+2}, {f32(1e-5)}, v{a0+2}
    v_cvt_pk_bf16_f32 v{a0+2}, v{a0+2}, v{a0+2}
    v_and_b32 v{a0+2}, s43, v{a0+2}
    v_sqrt_f32 v{a0+2}, v{a0+2}
    v_mov_b32 v{a0+1}, s57
    v_cvt_pk_bf16_f32 v{a0}, v{a0}, v{a0+2}
    K1tg:
    s_waitcnt lgkmcnt(0)
    v_xor_b32 v6, s57, v6
    v_xor_b32 v7, s57, v7
    v_or_b32 v6, v6, v7
    v_cmp_ne_u32 vcc, 0, v6
    s_cbranch_vccz K1tg2
    ds_read_b64 v[6:7], v2
    s_add_u32 s45, s45, 1
    s_cmp_lt_u32 s45, {SPIN}
    s_cbranch_scc1 K1tg
    K1tg2:
    s_mov_b32 exec_lo, 0x01010101
    s_mov_b32 exec_hi, 0x01010101
    global_store_dwordx2 v4, {v(a0,2)}, s[30:31] sc0 sc1
    s_mov_b64 exec, -1
    """)
    PA.stamp(3)
    A("s_barrier\ns_barrier\ns_barrier")
    PA.flush(4)
    A(f"{end}:\ns_endpgm")
    A(f".p2align 3\n{hlp}:")
    gen_helper(A, P)
    def rnd(l):
        u = np.float32(max(l, 0)).view(np.uint32)
        u = (int(u) + 0x7FFF + ((int(u) >> 16) & 1)) & 0xFFFF0000
        return int(np.uint32(u).view(np.float32))
    ad = [[(rnd(8 * b - 3 + r) & 7) * TP + (rnd(8 * b - 3 + r) >> 3) * 4 for r in range(12)] for b in range(256)]
    A(f".p2align 7\n.type {tab},@object\n{tab}:")
    for b in range(256): A(".long " + ", ".join("0x%08x" % (ad[b][2*k] | ad[b][2*k+1] << 16) for k in range(4)))
    for b in range(256): A(".long " + ", ".join("0x%08x" % (ad[b][2*k] | ad[b][2*k+1] << 16) for k in range(4, 6)))
    A(f".size {tab}, {256*24}")
    return kernel_desc(name, 168, 100)
```

```python
from exp import *
H = "sc0 sc1"
variant("na", prof=False, k1kw=dict(hstore=H))
variant("nb", prof=False, k1kw=dict(hstore=H, poll_late=6))
variant("nc", prof=False, k1kw=dict(hstore=H, poll_late=10))
variant("nd", prof=False, k1kw=dict(hstore="", poll_late=6))
```

```python
from base import *
import base
from ka import load_ptrs, cmul, cexp
import numpy as np
WS_E = 0x4000
WS_XG = 0xA00000
XG_BYTES = 224 * 16384
REG = 16384
TP, GP = 1056, 272
KP = 4160
KB0 = 8704
UO, UPITCH = 74240, 4608
PARO = 98304
XT = 140288
TAGA = XT + 8192
BLK = 8192
NSL = 20
CON = 19 * BLK
F_LDS = NSL * BLK
GK0 = -2.0 * LOG2E * 0.7978845608028654
GK1 = GK0 * 0.044715
SPIN = 1 << 18

class Cfg:
    code_bytes = 49152
    prio_mid = 26
    poll_late = 6
    e1_first, e1_last = 15, 21
    e1_packed = False
    drain0 = (23, 25)
    poll0 = 27
    tdepth, tdepth2 = 14, 14
    gate_ahead = {28: 2, 42: 10}
    g2_blockwise = True
    pollT1 = (24, 30)
    capP = 8
    caps = {}
    gat_issue, gat_check = 7, 9
    con_write = 11
    il = 2
    stflag = 'sc0 sc1'
    prioB = 2
    h0 = 5
    hiss = (2, 1, 2, 1, 1, 1, 1)
    ca_load = 6
    hdepth = 1
    fdepth = None
    x_delay = 0
    x_force = False
    backoff = 0
    rep_one = False
    x_nocs = False
    sweepW = True
    sweepD = True
    x_fine = None
    phase = 1

def schedule(c):
    need = {("W", s): s for s in range(28)}
    last_use = {("W", s): s + 1 for s in range(28)}
    for t in range(28): last_use[("D", t)] = 1000
    free_at = {sl: (16 + sl if sl < 14 else -1) for sl in range(NSL)}
    slot = {}
    issue = {i: [] for i in range(-1, 29)}
    n = dict(W=0, D=0)
    cur = None
    def pick(i):
        nW, nD = n["W"], n["D"]
        wf = [sl for sl in range(14, NSL) if free_at[sl] <= i and (sl != 19 or i >= 15 or nW + 1 < c.con_write)]
        if nW < 28 and wf: return ("W", nW), wf[0]
        fr = [sl for sl in range(NSL) if free_at[sl] <= i and (sl < 14 or nW == 28)]
        if fr and nD < 14: return ("D", nD), fr[0]
        return None
    for i in range(-1, 29):
        cap = 24 if i < 0 else c.caps.get(i, c.capP)
        while cap > 0:
            if cur is None:
                p = pick(i)
                if p is None: break
                b, sl = p
                slot[b] = sl; free_at[sl] = last_use[b] + 1; n[b[0]] += 1
                cur = [b, 0]
            issue[i].append((cur[0][0], cur[0][1], cur[1])); cur[1] += 1; cap -= 1
            if cur[1] == 4: cur = None
    assert n["D"] == 14 and cur is None
    rest = [sl for sl in range(NSL) if free_at[sl] < 1000]
    assert len(rest) == 6
    for k, sl in enumerate(rest): slot[("D", 14 + k)] = sl
    for t in range(20, 28): slot[("D", t)] = slot[("D", t - 20)]
    order = [b for i in range(0, 29) for b in issue[i]]
    pos = {b: k for k, b in enumerate(order)}
    wait = {}
    cnt = 0
    for i in range(0, 29):
        cnt += len(issue[i])
        req = [b for b in need if need[b] == i + 1 and b + (3,) in pos]
        wait[i] = None if not req else cnt - 1 - max(pos[b + (3,)] for b in req)
        if i == 28: wait[i] = cnt - 1 - pos[("D", 7, 3)]
        assert wait[i] is None or wait[i] >= 0, (i, req)
    return issue, slot, wait

def gen_helper(A, c, P):
    sweep = A.label("Hsw")
    A(f"""
    s_sub_u32 s44, s2, 224
    s_lshr_b32 s45, s44, 3
    s_bfe_u32 s46, s44, 0x20001
    s_lshl_b32 s46, s46, 2
    s_add_u32 s46, s46, s45
    s_and_b32 s44, s44, 1
    s_waitcnt lgkmcnt(0)
    s_cmp_ge_u32 s46, 14
    s_cbranch_scc1 {sweep}
    v_and_b32 v1, 15, v0
    v_lshrrev_b32 v2, 4, v0
    v_mul_u32_u24 v2, 3584, v2
    v_lshl_add_u32 v2, v1, 4, v2
    s_cmp_ge_u32 s46, 7
    s_cselect_b32 s47, 7, 0
    s_cselect_b32 s48, s22, s20
    s_cselect_b32 s49, s23, s21
    s_sub_u32 s46, s46, s47
    s_mul_i32 s50, s44, 7
    s_add_u32 s46, s46, s50
    s_lshl_b32 s47, s47, 1
    s_add_u32 s52, s46, s47
    s_lshl_b32 s47, s46, 8
    s_mov_b32 s50, {W_BYTES}
    s_mov_b32 s51, 0x20000
    """)
    for p in range(14):
        A(f"buffer_load_dwordx4 {v(16+4*p,4)}, v2, s[48:51], s47 offen")
        if p < 13: A("s_add_u32 s47, s47, %d" % (32 * 3584))
    A("s_mov_b32 s42, 0x00003f80\ns_mov_b32 s43, 0x3f800000")
    for p in range(14):
        A(f"s_waitcnt vmcnt({13-p})")
        for q in range(4):
            for hl in range(2):
                acc = 4 + 2 * q + hl
                A(f"v_dot2_f32_bf16 v{acc}, v{16+4*p+q}, s{42+hl}, {'0' if p == 0 else 'v%d' % acc}")
    for op in ("v_permlane16_swap_b32", "v_permlane32_swap_b32"):
        for q in range(8): A(f"v_mov_b32 v{16+q}, v{4+q}")
        for q in range(8): A(f"{op} v{4+q}, v{16+q}")
        for q in range(8): A(f"v_add_f32 v{4+q}, v{4+q}, v{16+q}")
    A(f"""
    v_lshrrev_b32 v2, 6, v0
    v_lshlrev_b32 v2, 9, v2
    v_lshl_add_u32 v2, v1, 5, v2
    s_mov_b64 exec, 0xffff
    ds_write_b128 v2, v[4:7]
    ds_write_b128 v2, v[8:11] offset:16
    s_mov_b64 exec, -1
    s_waitcnt lgkmcnt(0)
    s_barrier
    s_cmp_ge_u32 s36, 2
    s_cbranch_scc1 {sweep}
    v_lshlrev_b32 v1, 2, v0
    ds_read2st64_b32 v[4:5], v1 offset0:0 offset1:2
    ds_read2st64_b32 v[6:7], v1 offset0:4 offset1:6
    ds_read2st64_b32 v[8:9], v1 offset0:8 offset1:10
    ds_read2st64_b32 v[10:11], v1 offset0:12 offset1:14
    s_waitcnt lgkmcnt(0)
    v_pk_add_f32 v[4:5], v[4:5], v[6:7]
    v_pk_add_f32 v[8:9], v[8:9], v[10:11]
    v_pk_add_f32 v[4:5], v[4:5], v[8:9]
    v_add_f32 v4, v4, v5
    s_mov_b32 s43, 0xffff0000
    v_cvt_pk_bf16_f32 v5, v4, v4
    v_and_b32 v5, s43, v5
    v_sub_f32 v6, v4, v5
    v_cvt_pk_bf16_f32 v8, v5, v6
    v_and_b32 v7, s43, v8
    v_sub_f32 v6, v6, v7
    v_cvt_pk_bf16_f32 v9, v6, 0
    s_lshl_b32 s46, s52, 10
    s_add_u32 s46, s46, {WS_CS}
    v_lshl_add_u32 v1, v1, 1, s46
    global_store_dwordx2 v1, v[8:9], s[30:31] sc0 sc1
    s_mov_b32 s46, 1
    s_waitcnt vmcnt(0)
    s_atomic_add s46, s[28:29], 0
    {sweep}:
    """)
    P.stamp(1)
    done = A.label("Hdone")
    A(f"""
    s_cmp_ge_u32 s36, 7
    s_cbranch_scc1 {done}
    v_lshrrev_b32 v2, 3, v0
    v_mul_u32_u24 v2, 3584, v2
    v_and_b32 v3, 7, v0
    v_min_u32 v3, 6, v3
    v_lshl_add_u32 v2, v3, 8, v2
    s_mul_i32 s46, s45, {112*3584}
    s_mul_i32 s47, s44, 1792
    s_add_u32 s46, s46, s47
    v_add_u32 v2, s46, v2
    v_add_u32 v3, {56*3584}, v2
    s_mul_i32 s46, s45, {128*896}
    v_lshl_add_u32 v4, v0, 7, s46
    """)
    def wpass(h):
        for m in (20, 22):
            for r in (2, 3): A(f"global_load_dword v8, v{r}, s[{m}:{m+1}] offset:{128*h}\ns_waitcnt vmcnt({c.hdepth})")
    if c.sweepW: wpass(0); wpass(1)
    for k in range(4 if c.sweepD else 0):
        if k == 3: A(f"s_cmp_ge_u32 s45, 2\ns_cbranch_scc1 {done}")
        A(f"global_load_dword v8, v4, s[24:25]\nv_add_u32 v4, {4*128*896}, v4\ns_waitcnt vmcnt({c.hdepth})")
    A(f"{done}:\ns_waitcnt lgkmcnt(0)")
    P.flush(2)
    A("s_endpgm")

def gen(A, name, c=Cfg, verbose=False):
    issue, slot, wait = schedule(c)
    if verbose:
        for i in range(-1, 29): print(i, ' '.join(k + str(j) + '.' + str(q) for k, j, q in issue[i]), wait.get(i))
        print({k: x for k, x in slot.items() if k[0] == "D"})
    kernel_head(A, name)
    end = A.label("end"); hlp = A.label("hlp"); kw_ = A.label("kw"); nw = A.label("nw"); tab = A.label("tab")
    auxt = A.label("auxt"); auxs = A.label("auxs"); til = A.label("til"); hold = A.label("hold")
    P0 = Prof(A, 1)
    class PH:
        def __init__(s, ph, kid=1): s.on = c.phase == ph; s.P = Prof(A, kid)
        def stamp(s, i):
            if s.on: s.P.stamp(i)
    P = PH(1); PA = PH(1, 3)
    class Bars:
        def __init__(s, marks, n1, kid=1): s.n = 0; s.marks = c.x_fine or marks; s.on = c.phase == 2; s.n1 = n1; s.P = Prof(A, kid)
        def bar(s):
            A("s_barrier")
            if s.on and s.n in s.marks: s.P.stamp(1 + s.marks.index(s.n))
            s.n += 1
        def mark(s, k):
            if s.on and not c.x_fine: s.P.stamp(1 + len(s.marks) + k)
        def fin(s, k=0):
            if not s.on: s.P.flush(s.n1); return
            k = 0 if c.x_fine else k
            s.P.stamp(1 + len(s.marks) + k); s.P.flush(2 + len(s.marks) + k)
    A(f"s_cmp_ge_u32 s2, 256\ns_cbranch_scc1 {end}")
    P0.stamp(0)
    load_ptrs(A)
    A(f"s_getpc_b64 s[60:61]\nLpc:")
    vLane, vG, vJ = 1, 2, 3
    per = (c.code_bytes // 128 + 63) // 64
    vRow, vXG = 16, 48
    ffn_ids = """
    s_and_b32 s37, s2, 7
    s_lshr_b32 s38, s2, 3
    s_and_b32 s40, s38, 3
    s_lshr_b32 s39, s37, 1
    s_lshl_b32 s39, s39, 2
    s_add_u32 s39, s39, s40
    s_and_b32 s34, s37, 1
    s_lshr_b32 s35, s38, 2
    s_mul_i32 s38, s34, 7
    s_add_u32 s38, s38, s35
    s_mul_i32 s33, s40, 3
    s_lshl_b32 s37, s35, 1
    s_add_u32 s33, s33, s37
    s_cmp_ge_u32 s33, 14
    s_cselect_b32 s37, 14, 0
    s_sub_u32 s33, s33, s37
    """
    A(f"""
    v_lshrrev_b32 v4, 6, v0
    v_and_b32 v{vLane}, 63, v0
    s_and_b32 s37, s2, 7
    v_readfirstlane_b32 s36, v4
    s_mul_i32 s37, s37, 28
    s_lshr_b32 s38, s2, 3
    s_add_u32 s37, s37, s38
    s_mov_b32 s43, 0xffff0000
    s_cmp_lt_u32 s36, 8
    s_cbranch_scc1 {kw_}
    s_setprio 3
    v_lshrrev_b32 v5, 3, v{vLane}
    v_and_b32 v6, 7, v{vLane}
    v_mul_u32_u24 v7, 896, v5
    s_cmp_lt_u32 s36, 10
    s_cbranch_scc1 {til}
    s_and_b32 s36, s36, 1
    s_lshr_b32 s62, s2, 2
    s_and_b32 s62, s62, 62
    s_add_u32 s62, s62, s36
    s_mul_i32 s62, s62, {per*128}
    v_min_u32 v10, {per-1}, v{vLane}
    v_lshl_add_u32 v10, v10, 7, s62
    v_min_u32 v10, Lcode_end-Lpc-4, v10
    global_load_dword v99, v10, s[60:61]
    s_mul_i32 s47, s36, 224
    s_add_u32 s47, s47, s2
    s_cmp_ge_u32 s2, 224
    s_cbranch_scc1 {end}
    s_mul_i32 s48, s47, {8*896}
    v_lshl_add_u32 v8, v6, 4, v7
    v_add_u32 v8, s48, v8
    s_cmp_ge_u32 s47, 256
    s_waitcnt lgkmcnt(0)
    s_cbranch_scc1 {hold}
    """)
    for i in range(7): A(f"global_load_dwordx4 {v(vRow+4*i,4)}, v8, s[4:5] offset:{128*i}")
    A(f"""
    s_load_dword s57, s[30:31], {WS_E}
    s_branch {auxs}
    {til}:
    s_cmp_ge_u32 s2, 224
    s_cbranch_scc1 {end}
    s_and_b32 s36, s36, 1
    s_mul_i32 s46, s2, 9363
    s_lshr_b32 s46, s46, 16
    s_mul_i32 s47, s46, 7
    s_sub_u32 s47, s2, s47
    s_lshl_b32 s46, s46, 1
    s_add_u32 s46, s46, s36
    s_mul_i32 s49, s46, {32*896}
    s_lshl_b32 s48, s47, 7
    s_add_u32 s49, s49, s48
    s_lshl_b32 s47, s47, 19
    s_lshl_b32 s46, s46, 8
    s_add_u32 s51, s47, s46
    s_lshl_b32 s46, s36, 12
    s_add_u32 s46, s46, {XT}
    s_mov_b32 m0, s46
    v_lshrrev_b32 v4, 1, v5
    v_xor_b32 v4, v4, v6
    v_lshl_add_u32 v12, v4, 4, v7
    v_xor_b32 v4, 4, v4
    v_lshl_add_u32 v13, v4, 4, v7
    v_add_u32 v13, {8*896-1024}, v13
    v_add_u32 v14, {16*896-2048}, v12
    v_add_u32 v15, {16*896-2048}, v13
    s_mov_b32 s34, {X_BYTES}
    s_mov_b32 s35, 0x20000
    s_waitcnt lgkmcnt(0)
    s_mov_b32 s32, s4
    s_mov_b32 s33, s5
    """)
    for i in range(4): A(f"buffer_load_dwordx4 v{12+i}, s[32:35], s49 offen offset:{1024*i} lds")
    A(f"s_load_dword s57, s[30:31], {WS_E}")
    A(f"s_branch {auxt}\n{kw_}:\ns_cmp_ge_u32 s2, 224\ns_cbranch_scc1 {hlp}")
    vP, vDT = 8, 12
    a2, b2 = 14, 15
    w1, w256, w2, w512 = 16, 18, 20, 22
    tA, tB, tC = 24, 26, 28
    G, G2, Hh, W4, HT, CV = 30, 46, 62, 68, 70, 78
    vTB, vA, vBc, vRA = 88, 94, 95, 96
    A(f"""
    v_mov_b32 v{vP}, 0
    v_mov_b32 v{vP+1}, 0
    v_mov_b32 v{vP+2}, 0
    v_mov_b32 v{vP+3}, 0
    s_lshl_b32 s48, s37, 10
    v_lshl_add_u32 v4, v0, 1, s48
    s_lshl_b32 s48, s37, 2
    s_lshl_b32 s56, s36, 14
    s_mov_b32 m0, s56
    s_lshr_b32 s38, s36, 2
    s_add_u32 s62, s60, {tab}-Lpc+2048
    s_addc_u32 s63, s61, 0
    s_waitcnt lgkmcnt(0)
    s_load_dword s52, s[14:15], s48
    global_load_short_d16_hi v{vP}, v4, s[6:7]
    global_load_short_d16_hi v{vP+1}, v4, s[8:9]
    global_load_short_d16_hi v{vP+2}, v4, s[10:11]
    global_load_short_d16_hi v{vP+3}, v4, s[12:13]
    s_load_dword s53, s[16:17], s48
    """)
    P.stamp(1)
    A(f"""
    v_bfe_u32 v{vG}, v0, 5, 1
    v_and_b32 v{vJ}, 31, v0
    s_lshl_b32 s46, s36, 15
    v_mul_u32_u24 v4, {GP}, v{vJ}
    v_lshl_add_u32 v4, v{vG}, 4, v4
    v_add_u32 v{vRA}, s46, v4
    s_bfe_u32 s39, s36, 0x10001
    s_and_b32 s40, s36, 1
    s_lshl_b32 s48, s39, 15
    s_lshl_b32 s47, s40, 8
    s_add_u32 s48, s48, s47
    s_add_u32 s48, s48, {KB0+64-24}
    v_and_b32 v4, 3, v0
    v_sub_u32 v4, 3, v4
    v_mul_u32_u24 v4, {KP}, v4
    v_bfe_u32 v5, v0, 2, 2
    v_lshl_add_u32 v4, v5, 3, v4
    v_bfe_u32 v5, v0, 4, 2
    v_lshl_add_u32 v4, v5, 4, v4
    v_add_u32 v{vA}, s48, v4
    s_mul_i32 s48, s39, {UPITCH}
    s_sub_u32 s48, s48, s47
    s_add_u32 s48, s48, {UO+512+16-192}
    v_and_b32 v4, 15, v0
    v_lshlrev_b32 v4, 5, v4
    v_lshlrev_b32 v5, 4, v5
    v_sub_u32 v4, v4, v5
    v_add_u32 v{vBc}, s48, v4
    s_mov_b32 s54, {f32(8.0)}
    s_mov_b32 s55, {f32(256.0)}
    s_lshl_b32 s46, s38, 4
    v_mov_b32 v{vDT}, {f32(LOG2E)}
    s_cmp_lt_u32 s36, 4
    s_cbranch_scc1 Lnoprio
    s_setprio 1
    Lnoprio:
    s_waitcnt lgkmcnt(0)
    s_lshr_b32 s52, s52, s46
    s_lshl_b32 s52, s52, 16
    v_mul_f32 v{vDT}, s52, v{vDT}
    v_exp_f32 v{vDT}, v{vDT}
    v_cvt_pk_bf16_f32 v{vDT}, v{vDT}, v{vDT}
    v_and_b32 v{vDT}, s43, v{vDT}
    s_and_b32 s59, s53, s43
    s_lshl_b32 s58, s53, 16
    v_add_f32 v6, v{vDT}, v{vDT}
    """)
    P.stamp(2)
    A(f"""
    s_waitcnt vmcnt(2)
    v_mul_f32 v4, {f32(LOG2E)}, v{vP}
    v_exp_f32 v4, v4
    v_mul_f32 v{b2}, v{vP+1}, v{vDT}
    v_cvt_pk_bf16_f32 v4, v4, v4
    v_and_b32 v4, s43, v4
    v_mul_f32 v{a2}, v4, v{vDT}
    v_mul_f32 v{b2}, 0.15915494, v{b2}
    v_mul_f32 v{a2}, {f32(-LOG2E)}, v{a2}
    """)
    P.stamp(3)
    nb_ = [0]
    def put(src, row, neg):
        r = CV + (nb_[0] & 7); nb_[0] += 1
        x = [f"v_cvt_pk_bf16_f32 v{r}, v{src}, {'-' if neg else ''}v{src+1}", f"ds_write_addtid_b32 v{r} offset:{row*GP}"]
        if nb_[0] == c.prio_mid: x[1] += "\ns_setprio 0"
        return x
    def spread(puts, work):
        o = []
        while puts or work:
            p = puts.pop(0) if puts else None
            if p: o.append(p[0])
            if work: o += work.pop(0)
            if p: o.append(p[1])
        return o
    GR = 32
    for l in cexp(Hh, a2, b2, "s54", tA): A(l)
    A(f"v_mov_b32 v{CV+8}, 0x3f80\nds_write_addtid_b32 v{CV+8}")
    for l in cmul(Hh+2, Hh, Hh) + cmul(Hh+4, Hh+2, Hh) + cmul(W4, Hh+2, Hh+2): A(l)
    ex = merge(cexp(w1, a2, b2, None, tB), cexp(w256, a2, b2, "s55", tC))
    ex += ["s_waitcnt vmcnt(0)", f"v_mul_f32 v{G}, v{vP+2}, v6", f"v_mul_f32 v{G+1}, v{vP+3}, v6",
           "v_min_u32 v5, 255, v0\nv_lshlrev_b32 v6, 4, v5", "v_lshlrev_b32 v5, 3, v5",
           f"global_load_dwordx4 {v(vTB,4)}, v6, s[62:63] offset:-2048", f"global_load_dwordx2 {v(vTB+4,2)}, v5, s[62:63] offset:2048"]
    ex += cmul(w2, w1, w1) + cmul(G+2, G, w1) + cmul(w512, w256, w256)
    cur = [Hh, Hh+2, Hh+4, W4]; nxt = [HT, HT+2, HT+4, HT+6]; alt = [G2, G2+2, G2+4, G2+6]
    j = 1
    while j < 32:
        pend = [put(cur[r], j + r, False) for r in range(4) if j + r < 32]
        wk = [cmul(nxt[r], cur[r], W4) + [ex.pop(0) for _ in range(1) if ex] for r in range(4) if j + 4 + r < 32]
        if j + 4 >= 32: wk = [cmul(G+2*i, G+2*(i-2), w2) for i in range(2, 5)]
        for l in spread(pend, wk): A(l)
        cur, nxt = nxt, (alt if nxt[0] == HT else [HT, HT+2, HT+4, HT+6])
        j += 4
    assert not ex
    wk = [cmul(G+2*i, G+2*(i-2), w2) for i in range(5, 8)] + [cmul(G2+2*k, G+4*k, w256) for k in range(4)] + [cmul(G2+8, G, w512)]
    for l in spread([put(G+2*i, GR+i, True) for i in range(8)], wk): A(l)
    wk = [cmul(G2+10, G+8, w512), cmul(G2+12, G2, w512), cmul(G2+14, G2+4, w512), cmul(G, G2+8, w512), cmul(G+2, G2+12, w512), cmul(G+4, G, w512), cmul(G+6, G+2, w512), cmul(G+8, G+4, w512)]
    for l in spread([put(G2+2*i, GR+8+i, True) for i in range(8)], wk): A(l)
    for l in spread([put(G+2*i, GR+16+i, True) for i in range(5)], []): A(l)
    P.stamp(4)
    A(f"s_cmp_ge_u32 s36, 4\ns_cbranch_scc1 {nw}")
    vACC, vEA, FR, TA_ = 8, 30, 100, 44
    tabprep = [f"s_lshl_b32 s46, s36, 15", f"v_lshl_add_u32 v4, v{vJ}, 2, s46", f"v_mul_u32_u24 v5, {4*TP}, v{vG}", "v_add_u32 v5, v5, v4", f"v_xor_b32 v7, 1, v{vG}"]
    tmin = []
    for b in range(4):
        o0 = 2 * b * TP + 128; o1 = 4 * (b & 1) * TP + 256 + 128 * (b >> 1)
        tabprep += [f"v_mul_u32_u24 v{TA_+b}, {abs(o1-o0)}, v{vG if o1 > o0 else 7}", f"v_add_u32 v{TA_+b}, v{TA_+b}, v4"]
        tmin.append(min(o0, o1))
    tabprep += [f"v_lshl_add_u32 v{TA_+4}, v{vG}, 9, v4", "s_waitcnt vmcnt(0)"]
    for r in range(11):
        tabprep += [f"v_and_b32 v{vEA+r}, 0xffff, v{vTB+(r>>1)}" if r % 2 == 0 else f"v_lshrrev_b32 v{vEA+r}, 16, v{vTB+(r>>1)}"]
    tabprep += ["v_cmp_ne_u32 s[44:45], 0, v0", f"v_lshlrev_b32 v6, 4, v0"]
    A("s_waitcnt lgkmcnt(0)\ns_barrier")
    P.stamp(5)
    def frd(n):
        b = FR + 8 * (n & 7); o = (n >> 3) * REG + 32 * (n & 7)
        return f"ds_read_b128 {v(b,4)}, v{vRA} offset:{GR*GP+o}\nds_read_b128 {v(b+4,4)}, v{vRA} offset:{o}"
    for n in range(6): A(frd(n))
    for n in range(16):
        b0 = FR + 8 * (n & 7)
        A(f"s_waitcnt lgkmcnt({2*min(5, 15-n)})\nv_mfma_f32_32x32x16_bf16 {v(vACC,16)}, {v(b0,4)}, {v(b0+4,4)}, {'0' if n == 0 else v(vACC,16)}")
        if n + 6 < 16: A(frd(n + 6))
        for l in tabprep[2*n:2*n+2]: A(l)
    assert len(tabprep) <= 32
    vW, vR, vO = 97, 98, 99
    A(f"""
    s_lshl_b32 s46, s36, 12
    s_add_u32 s46, s46, {PARO}
    v_lshl_add_u32 v{vW}, v{vLane}, 4, s46
    v_xor_b32 v{vR}, 0x1000, v{vW}
    s_lshl_b32 s46, s40, 10
    s_lshl_b32 s47, s39, 15
    s_add_u32 s47, s47, s46
    v_lshl_add_u32 v3, v{vLane}, 4, s47
    s_cmp_eq_u32 s40, 0
    s_cselect_b64 s[48:49], 0, -1
    s_cselect_b64 s[50:51], -1, 0
    """)
    for b in range(4): A(f"ds_write_b32 v5, v{vACC+b} offset:{TP*b}")
    for b in range(4): A(f"ds_write_b32 v{TA_+b}, v{vACC+4+b} offset:{tmin[b]}")
    A(f"s_mov_b32 exec_hi, 1\nds_write_b32 v{TA_+4}, v{vACC+8} offset:512\ns_mov_b32 exec_hi, 0")
    for b in range(1, 4): A(f"ds_write_b32 v{TA_+4}, v{vACC+8+b} offset:{512+128*b}")
    A("s_mov_b32 exec_hi, -1\ns_waitcnt lgkmcnt(0)\ns_barrier")
    P.stamp(6)
    EV, CB = 100, 44
    for r in range(11): A(f"ds_read2st64_b32 {v(EV+2*r,2)}, v{vEA+r} offset0:0 offset1:128\nv_add_u32 v{vEA+r}, 0x10000, v{vEA+r}")
    for r in range(11): A(f"ds_read2st64_b32 {v(EV+22+2*r,2)}, v{vEA+r} offset0:0 offset1:128")
    for ch in range(2):
        E = EV + 22 * ch
        A(f"s_waitcnt lgkmcnt({11 if ch == 0 else 4})")
        for r in range(11): A(f"v_add_f32 v{E+2*r}, v{E+2*r}, v{E+2*r+1}")
        for r in range(3): A(f"v_cndmask_b32 v{E+2*r}, 0, v{E+2*r}, s[44:45]")
        for cp in range(4):
            b = CB + 16 * ch + 4 * cp
            for k in range(4):
                r0 = 3 - cp + 2 * k
                A(f"v_cvt_pk_bf16_f32 v{b+k}, v{E+2*r0}, v{E+2*r0+2}")
            A(f"ds_write_b128 v6, {v(b,4)} offset:{KB0+64+32768*ch+cp*KP}")
    P.stamp(7)
    A("s_waitcnt lgkmcnt(0)\ns_barrier")
    P.stamp(8)
    AC = 8
    FBs = [40 + 8 * k for k in range(6)] + [100 + 8 * k for k in range(6)]
    def rd(Gi):
        r, n = Gi >> 3, Gi & 7
        b = FBs[Gi % 12]
        return [f"ds_read_b64 {v(b,2)}, v{vA} offset:{512*n+64*r}", f"ds_read_b64 {v(b+2,2)}, v{vA} offset:{512*n+64*r+8}",
                f"ds_read_b128 {v(b+4,4)}, v{vBc} offset:{512*n+64*(3-r)}"]
    def send(t): return f"s_mov_b64 exec, s[{48+2*(t&1)}:{49+2*(t&1)}]\nds_write_b128 v{vW}, {v(AC+4*t,4)} offset:{1024*(t>>1)}\ns_mov_b64 exec, -1"
    for Gi in range(4):
        for l in rd(Gi): A(l)
    A(f"""
    s_lshl_b32 s46, s37, 1
    s_add_u32 s46, s46, s39
    s_lshl_b32 s46, s46, 12
    s_lshl_b32 s47, s40, 9
    s_add_u32 s46, s46, s47
    s_add_u32 s46, s46, {WS_HT}
    v_and_b32 v4, 15, v0
    v_bfe_u32 v5, v0, 4, 2
    v_lshlrev_b32 v4, 5, v4
    v_lshl_add_u32 v4, v5, 3, v4
    v_add_u32 v{vO}, s46, v4
    """)
    started = set()
    for Gi in range(32):
        r, n = Gi >> 3, Gi & 7
        pairs = [(a, b) for a in range(n + 1) for b in range(n + 1) if max(a, b) == n and a + b <= 7]
        pairs.sort(key=lambda p: p[0] + p[1])
        nr = rd(Gi + 4) if Gi + 4 < 32 else []
        if Gi <= 28: A("s_waitcnt lgkmcnt(9)")
        if Gi == 29: A("s_waitcnt lgkmcnt(2)")
        for k, (a, b) in enumerate(pairs):
            t = a + b
            cc = v(AC + 4 * t, 4) if t in started else "0"
            started.add(t)
            A(f"v_mfma_f32_16x16x32_bf16 {v(AC+4*t,4)}, {v(FBs[(8*r+a)%12],4)}, {v(FBs[(8*r+b)%12]+4,4)}, {cc}")
            if nr: A(nr.pop(0))
            if Gi == 28 and k in (0, 2, 4, 6): A(send(k // 2))
            if Gi in (29, 30) and k == 1: A(send(n - 1))
        for l in nr: A(l)
    A(send(6)); A(send(7))
    P.stamp(9)
    A("s_waitcnt lgkmcnt(0)\ns_barrier")
    PR, PP = 100, 116
    for q in range(4): A(f"ds_read_b128 {v(PR+4*q,4)}, v{vR} offset:{1024*q}\nds_read_b128 {v(PP+4*q,4)}, v3 offset:{2048*q}")
    odd = A.label("odd"); jn = A.label("jn")
    A(f"s_cmp_eq_u32 s40, 1\ns_cbranch_scc1 {odd}")
    for par in range(2):
        if par: A(f"{odd}:")
        for q in range(4):
            A(f"s_waitcnt lgkmcnt({6-2*q})")
            k = AC + 4 * (2 * q + par)
            for h in range(2): A(f"v_pk_add_f32 {v(PR+4*q+2*h,2)}, {v(PR+4*q+2*h,2)}, {v(k+2*h,2)}")
            for h in range(2): A(f"v_pk_add_f32 {v(PR+4*q+2*h,2)}, {v(PR+4*q+2*h,2)}, {v(PP+4*q+2*h,2)}")
            A(f"v_cvt_pk_bf16_f32 v{PR+4*q}, v{PR+4*q}, v{PR+4*q+1}\nv_cvt_pk_bf16_f32 v{PR+4*q+1}, v{PR+4*q+2}, v{PR+4*q+3}")
            A(f"global_store_dwordx2 v{vO}, {v(PR+4*q,2)}, s[30:31] offset:{1024*q} sc0 sc1")
        if not par: A(f"s_branch {jn}")
    A(f"{jn}:")
    P.stamp(10)
    vB, vAa, vS, vCR, vCA = 8, 10, 12, 14, 16
    vX = 18
    CN, CA, MB = 24, 32, 38
    F = [48, 64, 80]
    ACC = 96
    T1, T2, OUT = 48, 56, 64
    def csetup():
        A(ffn_ids)
        A(f"""
        s_and_b32 s40, s36, 1
        s_bfe_u32 s41, s36, 0x10001
        s_lshr_b32 s49, s36, 2
        v_bfe_u32 v2, v{vLane}, 2, 2
        v_bfe_u32 v3, v{vLane}, 4, 1
        v_lshrrev_b32 v4, 5, v{vLane}
        v_and_b32 v6, 3, v{vLane}
        v_lshl_add_u32 v5, v4, 3, v2
        v_lshlrev_b32 v7, 8, v5
        v_lshl_add_u32 v7, v6, 3, v7
        v_lshl_add_u32 v7, v3, 5, v7
        s_lshl_b32 s42, s40, 1
        s_add_u32 s42, s42, s41
        v_xor_b32 v{vB}, s42, v2
        v_lshl_add_u32 v{vB}, v{vB}, 6, v7
        v_xor_b32 v{vB+1}, 64, v{vB}
        s_lshl_b32 s42, s34, 1
        s_add_u32 s42, s42, s40
        v_xor_b32 v{vX}, s42, v2
        v_lshl_add_u32 v{vX}, v{vX}, 6, v7
        v_lshlrev_b32 v7, 7, v5
        v_lshl_add_u32 v7, v6, 3, v7
        v_lshl_add_u32 v7, v3, 12, v7
        v_lshrrev_b32 v5, 1, v2
        v_lshl_add_u32 v5, v3, 1, v5
        s_lshl_b32 s42, s41, 1
        v_xor_b32 v5, s42, v5
        v_lshl_add_u32 v7, v5, 5, v7
        v_add_u32 v{vAa}, {14*BLK}, v7
        v_xor_b32 v{vAa+1}, 32, v{vAa}
        s_lshl_b32 s42, s39, 2
        s_lshl_b32 s43, s40, 1
        s_add_u32 s42, s42, s43
        s_add_u32 s43, s42, s41
        s_xor_b32 s44, s43, 1
        s_lshl_b32 s45, s38, 3
        s_lshl_b32 s46, s41, 1
        s_add_u32 s45, s45, s46
        s_lshl_b32 s46, s49, 2
        s_add_u32 s45, s45, s46
        s_lshl_b32 s46, s45, 7
        s_add_u32 s45, s45, {WS_ACT // 1024}
        s_mul_i32 s43, s43, 112
        s_mul_i32 s44, s44, 112
        s_add_u32 s43, s43, s45
        s_add_u32 s44, s44, s45
        s_lshl_b32 s43, s43, 10
        s_lshl_b32 s44, s44, 10
        v_lshl_add_u32 v{vS}, v{vLane}, 4, s43
        v_lshl_add_u32 v{vS+1}, v{vLane}, 4, s44
        v_and_b32 v5, 15, v{vLane}
        v_mul_u32_u24 v7, {F_*8}, v3
        v_lshl_add_u32 v5, v5, 3, v7
        s_add_u32 s46, s46, {WS_CS}
        v_add_u32 v{vCA}, s46, v5
        v_and_b32 v5, 31, v{vLane}
        s_lshl_b32 s42, s40, 1
        s_add_u32 s42, s42, s41
        s_lshl_b32 s43, s42, 9
        s_add_u32 s43, s43, {CON}
        v_lshl_add_u32 v{vCR}, v5, 4, s43
        v_xor_b32 v{vCR+1}, 512, v{vCR}
        s_lshl_b32 s43, s39, 11
        s_lshl_b32 s44, s41, 8
        s_add_u32 s43, s43, s44
        s_add_u32 s43, s43, {WS_FLAGS}
        s_lshl_b32 s44, s34, 10
        s_add_u32 s59, s43, s44
        s_lshl_b32 s44, s40, 10
        s_add_u32 s58, s43, s44
        s_lshl_b32 s44, s49, 9
        s_add_u32 s58, s58, s44
        v_mov_b32 v{CA+4}, 0
        v_mov_b32 v{CA+5}, 0
        v_mov_b32 v{MB+2}, 0
        v_mov_b32 v{MB+3}, 0
        v_mov_b32 v{MB+6}, 0
        v_mov_b32 v{MB+7}, 0
        v_cmp_eq_u32 s[52:53], 0, v4
        s_mov_b32 s47, 0x3f803f80
        s_mov_b32 s48, 0xffff0000
        """)
    caload = [f"global_load_dwordx2 {v(CA,2)}, v{vCA}, s[30:31] sc1", f"global_load_dwordx2 {v(CA+2,2)}, v{vCA}, s[30:31] offset:128 sc1"]
    def preads(p, j):
        s, ks = j >> 1, j & 1
        f = F[j % 3]
        ho = (s % 8) * BLK + 4096 * ks
        wo = (slot[("W", 14 * p + s)] - 14) * BLK + 2048 * ks
        o = []
        for kind, i in (("B", 0), ("A", 0), ("B", 1), ("A", 1)):
            if kind == "B": o += [f"ds_read_b64_tr_b16 {v(f+8+4*i,2)}, v{vB+i} offset:{ho}", f"ds_read_b64_tr_b16 {v(f+10+4*i,2)}, v{vB+i} offset:{ho+1024}"]
            else: o += [f"ds_read_b64_tr_b16 {v(f+4*i,2)}, v{vAa+i} offset:{wo}", f"ds_read_b64_tr_b16 {v(f+2+4*i,2)}, v{vAa+i} offset:{wo+512}"]
        return o
    def pmfma(j, first=False):
        f = F[j % 3]
        return [f"v_mfma_f32_32x32x16_bf16 {v(ACC+32*t+16*rt,16)}, {v(f+4*t,4)}, {v(f+8+4*rt,4)}, {'0' if first else v(ACC+32*t+16*rt,16)}" for (t, rt) in ((0, 0), (0, 1), (1, 0), (1, 1))]
    def corr(first):
        return [f"v_mfma_f32_32x32x16_bf16 {v(ACC+32*t+16*rt,16)}, {v(CA+2*t,4)}, {v(MB+4*rt,4)}, {'0' if first else v(ACC+32*t+16*rt,16)}" for t in range(2) for rt in range(2)]
    mkmb = [f"v_cndmask_b32 v{MB+4*rt+k}, 0, v{CN+4*rt+3}, s[52:53]" for rt in range(2) for k in range(2)]
    def inter(m, r):
        per_ = (len(r) + 3) // 4
        for i in range(4):
            A(m[i])
            for l in r[per_*i:per_*(i+1)]: A(l)
    def pstep(p, s):
        for h in range(2):
            A("s_waitcnt lgkmcnt(8)")
            inter(pmfma(2*s - 2 + h, p == 0 and s == 1 and h == 0), preads(p, 2*s + h))
            if p == 0 and s == c.ca_load: A(caload[h])
        if s == 7: A(f"v_add_u32 v{vB}, 0x10000, v{vB}\nv_add_u32 v{vB+1}, 0x10000, v{vB+1}")
    def epi(t, rt, n, packed):
        a = ACC + 32 * t + 16 * rt
        cn = CN + 4 * rt
        o_ = OUT + 4 * (n & 1)
        L = []
        if packed:
            L += [f"v_pk_mul_f32 {v(T1+2*q,2)}, {v(a+2*q,2)}, {v(a+2*q,2)}" for q in range(4)]
            L += [f"v_pk_fma_f32 {v(T1+2*q,2)}, {v(T1+2*q,2)}, {v(cn,2)}, {v(cn,2)} op_sel:[0,1,0] op_sel_hi:[1,1,0]" for q in range(4)]
            L += [f"v_pk_mul_f32 {v(T1+2*q,2)}, {v(T1+2*q,2)}, {v(a+2*q,2)}" for q in range(4)]
            L += [f"v_exp_f32 v{T1+q}, v{T1+q}" for q in range(8)]
            L += [f"v_pk_mul_f32 {v(T2+2*q,2)}, {v(a+2*q,2)}, {v(a+8+2*q,2)}" for q in range(4)]
            L += [f"v_pk_fma_f32 {v(T1+2*q,2)}, {v(T1+2*q,2)}, {v(cn+2,2)}, {v(cn+2,2)} op_sel_hi:[1,0,0]" for q in range(4)]
            L += [f"v_rcp_f32 v{T1+q}, v{T1+q}" for q in range(8)]
            L += [f"v_pk_mul_f32 {v(T2+2*q,2)}, {v(T2+2*q,2)}, {v(T1+2*q,2)}" for q in range(4)]
            L += [f"v_cvt_pk_bf16_f32 v{o_+q}, v{T2+2*q}, v{T2+2*q+1}" for q in range(4)]
        else:
            def st(q):
                return [f"v_mul_f32 v{T1+q}, v{a+q}, v{a+q}", f"v_fma_f32 v{T1+q}, v{T1+q}, v{cn+1}, v{cn}", f"v_mul_f32 v{T1+q}, v{T1+q}, v{a+q}",
                        f"v_exp_f32 v{T1+q}, v{T1+q}", f"v_mul_f32 v{T2+q}, v{a+q}, v{a+8+q}", f"v_fma_f32 v{T1+q}, v{T1+q}, v{cn+2}, v{cn+2}",
                        f"v_rcp_f32 v{T1+q}, v{T1+q}", f"v_mul_f32 v{T2+q}, v{T2+q}, v{T1+q}"]
            for q0 in range(0, 8, c.il):
                xs = [st(q) for q in range(q0, q0 + c.il)]
                for k in range(8): L += [x[k] for x in xs]
                L += [f"v_cvt_pk_bf16_f32 v{o_+q//2}, v{T2+q}, v{T2+q+1}" for q in range(q0, q0 + c.il, 2)]
        L += [f"global_store_dwordx4 v{vS+rt}, {v(o_,4)}, s[30:31] offset:{1024*t} {c.stflag}"]
        return L
    def cost(l): return 2 if l.startswith(("v_exp", "v_rcp", "v_sqrt")) else 1
    def signal(t):
        A(f"s_mov_b32 s70, 1\ns_waitcnt vmcnt({2-2*t})\ns_atomic_add s70, s[30:31], s58\ns_add_u32 s58, s58, 128")
    def poll_issue(r, off):
        A(f"s_mov_b32 s{r}, 0\ns_add_u32 s68, s59, {off}\ns_atomic_add s{r}, s[30:31], s68 glc")
    def poll_wait(r, off):
        pl = A.label("poll"); ok = A.label("ok")
        A(f"s_mov_b32 s45, 0\n{pl}:\ns_waitcnt lgkmcnt(0)\ns_cmp_ge_u32 s{r}, 14\ns_cbranch_scc1 {ok}")
        poll_issue(r, off)
        A(f"s_add_u32 s45, s45, 1\ns_cmp_lt_u32 s45, {SPIN}\ns_cbranch_scc1 {pl}\ns_waitcnt lgkmcnt(0)\n{ok}:")
    PA_, PB_ = 69, 71
    Q = Bars([0, 14, c.drain0[1] + 1, 29], 13)
    AC2, ID, HF = 80, 160, F[1]
    csetup()
    A("s_waitcnt vmcnt(0)\ns_barrier")
    P.stamp(11)
    A(f"""
    s_lshl_b32 s43, s35, 1
    s_add_u32 s43, s43, s41
    s_sub_u32 s43, s43, s38
    s_cselect_b32 s44, 14, 0
    s_add_u32 s43, s43, s44
    s_lshl_b32 s43, s43, 13
    v_add_u32 v{vX}, s43, v{vX}
    v_lshlrev_b32 v7, 3, v4
    v_sub_u32 v7, v5, v7
    v_mov_b32 v{vX+1}, 0x3f80
    v_mov_b32 v{vX+2}, 1.0
    """)
    for j in range(2):
        for i in range(4):
            d0 = 16 * j + 2 * i
            A(f"v_cmp_eq_u32 vcc, {d0}, v7\nv_cmp_eq_u32 s[50:51], {d0+1}, v7\nv_cndmask_b32 v{ID+4*j+i}, 0, v{vX+1}, vcc\nv_cndmask_b32 v{ID+4*j+i}, v{ID+4*j+i}, v{vX+2}, s[50:51]")
    A("s_setprio 2")
    Q.bar()
    P.stamp(12)
    for l in preads(0, 0) + preads(0, 1): A(l)
    for s in range(1, 14):
        Q.bar(); pstep(0, s)
    Q.bar()
    r = [f"ds_read_b128 {v(CN+4*i,4)}, v{vCR+i}" for i in range(2)] + [f"ds_read_b64_tr_b16 {v(HF+2*i,2)}, v{vX} offset:{4096*(i>>1)+1024*(i&1)}" for i in range(4)]
    A("s_waitcnt lgkmcnt(8)"); inter(pmfma(26), r)
    A("s_waitcnt vmcnt(0) lgkmcnt(4)"); inter(pmfma(27), mkmb)
    for l in corr(False): A(l)
    A("s_waitcnt lgkmcnt(0)")
    A(f"v_mfma_f32_32x32x16_bf16 {v(AC2,16)}, {v(ID,4)}, {v(HF,4)}, 0")
    A(f"v_mfma_f32_32x32x16_bf16 {v(AC2,16)}, {v(ID+4,4)}, {v(HF+4,4)}, {v(AC2,16)}")
    A("s_setprio 0")
    E1 = []
    for n in range(4): E1 += epi(n >> 1, n & 1, n, c.e1_packed)
    tot = sum(cost(x) for x in E1); per1 = tot / (c.e1_last - c.e1_first + 1); bud = 0.0
    vD, vT = 8, 14
    gsetup = f"""
    v_lshl_add_u32 v7, v4, 2, v2
    v_lshlrev_b32 v7, 7, v7
    v_lshrrev_b32 v{vD}, 1, v2
    v_xor_b32 v{vD}, s41, v{vD}
    v_lshl_add_u32 v7, v{vD}, 6, v7
    v_lshl_add_u32 v7, v3, 5, v7
    v_lshl_add_u32 v7, v6, 3, v7
    s_lshl_b32 s43, s41, 12
    v_add_u32 v{vD}, s43, v7
    v_xor_b32 v{vD+1}, 64, v{vD}
    v_add_u32 v{vD+2}, 0x10000, v{vD}
    v_add_u32 v{vD+3}, 0x10000, v{vD+1}
    v_lshlrev_b32 v{vT}, 4, v{vLane}
    """
    gsetup2 = f"""
    s_lshl_b32 s43, s39, 2
    s_lshl_b32 s44, s34, 1
    s_add_u32 s43, s43, s44
    s_add_u32 s43, s43, s40
    s_mul_i32 s55, s43, {112*1024}
    s_mul_i32 s43, s43, {32*896}
    s_lshl_b32 s44, s35, 7
    s_add_u32 s43, s43, s44
    s_lshl_b32 s44, s41, 6
    s_add_u32 s43, s43, s44
    v_mul_u32_u24 v5, 896, v5
    v_lshl_add_u32 v5, v4, 4, v5
    v_add_u32 v5, s43, v5
    s_lshl_b32 s44, s41, 11
    s_add_u32 s55, s55, s44
    s_lshl_b32 s54, s33, 13
    s_add_u32 s54, s54, s55
    s_add_u32 s55, s55, {14*8192}
    s_add_u32 s64, s30, {WS_ACT}
    s_addc_u32 s65, s31, 0
    s_mov_b32 s66, {ACT_BYTES}
    s_mov_b32 s67, 0x20000
    """
    for i in range(15, 29):
        Q.bar()
        if i >= c.e1_first:
            bud += per1
            while E1 and (bud > 0 or i == c.e1_last):
                x = E1.pop(0); A(x); bud -= cost(x)
        if i == c.e1_last + 1: A(gsetup)
        if i == c.e1_last + 3: A(gsetup2)
        if i == c.drain0[0]: signal(0)
        if i == c.drain0[1]:
            signal(1)
            A(f"v_add_u32 v{vD+4}, 0x20000, v{vD}\nv_add_u32 v{vD+5}, 0x20000, v{vD+1}")
        if i == c.poll0:
            poll_issue(PA_, 0); poll_issue(PB_, 128)
    Q.bar()
    TRQ = [96 + 4 * k for k in range(18)] + [16, 20, 24, 28]
    DB = [32, 40, 48, 56]
    AO = [AC2, 64]
    seq = [(14 * hf + b, j) for hf in range(2) for j in range(2) for b in range(14)]
    seq[:28] = [(b, j) for b in range(14) for j in range(2)]
    if c.g2_blockwise: seq[28:] = [(14 + b, j) for b in range(14) for j in range(2)]
    def tload(n):
        b, j = seq[n]
        blockwise = c.g2_blockwise or n < 28
        o = []
        if n == 28: o += ["s_add_u32 s54, s54, 4096", "s_add_u32 s55, s55, 4096"]
        o += [f"buffer_load_dwordx4 {v(TRQ[n % 22],4)}, v{vT}, s[64:67], s54 offen offset:{1024*j} sc1"]
        if not blockwise or j == 1:
            o += ["s_add_u32 s54, s54, 8192", "s_cmp_ge_u32 s54, s55", f"s_cselect_b32 s57, {14*8192}, 0", "s_sub_u32 s54, s54, s57"]
        return o
    def dreads(n):
        b, j = seq[n]
        sd = slot[("D", b)]; f = DB[n & 3]
        o = []
        for nt in range(2):
            do = (sd % 8) * BLK + 2048 * j
            ad = vD + 2 * (sd // 8) + nt
            o += [f"ds_read_b64_tr_b16 {v(f+4*nt,2)}, v{ad} offset:{do}", f"ds_read_b64_tr_b16 {v(f+4*nt+2,2)}, v{ad} offset:{do+1024}"]
        return o
    def gm(n):
        f = DB[n & 3]
        return [f"v_mfma_f32_32x32x16_bf16 {v(AO[nt],16)}, {v(f+4*nt,4)}, {v(TRQ[n % 22],4)}, {'0' if (n == 0 and nt == 1) else v(AO[nt],16)}" for nt in range(2)]
    gate = {0: 0, 28: 1} if c.g2_blockwise else {0: 0, 28: 1, 42: 2}
    issued = 0; mk = 0
    x2 = min(n for n, (b, j) in enumerate(seq) if b >= 20)
    for n in range(56):
        depth = c.tdepth if n < 12 else c.tdepth2
        if n == c.pollT1[0]: poll_issue(PA_, 512)
        if n == (c.pollT1[0] if c.g2_blockwise else c.pollT1[1]): poll_issue(PB_, 640)
        while issued < 56 and issued - n < min(depth, 22):
            if issued in gate:
                if issued - n > c.gate_ahead.get(issued, 0): break
                g_ = gate.pop(issued)
                if g_ == 0: poll_wait(PA_, 0); poll_wait(PB_, 128)
                elif g_ == 1:
                    assert n >= c.pollT1[0]
                    poll_wait(PA_, 512)
                    if c.g2_blockwise: poll_wait(PB_, 640)
                else:
                    assert n >= c.pollT1[1]
                    poll_wait(PB_, 640)
                Q.mark(mk); mk += 1
            for l in tload(issued): A(l)
            issued += 1
        if n == 0:
            for l in dreads(0) + dreads(1): A(l)
        if n + 2 in (16, x2):
            A("s_waitcnt lgkmcnt(0)\ns_barrier")
            Q.mark(mk); mk += 1
        r = dreads(n + 2) if n + 2 < 56 else []
        A(f"s_waitcnt vmcnt({issued-1-n}) lgkmcnt({4 if n < 55 else 0})")
        m = gm(n)
        for i in range(2):
            A(m[i])
            for l in r[2*i:2*i+2]: A(l)
    while mk < 5: Q.mark(mk); mk += 1
    Q.mark(5)
    xs = min(sl for sl in range(0, 19) if all(slot[("D", b)] not in (sl, sl + 1) for b in range(22, 28)) and sl % 2 == 0)
    A(f"""
    s_lshl_b32 s43, s36, 12
    v_lshl_add_u32 v2, v{vLane}, 4, s43
    v_xor_b32 v3, 0x2000, v2
    s_barrier
    """)
    for q in range(4): A(f"ds_write_b128 v2, {v(AO[1]+4*q,4)} offset:{1024*q}")
    A("s_waitcnt lgkmcnt(0)\ns_barrier")
    for q in range(4): A(f"ds_read_b128 {v(32+4*q,4)}, v3 offset:{1024*q}")
    for hq in range(2):
        A(f"s_waitcnt lgkmcnt({2-2*hq})")
        for q in range(4*hq, 4*hq+4): A(f"v_pk_add_f32 {v(AC2+2*q,2)}, {v(AC2+2*q,2)}, {v(32+2*q,2)}")
        for q in range(4*hq, 4*hq+4): A(f"v_cvt_pk_bf16_f32 v{48+q}, v{AC2+2*q}, v{AC2+2*q+1}")
        A(f"v_permlane32_swap_b32 v{48+4*hq}, v{48+4*hq+2}\nv_permlane32_swap_b32 v{48+4*hq+1}, v{48+4*hq+3}")
        A(f"global_store_dwordx4 v5, {v(48+4*hq,4)}, s[26:27] offset:{32*hq}")
    Q.fin(6)
    A("s_endpgm")
    A(f".p2align 3\n{nw}:")
    vPX, vPS_, vPA = 100, 116, 8
    srd(A, 64, 30, XG_BYTES, WS_XG)
    A(f"s_and_b32 s46, s36, 3\ns_lshl_b32 s47, s46, 12\nv_lshl_add_u32 v{vPA}, v{vLane}, 4, s47\ns_lshl_b32 s44, s37, 14\ns_mov_b32 s45, 0\nv_mov_b32 v11, {TAGA}")
    def xpoll():
        for q in range(4): A(f"buffer_load_dwordx4 {v(vPX+4*q,4)}, v{vPA}, s[64:67], s44 offen offset:{1024*q} sc1")
        for q in range(4): A(f"global_load_dwordx4 {v(vPS_+4*q,4)}, v{vPA}, s[30:31] offset:{1024*q} sc1")
    A("s_waitcnt lgkmcnt(0)\ns_barrier")
    P.stamp(5)
    A(f"""
    ds_read_b32 v11, v11
    s_lshl_b32 s47, s46, 10
    s_add_u32 s47, s47, {UO+512}
    v_xor_b32 v9, 3, v{vLane}
    v_lshl_add_u32 v9, v9, 2, s47
    s_lshl_b32 s47, s46, 11
    v_lshrrev_b32 v5, 3, v{vLane}
    v_lshl_add_u32 v5, v5, 4, s47
    v_bfe_u32 v6, v{vLane}, 1, 2
    v_lshl_add_u32 v5, v6, 8, v5
    v_and_b32 v6, 1, v{vLane}
    v_lshl_add_u32 v10, v6, 3, v5
    """)
    if c.poll_late: A(f"s_sleep {c.poll_late}")
    xpoll()
    A("s_barrier")
    P.stamp(6)
    pl = A.label("xp"); ok = A.label("xok")
    A(f"{pl}:\ns_waitcnt vmcnt(0) lgkmcnt(0)\nv_min3_u32 v4, v{vPX+1}, v{vPX+3}, v11\nv_max3_u32 v5, v{vPX+1}, v{vPX+3}, v11")
    for q in range(1, 8): A(f"v_min3_u32 v4, v4, v{vPX+4*q+1}, v{vPX+4*q+3}\nv_max3_u32 v5, v5, v{vPX+4*q+1}, v{vPX+4*q+3}")
    A(f"v_cmp_ne_u32 vcc, v4, v5\ns_cbranch_vccz {ok}\ns_add_u32 s45, s45, 1\ns_cmp_gt_u32 s45, {SPIN}\ns_cbranch_scc1 {ok}")
    xpoll()
    A(f"s_branch {pl}\n{ok}:\ns_setprio 2")
    P.stamp(7)
    NU, PRE, UB = 16, 32, 48
    for half in range(2):
        st = []
        for r in range(4 * half, 4 * half + 4):
            S = vPS_ + 2 * r; X = vPX + 2 * r
            t = 60 + 4 * (r & 3)
            st.append([f"v_and_b32 v{t+2}, s43, v{S}", f"v_rcp_f32 v{t+2}, v{t+2}", f"v_lshlrev_b32 v{t}, 16, v{S}",
                  f"v_lshlrev_b32 v{PRE+2*r}, 16, v{X}", f"v_and_b32 v{PRE+2*r+1}, s43, v{X}",
                  f"v_pk_add_f32 {v(NU+2*r,2)}, {v(PRE+2*r,2)}, {v(t,2)} op_sel_hi:[1,0] neg_lo:[0,1] neg_hi:[0,1]",
                  f"v_cvt_pk_bf16_f32 v{NU+2*r+1}, v{NU+2*r}, v{NU+2*r+1}",
                  f"v_lshlrev_b32 v{NU+2*r}, 16, v{NU+2*r+1}", f"v_and_b32 v{NU+2*r+1}, s43, v{NU+2*r+1}",
                  f"v_pk_mul_f32 {v(NU+2*r,2)}, {v(NU+2*r,2)}, {v(t+2,2)} op_sel_hi:[1,0]"])
        for l in merge(*st): A(l)
        for ch in range(2):
            for k in (2 * half, 2 * half + 1): A(f"v_cvt_pk_bf16_f32 v{UB+4*ch+k}, v{NU+4*k+2+ch}, v{NU+4*k+ch}")
            A(f"ds_write2st64_b32 v9, v{UB+4*ch+2*half}, v{UB+4*ch+2*half+1} offset0:{ch*UPITCH//256+2*half} offset1:{ch*UPITCH//256+2*half+1}")
    A("s_setprio 0\ns_waitcnt lgkmcnt(0)\ns_barrier")
    P.stamp(8)
    PO = 60
    for ch in range(2):
        for k in range(4):
            A(f"v_lshlrev_b32 v4, 16, v{UB+4*ch+k}\nv_and_b32 v5, s43, v{UB+4*ch+k}")
            A(f"v_fma_f32 v{PO+8*ch+2*k+1}, v4, s{58+ch}, v{PRE+4*k+2+ch}\nv_fma_f32 v{PO+8*ch+2*k}, v5, s{58+ch}, v{PRE+4*k+ch}")
            A(f"ds_write_b64 v10, {v(PO+8*ch+2*k,2)} offset:{32768*ch+1024*(k>>1)+128*(k&1)}")
    nb = A.label("nb")
    A(f"""
    s_lshl_b32 s46, s2, 3
    s_add_u32 s46, s46, s36
    s_cmp_lg_u32 s46, 4
    s_cbranch_scc1 {nb}
    v_mov_b32 v4, {WS_E}
    s_mov_b64 exec, 1
    global_store_dword v4, v11, s[30:31]
    s_mov_b64 exec, -1
    {nb}:
    """)
    csetup()
    Q = Bars([0, c.gat_check, c.gat_check + 1, 14, 28, 29], 10)
    ST, GA = 18, 96
    vPS, vGA = 22, 23
    A(f"""
    s_mul_i32 s43, s39, {14*1024}
    s_lshl_b32 s44, s42, 8
    s_add_u32 s43, s43, s44
    s_add_u32 s43, s43, {WS_PS}
    v_lshl_add_u32 v{vPS}, v5, 3, s43
    v_mul_u32_u24 v7, 7168, v4
    v_add3_u32 v{vGA}, v{vPS}, v7, 64
    v_add_u32 v{vGA}, {3072-64}, v{vGA}
    s_lshl_b32 s44, s38, 10
    v_add_u32 v{vPS}, s44, v{vPS}
    """)
    P.stamp(9)
    A("s_waitcnt lgkmcnt(0)\ns_barrier\ns_barrier")
    def gat(js=range(7)):
        for j in js: A(f"global_load_dwordx2 {v(GA+2*j,2)}, v{vGA}, s[30:31] offset:{1024*j-3072} sc1")
    S, Qv = GA, GA + 1
    work = [f"v_add_f32 v{GA+k}, v{GA+k}, v{GA+2*j+k}" for j in range(1, 7) for k in range(2)]
    work += [f"v_mov_b32 v{GA+2}, v{GA}", f"v_mov_b32 v{GA+3}, v{GA+1}", f"v_permlane32_swap_b32 v{GA}, v{GA+2}", f"v_permlane32_swap_b32 v{GA+1}, v{GA+3}",
             f"v_add_f32 v{GA}, v{GA}, v{GA+2}", f"v_add_f32 v{GA+1}, v{GA+1}, v{GA+3}"]
    work += [l.strip() for l in f"""
    v_mul_f32 v{S}, {f32(1.0/448)}, v{S}
    v_mul_f32 v{Qv}, {f32(1.0/448)}, v{Qv}
    v_fma_f32 v{Qv}, -v{S}, v{S}, v{Qv}
    v_max_f32 v{Qv}, 0, v{Qv}
    v_cvt_pk_bf16_f32 v{CN+3}, -v{S}, -v{S}
    v_cvt_pk_bf16_f32 v{Qv}, v{Qv}, v{Qv}
    v_and_b32 v{Qv}, s48, v{Qv}
    v_add_f32 v{Qv}, {f32(1e-5)}, v{Qv}
    v_cvt_pk_bf16_f32 v{Qv}, v{Qv}, v{Qv}
    v_and_b32 v{Qv}, s48, v{Qv}
    v_sqrt_f32 v{Qv}, v{Qv}
    v_cvt_pk_bf16_f32 v{Qv}, v{Qv}, v{Qv}
    v_and_b32 v{Qv}, s48, v{Qv}
    v_rcp_f32 v{S}, v{Qv}
    v_mul_f32 v{CN+2}, v{Qv}, v{Qv}
    v_mul_f32 v{CN}, {f32(GK0)}, v{S}
    v_mul_f32 v{CN+1}, v{S}, v{S}
    v_mul_f32 v{CN+1}, v{CN+1}, v{S}
    v_mul_f32 v{CN+1}, {f32(GK1)}, v{CN+1}
    ds_write_b128 v{vCR}, {v(CN,4)}
    """.strip().split("\n")]
    nwi = c.con_write - c.gat_check
    wper = (len(work) + nwi - 1) // nwi
    for i in range(14):
        Q.bar()
        if i == 0:
            for k in range(4): A(f"ds_read_b64_tr_b16 {v(F[0]+2*k,2)}, v{vB} offset:{4096*(k>>1)+1024*(k&1)}")
        if i == 1:
            A("s_waitcnt lgkmcnt(0)")
            for k in range(8):
                z = k < 2
                A(f"v_dot2_f32_bf16 v{ST+(k&1)}, v{F[0]+k}, s47, {'0' if z else 'v%d' % (ST+(k&1))}\nv_dot2_f32_bf16 v{ST+2+(k&1)}, v{F[0]+k}, v{F[0]+k}, {'0' if z else 'v%d' % (ST+2+(k&1))}")
        if i == 2:
            A(f"""
            v_add_f32 v{ST}, v{ST}, v{ST+1}
            v_add_f32 v{ST+1}, v{ST+2}, v{ST+3}
            v_mov_b32 v{ST+2}, v{ST}
            v_mov_b32 v{ST+3}, v{ST+1}
            v_permlane32_swap_b32 v{ST}, v{ST+2}
            v_permlane32_swap_b32 v{ST+1}, v{ST+3}
            v_add_f32 v{ST}, v{ST}, v{ST+2}
            v_add_f32 v{ST+1}, v{ST+1}, v{ST+3}
            v_or_b32 v{ST+1}, 1, v{ST+1}
            s_mov_b32 exec_hi, 0
            global_store_dwordx2 v{vPS}, {v(ST,2)}, s[30:31] sc0 sc1
            s_mov_b32 exec_hi, -1
            """)
        if i == c.ca_load:
            for l in caload: A(l)
        if i == c.gat_issue - 1: gat(range(3))
        if i == c.gat_issue: gat(range(3, 7))
        if i == c.gat_check:
            assert c.ca_load <= i
            pl = A.label("gp"); ok = A.label("gok")
            A(f"s_mov_b32 s45, 0\n{pl}:\ns_waitcnt vmcnt(0)\nv_min3_u32 v7, v{GA+1}, v{GA+3}, v{GA+5}\nv_min3_u32 v7, v7, v{GA+7}, v{GA+9}\nv_min3_u32 v7, v7, v{GA+11}, v{GA+13}")
            A(f"v_cmp_eq_u32 vcc, 0, v7\ns_cbranch_vccz {ok}\ns_add_u32 s45, s45, 1\ns_cmp_ge_u32 s45, {SPIN}\ns_cbranch_scc1 {ok}")
            gat()
            A(f"s_branch {pl}\n{ok}:")
        if c.gat_check < i <= c.con_write:
            for l in work[:wper]: A(l)
            work = work[wper:]
        if i == 13:
            assert not work
            A("s_waitcnt lgkmcnt(0)")
    Q.bar()
    A(f"ds_read_b128 {v(CN+4,4)}, v{vCR+1}")
    for l in preads(1, 0): A(l)
    A("s_waitcnt lgkmcnt(8)")
    for l in mkmb + preads(1, 1): A(l)
    for l in corr(True): A(l)
    A(f"s_setprio {c.prioB}")
    for s in range(1, 14):
        Q.bar(); pstep(1, s)
    Q.bar()
    A("s_waitcnt lgkmcnt(8)")
    for l in pmfma(26): A(l)
    A("s_waitcnt lgkmcnt(0)")
    Q.bar()
    for l in pmfma(27): A(l)
    for n in range(4):
        for l in epi(n >> 1, n & 1, n, True): A(l)
    Q.mark(0)
    signal(0)
    Q.mark(1)
    signal(1)
    Q.mark(2)
    A("s_barrier")
    Q.fin(3)
    A("s_waitcnt lgkmcnt(0)\ns_endpgm")
    A(f".p2align 3\n{auxt}:")
    PA.stamp(1)
    srd(A, 64, 30, XG_BYTES, WS_XG)
    A(f"""
    v_and_b32 v4, 15, v{vLane}
    v_lshrrev_b32 v5, 4, v{vLane}
    v_lshl_add_u32 v6, v4, 8, s46
    v_lshl_add_u32 v6, v5, 2, v6
    v_and_b32 v7, 7, v4
    v_lshl_add_u32 v6, v7, 4, v6
    v_lshlrev_b32 v9, 14, v5
    v_lshl_add_u32 v9, v4, 4, v9
    s_lshl_b32 s46, s36, 2
    s_add_u32 s46, s46, {TAGA}
    v_mov_b32 v2, s46
    """)
    for k in range(1, 8): A(f"v_xor_b32 v{80+k}, {16*k}, v6")
    A("s_waitcnt lgkmcnt(0)\ns_mul_i32 s57, s57, 0x9e3779b1\ns_add_u32 s57, s57, 0x7f4a7c15")
    for k in range(16): A(f"v_mov_b32 v{vXG+2*k+1}, s57")
    A(f"s_mov_b64 exec, 1\nds_write_b32 v2, v{vXG+1}\ns_mov_b64 exec, -1\ns_waitcnt vmcnt(0)")
    PA.stamp(2)
    for k in range(8):
        ad = 6 if k == 0 else 80 + k
        A(f"ds_read_b32 v{vXG+4*k}, v{ad}\nds_read_b32 v{vXG+4*k+2}, v{ad} offset:128")
    for k in range(8):
        A(f"s_waitcnt lgkmcnt({14-2*k})\nbuffer_store_dwordx4 {v(vXG+4*k,4)}, v9, s[64:67], s51 offen sc0 sc1")
        if k < 7: A(f"s_add_u32 s51, s51, {4*16384}")
    PA.stamp(3)
    A("s_setprio 0")
    aW, aD, aH = 8, 12, 8
    sW, sD, eW, eD = 41, 42, 45, 46
    def daddr():
        A(ffn_ids)
        A(f"""
        v_lshrrev_b32 v6, 3, v{vLane}
        v_and_b32 v7, 7, v{vLane}
        v_and_b32 v5, 2, v6
        v_lshlrev_b32 v4, 1, v5
        v_xor_b32 v4, v4, v7
        v_mul_u32_u24 v3, 896, v6
        v_lshl_add_u32 v{aD}, v4, 4, v3
        v_add_u32 v{aD+1}, {1*(8*896-1024)}, v{aD}
        v_add_u32 v{aD+2}, {2*(8*896-1024)}, v{aD}
        v_add_u32 v{aD+3}, {3*(8*896-1024)}, v{aD}
        s_lshl_b32 s{eD}, s35, 7
        s_mul_i32 s32, s36, {32*896}
        s_add_u32 s{eD}, s{eD}, s32
        s_mul_i32 s{sD}, s33, {128*896}
        s_add_u32 s{sD}, s{sD}, s{eD}
        s_add_u32 s{eD}, s{eD}, {14*128*896}
        s_lshl_b32 s32, s36, 12
        v_lshl_add_u32 v16, v{vLane}, 4, s32
        v_add_u32 v17, 0x10000, v16
        v_add_u32 v18, 0x20000, v16
        """)
        srd(A, 60, 24, W_BYTES)
    def fifo_load(first, n, reg0):
        A(f"s_add_u32 s43, s{sD}, {64*896 + (first-14)*128*896}\ns_add_u32 s44, s{eD}, {64*896}")
        for b in range(n):
            A(f"s_cmp_ge_u32 s43, s44\ns_cselect_b32 s34, {14*128*896}, 0\ns_sub_u32 s43, s43, s34")
            for i in range(4): A(f"buffer_load_dwordx4 {v(reg0+16*b+4*i,4)}, v{aD+i}, s[60:63], s43 offen offset:{1024*i}")
            A(f"s_add_u32 s43, s43, {128*896}")
            if c.fdepth is not None: A(f"s_waitcnt vmcnt({c.fdepth})")
    def fifo_put(first, n, reg0):
        for b in range(n):
            sl = slot[("D", first + b)]
            for i in range(4): A(f"ds_write_b128 v{16+sl//8}, {v(reg0+16*b+4*i,4)} offset:{(sl%8)*BLK+1024*i}")
    daddr()
    A(f"""
    v_xor_b32 v4, v5, v7
    s_lshl_b32 s43, s36, 2
    v_xor_b32 v4, s43, v4
    v_mul_u32_u24 v3, 3584, v6
    v_lshl_add_u32 v{aW}, v4, 4, v3
    v_add_u32 v{aW+1}, {1*(8*3584-1024)}, v{aW}
    v_add_u32 v{aW+2}, {2*(8*3584-1024)}, v{aW}
    v_add_u32 v{aW+3}, {3*(8*3584-1024)}, v{aW}
    s_lshl_b32 s{eW}, s38, 8
    s_mul_i32 s{sW}, s38, {32*3584}
    s_add_u32 s{sW}, s{sW}, s{eW}
    s_add_u32 s{eW}, s{eW}, {14*32*3584}
    s_cmp_eq_u32 s36, 0
    s_cselect_b32 s20, s20, s22
    s_cselect_b32 s21, s21, s23
    """)
    srd(A, 52, 20, W_BYTES)
    A(f"""
    v_mov_b32 v20, 0
    v_mov_b32 v21, 0
    v_lshrrev_b32 v4, 4, v{vLane}
    v_mul_u32_u24 v4, {KP}, v4
    v_and_b32 v5, 15, v{vLane}
    v_lshl_add_u32 v4, v5, 2, v4
    s_lshl_b32 s43, s36, 15
    v_add_u32 v4, s43, v4
    s_mul_i32 s43, s36, {UPITCH}
    s_add_u32 s43, s43, {UO}
    v_lshl_add_u32 v3, v{vLane}, 3, s43
    s_barrier
    s_barrier
    ds_write_b32 v4, v20 offset:{KB0}
    ds_write_b64 v3, v[20:21]
    s_waitcnt lgkmcnt(0)
    s_barrier
    """)
    def dma(kind, idx, i):
        base_ = slot[(kind, idx)] * BLK
        a0, r0, s, e, step = {"W": (aW, 52, sW, eW, 32*3584), "D": (aD, 60, sD, eD, 128*896)}[kind]
        if i == 0:
            if idx == 14:
                A(f"s_add_u32 s{s}, s{s}, 128\ns_add_u32 s{e}, s{e}, 128")
            A(f"s_add_u32 m0, s32, {base_}\ns_add_u32 s33, s{s}, {step}")
        A(f"buffer_load_dwordx4 v{a0+i}, s[{r0}:{r0+3}], s{s} offen offset:{1024*i} lds")
        if i == 0: A(f"s_cmp_ge_u32 s33, s{e}\ns_cselect_b32 s34, {14*step}, 0")
        if i == 3: A(f"s_sub_u32 s{s}, s33, s34")
    for x in issue[-1]: dma(*x)
    fifo_load(14, 6, 24)
    PA.stamp(4)
    A("s_barrier\ns_barrier\nglobal_load_dword v22, v20, s[28:29] sc1\ns_waitcnt vmcnt(1)\ns_barrier")
    for i in range(0, 29):
        for x in issue[i]: dma(*x)
        if i == c.ca_load - 1:
            pl = A.label("cs"); ok = A.label("csok")
            A(f"s_mov_b32 s48, 0\ns_waitcnt vmcnt({sum(len(issue[k]) for k in range(i + 1))})\n{pl}:\nv_cmp_gt_u32 vcc, 56, v22\ns_cbranch_vccz {ok}\nglobal_load_dword v22, v20, s[28:29] sc1\ns_add_u32 s48, s48, 1\ns_cmp_lt_u32 s48, {SPIN}\ns_waitcnt vmcnt(0)\ns_cbranch_scc1 {pl}\n{ok}:")
        if wait[i] is not None: A(f"s_waitcnt vmcnt({min(63, wait[i])})")
        A("s_barrier")
    fifo_put(14, 6, 24)
    A("s_waitcnt vmcnt(0) lgkmcnt(0)\ns_barrier")
    if c.phase == 1: Prof(A, 3).flush(5)
    A("s_endpgm")
    A(f".p2align 3\n{auxs}:")
    PA.stamp(1)
    a0 = 90
    A(f"""
    s_mov_b32 s64, s30
    s_mov_b32 s65, s31
    s_cmp_eq_u32 s36, 0
    s_cselect_b32 s66, 0x1000000, 0
    s_mov_b32 s67, 0x20000
    v_mov_b32 v48, -1
    v_mov_b32 v49, -1
    v_mov_b32 v50, -1
    v_mov_b32 v51, -1
    v_mov_b32 v52, 0
    v_mov_b32 v53, 0
    v_mov_b32 v54, 0
    v_mov_b32 v55, 0
    v_lshlrev_b32 v9, 4, v{vLane}
    s_lshl_b32 s46, s2, 13
    s_add_u32 s46, s46, {WS_HT}
    s_add_u32 s48, s46, 4096
    """)
    for k in range(8): A(f"buffer_store_dwordx4 v[48:51], v9, s[64:67], s{46 if k < 4 else 48} offen offset:{1024*(k&3)} sc0 sc1")
    A(f"""
    s_lshl_b32 s46, s2, 10
    s_add_u32 s46, s46, {WS_PS}
    buffer_store_dwordx4 v[52:55], v9, s[64:67], s46 offen sc0 sc1
    s_and_b32 s46, s2, 127
    s_lshl_b32 s46, s46, 8
    s_add_u32 s46, s46, {WS_FLAGS}
    v_lshlrev_b32 v9, 2, v{vLane}
    buffer_store_dword v52, v9, s[64:67], s46 offen sc0 sc1
    """)
    A(f"s_mov_b32 s42, 0x3f803f80\nv_and_b32 v4, 56, v{vLane}\ns_lshl_b32 s46, s47, 6\nv_add_u32 v4, s46, v4\nv_mov_b32 v2, {TAGA}")
    A("s_waitcnt lgkmcnt(0)\ns_mul_i32 s57, s57, 0x9e3779b1\ns_add_u32 s57, s57, 0x7f4a7c15\ns_mov_b32 s45, 0")
    for i in range(28):
        z = i < 2
        if i % 4 == 0: A(f"s_waitcnt vmcnt({16-i//4})")
        if i == 4: PA.stamp(2)
        if i == 24: A("ds_read_b64 v[6:7], v2")
        A(f"v_dot2_f32_bf16 v{a0+(i&1)}, v{vRow+i}, s42, {'0' if z else 'v%d' % (a0+(i&1))}")
        A(f"v_dot2_f32_bf16 v{a0+2+(i&1)}, v{vRow+i}, v{vRow+i}, {'0' if z else 'v%d' % (a0+2+(i&1))}")
    A(f"v_add_f32 v{a0}, v{a0}, v{a0+1}\nv_add_f32 v{a0+2}, v{a0+2}, v{a0+3}")
    for op in ("quad_perm:[1,0,3,2]", "quad_perm:[2,3,0,1]", "row_half_mirror"):
        A(f"v_add_f32_dpp v{a0}, v{a0}, v{a0} {op}{DPP}\nv_add_f32_dpp v{a0+2}, v{a0+2}, v{a0+2} {op}{DPP}")
    A(f"""
    v_mul_f32 v{a0}, {f32(1.0/448)}, v{a0}
    v_mul_f32 v{a0+2}, {f32(1.0/448)}, v{a0+2}
    v_fma_f32 v{a0+2}, -v{a0}, v{a0}, v{a0+2}
    v_max_f32 v{a0+2}, 0, v{a0+2}
    v_cvt_pk_bf16_f32 v{a0+2}, v{a0+2}, v{a0+2}
    v_and_b32 v{a0+2}, s43, v{a0+2}
    v_add_f32 v{a0+2}, {f32(1e-5)}, v{a0+2}
    v_cvt_pk_bf16_f32 v{a0+2}, v{a0+2}, v{a0+2}
    v_and_b32 v{a0+2}, s43, v{a0+2}
    v_sqrt_f32 v{a0+2}, v{a0+2}
    v_mov_b32 v{a0+1}, s57
    v_cvt_pk_bf16_f32 v{a0}, v{a0}, v{a0+2}
    Ltg:
    s_waitcnt lgkmcnt(0)
    v_xor_b32 v6, s57, v6
    v_xor_b32 v7, s57, v7
    v_or_b32 v6, v6, v7
    v_cmp_ne_u32 vcc, 0, v6
    s_cbranch_vccz Ltg2
    ds_read_b64 v[6:7], v2
    s_add_u32 s45, s45, 1
    s_cmp_lt_u32 s45, {SPIN}
    s_cbranch_scc1 Ltg
    Ltg2:
    s_mov_b32 exec_lo, 0x01010101
    s_mov_b32 exec_hi, 0x01010101
    s_waitcnt vmcnt(0)
    global_store_dwordx2 v4, {v(a0,2)}, s[30:31] sc0 sc1
    s_mov_b64 exec, -1
    """)
    PA.stamp(3)
    if base.PROF and c.phase == 1:
        A(f"s_branch {hold}x\n{hold}:")
        for k in (1, 2, 3): PA.stamp(k)
        A(f"{hold}x:\ns_setprio 0")
    else: A(f"{hold}:\ns_setprio 0")
    daddr()
    sH, eH, sV = 40, 41, 47
    VR = 20
    A(f"""
    v_lshrrev_b32 v6, 4, v{vLane}
    v_and_b32 v7, 15, v{vLane}
    v_lshlrev_b32 v5, 2, v6
    v_xor_b32 v5, v5, v7
    v_lshlrev_b32 v5, 4, v5
    v_lshl_add_u32 v{aH}, v6, 12, v5
    v_add_u32 v{aH+1}, {1*(4*4096-1024)}, v{aH}
    v_add_u32 v{aH+2}, {2*(4*4096-1024)}, v{aH}
    v_add_u32 v{aH+3}, {3*(4*4096-1024)}, v{aH}
    s_lshl_b32 s{eH}, s39, 8
    s_lshl_b32 s43, s36, 16
    s_add_u32 s{eH}, s{eH}, s43
    s_lshl_b32 s{sH}, s38, 17
    s_add_u32 s{sH}, s{sH}, s{eH}
    s_add_u32 s{eH}, s{eH}, {14*32*4096}
    s_mov_b32 s{sV}, s{sH}
    """)
    srd(A, 48, 30, X_BYTES, WS_HT)
    A("s_barrier\ns_barrier\ns_barrier")
    fifo_load(20, 8, 40)
    PA.stamp(4)
    A("s_barrier\ns_barrier\ns_setprio 1")
    HS = 32 * 4096
    def hblock(s, m0expr):
        A(f"s_add_u32 m0, {m0expr}\ns_add_u32 s33, s{s}, {HS}")
        for i in range(4):
            A(f"buffer_load_dwordx4 v{aH+i}, s[48:51], s{s} offen offset:{1024*i} sc1 lds")
            if i == 0: A(f"s_cmp_ge_u32 s33, s{eH}\ns_cselect_b32 s34, {14*HS}, 0")
        A(f"s_sub_u32 s{s}, s33, s34")
    nH = [0]
    def hissue(k):
        for _ in range(k):
            if nH[0] < 14:
                hblock(sH, f"s32, {nH[0]*BLK}"); nH[0] += 1
    def validate(b, k):
        ck = A.label("hv"); ok = A.label("hok"); rp = A.label("hrp")
        rds = [f"ds_read_b128 {v(VR+4*i,4)}, v{16+b//8} offset:{(b%8)*BLK+1024*i}" for i in range(4)]
        A(f"s_mov_b32 s45, 0\ns_waitcnt vmcnt({4*(nH[0]-1-b)})")
        for l in rds: A(l)
        hissue(k)
        A(f"{ck}:\ns_waitcnt lgkmcnt(0)\nv_max3_u32 v2, v{VR}, v{VR+1}, v{VR+2}\nv_max3_u32 v3, v{VR+3}, v{VR+4}, v{VR+5}")
        for i in range(3, 8): A(f"v_max3_u32 v{2+(i&1)}, v{2+(i&1)}, v{VR+2*i}, v{VR+2*i+1}")
        A(f"""
        v_max_u32 v2, v2, v3
        v_cmp_eq_u32 vcc, -1, v2
        {"s_cmp_eq_u32 s45, 0" if c.x_force else ""}
        {f"s_cbranch_scc1 {rp}f" if c.x_force else ""}
        s_cbranch_vccz {ok}
        {rp}f:
        {f"s_sleep {c.backoff}" if c.backoff else ""}
        s_add_u32 s45, s45, 1
        s_cmp_ge_u32 s45, {SPIN}
        s_cbranch_scc1 {ok}
        s_mov_b32 s43, s{sV}
        s_add_u32 s44, s32, {b*BLK}
        s_add_u32 s35, s32, {nH[0]*BLK}
        s_waitcnt vmcnt(0)
        {rp}:
        """)
        hblock(43, "s44, 0")
        A(f"s_add_u32 s44, s44, {BLK}\ns_cmp_lt_u32 s44, s35\ns_cbranch_scc1 {rp}\ns_waitcnt vmcnt({4*(nH[0]-1-b)})")
        for l in rds: A(l)
        A(f"s_branch {ck}\n{ok}:\ns_add_u32 s{sV}, s{sV}, {HS}\ns_cmp_ge_u32 s{sV}, s{eH}\ns_cselect_b32 s34, {14*HS}, 0\ns_sub_u32 s{sV}, s{sV}, s34")
    for _ in range(c.x_delay): A("s_sleep 127")
    hissue(c.h0)
    validate(0, 0); validate(1, 0)
    A("s_barrier")
    hs = list(c.hiss) + [1] * 14
    hissue(hs.pop(0))
    A("s_barrier")
    for i in range(1, 13):
        validate(i + 1, hs.pop(0))
        A("s_barrier")
    assert nH[0] == 14
    lp = A.label("hb")
    A(f"s_setprio 0\ns_mov_b32 s45, 17\n{lp}:\ns_barrier\ns_sub_u32 s45, s45, 1\ns_cmp_lg_u32 s45, 0\ns_cbranch_scc1 {lp}")
    fifo_put(20, 8, 40)
    A("s_waitcnt lgkmcnt(0)")
    if c.phase == 1: Prof(A, 3).flush(5)
    A(f"{end}:\ns_endpgm")
    A(f".p2align 3\n{hlp}:")
    gen_helper(A, c, Prof(A, 4))
    def rnd(l):
        u = np.float32(max(l, 0)).view(np.uint32)
        u = (int(u) + 0x7FFF + ((int(u) >> 16) & 1)) & 0xFFFF0000
        return int(np.uint32(u).view(np.float32))
    ad = [[(rnd(8 * b - 3 + r) & 7) * TP + (rnd(8 * b - 3 + r) >> 3) * 4 for r in range(12)] for b in range(256)]
    A(f".p2align 7\n.type {tab},@object\n{tab}:")
    for b in range(256): A(".long " + ", ".join("0x%08x" % (ad[b][2*k] | ad[b][2*k+1] << 16) for k in range(4)))
    for b in range(256): A(".long " + ", ".join("0x%08x" % (ad[b][2*k] | ad[b][2*k+1] << 16) for k in range(4, 6)))
    A(f".size {tab}, {256*24}")
    return kernel_desc(name, 168, 102)
```

```python
import sys, base
from base import *
import hz, al, pg, f1
HEAD = open("sequential_preLN__ssm_conv_s4d__geglu_ffn__prompt.s.ref").read().split("; Override launch")[0]
KN = "sequential_preLN__ssm_conv_s4d__geglu_ffn__prompt_kernel"
def variant(nm, prof=True, verbose=False, mod=f1, **kw):
    base.PROF = prof
    C = type("C", (mod.Cfg,), kw)
    A = Asm()
    d = mod.gen(A, KN, C, verbose)
    lines = hz.fix(A.L, verbose)
    lines, npro, nmis = al.fix(lines)
    lines, stubs = pg.fix(lines)
    if verbose: print('pages', stubs)
    s = HEAD + f"; @launch grid=(256,1,1) block=(768,1,1) lds={mod.F_LDS}\n"
    s += '.amdgcn_target "amdgcn-amd-amdhsa--gfx950"\n.text\n' + "\n".join(lines) + '\nLcode_end:\n.section .rodata,"a"\n' + d
    open(f"y_{nm}.s", "w").write(s)
    if prof: open(f"yc_{nm}.s", "w").write(s.replace("s_memrealtime", "s_memtime"))
if __name__ == "__main__":
    variant("a1", verbose=True, phase=1)
    variant("a2", phase=2)
    variant("n", prof=False)
```

```python
from fx import *
variant("n", prof=False)
variant("a1", phase=1)
variant("a2", phase=2)
variant("f1", phase=2, x_fine=[0,1,2,3,4,5,6,7,8,9,10,11])
variant("f2", phase=2, x_fine=[11,12,13,14,15,16,18,20,22,24,26,28])
```

```python
from base import *
import base
from ka import load_ptrs, cmul, cexp
import numpy as np
WS_E = 0x4000
WS_PZ = 0x5000
WS_XG = 0xA00000
XG_BYTES = 224 * 16384
REG = 16384
TP, GP = 1056, 272
KP = 4160
KB0 = 8704
UO, UPITCH = 74240, 4608
PARO = 98304
XT = 140288
TAGA = XT + 8192
BLK = 8192
NSL = 20
CON = 19 * BLK
F_LDS = NSL * BLK
GK0 = -2.0 * LOG2E * 0.7978845608028654
GK1 = GK0 * 0.044715
SPIN = 1 << 18

class Cfg:
    code_bytes = 49152
    prio_mid = 26
    poll_late = 2
    e1_first, e1_last = 15, 21
    e1_packed = False
    drain0 = (21, 25)
    pollA, chkA = 23, 26
    earlyT = (5, 5, 4)
    poll0 = 27
    ya_at, yb_at = 18, 25
    put_a = 3
    pace1, pace2, pace = 2, 1, {}
    pa_early = False
    g_pre = 0
    tdepth, tdepth2 = 22, 16
    gate_ahead = {14: 14, 28: 4, 42: 12}
    pollT1 = (20, 28)
    capP = 8
    caps = {}
    gat_issue, gat_check = 7, 9
    con_write = 11
    il = 2
    stflag = 'sc0 sc1'
    prioB = 2
    h0 = 5
    hiss = (1, 2, 1, 1, 1, 1, 1)
    ca_load = 10
    cs_issue = 5
    hdepth = 1
    fdepth = None
    x_delay = 0
    x_force = False
    backoff = 0
    rep_one = False
    x_nocs = False
    sweepW = False
    sweepD = True
    hramp = 0
    lfifo = (8, 14)
    hprio = 3
    pz_sleep = 4
    hnear = 3
    lf_at = 'C'
    hf_at = 'B'
    poi_at = '0'
    wide_h = True
    xp_at = 0
    gat_split = (3, 4)
    x_nogat = False
    x_fine = None
    phase = 1

def schedule(c):
    need = {("W", s): s for s in range(28)}
    last_use = {("W", s): s + 1 for s in range(28)}
    for t in range(28): last_use[("D", t)] = 1000
    free_at = {sl: (16 + sl if sl < 14 else -1) for sl in range(NSL)}
    slot = {}
    issue = {i: [] for i in range(-1, 29)}
    n = dict(W=0, D=0)
    cur = None
    def pick(i):
        nW, nD = n["W"], n["D"]
        wf = [sl for sl in range(14, NSL) if free_at[sl] <= i and (sl != 19 or i >= 15 or nW + 1 < c.con_write)]
        if nW < 28 and wf: return ("W", nW), wf[0]
        fr = [sl for sl in range(NSL) if free_at[sl] <= i and (sl < 14 or nW == 28)]
        if fr and nD < 14: return ("D", nD), fr[0]
        return None
    for i in range(-1, 29):
        cap = 24 if i < 0 else c.caps.get(i, c.capP)
        while cap > 0:
            if cur is None:
                p = pick(i)
                if p is None: break
                b, sl = p
                slot[b] = sl; free_at[sl] = last_use[b] + 1; n[b[0]] += 1
                cur = [b, 0]
            issue[i].append((cur[0][0], cur[0][1], cur[1])); cur[1] += 1; cap -= 1
            if cur[1] == 4: cur = None
    assert n["D"] == 14 and cur is None
    rest = [sl for sl in range(NSL) if free_at[sl] < 1000]
    assert len(rest) == 6
    for k, sl in enumerate(rest): slot[("D", 14 + k)] = sl
    for t in range(20, 28): slot[("D", t)] = slot[("D", t - 20)]
    if c.lf_at == 'P':
        for k, i in enumerate(range(*c.lfifo)): issue[i] += [("F", 14 + k, q) for q in range(4)]
    order = [b for i in range(0, 29) for b in issue[i]]
    pos = {b: k for k, b in enumerate(order)}
    wait = {}
    cnt = 0
    for i in range(0, 29):
        cnt += len(issue[i])
        req = [b for b in need if need[b] == i + 1 and b + (3,) in pos]
        wait[i] = None if not req else cnt - 1 - max(pos[b + (3,)] for b in req)
        if i == 28: wait[i] = 0
        assert wait[i] is None or wait[i] >= 0, (i, req)
    return issue, slot, wait

def gen_helper(A, c, P):
    sweep = A.label("Hsw")
    A(f"""
    s_sub_u32 s44, s2, 224
    s_lshr_b32 s45, s44, 3
    s_bfe_u32 s46, s44, 0x20001
    s_lshl_b32 s46, s46, 2
    s_add_u32 s46, s46, s45
    s_and_b32 s44, s44, 1
    s_waitcnt lgkmcnt(0)
    s_cmp_ge_u32 s46, 14
    s_cbranch_scc1 {sweep}
    v_and_b32 v1, 15, v0
    v_lshrrev_b32 v2, 4, v0
    v_mul_u32_u24 v2, 3584, v2
    v_lshl_add_u32 v2, v1, 4, v2
    s_cmp_ge_u32 s46, 7
    s_cselect_b32 s47, 7, 0
    s_cselect_b32 s48, s22, s20
    s_cselect_b32 s49, s23, s21
    s_sub_u32 s46, s46, s47
    s_mul_i32 s50, s44, 7
    s_add_u32 s46, s46, s50
    s_lshl_b32 s47, s47, 1
    s_add_u32 s52, s46, s47
    s_lshl_b32 s47, s46, 8
    s_mov_b32 s50, {W_BYTES}
    s_mov_b32 s51, 0x20000
    """)
    for p in range(14):
        A(f"buffer_load_dwordx4 {v(16+4*p,4)}, v2, s[48:51], s47 offen")
        if p < 13: A("s_add_u32 s47, s47, %d" % (32 * 3584))
        if p < c.hramp: A("s_waitcnt vmcnt(0)")
    A("s_mov_b32 s42, 0x00003f80\ns_mov_b32 s43, 0x3f800000")
    for p in range(14):
        A(f"s_waitcnt vmcnt({13-p})")
        for q in range(4):
            for hl in range(2):
                acc = 4 + 2 * q + hl
                A(f"v_dot2_f32_bf16 v{acc}, v{16+4*p+q}, s{42+hl}, {'0' if p == 0 else 'v%d' % acc}")
    for op in ("v_permlane16_swap_b32", "v_permlane32_swap_b32"):
        for q in range(8): A(f"v_mov_b32 v{16+q}, v{4+q}")
        for q in range(8): A(f"{op} v{4+q}, v{16+q}")
        for q in range(8): A(f"v_add_f32 v{4+q}, v{4+q}, v{16+q}")
    A(f"""
    v_lshrrev_b32 v2, 6, v0
    v_lshlrev_b32 v2, 9, v2
    v_lshl_add_u32 v2, v1, 5, v2
    s_mov_b64 exec, 0xffff
    ds_write_b128 v2, v[4:7]
    ds_write_b128 v2, v[8:11] offset:16
    s_mov_b64 exec, -1
    s_waitcnt lgkmcnt(0)
    s_barrier
    s_cmp_ge_u32 s36, 2
    s_cbranch_scc1 {sweep}
    v_lshlrev_b32 v1, 2, v0
    ds_read2st64_b32 v[4:5], v1 offset0:0 offset1:2
    ds_read2st64_b32 v[6:7], v1 offset0:4 offset1:6
    ds_read2st64_b32 v[8:9], v1 offset0:8 offset1:10
    ds_read2st64_b32 v[10:11], v1 offset0:12 offset1:14
    s_waitcnt lgkmcnt(0)
    v_pk_add_f32 v[4:5], v[4:5], v[6:7]
    v_pk_add_f32 v[8:9], v[8:9], v[10:11]
    v_pk_add_f32 v[4:5], v[4:5], v[8:9]
    v_add_f32 v4, v4, v5
    s_mov_b32 s43, 0xffff0000
    v_cvt_pk_bf16_f32 v5, v4, v4
    v_and_b32 v5, s43, v5
    v_sub_f32 v6, v4, v5
    v_cvt_pk_bf16_f32 v8, v5, v6
    v_and_b32 v7, s43, v8
    v_sub_f32 v6, v6, v7
    v_cvt_pk_bf16_f32 v9, v6, 0
    s_lshl_b32 s46, s52, 10
    s_add_u32 s46, s46, {WS_CS}
    v_lshl_add_u32 v1, v1, 1, s46
    global_store_dwordx2 v1, v[8:9], s[30:31] sc0 sc1
    s_mov_b32 s46, 1
    s_waitcnt vmcnt(0)
    s_atomic_add s46, s[28:29], 0
    {sweep}:
    """)
    P.stamp(1)
    done = A.label("Hdone")
    A(f"""
    s_cmp_ge_u32 s36, 7
    s_cbranch_scc1 {done}
    v_lshrrev_b32 v2, 3, v0
    v_mul_u32_u24 v2, 3584, v2
    v_and_b32 v3, 7, v0
    v_min_u32 v3, 6, v3
    v_lshl_add_u32 v2, v3, 8, v2
    s_mul_i32 s46, s45, {112*3584}
    s_mul_i32 s47, s44, 1792
    s_add_u32 s46, s46, s47
    v_add_u32 v2, s46, v2
    v_add_u32 v3, {56*3584}, v2
    s_mul_i32 s46, s45, {128*896}
    v_lshl_add_u32 v4, v0, 7, s46
    """)
    def wpass(h):
        for m in (20, 22):
            for r in (2, 3): A(f"global_load_dword v8, v{r}, s[{m}:{m+1}] offset:{128*h}\ns_waitcnt vmcnt({c.hdepth})")
    if c.sweepW: wpass(0); wpass(1)
    for k in range(4 if c.sweepD else 0):
        if k == 3: A(f"s_cmp_ge_u32 s45, 2\ns_cbranch_scc1 {done}")
        A(f"global_load_dword v8, v4, s[24:25]\nv_add_u32 v4, {4*128*896}, v4\ns_waitcnt vmcnt({c.hdepth})")
    A(f"{done}:\ns_waitcnt lgkmcnt(0)")
    P.flush(2)
    A("s_endpgm")

def gen(A, name, c=Cfg, verbose=False):
    issue, slot, wait = schedule(c)
    if verbose:
        for i in range(-1, 29): print(i, ' '.join(k + str(j) + '.' + str(q) for k, j, q in issue[i]), wait.get(i))
        print({k: x for k, x in slot.items() if k[0] == "D"})
    kernel_head(A, name)
    end = A.label("end"); hlp = A.label("hlp"); kw_ = A.label("kw"); nw = A.label("nw"); tab = A.label("tab")
    auxt = A.label("auxt"); auxs = A.label("auxs"); til = A.label("til"); hold = A.label("hold")
    P0 = Prof(A, 1)
    class PH:
        def __init__(s, ph, kid=1): s.on = c.phase == ph; s.P = Prof(A, kid)
        def stamp(s, i):
            if s.on: s.P.stamp(i)
    P = PH(1); PA = PH(1, 3)
    class Bars:
        def __init__(s, marks, n1, kid=1): s.n = 0; s.marks = c.x_fine or marks; s.on = c.phase == 2; s.n1 = n1; s.P = Prof(A, kid)
        def bar(s):
            A("s_barrier")
            if s.on and s.n in s.marks: s.P.stamp(1 + s.marks.index(s.n))
            s.n += 1
        def mark(s, k):
            if s.on and not c.x_fine: s.P.stamp(1 + len(s.marks) + k)
        def fin(s, k=0):
            if not s.on: s.P.flush(s.n1); return
            k = 0 if c.x_fine else k
            s.P.stamp(1 + len(s.marks) + k); s.P.flush(2 + len(s.marks) + k)
    A(f"s_cmp_ge_u32 s2, 256\ns_cbranch_scc1 {end}")
    P0.stamp(0)
    load_ptrs(A)
    A(f"s_getpc_b64 s[60:61]\nLpc:")
    vLane, vG, vJ = 1, 2, 3
    per = (c.code_bytes // 128 + 63) // 64
    vRow, vXG = 16, 48
    ffn_ids = """
    s_and_b32 s37, s2, 7
    s_lshr_b32 s38, s2, 3
    s_and_b32 s40, s38, 3
    s_lshr_b32 s39, s37, 1
    s_lshl_b32 s39, s39, 2
    s_add_u32 s39, s39, s40
    s_and_b32 s34, s37, 1
    s_lshr_b32 s35, s38, 2
    s_mul_i32 s38, s34, 7
    s_add_u32 s38, s38, s35
    s_mul_i32 s33, s40, 3
    s_lshl_b32 s37, s35, 1
    s_add_u32 s33, s33, s37
    s_cmp_ge_u32 s33, 14
    s_cselect_b32 s37, 14, 0
    s_sub_u32 s33, s33, s37
    """
    A(f"""
    v_lshrrev_b32 v4, 6, v0
    v_and_b32 v{vLane}, 63, v0
    s_and_b32 s37, s2, 7
    v_readfirstlane_b32 s36, v4
    s_mul_i32 s37, s37, 28
    s_lshr_b32 s38, s2, 3
    s_add_u32 s37, s37, s38
    s_mov_b32 s43, 0xffff0000
    s_cmp_lt_u32 s36, 8
    s_cbranch_scc1 {kw_}
    s_setprio 3
    v_lshrrev_b32 v5, 3, v{vLane}
    v_and_b32 v6, 7, v{vLane}
    v_mul_u32_u24 v7, 896, v5
    s_cmp_lt_u32 s36, 10
    s_cbranch_scc1 {til}
    s_and_b32 s36, s36, 1
    s_lshr_b32 s62, s2, 2
    s_and_b32 s62, s62, 62
    s_add_u32 s62, s62, s36
    s_mul_i32 s62, s62, {per*128}
    v_min_u32 v10, {per-1}, v{vLane}
    v_lshl_add_u32 v10, v10, 7, s62
    v_min_u32 v10, Lcode_end-Lpc-4, v10
    global_load_dword v99, v10, s[60:61]
    s_mul_i32 s47, s36, 224
    s_add_u32 s47, s47, s2
    s_cmp_ge_u32 s2, 224
    s_cbranch_scc1 {end}
    s_mul_i32 s48, s47, {8*896}
    v_lshl_add_u32 v8, v6, 4, v7
    v_add_u32 v8, s48, v8
    s_cmp_ge_u32 s47, 256
    s_waitcnt lgkmcnt(0)
    s_load_dword s56, s[30:31], {WS_E}
    s_cbranch_scc1 {hold}
    """)
    for i in range(7): A(f"global_load_dwordx4 {v(vRow+4*i,4)}, v8, s[4:5] offset:{128*i}")
    A(f"""
    s_branch {auxs}
    {til}:
    s_cmp_ge_u32 s2, 224
    s_cbranch_scc1 {end}
    s_and_b32 s36, s36, 1
    s_mul_i32 s46, s2, 9363
    s_lshr_b32 s46, s46, 16
    s_mul_i32 s47, s46, 7
    s_sub_u32 s47, s2, s47
    s_lshl_b32 s46, s46, 1
    s_add_u32 s46, s46, s36
    s_mul_i32 s49, s46, {32*896}
    s_lshl_b32 s48, s47, 7
    s_add_u32 s49, s49, s48
    s_lshl_b32 s47, s47, 19
    s_lshl_b32 s46, s46, 8
    s_add_u32 s51, s47, s46
    s_lshl_b32 s46, s36, 12
    s_add_u32 s46, s46, {XT}
    s_mov_b32 m0, s46
    v_lshrrev_b32 v4, 1, v5
    v_xor_b32 v4, v4, v6
    v_lshl_add_u32 v12, v4, 4, v7
    v_xor_b32 v4, 4, v4
    v_lshl_add_u32 v13, v4, 4, v7
    v_add_u32 v13, {8*896-1024}, v13
    v_add_u32 v14, {16*896-2048}, v12
    v_add_u32 v15, {16*896-2048}, v13
    s_mov_b32 s34, {X_BYTES}
    s_mov_b32 s35, 0x20000
    s_waitcnt lgkmcnt(0)
    s_mov_b32 s32, s4
    s_mov_b32 s33, s5
    """)
    for i in range(4): A(f"buffer_load_dwordx4 v{12+i}, s[32:35], s49 offen offset:{1024*i} lds")
    A(f"s_load_dword s57, s[30:31], {WS_E}")
    A(f"s_branch {auxt}\n{kw_}:\ns_cmp_ge_u32 s2, 224\ns_cbranch_scc1 {hlp}")
    vP, vDT = 8, 12
    a2, b2 = 14, 15
    w1, w256, w2, w512 = 16, 18, 20, 22
    tA, tB, tC = 24, 26, 28
    G, G2, Hh, W4, HT, CV = 30, 46, 62, 68, 70, 78
    vTB, vA, vBc, vRA = 88, 94, 95, 96
    A(f"""
    v_mov_b32 v{vP}, 0
    v_mov_b32 v{vP+1}, 0
    v_mov_b32 v{vP+2}, 0
    v_mov_b32 v{vP+3}, 0
    s_lshl_b32 s48, s37, 10
    v_lshl_add_u32 v4, v0, 1, s48
    s_lshl_b32 s48, s37, 2
    s_lshl_b32 s56, s36, 14
    s_mov_b32 m0, s56
    s_lshr_b32 s38, s36, 2
    s_add_u32 s62, s60, {tab}-Lpc+2048
    s_addc_u32 s63, s61, 0
    s_waitcnt lgkmcnt(0)
    s_load_dword s52, s[14:15], s48
    global_load_short_d16_hi v{vP}, v4, s[6:7]
    global_load_short_d16_hi v{vP+1}, v4, s[8:9]
    global_load_short_d16_hi v{vP+2}, v4, s[10:11]
    global_load_short_d16_hi v{vP+3}, v4, s[12:13]
    s_load_dword s53, s[16:17], s48
    """)
    P.stamp(1)
    A(f"""
    v_bfe_u32 v{vG}, v0, 5, 1
    v_and_b32 v{vJ}, 31, v0
    s_lshl_b32 s46, s36, 15
    v_mul_u32_u24 v4, {GP}, v{vJ}
    v_lshl_add_u32 v4, v{vG}, 4, v4
    v_add_u32 v{vRA}, s46, v4
    s_bfe_u32 s39, s36, 0x10001
    s_and_b32 s40, s36, 1
    s_lshl_b32 s48, s39, 15
    s_lshl_b32 s47, s40, 8
    s_add_u32 s48, s48, s47
    s_add_u32 s48, s48, {KB0+64-24}
    v_and_b32 v4, 3, v0
    v_sub_u32 v4, 3, v4
    v_mul_u32_u24 v4, {KP}, v4
    v_bfe_u32 v5, v0, 2, 2
    v_lshl_add_u32 v4, v5, 3, v4
    v_bfe_u32 v5, v0, 4, 2
    v_lshl_add_u32 v4, v5, 4, v4
    v_add_u32 v{vA}, s48, v4
    s_mul_i32 s48, s39, {UPITCH}
    s_sub_u32 s48, s48, s47
    s_add_u32 s48, s48, {UO+512+16-192}
    v_and_b32 v4, 15, v0
    v_lshlrev_b32 v4, 5, v4
    v_lshlrev_b32 v5, 4, v5
    v_sub_u32 v4, v4, v5
    v_add_u32 v{vBc}, s48, v4
    s_add_u32 s64, s30, {WS_XG}
    s_addc_u32 s65, s31, 0
    s_mov_b32 s66, {XG_BYTES}
    s_mov_b32 s67, 0x20000
    s_and_b32 s47, s36, 3
    s_lshl_b32 s47, s47, 12
    v_lshl_add_u32 v97, v{vLane}, 4, s47
    s_lshl_b32 s44, s37, 14
    s_mov_b32 s54, {f32(8.0)}
    s_mov_b32 s55, {f32(256.0)}
    s_lshl_b32 s46, s38, 4
    v_mov_b32 v{vDT}, {f32(LOG2E)}
    s_cmp_lt_u32 s36, 4
    s_cbranch_scc1 Lnoprio
    s_setprio 1
    Lnoprio:
    s_waitcnt lgkmcnt(0)
    s_lshr_b32 s52, s52, s46
    s_lshl_b32 s52, s52, 16
    v_mul_f32 v{vDT}, s52, v{vDT}
    v_exp_f32 v{vDT}, v{vDT}
    v_cvt_pk_bf16_f32 v{vDT}, v{vDT}, v{vDT}
    v_and_b32 v{vDT}, s43, v{vDT}
    s_and_b32 s59, s53, s43
    s_lshl_b32 s58, s53, 16
    v_add_f32 v6, v{vDT}, v{vDT}
    """)
    P.stamp(2)
    A(f"""
    s_waitcnt vmcnt(2)
    v_mul_f32 v4, {f32(LOG2E)}, v{vP}
    v_exp_f32 v4, v4
    v_mul_f32 v{b2}, v{vP+1}, v{vDT}
    v_cvt_pk_bf16_f32 v4, v4, v4
    v_and_b32 v4, s43, v4
    v_mul_f32 v{a2}, v4, v{vDT}
    v_mul_f32 v{b2}, 0.15915494, v{b2}
    v_mul_f32 v{a2}, {f32(-LOG2E)}, v{a2}
    """)
    P.stamp(3)
    nb_ = [0]
    vPX, vPS_, vPA = 100, 116, 97
    xp = [f"buffer_load_dwordx4 {v(vPX+4*q,4)}, v{vPA}, s[64:67], s44 offen offset:{1024*q} sc1" for q in range(4)]
    xp += [f"global_load_dwordx4 {v(vPS_+4*q,4)}, v{vPA}, s[30:31] offset:{1024*q} sc1" for q in range(4)]
    def put(src, row, neg):
        r = CV + (nb_[0] & 7); nb_[0] += 1
        x = [f"v_cvt_pk_bf16_f32 v{r}, v{src}, {'-' if neg else ''}v{src+1}", f"ds_write_addtid_b32 v{r} offset:{row*GP}"]
        if nb_[0] == c.prio_mid: x[1] += "\ns_setprio 0"
        if nb_[0] == c.xp_at: x[1] += "\ns_cmp_lt_u32 s36, 4\ns_cbranch_scc1 Lnoxp\n" + "\n".join(xp) + "\nLnoxp:"
        return x
    def spread(puts, work):
        o = []
        while puts or work:
            p = puts.pop(0) if puts else None
            if p: o.append(p[0])
            if work: o += work.pop(0)
            if p: o.append(p[1])
        return o
    GR = 32
    for l in cexp(Hh, a2, b2, "s54", tA): A(l)
    A(f"v_mov_b32 v{CV+8}, 0x3f80\nds_write_addtid_b32 v{CV+8}")
    for l in cmul(Hh+2, Hh, Hh) + cmul(Hh+4, Hh+2, Hh) + cmul(W4, Hh+2, Hh+2): A(l)
    ex = merge(cexp(w1, a2, b2, None, tB), cexp(w256, a2, b2, "s55", tC))
    ex += ["s_waitcnt vmcnt(0)", f"v_mul_f32 v{G}, v{vP+2}, v6", f"v_mul_f32 v{G+1}, v{vP+3}, v6",
           "v_min_u32 v5, 255, v0\nv_lshlrev_b32 v6, 4, v5", "v_lshlrev_b32 v5, 3, v5",
           f"global_load_dwordx4 {v(vTB,4)}, v6, s[62:63] offset:-2048", f"global_load_dwordx2 {v(vTB+4,2)}, v5, s[62:63] offset:2048"]
    ex += cmul(w2, w1, w1) + cmul(G+2, G, w1) + cmul(w512, w256, w256)
    cur = [Hh, Hh+2, Hh+4, W4]; nxt = [HT, HT+2, HT+4, HT+6]; alt = [G2, G2+2, G2+4, G2+6]
    j = 1
    while j < 32:
        pend = [put(cur[r], j + r, False) for r in range(4) if j + r < 32]
        wk = [cmul(nxt[r], cur[r], W4) + [ex.pop(0) for _ in range(1) if ex] for r in range(4) if j + 4 + r < 32]
        if j + 4 >= 32: wk = [cmul(G+2*i, G+2*(i-2), w2) for i in range(2, 5)]
        for l in spread(pend, wk): A(l)
        cur, nxt = nxt, (alt if nxt[0] == HT else [HT, HT+2, HT+4, HT+6])
        j += 4
    assert not ex
    wk = [cmul(G+2*i, G+2*(i-2), w2) for i in range(5, 8)] + [cmul(G2+2*k, G+4*k, w256) for k in range(4)] + [cmul(G2+8, G, w512)]
    for l in spread([put(G+2*i, GR+i, True) for i in range(8)], wk): A(l)
    wk = [cmul(G2+10, G+8, w512), cmul(G2+12, G2, w512), cmul(G2+14, G2+4, w512), cmul(G, G2+8, w512), cmul(G+2, G2+12, w512), cmul(G+4, G, w512), cmul(G+6, G+2, w512), cmul(G+8, G+4, w512)]
    for l in spread([put(G2+2*i, GR+8+i, True) for i in range(8)], wk): A(l)
    for l in spread([put(G+2*i, GR+16+i, True) for i in range(5)], []): A(l)
    P.stamp(4)
    A(f"s_cmp_ge_u32 s36, 4\ns_cbranch_scc1 {nw}")
    vACC, vEA, FR, TA_ = 8, 30, 100, 44
    tabprep = [f"s_lshl_b32 s46, s36, 15", f"v_lshl_add_u32 v4, v{vJ}, 2, s46", f"v_mul_u32_u24 v5, {4*TP}, v{vG}", "v_add_u32 v5, v5, v4", f"v_xor_b32 v7, 1, v{vG}"]
    tmin = []
    for b in range(4):
        o0 = 2 * b * TP + 128; o1 = 4 * (b & 1) * TP + 256 + 128 * (b >> 1)
        tabprep += [f"v_mul_u32_u24 v{TA_+b}, {abs(o1-o0)}, v{vG if o1 > o0 else 7}", f"v_add_u32 v{TA_+b}, v{TA_+b}, v4"]
        tmin.append(min(o0, o1))
    tabprep += [f"v_lshl_add_u32 v{TA_+4}, v{vG}, 9, v4", "s_waitcnt vmcnt(0)"]
    for r in range(11):
        tabprep += [f"v_and_b32 v{vEA+r}, 0xffff, v{vTB+(r>>1)}" if r % 2 == 0 else f"v_lshrrev_b32 v{vEA+r}, 16, v{vTB+(r>>1)}"]
    tabprep += ["v_cmp_ne_u32 s[44:45], 0, v0", f"v_lshlrev_b32 v6, 4, v0"]
    A("s_waitcnt lgkmcnt(0)\ns_barrier")
    P.stamp(5)
    def frd(n):
        b = FR + 8 * (n & 7); o = (n >> 3) * REG + 32 * (n & 7)
        return f"ds_read_b128 {v(b,4)}, v{vRA} offset:{GR*GP+o}\nds_read_b128 {v(b+4,4)}, v{vRA} offset:{o}"
    for n in range(6): A(frd(n))
    for n in range(16):
        b0 = FR + 8 * (n & 7)
        A(f"s_waitcnt lgkmcnt({2*min(5, 15-n)})\nv_mfma_f32_32x32x16_bf16 {v(vACC,16)}, {v(b0,4)}, {v(b0+4,4)}, {'0' if n == 0 else v(vACC,16)}")
        if n + 6 < 16: A(frd(n + 6))
        for l in tabprep[2*n:2*n+2]: A(l)
    assert len(tabprep) <= 32
    vW, vR, vO = 97, 98, 99
    A(f"""
    s_lshl_b32 s46, s36, 12
    s_add_u32 s46, s46, {PARO}
    v_lshl_add_u32 v{vW}, v{vLane}, 4, s46
    v_xor_b32 v{vR}, 0x1000, v{vW}
    s_lshl_b32 s46, s40, 10
    s_lshl_b32 s47, s39, 15
    s_add_u32 s47, s47, s46
    v_lshl_add_u32 v3, v{vLane}, 4, s47
    s_cmp_eq_u32 s40, 0
    s_cselect_b64 s[48:49], 0, -1
    s_cselect_b64 s[50:51], -1, 0
    """)
    for b in range(4): A(f"ds_write_b32 v5, v{vACC+b} offset:{TP*b}")
    for b in range(4): A(f"ds_write_b32 v{TA_+b}, v{vACC+4+b} offset:{tmin[b]}")
    A(f"s_mov_b32 exec_hi, 1\nds_write_b32 v{TA_+4}, v{vACC+8} offset:512\ns_mov_b32 exec_hi, 0")
    for b in range(1, 4): A(f"ds_write_b32 v{TA_+4}, v{vACC+8+b} offset:{512+128*b}")
    A("s_mov_b32 exec_hi, -1\ns_waitcnt lgkmcnt(0)\ns_barrier")
    P.stamp(6)
    EV, CB = 100, 44
    for r in range(11): A(f"ds_read2st64_b32 {v(EV+2*r,2)}, v{vEA+r} offset0:0 offset1:128\nv_add_u32 v{vEA+r}, 0x10000, v{vEA+r}")
    for r in range(11): A(f"ds_read2st64_b32 {v(EV+22+2*r,2)}, v{vEA+r} offset0:0 offset1:128")
    for ch in range(2):
        E = EV + 22 * ch
        A(f"s_waitcnt lgkmcnt({11 if ch == 0 else 4})")
        for r in range(11): A(f"v_add_f32 v{E+2*r}, v{E+2*r}, v{E+2*r+1}")
        for r in range(3): A(f"v_cndmask_b32 v{E+2*r}, 0, v{E+2*r}, s[44:45]")
        for cp in range(4):
            b = CB + 16 * ch + 4 * cp
            for k in range(4):
                r0 = 3 - cp + 2 * k
                A(f"v_cvt_pk_bf16_f32 v{b+k}, v{E+2*r0}, v{E+2*r0+2}")
            A(f"ds_write_b128 v6, {v(b,4)} offset:{KB0+64+32768*ch+cp*KP}")
    P.stamp(7)
    A("s_waitcnt lgkmcnt(0)\ns_barrier")
    P.stamp(8)
    AC = 8
    FBs = [40 + 8 * k for k in range(6)] + [100 + 8 * k for k in range(6)]
    def rd(Gi):
        r, n = Gi >> 3, Gi & 7
        b = FBs[Gi % 12]
        return [f"ds_read_b64 {v(b,2)}, v{vA} offset:{512*n+64*r}", f"ds_read_b64 {v(b+2,2)}, v{vA} offset:{512*n+64*r+8}",
                f"ds_read_b128 {v(b+4,4)}, v{vBc} offset:{512*n+64*(3-r)}"]
    def send(t): return f"s_mov_b64 exec, s[{48+2*(t&1)}:{49+2*(t&1)}]\nds_write_b128 v{vW}, {v(AC+4*t,4)} offset:{1024*(t>>1)}\ns_mov_b64 exec, -1"
    for Gi in range(4):
        for l in rd(Gi): A(l)
    A(f"""
    s_lshl_b32 s46, s37, 1
    s_add_u32 s46, s46, s39
    s_lshl_b32 s46, s46, 12
    s_lshl_b32 s47, s40, 9
    s_add_u32 s46, s46, s47
    s_add_u32 s46, s46, {WS_HT}
    v_and_b32 v4, 15, v0
    v_bfe_u32 v5, v0, 4, 2
    v_lshlrev_b32 v4, 5, v4
    v_lshrrev_b32 v6, 1, v5
    v_lshl_add_u32 v4, v6, 4, v4
    v_and_b32 v5, 1, v5
    v_lshl_add_u32 v4, v5, 10, v4
    v_add_u32 v{vO}, s46, v4
    """)
    started = set()
    for Gi in range(32):
        r, n = Gi >> 3, Gi & 7
        pairs = [(a, b) for a in range(n + 1) for b in range(n + 1) if max(a, b) == n and a + b <= 7]
        pairs.sort(key=lambda p: p[0] + p[1])
        nr = rd(Gi + 4) if Gi + 4 < 32 else []
        if Gi <= 28: A("s_waitcnt lgkmcnt(9)")
        if Gi == 29: A("s_waitcnt lgkmcnt(2)")
        for k, (a, b) in enumerate(pairs):
            t = a + b
            cc = v(AC + 4 * t, 4) if t in started else "0"
            started.add(t)
            A(f"v_mfma_f32_16x16x32_bf16 {v(AC+4*t,4)}, {v(FBs[(8*r+a)%12],4)}, {v(FBs[(8*r+b)%12]+4,4)}, {cc}")
            if nr: A(nr.pop(0))
            if Gi == 28 and k in (0, 2, 4, 6): A(send(k // 2))
            if Gi in (29, 30) and k == 1: A(send(n - 1))
        for l in nr: A(l)
    A(send(6)); A(send(7))
    P.stamp(9)
    A("s_waitcnt lgkmcnt(0)\ns_barrier")
    PR, PP = 100, 116
    for q in range(4): A(f"ds_read_b128 {v(PR+4*q,4)}, v{vR} offset:{1024*q}\nds_read_b128 {v(PP+4*q,4)}, v3 offset:{2048*q}")
    odd = A.label("odd"); jn = A.label("jn")
    A(f"s_cmp_eq_u32 s40, 1\ns_cbranch_scc1 {odd}")
    for par in range(2):
        if par: A(f"{odd}:")
        for q in range(4):
            A(f"s_waitcnt lgkmcnt({6-2*q})")
            k = AC + 4 * (2 * q + par)
            for h in range(2): A(f"v_pk_add_f32 {v(PR+4*q+2*h,2)}, {v(PR+4*q+2*h,2)}, {v(k+2*h,2)}")
            for h in range(2): A(f"v_pk_add_f32 {v(PR+4*q+2*h,2)}, {v(PR+4*q+2*h,2)}, {v(PP+4*q+2*h,2)}")
            o_ = 132 + 2 * q
            A(f"v_cvt_pk_bf16_f32 v{o_}, v{PR+4*q}, v{PR+4*q+1}\nv_cvt_pk_bf16_f32 v{o_+1}, v{PR+4*q+2}, v{PR+4*q+3}")
            if q & 1:
                A(f"v_permlane16_swap_b32 v{o_-2}, v{o_}\nv_permlane16_swap_b32 v{o_-1}, v{o_+1}")
                A(f"global_store_dwordx4 v{vO}, {v(o_-2,4)}, s[30:31] offset:{1024*(q-1)} sc0 sc1")
        if not par: A(f"s_branch {jn}")
    A(f"{jn}:")
    P.stamp(10)
    vB, vAa, vS, vCR, vCA = 8, 10, 12, 14, 16
    vX = 18
    CN, CA, MB = 24, 32, 38
    F = [48, 64, 80]
    ACC = 96
    T1, T2, OUT = 48, 56, 64
    def csetup():
        A(ffn_ids)
        A(f"""
        s_and_b32 s40, s36, 1
        s_bfe_u32 s41, s36, 0x10001
        s_lshr_b32 s49, s36, 2
        v_bfe_u32 v2, v{vLane}, 2, 2
        v_bfe_u32 v3, v{vLane}, 4, 1
        v_lshrrev_b32 v4, 5, v{vLane}
        v_and_b32 v6, 3, v{vLane}
        v_lshl_add_u32 v5, v4, 3, v2
        v_lshlrev_b32 v7, 8, v5
        v_lshl_add_u32 v7, v6, 3, v7
        v_lshl_add_u32 v7, v3, 5, v7
        s_lshl_b32 s42, s40, 1
        s_add_u32 s42, s42, s41
        v_xor_b32 v{vB}, s42, v2
        v_lshl_add_u32 v{vB}, v{vB}, 6, v7
        v_xor_b32 v{vB+1}, 64, v{vB}
        s_lshl_b32 s42, s34, 1
        s_add_u32 s42, s42, s40
        v_xor_b32 v{vX}, s42, v2
        v_lshl_add_u32 v{vX}, v{vX}, 6, v7
        v_lshlrev_b32 v7, 7, v5
        v_lshl_add_u32 v7, v6, 3, v7
        v_lshl_add_u32 v7, v3, 12, v7
        v_lshrrev_b32 v5, 1, v2
        v_lshl_add_u32 v5, v3, 1, v5
        s_lshl_b32 s42, s41, 1
        v_xor_b32 v5, s42, v5
        v_lshl_add_u32 v7, v5, 5, v7
        v_add_u32 v{vAa}, {14*BLK}, v7
        v_xor_b32 v{vAa+1}, 32, v{vAa}
        s_lshl_b32 s42, s39, 2
        s_lshl_b32 s43, s40, 1
        s_add_u32 s42, s42, s43
        s_add_u32 s43, s42, s41
        s_xor_b32 s44, s43, 1
        s_lshl_b32 s45, s38, 3
        s_lshl_b32 s46, s41, 1
        s_add_u32 s45, s45, s46
        s_lshl_b32 s46, s49, 2
        s_add_u32 s45, s45, s46
        s_lshl_b32 s46, s45, 7
        s_add_u32 s45, s45, {WS_ACT // 1024}
        s_mul_i32 s43, s43, 112
        s_mul_i32 s44, s44, 112
        s_add_u32 s43, s43, s45
        s_add_u32 s44, s44, s45
        s_lshl_b32 s43, s43, 10
        s_lshl_b32 s44, s44, 10
        v_lshl_add_u32 v{vS}, v{vLane}, 4, s43
        v_lshl_add_u32 v{vS+1}, v{vLane}, 4, s44
        v_and_b32 v5, 15, v{vLane}
        v_mul_u32_u24 v7, {F_*8}, v3
        v_lshl_add_u32 v5, v5, 3, v7
        s_add_u32 s46, s46, {WS_CS}
        v_add_u32 v{vCA}, s46, v5
        v_and_b32 v5, 31, v{vLane}
        s_lshl_b32 s42, s40, 1
        s_add_u32 s42, s42, s41
        s_lshl_b32 s43, s42, 9
        s_add_u32 s43, s43, {CON}
        v_lshl_add_u32 v{vCR}, v5, 4, s43
        v_xor_b32 v{vCR+1}, 512, v{vCR}
        s_lshl_b32 s43, s39, 11
        s_lshl_b32 s44, s41, 8
        s_add_u32 s43, s43, s44
        s_add_u32 s43, s43, {WS_FLAGS}
        s_lshl_b32 s44, s34, 10
        s_add_u32 s59, s43, s44
        s_lshl_b32 s44, s40, 10
        s_add_u32 s58, s43, s44
        s_lshl_b32 s44, s49, 9
        s_add_u32 s58, s58, s44
        v_mov_b32 v{CA+4}, 0
        v_mov_b32 v{CA+5}, 0
        v_mov_b32 v{MB+2}, 0
        v_mov_b32 v{MB+3}, 0
        v_mov_b32 v{MB+6}, 0
        v_mov_b32 v{MB+7}, 0
        v_cmp_eq_u32 s[52:53], 0, v4
        s_mov_b32 s47, 0x3f803f80
        s_mov_b32 s48, 0xffff0000
        """)
    caload = [f"global_load_dwordx2 {v(CA,2)}, v{vCA}, s[30:31] sc1", f"global_load_dwordx2 {v(CA+2,2)}, v{vCA}, s[30:31] offset:128 sc1"]
    def preads(p, j):
        s, ks = j >> 1, j & 1
        f = F[j % 3]
        ho = (s % 8) * BLK + 4096 * ks
        wo = (slot[("W", 14 * p + s)] - 14) * BLK + 2048 * ks
        o = []
        for kind, i in (("B", 0), ("A", 0), ("B", 1), ("A", 1)):
            if kind == "B": o += [f"ds_read_b64_tr_b16 {v(f+8+4*i,2)}, v{vB+i} offset:{ho}", f"ds_read_b64_tr_b16 {v(f+10+4*i,2)}, v{vB+i} offset:{ho+1024}"]
            else: o += [f"ds_read_b64_tr_b16 {v(f+4*i,2)}, v{vAa+i} offset:{wo}", f"ds_read_b64_tr_b16 {v(f+2+4*i,2)}, v{vAa+i} offset:{wo+512}"]
        return o
    def pmfma(j, first=False):
        f = F[j % 3]
        return [f"v_mfma_f32_32x32x16_bf16 {v(ACC+32*t+16*rt,16)}, {v(f+4*t,4)}, {v(f+8+4*rt,4)}, {'0' if first else v(ACC+32*t+16*rt,16)}" for (t, rt) in ((0, 0), (0, 1), (1, 0), (1, 1))]
    def corr(first):
        return [f"v_mfma_f32_32x32x16_bf16 {v(ACC+32*t+16*rt,16)}, {v(CA+2*t,4)}, {v(MB+4*rt,4)}, {'0' if first else v(ACC+32*t+16*rt,16)}" for t in range(2) for rt in range(2)]
    mkmb = [f"v_cndmask_b32 v{MB+4*rt+k}, 0, v{CN+4*rt+3}, s[52:53]" for rt in range(2) for k in range(2)]
    def inter(m, r):
        per_ = (len(r) + 3) // 4
        for i in range(4):
            A(m[i])
            for l in r[per_*i:per_*(i+1)]: A(l)
    def pstep(p, s):
        for h in range(2):
            A("s_waitcnt lgkmcnt(8)")
            inter(pmfma(2*s - 2 + h, p == 0 and s == 1 and h == 0), preads(p, 2*s + h))
        if p == 0 and s - c.ca_load in (0, 1): A(caload[s - c.ca_load])
        if s == 7: A(f"v_add_u32 v{vB}, 0x10000, v{vB}\nv_add_u32 v{vB+1}, 0x10000, v{vB+1}")
    def epi(t, rt, n, packed):
        a = ACC + 32 * t + 16 * rt
        cn = CN + 4 * rt
        o_ = OUT + 4 * (n & 1)
        L = []
        if packed:
            L += [f"v_pk_mul_f32 {v(T1+2*q,2)}, {v(a+2*q,2)}, {v(a+2*q,2)}" for q in range(4)]
            L += [f"v_pk_fma_f32 {v(T1+2*q,2)}, {v(T1+2*q,2)}, {v(cn,2)}, {v(cn,2)} op_sel:[0,1,0] op_sel_hi:[1,1,0]" for q in range(4)]
            L += [f"v_pk_mul_f32 {v(T1+2*q,2)}, {v(T1+2*q,2)}, {v(a+2*q,2)}" for q in range(4)]
            L += [f"v_exp_f32 v{T1+q}, v{T1+q}" for q in range(8)]
            L += [f"v_pk_mul_f32 {v(T2+2*q,2)}, {v(a+2*q,2)}, {v(a+8+2*q,2)}" for q in range(4)]
            L += [f"v_pk_fma_f32 {v(T1+2*q,2)}, {v(T1+2*q,2)}, {v(cn+2,2)}, {v(cn+2,2)} op_sel_hi:[1,0,0]" for q in range(4)]
            L += [f"v_rcp_f32 v{T1+q}, v{T1+q}" for q in range(8)]
            L += [f"v_pk_mul_f32 {v(T2+2*q,2)}, {v(T2+2*q,2)}, {v(T1+2*q,2)}" for q in range(4)]
            L += [f"v_cvt_pk_bf16_f32 v{o_+q}, v{T2+2*q}, v{T2+2*q+1}" for q in range(4)]
        else:
            def st(q):
                return [f"v_mul_f32 v{T1+q}, v{a+q}, v{a+q}", f"v_fma_f32 v{T1+q}, v{T1+q}, v{cn+1}, v{cn}", f"v_mul_f32 v{T1+q}, v{T1+q}, v{a+q}",
                        f"v_exp_f32 v{T1+q}, v{T1+q}", f"v_mul_f32 v{T2+q}, v{a+q}, v{a+8+q}", f"v_fma_f32 v{T1+q}, v{T1+q}, v{cn+2}, v{cn+2}",
                        f"v_rcp_f32 v{T1+q}, v{T1+q}", f"v_mul_f32 v{T2+q}, v{T2+q}, v{T1+q}"]
            for q0 in range(0, 8, c.il):
                xs = [st(q) for q in range(q0, q0 + c.il)]
                for k in range(8): L += [x[k] for x in xs]
                L += [f"v_cvt_pk_bf16_f32 v{o_+q//2}, v{T2+q}, v{T2+q+1}" for q in range(q0, q0 + c.il, 2)]
        L += [f"global_store_dwordx4 v{vS+rt}, {v(o_,4)}, s[30:31] offset:{1024*t} {c.stflag}"]
        return L
    def cost(l): return 2 if l.startswith(("v_exp", "v_rcp", "v_sqrt")) else 1
    def signal(t, later=None):
        A(f"s_mov_b32 s70, 1\ns_waitcnt vmcnt({2-2*t if later is None else later})\ns_atomic_add s70, s[30:31], s58\ns_add_u32 s58, s58, 128")
    def poll_issue(r, off):
        A(f"s_mov_b32 s{r}, 0\ns_add_u32 s68, s59, {off}\ns_atomic_add s{r}, s[30:31], s68 glc")
    def poll_wait(r, off):
        pl = A.label("poll"); ok = A.label("ok")
        A(f"s_mov_b32 s45, 0\n{pl}:\ns_waitcnt lgkmcnt(0)\ns_cmp_ge_u32 s{r}, 14\ns_cbranch_scc1 {ok}")
        poll_issue(r, off)
        A(f"s_add_u32 s45, s45, 1\ns_cmp_lt_u32 s45, {SPIN}\ns_cbranch_scc1 {pl}\ns_waitcnt lgkmcnt(0)\n{ok}:")
    PA_, PB_ = 69, 71
    Q = Bars([0, 14, c.drain0[1] + 1, 29], 13)
    AC2, ID, HF = 80, 160, F[1]
    csetup()
    A("s_waitcnt vmcnt(0)\ns_barrier")
    P.stamp(11)
    A(f"""
    s_lshl_b32 s43, s35, 1
    s_add_u32 s43, s43, s41
    s_sub_u32 s43, s43, s38
    s_cselect_b32 s44, 14, 0
    s_add_u32 s43, s43, s44
    s_lshl_b32 s43, s43, 13
    v_add_u32 v{vX}, s43, v{vX}
    v_lshlrev_b32 v7, 3, v4
    v_sub_u32 v7, v5, v7
    v_mov_b32 v{vX+1}, 0x3f80
    v_mov_b32 v{vX+2}, 1.0
    """)
    for j in range(2):
        for i in range(4):
            d0 = 16 * j + 2 * i
            A(f"v_cmp_eq_u32 vcc, {d0}, v7\nv_cmp_eq_u32 s[50:51], {d0+1}, v7\nv_cndmask_b32 v{ID+4*j+i}, 0, v{vX+1}, vcc\nv_cndmask_b32 v{ID+4*j+i}, v{ID+4*j+i}, v{vX+2}, s[50:51]")
    A("s_setprio 2")
    Q.bar()
    P.stamp(12)
    for l in preads(0, 0) + preads(0, 1): A(l)
    for s in range(1, 14):
        Q.bar(); pstep(0, s)
    Q.bar()
    r = [f"ds_read_b128 {v(CN+4*i,4)}, v{vCR+i}" for i in range(2)] + [f"ds_read_b64_tr_b16 {v(HF+2*i,2)}, v{vX} offset:{4096*(i>>1)+1024*(i&1)}" for i in range(4)]
    A("s_waitcnt lgkmcnt(8)"); inter(pmfma(26), r)
    A("s_waitcnt vmcnt(0) lgkmcnt(4)"); inter(pmfma(27), mkmb)
    for l in corr(False): A(l)
    A("s_waitcnt lgkmcnt(0)")
    A(f"v_mfma_f32_32x32x16_bf16 {v(AC2,16)}, {v(ID,4)}, {v(HF,4)}, 0")
    A(f"v_mfma_f32_32x32x16_bf16 {v(AC2,16)}, {v(ID+4,4)}, {v(HF+4,4)}, {v(AC2,16)}")
    A("s_setprio 0")
    E1 = []
    for n in range(4): E1 += epi(n >> 1, n & 1, n, c.e1_packed)
    tot = sum(cost(x) for x in E1); per1 = tot / (c.e1_last - c.e1_first + 1); bud = 0.0
    vD, vT = 8, 14
    gsetup = f"""
    v_lshl_add_u32 v7, v4, 2, v2
    v_lshlrev_b32 v7, 7, v7
    v_lshrrev_b32 v{vD}, 1, v2
    v_xor_b32 v{vD}, s41, v{vD}
    v_lshl_add_u32 v7, v{vD}, 6, v7
    v_lshl_add_u32 v7, v3, 5, v7
    v_lshl_add_u32 v7, v6, 3, v7
    s_lshl_b32 s43, s41, 12
    v_add_u32 v{vD}, s43, v7
    v_xor_b32 v{vD+1}, 64, v{vD}
    v_add_u32 v{vD+2}, 0x10000, v{vD}
    v_add_u32 v{vD+3}, 0x10000, v{vD+1}
    v_lshlrev_b32 v{vT}, 4, v{vLane}
    """
    gsetup2 = f"""
    s_lshl_b32 s43, s39, 2
    s_lshl_b32 s44, s34, 1
    s_add_u32 s43, s43, s44
    s_add_u32 s43, s43, s40
    s_mul_i32 s55, s43, {112*1024}
    s_mul_i32 s43, s43, {32*896}
    s_lshl_b32 s44, s35, 7
    s_add_u32 s43, s43, s44
    s_lshl_b32 s44, s41, 6
    s_add_u32 s43, s43, s44
    v_mul_u32_u24 v5, 896, v5
    v_lshl_add_u32 v5, v4, 4, v5
    v_add_u32 v5, s43, v5
    s_lshl_b32 s44, s41, 11
    s_add_u32 s55, s55, s44
    s_lshl_b32 s54, s33, 13
    s_add_u32 s54, s54, s55
    s_add_u32 s55, s55, {14*8192}
    s_add_u32 s64, s30, {WS_ACT}
    s_addc_u32 s65, s31, 0
    s_mov_b32 s66, {ACT_BYTES}
    s_mov_b32 s67, 0x20000
    """
    TRQ = [96 + 4 * k for k in range(18)] + [16, 20, 24, 28]
    DB = [32, 40, 48, 56]
    AO = [AC2, 64]
    seq = [(14 * hf + b, j) for hf in range(2) for j in range(2) for b in range(14)]
    cons = [(b, j) for b in range(14) for j in range(2)] + seq[28:]
    freeq = list(TRQ); treg = {}
    def tload(n):
        b, j = seq[n]
        if (b, j) not in treg: treg[(b, j)] = freeq.pop(0)
        o = []
        if n == 28: o += ["s_add_u32 s54, s54, 4096", "s_add_u32 s55, s55, 4096"]
        o += [f"buffer_load_dwordx4 {v(treg[(b, j)],4)}, v{vT}, s[64:67], s54 offen offset:{1024*j} sc1"]
        o += ["s_add_u32 s54, s54, 8192", "s_cmp_ge_u32 s54, s55", f"s_cselect_b32 s57, {14*8192}, 0", "s_sub_u32 s54, s54, s57"]
        return o
    nst = 0; early = 0
    assert c.drain0[1] <= c.chkA and c.e1_last + 2 <= c.chkA
    for i in range(15, 29):
        Q.bar()
        if i == c.drain0[0]:
            assert nst >= 2
            signal(0, nst - 2)
        if i >= c.e1_first:
            bud += per1
            while E1 and (bud > 0 or i == c.e1_last):
                x = E1.pop(0); A(x); bud -= cost(x)
                if x.startswith("global_store"): nst += 1
        if i == c.pollA: poll_issue(PA_, 0)
        if i == c.e1_last + 1: A(gsetup)
        if i == c.e1_last + 2: A(gsetup2)
        if i == c.chkA: A("s_waitcnt lgkmcnt(0)")
        if i == c.drain0[1]:
            signal(1)
            A(f"v_add_u32 v{vD+4}, 0x20000, v{vD}\nv_add_u32 v{vD+5}, 0x20000, v{vD+1}")
        if i == c.poll0: poll_issue(PB_, 128)
        if 0 <= i - c.chkA < len(c.earlyT):
            sk = A.label("et")
            A(f"s_cmp_lt_u32 s{PA_}, 14\ns_cbranch_scc1 {sk}")
            for _ in range(c.earlyT[i - c.chkA]):
                for l in tload(early): A(l)
                early += 1
            A(f"{sk}:")
    Q.bar()
    sk = A.label("et")
    A(f"s_cmp_ge_u32 s{PA_}, 14\ns_cbranch_scc1 {sk}")
    poll_wait(PA_, 0)
    for n in range(early):
        for l in tload(n): A(l)
    A(f"{sk}:")
    def dreads(n):
        b, j = cons[n]
        sd = slot[("D", b)]; f = DB[n & 3]
        o = []
        for nt in range(2):
            do = (sd % 8) * BLK + 2048 * j
            ad = vD + 2 * (sd // 8) + nt
            o += [f"ds_read_b64_tr_b16 {v(f+4*nt,2)}, v{ad} offset:{do}", f"ds_read_b64_tr_b16 {v(f+4*nt+2,2)}, v{ad} offset:{do+1024}"]
        return o
    def gm(n):
        f = DB[n & 3]
        return [f"v_mfma_f32_32x32x16_bf16 {v(AO[nt],16)}, {v(f+4*nt,4)}, {v(treg[cons[n]],4)}, {'0' if (n == 0 and nt == 1) else v(AO[nt],16)}" for nt in (1, 0)]
    issued = early; mk = 0
    while issued < 14:
        for l in tload(issued): A(l)
        issued += 1
    poll_wait(PB_, 128)
    Q.mark(mk); mk += 1
    lim = 28
    for n in range(56):
        if n == 14: A("s_waitcnt lgkmcnt(0)\ns_barrier")
        for y in (c.ya_at, c.yb_at):
            if n == y:
                A("s_barrier")
                Q.mark(mk); mk += 1
                lim += 14
        k = 99 if n == 0 else c.pace.get(n, c.pace1 if n < 28 else c.pace2)
        while issued < lim and freeq and k > 0:
            for l in tload(issued): A(l)
            issued += 1; k -= 1
        assert seq.index(cons[n]) < issued
        if n == 0:
            for l in dreads(0) + dreads(1): A(l)
        if n == c.g_pre:
            A("s_barrier")
            Q.mark(mk); mk += 1
        r = dreads(n + 2) if n + 2 < 56 else []
        A(f"s_waitcnt vmcnt({issued-1-seq.index(cons[n])}) lgkmcnt({4 if n < 55 else 0})")
        if n in (28, 42): Q.mark(mk); mk += 1
        m = gm(n)
        for i in range(2):
            A(m[i])
            for l in r[2*i:2*i+2]: A(l)
        freeq.append(treg[cons[n]])
    assert 14 < c.ya_at <= 26 and c.ya_at <= c.yb_at <= 32 and c.yb_at >= 24
    while mk < 6: Q.mark(mk); mk += 1
    Q.mark(6)
    assert slot[("D", 8)] == 8 and slot[("D", 10)] == 9
    A(f"""
    s_lshl_b32 s43, s36, 12
    s_add_u32 s43, s43, {8*BLK}
    v_lshl_add_u32 v2, v{vLane}, 4, s43
    v_xor_b32 v3, 0x2000, v2
    """)
    for q in range(4): A(f"ds_write_b128 v2, {v(AO[1]+4*q,4)} offset:{1024*q}")
    A("s_waitcnt lgkmcnt(0)\ns_barrier")
    for q in range(4): A(f"ds_read_b128 {v(32+4*q,4)}, v3 offset:{1024*q}")
    for hq in range(2):
        A(f"s_waitcnt lgkmcnt({2-2*hq})")
        for q in range(4*hq, 4*hq+4): A(f"v_pk_add_f32 {v(AC2+2*q,2)}, {v(AC2+2*q,2)}, {v(32+2*q,2)}")
        for q in range(4*hq, 4*hq+4): A(f"v_cvt_pk_bf16_f32 v{48+q}, v{AC2+2*q}, v{AC2+2*q+1}")
        A(f"v_permlane32_swap_b32 v{48+4*hq}, v{48+4*hq+2}\nv_permlane32_swap_b32 v{48+4*hq+1}, v{48+4*hq+3}")
        A(f"global_store_dwordx4 v5, {v(48+4*hq,4)}, s[26:27] offset:{32*hq}")
    Q.fin(7)
    A("s_endpgm")
    A(f".p2align 3\n{nw}:")
    A(f"s_and_b32 s46, s36, 3\ns_mov_b32 s45, 0\nv_mov_b32 v11, {TAGA}")
    def xpoll():
        for l in xp: A(l)
    A("s_waitcnt lgkmcnt(0)\ns_barrier")
    P.stamp(5)
    A(f"""
    ds_read_b32 v11, v11
    s_lshl_b32 s47, s46, 10
    s_add_u32 s47, s47, {UO+512}
    v_xor_b32 v9, 3, v{vLane}
    v_lshl_add_u32 v9, v9, 2, s47
    s_lshl_b32 s47, s46, 11
    v_lshrrev_b32 v5, 3, v{vLane}
    v_lshl_add_u32 v5, v5, 4, s47
    v_bfe_u32 v6, v{vLane}, 1, 2
    v_lshl_add_u32 v5, v6, 8, v5
    v_and_b32 v6, 1, v{vLane}
    v_lshl_add_u32 v10, v6, 3, v5
    """)
    if not c.xp_at:
        if c.poll_late: A(f"s_sleep {c.poll_late}")
        xpoll()
        A("s_mov_b32 s45, 1\ns_barrier\ns_setprio 2")
    pl = A.label("xp"); ok = A.label("xok"); nb1 = A.label("xnb")
    A(f"{pl}:\ns_waitcnt vmcnt(0) lgkmcnt(0)\nv_min3_u32 v4, v{vPX+1}, v{vPX+3}, v11\nv_max3_u32 v5, v{vPX+1}, v{vPX+3}, v11")
    for q in range(1, 8): A(f"v_min3_u32 v4, v4, v{vPX+4*q+1}, v{vPX+4*q+3}\nv_max3_u32 v5, v5, v{vPX+4*q+1}, v{vPX+4*q+3}")
    A(f"v_cmp_ne_u32 vcc, v4, v5\ns_cbranch_vccz {ok}\ns_add_u32 s45, s45, 1\ns_cmp_gt_u32 s45, {SPIN}\ns_cbranch_scc1 {ok}")
    xpoll()
    A(f"s_cmp_lg_u32 s45, 1\ns_cbranch_scc1 {pl}\ns_barrier\ns_setprio 2\ns_branch {pl}\n{ok}:")
    P.stamp(6)
    NU, PRE, UB = 16, 32, 48
    for half in range(2):
        st = []
        for r in range(4 * half, 4 * half + 4):
            S = vPS_ + 2 * r; X = vPX + 2 * r
            t = 60 + 4 * (r & 3)
            st.append([f"v_and_b32 v{t+2}, s43, v{S}", f"v_rcp_f32 v{t+2}, v{t+2}", f"v_lshlrev_b32 v{t}, 16, v{S}",
                  f"v_lshlrev_b32 v{PRE+2*r}, 16, v{X}", f"v_and_b32 v{PRE+2*r+1}, s43, v{X}",
                  f"v_sub_f32 v{NU+2*r}, v{PRE+2*r}, v{t}", f"v_sub_f32 v{NU+2*r+1}, v{PRE+2*r+1}, v{t}",
                  f"v_cvt_pk_bf16_f32 v{NU+2*r+1}, v{NU+2*r}, v{NU+2*r+1}",
                  f"v_lshlrev_b32 v{NU+2*r}, 16, v{NU+2*r+1}", f"v_and_b32 v{NU+2*r+1}, s43, v{NU+2*r+1}",
                  f"v_mul_f32 v{NU+2*r}, v{NU+2*r}, v{t+2}", f"v_mul_f32 v{NU+2*r+1}, v{NU+2*r+1}, v{t+2}"])
        for l in merge(*st): A(l)
        for ch in range(2):
            for k in (2 * half, 2 * half + 1): A(f"v_cvt_pk_bf16_f32 v{UB+4*ch+k}, v{NU+4*k+2+ch}, v{NU+4*k+ch}")
    A(f"s_cmp_lg_u32 s45, 0\ns_cbranch_scc1 {nb1}\ns_barrier\n{nb1}:")
    P.stamp(7)
    for half in range(2):
        for ch in range(2):
            A(f"ds_write2st64_b32 v9, v{UB+4*ch+2*half}, v{UB+4*ch+2*half+1} offset0:{ch*UPITCH//256+2*half} offset1:{ch*UPITCH//256+2*half+1}")
    A("s_setprio 0\ns_waitcnt lgkmcnt(0)\ns_barrier")
    P.stamp(8)
    PO = 60
    for ch in range(2):
        for k in range(4):
            A(f"v_lshlrev_b32 v4, 16, v{UB+4*ch+k}\nv_and_b32 v5, s43, v{UB+4*ch+k}")
            A(f"v_fma_f32 v{PO+8*ch+2*k+1}, v4, s{58+ch}, v{PRE+4*k+2+ch}\nv_fma_f32 v{PO+8*ch+2*k}, v5, s{58+ch}, v{PRE+4*k+ch}")
            A(f"ds_write_b64 v10, {v(PO+8*ch+2*k,2)} offset:{32768*ch+1024*(k>>1)+128*(k&1)}")
    A("v_mov_b32 v46, v11")
    csetup()
    Q = Bars([0, c.gat_check, c.gat_check + 1, 14, 28, 29], 10)
    ST, GA = 18, 96
    vPS, vGA = 22, 23
    A(f"""
    s_mul_i32 s43, s39, {14*1024}
    s_lshl_b32 s44, s42, 8
    s_add_u32 s43, s43, s44
    s_add_u32 s43, s43, {WS_PS}
    v_lshl_add_u32 v{vPS}, v5, 3, s43
    v_mul_u32_u24 v7, 7168, v4
    v_add3_u32 v{vGA}, v{vPS}, v7, 64
    v_add_u32 v{vGA}, {3072-64}, v{vGA}
    s_lshl_b32 s44, s38, 10
    v_add_u32 v{vPS}, s44, v{vPS}
    """)
    nb = A.label("nb"); pz = A.label("pz"); pzo = A.label("pzo")
    A(f"""
    s_cmp_lg_u32 s36, 4
    s_cbranch_scc1 {nb}
    v_min_u32 v47, 55, v{vLane}
    v_lshlrev_b32 v47, 5, v47
    v_add_u32 v47, {WS_PZ}, v47
    s_mov_b32 s45, 0
    {pz}:
    s_sleep {c.pz_sleep}
    global_load_dwordx4 v[48:51], v47, s[30:31] sc1
    global_load_dwordx4 v[52:55], v47, s[30:31] offset:16 sc1
    s_waitcnt vmcnt(0)
    v_min3_u32 v56, v48, v49, v46
    v_max3_u32 v57, v48, v49, v46
    v_min3_u32 v56, v50, v51, v56
    v_max3_u32 v57, v50, v51, v57
    v_min3_u32 v56, v52, v53, v56
    v_max3_u32 v57, v52, v53, v57
    v_min3_u32 v56, v54, v55, v56
    v_max3_u32 v57, v54, v55, v57
    v_cmp_ne_u32 vcc, v56, v57
    s_cbranch_vccz {pzo}
    s_add_u32 s45, s45, 1
    s_cmp_lt_u32 s45, {SPIN}
    s_cbranch_scc1 {pz}
    {pzo}:
    s_cmp_lg_u32 s2, 0
    s_cbranch_scc1 {nb}
    v_mov_b32 v47, {WS_E}
    s_mov_b64 exec, 1
    global_store_dword v47, v46, s[30:31]
    s_mov_b64 exec, -1
    {nb}:
    """)
    P.stamp(9)
    A("s_waitcnt lgkmcnt(0)\ns_barrier\ns_barrier")
    def gat(js=range(7)):
        for j in js: A(f"global_load_dwordx2 {v(GA+2*j,2)}, v{vGA}, s[30:31] offset:{1024*j-3072} sc1")
    S, Qv = GA, GA + 1
    work = [f"v_add_f32 v{GA+k}, v{GA+k}, v{GA+2*j+k}" for j in range(1, 7) for k in range(2)]
    work += [f"v_mov_b32 v{GA+2}, v{GA}", f"v_mov_b32 v{GA+3}, v{GA+1}", f"v_permlane32_swap_b32 v{GA}, v{GA+2}", f"v_permlane32_swap_b32 v{GA+1}, v{GA+3}",
             f"v_add_f32 v{GA}, v{GA}, v{GA+2}", f"v_add_f32 v{GA+1}, v{GA+1}, v{GA+3}"]
    work += [l.strip() for l in f"""
    v_mul_f32 v{S}, {f32(1.0/448)}, v{S}
    v_mul_f32 v{Qv}, {f32(1.0/448)}, v{Qv}
    v_fma_f32 v{Qv}, -v{S}, v{S}, v{Qv}
    v_max_f32 v{Qv}, 0, v{Qv}
    v_cvt_pk_bf16_f32 v{CN+3}, -v{S}, -v{S}
    v_cvt_pk_bf16_f32 v{Qv}, v{Qv}, v{Qv}
    v_and_b32 v{Qv}, s48, v{Qv}
    v_add_f32 v{Qv}, {f32(1e-5)}, v{Qv}
    v_cvt_pk_bf16_f32 v{Qv}, v{Qv}, v{Qv}
    v_and_b32 v{Qv}, s48, v{Qv}
    v_sqrt_f32 v{Qv}, v{Qv}
    v_cvt_pk_bf16_f32 v{Qv}, v{Qv}, v{Qv}
    v_and_b32 v{Qv}, s48, v{Qv}
    v_rcp_f32 v{S}, v{Qv}
    v_mul_f32 v{CN+2}, v{Qv}, v{Qv}
    v_mul_f32 v{CN}, {f32(GK0)}, v{S}
    v_mul_f32 v{CN+1}, v{S}, v{S}
    v_mul_f32 v{CN+1}, v{CN+1}, v{S}
    v_mul_f32 v{CN+1}, {f32(GK1)}, v{CN+1}
    ds_write_b128 v{vCR}, {v(CN,4)}
    """.strip().split("\n")]
    nwi = c.con_write - c.gat_check
    wper = (len(work) + nwi - 1) // nwi
    for i in range(14):
        Q.bar()
        if i == 0:
            for k in range(4): A(f"ds_read_b64_tr_b16 {v(F[0]+2*k,2)}, v{vB} offset:{4096*(k>>1)+1024*(k&1)}")
        if i == 1:
            A("s_waitcnt lgkmcnt(0)")
            for k in range(8):
                z = k < 2
                A(f"v_dot2_f32_bf16 v{ST+(k&1)}, v{F[0]+k}, s47, {'0' if z else 'v%d' % (ST+(k&1))}\nv_dot2_f32_bf16 v{ST+2+(k&1)}, v{F[0]+k}, v{F[0]+k}, {'0' if z else 'v%d' % (ST+2+(k&1))}")
        if i == 2:
            A(f"""
            v_add_f32 v{ST}, v{ST}, v{ST+1}
            v_add_f32 v{ST+1}, v{ST+2}, v{ST+3}
            v_mov_b32 v{ST+2}, v{ST}
            v_mov_b32 v{ST+3}, v{ST+1}
            v_permlane32_swap_b32 v{ST}, v{ST+2}
            v_permlane32_swap_b32 v{ST+1}, v{ST+3}
            v_add_f32 v{ST}, v{ST}, v{ST+2}
            v_add_f32 v{ST+1}, v{ST+1}, v{ST+3}
            v_or_b32 v{ST+1}, 1, v{ST+1}
            s_mov_b32 exec_hi, 0
            global_store_dwordx2 v{vPS}, {v(ST,2)}, s[30:31] sc0 sc1
            s_mov_b32 exec_hi, -1
            """)
        if i in (c.cs_issue, c.ca_load - 1):
            sk = A.label("css")
            A(f"s_cmp_lg_u32 s36, 4\ns_cbranch_scc1 {sk}")
            if i == c.cs_issue: A(f"global_load_dword v47, v{MB+2}, s[28:29] sc1")
            else:
                pl = A.label("cs")
                A(f"s_mov_b32 s45, 0\n{pl}:\ns_waitcnt vmcnt(0)\nv_cmp_gt_u32 vcc, 56, v47\ns_cbranch_vccz {sk}\ns_sleep 32\nglobal_load_dword v47, v{MB+2}, s[28:29] sc1\ns_add_u32 s45, s45, 1\ns_cmp_lt_u32 s45, {SPIN}\ns_cbranch_scc1 {pl}")
            A(f"{sk}:")
        k0 = i - (c.gat_issue - len(c.gat_split) + 1)
        if 0 <= k0 < len(c.gat_split) and not c.x_nogat: gat(range(sum(c.gat_split[:k0]), sum(c.gat_split[:k0+1])))
        if i == c.gat_check and not c.x_nogat:
            pl = A.label("gp"); ok = A.label("gok")
            A(f"s_mov_b32 s45, 0\n{pl}:\ns_waitcnt vmcnt(0)\nv_min3_u32 v7, v{GA+1}, v{GA+3}, v{GA+5}\nv_min3_u32 v7, v7, v{GA+7}, v{GA+9}\nv_min3_u32 v7, v7, v{GA+11}, v{GA+13}")
            A(f"v_cmp_eq_u32 vcc, 0, v7\ns_cbranch_vccz {ok}\ns_add_u32 s45, s45, 1\ns_cmp_ge_u32 s45, {SPIN}\ns_cbranch_scc1 {ok}")
            gat()
            A(f"s_branch {pl}\n{ok}:")
        if c.gat_check < i <= c.con_write:
            for l in work[:wper]: A(l)
            work = work[wper:]
        if i == c.ca_load:
            for l in caload: A(l)
        if i == 13:
            assert not work
            A("s_waitcnt vmcnt(0) lgkmcnt(0)")
    Q.bar()
    A(f"ds_read_b128 {v(CN+4,4)}, v{vCR+1}")
    for l in preads(1, 0): A(l)
    A("s_waitcnt lgkmcnt(8)")
    for l in mkmb + preads(1, 1): A(l)
    for l in corr(True): A(l)
    A(f"s_setprio {c.prioB}")
    for s in range(1, 14):
        Q.bar(); pstep(1, s)
    Q.bar()
    A("s_waitcnt lgkmcnt(8)")
    for l in pmfma(26): A(l)
    A("s_waitcnt lgkmcnt(0)")
    Q.bar()
    for l in pmfma(27): A(l)
    for n in range(4):
        for l in epi(n >> 1, n & 1, n, True): A(l)
    Q.mark(0)
    A("s_setprio 0\ns_barrier")
    signal(0)
    Q.mark(1)
    if c.pa_early: poll_issue(PA_, 512)
    signal(1)
    Q.mark(2)
    if not c.pa_early: poll_issue(PA_, 512)
    A("s_barrier")
    poll_wait(PA_, 512)
    poll_issue(PB_, 640)
    Q.mark(3)
    A("s_barrier")
    poll_wait(PB_, 640)
    Q.mark(4)
    A("s_barrier")
    Q.fin(5)
    A("s_waitcnt lgkmcnt(0)\ns_endpgm")
    A(f".p2align 3\n{auxt}:")
    PA.stamp(1)
    srd(A, 64, 30, XG_BYTES, WS_XG)
    A(f"""
    v_and_b32 v4, 15, v{vLane}
    v_lshrrev_b32 v5, 4, v{vLane}
    v_lshl_add_u32 v6, v4, 8, s46
    v_lshl_add_u32 v6, v5, 2, v6
    v_and_b32 v7, 7, v4
    v_lshl_add_u32 v6, v7, 4, v6
    v_lshlrev_b32 v9, 14, v5
    v_lshl_add_u32 v9, v4, 4, v9
    s_lshl_b32 s46, s36, 2
    s_add_u32 s46, s46, {TAGA}
    v_mov_b32 v2, s46
    """)
    for k in range(1, 8): A(f"v_xor_b32 v{80+k}, {16*k}, v6")
    A("s_waitcnt lgkmcnt(0)\ns_mul_i32 s57, s57, 0x9e3779b1\ns_add_u32 s57, s57, 0x7f4a7c15")
    for k in range(16): A(f"v_mov_b32 v{vXG+2*k+1}, s57")
    A(f"s_mov_b64 exec, 1\nds_write_b32 v2, v{vXG+1}\ns_mov_b64 exec, -1\ns_waitcnt vmcnt(0)")
    PA.stamp(2)
    for k in range(8):
        ad = 6 if k == 0 else 80 + k
        A(f"ds_read_b32 v{vXG+4*k}, v{ad}\nds_read_b32 v{vXG+4*k+2}, v{ad} offset:128")
    for k in range(8):
        A(f"s_waitcnt lgkmcnt({14-2*k})\nbuffer_store_dwordx4 {v(vXG+4*k,4)}, v9, s[64:67], s51 offen sc0 sc1")
        if k < 7: A(f"s_add_u32 s51, s51, {4*16384}")
    PA.stamp(3)
    A("s_setprio 0")
    aW, aD, aH = 8, 12, 8
    sW, sD, eW, eD = 41, 42, 45, 46
    def daddr():
        A(ffn_ids)
        A(f"""
        v_lshrrev_b32 v6, 3, v{vLane}
        v_and_b32 v7, 7, v{vLane}
        v_and_b32 v5, 2, v6
        v_lshlrev_b32 v4, 1, v5
        v_xor_b32 v4, v4, v7
        v_mul_u32_u24 v3, 896, v6
        v_lshl_add_u32 v{aD}, v4, 4, v3
        v_add_u32 v{aD+1}, {1*(8*896-1024)}, v{aD}
        v_add_u32 v{aD+2}, {2*(8*896-1024)}, v{aD}
        v_add_u32 v{aD+3}, {3*(8*896-1024)}, v{aD}
        s_lshl_b32 s{eD}, s35, 7
        s_mul_i32 s32, s36, {32*896}
        s_add_u32 s{eD}, s{eD}, s32
        s_mul_i32 s{sD}, s33, {128*896}
        s_add_u32 s{sD}, s{sD}, s{eD}
        s_add_u32 s{eD}, s{eD}, {14*128*896}
        s_lshl_b32 s32, s36, 12
        v_lshl_add_u32 v16, v{vLane}, 4, s32
        v_add_u32 v17, 0x10000, v16
        v_add_u32 v18, 0x20000, v16
        """)
        srd(A, 60, 24, W_BYTES)
    def fifo_load(first, n, reg0):
        A(f"s_add_u32 s43, s{sD}, {64*896 + (first-14)*128*896}\ns_add_u32 s44, s{eD}, {64*896}")
        for b in range(n):
            A(f"s_cmp_ge_u32 s43, s44\ns_cselect_b32 s34, {14*128*896}, 0\ns_sub_u32 s43, s43, s34")
            for i in range(4): A(f"buffer_load_dwordx4 {v(reg0+16*b+4*i,4)}, v{aD+i}, s[60:63], s43 offen offset:{1024*i}")
            A(f"s_add_u32 s43, s43, {128*896}")
            if c.fdepth is not None: A(f"s_waitcnt vmcnt({c.fdepth})")
    def fifo_put(first, n, reg0):
        for b in range(n):
            sl = slot[("D", first + b)]
            for i in range(4): A(f"ds_write_b128 v{16+sl//8}, {v(reg0+16*b+4*i,4)} offset:{(sl%8)*BLK+1024*i}")
    daddr()
    A(f"""
    v_xor_b32 v4, v5, v7
    s_lshl_b32 s43, s36, 2
    v_xor_b32 v4, s43, v4
    v_mul_u32_u24 v3, 3584, v6
    v_lshl_add_u32 v{aW}, v4, 4, v3
    v_add_u32 v{aW+1}, {1*(8*3584-1024)}, v{aW}
    v_add_u32 v{aW+2}, {2*(8*3584-1024)}, v{aW}
    v_add_u32 v{aW+3}, {3*(8*3584-1024)}, v{aW}
    s_lshl_b32 s{eW}, s38, 8
    s_mul_i32 s{sW}, s38, {32*3584}
    s_add_u32 s{sW}, s{sW}, s{eW}
    s_add_u32 s{eW}, s{eW}, {14*32*3584}
    s_cmp_eq_u32 s36, 0
    s_cselect_b32 s20, s20, s22
    s_cselect_b32 s21, s21, s23
    """)
    srd(A, 52, 20, W_BYTES)
    A(f"""
    v_mov_b32 v20, 0
    v_mov_b32 v21, 0
    v_lshrrev_b32 v4, 4, v{vLane}
    v_mul_u32_u24 v4, {KP}, v4
    v_and_b32 v5, 15, v{vLane}
    v_lshl_add_u32 v4, v5, 2, v4
    s_lshl_b32 s43, s36, 15
    v_add_u32 v4, s43, v4
    s_mul_i32 s43, s36, {UPITCH}
    s_add_u32 s43, s43, {UO}
    v_lshl_add_u32 v3, v{vLane}, 3, s43
    """)
    if c.lf_at == '0': fifo_load(14, 6, 24)
    A("s_barrier")
    if c.lf_at == 'A': fifo_load(14, 6, 24)
    A(f"s_barrier\nds_write_b32 v4, v20 offset:{KB0}\nds_write_b64 v3, v[20:21]")
    if c.lf_at == 'B': fifo_load(14, 6, 24)
    A("s_waitcnt lgkmcnt(0)\ns_barrier")
    def dma(kind, idx, i):
        if kind == "F":
            if i == 0:
                if idx == 14: A(f"s_add_u32 s43, s{sD}, {64*896}\ns_add_u32 s44, s{eD}, {64*896}")
                A(f"s_cmp_ge_u32 s43, s44\ns_cselect_b32 s35, {14*128*896}, 0\ns_sub_u32 s43, s43, s35")
            A(f"buffer_load_dwordx4 {v(24+16*(idx-14)+4*i,4)}, v{aD+i}, s[60:63], s43 offen offset:{1024*i}")
            if i == 3: A(f"s_add_u32 s43, s43, {128*896}")
            return
        base_ = slot[(kind, idx)] * BLK
        a0, r0, s, e, step = {"W": (aW, 52, sW, eW, 32*3584), "D": (aD, 60, sD, eD, 128*896)}[kind]
        if i == 0:
            if idx == 14:
                A(f"s_add_u32 s{s}, s{s}, 128\ns_add_u32 s{e}, s{e}, 128")
            A(f"s_add_u32 m0, s32, {base_}\ns_add_u32 s33, s{s}, {step}")
        A(f"buffer_load_dwordx4 v{a0+i}, s[{r0}:{r0+3}], s{s} offen offset:{1024*i} lds")
        if i == 0: A(f"s_cmp_ge_u32 s33, s{e}\ns_cselect_b32 s34, {14*step}, 0")
        if i == 3: A(f"s_sub_u32 s{s}, s33, s34")
    for x in issue[-1]: dma(*x)
    if c.lf_at == 'C': fifo_load(14, 6, 24)
    PA.stamp(4)
    A("s_barrier\ns_barrier\ns_waitcnt vmcnt(0)\ns_barrier")
    for i in range(0, 29):
        for x in issue[i]: dma(*x)
        if wait[i] is not None: A(f"s_waitcnt vmcnt({min(63, wait[i])})")
        A("s_barrier")
    A("s_barrier")
    fifo_put(14, 3, 24)
    A("s_barrier")
    fifo_put(17, 3, 72)
    A("s_waitcnt lgkmcnt(0)")
    if c.phase == 1: Prof(A, 3).flush(5)
    A("s_endpgm")
    A(f".p2align 3\n{auxs}:")
    PA.stamp(1)
    a0 = 90
    A(f"s_mov_b32 s42, 0x3f803f80\nv_and_b32 v4, 56, v{vLane}\ns_lshl_b32 s46, s47, 6\nv_add_u32 v4, s46, v4\nv_mov_b32 v2, {TAGA}")
    A("s_waitcnt lgkmcnt(0)\ns_mul_i32 s57, s56, 0x9e3779b1\ns_add_u32 s57, s57, 0x7f4a7c15\ns_mov_b32 s45, 0")
    for i in range(28):
        z = i < 2
        if i % 4 == 0: A(f"s_waitcnt vmcnt({6-i//4})")
        if i == 4: PA.stamp(2)
        if i == 24: A("ds_read_b64 v[6:7], v2")
        A(f"v_dot2_f32_bf16 v{a0+(i&1)}, v{vRow+i}, s42, {'0' if z else 'v%d' % (a0+(i&1))}")
        A(f"v_dot2_f32_bf16 v{a0+2+(i&1)}, v{vRow+i}, v{vRow+i}, {'0' if z else 'v%d' % (a0+2+(i&1))}")
    A(f"v_add_f32 v{a0}, v{a0}, v{a0+1}\nv_add_f32 v{a0+2}, v{a0+2}, v{a0+3}")
    for op in ("quad_perm:[1,0,3,2]", "quad_perm:[2,3,0,1]", "row_half_mirror"):
        A(f"v_add_f32_dpp v{a0}, v{a0}, v{a0} {op}{DPP}\nv_add_f32_dpp v{a0+2}, v{a0+2}, v{a0+2} {op}{DPP}")
    A(f"""
    v_mul_f32 v{a0}, {f32(1.0/448)}, v{a0}
    v_mul_f32 v{a0+2}, {f32(1.0/448)}, v{a0+2}
    v_fma_f32 v{a0+2}, -v{a0}, v{a0}, v{a0+2}
    v_max_f32 v{a0+2}, 0, v{a0+2}
    v_cvt_pk_bf16_f32 v{a0+2}, v{a0+2}, v{a0+2}
    v_and_b32 v{a0+2}, s43, v{a0+2}
    v_add_f32 v{a0+2}, {f32(1e-5)}, v{a0+2}
    v_cvt_pk_bf16_f32 v{a0+2}, v{a0+2}, v{a0+2}
    v_and_b32 v{a0+2}, s43, v{a0+2}
    v_sqrt_f32 v{a0+2}, v{a0+2}
    v_mov_b32 v{a0+1}, s57
    v_cvt_pk_bf16_f32 v{a0}, v{a0}, v{a0+2}
    Ltg:
    s_waitcnt lgkmcnt(0)
    v_xor_b32 v6, s57, v6
    v_xor_b32 v7, s57, v7
    v_or_b32 v6, v6, v7
    v_cmp_ne_u32 vcc, 0, v6
    s_cbranch_vccz Ltg2
    ds_read_b64 v[6:7], v2
    s_add_u32 s45, s45, 1
    s_cmp_lt_u32 s45, {SPIN}
    s_cbranch_scc1 Ltg
    Ltg2:
    s_mov_b32 exec_lo, 0x01010101
    s_mov_b32 exec_hi, 0x01010101
    global_store_dwordx2 v4, {v(a0,2)}, s[30:31] sc0 sc1
    s_mov_b64 exec, -1
    """)
    PA.stamp(3)
    if base.PROF and c.phase == 1:
        A(f"s_branch {hold}x\n{hold}:")
        for k in (1, 2, 3): PA.stamp(k)
        A(f"{hold}x:\ns_setprio 0")
    else: A(f"{hold}:\ns_setprio 0")
    daddr()
    sH, eH, sV = 40, 41, 47
    VR = 20
    A(f"""
    v_lshrrev_b32 v6, 4, v{vLane}
    v_and_b32 v7, 15, v{vLane}
    v_lshlrev_b32 v5, 2, v6
    v_xor_b32 v5, v5, v7
    v_lshlrev_b32 v5, 4, v5
    v_lshl_add_u32 v{aH}, v6, 12, v5
    v_add_u32 v{aH+1}, {1*(4*4096-1024)}, v{aH}
    v_add_u32 v{aH+2}, {2*(4*4096-1024)}, v{aH}
    v_add_u32 v{aH+3}, {3*(4*4096-1024)}, v{aH}
    s_lshl_b32 s{eH}, s39, 8
    s_lshl_b32 s43, s36, 16
    s_add_u32 s{eH}, s{eH}, s43
    s_lshl_b32 s{sH}, s38, 17
    s_add_u32 s{sH}, s{sH}, s{eH}
    s_add_u32 s{eH}, s{eH}, {14*32*4096}
    s_mov_b32 s{sV}, s{sH}
    """)
    srd(A, 48, 30, X_BYTES, WS_HT)
    A(f"""
    v_mov_b32 v20, -1
    v_mov_b32 v21, -1
    v_mov_b32 v22, -1
    v_mov_b32 v23, -1
    v_mov_b32 v24, 0
    v_mov_b32 v25, 0
    s_lshl_b32 s43, s2, 13
    s_add_u32 s43, s43, {WS_HT}
    v_add_u32 v2, s43, v16
    s_lshl_b32 s43, s2, 1
    s_add_u32 s43, s43, s36
    s_lshl_b32 s44, s43, 9
    s_add_u32 s44, s44, {WS_PS}
    v_lshl_add_u32 v3, v{vLane}, 3, s44
    s_and_b32 s44, s43, 255
    s_lshl_b32 s44, s44, 7
    s_add_u32 s44, s44, {WS_FLAGS}
    v_mov_b32 v4, s44
    s_lshl_b32 s44, s43, 2
    s_add_u32 s44, s44, {WS_PZ}
    v_mov_b32 v5, s44
    s_waitcnt lgkmcnt(0)
    s_mul_i32 s57, s56, 0x9e3779b1
    s_add_u32 s57, s57, 0x7f4a7c15
    v_mov_b32 v6, s57
    """)
    def poison():
        for k in range(4): A(f"global_store_dwordx4 v2, v[20:23], s[30:31] offset:{1024*k} sc0 sc1")
        A("global_store_dwordx2 v3, v[24:25], s[30:31] sc0 sc1\ns_mov_b64 exec, 1\nglobal_store_dword v4, v24, s[30:31] sc0 sc1\ns_mov_b64 exec, -1")
    def post(): A("s_waitcnt vmcnt(0)\ns_mov_b64 exec, 1\nglobal_store_dword v5, v6, s[30:31] sc0 sc1\ns_mov_b64 exec, -1")
    if c.poi_at == '0': poison()
    A("s_barrier")
    if c.poi_at == '0': post()
    if c.poi_at == 'A': poison()
    A("s_barrier")
    if c.poi_at == 'A': post()
    if c.poi_at == 'B': poison()
    if c.hf_at == 'B':
        assert c.poi_at != 'B'
        fifo_load(20, 3, 40)
    A("s_barrier")
    if c.poi_at == 'B': post()
    if c.hf_at == 'B': fifo_load(23, 5, 88)
    else: fifo_load(20, 8, 40)
    PA.stamp(4)
    A(f"s_barrier\ns_barrier\ns_setprio {c.hprio}")
    HS = 32 * 4096
    def hblock(s, m0expr):
        A(f"s_add_u32 m0, {m0expr}\ns_add_u32 s33, s{s}, {HS}")
        for i in range(4):
            A(f"buffer_load_dwordx4 v{aH+i}, s[48:51], s{s} offen offset:{1024*i} sc1 lds")
            if i == 0: A(f"s_cmp_ge_u32 s33, s{eH}\ns_cselect_b32 s34, {14*HS}, 0")
        A(f"s_sub_u32 s{s}, s33, s34")
    nH = [0]
    def hissue(k):
        for _ in range(k):
            if nH[0] < 14:
                hblock(sH, f"s32, {nH[0]*BLK}"); nH[0] += 1
    def vread(b):
        A(f"s_waitcnt vmcnt({4*(nH[0]-1-b)})")
        for i in range(4): A(f"ds_read_b128 {v(VR+4*i,4)}, v{16+b//8} offset:{(b%8)*BLK+1024*i}")
    def vcheck(b):
        ck = A.label("hv"); ok = A.label("hok"); rp = A.label("hrp")
        last = b + 1 if c.rep_one else nH[0]
        A(f"s_mov_b32 s45, 0\n{ck}:\ns_waitcnt lgkmcnt(0)\nv_max3_u32 v2, v{VR}, v{VR+1}, v{VR+2}\nv_max3_u32 v3, v{VR+3}, v{VR+4}, v{VR+5}")
        for i in range(3, 8): A(f"v_max3_u32 v{2+(i&1)}, v{2+(i&1)}, v{VR+2*i}, v{VR+2*i+1}")
        A(f"""
        v_max_u32 v2, v2, v3
        v_cmp_eq_u32 vcc, -1, v2
        {"s_cmp_eq_u32 s45, 0" if c.x_force else ""}
        {f"s_cbranch_scc1 {rp}f" if c.x_force else ""}
        s_cbranch_vccz {ok}
        {rp}f:
        s_add_u32 s45, s45, 1
        s_cmp_ge_u32 s45, {SPIN}
        s_cbranch_scc1 {ok}
        s_mov_b32 s43, s{sV}
        s_add_u32 s44, s32, {b*BLK}
        s_add_u32 s35, s32, {last*BLK}
        {rp}:
        """)
        hblock(43, "s44, 0")
        A(f"s_add_u32 s44, s44, {BLK}\ns_cmp_lt_u32 s44, s35\ns_cbranch_scc1 {rp}\ns_waitcnt vmcnt({4*(last-1-b)})")
        for i in range(4): A(f"ds_read_b128 {v(VR+4*i,4)}, v{16+b//8} offset:{(b%8)*BLK+1024*i}")
        A(f"s_branch {ck}\n{ok}:\ns_add_u32 s{sV}, s{sV}, {HS}\ns_cmp_ge_u32 s{sV}, s{eH}\ns_cselect_b32 s34, {14*HS}, 0\ns_sub_u32 s{sV}, s{sV}, s34")
    hissue(c.h0)
    vread(0); vcheck(0); vread(1)
    A("s_barrier")
    hs = list(c.hiss) + [1] * 14
    for i in range(0, 13):
        vcheck(i + 1)
        k = hs.pop(0)
        if i + 2 < 14:
            if nH[0] - (i + 2) < c.hnear: hissue(k); k = 0
            vread(i + 2)
        hissue(k)
        A("s_barrier")
    assert nH[0] == 14
    lp = A.label("hb")
    A(f"s_setprio 0\ns_mov_b32 s45, 18\n{lp}:\ns_barrier\ns_sub_u32 s45, s45, 1\ns_cmp_lg_u32 s45, 0\ns_cbranch_scc1 {lp}")
    fifo_put(20, c.put_a, 40)
    A("s_barrier")
    fifo_put(20 + c.put_a, 8 - c.put_a, 40 + 16 * c.put_a)
    A("s_waitcnt lgkmcnt(0)")
    if c.phase == 1: Prof(A, 3).flush(5)
    A(f"{end}:\ns_endpgm")
    A(f".p2align 3\n{hlp}:")
    gen_helper(A, c, Prof(A, 4))
    def rnd(l):
        u = np.float32(max(l, 0)).view(np.uint32)
        u = (int(u) + 0x7FFF + ((int(u) >> 16) & 1)) & 0xFFFF0000
        return int(np.uint32(u).view(np.float32))
    ad = [[(rnd(8 * b - 3 + r) & 7) * TP + (rnd(8 * b - 3 + r) >> 3) * 4 for r in range(12)] for b in range(256)]
    A(f".p2align 7\n.type {tab},@object\n{tab}:")
    for b in range(256): A(".long " + ", ".join("0x%08x" % (ad[b][2*k] | ad[b][2*k+1] << 16) for k in range(4)))
    for b in range(256): A(".long " + ", ".join("0x%08x" % (ad[b][2*k] | ad[b][2*k+1] << 16) for k in range(4, 6)))
    A(f".size {tab}, {256*24}")
    return kernel_desc(name, 168, 102)
```

```python
from base import *
import base
from ka import load_ptrs, cmul, cexp
import numpy as np
WS_E = 0x4000
WS_PZ = 0x5000
WS_XG = 0xA00000
XG_BYTES = 224 * 16384
REG = 16384
TP, GP = 1056, 272
KP = 4160
KB0 = 8704
UO, UPITCH = 74240, 4608
PARO = 98304
XT = 140288
TAGA = XT + 8192
BLK = 8192
NSL = 20
CON = 19 * BLK
F_LDS = NSL * BLK
GK0 = -2.0 * LOG2E * 0.7978845608028654
GK1 = GK0 * 0.044715
SPIN = 1 << 18

class Cfg:
    code_bytes = 49152
    prio_mid = 26
    poll_late = 0
    e1_first, e1_last = 15, 22
    e1_packed = False
    drain0 = (22, 26)
    pollA, chkA = 24, 27
    earlyT = (4, 1)
    poll0 = 28
    ya_at, yb_at = 18, 25
    put_a = 3
    pace1, pace2, pace = 2, 1, {}
    pa_early = False
    g_pre = 0
    tdepth, tdepth2 = 22, 16
    gate_ahead = {14: 14, 28: 4, 42: 12}
    pollT1 = (20, 28)
    capP = 8
    caps = {}
    gat_issue, gat_check = 7, 9
    con_write = 11
    il = 2
    stflag = 'sc0 sc1'
    prioB = 2
    h0 = 4
    hiss = (1, 2, 1, 1, 1, 1, 1)
    ca_load = 10
    cs_issue = 5
    hdepth = 1
    fdepth = None
    x_delay = 0
    x_force = False
    backoff = 0
    rep_one = False
    x_nocs = False
    sweepW = False
    sweepD = True
    hramp = 0
    xp_chk = False
    npk = True
    lfifo = (8, 14)
    hprio = 3
    pz_sleep = 4
    hnear = 3
    lf_at = 'C'
    hf_at = 'B'
    poi_at = '0'
    wide_h = True
    xp_at = 0
    gat_split = (3, 4)
    x_nogat = False
    cprio = 3
    nprio = 2
    auxprio = 3
    x_nopre = False
    emode = 0
    csort = True
    probe = 1
    x_quietN = False
    x_quietL = False
    clook = 4
    stcost = 8
    xe = False
    x_cnt = False
    put_0, put_l = 6, 0
    x_fine = None
    phase = 1

def schedule(c):
    need = {("W", s): s for s in range(28)}
    last_use = {("W", s): s + 1 for s in range(28)}
    for t in range(28): last_use[("D", t)] = 1000
    free_at = {sl: (16 + sl if sl < 14 else -1) for sl in range(NSL)}
    slot = {}
    issue = {i: [] for i in range(-1, 29)}
    n = dict(W=0, D=0)
    cur = None
    def pick(i):
        nW, nD = n["W"], n["D"]
        wf = [sl for sl in range(14, NSL) if free_at[sl] <= i and (sl != 19 or i >= 15 or nW + 1 < c.con_write)]
        if nW < 28 and wf: return ("W", nW), wf[0]
        fr = [sl for sl in range(NSL) if free_at[sl] <= i and (sl < 14 or nW == 28)]
        if fr and nD < 14: return ("D", nD), fr[0]
        return None
    for i in range(-1, 29):
        cap = 24 if i < 0 else c.caps.get(i, c.capP)
        while cap > 0:
            if cur is None:
                p = pick(i)
                if p is None: break
                b, sl = p
                slot[b] = sl; free_at[sl] = last_use[b] + 1; n[b[0]] += 1
                cur = [b, 0]
            issue[i].append((cur[0][0], cur[0][1], cur[1])); cur[1] += 1; cap -= 1
            if cur[1] == 4: cur = None
    assert n["D"] == 14 and cur is None
    rest = [sl for sl in range(NSL) if free_at[sl] < 1000]
    assert len(rest) == 6
    for k, sl in enumerate(rest): slot[("D", 14 + k)] = sl
    for t in range(20, 28): slot[("D", t)] = slot[("D", t - 20)]
    if c.lf_at == 'P':
        for k, i in enumerate(range(*c.lfifo)): issue[i] += [("F", 14 + k, q) for q in range(4)]
    order = [b for i in range(0, 29) for b in issue[i]]
    pos = {b: k for k, b in enumerate(order)}
    wait = {}
    cnt = 0
    for i in range(0, 29):
        cnt += len(issue[i])
        req = [b for b in need if need[b] == i + 1 and b + (3,) in pos]
        wait[i] = None if not req else cnt - 1 - max(pos[b + (3,)] for b in req)
        if i == 28: wait[i] = 0
        assert wait[i] is None or wait[i] >= 0, (i, req)
    return issue, slot, wait

def gen_helper(A, c, P):
    sweep = A.label("Hsw")
    A(f"""
    s_sub_u32 s44, s2, 224
    s_lshr_b32 s45, s44, 3
    s_bfe_u32 s46, s44, 0x20001
    s_lshl_b32 s46, s46, 2
    s_add_u32 s46, s46, s45
    s_and_b32 s44, s44, 1
    s_waitcnt lgkmcnt(0)
    s_cmp_ge_u32 s46, 14
    s_cbranch_scc1 {sweep}
    v_and_b32 v1, 15, v0
    v_lshrrev_b32 v2, 4, v0
    v_mul_u32_u24 v2, 3584, v2
    v_lshl_add_u32 v2, v1, 4, v2
    s_cmp_ge_u32 s46, 7
    s_cselect_b32 s47, 7, 0
    s_cselect_b32 s48, s22, s20
    s_cselect_b32 s49, s23, s21
    s_sub_u32 s46, s46, s47
    s_mul_i32 s50, s44, 7
    s_add_u32 s46, s46, s50
    s_lshl_b32 s47, s47, 1
    s_add_u32 s52, s46, s47
    s_lshl_b32 s47, s46, 8
    s_mov_b32 s50, {W_BYTES}
    s_mov_b32 s51, 0x20000
    """)
    for p in range(14):
        A(f"buffer_load_dwordx4 {v(16+4*p,4)}, v2, s[48:51], s47 offen")
        if p < 13: A("s_add_u32 s47, s47, %d" % (32 * 3584))
        if p < c.hramp: A("s_waitcnt vmcnt(0)")
    A("s_mov_b32 s42, 0x00003f80\ns_mov_b32 s43, 0x3f800000")
    for p in range(14):
        A(f"s_waitcnt vmcnt({13-p})")
        for q in range(4):
            for hl in range(2):
                acc = 4 + 2 * q + hl
                A(f"v_dot2_f32_bf16 v{acc}, v{16+4*p+q}, s{42+hl}, {'0' if p == 0 else 'v%d' % acc}")
    for op in ("v_permlane16_swap_b32", "v_permlane32_swap_b32"):
        for q in range(8): A(f"v_mov_b32 v{16+q}, v{4+q}")
        for q in range(8): A(f"{op} v{4+q}, v{16+q}")
        for q in range(8): A(f"v_add_f32 v{4+q}, v{4+q}, v{16+q}")
    A(f"""
    v_lshrrev_b32 v2, 6, v0
    v_lshlrev_b32 v2, 9, v2
    v_lshl_add_u32 v2, v1, 5, v2
    s_mov_b64 exec, 0xffff
    ds_write_b128 v2, v[4:7]
    ds_write_b128 v2, v[8:11] offset:16
    s_mov_b64 exec, -1
    s_waitcnt lgkmcnt(0)
    s_barrier
    s_cmp_ge_u32 s36, 2
    s_cbranch_scc1 {sweep}
    v_lshlrev_b32 v1, 2, v0
    ds_read2st64_b32 v[4:5], v1 offset0:0 offset1:2
    ds_read2st64_b32 v[6:7], v1 offset0:4 offset1:6
    ds_read2st64_b32 v[8:9], v1 offset0:8 offset1:10
    ds_read2st64_b32 v[10:11], v1 offset0:12 offset1:14
    s_waitcnt lgkmcnt(0)
    v_pk_add_f32 v[4:5], v[4:5], v[6:7]
    v_pk_add_f32 v[8:9], v[8:9], v[10:11]
    v_pk_add_f32 v[4:5], v[4:5], v[8:9]
    v_add_f32 v4, v4, v5
    s_mov_b32 s43, 0xffff0000
    v_cvt_pk_bf16_f32 v5, v4, v4
    v_and_b32 v5, s43, v5
    v_sub_f32 v6, v4, v5
    v_cvt_pk_bf16_f32 v8, v5, v6
    v_and_b32 v7, s43, v8
    v_sub_f32 v6, v6, v7
    v_cvt_pk_bf16_f32 v9, v6, 0
    s_lshl_b32 s46, s52, 10
    s_add_u32 s46, s46, {WS_CS}
    v_lshl_add_u32 v1, v1, 1, s46
    global_store_dwordx2 v1, v[8:9], s[30:31] sc0 sc1
    s_mov_b32 s46, 1
    s_waitcnt vmcnt(0)
    s_atomic_add s46, s[28:29], 0
    {sweep}:
    """)
    P.stamp(1)
    done = A.label("Hdone")
    A(f"""
    s_cmp_ge_u32 s36, 7
    s_cbranch_scc1 {done}
    v_lshrrev_b32 v2, 3, v0
    v_mul_u32_u24 v2, 3584, v2
    v_and_b32 v3, 7, v0
    v_min_u32 v3, 6, v3
    v_lshl_add_u32 v2, v3, 8, v2
    s_mul_i32 s46, s45, {112*3584}
    s_mul_i32 s47, s44, 1792
    s_add_u32 s46, s46, s47
    v_add_u32 v2, s46, v2
    v_add_u32 v3, {56*3584}, v2
    s_mul_i32 s46, s45, {128*896}
    v_lshl_add_u32 v4, v0, 7, s46
    """)
    def wpass(h):
        for m in (20, 22):
            for r in (2, 3): A(f"global_load_dword v8, v{r}, s[{m}:{m+1}] offset:{128*h}\ns_waitcnt vmcnt({c.hdepth})")
    if c.sweepW: wpass(0); wpass(1)
    for k in range(4 if c.sweepD else 0):
        if k == 3: A(f"s_cmp_ge_u32 s45, 2\ns_cbranch_scc1 {done}")
        A(f"global_load_dword v8, v4, s[24:25]\nv_add_u32 v4, {4*128*896}, v4\ns_waitcnt vmcnt({c.hdepth})")
    A(f"{done}:\ns_waitcnt lgkmcnt(0)")
    P.flush(2)
    A("s_endpgm")

def gen(A, name, c=Cfg, verbose=False):
    issue, slot, wait = schedule(c)
    if verbose:
        for i in range(-1, 29): print(i, ' '.join(k + str(j) + '.' + str(q) for k, j, q in issue[i]), wait.get(i))
        print({k: x for k, x in slot.items() if k[0] == "D"})
    kernel_head(A, name)
    end = A.label("end"); hlp = A.label("hlp"); kw_ = A.label("kw"); nw = A.label("nw"); tab = A.label("tab")
    auxt = A.label("auxt"); auxs = A.label("auxs"); til = A.label("til"); hold = A.label("hold")
    P0 = Prof(A, 1)
    class PH:
        def __init__(s, ph, kid=1): s.on = c.phase == ph; s.P = Prof(A, kid)
        def stamp(s, i):
            if s.on: s.P.stamp(i)
    P = PH(1); PA = PH(1, 3)
    class Bars:
        def __init__(s, marks, n1, kid=1): s.n = 0; s.marks = c.x_fine or marks; s.on = c.phase == 2; s.n1 = n1; s.P = Prof(A, kid)
        def bar(s):
            A("s_barrier")
            if s.on and s.n in s.marks: s.P.stamp(1 + s.marks.index(s.n))
            s.n += 1
        def mark(s, k):
            if s.on and not c.x_fine: s.P.stamp(1 + len(s.marks) + k)
        def fin(s, k=0):
            if not s.on: s.P.flush(s.n1); return
            k = 0 if c.x_fine else k
            s.P.stamp(1 + len(s.marks) + k); s.P.flush(2 + len(s.marks) + k)
    A(f"s_cmp_ge_u32 s2, 256\ns_cbranch_scc1 {end}")
    P0.stamp(0)
    load_ptrs(A)
    A(f"s_getpc_b64 s[60:61]\nLpc:")
    vLane, vG, vJ = 1, 2, 3
    per = (c.code_bytes // 128 + 63) // 64
    vRow, vXG = 16, 48
    ffn_ids = """
    s_and_b32 s37, s2, 7
    s_lshr_b32 s38, s2, 3
    s_and_b32 s40, s38, 3
    s_lshr_b32 s39, s37, 1
    s_lshl_b32 s39, s39, 2
    s_add_u32 s39, s39, s40
    s_and_b32 s34, s37, 1
    s_lshr_b32 s35, s38, 2
    s_mul_i32 s38, s34, 7
    s_add_u32 s38, s38, s35
    s_mul_i32 s33, s40, 3
    s_lshl_b32 s37, s35, 1
    s_add_u32 s33, s33, s37
    s_cmp_ge_u32 s33, 14
    s_cselect_b32 s37, 14, 0
    s_sub_u32 s33, s33, s37
    """
    A(f"""
    v_lshrrev_b32 v4, 6, v0
    v_and_b32 v{vLane}, 63, v0
    s_and_b32 s37, s2, 7
    v_readfirstlane_b32 s36, v4
    s_mul_i32 s37, s37, 28
    s_lshr_b32 s38, s2, 3
    s_add_u32 s37, s37, s38
    s_mov_b32 s43, 0xffff0000
    s_cmp_lt_u32 s36, 8
    s_cbranch_scc1 {kw_}
    s_setprio {c.auxprio}
    v_lshrrev_b32 v5, 3, v{vLane}
    v_and_b32 v6, 7, v{vLane}
    v_mul_u32_u24 v7, 896, v5
    s_cmp_lt_u32 s36, 10
    s_cbranch_scc1 {til}
    s_and_b32 s36, s36, 1
    s_lshr_b32 s62, s2, 2
    s_and_b32 s62, s62, 62
    s_add_u32 s62, s62, s36
    s_mul_i32 s62, s62, {per*128}
    v_min_u32 v10, {per-1}, v{vLane}
    v_lshl_add_u32 v10, v10, 7, s62
    v_min_u32 v10, Lcode_end-Lpc-4, v10
    global_load_dword v99, v10, s[60:61]
    s_mul_i32 s46, s36, 28
    s_add_u32 s46, s46, s38
    s_cmp_ge_u32 s2, 224
    s_cbranch_scc1 {end}
    s_and_b32 s47, s2, 7
    s_lshl_b32 s47, s47, 5
    s_add_u32 s47, s47, s46
    s_mul_i32 s48, s47, {8*896}
    v_lshl_add_u32 v8, v6, 4, v7
    v_add_u32 v8, s48, v8
    s_cmp_ge_u32 s46, 32
    s_waitcnt lgkmcnt(0)
    s_load_dword s56, s[30:31], {WS_E}
    s_cbranch_scc1 {hold}
    """)
    for i in range(7): A(f"global_load_dwordx4 {v(vRow+4*i,4)}, v8, s[4:5] offset:{128*i}")
    A(f"""
    s_branch {auxs}
    {til}:
    s_cmp_ge_u32 s2, 224
    s_cbranch_scc1 {end}
    s_and_b32 s36, s36, 1
    s_mul_i32 s46, s37, 9363
    s_lshr_b32 s46, s46, 16
    s_mul_i32 s47, s46, 7
    s_sub_u32 s47, s37, s47
    s_lshl_b32 s46, s46, 1
    s_add_u32 s46, s46, s36
    s_mul_i32 s49, s46, {32*896}
    s_lshl_b32 s48, s47, 7
    s_add_u32 s49, s49, s48
    s_lshl_b32 s47, s47, 19
    s_lshl_b32 s46, s46, 8
    s_add_u32 s51, s47, s46
    s_lshl_b32 s46, s36, 12
    s_add_u32 s46, s46, {XT}
    s_mov_b32 m0, s46
    v_lshrrev_b32 v4, 1, v5
    v_xor_b32 v4, v4, v6
    v_lshl_add_u32 v12, v4, 4, v7
    v_xor_b32 v4, 4, v4
    v_lshl_add_u32 v13, v4, 4, v7
    v_add_u32 v13, {8*896-1024}, v13
    v_add_u32 v14, {16*896-2048}, v12
    v_add_u32 v15, {16*896-2048}, v13
    s_mov_b32 s34, {X_BYTES}
    s_mov_b32 s35, 0x20000
    s_waitcnt lgkmcnt(0)
    s_mov_b32 s32, s4
    s_mov_b32 s33, s5
    """)
    for i in range(4): A(f"buffer_load_dwordx4 v{12+i}, s[32:35], s49 offen offset:{1024*i} lds")
    A(f"s_load_dword s57, s[30:31], {WS_E}")
    A(f"s_branch {auxt}\n{kw_}:\ns_cmp_ge_u32 s2, 224\ns_cbranch_scc1 {hlp}")
    vP, vDT = 8, 12
    a2, b2 = 14, 15
    w1, w256, w2, w512 = 16, 18, 20, 22
    tA, tB, tC = 24, 26, 28
    G, G2, Hh, W4, HT, CV = 30, 46, 62, 68, 70, 78
    vTB, vA, vBc, vRA = 88, 94, 95, 96
    A(f"""
    v_mov_b32 v{vP}, 0
    v_mov_b32 v{vP+1}, 0
    v_mov_b32 v{vP+2}, 0
    v_mov_b32 v{vP+3}, 0
    s_lshl_b32 s48, s37, 10
    v_lshl_add_u32 v4, v0, 1, s48
    s_lshl_b32 s48, s37, 2
    s_lshl_b32 s56, s36, 14
    s_mov_b32 m0, s56
    s_lshr_b32 s38, s36, 2
    s_add_u32 s62, s60, {tab}-Lpc+2048
    s_addc_u32 s63, s61, 0
    s_waitcnt lgkmcnt(0)
    s_load_dword s52, s[14:15], s48
    global_load_short_d16_hi v{vP}, v4, s[6:7]
    global_load_short_d16_hi v{vP+1}, v4, s[8:9]
    global_load_short_d16_hi v{vP+2}, v4, s[10:11]
    global_load_short_d16_hi v{vP+3}, v4, s[12:13]
    s_load_dword s53, s[16:17], s48
    """)
    P.stamp(1)
    A(f"""
    v_bfe_u32 v{vG}, v0, 5, 1
    v_and_b32 v{vJ}, 31, v0
    s_lshl_b32 s46, s36, 15
    v_mul_u32_u24 v4, {GP}, v{vJ}
    v_lshl_add_u32 v4, v{vG}, 4, v4
    v_add_u32 v{vRA}, s46, v4
    s_bfe_u32 s39, s36, 0x10001
    s_and_b32 s40, s36, 1
    s_lshl_b32 s48, s39, 15
    s_lshl_b32 s47, s40, 8
    s_add_u32 s48, s48, s47
    s_add_u32 s48, s48, {KB0+64-24}
    v_and_b32 v4, 3, v0
    v_sub_u32 v4, 3, v4
    v_mul_u32_u24 v4, {KP}, v4
    v_bfe_u32 v5, v0, 2, 2
    v_lshl_add_u32 v4, v5, 3, v4
    v_bfe_u32 v5, v0, 4, 2
    v_lshl_add_u32 v4, v5, 4, v4
    v_add_u32 v{vA}, s48, v4
    s_mul_i32 s48, s39, {UPITCH}
    s_sub_u32 s48, s48, s47
    s_add_u32 s48, s48, {UO+512+16-192}
    v_and_b32 v4, 15, v0
    v_lshlrev_b32 v4, 5, v4
    v_lshlrev_b32 v5, 4, v5
    v_sub_u32 v4, v4, v5
    v_add_u32 v{vBc}, s48, v4
    s_add_u32 s64, s30, {WS_XG}
    s_addc_u32 s65, s31, 0
    s_mov_b32 s66, {XG_BYTES}
    s_mov_b32 s67, 0x20000
    s_and_b32 s47, s36, 3
    s_lshl_b32 s47, s47, 12
    v_lshl_add_u32 v97, v{vLane}, 4, s47
    s_lshl_b32 s44, s37, 14
    s_mov_b32 s54, {f32(8.0)}
    s_mov_b32 s55, {f32(256.0)}
    s_lshl_b32 s46, s38, 4
    v_mov_b32 v{vDT}, {f32(LOG2E)}
    s_cmp_lt_u32 s36, 4
    s_cbranch_scc1 Lnoprio
    s_setprio 1
    Lnoprio:
    s_waitcnt lgkmcnt(0)
    s_lshr_b32 s52, s52, s46
    s_lshl_b32 s52, s52, 16
    v_mul_f32 v{vDT}, s52, v{vDT}
    v_exp_f32 v{vDT}, v{vDT}
    v_cvt_pk_bf16_f32 v{vDT}, v{vDT}, v{vDT}
    v_and_b32 v{vDT}, s43, v{vDT}
    s_and_b32 s59, s53, s43
    s_lshl_b32 s58, s53, 16
    v_add_f32 v6, v{vDT}, v{vDT}
    """)
    P.stamp(2)
    A(f"""
    s_waitcnt vmcnt(2)
    v_mul_f32 v4, {f32(LOG2E)}, v{vP}
    v_exp_f32 v4, v4
    v_mul_f32 v{b2}, v{vP+1}, v{vDT}
    v_cvt_pk_bf16_f32 v4, v4, v4
    v_and_b32 v4, s43, v4
    v_mul_f32 v{a2}, v4, v{vDT}
    v_mul_f32 v{b2}, 0.15915494, v{b2}
    v_mul_f32 v{a2}, {f32(-LOG2E)}, v{a2}
    """)
    P.stamp(3)
    nb_ = [0]
    vPX, vPS_, vPA = 100, 116, 97
    xp = [f"buffer_load_dwordx4 {v(vPX+4*q,4)}, v{vPA}, s[64:67], s44 offen offset:{1024*q} sc1" for q in range(4)]
    xp += [f"global_load_dwordx4 {v(vPS_+4*q,4)}, v{vPA}, s[30:31] offset:{1024*q} sc1" for q in range(4)]
    def put(src, row, neg):
        r = CV + (nb_[0] & 7); nb_[0] += 1
        x = [f"v_cvt_pk_bf16_f32 v{r}, v{src}, {'-' if neg else ''}v{src+1}", f"ds_write_addtid_b32 v{r} offset:{row*GP}"]
        if nb_[0] == c.prio_mid: x[1] += "\ns_setprio 0"
        if nb_[0] == c.xp_at: x[1] += "\ns_cmp_lt_u32 s36, 4\ns_cbranch_scc1 Lnoxp\n" + "\n".join(xp) + "\nLnoxp:"
        return x
    def spread(puts, work):
        o = []
        while puts or work:
            p = puts.pop(0) if puts else None
            if p: o.append(p[0])
            if work: o += work.pop(0)
            if p: o.append(p[1])
        return o
    GR = 32
    for l in cexp(Hh, a2, b2, "s54", tA): A(l)
    A(f"v_mov_b32 v{CV+8}, 0x3f80\nds_write_addtid_b32 v{CV+8}")
    for l in cmul(Hh+2, Hh, Hh) + cmul(Hh+4, Hh+2, Hh) + cmul(W4, Hh+2, Hh+2): A(l)
    ex = merge(cexp(w1, a2, b2, None, tB), cexp(w256, a2, b2, "s55", tC))
    ex += ["s_waitcnt vmcnt(0)", f"v_mul_f32 v{G}, v{vP+2}, v6", f"v_mul_f32 v{G+1}, v{vP+3}, v6",
           "v_min_u32 v5, 255, v0\nv_lshlrev_b32 v6, 4, v5", "v_lshlrev_b32 v5, 3, v5",
           f"global_load_dwordx4 {v(vTB,4)}, v6, s[62:63] offset:-2048", f"global_load_dwordx2 {v(vTB+4,2)}, v5, s[62:63] offset:2048"]
    ex += cmul(w2, w1, w1) + cmul(G+2, G, w1) + cmul(w512, w256, w256)
    cur = [Hh, Hh+2, Hh+4, W4]; nxt = [HT, HT+2, HT+4, HT+6]; alt = [G2, G2+2, G2+4, G2+6]
    j = 1
    while j < 32:
        pend = [put(cur[r], j + r, False) for r in range(4) if j + r < 32]
        wk = [cmul(nxt[r], cur[r], W4) + [ex.pop(0) for _ in range(1) if ex] for r in range(4) if j + 4 + r < 32]
        if j + 4 >= 32: wk = [cmul(G+2*i, G+2*(i-2), w2) for i in range(2, 5)]
        for l in spread(pend, wk): A(l)
        cur, nxt = nxt, (alt if nxt[0] == HT else [HT, HT+2, HT+4, HT+6])
        j += 4
    assert not ex
    wk = [cmul(G+2*i, G+2*(i-2), w2) for i in range(5, 8)] + [cmul(G2+2*k, G+4*k, w256) for k in range(4)] + [cmul(G2+8, G, w512)]
    for l in spread([put(G+2*i, GR+i, True) for i in range(8)], wk): A(l)
    wk = [cmul(G2+10, G+8, w512), cmul(G2+12, G2, w512), cmul(G2+14, G2+4, w512), cmul(G, G2+8, w512), cmul(G+2, G2+12, w512), cmul(G+4, G, w512), cmul(G+6, G+2, w512), cmul(G+8, G+4, w512)]
    for l in spread([put(G2+2*i, GR+8+i, True) for i in range(8)], wk): A(l)
    for l in spread([put(G+2*i, GR+16+i, True) for i in range(5)], []): A(l)
    P.stamp(4)
    A(f"s_cmp_ge_u32 s36, 4\ns_cbranch_scc1 {nw}")
    vACC, vEA, FR, TA_ = 8, 30, 100, 44
    tabprep = [f"s_lshl_b32 s46, s36, 15", f"v_lshl_add_u32 v4, v{vJ}, 2, s46", f"v_mul_u32_u24 v5, {4*TP}, v{vG}", "v_add_u32 v5, v5, v4", f"v_xor_b32 v7, 1, v{vG}"]
    tmin = []
    for b in range(4):
        o0 = 2 * b * TP + 128; o1 = 4 * (b & 1) * TP + 256 + 128 * (b >> 1)
        tabprep += [f"v_mul_u32_u24 v{TA_+b}, {abs(o1-o0)}, v{vG if o1 > o0 else 7}", f"v_add_u32 v{TA_+b}, v{TA_+b}, v4"]
        tmin.append(min(o0, o1))
    tabprep += [f"v_lshl_add_u32 v{TA_+4}, v{vG}, 9, v4", "s_waitcnt vmcnt(0)"]
    for r in range(11):
        tabprep += [f"v_and_b32 v{vEA+r}, 0xffff, v{vTB+(r>>1)}" if r % 2 == 0 else f"v_lshrrev_b32 v{vEA+r}, 16, v{vTB+(r>>1)}"]
    tabprep += ["v_cmp_ne_u32 s[44:45], 0, v0", f"v_lshlrev_b32 v6, 4, v0"]
    A("s_waitcnt lgkmcnt(0)\ns_barrier")
    P.stamp(5)
    def frd(n):
        b = FR + 8 * (n & 7); o = (n >> 3) * REG + 32 * (n & 7)
        return f"ds_read_b128 {v(b,4)}, v{vRA} offset:{GR*GP+o}\nds_read_b128 {v(b+4,4)}, v{vRA} offset:{o}"
    for n in range(6): A(frd(n))
    for n in range(16):
        b0 = FR + 8 * (n & 7)
        A(f"s_waitcnt lgkmcnt({2*min(5, 15-n)})\nv_mfma_f32_32x32x16_bf16 {v(vACC,16)}, {v(b0,4)}, {v(b0+4,4)}, {'0' if n == 0 else v(vACC,16)}")
        if n + 6 < 16: A(frd(n + 6))
        for l in tabprep[2*n:2*n+2]: A(l)
    assert len(tabprep) <= 32
    vW, vR, vO = 97, 98, 99
    A(f"""
    s_lshl_b32 s46, s36, 12
    s_add_u32 s46, s46, {PARO}
    v_lshl_add_u32 v{vW}, v{vLane}, 4, s46
    v_xor_b32 v{vR}, 0x1000, v{vW}
    s_lshl_b32 s46, s40, 10
    s_lshl_b32 s47, s39, 15
    s_add_u32 s47, s47, s46
    v_lshl_add_u32 v3, v{vLane}, 4, s47
    s_cmp_eq_u32 s40, 0
    s_cselect_b64 s[48:49], 0, -1
    s_cselect_b64 s[50:51], -1, 0
    """)
    for b in range(4): A(f"ds_write_b32 v5, v{vACC+b} offset:{TP*b}")
    for b in range(4): A(f"ds_write_b32 v{TA_+b}, v{vACC+4+b} offset:{tmin[b]}")
    A(f"s_mov_b32 exec_hi, 1\nds_write_b32 v{TA_+4}, v{vACC+8} offset:512\ns_mov_b32 exec_hi, 0")
    for b in range(1, 4): A(f"ds_write_b32 v{TA_+4}, v{vACC+8+b} offset:{512+128*b}")
    A("s_mov_b32 exec_hi, -1\ns_waitcnt lgkmcnt(0)\ns_barrier")
    P.stamp(6)
    EV, CB = 100, 44
    for r in range(11): A(f"ds_read2st64_b32 {v(EV+2*r,2)}, v{vEA+r} offset0:0 offset1:128\nv_add_u32 v{vEA+r}, 0x10000, v{vEA+r}")
    for r in range(11): A(f"ds_read2st64_b32 {v(EV+22+2*r,2)}, v{vEA+r} offset0:0 offset1:128")
    for ch in range(2):
        E = EV + 22 * ch
        A(f"s_waitcnt lgkmcnt({11 if ch == 0 else 4})")
        for r in range(11): A(f"v_add_f32 v{E+2*r}, v{E+2*r}, v{E+2*r+1}")
        for r in range(3): A(f"v_cndmask_b32 v{E+2*r}, 0, v{E+2*r}, s[44:45]")
        for cp in range(4):
            b = CB + 16 * ch + 4 * cp
            for k in range(4):
                r0 = 3 - cp + 2 * k
                A(f"v_cvt_pk_bf16_f32 v{b+k}, v{E+2*r0}, v{E+2*r0+2}")
            A(f"ds_write_b128 v6, {v(b,4)} offset:{KB0+64+32768*ch+cp*KP}")
    P.stamp(7)
    A("s_waitcnt lgkmcnt(0)\ns_barrier")
    P.stamp(8)
    A(f"s_setprio {c.cprio}")
    AC = 8
    FBs = [40 + 8 * k for k in range(6)] + [100 + 8 * k for k in range(6)]
    def rd(Gi):
        r, n = Gi >> 3, Gi & 7
        b = FBs[Gi % 12]
        return [f"ds_read_b64 {v(b,2)}, v{vA} offset:{512*n+64*r}", f"ds_read_b64 {v(b+2,2)}, v{vA} offset:{512*n+64*r+8}",
                f"ds_read_b128 {v(b+4,4)}, v{vBc} offset:{512*n+64*(3-r)}"]
    def send(t): return f"s_mov_b64 exec, s[{48+2*(t&1)}:{49+2*(t&1)}]\nds_write_b128 v{vW}, {v(AC+4*t,4)} offset:{1024*(t>>1)}\ns_mov_b64 exec, -1"
    for Gi in range(4):
        for l in rd(Gi): A(l)
    A(f"""
    s_lshl_b32 s46, s37, 1
    s_add_u32 s46, s46, s39
    s_lshl_b32 s46, s46, 12
    s_lshl_b32 s47, s40, 9
    s_add_u32 s46, s46, s47
    s_add_u32 s46, s46, {WS_HT}
    v_and_b32 v4, 15, v0
    v_bfe_u32 v5, v0, 4, 2
    v_lshlrev_b32 v4, 5, v4
    v_lshrrev_b32 v6, 1, v5
    v_lshl_add_u32 v4, v6, 4, v4
    v_and_b32 v5, 1, v5
    v_lshl_add_u32 v4, v5, 10, v4
    v_add_u32 v{vO}, s46, v4
    """)
    started = set()
    for Gi in range(32):
        r, n = Gi >> 3, Gi & 7
        pairs = [(a, b) for a in range(n + 1) for b in range(n + 1) if max(a, b) == n and a + b <= 7]
        if r == 3 and c.csort:
            lo = [p for p in pairs if p[0] <= p[1]]; hi = [p for p in pairs if p[0] > p[1]]
            lo.sort(key=lambda p: p[0] + p[1]); hi.sort(key=lambda p: p[0] + p[1])
            pairs = lo[:2] + hi[:2] + lo[2:] + hi[2:]
        nr = rd(Gi + 4) if Gi + 4 < 32 else []
        if Gi <= 28: A("s_waitcnt lgkmcnt(9)")
        if Gi == 29: A("s_waitcnt lgkmcnt(2)")
        for k, (a, b) in enumerate(pairs):
            t = a + b
            cc = v(AC + 4 * t, 4) if t in started else "0"
            started.add(t)
            A(f"v_mfma_f32_16x16x32_bf16 {v(AC+4*t,4)}, {v(FBs[(8*r+a)%12],4)}, {v(FBs[(8*r+b)%12]+4,4)}, {cc}")
            if nr: A(nr.pop(0))
            if Gi == 28 and k in (0, 2, 4, 6): A(send(k // 2))
            if Gi in (29, 30) and k == 1: A(send(n - 1))
        for l in nr: A(l)
    A(send(6)); A(send(7))
    P.stamp(9)
    A("s_waitcnt lgkmcnt(0)\ns_barrier")
    PR, PP = 100, 116
    for q in range(4): A(f"ds_read_b128 {v(PR+4*q,4)}, v{vR} offset:{1024*q}\nds_read_b128 {v(PP+4*q,4)}, v3 offset:{2048*q}")
    odd = A.label("odd"); jn = A.label("jn")
    A(f"s_cmp_eq_u32 s40, 1\ns_cbranch_scc1 {odd}")
    for par in range(2):
        if par: A(f"{odd}:")
        for q in range(4):
            A(f"s_waitcnt lgkmcnt({6-2*q})")
            k = AC + 4 * (2 * q + par)
            for h in range(2): A(f"v_pk_add_f32 {v(PR+4*q+2*h,2)}, {v(PR+4*q+2*h,2)}, {v(k+2*h,2)}")
            for h in range(2): A(f"v_pk_add_f32 {v(PR+4*q+2*h,2)}, {v(PR+4*q+2*h,2)}, {v(PP+4*q+2*h,2)}")
            o_ = 132 + 2 * q
            A(f"v_cvt_pk_bf16_f32 v{o_}, v{PR+4*q}, v{PR+4*q+1}\nv_cvt_pk_bf16_f32 v{o_+1}, v{PR+4*q+2}, v{PR+4*q+3}")
            if q & 1:
                A(f"v_permlane16_swap_b32 v{o_-2}, v{o_}\nv_permlane16_swap_b32 v{o_-1}, v{o_+1}")
                A(f"global_store_dwordx4 v{vO}, {v(o_-2,4)}, s[30:31] offset:{1024*(q-1)} sc0 sc1")
        if not par: A(f"s_branch {jn}")
    A(f"{jn}:")
    P.stamp(10)
    vB, vAa, vS, vCR, vCA = 8, 10, 12, 14, 16
    vX = 18
    CN, CA, MB = 24, 32, 38
    F = [48, 64, 80]
    ACC = 96
    T1, T2, OUT = 48, 56, 64
    def csetup():
        A(ffn_ids)
        A(f"""
        s_and_b32 s40, s36, 1
        s_bfe_u32 s41, s36, 0x10001
        s_lshr_b32 s49, s36, 2
        v_bfe_u32 v2, v{vLane}, 2, 2
        v_bfe_u32 v3, v{vLane}, 4, 1
        v_lshrrev_b32 v4, 5, v{vLane}
        v_and_b32 v6, 3, v{vLane}
        v_lshl_add_u32 v5, v4, 3, v2
        v_lshlrev_b32 v7, 8, v5
        v_lshl_add_u32 v7, v6, 3, v7
        v_lshl_add_u32 v7, v3, 5, v7
        s_lshl_b32 s42, s40, 1
        s_add_u32 s42, s42, s41
        v_xor_b32 v{vB}, s42, v2
        v_lshl_add_u32 v{vB}, v{vB}, 6, v7
        v_xor_b32 v{vB+1}, 64, v{vB}
        s_lshl_b32 s42, s34, 1
        s_add_u32 s42, s42, s40
        v_xor_b32 v{vX}, s42, v2
        v_lshl_add_u32 v{vX}, v{vX}, 6, v7
        v_lshlrev_b32 v7, 7, v5
        v_lshl_add_u32 v7, v6, 3, v7
        v_lshl_add_u32 v7, v3, 12, v7
        v_lshrrev_b32 v5, 1, v2
        v_lshl_add_u32 v5, v3, 1, v5
        s_lshl_b32 s42, s41, 1
        v_xor_b32 v5, s42, v5
        v_lshl_add_u32 v7, v5, 5, v7
        v_add_u32 v{vAa}, {14*BLK}, v7
        v_xor_b32 v{vAa+1}, 32, v{vAa}
        s_lshl_b32 s42, s39, 2
        s_lshl_b32 s43, s40, 1
        s_add_u32 s42, s42, s43
        s_add_u32 s43, s42, s41
        s_xor_b32 s44, s43, 1
        s_lshl_b32 s45, s38, 3
        s_lshl_b32 s46, s41, 1
        s_add_u32 s45, s45, s46
        s_lshl_b32 s46, s49, 2
        s_add_u32 s45, s45, s46
        s_lshl_b32 s46, s45, 7
        s_add_u32 s45, s45, {WS_ACT // 1024}
        s_mul_i32 s43, s43, 112
        s_mul_i32 s44, s44, 112
        s_add_u32 s43, s43, s45
        s_add_u32 s44, s44, s45
        s_lshl_b32 s43, s43, 10
        s_lshl_b32 s44, s44, 10
        v_lshl_add_u32 v{vS}, v{vLane}, 4, s43
        v_lshl_add_u32 v{vS+1}, v{vLane}, 4, s44
        v_and_b32 v5, 15, v{vLane}
        v_mul_u32_u24 v7, {F_*8}, v3
        v_lshl_add_u32 v5, v5, 3, v7
        s_add_u32 s46, s46, {WS_CS}
        v_add_u32 v{vCA}, s46, v5
        v_and_b32 v5, 31, v{vLane}
        s_lshl_b32 s42, s40, 1
        s_add_u32 s42, s42, s41
        s_lshl_b32 s43, s42, 9
        s_add_u32 s43, s43, {CON}
        v_lshl_add_u32 v{vCR}, v5, 4, s43
        v_xor_b32 v{vCR+1}, 512, v{vCR}
        s_lshl_b32 s43, s39, 11
        s_lshl_b32 s44, s41, 8
        s_add_u32 s43, s43, s44
        s_add_u32 s43, s43, {WS_FLAGS}
        s_lshl_b32 s44, s34, 10
        s_add_u32 s59, s43, s44
        s_lshl_b32 s44, s40, 10
        s_add_u32 s58, s43, s44
        s_lshl_b32 s44, s49, 9
        s_add_u32 s58, s58, s44
        v_mov_b32 v{CA+4}, 0
        v_mov_b32 v{CA+5}, 0
        v_mov_b32 v{MB+2}, 0
        v_mov_b32 v{MB+3}, 0
        v_mov_b32 v{MB+6}, 0
        v_mov_b32 v{MB+7}, 0
        v_cmp_eq_u32 s[52:53], 0, v4
        s_mov_b32 s47, 0x3f803f80
        s_mov_b32 s48, 0xffff0000
        """)
    caload = [f"global_load_dwordx2 {v(CA,2)}, v{vCA}, s[30:31] sc1", f"global_load_dwordx2 {v(CA+2,2)}, v{vCA}, s[30:31] offset:128 sc1"]
    def preads(p, j):
        s, ks = j >> 1, j & 1
        f = F[j % 3]
        ho = (s % 8) * BLK + 4096 * ks
        wo = (slot[("W", 14 * p + s)] - 14) * BLK + 2048 * ks
        o = []
        for kind, i in (("B", 0), ("A", 0), ("B", 1), ("A", 1)):
            if kind == "B": o += [f"ds_read_b64_tr_b16 {v(f+8+4*i,2)}, v{vB+i} offset:{ho}", f"ds_read_b64_tr_b16 {v(f+10+4*i,2)}, v{vB+i} offset:{ho+1024}"]
            else: o += [f"ds_read_b64_tr_b16 {v(f+4*i,2)}, v{vAa+i} offset:{wo}", f"ds_read_b64_tr_b16 {v(f+2+4*i,2)}, v{vAa+i} offset:{wo+512}"]
        return o
    def pmfma(j, first=False):
        f = F[j % 3]
        return [f"v_mfma_f32_32x32x16_bf16 {v(ACC+32*t+16*rt,16)}, {v(f+4*t,4)}, {v(f+8+4*rt,4)}, {'0' if first else v(ACC+32*t+16*rt,16)}" for (t, rt) in ((0, 0), (0, 1), (1, 0), (1, 1))]
    def corr(first):
        return [f"v_mfma_f32_32x32x16_bf16 {v(ACC+32*t+16*rt,16)}, {v(CA+2*t,4)}, {v(MB+4*rt,4)}, {'0' if first else v(ACC+32*t+16*rt,16)}" for t in range(2) for rt in range(2)]
    mkmb = [f"v_cndmask_b32 v{MB+4*rt+k}, 0, v{CN+4*rt+3}, s[52:53]" for rt in range(2) for k in range(2)]
    def inter(m, r):
        per_ = (len(r) + 3) // 4
        for i in range(4):
            A(m[i])
            for l in r[per_*i:per_*(i+1)]: A(l)
    def pstep(p, s):
        for h in range(2):
            A("s_waitcnt lgkmcnt(8)")
            inter(pmfma(2*s - 2 + h, p == 0 and s == 1 and h == 0), preads(p, 2*s + h))
        if p == 0 and s - c.ca_load in (0, 1): A(caload[s - c.ca_load])
        if s == 7: A(f"v_add_u32 v{vB}, 0x10000, v{vB}\nv_add_u32 v{vB+1}, 0x10000, v{vB+1}")
    def epi(t, rt, n, packed):
        a = ACC + 32 * t + 16 * rt
        cn = CN + 4 * rt
        o_ = OUT + 4 * (n & 1)
        L = []
        if packed:
            L += [f"v_pk_mul_f32 {v(T1+2*q,2)}, {v(a+2*q,2)}, {v(a+2*q,2)}" for q in range(4)]
            L += [f"v_pk_fma_f32 {v(T1+2*q,2)}, {v(T1+2*q,2)}, {v(cn,2)}, {v(cn,2)} op_sel:[0,1,0] op_sel_hi:[1,1,0]" for q in range(4)]
            L += [f"v_pk_mul_f32 {v(T1+2*q,2)}, {v(T1+2*q,2)}, {v(a+2*q,2)}" for q in range(4)]
            L += [f"v_exp_f32 v{T1+q}, v{T1+q}" for q in range(8)]
            L += [f"v_pk_mul_f32 {v(T2+2*q,2)}, {v(a+2*q,2)}, {v(a+8+2*q,2)}" for q in range(4)]
            L += [f"v_pk_fma_f32 {v(T1+2*q,2)}, {v(T1+2*q,2)}, {v(cn+2,2)}, {v(cn+2,2)} op_sel_hi:[1,0,0]" for q in range(4)]
            L += [f"v_rcp_f32 v{T1+q}, v{T1+q}" for q in range(8)]
            L += [f"v_pk_mul_f32 {v(T2+2*q,2)}, {v(T2+2*q,2)}, {v(T1+2*q,2)}" for q in range(4)]
            L += [f"v_cvt_pk_bf16_f32 v{o_+q}, v{T2+2*q}, v{T2+2*q+1}" for q in range(4)]
        else:
            def st(q):
                return [f"v_mul_f32 v{T1+q}, v{a+q}, v{a+q}", f"v_fma_f32 v{T1+q}, v{T1+q}, v{cn+1}, v{cn}", f"v_mul_f32 v{T1+q}, v{T1+q}, v{a+q}",
                        f"v_exp_f32 v{T1+q}, v{T1+q}", f"v_mul_f32 v{T2+q}, v{a+q}, v{a+8+q}", f"v_fma_f32 v{T1+q}, v{T1+q}, v{cn+2}, v{cn+2}",
                        f"v_rcp_f32 v{T1+q}, v{T1+q}", f"v_mul_f32 v{T2+q}, v{T2+q}, v{T1+q}"]
            for q0 in range(0, 8, c.il):
                xs = [st(q) for q in range(q0, q0 + c.il)]
                for k in range(8): L += [x[k] for x in xs]
                L += [f"v_cvt_pk_bf16_f32 v{o_+q//2}, v{T2+q}, v{T2+q+1}" for q in range(q0, q0 + c.il, 2)]
        L += [f"global_store_dwordx4 v{vS+rt}, {v(o_,4)}, s[30:31] offset:{1024*t} {c.stflag}"]
        return L
    def cost(l): return 2 if l.startswith(("v_exp", "v_rcp", "v_sqrt")) else c.stcost if l.startswith("global_store") else 1
    def signal(t, later=None):
        A(f"s_mov_b32 s70, 1\ns_waitcnt vmcnt({2-2*t if later is None else later})\ns_atomic_add s70, s[30:31], s58\ns_add_u32 s58, s58, 128")
    def poll_issue(r, off):
        A(f"s_mov_b32 s{r}, 0\ns_add_u32 s68, s59, {off}\ns_atomic_add s{r}, s[30:31], s68 glc")
    def poll_wait(r, off):
        pl = A.label("poll"); ok = A.label("ok")
        A(f"s_mov_b32 s45, 0\n{pl}:\ns_waitcnt lgkmcnt(0)\ns_cmp_ge_u32 s{r}, 14\ns_cbranch_scc1 {ok}")
        poll_issue(r, off)
        A(f"s_add_u32 s45, s45, 1\ns_cmp_lt_u32 s45, {SPIN}\ns_cbranch_scc1 {pl}\ns_waitcnt lgkmcnt(0)\n{ok}:")
    PA_, PB_ = 69, 71
    Q = Bars([0, 14, c.drain0[1] + 1, 29], 13)
    AC2, ID, HF = 80, 160, 72
    csetup()
    if c.emode: A(f"s_waitcnt vmcnt(0)\ns_sleep {c.emode}")
    A("s_waitcnt vmcnt(0)\ns_barrier")
    P.stamp(11)
    A(f"""
    s_lshl_b32 s43, s35, 1
    s_add_u32 s43, s43, s41
    s_sub_u32 s43, s43, s38
    s_cselect_b32 s44, 14, 0
    s_add_u32 s43, s43, s44
    s_lshl_b32 s43, s43, 13
    v_add_u32 v{vX}, s43, v{vX}
    v_lshlrev_b32 v7, 3, v4
    v_sub_u32 v7, v5, v7
    v_mov_b32 v{vX+1}, 0x3f80
    v_mov_b32 v{vX+2}, 1.0
    """)
    for j in range(2):
        for i in range(4):
            d0 = 16 * j + 2 * i
            A(f"v_cmp_eq_u32 vcc, {d0}, v7\nv_cmp_eq_u32 s[50:51], {d0+1}, v7\nv_cndmask_b32 v{ID+4*j+i}, 0, v{vX+1}, vcc\nv_cndmask_b32 v{ID+4*j+i}, v{ID+4*j+i}, v{vX+2}, s[50:51]")
    A("s_setprio 2")
    Q.bar()
    P.stamp(12)
    for l in preads(0, 0) + preads(0, 1): A(l)
    for s in range(1, 14):
        Q.bar(); pstep(0, s)
    Q.bar()
    r = [f"ds_read_b128 {v(CN+4*i,4)}, v{vCR+i}" for i in range(2)] + [f"ds_read_b64_tr_b16 {v(HF+2*i,2)}, v{vX} offset:{4096*(i>>1)+1024*(i&1)}" for i in range(4)]
    A("s_waitcnt lgkmcnt(8)"); inter(pmfma(26), r)
    A("s_waitcnt vmcnt(0) lgkmcnt(4)"); inter(pmfma(27), mkmb)
    for l in corr(False): A(l)
    A("s_waitcnt lgkmcnt(0)")
    A("s_setprio 0")
    E1 = []
    for n in range(4): E1 += epi(n >> 1, n & 1, n, c.e1_packed)
    tot = sum(cost(x) for x in E1); per1 = tot / (c.e1_last - c.e1_first + 1); bud = 0.0
    vD, vT = 8, 14
    gsetup = f"""
    v_lshl_add_u32 v7, v4, 2, v2
    v_lshlrev_b32 v7, 7, v7
    v_lshrrev_b32 v{vD}, 1, v2
    v_xor_b32 v{vD}, s41, v{vD}
    v_lshl_add_u32 v7, v{vD}, 6, v7
    v_lshl_add_u32 v7, v3, 5, v7
    v_lshl_add_u32 v7, v6, 3, v7
    s_lshl_b32 s43, s41, 12
    v_add_u32 v{vD}, s43, v7
    v_xor_b32 v{vD+1}, 64, v{vD}
    v_add_u32 v{vD+2}, 0x10000, v{vD}
    v_add_u32 v{vD+3}, 0x10000, v{vD+1}
    v_lshlrev_b32 v{vT}, 4, v{vLane}
    """
    gsetup2 = f"""
    s_lshl_b32 s43, s39, 2
    s_lshl_b32 s44, s34, 1
    s_add_u32 s43, s43, s44
    s_add_u32 s43, s43, s40
    s_mul_i32 s55, s43, {112*1024}
    s_mul_i32 s43, s43, {32*896}
    s_lshl_b32 s44, s35, 7
    s_add_u32 s43, s43, s44
    s_lshl_b32 s44, s41, 6
    s_add_u32 s43, s43, s44
    v_mul_u32_u24 v5, 896, v5
    v_lshl_add_u32 v5, v4, 4, v5
    v_add_u32 v5, s43, v5
    s_lshl_b32 s44, s41, 11
    s_add_u32 s55, s55, s44
    s_lshl_b32 s54, s33, 13
    s_add_u32 s54, s54, s55
    s_add_u32 s55, s55, {14*8192}
    s_add_u32 s64, s30, {WS_ACT}
    s_addc_u32 s65, s31, 0
    s_mov_b32 s66, {ACT_BYTES}
    s_mov_b32 s67, 0x20000
    """
    TRQ = [96 + 4 * k for k in range(18)] + [16, 20, 24, 28]
    DB = [32, 40, 48, 56]
    AO = [AC2, 64]
    seq = [(14 * hf + b, j) for hf in range(2) for j in range(2) for b in range(14)]
    cons = [(b, j) for b in range(14) for j in range(2)] + seq[28:]
    freeq = list(TRQ); treg = {}
    def tload(n):
        b, j = seq[n]
        if (b, j) not in treg: treg[(b, j)] = freeq.pop(0)
        o = []
        if n == 28: o += ["s_add_u32 s54, s54, 4096", "s_add_u32 s55, s55, 4096"]
        o += [f"buffer_load_dwordx4 {v(treg[(b, j)],4)}, v{vT}, s[64:67], s54 offen offset:{1024*j} sc1"]
        o += ["s_add_u32 s54, s54, 8192", "s_cmp_ge_u32 s54, s55", f"s_cselect_b32 s57, {14*8192}, 0", "s_sub_u32 s54, s54, s57"]
        return o
    nst = 0; early = 0
    assert c.drain0[1] <= c.chkA and c.e1_last + 2 <= c.chkA and sum(c.earlyT) <= 14
    for i in range(15, 29):
        Q.bar()
        if i == c.drain0[0]:
            assert nst >= 2
            signal(0, nst - 2)
        if i >= c.e1_first:
            bud += per1
            while E1 and (bud > 0 or i == c.e1_last):
                x = E1.pop(0); A(x); bud -= cost(x)
                if x.startswith("global_store"): nst += 1
        if i == c.pollA: poll_issue(PA_, 0)
        if i == c.e1_last + 1: A(gsetup)
        if i == c.e1_last + 2: A(gsetup2)
        if i == c.chkA: A("s_waitcnt lgkmcnt(0)")
        if i == c.drain0[1]:
            signal(1)
            A(f"v_add_u32 v{vD+4}, 0x20000, v{vD}\nv_add_u32 v{vD+5}, 0x20000, v{vD+1}")
        if i == c.poll0: poll_issue(PB_, 128)
        if 0 <= i - c.chkA < len(c.earlyT):
            sk = A.label("et")
            A(f"s_cmp_lt_u32 s{PA_}, 14\ns_cbranch_scc1 {sk}")
            for _ in range(c.earlyT[i - c.chkA]):
                for l in tload(early): A(l)
                early += 1
            A(f"{sk}:")
    Q.bar()
    A(f"v_mfma_f32_32x32x16_bf16 {v(AC2,16)}, {v(ID,4)}, {v(HF,4)}, 0")
    A(f"v_mfma_f32_32x32x16_bf16 {v(AC2,16)}, {v(ID+4,4)}, {v(HF+4,4)}, {v(AC2,16)}")
    sk = A.label("et")
    A(f"s_cmp_ge_u32 s{PA_}, 14\ns_cbranch_scc1 {sk}")
    poll_wait(PA_, 0)
    for n in range(early):
        for l in tload(n): A(l)
    A(f"{sk}:")
    def dreads(n):
        b, j = cons[n]
        sd = slot[("D", b)]; f = DB[n & 3]
        o = []
        for nt in range(2):
            do = (sd % 8) * BLK + 2048 * j
            ad = vD + 2 * (sd // 8) + nt
            o += [f"ds_read_b64_tr_b16 {v(f+4*nt,2)}, v{ad} offset:{do}", f"ds_read_b64_tr_b16 {v(f+4*nt+2,2)}, v{ad} offset:{do+1024}"]
        return o
    def gm(n):
        f = DB[n & 3]
        return [f"v_mfma_f32_32x32x16_bf16 {v(AO[nt],16)}, {v(f+4*nt,4)}, {v(treg[cons[n]],4)}, {'0' if (n == 0 and nt == 1) else v(AO[nt],16)}" for nt in (1, 0)]
    issued = early; mk = 0
    while issued < 14:
        for l in tload(issued): A(l)
        issued += 1
    poll_wait(PB_, 128)
    Q.mark(mk); mk += 1
    lim = 28
    for n in range(56):
        if n == 14: A("s_waitcnt lgkmcnt(0)\ns_barrier")
        for y in (c.ya_at, c.yb_at):
            if n == y:
                A("s_barrier")
                Q.mark(mk); mk += 1
                lim += 14
        k = 99 if n == 0 else c.pace.get(n, c.pace1 if n < 28 else c.pace2)
        while issued < lim and freeq and k > 0:
            for l in tload(issued): A(l)
            issued += 1; k -= 1
        assert seq.index(cons[n]) < issued
        if n == 0:
            for l in dreads(0) + dreads(1): A(l)
        if n == c.g_pre:
            if c.xe: A("s_barrier")
            Q.mark(mk); mk += 1
        r = dreads(n + 2) if n + 2 < 56 else []
        A(f"s_waitcnt vmcnt({issued-1-seq.index(cons[n])}) lgkmcnt({4 if n < 55 else 0})")
        if n in (28, 42): Q.mark(mk); mk += 1
        m = gm(n)
        for i in range(2):
            A(m[i])
            for l in r[2*i:2*i+2]: A(l)
        freeq.append(treg[cons[n]])
    assert 14 < c.ya_at <= 26 and c.ya_at <= c.yb_at <= 32 and c.yb_at >= 24
    while mk < 6: Q.mark(mk); mk += 1
    Q.mark(6)
    assert all(slot[("D", b)] not in (8, 9) for b in range(11, 28))
    A(f"""
    s_lshl_b32 s43, s36, 12
    s_add_u32 s43, s43, {8*BLK}
    v_lshl_add_u32 v2, v{vLane}, 4, s43
    v_xor_b32 v3, 0x2000, v2
    """)
    for q in range(4): A(f"ds_write_b128 v2, {v(AO[1]+4*q,4)} offset:{1024*q}")
    A("s_waitcnt lgkmcnt(0)\ns_barrier")
    for q in range(4): A(f"ds_read_b128 {v(32+4*q,4)}, v3 offset:{1024*q}")
    for hq in range(2):
        A(f"s_waitcnt lgkmcnt({2-2*hq})")
        for q in range(4*hq, 4*hq+4): A(f"v_pk_add_f32 {v(AC2+2*q,2)}, {v(AC2+2*q,2)}, {v(32+2*q,2)}")
        for q in range(4*hq, 4*hq+4): A(f"v_cvt_pk_bf16_f32 v{48+q}, v{AC2+2*q}, v{AC2+2*q+1}")
        A(f"v_permlane32_swap_b32 v{48+4*hq}, v{48+4*hq+2}\nv_permlane32_swap_b32 v{48+4*hq+1}, v{48+4*hq+3}")
        A(f"global_store_dwordx4 v5, {v(48+4*hq,4)}, s[26:27] offset:{32*hq}")
    Q.fin(7)
    A("s_endpgm")
    A(f".p2align 3\n{nw}:")
    A(f"s_and_b32 s46, s36, 3\ns_mov_b32 s45, 0\nv_mov_b32 v11, {TAGA}")
    def xpoll():
        for l in xp: A(l)
    A("s_waitcnt lgkmcnt(0)\ns_barrier")
    P.stamp(5)
    A(f"""
    ds_read_b32 v11, v11
    s_lshl_b32 s47, s46, 10
    s_add_u32 s47, s47, {UO+512}
    v_xor_b32 v9, 3, v{vLane}
    v_lshl_add_u32 v9, v9, 2, s47
    s_lshl_b32 s47, s46, 11
    v_lshrrev_b32 v5, 3, v{vLane}
    v_lshl_add_u32 v5, v5, 4, s47
    v_bfe_u32 v6, v{vLane}, 1, 2
    v_lshl_add_u32 v5, v6, 8, v5
    v_and_b32 v6, 1, v{vLane}
    v_lshl_add_u32 v10, v6, 3, v5
    """)
    if not c.xp_at:
        if c.poll_late: A(f"s_sleep {c.poll_late}")
        xpoll()
    if not c.xp_chk:
        A(f"s_mov_b32 s45, 1\ns_barrier\ns_setprio {c.nprio}")
    pl = A.label("xp"); ok = A.label("xok"); nb1 = A.label("xnb")
    A(f"{pl}:\ns_waitcnt vmcnt(0) lgkmcnt(0)\nv_min3_u32 v4, v{vPX+1}, v{vPX+3}, v11\nv_max3_u32 v5, v{vPX+1}, v{vPX+3}, v11")
    for q in range(1, 8): A(f"v_min3_u32 v4, v4, v{vPX+4*q+1}, v{vPX+4*q+3}\nv_max3_u32 v5, v5, v{vPX+4*q+1}, v{vPX+4*q+3}")
    A(f"v_cmp_ne_u32 vcc, v4, v5\ns_cbranch_vccz {ok}\ns_add_u32 s45, s45, 1\ns_cmp_gt_u32 s45, {SPIN}\ns_cbranch_scc1 {ok}")
    xpoll()
    A(f"s_cmp_lg_u32 s45, 1\ns_cbranch_scc1 {pl}\ns_barrier\ns_setprio 2\ns_branch {pl}\n{ok}:")
    P.stamp(6)
    if c.x_cnt: A("s_waitcnt lgkmcnt(0)\ns_mul_i32 s74, s45, 100\ns_add_u32 s74, s74, s72")
    NU, PRE, UB = 16, 32, 48
    for half in range(2):
        st = []
        for r in range(4 * half, 4 * half + 4):
            S = vPS_ + 2 * r; X = vPX + 2 * r
            t = 60 + 4 * (r & 3)
            st.append([f"v_and_b32 v{t+2}, s43, v{S}", f"v_rcp_f32 v{t+2}, v{t+2}", f"v_lshlrev_b32 v{t}, 16, v{S}",
                  f"v_lshlrev_b32 v{PRE+2*r}, 16, v{X}", f"v_and_b32 v{PRE+2*r+1}, s43, v{X}",
                  f"v_pk_add_f32 {v(NU+2*r,2)}, {v(PRE+2*r,2)}, {v(t,2)} op_sel_hi:[1,0] neg_lo:[0,1] neg_hi:[0,1]" if c.npk else f"v_sub_f32 v{NU+2*r}, v{PRE+2*r}, v{t}\nv_sub_f32 v{NU+2*r+1}, v{PRE+2*r+1}, v{t}",
                  f"v_cvt_pk_bf16_f32 v{NU+2*r+1}, v{NU+2*r}, v{NU+2*r+1}",
                  f"v_lshlrev_b32 v{NU+2*r}, 16, v{NU+2*r+1}", f"v_and_b32 v{NU+2*r+1}, s43, v{NU+2*r+1}",
                  f"v_pk_mul_f32 {v(NU+2*r,2)}, {v(NU+2*r,2)}, {v(t+2,2)} op_sel_hi:[1,0]" if c.npk else f"v_mul_f32 v{NU+2*r}, v{NU+2*r}, v{t+2}\nv_mul_f32 v{NU+2*r+1}, v{NU+2*r+1}, v{t+2}"])
        for l in merge(*st): A(l)
        for ch in range(2):
            for k in (2 * half, 2 * half + 1): A(f"v_cvt_pk_bf16_f32 v{UB+4*ch+k}, v{NU+4*k+2+ch}, v{NU+4*k+ch}")
    A(f"s_cmp_lg_u32 s45, 0\ns_cbranch_scc1 {nb1}\ns_barrier\n{nb1}:")
    P.stamp(7)
    for half in range(2):
        for ch in range(2):
            A(f"ds_write2st64_b32 v9, v{UB+4*ch+2*half}, v{UB+4*ch+2*half+1} offset0:{ch*UPITCH//256+2*half} offset1:{ch*UPITCH//256+2*half+1}")
    A("s_setprio 0\ns_waitcnt lgkmcnt(0)\ns_barrier")
    P.stamp(8)
    if c.x_quietN: A("s_sleep 60")
    PO = 60
    for ch in range(2):
        for k in range(4):
            A(f"v_lshlrev_b32 v4, 16, v{UB+4*ch+k}\nv_and_b32 v5, s43, v{UB+4*ch+k}")
            A(f"v_fma_f32 v{PO+8*ch+2*k+1}, v4, s{58+ch}, v{PRE+4*k+2+ch}\nv_fma_f32 v{PO+8*ch+2*k}, v5, s{58+ch}, v{PRE+4*k+ch}")
            A(f"ds_write_b64 v10, {v(PO+8*ch+2*k,2)} offset:{32768*ch+1024*(k>>1)+128*(k&1)}")
    A("v_mov_b32 v46, v11")
    csetup()
    Q = Bars([0, c.gat_check, c.gat_check + 1, 14, 28, 29], 10)
    ST, GA = 18, 96
    vPS, vGA = 22, 23
    A(f"""
    s_mul_i32 s43, s39, {14*1024}
    s_lshl_b32 s44, s42, 8
    s_add_u32 s43, s43, s44
    s_add_u32 s43, s43, {WS_PS}
    v_lshl_add_u32 v{vPS}, v5, 3, s43
    v_mul_u32_u24 v7, 7168, v4
    v_add3_u32 v{vGA}, v{vPS}, v7, 64
    v_add_u32 v{vGA}, {3072-64}, v{vGA}
    s_lshl_b32 s44, s38, 10
    v_add_u32 v{vPS}, s44, v{vPS}
    """)
    nb = A.label("nb"); pz = A.label("pz"); pzo = A.label("pzo")
    A(f"""
    s_cmp_lg_u32 s36, 4
    s_cbranch_scc1 {nb}
    v_min_u32 v47, 55, v{vLane}
    v_lshlrev_b32 v47, 5, v47
    v_add_u32 v47, {WS_PZ}, v47
    s_mov_b32 s45, 0
    {pz}:
    s_sleep {c.pz_sleep}
    global_load_dwordx4 v[48:51], v47, s[30:31] sc1
    global_load_dwordx4 v[52:55], v47, s[30:31] offset:16 sc1
    s_waitcnt vmcnt(0)
    v_min3_u32 v56, v48, v49, v46
    v_max3_u32 v57, v48, v49, v46
    v_min3_u32 v56, v50, v51, v56
    v_max3_u32 v57, v50, v51, v57
    v_min3_u32 v56, v52, v53, v56
    v_max3_u32 v57, v52, v53, v57
    v_min3_u32 v56, v54, v55, v56
    v_max3_u32 v57, v54, v55, v57
    v_cmp_ne_u32 vcc, v56, v57
    s_cbranch_vccz {pzo}
    s_add_u32 s45, s45, 1
    s_cmp_lt_u32 s45, {SPIN}
    s_cbranch_scc1 {pz}
    {pzo}:
    s_cmp_lg_u32 s2, 0
    s_cbranch_scc1 {nb}
    v_mov_b32 v47, {WS_E}
    s_mov_b64 exec, 1
    global_store_dword v47, v46, s[30:31]
    s_mov_b64 exec, -1
    {nb}:
    """)
    P.stamp(9)
    A("s_waitcnt lgkmcnt(0)\ns_barrier\ns_barrier")
    def gat(js=range(7)):
        for j in js: A(f"global_load_dwordx2 {v(GA+2*j,2)}, v{vGA}, s[30:31] offset:{1024*j-3072} sc1")
    S, Qv = GA, GA + 1
    work = [f"v_add_f32 v{GA+k}, v{GA+k}, v{GA+2*j+k}" for j in range(1, 7) for k in range(2)]
    work += [f"v_mov_b32 v{GA+2}, v{GA}", f"v_mov_b32 v{GA+3}, v{GA+1}", f"v_permlane32_swap_b32 v{GA}, v{GA+2}", f"v_permlane32_swap_b32 v{GA+1}, v{GA+3}",
             f"v_add_f32 v{GA}, v{GA}, v{GA+2}", f"v_add_f32 v{GA+1}, v{GA+1}, v{GA+3}"]
    work += [l.strip() for l in f"""
    v_mul_f32 v{S}, {f32(1.0/448)}, v{S}
    v_mul_f32 v{Qv}, {f32(1.0/448)}, v{Qv}
    v_fma_f32 v{Qv}, -v{S}, v{S}, v{Qv}
    v_max_f32 v{Qv}, 0, v{Qv}
    v_cvt_pk_bf16_f32 v{CN+3}, -v{S}, -v{S}
    v_cvt_pk_bf16_f32 v{Qv}, v{Qv}, v{Qv}
    v_and_b32 v{Qv}, s48, v{Qv}
    v_add_f32 v{Qv}, {f32(1e-5)}, v{Qv}
    v_cvt_pk_bf16_f32 v{Qv}, v{Qv}, v{Qv}
    v_and_b32 v{Qv}, s48, v{Qv}
    v_sqrt_f32 v{Qv}, v{Qv}
    v_cvt_pk_bf16_f32 v{Qv}, v{Qv}, v{Qv}
    v_and_b32 v{Qv}, s48, v{Qv}
    v_rcp_f32 v{S}, v{Qv}
    v_mul_f32 v{CN+2}, v{Qv}, v{Qv}
    v_mul_f32 v{CN}, {f32(GK0)}, v{S}
    v_mul_f32 v{CN+1}, v{S}, v{S}
    v_mul_f32 v{CN+1}, v{CN+1}, v{S}
    v_mul_f32 v{CN+1}, {f32(GK1)}, v{CN+1}
    ds_write_b128 v{vCR}, {v(CN,4)}
    """.strip().split("\n")]
    nwi = c.con_write - c.gat_check
    wper = (len(work) + nwi - 1) // nwi
    for i in range(14):
        Q.bar()
        if i == 0:
            for k in range(4): A(f"ds_read_b64_tr_b16 {v(F[0]+2*k,2)}, v{vB} offset:{4096*(k>>1)+1024*(k&1)}")
        if i == 1:
            A("s_waitcnt lgkmcnt(0)")
            for k in range(8):
                z = k < 2
                A(f"v_dot2_f32_bf16 v{ST+(k&1)}, v{F[0]+k}, s47, {'0' if z else 'v%d' % (ST+(k&1))}\nv_dot2_f32_bf16 v{ST+2+(k&1)}, v{F[0]+k}, v{F[0]+k}, {'0' if z else 'v%d' % (ST+2+(k&1))}")
        if i == 2:
            A(f"""
            v_add_f32 v{ST}, v{ST}, v{ST+1}
            v_add_f32 v{ST+1}, v{ST+2}, v{ST+3}
            v_mov_b32 v{ST+2}, v{ST}
            v_mov_b32 v{ST+3}, v{ST+1}
            v_permlane32_swap_b32 v{ST}, v{ST+2}
            v_permlane32_swap_b32 v{ST+1}, v{ST+3}
            v_add_f32 v{ST}, v{ST}, v{ST+2}
            v_add_f32 v{ST+1}, v{ST+1}, v{ST+3}
            v_or_b32 v{ST+1}, 1, v{ST+1}
            s_mov_b32 exec_hi, 0
            global_store_dwordx2 v{vPS}, {v(ST,2)}, s[30:31] sc0 sc1
            s_mov_b32 exec_hi, -1
            """)
        if i in (c.cs_issue, c.ca_load - 1):
            sk = A.label("css")
            A(f"s_cmp_lg_u32 s36, 4\ns_cbranch_scc1 {sk}")
            if i == c.cs_issue: A(f"global_load_dword v47, v{MB+2}, s[28:29] sc1")
            else:
                pl = A.label("cs")
                A(f"s_mov_b32 s45, 0\n{pl}:\ns_waitcnt vmcnt(0)\nv_cmp_gt_u32 vcc, 56, v47\ns_cbranch_vccz {sk}\ns_sleep 32\nglobal_load_dword v47, v{MB+2}, s[28:29] sc1\ns_add_u32 s45, s45, 1\ns_cmp_lt_u32 s45, {SPIN}\ns_cbranch_scc1 {pl}")
            A(f"{sk}:")
        k0 = i - (c.gat_issue - len(c.gat_split) + 1)
        if 0 <= k0 < len(c.gat_split) and not c.x_nogat: gat(range(sum(c.gat_split[:k0]), sum(c.gat_split[:k0+1])))
        if i == c.gat_check and not c.x_nogat:
            pl = A.label("gp"); ok = A.label("gok")
            A(f"s_mov_b32 s45, 0\n{pl}:\ns_waitcnt vmcnt(0)\nv_min3_u32 v7, v{GA+1}, v{GA+3}, v{GA+5}\nv_min3_u32 v7, v7, v{GA+7}, v{GA+9}\nv_min3_u32 v7, v7, v{GA+11}, v{GA+13}")
            A(f"v_cmp_eq_u32 vcc, 0, v7\ns_cbranch_vccz {ok}\ns_add_u32 s45, s45, 1\ns_cmp_ge_u32 s45, {SPIN}\ns_cbranch_scc1 {ok}")
            gat()
            A(f"s_branch {pl}\n{ok}:")
        if c.gat_check < i <= c.con_write:
            for l in work[:wper]: A(l)
            work = work[wper:]
        if i == c.ca_load:
            for l in caload: A(l)
        if i == 13:
            assert not work
            A("s_waitcnt vmcnt(0) lgkmcnt(0)")
    Q.bar()
    A(f"ds_read_b128 {v(CN+4,4)}, v{vCR+1}")
    for l in preads(1, 0): A(l)
    A("s_waitcnt lgkmcnt(8)")
    for l in mkmb + preads(1, 1): A(l)
    for l in corr(True): A(l)
    A(f"s_setprio {c.prioB}")
    for s in range(1, 14):
        Q.bar(); pstep(1, s)
    Q.bar()
    A("s_waitcnt lgkmcnt(8)")
    for l in pmfma(26): A(l)
    A("s_waitcnt lgkmcnt(0)")
    Q.bar()
    for l in pmfma(27): A(l)
    for n in range(4):
        for l in epi(n >> 1, n & 1, n, True): A(l)
    Q.mark(0)
    A("s_setprio 0")
    if c.xe: A("s_barrier")
    signal(0)
    Q.mark(1)
    if c.pa_early: poll_issue(PA_, 512)
    signal(1)
    Q.mark(2)
    if not c.pa_early: poll_issue(PA_, 512)
    A("s_barrier")
    poll_wait(PA_, 512)
    poll_issue(PB_, 640)
    Q.mark(3)
    A("s_barrier")
    poll_wait(PB_, 640)
    Q.mark(4)
    A("s_barrier")
    Q.fin(5)
    A("s_waitcnt lgkmcnt(0)\ns_endpgm")
    A(f".p2align 3\n{auxt}:")
    PA.stamp(1)
    srd(A, 64, 30, XG_BYTES, WS_XG)
    A(f"""
    v_and_b32 v4, 15, v{vLane}
    v_lshrrev_b32 v5, 4, v{vLane}
    v_lshl_add_u32 v6, v4, 8, s46
    v_lshl_add_u32 v6, v5, 2, v6
    v_and_b32 v7, 7, v4
    v_lshl_add_u32 v6, v7, 4, v6
    v_lshlrev_b32 v9, 14, v5
    v_lshl_add_u32 v9, v4, 4, v9
    s_lshl_b32 s46, s36, 2
    s_add_u32 s46, s46, {TAGA}
    v_mov_b32 v2, s46
    """)
    for k in range(1, 8): A(f"v_xor_b32 v{80+k}, {16*k}, v6")
    A("s_waitcnt lgkmcnt(0)\ns_mul_i32 s57, s57, 0x9e3779b1\ns_add_u32 s57, s57, 0x7f4a7c15")
    for k in range(16): A(f"v_mov_b32 v{vXG+2*k+1}, s57")
    A(f"s_mov_b64 exec, 1\nds_write_b32 v2, v{vXG+1}\ns_mov_b64 exec, -1\ns_waitcnt vmcnt(0)")
    PA.stamp(2)
    for k in range(8):
        ad = 6 if k == 0 else 80 + k
        A(f"ds_read_b32 v{vXG+4*k}, v{ad}\nds_read_b32 v{vXG+4*k+2}, v{ad} offset:128")
    for k in range(8):
        A(f"s_waitcnt lgkmcnt({14-2*k})\nbuffer_store_dwordx4 {v(vXG+4*k,4)}, v9, s[64:67], s51 offen sc0 sc1")
        if k < 7: A(f"s_add_u32 s51, s51, {4*16384}")
    PA.stamp(3)
    A("s_setprio 0\ns_barrier")
    aW, aD, aH = 8, 12, 8
    sW, sD, eW, eD = 41, 42, 45, 46
    def daddr():
        A(ffn_ids)
        A(f"""
        v_lshrrev_b32 v6, 3, v{vLane}
        v_and_b32 v7, 7, v{vLane}
        v_and_b32 v5, 2, v6
        v_lshlrev_b32 v4, 1, v5
        v_xor_b32 v4, v4, v7
        v_mul_u32_u24 v3, 896, v6
        v_lshl_add_u32 v{aD}, v4, 4, v3
        v_add_u32 v{aD+1}, {1*(8*896-1024)}, v{aD}
        v_add_u32 v{aD+2}, {2*(8*896-1024)}, v{aD}
        v_add_u32 v{aD+3}, {3*(8*896-1024)}, v{aD}
        s_lshl_b32 s{eD}, s35, 7
        s_mul_i32 s32, s36, {32*896}
        s_add_u32 s{eD}, s{eD}, s32
        s_mul_i32 s{sD}, s33, {128*896}
        s_add_u32 s{sD}, s{sD}, s{eD}
        s_add_u32 s{eD}, s{eD}, {14*128*896}
        s_lshl_b32 s32, s36, 12
        v_lshl_add_u32 v16, v{vLane}, 4, s32
        v_add_u32 v17, 0x10000, v16
        v_add_u32 v18, 0x20000, v16
        """)
        srd(A, 60, 24, W_BYTES)
    def fifo_load(first, n, reg0):
        if c.x_nopre: return
        A(f"s_add_u32 s43, s{sD}, {64*896 + (first-14)*128*896}\ns_add_u32 s44, s{eD}, {64*896}")
        for b in range(n):
            A(f"s_cmp_ge_u32 s43, s44\ns_cselect_b32 s34, {14*128*896}, 0\ns_sub_u32 s43, s43, s34")
            for i in range(4): A(f"buffer_load_dwordx4 {v(reg0+16*b+4*i,4)}, v{aD+i}, s[60:63], s43 offen offset:{1024*i}")
            A(f"s_add_u32 s43, s43, {128*896}")
            if c.fdepth is not None: A(f"s_waitcnt vmcnt({c.fdepth})")
    def fifo_put(first, n, reg0):
        for b in range(n):
            sl = slot[("D", first + b)]
            for i in range(4): A(f"ds_write_b128 v{16+sl//8}, {v(reg0+16*b+4*i,4)} offset:{(sl%8)*BLK+1024*i}")
    daddr()
    A(f"""
    v_xor_b32 v4, v5, v7
    s_lshl_b32 s43, s36, 2
    v_xor_b32 v4, s43, v4
    v_mul_u32_u24 v3, 3584, v6
    v_lshl_add_u32 v{aW}, v4, 4, v3
    v_add_u32 v{aW+1}, {1*(8*3584-1024)}, v{aW}
    v_add_u32 v{aW+2}, {2*(8*3584-1024)}, v{aW}
    v_add_u32 v{aW+3}, {3*(8*3584-1024)}, v{aW}
    s_lshl_b32 s{eW}, s38, 8
    s_mul_i32 s{sW}, s38, {32*3584}
    s_add_u32 s{sW}, s{sW}, s{eW}
    s_add_u32 s{eW}, s{eW}, {14*32*3584}
    s_cmp_eq_u32 s36, 0
    s_cselect_b32 s20, s20, s22
    s_cselect_b32 s21, s21, s23
    """)
    srd(A, 52, 20, W_BYTES)
    A(f"""
    v_mov_b32 v20, 0
    v_mov_b32 v21, 0
    v_lshrrev_b32 v4, 4, v{vLane}
    v_mul_u32_u24 v4, {KP}, v4
    v_and_b32 v5, 15, v{vLane}
    v_lshl_add_u32 v4, v5, 2, v4
    s_lshl_b32 s43, s36, 15
    v_add_u32 v4, s43, v4
    s_mul_i32 s43, s36, {UPITCH}
    s_add_u32 s43, s43, {UO}
    v_lshl_add_u32 v3, v{vLane}, 3, s43
    """)
    if c.lf_at == 'A': fifo_load(14, 6, 24)
    A(f"s_barrier\nds_write_b32 v4, v20 offset:{KB0}\nds_write_b64 v3, v[20:21]")
    if c.lf_at == 'B': fifo_load(14, 6, 24)
    A("s_waitcnt lgkmcnt(0)\ns_barrier")
    def dma(kind, idx, i):
        if kind == "F":
            if i == 0:
                if idx == 14: A(f"s_add_u32 s43, s{sD}, {64*896}\ns_add_u32 s44, s{eD}, {64*896}")
                A(f"s_cmp_ge_u32 s43, s44\ns_cselect_b32 s35, {14*128*896}, 0\ns_sub_u32 s43, s43, s35")
            A(f"buffer_load_dwordx4 {v(24+16*(idx-14)+4*i,4)}, v{aD+i}, s[60:63], s43 offen offset:{1024*i}")
            if i == 3: A(f"s_add_u32 s43, s43, {128*896}")
            return
        base_ = slot[(kind, idx)] * BLK
        a0, r0, s, e, step = {"W": (aW, 52, sW, eW, 32*3584), "D": (aD, 60, sD, eD, 128*896)}[kind]
        if i == 0:
            if idx == 14:
                A(f"s_add_u32 s{s}, s{s}, 128\ns_add_u32 s{e}, s{e}, 128")
            A(f"s_add_u32 m0, s32, {base_}\ns_add_u32 s33, s{s}, {step}")
        A(f"buffer_load_dwordx4 v{a0+i}, s[{r0}:{r0+3}], s{s} offen offset:{1024*i} lds")
        if i == 0: A(f"s_cmp_ge_u32 s33, s{e}\ns_cselect_b32 s34, {14*step}, 0")
        if i == 3: A(f"s_sub_u32 s{s}, s33, s34")
    if c.x_quietL: A('s_sleep 60')
    for x in issue[-1]: dma(*x)
    if c.lf_at == 'C': fifo_load(14, 6, 24)
    PA.stamp(4)
    A("s_barrier\ns_barrier\ns_waitcnt vmcnt(0)\ns_barrier")
    for i in range(0, 29):
        for x in issue[i]: dma(*x)
        if wait[i] is not None: A(f"s_waitcnt vmcnt({min(63, wait[i])})")
        A("s_barrier")
    if c.xe:
        A("s_barrier")
        fifo_put(14, 3, 24)
        A("s_barrier")
        fifo_put(17, 3, 72)
    else:
        assert c.yb_at <= 26
        fifo_put(14, c.put_0, 24)
        A("s_barrier")
        fifo_put(14 + c.put_0, c.put_l, 24 + 16 * c.put_0)
        A("s_barrier")
        fifo_put(14 + c.put_0 + c.put_l, 6 - c.put_0 - c.put_l, 24 + 16 * (c.put_0 + c.put_l))
    A("s_waitcnt lgkmcnt(0)")
    if c.phase == 1: Prof(A, 3).flush(5)
    A("s_endpgm")
    A(f".p2align 3\n{auxs}:")
    PA.stamp(1)
    a0 = 90
    A(f"s_mov_b32 s42, 0x3f803f80\nv_and_b32 v4, 56, v{vLane}\ns_lshl_b32 s46, s47, 6\nv_add_u32 v4, s46, v4\nv_mov_b32 v2, {TAGA}")
    A("s_waitcnt lgkmcnt(0)\ns_mul_i32 s57, s56, 0x9e3779b1\ns_add_u32 s57, s57, 0x7f4a7c15\ns_mov_b32 s45, 0")
    for i in range(28):
        z = i < 2
        if i % 4 == 0: A(f"s_waitcnt vmcnt({6-i//4})")
        if i == 4: PA.stamp(2)
        if i == 24: A("ds_read_b64 v[6:7], v2")
        A(f"v_dot2_f32_bf16 v{a0+(i&1)}, v{vRow+i}, s42, {'0' if z else 'v%d' % (a0+(i&1))}")
        A(f"v_dot2_f32_bf16 v{a0+2+(i&1)}, v{vRow+i}, v{vRow+i}, {'0' if z else 'v%d' % (a0+2+(i&1))}")
    A(f"v_add_f32 v{a0}, v{a0}, v{a0+1}\nv_add_f32 v{a0+2}, v{a0+2}, v{a0+3}")
    for op in ("quad_perm:[1,0,3,2]", "quad_perm:[2,3,0,1]", "row_half_mirror"):
        A(f"v_add_f32_dpp v{a0}, v{a0}, v{a0} {op}{DPP}\nv_add_f32_dpp v{a0+2}, v{a0+2}, v{a0+2} {op}{DPP}")
    A(f"""
    v_mul_f32 v{a0}, {f32(1.0/448)}, v{a0}
    v_mul_f32 v{a0+2}, {f32(1.0/448)}, v{a0+2}
    v_fma_f32 v{a0+2}, -v{a0}, v{a0}, v{a0+2}
    v_max_f32 v{a0+2}, 0, v{a0+2}
    v_cvt_pk_bf16_f32 v{a0+2}, v{a0+2}, v{a0+2}
    v_and_b32 v{a0+2}, s43, v{a0+2}
    v_add_f32 v{a0+2}, {f32(1e-5)}, v{a0+2}
    v_cvt_pk_bf16_f32 v{a0+2}, v{a0+2}, v{a0+2}
    v_and_b32 v{a0+2}, s43, v{a0+2}
    v_sqrt_f32 v{a0+2}, v{a0+2}
    v_mov_b32 v{a0+1}, s57
    v_cvt_pk_bf16_f32 v{a0}, v{a0}, v{a0+2}
    Ltg:
    s_waitcnt lgkmcnt(0)
    v_xor_b32 v6, s57, v6
    v_xor_b32 v7, s57, v7
    v_or_b32 v6, v6, v7
    v_cmp_ne_u32 vcc, 0, v6
    s_cbranch_vccz Ltg2
    ds_read_b64 v[6:7], v2
    s_add_u32 s45, s45, 1
    s_cmp_lt_u32 s45, {SPIN}
    s_cbranch_scc1 Ltg
    Ltg2:
    s_mov_b32 exec_lo, 0x01010101
    s_mov_b32 exec_hi, 0x01010101
    global_store_dwordx2 v4, {v(a0,2)}, s[30:31] sc0 sc1
    s_mov_b64 exec, -1
    """)
    PA.stamp(3)
    if base.PROF and c.phase == 1:
        A(f"s_branch {hold}x\n{hold}:")
        for k in (1, 2, 3): PA.stamp(k)
        A(f"{hold}x:")
    else: A(f"{hold}:")
    A(f"""
    v_mov_b32 v20, -1
    v_mov_b32 v21, -1
    v_mov_b32 v22, -1
    v_mov_b32 v23, -1
    v_mov_b32 v24, 0
    v_mov_b32 v25, 0
    s_lshl_b32 s43, s2, 13
    s_add_u32 s43, s43, {WS_HT}
    s_lshl_b32 s44, s36, 12
    s_add_u32 s43, s43, s44
    v_lshl_add_u32 v2, v{vLane}, 4, s43
    s_lshl_b32 s43, s2, 1
    s_add_u32 s43, s43, s36
    s_lshl_b32 s44, s43, 9
    s_add_u32 s44, s44, {WS_PS}
    v_lshl_add_u32 v3, v{vLane}, 3, s44
    s_and_b32 s44, s43, 255
    s_lshl_b32 s44, s44, 7
    s_add_u32 s44, s44, {WS_FLAGS}
    v_mov_b32 v4, s44
    s_lshl_b32 s44, s43, 2
    s_add_u32 s44, s44, {WS_PZ}
    v_mov_b32 v26, s44
    s_waitcnt lgkmcnt(0)
    s_mul_i32 s57, s56, 0x9e3779b1
    s_add_u32 s57, s57, 0x7f4a7c15
    v_mov_b32 v27, s57
    """)
    def poison():
        for k in range(4): A(f"global_store_dwordx4 v2, v[20:23], s[30:31] offset:{1024*k} sc0 sc1")
        A("global_store_dwordx2 v3, v[24:25], s[30:31] sc0 sc1\ns_mov_b64 exec, 1\nglobal_store_dword v4, v24, s[30:31] sc0 sc1\ns_mov_b64 exec, -1")
    def post(): A("s_waitcnt vmcnt(0)\ns_mov_b64 exec, 1\nglobal_store_dword v26, v27, s[30:31] sc0 sc1\ns_mov_b64 exec, -1")
    assert c.poi_at == '0'
    poison()
    A("s_setprio 0\ns_barrier")
    daddr()
    sH, eH, sV = 40, 41, 47
    VR = 20
    A(f"""
    v_lshrrev_b32 v6, 4, v{vLane}
    v_and_b32 v7, 15, v{vLane}
    v_lshlrev_b32 v5, 2, v6
    v_xor_b32 v5, v5, v7
    v_lshlrev_b32 v5, 4, v5
    v_lshl_add_u32 v{aH}, v6, 12, v5
    v_add_u32 v{aH+1}, {1*(4*4096-1024)}, v{aH}
    v_add_u32 v{aH+2}, {2*(4*4096-1024)}, v{aH}
    v_add_u32 v{aH+3}, {3*(4*4096-1024)}, v{aH}
    s_lshl_b32 s{eH}, s39, 8
    s_lshl_b32 s43, s36, 16
    s_add_u32 s{eH}, s{eH}, s43
    s_lshl_b32 s{sH}, s38, 17
    s_add_u32 s{sH}, s{sH}, s{eH}
    s_add_u32 s{eH}, s{eH}, {14*32*4096}
    s_mov_b32 s{sV}, s{sH}
    """)
    srd(A, 48, 30, X_BYTES, WS_HT)
    if c.poi_at == '0': post()
    if c.poi_at == 'A': poison()
    A("s_barrier")
    if c.poi_at == 'A': post()
    if c.poi_at == 'B': poison()
    if c.hf_at == 'B':
        assert c.poi_at != 'B'
        fifo_load(20, 3, 40)
    A("s_barrier")
    if c.poi_at == 'B': post()
    if c.x_quietL: A('s_sleep 60')
    if c.hf_at == 'B': fifo_load(23, 5, 88)
    else: fifo_load(20, 8, 40)
    PA.stamp(4)
    A(f"s_barrier\ns_barrier\ns_setprio {c.hprio}")
    HS = 32 * 4096
    def hblock(s, m0expr):
        A(f"s_add_u32 m0, {m0expr}\ns_add_u32 s33, s{s}, {HS}")
        for i in range(4):
            A(f"buffer_load_dwordx4 v{aH+i}, s[48:51], s{s} offen offset:{1024*i} sc1 lds")
            if i == 0: A(f"s_cmp_ge_u32 s33, s{eH}\ns_cselect_b32 s34, {14*HS}, 0")
        A(f"s_sub_u32 s{s}, s33, s34")
    nH = [0]
    def hissue(k):
        for _ in range(k):
            if nH[0] < 14:
                hblock(sH, f"s32, {nH[0]*BLK}"); nH[0] += 1
    def vread(b):
        A(f"s_waitcnt vmcnt({4*(nH[0]-1-b)})")
        for i in range(4): A(f"ds_read_b128 {v(VR+4*i,4)}, v{16+b//8} offset:{(b%8)*BLK+1024*i}")
    def vcheck(b):
        ck = A.label("hv"); ok = A.label("hok"); rp = A.label("hrp")
        last = b + 1 if c.rep_one else nH[0]
        A(f"s_mov_b32 s45, 0\n{ck}:\ns_waitcnt lgkmcnt(0)\nv_max3_u32 v2, v{VR}, v{VR+1}, v{VR+2}\nv_max3_u32 v3, v{VR+3}, v{VR+4}, v{VR+5}")
        for i in range(3, 8): A(f"v_max3_u32 v{2+(i&1)}, v{2+(i&1)}, v{VR+2*i}, v{VR+2*i+1}")
        A(f"""
        v_max_u32 v2, v2, v3
        v_cmp_eq_u32 vcc, -1, v2
        {"s_cmp_eq_u32 s45, 0" if c.x_force else ""}
        {f"s_cbranch_scc1 {rp}f" if c.x_force else ""}
        s_cbranch_vccz {ok}
        {rp}f:
        s_add_u32 s45, s45, 1
        s_cmp_ge_u32 s45, {SPIN}
        s_cbranch_scc1 {ok}
        s_mov_b32 s43, s{sV}
        s_add_u32 s44, s32, {b*BLK}
        s_add_u32 s35, s32, {last*BLK}
        {rp}:
        """)
        hblock(43, "s44, 0")
        A(f"s_add_u32 s44, s44, {BLK}\ns_cmp_lt_u32 s44, s35\ns_cbranch_scc1 {rp}\ns_waitcnt vmcnt({4*(last-1-b)})")
        for i in range(4): A(f"ds_read_b128 {v(VR+4*i,4)}, v{16+b//8} offset:{(b%8)*BLK+1024*i}")
        A(f"s_branch {ck}\n{ok}:\ns_add_u32 s{sV}, s{sV}, {HS}\ns_cmp_ge_u32 s{sV}, s{eH}\ns_cselect_b32 s34, {14*HS}, 0\ns_sub_u32 s{sV}, s{sV}, s34")
    if c.probe:
        hissue(c.probe); vread(0); vcheck(0); hissue(c.h0 - c.probe); vread(1)
    else:
        hissue(c.h0); vread(0); vcheck(0); vread(1)
    A("s_barrier")
    hs = list(c.hiss) + [1] * 14
    for i in range(0, 13):
        vcheck(i + 1)
        k = hs.pop(0)
        if i + 2 < 14:
            if nH[0] - (i + 2) < c.hnear: hissue(k); k = 0
            vread(i + 2)
        hissue(k)
        A("s_barrier")
    assert nH[0] == 14
    lp = A.label("hb")
    A(f"s_setprio 0\ns_mov_b32 s45, {18 if c.xe else 17}\n{lp}:\ns_barrier\ns_sub_u32 s45, s45, 1\ns_cmp_lg_u32 s45, 0\ns_cbranch_scc1 {lp}")
    fifo_put(20, c.put_a, 40)
    A("s_barrier")
    fifo_put(20 + c.put_a, 8 - c.put_a, 40 + 16 * c.put_a)
    A("s_waitcnt lgkmcnt(0)")
    if c.phase == 1: Prof(A, 3).flush(5)
    A(f"{end}:\ns_endpgm")
    A(f".p2align 3\n{hlp}:")
    gen_helper(A, c, Prof(A, 4))
    def rnd(l):
        u = np.float32(max(l, 0)).view(np.uint32)
        u = (int(u) + 0x7FFF + ((int(u) >> 16) & 1)) & 0xFFFF0000
        return int(np.uint32(u).view(np.float32))
    ad = [[(rnd(8 * b - 3 + r) & 7) * TP + (rnd(8 * b - 3 + r) >> 3) * 4 for r in range(12)] for b in range(256)]
    A(f".p2align 7\n.type {tab},@object\n{tab}:")
    for b in range(256): A(".long " + ", ".join("0x%08x" % (ad[b][2*k] | ad[b][2*k+1] << 16) for k in range(4)))
    for b in range(256): A(".long " + ", ".join("0x%08x" % (ad[b][2*k] | ad[b][2*k+1] << 16) for k in range(4, 6)))
    A(f".size {tab}, {256*24}")
    return kernel_desc(name, 168, 102)
```

```python
from base import *
import base
from ka import load_ptrs, cmul, cexp
import numpy as np
WS_E = 0x4000
WS_PZ = 0x5000
WS_XG = 0xA00000
XG_BYTES = 224 * 16384
REG = 16384
TP, GP = 1056, 272
KP = 4160
KB0 = 8704
UO, UPITCH = 74240, 4608
PARO = 98304
XT = 140288
TAGA = XT + 8192
BLK = 8192
NSL = 20
CON = 19 * BLK
F_LDS = NSL * BLK
GK0 = -2.0 * LOG2E * 0.7978845608028654
GK1 = GK0 * 0.044715
SPIN = 1 << 18

class Cfg:
    code_bytes = 49152
    prio_mid = 26
    poll_late = 0
    e1_first, e1_last = 15, 22
    e1_packed = False
    drain0 = (22, 26)
    pollA, chkA = 24, 27
    earlyT = (4, 1)
    poll0 = 28
    ya_at, yb_at = 18, 25
    put_a = 3
    pace1, pace2, pace = 2, 1, {}
    pa_early = False
    g_pre = 0
    tdepth, tdepth2 = 22, 16
    gate_ahead = {14: 14, 28: 4, 42: 12}
    pollT1 = (20, 28)
    capP = 8
    caps = {}
    gat_issue, gat_check = 7, 9
    con_write = 11
    il = 2
    stflag = 'sc0 sc1'
    prioB = 2
    h0 = 5
    hiss = (1, 2, 1, 1, 1, 1, 1)
    ca_load = 10
    cs_issue = 5
    hdepth = 1
    fdepth = None
    x_delay = 0
    x_force = False
    backoff = 0
    rep_one = False
    x_nocs = False
    sweepW = False
    sweepD = True
    hramp = 0
    xp_chk = False
    npk = True
    lfifo = (8, 14)
    hprio = 3
    pz_sleep = 4
    hnear = 3
    lf_at = 'C'
    hf_at = 'B'
    poi_at = '0'
    wide_h = True
    xp_at = 0
    gat_split = (3, 4)
    x_nogat = False
    cprio = 3
    nprio = 2
    auxprio = 3
    x_nopre = False
    emode = 0
    csort = True
    probe = 1
    x_quietN = False
    x_quietL = False
    cmin = 5
    cmerge = (0, 2, 4, 6)
    w8 = False
    nlf = 9
    outflag = ''
    hl = True
    x_pad = 0
    warm = True
    npg = 5
    stcost = 8
    xe = False
    x_cnt = False
    put_0, put_l = 6, 0
    x_fine = None
    phase = 1

def schedule(c):
    need = {("W", s): s for s in range(28)}
    last_use = {("W", s): s + 1 for s in range(28)}
    for t in range(28): last_use[("D", t)] = 1000
    hslot = [sl + (2 if c.w8 and sl >= 12 else 0) for sl in range(14)]
    w0 = 12 if c.w8 else 14
    free_at = {sl: (16 + sl if sl < w0 else -2 if sl >= 14 else -1) for sl in range(NSL)}
    slot = {("H", k): hslot[k] for k in range(14)}
    issue = {i: [] for i in range(-2, 29)}
    n = dict(W=0, D=0, H=c.h0 if c.hl else 14)
    for k in range(n["H"], 14): need[("H", k)] = k - 2; last_use[("H", k)] = 15 + k
    nd = 20 - c.nlf
    cur = None
    def pick(i):
        nW, nD = n["W"], n["D"]
        wf = [sl for sl in range(w0, NSL) if free_at[sl] <= i and (sl != 19 or i >= 15 or nW + 1 < c.con_write)]
        canH = n["H"] < 14 and i >= 0 and (not c.w8 or n["H"] < 12 or i >= n["H"] - 10)
        if canH and (n["H"] - 2 <= nW or not wf): return ("H", n["H"]), hslot[n["H"]]
        if nW < 28 and wf: return ("W", nW), wf[0]
        fr = [sl for sl in range(NSL) if free_at[sl] <= i and (sl < w0 or nW == 28)]
        if fr and nD < nd: return ("D", nD), fr[0]
        return None
    for i in range(-2, 29):
        cap = 24 if i < 0 else c.caps.get(i, c.capP)
        while cap > 0:
            if cur is None:
                p = pick(i)
                if p is None: break
                b, sl = p
                slot[b] = sl; free_at[sl] = last_use[b] + 1; n[b[0]] += 1
                if c.w8 and b in (("W", 0), ("W", 1)): free_at[sl] = 28 + b[1]
                cur = [b, 0]
            issue[i].append((cur[0][0], cur[0][1], cur[1])); cur[1] += 1; cap -= 1
            if cur[1] == 4: cur = None
    assert n["D"] == nd and cur is None
    rest = sorted((sl for sl in range(NSL) if free_at[sl] < 1000), key=lambda sl: free_at[sl])
    assert len(rest) == c.nlf
    for k, sl in enumerate(rest): slot[("D", nd + k)] = sl
    for t in range(20, 28): slot[("D", t)] = slot[("D", t - 20)]
    if c.lf_at == 'P':
        for k, i in enumerate(range(*c.lfifo)): issue[i] += [("F", 14 + k, q) for q in range(4)]
    order = [b for i in range(0, 29) for b in issue[i]]
    pos = {b: k for k, b in enumerate(order)}
    wait = {}
    cnt = 0
    for i in range(0, 29):
        cnt += len(issue[i])
        req = [b for b in need if need[b] == i + 1 and b + (3,) in pos]
        wait[i] = None if not req else cnt - 1 - max(pos[b + (3,)] for b in req)
        if i == 28: wait[i] = 0
        assert wait[i] is None or wait[i] >= 0, (i, req)
    return issue, slot, wait

def gen_helper(A, c, P):
    sweep = A.label("Hsw")
    A(f"""
    s_sub_u32 s44, s2, 224
    s_lshr_b32 s45, s44, 3
    s_bfe_u32 s46, s44, 0x20001
    s_lshl_b32 s46, s46, 2
    s_add_u32 s46, s46, s45
    s_and_b32 s44, s44, 1
    s_waitcnt lgkmcnt(0)
    s_cmp_ge_u32 s46, 14
    s_cbranch_scc1 {sweep}
    v_and_b32 v1, 15, v0
    v_lshrrev_b32 v2, 4, v0
    v_mul_u32_u24 v2, 3584, v2
    v_lshl_add_u32 v2, v1, 4, v2
    s_cmp_ge_u32 s46, 7
    s_cselect_b32 s47, 7, 0
    s_cselect_b32 s48, s22, s20
    s_cselect_b32 s49, s23, s21
    s_sub_u32 s46, s46, s47
    s_mul_i32 s50, s44, 7
    s_add_u32 s46, s46, s50
    s_lshl_b32 s47, s47, 1
    s_add_u32 s52, s46, s47
    s_lshl_b32 s47, s46, 8
    s_mov_b32 s50, {W_BYTES}
    s_mov_b32 s51, 0x20000
    """)
    for p in range(14):
        A(f"buffer_load_dwordx4 {v(16+4*p,4)}, v2, s[48:51], s47 offen")
        if p < 13: A("s_add_u32 s47, s47, %d" % (32 * 3584))
        if p < c.hramp: A("s_waitcnt vmcnt(0)")
    A("s_mov_b32 s42, 0x00003f80\ns_mov_b32 s43, 0x3f800000")
    for p in range(14):
        A(f"s_waitcnt vmcnt({13-p})")
        for q in range(4):
            for hl in range(2):
                acc = 4 + 2 * q + hl
                A(f"v_dot2_f32_bf16 v{acc}, v{16+4*p+q}, s{42+hl}, {'0' if p == 0 else 'v%d' % acc}")
    for op in ("v_permlane16_swap_b32", "v_permlane32_swap_b32"):
        for q in range(8): A(f"v_mov_b32 v{16+q}, v{4+q}")
        for q in range(8): A(f"{op} v{4+q}, v{16+q}")
        for q in range(8): A(f"v_add_f32 v{4+q}, v{4+q}, v{16+q}")
    A(f"""
    v_lshrrev_b32 v2, 6, v0
    v_lshlrev_b32 v2, 9, v2
    v_lshl_add_u32 v2, v1, 5, v2
    s_mov_b64 exec, 0xffff
    ds_write_b128 v2, v[4:7]
    ds_write_b128 v2, v[8:11] offset:16
    s_mov_b64 exec, -1
    s_waitcnt lgkmcnt(0)
    s_barrier
    s_cmp_ge_u32 s36, 2
    s_cbranch_scc1 {sweep}
    v_lshlrev_b32 v1, 2, v0
    ds_read2st64_b32 v[4:5], v1 offset0:0 offset1:2
    ds_read2st64_b32 v[6:7], v1 offset0:4 offset1:6
    ds_read2st64_b32 v[8:9], v1 offset0:8 offset1:10
    ds_read2st64_b32 v[10:11], v1 offset0:12 offset1:14
    s_waitcnt lgkmcnt(0)
    v_pk_add_f32 v[4:5], v[4:5], v[6:7]
    v_pk_add_f32 v[8:9], v[8:9], v[10:11]
    v_pk_add_f32 v[4:5], v[4:5], v[8:9]
    v_add_f32 v4, v4, v5
    s_mov_b32 s43, 0xffff0000
    v_cvt_pk_bf16_f32 v5, v4, v4
    v_and_b32 v5, s43, v5
    v_sub_f32 v6, v4, v5
    v_cvt_pk_bf16_f32 v8, v5, v6
    v_and_b32 v7, s43, v8
    v_sub_f32 v6, v6, v7
    v_cvt_pk_bf16_f32 v9, v6, 0
    s_lshl_b32 s46, s52, 10
    s_add_u32 s46, s46, {WS_CS}
    v_lshl_add_u32 v1, v1, 1, s46
    global_store_dwordx2 v1, v[8:9], s[30:31] sc0 sc1
    s_mov_b32 s46, 1
    s_waitcnt vmcnt(0)
    s_atomic_add s46, s[28:29], 0
    {sweep}:
    """)
    P.stamp(1)
    done = A.label("Hdone")
    A(f"""
    s_cmp_ge_u32 s36, 7
    s_cbranch_scc1 {done}
    v_lshrrev_b32 v2, 3, v0
    v_mul_u32_u24 v2, 3584, v2
    v_and_b32 v3, 7, v0
    v_min_u32 v3, 6, v3
    v_lshl_add_u32 v2, v3, 8, v2
    s_mul_i32 s46, s45, {112*3584}
    s_mul_i32 s47, s44, 1792
    s_add_u32 s46, s46, s47
    v_add_u32 v2, s46, v2
    v_add_u32 v3, {56*3584}, v2
    s_mul_i32 s46, s45, {128*896}
    v_lshl_add_u32 v4, v0, 7, s46
    """)
    def wpass(h):
        for m in (20, 22):
            for r in (2, 3): A(f"global_load_dword v8, v{r}, s[{m}:{m+1}] offset:{128*h}\ns_waitcnt vmcnt({c.hdepth})")
    if c.sweepW: wpass(0); wpass(1)
    for k in range(4 if c.sweepD else 0):
        if k == 3: A(f"s_cmp_ge_u32 s45, 2\ns_cbranch_scc1 {done}")
        A(f"global_load_dword v8, v4, s[24:25]\nv_add_u32 v4, {4*128*896}, v4\ns_waitcnt vmcnt({c.hdepth})")
    A(f"{done}:\ns_waitcnt lgkmcnt(0)")
    P.flush(2)
    A("s_endpgm")

def gen(A, name, c=Cfg, verbose=False):
    issue, slot, wait = schedule(c)
    if verbose:
        for i in range(-2, 29): print(i, ' '.join(k + str(j) + '.' + str(q) for k, j, q in issue[i]), wait.get(i))
        print({k: x for k, x in slot.items() if k[0] == "D"})
    kernel_head(A, name)
    end = A.label("end"); hlp = A.label("hlp"); kw_ = A.label("kw"); nw = A.label("nw"); tab = A.label("tab")
    auxt = A.label("auxt"); auxs = A.label("auxs"); til = A.label("til"); hold = A.label("hold")
    P0 = Prof(A, 1)
    class PH:
        def __init__(s, ph, kid=1): s.on = c.phase == ph; s.P = Prof(A, kid)
        def stamp(s, i):
            if s.on: s.P.stamp(i)
    P = PH(1); PA = PH(1, 3)
    class Bars:
        def __init__(s, marks, n1, kid=1): s.n = 0; s.marks = c.x_fine or marks; s.on = c.phase == 2; s.n1 = n1; s.P = Prof(A, kid)
        def bar(s):
            A("s_barrier")
            if s.on and s.n in s.marks: s.P.stamp(1 + s.marks.index(s.n))
            s.n += 1
        def mark(s, k):
            if s.on and not c.x_fine: s.P.stamp(1 + len(s.marks) + k)
        def fin(s, k=0):
            if not s.on: s.P.flush(s.n1); return
            k = 0 if c.x_fine else k
            s.P.stamp(1 + len(s.marks) + k); s.P.flush(2 + len(s.marks) + k)
    cold = []
    class Cold:
        def __enter__(s): s.keep = A.L; A.L = []
        def __exit__(s, *a): cold.extend(A.L); A.L = s.keep
    wst = []
    def target(lab):
        wst.append(lab)
        A(f".p2align 6\n{lab}w:\ns_setpc_b64 s[96:97]\ns_nop 0\n{lab}:")
    A(f"s_cmp_ge_u32 s2, 256\ns_cbranch_scc1 {end}")
    P0.stamp(0)
    load_ptrs(A)
    A(f"s_getpc_b64 s[60:61]\nLpc:")
    vLane, vG, vJ = 1, 2, 3
    per = (c.code_bytes // 128 + 63) // 64
    vRow, vXG = 16, 48
    ffn_ids = """
    s_and_b32 s37, s2, 7
    s_lshr_b32 s38, s2, 3
    s_and_b32 s40, s38, 3
    s_lshr_b32 s39, s37, 1
    s_lshl_b32 s39, s39, 2
    s_add_u32 s39, s39, s40
    s_and_b32 s34, s37, 1
    s_lshr_b32 s35, s38, 2
    s_mul_i32 s38, s34, 7
    s_add_u32 s38, s38, s35
    s_mul_i32 s33, s40, 3
    s_lshl_b32 s37, s35, 1
    s_add_u32 s33, s33, s37
    s_cmp_ge_u32 s33, 14
    s_cselect_b32 s37, 14, 0
    s_sub_u32 s33, s33, s37
    """
    A(f"""
    v_lshrrev_b32 v4, 6, v0
    v_and_b32 v{vLane}, 63, v0
    s_and_b32 s37, s2, 7
    v_readfirstlane_b32 s36, v4
    s_mul_i32 s37, s37, 28
    s_lshr_b32 s38, s2, 3
    s_add_u32 s37, s37, s38
    s_mov_b32 s43, 0xffff0000
    s_cmp_lt_u32 s36, 8
    s_cbranch_scc1 {kw_}
    s_setprio {c.auxprio}
    v_lshrrev_b32 v5, 3, v{vLane}
    v_and_b32 v6, 7, v{vLane}
    v_mul_u32_u24 v7, 896, v5
    s_cmp_lt_u32 s36, 10
    s_cbranch_scc1 {til}
    s_and_b32 s36, s36, 1
    s_lshr_b32 s62, s2, 2
    s_and_b32 s62, s62, 62
    s_add_u32 s62, s62, s36
    s_mul_i32 s62, s62, {per*128}
    v_min_u32 v10, {per-1}, v{vLane}
    v_lshl_add_u32 v10, v10, 7, s62
    v_min_u32 v10, Lcode_end-Lpc-4, v10
    global_load_dword v99, v10, s[60:61]
    s_mul_i32 s46, s36, 28
    s_add_u32 s46, s46, s38
    s_cmp_ge_u32 s2, 224
    s_cbranch_scc1 {end}
    s_and_b32 s47, s2, 7
    s_lshl_b32 s47, s47, 5
    s_add_u32 s47, s47, s46
    s_mul_i32 s48, s47, {8*896}
    v_lshl_add_u32 v8, v6, 4, v7
    v_add_u32 v8, s48, v8
    s_cmp_ge_u32 s46, 32
    s_waitcnt lgkmcnt(0)
    s_load_dword s56, s[30:31], {WS_E}
    s_cbranch_scc1 {hold}
    """)
    for i in range(7): A(f"global_load_dwordx4 {v(vRow+4*i,4)}, v8, s[4:5] offset:{128*i}")
    A(f"""
    s_branch {auxs}
    {til}:
    s_cmp_ge_u32 s2, 224
    s_cbranch_scc1 {end}
    s_and_b32 s36, s36, 1
    s_mul_i32 s46, s37, 9363
    s_lshr_b32 s46, s46, 16
    s_mul_i32 s47, s46, 7
    s_sub_u32 s47, s37, s47
    s_lshl_b32 s46, s46, 1
    s_add_u32 s46, s46, s36
    s_mul_i32 s49, s46, {32*896}
    s_lshl_b32 s48, s47, 7
    s_add_u32 s49, s49, s48
    s_lshl_b32 s47, s47, 19
    s_lshl_b32 s46, s46, 8
    s_add_u32 s51, s47, s46
    s_lshl_b32 s46, s36, 12
    s_add_u32 s46, s46, {XT}
    s_mov_b32 m0, s46
    v_lshrrev_b32 v4, 1, v5
    v_xor_b32 v4, v4, v6
    v_lshl_add_u32 v12, v4, 4, v7
    v_xor_b32 v4, 4, v4
    v_lshl_add_u32 v13, v4, 4, v7
    v_add_u32 v13, {8*896-1024}, v13
    v_add_u32 v14, {16*896-2048}, v12
    v_add_u32 v15, {16*896-2048}, v13
    s_mov_b32 s34, {X_BYTES}
    s_mov_b32 s35, 0x20000
    s_waitcnt lgkmcnt(0)
    s_mov_b32 s32, s4
    s_mov_b32 s33, s5
    """)
    for i in range(4): A(f"buffer_load_dwordx4 v{12+i}, s[32:35], s49 offen offset:{1024*i} lds")
    A(f"s_load_dword s57, s[30:31], {WS_E}")
    A(f"s_branch {auxt}\n{kw_}:\ns_cmp_ge_u32 s2, 224\ns_cbranch_scc1 {hlp}")
    vP, vDT = 8, 12
    a2, b2 = 14, 15
    w1, w256, w2, w512 = 16, 18, 20, 22
    tA, tB, tC = 24, 26, 28
    G, G2, Hh, W4, HT, CV = 30, 46, 62, 68, 70, 78
    vTB, vA, vBc, vRA = 88, 94, 95, 96
    A(f"""
    v_mov_b32 v{vP}, 0
    v_mov_b32 v{vP+1}, 0
    v_mov_b32 v{vP+2}, 0
    v_mov_b32 v{vP+3}, 0
    s_lshl_b32 s48, s37, 10
    v_lshl_add_u32 v4, v0, 1, s48
    s_lshl_b32 s48, s37, 2
    s_lshl_b32 s56, s36, 14
    s_mov_b32 m0, s56
    s_lshr_b32 s38, s36, 2
    s_add_u32 s62, s60, {tab}-Lpc+2048
    s_addc_u32 s63, s61, 0
    s_waitcnt lgkmcnt(0)
    s_load_dword s52, s[14:15], s48
    global_load_short_d16_hi v{vP}, v4, s[6:7]
    global_load_short_d16_hi v{vP+1}, v4, s[8:9]
    global_load_short_d16_hi v{vP+2}, v4, s[10:11]
    global_load_short_d16_hi v{vP+3}, v4, s[12:13]
    s_load_dword s53, s[16:17], s48
    """)
    P.stamp(1)
    A(f"""
    v_bfe_u32 v{vG}, v0, 5, 1
    v_and_b32 v{vJ}, 31, v0
    s_lshl_b32 s46, s36, 15
    v_mul_u32_u24 v4, {GP}, v{vJ}
    v_lshl_add_u32 v4, v{vG}, 4, v4
    v_add_u32 v{vRA}, s46, v4
    s_bfe_u32 s39, s36, 0x10001
    s_and_b32 s40, s36, 1
    s_lshl_b32 s48, s39, 15
    s_lshl_b32 s47, s40, 8
    s_add_u32 s48, s48, s47
    s_add_u32 s48, s48, {KB0+64-24}
    v_and_b32 v4, 3, v0
    v_sub_u32 v4, 3, v4
    v_mul_u32_u24 v4, {KP}, v4
    v_bfe_u32 v5, v0, 2, 2
    v_lshl_add_u32 v4, v5, 3, v4
    v_bfe_u32 v5, v0, 4, 2
    v_lshl_add_u32 v4, v5, 4, v4
    v_add_u32 v{vA}, s48, v4
    s_mul_i32 s48, s39, {UPITCH}
    s_sub_u32 s48, s48, s47
    s_add_u32 s48, s48, {UO+512+16-192}
    v_and_b32 v4, 15, v0
    v_lshlrev_b32 v4, 5, v4
    v_lshlrev_b32 v5, 4, v5
    v_sub_u32 v4, v4, v5
    v_add_u32 v{vBc}, s48, v4
    s_add_u32 s64, s30, {WS_XG}
    s_addc_u32 s65, s31, 0
    s_mov_b32 s66, {XG_BYTES}
    s_mov_b32 s67, 0x20000
    s_and_b32 s47, s36, 3
    s_lshl_b32 s47, s47, 12
    v_lshl_add_u32 v97, v{vLane}, 4, s47
    s_lshl_b32 s44, s37, 14
    s_mov_b32 s54, {f32(8.0)}
    s_mov_b32 s55, {f32(256.0)}
    s_lshl_b32 s46, s38, 4
    v_mov_b32 v{vDT}, {f32(LOG2E)}
    s_cmp_lt_u32 s36, 4
    s_cbranch_scc1 Lnoprio
    s_setprio 1
    Lnoprio:
    s_waitcnt lgkmcnt(0)
    s_lshr_b32 s52, s52, s46
    s_lshl_b32 s52, s52, 16
    v_mul_f32 v{vDT}, s52, v{vDT}
    v_exp_f32 v{vDT}, v{vDT}
    v_cvt_pk_bf16_f32 v{vDT}, v{vDT}, v{vDT}
    v_and_b32 v{vDT}, s43, v{vDT}
    s_and_b32 s59, s53, s43
    s_lshl_b32 s58, s53, 16
    v_add_f32 v6, v{vDT}, v{vDT}
    """)
    P.stamp(2)
    A(f"""
    s_waitcnt vmcnt(2)
    v_mul_f32 v4, {f32(LOG2E)}, v{vP}
    v_exp_f32 v4, v4
    v_mul_f32 v{b2}, v{vP+1}, v{vDT}
    v_cvt_pk_bf16_f32 v4, v4, v4
    v_and_b32 v4, s43, v4
    v_mul_f32 v{a2}, v4, v{vDT}
    v_mul_f32 v{b2}, 0.15915494, v{b2}
    v_mul_f32 v{a2}, {f32(-LOG2E)}, v{a2}
    """)
    P.stamp(3)
    nb_ = [0]
    vPX, vPS_, vPA = 100, 116, 97
    xp = [f"buffer_load_dwordx4 {v(vPX+4*q,4)}, v{vPA}, s[64:67], s44 offen offset:{1024*q} sc1" for q in range(4)]
    xp += [f"global_load_dwordx4 {v(vPS_+4*q,4)}, v{vPA}, s[30:31] offset:{1024*q} sc1" for q in range(4)]
    def put(src, row, neg):
        r = CV + (nb_[0] & 7); nb_[0] += 1
        x = [f"v_cvt_pk_bf16_f32 v{r}, v{src}, {'-' if neg else ''}v{src+1}", f"ds_write_addtid_b32 v{r} offset:{row*GP}"]
        if nb_[0] == c.prio_mid: x[1] += "\ns_setprio 0"
        if nb_[0] == c.xp_at: x[1] += "\ns_cmp_lt_u32 s36, 4\ns_cbranch_scc1 Lnoxp\n" + "\n".join(xp) + "\nLnoxp:"
        return x
    def spread(puts, work):
        o = []
        while puts or work:
            p = puts.pop(0) if puts else None
            if p: o.append(p[0])
            if work: o += work.pop(0)
            if p: o.append(p[1])
        return o
    GR = 32
    for l in cexp(Hh, a2, b2, "s54", tA): A(l)
    A(f"v_mov_b32 v{CV+8}, 0x3f80\nds_write_addtid_b32 v{CV+8}")
    for l in cmul(Hh+2, Hh, Hh) + cmul(Hh+4, Hh+2, Hh) + cmul(W4, Hh+2, Hh+2): A(l)
    ex = merge(cexp(w1, a2, b2, None, tB), cexp(w256, a2, b2, "s55", tC))
    ex += ["s_waitcnt vmcnt(0)", f"v_mul_f32 v{G}, v{vP+2}, v6", f"v_mul_f32 v{G+1}, v{vP+3}, v6",
           "v_min_u32 v5, 255, v0\nv_lshlrev_b32 v6, 4, v5", "v_lshlrev_b32 v5, 3, v5",
           f"global_load_dwordx4 {v(vTB,4)}, v6, s[62:63] offset:-2048", f"global_load_dwordx2 {v(vTB+4,2)}, v5, s[62:63] offset:2048"]
    ex += cmul(w2, w1, w1) + cmul(G+2, G, w1) + cmul(w512, w256, w256)
    cur = [Hh, Hh+2, Hh+4, W4]; nxt = [HT, HT+2, HT+4, HT+6]; alt = [G2, G2+2, G2+4, G2+6]
    j = 1
    while j < 32:
        pend = [put(cur[r], j + r, False) for r in range(4) if j + r < 32]
        wk = [cmul(nxt[r], cur[r], W4) + [ex.pop(0) for _ in range(1) if ex] for r in range(4) if j + 4 + r < 32]
        if j + 4 >= 32: wk = [cmul(G+2*i, G+2*(i-2), w2) for i in range(2, 5)]
        for l in spread(pend, wk): A(l)
        cur, nxt = nxt, (alt if nxt[0] == HT else [HT, HT+2, HT+4, HT+6])
        j += 4
    assert not ex
    wk = [cmul(G+2*i, G+2*(i-2), w2) for i in range(5, 8)] + [cmul(G2+2*k, G+4*k, w256) for k in range(4)] + [cmul(G2+8, G, w512)]
    for l in spread([put(G+2*i, GR+i, True) for i in range(8)], wk): A(l)
    wk = [cmul(G2+10, G+8, w512), cmul(G2+12, G2, w512), cmul(G2+14, G2+4, w512), cmul(G, G2+8, w512), cmul(G+2, G2+12, w512), cmul(G+4, G, w512), cmul(G+6, G+2, w512), cmul(G+8, G+4, w512)]
    for l in spread([put(G2+2*i, GR+8+i, True) for i in range(8)], wk): A(l)
    for l in spread([put(G+2*i, GR+16+i, True) for i in range(5)], []): A(l)
    P.stamp(4)
    A(f"s_cmp_ge_u32 s36, 4\ns_cbranch_scc1 {nw}\ns_branch Lmw\n.p2align 12")
    target("Lmw")
    vACC, vEA, FR, TA_ = 8, 30, 100, 44
    tabprep = [f"s_lshl_b32 s46, s36, 15", f"v_lshl_add_u32 v4, v{vJ}, 2, s46", f"v_mul_u32_u24 v5, {4*TP}, v{vG}", "v_add_u32 v5, v5, v4", f"v_xor_b32 v7, 1, v{vG}"]
    tmin = []
    for b in range(4):
        o0 = 2 * b * TP + 128; o1 = 4 * (b & 1) * TP + 256 + 128 * (b >> 1)
        tabprep += [f"v_mul_u32_u24 v{TA_+b}, {abs(o1-o0)}, v{vG if o1 > o0 else 7}", f"v_add_u32 v{TA_+b}, v{TA_+b}, v4"]
        tmin.append(min(o0, o1))
    tabprep += [f"v_lshl_add_u32 v{TA_+4}, v{vG}, 9, v4", "s_waitcnt vmcnt(0)"]
    for r in range(11):
        tabprep += [f"v_and_b32 v{vEA+r}, 0xffff, v{vTB+(r>>1)}" if r % 2 == 0 else f"v_lshrrev_b32 v{vEA+r}, 16, v{vTB+(r>>1)}"]
    tabprep += ["v_cmp_ne_u32 s[44:45], 0, v0", f"v_lshlrev_b32 v6, 4, v0"]
    A("s_waitcnt lgkmcnt(0)\ns_barrier")
    P.stamp(5)
    def frd(n):
        b = FR + 8 * (n & 7); o = (n >> 3) * REG + 32 * (n & 7)
        return f"ds_read_b128 {v(b,4)}, v{vRA} offset:{GR*GP+o}\nds_read_b128 {v(b+4,4)}, v{vRA} offset:{o}"
    for n in range(6): A(frd(n))
    for n in range(16):
        b0 = FR + 8 * (n & 7)
        A(f"s_waitcnt lgkmcnt({2*min(5, 15-n)})\nv_mfma_f32_32x32x16_bf16 {v(vACC,16)}, {v(b0,4)}, {v(b0+4,4)}, {'0' if n == 0 else v(vACC,16)}")
        if n + 6 < 16: A(frd(n + 6))
        for l in tabprep[2*n:2*n+2]: A(l)
    assert len(tabprep) <= 32
    vW, vR, vO = 97, 98, 99
    A(f"""
    s_lshl_b32 s46, s36, 12
    s_add_u32 s46, s46, {PARO}
    v_lshl_add_u32 v{vW}, v{vLane}, 4, s46
    v_xor_b32 v{vR}, 0x1000, v{vW}
    s_lshl_b32 s46, s40, 10
    s_lshl_b32 s47, s39, 15
    s_add_u32 s47, s47, s46
    v_lshl_add_u32 v3, v{vLane}, 4, s47
    """)
    for b in range(4): A(f"ds_write_b32 v5, v{vACC+b} offset:{TP*b}")
    for b in range(4): A(f"ds_write_b32 v{TA_+b}, v{vACC+4+b} offset:{tmin[b]}")
    A(f"s_mov_b32 exec_hi, 1\nds_write_b32 v{TA_+4}, v{vACC+8} offset:512\ns_mov_b32 exec_hi, 0")
    for b in range(1, 4): A(f"ds_write_b32 v{TA_+4}, v{vACC+8+b} offset:{512+128*b}")
    A("s_mov_b32 exec_hi, -1\ns_waitcnt lgkmcnt(0)\ns_barrier")
    P.stamp(6)
    EV, CB = 100, 44
    for r in range(11): A(f"ds_read2st64_b32 {v(EV+2*r,2)}, v{vEA+r} offset0:0 offset1:128\nv_add_u32 v{vEA+r}, 0x10000, v{vEA+r}")
    for r in range(11): A(f"ds_read2st64_b32 {v(EV+22+2*r,2)}, v{vEA+r} offset0:0 offset1:128")
    for ch in range(2):
        E = EV + 22 * ch
        A(f"s_waitcnt lgkmcnt({11 if ch == 0 else 4})")
        for r in range(11): A(f"v_add_f32 v{E+2*r}, v{E+2*r}, v{E+2*r+1}")
        for r in range(3): A(f"v_cndmask_b32 v{E+2*r}, 0, v{E+2*r}, s[44:45]")
        for cp in range(4):
            b = CB + 16 * ch + 4 * cp
            for k in range(4):
                r0 = 3 - cp + 2 * k
                A(f"v_cvt_pk_bf16_f32 v{b+k}, v{E+2*r0}, v{E+2*r0+2}")
            A(f"ds_write_b128 v6, {v(b,4)} offset:{KB0+64+32768*ch+cp*KP}")
    P.stamp(7)
    A("s_waitcnt lgkmcnt(0)\ns_barrier")
    P.stamp(8)
    A(f"s_setprio {c.cprio}")
    AC = 8
    FBs = [40 + 8 * k for k in range(6)] + [100 + 8 * k for k in range(6)]
    def rd(Gi):
        r, n = Gi >> 3, Gi & 7
        b = FBs[Gi % 12]
        return [f"ds_read_b64 {v(b,2)}, v{vA} offset:{512*n+64*r}", f"ds_read_b64 {v(b+2,2)}, v{vA} offset:{512*n+64*r+8}",
                f"ds_read_b128 {v(b+4,4)}, v{vBc} offset:{512*n+64*(3-r)}"]
    def send(t): return f"s_mov_b64 exec, s[{48+2*(t&1)}:{49+2*(t&1)}]\nds_write_b128 v{vW}, {v(AC+4*t,4)} offset:{1024*(t>>1)}\ns_mov_b64 exec, -1"
    for Gi in range(4):
        for l in rd(Gi): A(l)
    A(f"""
    s_lshl_b32 s46, s37, 1
    s_add_u32 s46, s46, s39
    s_lshl_b32 s46, s46, 12
    s_lshl_b32 s47, s40, 9
    s_add_u32 s46, s46, s47
    s_add_u32 s46, s46, {WS_HT}
    v_and_b32 v4, 15, v0
    v_bfe_u32 v5, v0, 4, 2
    v_lshlrev_b32 v4, 5, v4
    v_lshrrev_b32 v6, 1, v5
    v_lshl_add_u32 v4, v6, 4, v4
    v_and_b32 v5, 1, v5
    v_lshl_add_u32 v4, v5, 10, v4
    v_add_u32 v{vO}, s46, v4
    """)
    started = set()
    def cm(r, a, b):
        t = a + b
        cc = v(AC + 4 * t, 4) if t in started else "0"
        started.add(t)
        return f"v_mfma_f32_16x16x32_bf16 {v(AC+4*t,4)}, {v(FBs[(8*r+a)%12],4)}, {v(FBs[(8*r+b)%12]+4,4)}, {cc}"
    def grp(n): return [(a, b) for a in range(n + 1) for b in range(n + 1) if max(a, b) == n and a + b <= 7]
    rq = []; nrd = 12; known = 0
    for Gi in range(28):
        r, n = Gi >> 3, Gi & 7
        rq += rd(Gi + 4)
        while nrd < 3 * (Gi + 1) + c.cmin: A(rq.pop(0)); nrd += 1
        if known < 3 * (Gi + 1):
            want = 3 * (Gi + 1)
            if n in c.cmerge and Gi > 3: want = min(want + 3, nrd - 3)
            A(f"s_waitcnt lgkmcnt({nrd - want})"); known = want
        for (a_, b_) in grp(n):
            A(cm(r, a_, b_))
            if rq: A(rq.pop(0)); nrd += 1
    for l in rq: A(l)
    PR, PP = 148, 116
    odd = A.label("odd"); jn = A.label("jn")
    A(f"s_cmp_eq_u32 s40, 1\ns_cbranch_scc1 {odd}")
    for par in range(2):
        if par:
            for _ in range(c.x_pad // 4): A("s_nop 0")
            target(odd)
        snd = [t for t in range(8) if t % 2 != par]
        def sw(t): return f"ds_write_b128 v{vW}, {v(AC+4*t,4)} offset:{1024*(t>>1)}"
        rest = [p for n in range(4, 8) for p in grp(n)]
        first = [p for p in rest if (p[0] + p[1]) % 2 != par]; last = [p for p in rest if (p[0] + p[1]) % 2 == par]
        A("s_waitcnt lgkmcnt(9)"); got = 4
        for k, p in enumerate(first):
            if max(p) > got: A(f"s_waitcnt lgkmcnt({2 if k > 3 else 3*(7-max(p)) + (1 if k > 1 else 0)})"); got = 7 if k > 3 else max(p)
            A(cm(3, *p))
            if k == 1: A(sw(snd[0]))
            if k == 3: A(sw(snd[1]))
        if got < 7: A("s_waitcnt lgkmcnt(2)")
        for k, p in enumerate(last):
            A(cm(3, *p))
            if k == 2: A(sw(snd[2]))
            if k == 7: A(sw(snd[3]))
        if par == 0: P.stamp(9)
        else: P.stamp(9)
        A("s_waitcnt lgkmcnt(0)\ns_barrier")
        for q in range(4): A(f"ds_read_b128 {v(PR+4*q,4)}, v{vR} offset:{1024*q}\nds_read_b128 {v(PP+4*q,4)}, v3 offset:{2048*q}")
        for q in range(4):
            A(f"s_waitcnt lgkmcnt({6-2*q})")
            k = AC + 4 * (2 * q + par)
            for h in range(2): A(f"v_pk_add_f32 {v(PR+4*q+2*h,2)}, {v(PR+4*q+2*h,2)}, {v(PP+4*q+2*h,2)}")
            for h in range(2): A(f"v_pk_add_f32 {v(PR+4*q+2*h,2)}, {v(PR+4*q+2*h,2)}, {v(k+2*h,2)}")
            o_ = 132 + 2 * q
            A(f"v_cvt_pk_bf16_f32 v{o_}, v{PR+4*q}, v{PR+4*q+1}\nv_cvt_pk_bf16_f32 v{o_+1}, v{PR+4*q+2}, v{PR+4*q+3}")
            if q & 1:
                A(f"v_permlane16_swap_b32 v{o_-2}, v{o_}\nv_permlane16_swap_b32 v{o_-1}, v{o_+1}")
                A(f"global_store_dwordx4 v{vO}, {v(o_-2,4)}, s[30:31] offset:{1024*(q-1)} sc0 sc1")
        if not par: A(f"s_branch {jn}")
    A(f"{jn}:")
    P.stamp(10)
    vB, vAa, vS, vCR, vCA = 8, 10, 12, 14, 16
    vX = 18
    CN, CA, MB = 24, 32, 38
    F = [48, 64, 80]
    ACC = 96
    T1, T2, OUT = 48, 56, 64
    def csetup():
        A(ffn_ids)
        A(f"""
        s_and_b32 s40, s36, 1
        s_bfe_u32 s41, s36, 0x10001
        s_lshr_b32 s49, s36, 2
        v_bfe_u32 v2, v{vLane}, 2, 2
        v_bfe_u32 v3, v{vLane}, 4, 1
        v_lshrrev_b32 v4, 5, v{vLane}
        v_and_b32 v6, 3, v{vLane}
        v_lshl_add_u32 v5, v4, 3, v2
        v_lshlrev_b32 v7, 8, v5
        v_lshl_add_u32 v7, v6, 3, v7
        v_lshl_add_u32 v7, v3, 5, v7
        s_lshl_b32 s42, s40, 1
        s_add_u32 s42, s42, s41
        v_xor_b32 v{vB}, s42, v2
        v_lshl_add_u32 v{vB}, v{vB}, 6, v7
        v_xor_b32 v{vB+1}, 64, v{vB}
        v_add_u32 v17, 0x10000, v{vB}
        v_add_u32 v46, 0x10000, v{vB+1}
        s_lshl_b32 s42, s34, 1
        s_add_u32 s42, s42, s40
        v_xor_b32 v{vX}, s42, v2
        v_lshl_add_u32 v{vX}, v{vX}, 6, v7
        v_lshlrev_b32 v7, 7, v5
        v_lshl_add_u32 v7, v6, 3, v7
        v_lshl_add_u32 v7, v3, 12, v7
        v_lshrrev_b32 v5, 1, v2
        v_lshl_add_u32 v5, v3, 1, v5
        s_lshl_b32 s42, s41, 1
        v_xor_b32 v5, s42, v5
        v_lshl_add_u32 v7, v5, 5, v7
        v_add_u32 v{vAa}, {12*BLK}, v7
        v_xor_b32 v{vAa+1}, 32, v{vAa}
        s_lshl_b32 s42, s39, 2
        s_lshl_b32 s43, s40, 1
        s_add_u32 s42, s42, s43
        s_add_u32 s43, s42, s41
        s_xor_b32 s44, s43, 1
        s_lshl_b32 s45, s38, 3
        s_lshl_b32 s46, s41, 1
        s_add_u32 s45, s45, s46
        s_lshl_b32 s46, s49, 2
        s_add_u32 s45, s45, s46
        s_lshl_b32 s46, s45, 7
        s_add_u32 s45, s45, {WS_ACT // 1024}
        s_mul_i32 s43, s43, 112
        s_mul_i32 s44, s44, 112
        s_add_u32 s43, s43, s45
        s_add_u32 s44, s44, s45
        s_lshl_b32 s43, s43, 10
        s_lshl_b32 s44, s44, 10
        v_lshl_add_u32 v{vS}, v{vLane}, 4, s43
        v_lshl_add_u32 v{vS+1}, v{vLane}, 4, s44
        v_and_b32 v5, 15, v{vLane}
        v_mul_u32_u24 v7, {F_*8}, v3
        v_lshl_add_u32 v5, v5, 3, v7
        s_add_u32 s46, s46, {WS_CS}
        v_add_u32 v{vCA}, s46, v5
        v_and_b32 v5, 31, v{vLane}
        s_lshl_b32 s42, s40, 1
        s_add_u32 s42, s42, s41
        s_lshl_b32 s43, s42, 9
        s_add_u32 s43, s43, {CON}
        v_lshl_add_u32 v{vCR}, v5, 4, s43
        v_xor_b32 v{vCR+1}, 512, v{vCR}
        s_lshl_b32 s43, s39, 11
        s_lshl_b32 s44, s41, 8
        s_add_u32 s43, s43, s44
        s_add_u32 s43, s43, {WS_FLAGS}
        s_lshl_b32 s44, s34, 10
        s_add_u32 s59, s43, s44
        s_lshl_b32 s44, s40, 10
        s_add_u32 s58, s43, s44
        s_lshl_b32 s44, s49, 9
        s_add_u32 s58, s58, s44
        v_mov_b32 v{CA+4}, 0
        v_mov_b32 v{CA+5}, 0
        v_mov_b32 v{MB+2}, 0
        v_mov_b32 v{MB+3}, 0
        v_mov_b32 v{MB+6}, 0
        v_mov_b32 v{MB+7}, 0
        v_cmp_eq_u32 s[52:53], 0, v4
        s_mov_b32 s47, 0x3f803f80
        s_mov_b32 s48, 0xffff0000
        """)
    caload = [f"global_load_dwordx2 {v(CA,2)}, v{vCA}, s[30:31] sc1", f"global_load_dwordx2 {v(CA+2,2)}, v{vCA}, s[30:31] offset:128 sc1"]
    def preads(p, j):
        s, ks = j >> 1, j & 1
        f = F[j % 3]
        ho = (slot[("H", s)] % 8) * BLK + 4096 * ks
        wo = (slot[("W", 14 * p + s)] - 12) * BLK + 2048 * ks
        o = []
        for kind, i in (("B", 0), ("A", 0), ("B", 1), ("A", 1)):
            ab = vB + i if s < 8 else (17, 46)[i]
            if kind == "B": o += [f"ds_read_b64_tr_b16 {v(f+8+4*i,2)}, v{ab} offset:{ho}", f"ds_read_b64_tr_b16 {v(f+10+4*i,2)}, v{ab} offset:{ho+1024}"]
            else: o += [f"ds_read_b64_tr_b16 {v(f+4*i,2)}, v{vAa+i} offset:{wo}", f"ds_read_b64_tr_b16 {v(f+2+4*i,2)}, v{vAa+i} offset:{wo+512}"]
        return o
    def pmfma(j, first=False):
        f = F[j % 3]
        return [f"v_mfma_f32_32x32x16_bf16 {v(ACC+32*t+16*rt,16)}, {v(f+4*t,4)}, {v(f+8+4*rt,4)}, {'0' if first else v(ACC+32*t+16*rt,16)}" for (t, rt) in ((0, 0), (0, 1), (1, 0), (1, 1))]
    def corr(first):
        return [f"v_mfma_f32_32x32x16_bf16 {v(ACC+32*t+16*rt,16)}, {v(CA+2*t,4)}, {v(MB+4*rt,4)}, {'0' if first else v(ACC+32*t+16*rt,16)}" for t in range(2) for rt in range(2)]
    mkmb = [f"v_cndmask_b32 v{MB+4*rt+k}, 0, v{CN+4*rt+3}, s[52:53]" for rt in range(2) for k in range(2)]
    def inter(m, r):
        per_ = (len(r) + 3) // 4
        for i in range(4):
            A(m[i])
            for l in r[per_*i:per_*(i+1)]: A(l)
    def pstep(p, s):
        for h in range(2):
            A("s_waitcnt lgkmcnt(8)")
            inter(pmfma(2*s - 2 + h, p == 0 and s == 1 and h == 0), preads(p, 2*s + h))
        if p == 0 and s - c.ca_load in (0, 1): A(caload[s - c.ca_load])
    def epi(t, rt, n, packed):
        a = ACC + 32 * t + 16 * rt
        cn = CN + 4 * rt
        o_ = OUT + 4 * (n & 1)
        L = []
        if packed:
            L += [f"v_pk_mul_f32 {v(T1+2*q,2)}, {v(a+2*q,2)}, {v(a+2*q,2)}" for q in range(4)]
            L += [f"v_pk_fma_f32 {v(T1+2*q,2)}, {v(T1+2*q,2)}, {v(cn,2)}, {v(cn,2)} op_sel:[0,1,0] op_sel_hi:[1,1,0]" for q in range(4)]
            L += [f"v_pk_mul_f32 {v(T1+2*q,2)}, {v(T1+2*q,2)}, {v(a+2*q,2)}" for q in range(4)]
            L += [f"v_exp_f32 v{T1+q}, v{T1+q}" for q in range(8)]
            L += [f"v_pk_mul_f32 {v(T2+2*q,2)}, {v(a+2*q,2)}, {v(a+8+2*q,2)}" for q in range(4)]
            L += [f"v_pk_fma_f32 {v(T1+2*q,2)}, {v(T1+2*q,2)}, {v(cn+2,2)}, {v(cn+2,2)} op_sel_hi:[1,0,0]" for q in range(4)]
            L += [f"v_rcp_f32 v{T1+q}, v{T1+q}" for q in range(8)]
            L += [f"v_pk_mul_f32 {v(T2+2*q,2)}, {v(T2+2*q,2)}, {v(T1+2*q,2)}" for q in range(4)]
            L += [f"v_cvt_pk_bf16_f32 v{o_+q}, v{T2+2*q}, v{T2+2*q+1}" for q in range(4)]
        else:
            def st(q):
                return [f"v_mul_f32 v{T1+q}, v{a+q}, v{a+q}", f"v_fma_f32 v{T1+q}, v{T1+q}, v{cn+1}, v{cn}", f"v_mul_f32 v{T1+q}, v{T1+q}, v{a+q}",
                        f"v_exp_f32 v{T1+q}, v{T1+q}", f"v_mul_f32 v{T2+q}, v{a+q}, v{a+8+q}", f"v_fma_f32 v{T1+q}, v{T1+q}, v{cn+2}, v{cn+2}",
                        f"v_rcp_f32 v{T1+q}, v{T1+q}", f"v_mul_f32 v{T2+q}, v{T2+q}, v{T1+q}"]
            for q0 in range(0, 8, c.il):
                xs = [st(q) for q in range(q0, q0 + c.il)]
                for k in range(8): L += [x[k] for x in xs]
                L += [f"v_cvt_pk_bf16_f32 v{o_+q//2}, v{T2+q}, v{T2+q+1}" for q in range(q0, q0 + c.il, 2)]
        L += [f"global_store_dwordx4 v{vS+rt}, {v(o_,4)}, s[30:31] offset:{1024*t} {c.stflag}"]
        return L
    def cost(l): return 2 if l.startswith(("v_exp", "v_rcp", "v_sqrt")) else c.stcost if l.startswith("global_store") else 1
    def signal(t, later=None):
        A(f"s_mov_b32 s70, 1\ns_waitcnt vmcnt({2-2*t if later is None else later})\ns_atomic_add s70, s[30:31], s58\ns_add_u32 s58, s58, 128")
    def poll_issue(r, off):
        A(f"s_mov_b32 s{r}, 0\ns_add_u32 s68, s59, {off}\ns_atomic_add s{r}, s[30:31], s68 glc")
    def poll_wait(r, off, inline=False):
        pl = A.label("poll"); ok = A.label("ok")
        if inline:
            A(f"s_mov_b32 s45, 0\n{pl}:\ns_waitcnt lgkmcnt(0)\ns_cmp_ge_u32 s{r}, 14\ns_cbranch_scc1 {ok}")
            poll_issue(r, off)
            A(f"s_add_u32 s45, s45, 1\ns_cmp_lt_u32 s45, {SPIN}\ns_cbranch_scc1 {pl}\ns_waitcnt lgkmcnt(0)\n{ok}:")
            return
        A(f"s_waitcnt lgkmcnt(0)\ns_cmp_lt_u32 s{r}, 14\ns_cbranch_scc1 {pl}\n{ok}:")
        with Cold():
            A(f"{pl}:\ns_mov_b32 s45, 0\n{pl}b:")
            poll_issue(r, off)
            A(f"s_add_u32 s45, s45, 1\ns_waitcnt lgkmcnt(0)\ns_cmp_ge_u32 s{r}, 14\ns_cbranch_scc1 {ok}\ns_cmp_lt_u32 s45, {SPIN}\ns_cbranch_scc1 {pl}b\ns_branch {ok}")
    PA_, PB_ = 69, 71
    Q = Bars([0, 14, c.drain0[1] + 1, 29], 13)
    AC2, ID, HF = 80, 160, 72
    csetup()
    if c.emode: A(f"s_waitcnt vmcnt(0)\ns_sleep {c.emode}")
    A("s_waitcnt vmcnt(0)\ns_barrier")
    P.stamp(11)
    A(f"""
    s_lshl_b32 s43, s35, 1
    s_add_u32 s43, s43, s41
    s_sub_u32 s43, s43, s38
    s_cselect_b32 s44, 14, 0
    s_add_u32 s43, s43, s44
    s_cmp_ge_u32 s43, 12
    s_cselect_b32 s44, {2 if c.w8 else 0}, 0
    s_add_u32 s43, s43, s44
    s_lshl_b32 s43, s43, 13
    v_add_u32 v{vX}, s43, v{vX}
    v_lshlrev_b32 v7, 3, v4
    v_sub_u32 v7, v5, v7
    v_mov_b32 v{vX+1}, 0x3f80
    v_mov_b32 v{vX+2}, 1.0
    """)
    for j in range(2):
        for i in range(4):
            d0 = 16 * j + 2 * i
            A(f"v_cmp_eq_u32 vcc, {d0}, v7\nv_cmp_eq_u32 s[50:51], {d0+1}, v7\nv_cndmask_b32 v{ID+4*j+i}, 0, v{vX+1}, vcc\nv_cndmask_b32 v{ID+4*j+i}, v{ID+4*j+i}, v{vX+2}, s[50:51]")
    A("s_setprio 2")
    Q.bar()
    P.stamp(12)
    for l in preads(0, 0) + preads(0, 1): A(l)
    for s in range(1, 14):
        Q.bar(); pstep(0, s)
    Q.bar()
    r = [f"ds_read_b128 {v(CN+4*i,4)}, v{vCR+i}" for i in range(2)] + [f"ds_read_b64_tr_b16 {v(HF+2*i,2)}, v{vX} offset:{4096*(i>>1)+1024*(i&1)}" for i in range(4)]
    A("s_waitcnt lgkmcnt(8)"); inter(pmfma(26), r)
    A("s_waitcnt vmcnt(0) lgkmcnt(4)"); inter(pmfma(27), mkmb)
    for l in corr(False): A(l)
    A("s_waitcnt lgkmcnt(0)")
    A("s_setprio 0")
    E1 = []
    for n in range(4): E1 += epi(n >> 1, n & 1, n, c.e1_packed)
    tot = sum(cost(x) for x in E1); per1 = tot / (c.e1_last - c.e1_first + 1); bud = 0.0
    vD, vT = 8, 14
    gsetup = f"""
    v_lshl_add_u32 v7, v4, 2, v2
    v_lshlrev_b32 v7, 7, v7
    v_lshrrev_b32 v{vD}, 1, v2
    v_xor_b32 v{vD}, s41, v{vD}
    v_lshl_add_u32 v7, v{vD}, 6, v7
    v_lshl_add_u32 v7, v3, 5, v7
    v_lshl_add_u32 v7, v6, 3, v7
    s_lshl_b32 s43, s41, 12
    v_add_u32 v{vD}, s43, v7
    v_xor_b32 v{vD+1}, 64, v{vD}
    v_add_u32 v{vD+2}, 0x10000, v{vD}
    v_add_u32 v{vD+3}, 0x10000, v{vD+1}
    v_lshlrev_b32 v{vT}, 4, v{vLane}
    """
    gsetup2 = f"""
    s_lshl_b32 s43, s39, 2
    s_lshl_b32 s44, s34, 1
    s_add_u32 s43, s43, s44
    s_add_u32 s43, s43, s40
    s_mul_i32 s55, s43, {112*1024}
    s_mul_i32 s43, s43, {32*896}
    s_lshl_b32 s44, s35, 7
    s_add_u32 s43, s43, s44
    s_lshl_b32 s44, s41, 6
    s_add_u32 s43, s43, s44
    v_mul_u32_u24 v5, 896, v5
    v_lshl_add_u32 v5, v4, 4, v5
    v_add_u32 v5, s43, v5
    s_lshl_b32 s44, s41, 11
    s_add_u32 s55, s55, s44
    s_lshl_b32 s54, s33, 13
    s_add_u32 s54, s54, s55
    s_add_u32 s55, s55, {14*8192}
    s_add_u32 s64, s30, {WS_ACT}
    s_addc_u32 s65, s31, 0
    s_mov_b32 s66, {ACT_BYTES}
    s_mov_b32 s67, 0x20000
    """
    TRQ = [96 + 4 * k for k in range(18)] + [16, 20, 24, 28]
    DB = [32, 40, 48, 56]
    AO = [AC2, 64]
    seq = [(14 * hf + b, j) for hf in range(2) for j in range(2) for b in range(14)]
    cons = [(b, j) for b in range(14) for j in range(2)] + seq[28:]
    freeq = list(TRQ); treg = {}
    def tload(n):
        b, j = seq[n]
        if (b, j) not in treg: treg[(b, j)] = freeq.pop(0)
        o = []
        if n == 28: o += ["s_add_u32 s54, s54, 4096", "s_add_u32 s55, s55, 4096"]
        o += [f"buffer_load_dwordx4 {v(treg[(b, j)],4)}, v{vT}, s[64:67], s54 offen offset:{1024*j} sc1"]
        o += ["s_add_u32 s54, s54, 8192", "s_cmp_ge_u32 s54, s55", f"s_cselect_b32 s57, {14*8192}, 0", "s_sub_u32 s54, s54, s57"]
        return o
    nst = 0; early = 0
    assert c.drain0[1] <= c.chkA and c.e1_last + 2 <= c.chkA and sum(c.earlyT) <= 14
    for i in range(15, 29):
        Q.bar()
        if i == c.drain0[0]:
            assert nst >= 2
            signal(0, nst - 2)
        if i >= c.e1_first:
            bud += per1
            while E1 and (bud > 0 or i == c.e1_last):
                x = E1.pop(0); A(x); bud -= cost(x)
                if x.startswith("global_store"): nst += 1
        if i == c.pollA: poll_issue(PA_, 0)
        if i == c.e1_last + 1: A(gsetup)
        if i == c.e1_last + 2: A(gsetup2)
        if i == c.chkA: A("s_waitcnt lgkmcnt(0)")
        if i == c.drain0[1]:
            signal(1)
            A(f"v_add_u32 v{vD+4}, 0x20000, v{vD}\nv_add_u32 v{vD+5}, 0x20000, v{vD+1}")
        if i == c.poll0: poll_issue(PB_, 128)
        if 0 <= i - c.chkA < len(c.earlyT):
            sk = A.label("et")
            A(f"s_cmp_lt_u32 s{PA_}, 14\ns_cbranch_scc1 {sk}")
            for _ in range(c.earlyT[i - c.chkA]):
                for l in tload(early): A(l)
                early += 1
            A(f"{sk}:")
    Q.bar()
    A(f"v_mfma_f32_32x32x16_bf16 {v(AC2,16)}, {v(ID,4)}, {v(HF,4)}, 0")
    A(f"v_mfma_f32_32x32x16_bf16 {v(AC2,16)}, {v(ID+4,4)}, {v(HF+4,4)}, {v(AC2,16)}")
    sk = A.label("et")
    A(f"s_cmp_lt_u32 s{PA_}, 14\ns_cbranch_scc1 {sk}c\n{sk}:")
    with Cold():
        A(f"{sk}c:")
        poll_wait(PA_, 0, True)
        for n in range(early):
            for l in tload(n): A(l)
        A(f"s_branch {sk}")
    def dreads(n):
        b, j = cons[n]
        sd = slot[("D", b)]; f = DB[n & 3]
        o = []
        for nt in range(2):
            do = (sd % 8) * BLK + 2048 * j
            ad = vD + 2 * (sd // 8) + nt
            o += [f"ds_read_b64_tr_b16 {v(f+4*nt,2)}, v{ad} offset:{do}", f"ds_read_b64_tr_b16 {v(f+4*nt+2,2)}, v{ad} offset:{do+1024}"]
        return o
    def gm(n):
        f = DB[n & 3]
        return [f"v_mfma_f32_32x32x16_bf16 {v(AO[nt],16)}, {v(f+4*nt,4)}, {v(treg[cons[n]],4)}, {'0' if (n == 0 and nt == 1) else v(AO[nt],16)}" for nt in (1, 0)]
    issued = early; mk = 0
    while issued < 14:
        for l in tload(issued): A(l)
        issued += 1
    poll_wait(PB_, 128, True)
    Q.mark(mk); mk += 1
    lim = 28
    for n in range(56):
        if n == 14: A("s_waitcnt lgkmcnt(0)\ns_barrier")
        for y in (c.ya_at, c.yb_at):
            if n == y:
                A("s_barrier")
                Q.mark(mk); mk += 1
                lim += 14
        k = 99 if n == 0 else c.pace.get(n, c.pace1 if n < 28 else c.pace2)
        while issued < lim and freeq and k > 0:
            for l in tload(issued): A(l)
            issued += 1; k -= 1
        assert seq.index(cons[n]) < issued
        if n == 0:
            for l in dreads(0) + dreads(1): A(l)
        if n == c.g_pre:
            if c.xe: A("s_barrier")
            Q.mark(mk); mk += 1
        r = dreads(n + 2) if n + 2 < 56 else []
        A(f"s_waitcnt vmcnt({issued-1-seq.index(cons[n])}) lgkmcnt({4 if n < 55 else 0})")
        if n in (28, 42): Q.mark(mk); mk += 1
        m = gm(n)
        for i in range(2):
            A(m[i])
            for l in r[2*i:2*i+2]: A(l)
        freeq.append(treg[cons[n]])
    assert 14 < c.ya_at <= 26 and c.ya_at <= c.yb_at <= 32 and c.yb_at >= 24
    while mk < 6: Q.mark(mk); mk += 1
    Q.mark(6)
    assert all(slot[("D", b)] not in (8, 9) for b in range(11, 28))
    A(f"""
    s_lshl_b32 s43, s36, 12
    s_add_u32 s43, s43, {8*BLK}
    v_lshl_add_u32 v2, v{vLane}, 4, s43
    v_xor_b32 v3, 0x2000, v2
    """)
    for q in range(4): A(f"ds_write_b128 v2, {v(AO[1]+4*q,4)} offset:{1024*q}")
    A("s_waitcnt lgkmcnt(0)\ns_barrier")
    for q in range(4): A(f"ds_read_b128 {v(32+4*q,4)}, v3 offset:{1024*q}")
    for hq in range(2):
        A(f"s_waitcnt lgkmcnt({2-2*hq})")
        for q in range(4*hq, 4*hq+4): A(f"v_pk_add_f32 {v(AC2+2*q,2)}, {v(AC2+2*q,2)}, {v(32+2*q,2)}")
        for q in range(4*hq, 4*hq+4): A(f"v_cvt_pk_bf16_f32 v{48+q}, v{AC2+2*q}, v{AC2+2*q+1}")
        A(f"v_permlane32_swap_b32 v{48+4*hq}, v{48+4*hq+2}\nv_permlane32_swap_b32 v{48+4*hq+1}, v{48+4*hq+3}")
        A(f"global_store_dwordx4 v5, {v(48+4*hq,4)}, s[26:27] offset:{32*hq} {c.outflag}")
    Q.fin(7)
    A("s_endpgm")
    target(nw)
    A(f"s_and_b32 s46, s36, 3\ns_mov_b32 s45, 0\nv_mov_b32 v11, {TAGA}")
    def xpoll():
        for l in xp: A(l)
    A("s_waitcnt lgkmcnt(0)\ns_barrier")
    P.stamp(5)
    A(f"""
    ds_read_b32 v11, v11
    s_lshl_b32 s47, s46, 10
    s_add_u32 s47, s47, {UO+512}
    v_xor_b32 v9, 3, v{vLane}
    v_lshl_add_u32 v9, v9, 2, s47
    s_lshl_b32 s47, s46, 11
    v_lshrrev_b32 v5, 3, v{vLane}
    v_lshl_add_u32 v5, v5, 4, s47
    v_bfe_u32 v6, v{vLane}, 1, 2
    v_lshl_add_u32 v5, v6, 8, v5
    v_and_b32 v6, 1, v{vLane}
    v_lshl_add_u32 v10, v6, 3, v5
    """)
    if not c.xp_at:
        if c.poll_late: A(f"s_sleep {c.poll_late}")
        xpoll()
    if not c.xp_chk:
        A(f"s_mov_b32 s45, 1\ns_barrier\ns_setprio {c.nprio}")
    pl = A.label("xp"); ok = A.label("xok"); nb1 = A.label("xnb")
    A(f"{pl}:\ns_waitcnt vmcnt(0) lgkmcnt(0)\nv_min3_u32 v4, v{vPX+1}, v{vPX+3}, v11\nv_max3_u32 v5, v{vPX+1}, v{vPX+3}, v11")
    for q in range(1, 8): A(f"v_min3_u32 v4, v4, v{vPX+4*q+1}, v{vPX+4*q+3}\nv_max3_u32 v5, v5, v{vPX+4*q+1}, v{vPX+4*q+3}")
    assert not c.xp_chk
    A(f"v_cmp_ne_u32 vcc, v4, v5\ns_cbranch_vccnz {pl}c\n{ok}:")
    with Cold():
        A(f"{pl}c:\ns_add_u32 s45, s45, 1\ns_cmp_gt_u32 s45, {SPIN}\ns_cbranch_scc1 {ok}")
        xpoll()
        A(f"s_branch {pl}")
    P.stamp(6)
    if c.x_cnt: A("s_waitcnt lgkmcnt(0)\ns_mul_i32 s74, s45, 100\ns_add_u32 s74, s74, s72")
    NU, PRE, UB = 16, 32, 48
    for half in range(2):
        st = []
        for r in range(4 * half, 4 * half + 4):
            S = vPS_ + 2 * r; X = vPX + 2 * r
            t = 60 + 4 * (r & 3)
            st.append([f"v_and_b32 v{t+2}, s43, v{S}", f"v_rcp_f32 v{t+2}, v{t+2}", f"v_lshlrev_b32 v{t}, 16, v{S}",
                  f"v_lshlrev_b32 v{PRE+2*r}, 16, v{X}", f"v_and_b32 v{PRE+2*r+1}, s43, v{X}",
                  f"v_pk_add_f32 {v(NU+2*r,2)}, {v(PRE+2*r,2)}, {v(t,2)} op_sel_hi:[1,0] neg_lo:[0,1] neg_hi:[0,1]" if c.npk else f"v_sub_f32 v{NU+2*r}, v{PRE+2*r}, v{t}\nv_sub_f32 v{NU+2*r+1}, v{PRE+2*r+1}, v{t}",
                  f"v_cvt_pk_bf16_f32 v{NU+2*r+1}, v{NU+2*r}, v{NU+2*r+1}",
                  f"v_lshlrev_b32 v{NU+2*r}, 16, v{NU+2*r+1}", f"v_and_b32 v{NU+2*r+1}, s43, v{NU+2*r+1}",
                  f"v_pk_mul_f32 {v(NU+2*r,2)}, {v(NU+2*r,2)}, {v(t+2,2)} op_sel_hi:[1,0]" if c.npk else f"v_mul_f32 v{NU+2*r}, v{NU+2*r}, v{t+2}\nv_mul_f32 v{NU+2*r+1}, v{NU+2*r+1}, v{t+2}"])
        for l in merge(*st): A(l)
        for ch in range(2):
            for k in (2 * half, 2 * half + 1): A(f"v_cvt_pk_bf16_f32 v{UB+4*ch+k}, v{NU+4*k+2+ch}, v{NU+4*k+ch}")
    P.stamp(7)
    for half in range(2):
        for ch in range(2):
            A(f"ds_write2st64_b32 v9, v{UB+4*ch+2*half}, v{UB+4*ch+2*half+1} offset0:{ch*UPITCH//256+2*half} offset1:{ch*UPITCH//256+2*half+1}")
    A("s_setprio 0\ns_waitcnt lgkmcnt(0)\ns_barrier")
    P.stamp(8)
    if c.x_quietN: A("s_sleep 60")
    PO = 60
    for ch in range(2):
        for k in range(4):
            A(f"v_lshlrev_b32 v4, 16, v{UB+4*ch+k}\nv_and_b32 v5, s43, v{UB+4*ch+k}")
            A(f"v_fma_f32 v{PO+8*ch+2*k+1}, v4, s{58+ch}, v{PRE+4*k+2+ch}\nv_fma_f32 v{PO+8*ch+2*k}, v5, s{58+ch}, v{PRE+4*k+ch}")
            A(f"ds_write_b64 v10, {v(PO+8*ch+2*k,2)} offset:{32768*ch+1024*(k>>1)+128*(k&1)}")
    A("v_mov_b32 v90, v11")
    csetup()
    Q = Bars([0, c.gat_check, c.gat_check + 1, 14, 28, 29], 10)
    ST, GA = 18, 96
    vPS, vGA = 22, 23
    A(f"""
    s_mul_i32 s43, s39, {14*1024}
    s_lshl_b32 s44, s42, 8
    s_add_u32 s43, s43, s44
    s_add_u32 s43, s43, {WS_PS}
    v_lshl_add_u32 v{vPS}, v5, 3, s43
    v_mul_u32_u24 v7, 7168, v4
    v_add3_u32 v{vGA}, v{vPS}, v7, 64
    v_add_u32 v{vGA}, {3072-64}, v{vGA}
    s_lshl_b32 s44, s38, 10
    v_add_u32 v{vPS}, s44, v{vPS}
    """)
    nb = A.label("nb"); pz = A.label("pz"); pzo = A.label("pzo")
    A(f"""
    s_cmp_lg_u32 s36, 4
    s_cbranch_scc1 {nb}
    v_min_u32 v47, 55, v{vLane}
    v_lshlrev_b32 v47, 5, v47
    v_add_u32 v47, {WS_PZ}, v47
    s_mov_b32 s45, 0
    {pz}:
    s_sleep {c.pz_sleep}
    global_load_dwordx4 v[48:51], v47, s[30:31] sc1
    global_load_dwordx4 v[52:55], v47, s[30:31] offset:16 sc1
    s_waitcnt vmcnt(0)
    v_min3_u32 v56, v48, v49, v90
    v_max3_u32 v57, v48, v49, v90
    v_min3_u32 v56, v50, v51, v56
    v_max3_u32 v57, v50, v51, v57
    v_min3_u32 v56, v52, v53, v56
    v_max3_u32 v57, v52, v53, v57
    v_min3_u32 v56, v54, v55, v56
    v_max3_u32 v57, v54, v55, v57
    v_cmp_ne_u32 vcc, v56, v57
    s_cbranch_vccz {pzo}
    s_add_u32 s45, s45, 1
    s_cmp_lt_u32 s45, {SPIN}
    s_cbranch_scc1 {pz}
    {pzo}:
    s_cmp_lg_u32 s2, 0
    s_cbranch_scc1 {nb}
    v_mov_b32 v47, {WS_E}
    s_mov_b64 exec, 1
    global_store_dword v47, v90, s[30:31]
    s_mov_b64 exec, -1
    {nb}:
    """)
    P.stamp(9)
    A("s_waitcnt lgkmcnt(0)\ns_barrier\ns_barrier")
    def gat(js=range(7)):
        for j in js: A(f"global_load_dwordx2 {v(GA+2*j,2)}, v{vGA}, s[30:31] offset:{1024*j-3072} sc1")
    S, Qv = GA, GA + 1
    work = [f"v_add_f32 v{GA+k}, v{GA+k}, v{GA+2*j+k}" for j in range(1, 7) for k in range(2)]
    work += [f"v_mov_b32 v{GA+2}, v{GA}", f"v_mov_b32 v{GA+3}, v{GA+1}", f"v_permlane32_swap_b32 v{GA}, v{GA+2}", f"v_permlane32_swap_b32 v{GA+1}, v{GA+3}",
             f"v_add_f32 v{GA}, v{GA}, v{GA+2}", f"v_add_f32 v{GA+1}, v{GA+1}, v{GA+3}"]
    work += [l.strip() for l in f"""
    v_mul_f32 v{S}, {f32(1.0/448)}, v{S}
    v_mul_f32 v{Qv}, {f32(1.0/448)}, v{Qv}
    v_fma_f32 v{Qv}, -v{S}, v{S}, v{Qv}
    v_max_f32 v{Qv}, 0, v{Qv}
    v_cvt_pk_bf16_f32 v{CN+3}, -v{S}, -v{S}
    v_cvt_pk_bf16_f32 v{Qv}, v{Qv}, v{Qv}
    v_and_b32 v{Qv}, s48, v{Qv}
    v_add_f32 v{Qv}, {f32(1e-5)}, v{Qv}
    v_cvt_pk_bf16_f32 v{Qv}, v{Qv}, v{Qv}
    v_and_b32 v{Qv}, s48, v{Qv}
    v_sqrt_f32 v{Qv}, v{Qv}
    v_cvt_pk_bf16_f32 v{Qv}, v{Qv}, v{Qv}
    v_and_b32 v{Qv}, s48, v{Qv}
    v_rcp_f32 v{S}, v{Qv}
    v_mul_f32 v{CN+2}, v{Qv}, v{Qv}
    v_mul_f32 v{CN}, {f32(GK0)}, v{S}
    v_mul_f32 v{CN+1}, v{S}, v{S}
    v_mul_f32 v{CN+1}, v{CN+1}, v{S}
    v_mul_f32 v{CN+1}, {f32(GK1)}, v{CN+1}
    ds_write_b128 v{vCR}, {v(CN,4)}
    """.strip().split("\n")]
    nwi = c.con_write - c.gat_check
    wper = (len(work) + nwi - 1) // nwi
    for i in range(14):
        Q.bar()
        if i == 0:
            for k in range(4): A(f"ds_read_b64_tr_b16 {v(F[0]+2*k,2)}, v{vB} offset:{4096*(k>>1)+1024*(k&1)}")
        if i == 1:
            A("s_waitcnt lgkmcnt(0)")
            for k in range(8):
                z = k < 2
                A(f"v_dot2_f32_bf16 v{ST+(k&1)}, v{F[0]+k}, s47, {'0' if z else 'v%d' % (ST+(k&1))}\nv_dot2_f32_bf16 v{ST+2+(k&1)}, v{F[0]+k}, v{F[0]+k}, {'0' if z else 'v%d' % (ST+2+(k&1))}")
        if i == 2:
            A(f"""
            v_add_f32 v{ST}, v{ST}, v{ST+1}
            v_add_f32 v{ST+1}, v{ST+2}, v{ST+3}
            v_mov_b32 v{ST+2}, v{ST}
            v_mov_b32 v{ST+3}, v{ST+1}
            v_permlane32_swap_b32 v{ST}, v{ST+2}
            v_permlane32_swap_b32 v{ST+1}, v{ST+3}
            v_add_f32 v{ST}, v{ST}, v{ST+2}
            v_add_f32 v{ST+1}, v{ST+1}, v{ST+3}
            v_or_b32 v{ST+1}, 1, v{ST+1}
            s_mov_b32 exec_hi, 0
            global_store_dwordx2 v{vPS}, {v(ST,2)}, s[30:31] sc0 sc1
            s_mov_b32 exec_hi, -1
            """)
        if i in (c.cs_issue, c.ca_load - 1):
            sk = A.label("css")
            A(f"s_cmp_lg_u32 s36, 4\ns_cbranch_scc1 {sk}")
            if i == c.cs_issue: A(f"global_load_dword v47, v{MB+2}, s[28:29] sc1")
            else:
                pl = A.label("cs")
                A(f"s_mov_b32 s45, 0\n{pl}:\ns_waitcnt vmcnt(0)\nv_cmp_gt_u32 vcc, 56, v47\ns_cbranch_vccz {sk}\ns_sleep 32\nglobal_load_dword v47, v{MB+2}, s[28:29] sc1\ns_add_u32 s45, s45, 1\ns_cmp_lt_u32 s45, {SPIN}\ns_cbranch_scc1 {pl}")
            A(f"{sk}:")
        k0 = i - (c.gat_issue - len(c.gat_split) + 1)
        if 0 <= k0 < len(c.gat_split) and not c.x_nogat: gat(range(sum(c.gat_split[:k0]), sum(c.gat_split[:k0+1])))
        if i == c.gat_check and not c.x_nogat:
            pl = A.label("gp"); ok = A.label("gok")
            A(f"s_mov_b32 s45, 0\n{pl}:\ns_waitcnt vmcnt(0)\nv_min3_u32 v7, v{GA+1}, v{GA+3}, v{GA+5}\nv_min3_u32 v7, v7, v{GA+7}, v{GA+9}\nv_min3_u32 v7, v7, v{GA+11}, v{GA+13}")
            A(f"v_cmp_eq_u32 vcc, 0, v7\ns_cbranch_vccnz {pl}c\n{ok}:")
            with Cold():
                A(f"{pl}c:\ns_add_u32 s45, s45, 1\ns_cmp_ge_u32 s45, {SPIN}\ns_cbranch_scc1 {ok}")
                gat()
                A(f"s_branch {pl}")
        if c.gat_check < i <= c.con_write:
            for l in work[:wper]: A(l)
            work = work[wper:]
        if i == c.ca_load:
            for l in caload: A(l)
        if i == 13:
            assert not work
            A("s_waitcnt vmcnt(0) lgkmcnt(0)")
    Q.bar()
    A(f"ds_read_b128 {v(CN+4,4)}, v{vCR+1}")
    for l in preads(1, 0): A(l)
    A("s_waitcnt lgkmcnt(8)")
    for l in mkmb + preads(1, 1): A(l)
    for l in corr(True): A(l)
    A(f"s_setprio {c.prioB}")
    for s in range(1, 14):
        Q.bar(); pstep(1, s)
    Q.bar()
    A("s_waitcnt lgkmcnt(8)")
    for l in pmfma(26): A(l)
    A("s_waitcnt lgkmcnt(0)")
    Q.bar()
    for l in pmfma(27): A(l)
    for n in range(4):
        for l in epi(n >> 1, n & 1, n, True): A(l)
    Q.mark(0)
    A("s_setprio 0")
    if c.xe: A("s_barrier")
    signal(0)
    Q.mark(1)
    if c.pa_early: poll_issue(PA_, 512)
    signal(1)
    Q.mark(2)
    if not c.pa_early: poll_issue(PA_, 512)
    A("s_barrier")
    poll_wait(PA_, 512, True)
    poll_issue(PB_, 640)
    Q.mark(3)
    A("s_barrier")
    poll_wait(PB_, 640, True)
    Q.mark(4)
    A("s_barrier")
    Q.fin(5)
    A("s_waitcnt lgkmcnt(0)\ns_endpgm")
    A(f".p2align 3\n{auxt}:")
    PA.stamp(1)
    srd(A, 64, 30, XG_BYTES, WS_XG)
    A(f"""
    v_and_b32 v4, 15, v{vLane}
    v_lshrrev_b32 v5, 4, v{vLane}
    v_lshl_add_u32 v6, v4, 8, s46
    v_lshl_add_u32 v6, v5, 2, v6
    v_and_b32 v7, 7, v4
    v_lshl_add_u32 v6, v7, 4, v6
    v_lshlrev_b32 v9, 14, v5
    v_lshl_add_u32 v9, v4, 4, v9
    s_lshl_b32 s46, s36, 2
    s_add_u32 s46, s46, {TAGA}
    v_mov_b32 v2, s46
    """)
    for k in range(1, 8): A(f"v_xor_b32 v{80+k}, {16*k}, v6")
    A("s_waitcnt lgkmcnt(0)\ns_mul_i32 s57, s57, 0x9e3779b1\ns_add_u32 s57, s57, 0x7f4a7c15")
    for k in range(16): A(f"v_mov_b32 v{vXG+2*k+1}, s57")
    A(f"s_mov_b64 exec, 1\nds_write_b32 v2, v{vXG+1}\ns_mov_b64 exec, -1\ns_waitcnt vmcnt(0)")
    PA.stamp(2)
    for k in range(8):
        ad = 6 if k == 0 else 80 + k
        A(f"ds_read_b32 v{vXG+4*k}, v{ad}\nds_read_b32 v{vXG+4*k+2}, v{ad} offset:128")
    for k in range(8):
        A(f"s_waitcnt lgkmcnt({14-2*k})\nbuffer_store_dwordx4 {v(vXG+4*k,4)}, v9, s[64:67], s51 offen sc0 sc1")
        if k < 7: A(f"s_add_u32 s51, s51, {4*16384}")
    PA.stamp(3)
    A("s_setprio 0")
    if c.warm:
        A("s_cmp_eq_u32 s36, 1\ns_cbranch_scc1 Lwm1")
        for lab in ("Lmw", nw, odd): A(f"s_call_b64 s[96:97], {lab}w")
        A("s_branch Lwm2\nLwm1:")
        for k in range(1, 4): A(f"s_call_b64 s[96:97], Lpw{k}")
        A("Lwm2:")
    A("s_barrier")
    if c.warm:
        A("s_cmp_eq_u32 s36, 1\ns_cbranch_scc1 Lwm3")
        for k in range(4, c.npg + 1, 2): A(f"s_call_b64 s[96:97], Lpw{k}")
        A("s_branch Lwm4\nLwm3:")
        for k in range(5, c.npg + 1, 2): A(f"s_call_b64 s[96:97], Lpw{k}")
        A("Lwm4:")
    aW, aD, aH = 8, 12, 8
    sW, sD, eW, eD = 41, 42, 45, 46
    def daddr():
        A(ffn_ids)
        A(f"""
        v_lshrrev_b32 v6, 3, v{vLane}
        v_and_b32 v7, 7, v{vLane}
        v_and_b32 v5, 2, v6
        v_lshlrev_b32 v4, 1, v5
        v_xor_b32 v4, v4, v7
        v_mul_u32_u24 v3, 896, v6
        v_lshl_add_u32 v{aD}, v4, 4, v3
        v_add_u32 v{aD+1}, {1*(8*896-1024)}, v{aD}
        v_add_u32 v{aD+2}, {2*(8*896-1024)}, v{aD}
        v_add_u32 v{aD+3}, {3*(8*896-1024)}, v{aD}
        s_lshl_b32 s{eD}, s35, 7
        s_mul_i32 s32, s36, {32*896}
        s_add_u32 s{eD}, s{eD}, s32
        s_mul_i32 s{sD}, s33, {128*896}
        s_add_u32 s{sD}, s{sD}, s{eD}
        s_add_u32 s{eD}, s{eD}, {14*128*896}
        s_lshl_b32 s32, s36, 12
        v_lshl_add_u32 v16, v{vLane}, 4, s32
        v_add_u32 v17, 0x10000, v16
        v_add_u32 v18, 0x20000, v16
        """)
        srd(A, 60, 24, W_BYTES)
    def fifo_load(first, n, reg0):
        if c.x_nopre: return
        hf = 64 * 896 if first >= 14 else 0
        assert first >= 14 or first + n <= 14
        A(f"s_add_u32 s43, s{sD}, {hf + (first % 14)*128*896}\ns_add_u32 s44, s{eD}, {hf}")
        for b in range(n):
            A(f"s_cmp_ge_u32 s43, s44\ns_cselect_b32 s34, {14*128*896}, 0\ns_sub_u32 s43, s43, s34")
            for i in range(4): A(f"buffer_load_dwordx4 {v(reg0+16*b+4*i,4)}, v{aD+i}, s[60:63], s43 offen offset:{1024*i}")
            A(f"s_add_u32 s43, s43, {128*896}")
            if c.fdepth is not None: A(f"s_waitcnt vmcnt({c.fdepth})")
    def fifo_put(first, n, reg0):
        for b in range(n):
            sl = slot[("D", first + b)]
            for i in range(4): A(f"ds_write_b128 v{16+sl//8}, {v(reg0+16*b+4*i,4)} offset:{(sl%8)*BLK+1024*i}")
    daddr()
    A(f"""
    v_xor_b32 v4, v5, v7
    s_lshl_b32 s43, s36, 2
    v_xor_b32 v4, s43, v4
    v_mul_u32_u24 v3, 3584, v6
    v_lshl_add_u32 v{aW}, v4, 4, v3
    v_add_u32 v{aW+1}, {1*(8*3584-1024)}, v{aW}
    v_add_u32 v{aW+2}, {2*(8*3584-1024)}, v{aW}
    v_add_u32 v{aW+3}, {3*(8*3584-1024)}, v{aW}
    s_lshl_b32 s{eW}, s38, 8
    s_mul_i32 s{sW}, s38, {32*3584}
    s_add_u32 s{sW}, s{sW}, s{eW}
    s_add_u32 s{eW}, s{eW}, {14*32*3584}
    s_cmp_eq_u32 s36, 0
    s_cselect_b32 s20, s20, s22
    s_cselect_b32 s21, s21, s23
    """)
    srd(A, 52, 20, W_BYTES)
    A(f"""
    v_mov_b32 v20, 0
    v_mov_b32 v21, 0
    v_lshrrev_b32 v4, 4, v{vLane}
    v_mul_u32_u24 v4, {KP}, v4
    v_and_b32 v5, 15, v{vLane}
    v_lshl_add_u32 v4, v5, 2, v4
    s_lshl_b32 s43, s36, 15
    v_add_u32 v4, s43, v4
    s_mul_i32 s43, s36, {UPITCH}
    s_add_u32 s43, s43, {UO}
    v_lshl_add_u32 v3, v{vLane}, 3, s43
    """)
    if c.lf_at == 'A': fifo_load(14, 6, 24)
    A(f"s_barrier\nds_write_b32 v4, v20 offset:{KB0}\nds_write_b64 v3, v[20:21]")
    if c.lf_at == 'B': fifo_load(14, 6, 24)
    A("s_waitcnt lgkmcnt(0)\ns_barrier")
    def dma(kind, idx, i):
        if kind == "F":
            if i == 0:
                if idx == 14: A(f"s_add_u32 s43, s{sD}, {64*896}\ns_add_u32 s44, s{eD}, {64*896}")
                A(f"s_cmp_ge_u32 s43, s44\ns_cselect_b32 s35, {14*128*896}, 0\ns_sub_u32 s43, s43, s35")
            A(f"buffer_load_dwordx4 {v(24+16*(idx-14)+4*i,4)}, v{aD+i}, s[60:63], s43 offen offset:{1024*i}")
            if i == 3: A(f"s_add_u32 s43, s43, {128*896}")
            return
        base_ = slot[(kind, idx)] * BLK
        a0, r0, s, e, step = {"W": (aW, 52, sW, eW, 32*3584), "D": (aD, 60, sD, eD, 128*896), "H": (4, 48, 40, 47, 32*4096)}[kind]
        if i == 0:
            if idx == 14:
                A(f"s_add_u32 s{s}, s{s}, 128\ns_add_u32 s{e}, s{e}, 128")
            A(f"s_add_u32 m0, s32, {base_}\ns_add_u32 s33, s{s}, {step}")
        A(f"buffer_load_dwordx4 v{a0+i}, s[{r0}:{r0+3}], s{s} offen offset:{1024*i}{' sc1' if kind == 'H' else ''} lds")
        if i == 0: A(f"s_cmp_ge_u32 s33, s{e}\ns_cselect_b32 s34, {14*step}, 0")
        if i == 3: A(f"s_sub_u32 s{s}, s33, s34")
    if c.x_quietL: A('s_sleep 60')
    for x in issue[-2]: dma(*x)
    assert c.lf_at == 'C'
    fifo_load(14, 6, 24)
    A(f"""
    v_lshrrev_b32 v2, 4, v{vLane}
    v_and_b32 v3, 15, v{vLane}
    v_lshlrev_b32 v4, 2, v2
    v_xor_b32 v4, v4, v3
    v_lshlrev_b32 v4, 4, v4
    v_lshl_add_u32 v4, v2, 12, v4
    v_add_u32 v5, {1*(4*4096-1024)}, v4
    v_add_u32 v6, {2*(4*4096-1024)}, v4
    v_add_u32 v7, {3*(4*4096-1024)}, v4
    s_lshl_b32 s47, s39, 8
    s_lshl_b32 s43, s36, 16
    s_add_u32 s47, s47, s43
    s_add_u32 s40, s38, {c.h0}
    s_cmp_ge_u32 s40, 14
    s_cselect_b32 s43, 14, 0
    s_sub_u32 s40, s40, s43
    s_lshl_b32 s40, s40, 17
    s_add_u32 s40, s40, s47
    s_add_u32 s47, s47, {14*32*4096}
    """)
    srd(A, 48, 30, X_BYTES, WS_HT)
    PA.stamp(4)
    A("s_barrier\ns_barrier")
    for x in issue[-1]: dma(*x)
    if c.nlf > 6: fifo_load(20 - c.nlf, c.nlf - 6, 120)
    A(f"s_waitcnt vmcnt({len(issue[-1]) + 4 * (c.nlf - 6)})\ns_barrier")
    for i in range(0, 29):
        for x in issue[i]: dma(*x)
        if i == 3: A(f"s_waitcnt vmcnt({sum(len(issue[k]) for k in range(4))})")
        if wait[i] is not None: A(f"s_waitcnt vmcnt({min(63, wait[i])})")
        A("s_barrier")
    if c.nlf > 6: fifo_put(20 - c.nlf, c.nlf - 6, 120)
    if c.xe:
        A("s_barrier")
        fifo_put(14, 3, 24)
        A("s_barrier")
        fifo_put(17, 3, 72)
    else:
        assert c.yb_at <= 26
        fifo_put(14, c.put_0, 24)
        A(f"s_waitcnt lgkmcnt({min(15, 4 * c.put_0)})\ns_barrier")
        fifo_put(14 + c.put_0, c.put_l, 24 + 16 * c.put_0)
        A("s_barrier")
        fifo_put(14 + c.put_0 + c.put_l, 6 - c.put_0 - c.put_l, 24 + 16 * (c.put_0 + c.put_l))
    A("s_waitcnt lgkmcnt(0)")
    if c.phase == 1: Prof(A, 3).flush(5)
    A("s_endpgm")
    A(f".p2align 3\n{auxs}:")
    PA.stamp(1)
    a0 = 90
    A(f"s_mov_b32 s42, 0x3f803f80\nv_and_b32 v4, 56, v{vLane}\ns_lshl_b32 s46, s47, 6\nv_add_u32 v4, s46, v4\nv_mov_b32 v2, {TAGA}")
    A("s_waitcnt lgkmcnt(0)\ns_mul_i32 s57, s56, 0x9e3779b1\ns_add_u32 s57, s57, 0x7f4a7c15\ns_mov_b32 s45, 0")
    for i in range(28):
        z = i < 2
        if i % 4 == 0: A(f"s_waitcnt vmcnt({6-i//4})")
        if i == 4: PA.stamp(2)
        if i == 24: A("ds_read_b64 v[6:7], v2")
        A(f"v_dot2_f32_bf16 v{a0+(i&1)}, v{vRow+i}, s42, {'0' if z else 'v%d' % (a0+(i&1))}")
        A(f"v_dot2_f32_bf16 v{a0+2+(i&1)}, v{vRow+i}, v{vRow+i}, {'0' if z else 'v%d' % (a0+2+(i&1))}")
    A(f"v_add_f32 v{a0}, v{a0}, v{a0+1}\nv_add_f32 v{a0+2}, v{a0+2}, v{a0+3}")
    for op in ("quad_perm:[1,0,3,2]", "quad_perm:[2,3,0,1]", "row_half_mirror"):
        A(f"v_add_f32_dpp v{a0}, v{a0}, v{a0} {op}{DPP}\nv_add_f32_dpp v{a0+2}, v{a0+2}, v{a0+2} {op}{DPP}")
    A(f"""
    v_mul_f32 v{a0}, {f32(1.0/448)}, v{a0}
    v_mul_f32 v{a0+2}, {f32(1.0/448)}, v{a0+2}
    v_fma_f32 v{a0+2}, -v{a0}, v{a0}, v{a0+2}
    v_max_f32 v{a0+2}, 0, v{a0+2}
    v_cvt_pk_bf16_f32 v{a0+2}, v{a0+2}, v{a0+2}
    v_and_b32 v{a0+2}, s43, v{a0+2}
    v_add_f32 v{a0+2}, {f32(1e-5)}, v{a0+2}
    v_cvt_pk_bf16_f32 v{a0+2}, v{a0+2}, v{a0+2}
    v_and_b32 v{a0+2}, s43, v{a0+2}
    v_sqrt_f32 v{a0+2}, v{a0+2}
    v_mov_b32 v{a0+1}, s57
    v_cvt_pk_bf16_f32 v{a0}, v{a0}, v{a0+2}
    Ltg:
    s_waitcnt lgkmcnt(0)
    v_xor_b32 v6, s57, v6
    v_xor_b32 v7, s57, v7
    v_or_b32 v6, v6, v7
    v_cmp_ne_u32 vcc, 0, v6
    s_cbranch_vccz Ltg2
    ds_read_b64 v[6:7], v2
    s_add_u32 s45, s45, 1
    s_cmp_lt_u32 s45, {SPIN}
    s_cbranch_scc1 Ltg
    Ltg2:
    s_mov_b32 exec_lo, 0x01010101
    s_mov_b32 exec_hi, 0x01010101
    global_store_dwordx2 v4, {v(a0,2)}, s[30:31] sc0 sc1
    s_mov_b64 exec, -1
    """)
    PA.stamp(3)
    if base.PROF and c.phase == 1:
        A(f"s_branch {hold}x\n{hold}:")
        for k in (1, 2, 3): PA.stamp(k)
        A(f"{hold}x:")
    else: A(f"{hold}:")
    A(f"""
    v_mov_b32 v20, -1
    v_mov_b32 v21, -1
    v_mov_b32 v22, -1
    v_mov_b32 v23, -1
    v_mov_b32 v24, 0
    v_mov_b32 v25, 0
    s_lshl_b32 s43, s2, 13
    s_add_u32 s43, s43, {WS_HT}
    s_lshl_b32 s44, s36, 12
    s_add_u32 s43, s43, s44
    v_lshl_add_u32 v2, v{vLane}, 4, s43
    s_lshl_b32 s43, s2, 1
    s_add_u32 s43, s43, s36
    s_lshl_b32 s44, s43, 9
    s_add_u32 s44, s44, {WS_PS}
    v_lshl_add_u32 v3, v{vLane}, 3, s44
    s_and_b32 s44, s43, 255
    s_lshl_b32 s44, s44, 7
    s_add_u32 s44, s44, {WS_FLAGS}
    v_mov_b32 v4, s44
    s_lshl_b32 s44, s43, 2
    s_add_u32 s44, s44, {WS_PZ}
    v_mov_b32 v26, s44
    s_waitcnt lgkmcnt(0)
    s_mul_i32 s57, s56, 0x9e3779b1
    s_add_u32 s57, s57, 0x7f4a7c15
    v_mov_b32 v27, s57
    """)
    def poison():
        for k in range(4): A(f"global_store_dwordx4 v2, v[20:23], s[30:31] offset:{1024*k} sc0 sc1")
        A("global_store_dwordx2 v3, v[24:25], s[30:31] sc0 sc1\ns_mov_b64 exec, 1\nglobal_store_dword v4, v24, s[30:31] sc0 sc1\ns_mov_b64 exec, -1")
    def post(): A("s_waitcnt vmcnt(0)\ns_mov_b64 exec, 1\nglobal_store_dword v26, v27, s[30:31] sc0 sc1\ns_mov_b64 exec, -1")
    assert c.poi_at == '0'
    poison()
    A("s_setprio 0\ns_barrier")
    daddr()
    sH, eH, sV = 40, 41, 47
    VR = 20
    A(f"""
    v_lshrrev_b32 v6, 4, v{vLane}
    v_and_b32 v7, 15, v{vLane}
    v_lshlrev_b32 v5, 2, v6
    v_xor_b32 v5, v5, v7
    v_lshlrev_b32 v5, 4, v5
    v_lshl_add_u32 v{aH}, v6, 12, v5
    v_add_u32 v{aH+1}, {1*(4*4096-1024)}, v{aH}
    v_add_u32 v{aH+2}, {2*(4*4096-1024)}, v{aH}
    v_add_u32 v{aH+3}, {3*(4*4096-1024)}, v{aH}
    s_lshl_b32 s{eH}, s39, 8
    s_lshl_b32 s43, s36, 16
    s_add_u32 s{eH}, s{eH}, s43
    s_lshl_b32 s{sH}, s38, 17
    s_add_u32 s{sH}, s{sH}, s{eH}
    s_add_u32 s{eH}, s{eH}, {14*32*4096}
    s_mov_b32 s{sV}, s{sH}
    """)
    srd(A, 48, 30, X_BYTES, WS_HT)
    if c.poi_at == '0': post()
    if c.poi_at == 'A': poison()
    A("s_barrier")
    if c.poi_at == 'A': post()
    if c.poi_at == 'B': poison()
    if c.hf_at == 'B':
        assert c.poi_at != 'B'
        fifo_load(20, 3, 40)
    A("s_barrier")
    if c.poi_at == 'B': post()
    if c.x_quietL: A('s_sleep 60')
    if c.hf_at == 'B': fifo_load(23, 5, 88)
    else: fifo_load(20, 8, 40)
    PA.stamp(4)
    A(f"s_barrier\ns_barrier\ns_setprio {c.hprio}")
    HS = 32 * 4096
    def hblock(s, m0expr):
        A(f"s_add_u32 m0, {m0expr}\ns_add_u32 s33, s{s}, {HS}")
        for i in range(4):
            A(f"buffer_load_dwordx4 v{aH+i}, s[48:51], s{s} offen offset:{1024*i} sc1 lds")
            if i == 0: A(f"s_cmp_ge_u32 s33, s{eH}\ns_cselect_b32 s34, {14*HS}, 0")
        A(f"s_sub_u32 s{s}, s33, s34")
    nH = [0]
    def hissue(k):
        for _ in range(k):
            if nH[0] < 14:
                hblock(sH, f"s32, {slot[('H', nH[0])]*BLK}"); nH[0] += 1
    def vread(b):
        if b < nH[0]: A(f"s_waitcnt vmcnt({4*(nH[0]-1-b)})")
        for i in range(4): A(f"ds_read_b128 {v(VR+4*i,4)}, v{16+b//8} offset:{(slot[('H', b)]%8)*BLK+1024*i}")
    def vcheck(b):
        ck = A.label("hv"); ok = A.label("hok"); rp = A.label("hrp")
        last = b + 1 if c.rep_one else max(nH[0], b + 1)
        if c.w8 and b < 12: last = min(last, 12)
        sb = slot[('H', b)]
        A(f"s_mov_b32 s45, 0\n{ck}:\ns_waitcnt lgkmcnt(0)\nv_max3_u32 v2, v{VR}, v{VR+1}, v{VR+2}\nv_max3_u32 v3, v{VR+3}, v{VR+4}, v{VR+5}")
        for i in range(3, 8): A(f"v_max3_u32 v{2+(i&1)}, v{2+(i&1)}, v{VR+2*i}, v{VR+2*i+1}")
        A(f"""
        v_max_u32 v2, v2, v3
        v_cmp_eq_u32 vcc, -1, v2
        {"s_cmp_eq_u32 s45, 0" if c.x_force else ""}
        {f"s_cbranch_scc1 {rp}f" if c.x_force else ""}
        s_cbranch_vccnz {rp}f
        """)
        cx = Cold(); cx.__enter__()
        A(f"""
        {rp}f:
        s_add_u32 s45, s45, 1
        s_cmp_ge_u32 s45, {SPIN}
        s_cbranch_scc1 {ok}
        s_mov_b32 s43, s{sV}
        s_add_u32 s44, s32, {sb*BLK}
        s_add_u32 s35, s32, {(sb+last-b)*BLK}
        {rp}:
        """)
        hblock(43, "s44, 0")
        A(f"s_add_u32 s44, s44, {BLK}\ns_cmp_lt_u32 s44, s35\ns_cbranch_scc1 {rp}\ns_waitcnt vmcnt({4*(last-1-b) if last == nH[0] else 0})")
        for i in range(4): A(f"ds_read_b128 {v(VR+4*i,4)}, v{16+b//8} offset:{(sb%8)*BLK+1024*i}")
        A(f"s_branch {ck}")
        cx.__exit__()
        A(f"{ok}:\ns_add_u32 s{sV}, s{sV}, {HS}\ns_cmp_ge_u32 s{sV}, s{eH}\ns_cselect_b32 s34, {14*HS}, 0\ns_sub_u32 s{sV}, s{sV}, s34")
    if c.probe:
        hissue(c.probe); vread(0); vcheck(0); hissue(c.h0 - c.probe); vread(1)
    else:
        hissue(c.h0); vread(0); vcheck(0); vread(1)
    A("s_barrier")
    hs = [0] * 14 if c.hl else list(c.hiss) + [1] * 14
    for i in range(0, 13):
        vcheck(i + 1)
        k = hs.pop(0)
        assert i >= 3 or nH[0] + k <= 12
        if i + 2 < 14:
            if nH[0] - (i + 2) < c.hnear: hissue(k); k = 0
            vread(i + 2)
        hissue(k)
        A("s_barrier")
    assert nH[0] == 14 or c.hl
    lp = A.label("hb")
    A(f"s_setprio 0\ns_mov_b32 s45, {18 if c.xe else 17}\n{lp}:\ns_barrier\ns_sub_u32 s45, s45, 1\ns_cmp_lg_u32 s45, 0\ns_cbranch_scc1 {lp}")
    fifo_put(20, c.put_a, 40)
    A("s_barrier")
    fifo_put(20 + c.put_a, 8 - c.put_a, 40 + 16 * c.put_a)
    A("s_waitcnt lgkmcnt(0)")
    if c.phase == 1: Prof(A, 3).flush(5)
    A(f"{end}:\ns_endpgm")
    A.L.extend(cold)
    A(f".p2align 3\n{hlp}:")
    gen_helper(A, c, Prof(A, 4))
    def rnd(l):
        u = np.float32(max(l, 0)).view(np.uint32)
        u = (int(u) + 0x7FFF + ((int(u) >> 16) & 1)) & 0xFFFF0000
        return int(np.uint32(u).view(np.float32))
    ad = [[(rnd(8 * b - 3 + r) & 7) * TP + (rnd(8 * b - 3 + r) >> 3) * 4 for r in range(12)] for b in range(256)]
    A(f".p2align 7\n.type {tab},@object\n{tab}:")
    for b in range(256): A(".long " + ", ".join("0x%08x" % (ad[b][2*k] | ad[b][2*k+1] << 16) for k in range(4)))
    for b in range(256): A(".long " + ", ".join("0x%08x" % (ad[b][2*k] | ad[b][2*k+1] << 16) for k in range(4, 6)))
    A(f".size {tab}, {256*24}")
    return kernel_desc(name, 168, 102)
```

```python
import al
RET = "s[96:97]"
def fix(lines):
    out = []
    flat = []
    for l in lines: flat += l.split("\n")
    idx = [i for i, l in enumerate(flat) if l.startswith("    ") and l.strip() and not l.strip().startswith((".", ";"))]
    sz = dict(zip(idx, al.sizes([flat[i].split(";")[0].strip() for i in idx])))
    addr = None; k = 0; stubs = []
    data = False
    for i, l in enumerate(flat):
        s = l.strip()
        if s.startswith(".type") and "@object" in s: data = True
        if s.startswith(".p2align"):
            a = 1 << int(s.split()[1].rstrip(","))
            if a == 4096 and addr is None: addr = 0
            if addr is not None: addr = (addr + a - 1) // a * a
            out.append(l); continue
        if i in sz and addr is not None and not data:
            left = 4096 - addr % 4096
            if left < sz[i] + 4 and addr % 4096:
                k += 1
                out += [f"    s_branch Lpg{k}", ".p2align 12", f"Lpw{k}:", f"    s_setpc_b64 {RET}"]
                par = addr % 8
                addr = addr + left + 4
                if addr % 8 != par: out.append("    s_nop 0"); addr += 4
                out.append(f"Lpg{k}:")
                stubs.append(f"Lpw{k}")
            addr += sz[i]
        out.append(l)
    return out, stubs
```

```python
from fx import *
import f1_v2
variant("o", phase=2, mod=f1_v2)
variant("a", phase=2)
variant("b", phase=2, warm=False)
variant("a1", phase=1)
variant("b1", phase=1, warm=False)
variant("x", prof=False, x_force=True)
variant("n1", prof=False)
variant("n2", prof=False, warm=False)
variant("n3", prof=False, outflag="sc0 sc1")
variant("n4", prof=False, outflag="nt")
variant("n5", prof=False, nlf=6)
```

```python
from base import *
import base
from ka import load_ptrs, cmul, cexp
import numpy as np
WS_E = 0x4000
WS_PZ = 0x5000
WS_XG = 0xA00000
XG_BYTES = 224 * 16384
REG = 16384
TP, GP = 1056, 272
KP = 4160
KB0 = 8704
UO, UPITCH = 74240, 4608
PARO = 98304
XT = 140288
TAGA = XT + 8192
BLK = 8192
NSL = 20
CON = 19 * BLK
F_LDS = NSL * BLK
GK0 = -2.0 * LOG2E * 0.7978845608028654
GK1 = GK0 * 0.044715
SPIN = 1 << 18
HS = 16 * 16384

class Cfg:
    code_bytes = 49152
    prio_mid = 26
    poll_late = 0
    e1_first, e1_last = 15, 22
    e1_packed = False
    drain0 = (22, 26)
    pollA, chkA = 24, 27
    earlyT = (4, 1)
    poll0 = 28
    ya_at, yb_at = 18, 25
    put_a = 3
    pace1, pace2, pace = 2, 1, {}
    pa_early = False
    g_pre = 0
    tdepth, tdepth2 = 22, 16
    gate_ahead = {14: 14, 28: 4, 42: 12}
    pollT1 = (20, 28)
    capP = 8
    caps = {}
    gat_issue, gat_check = 7, 9
    con_write = 11
    il = 2
    stflag = 'sc0 sc1'
    prioB = 2
    h0 = 5
    hiss = (1, 2, 1, 1, 1, 1, 1)
    ca_load = 10
    cs_issue = 5
    hdepth = 1
    fdepth = None
    x_delay = 0
    x_force = False
    backoff = 0
    rep_one = False
    x_nocs = False
    sweepW = False
    sweepD = True
    hramp = 0
    xp_chk = False
    npk = True
    lfifo = (8, 14)
    hprio = 3
    pz_sleep = 4
    hnear = 3
    lf_at = 'C'
    hf_at = 'B'
    poi_at = '0'
    wide_h = True
    xp_at = 0
    gat_split = (3, 4)
    x_nogat = False
    cprio = 3
    nprio = 2
    auxprio = 3
    x_nopre = False
    emode = 0
    csort = True
    probe = 1
    x_quietN = False
    x_quietL = False
    cmin = 5
    cmerge = (0, 2, 4, 6)
    w8 = False
    nlf = 6
    outflag = ''
    hl = True
    x_pad = 0
    wsoff = 0
    hsleep = 0
    hwait = None
    x_nocp = False
    warm = False
    npg = 5
    stcost = 8
    xe = False
    x_cnt = False
    put_0, put_l = 6, 0
    x_fine = None
    phase = 1

def schedule(c):
    need = {("W", s): s for s in range(28)}
    last_use = {("W", s): s + 1 for s in range(28)}
    for t in range(28): last_use[("D", t)] = 1000
    hslot = [sl + (2 if c.w8 and sl >= 12 else 0) for sl in range(14)]
    w0 = 12 if c.w8 else 14
    free_at = {sl: (16 + sl if sl < w0 else -2 if sl >= 14 else -1) for sl in range(NSL)}
    slot = {("H", k): hslot[k] for k in range(14)}
    issue = {i: [] for i in range(-2, 29)}
    n = dict(W=0, D=0, H=c.h0 if c.hl else 14)
    for k in range(n["H"], 14): need[("H", k)] = k - 2; last_use[("H", k)] = 15 + k
    nd = 20 - c.nlf
    cur = None
    def pick(i):
        nW, nD = n["W"], n["D"]
        wf = [sl for sl in range(w0, NSL) if free_at[sl] <= i and (sl != 19 or i >= 15 or nW + 1 < c.con_write)]
        canH = n["H"] < 14 and i >= 0 and (not c.w8 or n["H"] < 12 or i >= n["H"] - 10)
        if canH and (n["H"] - 2 <= nW or not wf): return ("H", n["H"]), hslot[n["H"]]
        if nW < 28 and wf: return ("W", nW), wf[0]
        fr = [sl for sl in range(NSL) if free_at[sl] <= i and (sl < w0 or nW == 28)]
        if fr and nD < nd: return ("D", nD), fr[0]
        return None
    for i in range(-2, 29):
        cap = 24 if i < 0 else c.caps.get(i, c.capP)
        while cap > 0:
            if cur is None:
                p = pick(i)
                if p is None: break
                b, sl = p
                slot[b] = sl; free_at[sl] = last_use[b] + 1; n[b[0]] += 1
                if c.w8 and b in (("W", 0), ("W", 1)): free_at[sl] = 28 + b[1]
                cur = [b, 0]
            issue[i].append((cur[0][0], cur[0][1], cur[1])); cur[1] += 1; cap -= 1
            if cur[1] == 4: cur = None
    assert n["D"] == nd and cur is None
    rest = sorted((sl for sl in range(NSL) if free_at[sl] < 1000), key=lambda sl: free_at[sl])
    assert len(rest) == c.nlf
    for k, sl in enumerate(rest): slot[("D", nd + k)] = sl
    for t in range(20, 28): slot[("D", t)] = slot[("D", t - 20)]
    if c.lf_at == 'P':
        for k, i in enumerate(range(*c.lfifo)): issue[i] += [("F", 14 + k, q) for q in range(4)]
    order = [b for i in range(0, 29) for b in issue[i]]
    pos = {b: k for k, b in enumerate(order)}
    wait = {}
    cnt = 0
    for i in range(0, 29):
        cnt += len(issue[i])
        req = [b for b in need if need[b] == i + 1 and b + (3,) in pos]
        wait[i] = None if not req else cnt - 1 - max(pos[b + (3,)] for b in req)
        if i == 28: wait[i] = 0
        assert wait[i] is None or wait[i] >= 0, (i, req)
    return issue, slot, wait

def gen_helper(A, c, P):
    sweep = A.label("Hsw")
    A(f"""
    s_sub_u32 s44, s2, 224
    s_lshr_b32 s45, s44, 3
    s_bfe_u32 s46, s44, 0x20001
    s_lshl_b32 s46, s46, 2
    s_add_u32 s46, s46, s45
    s_and_b32 s44, s44, 1
    s_waitcnt lgkmcnt(0)
    """)
    if c.hsleep: A(f"s_sleep {c.hsleep}")
    if c.hwait:
        off = {"st": 4, "pz": WS_PZ}[c.hwait]
        A(f"""
        s_cmp_lg_u32 s36, 0
        s_cbranch_scc1 Lhw2
        s_load_dword s56, s[30:31], {WS_E}
        s_sub_u32 s47, s2, 32
        s_lshl_b32 s47, s47, {6 if c.hwait == "st" else 3}
        s_add_u32 s47, s47, {off}
        v_mov_b32 v2, s47
        s_mov_b32 s47, 0
        s_waitcnt lgkmcnt(0)
        s_add_u32 s57, s56, 1
        s_and_b32 s57, s57, 0xffff
        s_or_b32 s57, s57, 0x7f810000
        Lhw1:
        s_sleep 8
        global_load_dword v3, v2, s[30:31] sc1
        s_add_u32 s47, s47, 1
        s_cmp_ge_u32 s47, 8
        s_cbranch_scc1 Lhw2
        s_waitcnt vmcnt(0)
        v_cmp_ne_u32 vcc, s57, v3
        s_cbranch_vccnz Lhw1
        Lhw2:
        s_waitcnt vmcnt(0)
        s_barrier
        """)
    A(f"""
    s_cmp_ge_u32 s46, 14
    s_cbranch_scc1 {sweep}
    v_and_b32 v1, 15, v0
    v_lshrrev_b32 v2, 4, v0
    v_mul_u32_u24 v2, 3584, v2
    v_lshl_add_u32 v2, v1, 4, v2
    s_cmp_ge_u32 s46, 7
    s_cselect_b32 s47, 7, 0
    s_cselect_b32 s48, s22, s20
    s_cselect_b32 s49, s23, s21
    s_sub_u32 s46, s46, s47
    s_mul_i32 s50, s44, 7
    s_add_u32 s46, s46, s50
    s_lshl_b32 s47, s47, 1
    s_add_u32 s52, s46, s47
    s_lshl_b32 s47, s46, 8
    s_mov_b32 s50, {W_BYTES}
    s_mov_b32 s51, 0x20000
    """)
    for p in range(14):
        A(f"buffer_load_dwordx4 {v(16+4*p,4)}, v2, s[48:51], s47 offen")
        if p < 13: A("s_add_u32 s47, s47, %d" % (32 * 3584))
        if p < c.hramp: A("s_waitcnt vmcnt(0)")
    A("s_mov_b32 s42, 0x00003f80\ns_mov_b32 s43, 0x3f800000")
    for p in range(14):
        A(f"s_waitcnt vmcnt({13-p})")
        for q in range(4):
            for hl in range(2):
                acc = 4 + 2 * q + hl
                A(f"v_dot2_f32_bf16 v{acc}, v{16+4*p+q}, s{42+hl}, {'0' if p == 0 else 'v%d' % acc}")
    for op in ("v_permlane16_swap_b32", "v_permlane32_swap_b32"):
        for q in range(8): A(f"v_mov_b32 v{16+q}, v{4+q}")
        for q in range(8): A(f"{op} v{4+q}, v{16+q}")
        for q in range(8): A(f"v_add_f32 v{4+q}, v{4+q}, v{16+q}")
    A(f"""
    v_lshrrev_b32 v2, 6, v0
    v_lshlrev_b32 v2, 9, v2
    v_lshl_add_u32 v2, v1, 5, v2
    s_mov_b64 exec, 0xffff
    ds_write_b128 v2, v[4:7]
    ds_write_b128 v2, v[8:11] offset:16
    s_mov_b64 exec, -1
    s_waitcnt lgkmcnt(0)
    s_barrier
    s_cmp_ge_u32 s36, 2
    s_cbranch_scc1 {sweep}
    v_lshlrev_b32 v1, 2, v0
    ds_read2st64_b32 v[4:5], v1 offset0:0 offset1:2
    ds_read2st64_b32 v[6:7], v1 offset0:4 offset1:6
    ds_read2st64_b32 v[8:9], v1 offset0:8 offset1:10
    ds_read2st64_b32 v[10:11], v1 offset0:12 offset1:14
    s_waitcnt lgkmcnt(0)
    v_pk_add_f32 v[4:5], v[4:5], v[6:7]
    v_pk_add_f32 v[8:9], v[8:9], v[10:11]
    v_pk_add_f32 v[4:5], v[4:5], v[8:9]
    v_add_f32 v4, v4, v5
    s_mov_b32 s43, 0xffff0000
    v_cvt_pk_bf16_f32 v5, v4, v4
    v_and_b32 v5, s43, v5
    v_sub_f32 v6, v4, v5
    v_cvt_pk_bf16_f32 v8, v5, v6
    v_and_b32 v7, s43, v8
    v_sub_f32 v6, v6, v7
    v_cvt_pk_bf16_f32 v9, v6, 0
    s_lshl_b32 s46, s52, 10
    s_add_u32 s46, s46, {WS_CS}
    v_lshl_add_u32 v1, v1, 1, s46
    global_store_dwordx2 v1, v[8:9], s[30:31] sc0 sc1
    s_mov_b32 s46, 1
    s_waitcnt vmcnt(0)
    s_atomic_add s46, s[28:29], 0
    {sweep}:
    """)
    P.stamp(1)
    done = A.label("Hdone")
    A(f"""
    s_cmp_ge_u32 s36, 7
    s_cbranch_scc1 {done}
    v_lshrrev_b32 v2, 3, v0
    v_mul_u32_u24 v2, 3584, v2
    v_and_b32 v3, 7, v0
    v_min_u32 v3, 6, v3
    v_lshl_add_u32 v2, v3, 8, v2
    s_mul_i32 s46, s45, {112*3584}
    s_mul_i32 s47, s44, 1792
    s_add_u32 s46, s46, s47
    v_add_u32 v2, s46, v2
    v_add_u32 v3, {56*3584}, v2
    s_mul_i32 s46, s45, {128*896}
    v_lshl_add_u32 v4, v0, 7, s46
    """)
    def wpass(h):
        for m in (20, 22):
            for r in (2, 3): A(f"global_load_dword v8, v{r}, s[{m}:{m+1}] offset:{128*h}\ns_waitcnt vmcnt({c.hdepth})")
    if c.sweepW: wpass(0); wpass(1)
    for k in range(4 if c.sweepD else 0):
        if k == 3: A(f"s_cmp_ge_u32 s45, 2\ns_cbranch_scc1 {done}")
        A(f"global_load_dword v8, v4, s[24:25]\nv_add_u32 v4, {4*128*896}, v4\ns_waitcnt vmcnt({c.hdepth})")
    A(f"{done}:\ns_waitcnt lgkmcnt(0)")
    P.flush(2)
    A("s_endpgm")

def gen(A, name, c=Cfg, verbose=False):
    issue, slot, wait = schedule(c)
    if verbose:
        for i in range(-2, 29): print(i, ' '.join(k + str(j) + '.' + str(q) for k, j, q in issue[i]), wait.get(i))
        print({k: x for k, x in slot.items() if k[0] == "D"})
    kernel_head(A, name)
    end = A.label("end"); hlp = A.label("hlp"); kw_ = A.label("kw"); nw = A.label("nw"); tab = A.label("tab")
    auxt = A.label("auxt"); auxs = A.label("auxs"); til = A.label("til"); hold = A.label("hold")
    P0 = Prof(A, 1)
    class PH:
        def __init__(s, ph, kid=1): s.on = c.phase == ph; s.P = Prof(A, kid)
        def stamp(s, i):
            if s.on: s.P.stamp(i)
    P = PH(1); PA = PH(1, 3)
    class Bars:
        def __init__(s, marks, n1, kid=1): s.n = 0; s.marks = c.x_fine or marks; s.on = c.phase == 2; s.n1 = n1; s.P = Prof(A, kid)
        def bar(s):
            A("s_barrier")
            if s.on and s.n in s.marks: s.P.stamp(1 + s.marks.index(s.n))
            s.n += 1
        def mark(s, k):
            if s.on and not c.x_fine: s.P.stamp(1 + len(s.marks) + k)
        def fin(s, k=0):
            if not s.on: s.P.flush(s.n1); return
            k = 0 if c.x_fine else k
            s.P.stamp(1 + len(s.marks) + k); s.P.flush(2 + len(s.marks) + k)
    cold = []
    class Cold:
        def __enter__(s): s.keep = A.L; A.L = []
        def __exit__(s, *a): cold.extend(A.L); A.L = s.keep
    wst = []
    def target(lab):
        wst.append(lab)
        A(f".p2align 6\n{lab}w:\ns_setpc_b64 s[96:97]\ns_nop 0\n{lab}:")
    A(f"s_cmp_ge_u32 s2, 256\ns_cbranch_scc1 {end}")
    P0.stamp(0)
    load_ptrs(A)
    A(f"s_getpc_b64 s[60:61]\nLpc:")
    vLane, vG, vJ = 1, 2, 3
    per = (c.code_bytes // 128 + 63) // 64
    vRow, vXG = 16, 48
    ffn_ids = """
    s_and_b32 s37, s2, 7
    s_lshr_b32 s38, s2, 3
    s_and_b32 s40, s38, 3
    s_lshr_b32 s39, s37, 1
    s_lshl_b32 s39, s39, 2
    s_add_u32 s39, s39, s40
    s_and_b32 s34, s37, 1
    s_lshr_b32 s35, s38, 2
    s_mul_i32 s38, s34, 7
    s_add_u32 s38, s38, s35
    s_mul_i32 s33, s40, 3
    s_lshl_b32 s37, s35, 1
    s_add_u32 s33, s33, s37
    s_cmp_ge_u32 s33, 14
    s_cselect_b32 s37, 14, 0
    s_sub_u32 s33, s33, s37
    """
    A(f"""
    v_lshrrev_b32 v4, 6, v0
    v_and_b32 v{vLane}, 63, v0
    s_and_b32 s37, s2, 7
    v_readfirstlane_b32 s36, v4
    s_mul_i32 s37, s37, 28
    s_lshr_b32 s38, s2, 3
    s_add_u32 s37, s37, s38
    s_mov_b32 s43, 0xffff0000
    s_cmp_lt_u32 s36, 8
    s_cbranch_scc1 {kw_}
    s_setprio {c.auxprio}
    v_lshrrev_b32 v5, 3, v{vLane}
    v_and_b32 v6, 7, v{vLane}
    v_mul_u32_u24 v7, 896, v5
    s_cmp_lt_u32 s36, 10
    s_cbranch_scc1 {til}
    s_and_b32 s36, s36, 1
    s_lshr_b32 s62, s2, 2
    s_and_b32 s62, s62, 62
    s_add_u32 s62, s62, s36
    s_mul_i32 s62, s62, {per*128}
    v_min_u32 v10, {per-1}, v{vLane}
    v_lshl_add_u32 v10, v10, 7, s62
    v_min_u32 v10, Lcode_end-Lpc-4, v10
    global_load_dword v99, v10, s[60:61]
    s_mul_i32 s46, s36, 28
    s_add_u32 s46, s46, s38
    s_cmp_ge_u32 s2, 224
    s_cbranch_scc1 {end}
    s_and_b32 s47, s2, 7
    s_lshl_b32 s47, s47, 5
    s_add_u32 s47, s47, s46
    s_mul_i32 s48, s47, {8*896}
    v_lshl_add_u32 v8, v6, 4, v7
    v_add_u32 v8, s48, v8
    s_cmp_ge_u32 s46, 32
    s_waitcnt lgkmcnt(0)
    s_cbranch_scc1 {hold}
    s_load_dword s56, s[30:31], {WS_E}
    """)
    for i in range(7): A(f"global_load_dwordx4 {v(vRow+4*i,4)}, v8, s[4:5] offset:{128*i}")
    A(f"""
    s_branch {auxs}
    {til}:
    s_cmp_ge_u32 s2, 224
    s_cbranch_scc1 {end}
    s_and_b32 s36, s36, 1
    s_mul_i32 s46, s37, 9363
    s_lshr_b32 s46, s46, 16
    s_mul_i32 s47, s46, 7
    s_sub_u32 s47, s37, s47
    s_lshl_b32 s46, s46, 1
    s_add_u32 s46, s46, s36
    s_mul_i32 s49, s46, {32*896}
    s_lshl_b32 s48, s47, 7
    s_add_u32 s49, s49, s48
    s_lshl_b32 s47, s47, 19
    s_lshl_b32 s46, s46, 8
    s_add_u32 s51, s47, s46
    s_lshl_b32 s46, s36, 12
    s_add_u32 s46, s46, {XT}
    s_mov_b32 m0, s46
    v_lshrrev_b32 v4, 1, v5
    v_xor_b32 v4, v4, v6
    v_lshl_add_u32 v12, v4, 4, v7
    v_xor_b32 v4, 4, v4
    v_lshl_add_u32 v13, v4, 4, v7
    v_add_u32 v13, {8*896-1024}, v13
    v_add_u32 v14, {16*896-2048}, v12
    v_add_u32 v15, {16*896-2048}, v13
    s_mov_b32 s34, {X_BYTES}
    s_mov_b32 s35, 0x20000
    s_waitcnt lgkmcnt(0)
    s_mov_b32 s32, s4
    s_mov_b32 s33, s5
    """)
    for i in range(4): A(f"buffer_load_dwordx4 v{12+i}, s[32:35], s49 offen offset:{1024*i} lds")
    A(f"s_load_dword s57, s[30:31], {WS_E}")
    A(f"s_branch {auxt}\n{kw_}:\ns_cmp_ge_u32 s2, 224\ns_cbranch_scc1 {hlp}")
    vP, vDT = 8, 12
    a2, b2 = 14, 15
    w1, w256, w2, w512 = 16, 18, 20, 22
    tA, tB, tC = 24, 26, 28
    G, G2, Hh, W4, HT, CV = 30, 46, 62, 68, 70, 78
    vTB, vA, vBc, vRA = 88, 94, 95, 96
    A(f"""
    v_mov_b32 v{vP}, 0
    v_mov_b32 v{vP+1}, 0
    v_mov_b32 v{vP+2}, 0
    v_mov_b32 v{vP+3}, 0
    s_lshl_b32 s48, s37, 10
    v_lshl_add_u32 v4, v0, 1, s48
    s_lshl_b32 s48, s37, 2
    s_lshl_b32 s56, s36, 14
    s_mov_b32 m0, s56
    s_lshr_b32 s38, s36, 2
    s_add_u32 s62, s60, {tab}-Lpc+2048
    s_addc_u32 s63, s61, 0
    s_waitcnt lgkmcnt(0)
    s_load_dword s52, s[14:15], s48
    global_load_short_d16_hi v{vP}, v4, s[6:7]
    global_load_short_d16_hi v{vP+1}, v4, s[8:9]
    global_load_short_d16_hi v{vP+2}, v4, s[10:11]
    global_load_short_d16_hi v{vP+3}, v4, s[12:13]
    s_load_dword s53, s[16:17], s48
    """)
    P.stamp(1)
    A(f"""
    v_bfe_u32 v{vG}, v0, 5, 1
    v_and_b32 v{vJ}, 31, v0
    s_lshl_b32 s46, s36, 15
    v_mul_u32_u24 v4, {GP}, v{vJ}
    v_lshl_add_u32 v4, v{vG}, 4, v4
    v_add_u32 v{vRA}, s46, v4
    s_bfe_u32 s39, s36, 0x10001
    s_and_b32 s40, s36, 1
    s_lshl_b32 s48, s39, 15
    s_lshl_b32 s47, s40, 8
    s_add_u32 s48, s48, s47
    s_add_u32 s48, s48, {KB0+64-24}
    v_and_b32 v4, 3, v0
    v_sub_u32 v4, 3, v4
    v_mul_u32_u24 v4, {KP}, v4
    v_bfe_u32 v5, v0, 2, 2
    v_lshl_add_u32 v4, v5, 3, v4
    v_bfe_u32 v5, v0, 4, 2
    v_lshl_add_u32 v4, v5, 4, v4
    v_add_u32 v{vA}, s48, v4
    s_mul_i32 s48, s39, {UPITCH}
    s_sub_u32 s48, s48, s47
    s_add_u32 s48, s48, {UO+512+16-192}
    v_and_b32 v4, 15, v0
    v_lshlrev_b32 v4, 5, v4
    v_lshlrev_b32 v5, 4, v5
    v_sub_u32 v4, v4, v5
    v_add_u32 v{vBc}, s48, v4
    s_add_u32 s64, s30, {WS_XG}
    s_addc_u32 s65, s31, 0
    s_mov_b32 s66, {XG_BYTES}
    s_mov_b32 s67, 0x20000
    s_and_b32 s47, s36, 3
    s_lshl_b32 s47, s47, 12
    v_lshl_add_u32 v97, v{vLane}, 4, s47
    s_lshl_b32 s44, s37, 14
    s_mov_b32 s54, {f32(8.0)}
    s_mov_b32 s55, {f32(256.0)}
    s_lshl_b32 s46, s38, 4
    v_mov_b32 v{vDT}, {f32(LOG2E)}
    s_cmp_lt_u32 s36, 4
    s_cbranch_scc1 Lnoprio
    s_setprio 1
    Lnoprio:
    s_waitcnt lgkmcnt(0)
    s_lshr_b32 s52, s52, s46
    s_lshl_b32 s52, s52, 16
    v_mul_f32 v{vDT}, s52, v{vDT}
    v_exp_f32 v{vDT}, v{vDT}
    v_cvt_pk_bf16_f32 v{vDT}, v{vDT}, v{vDT}
    v_and_b32 v{vDT}, s43, v{vDT}
    s_and_b32 s59, s53, s43
    s_lshl_b32 s58, s53, 16
    v_add_f32 v6, v{vDT}, v{vDT}
    """)
    P.stamp(2)
    A(f"""
    s_waitcnt vmcnt(2)
    v_mul_f32 v4, {f32(LOG2E)}, v{vP}
    v_exp_f32 v4, v4
    v_mul_f32 v{b2}, v{vP+1}, v{vDT}
    v_cvt_pk_bf16_f32 v4, v4, v4
    v_and_b32 v4, s43, v4
    v_mul_f32 v{a2}, v4, v{vDT}
    v_mul_f32 v{b2}, 0.15915494, v{b2}
    v_mul_f32 v{a2}, {f32(-LOG2E)}, v{a2}
    """)
    P.stamp(3)
    nb_ = [0]
    vPX, vPS_, vPA = 100, 116, 97
    xp = [f"buffer_load_dwordx4 {v(vPX+4*q,4)}, v{vPA}, s[64:67], s44 offen offset:{1024*q} sc1" for q in range(4)]
    xp += [f"global_load_dwordx4 {v(vPS_+4*q,4)}, v{vPA}, s[30:31] offset:{1024*q} sc1" for q in range(4)]
    def put(src, row, neg):
        r = CV + (nb_[0] & 7); nb_[0] += 1
        x = [f"v_cvt_pk_bf16_f32 v{r}, v{src}, {'-' if neg else ''}v{src+1}", f"ds_write_addtid_b32 v{r} offset:{row*GP}"]
        if nb_[0] == c.prio_mid: x[1] += "\ns_setprio 0"
        if nb_[0] == c.xp_at: x[1] += "\ns_cmp_lt_u32 s36, 4\ns_cbranch_scc1 Lnoxp\n" + "\n".join(xp) + "\nLnoxp:"
        return x
    def spread(puts, work):
        o = []
        while puts or work:
            p = puts.pop(0) if puts else None
            if p: o.append(p[0])
            if work: o += work.pop(0)
            if p: o.append(p[1])
        return o
    GR = 32
    for l in cexp(Hh, a2, b2, "s54", tA): A(l)
    A(f"v_mov_b32 v{CV+8}, 0x3f80\nds_write_addtid_b32 v{CV+8}")
    for l in cmul(Hh+2, Hh, Hh) + cmul(Hh+4, Hh+2, Hh) + cmul(W4, Hh+2, Hh+2): A(l)
    ex = merge(cexp(w1, a2, b2, None, tB), cexp(w256, a2, b2, "s55", tC))
    ex += ["s_waitcnt vmcnt(0)", f"v_mul_f32 v{G}, v{vP+2}, v6", f"v_mul_f32 v{G+1}, v{vP+3}, v6",
           "v_min_u32 v5, 255, v0\nv_lshlrev_b32 v6, 4, v5", "v_lshlrev_b32 v5, 3, v5",
           f"global_load_dwordx4 {v(vTB,4)}, v6, s[62:63] offset:-2048", f"global_load_dwordx2 {v(vTB+4,2)}, v5, s[62:63] offset:2048"]
    ex += cmul(w2, w1, w1) + cmul(G+2, G, w1) + cmul(w512, w256, w256)
    cur = [Hh, Hh+2, Hh+4, W4]; nxt = [HT, HT+2, HT+4, HT+6]; alt = [G2, G2+2, G2+4, G2+6]
    j = 1
    while j < 32:
        pend = [put(cur[r], j + r, False) for r in range(4) if j + r < 32]
        wk = [cmul(nxt[r], cur[r], W4) + [ex.pop(0) for _ in range(1) if ex] for r in range(4) if j + 4 + r < 32]
        if j + 4 >= 32: wk = [cmul(G+2*i, G+2*(i-2), w2) for i in range(2, 5)]
        for l in spread(pend, wk): A(l)
        cur, nxt = nxt, (alt if nxt[0] == HT else [HT, HT+2, HT+4, HT+6])
        j += 4
    assert not ex
    wk = [cmul(G+2*i, G+2*(i-2), w2) for i in range(5, 8)] + [cmul(G2+2*k, G+4*k, w256) for k in range(4)] + [cmul(G2+8, G, w512)]
    for l in spread([put(G+2*i, GR+i, True) for i in range(8)], wk): A(l)
    wk = [cmul(G2+10, G+8, w512), cmul(G2+12, G2, w512), cmul(G2+14, G2+4, w512), cmul(G, G2+8, w512), cmul(G+2, G2+12, w512), cmul(G+4, G, w512), cmul(G+6, G+2, w512), cmul(G+8, G+4, w512)]
    for l in spread([put(G2+2*i, GR+8+i, True) for i in range(8)], wk): A(l)
    for l in spread([put(G+2*i, GR+16+i, True) for i in range(5)], []): A(l)
    P.stamp(4)
    A(f"s_cmp_ge_u32 s36, 4\ns_cbranch_scc1 {nw}\ns_branch Lmw\n.p2align 12")
    target("Lmw")
    vACC, vEA, FR, TA_ = 8, 30, 100, 44
    tabprep = [f"s_lshl_b32 s46, s36, 15", f"v_lshl_add_u32 v4, v{vJ}, 2, s46", f"v_mul_u32_u24 v5, {4*TP}, v{vG}", "v_add_u32 v5, v5, v4", f"v_xor_b32 v7, 1, v{vG}"]
    tmin = []
    for b in range(4):
        o0 = 2 * b * TP + 128; o1 = 4 * (b & 1) * TP + 256 + 128 * (b >> 1)
        tabprep += [f"v_mul_u32_u24 v{TA_+b}, {abs(o1-o0)}, v{vG if o1 > o0 else 7}", f"v_add_u32 v{TA_+b}, v{TA_+b}, v4"]
        tmin.append(min(o0, o1))
    tabprep += [f"v_lshl_add_u32 v{TA_+4}, v{vG}, 9, v4", "s_waitcnt vmcnt(0)"]
    for r in range(11):
        tabprep += [f"v_and_b32 v{vEA+r}, 0xffff, v{vTB+(r>>1)}" if r % 2 == 0 else f"v_lshrrev_b32 v{vEA+r}, 16, v{vTB+(r>>1)}"]
    tabprep += ["v_cmp_ne_u32 s[44:45], 0, v0", f"v_lshlrev_b32 v6, 4, v0"]
    A("s_waitcnt lgkmcnt(0)\ns_barrier")
    P.stamp(5)
    def frd(n):
        b = FR + 8 * (n & 7); o = (n >> 3) * REG + 32 * (n & 7)
        return f"ds_read_b128 {v(b,4)}, v{vRA} offset:{GR*GP+o}\nds_read_b128 {v(b+4,4)}, v{vRA} offset:{o}"
    for n in range(6): A(frd(n))
    for n in range(16):
        b0 = FR + 8 * (n & 7)
        A(f"s_waitcnt lgkmcnt({2*min(5, 15-n)})\nv_mfma_f32_32x32x16_bf16 {v(vACC,16)}, {v(b0,4)}, {v(b0+4,4)}, {'0' if n == 0 else v(vACC,16)}")
        if n + 6 < 16: A(frd(n + 6))
        for l in tabprep[2*n:2*n+2]: A(l)
    assert len(tabprep) <= 32
    vW, vR, vO = 97, 98, 99
    A(f"""
    s_lshl_b32 s46, s36, 12
    s_add_u32 s46, s46, {PARO}
    v_lshl_add_u32 v{vW}, v{vLane}, 4, s46
    v_xor_b32 v{vR}, 0x1000, v{vW}
    s_lshl_b32 s46, s40, 10
    s_lshl_b32 s47, s39, 15
    s_add_u32 s47, s47, s46
    v_lshl_add_u32 v3, v{vLane}, 4, s47
    """)
    for b in range(4): A(f"ds_write_b32 v5, v{vACC+b} offset:{TP*b}")
    for b in range(4): A(f"ds_write_b32 v{TA_+b}, v{vACC+4+b} offset:{tmin[b]}")
    A(f"s_mov_b32 exec_hi, 1\nds_write_b32 v{TA_+4}, v{vACC+8} offset:512\ns_mov_b32 exec_hi, 0")
    for b in range(1, 4): A(f"ds_write_b32 v{TA_+4}, v{vACC+8+b} offset:{512+128*b}")
    A("s_mov_b32 exec_hi, -1\ns_waitcnt lgkmcnt(0)\ns_barrier")
    P.stamp(6)
    EV, CB = 100, 44
    for r in range(11): A(f"ds_read2st64_b32 {v(EV+2*r,2)}, v{vEA+r} offset0:0 offset1:128\nv_add_u32 v{vEA+r}, 0x10000, v{vEA+r}")
    for r in range(11): A(f"ds_read2st64_b32 {v(EV+22+2*r,2)}, v{vEA+r} offset0:0 offset1:128")
    for ch in range(2):
        E = EV + 22 * ch
        A(f"s_waitcnt lgkmcnt({11 if ch == 0 else 4})")
        for r in range(11): A(f"v_add_f32 v{E+2*r}, v{E+2*r}, v{E+2*r+1}")
        for r in range(3): A(f"v_cndmask_b32 v{E+2*r}, 0, v{E+2*r}, s[44:45]")
        for cp in range(4):
            b = CB + 16 * ch + 4 * cp
            for k in range(4):
                r0 = 3 - cp + 2 * k
                A(f"v_cvt_pk_bf16_f32 v{b+k}, v{E+2*r0}, v{E+2*r0+2}")
            A(f"ds_write_b128 v6, {v(b,4)} offset:{KB0+64+32768*ch+cp*KP}")
    P.stamp(7)
    A("s_waitcnt lgkmcnt(0)\ns_barrier")
    P.stamp(8)
    A(f"s_setprio {c.cprio}")
    AC = 8
    FBs = [40 + 8 * k for k in range(6)] + [100 + 8 * k for k in range(6)]
    def rd(Gi):
        r, n = Gi >> 3, Gi & 7
        b = FBs[Gi % 12]
        return [f"ds_read_b64 {v(b,2)}, v{vA} offset:{512*n+64*r}", f"ds_read_b64 {v(b+2,2)}, v{vA} offset:{512*n+64*r+8}",
                f"ds_read_b128 {v(b+4,4)}, v{vBc} offset:{512*n+64*(3-r)}"]
    def send(t): return f"s_mov_b64 exec, s[{48+2*(t&1)}:{49+2*(t&1)}]\nds_write_b128 v{vW}, {v(AC+4*t,4)} offset:{1024*(t>>1)}\ns_mov_b64 exec, -1"
    for Gi in range(4):
        for l in rd(Gi): A(l)
    A(f"""
    s_lshl_b32 s46, s37, 2
    s_add_u32 s46, s46, s39
    s_lshl_b32 s46, s46, 12
    s_lshl_b32 s47, s40, 9
    s_add_u32 s46, s46, s47
    s_add_u32 s46, s46, {WS_XG}
    v_and_b32 v4, 15, v0
    v_bfe_u32 v5, v0, 4, 2
    v_lshlrev_b32 v4, 5, v4
    v_lshrrev_b32 v6, 1, v5
    v_lshl_add_u32 v4, v6, 4, v4
    v_and_b32 v5, 1, v5
    v_lshl_add_u32 v4, v5, 10, v4
    v_add_u32 v{vO}, s46, v4
    """)
    started = set()
    def cm(r, a, b):
        t = a + b
        cc = v(AC + 4 * t, 4) if t in started else "0"
        started.add(t)
        return f"v_mfma_f32_16x16x32_bf16 {v(AC+4*t,4)}, {v(FBs[(8*r+a)%12],4)}, {v(FBs[(8*r+b)%12]+4,4)}, {cc}"
    def grp(n): return [(a, b) for a in range(n + 1) for b in range(n + 1) if max(a, b) == n and a + b <= 7]
    rq = []; nrd = 12; known = 0
    for Gi in range(28):
        r, n = Gi >> 3, Gi & 7
        rq += rd(Gi + 4)
        while nrd < 3 * (Gi + 1) + c.cmin: A(rq.pop(0)); nrd += 1
        if known < 3 * (Gi + 1):
            want = 3 * (Gi + 1)
            if n in c.cmerge and Gi > 3: want = min(want + 3, nrd - 3)
            A(f"s_waitcnt lgkmcnt({nrd - want})"); known = want
        for (a_, b_) in grp(n):
            A(cm(r, a_, b_))
            if rq: A(rq.pop(0)); nrd += 1
    for l in rq: A(l)
    PR, PP = 148, 116
    odd = A.label("odd"); jn = A.label("jn")
    A(f"s_cmp_eq_u32 s40, 1\ns_cbranch_scc1 {odd}")
    for par in range(2):
        if par:
            for _ in range(c.x_pad // 4): A("s_nop 0")
            target(odd)
        snd = [t for t in range(8) if t % 2 != par]
        def sw(t): return f"ds_write_b128 v{vW}, {v(AC+4*t,4)} offset:{1024*(t>>1)}"
        rest = [p for n in range(4, 8) for p in grp(n)]
        first = [p for p in rest if (p[0] + p[1]) % 2 != par]; last = [p for p in rest if (p[0] + p[1]) % 2 == par]
        A("s_waitcnt lgkmcnt(9)"); got = 4
        for k, p in enumerate(first):
            if max(p) > got: A(f"s_waitcnt lgkmcnt({2 if k > 3 else 3*(7-max(p)) + (1 if k > 1 else 0)})"); got = 7 if k > 3 else max(p)
            A(cm(3, *p))
            if k == 1: A(sw(snd[0]))
            if k == 3: A(sw(snd[1]))
        if got < 7: A("s_waitcnt lgkmcnt(2)")
        for k, p in enumerate(last):
            A(cm(3, *p))
            if k == 2: A(sw(snd[2]))
            if k == 7: A(sw(snd[3]))
        if par == 0: P.stamp(9)
        else: P.stamp(9)
        A("s_waitcnt lgkmcnt(0)\ns_barrier")
        for q in range(4): A(f"ds_read_b128 {v(PR+4*q,4)}, v{vR} offset:{1024*q}\nds_read_b128 {v(PP+4*q,4)}, v3 offset:{2048*q}")
        for q in range(4):
            A(f"s_waitcnt lgkmcnt({6-2*q})")
            k = AC + 4 * (2 * q + par)
            for h in range(2): A(f"v_pk_add_f32 {v(PR+4*q+2*h,2)}, {v(PR+4*q+2*h,2)}, {v(PP+4*q+2*h,2)}")
            for h in range(2): A(f"v_pk_add_f32 {v(PR+4*q+2*h,2)}, {v(PR+4*q+2*h,2)}, {v(k+2*h,2)}")
            o_ = 132 + 2 * q
            A(f"v_cvt_pk_bf16_f32 v{o_}, v{PR+4*q}, v{PR+4*q+1}\nv_cvt_pk_bf16_f32 v{o_+1}, v{PR+4*q+2}, v{PR+4*q+3}")
            if q & 1:
                A(f"v_permlane16_swap_b32 v{o_-2}, v{o_}\nv_permlane16_swap_b32 v{o_-1}, v{o_+1}")
                A(f"global_store_dwordx4 v{vO}, {v(o_-2,4)}, s[30:31] offset:{1024*(q-1)} sc0 sc1")
        if not par: A(f"s_branch {jn}")
    A(f"{jn}:")
    P.stamp(10)
    vB, vAa, vS, vCR, vCA = 8, 10, 12, 14, 16
    vX = 18
    CN, CA, MB = 24, 32, 38
    F = [48, 64, 80]
    ACC = 96
    T1, T2, OUT = 48, 56, 64
    def csetup():
        A(ffn_ids)
        A(f"""
        s_and_b32 s40, s36, 1
        s_bfe_u32 s41, s36, 0x10001
        s_lshr_b32 s49, s36, 2
        v_bfe_u32 v2, v{vLane}, 2, 2
        v_bfe_u32 v3, v{vLane}, 4, 1
        v_lshrrev_b32 v4, 5, v{vLane}
        v_and_b32 v6, 3, v{vLane}
        v_lshl_add_u32 v5, v4, 3, v2
        v_lshlrev_b32 v7, 8, v5
        v_lshl_add_u32 v7, v6, 3, v7
        v_lshl_add_u32 v7, v3, 5, v7
        s_lshl_b32 s42, s40, 1
        s_add_u32 s42, s42, s41
        v_xor_b32 v{vB}, s42, v2
        v_lshl_add_u32 v{vB}, v{vB}, 6, v7
        v_xor_b32 v{vB+1}, 64, v{vB}
        v_add_u32 v17, 0x10000, v{vB}
        v_add_u32 v46, 0x10000, v{vB+1}
        s_lshl_b32 s42, s34, 1
        s_add_u32 s42, s42, s40
        v_xor_b32 v{vX}, s42, v2
        v_lshl_add_u32 v{vX}, v{vX}, 6, v7
        v_lshlrev_b32 v7, 7, v5
        v_lshl_add_u32 v7, v6, 3, v7
        v_lshl_add_u32 v7, v3, 12, v7
        v_lshrrev_b32 v5, 1, v2
        v_lshl_add_u32 v5, v3, 1, v5
        s_lshl_b32 s42, s41, 1
        v_xor_b32 v5, s42, v5
        v_lshl_add_u32 v7, v5, 5, v7
        v_add_u32 v{vAa}, {12*BLK}, v7
        v_xor_b32 v{vAa+1}, 32, v{vAa}
        s_lshl_b32 s42, s39, 2
        s_lshl_b32 s43, s40, 1
        s_add_u32 s42, s42, s43
        s_add_u32 s43, s42, s41
        s_xor_b32 s44, s43, 1
        s_lshl_b32 s45, s38, 3
        s_lshl_b32 s46, s41, 1
        s_add_u32 s45, s45, s46
        s_lshl_b32 s46, s49, 2
        s_add_u32 s45, s45, s46
        s_lshl_b32 s46, s45, 7
        s_add_u32 s45, s45, {WS_ACT // 1024}
        s_mul_i32 s43, s43, 112
        s_mul_i32 s44, s44, 112
        s_add_u32 s43, s43, s45
        s_add_u32 s44, s44, s45
        s_lshl_b32 s43, s43, 10
        s_lshl_b32 s44, s44, 10
        v_lshl_add_u32 v{vS}, v{vLane}, 4, s43
        v_lshl_add_u32 v{vS+1}, v{vLane}, 4, s44
        v_and_b32 v5, 15, v{vLane}
        v_mul_u32_u24 v7, {F_*8}, v3
        v_lshl_add_u32 v5, v5, 3, v7
        s_add_u32 s46, s46, {WS_CS}
        v_add_u32 v{vCA}, s46, v5
        v_and_b32 v5, 31, v{vLane}
        s_lshl_b32 s42, s40, 1
        s_add_u32 s42, s42, s41
        s_lshl_b32 s43, s42, 9
        s_add_u32 s43, s43, {CON}
        v_lshl_add_u32 v{vCR}, v5, 4, s43
        v_xor_b32 v{vCR+1}, 512, v{vCR}
        s_lshl_b32 s43, s39, 11
        s_lshl_b32 s44, s41, 8
        s_add_u32 s43, s43, s44
        s_add_u32 s43, s43, {WS_FLAGS}
        s_lshl_b32 s44, s34, 10
        s_add_u32 s59, s43, s44
        s_lshl_b32 s44, s40, 10
        s_add_u32 s58, s43, s44
        s_lshl_b32 s44, s49, 9
        s_add_u32 s58, s58, s44
        v_mov_b32 v{CA+4}, 0
        v_mov_b32 v{CA+5}, 0
        v_mov_b32 v{MB+2}, 0
        v_mov_b32 v{MB+3}, 0
        v_mov_b32 v{MB+6}, 0
        v_mov_b32 v{MB+7}, 0
        v_cmp_eq_u32 s[52:53], 0, v4
        s_mov_b32 s47, 0x3f803f80
        s_mov_b32 s48, 0xffff0000
        """)
    caload = [f"global_load_dwordx2 {v(CA,2)}, v{vCA}, s[30:31] sc1", f"global_load_dwordx2 {v(CA+2,2)}, v{vCA}, s[30:31] offset:128 sc1"]
    def preads(p, j):
        s, ks = j >> 1, j & 1
        f = F[j % 3]
        ho = (slot[("H", s)] % 8) * BLK + 4096 * ks
        wo = (slot[("W", 14 * p + s)] - 12) * BLK + 2048 * ks
        o = []
        for kind, i in (("B", 0), ("A", 0), ("B", 1), ("A", 1)):
            ab = vB + i if s < 8 else (17, 46)[i]
            if kind == "B": o += [f"ds_read_b64_tr_b16 {v(f+8+4*i,2)}, v{ab} offset:{ho}", f"ds_read_b64_tr_b16 {v(f+10+4*i,2)}, v{ab} offset:{ho+1024}"]
            else: o += [f"ds_read_b64_tr_b16 {v(f+4*i,2)}, v{vAa+i} offset:{wo}", f"ds_read_b64_tr_b16 {v(f+2+4*i,2)}, v{vAa+i} offset:{wo+512}"]
        return o
    def pmfma(j, first=False):
        f = F[j % 3]
        return [f"v_mfma_f32_32x32x16_bf16 {v(ACC+32*t+16*rt,16)}, {v(f+4*t,4)}, {v(f+8+4*rt,4)}, {'0' if first else v(ACC+32*t+16*rt,16)}" for (t, rt) in ((0, 0), (0, 1), (1, 0), (1, 1))]
    def corr(first):
        return [f"v_mfma_f32_32x32x16_bf16 {v(ACC+32*t+16*rt,16)}, {v(CA+2*t,4)}, {v(MB+4*rt,4)}, {'0' if first else v(ACC+32*t+16*rt,16)}" for t in range(2) for rt in range(2)]
    mkmb = [f"v_cndmask_b32 v{MB+4*rt+k}, 0, v{CN+4*rt+3}, s[52:53]" for rt in range(2) for k in range(2)]
    def inter(m, r):
        per_ = (len(r) + 3) // 4
        for i in range(4):
            A(m[i])
            for l in r[per_*i:per_*(i+1)]: A(l)
    def pstep(p, s):
        for h in range(2):
            A("s_waitcnt lgkmcnt(8)")
            inter(pmfma(2*s - 2 + h, p == 0 and s == 1 and h == 0), preads(p, 2*s + h))
        if p == 0 and s - c.ca_load in (0, 1): A(caload[s - c.ca_load])
    def epi(t, rt, n, packed):
        a = ACC + 32 * t + 16 * rt
        cn = CN + 4 * rt
        o_ = OUT + 4 * (n & 1)
        L = []
        if packed:
            L += [f"v_pk_mul_f32 {v(T1+2*q,2)}, {v(a+2*q,2)}, {v(a+2*q,2)}" for q in range(4)]
            L += [f"v_pk_fma_f32 {v(T1+2*q,2)}, {v(T1+2*q,2)}, {v(cn,2)}, {v(cn,2)} op_sel:[0,1,0] op_sel_hi:[1,1,0]" for q in range(4)]
            L += [f"v_pk_mul_f32 {v(T1+2*q,2)}, {v(T1+2*q,2)}, {v(a+2*q,2)}" for q in range(4)]
            L += [f"v_exp_f32 v{T1+q}, v{T1+q}" for q in range(8)]
            L += [f"v_pk_mul_f32 {v(T2+2*q,2)}, {v(a+2*q,2)}, {v(a+8+2*q,2)}" for q in range(4)]
            L += [f"v_pk_fma_f32 {v(T1+2*q,2)}, {v(T1+2*q,2)}, {v(cn+2,2)}, {v(cn+2,2)} op_sel_hi:[1,0,0]" for q in range(4)]
            L += [f"v_rcp_f32 v{T1+q}, v{T1+q}" for q in range(8)]
            L += [f"v_pk_mul_f32 {v(T2+2*q,2)}, {v(T2+2*q,2)}, {v(T1+2*q,2)}" for q in range(4)]
            L += [f"v_cvt_pk_bf16_f32 v{o_+q}, v{T2+2*q}, v{T2+2*q+1}" for q in range(4)]
        else:
            def st(q):
                return [f"v_mul_f32 v{T1+q}, v{a+q}, v{a+q}", f"v_fma_f32 v{T1+q}, v{T1+q}, v{cn+1}, v{cn}", f"v_mul_f32 v{T1+q}, v{T1+q}, v{a+q}",
                        f"v_exp_f32 v{T1+q}, v{T1+q}", f"v_mul_f32 v{T2+q}, v{a+q}, v{a+8+q}", f"v_fma_f32 v{T1+q}, v{T1+q}, v{cn+2}, v{cn+2}",
                        f"v_rcp_f32 v{T1+q}, v{T1+q}", f"v_mul_f32 v{T2+q}, v{T2+q}, v{T1+q}"]
            for q0 in range(0, 8, c.il):
                xs = [st(q) for q in range(q0, q0 + c.il)]
                for k in range(8): L += [x[k] for x in xs]
                L += [f"v_cvt_pk_bf16_f32 v{o_+q//2}, v{T2+q}, v{T2+q+1}" for q in range(q0, q0 + c.il, 2)]
        L += [f"global_store_dwordx4 v{vS+rt}, {v(o_,4)}, s[30:31] offset:{1024*t} {c.stflag}"]
        return L
    def cost(l): return 2 if l.startswith(("v_exp", "v_rcp", "v_sqrt")) else c.stcost if l.startswith("global_store") else 1
    def signal(t, later=None):
        A(f"s_mov_b32 s70, 1\ns_waitcnt vmcnt({2-2*t if later is None else later})\ns_atomic_add s70, s[30:31], s58\ns_add_u32 s58, s58, 128")
    def poll_issue(r, off):
        A(f"s_mov_b32 s{r}, 0\ns_add_u32 s68, s59, {off}\ns_atomic_add s{r}, s[30:31], s68 glc")
    def poll_wait(r, off, inline=False):
        pl = A.label("poll"); ok = A.label("ok")
        if inline:
            A(f"s_mov_b32 s45, 0\n{pl}:\ns_waitcnt lgkmcnt(0)\ns_cmp_ge_u32 s{r}, 14\ns_cbranch_scc1 {ok}")
            poll_issue(r, off)
            A(f"s_add_u32 s45, s45, 1\ns_cmp_lt_u32 s45, {SPIN}\ns_cbranch_scc1 {pl}\ns_waitcnt lgkmcnt(0)\n{ok}:")
            return
        A(f"s_waitcnt lgkmcnt(0)\ns_cmp_lt_u32 s{r}, 14\ns_cbranch_scc1 {pl}\n{ok}:")
        with Cold():
            A(f"{pl}:\ns_mov_b32 s45, 0\n{pl}b:")
            poll_issue(r, off)
            A(f"s_add_u32 s45, s45, 1\ns_waitcnt lgkmcnt(0)\ns_cmp_ge_u32 s{r}, 14\ns_cbranch_scc1 {ok}\ns_cmp_lt_u32 s45, {SPIN}\ns_cbranch_scc1 {pl}b\ns_branch {ok}")
    PA_, PB_ = 69, 71
    Q = Bars([0, 14, c.drain0[1] + 1, 29], 13)
    AC2, ID, HF = 80, 160, 72
    csetup()
    if c.emode: A(f"s_waitcnt vmcnt(0)\ns_sleep {c.emode}")
    A("s_waitcnt vmcnt(0)\ns_barrier")
    P.stamp(11)
    A(f"""
    s_lshl_b32 s43, s35, 1
    s_add_u32 s43, s43, s41
    s_sub_u32 s43, s43, s38
    s_cselect_b32 s44, 14, 0
    s_add_u32 s43, s43, s44
    s_cmp_ge_u32 s43, 12
    s_cselect_b32 s44, {2 if c.w8 else 0}, 0
    s_add_u32 s43, s43, s44
    s_lshl_b32 s43, s43, 13
    v_add_u32 v{vX}, s43, v{vX}
    v_lshlrev_b32 v7, 3, v4
    v_sub_u32 v7, v5, v7
    v_mov_b32 v{vX+1}, 0x3f80
    v_mov_b32 v{vX+2}, 1.0
    """)
    for j in range(2):
        for i in range(4):
            d0 = 16 * j + 2 * i
            A(f"v_cmp_eq_u32 vcc, {d0}, v7\nv_cmp_eq_u32 s[50:51], {d0+1}, v7\nv_cndmask_b32 v{ID+4*j+i}, 0, v{vX+1}, vcc\nv_cndmask_b32 v{ID+4*j+i}, v{ID+4*j+i}, v{vX+2}, s[50:51]")
    A("s_setprio 2")
    Q.bar()
    P.stamp(12)
    for l in preads(0, 0) + preads(0, 1): A(l)
    for s in range(1, 14):
        Q.bar(); pstep(0, s)
    Q.bar()
    r = [f"ds_read_b128 {v(CN+4*i,4)}, v{vCR+i}" for i in range(2)] + [f"ds_read_b64_tr_b16 {v(HF+2*i,2)}, v{vX} offset:{4096*(i>>1)+1024*(i&1)}" for i in range(4)]
    A("s_waitcnt lgkmcnt(8)"); inter(pmfma(26), r)
    A("s_waitcnt vmcnt(0) lgkmcnt(4)"); inter(pmfma(27), mkmb)
    for l in corr(False): A(l)
    A("s_waitcnt lgkmcnt(0)")
    A("s_setprio 0")
    E1 = []
    for n in range(4): E1 += epi(n >> 1, n & 1, n, c.e1_packed)
    tot = sum(cost(x) for x in E1); per1 = tot / (c.e1_last - c.e1_first + 1); bud = 0.0
    vD, vT = 8, 14
    gsetup = f"""
    v_lshl_add_u32 v7, v4, 2, v2
    v_lshlrev_b32 v7, 7, v7
    v_lshrrev_b32 v{vD}, 1, v2
    v_xor_b32 v{vD}, s41, v{vD}
    v_lshl_add_u32 v7, v{vD}, 6, v7
    v_lshl_add_u32 v7, v3, 5, v7
    v_lshl_add_u32 v7, v6, 3, v7
    s_lshl_b32 s43, s41, 12
    v_add_u32 v{vD}, s43, v7
    v_xor_b32 v{vD+1}, 64, v{vD}
    v_add_u32 v{vD+2}, 0x10000, v{vD}
    v_add_u32 v{vD+3}, 0x10000, v{vD+1}
    v_lshlrev_b32 v{vT}, 4, v{vLane}
    """
    gsetup2 = f"""
    s_lshl_b32 s43, s39, 2
    s_lshl_b32 s44, s34, 1
    s_add_u32 s43, s43, s44
    s_add_u32 s43, s43, s40
    s_mul_i32 s55, s43, {112*1024}
    s_mul_i32 s43, s43, {32*896}
    s_lshl_b32 s44, s35, 7
    s_add_u32 s43, s43, s44
    s_lshl_b32 s44, s41, 6
    s_add_u32 s43, s43, s44
    v_mul_u32_u24 v5, 896, v5
    v_lshl_add_u32 v5, v4, 4, v5
    v_add_u32 v5, s43, v5
    s_lshl_b32 s44, s41, 11
    s_add_u32 s55, s55, s44
    s_lshl_b32 s54, s33, 13
    s_add_u32 s54, s54, s55
    s_add_u32 s55, s55, {14*8192}
    s_add_u32 s64, s30, {WS_ACT}
    s_addc_u32 s65, s31, 0
    s_mov_b32 s66, {ACT_BYTES}
    s_mov_b32 s67, 0x20000
    """
    TRQ = [96 + 4 * k for k in range(18)] + [16, 20, 24, 28]
    DB = [32, 40, 48, 56]
    AO = [AC2, 64]
    seq = [(14 * hf + b, j) for hf in range(2) for j in range(2) for b in range(14)]
    cons = [(b, j) for b in range(14) for j in range(2)] + seq[28:]
    freeq = list(TRQ); treg = {}
    def tload(n):
        b, j = seq[n]
        if (b, j) not in treg: treg[(b, j)] = freeq.pop(0)
        o = []
        if n == 28: o += ["s_add_u32 s54, s54, 4096", "s_add_u32 s55, s55, 4096"]
        o += [f"buffer_load_dwordx4 {v(treg[(b, j)],4)}, v{vT}, s[64:67], s54 offen offset:{1024*j} sc1"]
        o += ["s_add_u32 s54, s54, 8192", "s_cmp_ge_u32 s54, s55", f"s_cselect_b32 s57, {14*8192}, 0", "s_sub_u32 s54, s54, s57"]
        return o
    nst = 0; early = 0
    assert c.drain0[1] <= c.chkA and c.e1_last + 2 <= c.chkA and sum(c.earlyT) <= 14
    for i in range(15, 29):
        Q.bar()
        if i == c.drain0[0]:
            assert nst >= 2
            signal(0, nst - 2)
        if i >= c.e1_first:
            bud += per1
            while E1 and (bud > 0 or i == c.e1_last):
                x = E1.pop(0); A(x); bud -= cost(x)
                if x.startswith("global_store"): nst += 1
        if i == c.pollA: poll_issue(PA_, 0)
        if i == c.e1_last + 1: A(gsetup)
        if i == c.e1_last + 2: A(gsetup2)
        if i == c.chkA: A("s_waitcnt lgkmcnt(0)")
        if i == c.drain0[1]:
            signal(1)
            A(f"v_add_u32 v{vD+4}, 0x20000, v{vD}\nv_add_u32 v{vD+5}, 0x20000, v{vD+1}")
        if i == c.poll0: poll_issue(PB_, 128)
        if 0 <= i - c.chkA < len(c.earlyT):
            sk = A.label("et")
            A(f"s_cmp_lt_u32 s{PA_}, 14\ns_cbranch_scc1 {sk}")
            for _ in range(c.earlyT[i - c.chkA]):
                for l in tload(early): A(l)
                early += 1
            A(f"{sk}:")
    Q.bar()
    A(f"v_mfma_f32_32x32x16_bf16 {v(AC2,16)}, {v(ID,4)}, {v(HF,4)}, 0")
    A(f"v_mfma_f32_32x32x16_bf16 {v(AC2,16)}, {v(ID+4,4)}, {v(HF+4,4)}, {v(AC2,16)}")
    sk = A.label("et")
    A(f"s_cmp_lt_u32 s{PA_}, 14\ns_cbranch_scc1 {sk}c\n{sk}:")
    with Cold():
        A(f"{sk}c:")
        poll_wait(PA_, 0, True)
        for n in range(early):
            for l in tload(n): A(l)
        A(f"s_branch {sk}")
    def dreads(n):
        b, j = cons[n]
        sd = slot[("D", b)]; f = DB[n & 3]
        o = []
        for nt in range(2):
            do = (sd % 8) * BLK + 2048 * j
            ad = vD + 2 * (sd // 8) + nt
            o += [f"ds_read_b64_tr_b16 {v(f+4*nt,2)}, v{ad} offset:{do}", f"ds_read_b64_tr_b16 {v(f+4*nt+2,2)}, v{ad} offset:{do+1024}"]
        return o
    def gm(n):
        f = DB[n & 3]
        return [f"v_mfma_f32_32x32x16_bf16 {v(AO[nt],16)}, {v(f+4*nt,4)}, {v(treg[cons[n]],4)}, {'0' if (n == 0 and nt == 1) else v(AO[nt],16)}" for nt in (1, 0)]
    issued = early; mk = 0
    while issued < 14:
        for l in tload(issued): A(l)
        issued += 1
    poll_wait(PB_, 128, True)
    Q.mark(mk); mk += 1
    lim = 28
    for n in range(56):
        if n == 14: A("s_waitcnt lgkmcnt(0)\ns_barrier")
        for y in (c.ya_at, c.yb_at):
            if n == y:
                A("s_barrier")
                Q.mark(mk); mk += 1
                lim += 14
        k = 99 if n == 0 else c.pace.get(n, c.pace1 if n < 28 else c.pace2)
        while issued < lim and freeq and k > 0:
            for l in tload(issued): A(l)
            issued += 1; k -= 1
        assert seq.index(cons[n]) < issued
        if n == 0:
            for l in dreads(0) + dreads(1): A(l)
        if n == c.g_pre:
            if c.xe: A("s_barrier")
            Q.mark(mk); mk += 1
        r = dreads(n + 2) if n + 2 < 56 else []
        A(f"s_waitcnt vmcnt({issued-1-seq.index(cons[n])}) lgkmcnt({4 if n < 55 else 0})")
        if n in (28, 42): Q.mark(mk); mk += 1
        m = gm(n)
        for i in range(2):
            A(m[i])
            for l in r[2*i:2*i+2]: A(l)
        freeq.append(treg[cons[n]])
    assert 14 < c.ya_at <= 26 and c.ya_at <= c.yb_at <= 32 and c.yb_at >= 24
    while mk < 6: Q.mark(mk); mk += 1
    Q.mark(6)
    assert all(slot[("D", b)] not in (8, 9) for b in range(11, 28))
    A(f"""
    s_lshl_b32 s43, s36, 12
    s_add_u32 s43, s43, {8*BLK}
    v_lshl_add_u32 v2, v{vLane}, 4, s43
    v_xor_b32 v3, 0x2000, v2
    """)
    for q in range(4): A(f"ds_write_b128 v2, {v(AO[1]+4*q,4)} offset:{1024*q}")
    A("s_waitcnt lgkmcnt(0)\ns_barrier")
    for q in range(4): A(f"ds_read_b128 {v(32+4*q,4)}, v3 offset:{1024*q}")
    for hq in range(2):
        A(f"s_waitcnt lgkmcnt({2-2*hq})")
        for q in range(4*hq, 4*hq+4): A(f"v_pk_add_f32 {v(AC2+2*q,2)}, {v(AC2+2*q,2)}, {v(32+2*q,2)}")
        for q in range(4*hq, 4*hq+4): A(f"v_cvt_pk_bf16_f32 v{48+q}, v{AC2+2*q}, v{AC2+2*q+1}")
        A(f"v_permlane32_swap_b32 v{48+4*hq}, v{48+4*hq+2}\nv_permlane32_swap_b32 v{48+4*hq+1}, v{48+4*hq+3}")
        A(f"global_store_dwordx4 v5, {v(48+4*hq,4)}, s[26:27] offset:{32*hq} {c.outflag}")
    Q.fin(7)
    A("s_endpgm")
    target(nw)
    A(f"s_and_b32 s46, s36, 3\ns_mov_b32 s45, 0\nv_mov_b32 v11, {TAGA}")
    def xpoll():
        for l in xp: A(l)
    A("s_waitcnt lgkmcnt(0)\ns_barrier")
    P.stamp(5)
    A(f"""
    ds_read_b32 v11, v11
    s_lshl_b32 s47, s46, 10
    s_add_u32 s47, s47, {UO+512}
    v_xor_b32 v9, 3, v{vLane}
    v_lshl_add_u32 v9, v9, 2, s47
    s_lshl_b32 s47, s46, 11
    v_lshrrev_b32 v5, 3, v{vLane}
    v_lshl_add_u32 v5, v5, 4, s47
    v_bfe_u32 v6, v{vLane}, 1, 2
    v_lshl_add_u32 v5, v6, 8, v5
    v_and_b32 v6, 1, v{vLane}
    v_lshl_add_u32 v10, v6, 3, v5
    """)
    if not c.xp_at:
        if c.poll_late: A(f"s_sleep {c.poll_late}")
        xpoll()
    if not c.xp_chk:
        A(f"s_mov_b32 s45, 1\ns_barrier\ns_setprio {c.nprio}")
    pl = A.label("xp"); ok = A.label("xok"); nb1 = A.label("xnb")
    A(f"{pl}:\ns_waitcnt vmcnt(0) lgkmcnt(0)\nv_min3_u32 v4, v{vPX+1}, v{vPX+3}, v11\nv_max3_u32 v5, v{vPX+1}, v{vPX+3}, v11")
    for q in range(1, 8): A(f"v_min3_u32 v4, v4, v{vPX+4*q+1}, v{vPX+4*q+3}\nv_max3_u32 v5, v5, v{vPX+4*q+1}, v{vPX+4*q+3}")
    assert not c.xp_chk
    A(f"v_cmp_ne_u32 vcc, v4, v5\ns_cbranch_vccnz {pl}c\n{ok}:")
    with Cold():
        A(f"{pl}c:\ns_add_u32 s45, s45, 1\ns_cmp_gt_u32 s45, {SPIN}\ns_cbranch_scc1 {ok}")
        xpoll()
        A(f"s_branch {pl}")
    P.stamp(6)
    if c.x_cnt: A("s_waitcnt lgkmcnt(0)\ns_mul_i32 s74, s45, 100\ns_add_u32 s74, s74, s72")
    NU, PRE, UB = 16, 32, 48
    for half in range(2):
        st = []
        for r in range(4 * half, 4 * half + 4):
            S = vPS_ + 2 * r; X = vPX + 2 * r
            t = 60 + 4 * (r & 3)
            st.append([f"v_and_b32 v{t+2}, s43, v{S}", f"v_rcp_f32 v{t+2}, v{t+2}", f"v_lshlrev_b32 v{t}, 16, v{S}",
                  f"v_lshlrev_b32 v{PRE+2*r}, 16, v{X}", f"v_and_b32 v{PRE+2*r+1}, s43, v{X}",
                  f"v_pk_add_f32 {v(NU+2*r,2)}, {v(PRE+2*r,2)}, {v(t,2)} op_sel_hi:[1,0] neg_lo:[0,1] neg_hi:[0,1]" if c.npk else f"v_sub_f32 v{NU+2*r}, v{PRE+2*r}, v{t}\nv_sub_f32 v{NU+2*r+1}, v{PRE+2*r+1}, v{t}",
                  f"v_cvt_pk_bf16_f32 v{NU+2*r+1}, v{NU+2*r}, v{NU+2*r+1}",
                  f"v_lshlrev_b32 v{NU+2*r}, 16, v{NU+2*r+1}", f"v_and_b32 v{NU+2*r+1}, s43, v{NU+2*r+1}",
                  f"v_pk_mul_f32 {v(NU+2*r,2)}, {v(NU+2*r,2)}, {v(t+2,2)} op_sel_hi:[1,0]" if c.npk else f"v_mul_f32 v{NU+2*r}, v{NU+2*r}, v{t+2}\nv_mul_f32 v{NU+2*r+1}, v{NU+2*r+1}, v{t+2}"])
        for l in merge(*st): A(l)
        for ch in range(2):
            for k in (2 * half, 2 * half + 1): A(f"v_cvt_pk_bf16_f32 v{UB+4*ch+k}, v{NU+4*k+2+ch}, v{NU+4*k+ch}")
    P.stamp(7)
    for half in range(2):
        for ch in range(2):
            A(f"ds_write2st64_b32 v9, v{UB+4*ch+2*half}, v{UB+4*ch+2*half+1} offset0:{ch*UPITCH//256+2*half} offset1:{ch*UPITCH//256+2*half+1}")
    A("s_setprio 0\ns_waitcnt lgkmcnt(0)\ns_barrier")
    P.stamp(8)
    if c.x_quietN: A("s_sleep 60")
    PO = 60
    for ch in range(2):
        for k in range(4):
            A(f"v_lshlrev_b32 v4, 16, v{UB+4*ch+k}\nv_and_b32 v5, s43, v{UB+4*ch+k}")
            A(f"v_fma_f32 v{PO+8*ch+2*k+1}, v4, s{58+ch}, v{PRE+4*k+2+ch}\nv_fma_f32 v{PO+8*ch+2*k}, v5, s{58+ch}, v{PRE+4*k+ch}")
            A(f"ds_write_b64 v10, {v(PO+8*ch+2*k,2)} offset:{32768*ch+1024*(k>>1)+128*(k&1)}")
    A("v_mov_b32 v90, v11")
    csetup()
    Q = Bars([0, c.gat_check, c.gat_check + 1, 14, 28, 29], 10)
    ST, GA = 18, 96
    vPS, vGA = 22, 23
    A(f"""
    s_mul_i32 s43, s39, {14*1024}
    s_lshl_b32 s44, s42, 8
    s_add_u32 s43, s43, s44
    s_add_u32 s43, s43, {WS_PS}
    v_lshl_add_u32 v{vPS}, v5, 3, s43
    v_mul_u32_u24 v7, 7168, v4
    v_add3_u32 v{vGA}, v{vPS}, v7, 64
    v_add_u32 v{vGA}, {3072-64}, v{vGA}
    s_lshl_b32 s44, s38, 10
    v_add_u32 v{vPS}, s44, v{vPS}
    """)
    nb = A.label("nb"); pz = A.label("pz"); pzo = A.label("pzo")
    A(f"""
    s_cmp_lg_u32 s36, 4
    s_cbranch_scc1 {nb}
    v_min_u32 v47, 55, v{vLane}
    v_lshlrev_b32 v47, 5, v47
    v_add_u32 v47, {WS_PZ}, v47
    s_mov_b32 s45, 0
    {pz}:
    s_sleep {c.pz_sleep}
    global_load_dwordx4 v[48:51], v47, s[30:31] sc1
    global_load_dwordx4 v[52:55], v47, s[30:31] offset:16 sc1
    s_waitcnt vmcnt(0)
    v_min3_u32 v56, v48, v49, v90
    v_max3_u32 v57, v48, v49, v90
    v_min3_u32 v56, v50, v51, v56
    v_max3_u32 v57, v50, v51, v57
    v_min3_u32 v56, v52, v53, v56
    v_max3_u32 v57, v52, v53, v57
    v_min3_u32 v56, v54, v55, v56
    v_max3_u32 v57, v54, v55, v57
    v_cmp_ne_u32 vcc, v56, v57
    s_cbranch_vccz {pzo}
    s_add_u32 s45, s45, 1
    s_cmp_lt_u32 s45, {SPIN}
    s_cbranch_scc1 {pz}
    {pzo}:
    s_cmp_lg_u32 s2, 0
    s_cbranch_scc1 {nb}
    v_mov_b32 v47, {WS_E}
    s_mov_b64 exec, 1
    global_store_dword v47, v90, s[30:31]
    s_mov_b64 exec, -1
    {nb}:
    """)
    P.stamp(9)
    A("s_waitcnt lgkmcnt(0)\ns_barrier\ns_barrier")
    def gat(js=range(7)):
        for j in js: A(f"global_load_dwordx2 {v(GA+2*j,2)}, v{vGA}, s[30:31] offset:{1024*j-3072} sc1")
    S, Qv = GA, GA + 1
    work = [f"v_add_f32 v{GA+k}, v{GA+k}, v{GA+2*j+k}" for j in range(1, 7) for k in range(2)]
    work += [f"v_mov_b32 v{GA+2}, v{GA}", f"v_mov_b32 v{GA+3}, v{GA+1}", f"v_permlane32_swap_b32 v{GA}, v{GA+2}", f"v_permlane32_swap_b32 v{GA+1}, v{GA+3}",
             f"v_add_f32 v{GA}, v{GA}, v{GA+2}", f"v_add_f32 v{GA+1}, v{GA+1}, v{GA+3}"]
    work += [l.strip() for l in f"""
    v_mul_f32 v{S}, {f32(1.0/448)}, v{S}
    v_mul_f32 v{Qv}, {f32(1.0/448)}, v{Qv}
    v_fma_f32 v{Qv}, -v{S}, v{S}, v{Qv}
    v_max_f32 v{Qv}, 0, v{Qv}
    v_cvt_pk_bf16_f32 v{CN+3}, -v{S}, -v{S}
    v_cvt_pk_bf16_f32 v{Qv}, v{Qv}, v{Qv}
    v_and_b32 v{Qv}, s48, v{Qv}
    v_add_f32 v{Qv}, {f32(1e-5)}, v{Qv}
    v_cvt_pk_bf16_f32 v{Qv}, v{Qv}, v{Qv}
    v_and_b32 v{Qv}, s48, v{Qv}
    v_sqrt_f32 v{Qv}, v{Qv}
    v_cvt_pk_bf16_f32 v{Qv}, v{Qv}, v{Qv}
    v_and_b32 v{Qv}, s48, v{Qv}
    v_rcp_f32 v{S}, v{Qv}
    v_mul_f32 v{CN+2}, v{Qv}, v{Qv}
    v_mul_f32 v{CN}, {f32(GK0)}, v{S}
    v_mul_f32 v{CN+1}, v{S}, v{S}
    v_mul_f32 v{CN+1}, v{CN+1}, v{S}
    v_mul_f32 v{CN+1}, {f32(GK1)}, v{CN+1}
    ds_write_b128 v{vCR}, {v(CN,4)}
    """.strip().split("\n")]
    nwi = c.con_write - c.gat_check
    wper = (len(work) + nwi - 1) // nwi
    for i in range(14):
        Q.bar()
        if i == 0:
            for k in range(4): A(f"ds_read_b64_tr_b16 {v(F[0]+2*k,2)}, v{vB} offset:{4096*(k>>1)+1024*(k&1)}")
        if i == 1:
            A("s_waitcnt lgkmcnt(0)")
            for k in range(8):
                z = k < 2
                A(f"v_dot2_f32_bf16 v{ST+(k&1)}, v{F[0]+k}, s47, {'0' if z else 'v%d' % (ST+(k&1))}\nv_dot2_f32_bf16 v{ST+2+(k&1)}, v{F[0]+k}, v{F[0]+k}, {'0' if z else 'v%d' % (ST+2+(k&1))}")
        if i == 2:
            A(f"""
            v_add_f32 v{ST}, v{ST}, v{ST+1}
            v_add_f32 v{ST+1}, v{ST+2}, v{ST+3}
            v_mov_b32 v{ST+2}, v{ST}
            v_mov_b32 v{ST+3}, v{ST+1}
            v_permlane32_swap_b32 v{ST}, v{ST+2}
            v_permlane32_swap_b32 v{ST+1}, v{ST+3}
            v_add_f32 v{ST}, v{ST}, v{ST+2}
            v_add_f32 v{ST+1}, v{ST+1}, v{ST+3}
            v_or_b32 v{ST+1}, 1, v{ST+1}
            s_mov_b32 exec_hi, 0
            global_store_dwordx2 v{vPS}, {v(ST,2)}, s[30:31] sc0 sc1
            s_mov_b32 exec_hi, -1
            """)
        if i in (c.cs_issue, c.ca_load - 1):
            sk = A.label("css")
            A(f"s_cmp_lg_u32 s36, 4\ns_cbranch_scc1 {sk}")
            if i == c.cs_issue: A(f"global_load_dword v47, v{MB+2}, s[28:29] sc1")
            else:
                pl = A.label("cs")
                A(f"s_mov_b32 s45, 0\n{pl}:\ns_waitcnt vmcnt(0)\nv_cmp_gt_u32 vcc, 56, v47\ns_cbranch_vccz {sk}\ns_sleep 32\nglobal_load_dword v47, v{MB+2}, s[28:29] sc1\ns_add_u32 s45, s45, 1\ns_cmp_lt_u32 s45, {SPIN}\ns_cbranch_scc1 {pl}")
            A(f"{sk}:")
        k0 = i - (c.gat_issue - len(c.gat_split) + 1)
        if 0 <= k0 < len(c.gat_split) and not c.x_nogat: gat(range(sum(c.gat_split[:k0]), sum(c.gat_split[:k0+1])))
        if i == c.gat_check and not c.x_nogat:
            pl = A.label("gp"); ok = A.label("gok")
            A(f"s_mov_b32 s45, 0\n{pl}:\ns_waitcnt vmcnt(0)\nv_min3_u32 v7, v{GA+1}, v{GA+3}, v{GA+5}\nv_min3_u32 v7, v7, v{GA+7}, v{GA+9}\nv_min3_u32 v7, v7, v{GA+11}, v{GA+13}")
            A(f"v_cmp_eq_u32 vcc, 0, v7\ns_cbranch_vccnz {pl}c\n{ok}:")
            with Cold():
                A(f"{pl}c:\ns_add_u32 s45, s45, 1\ns_cmp_ge_u32 s45, {SPIN}\ns_cbranch_scc1 {ok}")
                gat()
                A(f"s_branch {pl}")
        if c.gat_check < i <= c.con_write:
            for l in work[:wper]: A(l)
            work = work[wper:]
        if i == c.ca_load:
            for l in caload: A(l)
        if i == 13:
            assert not work
            A("s_waitcnt vmcnt(0) lgkmcnt(0)")
    Q.bar()
    A(f"ds_read_b128 {v(CN+4,4)}, v{vCR+1}")
    for l in preads(1, 0): A(l)
    A("s_waitcnt lgkmcnt(8)")
    for l in mkmb + preads(1, 1): A(l)
    for l in corr(True): A(l)
    A(f"s_setprio {c.prioB}")
    for s in range(1, 14):
        Q.bar(); pstep(1, s)
    Q.bar()
    A("s_waitcnt lgkmcnt(8)")
    for l in pmfma(26): A(l)
    A("s_waitcnt lgkmcnt(0)")
    Q.bar()
    for l in pmfma(27): A(l)
    for n in range(4):
        for l in epi(n >> 1, n & 1, n, True): A(l)
    Q.mark(0)
    A("s_setprio 0")
    if c.xe: A("s_barrier")
    signal(0)
    Q.mark(1)
    if c.pa_early: poll_issue(PA_, 512)
    signal(1)
    Q.mark(2)
    if not c.pa_early: poll_issue(PA_, 512)
    A("s_barrier")
    poll_wait(PA_, 512, True)
    poll_issue(PB_, 640)
    Q.mark(3)
    A("s_barrier")
    poll_wait(PB_, 640, True)
    Q.mark(4)
    A("s_barrier")
    Q.fin(5)
    A("s_waitcnt lgkmcnt(0)\ns_endpgm")
    A(f".p2align 3\n{auxt}:")
    PA.stamp(1)
    srd(A, 64, 30, XG_BYTES, WS_XG)
    A(f"""
    v_and_b32 v4, 15, v{vLane}
    v_lshrrev_b32 v5, 4, v{vLane}
    v_lshl_add_u32 v6, v4, 8, s46
    v_lshl_add_u32 v6, v5, 2, v6
    v_and_b32 v7, 7, v4
    v_lshl_add_u32 v6, v7, 4, v6
    v_lshlrev_b32 v9, 14, v5
    v_lshl_add_u32 v9, v4, 4, v9
    s_lshl_b32 s46, s36, 2
    s_add_u32 s46, s46, {TAGA}
    v_mov_b32 v2, s46
    """)
    for k in range(1, 8): A(f"v_xor_b32 v{80+k}, {16*k}, v6")
    A("s_waitcnt lgkmcnt(0)\ns_add_u32 s57, s57, 1\ns_and_b32 s57, s57, 0xffff\ns_or_b32 s57, s57, 0x7f810000")
    for k in range(16): A(f"v_mov_b32 v{vXG+2*k+1}, s57")
    A(f"s_mov_b64 exec, 1\nds_write_b32 v2, v{vXG+1}\ns_mov_b64 exec, -1\ns_waitcnt vmcnt(0)")
    PA.stamp(2)
    for k in range(8):
        ad = 6 if k == 0 else 80 + k
        A(f"ds_read_b32 v{vXG+4*k}, v{ad}\nds_read_b32 v{vXG+4*k+2}, v{ad} offset:128")
    for k in range(8):
        A(f"s_waitcnt lgkmcnt({14-2*k})\nbuffer_store_dwordx4 {v(vXG+4*k,4)}, v9, s[64:67], s51 offen sc0 sc1")
        if k < 7: A(f"s_add_u32 s51, s51, {4*16384}")
    PA.stamp(3)
    A(f"""
    v_mov_b32 v24, 0
    v_mov_b32 v25, 0
    s_lshl_b32 s43, s2, 1
    s_add_u32 s43, s43, s36
    s_lshl_b32 s44, s43, 9
    s_add_u32 s44, s44, {WS_PS}
    v_lshl_add_u32 v3, v{vLane}, 3, s44
    global_store_dwordx2 v3, v[24:25], s[30:31] sc0 sc1
    s_and_b32 s44, s43, 255
    s_lshl_b32 s44, s44, 7
    s_add_u32 s44, s44, {WS_FLAGS}
    v_mov_b32 v4, s44
    s_mov_b64 exec, 1
    global_store_dword v4, v24, s[30:31] sc0 sc1
    s_mov_b64 exec, -1
    s_lshl_b32 s44, s43, 2
    s_add_u32 s44, s44, {WS_PZ}
    v_mov_b32 v22, s44
    v_mov_b32 v23, s57
    s_setprio 0
    """)
    if c.warm:
        A("s_cmp_eq_u32 s36, 1\ns_cbranch_scc1 Lwm1")
        for lab in ("Lmw", nw, odd): A(f"s_call_b64 s[96:97], {lab}w")
        A("s_branch Lwm2\nLwm1:")
        for k in range(1, 4): A(f"s_call_b64 s[96:97], Lpw{k}")
        A("Lwm2:")
    A("s_barrier")
    if c.warm:
        A("s_cmp_eq_u32 s36, 1\ns_cbranch_scc1 Lwm3")
        for k in range(4, c.npg + 1, 2): A(f"s_call_b64 s[96:97], Lpw{k}")
        A("s_branch Lwm4\nLwm3:")
        for k in range(5, c.npg + 1, 2): A(f"s_call_b64 s[96:97], Lpw{k}")
        A("Lwm4:")
    aW, aD, aH = 8, 12, 8
    sW, sD, eW, eD = 41, 42, 45, 46
    def daddr():
        A(ffn_ids)
        A(f"""
        v_lshrrev_b32 v6, 3, v{vLane}
        v_and_b32 v7, 7, v{vLane}
        v_and_b32 v5, 2, v6
        v_lshlrev_b32 v4, 1, v5
        v_xor_b32 v4, v4, v7
        v_mul_u32_u24 v3, 896, v6
        v_lshl_add_u32 v{aD}, v4, 4, v3
        v_add_u32 v{aD+1}, {1*(8*896-1024)}, v{aD}
        v_add_u32 v{aD+2}, {2*(8*896-1024)}, v{aD}
        v_add_u32 v{aD+3}, {3*(8*896-1024)}, v{aD}
        s_lshl_b32 s{eD}, s35, 7
        s_mul_i32 s32, s36, {32*896}
        s_add_u32 s{eD}, s{eD}, s32
        s_mul_i32 s{sD}, s33, {128*896}
        s_add_u32 s{sD}, s{sD}, s{eD}
        s_add_u32 s{eD}, s{eD}, {14*128*896}
        s_lshl_b32 s32, s36, 12
        v_lshl_add_u32 v16, v{vLane}, 4, s32
        v_add_u32 v17, 0x10000, v16
        v_add_u32 v18, 0x20000, v16
        """)
        srd(A, 60, 24, W_BYTES)
    def fifo_load(first, n, reg0):
        if c.x_nopre: return
        hf = 64 * 896 if first >= 14 else 0
        assert first >= 14 or first + n <= 14
        A(f"s_add_u32 s43, s{sD}, {hf + (first % 14)*128*896}\ns_add_u32 s44, s{eD}, {hf}")
        for b in range(n):
            A(f"s_cmp_ge_u32 s43, s44\ns_cselect_b32 s34, {14*128*896}, 0\ns_sub_u32 s43, s43, s34")
            for i in range(4): A(f"buffer_load_dwordx4 {v(reg0+16*b+4*i,4)}, v{aD+i}, s[60:63], s43 offen offset:{1024*i}")
            A(f"s_add_u32 s43, s43, {128*896}")
            if c.fdepth is not None: A(f"s_waitcnt vmcnt({c.fdepth})")
    def fifo_put(first, n, reg0):
        for b in range(n):
            sl = slot[("D", first + b)]
            for i in range(4): A(f"ds_write_b128 v{16+sl//8}, {v(reg0+16*b+4*i,4)} offset:{(sl%8)*BLK+1024*i}")
    daddr()
    A(f"""
    v_xor_b32 v4, v5, v7
    s_lshl_b32 s43, s36, 2
    v_xor_b32 v4, s43, v4
    v_mul_u32_u24 v3, 3584, v6
    v_lshl_add_u32 v{aW}, v4, 4, v3
    v_add_u32 v{aW+1}, {1*(8*3584-1024)}, v{aW}
    v_add_u32 v{aW+2}, {2*(8*3584-1024)}, v{aW}
    v_add_u32 v{aW+3}, {3*(8*3584-1024)}, v{aW}
    s_lshl_b32 s{eW}, s38, 8
    s_mul_i32 s{sW}, s38, {32*3584}
    s_add_u32 s{sW}, s{sW}, s{eW}
    s_add_u32 s{eW}, s{eW}, {14*32*3584}
    s_cmp_eq_u32 s36, 0
    s_cselect_b32 s20, s20, s22
    s_cselect_b32 s21, s21, s23
    """)
    srd(A, 52, 20, W_BYTES)
    A(f"""
    v_mov_b32 v20, 0
    v_mov_b32 v21, 0
    v_lshrrev_b32 v4, 4, v{vLane}
    v_mul_u32_u24 v4, {KP}, v4
    v_and_b32 v5, 15, v{vLane}
    v_lshl_add_u32 v4, v5, 2, v4
    s_lshl_b32 s43, s36, 15
    v_add_u32 v4, s43, v4
    s_mul_i32 s43, s36, {UPITCH}
    s_add_u32 s43, s43, {UO}
    v_lshl_add_u32 v3, v{vLane}, 3, s43
    """)
    A("s_waitcnt vmcnt(0)\ns_mov_b64 exec, 1\nglobal_store_dword v22, v23, s[30:31] sc0 sc1\ns_mov_b64 exec, -1")
    A(f"s_barrier\nds_write_b32 v4, v20 offset:{KB0}\nds_write_b64 v3, v[20:21]")
    if c.lf_at == 'B': fifo_load(14, 6, 24)
    A("s_waitcnt lgkmcnt(0)\ns_barrier")
    def dma(kind, idx, i):
        if kind == "F":
            if i == 0:
                if idx == 14: A(f"s_add_u32 s43, s{sD}, {64*896}\ns_add_u32 s44, s{eD}, {64*896}")
                A(f"s_cmp_ge_u32 s43, s44\ns_cselect_b32 s35, {14*128*896}, 0\ns_sub_u32 s43, s43, s35")
            A(f"buffer_load_dwordx4 {v(24+16*(idx-14)+4*i,4)}, v{aD+i}, s[60:63], s43 offen offset:{1024*i}")
            if i == 3: A(f"s_add_u32 s43, s43, {128*896}")
            return
        base_ = slot[(kind, idx)] * BLK
        a0, r0, s, e, step = {"W": (aW, 52, sW, eW, 32*3584), "D": (aD, 60, sD, eD, 128*896), "H": (4, 48, 40, 47, HS)}[kind]
        if i == 0:
            if idx == 14:
                A(f"s_add_u32 s{s}, s{s}, 128\ns_add_u32 s{e}, s{e}, 128")
            A(f"s_add_u32 m0, s32, {base_}\ns_add_u32 s33, s{s}, {step}")
        A(f"buffer_load_dwordx4 v{a0+i}, s[{r0}:{r0+3}], s{s} offen offset:{1024*i}{' sc1' if kind == 'H' else ''} lds")
        if i == 0: A(f"s_cmp_ge_u32 s33, s{e}\ns_cselect_b32 s34, {14*step}, 0")
        if i == 3: A(f"s_sub_u32 s{s}, s33, s34")
    if c.x_quietL: A('s_sleep 60')
    for x in issue[-2]: dma(*x)
    assert c.lf_at == 'C'
    fifo_load(14, 6, 24)
    A(f"""
    v_lshrrev_b32 v2, 4, v{vLane}
    v_and_b32 v3, 15, v{vLane}
    v_lshlrev_b32 v4, 2, v2
    v_xor_b32 v4, v4, v3
    v_lshlrev_b32 v4, 4, v4
    v_and_b32 v3, 1, v2
    v_lshl_add_u32 v4, v3, 12, v4
    v_lshrrev_b32 v2, 1, v2
    v_lshl_add_u32 v4, v2, 14, v4
    v_add_u32 v5, {1*(32768-1024)}, v4
    v_add_u32 v6, {2*(32768-1024)}, v4
    v_add_u32 v7, {3*(32768-1024)}, v4
    s_lshl_b32 s47, s39, 8
    s_lshl_b32 s43, s36, 17
    s_add_u32 s47, s47, s43
    s_add_u32 s40, s38, {c.h0}
    s_cmp_ge_u32 s40, 14
    s_cselect_b32 s43, 14, 0
    s_sub_u32 s40, s40, s43
    s_lshl_b32 s40, s40, 18
    s_add_u32 s40, s40, s47
    s_add_u32 s47, s47, {14*HS}
    """)
    srd(A, 48, 30, XG_BYTES, WS_XG)
    PA.stamp(4)
    A("s_barrier\ns_barrier")
    for x in issue[-1]: dma(*x)
    if c.nlf > 6: fifo_load(20 - c.nlf, c.nlf - 6, 120)
    A(f"s_waitcnt vmcnt({len(issue[-1]) + 4 * (c.nlf - 6)})\ns_barrier")
    for i in range(0, 29):
        for x in issue[i]: dma(*x)
        if i == 3: A(f"s_waitcnt vmcnt({sum(len(issue[k]) for k in range(4))})")
        if wait[i] is not None: A(f"s_waitcnt vmcnt({min(63, wait[i])})")
        A("s_barrier")
    if c.nlf > 6: fifo_put(20 - c.nlf, c.nlf - 6, 120)
    if c.xe:
        A("s_barrier")
        fifo_put(14, 3, 24)
        A("s_barrier")
        fifo_put(17, 3, 72)
    else:
        assert c.yb_at <= 26
        fifo_put(14, c.put_0, 24)
        A(f"s_waitcnt lgkmcnt({min(15, 4 * c.put_0)})\ns_barrier")
        fifo_put(14 + c.put_0, c.put_l, 24 + 16 * c.put_0)
        A("s_barrier")
        fifo_put(14 + c.put_0 + c.put_l, 6 - c.put_0 - c.put_l, 24 + 16 * (c.put_0 + c.put_l))
    A("s_waitcnt lgkmcnt(0)")
    if c.phase == 1: Prof(A, 3).flush(5)
    A("s_endpgm")
    A(f".p2align 3\n{auxs}:")
    PA.stamp(1)
    a0 = 90
    A(f"s_mov_b32 s42, 0x3f803f80\nv_and_b32 v4, 56, v{vLane}\ns_lshl_b32 s46, s47, 6\nv_add_u32 v4, s46, v4\nv_mov_b32 v2, {TAGA}")
    A("s_waitcnt lgkmcnt(0)\ns_add_u32 s57, s56, 1\ns_and_b32 s57, s57, 0xffff\ns_or_b32 s57, s57, 0x7f810000\ns_mov_b32 s45, 0")
    for i in range(28):
        z = i < 2
        if i % 4 == 0: A(f"s_waitcnt vmcnt({6-i//4})")
        if i == 4: PA.stamp(2)
        if i == 24: A("ds_read_b64 v[6:7], v2")
        A(f"v_dot2_f32_bf16 v{a0+(i&1)}, v{vRow+i}, s42, {'0' if z else 'v%d' % (a0+(i&1))}")
        A(f"v_dot2_f32_bf16 v{a0+2+(i&1)}, v{vRow+i}, v{vRow+i}, {'0' if z else 'v%d' % (a0+2+(i&1))}")
    A(f"v_add_f32 v{a0}, v{a0}, v{a0+1}\nv_add_f32 v{a0+2}, v{a0+2}, v{a0+3}")
    for op in ("quad_perm:[1,0,3,2]", "quad_perm:[2,3,0,1]", "row_half_mirror"):
        A(f"v_add_f32_dpp v{a0}, v{a0}, v{a0} {op}{DPP}\nv_add_f32_dpp v{a0+2}, v{a0+2}, v{a0+2} {op}{DPP}")
    A(f"""
    v_mul_f32 v{a0}, {f32(1.0/448)}, v{a0}
    v_mul_f32 v{a0+2}, {f32(1.0/448)}, v{a0+2}
    v_fma_f32 v{a0+2}, -v{a0}, v{a0}, v{a0+2}
    v_max_f32 v{a0+2}, 0, v{a0+2}
    v_cvt_pk_bf16_f32 v{a0+2}, v{a0+2}, v{a0+2}
    v_and_b32 v{a0+2}, s43, v{a0+2}
    v_add_f32 v{a0+2}, {f32(1e-5)}, v{a0+2}
    v_cvt_pk_bf16_f32 v{a0+2}, v{a0+2}, v{a0+2}
    v_and_b32 v{a0+2}, s43, v{a0+2}
    v_sqrt_f32 v{a0+2}, v{a0+2}
    v_mov_b32 v{a0+1}, s57
    v_cvt_pk_bf16_f32 v{a0}, v{a0}, v{a0+2}
    Ltg:
    s_waitcnt lgkmcnt(0)
    v_xor_b32 v6, s57, v6
    v_xor_b32 v7, s57, v7
    v_or_b32 v6, v6, v7
    v_cmp_ne_u32 vcc, 0, v6
    s_cbranch_vccz Ltg2
    ds_read_b64 v[6:7], v2
    s_add_u32 s45, s45, 1
    s_cmp_lt_u32 s45, {SPIN}
    s_cbranch_scc1 Ltg
    Ltg2:
    s_mov_b32 exec_lo, 0x01010101
    s_mov_b32 exec_hi, 0x01010101
    global_store_dwordx2 v4, {v(a0,2)}, s[30:31] sc0 sc1
    s_mov_b64 exec, -1
    """)
    PA.stamp(3)
    if base.PROF and c.phase == 1:
        A(f"s_branch {hold}x\n{hold}:")
        for k in (1, 2, 3): PA.stamp(k)
        A(f"{hold}x:")
    else: A(f"{hold}:")
    A("s_setprio 0\ns_barrier")
    daddr()
    sH, eH, sV = 40, 41, 47
    VR = 20
    A(f"""
    v_lshrrev_b32 v6, 4, v{vLane}
    v_and_b32 v7, 15, v{vLane}
    v_lshlrev_b32 v5, 2, v6
    v_xor_b32 v5, v5, v7
    v_lshlrev_b32 v5, 4, v5
    v_and_b32 v7, 1, v6
    v_lshl_add_u32 v5, v7, 12, v5
    v_lshrrev_b32 v6, 1, v6
    v_lshl_add_u32 v{aH}, v6, 14, v5
    v_add_u32 v{aH+1}, {1*(32768-1024)}, v{aH}
    v_add_u32 v{aH+2}, {2*(32768-1024)}, v{aH}
    v_add_u32 v{aH+3}, {3*(32768-1024)}, v{aH}
    s_lshl_b32 s{eH}, s39, 8
    s_lshl_b32 s43, s36, 17
    s_add_u32 s{eH}, s{eH}, s43
    s_lshl_b32 s{sH}, s38, 18
    s_add_u32 s{sH}, s{sH}, s{eH}
    s_add_u32 s{eH}, s{eH}, {14*HS}
    s_mov_b32 s56, 0x7f810000
    s_mov_b32 s{sV}, s{sH}
    """)
    srd(A, 48, 30, XG_BYTES, WS_XG)
    A("s_barrier")
    if c.hf_at == 'B':
        fifo_load(20, 3, 40)
    A("s_barrier")
    if c.x_quietL: A('s_sleep 60')
    if c.hf_at == 'B': fifo_load(23, 5, 88)
    else: fifo_load(20, 8, 40)
    PA.stamp(4)
    A(f"s_barrier\ns_barrier\ns_setprio {c.hprio}")
    def hblock(s, m0expr):
        A(f"s_add_u32 m0, {m0expr}\ns_add_u32 s33, s{s}, {HS}")
        for i in range(4):
            A(f"buffer_load_dwordx4 v{aH+i}, s[48:51], s{s} offen offset:{1024*i} sc1 lds")
            if i == 0: A(f"s_cmp_ge_u32 s33, s{eH}\ns_cselect_b32 s34, {14*HS}, 0")
        A(f"s_sub_u32 s{s}, s33, s34")
    nH = [0]
    def hissue(k):
        for _ in range(k):
            if nH[0] < 14:
                hblock(sH, f"s32, {slot[('H', nH[0])]*BLK}"); nH[0] += 1
    def vread(b):
        if b < nH[0]: A(f"s_waitcnt vmcnt({4*(nH[0]-1-b)})")
        for i in range(4): A(f"ds_read_b128 {v(VR+4*i,4)}, v{16+b//8} offset:{(slot[('H', b)]%8)*BLK+1024*i}")
    def vcheck(b):
        ck = A.label("hv"); ok = A.label("hok"); rp = A.label("hrp")
        last = b + 1 if c.rep_one else max(nH[0], b + 1)
        if c.w8 and b < 12: last = min(last, 12)
        sb = slot[('H', b)]
        A(f"""
        s_mov_b32 s45, 0
        {ck}:
        s_waitcnt lgkmcnt(0)
        v_max3_i32 v2, v{VR+1}, v{VR+3}, v{VR+5}
        v_max3_i32 v3, v{VR+7}, v{VR+9}, v{VR+11}
        v_max3_i32 v2, v2, v{VR+13}, v{VR+15}
        v_max_i32 v2, v2, v3
        v_cmp_le_i32 vcc, s56, v2
        {"s_cmp_eq_u32 s45, 0" if c.x_force else ""}
        {f"s_cbranch_scc1 {rp}f" if c.x_force else ""}
        s_cbranch_vccnz {rp}f
        """)
        cx = Cold(); cx.__enter__()
        A(f"""
        {rp}f:
        s_add_u32 s45, s45, 1
        s_cmp_ge_u32 s45, {SPIN}
        s_cbranch_scc1 {ok}
        s_mov_b32 s43, s{sV}
        s_add_u32 s44, s32, {sb*BLK}
        s_add_u32 s35, s32, {(sb+last-b)*BLK}
        {rp}:
        """)
        hblock(43, "s44, 0")
        A(f"s_add_u32 s44, s44, {BLK}\ns_cmp_lt_u32 s44, s35\ns_cbranch_scc1 {rp}\ns_waitcnt vmcnt({4*(last-1-b) if last == nH[0] else 0})")
        for i in range(4): A(f"ds_read_b128 {v(VR+4*i,4)}, v{16+b//8} offset:{(sb%8)*BLK+1024*i}")
        A(f"s_branch {ck}")
        cx.__exit__()
        A(f"{ok}:\ns_add_u32 s{sV}, s{sV}, {HS}\ns_cmp_ge_u32 s{sV}, s{eH}\ns_cselect_b32 s34, {14*HS}, 0\ns_sub_u32 s{sV}, s{sV}, s34")
    if c.probe:
        hissue(c.probe); vread(0); vcheck(0); hissue(c.h0 - c.probe); vread(1)
    else:
        hissue(c.h0); vread(0); vcheck(0); vread(1)
    A("s_barrier")
    hs = [0] * 14 if c.hl else list(c.hiss) + [1] * 14
    for i in range(0, 13):
        vcheck(i + 1)
        k = hs.pop(0)
        assert i >= 3 or nH[0] + k <= 12
        if i + 2 < 14:
            if nH[0] - (i + 2) < c.hnear: hissue(k); k = 0
            vread(i + 2)
        hissue(k)
        A("s_barrier")
    assert nH[0] == 14 or c.hl
    lp = A.label("hb")
    A(f"s_setprio 0\ns_mov_b32 s45, {18 if c.xe else 17}\n{lp}:\ns_barrier\ns_sub_u32 s45, s45, 1\ns_cmp_lg_u32 s45, 0\ns_cbranch_scc1 {lp}")
    fifo_put(20, c.put_a, 40)
    A("s_barrier")
    fifo_put(20 + c.put_a, 8 - c.put_a, 40 + 16 * c.put_a)
    A("s_waitcnt lgkmcnt(0)")
    if c.phase == 1: Prof(A, 3).flush(5)
    A(f"{end}:\ns_endpgm")
    A.L.extend(cold)
    A(f".p2align 3\n{hlp}:")
    gen_helper(A, c, Prof(A, 4))
    def rnd(l):
        u = np.float32(max(l, 0)).view(np.uint32)
        u = (int(u) + 0x7FFF + ((int(u) >> 16) & 1)) & 0xFFFF0000
        return int(np.uint32(u).view(np.float32))
    ad = [[(rnd(8 * b - 3 + r) & 7) * TP + (rnd(8 * b - 3 + r) >> 3) * 4 for r in range(12)] for b in range(256)]
    A(f".p2align 7\n.type {tab},@object\n{tab}:")
    for b in range(256): A(".long " + ", ".join("0x%08x" % (ad[b][2*k] | ad[b][2*k+1] << 16) for k in range(4)))
    for b in range(256): A(".long " + ", ".join("0x%08x" % (ad[b][2*k] | ad[b][2*k+1] << 16) for k in range(4, 6)))
    A(f".size {tab}, {256*24}")
    return kernel_desc(name, 168, 102)
```

```python
from base import *
import base
from ka import load_ptrs, cmul, cexp
import numpy as np
WS_E = 0x4000
WS_PZ = 0x5000
WS_XG = 0xA00000
XG_BYTES = 224 * 16384
REG = 16384
TP, GP = 1056, 272
KP = 4160
KB0 = 8704
UO, UPITCH = 74240, 4608
PARO = 98304
XT = 140288
TAGA = XT + 8192
BLK = 8192
NSL = 20
CON = 19 * BLK
F_LDS = NSL * BLK
GK0 = -2.0 * LOG2E * 0.7978845608028654
GK1 = GK0 * 0.044715
SPIN = 1 << 18
HS = 16 * 16384

class Cfg:
    code_bytes = 49152
    prio_mid = 26
    poll_late = 0
    e1_first, e1_last = 15, 22
    e1_packed = False
    drain0 = (22, 26)
    pollA, chkA = 24, 27
    earlyT = (4, 1)
    poll0 = 28
    ya_at, yb_at = 18, 25
    put_a = 3
    pace1, pace2, pace = 2, 1, {}
    pa_early = False
    g_pre = 0
    tdepth, tdepth2 = 22, 16
    gate_ahead = {14: 14, 28: 4, 42: 12}
    pollT1 = (20, 28)
    capP = 8
    caps = {}
    gat_issue, gat_check = 7, 9
    con_write = 11
    il = 2
    stflag = 'sc0 sc1'
    prioB = 2
    h0 = 5
    hiss = (1, 2, 1, 1, 1, 1, 1)
    ca_load = 10
    cs_issue = 5
    hdepth = 1
    fdepth = None
    x_delay = 0
    x_force = False
    backoff = 0
    rep_one = False
    x_nocs = False
    sweepW = False
    sweepD = True
    hramp = 0
    xp_chk = False
    npk = True
    lfifo = (8, 14)
    hprio = 3
    pz_sleep = 4
    hnear = 3
    lf_at = 'C'
    hf_at = 'P'
    poi_at = '0'
    wide_h = True
    xp_at = 0
    gat_split = (3, 4)
    x_nogat = False
    cprio = 3
    nprio = 2
    auxprio = 3
    x_nopre = False
    emode = 0
    csort = True
    probe = 1
    x_quietN = False
    x_quietL = False
    cmin = 5
    cmerge = (0, 2, 4, 6)
    w8 = False
    nlf = 6
    outflag = ''
    hl = True
    x_pad = 0
    wsoff = 0
    hf_c = 4
    hf_p = 10
    xmask = True
    sweepU = False
    hsleep = 0
    hwait = None
    x_nocp = False
    warm = False
    npg = 5
    stcost = 8
    xe = False
    x_cnt = False
    put_0, put_l = 6, 0
    x_fine = None
    phase = 1

def schedule(c):
    need = {("W", s): s for s in range(28)}
    last_use = {("W", s): s + 1 for s in range(28)}
    for t in range(28): last_use[("D", t)] = 1000
    hslot = [sl + (2 if c.w8 and sl >= 12 else 0) for sl in range(14)]
    w0 = 12 if c.w8 else 14
    free_at = {sl: (16 + sl if sl < w0 else -2 if sl >= 14 else -1) for sl in range(NSL)}
    slot = {("H", k): hslot[k] for k in range(14)}
    issue = {i: [] for i in range(-2, 29)}
    n = dict(W=0, D=0, H=c.h0 if c.hl else 14)
    for k in range(n["H"], 14): need[("H", k)] = k - 2; last_use[("H", k)] = 15 + k
    nd = 20 - c.nlf
    cur = None
    def pick(i):
        nW, nD = n["W"], n["D"]
        wf = [sl for sl in range(w0, NSL) if free_at[sl] <= i and (sl != 19 or i >= 15 or nW + 1 < c.con_write)]
        canH = n["H"] < 14 and i >= 0 and (not c.w8 or n["H"] < 12 or i >= n["H"] - 10)
        if canH and (n["H"] - 2 <= nW or not wf): return ("H", n["H"]), hslot[n["H"]]
        if nW < 28 and wf: return ("W", nW), wf[0]
        fr = [sl for sl in range(NSL) if free_at[sl] <= i and (sl < w0 or nW == 28)]
        if fr and nD < nd: return ("D", nD), fr[0]
        return None
    for i in range(-2, 29):
        cap = 24 if i < 0 else c.caps.get(i, c.capP)
        while cap > 0:
            if cur is None:
                p = pick(i)
                if p is None: break
                b, sl = p
                slot[b] = sl; free_at[sl] = last_use[b] + 1; n[b[0]] += 1
                if c.w8 and b in (("W", 0), ("W", 1)): free_at[sl] = 28 + b[1]
                cur = [b, 0]
            issue[i].append((cur[0][0], cur[0][1], cur[1])); cur[1] += 1; cap -= 1
            if cur[1] == 4: cur = None
    assert n["D"] == nd and cur is None
    rest = sorted((sl for sl in range(NSL) if free_at[sl] < 1000), key=lambda sl: free_at[sl])
    assert len(rest) == c.nlf
    for k, sl in enumerate(rest): slot[("D", nd + k)] = sl
    for t in range(20, 28): slot[("D", t)] = slot[("D", t - 20)]
    if c.lf_at == 'P':
        for k, i in enumerate(range(*c.lfifo)): issue[i] += [("F", 14 + k, q) for q in range(4)]
    order = [b for i in range(0, 29) for b in issue[i]]
    pos = {b: k for k, b in enumerate(order)}
    wait = {}
    cnt = 0
    for i in range(0, 29):
        cnt += len(issue[i])
        req = [b for b in need if need[b] == i + 1 and b + (3,) in pos]
        wait[i] = None if not req else cnt - 1 - max(pos[b + (3,)] for b in req)
        if i == 28: wait[i] = 0
        assert wait[i] is None or wait[i] >= 0, (i, req)
    return issue, slot, wait

def gen_helper(A, c, P):
    sweep = A.label("Hsw")
    A(f"""
    s_sub_u32 s44, s2, 224
    s_lshr_b32 s45, s44, 3
    s_bfe_u32 s46, s44, 0x20001
    s_lshl_b32 s46, s46, 2
    s_add_u32 s46, s46, s45
    s_and_b32 s44, s44, 1
    s_waitcnt lgkmcnt(0)
    """)
    if c.hsleep: A(f"s_sleep {c.hsleep}")
    if c.hwait:
        off = {"st": 4, "pz": WS_PZ}[c.hwait]
        A(f"""
        s_cmp_lg_u32 s36, 0
        s_cbranch_scc1 Lhw2
        s_load_dword s56, s[30:31], {WS_E}
        s_sub_u32 s47, s2, 32
        s_lshl_b32 s47, s47, {6 if c.hwait == "st" else 3}
        s_add_u32 s47, s47, {off}
        v_mov_b32 v2, s47
        s_mov_b32 s47, 0
        s_waitcnt lgkmcnt(0)
        s_add_u32 s57, s56, 1
        s_and_b32 s57, s57, 0xffff
        s_or_b32 s57, s57, 0x7f810000
        Lhw1:
        s_sleep 8
        global_load_dword v3, v2, s[30:31] sc1
        s_add_u32 s47, s47, 1
        s_cmp_ge_u32 s47, 8
        s_cbranch_scc1 Lhw2
        s_waitcnt vmcnt(0)
        v_cmp_ne_u32 vcc, s57, v3
        s_cbranch_vccnz Lhw1
        Lhw2:
        s_waitcnt vmcnt(0)
        s_barrier
        """)
    A(f"""
    s_cmp_ge_u32 s46, 14
    s_cselect_b32 s47, 2, 0
    s_sub_u32 s46, s46, s47
    v_and_b32 v1, 15, v0
    v_lshrrev_b32 v2, 4, v0
    v_mul_u32_u24 v2, 3584, v2
    v_lshl_add_u32 v2, v1, 4, v2
    s_cmp_ge_u32 s46, 7
    s_cselect_b32 s47, 7, 0
    s_cselect_b32 s48, s22, s20
    s_cselect_b32 s49, s23, s21
    s_sub_u32 s46, s46, s47
    s_mul_i32 s50, s44, 7
    s_add_u32 s46, s46, s50
    s_lshl_b32 s47, s47, 1
    s_add_u32 s52, s46, s47
    s_lshl_b32 s47, s46, 8
    s_mov_b32 s50, {W_BYTES}
    s_mov_b32 s51, 0x20000
    """)
    for p in range(14):
        A(f"buffer_load_dwordx4 {v(16+4*p,4)}, v2, s[48:51], s47 offen")
        if p < 13: A("s_add_u32 s47, s47, %d" % (32 * 3584))
        if p < c.hramp: A("s_waitcnt vmcnt(0)")
    A("s_mov_b32 s42, 0x00003f80\ns_mov_b32 s43, 0x3f800000")
    if c.sweepU:
        A(f"""
        s_lshr_b32 s47, s52, 1
        s_mul_i32 s47, s47, {128*896}
        s_and_b32 s53, s52, 1
        s_lshl_b32 s53, s53, 3
        s_add_u32 s53, s53, s36
        s_mul_i32 s53, s53, {28*128}
        s_add_u32 s47, s47, s53
        v_and_b32 v3, 63, v0
        v_min_u32 v3, 27, v3
        v_lshl_add_u32 v3, v3, 7, s47
        global_load_dword v72, v3, s[24:25]
        """)
    for p in range(14):
        A(f"s_waitcnt vmcnt({13-p+(1 if c.sweepU else 0)})")
        for q in range(4):
            for hl in range(2):
                acc = 4 + 2 * q + hl
                A(f"v_dot2_f32_bf16 v{acc}, v{16+4*p+q}, s{42+hl}, {'0' if p == 0 else 'v%d' % acc}")
    for op in ("v_permlane16_swap_b32", "v_permlane32_swap_b32"):
        for q in range(8): A(f"v_mov_b32 v{16+q}, v{4+q}")
        for q in range(8): A(f"{op} v{4+q}, v{16+q}")
        for q in range(8): A(f"v_add_f32 v{4+q}, v{4+q}, v{16+q}")
    A(f"""
    v_lshrrev_b32 v2, 6, v0
    v_lshlrev_b32 v2, 9, v2
    v_lshl_add_u32 v2, v1, 5, v2
    s_mov_b64 exec, 0xffff
    ds_write_b128 v2, v[4:7]
    ds_write_b128 v2, v[8:11] offset:16
    s_mov_b64 exec, -1
    s_waitcnt lgkmcnt(0)
    s_barrier
    s_cmp_ge_u32 s36, 2
    s_cbranch_scc1 {sweep}
    v_lshlrev_b32 v1, 2, v0
    ds_read2st64_b32 v[4:5], v1 offset0:0 offset1:2
    ds_read2st64_b32 v[6:7], v1 offset0:4 offset1:6
    ds_read2st64_b32 v[8:9], v1 offset0:8 offset1:10
    ds_read2st64_b32 v[10:11], v1 offset0:12 offset1:14
    s_waitcnt lgkmcnt(0)
    v_pk_add_f32 v[4:5], v[4:5], v[6:7]
    v_pk_add_f32 v[8:9], v[8:9], v[10:11]
    v_pk_add_f32 v[4:5], v[4:5], v[8:9]
    v_add_f32 v4, v4, v5
    s_mov_b32 s43, 0xffff0000
    v_cvt_pk_bf16_f32 v5, v4, v4
    v_and_b32 v5, s43, v5
    v_sub_f32 v6, v4, v5
    v_cvt_pk_bf16_f32 v8, v5, v6
    v_and_b32 v7, s43, v8
    v_sub_f32 v6, v6, v7
    v_cvt_pk_bf16_f32 v9, v6, 0
    s_lshl_b32 s46, s52, 10
    s_add_u32 s46, s46, {WS_CS}
    v_lshl_add_u32 v1, v1, 1, s46
    global_store_dwordx2 v1, v[8:9], s[30:31] sc0 sc1
    s_mov_b32 s46, 1
    s_waitcnt vmcnt(0)
    s_atomic_add s46, s[28:29], 0
    {sweep}:
    """)
    P.stamp(1)
    done = A.label("Hdone")
    A(f"""
    s_cmp_ge_u32 s36, 7
    s_cbranch_scc1 {done}
    v_lshrrev_b32 v2, 3, v0
    v_mul_u32_u24 v2, 3584, v2
    v_and_b32 v3, 7, v0
    v_min_u32 v3, 6, v3
    v_lshl_add_u32 v2, v3, 8, v2
    s_mul_i32 s46, s45, {112*3584}
    s_mul_i32 s47, s44, 1792
    s_add_u32 s46, s46, s47
    v_add_u32 v2, s46, v2
    v_add_u32 v3, {56*3584}, v2
    s_mul_i32 s46, s45, {128*896}
    v_lshl_add_u32 v4, v0, 7, s46
    """)
    def wpass(h):
        for m in (20, 22):
            for r in (2, 3): A(f"global_load_dword v8, v{r}, s[{m}:{m+1}] offset:{128*h}\ns_waitcnt vmcnt({c.hdepth})")
    if c.sweepW: wpass(0); wpass(1)
    for k in range(4 if c.sweepD else 0):
        if k == 3: A(f"s_cmp_ge_u32 s45, 2\ns_cbranch_scc1 {done}")
        A(f"global_load_dword v8, v4, s[24:25]\nv_add_u32 v4, {4*128*896}, v4\ns_waitcnt vmcnt({c.hdepth})")
    A(f"{done}:\ns_waitcnt lgkmcnt(0)")
    P.flush(2)
    A("s_endpgm")

def gen(A, name, c=Cfg, verbose=False):
    issue, slot, wait = schedule(c)
    if verbose:
        for i in range(-2, 29): print(i, ' '.join(k + str(j) + '.' + str(q) for k, j, q in issue[i]), wait.get(i))
        print({k: x for k, x in slot.items() if k[0] == "D"})
    kernel_head(A, name)
    end = A.label("end"); hlp = A.label("hlp"); kw_ = A.label("kw"); nw = A.label("nw"); tab = A.label("tab")
    auxt = A.label("auxt"); auxs = A.label("auxs"); til = A.label("til"); hold = A.label("hold")
    P0 = Prof(A, 1)
    class PH:
        def __init__(s, ph, kid=1): s.on = c.phase == ph; s.P = Prof(A, kid)
        def stamp(s, i):
            if s.on: s.P.stamp(i)
    P = PH(1); PA = PH(1, 3)
    class Bars:
        def __init__(s, marks, n1, kid=1): s.n = 0; s.marks = c.x_fine or marks; s.on = c.phase == 2; s.n1 = n1; s.P = Prof(A, kid)
        def bar(s):
            A("s_barrier")
            if s.on and s.n in s.marks: s.P.stamp(1 + s.marks.index(s.n))
            s.n += 1
        def mark(s, k):
            if s.on and not c.x_fine: s.P.stamp(1 + len(s.marks) + k)
        def fin(s, k=0):
            if not s.on: s.P.flush(s.n1); return
            k = 0 if c.x_fine else k
            s.P.stamp(1 + len(s.marks) + k); s.P.flush(2 + len(s.marks) + k)
    cold = []
    class Cold:
        def __enter__(s): s.keep = A.L; A.L = []
        def __exit__(s, *a): cold.extend(A.L); A.L = s.keep
    wst = []
    def target(lab):
        wst.append(lab)
        A(f".p2align 6\n{lab}w:\ns_setpc_b64 s[96:97]\ns_nop 0\n{lab}:")
    A(f"s_cmp_ge_u32 s2, 256\ns_cbranch_scc1 {end}")
    P0.stamp(0)
    load_ptrs(A)
    A(f"s_getpc_b64 s[60:61]\nLpc:")
    vLane, vG, vJ = 1, 2, 3
    per = (c.code_bytes // 128 + 63) // 64
    vRow, vXG = 16, 48
    ffn_ids = """
    s_and_b32 s37, s2, 7
    s_lshr_b32 s38, s2, 3
    s_and_b32 s40, s38, 3
    s_lshr_b32 s39, s37, 1
    s_lshl_b32 s39, s39, 2
    s_add_u32 s39, s39, s40
    s_and_b32 s34, s37, 1
    s_lshr_b32 s35, s38, 2
    s_mul_i32 s38, s34, 7
    s_add_u32 s38, s38, s35
    s_mul_i32 s33, s40, 3
    s_lshl_b32 s37, s35, 1
    s_add_u32 s33, s33, s37
    s_cmp_ge_u32 s33, 14
    s_cselect_b32 s37, 14, 0
    s_sub_u32 s33, s33, s37
    """
    A(f"""
    v_lshrrev_b32 v4, 6, v0
    v_and_b32 v{vLane}, 63, v0
    s_and_b32 s37, s2, 7
    v_readfirstlane_b32 s36, v4
    s_mul_i32 s37, s37, 28
    s_lshr_b32 s38, s2, 3
    s_add_u32 s37, s37, s38
    s_mov_b32 s43, 0xffff0000
    s_cmp_lt_u32 s36, 8
    s_cbranch_scc1 {kw_}
    s_setprio {c.auxprio}
    v_lshrrev_b32 v5, 3, v{vLane}
    v_and_b32 v6, 7, v{vLane}
    v_mul_u32_u24 v7, 896, v5
    s_cmp_lt_u32 s36, 10
    s_cbranch_scc1 {til}
    s_and_b32 s36, s36, 1
    s_lshr_b32 s62, s2, 2
    s_and_b32 s62, s62, 62
    s_add_u32 s62, s62, s36
    s_mul_i32 s62, s62, {per*128}
    v_min_u32 v10, {per-1}, v{vLane}
    v_lshl_add_u32 v10, v10, 7, s62
    v_min_u32 v10, Lcode_end-Lpc-4, v10
    global_load_dword v99, v10, s[60:61]
    s_mul_i32 s46, s36, 28
    s_add_u32 s46, s46, s38
    s_cmp_ge_u32 s2, 224
    s_cbranch_scc1 {end}
    s_and_b32 s47, s2, 7
    s_lshl_b32 s47, s47, 5
    s_add_u32 s47, s47, s46
    s_mul_i32 s48, s47, {8*896}
    v_lshl_add_u32 v8, v6, 4, v7
    v_add_u32 v8, s48, v8
    s_cmp_ge_u32 s46, 32
    s_waitcnt lgkmcnt(0)
    s_cbranch_scc1 {hold}
    s_load_dword s56, s[30:31], {WS_E}
    """)
    for i in range(7): A(f"global_load_dwordx4 {v(vRow+4*i,4)}, v8, s[4:5] offset:{128*i}")
    A(f"""
    s_branch {auxs}
    {til}:
    s_cmp_ge_u32 s2, 224
    s_cbranch_scc1 {end}
    s_and_b32 s36, s36, 1
    s_mul_i32 s46, s37, 9363
    s_lshr_b32 s46, s46, 16
    s_mul_i32 s47, s46, 7
    s_sub_u32 s47, s37, s47
    s_lshl_b32 s46, s46, 1
    s_add_u32 s46, s46, s36
    s_mul_i32 s49, s46, {32*896}
    s_lshl_b32 s48, s47, 7
    s_add_u32 s49, s49, s48
    s_lshl_b32 s47, s47, 19
    s_lshl_b32 s46, s46, 8
    s_add_u32 s51, s47, s46
    s_lshl_b32 s46, s36, 12
    s_add_u32 s46, s46, {XT}
    s_mov_b32 m0, s46
    v_lshrrev_b32 v4, 1, v5
    v_xor_b32 v4, v4, v6
    v_lshl_add_u32 v12, v4, 4, v7
    v_xor_b32 v4, 4, v4
    v_lshl_add_u32 v13, v4, 4, v7
    v_add_u32 v13, {8*896-1024}, v13
    v_add_u32 v14, {16*896-2048}, v12
    v_add_u32 v15, {16*896-2048}, v13
    s_mov_b32 s34, {X_BYTES}
    s_mov_b32 s35, 0x20000
    s_waitcnt lgkmcnt(0)
    s_mov_b32 s32, s4
    s_mov_b32 s33, s5
    """)
    for i in range(4): A(f"buffer_load_dwordx4 v{12+i}, s[32:35], s49 offen offset:{1024*i} lds")
    A(f"s_load_dword s57, s[30:31], {WS_E}")
    A(f"s_branch {auxt}\n{kw_}:\ns_cmp_ge_u32 s2, 224\ns_cbranch_scc1 {hlp}")
    vP, vDT = 8, 12
    a2, b2 = 14, 15
    w1, w256, w2, w512 = 16, 18, 20, 22
    tA, tB, tC = 24, 26, 28
    G, G2, Hh, W4, HT, CV = 30, 46, 62, 68, 70, 78
    vTB, vA, vBc, vRA = 88, 94, 95, 96
    A(f"""
    v_mov_b32 v{vP}, 0
    v_mov_b32 v{vP+1}, 0
    v_mov_b32 v{vP+2}, 0
    v_mov_b32 v{vP+3}, 0
    s_lshl_b32 s48, s37, 10
    v_lshl_add_u32 v4, v0, 1, s48
    s_lshl_b32 s48, s37, 2
    s_lshl_b32 s56, s36, 14
    s_mov_b32 m0, s56
    s_lshr_b32 s38, s36, 2
    s_add_u32 s62, s60, {tab}-Lpc+2048
    s_addc_u32 s63, s61, 0
    s_waitcnt lgkmcnt(0)
    s_load_dword s52, s[14:15], s48
    global_load_short_d16_hi v{vP}, v4, s[6:7]
    global_load_short_d16_hi v{vP+1}, v4, s[8:9]
    global_load_short_d16_hi v{vP+2}, v4, s[10:11]
    global_load_short_d16_hi v{vP+3}, v4, s[12:13]
    s_load_dword s53, s[16:17], s48
    """)
    P.stamp(1)
    A(f"""
    v_bfe_u32 v{vG}, v0, 5, 1
    v_and_b32 v{vJ}, 31, v0
    s_lshl_b32 s46, s36, 15
    v_mul_u32_u24 v4, {GP}, v{vJ}
    v_lshl_add_u32 v4, v{vG}, 4, v4
    v_add_u32 v{vRA}, s46, v4
    s_bfe_u32 s39, s36, 0x10001
    s_and_b32 s40, s36, 1
    s_lshl_b32 s48, s39, 15
    s_lshl_b32 s47, s40, 8
    s_add_u32 s48, s48, s47
    s_add_u32 s48, s48, {KB0+64-24}
    v_and_b32 v4, 3, v0
    v_sub_u32 v4, 3, v4
    v_mul_u32_u24 v4, {KP}, v4
    v_bfe_u32 v5, v0, 2, 2
    v_lshl_add_u32 v4, v5, 3, v4
    v_bfe_u32 v5, v0, 4, 2
    v_lshl_add_u32 v4, v5, 4, v4
    v_add_u32 v{vA}, s48, v4
    s_mul_i32 s48, s39, {UPITCH}
    s_sub_u32 s48, s48, s47
    s_add_u32 s48, s48, {UO+512+16-192}
    v_and_b32 v4, 15, v0
    v_lshlrev_b32 v4, 5, v4
    v_lshlrev_b32 v5, 4, v5
    v_sub_u32 v4, v4, v5
    v_add_u32 v{vBc}, s48, v4
    s_add_u32 s64, s30, {WS_XG}
    s_addc_u32 s65, s31, 0
    s_mov_b32 s66, {XG_BYTES}
    s_mov_b32 s67, 0x20000
    s_and_b32 s47, s36, 3
    s_lshl_b32 s47, s47, 12
    v_lshl_add_u32 v97, v{vLane}, 4, s47
    s_lshl_b32 s44, s37, 14
    s_mov_b32 s54, {f32(8.0)}
    s_mov_b32 s55, {f32(256.0)}
    s_lshl_b32 s46, s38, 4
    v_mov_b32 v{vDT}, {f32(LOG2E)}
    s_cmp_lt_u32 s36, 4
    s_cbranch_scc1 Lnoprio
    s_setprio 1
    Lnoprio:
    s_waitcnt lgkmcnt(0)
    s_lshr_b32 s52, s52, s46
    s_lshl_b32 s52, s52, 16
    v_mul_f32 v{vDT}, s52, v{vDT}
    v_exp_f32 v{vDT}, v{vDT}
    v_cvt_pk_bf16_f32 v{vDT}, v{vDT}, v{vDT}
    v_and_b32 v{vDT}, s43, v{vDT}
    s_and_b32 s59, s53, s43
    s_lshl_b32 s58, s53, 16
    v_add_f32 v6, v{vDT}, v{vDT}
    """)
    P.stamp(2)
    A(f"""
    s_waitcnt vmcnt(2)
    v_mul_f32 v4, {f32(LOG2E)}, v{vP}
    v_exp_f32 v4, v4
    v_mul_f32 v{b2}, v{vP+1}, v{vDT}
    v_cvt_pk_bf16_f32 v4, v4, v4
    v_and_b32 v4, s43, v4
    v_mul_f32 v{a2}, v4, v{vDT}
    v_mul_f32 v{b2}, 0.15915494, v{b2}
    v_mul_f32 v{a2}, {f32(-LOG2E)}, v{a2}
    """)
    P.stamp(3)
    nb_ = [0]
    vPX, vPS_, vPA = 100, 116, 97
    xp = [f"buffer_load_dwordx4 {v(vPX+4*q,4)}, v{vPA}, s[64:67], s44 offen offset:{1024*q} sc1" for q in range(4)]
    xp += [f"global_load_dwordx4 {v(vPS_+4*q,4)}, v{vPA}, s[30:31] offset:{1024*q} sc1" for q in range(4)]
    def put(src, row, neg):
        r = CV + (nb_[0] & 7); nb_[0] += 1
        x = [f"v_cvt_pk_bf16_f32 v{r}, v{src}, {'-' if neg else ''}v{src+1}", f"ds_write_addtid_b32 v{r} offset:{row*GP}"]
        if nb_[0] == c.prio_mid: x[1] += "\ns_setprio 0"
        if nb_[0] == c.xp_at: x[1] += "\ns_cmp_lt_u32 s36, 4\ns_cbranch_scc1 Lnoxp\n" + "\n".join(xp) + "\nLnoxp:"
        return x
    def spread(puts, work):
        o = []
        while puts or work:
            p = puts.pop(0) if puts else None
            if p: o.append(p[0])
            if work: o += work.pop(0)
            if p: o.append(p[1])
        return o
    GR = 32
    for l in cexp(Hh, a2, b2, "s54", tA): A(l)
    A(f"v_mov_b32 v{CV+8}, 0x3f80\nds_write_addtid_b32 v{CV+8}")
    for l in cmul(Hh+2, Hh, Hh) + cmul(Hh+4, Hh+2, Hh) + cmul(W4, Hh+2, Hh+2): A(l)
    ex = merge(cexp(w1, a2, b2, None, tB), cexp(w256, a2, b2, "s55", tC))
    ex += ["s_waitcnt vmcnt(0)", f"v_mul_f32 v{G}, v{vP+2}, v6", f"v_mul_f32 v{G+1}, v{vP+3}, v6",
           "v_min_u32 v5, 255, v0\nv_lshlrev_b32 v6, 4, v5", "v_lshlrev_b32 v5, 3, v5",
           f"global_load_dwordx4 {v(vTB,4)}, v6, s[62:63] offset:-2048", f"global_load_dwordx2 {v(vTB+4,2)}, v5, s[62:63] offset:2048"]
    ex += cmul(w2, w1, w1) + cmul(G+2, G, w1) + cmul(w512, w256, w256)
    cur = [Hh, Hh+2, Hh+4, W4]; nxt = [HT, HT+2, HT+4, HT+6]; alt = [G2, G2+2, G2+4, G2+6]
    j = 1
    while j < 32:
        pend = [put(cur[r], j + r, False) for r in range(4) if j + r < 32]
        wk = [cmul(nxt[r], cur[r], W4) + [ex.pop(0) for _ in range(1) if ex] for r in range(4) if j + 4 + r < 32]
        if j + 4 >= 32: wk = [cmul(G+2*i, G+2*(i-2), w2) for i in range(2, 5)]
        for l in spread(pend, wk): A(l)
        cur, nxt = nxt, (alt if nxt[0] == HT else [HT, HT+2, HT+4, HT+6])
        j += 4
    assert not ex
    wk = [cmul(G+2*i, G+2*(i-2), w2) for i in range(5, 8)] + [cmul(G2+2*k, G+4*k, w256) for k in range(4)] + [cmul(G2+8, G, w512)]
    for l in spread([put(G+2*i, GR+i, True) for i in range(8)], wk): A(l)
    wk = [cmul(G2+10, G+8, w512), cmul(G2+12, G2, w512), cmul(G2+14, G2+4, w512), cmul(G, G2+8, w512), cmul(G+2, G2+12, w512), cmul(G+4, G, w512), cmul(G+6, G+2, w512), cmul(G+8, G+4, w512)]
    for l in spread([put(G2+2*i, GR+8+i, True) for i in range(8)], wk): A(l)
    for l in spread([put(G+2*i, GR+16+i, True) for i in range(5)], []): A(l)
    P.stamp(4)
    A(f"s_cmp_ge_u32 s36, 4\ns_cbranch_scc1 {nw}\ns_branch Lmw\n.p2align 12")
    target("Lmw")
    vACC, vEA, FR, TA_ = 8, 30, 100, 44
    tabprep = [f"s_lshl_b32 s46, s36, 15", f"v_lshl_add_u32 v4, v{vJ}, 2, s46", f"v_mul_u32_u24 v5, {4*TP}, v{vG}", "v_add_u32 v5, v5, v4", f"v_xor_b32 v7, 1, v{vG}"]
    tmin = []
    for b in range(4):
        o0 = 2 * b * TP + 128; o1 = 4 * (b & 1) * TP + 256 + 128 * (b >> 1)
        tabprep += [f"v_mul_u32_u24 v{TA_+b}, {abs(o1-o0)}, v{vG if o1 > o0 else 7}", f"v_add_u32 v{TA_+b}, v{TA_+b}, v4"]
        tmin.append(min(o0, o1))
    tabprep += [f"v_lshl_add_u32 v{TA_+4}, v{vG}, 9, v4", "s_waitcnt vmcnt(0)"]
    for r in range(11):
        tabprep += [f"v_and_b32 v{vEA+r}, 0xffff, v{vTB+(r>>1)}" if r % 2 == 0 else f"v_lshrrev_b32 v{vEA+r}, 16, v{vTB+(r>>1)}"]
    tabprep += ["v_cmp_ne_u32 s[44:45], 0, v0", f"v_lshlrev_b32 v6, 4, v0"]
    A("s_waitcnt lgkmcnt(0)\ns_barrier")
    P.stamp(5)
    def frd(n):
        b = FR + 8 * (n & 7); o = (n >> 3) * REG + 32 * (n & 7)
        return f"ds_read_b128 {v(b,4)}, v{vRA} offset:{GR*GP+o}\nds_read_b128 {v(b+4,4)}, v{vRA} offset:{o}"
    for n in range(6): A(frd(n))
    for n in range(16):
        b0 = FR + 8 * (n & 7)
        A(f"s_waitcnt lgkmcnt({2*min(5, 15-n)})\nv_mfma_f32_32x32x16_bf16 {v(vACC,16)}, {v(b0,4)}, {v(b0+4,4)}, {'0' if n == 0 else v(vACC,16)}")
        if n + 6 < 16: A(frd(n + 6))
        for l in tabprep[2*n:2*n+2]: A(l)
    assert len(tabprep) <= 32
    vW, vR, vO = 97, 98, 99
    A(f"""
    s_lshl_b32 s46, s36, 12
    s_add_u32 s46, s46, {PARO}
    v_lshl_add_u32 v{vW}, v{vLane}, 4, s46
    v_xor_b32 v{vR}, 0x1000, v{vW}
    s_lshl_b32 s46, s40, 10
    s_lshl_b32 s47, s39, 15
    s_add_u32 s47, s47, s46
    v_lshl_add_u32 v3, v{vLane}, 4, s47
    """)
    for b in range(4): A(f"ds_write_b32 v5, v{vACC+b} offset:{TP*b}")
    for b in range(4): A(f"ds_write_b32 v{TA_+b}, v{vACC+4+b} offset:{tmin[b]}")
    A(f"s_mov_b32 exec_hi, 1\nds_write_b32 v{TA_+4}, v{vACC+8} offset:512\ns_mov_b32 exec_hi, 0")
    for b in range(1, 4): A(f"ds_write_b32 v{TA_+4}, v{vACC+8+b} offset:{512+128*b}")
    A("s_mov_b32 exec_hi, -1\ns_waitcnt lgkmcnt(0)\ns_barrier")
    P.stamp(6)
    EV, CB = 100, 44
    for r in range(11): A(f"ds_read2st64_b32 {v(EV+2*r,2)}, v{vEA+r} offset0:0 offset1:128\nv_add_u32 v{vEA+r}, 0x10000, v{vEA+r}")
    for r in range(11): A(f"ds_read2st64_b32 {v(EV+22+2*r,2)}, v{vEA+r} offset0:0 offset1:128")
    for ch in range(2):
        E = EV + 22 * ch
        A(f"s_waitcnt lgkmcnt({11 if ch == 0 else 4})")
        for r in range(11): A(f"v_add_f32 v{E+2*r}, v{E+2*r}, v{E+2*r+1}")
        for r in range(3): A(f"v_cndmask_b32 v{E+2*r}, 0, v{E+2*r}, s[44:45]")
        for cp in range(4):
            b = CB + 16 * ch + 4 * cp
            for k in range(4):
                r0 = 3 - cp + 2 * k
                A(f"v_cvt_pk_bf16_f32 v{b+k}, v{E+2*r0}, v{E+2*r0+2}")
            A(f"ds_write_b128 v6, {v(b,4)} offset:{KB0+64+32768*ch+cp*KP}")
    P.stamp(7)
    A("s_waitcnt lgkmcnt(0)\ns_barrier")
    P.stamp(8)
    A(f"s_setprio {c.cprio}")
    AC = 8
    FBs = [40 + 8 * k for k in range(6)] + [100 + 8 * k for k in range(6)]
    def rd(Gi):
        r, n = Gi >> 3, Gi & 7
        b = FBs[Gi % 12]
        return [f"ds_read_b64 {v(b,2)}, v{vA} offset:{512*n+64*r}", f"ds_read_b64 {v(b+2,2)}, v{vA} offset:{512*n+64*r+8}",
                f"ds_read_b128 {v(b+4,4)}, v{vBc} offset:{512*n+64*(3-r)}"]
    def send(t): return f"s_mov_b64 exec, s[{48+2*(t&1)}:{49+2*(t&1)}]\nds_write_b128 v{vW}, {v(AC+4*t,4)} offset:{1024*(t>>1)}\ns_mov_b64 exec, -1"
    for Gi in range(4):
        for l in rd(Gi): A(l)
    A(f"""
    s_lshl_b32 s46, s37, 2
    s_add_u32 s46, s46, s39
    s_lshl_b32 s46, s46, 12
    s_lshl_b32 s47, s40, 9
    s_add_u32 s46, s46, s47
    s_add_u32 s46, s46, {WS_XG}
    v_and_b32 v4, 15, v0
    v_bfe_u32 v5, v0, 4, 2
    v_lshlrev_b32 v4, 5, v4
    v_lshrrev_b32 v6, 1, v5
    v_lshl_add_u32 v4, v6, 4, v4
    v_and_b32 v5, 1, v5
    v_lshl_add_u32 v4, v5, 10, v4
    v_add_u32 v{vO}, s46, v4
    """)
    started = set()
    def cm(r, a, b):
        t = a + b
        cc = v(AC + 4 * t, 4) if t in started else "0"
        started.add(t)
        return f"v_mfma_f32_16x16x32_bf16 {v(AC+4*t,4)}, {v(FBs[(8*r+a)%12],4)}, {v(FBs[(8*r+b)%12]+4,4)}, {cc}"
    def grp(n): return [(a, b) for a in range(n + 1) for b in range(n + 1) if max(a, b) == n and a + b <= 7]
    rq = []; nrd = 12; known = 0
    for Gi in range(28):
        r, n = Gi >> 3, Gi & 7
        rq += rd(Gi + 4)
        while nrd < 3 * (Gi + 1) + c.cmin: A(rq.pop(0)); nrd += 1
        if known < 3 * (Gi + 1):
            want = 3 * (Gi + 1)
            if n in c.cmerge and Gi > 3: want = min(want + 3, nrd - 3)
            A(f"s_waitcnt lgkmcnt({nrd - want})"); known = want
        for (a_, b_) in grp(n):
            A(cm(r, a_, b_))
            if rq: A(rq.pop(0)); nrd += 1
    for l in rq: A(l)
    PR, PP = 148, 116
    odd = A.label("odd"); jn = A.label("jn")
    A(f"s_cmp_eq_u32 s40, 1\ns_cbranch_scc1 {odd}")
    for par in range(2):
        if par:
            for _ in range(c.x_pad // 4): A("s_nop 0")
            target(odd)
        snd = [t for t in range(8) if t % 2 != par]
        def sw(t): return f"ds_write_b128 v{vW}, {v(AC+4*t,4)} offset:{1024*(t>>1)}"
        rest = [p for n in range(4, 8) for p in grp(n)]
        first = [p for p in rest if (p[0] + p[1]) % 2 != par]; last = [p for p in rest if (p[0] + p[1]) % 2 == par]
        A("s_waitcnt lgkmcnt(9)"); got = 4
        for k, p in enumerate(first):
            if max(p) > got: A(f"s_waitcnt lgkmcnt({2 if k > 3 else 3*(7-max(p)) + (1 if k > 1 else 0)})"); got = 7 if k > 3 else max(p)
            A(cm(3, *p))
            if k == 1: A(sw(snd[0]))
            if k == 3: A(sw(snd[1]))
        if got < 7: A("s_waitcnt lgkmcnt(2)")
        for k, p in enumerate(last):
            A(cm(3, *p))
            if k == 2: A(sw(snd[2]))
            if k == 7: A(sw(snd[3]))
        if par == 0: P.stamp(9)
        else: P.stamp(9)
        A("s_waitcnt lgkmcnt(0)\ns_barrier")
        for q in range(4): A(f"ds_read_b128 {v(PR+4*q,4)}, v{vR} offset:{1024*q}\nds_read_b128 {v(PP+4*q,4)}, v3 offset:{2048*q}")
        for q in range(4):
            A(f"s_waitcnt lgkmcnt({6-2*q})")
            k = AC + 4 * (2 * q + par)
            for h in range(2): A(f"v_pk_add_f32 {v(PR+4*q+2*h,2)}, {v(PR+4*q+2*h,2)}, {v(PP+4*q+2*h,2)}")
            for h in range(2): A(f"v_pk_add_f32 {v(PR+4*q+2*h,2)}, {v(PR+4*q+2*h,2)}, {v(k+2*h,2)}")
            o_ = 132 + 2 * q
            A(f"v_cvt_pk_bf16_f32 v{o_}, v{PR+4*q}, v{PR+4*q+1}\nv_cvt_pk_bf16_f32 v{o_+1}, v{PR+4*q+2}, v{PR+4*q+3}")
            if q & 1:
                A(f"v_permlane16_swap_b32 v{o_-2}, v{o_}\nv_permlane16_swap_b32 v{o_-1}, v{o_+1}")
                A(f"global_store_dwordx4 v{vO}, {v(o_-2,4)}, s[30:31] offset:{1024*(q-1)} sc0 sc1")
        if not par: A(f"s_branch {jn}")
    A(f"{jn}:")
    P.stamp(10)
    vB, vAa, vS, vCR, vCA = 8, 10, 12, 14, 16
    vX = 18
    CN, CA, MB = 24, 32, 38
    F = [48, 64, 80]
    ACC = 96
    T1, T2, OUT = 48, 56, 64
    def csetup():
        A(ffn_ids)
        A(f"""
        s_and_b32 s40, s36, 1
        s_bfe_u32 s41, s36, 0x10001
        s_lshr_b32 s49, s36, 2
        v_bfe_u32 v2, v{vLane}, 2, 2
        v_bfe_u32 v3, v{vLane}, 4, 1
        v_lshrrev_b32 v4, 5, v{vLane}
        v_and_b32 v6, 3, v{vLane}
        v_lshl_add_u32 v5, v4, 3, v2
        v_lshlrev_b32 v7, 8, v5
        v_lshl_add_u32 v7, v6, 3, v7
        v_lshl_add_u32 v7, v3, 5, v7
        s_lshl_b32 s42, s40, 1
        s_add_u32 s42, s42, s41
        v_xor_b32 v{vB}, s42, v2
        v_lshl_add_u32 v{vB}, v{vB}, 6, v7
        v_xor_b32 v{vB+1}, 64, v{vB}
        v_add_u32 v17, 0x10000, v{vB}
        v_add_u32 v46, 0x10000, v{vB+1}
        s_lshl_b32 s42, s34, 1
        s_add_u32 s42, s42, s40
        v_xor_b32 v{vX}, s42, v2
        v_lshl_add_u32 v{vX}, v{vX}, 6, v7
        v_lshlrev_b32 v7, 7, v5
        v_lshl_add_u32 v7, v6, 3, v7
        v_lshl_add_u32 v7, v3, 12, v7
        v_lshrrev_b32 v5, 1, v2
        v_lshl_add_u32 v5, v3, 1, v5
        s_lshl_b32 s42, s41, 1
        v_xor_b32 v5, s42, v5
        v_lshl_add_u32 v7, v5, 5, v7
        v_add_u32 v{vAa}, {12*BLK}, v7
        v_xor_b32 v{vAa+1}, 32, v{vAa}
        s_lshl_b32 s42, s39, 2
        s_lshl_b32 s43, s40, 1
        s_add_u32 s42, s42, s43
        s_add_u32 s43, s42, s41
        s_xor_b32 s44, s43, 1
        s_lshl_b32 s45, s38, 3
        s_lshl_b32 s46, s41, 1
        s_add_u32 s45, s45, s46
        s_lshl_b32 s46, s49, 2
        s_add_u32 s45, s45, s46
        s_lshl_b32 s46, s45, 7
        s_add_u32 s45, s45, {WS_ACT // 1024}
        s_mul_i32 s43, s43, 112
        s_mul_i32 s44, s44, 112
        s_add_u32 s43, s43, s45
        s_add_u32 s44, s44, s45
        s_lshl_b32 s43, s43, 10
        s_lshl_b32 s44, s44, 10
        v_lshl_add_u32 v{vS}, v{vLane}, 4, s43
        v_lshl_add_u32 v{vS+1}, v{vLane}, 4, s44
        v_and_b32 v5, 15, v{vLane}
        v_mul_u32_u24 v7, {F_*8}, v3
        v_lshl_add_u32 v5, v5, 3, v7
        s_add_u32 s46, s46, {WS_CS}
        v_add_u32 v{vCA}, s46, v5
        v_and_b32 v5, 31, v{vLane}
        s_lshl_b32 s42, s40, 1
        s_add_u32 s42, s42, s41
        s_lshl_b32 s43, s42, 9
        s_add_u32 s43, s43, {CON}
        v_lshl_add_u32 v{vCR}, v5, 4, s43
        v_xor_b32 v{vCR+1}, 512, v{vCR}
        s_lshl_b32 s43, s39, 11
        s_lshl_b32 s44, s41, 8
        s_add_u32 s43, s43, s44
        s_add_u32 s43, s43, {WS_FLAGS}
        s_lshl_b32 s44, s34, 10
        s_add_u32 s59, s43, s44
        s_lshl_b32 s44, s40, 10
        s_add_u32 s58, s43, s44
        s_lshl_b32 s44, s49, 9
        s_add_u32 s58, s58, s44
        v_mov_b32 v{CA+4}, 0
        v_mov_b32 v{CA+5}, 0
        v_mov_b32 v{MB+2}, 0
        v_mov_b32 v{MB+3}, 0
        v_mov_b32 v{MB+6}, 0
        v_mov_b32 v{MB+7}, 0
        v_cmp_eq_u32 s[52:53], 0, v4
        s_mov_b32 s47, 0x3f803f80
        s_mov_b32 s48, 0xffff0000
        """)
    caload = [f"global_load_dwordx2 {v(CA,2)}, v{vCA}, s[30:31] sc1", f"global_load_dwordx2 {v(CA+2,2)}, v{vCA}, s[30:31] offset:128 sc1"]
    def preads(p, j):
        s, ks = j >> 1, j & 1
        f = F[j % 3]
        ho = (slot[("H", s)] % 8) * BLK + 4096 * ks
        wo = (slot[("W", 14 * p + s)] - 12) * BLK + 2048 * ks
        o = []
        for kind, i in (("B", 0), ("A", 0), ("B", 1), ("A", 1)):
            ab = vB + i if s < 8 else (17, 46)[i]
            if kind == "B": o += [f"ds_read_b64_tr_b16 {v(f+8+4*i,2)}, v{ab} offset:{ho}", f"ds_read_b64_tr_b16 {v(f+10+4*i,2)}, v{ab} offset:{ho+1024}"]
            else: o += [f"ds_read_b64_tr_b16 {v(f+4*i,2)}, v{vAa+i} offset:{wo}", f"ds_read_b64_tr_b16 {v(f+2+4*i,2)}, v{vAa+i} offset:{wo+512}"]
        return o
    def pmfma(j, first=False):
        f = F[j % 3]
        return [f"v_mfma_f32_32x32x16_bf16 {v(ACC+32*t+16*rt,16)}, {v(f+4*t,4)}, {v(f+8+4*rt,4)}, {'0' if first else v(ACC+32*t+16*rt,16)}" for (t, rt) in ((0, 0), (0, 1), (1, 0), (1, 1))]
    def corr(first):
        return [f"v_mfma_f32_32x32x16_bf16 {v(ACC+32*t+16*rt,16)}, {v(CA+2*t,4)}, {v(MB+4*rt,4)}, {'0' if first else v(ACC+32*t+16*rt,16)}" for t in range(2) for rt in range(2)]
    mkmb = [f"v_cndmask_b32 v{MB+4*rt+k}, 0, v{CN+4*rt+3}, s[52:53]" for rt in range(2) for k in range(2)]
    def inter(m, r):
        per_ = (len(r) + 3) // 4
        for i in range(4):
            A(m[i])
            for l in r[per_*i:per_*(i+1)]: A(l)
    def pstep(p, s):
        for h in range(2):
            A("s_waitcnt lgkmcnt(8)")
            inter(pmfma(2*s - 2 + h, p == 0 and s == 1 and h == 0), preads(p, 2*s + h))
        if p == 0 and s - c.ca_load in (0, 1): A(caload[s - c.ca_load])
    def epi(t, rt, n, packed):
        a = ACC + 32 * t + 16 * rt
        cn = CN + 4 * rt
        o_ = OUT + 4 * (n & 1)
        L = []
        if packed:
            L += [f"v_pk_mul_f32 {v(T1+2*q,2)}, {v(a+2*q,2)}, {v(a+2*q,2)}" for q in range(4)]
            L += [f"v_pk_fma_f32 {v(T1+2*q,2)}, {v(T1+2*q,2)}, {v(cn,2)}, {v(cn,2)} op_sel:[0,1,0] op_sel_hi:[1,1,0]" for q in range(4)]
            L += [f"v_pk_mul_f32 {v(T1+2*q,2)}, {v(T1+2*q,2)}, {v(a+2*q,2)}" for q in range(4)]
            L += [f"v_exp_f32 v{T1+q}, v{T1+q}" for q in range(8)]
            L += [f"v_pk_mul_f32 {v(T2+2*q,2)}, {v(a+2*q,2)}, {v(a+8+2*q,2)}" for q in range(4)]
            L += [f"v_pk_fma_f32 {v(T1+2*q,2)}, {v(T1+2*q,2)}, {v(cn+2,2)}, {v(cn+2,2)} op_sel_hi:[1,0,0]" for q in range(4)]
            L += [f"v_rcp_f32 v{T1+q}, v{T1+q}" for q in range(8)]
            L += [f"v_pk_mul_f32 {v(T2+2*q,2)}, {v(T2+2*q,2)}, {v(T1+2*q,2)}" for q in range(4)]
            L += [f"v_cvt_pk_bf16_f32 v{o_+q}, v{T2+2*q}, v{T2+2*q+1}" for q in range(4)]
        else:
            def st(q):
                return [f"v_mul_f32 v{T1+q}, v{a+q}, v{a+q}", f"v_fma_f32 v{T1+q}, v{T1+q}, v{cn+1}, v{cn}", f"v_mul_f32 v{T1+q}, v{T1+q}, v{a+q}",
                        f"v_exp_f32 v{T1+q}, v{T1+q}", f"v_mul_f32 v{T2+q}, v{a+q}, v{a+8+q}", f"v_fma_f32 v{T1+q}, v{T1+q}, v{cn+2}, v{cn+2}",
                        f"v_rcp_f32 v{T1+q}, v{T1+q}", f"v_mul_f32 v{T2+q}, v{T2+q}, v{T1+q}"]
            for q0 in range(0, 8, c.il):
                xs = [st(q) for q in range(q0, q0 + c.il)]
                for k in range(8): L += [x[k] for x in xs]
                L += [f"v_cvt_pk_bf16_f32 v{o_+q//2}, v{T2+q}, v{T2+q+1}" for q in range(q0, q0 + c.il, 2)]
        L += [f"global_store_dwordx4 v{vS+rt}, {v(o_,4)}, s[30:31] offset:{1024*t} {c.stflag}"]
        return L
    def cost(l): return 2 if l.startswith(("v_exp", "v_rcp", "v_sqrt")) else c.stcost if l.startswith("global_store") else 1
    def signal(t, later=None):
        A(f"s_mov_b32 s70, 1\ns_waitcnt vmcnt({2-2*t if later is None else later})\ns_atomic_add s70, s[30:31], s58\ns_add_u32 s58, s58, 128")
    def poll_issue(r, off):
        A(f"s_mov_b32 s{r}, 0\ns_add_u32 s68, s59, {off}\ns_atomic_add s{r}, s[30:31], s68 glc")
    def poll_wait(r, off, inline=False):
        pl = A.label("poll"); ok = A.label("ok")
        if inline:
            A(f"s_mov_b32 s45, 0\n{pl}:\ns_waitcnt lgkmcnt(0)\ns_cmp_ge_u32 s{r}, 14\ns_cbranch_scc1 {ok}")
            poll_issue(r, off)
            A(f"s_add_u32 s45, s45, 1\ns_cmp_lt_u32 s45, {SPIN}\ns_cbranch_scc1 {pl}\ns_waitcnt lgkmcnt(0)\n{ok}:")
            return
        A(f"s_waitcnt lgkmcnt(0)\ns_cmp_lt_u32 s{r}, 14\ns_cbranch_scc1 {pl}\n{ok}:")
        with Cold():
            A(f"{pl}:\ns_mov_b32 s45, 0\n{pl}b:")
            poll_issue(r, off)
            A(f"s_add_u32 s45, s45, 1\ns_waitcnt lgkmcnt(0)\ns_cmp_ge_u32 s{r}, 14\ns_cbranch_scc1 {ok}\ns_cmp_lt_u32 s45, {SPIN}\ns_cbranch_scc1 {pl}b\ns_branch {ok}")
    PA_, PB_ = 69, 71
    Q = Bars([0, 14, c.drain0[1] + 1, 29], 13)
    AC2, ID, HF = 80, 160, 72
    csetup()
    if c.emode: A(f"s_waitcnt vmcnt(0)\ns_sleep {c.emode}")
    A("s_waitcnt vmcnt(0)\ns_barrier")
    P.stamp(11)
    A(f"""
    s_lshl_b32 s43, s35, 1
    s_add_u32 s43, s43, s41
    s_sub_u32 s43, s43, s38
    s_cselect_b32 s44, 14, 0
    s_add_u32 s43, s43, s44
    s_cmp_ge_u32 s43, 12
    s_cselect_b32 s44, {2 if c.w8 else 0}, 0
    s_add_u32 s43, s43, s44
    s_lshl_b32 s43, s43, 13
    v_add_u32 v{vX}, s43, v{vX}
    v_lshlrev_b32 v7, 3, v4
    v_sub_u32 v7, v5, v7
    v_mov_b32 v{vX+1}, 0x3f80
    v_mov_b32 v{vX+2}, 1.0
    """)
    for j in range(2):
        for i in range(4):
            d0 = 16 * j + 2 * i
            A(f"v_cmp_eq_u32 vcc, {d0}, v7\nv_cmp_eq_u32 s[50:51], {d0+1}, v7\nv_cndmask_b32 v{ID+4*j+i}, 0, v{vX+1}, vcc\nv_cndmask_b32 v{ID+4*j+i}, v{ID+4*j+i}, v{vX+2}, s[50:51]")
    A("s_setprio 2")
    Q.bar()
    P.stamp(12)
    for l in preads(0, 0) + preads(0, 1): A(l)
    for s in range(1, 14):
        Q.bar(); pstep(0, s)
    Q.bar()
    r = [f"ds_read_b128 {v(CN+4*i,4)}, v{vCR+i}" for i in range(2)] + [f"ds_read_b64_tr_b16 {v(HF+2*i,2)}, v{vX} offset:{4096*(i>>1)+1024*(i&1)}" for i in range(4)]
    A("s_waitcnt lgkmcnt(8)"); inter(pmfma(26), r)
    A("s_waitcnt vmcnt(0) lgkmcnt(4)"); inter(pmfma(27), mkmb)
    for l in corr(False): A(l)
    A("s_waitcnt lgkmcnt(0)")
    A("s_setprio 0")
    E1 = []
    for n in range(4): E1 += epi(n >> 1, n & 1, n, c.e1_packed)
    tot = sum(cost(x) for x in E1); per1 = tot / (c.e1_last - c.e1_first + 1); bud = 0.0
    vD, vT = 8, 14
    gsetup = f"""
    v_lshl_add_u32 v7, v4, 2, v2
    v_lshlrev_b32 v7, 7, v7
    v_lshrrev_b32 v{vD}, 1, v2
    v_xor_b32 v{vD}, s41, v{vD}
    v_lshl_add_u32 v7, v{vD}, 6, v7
    v_lshl_add_u32 v7, v3, 5, v7
    v_lshl_add_u32 v7, v6, 3, v7
    s_lshl_b32 s43, s41, 12
    v_add_u32 v{vD}, s43, v7
    v_xor_b32 v{vD+1}, 64, v{vD}
    v_add_u32 v{vD+2}, 0x10000, v{vD}
    v_add_u32 v{vD+3}, 0x10000, v{vD+1}
    v_lshlrev_b32 v{vT}, 4, v{vLane}
    """
    gsetup2 = f"""
    s_lshl_b32 s43, s39, 2
    s_lshl_b32 s44, s34, 1
    s_add_u32 s43, s43, s44
    s_add_u32 s43, s43, s40
    s_mul_i32 s55, s43, {112*1024}
    s_mul_i32 s43, s43, {32*896}
    s_lshl_b32 s44, s35, 7
    s_add_u32 s43, s43, s44
    s_lshl_b32 s44, s41, 6
    s_add_u32 s43, s43, s44
    v_mul_u32_u24 v5, 896, v5
    v_lshl_add_u32 v5, v4, 4, v5
    v_add_u32 v5, s43, v5
    s_lshl_b32 s44, s41, 11
    s_add_u32 s55, s55, s44
    s_lshl_b32 s54, s33, 13
    s_add_u32 s54, s54, s55
    s_add_u32 s55, s55, {14*8192}
    s_add_u32 s64, s30, {WS_ACT}
    s_addc_u32 s65, s31, 0
    s_mov_b32 s66, {ACT_BYTES}
    s_mov_b32 s67, 0x20000
    """
    TRQ = [96 + 4 * k for k in range(18)] + [16, 20, 24, 28]
    DB = [32, 40, 48, 56]
    AO = [AC2, 64]
    seq = [(14 * hf + b, j) for hf in range(2) for j in range(2) for b in range(14)]
    cons = [(b, j) for b in range(14) for j in range(2)] + seq[28:]
    freeq = list(TRQ); treg = {}
    def tload(n):
        b, j = seq[n]
        if (b, j) not in treg: treg[(b, j)] = freeq.pop(0)
        o = []
        if n == 28: o += ["s_add_u32 s54, s54, 4096", "s_add_u32 s55, s55, 4096"]
        o += [f"buffer_load_dwordx4 {v(treg[(b, j)],4)}, v{vT}, s[64:67], s54 offen offset:{1024*j} sc1"]
        o += ["s_add_u32 s54, s54, 8192", "s_cmp_ge_u32 s54, s55", f"s_cselect_b32 s57, {14*8192}, 0", "s_sub_u32 s54, s54, s57"]
        return o
    nst = 0; early = 0
    assert c.drain0[1] <= c.chkA and c.e1_last + 2 <= c.chkA and sum(c.earlyT) <= 14
    for i in range(15, 29):
        Q.bar()
        if i == c.drain0[0]:
            assert nst >= 2
            signal(0, nst - 2)
        if i >= c.e1_first:
            bud += per1
            while E1 and (bud > 0 or i == c.e1_last):
                x = E1.pop(0); A(x); bud -= cost(x)
                if x.startswith("global_store"): nst += 1
        if i == c.pollA: poll_issue(PA_, 0)
        if i == c.e1_last + 1: A(gsetup)
        if i == c.e1_last + 2: A(gsetup2)
        if i == c.chkA: A("s_waitcnt lgkmcnt(0)")
        if i == c.drain0[1]:
            signal(1)
            A(f"v_add_u32 v{vD+4}, 0x20000, v{vD}\nv_add_u32 v{vD+5}, 0x20000, v{vD+1}")
        if i == c.poll0: poll_issue(PB_, 128)
        if 0 <= i - c.chkA < len(c.earlyT):
            sk = A.label("et")
            A(f"s_cmp_lt_u32 s{PA_}, 14\ns_cbranch_scc1 {sk}")
            for _ in range(c.earlyT[i - c.chkA]):
                for l in tload(early): A(l)
                early += 1
            A(f"{sk}:")
    Q.bar()
    A(f"v_mfma_f32_32x32x16_bf16 {v(AC2,16)}, {v(ID,4)}, {v(HF,4)}, 0")
    A(f"v_mfma_f32_32x32x16_bf16 {v(AC2,16)}, {v(ID+4,4)}, {v(HF+4,4)}, {v(AC2,16)}")
    sk = A.label("et")
    A(f"s_cmp_lt_u32 s{PA_}, 14\ns_cbranch_scc1 {sk}c\n{sk}:")
    with Cold():
        A(f"{sk}c:")
        poll_wait(PA_, 0, True)
        for n in range(early):
            for l in tload(n): A(l)
        A(f"s_branch {sk}")
    def dreads(n):
        b, j = cons[n]
        sd = slot[("D", b)]; f = DB[n & 3]
        o = []
        for nt in range(2):
            do = (sd % 8) * BLK + 2048 * j
            ad = vD + 2 * (sd // 8) + nt
            o += [f"ds_read_b64_tr_b16 {v(f+4*nt,2)}, v{ad} offset:{do}", f"ds_read_b64_tr_b16 {v(f+4*nt+2,2)}, v{ad} offset:{do+1024}"]
        return o
    def gm(n):
        f = DB[n & 3]
        return [f"v_mfma_f32_32x32x16_bf16 {v(AO[nt],16)}, {v(f+4*nt,4)}, {v(treg[cons[n]],4)}, {'0' if (n == 0 and nt == 1) else v(AO[nt],16)}" for nt in (1, 0)]
    issued = early; mk = 0
    while issued < 14:
        for l in tload(issued): A(l)
        issued += 1
    poll_wait(PB_, 128, True)
    Q.mark(mk); mk += 1
    lim = 28
    for n in range(56):
        if n == 14: A("s_waitcnt lgkmcnt(0)\ns_barrier")
        for y in (c.ya_at, c.yb_at):
            if n == y:
                A("s_barrier")
                Q.mark(mk); mk += 1
                lim += 14
        k = 99 if n == 0 else c.pace.get(n, c.pace1 if n < 28 else c.pace2)
        while issued < lim and freeq and k > 0:
            for l in tload(issued): A(l)
            issued += 1; k -= 1
        assert seq.index(cons[n]) < issued
        if n == 0:
            for l in dreads(0) + dreads(1): A(l)
        if n == c.g_pre:
            if c.xe: A("s_barrier")
            Q.mark(mk); mk += 1
        r = dreads(n + 2) if n + 2 < 56 else []
        A(f"s_waitcnt vmcnt({issued-1-seq.index(cons[n])}) lgkmcnt({4 if n < 55 else 0})")
        if n in (28, 42): Q.mark(mk); mk += 1
        m = gm(n)
        for i in range(2):
            A(m[i])
            for l in r[2*i:2*i+2]: A(l)
        freeq.append(treg[cons[n]])
    assert 14 < c.ya_at <= 26 and c.ya_at <= c.yb_at <= 32 and c.yb_at >= 24
    while mk < 6: Q.mark(mk); mk += 1
    Q.mark(6)
    assert all(slot[("D", b)] not in (8, 9) for b in range(11, 28))
    A(f"""
    s_lshl_b32 s43, s36, 12
    s_add_u32 s43, s43, {8*BLK}
    v_lshl_add_u32 v2, v{vLane}, 4, s43
    v_xor_b32 v3, 0x2000, v2
    """)
    for q in range(4): A(f"ds_write_b128 v2, {v(AO[1]+4*q,4)} offset:{1024*q}")
    A("s_waitcnt lgkmcnt(0)\ns_barrier")
    for q in range(4): A(f"ds_read_b128 {v(32+4*q,4)}, v3 offset:{1024*q}")
    for hq in range(2):
        A(f"s_waitcnt lgkmcnt({2-2*hq})")
        for q in range(4*hq, 4*hq+4): A(f"v_pk_add_f32 {v(AC2+2*q,2)}, {v(AC2+2*q,2)}, {v(32+2*q,2)}")
        for q in range(4*hq, 4*hq+4): A(f"v_cvt_pk_bf16_f32 v{48+q}, v{AC2+2*q}, v{AC2+2*q+1}")
        A(f"v_permlane32_swap_b32 v{48+4*hq}, v{48+4*hq+2}\nv_permlane32_swap_b32 v{48+4*hq+1}, v{48+4*hq+3}")
        A(f"global_store_dwordx4 v5, {v(48+4*hq,4)}, s[26:27] offset:{32*hq} {c.outflag}")
    Q.fin(7)
    A("s_endpgm")
    target(nw)
    A(f"s_and_b32 s46, s36, 3\ns_mov_b32 s45, 0\nv_mov_b32 v11, {TAGA}")
    def xpoll():
        for l in xp: A(l)
    A("s_waitcnt lgkmcnt(0)\ns_barrier")
    P.stamp(5)
    A(f"""
    ds_read_b32 v11, v11
    s_lshl_b32 s47, s46, 10
    s_add_u32 s47, s47, {UO+512}
    v_xor_b32 v9, 3, v{vLane}
    v_lshl_add_u32 v9, v9, 2, s47
    s_lshl_b32 s47, s46, 11
    v_lshrrev_b32 v5, 3, v{vLane}
    v_lshl_add_u32 v5, v5, 4, s47
    v_bfe_u32 v6, v{vLane}, 1, 2
    v_lshl_add_u32 v5, v6, 8, v5
    v_and_b32 v6, 1, v{vLane}
    v_lshl_add_u32 v10, v6, 3, v5
    """)
    if not c.xp_at:
        if c.poll_late: A(f"s_sleep {c.poll_late}")
        xpoll()
    if not c.xp_chk:
        A(f"s_mov_b32 s45, 1\ns_barrier\ns_setprio {c.nprio}")
    pl = A.label("xp"); ok = A.label("xok"); nb1 = A.label("xnb")
    A(f"{pl}:\ns_waitcnt vmcnt(0) lgkmcnt(0)\nv_min3_u32 v4, v{vPX+1}, v{vPX+3}, v11\nv_max3_u32 v5, v{vPX+1}, v{vPX+3}, v11")
    for q in range(1, 8): A(f"v_min3_u32 v4, v4, v{vPX+4*q+1}, v{vPX+4*q+3}\nv_max3_u32 v5, v5, v{vPX+4*q+1}, v{vPX+4*q+3}")
    assert not c.xp_chk
    A(f"v_cmp_ne_u32 vcc, v4, v5\ns_cbranch_vccnz {pl}c\n{ok}:")
    with Cold():
        A(f"{pl}c:\ns_add_u32 s45, s45, 1\ns_cmp_gt_u32 s45, {SPIN}\ns_cbranch_scc1 {ok}")
        if c.xmask:
            for q in range(8):
                A(f"v_cmp_ne_u32 vcc, v{vPX+4*q+1}, v11\nv_cmp_ne_u32 s[50:51], v{vPX+4*q+3}, v11\ns_or_b64 exec, vcc, s[50:51]\ns_cbranch_execz {pl}m{q}\n{xp[q]}\n{pl}m{q}:\ns_mov_b64 exec, -1")
        else: xpoll()
        A(f"s_branch {pl}")
    P.stamp(6)
    if c.x_cnt: A("s_waitcnt lgkmcnt(0)\ns_mul_i32 s74, s45, 100\ns_add_u32 s74, s74, s72")
    NU, PRE, UB = 16, 32, 48
    for half in range(2):
        st = []
        for r in range(4 * half, 4 * half + 4):
            S = vPS_ + 2 * r; X = vPX + 2 * r
            t = 60 + 4 * (r & 3)
            st.append([f"v_and_b32 v{t+2}, s43, v{S}", f"v_rcp_f32 v{t+2}, v{t+2}", f"v_lshlrev_b32 v{t}, 16, v{S}",
                  f"v_lshlrev_b32 v{PRE+2*r}, 16, v{X}", f"v_and_b32 v{PRE+2*r+1}, s43, v{X}",
                  f"v_pk_add_f32 {v(NU+2*r,2)}, {v(PRE+2*r,2)}, {v(t,2)} op_sel_hi:[1,0] neg_lo:[0,1] neg_hi:[0,1]" if c.npk else f"v_sub_f32 v{NU+2*r}, v{PRE+2*r}, v{t}\nv_sub_f32 v{NU+2*r+1}, v{PRE+2*r+1}, v{t}",
                  f"v_cvt_pk_bf16_f32 v{NU+2*r+1}, v{NU+2*r}, v{NU+2*r+1}",
                  f"v_lshlrev_b32 v{NU+2*r}, 16, v{NU+2*r+1}", f"v_and_b32 v{NU+2*r+1}, s43, v{NU+2*r+1}",
                  f"v_pk_mul_f32 {v(NU+2*r,2)}, {v(NU+2*r,2)}, {v(t+2,2)} op_sel_hi:[1,0]" if c.npk else f"v_mul_f32 v{NU+2*r}, v{NU+2*r}, v{t+2}\nv_mul_f32 v{NU+2*r+1}, v{NU+2*r+1}, v{t+2}"])
        for l in merge(*st): A(l)
        for ch in range(2):
            for k in (2 * half, 2 * half + 1): A(f"v_cvt_pk_bf16_f32 v{UB+4*ch+k}, v{NU+4*k+2+ch}, v{NU+4*k+ch}")
    P.stamp(7)
    for half in range(2):
        for ch in range(2):
            A(f"ds_write2st64_b32 v9, v{UB+4*ch+2*half}, v{UB+4*ch+2*half+1} offset0:{ch*UPITCH//256+2*half} offset1:{ch*UPITCH//256+2*half+1}")
    A("s_setprio 0\ns_waitcnt lgkmcnt(0)\ns_barrier")
    P.stamp(8)
    if c.x_quietN: A("s_sleep 60")
    PO = 60
    for ch in range(2):
        for k in range(4):
            A(f"v_lshlrev_b32 v4, 16, v{UB+4*ch+k}\nv_and_b32 v5, s43, v{UB+4*ch+k}")
            A(f"v_fma_f32 v{PO+8*ch+2*k+1}, v4, s{58+ch}, v{PRE+4*k+2+ch}\nv_fma_f32 v{PO+8*ch+2*k}, v5, s{58+ch}, v{PRE+4*k+ch}")
            A(f"ds_write_b64 v10, {v(PO+8*ch+2*k,2)} offset:{32768*ch+1024*(k>>1)+128*(k&1)}")
    A("v_mov_b32 v90, v11")
    csetup()
    Q = Bars([0, c.gat_check, c.gat_check + 1, 14, 28, 29], 10)
    ST, GA = 18, 96
    vPS, vGA = 22, 23
    A(f"""
    s_mul_i32 s43, s39, {14*1024}
    s_lshl_b32 s44, s42, 8
    s_add_u32 s43, s43, s44
    s_add_u32 s43, s43, {WS_PS}
    v_lshl_add_u32 v{vPS}, v5, 3, s43
    v_mul_u32_u24 v7, 7168, v4
    v_add3_u32 v{vGA}, v{vPS}, v7, 64
    v_add_u32 v{vGA}, {3072-64}, v{vGA}
    s_lshl_b32 s44, s38, 10
    v_add_u32 v{vPS}, s44, v{vPS}
    """)
    nb = A.label("nb"); pz = A.label("pz"); pzo = A.label("pzo")
    A(f"""
    s_cmp_lg_u32 s36, 4
    s_cbranch_scc1 {nb}
    v_min_u32 v47, 55, v{vLane}
    v_lshlrev_b32 v47, 5, v47
    v_add_u32 v47, {WS_PZ}, v47
    s_mov_b32 s45, 0
    {pz}:
    s_sleep {c.pz_sleep}
    global_load_dwordx4 v[48:51], v47, s[30:31] sc1
    global_load_dwordx4 v[52:55], v47, s[30:31] offset:16 sc1
    s_waitcnt vmcnt(0)
    v_min3_u32 v56, v48, v49, v90
    v_max3_u32 v57, v48, v49, v90
    v_min3_u32 v56, v50, v51, v56
    v_max3_u32 v57, v50, v51, v57
    v_min3_u32 v56, v52, v53, v56
    v_max3_u32 v57, v52, v53, v57
    v_min3_u32 v56, v54, v55, v56
    v_max3_u32 v57, v54, v55, v57
    v_cmp_ne_u32 vcc, v56, v57
    s_cbranch_vccz {pzo}
    s_add_u32 s45, s45, 1
    s_cmp_lt_u32 s45, {SPIN}
    s_cbranch_scc1 {pz}
    {pzo}:
    s_cmp_lg_u32 s2, 0
    s_cbranch_scc1 {nb}
    v_mov_b32 v47, {WS_E}
    s_mov_b64 exec, 1
    global_store_dword v47, v90, s[30:31]
    s_mov_b64 exec, -1
    {nb}:
    """)
    P.stamp(9)
    A("s_waitcnt lgkmcnt(0)\ns_barrier\ns_barrier")
    def gat(js=range(7)):
        for j in js: A(f"global_load_dwordx2 {v(GA+2*j,2)}, v{vGA}, s[30:31] offset:{1024*j-3072} sc1")
    S, Qv = GA, GA + 1
    work = [f"v_add_f32 v{GA+k}, v{GA+k}, v{GA+2*j+k}" for j in range(1, 7) for k in range(2)]
    work += [f"v_mov_b32 v{GA+2}, v{GA}", f"v_mov_b32 v{GA+3}, v{GA+1}", f"v_permlane32_swap_b32 v{GA}, v{GA+2}", f"v_permlane32_swap_b32 v{GA+1}, v{GA+3}",
             f"v_add_f32 v{GA}, v{GA}, v{GA+2}", f"v_add_f32 v{GA+1}, v{GA+1}, v{GA+3}"]
    work += [l.strip() for l in f"""
    v_mul_f32 v{S}, {f32(1.0/448)}, v{S}
    v_mul_f32 v{Qv}, {f32(1.0/448)}, v{Qv}
    v_fma_f32 v{Qv}, -v{S}, v{S}, v{Qv}
    v_max_f32 v{Qv}, 0, v{Qv}
    v_cvt_pk_bf16_f32 v{CN+3}, -v{S}, -v{S}
    v_cvt_pk_bf16_f32 v{Qv}, v{Qv}, v{Qv}
    v_and_b32 v{Qv}, s48, v{Qv}
    v_add_f32 v{Qv}, {f32(1e-5)}, v{Qv}
    v_cvt_pk_bf16_f32 v{Qv}, v{Qv}, v{Qv}
    v_and_b32 v{Qv}, s48, v{Qv}
    v_sqrt_f32 v{Qv}, v{Qv}
    v_cvt_pk_bf16_f32 v{Qv}, v{Qv}, v{Qv}
    v_and_b32 v{Qv}, s48, v{Qv}
    v_rcp_f32 v{S}, v{Qv}
    v_mul_f32 v{CN+2}, v{Qv}, v{Qv}
    v_mul_f32 v{CN}, {f32(GK0)}, v{S}
    v_mul_f32 v{CN+1}, v{S}, v{S}
    v_mul_f32 v{CN+1}, v{CN+1}, v{S}
    v_mul_f32 v{CN+1}, {f32(GK1)}, v{CN+1}
    ds_write_b128 v{vCR}, {v(CN,4)}
    """.strip().split("\n")]
    nwi = c.con_write - c.gat_check
    wper = (len(work) + nwi - 1) // nwi
    for i in range(14):
        Q.bar()
        if i == 0:
            for k in range(4): A(f"ds_read_b64_tr_b16 {v(F[0]+2*k,2)}, v{vB} offset:{4096*(k>>1)+1024*(k&1)}")
        if i == 1:
            A("s_waitcnt lgkmcnt(0)")
            for k in range(8):
                z = k < 2
                A(f"v_dot2_f32_bf16 v{ST+(k&1)}, v{F[0]+k}, s47, {'0' if z else 'v%d' % (ST+(k&1))}\nv_dot2_f32_bf16 v{ST+2+(k&1)}, v{F[0]+k}, v{F[0]+k}, {'0' if z else 'v%d' % (ST+2+(k&1))}")
        if i == 2:
            A(f"""
            v_add_f32 v{ST}, v{ST}, v{ST+1}
            v_add_f32 v{ST+1}, v{ST+2}, v{ST+3}
            v_mov_b32 v{ST+2}, v{ST}
            v_mov_b32 v{ST+3}, v{ST+1}
            v_permlane32_swap_b32 v{ST}, v{ST+2}
            v_permlane32_swap_b32 v{ST+1}, v{ST+3}
            v_add_f32 v{ST}, v{ST}, v{ST+2}
            v_add_f32 v{ST+1}, v{ST+1}, v{ST+3}
            v_or_b32 v{ST+1}, 1, v{ST+1}
            s_mov_b32 exec_hi, 0
            global_store_dwordx2 v{vPS}, {v(ST,2)}, s[30:31] sc0 sc1
            s_mov_b32 exec_hi, -1
            """)
        if i in (c.cs_issue, c.ca_load - 1):
            sk = A.label("css")
            A(f"s_cmp_lg_u32 s36, 4\ns_cbranch_scc1 {sk}")
            if i == c.cs_issue: A(f"global_load_dword v47, v{MB+2}, s[28:29] sc1")
            else:
                pl = A.label("cs")
                A(f"s_mov_b32 s45, 0\n{pl}:\ns_waitcnt vmcnt(0)\nv_cmp_gt_u32 vcc, 64, v47\ns_cbranch_vccz {sk}\ns_sleep 32\nglobal_load_dword v47, v{MB+2}, s[28:29] sc1\ns_add_u32 s45, s45, 1\ns_cmp_lt_u32 s45, {SPIN}\ns_cbranch_scc1 {pl}")
            A(f"{sk}:")
        k0 = i - (c.gat_issue - len(c.gat_split) + 1)
        if 0 <= k0 < len(c.gat_split) and not c.x_nogat: gat(range(sum(c.gat_split[:k0]), sum(c.gat_split[:k0+1])))
        if i == c.gat_check and not c.x_nogat:
            pl = A.label("gp"); ok = A.label("gok")
            A(f"s_mov_b32 s45, 0\n{pl}:\ns_waitcnt vmcnt(0)\nv_min3_u32 v7, v{GA+1}, v{GA+3}, v{GA+5}\nv_min3_u32 v7, v7, v{GA+7}, v{GA+9}\nv_min3_u32 v7, v7, v{GA+11}, v{GA+13}")
            A(f"v_cmp_eq_u32 vcc, 0, v7\ns_cbranch_vccnz {pl}c\n{ok}:")
            with Cold():
                A(f"{pl}c:\ns_add_u32 s45, s45, 1\ns_cmp_ge_u32 s45, {SPIN}\ns_cbranch_scc1 {ok}")
                gat()
                A(f"s_branch {pl}")
        if c.gat_check < i <= c.con_write:
            for l in work[:wper]: A(l)
            work = work[wper:]
        if i == c.ca_load:
            for l in caload: A(l)
        if i == 13:
            assert not work
            A("s_waitcnt vmcnt(0) lgkmcnt(0)")
    Q.bar()
    A(f"ds_read_b128 {v(CN+4,4)}, v{vCR+1}")
    for l in preads(1, 0): A(l)
    A("s_waitcnt lgkmcnt(8)")
    for l in mkmb + preads(1, 1): A(l)
    for l in corr(True): A(l)
    A(f"s_setprio {c.prioB}")
    for s in range(1, 14):
        Q.bar(); pstep(1, s)
    Q.bar()
    A("s_waitcnt lgkmcnt(8)")
    for l in pmfma(26): A(l)
    A("s_waitcnt lgkmcnt(0)")
    Q.bar()
    for l in pmfma(27): A(l)
    for n in range(4):
        for l in epi(n >> 1, n & 1, n, True): A(l)
    Q.mark(0)
    A("s_setprio 0")
    if c.xe: A("s_barrier")
    signal(0)
    Q.mark(1)
    if c.pa_early: poll_issue(PA_, 512)
    signal(1)
    Q.mark(2)
    if not c.pa_early: poll_issue(PA_, 512)
    A("s_barrier")
    poll_wait(PA_, 512, True)
    poll_issue(PB_, 640)
    Q.mark(3)
    A("s_barrier")
    poll_wait(PB_, 640, True)
    Q.mark(4)
    A("s_barrier")
    Q.fin(5)
    A("s_waitcnt lgkmcnt(0)\ns_endpgm")
    A(f".p2align 3\n{auxt}:")
    PA.stamp(1)
    srd(A, 64, 30, XG_BYTES, WS_XG)
    A(f"""
    v_and_b32 v4, 15, v{vLane}
    v_lshrrev_b32 v5, 4, v{vLane}
    v_lshl_add_u32 v6, v4, 8, s46
    v_lshl_add_u32 v6, v5, 2, v6
    v_and_b32 v7, 7, v4
    v_lshl_add_u32 v6, v7, 4, v6
    v_lshlrev_b32 v9, 14, v5
    v_lshl_add_u32 v9, v4, 4, v9
    s_lshl_b32 s46, s36, 2
    s_add_u32 s46, s46, {TAGA}
    v_mov_b32 v2, s46
    """)
    for k in range(1, 8): A(f"v_xor_b32 v{80+k}, {16*k}, v6")
    A("s_waitcnt lgkmcnt(0)\ns_add_u32 s57, s57, 1\ns_and_b32 s57, s57, 0xffff\ns_or_b32 s57, s57, 0x7f810000")
    for k in range(16): A(f"v_mov_b32 v{vXG+2*k+1}, s57")
    A(f"s_mov_b64 exec, 1\nds_write_b32 v2, v{vXG+1}\ns_mov_b64 exec, -1\ns_waitcnt vmcnt(0)")
    PA.stamp(2)
    for k in range(8):
        ad = 6 if k == 0 else 80 + k
        A(f"ds_read_b32 v{vXG+4*k}, v{ad}\nds_read_b32 v{vXG+4*k+2}, v{ad} offset:128")
    for k in range(8):
        A(f"s_waitcnt lgkmcnt({14-2*k})\nbuffer_store_dwordx4 {v(vXG+4*k,4)}, v9, s[64:67], s51 offen sc0 sc1")
        if k < 7: A(f"s_add_u32 s51, s51, {4*16384}")
    PA.stamp(3)
    A(f"""
    v_mov_b32 v24, 0
    v_mov_b32 v25, 0
    s_lshl_b32 s43, s2, 1
    s_add_u32 s43, s43, s36
    s_lshl_b32 s44, s43, 9
    s_add_u32 s44, s44, {WS_PS}
    v_lshl_add_u32 v3, v{vLane}, 3, s44
    global_store_dwordx2 v3, v[24:25], s[30:31] sc0 sc1
    s_and_b32 s44, s43, 255
    s_lshl_b32 s44, s44, 7
    s_add_u32 s44, s44, {WS_FLAGS}
    v_mov_b32 v4, s44
    s_mov_b64 exec, 1
    global_store_dword v4, v24, s[30:31] sc0 sc1
    s_mov_b64 exec, -1
    s_lshl_b32 s44, s43, 2
    s_add_u32 s44, s44, {WS_PZ}
    v_mov_b32 v22, s44
    v_mov_b32 v23, s57
    s_setprio 0
    """)
    if c.warm:
        A("s_cmp_eq_u32 s36, 1\ns_cbranch_scc1 Lwm1")
        for lab in ("Lmw", nw, odd): A(f"s_call_b64 s[96:97], {lab}w")
        A("s_branch Lwm2\nLwm1:")
        for k in range(1, 4): A(f"s_call_b64 s[96:97], Lpw{k}")
        A("Lwm2:")
    A("s_barrier")
    if c.warm:
        A("s_cmp_eq_u32 s36, 1\ns_cbranch_scc1 Lwm3")
        for k in range(4, c.npg + 1, 2): A(f"s_call_b64 s[96:97], Lpw{k}")
        A("s_branch Lwm4\nLwm3:")
        for k in range(5, c.npg + 1, 2): A(f"s_call_b64 s[96:97], Lpw{k}")
        A("Lwm4:")
    aW, aD, aH = 8, 12, 8
    sW, sD, eW, eD = 41, 42, 45, 46
    def daddr():
        A(ffn_ids)
        A(f"""
        v_lshrrev_b32 v6, 3, v{vLane}
        v_and_b32 v7, 7, v{vLane}
        v_and_b32 v5, 2, v6
        v_lshlrev_b32 v4, 1, v5
        v_xor_b32 v4, v4, v7
        v_mul_u32_u24 v3, 896, v6
        v_lshl_add_u32 v{aD}, v4, 4, v3
        v_add_u32 v{aD+1}, {1*(8*896-1024)}, v{aD}
        v_add_u32 v{aD+2}, {2*(8*896-1024)}, v{aD}
        v_add_u32 v{aD+3}, {3*(8*896-1024)}, v{aD}
        s_lshl_b32 s{eD}, s35, 7
        s_mul_i32 s32, s36, {32*896}
        s_add_u32 s{eD}, s{eD}, s32
        s_mul_i32 s{sD}, s33, {128*896}
        s_add_u32 s{sD}, s{sD}, s{eD}
        s_add_u32 s{eD}, s{eD}, {14*128*896}
        s_lshl_b32 s32, s36, 12
        v_lshl_add_u32 v16, v{vLane}, 4, s32
        v_add_u32 v17, 0x10000, v16
        v_add_u32 v18, 0x20000, v16
        """)
        srd(A, 60, 24, W_BYTES)
    def fifo_load(first, n, reg0):
        if c.x_nopre: return
        hf = 64 * 896 if first >= 14 else 0
        assert first >= 14 or first + n <= 14
        A(f"s_add_u32 s43, s{sD}, {hf + (first % 14)*128*896}\ns_add_u32 s44, s{eD}, {hf}")
        for b in range(n):
            A(f"s_cmp_ge_u32 s43, s44\ns_cselect_b32 s34, {14*128*896}, 0\ns_sub_u32 s43, s43, s34")
            for i in range(4): A(f"buffer_load_dwordx4 {v(reg0+16*b+4*i,4)}, v{aD+i}, s[60:63], s43 offen offset:{1024*i}")
            A(f"s_add_u32 s43, s43, {128*896}")
            if c.fdepth is not None: A(f"s_waitcnt vmcnt({c.fdepth})")
    def fifo_put(first, n, reg0):
        for b in range(n):
            sl = slot[("D", first + b)]
            for i in range(4): A(f"ds_write_b128 v{16+sl//8}, {v(reg0+16*b+4*i,4)} offset:{(sl%8)*BLK+1024*i}")
    daddr()
    A(f"""
    v_xor_b32 v4, v5, v7
    s_lshl_b32 s43, s36, 2
    v_xor_b32 v4, s43, v4
    v_mul_u32_u24 v3, 3584, v6
    v_lshl_add_u32 v{aW}, v4, 4, v3
    v_add_u32 v{aW+1}, {1*(8*3584-1024)}, v{aW}
    v_add_u32 v{aW+2}, {2*(8*3584-1024)}, v{aW}
    v_add_u32 v{aW+3}, {3*(8*3584-1024)}, v{aW}
    s_lshl_b32 s{eW}, s38, 8
    s_mul_i32 s{sW}, s38, {32*3584}
    s_add_u32 s{sW}, s{sW}, s{eW}
    s_add_u32 s{eW}, s{eW}, {14*32*3584}
    s_cmp_eq_u32 s36, 0
    s_cselect_b32 s20, s20, s22
    s_cselect_b32 s21, s21, s23
    """)
    srd(A, 52, 20, W_BYTES)
    A(f"""
    v_mov_b32 v20, 0
    v_mov_b32 v21, 0
    v_lshrrev_b32 v4, 4, v{vLane}
    v_mul_u32_u24 v4, {KP}, v4
    v_and_b32 v5, 15, v{vLane}
    v_lshl_add_u32 v4, v5, 2, v4
    s_lshl_b32 s43, s36, 15
    v_add_u32 v4, s43, v4
    s_mul_i32 s43, s36, {UPITCH}
    s_add_u32 s43, s43, {UO}
    v_lshl_add_u32 v3, v{vLane}, 3, s43
    """)
    A("s_waitcnt vmcnt(0)\ns_mov_b64 exec, 1\nglobal_store_dword v22, v23, s[30:31] sc0 sc1\ns_mov_b64 exec, -1")
    A(f"s_barrier\nds_write_b32 v4, v20 offset:{KB0}\nds_write_b64 v3, v[20:21]")
    if c.lf_at == 'B': fifo_load(14, 6, 24)
    A("s_waitcnt lgkmcnt(0)\ns_barrier")
    def dma(kind, idx, i):
        if kind == "F":
            if i == 0:
                if idx == 14: A(f"s_add_u32 s43, s{sD}, {64*896}\ns_add_u32 s44, s{eD}, {64*896}")
                A(f"s_cmp_ge_u32 s43, s44\ns_cselect_b32 s35, {14*128*896}, 0\ns_sub_u32 s43, s43, s35")
            A(f"buffer_load_dwordx4 {v(24+16*(idx-14)+4*i,4)}, v{aD+i}, s[60:63], s43 offen offset:{1024*i}")
            if i == 3: A(f"s_add_u32 s43, s43, {128*896}")
            return
        base_ = slot[(kind, idx)] * BLK
        a0, r0, s, e, step = {"W": (aW, 52, sW, eW, 32*3584), "D": (aD, 60, sD, eD, 128*896), "H": (4, 48, 40, 47, HS)}[kind]
        if i == 0:
            if idx == 14:
                A(f"s_add_u32 s{s}, s{s}, 128\ns_add_u32 s{e}, s{e}, 128")
            A(f"s_add_u32 m0, s32, {base_}\ns_add_u32 s33, s{s}, {step}")
        A(f"buffer_load_dwordx4 v{a0+i}, s[{r0}:{r0+3}], s{s} offen offset:{1024*i}{' sc1' if kind == 'H' else ''} lds")
        if i == 0: A(f"s_cmp_ge_u32 s33, s{e}\ns_cselect_b32 s34, {14*step}, 0")
        if i == 3: A(f"s_sub_u32 s{s}, s33, s34")
    if c.x_quietL: A('s_sleep 60')
    for x in issue[-2]: dma(*x)
    assert c.lf_at == 'C'
    fifo_load(14, 6, 24)
    A(f"""
    v_lshrrev_b32 v2, 4, v{vLane}
    v_and_b32 v3, 15, v{vLane}
    v_lshlrev_b32 v4, 2, v2
    v_xor_b32 v4, v4, v3
    v_lshlrev_b32 v4, 4, v4
    v_and_b32 v3, 1, v2
    v_lshl_add_u32 v4, v3, 12, v4
    v_lshrrev_b32 v2, 1, v2
    v_lshl_add_u32 v4, v2, 14, v4
    v_add_u32 v5, {1*(32768-1024)}, v4
    v_add_u32 v6, {2*(32768-1024)}, v4
    v_add_u32 v7, {3*(32768-1024)}, v4
    s_lshl_b32 s47, s39, 8
    s_lshl_b32 s43, s36, 17
    s_add_u32 s47, s47, s43
    s_add_u32 s40, s38, {c.h0}
    s_cmp_ge_u32 s40, 14
    s_cselect_b32 s43, 14, 0
    s_sub_u32 s40, s40, s43
    s_lshl_b32 s40, s40, 18
    s_add_u32 s40, s40, s47
    s_add_u32 s47, s47, {14*HS}
    """)
    srd(A, 48, 30, XG_BYTES, WS_XG)
    PA.stamp(4)
    A("s_barrier\ns_barrier")
    for x in issue[-1]: dma(*x)
    if c.nlf > 6: fifo_load(20 - c.nlf, c.nlf - 6, 120)
    A(f"s_waitcnt vmcnt({len(issue[-1]) + 4 * (c.nlf - 6)})\ns_barrier")
    for i in range(0, 29):
        for x in issue[i]: dma(*x)
        if i == 3: A(f"s_waitcnt vmcnt({sum(len(issue[k]) for k in range(4))})")
        if wait[i] is not None: A(f"s_waitcnt vmcnt({min(63, wait[i])})")
        A("s_barrier")
    if c.nlf > 6: fifo_put(20 - c.nlf, c.nlf - 6, 120)
    if c.xe:
        A("s_barrier")
        fifo_put(14, 3, 24)
        A("s_barrier")
        fifo_put(17, 3, 72)
    else:
        assert c.yb_at <= 26
        fifo_put(14, c.put_0, 24)
        A(f"s_waitcnt lgkmcnt({min(15, 4 * c.put_0)})\ns_barrier")
        fifo_put(14 + c.put_0, c.put_l, 24 + 16 * c.put_0)
        A("s_barrier")
        fifo_put(14 + c.put_0 + c.put_l, 6 - c.put_0 - c.put_l, 24 + 16 * (c.put_0 + c.put_l))
    A("s_waitcnt lgkmcnt(0)")
    if c.phase == 1: Prof(A, 3).flush(5)
    A("s_endpgm")
    A(f".p2align 3\n{auxs}:")
    PA.stamp(1)
    a0 = 90
    A(f"s_mov_b32 s42, 0x3f803f80\nv_and_b32 v4, 56, v{vLane}\ns_lshl_b32 s46, s47, 6\nv_add_u32 v4, s46, v4\nv_mov_b32 v2, {TAGA}")
    A("s_waitcnt lgkmcnt(0)\ns_add_u32 s57, s56, 1\ns_and_b32 s57, s57, 0xffff\ns_or_b32 s57, s57, 0x7f810000\ns_mov_b32 s45, 0")
    for i in range(28):
        z = i < 2
        if i % 4 == 0: A(f"s_waitcnt vmcnt({6-i//4})")
        if i == 4: PA.stamp(2)
        if i == 24: A("ds_read_b64 v[6:7], v2")
        A(f"v_dot2_f32_bf16 v{a0+(i&1)}, v{vRow+i}, s42, {'0' if z else 'v%d' % (a0+(i&1))}")
        A(f"v_dot2_f32_bf16 v{a0+2+(i&1)}, v{vRow+i}, v{vRow+i}, {'0' if z else 'v%d' % (a0+2+(i&1))}")
    A(f"v_add_f32 v{a0}, v{a0}, v{a0+1}\nv_add_f32 v{a0+2}, v{a0+2}, v{a0+3}")
    for op in ("quad_perm:[1,0,3,2]", "quad_perm:[2,3,0,1]", "row_half_mirror"):
        A(f"v_add_f32_dpp v{a0}, v{a0}, v{a0} {op}{DPP}\nv_add_f32_dpp v{a0+2}, v{a0+2}, v{a0+2} {op}{DPP}")
    A(f"""
    v_mul_f32 v{a0}, {f32(1.0/448)}, v{a0}
    v_mul_f32 v{a0+2}, {f32(1.0/448)}, v{a0+2}
    v_fma_f32 v{a0+2}, -v{a0}, v{a0}, v{a0+2}
    v_max_f32 v{a0+2}, 0, v{a0+2}
    v_cvt_pk_bf16_f32 v{a0+2}, v{a0+2}, v{a0+2}
    v_and_b32 v{a0+2}, s43, v{a0+2}
    v_add_f32 v{a0+2}, {f32(1e-5)}, v{a0+2}
    v_cvt_pk_bf16_f32 v{a0+2}, v{a0+2}, v{a0+2}
    v_and_b32 v{a0+2}, s43, v{a0+2}
    v_sqrt_f32 v{a0+2}, v{a0+2}
    v_mov_b32 v{a0+1}, s57
    v_cvt_pk_bf16_f32 v{a0}, v{a0}, v{a0+2}
    Ltg:
    s_waitcnt lgkmcnt(0)
    v_xor_b32 v6, s57, v6
    v_xor_b32 v7, s57, v7
    v_or_b32 v6, v6, v7
    v_cmp_ne_u32 vcc, 0, v6
    s_cbranch_vccz Ltg2
    ds_read_b64 v[6:7], v2
    s_add_u32 s45, s45, 1
    s_cmp_lt_u32 s45, {SPIN}
    s_cbranch_scc1 Ltg
    Ltg2:
    s_mov_b32 exec_lo, 0x01010101
    s_mov_b32 exec_hi, 0x01010101
    global_store_dwordx2 v4, {v(a0,2)}, s[30:31] sc0 sc1
    s_mov_b64 exec, -1
    """)
    PA.stamp(3)
    if base.PROF and c.phase == 1:
        A(f"s_branch {hold}x\n{hold}:")
        for k in (1, 2, 3): PA.stamp(k)
        A(f"{hold}x:")
    else: A(f"{hold}:")
    A("s_setprio 0\ns_barrier")
    daddr()
    sH, eH, sV = 40, 41, 47
    VR = 20
    A(f"""
    v_lshrrev_b32 v6, 4, v{vLane}
    v_and_b32 v7, 15, v{vLane}
    v_lshlrev_b32 v5, 2, v6
    v_xor_b32 v5, v5, v7
    v_lshlrev_b32 v5, 4, v5
    v_and_b32 v7, 1, v6
    v_lshl_add_u32 v5, v7, 12, v5
    v_lshrrev_b32 v6, 1, v6
    v_lshl_add_u32 v{aH}, v6, 14, v5
    v_add_u32 v{aH+1}, {1*(32768-1024)}, v{aH}
    v_add_u32 v{aH+2}, {2*(32768-1024)}, v{aH}
    v_add_u32 v{aH+3}, {3*(32768-1024)}, v{aH}
    s_lshl_b32 s{eH}, s39, 8
    s_lshl_b32 s43, s36, 17
    s_add_u32 s{eH}, s{eH}, s43
    s_lshl_b32 s{sH}, s38, 18
    s_add_u32 s{sH}, s{sH}, s{eH}
    s_add_u32 s{eH}, s{eH}, {14*HS}
    s_mov_b32 s56, 0x7f810000
    s_mov_b32 s{sV}, s{sH}
    """)
    srd(A, 48, 30, XG_BYTES, WS_XG)
    A("s_barrier")
    if c.hf_at == 'B':
        fifo_load(20, 3, 40)
    A("s_barrier")
    if c.x_quietL: A('s_sleep 60')
    if c.hf_at == 'B': fifo_load(23, 5, 88)
    elif c.hf_at == 'C': fifo_load(20, 8, 40)
    else: fifo_load(20, c.hf_c, 40)
    PA.stamp(4)
    A(f"s_barrier\ns_barrier\ns_setprio {c.hprio}")
    def hblock(s, m0expr):
        A(f"s_add_u32 m0, {m0expr}\ns_add_u32 s33, s{s}, {HS}")
        for i in range(4):
            A(f"buffer_load_dwordx4 v{aH+i}, s[48:51], s{s} offen offset:{1024*i} sc1 lds")
            if i == 0: A(f"s_cmp_ge_u32 s33, s{eH}\ns_cselect_b32 s34, {14*HS}, 0")
        A(f"s_sub_u32 s{s}, s33, s34")
    nH = [0]
    def hissue(k):
        for _ in range(k):
            if nH[0] < 14:
                hblock(sH, f"s32, {slot[('H', nH[0])]*BLK}"); nH[0] += 1
    def vread(b):
        if b < nH[0]: A(f"s_waitcnt vmcnt({4*(nH[0]-1-b)})")
        for i in range(4): A(f"ds_read_b128 {v(VR+4*i,4)}, v{16+b//8} offset:{(slot[('H', b)]%8)*BLK+1024*i}")
    def vcheck(b):
        ck = A.label("hv"); ok = A.label("hok"); rp = A.label("hrp")
        last = b + 1 if c.rep_one else max(nH[0], b + 1)
        if c.w8 and b < 12: last = min(last, 12)
        sb = slot[('H', b)]
        A(f"""
        s_mov_b32 s45, 0
        {ck}:
        s_waitcnt lgkmcnt(0)
        v_max3_i32 v2, v{VR+1}, v{VR+3}, v{VR+5}
        v_max3_i32 v3, v{VR+7}, v{VR+9}, v{VR+11}
        v_max3_i32 v2, v2, v{VR+13}, v{VR+15}
        v_max_i32 v2, v2, v3
        v_cmp_le_i32 vcc, s56, v2
        {"s_cmp_eq_u32 s45, 0" if c.x_force else ""}
        {f"s_cbranch_scc1 {rp}f" if c.x_force else ""}
        s_cbranch_vccnz {rp}f
        """)
        cx = Cold(); cx.__enter__()
        A(f"""
        {rp}f:
        s_add_u32 s45, s45, 1
        s_cmp_ge_u32 s45, {SPIN}
        s_cbranch_scc1 {ok}
        s_mov_b32 s43, s{sV}
        s_add_u32 s44, s32, {sb*BLK}
        s_add_u32 s35, s32, {(sb+last-b)*BLK}
        {rp}:
        """)
        hblock(43, "s44, 0")
        A(f"s_add_u32 s44, s44, {BLK}\ns_cmp_lt_u32 s44, s35\ns_cbranch_scc1 {rp}\ns_waitcnt vmcnt({4*(last-1-b) if last == nH[0] else 0})")
        for i in range(4): A(f"ds_read_b128 {v(VR+4*i,4)}, v{16+b//8} offset:{(sb%8)*BLK+1024*i}")
        A(f"s_branch {ck}")
        cx.__exit__()
        A(f"{ok}:\ns_add_u32 s{sV}, s{sV}, {HS}\ns_cmp_ge_u32 s{sV}, s{eH}\ns_cselect_b32 s34, {14*HS}, 0\ns_sub_u32 s{sV}, s{sV}, s34")
    if c.probe:
        hissue(c.probe); vread(0); vcheck(0); hissue(c.h0 - c.probe); vread(1)
    else:
        hissue(c.h0); vread(0); vcheck(0); vread(1)
    A("s_barrier")
    hs = [0] * 14 if c.hl else list(c.hiss) + [1] * 14
    for i in range(0, 13):
        vcheck(i + 1)
        k = hs.pop(0)
        assert i >= 3 or nH[0] + k <= 12
        if i + 2 < 14:
            if nH[0] - (i + 2) < c.hnear: hissue(k); k = 0
            vread(i + 2)
        hissue(k)
        kf = c.hf_c + i - c.hf_p
        if c.hf_at == 'P' and c.hf_c <= kf < 8: fifo_load(20 + kf, 1, 40 + 16 * kf)
        A("s_barrier")
    if c.hf_at == 'P':
        kf = max(c.hf_c, c.hf_c + 13 - c.hf_p)
        if kf < 8: fifo_load(20 + kf, 8 - kf, 40 + 16 * kf)
    assert nH[0] == 14 or c.hl
    lp = A.label("hb")
    A(f"s_setprio 0\ns_mov_b32 s45, {18 if c.xe else 17}\n{lp}:\ns_barrier\ns_sub_u32 s45, s45, 1\ns_cmp_lg_u32 s45, 0\ns_cbranch_scc1 {lp}")
    A("s_waitcnt vmcnt(0)")
    fifo_put(20, c.put_a, 40)
    A("s_barrier")
    fifo_put(20 + c.put_a, 8 - c.put_a, 40 + 16 * c.put_a)
    A("s_waitcnt lgkmcnt(0)")
    if c.phase == 1: Prof(A, 3).flush(5)
    A(f"{end}:\ns_endpgm")
    A.L.extend(cold)
    A(f".p2align 3\n{hlp}:")
    gen_helper(A, c, Prof(A, 4))
    def rnd(l):
        u = np.float32(max(l, 0)).view(np.uint32)
        u = (int(u) + 0x7FFF + ((int(u) >> 16) & 1)) & 0xFFFF0000
        return int(np.uint32(u).view(np.float32))
    ad = [[(rnd(8 * b - 3 + r) & 7) * TP + (rnd(8 * b - 3 + r) >> 3) * 4 for r in range(12)] for b in range(256)]
    A(f".p2align 7\n.type {tab},@object\n{tab}:")
    for b in range(256): A(".long " + ", ".join("0x%08x" % (ad[b][2*k] | ad[b][2*k+1] << 16) for k in range(4)))
    for b in range(256): A(".long " + ", ".join("0x%08x" % (ad[b][2*k] | ad[b][2*k+1] << 16) for k in range(4, 6)))
    A(f".size {tab}, {256*24}")
    return kernel_desc(name, 168, 102)
```

```python
from base import *
import base
from ka import load_ptrs, cmul, cexp
import numpy as np
WS_E = 0x4000
WS_PZ = 0x5000
WS_XG = 0xA00000
XG_BYTES = 224 * 16384
REG = 16384
TP, GP = 1056, 272
KP = 4160
KB0 = 8704
UO, UPITCH = 74240, 4608
PARO = 98304
XT = 140288
TAGA = XT + 8192
BLK = 8192
NSL = 20
CON = 19 * BLK
F_LDS = NSL * BLK
GK0 = -2.0 * LOG2E * 0.7978845608028654
GK1 = GK0 * 0.044715
SPIN = 1 << 18
HS = 16 * 16384

class Cfg:
    code_bytes = 49152
    prio_mid = 26
    poll_late = 0
    e1_first, e1_last = 15, 22
    e1_packed = False
    drain0 = (22, 26)
    pollA, chkA = 24, 27
    earlyT = (4, 1)
    poll0 = 28
    ya_at, yb_at = 16, 24
    put_a = 5
    pace1, pace2, pace = 2, 1, {}
    pa_early = False
    g_pre = 0
    tdepth, tdepth2 = 22, 16
    gate_ahead = {14: 14, 28: 4, 42: 12}
    pollT1 = (20, 28)
    capP = 8
    caps = {}
    gat_issue, gat_check = 7, 9
    con_write = 11
    il = 2
    stflag = 'sc0 sc1'
    prioB = 2
    h0 = 5
    hiss = (1, 2, 1, 1, 1, 1, 1)
    ca_load = 10
    cs_issue = 5
    hdepth = 1
    fdepth = None
    x_delay = 0
    x_force = False
    backoff = 0
    rep_one = False
    x_nocs = False
    sweepW = False
    sweepD = True
    hramp = 0
    xp_chk = False
    npk = True
    lfifo = (8, 14)
    hprio = 3
    pz_sleep = 4
    hnear = 3
    lf_at = 'C'
    hf_at = 'P'
    poi_at = '0'
    wide_h = True
    xp_at = 0
    gat_split = (3, 4)
    x_nogat = False
    cprio = 3
    nprio = 2
    auxprio = 3
    x_nopre = False
    emode = 0
    csort = True
    probe = 1
    x_quietN = False
    x_quietL = False
    cmin = 5
    cmerge = (0, 2, 4, 6)
    w8 = False
    nlf = 6
    outflag = ''
    hl = True
    x_pad = 0
    wsoff = 0
    hf_c = 4
    hf_p = 10
    xmask = True
    auxpoll = True
    sig_early = False
    psleep = 0
    tpost = True
    touch = 0
    x_noput = False
    x_notl = False
    selfrd = False
    sweepU = False
    hsleep = 0
    hwait = None
    x_nocp = False
    warm = False
    npg = 5
    stcost = 8
    xe = False
    x_cnt = False
    put_0, put_l = 6, 0
    x_fine = None
    phase = 1

def schedule(c):
    need = {("W", s): s for s in range(28)}
    last_use = {("W", s): s + 1 for s in range(28)}
    for t in range(28): last_use[("D", t)] = 1000
    hslot = [sl + (2 if c.w8 and sl >= 12 else 0) for sl in range(14)]
    w0 = 12 if c.w8 else 14
    free_at = {sl: (16 + sl if sl < w0 else -2 if sl >= 14 else -1) for sl in range(NSL)}
    slot = {("H", k): hslot[k] for k in range(14)}
    issue = {i: [] for i in range(-2, 29)}
    n = dict(W=0, D=0, H=c.h0 if c.hl else 14)
    for k in range(n["H"], 14): need[("H", k)] = k - 2; last_use[("H", k)] = 15 + k
    nd = 20 - c.nlf
    cur = None
    def pick(i):
        nW, nD = n["W"], n["D"]
        wf = [sl for sl in range(w0, NSL) if free_at[sl] <= i and (sl != 19 or i >= 15 or nW + 1 < c.con_write)]
        canH = n["H"] < 14 and i >= 0 and (not c.w8 or n["H"] < 12 or i >= n["H"] - 10)
        if canH and (n["H"] - 2 <= nW or not wf): return ("H", n["H"]), hslot[n["H"]]
        if nW < 28 and wf: return ("W", nW), wf[0]
        fr = [sl for sl in range(NSL) if free_at[sl] <= i and (sl < w0 or nW == 28)]
        if fr and nD < nd: return ("D", nD), fr[0]
        return None
    for i in range(-2, 29):
        cap = 24 if i < 0 else c.caps.get(i, c.capP)
        while cap > 0:
            if cur is None:
                p = pick(i)
                if p is None: break
                b, sl = p
                slot[b] = sl; free_at[sl] = last_use[b] + 1; n[b[0]] += 1
                if c.w8 and b in (("W", 0), ("W", 1)): free_at[sl] = 28 + b[1]
                cur = [b, 0]
            issue[i].append((cur[0][0], cur[0][1], cur[1])); cur[1] += 1; cap -= 1
            if cur[1] == 4: cur = None
    assert n["D"] == nd and cur is None
    rest = sorted((sl for sl in range(NSL) if free_at[sl] < 1000), key=lambda sl: free_at[sl])
    assert len(rest) == c.nlf
    for k, sl in enumerate(rest): slot[("D", nd + k)] = sl
    for t in range(20, 28): slot[("D", t)] = slot[("D", t - 20)]
    if c.lf_at == 'P':
        for k, i in enumerate(range(*c.lfifo)): issue[i] += [("F", 14 + k, q) for q in range(4)]
    order = [b for i in range(0, 29) for b in issue[i]]
    pos = {b: k for k, b in enumerate(order)}
    wait = {}
    cnt = 0
    for i in range(0, 29):
        cnt += len(issue[i])
        req = [b for b in need if need[b] == i + 1 and b + (3,) in pos]
        wait[i] = None if not req else cnt - 1 - max(pos[b + (3,)] for b in req)
        if i == 28: wait[i] = 0
        assert wait[i] is None or wait[i] >= 0, (i, req)
    return issue, slot, wait

def gen_helper(A, c, P):
    sweep = A.label("Hsw")
    A(f"""
    s_sub_u32 s44, s2, 224
    s_lshr_b32 s45, s44, 3
    s_bfe_u32 s46, s44, 0x20001
    s_lshl_b32 s46, s46, 2
    s_add_u32 s46, s46, s45
    s_and_b32 s44, s44, 1
    s_waitcnt lgkmcnt(0)
    """)
    if c.hsleep: A(f"s_sleep {c.hsleep}")
    if c.hwait:
        off = {"st": 4, "pz": WS_PZ}[c.hwait]
        A(f"""
        s_cmp_lg_u32 s36, 0
        s_cbranch_scc1 Lhw2
        s_load_dword s56, s[30:31], {WS_E}
        s_sub_u32 s47, s2, 32
        s_lshl_b32 s47, s47, {6 if c.hwait == "st" else 3}
        s_add_u32 s47, s47, {off}
        v_mov_b32 v2, s47
        s_mov_b32 s47, 0
        s_waitcnt lgkmcnt(0)
        s_add_u32 s57, s56, 1
        s_and_b32 s57, s57, 0xffff
        s_or_b32 s57, s57, 0x7f810000
        Lhw1:
        s_sleep 8
        global_load_dword v3, v2, s[30:31] sc1
        s_add_u32 s47, s47, 1
        s_cmp_ge_u32 s47, 8
        s_cbranch_scc1 Lhw2
        s_waitcnt vmcnt(0)
        v_cmp_ne_u32 vcc, s57, v3
        s_cbranch_vccnz Lhw1
        Lhw2:
        s_waitcnt vmcnt(0)
        s_barrier
        """)
    A(f"""
    s_cmp_ge_u32 s46, 14
    s_cselect_b32 s47, 2, 0
    s_sub_u32 s46, s46, s47
    v_and_b32 v1, 15, v0
    v_lshrrev_b32 v2, 4, v0
    v_mul_u32_u24 v2, 3584, v2
    v_lshl_add_u32 v2, v1, 4, v2
    s_cmp_ge_u32 s46, 7
    s_cselect_b32 s47, 7, 0
    s_cselect_b32 s48, s22, s20
    s_cselect_b32 s49, s23, s21
    s_sub_u32 s46, s46, s47
    s_mul_i32 s50, s44, 7
    s_add_u32 s46, s46, s50
    s_lshl_b32 s47, s47, 1
    s_add_u32 s52, s46, s47
    s_lshl_b32 s47, s46, 8
    s_mov_b32 s50, {W_BYTES}
    s_mov_b32 s51, 0x20000
    """)
    for p in range(14):
        A(f"buffer_load_dwordx4 {v(16+4*p,4)}, v2, s[48:51], s47 offen")
        if p < 13: A("s_add_u32 s47, s47, %d" % (32 * 3584))
        if p < c.hramp: A("s_waitcnt vmcnt(0)")
    A("s_mov_b32 s42, 0x00003f80\ns_mov_b32 s43, 0x3f800000")
    if c.sweepU:
        A(f"""
        s_lshr_b32 s47, s52, 1
        s_mul_i32 s47, s47, {128*896}
        s_and_b32 s53, s52, 1
        s_lshl_b32 s53, s53, 3
        s_add_u32 s53, s53, s36
        s_mul_i32 s53, s53, {28*128}
        s_add_u32 s47, s47, s53
        v_and_b32 v3, 63, v0
        v_min_u32 v3, 27, v3
        v_lshl_add_u32 v3, v3, 7, s47
        global_load_dword v72, v3, s[24:25]
        """)
    for p in range(14):
        A(f"s_waitcnt vmcnt({13-p+(1 if c.sweepU else 0)})")
        for q in range(4):
            for hl in range(2):
                acc = 4 + 2 * q + hl
                A(f"v_dot2_f32_bf16 v{acc}, v{16+4*p+q}, s{42+hl}, {'0' if p == 0 else 'v%d' % acc}")
    for op in ("v_permlane16_swap_b32", "v_permlane32_swap_b32"):
        for q in range(8): A(f"v_mov_b32 v{16+q}, v{4+q}")
        for q in range(8): A(f"{op} v{4+q}, v{16+q}")
        for q in range(8): A(f"v_add_f32 v{4+q}, v{4+q}, v{16+q}")
    A(f"""
    v_lshrrev_b32 v2, 6, v0
    v_lshlrev_b32 v2, 9, v2
    v_lshl_add_u32 v2, v1, 5, v2
    s_mov_b64 exec, 0xffff
    ds_write_b128 v2, v[4:7]
    ds_write_b128 v2, v[8:11] offset:16
    s_mov_b64 exec, -1
    s_waitcnt lgkmcnt(0)
    s_barrier
    s_cmp_ge_u32 s36, 2
    s_cbranch_scc1 {sweep}
    v_lshlrev_b32 v1, 2, v0
    ds_read2st64_b32 v[4:5], v1 offset0:0 offset1:2
    ds_read2st64_b32 v[6:7], v1 offset0:4 offset1:6
    ds_read2st64_b32 v[8:9], v1 offset0:8 offset1:10
    ds_read2st64_b32 v[10:11], v1 offset0:12 offset1:14
    s_waitcnt lgkmcnt(0)
    v_pk_add_f32 v[4:5], v[4:5], v[6:7]
    v_pk_add_f32 v[8:9], v[8:9], v[10:11]
    v_pk_add_f32 v[4:5], v[4:5], v[8:9]
    v_add_f32 v4, v4, v5
    s_mov_b32 s43, 0xffff0000
    v_cvt_pk_bf16_f32 v5, v4, v4
    v_and_b32 v5, s43, v5
    v_sub_f32 v6, v4, v5
    v_cvt_pk_bf16_f32 v8, v5, v6
    v_and_b32 v7, s43, v8
    v_sub_f32 v6, v6, v7
    v_cvt_pk_bf16_f32 v9, v6, 0
    s_lshl_b32 s46, s52, 10
    s_add_u32 s46, s46, {WS_CS}
    v_lshl_add_u32 v1, v1, 1, s46
    global_store_dwordx2 v1, v[8:9], s[30:31] sc0 sc1
    s_mov_b32 s46, 1
    s_waitcnt vmcnt(0)
    s_atomic_add s46, s[28:29], 0
    {sweep}:
    """)
    P.stamp(1)
    done = A.label("Hdone")
    A(f"""
    s_cmp_ge_u32 s36, 7
    s_cbranch_scc1 {done}
    v_lshrrev_b32 v2, 3, v0
    v_mul_u32_u24 v2, 3584, v2
    v_and_b32 v3, 7, v0
    v_min_u32 v3, 6, v3
    v_lshl_add_u32 v2, v3, 8, v2
    s_mul_i32 s46, s45, {112*3584}
    s_mul_i32 s47, s44, 1792
    s_add_u32 s46, s46, s47
    v_add_u32 v2, s46, v2
    v_add_u32 v3, {56*3584}, v2
    s_mul_i32 s46, s45, {128*896}
    v_lshl_add_u32 v4, v0, 7, s46
    """)
    def wpass(h):
        for m in (20, 22):
            for r in (2, 3): A(f"global_load_dword v8, v{r}, s[{m}:{m+1}] offset:{128*h}\ns_waitcnt vmcnt({c.hdepth})")
    if c.sweepW: wpass(0); wpass(1)
    for k in range(4 if c.sweepD else 0):
        if k == 3: A(f"s_cmp_ge_u32 s45, 2\ns_cbranch_scc1 {done}")
        A(f"global_load_dword v8, v4, s[24:25]\nv_add_u32 v4, {4*128*896}, v4\ns_waitcnt vmcnt({c.hdepth})")
    A(f"{done}:\ns_waitcnt lgkmcnt(0)")
    P.flush(2)
    A("s_endpgm")

def gen(A, name, c=Cfg, verbose=False):
    issue, slot, wait = schedule(c)
    if verbose:
        for i in range(-2, 29): print(i, ' '.join(k + str(j) + '.' + str(q) for k, j, q in issue[i]), wait.get(i))
        print({k: x for k, x in slot.items() if k[0] == "D"})
    kernel_head(A, name)
    end = A.label("end"); hlp = A.label("hlp"); kw_ = A.label("kw"); nw = A.label("nw"); tab = A.label("tab")
    auxt = A.label("auxt"); auxs = A.label("auxs"); til = A.label("til"); hold = A.label("hold")
    P0 = Prof(A, 1)
    class PH:
        def __init__(s, ph, kid=1): s.on = c.phase == ph; s.P = Prof(A, kid)
        def stamp(s, i):
            if s.on: s.P.stamp(i)
    P = PH(1); PA = PH(1, 3)
    class Bars:
        def __init__(s, marks, n1, kid=1): s.n = 0; s.marks = c.x_fine or marks; s.on = c.phase == 2; s.n1 = n1; s.P = Prof(A, kid)
        def bar(s):
            A("s_barrier")
            if s.on and s.n in s.marks: s.P.stamp(1 + s.marks.index(s.n))
            s.n += 1
        def mark(s, k):
            if s.on and not c.x_fine: s.P.stamp(1 + len(s.marks) + k)
        def fin(s, k=0):
            if not s.on: s.P.flush(s.n1); return
            k = 0 if c.x_fine else k
            s.P.stamp(1 + len(s.marks) + k); s.P.flush(2 + len(s.marks) + k)
    cold = []
    class Cold:
        def __enter__(s): s.keep = A.L; A.L = []
        def __exit__(s, *a): cold.extend(A.L); A.L = s.keep
    wst = []
    def target(lab):
        wst.append(lab)
        A(f".p2align 6\n{lab}w:\ns_setpc_b64 s[96:97]\ns_nop 0\n{lab}:")
    A(f"s_cmp_ge_u32 s2, 256\ns_cbranch_scc1 {end}")
    P0.stamp(0)
    load_ptrs(A)
    A(f"s_getpc_b64 s[60:61]\nLpc:")
    vLane, vG, vJ = 1, 2, 3
    per = (c.code_bytes // 128 + 63) // 64
    vRow, vXG = 16, 48
    ffn_ids = """
    s_and_b32 s37, s2, 7
    s_lshr_b32 s38, s2, 3
    s_and_b32 s40, s38, 3
    s_lshr_b32 s39, s37, 1
    s_lshl_b32 s39, s39, 2
    s_add_u32 s39, s39, s40
    s_and_b32 s34, s37, 1
    s_lshr_b32 s35, s38, 2
    s_mul_i32 s38, s34, 7
    s_add_u32 s38, s38, s35
    s_mul_i32 s33, s40, 3
    s_lshl_b32 s37, s35, 1
    s_add_u32 s33, s33, s37
    s_cmp_ge_u32 s33, 14
    s_cselect_b32 s37, 14, 0
    s_sub_u32 s33, s33, s37
    """
    A(f"""
    v_lshrrev_b32 v4, 6, v0
    v_and_b32 v{vLane}, 63, v0
    s_and_b32 s37, s2, 7
    v_readfirstlane_b32 s36, v4
    s_mul_i32 s37, s37, 28
    s_lshr_b32 s38, s2, 3
    s_add_u32 s37, s37, s38
    s_mov_b32 s43, 0xffff0000
    s_cmp_lt_u32 s36, 8
    s_cbranch_scc1 {kw_}
    s_setprio {c.auxprio}
    v_lshrrev_b32 v5, 3, v{vLane}
    v_and_b32 v6, 7, v{vLane}
    v_mul_u32_u24 v7, 896, v5
    s_cmp_lt_u32 s36, 10
    s_cbranch_scc1 {til}
    s_and_b32 s36, s36, 1
    s_lshr_b32 s62, s2, 2
    s_and_b32 s62, s62, 62
    s_add_u32 s62, s62, s36
    s_mul_i32 s62, s62, {per*128}
    v_min_u32 v10, {per-1}, v{vLane}
    v_lshl_add_u32 v10, v10, 7, s62
    v_min_u32 v10, Lcode_end-Lpc-4, v10
    global_load_dword v99, v10, s[60:61]
    s_mul_i32 s46, s36, 28
    s_add_u32 s46, s46, s38
    s_cmp_ge_u32 s2, 224
    s_cbranch_scc1 {end}
    s_and_b32 s47, s2, 7
    s_lshl_b32 s47, s47, 5
    s_add_u32 s47, s47, s46
    s_mul_i32 s48, s47, {8*896}
    v_lshl_add_u32 v8, v6, 4, v7
    v_add_u32 v8, s48, v8
    s_cmp_ge_u32 s46, 32
    s_waitcnt lgkmcnt(0)
    s_cbranch_scc1 {hold}
    s_load_dword s56, s[30:31], {WS_E}
    """)
    for i in range(7): A(f"global_load_dwordx4 {v(vRow+4*i,4)}, v8, s[4:5] offset:{128*i}")
    A(f"""
    s_branch {auxs}
    {til}:
    s_cmp_ge_u32 s2, 224
    s_cbranch_scc1 {end}
    s_and_b32 s36, s36, 1
    s_mul_i32 s46, s37, 9363
    s_lshr_b32 s46, s46, 16
    s_mul_i32 s47, s46, 7
    s_sub_u32 s47, s37, s47
    s_lshl_b32 s46, s46, 1
    s_add_u32 s46, s46, s36
    s_mul_i32 s49, s46, {32*896}
    s_lshl_b32 s48, s47, 7
    s_add_u32 s49, s49, s48
    s_lshl_b32 s47, s47, 19
    s_lshl_b32 s46, s46, 8
    s_add_u32 s51, s47, s46
    s_lshl_b32 s46, s36, 12
    s_add_u32 s46, s46, {XT}
    s_mov_b32 m0, s46
    v_lshrrev_b32 v4, 1, v5
    v_xor_b32 v4, v4, v6
    v_lshl_add_u32 v12, v4, 4, v7
    v_xor_b32 v4, 4, v4
    v_lshl_add_u32 v13, v4, 4, v7
    v_add_u32 v13, {8*896-1024}, v13
    v_add_u32 v14, {16*896-2048}, v12
    v_add_u32 v15, {16*896-2048}, v13
    s_mov_b32 s34, {X_BYTES}
    s_mov_b32 s35, 0x20000
    s_waitcnt lgkmcnt(0)
    s_mov_b32 s32, s4
    s_mov_b32 s33, s5
    """)
    for i in range(4): A(f"buffer_load_dwordx4 v{12+i}, s[32:35], s49 offen offset:{1024*i} lds")
    A(f"s_load_dword s57, s[30:31], {WS_E}")
    A(f"s_branch {auxt}\n{kw_}:\ns_cmp_ge_u32 s2, 224\ns_cbranch_scc1 {hlp}")
    vP, vDT = 8, 12
    a2, b2 = 14, 15
    w1, w256, w2, w512 = 16, 18, 20, 22
    tA, tB, tC = 24, 26, 28
    G, G2, Hh, W4, HT, CV = 30, 46, 62, 68, 70, 78
    vTB, vA, vBc, vRA = 88, 94, 95, 96
    A(f"""
    v_mov_b32 v{vP}, 0
    v_mov_b32 v{vP+1}, 0
    v_mov_b32 v{vP+2}, 0
    v_mov_b32 v{vP+3}, 0
    s_lshl_b32 s48, s37, 10
    v_lshl_add_u32 v4, v0, 1, s48
    s_lshl_b32 s48, s37, 2
    s_lshl_b32 s56, s36, 14
    s_mov_b32 m0, s56
    s_lshr_b32 s38, s36, 2
    s_add_u32 s62, s60, {tab}-Lpc+2048
    s_addc_u32 s63, s61, 0
    s_waitcnt lgkmcnt(0)
    s_load_dword s52, s[14:15], s48
    global_load_short_d16_hi v{vP}, v4, s[6:7]
    global_load_short_d16_hi v{vP+1}, v4, s[8:9]
    global_load_short_d16_hi v{vP+2}, v4, s[10:11]
    global_load_short_d16_hi v{vP+3}, v4, s[12:13]
    s_load_dword s53, s[16:17], s48
    """)
    P.stamp(1)
    A(f"""
    v_bfe_u32 v{vG}, v0, 5, 1
    v_and_b32 v{vJ}, 31, v0
    s_lshl_b32 s46, s36, 15
    v_mul_u32_u24 v4, {GP}, v{vJ}
    v_lshl_add_u32 v4, v{vG}, 4, v4
    v_add_u32 v{vRA}, s46, v4
    s_bfe_u32 s39, s36, 0x10001
    s_and_b32 s40, s36, 1
    s_lshl_b32 s48, s39, 15
    s_lshl_b32 s47, s40, 8
    s_add_u32 s48, s48, s47
    s_add_u32 s48, s48, {KB0+64-24}
    v_and_b32 v4, 3, v0
    v_sub_u32 v4, 3, v4
    v_mul_u32_u24 v4, {KP}, v4
    v_bfe_u32 v5, v0, 2, 2
    v_lshl_add_u32 v4, v5, 3, v4
    v_bfe_u32 v5, v0, 4, 2
    v_lshl_add_u32 v4, v5, 4, v4
    v_add_u32 v{vA}, s48, v4
    s_mul_i32 s48, s39, {UPITCH}
    s_sub_u32 s48, s48, s47
    s_add_u32 s48, s48, {UO+512+16-192}
    v_and_b32 v4, 15, v0
    v_lshlrev_b32 v4, 5, v4
    v_lshlrev_b32 v5, 4, v5
    v_sub_u32 v4, v4, v5
    v_add_u32 v{vBc}, s48, v4
    s_add_u32 s64, s30, {WS_XG}
    s_addc_u32 s65, s31, 0
    s_mov_b32 s66, {XG_BYTES}
    s_mov_b32 s67, 0x20000
    s_and_b32 s47, s36, 3
    s_lshl_b32 s47, s47, 12
    v_lshl_add_u32 v97, v{vLane}, 4, s47
    s_lshl_b32 s44, s37, 14
    s_mov_b32 s54, {f32(8.0)}
    s_mov_b32 s55, {f32(256.0)}
    s_lshl_b32 s46, s38, 4
    v_mov_b32 v{vDT}, {f32(LOG2E)}
    s_cmp_lt_u32 s36, 4
    s_cbranch_scc1 Lnoprio
    s_setprio 1
    Lnoprio:
    s_waitcnt lgkmcnt(0)
    s_lshr_b32 s52, s52, s46
    s_lshl_b32 s52, s52, 16
    v_mul_f32 v{vDT}, s52, v{vDT}
    v_exp_f32 v{vDT}, v{vDT}
    v_cvt_pk_bf16_f32 v{vDT}, v{vDT}, v{vDT}
    v_and_b32 v{vDT}, s43, v{vDT}
    s_and_b32 s59, s53, s43
    s_lshl_b32 s58, s53, 16
    v_add_f32 v6, v{vDT}, v{vDT}
    """)
    P.stamp(2)
    A(f"""
    s_waitcnt vmcnt(2)
    v_mul_f32 v4, {f32(LOG2E)}, v{vP}
    v_exp_f32 v4, v4
    v_mul_f32 v{b2}, v{vP+1}, v{vDT}
    v_cvt_pk_bf16_f32 v4, v4, v4
    v_and_b32 v4, s43, v4
    v_mul_f32 v{a2}, v4, v{vDT}
    v_mul_f32 v{b2}, 0.15915494, v{b2}
    v_mul_f32 v{a2}, {f32(-LOG2E)}, v{a2}
    """)
    P.stamp(3)
    nb_ = [0]
    vPX, vPS_, vPA = 100, 116, 97
    xp = [f"buffer_load_dwordx4 {v(vPX+4*q,4)}, v{vPA}, s[64:67], s44 offen offset:{1024*q} sc1" for q in range(4)]
    xp += [f"global_load_dwordx4 {v(vPS_+4*q,4)}, v{vPA}, s[30:31] offset:{1024*q} sc1" for q in range(4)]
    def put(src, row, neg):
        r = CV + (nb_[0] & 7); nb_[0] += 1
        x = [f"v_cvt_pk_bf16_f32 v{r}, v{src}, {'-' if neg else ''}v{src+1}", f"ds_write_addtid_b32 v{r} offset:{row*GP}"]
        if nb_[0] == c.prio_mid: x[1] += "\ns_setprio 0"
        if nb_[0] == c.xp_at: x[1] += "\ns_cmp_lt_u32 s36, 4\ns_cbranch_scc1 Lnoxp\n" + "\n".join(xp) + "\nLnoxp:"
        return x
    def spread(puts, work):
        o = []
        while puts or work:
            p = puts.pop(0) if puts else None
            if p: o.append(p[0])
            if work: o += work.pop(0)
            if p: o.append(p[1])
        return o
    GR = 32
    for l in cexp(Hh, a2, b2, "s54", tA): A(l)
    A(f"v_mov_b32 v{CV+8}, 0x3f80\nds_write_addtid_b32 v{CV+8}")
    for l in cmul(Hh+2, Hh, Hh) + cmul(Hh+4, Hh+2, Hh) + cmul(W4, Hh+2, Hh+2): A(l)
    ex = merge(cexp(w1, a2, b2, None, tB), cexp(w256, a2, b2, "s55", tC))
    ex += ["s_waitcnt vmcnt(0)", f"v_mul_f32 v{G}, v{vP+2}, v6", f"v_mul_f32 v{G+1}, v{vP+3}, v6",
           "v_min_u32 v5, 255, v0\nv_lshlrev_b32 v6, 4, v5", "v_lshlrev_b32 v5, 3, v5",
           f"global_load_dwordx4 {v(vTB,4)}, v6, s[62:63] offset:-2048", f"global_load_dwordx2 {v(vTB+4,2)}, v5, s[62:63] offset:2048"]
    ex += cmul(w2, w1, w1) + cmul(G+2, G, w1) + cmul(w512, w256, w256)
    cur = [Hh, Hh+2, Hh+4, W4]; nxt = [HT, HT+2, HT+4, HT+6]; alt = [G2, G2+2, G2+4, G2+6]
    j = 1
    while j < 32:
        pend = [put(cur[r], j + r, False) for r in range(4) if j + r < 32]
        wk = [cmul(nxt[r], cur[r], W4) + [ex.pop(0) for _ in range(1) if ex] for r in range(4) if j + 4 + r < 32]
        if j + 4 >= 32: wk = [cmul(G+2*i, G+2*(i-2), w2) for i in range(2, 5)]
        for l in spread(pend, wk): A(l)
        cur, nxt = nxt, (alt if nxt[0] == HT else [HT, HT+2, HT+4, HT+6])
        j += 4
    assert not ex
    wk = [cmul(G+2*i, G+2*(i-2), w2) for i in range(5, 8)] + [cmul(G2+2*k, G+4*k, w256) for k in range(4)] + [cmul(G2+8, G, w512)]
    for l in spread([put(G+2*i, GR+i, True) for i in range(8)], wk): A(l)
    wk = [cmul(G2+10, G+8, w512), cmul(G2+12, G2, w512), cmul(G2+14, G2+4, w512), cmul(G, G2+8, w512), cmul(G+2, G2+12, w512), cmul(G+4, G, w512), cmul(G+6, G+2, w512), cmul(G+8, G+4, w512)]
    for l in spread([put(G2+2*i, GR+8+i, True) for i in range(8)], wk): A(l)
    for l in spread([put(G+2*i, GR+16+i, True) for i in range(5)], []): A(l)
    P.stamp(4)
    A(f"s_cmp_ge_u32 s36, 4\ns_cbranch_scc1 {nw}\ns_branch Lmw\n.p2align 12")
    target("Lmw")
    vACC, vEA, FR, TA_ = 8, 30, 100, 44
    tabprep = [f"s_lshl_b32 s46, s36, 15", f"v_lshl_add_u32 v4, v{vJ}, 2, s46", f"v_mul_u32_u24 v5, {4*TP}, v{vG}", "v_add_u32 v5, v5, v4", f"v_xor_b32 v7, 1, v{vG}"]
    tmin = []
    for b in range(4):
        o0 = 2 * b * TP + 128; o1 = 4 * (b & 1) * TP + 256 + 128 * (b >> 1)
        tabprep += [f"v_mul_u32_u24 v{TA_+b}, {abs(o1-o0)}, v{vG if o1 > o0 else 7}", f"v_add_u32 v{TA_+b}, v{TA_+b}, v4"]
        tmin.append(min(o0, o1))
    tabprep += [f"v_lshl_add_u32 v{TA_+4}, v{vG}, 9, v4", "s_waitcnt vmcnt(0)"]
    for r in range(11):
        tabprep += [f"v_and_b32 v{vEA+r}, 0xffff, v{vTB+(r>>1)}" if r % 2 == 0 else f"v_lshrrev_b32 v{vEA+r}, 16, v{vTB+(r>>1)}"]
    tabprep += ["v_cmp_ne_u32 s[44:45], 0, v0", f"v_lshlrev_b32 v6, 4, v0"]
    A("s_waitcnt lgkmcnt(0)\ns_barrier")
    P.stamp(5)
    def frd(n):
        b = FR + 8 * (n & 7); o = (n >> 3) * REG + 32 * (n & 7)
        return f"ds_read_b128 {v(b,4)}, v{vRA} offset:{GR*GP+o}\nds_read_b128 {v(b+4,4)}, v{vRA} offset:{o}"
    for n in range(6): A(frd(n))
    for n in range(16):
        b0 = FR + 8 * (n & 7)
        A(f"s_waitcnt lgkmcnt({2*min(5, 15-n)})\nv_mfma_f32_32x32x16_bf16 {v(vACC,16)}, {v(b0,4)}, {v(b0+4,4)}, {'0' if n == 0 else v(vACC,16)}")
        if n + 6 < 16: A(frd(n + 6))
        for l in tabprep[2*n:2*n+2]: A(l)
    assert len(tabprep) <= 32
    vW, vR, vO = 97, 98, 99
    A(f"""
    s_lshl_b32 s46, s36, 12
    s_add_u32 s46, s46, {PARO}
    v_lshl_add_u32 v{vW}, v{vLane}, 4, s46
    v_xor_b32 v{vR}, 0x1000, v{vW}
    s_lshl_b32 s46, s40, 10
    s_lshl_b32 s47, s39, 15
    s_add_u32 s47, s47, s46
    v_lshl_add_u32 v3, v{vLane}, 4, s47
    """)
    for b in range(4): A(f"ds_write_b32 v5, v{vACC+b} offset:{TP*b}")
    for b in range(4): A(f"ds_write_b32 v{TA_+b}, v{vACC+4+b} offset:{tmin[b]}")
    A(f"s_mov_b32 exec_hi, 1\nds_write_b32 v{TA_+4}, v{vACC+8} offset:512\ns_mov_b32 exec_hi, 0")
    for b in range(1, 4): A(f"ds_write_b32 v{TA_+4}, v{vACC+8+b} offset:{512+128*b}")
    A("s_mov_b32 exec_hi, -1\ns_waitcnt lgkmcnt(0)\ns_barrier")
    P.stamp(6)
    EV, CB = 100, 44
    for r in range(11): A(f"ds_read2st64_b32 {v(EV+2*r,2)}, v{vEA+r} offset0:0 offset1:128\nv_add_u32 v{vEA+r}, 0x10000, v{vEA+r}")
    for r in range(11): A(f"ds_read2st64_b32 {v(EV+22+2*r,2)}, v{vEA+r} offset0:0 offset1:128")
    for ch in range(2):
        E = EV + 22 * ch
        A(f"s_waitcnt lgkmcnt({11 if ch == 0 else 4})")
        for r in range(11): A(f"v_add_f32 v{E+2*r}, v{E+2*r}, v{E+2*r+1}")
        for r in range(3): A(f"v_cndmask_b32 v{E+2*r}, 0, v{E+2*r}, s[44:45]")
        for cp in range(4):
            b = CB + 16 * ch + 4 * cp
            for k in range(4):
                r0 = 3 - cp + 2 * k
                A(f"v_cvt_pk_bf16_f32 v{b+k}, v{E+2*r0}, v{E+2*r0+2}")
            A(f"ds_write_b128 v6, {v(b,4)} offset:{KB0+64+32768*ch+cp*KP}")
    P.stamp(7)
    A("s_waitcnt lgkmcnt(0)\ns_barrier")
    P.stamp(8)
    A(f"s_setprio {c.cprio}")
    AC = 8
    FBs = [40 + 8 * k for k in range(6)] + [100 + 8 * k for k in range(6)]
    def rd(Gi):
        r, n = Gi >> 3, Gi & 7
        b = FBs[Gi % 12]
        return [f"ds_read_b64 {v(b,2)}, v{vA} offset:{512*n+64*r}", f"ds_read_b64 {v(b+2,2)}, v{vA} offset:{512*n+64*r+8}",
                f"ds_read_b128 {v(b+4,4)}, v{vBc} offset:{512*n+64*(3-r)}"]
    def send(t): return f"s_mov_b64 exec, s[{48+2*(t&1)}:{49+2*(t&1)}]\nds_write_b128 v{vW}, {v(AC+4*t,4)} offset:{1024*(t>>1)}\ns_mov_b64 exec, -1"
    for Gi in range(4):
        for l in rd(Gi): A(l)
    A(f"""
    s_lshl_b32 s46, s37, 2
    s_add_u32 s46, s46, s39
    s_lshl_b32 s46, s46, 12
    s_lshl_b32 s47, s40, 9
    s_add_u32 s46, s46, s47
    s_add_u32 s46, s46, {WS_XG}
    v_and_b32 v4, 15, v0
    v_bfe_u32 v5, v0, 4, 2
    v_lshlrev_b32 v4, 5, v4
    v_lshrrev_b32 v6, 1, v5
    v_lshl_add_u32 v4, v6, 4, v4
    v_and_b32 v5, 1, v5
    v_lshl_add_u32 v4, v5, 10, v4
    v_add_u32 v{vO}, s46, v4
    """)
    started = set()
    def cm(r, a, b):
        t = a + b
        cc = v(AC + 4 * t, 4) if t in started else "0"
        started.add(t)
        return f"v_mfma_f32_16x16x32_bf16 {v(AC+4*t,4)}, {v(FBs[(8*r+a)%12],4)}, {v(FBs[(8*r+b)%12]+4,4)}, {cc}"
    def grp(n): return [(a, b) for a in range(n + 1) for b in range(n + 1) if max(a, b) == n and a + b <= 7]
    rq = []; nrd = 12; known = 0
    for Gi in range(28):
        r, n = Gi >> 3, Gi & 7
        rq += rd(Gi + 4)
        while nrd < 3 * (Gi + 1) + c.cmin: A(rq.pop(0)); nrd += 1
        if known < 3 * (Gi + 1):
            want = 3 * (Gi + 1)
            if n in c.cmerge and Gi > 3: want = min(want + 3, nrd - 3)
            A(f"s_waitcnt lgkmcnt({nrd - want})"); known = want
        for (a_, b_) in grp(n):
            A(cm(r, a_, b_))
            if rq: A(rq.pop(0)); nrd += 1
    for l in rq: A(l)
    PR, PP = 148, 116
    odd = A.label("odd"); jn = A.label("jn")
    A(f"s_cmp_eq_u32 s40, 1\ns_cbranch_scc1 {odd}")
    for par in range(2):
        if par:
            for _ in range(c.x_pad // 4): A("s_nop 0")
            target(odd)
        snd = [t for t in range(8) if t % 2 != par]
        def sw(t): return f"ds_write_b128 v{vW}, {v(AC+4*t,4)} offset:{1024*(t>>1)}"
        rest = [p for n in range(4, 8) for p in grp(n)]
        first = [p for p in rest if (p[0] + p[1]) % 2 != par]; last = [p for p in rest if (p[0] + p[1]) % 2 == par]
        A("s_waitcnt lgkmcnt(9)"); got = 4
        for k, p in enumerate(first):
            if max(p) > got: A(f"s_waitcnt lgkmcnt({2 if k > 3 else 3*(7-max(p)) + (1 if k > 1 else 0)})"); got = 7 if k > 3 else max(p)
            A(cm(3, *p))
            if k == 1: A(sw(snd[0]))
            if k == 3: A(sw(snd[1]))
        if got < 7: A("s_waitcnt lgkmcnt(2)")
        for k, p in enumerate(last):
            A(cm(3, *p))
            if k == 2: A(sw(snd[2]))
            if k == 7: A(sw(snd[3]))
        if par == 0: P.stamp(9)
        else: P.stamp(9)
        A("s_waitcnt lgkmcnt(0)\ns_barrier")
        for q in range(4): A(f"ds_read_b128 {v(PR+4*q,4)}, v{vR} offset:{1024*q}\nds_read_b128 {v(PP+4*q,4)}, v3 offset:{2048*q}")
        for q in range(4):
            A(f"s_waitcnt lgkmcnt({6-2*q})")
            k = AC + 4 * (2 * q + par)
            for h in range(2): A(f"v_pk_add_f32 {v(PR+4*q+2*h,2)}, {v(PR+4*q+2*h,2)}, {v(PP+4*q+2*h,2)}")
            for h in range(2): A(f"v_pk_add_f32 {v(PR+4*q+2*h,2)}, {v(PR+4*q+2*h,2)}, {v(k+2*h,2)}")
            o_ = 132 + 2 * q
            A(f"v_cvt_pk_bf16_f32 v{o_}, v{PR+4*q}, v{PR+4*q+1}\nv_cvt_pk_bf16_f32 v{o_+1}, v{PR+4*q+2}, v{PR+4*q+3}")
            if q & 1:
                A(f"v_permlane16_swap_b32 v{o_-2}, v{o_}\nv_permlane16_swap_b32 v{o_-1}, v{o_+1}")
                A(f"global_store_dwordx4 v{vO}, {v(o_-2,4)}, s[30:31] offset:{1024*(q-1)} sc0 sc1")
        if not par: A(f"s_branch {jn}")
    A(f"{jn}:")
    P.stamp(10)
    vB, vAa, vS, vCR, vCA = 8, 10, 12, 14, 16
    vX = 18
    CN, CA, MB = 24, 32, 38
    F = [48, 64, 80]
    ACC = 96
    T1, T2, OUT = 48, 56, 64
    def csetup():
        A(ffn_ids)
        A(f"""
        s_and_b32 s40, s36, 1
        s_bfe_u32 s41, s36, 0x10001
        s_lshr_b32 s49, s36, 2
        v_bfe_u32 v2, v{vLane}, 2, 2
        v_bfe_u32 v3, v{vLane}, 4, 1
        v_lshrrev_b32 v4, 5, v{vLane}
        v_and_b32 v6, 3, v{vLane}
        v_lshl_add_u32 v5, v4, 3, v2
        v_lshlrev_b32 v7, 8, v5
        v_lshl_add_u32 v7, v6, 3, v7
        v_lshl_add_u32 v7, v3, 5, v7
        s_lshl_b32 s42, s40, 1
        s_add_u32 s42, s42, s41
        v_xor_b32 v{vB}, s42, v2
        v_lshl_add_u32 v{vB}, v{vB}, 6, v7
        v_xor_b32 v{vB+1}, 64, v{vB}
        v_add_u32 v17, 0x10000, v{vB}
        v_add_u32 v46, 0x10000, v{vB+1}
        s_lshl_b32 s42, s34, 1
        s_add_u32 s42, s42, s40
        v_xor_b32 v{vX}, s42, v2
        v_lshl_add_u32 v{vX}, v{vX}, 6, v7
        v_lshlrev_b32 v7, 7, v5
        v_lshl_add_u32 v7, v6, 3, v7
        v_lshl_add_u32 v7, v3, 12, v7
        v_lshrrev_b32 v5, 1, v2
        v_lshl_add_u32 v5, v3, 1, v5
        s_lshl_b32 s42, s41, 1
        v_xor_b32 v5, s42, v5
        v_lshl_add_u32 v7, v5, 5, v7
        v_add_u32 v{vAa}, {12*BLK}, v7
        v_xor_b32 v{vAa+1}, 32, v{vAa}
        s_lshl_b32 s42, s39, 2
        s_lshl_b32 s43, s40, 1
        s_add_u32 s42, s42, s43
        s_add_u32 s43, s42, s41
        s_xor_b32 s44, s43, 1
        s_lshl_b32 s45, s38, 3
        s_lshl_b32 s46, s41, 1
        s_add_u32 s45, s45, s46
        s_lshl_b32 s46, s49, 2
        s_add_u32 s45, s45, s46
        s_lshl_b32 s46, s45, 7
        s_add_u32 s45, s45, {WS_ACT // 1024}
        s_mul_i32 s43, s43, 112
        s_mul_i32 s44, s44, 112
        s_add_u32 s43, s43, s45
        s_add_u32 s44, s44, s45
        s_lshl_b32 s43, s43, 10
        s_lshl_b32 s44, s44, 10
        v_lshl_add_u32 v{vS}, v{vLane}, 4, s43
        v_lshl_add_u32 v{vS+1}, v{vLane}, 4, s44
        v_and_b32 v5, 15, v{vLane}
        v_mul_u32_u24 v7, {F_*8}, v3
        v_lshl_add_u32 v5, v5, 3, v7
        s_add_u32 s46, s46, {WS_CS}
        v_add_u32 v{vCA}, s46, v5
        v_and_b32 v5, 31, v{vLane}
        s_lshl_b32 s42, s40, 1
        s_add_u32 s42, s42, s41
        s_lshl_b32 s43, s42, 9
        s_add_u32 s43, s43, {CON}
        v_lshl_add_u32 v{vCR}, v5, 4, s43
        v_xor_b32 v{vCR+1}, 512, v{vCR}
        s_lshl_b32 s43, s39, 11
        s_lshl_b32 s44, s41, 8
        s_add_u32 s43, s43, s44
        s_add_u32 s43, s43, {WS_FLAGS}
        s_lshl_b32 s44, s34, 10
        s_add_u32 s59, s43, s44
        s_lshl_b32 s44, s40, 10
        s_add_u32 s58, s43, s44
        s_lshl_b32 s44, s49, 9
        s_add_u32 s58, s58, s44
        v_mov_b32 v{CA+4}, 0
        v_mov_b32 v{CA+5}, 0
        v_mov_b32 v{MB+2}, 0
        v_mov_b32 v{MB+3}, 0
        v_mov_b32 v{MB+6}, 0
        v_mov_b32 v{MB+7}, 0
        v_cmp_eq_u32 s[52:53], 0, v4
        s_mov_b32 s47, 0x3f803f80
        s_mov_b32 s48, 0xffff0000
        """)
    caload = [f"global_load_dwordx2 {v(CA,2)}, v{vCA}, s[30:31] sc1", f"global_load_dwordx2 {v(CA+2,2)}, v{vCA}, s[30:31] offset:128 sc1"]
    def preads(p, j):
        s, ks = j >> 1, j & 1
        f = F[j % 3]
        ho = (slot[("H", s)] % 8) * BLK + 4096 * ks
        wo = (slot[("W", 14 * p + s)] - 12) * BLK + 2048 * ks
        o = []
        for kind, i in (("B", 0), ("A", 0), ("B", 1), ("A", 1)):
            ab = vB + i if s < 8 else (17, 46)[i]
            if kind == "B": o += [f"ds_read_b64_tr_b16 {v(f+8+4*i,2)}, v{ab} offset:{ho}", f"ds_read_b64_tr_b16 {v(f+10+4*i,2)}, v{ab} offset:{ho+1024}"]
            else: o += [f"ds_read_b64_tr_b16 {v(f+4*i,2)}, v{vAa+i} offset:{wo}", f"ds_read_b64_tr_b16 {v(f+2+4*i,2)}, v{vAa+i} offset:{wo+512}"]
        return o
    def pmfma(j, first=False):
        f = F[j % 3]
        return [f"v_mfma_f32_32x32x16_bf16 {v(ACC+32*t+16*rt,16)}, {v(f+4*t,4)}, {v(f+8+4*rt,4)}, {'0' if first else v(ACC+32*t+16*rt,16)}" for (t, rt) in ((0, 0), (0, 1), (1, 0), (1, 1))]
    def corr(first):
        return [f"v_mfma_f32_32x32x16_bf16 {v(ACC+32*t+16*rt,16)}, {v(CA+2*t,4)}, {v(MB+4*rt,4)}, {'0' if first else v(ACC+32*t+16*rt,16)}" for t in range(2) for rt in range(2)]
    mkmb = [f"v_cndmask_b32 v{MB+4*rt+k}, 0, v{CN+4*rt+3}, s[52:53]" for rt in range(2) for k in range(2)]
    def inter(m, r):
        per_ = (len(r) + 3) // 4
        for i in range(4):
            A(m[i])
            for l in r[per_*i:per_*(i+1)]: A(l)
    def pstep(p, s):
        for h in range(2):
            A("s_waitcnt lgkmcnt(8)")
            inter(pmfma(2*s - 2 + h, p == 0 and s == 1 and h == 0), preads(p, 2*s + h))
        if p == 0 and s - c.ca_load in (0, 1): A(caload[s - c.ca_load])
    def epi(t, rt, n, packed):
        a = ACC + 32 * t + 16 * rt
        cn = CN + 4 * rt
        o_ = OUT + 4 * (n & 1)
        L = []
        if packed:
            L += [f"v_pk_mul_f32 {v(T1+2*q,2)}, {v(a+2*q,2)}, {v(a+2*q,2)}" for q in range(4)]
            L += [f"v_pk_fma_f32 {v(T1+2*q,2)}, {v(T1+2*q,2)}, {v(cn,2)}, {v(cn,2)} op_sel:[0,1,0] op_sel_hi:[1,1,0]" for q in range(4)]
            L += [f"v_pk_mul_f32 {v(T1+2*q,2)}, {v(T1+2*q,2)}, {v(a+2*q,2)}" for q in range(4)]
            L += [f"v_exp_f32 v{T1+q}, v{T1+q}" for q in range(8)]
            L += [f"v_pk_mul_f32 {v(T2+2*q,2)}, {v(a+2*q,2)}, {v(a+8+2*q,2)}" for q in range(4)]
            L += [f"v_pk_fma_f32 {v(T1+2*q,2)}, {v(T1+2*q,2)}, {v(cn+2,2)}, {v(cn+2,2)} op_sel_hi:[1,0,0]" for q in range(4)]
            L += [f"v_rcp_f32 v{T1+q}, v{T1+q}" for q in range(8)]
            L += [f"v_pk_mul_f32 {v(T2+2*q,2)}, {v(T2+2*q,2)}, {v(T1+2*q,2)}" for q in range(4)]
            L += [f"v_cvt_pk_bf16_f32 v{o_+q}, v{T2+2*q}, v{T2+2*q+1}" for q in range(4)]
        else:
            def st(q):
                return [f"v_mul_f32 v{T1+q}, v{a+q}, v{a+q}", f"v_fma_f32 v{T1+q}, v{T1+q}, v{cn+1}, v{cn}", f"v_mul_f32 v{T1+q}, v{T1+q}, v{a+q}",
                        f"v_exp_f32 v{T1+q}, v{T1+q}", f"v_mul_f32 v{T2+q}, v{a+q}, v{a+8+q}", f"v_fma_f32 v{T1+q}, v{T1+q}, v{cn+2}, v{cn+2}",
                        f"v_rcp_f32 v{T1+q}, v{T1+q}", f"v_mul_f32 v{T2+q}, v{T2+q}, v{T1+q}"]
            for q0 in range(0, 8, c.il):
                xs = [st(q) for q in range(q0, q0 + c.il)]
                for k in range(8): L += [x[k] for x in xs]
                L += [f"v_cvt_pk_bf16_f32 v{o_+q//2}, v{T2+q}, v{T2+q+1}" for q in range(q0, q0 + c.il, 2)]
        L += [f"global_store_dwordx4 v{vS+rt}, {v(o_,4)}, s[30:31] offset:{1024*t} {c.stflag}"]
        return L
    def cost(l): return 2 if l.startswith(("v_exp", "v_rcp", "v_sqrt")) else c.stcost if l.startswith("global_store") else 1
    def signal(t, later=None):
        A(f"s_mov_b32 s70, 1\ns_waitcnt vmcnt({2-2*t if later is None else later})\ns_atomic_add s70, s[30:31], s58\ns_add_u32 s58, s58, 128")
    def poll_issue(r, off):
        A(f"s_mov_b32 s{r}, 0\ns_add_u32 s68, s59, {off}\ns_atomic_add s{r}, s[30:31], s68 glc")
    def poll_wait(r, off, inline=False):
        pl = A.label("poll"); ok = A.label("ok")
        if inline:
            A(f"s_mov_b32 s45, 0\n{pl}:\ns_waitcnt lgkmcnt(0)\ns_cmp_ge_u32 s{r}, 14\ns_cbranch_scc1 {ok}")
            poll_issue(r, off)
            A(f"s_add_u32 s45, s45, 1\ns_cmp_lt_u32 s45, {SPIN}\ns_cbranch_scc1 {pl}\ns_waitcnt lgkmcnt(0)\n{ok}:")
            return
        A(f"s_waitcnt lgkmcnt(0)\ns_cmp_lt_u32 s{r}, 14\ns_cbranch_scc1 {pl}\n{ok}:")
        with Cold():
            A(f"{pl}:\ns_mov_b32 s45, 0\n{pl}b:")
            poll_issue(r, off)
            A(f"s_add_u32 s45, s45, 1\ns_waitcnt lgkmcnt(0)\ns_cmp_ge_u32 s{r}, 14\ns_cbranch_scc1 {ok}\ns_cmp_lt_u32 s45, {SPIN}\ns_cbranch_scc1 {pl}b\ns_branch {ok}")
    PA_, PB_ = 69, 71
    Q = Bars([0, 14, c.drain0[1] + 1, 29], 13)
    AC2, ID, HF = 80, 160, 72
    csetup()
    if c.emode: A(f"s_waitcnt vmcnt(0)\ns_sleep {c.emode}")
    A("s_waitcnt vmcnt(0)\ns_barrier")
    P.stamp(11)
    A(f"""
    s_lshl_b32 s43, s35, 1
    s_add_u32 s43, s43, s41
    s_sub_u32 s43, s43, s38
    s_cselect_b32 s44, 14, 0
    s_add_u32 s43, s43, s44
    s_cmp_ge_u32 s43, 12
    s_cselect_b32 s44, {2 if c.w8 else 0}, 0
    s_add_u32 s43, s43, s44
    s_lshl_b32 s43, s43, 13
    v_add_u32 v{vX}, s43, v{vX}
    v_lshlrev_b32 v7, 3, v4
    v_sub_u32 v7, v5, v7
    v_mov_b32 v{vX+1}, 0x3f80
    v_mov_b32 v{vX+2}, 1.0
    """)
    for j in range(2):
        for i in range(4):
            d0 = 16 * j + 2 * i
            A(f"v_cmp_eq_u32 vcc, {d0}, v7\nv_cmp_eq_u32 s[50:51], {d0+1}, v7\nv_cndmask_b32 v{ID+4*j+i}, 0, v{vX+1}, vcc\nv_cndmask_b32 v{ID+4*j+i}, v{ID+4*j+i}, v{vX+2}, s[50:51]")
    A("s_setprio 2")
    Q.bar()
    P.stamp(12)
    for l in preads(0, 0) + preads(0, 1): A(l)
    for s in range(1, 14):
        Q.bar(); pstep(0, s)
    Q.bar()
    r = [f"ds_read_b128 {v(CN+4*i,4)}, v{vCR+i}" for i in range(2)] + [f"ds_read_b64_tr_b16 {v(HF+2*i,2)}, v{vX} offset:{4096*(i>>1)+1024*(i&1)}" for i in range(4)]
    A("s_waitcnt lgkmcnt(8)"); inter(pmfma(26), r)
    A("s_waitcnt vmcnt(0) lgkmcnt(4)"); inter(pmfma(27), mkmb)
    for l in corr(False): A(l)
    A("s_waitcnt lgkmcnt(0)")
    A("s_setprio 0")
    E1 = []
    for n in range(4): E1 += epi(n >> 1, n & 1, n, c.e1_packed)
    tot = sum(cost(x) for x in E1); per1 = tot / (c.e1_last - c.e1_first + 1); bud = 0.0
    vD, vT = 8, 14
    gsetup = f"""
    v_lshl_add_u32 v7, v4, 2, v2
    v_lshlrev_b32 v7, 7, v7
    v_lshrrev_b32 v{vD}, 1, v2
    v_xor_b32 v{vD}, s41, v{vD}
    v_lshl_add_u32 v7, v{vD}, 6, v7
    v_lshl_add_u32 v7, v3, 5, v7
    v_lshl_add_u32 v7, v6, 3, v7
    s_lshl_b32 s43, s41, 12
    v_add_u32 v{vD}, s43, v7
    v_xor_b32 v{vD+1}, 64, v{vD}
    v_add_u32 v{vD+2}, 0x10000, v{vD}
    v_add_u32 v{vD+3}, 0x10000, v{vD+1}
    v_lshlrev_b32 v{vT}, 4, v{vLane}
    """
    gsetup2 = f"""
    s_lshl_b32 s43, s39, 2
    s_lshl_b32 s44, s34, 1
    s_add_u32 s43, s43, s44
    s_add_u32 s43, s43, s40
    s_mul_i32 s55, s43, {112*1024}
    s_mul_i32 s43, s43, {32*896}
    s_lshl_b32 s44, s35, 7
    s_add_u32 s43, s43, s44
    s_lshl_b32 s44, s41, 6
    s_add_u32 s43, s43, s44
    v_mul_u32_u24 v5, 896, v5
    v_lshl_add_u32 v5, v4, 4, v5
    v_add_u32 v5, s43, v5
    s_lshl_b32 s44, s41, 11
    s_add_u32 s55, s55, s44
    s_lshl_b32 s4, s33, 13
    s_add_u32 s4, s4, s55
    s_add_u32 s54, s55, {14*8192}
    s_add_u32 s64, s30, {WS_ACT}
    s_addc_u32 s65, s31, 0
    s_mov_b32 s66, {ACT_BYTES}
    s_mov_b32 s67, 0x20000
    """
    gsetup3 = "\n".join(f"s_add_u32 s{4+k}, s{3+k}, 8192\ns_cmp_ge_u32 s{4+k}, s54\ns_cselect_b32 s{4+k}, s55, s{4+k}" for k in range(1, 14))
    TRQ = [96 + 4 * k for k in range(18)] + [16, 20, 24, 28]
    DB = [32, 40, 48, 56]
    AO = [AC2, 64]
    seq = [(14 * hf + b, j) for hf in range(2) for j in range(2) for b in range(14)]
    cons = [(b, j) for b in range(14) for j in range(2)] + seq[28:]
    freeq = list(TRQ); treg = {}
    def tload(n):
        b, j = seq[n]
        if (b, j) not in treg: treg[(b, j)] = freeq.pop(0)
        o = []
        if n == 28: o += [f"v_add_u32 v15, 4096, v{vT}"]
        if c.x_notl and n >= 28: return o
        o += [f"buffer_load_dwordx4 {v(treg[(b, j)],4)}, v{vT if n < 28 else 15}, s[64:67], s{4+b%14} offen offset:{1024*j} sc1"]
        return o
    nst = 0; early = 0
    assert c.drain0[1] <= c.chkA and c.e1_last + 3 <= c.chkA and sum(c.earlyT) <= 14
    for i in range(15, 29):
        Q.bar()
        if i == c.drain0[0]:
            assert nst >= 2
            signal(0, nst - 2)
        if i >= c.e1_first:
            bud += per1
            while E1 and (bud > 0 or i == c.e1_last):
                x = E1.pop(0); A(x); bud -= cost(x)
                if x.startswith("global_store"): nst += 1
        if i == c.pollA: poll_issue(PA_, 0)
        if i == c.e1_last + 1: A(gsetup)
        if i == c.e1_last + 2: A(gsetup2)
        if i == c.e1_last + 3: A(gsetup3)
        if i == c.chkA: A("s_waitcnt lgkmcnt(0)")
        if i == c.drain0[1]:
            signal(1)
            A(f"v_add_u32 v{vD+4}, 0x20000, v{vD}\nv_add_u32 v{vD+5}, 0x20000, v{vD+1}")
        if i == c.poll0: poll_issue(PB_, 128)
        if 0 <= i - c.chkA < len(c.earlyT):
            sk = A.label("et")
            A(f"s_cmp_lt_u32 s{PA_}, 14\ns_cbranch_scc1 {sk}")
            for _ in range(c.earlyT[i - c.chkA]):
                for l in tload(early): A(l)
                early += 1
            A(f"{sk}:")
    Q.bar()
    A(f"v_mfma_f32_32x32x16_bf16 {v(AC2,16)}, {v(ID,4)}, {v(HF,4)}, 0")
    A(f"v_mfma_f32_32x32x16_bf16 {v(AC2,16)}, {v(ID+4,4)}, {v(HF+4,4)}, {v(AC2,16)}")
    sk = A.label("et")
    A(f"s_cmp_lt_u32 s{PA_}, 14\ns_cbranch_scc1 {sk}c\n{sk}:")
    with Cold():
        A(f"{sk}c:")
        poll_wait(PA_, 0, True)
        for n in range(early):
            for l in tload(n): A(l)
        A(f"s_branch {sk}")
    def dreads(n):
        b, j = cons[n]
        sd = slot[("D", b)]; f = DB[n & 3]
        o = []
        for nt in range(2):
            do = (sd % 8) * BLK + 2048 * j
            ad = vD + 2 * (sd // 8) + nt
            o += [f"ds_read_b64_tr_b16 {v(f+4*nt,2)}, v{ad} offset:{do}", f"ds_read_b64_tr_b16 {v(f+4*nt+2,2)}, v{ad} offset:{do+1024}"]
        return o
    def gm(n):
        f = DB[n & 3]
        return [f"v_mfma_f32_32x32x16_bf16 {v(AO[nt],16)}, {v(f+4*nt,4)}, {v(treg[cons[n]],4)}, {'0' if (n == 0 and nt == 1) else v(AO[nt],16)}" for nt in (1, 0)]
    issued = early; mk = 0
    while issued < 14:
        for l in tload(issued): A(l)
        issued += 1
    poll_wait(PB_, 128, True)
    Q.mark(mk); mk += 1
    lim = 28
    for n in range(56):
        if n == 14 and not c.auxpoll: A("s_waitcnt lgkmcnt(0)\ns_barrier")
        for y in (c.ya_at, c.yb_at):
            if n == y:
                if c.auxpoll and y == c.ya_at and y < 16: A("s_waitcnt lgkmcnt(0)")
                A("s_barrier")
                Q.mark(mk); mk += 1
                lim += 14
        k = 99 if n == 0 else c.pace.get(n, c.pace1 if n < 28 else c.pace2)
        while issued < lim and freeq and k > (2 if c.tpost and n else 0):
            for l in tload(issued): A(l)
            issued += 1; k -= 1
        assert seq.index(cons[n]) < issued
        if n == 0:
            for l in dreads(0) + dreads(1): A(l)
        if n == c.g_pre:
            if c.xe: A("s_barrier")
            Q.mark(mk); mk += 1
        if c.auxpoll and n == 32: A("s_barrier")
        r = dreads(n + 2) if n + 2 < 56 else []
        A(f"s_waitcnt vmcnt({issued-1-seq.index(cons[n])}) lgkmcnt({4 if n < 55 else 0})")
        if n in (28, 42): Q.mark(mk); mk += 1
        m = gm(n)
        for i in range(2):
            A(m[i])
            if c.tpost and issued < lim and freeq and k > 1 - i:
                for l in tload(issued): A(l)
                issued += 1
            for l in r[2*i:2*i+2]: A(l)
        freeq.append(treg[cons[n]])
    assert 14 <= c.ya_at <= 26 and c.ya_at <= c.yb_at <= 32 and c.yb_at >= (20 if c.auxpoll else 24)
    while mk < 6: Q.mark(mk); mk += 1
    Q.mark(6)
    assert all(slot[("D", b)] not in (8, 9) for b in range(11, 28))
    A(f"""
    s_lshl_b32 s43, s36, 12
    s_add_u32 s43, s43, {8*BLK}
    v_lshl_add_u32 v2, v{vLane}, 4, s43
    v_xor_b32 v3, 0x2000, v2
    """)
    for q in range(4): A(f"ds_write_b128 v2, {v(AO[1]+4*q,4)} offset:{1024*q}")
    A("s_waitcnt lgkmcnt(0)\ns_barrier")
    for q in range(4): A(f"ds_read_b128 {v(32+4*q,4)}, v3 offset:{1024*q}")
    for hq in range(2):
        A(f"s_waitcnt lgkmcnt({2-2*hq})")
        for q in range(4*hq, 4*hq+4): A(f"v_pk_add_f32 {v(AC2+2*q,2)}, {v(AC2+2*q,2)}, {v(32+2*q,2)}")
        for q in range(4*hq, 4*hq+4): A(f"v_cvt_pk_bf16_f32 v{48+q}, v{AC2+2*q}, v{AC2+2*q+1}")
        A(f"v_permlane32_swap_b32 v{48+4*hq}, v{48+4*hq+2}\nv_permlane32_swap_b32 v{48+4*hq+1}, v{48+4*hq+3}")
        A(f"global_store_dwordx4 v5, {v(48+4*hq,4)}, s[26:27] offset:{32*hq} {c.outflag}")
    Q.fin(7)
    A("s_endpgm")
    target(nw)
    A(f"s_and_b32 s46, s36, 3\ns_mov_b32 s45, 0\nv_mov_b32 v11, {TAGA}")
    def xpoll():
        for l in xp: A(l)
    A("s_waitcnt lgkmcnt(0)\ns_barrier")
    P.stamp(5)
    A(f"""
    ds_read_b32 v11, v11
    s_lshl_b32 s47, s46, 10
    s_add_u32 s47, s47, {UO+512}
    v_xor_b32 v9, 3, v{vLane}
    v_lshl_add_u32 v9, v9, 2, s47
    s_lshl_b32 s47, s46, 11
    v_lshrrev_b32 v5, 3, v{vLane}
    v_lshl_add_u32 v5, v5, 4, s47
    v_bfe_u32 v6, v{vLane}, 1, 2
    v_lshl_add_u32 v5, v6, 8, v5
    v_and_b32 v6, 1, v{vLane}
    v_lshl_add_u32 v10, v6, 3, v5
    """)
    if not c.xp_at:
        if c.poll_late: A(f"s_sleep {c.poll_late}")
        xpoll()
    if not c.xp_chk:
        A(f"s_mov_b32 s45, 1\ns_barrier\ns_setprio {c.nprio}")
    pl = A.label("xp"); ok = A.label("xok"); nb1 = A.label("xnb")
    A(f"{pl}:\ns_waitcnt vmcnt(0) lgkmcnt(0)\nv_min3_u32 v4, v{vPX+1}, v{vPX+3}, v11\nv_max3_u32 v5, v{vPX+1}, v{vPX+3}, v11")
    for q in range(1, 8): A(f"v_min3_u32 v4, v4, v{vPX+4*q+1}, v{vPX+4*q+3}\nv_max3_u32 v5, v5, v{vPX+4*q+1}, v{vPX+4*q+3}")
    assert not c.xp_chk
    A(f"v_cmp_ne_u32 vcc, v4, v5\ns_cbranch_vccnz {pl}c\n{ok}:")
    with Cold():
        A(f"{pl}c:\ns_add_u32 s45, s45, 1\ns_cmp_gt_u32 s45, {SPIN}\ns_cbranch_scc1 {ok}")
        if c.xmask:
            for q in range(8):
                A(f"v_cmp_ne_u32 vcc, v{vPX+4*q+1}, v11\nv_cmp_ne_u32 s[50:51], v{vPX+4*q+3}, v11\ns_or_b64 exec, vcc, s[50:51]\ns_cbranch_execz {pl}m{q}\n{xp[q]}\n{pl}m{q}:\ns_mov_b64 exec, -1")
        else: xpoll()
        A(f"s_branch {pl}")
    P.stamp(6)
    if c.x_cnt: A("s_waitcnt lgkmcnt(0)\ns_mul_i32 s74, s45, 100\ns_add_u32 s74, s74, s72")
    NU, PRE, UB = 16, 32, 48
    for half in range(2):
        st = []
        for r in range(4 * half, 4 * half + 4):
            S = vPS_ + 2 * r; X = vPX + 2 * r
            t = 60 + 4 * (r & 3)
            st.append([f"v_and_b32 v{t+2}, s43, v{S}", f"v_rcp_f32 v{t+2}, v{t+2}", f"v_lshlrev_b32 v{t}, 16, v{S}",
                  f"v_lshlrev_b32 v{PRE+2*r}, 16, v{X}", f"v_and_b32 v{PRE+2*r+1}, s43, v{X}",
                  f"v_pk_add_f32 {v(NU+2*r,2)}, {v(PRE+2*r,2)}, {v(t,2)} op_sel_hi:[1,0] neg_lo:[0,1] neg_hi:[0,1]" if c.npk else f"v_sub_f32 v{NU+2*r}, v{PRE+2*r}, v{t}\nv_sub_f32 v{NU+2*r+1}, v{PRE+2*r+1}, v{t}",
                  f"v_cvt_pk_bf16_f32 v{NU+2*r+1}, v{NU+2*r}, v{NU+2*r+1}",
                  f"v_lshlrev_b32 v{NU+2*r}, 16, v{NU+2*r+1}", f"v_and_b32 v{NU+2*r+1}, s43, v{NU+2*r+1}",
                  f"v_pk_mul_f32 {v(NU+2*r,2)}, {v(NU+2*r,2)}, {v(t+2,2)} op_sel_hi:[1,0]" if c.npk else f"v_mul_f32 v{NU+2*r}, v{NU+2*r}, v{t+2}\nv_mul_f32 v{NU+2*r+1}, v{NU+2*r+1}, v{t+2}"])
        for l in merge(*st): A(l)
        for ch in range(2):
            for k in (2 * half, 2 * half + 1): A(f"v_cvt_pk_bf16_f32 v{UB+4*ch+k}, v{NU+4*k+2+ch}, v{NU+4*k+ch}")
    P.stamp(7)
    for half in range(2):
        for ch in range(2):
            A(f"ds_write2st64_b32 v9, v{UB+4*ch+2*half}, v{UB+4*ch+2*half+1} offset0:{ch*UPITCH//256+2*half} offset1:{ch*UPITCH//256+2*half+1}")
    A("s_setprio 0\ns_waitcnt lgkmcnt(0)\ns_barrier")
    P.stamp(8)
    if c.x_quietN: A("s_sleep 60")
    PO = 60
    for ch in range(2):
        for k in range(4):
            A(f"v_lshlrev_b32 v4, 16, v{UB+4*ch+k}\nv_and_b32 v5, s43, v{UB+4*ch+k}")
            A(f"v_fma_f32 v{PO+8*ch+2*k+1}, v4, s{58+ch}, v{PRE+4*k+2+ch}\nv_fma_f32 v{PO+8*ch+2*k}, v5, s{58+ch}, v{PRE+4*k+ch}")
            A(f"ds_write_b64 v10, {v(PO+8*ch+2*k,2)} offset:{32768*ch+1024*(k>>1)+128*(k&1)}")
    A("v_mov_b32 v90, v11")
    csetup()
    Q = Bars([0, c.gat_check, c.gat_check + 1, 14, 28, 29], 10)
    ST, GA = 18, 96
    vPS, vGA = 22, 23
    A(f"""
    s_mul_i32 s43, s39, {14*1024}
    s_lshl_b32 s44, s42, 8
    s_add_u32 s43, s43, s44
    s_add_u32 s43, s43, {WS_PS}
    v_lshl_add_u32 v{vPS}, v5, 3, s43
    v_mul_u32_u24 v7, 7168, v4
    v_add3_u32 v{vGA}, v{vPS}, v7, 64
    v_add_u32 v{vGA}, {3072-64}, v{vGA}
    s_lshl_b32 s44, s38, 10
    v_add_u32 v{vPS}, s44, v{vPS}
    """)
    nb = A.label("nb"); pz = A.label("pz"); pzo = A.label("pzo")
    A(f"""
    s_cmp_lg_u32 s36, 4
    s_cbranch_scc1 {nb}
    v_min_u32 v47, 55, v{vLane}
    v_lshlrev_b32 v47, 5, v47
    v_add_u32 v47, {WS_PZ}, v47
    s_mov_b32 s45, 0
    {pz}:
    s_sleep {c.pz_sleep}
    global_load_dwordx4 v[48:51], v47, s[30:31] sc1
    global_load_dwordx4 v[52:55], v47, s[30:31] offset:16 sc1
    s_waitcnt vmcnt(0)
    v_min3_u32 v56, v48, v49, v90
    v_max3_u32 v57, v48, v49, v90
    v_min3_u32 v56, v50, v51, v56
    v_max3_u32 v57, v50, v51, v57
    v_min3_u32 v56, v52, v53, v56
    v_max3_u32 v57, v52, v53, v57
    v_min3_u32 v56, v54, v55, v56
    v_max3_u32 v57, v54, v55, v57
    v_cmp_ne_u32 vcc, v56, v57
    s_cbranch_vccz {pzo}
    s_add_u32 s45, s45, 1
    s_cmp_lt_u32 s45, {SPIN}
    s_cbranch_scc1 {pz}
    {pzo}:
    s_cmp_lg_u32 s2, 0
    s_cbranch_scc1 {nb}
    v_mov_b32 v47, {WS_E}
    s_mov_b64 exec, 1
    global_store_dword v47, v90, s[30:31]
    s_mov_b64 exec, -1
    {nb}:
    """)
    P.stamp(9)
    A("s_waitcnt lgkmcnt(0)\ns_barrier\ns_barrier")
    def gat(js=range(7)):
        for j in js: A(f"global_load_dwordx2 {v(GA+2*j,2)}, v{vGA}, s[30:31] offset:{1024*j-3072} sc1")
    S, Qv = GA, GA + 1
    work = [f"v_add_f32 v{GA+k}, v{GA+k}, v{GA+2*j+k}" for j in range(1, 7) for k in range(2)]
    work += [f"v_mov_b32 v{GA+2}, v{GA}", f"v_mov_b32 v{GA+3}, v{GA+1}", f"v_permlane32_swap_b32 v{GA}, v{GA+2}", f"v_permlane32_swap_b32 v{GA+1}, v{GA+3}",
             f"v_add_f32 v{GA}, v{GA}, v{GA+2}", f"v_add_f32 v{GA+1}, v{GA+1}, v{GA+3}"]
    work += [l.strip() for l in f"""
    v_mul_f32 v{S}, {f32(1.0/448)}, v{S}
    v_mul_f32 v{Qv}, {f32(1.0/448)}, v{Qv}
    v_fma_f32 v{Qv}, -v{S}, v{S}, v{Qv}
    v_max_f32 v{Qv}, 0, v{Qv}
    v_cvt_pk_bf16_f32 v{CN+3}, -v{S}, -v{S}
    v_cvt_pk_bf16_f32 v{Qv}, v{Qv}, v{Qv}
    v_and_b32 v{Qv}, s48, v{Qv}
    v_add_f32 v{Qv}, {f32(1e-5)}, v{Qv}
    v_cvt_pk_bf16_f32 v{Qv}, v{Qv}, v{Qv}
    v_and_b32 v{Qv}, s48, v{Qv}
    v_sqrt_f32 v{Qv}, v{Qv}
    v_cvt_pk_bf16_f32 v{Qv}, v{Qv}, v{Qv}
    v_and_b32 v{Qv}, s48, v{Qv}
    v_rcp_f32 v{S}, v{Qv}
    v_mul_f32 v{CN+2}, v{Qv}, v{Qv}
    v_mul_f32 v{CN}, {f32(GK0)}, v{S}
    v_mul_f32 v{CN+1}, v{S}, v{S}
    v_mul_f32 v{CN+1}, v{CN+1}, v{S}
    v_mul_f32 v{CN+1}, {f32(GK1)}, v{CN+1}
    ds_write_b128 v{vCR}, {v(CN,4)}
    """.strip().split("\n")]
    nwi = c.con_write - c.gat_check
    wper = (len(work) + nwi - 1) // nwi
    for i in range(14):
        Q.bar()
        if i == 0:
            for k in range(4): A(f"ds_read_b64_tr_b16 {v(F[0]+2*k,2)}, v{vB} offset:{4096*(k>>1)+1024*(k&1)}")
        if i == 1:
            A("s_waitcnt lgkmcnt(0)")
            for k in range(8):
                z = k < 2
                A(f"v_dot2_f32_bf16 v{ST+(k&1)}, v{F[0]+k}, s47, {'0' if z else 'v%d' % (ST+(k&1))}\nv_dot2_f32_bf16 v{ST+2+(k&1)}, v{F[0]+k}, v{F[0]+k}, {'0' if z else 'v%d' % (ST+2+(k&1))}")
        if i == 2:
            A(f"""
            v_add_f32 v{ST}, v{ST}, v{ST+1}
            v_add_f32 v{ST+1}, v{ST+2}, v{ST+3}
            v_mov_b32 v{ST+2}, v{ST}
            v_mov_b32 v{ST+3}, v{ST+1}
            v_permlane32_swap_b32 v{ST}, v{ST+2}
            v_permlane32_swap_b32 v{ST+1}, v{ST+3}
            v_add_f32 v{ST}, v{ST}, v{ST+2}
            v_add_f32 v{ST+1}, v{ST+1}, v{ST+3}
            v_or_b32 v{ST+1}, 1, v{ST+1}
            s_mov_b32 exec_hi, 0
            global_store_dwordx2 v{vPS}, {v(ST,2)}, s[30:31] sc0 sc1
            s_mov_b32 exec_hi, -1
            """)
        if i in (c.cs_issue, c.ca_load - 1):
            sk = A.label("css")
            A(f"s_cmp_lg_u32 s36, 4\ns_cbranch_scc1 {sk}")
            if i == c.cs_issue: A(f"global_load_dword v47, v{MB+2}, s[28:29] sc1")
            else:
                pl = A.label("cs")
                A(f"s_mov_b32 s45, 0\n{pl}:\ns_waitcnt vmcnt(0)\nv_cmp_gt_u32 vcc, 64, v47\ns_cbranch_vccz {sk}\ns_sleep 32\nglobal_load_dword v47, v{MB+2}, s[28:29] sc1\ns_add_u32 s45, s45, 1\ns_cmp_lt_u32 s45, {SPIN}\ns_cbranch_scc1 {pl}")
            A(f"{sk}:")
        k0 = i - (c.gat_issue - len(c.gat_split) + 1)
        if 0 <= k0 < len(c.gat_split) and not c.x_nogat: gat(range(sum(c.gat_split[:k0]), sum(c.gat_split[:k0+1])))
        if i == c.gat_check and not c.x_nogat:
            pl = A.label("gp"); ok = A.label("gok")
            A(f"s_mov_b32 s45, 0\n{pl}:\ns_waitcnt vmcnt(0)\nv_min3_u32 v7, v{GA+1}, v{GA+3}, v{GA+5}\nv_min3_u32 v7, v7, v{GA+7}, v{GA+9}\nv_min3_u32 v7, v7, v{GA+11}, v{GA+13}")
            A(f"v_cmp_eq_u32 vcc, 0, v7\ns_cbranch_vccnz {pl}c\n{ok}:")
            with Cold():
                A(f"{pl}c:\ns_add_u32 s45, s45, 1\ns_cmp_ge_u32 s45, {SPIN}\ns_cbranch_scc1 {ok}")
                gat()
                A(f"s_branch {pl}")
        if c.gat_check < i <= c.con_write:
            for l in work[:wper]: A(l)
            work = work[wper:]
        if i == c.ca_load:
            for l in caload: A(l)
        if i == 13:
            assert not work
            A("s_waitcnt vmcnt(0) lgkmcnt(0)")
    Q.bar()
    A(f"ds_read_b128 {v(CN+4,4)}, v{vCR+1}")
    for l in preads(1, 0): A(l)
    A("s_waitcnt lgkmcnt(8)")
    for l in mkmb + preads(1, 1): A(l)
    for l in corr(True): A(l)
    A(f"s_setprio {c.prioB}")
    for s in range(1, 14):
        Q.bar(); pstep(1, s)
    Q.bar()
    A("s_waitcnt lgkmcnt(8)")
    for l in pmfma(26): A(l)
    A("s_waitcnt lgkmcnt(0)")
    Q.bar()
    for l in pmfma(27): A(l)
    for n in range(4):
        L = epi(n >> 1, n & 1, n, True)
        for l in L[:-1]: A(l)
        if n == 3 and c.sig_early: signal(0, 1)
        A(L[-1])
    Q.mark(0)
    A("s_setprio 0")
    if c.xe: A("s_barrier")
    if not c.sig_early: signal(0)
    Q.mark(1)
    if c.auxpoll:
        if c.selfrd:
            A(f"s_cmp_lg_u32 s40, s34\ns_cbranch_scc1 Lsr1\nglobal_load_dwordx4 v[96:99], v{vS}, s[30:31] sc1\nglobal_load_dwordx4 v[100:103], v{vS+1}, s[30:31] sc1\ns_waitcnt vmcnt(2)\ns_branch Lsr2\nLsr1:\ns_waitcnt vmcnt(0)\nLsr2:")
            signal(1, 2)
            A(f"s_cmp_lg_u32 s40, s34\ns_cbranch_scc1 Lsr3\nglobal_load_dwordx4 v[96:99], v{vS}, s[30:31] offset:1024 sc1\nglobal_load_dwordx4 v[100:103], v{vS+1}, s[30:31] offset:1024 sc1\nLsr3:")
        else: signal(1)
        Q.mark(2)
        A("s_barrier")
        Q.mark(3)
        A("s_barrier\ns_barrier")
        Q.mark(4)
    else:
        if c.pa_early: poll_issue(PA_, 512)
        signal(1)
        Q.mark(2)
        if not c.pa_early: poll_issue(PA_, 512)
        A("s_barrier")
        poll_wait(PA_, 512, True)
        poll_issue(PB_, 640)
        Q.mark(3)
        A("s_barrier")
        poll_wait(PB_, 640, True)
        Q.mark(4)
        A("s_barrier")
    Q.fin(5)
    A("s_waitcnt lgkmcnt(0)\ns_endpgm")
    A(f".p2align 3\n{auxt}:")
    PA.stamp(1)
    srd(A, 64, 30, XG_BYTES, WS_XG)
    A(f"""
    v_and_b32 v4, 15, v{vLane}
    v_lshrrev_b32 v5, 4, v{vLane}
    v_lshl_add_u32 v6, v4, 8, s46
    v_lshl_add_u32 v6, v5, 2, v6
    v_and_b32 v7, 7, v4
    v_lshl_add_u32 v6, v7, 4, v6
    v_lshlrev_b32 v9, 14, v5
    v_lshl_add_u32 v9, v4, 4, v9
    s_lshl_b32 s46, s36, 2
    s_add_u32 s46, s46, {TAGA}
    v_mov_b32 v2, s46
    """)
    for k in range(1, 8): A(f"v_xor_b32 v{80+k}, {16*k}, v6")
    A("s_waitcnt lgkmcnt(0)\ns_add_u32 s57, s57, 1\ns_and_b32 s57, s57, 0xffff\ns_or_b32 s57, s57, 0x7f810000")
    for k in range(16): A(f"v_mov_b32 v{vXG+2*k+1}, s57")
    A(f"s_mov_b64 exec, 1\nds_write_b32 v2, v{vXG+1}\ns_mov_b64 exec, -1\ns_waitcnt vmcnt(0)")
    PA.stamp(2)
    for k in range(8):
        ad = 6 if k == 0 else 80 + k
        A(f"ds_read_b32 v{vXG+4*k}, v{ad}\nds_read_b32 v{vXG+4*k+2}, v{ad} offset:128")
    for k in range(8):
        A(f"s_waitcnt lgkmcnt({14-2*k})\nbuffer_store_dwordx4 {v(vXG+4*k,4)}, v9, s[64:67], s51 offen sc0 sc1")
        if k < 7: A(f"s_add_u32 s51, s51, {4*16384}")
    PA.stamp(3)
    A(f"""
    v_mov_b32 v24, 0
    v_mov_b32 v25, 0
    s_lshl_b32 s43, s2, 1
    s_add_u32 s43, s43, s36
    s_lshl_b32 s44, s43, 9
    s_add_u32 s44, s44, {WS_PS}
    v_lshl_add_u32 v3, v{vLane}, 3, s44
    global_store_dwordx2 v3, v[24:25], s[30:31] sc0 sc1
    s_and_b32 s44, s43, 255
    s_lshl_b32 s44, s44, 7
    s_add_u32 s44, s44, {WS_FLAGS}
    v_mov_b32 v4, s44
    s_mov_b64 exec, 1
    global_store_dword v4, v24, s[30:31] sc0 sc1
    s_mov_b64 exec, -1
    s_lshl_b32 s44, s43, 2
    s_add_u32 s44, s44, {WS_PZ}
    v_mov_b32 v22, s44
    v_mov_b32 v23, s57
    s_setprio 0
    """)
    if c.warm:
        A("s_cmp_eq_u32 s36, 1\ns_cbranch_scc1 Lwm1")
        for lab in ("Lmw", nw, odd): A(f"s_call_b64 s[96:97], {lab}w")
        A("s_branch Lwm2\nLwm1:")
        for k in range(1, 4): A(f"s_call_b64 s[96:97], Lpw{k}")
        A("Lwm2:")
    A("s_barrier")
    if c.warm:
        A("s_cmp_eq_u32 s36, 1\ns_cbranch_scc1 Lwm3")
        for k in range(4, c.npg + 1, 2): A(f"s_call_b64 s[96:97], Lpw{k}")
        A("s_branch Lwm4\nLwm3:")
        for k in range(5, c.npg + 1, 2): A(f"s_call_b64 s[96:97], Lpw{k}")
        A("Lwm4:")
    aW, aD, aH = 8, 12, 8
    sW, sD, eW, eD = 41, 42, 45, 46
    def daddr():
        A(ffn_ids)
        A(f"""
        v_lshrrev_b32 v6, 3, v{vLane}
        v_and_b32 v7, 7, v{vLane}
        v_and_b32 v5, 2, v6
        v_lshlrev_b32 v4, 1, v5
        v_xor_b32 v4, v4, v7
        v_mul_u32_u24 v3, 896, v6
        v_lshl_add_u32 v{aD}, v4, 4, v3
        v_add_u32 v{aD+1}, {1*(8*896-1024)}, v{aD}
        v_add_u32 v{aD+2}, {2*(8*896-1024)}, v{aD}
        v_add_u32 v{aD+3}, {3*(8*896-1024)}, v{aD}
        s_lshl_b32 s{eD}, s35, 7
        s_mul_i32 s32, s36, {32*896}
        s_add_u32 s{eD}, s{eD}, s32
        s_mul_i32 s{sD}, s33, {128*896}
        s_add_u32 s{sD}, s{sD}, s{eD}
        s_add_u32 s{eD}, s{eD}, {14*128*896}
        s_lshl_b32 s32, s36, 12
        v_lshl_add_u32 v16, v{vLane}, 4, s32
        v_add_u32 v17, 0x10000, v16
        v_add_u32 v18, 0x20000, v16
        s_lshl_b32 s59, s39, 11
        s_lshl_b32 s58, s34, 10
        s_add_u32 s59, s59, s58
        s_lshl_b32 s58, s36, 8
        s_add_u32 s59, s59, s58
        s_add_u32 s59, s59, {WS_FLAGS}
        s_lshl_b32 s43, s39, 1
        s_add_u32 s43, s43, s34
        s_mul_i32 s43, s43, {224*1024}
        s_lshl_b32 s44, s36, 11
        s_add_u32 s43, s43, s44
        s_add_u32 s43, s43, {WS_ACT+4096}
        v_bfe_u32 v3, v{vLane}, 3, 1
        v_add_u32 v3, s33, v3
        v_cmp_gt_u32 vcc, 14, v3
        v_cndmask_b32 v3, 0, v3, vcc
        v_lshlrev_b32 v3, 13, v3
        v_bfe_u32 v4, v{vLane}, 4, 1
        v_mul_u32_u24 v4, {112*1024}, v4
        v_add3_u32 v3, v3, v4, s43
        v_lshl_add_u32 v19, v7, 7, v3
        """)
        srd(A, 60, 24, W_BYTES)
    def fifo_load(first, n, reg0):
        if c.x_nopre: return
        hf = 64 * 896 if first >= 14 else 0
        assert first >= 14 or first + n <= 14
        A(f"s_add_u32 s43, s{sD}, {hf + (first % 14)*128*896}\ns_add_u32 s44, s{eD}, {hf}")
        for b in range(n):
            A(f"s_cmp_ge_u32 s43, s44\ns_cselect_b32 s34, {14*128*896}, 0\ns_sub_u32 s43, s43, s34")
            for i in range(4): A(f"buffer_load_dwordx4 {v(reg0+16*b+4*i,4)}, v{aD+i}, s[60:63], s43 offen offset:{1024*i}")
            A(f"s_add_u32 s43, s43, {128*896}")
            if c.fdepth is not None: A(f"s_waitcnt vmcnt({c.fdepth})")
    def fifo_put(first, n, reg0):
        if c.x_noput: return
        for b in range(n):
            sl = slot[("D", first + b)]
            for i in range(4): A(f"ds_write_b128 v{16+sl//8}, {v(reg0+16*b+4*i,4)} offset:{(sl%8)*BLK+1024*i}")
    daddr()
    A(f"""
    v_xor_b32 v4, v5, v7
    s_lshl_b32 s43, s36, 2
    v_xor_b32 v4, s43, v4
    v_mul_u32_u24 v3, 3584, v6
    v_lshl_add_u32 v{aW}, v4, 4, v3
    v_add_u32 v{aW+1}, {1*(8*3584-1024)}, v{aW}
    v_add_u32 v{aW+2}, {2*(8*3584-1024)}, v{aW}
    v_add_u32 v{aW+3}, {3*(8*3584-1024)}, v{aW}
    s_lshl_b32 s{eW}, s38, 8
    s_mul_i32 s{sW}, s38, {32*3584}
    s_add_u32 s{sW}, s{sW}, s{eW}
    s_add_u32 s{eW}, s{eW}, {14*32*3584}
    s_cmp_eq_u32 s36, 0
    s_cselect_b32 s20, s20, s22
    s_cselect_b32 s21, s21, s23
    """)
    srd(A, 52, 20, W_BYTES)
    A(f"""
    v_mov_b32 v20, 0
    v_mov_b32 v21, 0
    v_lshrrev_b32 v4, 4, v{vLane}
    v_mul_u32_u24 v4, {KP}, v4
    v_and_b32 v5, 15, v{vLane}
    v_lshl_add_u32 v4, v5, 2, v4
    s_lshl_b32 s43, s36, 15
    v_add_u32 v4, s43, v4
    s_mul_i32 s43, s36, {UPITCH}
    s_add_u32 s43, s43, {UO}
    v_lshl_add_u32 v3, v{vLane}, 3, s43
    """)
    A("s_waitcnt vmcnt(0)\ns_mov_b64 exec, 1\nglobal_store_dword v22, v23, s[30:31] sc0 sc1\ns_mov_b64 exec, -1")
    A(f"s_barrier\nds_write_b32 v4, v20 offset:{KB0}\nds_write_b64 v3, v[20:21]")
    if c.lf_at == 'B': fifo_load(14, 6, 24)
    A("s_waitcnt lgkmcnt(0)\ns_barrier")
    def dma(kind, idx, i):
        if kind == "F":
            if i == 0:
                if idx == 14: A(f"s_add_u32 s43, s{sD}, {64*896}\ns_add_u32 s44, s{eD}, {64*896}")
                A(f"s_cmp_ge_u32 s43, s44\ns_cselect_b32 s35, {14*128*896}, 0\ns_sub_u32 s43, s43, s35")
            A(f"buffer_load_dwordx4 {v(24+16*(idx-14)+4*i,4)}, v{aD+i}, s[60:63], s43 offen offset:{1024*i}")
            if i == 3: A(f"s_add_u32 s43, s43, {128*896}")
            return
        base_ = slot[(kind, idx)] * BLK
        a0, r0, s, e, step = {"W": (aW, 52, sW, eW, 32*3584), "D": (aD, 60, sD, eD, 128*896), "H": (4, 48, 40, 47, HS)}[kind]
        if i == 0:
            if idx == 14:
                A(f"s_add_u32 s{s}, s{s}, 128\ns_add_u32 s{e}, s{e}, 128")
            A(f"s_add_u32 m0, s32, {base_}\ns_add_u32 s33, s{s}, {step}")
        A(f"buffer_load_dwordx4 v{a0+i}, s[{r0}:{r0+3}], s{s} offen offset:{1024*i}{' sc1' if kind == 'H' else ''} lds")
        if i == 0: A(f"s_cmp_ge_u32 s33, s{e}\ns_cselect_b32 s34, {14*step}, 0")
        if i == 3: A(f"s_sub_u32 s{s}, s33, s34")
    if c.x_quietL: A('s_sleep 60')
    for x in issue[-2]: dma(*x)
    assert c.lf_at == 'C'
    fifo_load(14, 6, 24)
    A(f"""
    v_lshrrev_b32 v2, 4, v{vLane}
    v_and_b32 v3, 15, v{vLane}
    v_lshlrev_b32 v4, 2, v2
    v_xor_b32 v4, v4, v3
    v_lshlrev_b32 v4, 4, v4
    v_and_b32 v3, 1, v2
    v_lshl_add_u32 v4, v3, 12, v4
    v_lshrrev_b32 v2, 1, v2
    v_lshl_add_u32 v4, v2, 14, v4
    v_add_u32 v5, {1*(32768-1024)}, v4
    v_add_u32 v6, {2*(32768-1024)}, v4
    v_add_u32 v7, {3*(32768-1024)}, v4
    s_lshl_b32 s47, s39, 8
    s_lshl_b32 s43, s36, 17
    s_add_u32 s47, s47, s43
    s_add_u32 s40, s38, {c.h0}
    s_cmp_ge_u32 s40, 14
    s_cselect_b32 s43, 14, 0
    s_sub_u32 s40, s40, s43
    s_lshl_b32 s40, s40, 18
    s_add_u32 s40, s40, s47
    s_add_u32 s47, s47, {14*HS}
    """)
    srd(A, 48, 30, XG_BYTES, WS_XG)
    PA.stamp(4)
    A("s_barrier\ns_barrier")
    for x in issue[-1]: dma(*x)
    if c.nlf > 6: fifo_load(20 - c.nlf, c.nlf - 6, 120)
    A(f"s_waitcnt vmcnt({len(issue[-1]) + 4 * (c.nlf - 6)})\ns_barrier")
    for i in range(0, 29):
        for x in issue[i]: dma(*x)
        if i == 3: A(f"s_waitcnt vmcnt({sum(len(issue[k]) for k in range(4))})")
        if wait[i] is not None: A(f"s_waitcnt vmcnt({min(63, wait[i])})")
        A("s_barrier")
    if c.nlf > 6: fifo_put(20 - c.nlf, c.nlf - 6, 120)
    if c.xe:
        A("s_barrier")
        fifo_put(14, 3, 24)
        A("s_barrier")
        fifo_put(17, 3, 72)
    elif c.auxpoll:
        assert c.yb_at <= 26 and c.nlf == 6
        fifo_put(14, 6, 24)
        A("s_barrier")
        poll_issue(PB_, 640); poll_wait(PB_, 640, True)
        if c.touch & 2: A("global_load_dword v2, v19, s[30:31] offset:1024 sc1\ns_barrier")
    else:
        assert c.yb_at <= 26
        fifo_put(14, c.put_0, 24)
        A(f"s_waitcnt lgkmcnt({min(15, 4 * c.put_0)})\ns_barrier")
        fifo_put(14 + c.put_0, c.put_l, 24 + 16 * c.put_0)
        A("s_barrier")
        fifo_put(14 + c.put_0 + c.put_l, 6 - c.put_0 - c.put_l, 24 + 16 * (c.put_0 + c.put_l))
    A("s_waitcnt lgkmcnt(0)")
    if c.phase == 1: Prof(A, 3).flush(5)
    A("s_endpgm")
    A(f".p2align 3\n{auxs}:")
    PA.stamp(1)
    a0 = 90
    A(f"s_mov_b32 s42, 0x3f803f80\nv_and_b32 v4, 56, v{vLane}\ns_lshl_b32 s46, s47, 6\nv_add_u32 v4, s46, v4\nv_mov_b32 v2, {TAGA}")
    A("s_waitcnt lgkmcnt(0)\ns_add_u32 s57, s56, 1\ns_and_b32 s57, s57, 0xffff\ns_or_b32 s57, s57, 0x7f810000\ns_mov_b32 s45, 0")
    for i in range(28):
        z = i < 2
        if i % 4 == 0: A(f"s_waitcnt vmcnt({6-i//4})")
        if i == 4: PA.stamp(2)
        if i == 24: A("ds_read_b64 v[6:7], v2")
        A(f"v_dot2_f32_bf16 v{a0+(i&1)}, v{vRow+i}, s42, {'0' if z else 'v%d' % (a0+(i&1))}")
        A(f"v_dot2_f32_bf16 v{a0+2+(i&1)}, v{vRow+i}, v{vRow+i}, {'0' if z else 'v%d' % (a0+2+(i&1))}")
    A(f"v_add_f32 v{a0}, v{a0}, v{a0+1}\nv_add_f32 v{a0+2}, v{a0+2}, v{a0+3}")
    for op in ("quad_perm:[1,0,3,2]", "quad_perm:[2,3,0,1]", "row_half_mirror"):
        A(f"v_add_f32_dpp v{a0}, v{a0}, v{a0} {op}{DPP}\nv_add_f32_dpp v{a0+2}, v{a0+2}, v{a0+2} {op}{DPP}")
    A(f"""
    v_mul_f32 v{a0}, {f32(1.0/448)}, v{a0}
    v_mul_f32 v{a0+2}, {f32(1.0/448)}, v{a0+2}
    v_fma_f32 v{a0+2}, -v{a0}, v{a0}, v{a0+2}
    v_max_f32 v{a0+2}, 0, v{a0+2}
    v_cvt_pk_bf16_f32 v{a0+2}, v{a0+2}, v{a0+2}
    v_and_b32 v{a0+2}, s43, v{a0+2}
    v_add_f32 v{a0+2}, {f32(1e-5)}, v{a0+2}
    v_cvt_pk_bf16_f32 v{a0+2}, v{a0+2}, v{a0+2}
    v_and_b32 v{a0+2}, s43, v{a0+2}
    v_sqrt_f32 v{a0+2}, v{a0+2}
    v_mov_b32 v{a0+1}, s57
    v_cvt_pk_bf16_f32 v{a0}, v{a0}, v{a0+2}
    Ltg:
    s_waitcnt lgkmcnt(0)
    v_xor_b32 v6, s57, v6
    v_xor_b32 v7, s57, v7
    v_or_b32 v6, v6, v7
    v_cmp_ne_u32 vcc, 0, v6
    s_cbranch_vccz Ltg2
    ds_read_b64 v[6:7], v2
    s_add_u32 s45, s45, 1
    s_cmp_lt_u32 s45, {SPIN}
    s_cbranch_scc1 Ltg
    Ltg2:
    s_mov_b32 exec_lo, 0x01010101
    s_mov_b32 exec_hi, 0x01010101
    global_store_dwordx2 v4, {v(a0,2)}, s[30:31] sc0 sc1
    s_mov_b64 exec, -1
    """)
    PA.stamp(3)
    if base.PROF and c.phase == 1:
        A(f"s_branch {hold}x\n{hold}:")
        for k in (1, 2, 3): PA.stamp(k)
        A(f"{hold}x:")
    else: A(f"{hold}:")
    A("s_setprio 0\ns_barrier")
    daddr()
    sH, eH, sV = 40, 41, 47
    VR = 20
    A(f"""
    v_lshrrev_b32 v6, 4, v{vLane}
    v_and_b32 v7, 15, v{vLane}
    v_lshlrev_b32 v5, 2, v6
    v_xor_b32 v5, v5, v7
    v_lshlrev_b32 v5, 4, v5
    v_and_b32 v7, 1, v6
    v_lshl_add_u32 v5, v7, 12, v5
    v_lshrrev_b32 v6, 1, v6
    v_lshl_add_u32 v{aH}, v6, 14, v5
    v_add_u32 v{aH+1}, {1*(32768-1024)}, v{aH}
    v_add_u32 v{aH+2}, {2*(32768-1024)}, v{aH}
    v_add_u32 v{aH+3}, {3*(32768-1024)}, v{aH}
    s_lshl_b32 s{eH}, s39, 8
    s_lshl_b32 s43, s36, 17
    s_add_u32 s{eH}, s{eH}, s43
    s_lshl_b32 s{sH}, s38, 18
    s_add_u32 s{sH}, s{sH}, s{eH}
    s_add_u32 s{eH}, s{eH}, {14*HS}
    s_mov_b32 s56, 0x7f810000
    s_mov_b32 s{sV}, s{sH}
    """)
    srd(A, 48, 30, XG_BYTES, WS_XG)
    A("s_barrier")
    if c.hf_at == 'B':
        fifo_load(20, 3, 40)
    A("s_barrier")
    if c.x_quietL: A('s_sleep 60')
    if c.hf_at == 'B': fifo_load(23, 5, 88)
    elif c.hf_at == 'C': fifo_load(20, 8, 40)
    else: fifo_load(20, c.hf_c, 40)
    PA.stamp(4)
    A(f"s_barrier\ns_barrier\ns_setprio {c.hprio}")
    def hblock(s, m0expr):
        A(f"s_add_u32 m0, {m0expr}\ns_add_u32 s33, s{s}, {HS}")
        for i in range(4):
            A(f"buffer_load_dwordx4 v{aH+i}, s[48:51], s{s} offen offset:{1024*i} sc1 lds")
            if i == 0: A(f"s_cmp_ge_u32 s33, s{eH}\ns_cselect_b32 s34, {14*HS}, 0")
        A(f"s_sub_u32 s{s}, s33, s34")
    nH = [0]
    def hissue(k):
        for _ in range(k):
            if nH[0] < 14:
                hblock(sH, f"s32, {slot[('H', nH[0])]*BLK}"); nH[0] += 1
    def vread(b):
        if b < nH[0]: A(f"s_waitcnt vmcnt({4*(nH[0]-1-b)})")
        for i in range(4): A(f"ds_read_b128 {v(VR+4*i,4)}, v{16+b//8} offset:{(slot[('H', b)]%8)*BLK+1024*i}")
    def vcheck(b):
        ck = A.label("hv"); ok = A.label("hok"); rp = A.label("hrp")
        last = b + 1 if c.rep_one else max(nH[0], b + 1)
        if c.w8 and b < 12: last = min(last, 12)
        sb = slot[('H', b)]
        A(f"""
        s_mov_b32 s45, 0
        {ck}:
        s_waitcnt lgkmcnt(0)
        v_max3_i32 v2, v{VR+1}, v{VR+3}, v{VR+5}
        v_max3_i32 v3, v{VR+7}, v{VR+9}, v{VR+11}
        v_max3_i32 v2, v2, v{VR+13}, v{VR+15}
        v_max_i32 v2, v2, v3
        v_cmp_le_i32 vcc, s56, v2
        {"s_cmp_eq_u32 s45, 0" if c.x_force else ""}
        {f"s_cbranch_scc1 {rp}f" if c.x_force else ""}
        s_cbranch_vccnz {rp}f
        """)
        cx = Cold(); cx.__enter__()
        A(f"""
        {rp}f:
        s_add_u32 s45, s45, 1
        s_cmp_ge_u32 s45, {SPIN}
        s_cbranch_scc1 {ok}
        s_mov_b32 s43, s{sV}
        s_add_u32 s44, s32, {sb*BLK}
        s_add_u32 s35, s32, {(sb+last-b)*BLK}
        {rp}:
        """)
        hblock(43, "s44, 0")
        A(f"s_add_u32 s44, s44, {BLK}\ns_cmp_lt_u32 s44, s35\ns_cbranch_scc1 {rp}\ns_waitcnt vmcnt({4*(last-1-b) if last == nH[0] else 0})")
        for i in range(4): A(f"ds_read_b128 {v(VR+4*i,4)}, v{16+b//8} offset:{(sb%8)*BLK+1024*i}")
        A(f"s_branch {ck}")
        cx.__exit__()
        A(f"{ok}:\ns_add_u32 s{sV}, s{sV}, {HS}\ns_cmp_ge_u32 s{sV}, s{eH}\ns_cselect_b32 s34, {14*HS}, 0\ns_sub_u32 s{sV}, s{sV}, s34")
    if c.probe:
        hissue(c.probe); vread(0); vcheck(0); hissue(c.h0 - c.probe); vread(1)
    else:
        hissue(c.h0); vread(0); vcheck(0); vread(1)
    A("s_barrier")
    hs = [0] * 14 if c.hl else list(c.hiss) + [1] * 14
    for i in range(0, 13):
        vcheck(i + 1)
        k = hs.pop(0)
        assert i >= 3 or nH[0] + k <= 12
        if i + 2 < 14:
            if nH[0] - (i + 2) < c.hnear: hissue(k); k = 0
            vread(i + 2)
        hissue(k)
        kf = c.hf_c + i - c.hf_p
        if c.hf_at == 'P' and c.hf_c <= kf < 8: fifo_load(20 + kf, 1, 40 + 16 * kf)
        A("s_barrier")
    if c.hf_at == 'P':
        kf = max(c.hf_c, c.hf_c + 13 - c.hf_p)
        if kf < 8: fifo_load(20 + kf, 8 - kf, 40 + 16 * kf)
    assert nH[0] == 14 or c.hl
    lp = A.label("hb")
    A(f"s_setprio 0\ns_mov_b32 s45, {18 if c.xe else 16 if c.auxpoll else 17}\n{lp}:\ns_barrier\ns_sub_u32 s45, s45, 1\ns_cmp_lg_u32 s45, 0\ns_cbranch_scc1 {lp}")
    A("s_waitcnt vmcnt(0)")
    if c.auxpoll:
        if c.psleep: A(f"s_sleep {c.psleep}")
        poll_issue(PA_, 512); poll_wait(PA_, 512, True)
        if c.touch & 1: A("global_load_dword v2, v19, s[30:31] sc1")
        A("s_barrier")
        fifo_put(20, c.put_a, 40)
        A("s_barrier")
        fifo_put(20 + c.put_a, 8 - c.put_a, 40 + 16 * c.put_a)
    else:
        fifo_put(20, c.put_a, 40)
        A("s_barrier")
        fifo_put(20 + c.put_a, 8 - c.put_a, 40 + 16 * c.put_a)
    A("s_waitcnt lgkmcnt(0)")
    if c.phase == 1: Prof(A, 3).flush(5)
    A(f"{end}:\ns_endpgm")
    A.L.extend(cold)
    A(f".p2align 3\n{hlp}:")
    gen_helper(A, c, Prof(A, 4))
    def rnd(l):
        u = np.float32(max(l, 0)).view(np.uint32)
        u = (int(u) + 0x7FFF + ((int(u) >> 16) & 1)) & 0xFFFF0000
        return int(np.uint32(u).view(np.float32))
    ad = [[(rnd(8 * b - 3 + r) & 7) * TP + (rnd(8 * b - 3 + r) >> 3) * 4 for r in range(12)] for b in range(256)]
    A(f".p2align 7\n.type {tab},@object\n{tab}:")
    for b in range(256): A(".long " + ", ".join("0x%08x" % (ad[b][2*k] | ad[b][2*k+1] << 16) for k in range(4)))
    for b in range(256): A(".long " + ", ".join("0x%08x" % (ad[b][2*k] | ad[b][2*k+1] << 16) for k in range(4, 6)))
    A(f".size {tab}, {256*24}")
    return kernel_desc(name, 168, 102)
```

```python
from base import *
import base
from ka import load_ptrs, cmul, cexp
import numpy as np
WS_E = 0x4000
WS_PZ = 0x5000
WS_XG = 0xA00000
XG_BYTES = 224 * 16384
REG = 16384
TP, GP = 1056, 272
KP = 4160
KB0 = 8704
UO, UPITCH = 74240, 4608
PARO = 98304
XT = 140288
TAGA = XT + 8192
BLK = 8192
NSL = 20
CON = 19 * BLK
F_LDS = NSL * BLK
GK0 = -2.0 * LOG2E * 0.7978845608028654
GK1 = GK0 * 0.044715
SPIN = 1 << 18
HS = 16 * 16384

class Cfg:
    code_bytes = 49152
    prio_mid = 26
    poll_late = 0
    e1_first, e1_last = 15, 22
    e1_packed = False
    drain0 = (22, 26)
    pollA, chkA = 24, 27
    earlyT = (4, 1)
    poll0 = 28
    ya_at, yb_at = 18, 25
    put_a = 3
    pace1, pace2, pace = 2, 1, {}
    pa_early = False
    g_pre = 0
    tdepth, tdepth2 = 22, 16
    gate_ahead = {14: 14, 28: 4, 42: 12}
    pollT1 = (20, 28)
    capP = 8
    caps = {}
    gat_issue, gat_check = 7, 9
    con_write = 11
    il = 2
    stflag = 'sc0 sc1'
    prioB = 2
    h0 = 5
    hiss = (1, 2, 1, 1, 1, 1, 1)
    ca_load = 10
    cs_issue = 5
    hdepth = 1
    fdepth = None
    x_delay = 0
    x_force = False
    backoff = 0
    rep_one = False
    x_nocs = False
    sweepW = False
    sweepD = True
    hramp = 0
    xp_chk = False
    npk = True
    lfifo = (8, 14)
    hprio = 3
    pz_sleep = 4
    hnear = 3
    lf_at = 'C'
    hf_at = 'P'
    poi_at = '0'
    wide_h = True
    xp_at = 0
    gat_split = (3, 4)
    x_nogat = False
    cprio = 3
    nprio = 2
    auxprio = 3
    x_nopre = False
    emode = 0
    csort = True
    probe = 1
    x_quietN = False
    x_quietL = False
    cmin = 5
    cmerge = (0, 2, 4, 6)
    w8 = False
    nlf = 6
    outflag = ''
    hl = True
    x_pad = 0
    wsoff = 0
    hf_c = 4
    hf_p = 10
    xmask = True
    auxpoll = False
    sig_early = False
    psleep = 0
    tpost = True
    touch = 0
    x_noput = False
    x_notl = False
    selfrd = False
    sweepU = False
    hsleep = 0
    hwait = None
    x_nocp = False
    warm = False
    npg = 5
    stcost = 8
    xe = False
    x_cnt = False
    put_0, put_l = 6, 0
    x_fine = None
    phase = 1

def schedule(c):
    need = {("W", s): s for s in range(28)}
    last_use = {("W", s): s + 1 for s in range(28)}
    for t in range(28): last_use[("D", t)] = 1000
    hslot = [sl + (2 if c.w8 and sl >= 12 else 0) for sl in range(14)]
    w0 = 12 if c.w8 else 14
    free_at = {sl: (16 + sl if sl < w0 else -2 if sl >= 14 else -1) for sl in range(NSL)}
    slot = {("H", k): hslot[k] for k in range(14)}
    issue = {i: [] for i in range(-2, 29)}
    n = dict(W=0, D=0, H=c.h0 if c.hl else 14)
    for k in range(n["H"], 14): need[("H", k)] = k - 2; last_use[("H", k)] = 15 + k
    nd = 20 - c.nlf
    cur = None
    def pick(i):
        nW, nD = n["W"], n["D"]
        wf = [sl for sl in range(w0, NSL) if free_at[sl] <= i and (sl != 19 or i >= 15 or nW + 1 < c.con_write)]
        canH = n["H"] < 14 and i >= 0 and (not c.w8 or n["H"] < 12 or i >= n["H"] - 10)
        if canH and (n["H"] - 2 <= nW or not wf): return ("H", n["H"]), hslot[n["H"]]
        if nW < 28 and wf: return ("W", nW), wf[0]
        fr = [sl for sl in range(NSL) if free_at[sl] <= i and (sl < w0 or nW == 28)]
        if fr and nD < nd: return ("D", nD), fr[0]
        return None
    for i in range(-2, 29):
        cap = 24 if i < 0 else c.caps.get(i, c.capP)
        while cap > 0:
            if cur is None:
                p = pick(i)
                if p is None: break
                b, sl = p
                slot[b] = sl; free_at[sl] = last_use[b] + 1; n[b[0]] += 1
                if c.w8 and b in (("W", 0), ("W", 1)): free_at[sl] = 28 + b[1]
                cur = [b, 0]
            issue[i].append((cur[0][0], cur[0][1], cur[1])); cur[1] += 1; cap -= 1
            if cur[1] == 4: cur = None
    assert n["D"] == nd and cur is None
    rest = sorted((sl for sl in range(NSL) if free_at[sl] < 1000), key=lambda sl: free_at[sl])
    assert len(rest) == c.nlf
    for k, sl in enumerate(rest): slot[("D", nd + k)] = sl
    for t in range(20, 28): slot[("D", t)] = slot[("D", t - 20)]
    if c.lf_at == 'P':
        for k, i in enumerate(range(*c.lfifo)): issue[i] += [("F", 14 + k, q) for q in range(4)]
    order = [b for i in range(0, 29) for b in issue[i]]
    pos = {b: k for k, b in enumerate(order)}
    wait = {}
    cnt = 0
    for i in range(0, 29):
        cnt += len(issue[i])
        req = [b for b in need if need[b] == i + 1 and b + (3,) in pos]
        wait[i] = None if not req else cnt - 1 - max(pos[b + (3,)] for b in req)
        if i == 28: wait[i] = 0
        assert wait[i] is None or wait[i] >= 0, (i, req)
    return issue, slot, wait

def gen_helper(A, c, P):
    sweep = A.label("Hsw")
    A(f"""
    s_sub_u32 s44, s2, 224
    s_lshr_b32 s45, s44, 3
    s_bfe_u32 s46, s44, 0x20001
    s_lshl_b32 s46, s46, 2
    s_add_u32 s46, s46, s45
    s_and_b32 s44, s44, 1
    s_waitcnt lgkmcnt(0)
    """)
    if c.hsleep: A(f"s_sleep {c.hsleep}")
    if c.hwait:
        off = {"st": 4, "pz": WS_PZ}[c.hwait]
        A(f"""
        s_cmp_lg_u32 s36, 0
        s_cbranch_scc1 Lhw2
        s_load_dword s56, s[30:31], {WS_E}
        s_sub_u32 s47, s2, 32
        s_lshl_b32 s47, s47, {6 if c.hwait == "st" else 3}
        s_add_u32 s47, s47, {off}
        v_mov_b32 v2, s47
        s_mov_b32 s47, 0
        s_waitcnt lgkmcnt(0)
        s_add_u32 s57, s56, 1
        s_and_b32 s57, s57, 0xffff
        s_or_b32 s57, s57, 0x7f810000
        Lhw1:
        s_sleep 8
        global_load_dword v3, v2, s[30:31] sc1
        s_add_u32 s47, s47, 1
        s_cmp_ge_u32 s47, 8
        s_cbranch_scc1 Lhw2
        s_waitcnt vmcnt(0)
        v_cmp_ne_u32 vcc, s57, v3
        s_cbranch_vccnz Lhw1
        Lhw2:
        s_waitcnt vmcnt(0)
        s_barrier
        """)
    A(f"""
    s_cmp_ge_u32 s46, 14
    s_cselect_b32 s47, 2, 0
    s_sub_u32 s46, s46, s47
    v_and_b32 v1, 15, v0
    v_lshrrev_b32 v2, 4, v0
    v_mul_u32_u24 v2, 3584, v2
    v_lshl_add_u32 v2, v1, 4, v2
    s_cmp_ge_u32 s46, 7
    s_cselect_b32 s47, 7, 0
    s_cselect_b32 s48, s22, s20
    s_cselect_b32 s49, s23, s21
    s_sub_u32 s46, s46, s47
    s_mul_i32 s50, s44, 7
    s_add_u32 s46, s46, s50
    s_lshl_b32 s47, s47, 1
    s_add_u32 s52, s46, s47
    s_lshl_b32 s47, s46, 8
    s_mov_b32 s50, {W_BYTES}
    s_mov_b32 s51, 0x20000
    """)
    for p in range(14):
        A(f"buffer_load_dwordx4 {v(16+4*p,4)}, v2, s[48:51], s47 offen")
        if p < 13: A("s_add_u32 s47, s47, %d" % (32 * 3584))
        if p < c.hramp: A("s_waitcnt vmcnt(0)")
    A("s_mov_b32 s42, 0x00003f80\ns_mov_b32 s43, 0x3f800000")
    if c.sweepU:
        A(f"""
        s_lshr_b32 s47, s52, 1
        s_mul_i32 s47, s47, {128*896}
        s_and_b32 s53, s52, 1
        s_lshl_b32 s53, s53, 3
        s_add_u32 s53, s53, s36
        s_mul_i32 s53, s53, {28*128}
        s_add_u32 s47, s47, s53
        v_and_b32 v3, 63, v0
        v_min_u32 v3, 27, v3
        v_lshl_add_u32 v3, v3, 7, s47
        global_load_dword v72, v3, s[24:25]
        """)
    for p in range(14):
        A(f"s_waitcnt vmcnt({13-p+(1 if c.sweepU else 0)})")
        for q in range(4):
            for hl in range(2):
                acc = 4 + 2 * q + hl
                A(f"v_dot2_f32_bf16 v{acc}, v{16+4*p+q}, s{42+hl}, {'0' if p == 0 else 'v%d' % acc}")
    for op in ("v_permlane16_swap_b32", "v_permlane32_swap_b32"):
        for q in range(8): A(f"v_mov_b32 v{16+q}, v{4+q}")
        for q in range(8): A(f"{op} v{4+q}, v{16+q}")
        for q in range(8): A(f"v_add_f32 v{4+q}, v{4+q}, v{16+q}")
    A(f"""
    v_lshrrev_b32 v2, 6, v0
    v_lshlrev_b32 v2, 9, v2
    v_lshl_add_u32 v2, v1, 5, v2
    s_mov_b64 exec, 0xffff
    ds_write_b128 v2, v[4:7]
    ds_write_b128 v2, v[8:11] offset:16
    s_mov_b64 exec, -1
    s_waitcnt lgkmcnt(0)
    s_barrier
    s_cmp_ge_u32 s36, 2
    s_cbranch_scc1 {sweep}
    v_lshlrev_b32 v1, 2, v0
    ds_read2st64_b32 v[4:5], v1 offset0:0 offset1:2
    ds_read2st64_b32 v[6:7], v1 offset0:4 offset1:6
    ds_read2st64_b32 v[8:9], v1 offset0:8 offset1:10
    ds_read2st64_b32 v[10:11], v1 offset0:12 offset1:14
    s_waitcnt lgkmcnt(0)
    v_pk_add_f32 v[4:5], v[4:5], v[6:7]
    v_pk_add_f32 v[8:9], v[8:9], v[10:11]
    v_pk_add_f32 v[4:5], v[4:5], v[8:9]
    v_add_f32 v4, v4, v5
    s_mov_b32 s43, 0xffff0000
    v_cvt_pk_bf16_f32 v5, v4, v4
    v_and_b32 v5, s43, v5
    v_sub_f32 v6, v4, v5
    v_cvt_pk_bf16_f32 v8, v5, v6
    v_and_b32 v7, s43, v8
    v_sub_f32 v6, v6, v7
    v_cvt_pk_bf16_f32 v9, v6, 0
    s_lshl_b32 s46, s52, 10
    s_add_u32 s46, s46, {WS_CS}
    v_lshl_add_u32 v1, v1, 1, s46
    global_store_dwordx2 v1, v[8:9], s[30:31] sc0 sc1
    s_mov_b32 s46, 1
    s_waitcnt vmcnt(0)
    s_atomic_add s46, s[28:29], 0
    {sweep}:
    """)
    P.stamp(1)
    done = A.label("Hdone")
    A(f"""
    s_cmp_ge_u32 s36, 7
    s_cbranch_scc1 {done}
    v_lshrrev_b32 v2, 3, v0
    v_mul_u32_u24 v2, 3584, v2
    v_and_b32 v3, 7, v0
    v_min_u32 v3, 6, v3
    v_lshl_add_u32 v2, v3, 8, v2
    s_mul_i32 s46, s45, {112*3584}
    s_mul_i32 s47, s44, 1792
    s_add_u32 s46, s46, s47
    v_add_u32 v2, s46, v2
    v_add_u32 v3, {56*3584}, v2
    s_mul_i32 s46, s45, {128*896}
    v_lshl_add_u32 v4, v0, 7, s46
    """)
    def wpass(h):
        for m in (20, 22):
            for r in (2, 3): A(f"global_load_dword v8, v{r}, s[{m}:{m+1}] offset:{128*h}\ns_waitcnt vmcnt({c.hdepth})")
    if c.sweepW: wpass(0); wpass(1)
    for k in range(4 if c.sweepD else 0):
        if k == 3: A(f"s_cmp_ge_u32 s45, 2\ns_cbranch_scc1 {done}")
        A(f"global_load_dword v8, v4, s[24:25]\nv_add_u32 v4, {4*128*896}, v4\ns_waitcnt vmcnt({c.hdepth})")
    A(f"{done}:\ns_waitcnt lgkmcnt(0)")
    P.flush(2)
    A("s_endpgm")

def gen(A, name, c=Cfg, verbose=False):
    issue, slot, wait = schedule(c)
    if verbose:
        for i in range(-2, 29): print(i, ' '.join(k + str(j) + '.' + str(q) for k, j, q in issue[i]), wait.get(i))
        print({k: x for k, x in slot.items() if k[0] == "D"})
    kernel_head(A, name)
    end = A.label("end"); hlp = A.label("hlp"); kw_ = A.label("kw"); nw = A.label("nw"); tab = A.label("tab")
    auxt = A.label("auxt"); auxs = A.label("auxs"); til = A.label("til"); hold = A.label("hold")
    P0 = Prof(A, 1)
    class PH:
        def __init__(s, ph, kid=1): s.on = c.phase == ph; s.P = Prof(A, kid)
        def stamp(s, i):
            if s.on: s.P.stamp(i)
    P = PH(1); PA = PH(1, 3)
    class Bars:
        def __init__(s, marks, n1, kid=1): s.n = 0; s.marks = c.x_fine or marks; s.on = c.phase == 2; s.n1 = n1; s.P = Prof(A, kid)
        def bar(s):
            A("s_barrier")
            if s.on and s.n in s.marks: s.P.stamp(1 + s.marks.index(s.n))
            s.n += 1
        def mark(s, k):
            if s.on and not c.x_fine: s.P.stamp(1 + len(s.marks) + k)
        def fin(s, k=0):
            if c.phase == 0:
                if s.n1 == 13: s.P.flush(1)
                return
            if not s.on: s.P.flush(s.n1); return
            k = 0 if c.x_fine else k
            s.P.stamp(1 + len(s.marks) + k); s.P.flush(2 + len(s.marks) + k)
    cold = []
    class Cold:
        def __enter__(s): s.keep = A.L; A.L = []
        def __exit__(s, *a): cold.extend(A.L); A.L = s.keep
    wst = []
    def target(lab):
        wst.append(lab)
        A(f".p2align 6\n{lab}w:\ns_setpc_b64 s[96:97]\ns_nop 0\n{lab}:")
    A(f"s_cmp_ge_u32 s2, 256\ns_cbranch_scc1 {end}")
    P0.stamp(0)
    load_ptrs(A)
    A(f"s_getpc_b64 s[60:61]\nLpc:")
    vLane, vG, vJ = 1, 2, 3
    per = (c.code_bytes // 128 + 63) // 64
    vRow, vXG = 16, 48
    ffn_ids = """
    s_and_b32 s37, s2, 7
    s_lshr_b32 s38, s2, 3
    s_and_b32 s40, s38, 3
    s_lshr_b32 s39, s37, 1
    s_lshl_b32 s39, s39, 2
    s_add_u32 s39, s39, s40
    s_and_b32 s34, s37, 1
    s_lshr_b32 s35, s38, 2
    s_mul_i32 s38, s34, 7
    s_add_u32 s38, s38, s35
    s_mul_i32 s33, s40, 3
    s_lshl_b32 s37, s35, 1
    s_add_u32 s33, s33, s37
    s_cmp_ge_u32 s33, 14
    s_cselect_b32 s37, 14, 0
    s_sub_u32 s33, s33, s37
    """
    A(f"""
    v_lshrrev_b32 v4, 6, v0
    v_and_b32 v{vLane}, 63, v0
    s_and_b32 s37, s2, 7
    v_readfirstlane_b32 s36, v4
    s_mul_i32 s37, s37, 28
    s_lshr_b32 s38, s2, 3
    s_add_u32 s37, s37, s38
    s_mov_b32 s43, 0xffff0000
    s_cmp_lt_u32 s36, 8
    s_cbranch_scc1 {kw_}
    s_setprio {c.auxprio}
    v_lshrrev_b32 v5, 3, v{vLane}
    v_and_b32 v6, 7, v{vLane}
    v_mul_u32_u24 v7, 896, v5
    s_cmp_lt_u32 s36, 10
    s_cbranch_scc1 {til}
    s_and_b32 s36, s36, 1
    s_lshr_b32 s62, s2, 2
    s_and_b32 s62, s62, 62
    s_add_u32 s62, s62, s36
    s_mul_i32 s62, s62, {per*128}
    v_min_u32 v10, {per-1}, v{vLane}
    v_lshl_add_u32 v10, v10, 7, s62
    v_min_u32 v10, Lcode_end-Lpc-4, v10
    global_load_dword v99, v10, s[60:61]
    s_mul_i32 s46, s36, 28
    s_add_u32 s46, s46, s38
    s_cmp_ge_u32 s2, 224
    s_cbranch_scc1 {end}
    s_and_b32 s47, s2, 7
    s_lshl_b32 s47, s47, 5
    s_add_u32 s47, s47, s46
    s_mul_i32 s48, s47, {8*896}
    v_lshl_add_u32 v8, v6, 4, v7
    v_add_u32 v8, s48, v8
    s_cmp_ge_u32 s46, 32
    s_waitcnt lgkmcnt(0)
    s_cbranch_scc1 {hold}
    s_load_dword s56, s[30:31], {WS_E}
    """)
    for i in range(7): A(f"global_load_dwordx4 {v(vRow+4*i,4)}, v8, s[4:5] offset:{128*i}")
    A(f"""
    s_branch {auxs}
    {til}:
    s_cmp_ge_u32 s2, 224
    s_cbranch_scc1 {end}
    s_and_b32 s36, s36, 1
    s_mul_i32 s46, s37, 9363
    s_lshr_b32 s46, s46, 16
    s_mul_i32 s47, s46, 7
    s_sub_u32 s47, s37, s47
    s_lshl_b32 s46, s46, 1
    s_add_u32 s46, s46, s36
    s_mul_i32 s49, s46, {32*896}
    s_lshl_b32 s48, s47, 7
    s_add_u32 s49, s49, s48
    s_lshl_b32 s47, s47, 19
    s_lshl_b32 s46, s46, 8
    s_add_u32 s51, s47, s46
    s_lshl_b32 s46, s36, 12
    s_add_u32 s46, s46, {XT}
    s_mov_b32 m0, s46
    v_lshrrev_b32 v4, 1, v5
    v_xor_b32 v4, v4, v6
    v_lshl_add_u32 v12, v4, 4, v7
    v_xor_b32 v4, 4, v4
    v_lshl_add_u32 v13, v4, 4, v7
    v_add_u32 v13, {8*896-1024}, v13
    v_add_u32 v14, {16*896-2048}, v12
    v_add_u32 v15, {16*896-2048}, v13
    s_mov_b32 s34, {X_BYTES}
    s_mov_b32 s35, 0x20000
    s_waitcnt lgkmcnt(0)
    s_mov_b32 s32, s4
    s_mov_b32 s33, s5
    """)
    for i in range(4): A(f"buffer_load_dwordx4 v{12+i}, s[32:35], s49 offen offset:{1024*i} lds")
    A(f"s_load_dword s57, s[30:31], {WS_E}")
    A(f"s_branch {auxt}\n{kw_}:\ns_cmp_ge_u32 s2, 224\ns_cbranch_scc1 {hlp}")
    vP, vDT = 8, 12
    a2, b2 = 14, 15
    w1, w256, w2, w512 = 16, 18, 20, 22
    tA, tB, tC = 24, 26, 28
    G, G2, Hh, W4, HT, CV = 30, 46, 62, 68, 70, 78
    vTB, vA, vBc, vRA = 88, 94, 95, 96
    A(f"""
    v_mov_b32 v{vP}, 0
    v_mov_b32 v{vP+1}, 0
    v_mov_b32 v{vP+2}, 0
    v_mov_b32 v{vP+3}, 0
    s_lshl_b32 s48, s37, 10
    v_lshl_add_u32 v4, v0, 1, s48
    s_lshl_b32 s48, s37, 2
    s_lshl_b32 s56, s36, 14
    s_mov_b32 m0, s56
    s_lshr_b32 s38, s36, 2
    s_add_u32 s62, s60, {tab}-Lpc+2048
    s_addc_u32 s63, s61, 0
    s_waitcnt lgkmcnt(0)
    s_load_dword s52, s[14:15], s48
    global_load_short_d16_hi v{vP}, v4, s[6:7]
    global_load_short_d16_hi v{vP+1}, v4, s[8:9]
    global_load_short_d16_hi v{vP+2}, v4, s[10:11]
    global_load_short_d16_hi v{vP+3}, v4, s[12:13]
    s_load_dword s53, s[16:17], s48
    """)
    P.stamp(1)
    A(f"""
    v_bfe_u32 v{vG}, v0, 5, 1
    v_and_b32 v{vJ}, 31, v0
    s_lshl_b32 s46, s36, 15
    v_mul_u32_u24 v4, {GP}, v{vJ}
    v_lshl_add_u32 v4, v{vG}, 4, v4
    v_add_u32 v{vRA}, s46, v4
    s_bfe_u32 s39, s36, 0x10001
    s_and_b32 s40, s36, 1
    s_lshl_b32 s48, s39, 15
    s_lshl_b32 s47, s40, 8
    s_add_u32 s48, s48, s47
    s_add_u32 s48, s48, {KB0+64-24}
    v_and_b32 v4, 3, v0
    v_sub_u32 v4, 3, v4
    v_mul_u32_u24 v4, {KP}, v4
    v_bfe_u32 v5, v0, 2, 2
    v_lshl_add_u32 v4, v5, 3, v4
    v_bfe_u32 v5, v0, 4, 2
    v_lshl_add_u32 v4, v5, 4, v4
    v_add_u32 v{vA}, s48, v4
    s_mul_i32 s48, s39, {UPITCH}
    s_sub_u32 s48, s48, s47
    s_add_u32 s48, s48, {UO+512+16-192}
    v_and_b32 v4, 15, v0
    v_lshlrev_b32 v4, 5, v4
    v_lshlrev_b32 v5, 4, v5
    v_sub_u32 v4, v4, v5
    v_add_u32 v{vBc}, s48, v4
    s_add_u32 s64, s30, {WS_XG}
    s_addc_u32 s65, s31, 0
    s_mov_b32 s66, {XG_BYTES}
    s_mov_b32 s67, 0x20000
    s_and_b32 s47, s36, 3
    s_lshl_b32 s47, s47, 12
    v_lshl_add_u32 v97, v{vLane}, 4, s47
    s_lshl_b32 s44, s37, 14
    s_mov_b32 s54, {f32(8.0)}
    s_mov_b32 s55, {f32(256.0)}
    s_lshl_b32 s46, s38, 4
    v_mov_b32 v{vDT}, {f32(LOG2E)}
    s_cmp_lt_u32 s36, 4
    s_cbranch_scc1 Lnoprio
    s_setprio 1
    Lnoprio:
    s_waitcnt lgkmcnt(0)
    s_lshr_b32 s52, s52, s46
    s_lshl_b32 s52, s52, 16
    v_mul_f32 v{vDT}, s52, v{vDT}
    v_exp_f32 v{vDT}, v{vDT}
    v_cvt_pk_bf16_f32 v{vDT}, v{vDT}, v{vDT}
    v_and_b32 v{vDT}, s43, v{vDT}
    s_and_b32 s59, s53, s43
    s_lshl_b32 s58, s53, 16
    v_add_f32 v6, v{vDT}, v{vDT}
    """)
    P.stamp(2)
    A(f"""
    s_waitcnt vmcnt(2)
    v_mul_f32 v4, {f32(LOG2E)}, v{vP}
    v_exp_f32 v4, v4
    v_mul_f32 v{b2}, v{vP+1}, v{vDT}
    v_cvt_pk_bf16_f32 v4, v4, v4
    v_and_b32 v4, s43, v4
    v_mul_f32 v{a2}, v4, v{vDT}
    v_mul_f32 v{b2}, 0.15915494, v{b2}
    v_mul_f32 v{a2}, {f32(-LOG2E)}, v{a2}
    """)
    P.stamp(3)
    nb_ = [0]
    vPX, vPS_, vPA = 100, 116, 97
    xp = [f"buffer_load_dwordx4 {v(vPX+4*q,4)}, v{vPA}, s[64:67], s44 offen offset:{1024*q} sc1" for q in range(4)]
    xp += [f"global_load_dwordx4 {v(vPS_+4*q,4)}, v{vPA}, s[30:31] offset:{1024*q} sc1" for q in range(4)]
    def put(src, row, neg):
        r = CV + (nb_[0] & 7); nb_[0] += 1
        x = [f"v_cvt_pk_bf16_f32 v{r}, v{src}, {'-' if neg else ''}v{src+1}", f"ds_write_addtid_b32 v{r} offset:{row*GP}"]
        if nb_[0] == c.prio_mid: x[1] += "\ns_setprio 0"
        if nb_[0] == c.xp_at: x[1] += "\ns_cmp_lt_u32 s36, 4\ns_cbranch_scc1 Lnoxp\n" + "\n".join(xp) + "\nLnoxp:"
        return x
    def spread(puts, work):
        o = []
        while puts or work:
            p = puts.pop(0) if puts else None
            if p: o.append(p[0])
            if work: o += work.pop(0)
            if p: o.append(p[1])
        return o
    GR = 32
    for l in cexp(Hh, a2, b2, "s54", tA): A(l)
    A(f"v_mov_b32 v{CV+8}, 0x3f80\nds_write_addtid_b32 v{CV+8}")
    for l in cmul(Hh+2, Hh, Hh) + cmul(Hh+4, Hh+2, Hh) + cmul(W4, Hh+2, Hh+2): A(l)
    ex = merge(cexp(w1, a2, b2, None, tB), cexp(w256, a2, b2, "s55", tC))
    ex += ["s_waitcnt vmcnt(0)", f"v_mul_f32 v{G}, v{vP+2}, v6", f"v_mul_f32 v{G+1}, v{vP+3}, v6",
           "v_min_u32 v5, 255, v0\nv_lshlrev_b32 v6, 4, v5", "v_lshlrev_b32 v5, 3, v5",
           f"global_load_dwordx4 {v(vTB,4)}, v6, s[62:63] offset:-2048", f"global_load_dwordx2 {v(vTB+4,2)}, v5, s[62:63] offset:2048"]
    ex += cmul(w2, w1, w1) + cmul(G+2, G, w1) + cmul(w512, w256, w256)
    cur = [Hh, Hh+2, Hh+4, W4]; nxt = [HT, HT+2, HT+4, HT+6]; alt = [G2, G2+2, G2+4, G2+6]
    j = 1
    while j < 32:
        pend = [put(cur[r], j + r, False) for r in range(4) if j + r < 32]
        wk = [cmul(nxt[r], cur[r], W4) + [ex.pop(0) for _ in range(1) if ex] for r in range(4) if j + 4 + r < 32]
        if j + 4 >= 32: wk = [cmul(G+2*i, G+2*(i-2), w2) for i in range(2, 5)]
        for l in spread(pend, wk): A(l)
        cur, nxt = nxt, (alt if nxt[0] == HT else [HT, HT+2, HT+4, HT+6])
        j += 4
    assert not ex
    wk = [cmul(G+2*i, G+2*(i-2), w2) for i in range(5, 8)] + [cmul(G2+2*k, G+4*k, w256) for k in range(4)] + [cmul(G2+8, G, w512)]
    for l in spread([put(G+2*i, GR+i, True) for i in range(8)], wk): A(l)
    wk = [cmul(G2+10, G+8, w512), cmul(G2+12, G2, w512), cmul(G2+14, G2+4, w512), cmul(G, G2+8, w512), cmul(G+2, G2+12, w512), cmul(G+4, G, w512), cmul(G+6, G+2, w512), cmul(G+8, G+4, w512)]
    for l in spread([put(G2+2*i, GR+8+i, True) for i in range(8)], wk): A(l)
    for l in spread([put(G+2*i, GR+16+i, True) for i in range(5)], []): A(l)
    P.stamp(4)
    A(f"s_cmp_ge_u32 s36, 4\ns_cbranch_scc1 {nw}\ns_branch Lmw\n.p2align 12")
    target("Lmw")
    vACC, vEA, FR, TA_ = 8, 30, 100, 44
    tabprep = [f"s_lshl_b32 s46, s36, 15", f"v_lshl_add_u32 v4, v{vJ}, 2, s46", f"v_mul_u32_u24 v5, {4*TP}, v{vG}", "v_add_u32 v5, v5, v4", f"v_xor_b32 v7, 1, v{vG}"]
    tmin = []
    for b in range(4):
        o0 = 2 * b * TP + 128; o1 = 4 * (b & 1) * TP + 256 + 128 * (b >> 1)
        tabprep += [f"v_mul_u32_u24 v{TA_+b}, {abs(o1-o0)}, v{vG if o1 > o0 else 7}", f"v_add_u32 v{TA_+b}, v{TA_+b}, v4"]
        tmin.append(min(o0, o1))
    tabprep += [f"v_lshl_add_u32 v{TA_+4}, v{vG}, 9, v4", "s_waitcnt vmcnt(0)"]
    for r in range(11):
        tabprep += [f"v_and_b32 v{vEA+r}, 0xffff, v{vTB+(r>>1)}" if r % 2 == 0 else f"v_lshrrev_b32 v{vEA+r}, 16, v{vTB+(r>>1)}"]
    tabprep += ["v_cmp_ne_u32 s[44:45], 0, v0", f"v_lshlrev_b32 v6, 4, v0"]
    A("s_waitcnt lgkmcnt(0)\ns_barrier")
    P.stamp(5)
    def frd(n):
        b = FR + 8 * (n & 7); o = (n >> 3) * REG + 32 * (n & 7)
        return f"ds_read_b128 {v(b,4)}, v{vRA} offset:{GR*GP+o}\nds_read_b128 {v(b+4,4)}, v{vRA} offset:{o}"
    for n in range(6): A(frd(n))
    for n in range(16):
        b0 = FR + 8 * (n & 7)
        A(f"s_waitcnt lgkmcnt({2*min(5, 15-n)})\nv_mfma_f32_32x32x16_bf16 {v(vACC,16)}, {v(b0,4)}, {v(b0+4,4)}, {'0' if n == 0 else v(vACC,16)}")
        if n + 6 < 16: A(frd(n + 6))
        for l in tabprep[2*n:2*n+2]: A(l)
    assert len(tabprep) <= 32
    vW, vR, vO = 97, 98, 99
    A(f"""
    s_lshl_b32 s46, s36, 12
    s_add_u32 s46, s46, {PARO}
    v_lshl_add_u32 v{vW}, v{vLane}, 4, s46
    v_xor_b32 v{vR}, 0x1000, v{vW}
    s_lshl_b32 s46, s40, 10
    s_lshl_b32 s47, s39, 15
    s_add_u32 s47, s47, s46
    v_lshl_add_u32 v3, v{vLane}, 4, s47
    """)
    for b in range(4): A(f"ds_write_b32 v5, v{vACC+b} offset:{TP*b}")
    for b in range(4): A(f"ds_write_b32 v{TA_+b}, v{vACC+4+b} offset:{tmin[b]}")
    A(f"s_mov_b32 exec_hi, 1\nds_write_b32 v{TA_+4}, v{vACC+8} offset:512\ns_mov_b32 exec_hi, 0")
    for b in range(1, 4): A(f"ds_write_b32 v{TA_+4}, v{vACC+8+b} offset:{512+128*b}")
    A("s_mov_b32 exec_hi, -1\ns_waitcnt lgkmcnt(0)\ns_barrier")
    P.stamp(6)
    EV, CB = 100, 44
    for r in range(11): A(f"ds_read2st64_b32 {v(EV+2*r,2)}, v{vEA+r} offset0:0 offset1:128\nv_add_u32 v{vEA+r}, 0x10000, v{vEA+r}")
    for r in range(11): A(f"ds_read2st64_b32 {v(EV+22+2*r,2)}, v{vEA+r} offset0:0 offset1:128")
    for ch in range(2):
        E = EV + 22 * ch
        A(f"s_waitcnt lgkmcnt({11 if ch == 0 else 4})")
        for r in range(11): A(f"v_add_f32 v{E+2*r}, v{E+2*r}, v{E+2*r+1}")
        for r in range(3): A(f"v_cndmask_b32 v{E+2*r}, 0, v{E+2*r}, s[44:45]")
        for cp in range(4):
            b = CB + 16 * ch + 4 * cp
            for k in range(4):
                r0 = 3 - cp + 2 * k
                A(f"v_cvt_pk_bf16_f32 v{b+k}, v{E+2*r0}, v{E+2*r0+2}")
            A(f"ds_write_b128 v6, {v(b,4)} offset:{KB0+64+32768*ch+cp*KP}")
    P.stamp(7)
    A("s_waitcnt lgkmcnt(0)\ns_barrier")
    P.stamp(8)
    A(f"s_setprio {c.cprio}")
    AC = 8
    FBs = [40 + 8 * k for k in range(6)] + [100 + 8 * k for k in range(6)]
    def rd(Gi):
        r, n = Gi >> 3, Gi & 7
        b = FBs[Gi % 12]
        return [f"ds_read_b64 {v(b,2)}, v{vA} offset:{512*n+64*r}", f"ds_read_b64 {v(b+2,2)}, v{vA} offset:{512*n+64*r+8}",
                f"ds_read_b128 {v(b+4,4)}, v{vBc} offset:{512*n+64*(3-r)}"]
    def send(t): return f"s_mov_b64 exec, s[{48+2*(t&1)}:{49+2*(t&1)}]\nds_write_b128 v{vW}, {v(AC+4*t,4)} offset:{1024*(t>>1)}\ns_mov_b64 exec, -1"
    for Gi in range(4):
        for l in rd(Gi): A(l)
    A(f"""
    s_lshl_b32 s46, s37, 2
    s_add_u32 s46, s46, s39
    s_lshl_b32 s46, s46, 12
    s_lshl_b32 s47, s40, 9
    s_add_u32 s46, s46, s47
    s_add_u32 s46, s46, {WS_XG}
    v_and_b32 v4, 15, v0
    v_bfe_u32 v5, v0, 4, 2
    v_lshlrev_b32 v4, 5, v4
    v_lshrrev_b32 v6, 1, v5
    v_lshl_add_u32 v4, v6, 4, v4
    v_and_b32 v5, 1, v5
    v_lshl_add_u32 v4, v5, 10, v4
    v_add_u32 v{vO}, s46, v4
    """)
    started = set()
    def cm(r, a, b):
        t = a + b
        cc = v(AC + 4 * t, 4) if t in started else "0"
        started.add(t)
        return f"v_mfma_f32_16x16x32_bf16 {v(AC+4*t,4)}, {v(FBs[(8*r+a)%12],4)}, {v(FBs[(8*r+b)%12]+4,4)}, {cc}"
    def grp(n): return [(a, b) for a in range(n + 1) for b in range(n + 1) if max(a, b) == n and a + b <= 7]
    rq = []; nrd = 12; known = 0
    for Gi in range(28):
        r, n = Gi >> 3, Gi & 7
        rq += rd(Gi + 4)
        while nrd < 3 * (Gi + 1) + c.cmin: A(rq.pop(0)); nrd += 1
        if known < 3 * (Gi + 1):
            want = 3 * (Gi + 1)
            if n in c.cmerge and Gi > 3: want = min(want + 3, nrd - 3)
            A(f"s_waitcnt lgkmcnt({nrd - want})"); known = want
        for (a_, b_) in grp(n):
            A(cm(r, a_, b_))
            if rq: A(rq.pop(0)); nrd += 1
    for l in rq: A(l)
    PR, PP = 148, 116
    odd = A.label("odd"); jn = A.label("jn")
    A(f"s_cmp_eq_u32 s40, 1\ns_cbranch_scc1 {odd}")
    for par in range(2):
        if par:
            for _ in range(c.x_pad // 4): A("s_nop 0")
            target(odd)
        snd = [t for t in range(8) if t % 2 != par]
        def sw(t): return f"ds_write_b128 v{vW}, {v(AC+4*t,4)} offset:{1024*(t>>1)}"
        rest = [p for n in range(4, 8) for p in grp(n)]
        first = [p for p in rest if (p[0] + p[1]) % 2 != par]; last = [p for p in rest if (p[0] + p[1]) % 2 == par]
        A("s_waitcnt lgkmcnt(9)"); got = 4
        for k, p in enumerate(first):
            if max(p) > got: A(f"s_waitcnt lgkmcnt({2 if k > 3 else 3*(7-max(p)) + (1 if k > 1 else 0)})"); got = 7 if k > 3 else max(p)
            A(cm(3, *p))
            if k == 1: A(sw(snd[0]))
            if k == 3: A(sw(snd[1]))
        if got < 7: A("s_waitcnt lgkmcnt(2)")
        for k, p in enumerate(last):
            A(cm(3, *p))
            if k == 2: A(sw(snd[2]))
            if k == 7: A(sw(snd[3]))
        if par == 0: P.stamp(9)
        else: P.stamp(9)
        A("s_waitcnt lgkmcnt(0)\ns_barrier")
        for q in range(4): A(f"ds_read_b128 {v(PR+4*q,4)}, v{vR} offset:{1024*q}\nds_read_b128 {v(PP+4*q,4)}, v3 offset:{2048*q}")
        for q in range(4):
            A(f"s_waitcnt lgkmcnt({6-2*q})")
            k = AC + 4 * (2 * q + par)
            for h in range(2): A(f"v_pk_add_f32 {v(PR+4*q+2*h,2)}, {v(PR+4*q+2*h,2)}, {v(PP+4*q+2*h,2)}")
            for h in range(2): A(f"v_pk_add_f32 {v(PR+4*q+2*h,2)}, {v(PR+4*q+2*h,2)}, {v(k+2*h,2)}")
            o_ = 132 + 2 * q
            A(f"v_cvt_pk_bf16_f32 v{o_}, v{PR+4*q}, v{PR+4*q+1}\nv_cvt_pk_bf16_f32 v{o_+1}, v{PR+4*q+2}, v{PR+4*q+3}")
            if q & 1:
                A(f"v_permlane16_swap_b32 v{o_-2}, v{o_}\nv_permlane16_swap_b32 v{o_-1}, v{o_+1}")
                A(f"global_store_dwordx4 v{vO}, {v(o_-2,4)}, s[30:31] offset:{1024*(q-1)} sc0 sc1")
        if not par: A(f"s_branch {jn}")
    A(f"{jn}:")
    P.stamp(10)
    vB, vAa, vS, vCR, vCA = 8, 10, 12, 14, 16
    vX = 18
    CN, CA, MB = 24, 32, 38
    F = [48, 64, 80]
    ACC = 96
    T1, T2, OUT = 48, 56, 64
    def csetup():
        A(ffn_ids)
        A(f"""
        s_and_b32 s40, s36, 1
        s_bfe_u32 s41, s36, 0x10001
        s_lshr_b32 s49, s36, 2
        v_bfe_u32 v2, v{vLane}, 2, 2
        v_bfe_u32 v3, v{vLane}, 4, 1
        v_lshrrev_b32 v4, 5, v{vLane}
        v_and_b32 v6, 3, v{vLane}
        v_lshl_add_u32 v5, v4, 3, v2
        v_lshlrev_b32 v7, 8, v5
        v_lshl_add_u32 v7, v6, 3, v7
        v_lshl_add_u32 v7, v3, 5, v7
        s_lshl_b32 s42, s40, 1
        s_add_u32 s42, s42, s41
        v_xor_b32 v{vB}, s42, v2
        v_lshl_add_u32 v{vB}, v{vB}, 6, v7
        v_xor_b32 v{vB+1}, 64, v{vB}
        v_add_u32 v17, 0x10000, v{vB}
        v_add_u32 v46, 0x10000, v{vB+1}
        s_lshl_b32 s42, s34, 1
        s_add_u32 s42, s42, s40
        v_xor_b32 v{vX}, s42, v2
        v_lshl_add_u32 v{vX}, v{vX}, 6, v7
        v_lshlrev_b32 v7, 7, v5
        v_lshl_add_u32 v7, v6, 3, v7
        v_lshl_add_u32 v7, v3, 12, v7
        v_lshrrev_b32 v5, 1, v2
        v_lshl_add_u32 v5, v3, 1, v5
        s_lshl_b32 s42, s41, 1
        v_xor_b32 v5, s42, v5
        v_lshl_add_u32 v7, v5, 5, v7
        v_add_u32 v{vAa}, {12*BLK}, v7
        v_xor_b32 v{vAa+1}, 32, v{vAa}
        s_lshl_b32 s42, s39, 2
        s_lshl_b32 s43, s40, 1
        s_add_u32 s42, s42, s43
        s_add_u32 s43, s42, s41
        s_xor_b32 s44, s43, 1
        s_lshl_b32 s45, s38, 3
        s_lshl_b32 s46, s41, 1
        s_add_u32 s45, s45, s46
        s_lshl_b32 s46, s49, 2
        s_add_u32 s45, s45, s46
        s_lshl_b32 s46, s45, 7
        s_add_u32 s45, s45, {WS_ACT // 1024}
        s_mul_i32 s43, s43, 112
        s_mul_i32 s44, s44, 112
        s_add_u32 s43, s43, s45
        s_add_u32 s44, s44, s45
        s_lshl_b32 s43, s43, 10
        s_lshl_b32 s44, s44, 10
        v_lshl_add_u32 v{vS}, v{vLane}, 4, s43
        v_lshl_add_u32 v{vS+1}, v{vLane}, 4, s44
        v_and_b32 v5, 15, v{vLane}
        v_mul_u32_u24 v7, {F_*8}, v3
        v_lshl_add_u32 v5, v5, 3, v7
        s_add_u32 s46, s46, {WS_CS}
        v_add_u32 v{vCA}, s46, v5
        v_and_b32 v5, 31, v{vLane}
        s_lshl_b32 s42, s40, 1
        s_add_u32 s42, s42, s41
        s_lshl_b32 s43, s42, 9
        s_add_u32 s43, s43, {CON}
        v_lshl_add_u32 v{vCR}, v5, 4, s43
        v_xor_b32 v{vCR+1}, 512, v{vCR}
        s_lshl_b32 s43, s39, 11
        s_lshl_b32 s44, s41, 8
        s_add_u32 s43, s43, s44
        s_add_u32 s43, s43, {WS_FLAGS}
        s_lshl_b32 s44, s34, 10
        s_add_u32 s59, s43, s44
        s_lshl_b32 s44, s40, 10
        s_add_u32 s58, s43, s44
        s_lshl_b32 s44, s49, 9
        s_add_u32 s58, s58, s44
        v_mov_b32 v{CA+4}, 0
        v_mov_b32 v{CA+5}, 0
        v_mov_b32 v{MB+2}, 0
        v_mov_b32 v{MB+3}, 0
        v_mov_b32 v{MB+6}, 0
        v_mov_b32 v{MB+7}, 0
        v_cmp_eq_u32 s[52:53], 0, v4
        s_mov_b32 s47, 0x3f803f80
        s_mov_b32 s48, 0xffff0000
        """)
    caload = [f"global_load_dwordx2 {v(CA,2)}, v{vCA}, s[30:31] sc1", f"global_load_dwordx2 {v(CA+2,2)}, v{vCA}, s[30:31] offset:128 sc1"]
    def preads(p, j):
        s, ks = j >> 1, j & 1
        f = F[j % 3]
        ho = (slot[("H", s)] % 8) * BLK + 4096 * ks
        wo = (slot[("W", 14 * p + s)] - 12) * BLK + 2048 * ks
        o = []
        for kind, i in (("B", 0), ("A", 0), ("B", 1), ("A", 1)):
            ab = vB + i if s < 8 else (17, 46)[i]
            if kind == "B": o += [f"ds_read_b64_tr_b16 {v(f+8+4*i,2)}, v{ab} offset:{ho}", f"ds_read_b64_tr_b16 {v(f+10+4*i,2)}, v{ab} offset:{ho+1024}"]
            else: o += [f"ds_read_b64_tr_b16 {v(f+4*i,2)}, v{vAa+i} offset:{wo}", f"ds_read_b64_tr_b16 {v(f+2+4*i,2)}, v{vAa+i} offset:{wo+512}"]
        return o
    def pmfma(j, first=False):
        f = F[j % 3]
        return [f"v_mfma_f32_32x32x16_bf16 {v(ACC+32*t+16*rt,16)}, {v(f+4*t,4)}, {v(f+8+4*rt,4)}, {'0' if first else v(ACC+32*t+16*rt,16)}" for (t, rt) in ((0, 0), (0, 1), (1, 0), (1, 1))]
    def corr(first):
        return [f"v_mfma_f32_32x32x16_bf16 {v(ACC+32*t+16*rt,16)}, {v(CA+2*t,4)}, {v(MB+4*rt,4)}, {'0' if first else v(ACC+32*t+16*rt,16)}" for t in range(2) for rt in range(2)]
    mkmb = [f"v_cndmask_b32 v{MB+4*rt+k}, 0, v{CN+4*rt+3}, s[52:53]" for rt in range(2) for k in range(2)]
    def inter(m, r):
        per_ = (len(r) + 3) // 4
        for i in range(4):
            A(m[i])
            for l in r[per_*i:per_*(i+1)]: A(l)
    def pstep(p, s):
        for h in range(2):
            A("s_waitcnt lgkmcnt(8)")
            inter(pmfma(2*s - 2 + h, p == 0 and s == 1 and h == 0), preads(p, 2*s + h))
        if p == 0 and s - c.ca_load in (0, 1): A(caload[s - c.ca_load])
    def epi(t, rt, n, packed):
        a = ACC + 32 * t + 16 * rt
        cn = CN + 4 * rt
        o_ = OUT + 4 * (n & 1)
        L = []
        if packed:
            L += [f"v_pk_mul_f32 {v(T1+2*q,2)}, {v(a+2*q,2)}, {v(a+2*q,2)}" for q in range(4)]
            L += [f"v_pk_fma_f32 {v(T1+2*q,2)}, {v(T1+2*q,2)}, {v(cn,2)}, {v(cn,2)} op_sel:[0,1,0] op_sel_hi:[1,1,0]" for q in range(4)]
            L += [f"v_pk_mul_f32 {v(T1+2*q,2)}, {v(T1+2*q,2)}, {v(a+2*q,2)}" for q in range(4)]
            L += [f"v_exp_f32 v{T1+q}, v{T1+q}" for q in range(8)]
            L += [f"v_pk_mul_f32 {v(T2+2*q,2)}, {v(a+2*q,2)}, {v(a+8+2*q,2)}" for q in range(4)]
            L += [f"v_pk_fma_f32 {v(T1+2*q,2)}, {v(T1+2*q,2)}, {v(cn+2,2)}, {v(cn+2,2)} op_sel_hi:[1,0,0]" for q in range(4)]
            L += [f"v_rcp_f32 v{T1+q}, v{T1+q}" for q in range(8)]
            L += [f"v_pk_mul_f32 {v(T2+2*q,2)}, {v(T2+2*q,2)}, {v(T1+2*q,2)}" for q in range(4)]
            L += [f"v_cvt_pk_bf16_f32 v{o_+q}, v{T2+2*q}, v{T2+2*q+1}" for q in range(4)]
        else:
            def st(q):
                return [f"v_mul_f32 v{T1+q}, v{a+q}, v{a+q}", f"v_fma_f32 v{T1+q}, v{T1+q}, v{cn+1}, v{cn}", f"v_mul_f32 v{T1+q}, v{T1+q}, v{a+q}",
                        f"v_exp_f32 v{T1+q}, v{T1+q}", f"v_mul_f32 v{T2+q}, v{a+q}, v{a+8+q}", f"v_fma_f32 v{T1+q}, v{T1+q}, v{cn+2}, v{cn+2}",
                        f"v_rcp_f32 v{T1+q}, v{T1+q}", f"v_mul_f32 v{T2+q}, v{T2+q}, v{T1+q}"]
            for q0 in range(0, 8, c.il):
                xs = [st(q) for q in range(q0, q0 + c.il)]
                for k in range(8): L += [x[k] for x in xs]
                L += [f"v_cvt_pk_bf16_f32 v{o_+q//2}, v{T2+q}, v{T2+q+1}" for q in range(q0, q0 + c.il, 2)]
        L += [f"global_store_dwordx4 v{vS+rt}, {v(o_,4)}, s[30:31] offset:{1024*t} {c.stflag}"]
        return L
    def cost(l): return 2 if l.startswith(("v_exp", "v_rcp", "v_sqrt")) else c.stcost if l.startswith("global_store") else 1
    def signal(t, later=None):
        A(f"s_mov_b32 s70, 1\ns_waitcnt vmcnt({2-2*t if later is None else later})\ns_atomic_add s70, s[30:31], s58\ns_add_u32 s58, s58, 128")
    def poll_issue(r, off):
        A(f"s_mov_b32 s{r}, 0\ns_add_u32 s68, s59, {off}\ns_atomic_add s{r}, s[30:31], s68 glc")
    def poll_wait(r, off, inline=False):
        pl = A.label("poll"); ok = A.label("ok")
        if inline:
            A(f"s_mov_b32 s45, 0\n{pl}:\ns_waitcnt lgkmcnt(0)\ns_cmp_ge_u32 s{r}, 14\ns_cbranch_scc1 {ok}")
            poll_issue(r, off)
            A(f"s_add_u32 s45, s45, 1\ns_cmp_lt_u32 s45, {SPIN}\ns_cbranch_scc1 {pl}\ns_waitcnt lgkmcnt(0)\n{ok}:")
            return
        A(f"s_waitcnt lgkmcnt(0)\ns_cmp_lt_u32 s{r}, 14\ns_cbranch_scc1 {pl}\n{ok}:")
        with Cold():
            A(f"{pl}:\ns_mov_b32 s45, 0\n{pl}b:")
            poll_issue(r, off)
            A(f"s_add_u32 s45, s45, 1\ns_waitcnt lgkmcnt(0)\ns_cmp_ge_u32 s{r}, 14\ns_cbranch_scc1 {ok}\ns_cmp_lt_u32 s45, {SPIN}\ns_cbranch_scc1 {pl}b\ns_branch {ok}")
    PA_, PB_ = 69, 71
    Q = Bars([0, 14, c.drain0[1] + 1, 29], 13)
    AC2, ID, HF = 80, 160, 72
    csetup()
    if c.emode: A(f"s_waitcnt vmcnt(0)\ns_sleep {c.emode}")
    A("s_waitcnt vmcnt(0)\ns_barrier")
    P.stamp(11)
    A(f"""
    s_lshl_b32 s43, s35, 1
    s_add_u32 s43, s43, s41
    s_sub_u32 s43, s43, s38
    s_cselect_b32 s44, 14, 0
    s_add_u32 s43, s43, s44
    s_cmp_ge_u32 s43, 12
    s_cselect_b32 s44, {2 if c.w8 else 0}, 0
    s_add_u32 s43, s43, s44
    s_lshl_b32 s43, s43, 13
    v_add_u32 v{vX}, s43, v{vX}
    v_lshlrev_b32 v7, 3, v4
    v_sub_u32 v7, v5, v7
    v_mov_b32 v{vX+1}, 0x3f80
    v_mov_b32 v{vX+2}, 1.0
    """)
    for j in range(2):
        for i in range(4):
            d0 = 16 * j + 2 * i
            A(f"v_cmp_eq_u32 vcc, {d0}, v7\nv_cmp_eq_u32 s[50:51], {d0+1}, v7\nv_cndmask_b32 v{ID+4*j+i}, 0, v{vX+1}, vcc\nv_cndmask_b32 v{ID+4*j+i}, v{ID+4*j+i}, v{vX+2}, s[50:51]")
    A("s_setprio 2")
    Q.bar()
    P.stamp(12)
    for l in preads(0, 0) + preads(0, 1): A(l)
    for s in range(1, 14):
        Q.bar(); pstep(0, s)
    Q.bar()
    r = [f"ds_read_b128 {v(CN+4*i,4)}, v{vCR+i}" for i in range(2)] + [f"ds_read_b64_tr_b16 {v(HF+2*i,2)}, v{vX} offset:{4096*(i>>1)+1024*(i&1)}" for i in range(4)]
    A("s_waitcnt lgkmcnt(8)"); inter(pmfma(26), r)
    A("s_waitcnt vmcnt(0) lgkmcnt(4)"); inter(pmfma(27), mkmb)
    for l in corr(False): A(l)
    A("s_waitcnt lgkmcnt(0)")
    A("s_setprio 0")
    E1 = []
    for n in range(4): E1 += epi(n >> 1, n & 1, n, c.e1_packed)
    tot = sum(cost(x) for x in E1); per1 = tot / (c.e1_last - c.e1_first + 1); bud = 0.0
    vD, vT = 8, 14
    gsetup = f"""
    v_lshl_add_u32 v7, v4, 2, v2
    v_lshlrev_b32 v7, 7, v7
    v_lshrrev_b32 v{vD}, 1, v2
    v_xor_b32 v{vD}, s41, v{vD}
    v_lshl_add_u32 v7, v{vD}, 6, v7
    v_lshl_add_u32 v7, v3, 5, v7
    v_lshl_add_u32 v7, v6, 3, v7
    s_lshl_b32 s43, s41, 12
    v_add_u32 v{vD}, s43, v7
    v_xor_b32 v{vD+1}, 64, v{vD}
    v_add_u32 v{vD+2}, 0x10000, v{vD}
    v_add_u32 v{vD+3}, 0x10000, v{vD+1}
    v_lshlrev_b32 v{vT}, 4, v{vLane}
    """
    gsetup2 = f"""
    s_lshl_b32 s43, s39, 2
    s_lshl_b32 s44, s34, 1
    s_add_u32 s43, s43, s44
    s_add_u32 s43, s43, s40
    s_mul_i32 s55, s43, {112*1024}
    s_mul_i32 s43, s43, {32*896}
    s_lshl_b32 s44, s35, 7
    s_add_u32 s43, s43, s44
    s_lshl_b32 s44, s41, 6
    s_add_u32 s43, s43, s44
    v_mul_u32_u24 v5, 896, v5
    v_lshl_add_u32 v5, v4, 4, v5
    v_add_u32 v5, s43, v5
    s_lshl_b32 s44, s41, 11
    s_add_u32 s55, s55, s44
    s_lshl_b32 s4, s33, 13
    s_add_u32 s4, s4, s55
    s_add_u32 s54, s55, {14*8192}
    s_add_u32 s64, s30, {WS_ACT}
    s_addc_u32 s65, s31, 0
    s_mov_b32 s66, {ACT_BYTES}
    s_mov_b32 s67, 0x20000
    """
    gsetup3 = "\n".join(f"s_add_u32 s{4+k}, s{3+k}, 8192\ns_cmp_ge_u32 s{4+k}, s54\ns_cselect_b32 s{4+k}, s55, s{4+k}" for k in range(1, 14))
    TRQ = [96 + 4 * k for k in range(18)] + [16, 20, 24, 28]
    DB = [32, 40, 48, 56]
    AO = [AC2, 64]
    seq = [(14 * hf + b, j) for hf in range(2) for j in range(2) for b in range(14)]
    cons = [(b, j) for b in range(14) for j in range(2)] + seq[28:]
    freeq = list(TRQ); treg = {}
    def tload(n):
        b, j = seq[n]
        if (b, j) not in treg: treg[(b, j)] = freeq.pop(0)
        o = []
        if n == 28: o += [f"v_add_u32 v15, 4096, v{vT}"]
        if c.x_notl and n >= 28: return o
        o += [f"buffer_load_dwordx4 {v(treg[(b, j)],4)}, v{vT if n < 28 else 15}, s[64:67], s{4+b%14} offen offset:{1024*j} sc1"]
        return o
    nst = 0; early = 0
    assert c.drain0[1] <= c.chkA and c.e1_last + 3 <= c.chkA and sum(c.earlyT) <= 14
    for i in range(15, 29):
        Q.bar()
        if i == c.drain0[0]:
            assert nst >= 2
            signal(0, nst - 2)
        if i >= c.e1_first:
            bud += per1
            while E1 and (bud > 0 or i == c.e1_last):
                x = E1.pop(0); A(x); bud -= cost(x)
                if x.startswith("global_store"): nst += 1
        if i == c.pollA: poll_issue(PA_, 0)
        if i == c.e1_last + 1: A(gsetup)
        if i == c.e1_last + 2: A(gsetup2)
        if i == c.e1_last + 3: A(gsetup3)
        if i == c.chkA: A("s_waitcnt lgkmcnt(0)")
        if i == c.drain0[1]:
            signal(1)
            A(f"v_add_u32 v{vD+4}, 0x20000, v{vD}\nv_add_u32 v{vD+5}, 0x20000, v{vD+1}")
        if i == c.poll0: poll_issue(PB_, 128)
        if 0 <= i - c.chkA < len(c.earlyT):
            sk = A.label("et")
            A(f"s_cmp_lt_u32 s{PA_}, 14\ns_cbranch_scc1 {sk}")
            for _ in range(c.earlyT[i - c.chkA]):
                for l in tload(early): A(l)
                early += 1
            A(f"{sk}:")
    Q.bar()
    A(f"v_mfma_f32_32x32x16_bf16 {v(AC2,16)}, {v(ID,4)}, {v(HF,4)}, 0")
    A(f"v_mfma_f32_32x32x16_bf16 {v(AC2,16)}, {v(ID+4,4)}, {v(HF+4,4)}, {v(AC2,16)}")
    sk = A.label("et")
    A(f"s_cmp_lt_u32 s{PA_}, 14\ns_cbranch_scc1 {sk}c\n{sk}:")
    with Cold():
        A(f"{sk}c:")
        poll_wait(PA_, 0, True)
        for n in range(early):
            for l in tload(n): A(l)
        A(f"s_branch {sk}")
    def dreads(n):
        b, j = cons[n]
        sd = slot[("D", b)]; f = DB[n & 3]
        o = []
        for nt in range(2):
            do = (sd % 8) * BLK + 2048 * j
            ad = vD + 2 * (sd // 8) + nt
            o += [f"ds_read_b64_tr_b16 {v(f+4*nt,2)}, v{ad} offset:{do}", f"ds_read_b64_tr_b16 {v(f+4*nt+2,2)}, v{ad} offset:{do+1024}"]
        return o
    def gm(n):
        f = DB[n & 3]
        return [f"v_mfma_f32_32x32x16_bf16 {v(AO[nt],16)}, {v(f+4*nt,4)}, {v(treg[cons[n]],4)}, {'0' if (n == 0 and nt == 1) else v(AO[nt],16)}" for nt in (1, 0)]
    issued = early; mk = 0
    while issued < 14:
        for l in tload(issued): A(l)
        issued += 1
    poll_wait(PB_, 128, True)
    Q.mark(mk); mk += 1
    lim = 28
    for n in range(56):
        if n == 14 and not c.auxpoll: A("s_waitcnt lgkmcnt(0)\ns_barrier")
        for y in (c.ya_at, c.yb_at):
            if n == y:
                if c.auxpoll and y == c.ya_at and y < 16: A("s_waitcnt lgkmcnt(0)")
                A("s_barrier")
                Q.mark(mk); mk += 1
                lim += 14
        k = 99 if n == 0 else c.pace.get(n, c.pace1 if n < 28 else c.pace2)
        while issued < lim and freeq and k > (2 if c.tpost and n else 0):
            for l in tload(issued): A(l)
            issued += 1; k -= 1
        assert seq.index(cons[n]) < issued
        if n == 0:
            for l in dreads(0) + dreads(1): A(l)
        if n == c.g_pre:
            if c.xe: A("s_barrier")
            Q.mark(mk); mk += 1
        if c.auxpoll and n == 32: A("s_barrier")
        r = dreads(n + 2) if n + 2 < 56 else []
        A(f"s_waitcnt vmcnt({issued-1-seq.index(cons[n])}) lgkmcnt({4 if n < 55 else 0})")
        if n in (28, 42): Q.mark(mk); mk += 1
        m = gm(n)
        for i in range(2):
            A(m[i])
            if c.tpost and issued < lim and freeq and k > 1 - i:
                for l in tload(issued): A(l)
                issued += 1
            for l in r[2*i:2*i+2]: A(l)
        freeq.append(treg[cons[n]])
    assert 14 <= c.ya_at <= 26 and c.ya_at <= c.yb_at <= 32 and c.yb_at >= (20 if c.auxpoll else 24)
    while mk < 6: Q.mark(mk); mk += 1
    Q.mark(6)
    assert all(slot[("D", b)] not in (8, 9) for b in range(11, 28))
    A(f"""
    s_lshl_b32 s43, s36, 12
    s_add_u32 s43, s43, {8*BLK}
    v_lshl_add_u32 v2, v{vLane}, 4, s43
    v_xor_b32 v3, 0x2000, v2
    """)
    for q in range(4): A(f"ds_write_b128 v2, {v(AO[1]+4*q,4)} offset:{1024*q}")
    A("s_waitcnt lgkmcnt(0)\ns_barrier")
    for q in range(4): A(f"ds_read_b128 {v(32+4*q,4)}, v3 offset:{1024*q}")
    for hq in range(2):
        A(f"s_waitcnt lgkmcnt({2-2*hq})")
        for q in range(4*hq, 4*hq+4): A(f"v_pk_add_f32 {v(AC2+2*q,2)}, {v(AC2+2*q,2)}, {v(32+2*q,2)}")
        for q in range(4*hq, 4*hq+4): A(f"v_cvt_pk_bf16_f32 v{48+q}, v{AC2+2*q}, v{AC2+2*q+1}")
        A(f"v_permlane32_swap_b32 v{48+4*hq}, v{48+4*hq+2}\nv_permlane32_swap_b32 v{48+4*hq+1}, v{48+4*hq+3}")
        A(f"global_store_dwordx4 v5, {v(48+4*hq,4)}, s[26:27] offset:{32*hq} {c.outflag}")
    Q.fin(7)
    A("s_endpgm")
    target(nw)
    A(f"s_and_b32 s46, s36, 3\ns_mov_b32 s45, 0\nv_mov_b32 v11, {TAGA}")
    def xpoll():
        for l in xp: A(l)
    A("s_waitcnt lgkmcnt(0)\ns_barrier")
    P.stamp(5)
    A(f"""
    ds_read_b32 v11, v11
    s_lshl_b32 s47, s46, 10
    s_add_u32 s47, s47, {UO+512}
    v_xor_b32 v9, 3, v{vLane}
    v_lshl_add_u32 v9, v9, 2, s47
    s_lshl_b32 s47, s46, 11
    v_lshrrev_b32 v5, 3, v{vLane}
    v_lshl_add_u32 v5, v5, 4, s47
    v_bfe_u32 v6, v{vLane}, 1, 2
    v_lshl_add_u32 v5, v6, 8, v5
    v_and_b32 v6, 1, v{vLane}
    v_lshl_add_u32 v10, v6, 3, v5
    """)
    if not c.xp_at:
        if c.poll_late: A(f"s_sleep {c.poll_late}")
        xpoll()
    if not c.xp_chk:
        A(f"s_mov_b32 s45, 1\ns_barrier\ns_setprio {c.nprio}")
    pl = A.label("xp"); ok = A.label("xok"); nb1 = A.label("xnb")
    A(f"{pl}:\ns_waitcnt vmcnt(0) lgkmcnt(0)\nv_min3_u32 v4, v{vPX+1}, v{vPX+3}, v11\nv_max3_u32 v5, v{vPX+1}, v{vPX+3}, v11")
    for q in range(1, 8): A(f"v_min3_u32 v4, v4, v{vPX+4*q+1}, v{vPX+4*q+3}\nv_max3_u32 v5, v5, v{vPX+4*q+1}, v{vPX+4*q+3}")
    assert not c.xp_chk
    A(f"v_cmp_ne_u32 vcc, v4, v5\ns_cbranch_vccnz {pl}c\n{ok}:")
    with Cold():
        A(f"{pl}c:\ns_add_u32 s45, s45, 1\ns_cmp_gt_u32 s45, {SPIN}\ns_cbranch_scc1 {ok}")
        if c.xmask:
            for q in range(8):
                A(f"v_cmp_ne_u32 vcc, v{vPX+4*q+1}, v11\nv_cmp_ne_u32 s[50:51], v{vPX+4*q+3}, v11\ns_or_b64 exec, vcc, s[50:51]\ns_cbranch_execz {pl}m{q}\n{xp[q]}\n{pl}m{q}:\ns_mov_b64 exec, -1")
        else: xpoll()
        A(f"s_branch {pl}")
    P.stamp(6)
    if c.x_cnt: A("s_waitcnt lgkmcnt(0)\ns_mul_i32 s74, s45, 100\ns_add_u32 s74, s74, s72")
    NU, PRE, UB = 16, 32, 48
    for half in range(2):
        st = []
        for r in range(4 * half, 4 * half + 4):
            S = vPS_ + 2 * r; X = vPX + 2 * r
            t = 60 + 4 * (r & 3)
            st.append([f"v_and_b32 v{t+2}, s43, v{S}", f"v_rcp_f32 v{t+2}, v{t+2}", f"v_lshlrev_b32 v{t}, 16, v{S}",
                  f"v_lshlrev_b32 v{PRE+2*r}, 16, v{X}", f"v_and_b32 v{PRE+2*r+1}, s43, v{X}",
                  f"v_pk_add_f32 {v(NU+2*r,2)}, {v(PRE+2*r,2)}, {v(t,2)} op_sel_hi:[1,0] neg_lo:[0,1] neg_hi:[0,1]" if c.npk else f"v_sub_f32 v{NU+2*r}, v{PRE+2*r}, v{t}\nv_sub_f32 v{NU+2*r+1}, v{PRE+2*r+1}, v{t}",
                  f"v_cvt_pk_bf16_f32 v{NU+2*r+1}, v{NU+2*r}, v{NU+2*r+1}",
                  f"v_lshlrev_b32 v{NU+2*r}, 16, v{NU+2*r+1}", f"v_and_b32 v{NU+2*r+1}, s43, v{NU+2*r+1}",
                  f"v_pk_mul_f32 {v(NU+2*r,2)}, {v(NU+2*r,2)}, {v(t+2,2)} op_sel_hi:[1,0]" if c.npk else f"v_mul_f32 v{NU+2*r}, v{NU+2*r}, v{t+2}\nv_mul_f32 v{NU+2*r+1}, v{NU+2*r+1}, v{t+2}"])
        for l in merge(*st): A(l)
        for ch in range(2):
            for k in (2 * half, 2 * half + 1): A(f"v_cvt_pk_bf16_f32 v{UB+4*ch+k}, v{NU+4*k+2+ch}, v{NU+4*k+ch}")
    P.stamp(7)
    for half in range(2):
        for ch in range(2):
            A(f"ds_write2st64_b32 v9, v{UB+4*ch+2*half}, v{UB+4*ch+2*half+1} offset0:{ch*UPITCH//256+2*half} offset1:{ch*UPITCH//256+2*half+1}")
    A("s_setprio 0\ns_waitcnt lgkmcnt(0)\ns_barrier")
    P.stamp(8)
    if c.x_quietN: A("s_sleep 60")
    PO = 60
    for ch in range(2):
        for k in range(4):
            A(f"v_lshlrev_b32 v4, 16, v{UB+4*ch+k}\nv_and_b32 v5, s43, v{UB+4*ch+k}")
            A(f"v_fma_f32 v{PO+8*ch+2*k+1}, v4, s{58+ch}, v{PRE+4*k+2+ch}\nv_fma_f32 v{PO+8*ch+2*k}, v5, s{58+ch}, v{PRE+4*k+ch}")
            A(f"ds_write_b64 v10, {v(PO+8*ch+2*k,2)} offset:{32768*ch+1024*(k>>1)+128*(k&1)}")
    A("v_mov_b32 v90, v11")
    csetup()
    Q = Bars([0, c.gat_check, c.gat_check + 1, 14, 28, 29], 10)
    ST, GA = 18, 96
    vPS, vGA = 22, 23
    A(f"""
    s_mul_i32 s43, s39, {14*1024}
    s_lshl_b32 s44, s42, 8
    s_add_u32 s43, s43, s44
    s_add_u32 s43, s43, {WS_PS}
    v_lshl_add_u32 v{vPS}, v5, 3, s43
    v_mul_u32_u24 v7, 7168, v4
    v_add3_u32 v{vGA}, v{vPS}, v7, 64
    v_add_u32 v{vGA}, {3072-64}, v{vGA}
    s_lshl_b32 s44, s38, 10
    v_add_u32 v{vPS}, s44, v{vPS}
    """)
    nb = A.label("nb"); pz = A.label("pz"); pzo = A.label("pzo")
    A(f"""
    s_cmp_lg_u32 s36, 4
    s_cbranch_scc1 {nb}
    v_min_u32 v47, 55, v{vLane}
    v_lshlrev_b32 v47, 5, v47
    v_add_u32 v47, {WS_PZ}, v47
    s_mov_b32 s45, 0
    {pz}:
    s_sleep {c.pz_sleep}
    global_load_dwordx4 v[48:51], v47, s[30:31] sc1
    global_load_dwordx4 v[52:55], v47, s[30:31] offset:16 sc1
    s_waitcnt vmcnt(0)
    v_min3_u32 v56, v48, v49, v90
    v_max3_u32 v57, v48, v49, v90
    v_min3_u32 v56, v50, v51, v56
    v_max3_u32 v57, v50, v51, v57
    v_min3_u32 v56, v52, v53, v56
    v_max3_u32 v57, v52, v53, v57
    v_min3_u32 v56, v54, v55, v56
    v_max3_u32 v57, v54, v55, v57
    v_cmp_ne_u32 vcc, v56, v57
    s_cbranch_vccz {pzo}
    s_add_u32 s45, s45, 1
    s_cmp_lt_u32 s45, {SPIN}
    s_cbranch_scc1 {pz}
    {pzo}:
    s_cmp_lg_u32 s2, 0
    s_cbranch_scc1 {nb}
    v_mov_b32 v47, {WS_E}
    s_mov_b64 exec, 1
    global_store_dword v47, v90, s[30:31]
    s_mov_b64 exec, -1
    {nb}:
    """)
    P.stamp(9)
    A("s_waitcnt lgkmcnt(0)\ns_barrier\ns_barrier")
    def gat(js=range(7)):
        for j in js: A(f"global_load_dwordx2 {v(GA+2*j,2)}, v{vGA}, s[30:31] offset:{1024*j-3072} sc1")
    S, Qv = GA, GA + 1
    work = [f"v_add_f32 v{GA+k}, v{GA+k}, v{GA+2*j+k}" for j in range(1, 7) for k in range(2)]
    work += [f"v_mov_b32 v{GA+2}, v{GA}", f"v_mov_b32 v{GA+3}, v{GA+1}", f"v_permlane32_swap_b32 v{GA}, v{GA+2}", f"v_permlane32_swap_b32 v{GA+1}, v{GA+3}",
             f"v_add_f32 v{GA}, v{GA}, v{GA+2}", f"v_add_f32 v{GA+1}, v{GA+1}, v{GA+3}"]
    work += [l.strip() for l in f"""
    v_mul_f32 v{S}, {f32(1.0/448)}, v{S}
    v_mul_f32 v{Qv}, {f32(1.0/448)}, v{Qv}
    v_fma_f32 v{Qv}, -v{S}, v{S}, v{Qv}
    v_max_f32 v{Qv}, 0, v{Qv}
    v_cvt_pk_bf16_f32 v{CN+3}, -v{S}, -v{S}
    v_cvt_pk_bf16_f32 v{Qv}, v{Qv}, v{Qv}
    v_and_b32 v{Qv}, s48, v{Qv}
    v_add_f32 v{Qv}, {f32(1e-5)}, v{Qv}
    v_cvt_pk_bf16_f32 v{Qv}, v{Qv}, v{Qv}
    v_and_b32 v{Qv}, s48, v{Qv}
    v_sqrt_f32 v{Qv}, v{Qv}
    v_cvt_pk_bf16_f32 v{Qv}, v{Qv}, v{Qv}
    v_and_b32 v{Qv}, s48, v{Qv}
    v_rcp_f32 v{S}, v{Qv}
    v_mul_f32 v{CN+2}, v{Qv}, v{Qv}
    v_mul_f32 v{CN}, {f32(GK0)}, v{S}
    v_mul_f32 v{CN+1}, v{S}, v{S}
    v_mul_f32 v{CN+1}, v{CN+1}, v{S}
    v_mul_f32 v{CN+1}, {f32(GK1)}, v{CN+1}
    ds_write_b128 v{vCR}, {v(CN,4)}
    """.strip().split("\n")]
    nwi = c.con_write - c.gat_check
    wper = (len(work) + nwi - 1) // nwi
    for i in range(14):
        Q.bar()
        if i == 0:
            for k in range(4): A(f"ds_read_b64_tr_b16 {v(F[0]+2*k,2)}, v{vB} offset:{4096*(k>>1)+1024*(k&1)}")
        if i == 1:
            A("s_waitcnt lgkmcnt(0)")
            for k in range(8):
                z = k < 2
                A(f"v_dot2_f32_bf16 v{ST+(k&1)}, v{F[0]+k}, s47, {'0' if z else 'v%d' % (ST+(k&1))}\nv_dot2_f32_bf16 v{ST+2+(k&1)}, v{F[0]+k}, v{F[0]+k}, {'0' if z else 'v%d' % (ST+2+(k&1))}")
        if i == 2:
            A(f"""
            v_add_f32 v{ST}, v{ST}, v{ST+1}
            v_add_f32 v{ST+1}, v{ST+2}, v{ST+3}
            v_mov_b32 v{ST+2}, v{ST}
            v_mov_b32 v{ST+3}, v{ST+1}
            v_permlane32_swap_b32 v{ST}, v{ST+2}
            v_permlane32_swap_b32 v{ST+1}, v{ST+3}
            v_add_f32 v{ST}, v{ST}, v{ST+2}
            v_add_f32 v{ST+1}, v{ST+1}, v{ST+3}
            v_or_b32 v{ST+1}, 1, v{ST+1}
            s_mov_b32 exec_hi, 0
            global_store_dwordx2 v{vPS}, {v(ST,2)}, s[30:31] sc0 sc1
            s_mov_b32 exec_hi, -1
            """)
        if i in (c.cs_issue, c.ca_load - 1):
            sk = A.label("css")
            A(f"s_cmp_lg_u32 s36, 4\ns_cbranch_scc1 {sk}")
            if i == c.cs_issue: A(f"global_load_dword v47, v{MB+2}, s[28:29] sc1")
            else:
                pl = A.label("cs")
                A(f"s_mov_b32 s45, 0\n{pl}:\ns_waitcnt vmcnt(0)\nv_cmp_gt_u32 vcc, 64, v47\ns_cbranch_vccz {sk}\ns_sleep 32\nglobal_load_dword v47, v{MB+2}, s[28:29] sc1\ns_add_u32 s45, s45, 1\ns_cmp_lt_u32 s45, {SPIN}\ns_cbranch_scc1 {pl}")
            A(f"{sk}:")
        k0 = i - (c.gat_issue - len(c.gat_split) + 1)
        if 0 <= k0 < len(c.gat_split) and not c.x_nogat: gat(range(sum(c.gat_split[:k0]), sum(c.gat_split[:k0+1])))
        if i == c.gat_check and not c.x_nogat:
            pl = A.label("gp"); ok = A.label("gok")
            A(f"s_mov_b32 s45, 0\n{pl}:\ns_waitcnt vmcnt(0)\nv_min3_u32 v7, v{GA+1}, v{GA+3}, v{GA+5}\nv_min3_u32 v7, v7, v{GA+7}, v{GA+9}\nv_min3_u32 v7, v7, v{GA+11}, v{GA+13}")
            A(f"v_cmp_eq_u32 vcc, 0, v7\ns_cbranch_vccnz {pl}c\n{ok}:")
            with Cold():
                A(f"{pl}c:\ns_add_u32 s45, s45, 1\ns_cmp_ge_u32 s45, {SPIN}\ns_cbranch_scc1 {ok}")
                gat()
                A(f"s_branch {pl}")
        if c.gat_check < i <= c.con_write:
            for l in work[:wper]: A(l)
            work = work[wper:]
        if i == c.ca_load:
            for l in caload: A(l)
        if i == 13:
            assert not work
            A("s_waitcnt vmcnt(0) lgkmcnt(0)")
    Q.bar()
    A(f"ds_read_b128 {v(CN+4,4)}, v{vCR+1}")
    for l in preads(1, 0): A(l)
    A("s_waitcnt lgkmcnt(8)")
    for l in mkmb + preads(1, 1): A(l)
    for l in corr(True): A(l)
    A(f"s_setprio {c.prioB}")
    for s in range(1, 14):
        Q.bar(); pstep(1, s)
    Q.bar()
    A("s_waitcnt lgkmcnt(8)")
    for l in pmfma(26): A(l)
    A("s_waitcnt lgkmcnt(0)")
    Q.bar()
    for l in pmfma(27): A(l)
    for n in range(4):
        L = epi(n >> 1, n & 1, n, True)
        for l in L[:-1]: A(l)
        if n == 3 and c.sig_early: signal(0, 1)
        A(L[-1])
    Q.mark(0)
    A("s_setprio 0")
    if c.xe: A("s_barrier")
    if not c.sig_early: signal(0)
    Q.mark(1)
    if c.auxpoll:
        if c.selfrd:
            A(f"s_cmp_lg_u32 s40, s34\ns_cbranch_scc1 Lsr1\nglobal_load_dwordx4 v[96:99], v{vS}, s[30:31] sc1\nglobal_load_dwordx4 v[100:103], v{vS+1}, s[30:31] sc1\ns_waitcnt vmcnt(2)\ns_branch Lsr2\nLsr1:\ns_waitcnt vmcnt(0)\nLsr2:")
            signal(1, 2)
            A(f"s_cmp_lg_u32 s40, s34\ns_cbranch_scc1 Lsr3\nglobal_load_dwordx4 v[96:99], v{vS}, s[30:31] offset:1024 sc1\nglobal_load_dwordx4 v[100:103], v{vS+1}, s[30:31] offset:1024 sc1\nLsr3:")
        else: signal(1)
        Q.mark(2)
        A("s_barrier")
        Q.mark(3)
        A("s_barrier\ns_barrier")
        Q.mark(4)
    else:
        if c.pa_early: poll_issue(PA_, 512)
        signal(1)
        Q.mark(2)
        if not c.pa_early: poll_issue(PA_, 512)
        A("s_barrier")
        poll_wait(PA_, 512, True)
        poll_issue(PB_, 640)
        Q.mark(3)
        A("s_barrier")
        poll_wait(PB_, 640, True)
        Q.mark(4)
        A("s_barrier")
    Q.fin(5)
    A("s_waitcnt lgkmcnt(0)\ns_endpgm")
    A(f".p2align 3\n{auxt}:")
    PA.stamp(1)
    srd(A, 64, 30, XG_BYTES, WS_XG)
    A(f"""
    v_and_b32 v4, 15, v{vLane}
    v_lshrrev_b32 v5, 4, v{vLane}
    v_lshl_add_u32 v6, v4, 8, s46
    v_lshl_add_u32 v6, v5, 2, v6
    v_and_b32 v7, 7, v4
    v_lshl_add_u32 v6, v7, 4, v6
    v_lshlrev_b32 v9, 14, v5
    v_lshl_add_u32 v9, v4, 4, v9
    s_lshl_b32 s46, s36, 2
    s_add_u32 s46, s46, {TAGA}
    v_mov_b32 v2, s46
    """)
    for k in range(1, 8): A(f"v_xor_b32 v{80+k}, {16*k}, v6")
    A("s_waitcnt lgkmcnt(0)\ns_add_u32 s57, s57, 1\ns_and_b32 s57, s57, 0xffff\ns_or_b32 s57, s57, 0x7f810000")
    for k in range(16): A(f"v_mov_b32 v{vXG+2*k+1}, s57")
    A(f"s_mov_b64 exec, 1\nds_write_b32 v2, v{vXG+1}\ns_mov_b64 exec, -1\ns_waitcnt vmcnt(0)")
    PA.stamp(2)
    for k in range(8):
        ad = 6 if k == 0 else 80 + k
        A(f"ds_read_b32 v{vXG+4*k}, v{ad}\nds_read_b32 v{vXG+4*k+2}, v{ad} offset:128")
    for k in range(8):
        A(f"s_waitcnt lgkmcnt({14-2*k})\nbuffer_store_dwordx4 {v(vXG+4*k,4)}, v9, s[64:67], s51 offen sc0 sc1")
        if k < 7: A(f"s_add_u32 s51, s51, {4*16384}")
    PA.stamp(3)
    A(f"""
    v_mov_b32 v24, 0
    v_mov_b32 v25, 0
    s_lshl_b32 s43, s2, 1
    s_add_u32 s43, s43, s36
    s_lshl_b32 s44, s43, 9
    s_add_u32 s44, s44, {WS_PS}
    v_lshl_add_u32 v3, v{vLane}, 3, s44
    global_store_dwordx2 v3, v[24:25], s[30:31] sc0 sc1
    s_and_b32 s44, s43, 255
    s_lshl_b32 s44, s44, 7
    s_add_u32 s44, s44, {WS_FLAGS}
    v_mov_b32 v4, s44
    s_mov_b64 exec, 1
    global_store_dword v4, v24, s[30:31] sc0 sc1
    s_mov_b64 exec, -1
    s_lshl_b32 s44, s43, 2
    s_add_u32 s44, s44, {WS_PZ}
    v_mov_b32 v22, s44
    v_mov_b32 v23, s57
    s_setprio 0
    """)
    if c.warm:
        A("s_cmp_eq_u32 s36, 1\ns_cbranch_scc1 Lwm1")
        for lab in ("Lmw", nw, odd): A(f"s_call_b64 s[96:97], {lab}w")
        A("s_branch Lwm2\nLwm1:")
        for k in range(1, 4): A(f"s_call_b64 s[96:97], Lpw{k}")
        A("Lwm2:")
    A("s_barrier")
    if c.warm:
        A("s_cmp_eq_u32 s36, 1\ns_cbranch_scc1 Lwm3")
        for k in range(4, c.npg + 1, 2): A(f"s_call_b64 s[96:97], Lpw{k}")
        A("s_branch Lwm4\nLwm3:")
        for k in range(5, c.npg + 1, 2): A(f"s_call_b64 s[96:97], Lpw{k}")
        A("Lwm4:")
    aW, aD, aH = 8, 12, 8
    sW, sD, eW, eD = 41, 42, 45, 46
    def daddr():
        A(ffn_ids)
        A(f"""
        v_lshrrev_b32 v6, 3, v{vLane}
        v_and_b32 v7, 7, v{vLane}
        v_and_b32 v5, 2, v6
        v_lshlrev_b32 v4, 1, v5
        v_xor_b32 v4, v4, v7
        v_mul_u32_u24 v3, 896, v6
        v_lshl_add_u32 v{aD}, v4, 4, v3
        v_add_u32 v{aD+1}, {1*(8*896-1024)}, v{aD}
        v_add_u32 v{aD+2}, {2*(8*896-1024)}, v{aD}
        v_add_u32 v{aD+3}, {3*(8*896-1024)}, v{aD}
        s_lshl_b32 s{eD}, s35, 7
        s_mul_i32 s32, s36, {32*896}
        s_add_u32 s{eD}, s{eD}, s32
        s_mul_i32 s{sD}, s33, {128*896}
        s_add_u32 s{sD}, s{sD}, s{eD}
        s_add_u32 s{eD}, s{eD}, {14*128*896}
        s_lshl_b32 s32, s36, 12
        v_lshl_add_u32 v16, v{vLane}, 4, s32
        v_add_u32 v17, 0x10000, v16
        v_add_u32 v18, 0x20000, v16
        s_lshl_b32 s59, s39, 11
        s_lshl_b32 s58, s34, 10
        s_add_u32 s59, s59, s58
        s_lshl_b32 s58, s36, 8
        s_add_u32 s59, s59, s58
        s_add_u32 s59, s59, {WS_FLAGS}
        s_lshl_b32 s43, s39, 1
        s_add_u32 s43, s43, s34
        s_mul_i32 s43, s43, {224*1024}
        s_lshl_b32 s44, s36, 11
        s_add_u32 s43, s43, s44
        s_add_u32 s43, s43, {WS_ACT+4096}
        v_bfe_u32 v3, v{vLane}, 3, 1
        v_add_u32 v3, s33, v3
        v_cmp_gt_u32 vcc, 14, v3
        v_cndmask_b32 v3, 0, v3, vcc
        v_lshlrev_b32 v3, 13, v3
        v_bfe_u32 v4, v{vLane}, 4, 1
        v_mul_u32_u24 v4, {112*1024}, v4
        v_add3_u32 v3, v3, v4, s43
        v_lshl_add_u32 v19, v7, 7, v3
        """)
        srd(A, 60, 24, W_BYTES)
    def fifo_load(first, n, reg0):
        if c.x_nopre: return
        hf = 64 * 896 if first >= 14 else 0
        assert first >= 14 or first + n <= 14
        A(f"s_add_u32 s43, s{sD}, {hf + (first % 14)*128*896}\ns_add_u32 s44, s{eD}, {hf}")
        for b in range(n):
            A(f"s_cmp_ge_u32 s43, s44\ns_cselect_b32 s34, {14*128*896}, 0\ns_sub_u32 s43, s43, s34")
            for i in range(4): A(f"buffer_load_dwordx4 {v(reg0+16*b+4*i,4)}, v{aD+i}, s[60:63], s43 offen offset:{1024*i}")
            A(f"s_add_u32 s43, s43, {128*896}")
            if c.fdepth is not None: A(f"s_waitcnt vmcnt({c.fdepth})")
    def fifo_put(first, n, reg0):
        if c.x_noput: return
        for b in range(n):
            sl = slot[("D", first + b)]
            for i in range(4): A(f"ds_write_b128 v{16+sl//8}, {v(reg0+16*b+4*i,4)} offset:{(sl%8)*BLK+1024*i}")
    daddr()
    A(f"""
    v_xor_b32 v4, v5, v7
    s_lshl_b32 s43, s36, 2
    v_xor_b32 v4, s43, v4
    v_mul_u32_u24 v3, 3584, v6
    v_lshl_add_u32 v{aW}, v4, 4, v3
    v_add_u32 v{aW+1}, {1*(8*3584-1024)}, v{aW}
    v_add_u32 v{aW+2}, {2*(8*3584-1024)}, v{aW}
    v_add_u32 v{aW+3}, {3*(8*3584-1024)}, v{aW}
    s_lshl_b32 s{eW}, s38, 8
    s_mul_i32 s{sW}, s38, {32*3584}
    s_add_u32 s{sW}, s{sW}, s{eW}
    s_add_u32 s{eW}, s{eW}, {14*32*3584}
    s_cmp_eq_u32 s36, 0
    s_cselect_b32 s20, s20, s22
    s_cselect_b32 s21, s21, s23
    """)
    srd(A, 52, 20, W_BYTES)
    A(f"""
    v_mov_b32 v20, 0
    v_mov_b32 v21, 0
    v_lshrrev_b32 v4, 4, v{vLane}
    v_mul_u32_u24 v4, {KP}, v4
    v_and_b32 v5, 15, v{vLane}
    v_lshl_add_u32 v4, v5, 2, v4
    s_lshl_b32 s43, s36, 15
    v_add_u32 v4, s43, v4
    s_mul_i32 s43, s36, {UPITCH}
    s_add_u32 s43, s43, {UO}
    v_lshl_add_u32 v3, v{vLane}, 3, s43
    """)
    A("s_waitcnt vmcnt(0)\ns_mov_b64 exec, 1\nglobal_store_dword v22, v23, s[30:31] sc0 sc1\ns_mov_b64 exec, -1")
    A(f"s_barrier\nds_write_b32 v4, v20 offset:{KB0}\nds_write_b64 v3, v[20:21]")
    if c.lf_at == 'B': fifo_load(14, 6, 24)
    A("s_waitcnt lgkmcnt(0)\ns_barrier")
    def dma(kind, idx, i):
        if kind == "F":
            if i == 0:
                if idx == 14: A(f"s_add_u32 s43, s{sD}, {64*896}\ns_add_u32 s44, s{eD}, {64*896}")
                A(f"s_cmp_ge_u32 s43, s44\ns_cselect_b32 s35, {14*128*896}, 0\ns_sub_u32 s43, s43, s35")
            A(f"buffer_load_dwordx4 {v(24+16*(idx-14)+4*i,4)}, v{aD+i}, s[60:63], s43 offen offset:{1024*i}")
            if i == 3: A(f"s_add_u32 s43, s43, {128*896}")
            return
        base_ = slot[(kind, idx)] * BLK
        a0, r0, s, e, step = {"W": (aW, 52, sW, eW, 32*3584), "D": (aD, 60, sD, eD, 128*896), "H": (4, 48, 40, 47, HS)}[kind]
        if i == 0:
            if idx == 14:
                A(f"s_add_u32 s{s}, s{s}, 128\ns_add_u32 s{e}, s{e}, 128")
            A(f"s_add_u32 m0, s32, {base_}\ns_add_u32 s33, s{s}, {step}")
        A(f"buffer_load_dwordx4 v{a0+i}, s[{r0}:{r0+3}], s{s} offen offset:{1024*i}{' sc1' if kind == 'H' else ''} lds")
        if i == 0: A(f"s_cmp_ge_u32 s33, s{e}\ns_cselect_b32 s34, {14*step}, 0")
        if i == 3: A(f"s_sub_u32 s{s}, s33, s34")
    if c.x_quietL: A('s_sleep 60')
    for x in issue[-2]: dma(*x)
    assert c.lf_at == 'C'
    fifo_load(14, 6, 24)
    A(f"""
    v_lshrrev_b32 v2, 4, v{vLane}
    v_and_b32 v3, 15, v{vLane}
    v_lshlrev_b32 v4, 2, v2
    v_xor_b32 v4, v4, v3
    v_lshlrev_b32 v4, 4, v4
    v_and_b32 v3, 1, v2
    v_lshl_add_u32 v4, v3, 12, v4
    v_lshrrev_b32 v2, 1, v2
    v_lshl_add_u32 v4, v2, 14, v4
    v_add_u32 v5, {1*(32768-1024)}, v4
    v_add_u32 v6, {2*(32768-1024)}, v4
    v_add_u32 v7, {3*(32768-1024)}, v4
    s_lshl_b32 s47, s39, 8
    s_lshl_b32 s43, s36, 17
    s_add_u32 s47, s47, s43
    s_add_u32 s40, s38, {c.h0}
    s_cmp_ge_u32 s40, 14
    s_cselect_b32 s43, 14, 0
    s_sub_u32 s40, s40, s43
    s_lshl_b32 s40, s40, 18
    s_add_u32 s40, s40, s47
    s_add_u32 s47, s47, {14*HS}
    """)
    srd(A, 48, 30, XG_BYTES, WS_XG)
    PA.stamp(4)
    A("s_barrier\ns_barrier")
    for x in issue[-1]: dma(*x)
    if c.nlf > 6: fifo_load(20 - c.nlf, c.nlf - 6, 120)
    A(f"s_waitcnt vmcnt({len(issue[-1]) + 4 * (c.nlf - 6)})\ns_barrier")
    for i in range(0, 29):
        for x in issue[i]: dma(*x)
        if i == 3: A(f"s_waitcnt vmcnt({sum(len(issue[k]) for k in range(4))})")
        if wait[i] is not None: A(f"s_waitcnt vmcnt({min(63, wait[i])})")
        A("s_barrier")
    if c.nlf > 6: fifo_put(20 - c.nlf, c.nlf - 6, 120)
    if c.xe:
        A("s_barrier")
        fifo_put(14, 3, 24)
        A("s_barrier")
        fifo_put(17, 3, 72)
    elif c.auxpoll:
        assert c.yb_at <= 26 and c.nlf == 6
        fifo_put(14, 6, 24)
        A("s_barrier")
        poll_issue(PB_, 640); poll_wait(PB_, 640, True)
        if c.touch & 2: A("global_load_dword v2, v19, s[30:31] offset:1024 sc1\ns_barrier")
    else:
        assert c.yb_at <= 26
        fifo_put(14, c.put_0, 24)
        A(f"s_waitcnt lgkmcnt({min(15, 4 * c.put_0)})\ns_barrier")
        fifo_put(14 + c.put_0, c.put_l, 24 + 16 * c.put_0)
        A("s_barrier")
        fifo_put(14 + c.put_0 + c.put_l, 6 - c.put_0 - c.put_l, 24 + 16 * (c.put_0 + c.put_l))
    A("s_waitcnt lgkmcnt(0)")
    if c.phase == 1: Prof(A, 3).flush(5)
    A("s_endpgm")
    A(f".p2align 3\n{auxs}:")
    PA.stamp(1)
    a0 = 90
    A(f"s_mov_b32 s42, 0x3f803f80\nv_and_b32 v4, 56, v{vLane}\ns_lshl_b32 s46, s47, 6\nv_add_u32 v4, s46, v4\nv_mov_b32 v2, {TAGA}")
    A("s_waitcnt lgkmcnt(0)\ns_add_u32 s57, s56, 1\ns_and_b32 s57, s57, 0xffff\ns_or_b32 s57, s57, 0x7f810000\ns_mov_b32 s45, 0")
    for i in range(28):
        z = i < 2
        if i % 4 == 0: A(f"s_waitcnt vmcnt({6-i//4})")
        if i == 4: PA.stamp(2)
        if i == 24: A("ds_read_b64 v[6:7], v2")
        A(f"v_dot2_f32_bf16 v{a0+(i&1)}, v{vRow+i}, s42, {'0' if z else 'v%d' % (a0+(i&1))}")
        A(f"v_dot2_f32_bf16 v{a0+2+(i&1)}, v{vRow+i}, v{vRow+i}, {'0' if z else 'v%d' % (a0+2+(i&1))}")
    A(f"v_add_f32 v{a0}, v{a0}, v{a0+1}\nv_add_f32 v{a0+2}, v{a0+2}, v{a0+3}")
    for op in ("quad_perm:[1,0,3,2]", "quad_perm:[2,3,0,1]", "row_half_mirror"):
        A(f"v_add_f32_dpp v{a0}, v{a0}, v{a0} {op}{DPP}\nv_add_f32_dpp v{a0+2}, v{a0+2}, v{a0+2} {op}{DPP}")
    A(f"""
    v_mul_f32 v{a0}, {f32(1.0/448)}, v{a0}
    v_mul_f32 v{a0+2}, {f32(1.0/448)}, v{a0+2}
    v_fma_f32 v{a0+2}, -v{a0}, v{a0}, v{a0+2}
    v_max_f32 v{a0+2}, 0, v{a0+2}
    v_cvt_pk_bf16_f32 v{a0+2}, v{a0+2}, v{a0+2}
    v_and_b32 v{a0+2}, s43, v{a0+2}
    v_add_f32 v{a0+2}, {f32(1e-5)}, v{a0+2}
    v_cvt_pk_bf16_f32 v{a0+2}, v{a0+2}, v{a0+2}
    v_and_b32 v{a0+2}, s43, v{a0+2}
    v_sqrt_f32 v{a0+2}, v{a0+2}
    v_mov_b32 v{a0+1}, s57
    v_cvt_pk_bf16_f32 v{a0}, v{a0}, v{a0+2}
    Ltg:
    s_waitcnt lgkmcnt(0)
    v_xor_b32 v6, s57, v6
    v_xor_b32 v7, s57, v7
    v_or_b32 v6, v6, v7
    v_cmp_ne_u32 vcc, 0, v6
    s_cbranch_vccz Ltg2
    ds_read_b64 v[6:7], v2
    s_add_u32 s45, s45, 1
    s_cmp_lt_u32 s45, {SPIN}
    s_cbranch_scc1 Ltg
    Ltg2:
    s_mov_b32 exec_lo, 0x01010101
    s_mov_b32 exec_hi, 0x01010101
    global_store_dwordx2 v4, {v(a0,2)}, s[30:31] sc0 sc1
    s_mov_b64 exec, -1
    """)
    PA.stamp(3)
    if base.PROF and c.phase == 1:
        A(f"s_branch {hold}x\n{hold}:")
        for k in (1, 2, 3): PA.stamp(k)
        A(f"{hold}x:")
    else: A(f"{hold}:")
    A("s_setprio 0\ns_barrier")
    daddr()
    sH, eH, sV = 40, 41, 47
    VR = 20
    A(f"""
    v_lshrrev_b32 v6, 4, v{vLane}
    v_and_b32 v7, 15, v{vLane}
    v_lshlrev_b32 v5, 2, v6
    v_xor_b32 v5, v5, v7
    v_lshlrev_b32 v5, 4, v5
    v_and_b32 v7, 1, v6
    v_lshl_add_u32 v5, v7, 12, v5
    v_lshrrev_b32 v6, 1, v6
    v_lshl_add_u32 v{aH}, v6, 14, v5
    v_add_u32 v{aH+1}, {1*(32768-1024)}, v{aH}
    v_add_u32 v{aH+2}, {2*(32768-1024)}, v{aH}
    v_add_u32 v{aH+3}, {3*(32768-1024)}, v{aH}
    s_lshl_b32 s{eH}, s39, 8
    s_lshl_b32 s43, s36, 17
    s_add_u32 s{eH}, s{eH}, s43
    s_lshl_b32 s{sH}, s38, 18
    s_add_u32 s{sH}, s{sH}, s{eH}
    s_add_u32 s{eH}, s{eH}, {14*HS}
    s_mov_b32 s56, 0x7f810000
    s_mov_b32 s{sV}, s{sH}
    """)
    srd(A, 48, 30, XG_BYTES, WS_XG)
    A("s_barrier")
    if c.hf_at == 'B':
        fifo_load(20, 3, 40)
    A("s_barrier")
    if c.x_quietL: A('s_sleep 60')
    if c.hf_at == 'B': fifo_load(23, 5, 88)
    elif c.hf_at == 'C': fifo_load(20, 8, 40)
    else: fifo_load(20, c.hf_c, 40)
    PA.stamp(4)
    A(f"s_barrier\ns_barrier\ns_setprio {c.hprio}")
    def hblock(s, m0expr):
        A(f"s_add_u32 m0, {m0expr}\ns_add_u32 s33, s{s}, {HS}")
        for i in range(4):
            A(f"buffer_load_dwordx4 v{aH+i}, s[48:51], s{s} offen offset:{1024*i} sc1 lds")
            if i == 0: A(f"s_cmp_ge_u32 s33, s{eH}\ns_cselect_b32 s34, {14*HS}, 0")
        A(f"s_sub_u32 s{s}, s33, s34")
    nH = [0]
    def hissue(k):
        for _ in range(k):
            if nH[0] < 14:
                hblock(sH, f"s32, {slot[('H', nH[0])]*BLK}"); nH[0] += 1
    def vread(b):
        if b < nH[0]: A(f"s_waitcnt vmcnt({4*(nH[0]-1-b)})")
        for i in range(4): A(f"ds_read_b128 {v(VR+4*i,4)}, v{16+b//8} offset:{(slot[('H', b)]%8)*BLK+1024*i}")
    def vcheck(b):
        ck = A.label("hv"); ok = A.label("hok"); rp = A.label("hrp")
        last = b + 1 if c.rep_one else max(nH[0], b + 1)
        if c.w8 and b < 12: last = min(last, 12)
        sb = slot[('H', b)]
        A(f"""
        s_mov_b32 s45, 0
        {ck}:
        s_waitcnt lgkmcnt(0)
        v_max3_i32 v2, v{VR+1}, v{VR+3}, v{VR+5}
        v_max3_i32 v3, v{VR+7}, v{VR+9}, v{VR+11}
        v_max3_i32 v2, v2, v{VR+13}, v{VR+15}
        v_max_i32 v2, v2, v3
        v_cmp_le_i32 vcc, s56, v2
        {"s_cmp_eq_u32 s45, 0" if c.x_force else ""}
        {f"s_cbranch_scc1 {rp}f" if c.x_force else ""}
        s_cbranch_vccnz {rp}f
        """)
        cx = Cold(); cx.__enter__()
        A(f"""
        {rp}f:
        s_add_u32 s45, s45, 1
        s_cmp_ge_u32 s45, {SPIN}
        s_cbranch_scc1 {ok}
        s_mov_b32 s43, s{sV}
        s_add_u32 s44, s32, {sb*BLK}
        s_add_u32 s35, s32, {(sb+last-b)*BLK}
        {rp}:
        """)
        hblock(43, "s44, 0")
        A(f"s_add_u32 s44, s44, {BLK}\ns_cmp_lt_u32 s44, s35\ns_cbranch_scc1 {rp}\ns_waitcnt vmcnt({4*(last-1-b) if last == nH[0] else 0})")
        for i in range(4): A(f"ds_read_b128 {v(VR+4*i,4)}, v{16+b//8} offset:{(sb%8)*BLK+1024*i}")
        A(f"s_branch {ck}")
        cx.__exit__()
        A(f"{ok}:\ns_add_u32 s{sV}, s{sV}, {HS}\ns_cmp_ge_u32 s{sV}, s{eH}\ns_cselect_b32 s34, {14*HS}, 0\ns_sub_u32 s{sV}, s{sV}, s34")
    if c.probe:
        hissue(c.probe); vread(0); vcheck(0); hissue(c.h0 - c.probe); vread(1)
    else:
        hissue(c.h0); vread(0); vcheck(0); vread(1)
    A("s_barrier")
    hs = [0] * 14 if c.hl else list(c.hiss) + [1] * 14
    for i in range(0, 13):
        vcheck(i + 1)
        k = hs.pop(0)
        assert i >= 3 or nH[0] + k <= 12
        if i + 2 < 14:
            if nH[0] - (i + 2) < c.hnear: hissue(k); k = 0
            vread(i + 2)
        hissue(k)
        kf = c.hf_c + i - c.hf_p
        if c.hf_at == 'P' and c.hf_c <= kf < 8: fifo_load(20 + kf, 1, 40 + 16 * kf)
        A("s_barrier")
    if c.hf_at == 'P':
        kf = max(c.hf_c, c.hf_c + 13 - c.hf_p)
        if kf < 8: fifo_load(20 + kf, 8 - kf, 40 + 16 * kf)
    assert nH[0] == 14 or c.hl
    lp = A.label("hb")
    A(f"s_setprio 0\ns_mov_b32 s45, {18 if c.xe else 16 if c.auxpoll else 17}\n{lp}:\ns_barrier\ns_sub_u32 s45, s45, 1\ns_cmp_lg_u32 s45, 0\ns_cbranch_scc1 {lp}")
    A("s_waitcnt vmcnt(0)")
    if c.auxpoll:
        if c.psleep: A(f"s_sleep {c.psleep}")
        poll_issue(PA_, 512); poll_wait(PA_, 512, True)
        if c.touch & 1: A("global_load_dword v2, v19, s[30:31] sc1")
        A("s_barrier")
        fifo_put(20, c.put_a, 40)
        A("s_barrier")
        fifo_put(20 + c.put_a, 8 - c.put_a, 40 + 16 * c.put_a)
    else:
        fifo_put(20, c.put_a, 40)
        A("s_barrier")
        fifo_put(20 + c.put_a, 8 - c.put_a, 40 + 16 * c.put_a)
    A("s_waitcnt lgkmcnt(0)")
    if c.phase == 1: Prof(A, 3).flush(5)
    A(f"{end}:\ns_endpgm")
    A.L.extend(cold)
    A(f".p2align 3\n{hlp}:")
    if c.phase == 0: base.PROF = False
    gen_helper(A, c, Prof(A, 4))
    def rnd(l):
        u = np.float32(max(l, 0)).view(np.uint32)
        u = (int(u) + 0x7FFF + ((int(u) >> 16) & 1)) & 0xFFFF0000
        return int(np.uint32(u).view(np.float32))
    ad = [[(rnd(8 * b - 3 + r) & 7) * TP + (rnd(8 * b - 3 + r) >> 3) * 4 for r in range(12)] for b in range(256)]
    A(f".p2align 7\n.type {tab},@object\n{tab}:")
    for b in range(256): A(".long " + ", ".join("0x%08x" % (ad[b][2*k] | ad[b][2*k+1] << 16) for k in range(4)))
    for b in range(256): A(".long " + ", ".join("0x%08x" % (ad[b][2*k] | ad[b][2*k+1] << 16) for k in range(4, 6)))
    A(f".size {tab}, {256*24}")
    return kernel_desc(name, 168, 102)
```

```python
from fx import *
variant("n1", prof=False)
variant("n2", prof=False, put_a=5)
variant("n3", prof=False, probe=2, h0=6)
variant("n4", prof=False, gat_issue=8, gat_check=10, con_write=12, ca_load=11, cs_issue=6)
variant("n5", prof=False, e1_last=21, drain0=(21,25), pollA=24, chkA=27, poll0=27)
```

```python
from base import *
import base
from ka import load_ptrs, cmul, cexp
import numpy as np
WS_E = 0x4000
WS_PZ = 0x5000
WS_XG = 0xA00000
XG_BYTES = 224 * 16384
REG = 16384
TP, GP = 1056, 272
KP = 4160
KB0 = 8704
UO, UPITCH = 74240, 4608
PARO = 98304
XT = 140288
TAGA = XT + 8192
BLK = 8192
NSL = 20
CON = 19 * BLK
F_LDS = NSL * BLK
GK0 = -2.0 * LOG2E * 0.7978845608028654
GK1 = GK0 * 0.044715
SPIN = 1 << 18
HS = 16 * 16384

class Cfg:
    code_bytes = 49152
    prio_mid = 26
    poll_late = 0
    e1_first, e1_last = 15, 21
    e1_packed = False
    drain0 = (21, 25)
    pollA, chkA = 24, 27
    earlyT = (4, 1)
    poll0 = 28
    ya_at, yb_at = 18, 25
    put_a = 5
    pace1, pace2, pace = 2, 1, {}
    pa_early = False
    g_pre = 0
    tdepth, tdepth2 = 22, 16
    gate_ahead = {14: 14, 28: 4, 42: 12}
    pollT1 = (20, 28)
    capP = 8
    caps = {}
    gat_issue, gat_check = 8, 10
    con_write = 12
    il = 2
    stflag = 'sc0 sc1'
    prioB = 2
    h0 = 5
    hiss = (1, 2, 1, 1, 1, 1, 1)
    ca_load = 11
    cs_issue = 7
    hdepth = 1
    fdepth = None
    x_delay = 0
    x_force = False
    backoff = 4
    rep_one = False
    x_nocs = False
    sweepW = False
    sweepD = False
    hramp = 0
    xp_chk = False
    npk = True
    lfifo = (8, 14)
    hprio = 3
    pz_sleep = 4
    hnear = 3
    lf_at = 'C'
    hf_at = 'P'
    poi_at = '0'
    wide_h = True
    xp_at = 0
    gat_split = (3, 4)
    x_nogat = False
    cprio = 3
    nprio = 2
    auxprio = 3
    x_nopre = False
    emode = 0
    csort = True
    probe = 1
    x_quietN = False
    x_quietL = False
    cmin = 5
    cmerge = (0, 2, 4, 6)
    w8 = False
    nlf = 6
    outflag = ''
    hl = True
    x_pad = 0
    wsoff = 0
    hf_c = 4
    hf_p = 10
    xmask = True
    auxpoll = False
    sig_early = False
    psleep = 0
    tpost = True
    cs_back = 16
    lf_c = 3
    lf_d = 0
    lf_i = (7, 12, 13, 14, 27, 28)
    touch = 0
    x_noput = False
    x_notl = False
    selfrd = False
    sweepU = 3
    hsleep = 25
    hwait = None
    x_nocp = False
    warm = False
    npg = 5
    stcost = 8
    xe = False
    x_cnt = False
    put_0, put_l = 6, 0
    x_fine = None
    phase = 1

def schedule(c):
    need = {("W", s): s for s in range(28)}
    last_use = {("W", s): s + 1 for s in range(28)}
    for t in range(28): last_use[("D", t)] = 1000
    hslot = [sl + (2 if c.w8 and sl >= 12 else 0) for sl in range(14)]
    w0 = 12 if c.w8 else 14
    free_at = {sl: (16 + sl if sl < w0 else -2 if sl >= 14 else -1) for sl in range(NSL)}
    slot = {("H", k): hslot[k] for k in range(14)}
    issue = {i: [] for i in range(-2, 29)}
    n = dict(W=0, D=0, H=c.h0 if c.hl else 14)
    for k in range(n["H"], 14): need[("H", k)] = k - 2; last_use[("H", k)] = 15 + k
    nd = 20 - c.nlf
    cur = None
    def pick(i):
        nW, nD = n["W"], n["D"]
        wf = [sl for sl in range(w0, NSL) if free_at[sl] <= i and (sl != 19 or i >= 15 or nW + 1 < c.con_write)]
        canH = n["H"] < 14 and i >= 0 and (not c.w8 or n["H"] < 12 or i >= n["H"] - 10)
        if canH and (n["H"] - 2 <= nW or not wf): return ("H", n["H"]), hslot[n["H"]]
        if nW < 28 and wf: return ("W", nW), wf[0]
        fr = [sl for sl in range(NSL) if free_at[sl] <= i and (sl < w0 or nW == 28)]
        if fr and nD < nd: return ("D", nD), fr[0]
        return None
    for i in range(-2, 29):
        cap = 24 if i < 0 else c.caps.get(i, c.capP)
        while cap > 0:
            if cur is None:
                p = pick(i)
                if p is None: break
                b, sl = p
                slot[b] = sl; free_at[sl] = last_use[b] + 1; n[b[0]] += 1
                if c.w8 and b in (("W", 0), ("W", 1)): free_at[sl] = 28 + b[1]
                cur = [b, 0]
            issue[i].append((cur[0][0], cur[0][1], cur[1])); cur[1] += 1; cap -= 1
            if cur[1] == 4: cur = None
    assert n["D"] == nd and cur is None
    rest = sorted((sl for sl in range(NSL) if free_at[sl] < 1000), key=lambda sl: free_at[sl])
    assert len(rest) == c.nlf
    for k, sl in enumerate(rest): slot[("D", nd + k)] = sl
    for t in range(20, 28): slot[("D", t)] = slot[("D", t - 20)]
    for k in range(c.lf_c + c.lf_d, 6): issue[c.lf_i[k - c.lf_c - c.lf_d]] += [("F", 14 + k, q) for q in range(4)]
    order = [b for i in range(0, 29) for b in issue[i]]
    pos = {b: k for k, b in enumerate(order)}
    wait = {}
    cnt = 0
    for i in range(0, 29):
        cnt += len(issue[i])
        req = [b for b in need if need[b] == i + 1 and b + (3,) in pos]
        wait[i] = None if not req else cnt - 1 - max(pos[b + (3,)] for b in req)
        if i == 28: wait[i] = 0
        assert wait[i] is None or wait[i] >= 0, (i, req)
    return issue, slot, wait

def gen_helper(A, c, P):
    sweep = A.label("Hsw")
    A(f"""
    s_sub_u32 s44, s2, 224
    s_lshr_b32 s45, s44, 3
    s_bfe_u32 s46, s44, 0x20001
    s_lshl_b32 s46, s46, 2
    s_add_u32 s46, s46, s45
    s_and_b32 s44, s44, 1
    s_waitcnt lgkmcnt(0)
    """)
    if c.hsleep: A(f"s_sleep {c.hsleep}")
    if c.hwait:
        off = {"st": 4, "pz": WS_PZ}[c.hwait]
        A(f"""
        s_cmp_lg_u32 s36, 0
        s_cbranch_scc1 Lhw2
        s_load_dword s56, s[30:31], {WS_E}
        s_sub_u32 s47, s2, 32
        s_lshl_b32 s47, s47, {6 if c.hwait == "st" else 3}
        s_add_u32 s47, s47, {off}
        v_mov_b32 v2, s47
        s_mov_b32 s47, 0
        s_waitcnt lgkmcnt(0)
        s_add_u32 s57, s56, 1
        s_and_b32 s57, s57, 0xffff
        s_or_b32 s57, s57, 0x7f810000
        Lhw1:
        s_sleep 8
        global_load_dword v3, v2, s[30:31] sc1
        s_add_u32 s47, s47, 1
        s_cmp_ge_u32 s47, 8
        s_cbranch_scc1 Lhw2
        s_waitcnt vmcnt(0)
        v_cmp_ne_u32 vcc, s57, v3
        s_cbranch_vccnz Lhw1
        Lhw2:
        s_waitcnt vmcnt(0)
        s_barrier
        """)
    A(f"""
    s_cmp_ge_u32 s46, 14
    s_cselect_b32 s47, 2, 0
    s_sub_u32 s46, s46, s47
    v_and_b32 v1, 15, v0
    v_lshrrev_b32 v2, 4, v0
    v_mul_u32_u24 v2, 3584, v2
    v_lshl_add_u32 v2, v1, 4, v2
    s_cmp_ge_u32 s46, 7
    s_cselect_b32 s47, 7, 0
    s_cselect_b32 s48, s22, s20
    s_cselect_b32 s49, s23, s21
    s_sub_u32 s46, s46, s47
    s_mul_i32 s50, s44, 7
    s_add_u32 s46, s46, s50
    s_lshl_b32 s47, s47, 1
    s_add_u32 s52, s46, s47
    s_lshl_b32 s47, s46, 8
    s_mov_b32 s50, {W_BYTES}
    s_mov_b32 s51, 0x20000
    """)
    if c.sweepU:
        A(f"""
        s_lshr_b32 s54, s52, 1
        s_mul_i32 s54, s54, {128*896}
        s_and_b32 s53, s52, 1
        s_lshl_b32 s53, s53, 3
        s_add_u32 s53, s53, s36
        s_mul_i32 s53, s53, {28*128}
        s_add_u32 s54, s54, s53
        v_and_b32 v3, 63, v0
        v_min_u32 v3, 27, v3
        v_lshl_add_u32 v3, v3, 7, s54
        """)
    if c.sweepU & 2: A(f"v_add_u32 v74, {64*896}, v3\nglobal_load_dword v73, v74, s[24:25]")
    for p in range(14):
        A(f"buffer_load_dwordx4 {v(16+4*p,4)}, v2, s[48:51], s47 offen")
        if p < 13: A("s_add_u32 s47, s47, %d" % (32 * 3584))
        if p < c.hramp: A("s_waitcnt vmcnt(0)")
    A("s_mov_b32 s42, 0x00003f80\ns_mov_b32 s43, 0x3f800000")
    if c.sweepU & 1: A("global_load_dword v72, v3, s[24:25]")
    for p in range(14):
        A(f"s_waitcnt vmcnt({13-p+(c.sweepU & 1)})")
        for q in range(4):
            for hl in range(2):
                acc = 4 + 2 * q + hl
                A(f"v_dot2_f32_bf16 v{acc}, v{16+4*p+q}, s{42+hl}, {'0' if p == 0 else 'v%d' % acc}")
    for op in ("v_permlane16_swap_b32", "v_permlane32_swap_b32"):
        for q in range(8): A(f"v_mov_b32 v{16+q}, v{4+q}")
        for q in range(8): A(f"{op} v{4+q}, v{16+q}")
        for q in range(8): A(f"v_add_f32 v{4+q}, v{4+q}, v{16+q}")
    A(f"""
    v_lshrrev_b32 v2, 6, v0
    v_lshlrev_b32 v2, 9, v2
    v_lshl_add_u32 v2, v1, 5, v2
    s_mov_b64 exec, 0xffff
    ds_write_b128 v2, v[4:7]
    ds_write_b128 v2, v[8:11] offset:16
    s_mov_b64 exec, -1
    s_waitcnt lgkmcnt(0)
    s_barrier
    s_cmp_ge_u32 s36, 2
    s_cbranch_scc1 {sweep}
    v_lshlrev_b32 v1, 2, v0
    ds_read2st64_b32 v[4:5], v1 offset0:0 offset1:2
    ds_read2st64_b32 v[6:7], v1 offset0:4 offset1:6
    ds_read2st64_b32 v[8:9], v1 offset0:8 offset1:10
    ds_read2st64_b32 v[10:11], v1 offset0:12 offset1:14
    s_waitcnt lgkmcnt(0)
    v_pk_add_f32 v[4:5], v[4:5], v[6:7]
    v_pk_add_f32 v[8:9], v[8:9], v[10:11]
    v_pk_add_f32 v[4:5], v[4:5], v[8:9]
    v_add_f32 v4, v4, v5
    s_mov_b32 s43, 0xffff0000
    v_cvt_pk_bf16_f32 v5, v4, v4
    v_and_b32 v5, s43, v5
    v_sub_f32 v6, v4, v5
    v_cvt_pk_bf16_f32 v8, v5, v6
    v_and_b32 v7, s43, v8
    v_sub_f32 v6, v6, v7
    v_cvt_pk_bf16_f32 v9, v6, 0
    s_lshl_b32 s46, s52, 10
    s_add_u32 s46, s46, {WS_CS}
    v_lshl_add_u32 v1, v1, 1, s46
    global_store_dwordx2 v1, v[8:9], s[30:31] sc0 sc1
    s_mov_b32 s46, 1
    s_waitcnt vmcnt(0)
    s_atomic_add s46, s[28:29], 0
    {sweep}:
    s_barrier
    """)
    P.stamp(1)
    done = A.label("Hdone")
    A(f"""
    s_cmp_ge_u32 s36, 7
    s_cbranch_scc1 {done}
    v_lshrrev_b32 v2, 3, v0
    v_mul_u32_u24 v2, 3584, v2
    v_and_b32 v3, 7, v0
    v_min_u32 v3, 6, v3
    v_lshl_add_u32 v2, v3, 8, v2
    s_mul_i32 s46, s45, {112*3584}
    s_mul_i32 s47, s44, 1792
    s_add_u32 s46, s46, s47
    v_add_u32 v2, s46, v2
    v_add_u32 v3, {56*3584}, v2
    s_mul_i32 s46, s45, {128*896}
    v_lshl_add_u32 v4, v0, 7, s46
    """)
    def wpass(h):
        for m in (20, 22):
            for r in (2, 3): A(f"global_load_dword v8, v{r}, s[{m}:{m+1}] offset:{128*h}\ns_waitcnt vmcnt({c.hdepth})")
    if c.sweepW: wpass(0); wpass(1)
    for k in range(4 if c.sweepD else 0):
        if k == 3: A(f"s_cmp_ge_u32 s45, 2\ns_cbranch_scc1 {done}")
        A(f"global_load_dword v8, v4, s[24:25]\nv_add_u32 v4, {4*128*896}, v4\ns_waitcnt vmcnt({c.hdepth})")
    A(f"{done}:\ns_waitcnt lgkmcnt(0)")
    P.flush(2)
    A("s_endpgm")

def gen(A, name, c=Cfg, verbose=False):
    issue, slot, wait = schedule(c)
    if verbose:
        for i in range(-2, 29): print(i, ' '.join(k + str(j) + '.' + str(q) for k, j, q in issue[i]), wait.get(i))
        print({k: x for k, x in slot.items() if k[0] == "D"})
    kernel_head(A, name)
    end = A.label("end"); hlp = A.label("hlp"); kw_ = A.label("kw"); nw = A.label("nw"); tab = A.label("tab")
    auxt = A.label("auxt"); auxs = A.label("auxs"); til = A.label("til"); hold = A.label("hold")
    P0 = Prof(A, 1)
    class PH:
        def __init__(s, ph, kid=1): s.on = c.phase == ph; s.P = Prof(A, kid)
        def stamp(s, i):
            if s.on: s.P.stamp(i)
    P = PH(1); PA = PH(1, 3)
    class Bars:
        def __init__(s, marks, n1, kid=1): s.n = 0; s.marks = c.x_fine or marks; s.on = c.phase == 2; s.n1 = n1; s.P = Prof(A, kid)
        def bar(s):
            A("s_barrier")
            if s.on and s.n in s.marks: s.P.stamp(1 + s.marks.index(s.n))
            s.n += 1
        def mark(s, k):
            if s.on and not c.x_fine: s.P.stamp(1 + len(s.marks) + k)
        def fin(s, k=0):
            if c.phase == 0:
                if s.n1 == 13: s.P.flush(1)
                return
            if not s.on: s.P.flush(s.n1); return
            k = 0 if c.x_fine else k
            s.P.stamp(1 + len(s.marks) + k); s.P.flush(2 + len(s.marks) + k)
    cold = []
    class Cold:
        def __enter__(s): s.keep = A.L; A.L = []
        def __exit__(s, *a): cold.extend(A.L); A.L = s.keep
    wst = []
    def target(lab):
        wst.append(lab)
        A(f".p2align 6\n{lab}w:\ns_setpc_b64 s[96:97]\ns_nop 0\n{lab}:")
    A(f"s_cmp_ge_u32 s2, 256\ns_cbranch_scc1 {end}")
    P0.stamp(0)
    load_ptrs(A)
    A(f"s_getpc_b64 s[60:61]\nLpc:")
    vLane, vG, vJ = 1, 2, 3
    per = (c.code_bytes // 128 + 63) // 64
    vRow, vXG = 16, 48
    ffn_ids = """
    s_and_b32 s37, s2, 7
    s_lshr_b32 s38, s2, 3
    s_and_b32 s40, s38, 3
    s_lshr_b32 s39, s37, 1
    s_lshl_b32 s39, s39, 2
    s_add_u32 s39, s39, s40
    s_and_b32 s34, s37, 1
    s_lshr_b32 s35, s38, 2
    s_mul_i32 s38, s34, 7
    s_add_u32 s38, s38, s35
    s_mul_i32 s33, s40, 3
    s_lshl_b32 s37, s35, 1
    s_add_u32 s33, s33, s37
    s_cmp_ge_u32 s33, 14
    s_cselect_b32 s37, 14, 0
    s_sub_u32 s33, s33, s37
    """
    A(f"""
    v_lshrrev_b32 v4, 6, v0
    v_and_b32 v{vLane}, 63, v0
    s_and_b32 s37, s2, 7
    v_readfirstlane_b32 s36, v4
    s_mul_i32 s37, s37, 28
    s_lshr_b32 s38, s2, 3
    s_add_u32 s37, s37, s38
    s_mov_b32 s43, 0xffff0000
    s_cmp_lt_u32 s36, 8
    s_cbranch_scc1 {kw_}
    s_setprio {c.auxprio}
    v_lshrrev_b32 v5, 3, v{vLane}
    v_and_b32 v6, 7, v{vLane}
    v_mul_u32_u24 v7, 896, v5
    s_cmp_lt_u32 s36, 10
    s_cbranch_scc1 {til}
    s_and_b32 s36, s36, 1
    s_lshr_b32 s62, s2, 2
    s_and_b32 s62, s62, 62
    s_add_u32 s62, s62, s36
    s_mul_i32 s62, s62, {per*128}
    v_min_u32 v10, {per-1}, v{vLane}
    v_lshl_add_u32 v10, v10, 7, s62
    v_min_u32 v10, Lcode_end-Lpc-4, v10
    global_load_dword v99, v10, s[60:61]
    s_mul_i32 s46, s36, 28
    s_add_u32 s46, s46, s38
    s_cmp_ge_u32 s2, 224
    s_cbranch_scc1 {end}
    s_and_b32 s47, s2, 7
    s_lshl_b32 s47, s47, 5
    s_add_u32 s47, s47, s46
    s_mul_i32 s48, s47, {8*896}
    v_lshl_add_u32 v8, v6, 4, v7
    v_add_u32 v8, s48, v8
    s_cmp_ge_u32 s46, 32
    s_waitcnt lgkmcnt(0)
    s_cbranch_scc1 {hold}
    s_load_dword s56, s[30:31], {WS_E}
    """)
    for i in range(7): A(f"global_load_dwordx4 {v(vRow+4*i,4)}, v8, s[4:5] offset:{128*i}")
    A(f"""
    s_branch {auxs}
    {til}:
    s_cmp_ge_u32 s2, 224
    s_cbranch_scc1 {end}
    s_and_b32 s36, s36, 1
    s_mul_i32 s46, s37, 9363
    s_lshr_b32 s46, s46, 16
    s_mul_i32 s47, s46, 7
    s_sub_u32 s47, s37, s47
    s_lshl_b32 s46, s46, 1
    s_add_u32 s46, s46, s36
    s_mul_i32 s49, s46, {32*896}
    s_lshl_b32 s48, s47, 7
    s_add_u32 s49, s49, s48
    s_lshl_b32 s47, s47, 19
    s_lshl_b32 s46, s46, 8
    s_add_u32 s51, s47, s46
    s_lshl_b32 s46, s36, 12
    s_add_u32 s46, s46, {XT}
    s_mov_b32 m0, s46
    v_lshrrev_b32 v4, 1, v5
    v_xor_b32 v4, v4, v6
    v_lshl_add_u32 v12, v4, 4, v7
    v_xor_b32 v4, 4, v4
    v_lshl_add_u32 v13, v4, 4, v7
    v_add_u32 v13, {8*896-1024}, v13
    v_add_u32 v14, {16*896-2048}, v12
    v_add_u32 v15, {16*896-2048}, v13
    s_mov_b32 s34, {X_BYTES}
    s_mov_b32 s35, 0x20000
    s_waitcnt lgkmcnt(0)
    s_mov_b32 s32, s4
    s_mov_b32 s33, s5
    """)
    for i in range(4): A(f"buffer_load_dwordx4 v{12+i}, s[32:35], s49 offen offset:{1024*i} lds")
    A(f"s_load_dword s57, s[30:31], {WS_E}")
    A(f"s_branch {auxt}\n{kw_}:\ns_cmp_ge_u32 s2, 224\ns_cbranch_scc1 {hlp}")
    vP, vDT = 8, 12
    a2, b2 = 14, 15
    w1, w256, w2, w512 = 16, 18, 20, 22
    tA, tB, tC = 24, 26, 28
    G, G2, Hh, W4, HT, CV = 30, 46, 62, 68, 70, 78
    vTB, vA, vBc, vRA = 88, 94, 95, 96
    A(f"""
    v_mov_b32 v{vP}, 0
    v_mov_b32 v{vP+1}, 0
    v_mov_b32 v{vP+2}, 0
    v_mov_b32 v{vP+3}, 0
    s_lshl_b32 s48, s37, 10
    v_lshl_add_u32 v4, v0, 1, s48
    s_lshl_b32 s48, s37, 2
    s_lshl_b32 s56, s36, 14
    s_mov_b32 m0, s56
    s_lshr_b32 s38, s36, 2
    s_add_u32 s62, s60, {tab}-Lpc+2048
    s_addc_u32 s63, s61, 0
    s_waitcnt lgkmcnt(0)
    s_load_dword s52, s[14:15], s48
    global_load_short_d16_hi v{vP}, v4, s[6:7]
    global_load_short_d16_hi v{vP+1}, v4, s[8:9]
    global_load_short_d16_hi v{vP+2}, v4, s[10:11]
    global_load_short_d16_hi v{vP+3}, v4, s[12:13]
    s_load_dword s53, s[16:17], s48
    """)
    P.stamp(1)
    A(f"""
    v_bfe_u32 v{vG}, v0, 5, 1
    v_and_b32 v{vJ}, 31, v0
    s_lshl_b32 s46, s36, 15
    v_mul_u32_u24 v4, {GP}, v{vJ}
    v_lshl_add_u32 v4, v{vG}, 4, v4
    v_add_u32 v{vRA}, s46, v4
    s_bfe_u32 s39, s36, 0x10001
    s_and_b32 s40, s36, 1
    s_lshl_b32 s48, s39, 15
    s_lshl_b32 s47, s40, 8
    s_add_u32 s48, s48, s47
    s_add_u32 s48, s48, {KB0+64-24}
    v_and_b32 v4, 3, v0
    v_sub_u32 v4, 3, v4
    v_mul_u32_u24 v4, {KP}, v4
    v_bfe_u32 v5, v0, 2, 2
    v_lshl_add_u32 v4, v5, 3, v4
    v_bfe_u32 v5, v0, 4, 2
    v_lshl_add_u32 v4, v5, 4, v4
    v_add_u32 v{vA}, s48, v4
    s_mul_i32 s48, s39, {UPITCH}
    s_sub_u32 s48, s48, s47
    s_add_u32 s48, s48, {UO+512+16-192}
    v_and_b32 v4, 15, v0
    v_lshlrev_b32 v4, 5, v4
    v_lshlrev_b32 v5, 4, v5
    v_sub_u32 v4, v4, v5
    v_add_u32 v{vBc}, s48, v4
    s_add_u32 s64, s30, {WS_XG}
    s_addc_u32 s65, s31, 0
    s_mov_b32 s66, {XG_BYTES}
    s_mov_b32 s67, 0x20000
    s_and_b32 s47, s36, 3
    s_lshl_b32 s47, s47, 12
    v_lshl_add_u32 v97, v{vLane}, 4, s47
    s_lshl_b32 s44, s37, 14
    s_mov_b32 s54, {f32(8.0)}
    s_mov_b32 s55, {f32(256.0)}
    s_lshl_b32 s46, s38, 4
    v_mov_b32 v{vDT}, {f32(LOG2E)}
    s_cmp_lt_u32 s36, 4
    s_cbranch_scc1 Lnoprio
    s_setprio 1
    Lnoprio:
    s_waitcnt lgkmcnt(0)
    s_lshr_b32 s52, s52, s46
    s_lshl_b32 s52, s52, 16
    v_mul_f32 v{vDT}, s52, v{vDT}
    v_exp_f32 v{vDT}, v{vDT}
    v_cvt_pk_bf16_f32 v{vDT}, v{vDT}, v{vDT}
    v_and_b32 v{vDT}, s43, v{vDT}
    s_and_b32 s59, s53, s43
    s_lshl_b32 s58, s53, 16
    v_add_f32 v6, v{vDT}, v{vDT}
    """)
    P.stamp(2)
    A(f"""
    s_waitcnt vmcnt(2)
    v_mul_f32 v4, {f32(LOG2E)}, v{vP}
    v_exp_f32 v4, v4
    v_mul_f32 v{b2}, v{vP+1}, v{vDT}
    v_cvt_pk_bf16_f32 v4, v4, v4
    v_and_b32 v4, s43, v4
    v_mul_f32 v{a2}, v4, v{vDT}
    v_mul_f32 v{b2}, 0.15915494, v{b2}
    v_mul_f32 v{a2}, {f32(-LOG2E)}, v{a2}
    """)
    P.stamp(3)
    nb_ = [0]
    vPX, vPS_, vPA = 100, 116, 97
    xp = [f"buffer_load_dwordx4 {v(vPX+4*q,4)}, v{vPA}, s[64:67], s44 offen offset:{1024*q} sc1" for q in range(4)]
    xp += [f"global_load_dwordx4 {v(vPS_+4*q,4)}, v{vPA}, s[30:31] offset:{1024*q} sc1" for q in range(4)]
    def put(src, row, neg):
        r = CV + (nb_[0] & 7); nb_[0] += 1
        x = [f"v_cvt_pk_bf16_f32 v{r}, v{src}, {'-' if neg else ''}v{src+1}", f"ds_write_addtid_b32 v{r} offset:{row*GP}"]
        if nb_[0] == c.prio_mid: x[1] += "\ns_setprio 0"
        if nb_[0] == c.xp_at: x[1] += "\ns_cmp_lt_u32 s36, 4\ns_cbranch_scc1 Lnoxp\n" + "\n".join(xp) + "\nLnoxp:"
        return x
    def spread(puts, work):
        o = []
        while puts or work:
            p = puts.pop(0) if puts else None
            if p: o.append(p[0])
            if work: o += work.pop(0)
            if p: o.append(p[1])
        return o
    GR = 32
    for l in cexp(Hh, a2, b2, "s54", tA): A(l)
    A(f"v_mov_b32 v{CV+8}, 0x3f80\nds_write_addtid_b32 v{CV+8}")
    for l in cmul(Hh+2, Hh, Hh) + cmul(Hh+4, Hh+2, Hh) + cmul(W4, Hh+2, Hh+2): A(l)
    ex = merge(cexp(w1, a2, b2, None, tB), cexp(w256, a2, b2, "s55", tC))
    ex += ["s_waitcnt vmcnt(0)", f"v_mul_f32 v{G}, v{vP+2}, v6", f"v_mul_f32 v{G+1}, v{vP+3}, v6",
           "v_min_u32 v5, 255, v0\nv_lshlrev_b32 v6, 4, v5", "v_lshlrev_b32 v5, 3, v5",
           f"global_load_dwordx4 {v(vTB,4)}, v6, s[62:63] offset:-2048", f"global_load_dwordx2 {v(vTB+4,2)}, v5, s[62:63] offset:2048"]
    ex += cmul(w2, w1, w1) + cmul(G+2, G, w1) + cmul(w512, w256, w256)
    cur = [Hh, Hh+2, Hh+4, W4]; nxt = [HT, HT+2, HT+4, HT+6]; alt = [G2, G2+2, G2+4, G2+6]
    j = 1
    while j < 32:
        pend = [put(cur[r], j + r, False) for r in range(4) if j + r < 32]
        wk = [cmul(nxt[r], cur[r], W4) + [ex.pop(0) for _ in range(1) if ex] for r in range(4) if j + 4 + r < 32]
        if j + 4 >= 32: wk = [cmul(G+2*i, G+2*(i-2), w2) for i in range(2, 5)]
        for l in spread(pend, wk): A(l)
        cur, nxt = nxt, (alt if nxt[0] == HT else [HT, HT+2, HT+4, HT+6])
        j += 4
    assert not ex
    wk = [cmul(G+2*i, G+2*(i-2), w2) for i in range(5, 8)] + [cmul(G2+2*k, G+4*k, w256) for k in range(4)] + [cmul(G2+8, G, w512)]
    for l in spread([put(G+2*i, GR+i, True) for i in range(8)], wk): A(l)
    wk = [cmul(G2+10, G+8, w512), cmul(G2+12, G2, w512), cmul(G2+14, G2+4, w512), cmul(G, G2+8, w512), cmul(G+2, G2+12, w512), cmul(G+4, G, w512), cmul(G+6, G+2, w512), cmul(G+8, G+4, w512)]
    for l in spread([put(G2+2*i, GR+8+i, True) for i in range(8)], wk): A(l)
    for l in spread([put(G+2*i, GR+16+i, True) for i in range(5)], []): A(l)
    P.stamp(4)
    A(f"s_cmp_ge_u32 s36, 4\ns_cbranch_scc1 {nw}\ns_branch Lmw\n.p2align 12")
    target("Lmw")
    vACC, vEA, FR, TA_ = 8, 30, 100, 44
    tabprep = [f"s_lshl_b32 s46, s36, 15", f"v_lshl_add_u32 v4, v{vJ}, 2, s46", f"v_mul_u32_u24 v5, {4*TP}, v{vG}", "v_add_u32 v5, v5, v4", f"v_xor_b32 v7, 1, v{vG}"]
    tmin = []
    for b in range(4):
        o0 = 2 * b * TP + 128; o1 = 4 * (b & 1) * TP + 256 + 128 * (b >> 1)
        tabprep += [f"v_mul_u32_u24 v{TA_+b}, {abs(o1-o0)}, v{vG if o1 > o0 else 7}", f"v_add_u32 v{TA_+b}, v{TA_+b}, v4"]
        tmin.append(min(o0, o1))
    tabprep += [f"v_lshl_add_u32 v{TA_+4}, v{vG}, 9, v4", "s_waitcnt vmcnt(0)"]
    for r in range(11):
        tabprep += [f"v_and_b32 v{vEA+r}, 0xffff, v{vTB+(r>>1)}" if r % 2 == 0 else f"v_lshrrev_b32 v{vEA+r}, 16, v{vTB+(r>>1)}"]
    tabprep += ["v_cmp_ne_u32 s[44:45], 0, v0", f"v_lshlrev_b32 v6, 4, v0"]
    A("s_waitcnt lgkmcnt(0)\ns_barrier")
    P.stamp(5)
    def frd(n):
        b = FR + 8 * (n & 7); o = (n >> 3) * REG + 32 * (n & 7)
        return f"ds_read_b128 {v(b,4)}, v{vRA} offset:{GR*GP+o}\nds_read_b128 {v(b+4,4)}, v{vRA} offset:{o}"
    for n in range(6): A(frd(n))
    for n in range(16):
        b0 = FR + 8 * (n & 7)
        A(f"s_waitcnt lgkmcnt({2*min(5, 15-n)})\nv_mfma_f32_32x32x16_bf16 {v(vACC,16)}, {v(b0,4)}, {v(b0+4,4)}, {'0' if n == 0 else v(vACC,16)}")
        if n + 6 < 16: A(frd(n + 6))
        for l in tabprep[2*n:2*n+2]: A(l)
    assert len(tabprep) <= 32
    vW, vR, vO = 97, 98, 99
    A(f"""
    s_lshl_b32 s46, s36, 12
    s_add_u32 s46, s46, {PARO}
    v_lshl_add_u32 v{vW}, v{vLane}, 4, s46
    v_xor_b32 v{vR}, 0x1000, v{vW}
    s_lshl_b32 s46, s40, 10
    s_lshl_b32 s47, s39, 15
    s_add_u32 s47, s47, s46
    v_lshl_add_u32 v3, v{vLane}, 4, s47
    """)
    for b in range(4): A(f"ds_write_b32 v5, v{vACC+b} offset:{TP*b}")
    for b in range(4): A(f"ds_write_b32 v{TA_+b}, v{vACC+4+b} offset:{tmin[b]}")
    A(f"s_mov_b32 exec_hi, 1\nds_write_b32 v{TA_+4}, v{vACC+8} offset:512\ns_mov_b32 exec_hi, 0")
    for b in range(1, 4): A(f"ds_write_b32 v{TA_+4}, v{vACC+8+b} offset:{512+128*b}")
    A("s_mov_b32 exec_hi, -1\ns_waitcnt lgkmcnt(0)\ns_barrier")
    P.stamp(6)
    EV, CB = 100, 44
    for r in range(11): A(f"ds_read2st64_b32 {v(EV+2*r,2)}, v{vEA+r} offset0:0 offset1:128\nv_add_u32 v{vEA+r}, 0x10000, v{vEA+r}")
    for r in range(11): A(f"ds_read2st64_b32 {v(EV+22+2*r,2)}, v{vEA+r} offset0:0 offset1:128")
    for ch in range(2):
        E = EV + 22 * ch
        A(f"s_waitcnt lgkmcnt({11 if ch == 0 else 4})")
        for r in range(11): A(f"v_add_f32 v{E+2*r}, v{E+2*r}, v{E+2*r+1}")
        for r in range(3): A(f"v_cndmask_b32 v{E+2*r}, 0, v{E+2*r}, s[44:45]")
        for cp in range(4):
            b = CB + 16 * ch + 4 * cp
            for k in range(4):
                r0 = 3 - cp + 2 * k
                A(f"v_cvt_pk_bf16_f32 v{b+k}, v{E+2*r0}, v{E+2*r0+2}")
            A(f"ds_write_b128 v6, {v(b,4)} offset:{KB0+64+32768*ch+cp*KP}")
    P.stamp(7)
    A("s_waitcnt lgkmcnt(0)\ns_barrier")
    P.stamp(8)
    A(f"s_setprio {c.cprio}")
    AC = 8
    FBs = [40 + 8 * k for k in range(6)] + [100 + 8 * k for k in range(6)]
    def rd(Gi):
        r, n = Gi >> 3, Gi & 7
        b = FBs[Gi % 12]
        return [f"ds_read_b64 {v(b,2)}, v{vA} offset:{512*n+64*r}", f"ds_read_b64 {v(b+2,2)}, v{vA} offset:{512*n+64*r+8}",
                f"ds_read_b128 {v(b+4,4)}, v{vBc} offset:{512*n+64*(3-r)}"]
    def send(t): return f"s_mov_b64 exec, s[{48+2*(t&1)}:{49+2*(t&1)}]\nds_write_b128 v{vW}, {v(AC+4*t,4)} offset:{1024*(t>>1)}\ns_mov_b64 exec, -1"
    for Gi in range(4):
        for l in rd(Gi): A(l)
    A(f"""
    s_lshl_b32 s46, s37, 2
    s_add_u32 s46, s46, s39
    s_lshl_b32 s46, s46, 12
    s_lshl_b32 s47, s40, 9
    s_add_u32 s46, s46, s47
    s_add_u32 s46, s46, {WS_XG}
    v_and_b32 v4, 15, v0
    v_bfe_u32 v5, v0, 4, 2
    v_lshlrev_b32 v4, 5, v4
    v_lshrrev_b32 v6, 1, v5
    v_lshl_add_u32 v4, v6, 4, v4
    v_and_b32 v5, 1, v5
    v_lshl_add_u32 v4, v5, 10, v4
    v_add_u32 v{vO}, s46, v4
    """)
    started = set()
    def cm(r, a, b):
        t = a + b
        cc = v(AC + 4 * t, 4) if t in started else "0"
        started.add(t)
        return f"v_mfma_f32_16x16x32_bf16 {v(AC+4*t,4)}, {v(FBs[(8*r+a)%12],4)}, {v(FBs[(8*r+b)%12]+4,4)}, {cc}"
    def grp(n): return [(a, b) for a in range(n + 1) for b in range(n + 1) if max(a, b) == n and a + b <= 7]
    rq = []; nrd = 12; known = 0
    for Gi in range(28):
        r, n = Gi >> 3, Gi & 7
        rq += rd(Gi + 4)
        while nrd < 3 * (Gi + 1) + c.cmin: A(rq.pop(0)); nrd += 1
        if known < 3 * (Gi + 1):
            want = 3 * (Gi + 1)
            if n in c.cmerge and Gi > 3: want = min(want + 3, nrd - 3)
            A(f"s_waitcnt lgkmcnt({nrd - want})"); known = want
        for (a_, b_) in grp(n):
            A(cm(r, a_, b_))
            if rq: A(rq.pop(0)); nrd += 1
    for l in rq: A(l)
    PR, PP = 148, 116
    odd = A.label("odd"); jn = A.label("jn")
    A(f"s_cmp_eq_u32 s40, 1\ns_cbranch_scc1 {odd}")
    for par in range(2):
        if par:
            for _ in range(c.x_pad // 4): A("s_nop 0")
            target(odd)
        snd = [t for t in range(8) if t % 2 != par]
        def sw(t): return f"ds_write_b128 v{vW}, {v(AC+4*t,4)} offset:{1024*(t>>1)}"
        rest = [p for n in range(4, 8) for p in grp(n)]
        first = [p for p in rest if (p[0] + p[1]) % 2 != par]; last = [p for p in rest if (p[0] + p[1]) % 2 == par]
        A("s_waitcnt lgkmcnt(9)"); got = 4
        for k, p in enumerate(first):
            if max(p) > got: A(f"s_waitcnt lgkmcnt({2 if k > 3 else 3*(7-max(p)) + (1 if k > 1 else 0)})"); got = 7 if k > 3 else max(p)
            A(cm(3, *p))
            if k == 1: A(sw(snd[0]))
            if k == 3: A(sw(snd[1]))
        if got < 7: A("s_waitcnt lgkmcnt(2)")
        for k, p in enumerate(last):
            A(cm(3, *p))
            if k == 2: A(sw(snd[2]))
            if k == 7: A(sw(snd[3]))
        if par == 0: P.stamp(9)
        else: P.stamp(9)
        A("s_waitcnt lgkmcnt(0)\ns_barrier")
        for q in range(4): A(f"ds_read_b128 {v(PR+4*q,4)}, v{vR} offset:{1024*q}\nds_read_b128 {v(PP+4*q,4)}, v3 offset:{2048*q}")
        for q in range(4):
            A(f"s_waitcnt lgkmcnt({6-2*q})")
            k = AC + 4 * (2 * q + par)
            for h in range(2): A(f"v_pk_add_f32 {v(PR+4*q+2*h,2)}, {v(PR+4*q+2*h,2)}, {v(PP+4*q+2*h,2)}")
            for h in range(2): A(f"v_pk_add_f32 {v(PR+4*q+2*h,2)}, {v(PR+4*q+2*h,2)}, {v(k+2*h,2)}")
            o_ = 132 + 2 * q
            A(f"v_cvt_pk_bf16_f32 v{o_}, v{PR+4*q}, v{PR+4*q+1}\nv_cvt_pk_bf16_f32 v{o_+1}, v{PR+4*q+2}, v{PR+4*q+3}")
            if q & 1:
                A(f"v_permlane16_swap_b32 v{o_-2}, v{o_}\nv_permlane16_swap_b32 v{o_-1}, v{o_+1}")
                A(f"global_store_dwordx4 v{vO}, {v(o_-2,4)}, s[30:31] offset:{1024*(q-1)} sc0 sc1")
        if not par: A(f"s_branch {jn}")
    A(f"{jn}:")
    P.stamp(10)
    vB, vAa, vS, vCR, vCA = 8, 10, 12, 14, 16
    vX = 18
    CN, CA, MB = 24, 32, 38
    F = [48, 64, 80]
    ACC = 96
    T1, T2, OUT = 48, 56, 64
    def csetup():
        A(ffn_ids)
        A(f"""
        s_and_b32 s40, s36, 1
        s_bfe_u32 s41, s36, 0x10001
        s_lshr_b32 s49, s36, 2
        v_bfe_u32 v2, v{vLane}, 2, 2
        v_bfe_u32 v3, v{vLane}, 4, 1
        v_lshrrev_b32 v4, 5, v{vLane}
        v_and_b32 v6, 3, v{vLane}
        v_lshl_add_u32 v5, v4, 3, v2
        v_lshlrev_b32 v7, 8, v5
        v_lshl_add_u32 v7, v6, 3, v7
        v_lshl_add_u32 v7, v3, 5, v7
        s_lshl_b32 s42, s40, 1
        s_add_u32 s42, s42, s41
        v_xor_b32 v{vB}, s42, v2
        v_lshl_add_u32 v{vB}, v{vB}, 6, v7
        v_xor_b32 v{vB+1}, 64, v{vB}
        v_add_u32 v17, 0x10000, v{vB}
        v_add_u32 v46, 0x10000, v{vB+1}
        s_lshl_b32 s42, s34, 1
        s_add_u32 s42, s42, s40
        v_xor_b32 v{vX}, s42, v2
        v_lshl_add_u32 v{vX}, v{vX}, 6, v7
        v_lshlrev_b32 v7, 7, v5
        v_lshl_add_u32 v7, v6, 3, v7
        v_lshl_add_u32 v7, v3, 12, v7
        v_lshrrev_b32 v5, 1, v2
        v_lshl_add_u32 v5, v3, 1, v5
        s_lshl_b32 s42, s41, 1
        v_xor_b32 v5, s42, v5
        v_lshl_add_u32 v7, v5, 5, v7
        v_add_u32 v{vAa}, {12*BLK}, v7
        v_xor_b32 v{vAa+1}, 32, v{vAa}
        s_lshl_b32 s42, s39, 2
        s_lshl_b32 s43, s40, 1
        s_add_u32 s42, s42, s43
        s_add_u32 s43, s42, s41
        s_xor_b32 s44, s43, 1
        s_lshl_b32 s45, s38, 3
        s_lshl_b32 s46, s41, 1
        s_add_u32 s45, s45, s46
        s_lshl_b32 s46, s49, 2
        s_add_u32 s45, s45, s46
        s_lshl_b32 s46, s45, 7
        s_add_u32 s45, s45, {WS_ACT // 1024}
        s_mul_i32 s43, s43, 112
        s_mul_i32 s44, s44, 112
        s_add_u32 s43, s43, s45
        s_add_u32 s44, s44, s45
        s_lshl_b32 s43, s43, 10
        s_lshl_b32 s44, s44, 10
        v_lshl_add_u32 v{vS}, v{vLane}, 4, s43
        v_lshl_add_u32 v{vS+1}, v{vLane}, 4, s44
        v_and_b32 v5, 15, v{vLane}
        v_mul_u32_u24 v7, {F_*8}, v3
        v_lshl_add_u32 v5, v5, 3, v7
        s_add_u32 s46, s46, {WS_CS}
        v_add_u32 v{vCA}, s46, v5
        v_and_b32 v5, 31, v{vLane}
        s_lshl_b32 s42, s40, 1
        s_add_u32 s42, s42, s41
        s_lshl_b32 s43, s42, 9
        s_add_u32 s43, s43, {CON}
        v_lshl_add_u32 v{vCR}, v5, 4, s43
        v_xor_b32 v{vCR+1}, 512, v{vCR}
        s_lshl_b32 s43, s39, 11
        s_lshl_b32 s44, s41, 8
        s_add_u32 s43, s43, s44
        s_add_u32 s43, s43, {WS_FLAGS}
        s_lshl_b32 s44, s34, 10
        s_add_u32 s59, s43, s44
        s_lshl_b32 s44, s40, 10
        s_add_u32 s58, s43, s44
        s_lshl_b32 s44, s49, 9
        s_add_u32 s58, s58, s44
        v_mov_b32 v{CA+4}, 0
        v_mov_b32 v{CA+5}, 0
        v_mov_b32 v{MB+2}, 0
        v_mov_b32 v{MB+3}, 0
        v_mov_b32 v{MB+6}, 0
        v_mov_b32 v{MB+7}, 0
        v_cmp_eq_u32 s[52:53], 0, v4
        s_mov_b32 s47, 0x3f803f80
        s_mov_b32 s48, 0xffff0000
        """)
    caload = [f"global_load_dwordx2 {v(CA,2)}, v{vCA}, s[30:31] sc1", f"global_load_dwordx2 {v(CA+2,2)}, v{vCA}, s[30:31] offset:128 sc1"]
    def preads(p, j):
        s, ks = j >> 1, j & 1
        f = F[j % 3]
        ho = (slot[("H", s)] % 8) * BLK + 4096 * ks
        wo = (slot[("W", 14 * p + s)] - 12) * BLK + 2048 * ks
        o = []
        for kind, i in (("B", 0), ("A", 0), ("B", 1), ("A", 1)):
            ab = vB + i if s < 8 else (17, 46)[i]
            if kind == "B": o += [f"ds_read_b64_tr_b16 {v(f+8+4*i,2)}, v{ab} offset:{ho}", f"ds_read_b64_tr_b16 {v(f+10+4*i,2)}, v{ab} offset:{ho+1024}"]
            else: o += [f"ds_read_b64_tr_b16 {v(f+4*i,2)}, v{vAa+i} offset:{wo}", f"ds_read_b64_tr_b16 {v(f+2+4*i,2)}, v{vAa+i} offset:{wo+512}"]
        return o
    def pmfma(j, first=False):
        f = F[j % 3]
        return [f"v_mfma_f32_32x32x16_bf16 {v(ACC+32*t+16*rt,16)}, {v(f+4*t,4)}, {v(f+8+4*rt,4)}, {'0' if first else v(ACC+32*t+16*rt,16)}" for (t, rt) in ((0, 0), (0, 1), (1, 0), (1, 1))]
    def corr(first):
        return [f"v_mfma_f32_32x32x16_bf16 {v(ACC+32*t+16*rt,16)}, {v(CA+2*t,4)}, {v(MB+4*rt,4)}, {'0' if first else v(ACC+32*t+16*rt,16)}" for t in range(2) for rt in range(2)]
    mkmb = [f"v_cndmask_b32 v{MB+4*rt+k}, 0, v{CN+4*rt+3}, s[52:53]" for rt in range(2) for k in range(2)]
    def inter(m, r):
        per_ = (len(r) + 3) // 4
        for i in range(4):
            A(m[i])
            for l in r[per_*i:per_*(i+1)]: A(l)
    def pstep(p, s):
        for h in range(2):
            A("s_waitcnt lgkmcnt(8)")
            inter(pmfma(2*s - 2 + h, p == 0 and s == 1 and h == 0), preads(p, 2*s + h))
        if p == 0 and s - c.ca_load in (0, 1): A(caload[s - c.ca_load])
    def epi(t, rt, n, packed):
        a = ACC + 32 * t + 16 * rt
        cn = CN + 4 * rt
        o_ = OUT + 4 * (n & 1)
        L = []
        if packed:
            L += [f"v_pk_mul_f32 {v(T1+2*q,2)}, {v(a+2*q,2)}, {v(a+2*q,2)}" for q in range(4)]
            L += [f"v_pk_fma_f32 {v(T1+2*q,2)}, {v(T1+2*q,2)}, {v(cn,2)}, {v(cn,2)} op_sel:[0,1,0] op_sel_hi:[1,1,0]" for q in range(4)]
            L += [f"v_pk_mul_f32 {v(T1+2*q,2)}, {v(T1+2*q,2)}, {v(a+2*q,2)}" for q in range(4)]
            L += [f"v_exp_f32 v{T1+q}, v{T1+q}" for q in range(8)]
            L += [f"v_pk_mul_f32 {v(T2+2*q,2)}, {v(a+2*q,2)}, {v(a+8+2*q,2)}" for q in range(4)]
            L += [f"v_pk_fma_f32 {v(T1+2*q,2)}, {v(T1+2*q,2)}, {v(cn+2,2)}, {v(cn+2,2)} op_sel_hi:[1,0,0]" for q in range(4)]
            L += [f"v_rcp_f32 v{T1+q}, v{T1+q}" for q in range(8)]
            L += [f"v_pk_mul_f32 {v(T2+2*q,2)}, {v(T2+2*q,2)}, {v(T1+2*q,2)}" for q in range(4)]
            L += [f"v_cvt_pk_bf16_f32 v{o_+q}, v{T2+2*q}, v{T2+2*q+1}" for q in range(4)]
        else:
            def st(q):
                return [f"v_mul_f32 v{T1+q}, v{a+q}, v{a+q}", f"v_fma_f32 v{T1+q}, v{T1+q}, v{cn+1}, v{cn}", f"v_mul_f32 v{T1+q}, v{T1+q}, v{a+q}",
                        f"v_exp_f32 v{T1+q}, v{T1+q}", f"v_mul_f32 v{T2+q}, v{a+q}, v{a+8+q}", f"v_fma_f32 v{T1+q}, v{T1+q}, v{cn+2}, v{cn+2}",
                        f"v_rcp_f32 v{T1+q}, v{T1+q}", f"v_mul_f32 v{T2+q}, v{T2+q}, v{T1+q}"]
            for q0 in range(0, 8, c.il):
                xs = [st(q) for q in range(q0, q0 + c.il)]
                for k in range(8): L += [x[k] for x in xs]
                L += [f"v_cvt_pk_bf16_f32 v{o_+q//2}, v{T2+q}, v{T2+q+1}" for q in range(q0, q0 + c.il, 2)]
        L += [f"global_store_dwordx4 v{vS+rt}, {v(o_,4)}, s[30:31] offset:{1024*t} {c.stflag}"]
        return L
    def cost(l): return 2 if l.startswith(("v_exp", "v_rcp", "v_sqrt")) else c.stcost if l.startswith("global_store") else 1
    def signal(t, later=None):
        A(f"s_mov_b32 s70, 1\ns_waitcnt vmcnt({2-2*t if later is None else later})\ns_atomic_add s70, s[30:31], s58\ns_add_u32 s58, s58, 128")
    def poll_issue(r, off):
        A(f"s_mov_b32 s{r}, 0\ns_add_u32 s68, s59, {off}\ns_atomic_add s{r}, s[30:31], s68 glc")
    def poll_wait(r, off, inline=False):
        pl = A.label("poll"); ok = A.label("ok")
        if inline:
            A(f"s_mov_b32 s45, 0\n{pl}:\ns_waitcnt lgkmcnt(0)\ns_cmp_ge_u32 s{r}, 14\ns_cbranch_scc1 {ok}")
            poll_issue(r, off)
            A(f"s_add_u32 s45, s45, 1\ns_cmp_lt_u32 s45, {SPIN}\ns_cbranch_scc1 {pl}\ns_waitcnt lgkmcnt(0)\n{ok}:")
            return
        A(f"s_waitcnt lgkmcnt(0)\ns_cmp_lt_u32 s{r}, 14\ns_cbranch_scc1 {pl}\n{ok}:")
        with Cold():
            A(f"{pl}:\ns_mov_b32 s45, 0\n{pl}b:")
            poll_issue(r, off)
            A(f"s_add_u32 s45, s45, 1\ns_waitcnt lgkmcnt(0)\ns_cmp_ge_u32 s{r}, 14\ns_cbranch_scc1 {ok}\ns_cmp_lt_u32 s45, {SPIN}\ns_cbranch_scc1 {pl}b\ns_branch {ok}")
    PA_, PB_ = 69, 71
    Q = Bars([0, 14, c.drain0[1] + 1, 29], 13)
    AC2, ID, HF = 80, 160, 72
    csetup()
    if c.emode: A(f"s_waitcnt vmcnt(0)\ns_sleep {c.emode}")
    A("s_waitcnt vmcnt(0)\ns_barrier")
    P.stamp(11)
    A(f"""
    s_lshl_b32 s43, s35, 1
    s_add_u32 s43, s43, s41
    s_sub_u32 s43, s43, s38
    s_cselect_b32 s44, 14, 0
    s_add_u32 s43, s43, s44
    s_cmp_ge_u32 s43, 12
    s_cselect_b32 s44, {2 if c.w8 else 0}, 0
    s_add_u32 s43, s43, s44
    s_lshl_b32 s43, s43, 13
    v_add_u32 v{vX}, s43, v{vX}
    v_lshlrev_b32 v7, 3, v4
    v_sub_u32 v7, v5, v7
    v_mov_b32 v{vX+1}, 0x3f80
    v_mov_b32 v{vX+2}, 1.0
    """)
    for j in range(2):
        for i in range(4):
            d0 = 16 * j + 2 * i
            A(f"v_cmp_eq_u32 vcc, {d0}, v7\nv_cmp_eq_u32 s[50:51], {d0+1}, v7\nv_cndmask_b32 v{ID+4*j+i}, 0, v{vX+1}, vcc\nv_cndmask_b32 v{ID+4*j+i}, v{ID+4*j+i}, v{vX+2}, s[50:51]")
    A("s_setprio 2")
    Q.bar()
    P.stamp(12)
    for l in preads(0, 0) + preads(0, 1): A(l)
    for s in range(1, 14):
        Q.bar(); pstep(0, s)
    Q.bar()
    r = [f"ds_read_b128 {v(CN+4*i,4)}, v{vCR+i}" for i in range(2)] + [f"ds_read_b64_tr_b16 {v(HF+2*i,2)}, v{vX} offset:{4096*(i>>1)+1024*(i&1)}" for i in range(4)]
    A("s_waitcnt lgkmcnt(8)"); inter(pmfma(26), r)
    A("s_waitcnt vmcnt(0) lgkmcnt(4)"); inter(pmfma(27), mkmb)
    for l in corr(False): A(l)
    A("s_waitcnt lgkmcnt(0)")
    A("s_setprio 0")
    E1 = []
    for n in range(4): E1 += epi(n >> 1, n & 1, n, c.e1_packed)
    tot = sum(cost(x) for x in E1); per1 = tot / (c.e1_last - c.e1_first + 1); bud = 0.0
    vD, vT = 8, 14
    gsetup = f"""
    v_lshl_add_u32 v7, v4, 2, v2
    v_lshlrev_b32 v7, 7, v7
    v_lshrrev_b32 v{vD}, 1, v2
    v_xor_b32 v{vD}, s41, v{vD}
    v_lshl_add_u32 v7, v{vD}, 6, v7
    v_lshl_add_u32 v7, v3, 5, v7
    v_lshl_add_u32 v7, v6, 3, v7
    s_lshl_b32 s43, s41, 12
    v_add_u32 v{vD}, s43, v7
    v_xor_b32 v{vD+1}, 64, v{vD}
    v_add_u32 v{vD+2}, 0x10000, v{vD}
    v_add_u32 v{vD+3}, 0x10000, v{vD+1}
    v_lshlrev_b32 v{vT}, 4, v{vLane}
    """
    gsetup2 = f"""
    s_lshl_b32 s43, s39, 2
    s_lshl_b32 s44, s34, 1
    s_add_u32 s43, s43, s44
    s_add_u32 s43, s43, s40
    s_mul_i32 s55, s43, {112*1024}
    s_mul_i32 s43, s43, {32*896}
    s_lshl_b32 s44, s35, 7
    s_add_u32 s43, s43, s44
    s_lshl_b32 s44, s41, 6
    s_add_u32 s43, s43, s44
    v_mul_u32_u24 v5, 896, v5
    v_lshl_add_u32 v5, v4, 4, v5
    v_add_u32 v5, s43, v5
    s_lshl_b32 s44, s41, 11
    s_add_u32 s55, s55, s44
    s_lshl_b32 s4, s33, 13
    s_add_u32 s4, s4, s55
    s_add_u32 s54, s55, {14*8192}
    s_add_u32 s64, s30, {WS_ACT}
    s_addc_u32 s65, s31, 0
    s_mov_b32 s66, {ACT_BYTES}
    s_mov_b32 s67, 0x20000
    """
    gsetup3 = "\n".join(f"s_add_u32 s{4+k}, s{3+k}, 8192\ns_cmp_ge_u32 s{4+k}, s54\ns_cselect_b32 s{4+k}, s55, s{4+k}" for k in range(1, 14))
    TRQ = [96 + 4 * k for k in range(18)] + [16, 20, 24, 28]
    DB = [32, 40, 48, 56]
    AO = [AC2, 64]
    seq = [(14 * hf + b, j) for hf in range(2) for j in range(2) for b in range(14)]
    cons = [(b, j) for b in range(14) for j in range(2)] + seq[28:]
    freeq = list(TRQ); treg = {}
    def tload(n):
        b, j = seq[n]
        if (b, j) not in treg: treg[(b, j)] = freeq.pop(0)
        o = []
        if n == 28: o += [f"v_add_u32 v15, 4096, v{vT}"]
        if c.x_notl and n >= 28: return o
        o += [f"buffer_load_dwordx4 {v(treg[(b, j)],4)}, v{vT if n < 28 else 15}, s[64:67], s{4+b%14} offen offset:{1024*j} sc1"]
        return o
    nst = 0; early = 0
    assert c.drain0[1] <= c.chkA and c.e1_last + 3 <= c.chkA and sum(c.earlyT) <= 14
    for i in range(15, 29):
        Q.bar()
        if i == c.drain0[0]:
            assert nst >= 2
            signal(0, nst - 2)
        if i >= c.e1_first:
            bud += per1
            while E1 and (bud > 0 or i == c.e1_last):
                x = E1.pop(0); A(x); bud -= cost(x)
                if x.startswith("global_store"): nst += 1
        if i == c.pollA: poll_issue(PA_, 0)
        if i == c.e1_last + 1: A(gsetup)
        if i == c.e1_last + 2: A(gsetup2)
        if i == c.e1_last + 3: A(gsetup3)
        if i == c.chkA: A("s_waitcnt lgkmcnt(0)")
        if i == c.drain0[1]:
            signal(1)
            A(f"v_add_u32 v{vD+4}, 0x20000, v{vD}\nv_add_u32 v{vD+5}, 0x20000, v{vD+1}")
        if i == c.poll0: poll_issue(PB_, 128)
        if 0 <= i - c.chkA < len(c.earlyT):
            sk = A.label("et")
            A(f"s_cmp_lt_u32 s{PA_}, 14\ns_cbranch_scc1 {sk}")
            for _ in range(c.earlyT[i - c.chkA]):
                for l in tload(early): A(l)
                early += 1
            A(f"{sk}:")
    Q.bar()
    A(f"v_mfma_f32_32x32x16_bf16 {v(AC2,16)}, {v(ID,4)}, {v(HF,4)}, 0")
    A(f"v_mfma_f32_32x32x16_bf16 {v(AC2,16)}, {v(ID+4,4)}, {v(HF+4,4)}, {v(AC2,16)}")
    sk = A.label("et")
    A(f"s_cmp_lt_u32 s{PA_}, 14\ns_cbranch_scc1 {sk}c\n{sk}:")
    with Cold():
        A(f"{sk}c:")
        poll_wait(PA_, 0, True)
        for n in range(early):
            for l in tload(n): A(l)
        A(f"s_branch {sk}")
    def dreads(n):
        b, j = cons[n]
        sd = slot[("D", b)]; f = DB[n & 3]
        o = []
        for nt in range(2):
            do = (sd % 8) * BLK + 2048 * j
            ad = vD + 2 * (sd // 8) + nt
            o += [f"ds_read_b64_tr_b16 {v(f+4*nt,2)}, v{ad} offset:{do}", f"ds_read_b64_tr_b16 {v(f+4*nt+2,2)}, v{ad} offset:{do+1024}"]
        return o
    def gm(n):
        f = DB[n & 3]
        return [f"v_mfma_f32_32x32x16_bf16 {v(AO[nt],16)}, {v(f+4*nt,4)}, {v(treg[cons[n]],4)}, {'0' if (n == 0 and nt == 1) else v(AO[nt],16)}" for nt in (1, 0)]
    issued = early; mk = 0
    while issued < 14:
        for l in tload(issued): A(l)
        issued += 1
    poll_wait(PB_, 128, True)
    Q.mark(mk); mk += 1
    lim = 28
    for n in range(56):
        if n == 14 and not c.auxpoll: A("s_waitcnt lgkmcnt(0)\ns_barrier")
        for y in (c.ya_at, c.yb_at):
            if n == y:
                if c.auxpoll and y == c.ya_at and y < 16: A("s_waitcnt lgkmcnt(0)")
                A("s_barrier")
                Q.mark(mk); mk += 1
                lim += 14
        k = 99 if n == 0 else c.pace.get(n, c.pace1 if n < 28 else c.pace2)
        while issued < lim and freeq and k > (2 if c.tpost and n else 0):
            for l in tload(issued): A(l)
            issued += 1; k -= 1
        assert seq.index(cons[n]) < issued
        if n == 0:
            for l in dreads(0) + dreads(1): A(l)
        if n == c.g_pre:
            if c.xe: A("s_barrier")
            Q.mark(mk); mk += 1
        if c.auxpoll and n == 32: A("s_barrier")
        r = dreads(n + 2) if n + 2 < 56 else []
        A(f"s_waitcnt vmcnt({issued-1-seq.index(cons[n])}) lgkmcnt({4 if n < 55 else 0})")
        if n in (28, 42): Q.mark(mk); mk += 1
        m = gm(n)
        for i in range(2):
            A(m[i])
            if c.tpost and issued < lim and freeq and k > 1 - i:
                for l in tload(issued): A(l)
                issued += 1
            for l in r[2*i:2*i+2]: A(l)
        freeq.append(treg[cons[n]])
    assert 14 <= c.ya_at <= 26 and c.ya_at <= c.yb_at <= 32 and c.yb_at >= (20 if c.auxpoll else 24)
    while mk < 6: Q.mark(mk); mk += 1
    Q.mark(6)
    assert all(slot[("D", b)] not in (8, 9) for b in range(11, 28))
    A(f"""
    s_lshl_b32 s43, s36, 12
    s_add_u32 s43, s43, {8*BLK}
    v_lshl_add_u32 v2, v{vLane}, 4, s43
    v_xor_b32 v3, 0x2000, v2
    """)
    for q in range(4): A(f"ds_write_b128 v2, {v(AO[1]+4*q,4)} offset:{1024*q}")
    A("s_waitcnt lgkmcnt(0)\ns_barrier")
    for q in range(4): A(f"ds_read_b128 {v(32+4*q,4)}, v3 offset:{1024*q}")
    for hq in range(2):
        A(f"s_waitcnt lgkmcnt({2-2*hq})")
        for q in range(4*hq, 4*hq+4): A(f"v_pk_add_f32 {v(AC2+2*q,2)}, {v(AC2+2*q,2)}, {v(32+2*q,2)}")
        for q in range(4*hq, 4*hq+4): A(f"v_cvt_pk_bf16_f32 v{48+q}, v{AC2+2*q}, v{AC2+2*q+1}")
        A(f"v_permlane32_swap_b32 v{48+4*hq}, v{48+4*hq+2}\nv_permlane32_swap_b32 v{48+4*hq+1}, v{48+4*hq+3}")
        A(f"global_store_dwordx4 v5, {v(48+4*hq,4)}, s[26:27] offset:{32*hq} {c.outflag}")
    Q.fin(7)
    A("s_endpgm")
    target(nw)
    A(f"s_and_b32 s46, s36, 3\ns_mov_b32 s45, 0\nv_mov_b32 v11, {TAGA}")
    def xpoll():
        for l in xp: A(l)
    A("s_waitcnt lgkmcnt(0)\ns_barrier")
    P.stamp(5)
    A(f"""
    ds_read_b32 v11, v11
    s_lshl_b32 s47, s46, 10
    s_add_u32 s47, s47, {UO+512}
    v_xor_b32 v9, 3, v{vLane}
    v_lshl_add_u32 v9, v9, 2, s47
    s_lshl_b32 s47, s46, 11
    v_lshrrev_b32 v5, 3, v{vLane}
    v_lshl_add_u32 v5, v5, 4, s47
    v_bfe_u32 v6, v{vLane}, 1, 2
    v_lshl_add_u32 v5, v6, 8, v5
    v_and_b32 v6, 1, v{vLane}
    v_lshl_add_u32 v10, v6, 3, v5
    """)
    if not c.xp_at:
        if c.poll_late: A(f"s_sleep {c.poll_late}")
        xpoll()
    if not c.xp_chk:
        A(f"s_mov_b32 s45, 1\ns_barrier\ns_setprio {c.nprio}")
    pl = A.label("xp"); ok = A.label("xok"); nb1 = A.label("xnb")
    A(f"{pl}:\ns_waitcnt vmcnt(0) lgkmcnt(0)\nv_min3_u32 v4, v{vPX+1}, v{vPX+3}, v11\nv_max3_u32 v5, v{vPX+1}, v{vPX+3}, v11")
    for q in range(1, 8): A(f"v_min3_u32 v4, v4, v{vPX+4*q+1}, v{vPX+4*q+3}\nv_max3_u32 v5, v5, v{vPX+4*q+1}, v{vPX+4*q+3}")
    assert not c.xp_chk
    A(f"v_cmp_ne_u32 vcc, v4, v5\ns_cbranch_vccnz {pl}c\n{ok}:")
    with Cold():
        A(f"{pl}c:\ns_add_u32 s45, s45, 1\ns_cmp_gt_u32 s45, {SPIN}\ns_cbranch_scc1 {ok}")
        if c.xmask:
            for q in range(8):
                A(f"v_cmp_ne_u32 vcc, v{vPX+4*q+1}, v11\nv_cmp_ne_u32 s[50:51], v{vPX+4*q+3}, v11\ns_or_b64 exec, vcc, s[50:51]\ns_cbranch_execz {pl}m{q}\n{xp[q]}\n{pl}m{q}:\ns_mov_b64 exec, -1")
        else: xpoll()
        A(f"s_branch {pl}")
    P.stamp(6)
    if c.x_cnt: A("s_waitcnt lgkmcnt(0)\ns_mul_i32 s74, s45, 100\ns_add_u32 s74, s74, s72")
    NU, PRE, UB = 16, 32, 48
    for half in range(2):
        st = []
        for r in range(4 * half, 4 * half + 4):
            S = vPS_ + 2 * r; X = vPX + 2 * r
            t = 60 + 4 * (r & 3)
            st.append([f"v_and_b32 v{t+2}, s43, v{S}", f"v_rcp_f32 v{t+2}, v{t+2}", f"v_lshlrev_b32 v{t}, 16, v{S}",
                  f"v_lshlrev_b32 v{PRE+2*r}, 16, v{X}", f"v_and_b32 v{PRE+2*r+1}, s43, v{X}",
                  f"v_pk_add_f32 {v(NU+2*r,2)}, {v(PRE+2*r,2)}, {v(t,2)} op_sel_hi:[1,0] neg_lo:[0,1] neg_hi:[0,1]" if c.npk else f"v_sub_f32 v{NU+2*r}, v{PRE+2*r}, v{t}\nv_sub_f32 v{NU+2*r+1}, v{PRE+2*r+1}, v{t}",
                  f"v_cvt_pk_bf16_f32 v{NU+2*r+1}, v{NU+2*r}, v{NU+2*r+1}",
                  f"v_lshlrev_b32 v{NU+2*r}, 16, v{NU+2*r+1}", f"v_and_b32 v{NU+2*r+1}, s43, v{NU+2*r+1}",
                  f"v_pk_mul_f32 {v(NU+2*r,2)}, {v(NU+2*r,2)}, {v(t+2,2)} op_sel_hi:[1,0]" if c.npk else f"v_mul_f32 v{NU+2*r}, v{NU+2*r}, v{t+2}\nv_mul_f32 v{NU+2*r+1}, v{NU+2*r+1}, v{t+2}"])
        for l in merge(*st): A(l)
        for ch in range(2):
            for k in (2 * half, 2 * half + 1): A(f"v_cvt_pk_bf16_f32 v{UB+4*ch+k}, v{NU+4*k+2+ch}, v{NU+4*k+ch}")
    P.stamp(7)
    for half in range(2):
        for ch in range(2):
            A(f"ds_write2st64_b32 v9, v{UB+4*ch+2*half}, v{UB+4*ch+2*half+1} offset0:{ch*UPITCH//256+2*half} offset1:{ch*UPITCH//256+2*half+1}")
    A("s_setprio 0\ns_waitcnt lgkmcnt(0)\ns_barrier")
    P.stamp(8)
    if c.x_quietN: A("s_sleep 60")
    PO = 60
    for ch in range(2):
        for k in range(4):
            A(f"v_lshlrev_b32 v4, 16, v{UB+4*ch+k}\nv_and_b32 v5, s43, v{UB+4*ch+k}")
            A(f"v_fma_f32 v{PO+8*ch+2*k+1}, v4, s{58+ch}, v{PRE+4*k+2+ch}\nv_fma_f32 v{PO+8*ch+2*k}, v5, s{58+ch}, v{PRE+4*k+ch}")
            A(f"ds_write_b64 v10, {v(PO+8*ch+2*k,2)} offset:{32768*ch+1024*(k>>1)+128*(k&1)}")
    A("v_mov_b32 v90, v11")
    csetup()
    Q = Bars([0, c.gat_check, c.gat_check + 1, 14, 28, 29], 10)
    ST, GA = 18, 96
    vPS, vGA = 22, 23
    A(f"""
    s_mul_i32 s43, s39, {14*1024}
    s_lshl_b32 s44, s42, 8
    s_add_u32 s43, s43, s44
    s_add_u32 s43, s43, {WS_PS}
    v_lshl_add_u32 v{vPS}, v5, 3, s43
    v_mul_u32_u24 v7, 7168, v4
    v_add3_u32 v{vGA}, v{vPS}, v7, 64
    v_add_u32 v{vGA}, {3072-64}, v{vGA}
    s_lshl_b32 s44, s38, 10
    v_add_u32 v{vPS}, s44, v{vPS}
    """)
    nb = A.label("nb"); pz = A.label("pz"); pzo = A.label("pzo")
    pzl = "global_load_dwordx4 v[48:51], v47, s[30:31] sc1\nglobal_load_dwordx4 v[52:55], v47, s[30:31] offset:16 sc1"
    A(f"""
    s_cmp_lg_u32 s36, 4
    s_cbranch_scc1 {nb}a
    v_min_u32 v47, 55, v{vLane}
    v_lshlrev_b32 v47, 5, v47
    v_add_u32 v47, {WS_PZ}, v47
    s_mov_b32 s45, 0
    {pzl}
    {nb}a:
    """)
    P.stamp(9)
    A(f"""
    s_waitcnt lgkmcnt(0)
    s_barrier
    s_cmp_lg_u32 s36, 4
    s_cbranch_scc1 {nb}
    {pz}:
    s_waitcnt vmcnt(0)
    v_min3_u32 v56, v48, v49, v90
    v_max3_u32 v57, v48, v49, v90
    v_min3_u32 v56, v50, v51, v56
    v_max3_u32 v57, v50, v51, v57
    v_min3_u32 v56, v52, v53, v56
    v_max3_u32 v57, v52, v53, v57
    v_min3_u32 v56, v54, v55, v56
    v_max3_u32 v57, v54, v55, v57
    v_cmp_ne_u32 vcc, v56, v57
    s_cbranch_vccz {pzo}
    s_sleep {c.pz_sleep}
    {pzl}
    s_add_u32 s45, s45, 1
    s_cmp_lt_u32 s45, {SPIN}
    s_cbranch_scc1 {pz}
    {pzo}:
    s_cmp_lg_u32 s2, 0
    s_cbranch_scc1 {nb}
    v_mov_b32 v47, {WS_E}
    s_mov_b64 exec, 1
    global_store_dword v47, v90, s[30:31]
    s_mov_b64 exec, -1
    {nb}:
    s_barrier
    """)
    def gat(js=range(7)):
        for j in js: A(f"global_load_dwordx2 {v(GA+2*j,2)}, v{vGA}, s[30:31] offset:{1024*j-3072} sc1")
    S, Qv = GA, GA + 1
    work = [f"v_add_f32 v{GA+k}, v{GA+k}, v{GA+2*j+k}" for j in range(1, 7) for k in range(2)]
    work += [f"v_mov_b32 v{GA+2}, v{GA}", f"v_mov_b32 v{GA+3}, v{GA+1}", f"v_permlane32_swap_b32 v{GA}, v{GA+2}", f"v_permlane32_swap_b32 v{GA+1}, v{GA+3}",
             f"v_add_f32 v{GA}, v{GA}, v{GA+2}", f"v_add_f32 v{GA+1}, v{GA+1}, v{GA+3}"]
    work += [l.strip() for l in f"""
    v_mul_f32 v{S}, {f32(1.0/448)}, v{S}
    v_mul_f32 v{Qv}, {f32(1.0/448)}, v{Qv}
    v_fma_f32 v{Qv}, -v{S}, v{S}, v{Qv}
    v_max_f32 v{Qv}, 0, v{Qv}
    v_cvt_pk_bf16_f32 v{CN+3}, -v{S}, -v{S}
    v_cvt_pk_bf16_f32 v{Qv}, v{Qv}, v{Qv}
    v_and_b32 v{Qv}, s48, v{Qv}
    v_add_f32 v{Qv}, {f32(1e-5)}, v{Qv}
    v_cvt_pk_bf16_f32 v{Qv}, v{Qv}, v{Qv}
    v_and_b32 v{Qv}, s48, v{Qv}
    v_sqrt_f32 v{Qv}, v{Qv}
    v_cvt_pk_bf16_f32 v{Qv}, v{Qv}, v{Qv}
    v_and_b32 v{Qv}, s48, v{Qv}
    v_rcp_f32 v{S}, v{Qv}
    v_mul_f32 v{CN+2}, v{Qv}, v{Qv}
    v_mul_f32 v{CN}, {f32(GK0)}, v{S}
    v_mul_f32 v{CN+1}, v{S}, v{S}
    v_mul_f32 v{CN+1}, v{CN+1}, v{S}
    v_mul_f32 v{CN+1}, {f32(GK1)}, v{CN+1}
    ds_write_b128 v{vCR}, {v(CN,4)}
    """.strip().split("\n")]
    nwi = c.con_write - c.gat_check
    wper = (len(work) + nwi - 1) // nwi
    for i in range(14):
        Q.bar()
        if i == 0:
            for k in range(4): A(f"ds_read_b64_tr_b16 {v(F[0]+2*k,2)}, v{vB} offset:{4096*(k>>1)+1024*(k&1)}")
        if i == 1:
            A("s_waitcnt lgkmcnt(0)")
            for k in range(8):
                z = k < 2
                A(f"v_dot2_f32_bf16 v{ST+(k&1)}, v{F[0]+k}, s47, {'0' if z else 'v%d' % (ST+(k&1))}\nv_dot2_f32_bf16 v{ST+2+(k&1)}, v{F[0]+k}, v{F[0]+k}, {'0' if z else 'v%d' % (ST+2+(k&1))}")
        if i == 2:
            A(f"""
            v_add_f32 v{ST}, v{ST}, v{ST+1}
            v_add_f32 v{ST+1}, v{ST+2}, v{ST+3}
            v_mov_b32 v{ST+2}, v{ST}
            v_mov_b32 v{ST+3}, v{ST+1}
            v_permlane32_swap_b32 v{ST}, v{ST+2}
            v_permlane32_swap_b32 v{ST+1}, v{ST+3}
            v_add_f32 v{ST}, v{ST}, v{ST+2}
            v_add_f32 v{ST+1}, v{ST+1}, v{ST+3}
            v_or_b32 v{ST+1}, 1, v{ST+1}
            s_mov_b32 exec_hi, 0
            global_store_dwordx2 v{vPS}, {v(ST,2)}, s[30:31] sc0 sc1
            s_mov_b32 exec_hi, -1
            """)
        if i in (c.cs_issue, c.ca_load - 1):
            sk = A.label("css")
            A(f"s_cmp_lg_u32 s36, 4\ns_cbranch_scc1 {sk}")
            if i == c.cs_issue: A(f"global_load_dword v47, v{MB+2}, s[28:29] sc1")
            else:
                pl = A.label("cs")
                A(f"s_mov_b32 s45, 0\n{pl}:\ns_waitcnt vmcnt(0)\nv_cmp_gt_u32 vcc, 64, v47\ns_cbranch_vccz {sk}\ns_sleep {c.cs_back}\nglobal_load_dword v47, v{MB+2}, s[28:29] sc1\ns_add_u32 s45, s45, 1\ns_cmp_lt_u32 s45, {SPIN}\ns_cbranch_scc1 {pl}")
            A(f"{sk}:")
        k0 = i - (c.gat_issue - len(c.gat_split) + 1)
        if 0 <= k0 < len(c.gat_split) and not c.x_nogat: gat(range(sum(c.gat_split[:k0]), sum(c.gat_split[:k0+1])))
        if i == c.gat_check and not c.x_nogat:
            pl = A.label("gp"); ok = A.label("gok")
            A(f"s_mov_b32 s45, 0\n{pl}:\ns_waitcnt vmcnt(0)\nv_min3_u32 v7, v{GA+1}, v{GA+3}, v{GA+5}\nv_min3_u32 v7, v7, v{GA+7}, v{GA+9}\nv_min3_u32 v7, v7, v{GA+11}, v{GA+13}")
            A(f"v_cmp_eq_u32 vcc, 0, v7\ns_cbranch_vccnz {pl}c\n{ok}:")
            with Cold():
                A(f"{pl}c:\ns_add_u32 s45, s45, 1\ns_cmp_ge_u32 s45, {SPIN}\ns_cbranch_scc1 {ok}")
                gat()
                A(f"s_branch {pl}")
        if c.gat_check < i <= c.con_write:
            for l in work[:wper]: A(l)
            work = work[wper:]
        if i == c.ca_load:
            for l in caload: A(l)
        if i == 13:
            assert not work
            A("s_waitcnt vmcnt(0) lgkmcnt(0)")
    Q.bar()
    A(f"ds_read_b128 {v(CN+4,4)}, v{vCR+1}")
    for l in preads(1, 0): A(l)
    A("s_waitcnt lgkmcnt(8)")
    for l in mkmb + preads(1, 1): A(l)
    for l in corr(True): A(l)
    A(f"s_setprio {c.prioB}")
    for s in range(1, 14):
        Q.bar(); pstep(1, s)
    Q.bar()
    A("s_waitcnt lgkmcnt(8)")
    for l in pmfma(26): A(l)
    A("s_waitcnt lgkmcnt(0)")
    Q.bar()
    for l in pmfma(27): A(l)
    for n in range(4):
        L = epi(n >> 1, n & 1, n, True)
        for l in L[:-1]: A(l)
        if n == 3 and c.sig_early: signal(0, 1)
        A(L[-1])
    Q.mark(0)
    A("s_setprio 0")
    if c.xe: A("s_barrier")
    if not c.sig_early: signal(0)
    Q.mark(1)
    if c.auxpoll:
        if c.selfrd:
            A(f"s_cmp_lg_u32 s40, s34\ns_cbranch_scc1 Lsr1\nglobal_load_dwordx4 v[96:99], v{vS}, s[30:31] sc1\nglobal_load_dwordx4 v[100:103], v{vS+1}, s[30:31] sc1\ns_waitcnt vmcnt(2)\ns_branch Lsr2\nLsr1:\ns_waitcnt vmcnt(0)\nLsr2:")
            signal(1, 2)
            A(f"s_cmp_lg_u32 s40, s34\ns_cbranch_scc1 Lsr3\nglobal_load_dwordx4 v[96:99], v{vS}, s[30:31] offset:1024 sc1\nglobal_load_dwordx4 v[100:103], v{vS+1}, s[30:31] offset:1024 sc1\nLsr3:")
        else: signal(1)
        Q.mark(2)
        A("s_barrier")
        Q.mark(3)
        A("s_barrier\ns_barrier")
        Q.mark(4)
    else:
        if c.pa_early: poll_issue(PA_, 512)
        signal(1)
        Q.mark(2)
        if not c.pa_early: poll_issue(PA_, 512)
        A("s_barrier")
        poll_wait(PA_, 512, True)
        poll_issue(PB_, 640)
        Q.mark(3)
        A("s_barrier")
        poll_wait(PB_, 640, True)
        Q.mark(4)
        A("s_barrier")
    Q.fin(5)
    A("s_waitcnt lgkmcnt(0)\ns_endpgm")
    A(f".p2align 3\n{auxt}:")
    PA.stamp(1)
    srd(A, 64, 30, XG_BYTES, WS_XG)
    A(f"""
    v_and_b32 v4, 15, v{vLane}
    v_lshrrev_b32 v5, 4, v{vLane}
    v_lshl_add_u32 v6, v4, 8, s46
    v_lshl_add_u32 v6, v5, 2, v6
    v_and_b32 v7, 7, v4
    v_lshl_add_u32 v6, v7, 4, v6
    v_lshlrev_b32 v9, 14, v5
    v_lshl_add_u32 v9, v4, 4, v9
    s_lshl_b32 s46, s36, 2
    s_add_u32 s46, s46, {TAGA}
    v_mov_b32 v2, s46
    """)
    for k in range(1, 8): A(f"v_xor_b32 v{80+k}, {16*k}, v6")
    A("s_waitcnt lgkmcnt(0)\ns_add_u32 s57, s57, 1\ns_and_b32 s57, s57, 0xffff\ns_or_b32 s57, s57, 0x7f810000")
    for k in range(16): A(f"v_mov_b32 v{vXG+2*k+1}, s57")
    A(f"s_mov_b64 exec, 1\nds_write_b32 v2, v{vXG+1}\ns_mov_b64 exec, -1\ns_waitcnt vmcnt(0)")
    PA.stamp(2)
    for k in range(8):
        ad = 6 if k == 0 else 80 + k
        A(f"ds_read_b32 v{vXG+4*k}, v{ad}\nds_read_b32 v{vXG+4*k+2}, v{ad} offset:128")
    for k in range(8):
        A(f"s_waitcnt lgkmcnt({14-2*k})\nbuffer_store_dwordx4 {v(vXG+4*k,4)}, v9, s[64:67], s51 offen sc0 sc1")
        if k < 7: A(f"s_add_u32 s51, s51, {4*16384}")
    PA.stamp(3)
    A(f"""
    v_mov_b32 v24, 0
    v_mov_b32 v25, 0
    s_lshl_b32 s43, s2, 1
    s_add_u32 s43, s43, s36
    s_lshl_b32 s44, s43, 9
    s_add_u32 s44, s44, {WS_PS}
    v_lshl_add_u32 v3, v{vLane}, 3, s44
    global_store_dwordx2 v3, v[24:25], s[30:31] sc0 sc1
    s_and_b32 s44, s43, 255
    s_lshl_b32 s44, s44, 7
    s_add_u32 s44, s44, {WS_FLAGS}
    v_mov_b32 v4, s44
    s_mov_b64 exec, 1
    global_store_dword v4, v24, s[30:31] sc0 sc1
    s_mov_b64 exec, -1
    s_lshl_b32 s44, s43, 2
    s_add_u32 s44, s44, {WS_PZ}
    v_mov_b32 v22, s44
    v_mov_b32 v23, s57
    s_setprio 0
    """)
    if c.warm:
        A("s_cmp_eq_u32 s36, 1\ns_cbranch_scc1 Lwm1")
        for lab in ("Lmw", nw, odd): A(f"s_call_b64 s[96:97], {lab}w")
        A("s_branch Lwm2\nLwm1:")
        for k in range(1, 4): A(f"s_call_b64 s[96:97], Lpw{k}")
        A("Lwm2:")
    A("s_barrier")
    if c.warm:
        A("s_cmp_eq_u32 s36, 1\ns_cbranch_scc1 Lwm3")
        for k in range(4, c.npg + 1, 2): A(f"s_call_b64 s[96:97], Lpw{k}")
        A("s_branch Lwm4\nLwm3:")
        for k in range(5, c.npg + 1, 2): A(f"s_call_b64 s[96:97], Lpw{k}")
        A("Lwm4:")
    aW, aD, aH = 8, 12, 8
    sW, sD, eW, eD = 41, 42, 45, 46
    def daddr():
        A(ffn_ids)
        A(f"""
        v_lshrrev_b32 v6, 3, v{vLane}
        v_and_b32 v7, 7, v{vLane}
        v_and_b32 v5, 2, v6
        v_lshlrev_b32 v4, 1, v5
        v_xor_b32 v4, v4, v7
        v_mul_u32_u24 v3, 896, v6
        v_lshl_add_u32 v{aD}, v4, 4, v3
        v_add_u32 v{aD+1}, {1*(8*896-1024)}, v{aD}
        v_add_u32 v{aD+2}, {2*(8*896-1024)}, v{aD}
        v_add_u32 v{aD+3}, {3*(8*896-1024)}, v{aD}
        s_lshl_b32 s{eD}, s35, 7
        s_mul_i32 s32, s36, {32*896}
        s_add_u32 s{eD}, s{eD}, s32
        s_mul_i32 s{sD}, s33, {128*896}
        s_add_u32 s{sD}, s{sD}, s{eD}
        s_add_u32 s{eD}, s{eD}, {14*128*896}
        s_lshl_b32 s32, s36, 12
        v_lshl_add_u32 v16, v{vLane}, 4, s32
        v_add_u32 v17, 0x10000, v16
        v_add_u32 v18, 0x20000, v16
        s_lshl_b32 s59, s39, 11
        s_lshl_b32 s58, s34, 10
        s_add_u32 s59, s59, s58
        s_lshl_b32 s58, s36, 8
        s_add_u32 s59, s59, s58
        s_add_u32 s59, s59, {WS_FLAGS}
        s_lshl_b32 s43, s39, 1
        s_add_u32 s43, s43, s34
        s_mul_i32 s43, s43, {224*1024}
        s_lshl_b32 s44, s36, 11
        s_add_u32 s43, s43, s44
        s_add_u32 s43, s43, {WS_ACT+4096}
        v_bfe_u32 v3, v{vLane}, 3, 1
        v_add_u32 v3, s33, v3
        v_cmp_gt_u32 vcc, 14, v3
        v_cndmask_b32 v3, 0, v3, vcc
        v_lshlrev_b32 v3, 13, v3
        v_bfe_u32 v4, v{vLane}, 4, 1
        v_mul_u32_u24 v4, {112*1024}, v4
        v_add3_u32 v3, v3, v4, s43
        v_lshl_add_u32 v19, v7, 7, v3
        """)
        srd(A, 60, 24, W_BYTES)
    def fifo_load(first, n, reg0):
        if c.x_nopre: return
        hf = 64 * 896 if first >= 14 else 0
        assert first >= 14 or first + n <= 14
        A(f"s_add_u32 s43, s{sD}, {hf + (first % 14)*128*896}\ns_add_u32 s44, s{eD}, {hf}")
        for b in range(n):
            A(f"s_cmp_ge_u32 s43, s44\ns_cselect_b32 s34, {14*128*896}, 0\ns_sub_u32 s43, s43, s34")
            for i in range(4): A(f"buffer_load_dwordx4 {v(reg0+16*b+4*i,4)}, v{aD+i}, s[60:63], s43 offen offset:{1024*i}")
            A(f"s_add_u32 s43, s43, {128*896}")
            if c.fdepth is not None: A(f"s_waitcnt vmcnt({c.fdepth})")
    def fifo_put(first, n, reg0):
        if c.x_noput: return
        for b in range(n):
            sl = slot[("D", first + b)]
            for i in range(4): A(f"ds_write_b128 v{16+sl//8}, {v(reg0+16*b+4*i,4)} offset:{(sl%8)*BLK+1024*i}")
    daddr()
    A(f"""
    v_xor_b32 v4, v5, v7
    s_lshl_b32 s43, s36, 2
    v_xor_b32 v4, s43, v4
    v_mul_u32_u24 v3, 3584, v6
    v_lshl_add_u32 v{aW}, v4, 4, v3
    v_add_u32 v{aW+1}, {1*(8*3584-1024)}, v{aW}
    v_add_u32 v{aW+2}, {2*(8*3584-1024)}, v{aW}
    v_add_u32 v{aW+3}, {3*(8*3584-1024)}, v{aW}
    s_lshl_b32 s{eW}, s38, 8
    s_mul_i32 s{sW}, s38, {32*3584}
    s_add_u32 s{sW}, s{sW}, s{eW}
    s_add_u32 s{eW}, s{eW}, {14*32*3584}
    s_cmp_eq_u32 s36, 0
    s_cselect_b32 s20, s20, s22
    s_cselect_b32 s21, s21, s23
    """)
    srd(A, 52, 20, W_BYTES)
    A(f"""
    v_mov_b32 v20, 0
    v_mov_b32 v21, 0
    v_lshrrev_b32 v4, 4, v{vLane}
    v_mul_u32_u24 v4, {KP}, v4
    v_and_b32 v5, 15, v{vLane}
    v_lshl_add_u32 v4, v5, 2, v4
    s_lshl_b32 s43, s36, 15
    v_add_u32 v4, s43, v4
    s_mul_i32 s43, s36, {UPITCH}
    s_add_u32 s43, s43, {UO}
    v_lshl_add_u32 v3, v{vLane}, 3, s43
    """)
    A("s_waitcnt vmcnt(0)\ns_mov_b64 exec, 1\nglobal_store_dword v22, v23, s[30:31] sc0 sc1\ns_mov_b64 exec, -1")
    A(f"s_barrier\nds_write_b32 v4, v20 offset:{KB0}\nds_write_b64 v3, v[20:21]")
    if c.lf_at == 'B': fifo_load(14, 6, 24)
    A("s_waitcnt lgkmcnt(0)\ns_barrier")
    def dma(kind, idx, i):
        if kind == "F":
            if i == 0:
                A(f"s_cmp_ge_u32 s43, s44\ns_cselect_b32 s35, {14*128*896}, 0\ns_sub_u32 s43, s43, s35")
            A(f"buffer_load_dwordx4 {v(24+16*(idx-14)+4*i,4)}, v{aD+i}, s[60:63], s43 offen offset:{1024*i}")
            if i == 3: A(f"s_add_u32 s43, s43, {128*896}")
            return
        base_ = slot[(kind, idx)] * BLK
        a0, r0, s, e, step = {"W": (aW, 52, sW, eW, 32*3584), "D": (aD, 60, sD, eD, 128*896), "H": (4, 48, 40, 47, HS)}[kind]
        if i == 0:
            if idx == 14:
                A(f"s_add_u32 s{s}, s{s}, 128\ns_add_u32 s{e}, s{e}, 128")
            A(f"s_add_u32 m0, s32, {base_}\ns_add_u32 s33, s{s}, {step}")
        A(f"buffer_load_dwordx4 v{a0+i}, s[{r0}:{r0+3}], s{s} offen offset:{1024*i}{' sc1' if kind == 'H' else ''} lds")
        if i == 0: A(f"s_cmp_ge_u32 s33, s{e}\ns_cselect_b32 s34, {14*step}, 0")
        if i == 3: A(f"s_sub_u32 s{s}, s33, s34")
    if c.x_quietL: A('s_sleep 60')
    for x in issue[-2]: dma(*x)
    fifo_load(14, c.lf_c, 24)
    A(f"""
    v_lshrrev_b32 v2, 4, v{vLane}
    v_and_b32 v3, 15, v{vLane}
    v_lshlrev_b32 v4, 2, v2
    v_xor_b32 v4, v4, v3
    v_lshlrev_b32 v4, 4, v4
    v_and_b32 v3, 1, v2
    v_lshl_add_u32 v4, v3, 12, v4
    v_lshrrev_b32 v2, 1, v2
    v_lshl_add_u32 v4, v2, 14, v4
    v_add_u32 v5, {1*(32768-1024)}, v4
    v_add_u32 v6, {2*(32768-1024)}, v4
    v_add_u32 v7, {3*(32768-1024)}, v4
    s_lshl_b32 s47, s39, 8
    s_lshl_b32 s43, s36, 17
    s_add_u32 s47, s47, s43
    s_add_u32 s40, s38, {c.h0}
    s_cmp_ge_u32 s40, 14
    s_cselect_b32 s43, 14, 0
    s_sub_u32 s40, s40, s43
    s_lshl_b32 s40, s40, 18
    s_add_u32 s40, s40, s47
    s_add_u32 s47, s47, {14*HS}
    """)
    srd(A, 48, 30, XG_BYTES, WS_XG)
    PA.stamp(4)
    A("s_barrier")
    fifo_load(14 + c.lf_c, c.lf_d, 24 + 16 * c.lf_c)
    assert c.nlf == 6
    A("s_barrier")
    for x in issue[-1]: dma(*x)
    if c.nlf > 6: fifo_load(20 - c.nlf, c.nlf - 6, 120)
    A(f"s_waitcnt vmcnt({len(issue[-1]) + 4 * (c.lf_c + c.lf_d)})\ns_barrier")
    for i in range(0, 29):
        for x in issue[i]: dma(*x)
        if i == 3: A(f"s_waitcnt vmcnt({sum(len(issue[k]) for k in range(4))})")
        if wait[i] is not None: A(f"s_waitcnt vmcnt({min(63, wait[i])})")
        A("s_barrier")
    if c.nlf > 6: fifo_put(20 - c.nlf, c.nlf - 6, 120)
    if c.xe:
        A("s_barrier")
        fifo_put(14, 3, 24)
        A("s_barrier")
        fifo_put(17, 3, 72)
    elif c.auxpoll:
        assert c.yb_at <= 26 and c.nlf == 6
        fifo_put(14, 6, 24)
        A("s_barrier")
        poll_issue(PB_, 640); poll_wait(PB_, 640, True)
        if c.touch & 2: A("global_load_dword v2, v19, s[30:31] offset:1024 sc1\ns_barrier")
    else:
        assert c.yb_at <= 26
        fifo_put(14, c.put_0, 24)
        A(f"s_waitcnt lgkmcnt({min(15, 4 * c.put_0)})\ns_barrier")
        fifo_put(14 + c.put_0, c.put_l, 24 + 16 * c.put_0)
        A("s_barrier")
        fifo_put(14 + c.put_0 + c.put_l, 6 - c.put_0 - c.put_l, 24 + 16 * (c.put_0 + c.put_l))
    A("s_waitcnt lgkmcnt(0)")
    if c.phase == 1: Prof(A, 3).flush(5)
    A("s_endpgm")
    A(f".p2align 3\n{auxs}:")
    PA.stamp(1)
    a0 = 90
    A(f"s_mov_b32 s42, 0x3f803f80\nv_and_b32 v4, 56, v{vLane}\ns_lshl_b32 s46, s47, 6\nv_add_u32 v4, s46, v4\nv_mov_b32 v2, {TAGA}")
    A("s_waitcnt lgkmcnt(0)\ns_add_u32 s57, s56, 1\ns_and_b32 s57, s57, 0xffff\ns_or_b32 s57, s57, 0x7f810000\ns_mov_b32 s45, 0")
    for i in range(28):
        z = i < 2
        if i % 4 == 0: A(f"s_waitcnt vmcnt({6-i//4})")
        if i == 4: PA.stamp(2)
        if i == 24: A("ds_read_b64 v[6:7], v2")
        A(f"v_dot2_f32_bf16 v{a0+(i&1)}, v{vRow+i}, s42, {'0' if z else 'v%d' % (a0+(i&1))}")
        A(f"v_dot2_f32_bf16 v{a0+2+(i&1)}, v{vRow+i}, v{vRow+i}, {'0' if z else 'v%d' % (a0+2+(i&1))}")
    A(f"v_add_f32 v{a0}, v{a0}, v{a0+1}\nv_add_f32 v{a0+2}, v{a0+2}, v{a0+3}")
    for op in ("quad_perm:[1,0,3,2]", "quad_perm:[2,3,0,1]", "row_half_mirror"):
        A(f"v_add_f32_dpp v{a0}, v{a0}, v{a0} {op}{DPP}\nv_add_f32_dpp v{a0+2}, v{a0+2}, v{a0+2} {op}{DPP}")
    A(f"""
    v_mul_f32 v{a0}, {f32(1.0/448)}, v{a0}
    v_mul_f32 v{a0+2}, {f32(1.0/448)}, v{a0+2}
    v_fma_f32 v{a0+2}, -v{a0}, v{a0}, v{a0+2}
    v_max_f32 v{a0+2}, 0, v{a0+2}
    v_cvt_pk_bf16_f32 v{a0+2}, v{a0+2}, v{a0+2}
    v_and_b32 v{a0+2}, s43, v{a0+2}
    v_add_f32 v{a0+2}, {f32(1e-5)}, v{a0+2}
    v_cvt_pk_bf16_f32 v{a0+2}, v{a0+2}, v{a0+2}
    v_and_b32 v{a0+2}, s43, v{a0+2}
    v_sqrt_f32 v{a0+2}, v{a0+2}
    v_mov_b32 v{a0+1}, s57
    v_cvt_pk_bf16_f32 v{a0}, v{a0}, v{a0+2}
    Ltg:
    s_waitcnt lgkmcnt(0)
    v_xor_b32 v6, s57, v6
    v_xor_b32 v7, s57, v7
    v_or_b32 v6, v6, v7
    v_cmp_ne_u32 vcc, 0, v6
    s_cbranch_vccz Ltg2
    ds_read_b64 v[6:7], v2
    s_add_u32 s45, s45, 1
    s_cmp_lt_u32 s45, {SPIN}
    s_cbranch_scc1 Ltg
    Ltg2:
    s_mov_b32 exec_lo, 0x01010101
    s_mov_b32 exec_hi, 0x01010101
    global_store_dwordx2 v4, {v(a0,2)}, s[30:31] sc0 sc1
    s_mov_b64 exec, -1
    """)
    PA.stamp(3)
    if base.PROF and c.phase == 1:
        A(f"s_branch {hold}x\n{hold}:")
        for k in (1, 2, 3): PA.stamp(k)
        A(f"{hold}x:")
    else: A(f"{hold}:")
    A("s_setprio 0\ns_barrier")
    daddr()
    sH, eH, sV = 40, 41, 47
    VR = 20
    A(f"""
    v_lshrrev_b32 v6, 4, v{vLane}
    v_and_b32 v7, 15, v{vLane}
    v_lshlrev_b32 v5, 2, v6
    v_xor_b32 v5, v5, v7
    v_lshlrev_b32 v5, 4, v5
    v_and_b32 v7, 1, v6
    v_lshl_add_u32 v5, v7, 12, v5
    v_lshrrev_b32 v6, 1, v6
    v_lshl_add_u32 v{aH}, v6, 14, v5
    v_add_u32 v{aH+1}, {1*(32768-1024)}, v{aH}
    v_add_u32 v{aH+2}, {2*(32768-1024)}, v{aH}
    v_add_u32 v{aH+3}, {3*(32768-1024)}, v{aH}
    s_lshl_b32 s{eH}, s39, 8
    s_lshl_b32 s43, s36, 17
    s_add_u32 s{eH}, s{eH}, s43
    s_lshl_b32 s{sH}, s38, 18
    s_add_u32 s{sH}, s{sH}, s{eH}
    s_add_u32 s{eH}, s{eH}, {14*HS}
    s_mov_b32 s56, 0x7f810000
    s_mov_b32 s{sV}, s{sH}
    """)
    srd(A, 48, 30, XG_BYTES, WS_XG)
    A("s_barrier")
    if c.hf_at == 'B':
        fifo_load(20, 3, 40)
    A("s_barrier")
    if c.x_quietL: A('s_sleep 60')
    if c.hf_at == 'B': fifo_load(23, 5, 88)
    elif c.hf_at == 'C': fifo_load(20, 8, 40)
    else: fifo_load(20, c.hf_c, 40)
    PA.stamp(4)
    A(f"s_barrier\ns_barrier\ns_setprio {c.hprio}")
    def hblock(s, m0expr):
        A(f"s_add_u32 m0, {m0expr}\ns_add_u32 s33, s{s}, {HS}")
        for i in range(4):
            A(f"buffer_load_dwordx4 v{aH+i}, s[48:51], s{s} offen offset:{1024*i} sc1 lds")
            if i == 0: A(f"s_cmp_ge_u32 s33, s{eH}\ns_cselect_b32 s34, {14*HS}, 0")
        A(f"s_sub_u32 s{s}, s33, s34")
    nH = [0]
    def hissue(k):
        for _ in range(k):
            if nH[0] < 14:
                hblock(sH, f"s32, {slot[('H', nH[0])]*BLK}"); nH[0] += 1
    def vread(b):
        if b < nH[0]: A(f"s_waitcnt vmcnt({4*(nH[0]-1-b)})")
        for i in range(4): A(f"ds_read_b128 {v(VR+4*i,4)}, v{16+b//8} offset:{(slot[('H', b)]%8)*BLK+1024*i}")
    def vcheck(b):
        ck = A.label("hv"); ok = A.label("hok"); rp = A.label("hrp")
        last = b + 1 if c.rep_one else max(nH[0], b + 1)
        if c.w8 and b < 12: last = min(last, 12)
        sb = slot[('H', b)]
        A(f"""
        s_mov_b32 s45, 0
        {ck}:
        s_waitcnt lgkmcnt(0)
        v_max3_i32 v2, v{VR+1}, v{VR+3}, v{VR+5}
        v_max3_i32 v3, v{VR+7}, v{VR+9}, v{VR+11}
        v_max3_i32 v2, v2, v{VR+13}, v{VR+15}
        v_max_i32 v2, v2, v3
        v_cmp_le_i32 vcc, s56, v2
        {"s_cmp_eq_u32 s45, 0" if c.x_force else ""}
        {f"s_cbranch_scc1 {rp}f" if c.x_force else ""}
        s_cbranch_vccnz {rp}f
        """)
        cx = Cold(); cx.__enter__()
        A(f"""
        {rp}f:
        {f"s_sleep {c.backoff}" if c.backoff else ""}
        s_add_u32 s45, s45, 1
        s_cmp_ge_u32 s45, {SPIN}
        s_cbranch_scc1 {ok}
        s_mov_b32 s43, s{sV}
        s_add_u32 s44, s32, {sb*BLK}
        s_add_u32 s35, s32, {(sb+last-b)*BLK}
        {rp}:
        """)
        hblock(43, "s44, 0")
        A(f"s_add_u32 s44, s44, {BLK}\ns_cmp_lt_u32 s44, s35\ns_cbranch_scc1 {rp}\ns_waitcnt vmcnt({4*(last-1-b) if last == nH[0] else 0})")
        for i in range(4): A(f"ds_read_b128 {v(VR+4*i,4)}, v{16+b//8} offset:{(sb%8)*BLK+1024*i}")
        A(f"s_branch {ck}")
        cx.__exit__()
        A(f"{ok}:\ns_add_u32 s{sV}, s{sV}, {HS}\ns_cmp_ge_u32 s{sV}, s{eH}\ns_cselect_b32 s34, {14*HS}, 0\ns_sub_u32 s{sV}, s{sV}, s34")
    if c.probe:
        hissue(c.probe); vread(0); vcheck(0); hissue(c.h0 - c.probe); vread(1)
    else:
        hissue(c.h0); vread(0); vcheck(0); vread(1)
    A("s_barrier")
    hs = [0] * 14 if c.hl else list(c.hiss) + [1] * 14
    for i in range(0, 13):
        vcheck(i + 1)
        k = hs.pop(0)
        assert i >= 3 or nH[0] + k <= 12
        if i + 2 < 14:
            if nH[0] - (i + 2) < c.hnear: hissue(k); k = 0
            vread(i + 2)
        hissue(k)
        kf = c.hf_c + i - c.hf_p
        if c.hf_at == 'P' and c.hf_c <= kf < 8: fifo_load(20 + kf, 1, 40 + 16 * kf)
        A("s_barrier")
    if c.hf_at == 'P':
        kf = max(c.hf_c, c.hf_c + 13 - c.hf_p)
        if kf < 8: fifo_load(20 + kf, 8 - kf, 40 + 16 * kf)
    assert nH[0] == 14 or c.hl
    lp = A.label("hb")
    A(f"s_setprio 0\ns_mov_b32 s45, {18 if c.xe else 16 if c.auxpoll else 17}\n{lp}:\ns_barrier\ns_sub_u32 s45, s45, 1\ns_cmp_lg_u32 s45, 0\ns_cbranch_scc1 {lp}")
    A("s_waitcnt vmcnt(0)")
    if c.auxpoll:
        if c.psleep: A(f"s_sleep {c.psleep}")
        poll_issue(PA_, 512); poll_wait(PA_, 512, True)
        if c.touch & 1: A("global_load_dword v2, v19, s[30:31] sc1")
        A("s_barrier")
        fifo_put(20, c.put_a, 40)
        A("s_barrier")
        fifo_put(20 + c.put_a, 8 - c.put_a, 40 + 16 * c.put_a)
    else:
        fifo_put(20, c.put_a, 40)
        A("s_barrier")
        fifo_put(20 + c.put_a, 8 - c.put_a, 40 + 16 * c.put_a)
    A("s_waitcnt lgkmcnt(0)")
    if c.phase == 1: Prof(A, 3).flush(5)
    A(f"{end}:\ns_endpgm")
    A.L.extend(cold)
    A(f".p2align 3\n{hlp}:")
    if c.phase == 0: base.PROF = False
    gen_helper(A, c, Prof(A, 4))
    def rnd(l):
        u = np.float32(max(l, 0)).view(np.uint32)
        u = (int(u) + 0x7FFF + ((int(u) >> 16) & 1)) & 0xFFFF0000
        return int(np.uint32(u).view(np.float32))
    ad = [[(rnd(8 * b - 3 + r) & 7) * TP + (rnd(8 * b - 3 + r) >> 3) * 4 for r in range(12)] for b in range(256)]
    A(f".p2align 7\n.type {tab},@object\n{tab}:")
    for b in range(256): A(".long " + ", ".join("0x%08x" % (ad[b][2*k] | ad[b][2*k+1] << 16) for k in range(4)))
    for b in range(256): A(".long " + ", ".join("0x%08x" % (ad[b][2*k] | ad[b][2*k+1] << 16) for k in range(4, 6)))
    A(f".size {tab}, {256*24}")
    return kernel_desc(name, 168, 102)
```

```python
from base import *
import base
from ka import load_ptrs, cmul, cexp
import numpy as np
WS_E = 0x4000
WS_PZ = 0x5000
WS_XG = 0xA00000
XG_BYTES = 224 * 16384
REG = 16384
TP, GP = 1056, 272
KP = 4160
KB0 = 8704
UO, UPITCH = 74240, 4608
PARO = 98304
XT = 140288
TAGA = XT + 8192
BLK = 8192
NSL = 20
CON = 19 * BLK
F_LDS = NSL * BLK
GK0 = -2.0 * LOG2E * 0.7978845608028654
GK1 = GK0 * 0.044715
SPIN = 1 << 18
HS = 16 * 16384

class Cfg:
    code_bytes = 49152
    prio_mid = 26
    poll_late = 0
    e1_first, e1_last = 15, 21
    e1_packed = False
    drain0 = (21, 25)
    pollA, chkA = 24, 27
    earlyT = (4, 1)
    poll0 = 28
    ya_at, yb_at = 18, 25
    put_a = 5
    pace1, pace2, pace = 2, 1, {}
    pa_early = False
    g_pre = 0
    tdepth, tdepth2 = 22, 16
    gate_ahead = {14: 14, 28: 4, 42: 12}
    pollT1 = (20, 28)
    capP = 8
    caps = {}
    gat_issue, gat_check = 8, 10
    con_write = 12
    il = 2
    stflag = 'sc0 sc1'
    prioB = 2
    h0 = 5
    hiss = (1, 2, 1, 1, 1, 1, 1)
    ca_load = 11
    cs_issue = 7
    hdepth = 1
    fdepth = None
    x_delay = 0
    x_force = False
    backoff = 4
    rep_one = False
    x_nocs = False
    sweepW = False
    sweepD = False
    hramp = 0
    xp_chk = False
    npk = True
    lfifo = (8, 14)
    hprio = 3
    pz_sleep = 4
    hnear = 3
    lf_at = 'C'
    hf_at = 'P'
    poi_at = '0'
    wide_h = True
    xp_at = 0
    gat_split = (3, 4)
    x_nogat = False
    cprio = 3
    nprio = 2
    auxprio = 3
    x_nopre = False
    emode = 0
    csort = True
    probe = 1
    x_quietN = False
    x_quietL = False
    cmin = 5
    cmerge = (0, 2, 4, 6)
    w8 = False
    nlf = 6
    outflag = ''
    hl = True
    x_pad = 0
    wsoff = 0
    hf_c = 4
    hf_p = 10
    xmask = True
    auxpoll = False
    sig_early = False
    psleep = 0
    tpost = True
    cs_back = 16
    lf_c = 3
    lf_d = 0
    lf_i = (7, 12, 13, 14, 27, 28)
    touch = 0
    x_noput = False
    x_notl = False
    selfrd = False
    sweepU = 3
    hsleep = 0
    cs2 = (22, 24)
    hwait = None
    x_nocp = False
    warm = False
    npg = 5
    stcost = 8
    xe = False
    x_cnt = False
    put_0, put_l = 6, 0
    x_fine = None
    phase = 1

def schedule(c):
    need = {("W", s): s for s in range(28)}
    last_use = {("W", s): s + 1 for s in range(28)}
    for t in range(28): last_use[("D", t)] = 1000
    hslot = [sl + (2 if c.w8 and sl >= 12 else 0) for sl in range(14)]
    w0 = 12 if c.w8 else 14
    free_at = {sl: (16 + sl if sl < w0 else -2 if sl >= 14 else -1) for sl in range(NSL)}
    slot = {("H", k): hslot[k] for k in range(14)}
    issue = {i: [] for i in range(-2, 29)}
    n = dict(W=0, D=0, H=c.h0 if c.hl else 14)
    for k in range(n["H"], 14): need[("H", k)] = k - 2; last_use[("H", k)] = 15 + k
    nd = 20 - c.nlf
    cur = None
    def pick(i):
        nW, nD = n["W"], n["D"]
        wf = [sl for sl in range(w0, NSL) if free_at[sl] <= i and (sl != 19 or i >= 15 or nW + 1 < c.con_write)]
        canH = n["H"] < 14 and i >= 0 and (not c.w8 or n["H"] < 12 or i >= n["H"] - 10)
        if canH and (n["H"] - 2 <= nW or not wf): return ("H", n["H"]), hslot[n["H"]]
        if nW < 28 and wf: return ("W", nW), wf[0]
        fr = [sl for sl in range(NSL) if free_at[sl] <= i and (sl < w0 or nW == 28)]
        if fr and nD < nd: return ("D", nD), fr[0]
        return None
    for i in range(-2, 29):
        cap = 24 if i < 0 else c.caps.get(i, c.capP)
        while cap > 0:
            if cur is None:
                p = pick(i)
                if p is None: break
                b, sl = p
                slot[b] = sl; free_at[sl] = last_use[b] + 1; n[b[0]] += 1
                if c.w8 and b in (("W", 0), ("W", 1)): free_at[sl] = 28 + b[1]
                cur = [b, 0]
            issue[i].append((cur[0][0], cur[0][1], cur[1])); cur[1] += 1; cap -= 1
            if cur[1] == 4: cur = None
    assert n["D"] == nd and cur is None
    rest = sorted((sl for sl in range(NSL) if free_at[sl] < 1000), key=lambda sl: free_at[sl])
    assert len(rest) == c.nlf
    for k, sl in enumerate(rest): slot[("D", nd + k)] = sl
    for t in range(20, 28): slot[("D", t)] = slot[("D", t - 20)]
    for k in range(c.lf_c + c.lf_d, 6): issue[c.lf_i[k - c.lf_c - c.lf_d]] += [("F", 14 + k, q) for q in range(4)]
    order = [b for i in range(0, 29) for b in issue[i]]
    pos = {b: k for k, b in enumerate(order)}
    wait = {}
    cnt = 0
    for i in range(0, 29):
        cnt += len(issue[i])
        req = [b for b in need if need[b] == i + 1 and b + (3,) in pos]
        wait[i] = None if not req else cnt - 1 - max(pos[b + (3,)] for b in req)
        if i == 28: wait[i] = 0
        assert wait[i] is None or wait[i] >= 0, (i, req)
    return issue, slot, wait

def gen_helper(A, c, P):
    A(f"""
    s_sub_u32 s44, s2, 224
    s_lshr_b32 s45, s44, 3
    s_bfe_u32 s46, s44, 0x20001
    s_lshl_b32 s46, s46, 2
    s_add_u32 s46, s46, s45
    s_and_b32 s44, s44, 1
    s_cmp_ge_u32 s46, 14
    s_cselect_b32 s47, 2, 0
    s_sub_u32 s46, s46, s47
    v_and_b32 v1, 7, v0
    v_lshrrev_b32 v2, 3, v0
    v_mul_u32_u24 v2, 3584, v2
    v_lshl_add_u32 v2, v1, 4, v2
    s_cmp_ge_u32 s46, 7
    s_cselect_b32 s47, 7, 0
    s_waitcnt lgkmcnt(0)
    s_cselect_b32 s48, s22, s20
    s_cselect_b32 s49, s23, s21
    s_sub_u32 s46, s46, s47
    s_mul_i32 s50, s44, 7
    s_add_u32 s46, s46, s50
    s_lshl_b32 s47, s47, 1
    s_add_u32 s52, s46, s47
    s_lshl_b32 s55, s46, 8
    s_mov_b32 s50, {W_BYTES}
    s_mov_b32 s51, 0x20000
    s_lshr_b32 s54, s52, 1
    s_mul_i32 s54, s54, {128*896}
    s_and_b32 s53, s52, 1
    s_lshl_b32 s53, s53, 3
    s_add_u32 s53, s53, s36
    s_mul_i32 s53, s53, {28*128}
    s_add_u32 s54, s54, s53
    s_add_u32 s54, s54, {64*896}
    v_and_b32 v3, 63, v0
    v_min_u32 v3, 27, v3
    v_lshl_add_u32 v3, v3, 7, s54
    v_lshrrev_b32 v12, 6, v0
    v_lshlrev_b32 v12, 8, v12
    v_lshl_add_u32 v12, v1, 5, v12
    v_lshlrev_b32 v13, 2, v0
    s_lshl_b32 s46, s52, 10
    s_add_u32 s46, s46, {WS_CS}
    v_lshl_add_u32 v14, v0, 3, s46
    s_mov_b32 s42, 0x00003f80
    s_mov_b32 s43, 0x3f800000
    s_mov_b32 s41, 0xffff0000
    s_mov_b32 s56, 0
    """)
    if c.hsleep: A(f"s_sleep {c.hsleep}")
    A("s_barrier")
    A("Lhl:\ns_mov_b32 s47, s55")
    for p in range(7):
        A(f"buffer_load_dwordx4 {v(16+4*p,4)}, v2, s[48:51], s47 offen")
        if p < 6: A("s_add_u32 s47, s47, %d" % (64 * 3584))
    A(f"global_load_dword v72, v3, s[24:25]\nv_subrev_u32 v3, {64*896}, v3")
    for p in range(7):
        A(f"s_waitcnt vmcnt({7-p})")
        for q in range(4):
            for hl in range(2):
                acc = 4 + 2 * q + hl
                A(f"v_dot2_f32_bf16 v{acc}, v{16+4*p+q}, s{42+hl}, {'0' if p == 0 else 'v%d' % acc}")
    for q in range(8): A(f"v_add_f32_dpp v{4+q}, v{4+q}, v{4+q} row_ror:8{DPP}")
    for op in ("v_permlane16_swap_b32", "v_permlane32_swap_b32"):
        for q in range(8): A(f"v_mov_b32 v{16+q}, v{4+q}")
        for q in range(8): A(f"{op} v{4+q}, v{16+q}")
        for q in range(8): A(f"v_add_f32 v{4+q}, v{4+q}, v{16+q}")
    A(f"""
    s_mov_b64 exec, 0xff
    ds_write_b128 v12, v[4:7]
    ds_write_b128 v12, v[8:11] offset:16
    s_mov_b64 exec, -1
    s_waitcnt lgkmcnt(0)
    s_barrier
    s_cmp_lg_u32 s36, 0
    s_cbranch_scc1 Lhn
    ds_read2st64_b32 v[4:5], v13 offset0:0 offset1:1
    ds_read2st64_b32 v[6:7], v13 offset0:2 offset1:3
    ds_read2st64_b32 v[8:9], v13 offset0:4 offset1:5
    ds_read2st64_b32 v[10:11], v13 offset0:6 offset1:7
    s_waitcnt lgkmcnt(0)
    v_pk_add_f32 v[4:5], v[4:5], v[6:7]
    v_pk_add_f32 v[8:9], v[8:9], v[10:11]
    v_pk_add_f32 v[4:5], v[4:5], v[8:9]
    v_add_f32 v4, v4, v5
    v_cvt_pk_bf16_f32 v5, v4, v4
    v_and_b32 v5, s41, v5
    v_sub_f32 v6, v4, v5
    v_cvt_pk_bf16_f32 v8, v5, v6
    v_and_b32 v7, s41, v8
    v_sub_f32 v6, v6, v7
    v_cvt_pk_bf16_f32 v9, v6, 0
    global_store_dwordx2 v14, v[8:9], s[30:31] sc0 sc1
    s_mov_b32 s46, 1
    s_waitcnt vmcnt(0)
    s_atomic_add s46, s[28:29], s56
    s_waitcnt lgkmcnt(0)
    Lhn:
    s_barrier
    v_add_u32 v14, 512, v14
    s_add_u32 s55, s55, 128
    s_add_u32 s56, s56, 128
    """)
    if base.PROF: A("s_mov_b32 s74, s76\ns_memrealtime s[76:77]\ns_waitcnt lgkmcnt(0)")
    A("s_cmp_lt_u32 s56, 256\ns_cbranch_scc1 Lhl")
    P.flush(3)
    A("s_endpgm")

def gen(A, name, c=Cfg, verbose=False):
    issue, slot, wait = schedule(c)
    if verbose:
        for i in range(-2, 29): print(i, ' '.join(k + str(j) + '.' + str(q) for k, j, q in issue[i]), wait.get(i))
        print({k: x for k, x in slot.items() if k[0] == "D"})
    kernel_head(A, name)
    end = A.label("end"); hlp = A.label("hlp"); kw_ = A.label("kw"); nw = A.label("nw"); tab = A.label("tab")
    auxt = A.label("auxt"); auxs = A.label("auxs"); til = A.label("til"); hold = A.label("hold")
    P0 = Prof(A, 1)
    class PH:
        def __init__(s, ph, kid=1): s.on = c.phase == ph; s.P = Prof(A, kid)
        def stamp(s, i):
            if s.on: s.P.stamp(i)
    P = PH(1); PA = PH(1, 3)
    class Bars:
        def __init__(s, marks, n1, kid=1): s.n = 0; s.marks = c.x_fine or marks; s.on = c.phase == 2; s.n1 = n1; s.P = Prof(A, kid)
        def bar(s):
            A("s_barrier")
            if s.on and s.n in s.marks: s.P.stamp(1 + s.marks.index(s.n))
            s.n += 1
        def mark(s, k):
            if s.on and not c.x_fine: s.P.stamp(1 + len(s.marks) + k)
        def fin(s, k=0):
            if c.phase == 0:
                if s.n1 == 13: s.P.flush(1)
                return
            if not s.on: s.P.flush(s.n1); return
            k = 0 if c.x_fine else k
            s.P.stamp(1 + len(s.marks) + k); s.P.flush(2 + len(s.marks) + k)
    cold = []
    class Cold:
        def __enter__(s): s.keep = A.L; A.L = []
        def __exit__(s, *a): cold.extend(A.L); A.L = s.keep
    wst = []
    def target(lab):
        wst.append(lab)
        A(f".p2align 6\n{lab}w:\ns_setpc_b64 s[96:97]\ns_nop 0\n{lab}:")
    A(f"s_cmp_ge_u32 s2, 256\ns_cbranch_scc1 {end}")
    P0.stamp(0)
    load_ptrs(A)
    A(f"s_getpc_b64 s[60:61]\nLpc:")
    vLane, vG, vJ = 1, 2, 3
    per = (c.code_bytes // 128 + 63) // 64
    vRow, vXG = 16, 48
    ffn_ids = """
    s_and_b32 s37, s2, 7
    s_lshr_b32 s38, s2, 3
    s_and_b32 s40, s38, 3
    s_lshr_b32 s39, s37, 1
    s_lshl_b32 s39, s39, 2
    s_add_u32 s39, s39, s40
    s_and_b32 s34, s37, 1
    s_lshr_b32 s35, s38, 2
    s_mul_i32 s38, s34, 7
    s_add_u32 s38, s38, s35
    s_mul_i32 s33, s40, 3
    s_lshl_b32 s37, s35, 1
    s_add_u32 s33, s33, s37
    s_cmp_ge_u32 s33, 14
    s_cselect_b32 s37, 14, 0
    s_sub_u32 s33, s33, s37
    """
    A(f"""
    v_lshrrev_b32 v4, 6, v0
    v_and_b32 v{vLane}, 63, v0
    s_and_b32 s37, s2, 7
    v_readfirstlane_b32 s36, v4
    s_mul_i32 s37, s37, 28
    s_lshr_b32 s38, s2, 3
    s_add_u32 s37, s37, s38
    s_mov_b32 s43, 0xffff0000
    s_cmp_lt_u32 s36, 8
    s_cbranch_scc1 {kw_}
    s_setprio {c.auxprio}
    v_lshrrev_b32 v5, 3, v{vLane}
    v_and_b32 v6, 7, v{vLane}
    v_mul_u32_u24 v7, 896, v5
    s_cmp_lt_u32 s36, 10
    s_cbranch_scc1 {til}
    s_and_b32 s36, s36, 1
    s_lshr_b32 s62, s2, 2
    s_and_b32 s62, s62, 62
    s_add_u32 s62, s62, s36
    s_mul_i32 s62, s62, {per*128}
    v_min_u32 v10, {per-1}, v{vLane}
    v_lshl_add_u32 v10, v10, 7, s62
    v_min_u32 v10, Lcode_end-Lpc-4, v10
    global_load_dword v99, v10, s[60:61]
    s_and_b32 s47, s2, 7
    s_lshl_b32 s47, s47, 5
    s_add_u32 s47, s47, s38
    s_mul_i32 s48, s47, {8*896}
    v_lshl_add_u32 v8, v6, 4, v7
    v_add_u32 v8, s48, v8
    s_cmp_eq_u32 s36, 1
    s_waitcnt lgkmcnt(0)
    s_cbranch_scc1 {hold}
    s_load_dword s56, s[30:31], {WS_E}
    """)
    for i in range(7): A(f"global_load_dwordx4 {v(vRow+4*i,4)}, v8, s[4:5] offset:{128*i}")
    A(f"""
    s_branch {auxs}
    {til}:
    s_cmp_ge_u32 s2, 224
    s_cbranch_scc1 {end}
    s_and_b32 s36, s36, 1
    s_mul_i32 s46, s37, 9363
    s_lshr_b32 s46, s46, 16
    s_mul_i32 s47, s46, 7
    s_sub_u32 s47, s37, s47
    s_lshl_b32 s46, s46, 1
    s_add_u32 s46, s46, s36
    s_mul_i32 s49, s46, {32*896}
    s_lshl_b32 s48, s47, 7
    s_add_u32 s49, s49, s48
    s_lshl_b32 s47, s47, 19
    s_lshl_b32 s46, s46, 8
    s_add_u32 s51, s47, s46
    s_lshl_b32 s46, s36, 12
    s_add_u32 s46, s46, {XT}
    s_mov_b32 m0, s46
    v_lshrrev_b32 v4, 1, v5
    v_xor_b32 v4, v4, v6
    v_lshl_add_u32 v12, v4, 4, v7
    v_xor_b32 v4, 4, v4
    v_lshl_add_u32 v13, v4, 4, v7
    v_add_u32 v13, {8*896-1024}, v13
    v_add_u32 v14, {16*896-2048}, v12
    v_add_u32 v15, {16*896-2048}, v13
    s_mov_b32 s34, {X_BYTES}
    s_mov_b32 s35, 0x20000
    s_waitcnt lgkmcnt(0)
    s_mov_b32 s32, s4
    s_mov_b32 s33, s5
    """)
    for i in range(4): A(f"buffer_load_dwordx4 v{12+i}, s[32:35], s49 offen offset:{1024*i} lds")
    A(f"s_load_dword s57, s[30:31], {WS_E}")
    A(f"s_branch {auxt}\n{kw_}:\ns_cmp_ge_u32 s2, 224\ns_cbranch_scc1 {hlp}")
    vP, vDT = 8, 12
    a2, b2 = 14, 15
    w1, w256, w2, w512 = 16, 18, 20, 22
    tA, tB, tC = 24, 26, 28
    G, G2, Hh, W4, HT, CV = 30, 46, 62, 68, 70, 78
    vTB, vA, vBc, vRA = 88, 94, 95, 96
    A(f"""
    v_mov_b32 v{vP}, 0
    v_mov_b32 v{vP+1}, 0
    v_mov_b32 v{vP+2}, 0
    v_mov_b32 v{vP+3}, 0
    s_lshl_b32 s48, s37, 10
    v_lshl_add_u32 v4, v0, 1, s48
    s_lshl_b32 s48, s37, 2
    s_lshl_b32 s56, s36, 14
    s_mov_b32 m0, s56
    s_lshr_b32 s38, s36, 2
    s_add_u32 s62, s60, {tab}-Lpc+2048
    s_addc_u32 s63, s61, 0
    s_waitcnt lgkmcnt(0)
    s_load_dword s52, s[14:15], s48
    global_load_short_d16_hi v{vP}, v4, s[6:7]
    global_load_short_d16_hi v{vP+1}, v4, s[8:9]
    global_load_short_d16_hi v{vP+2}, v4, s[10:11]
    global_load_short_d16_hi v{vP+3}, v4, s[12:13]
    s_load_dword s53, s[16:17], s48
    """)
    P.stamp(1)
    A(f"""
    v_bfe_u32 v{vG}, v0, 5, 1
    v_and_b32 v{vJ}, 31, v0
    s_lshl_b32 s46, s36, 15
    v_mul_u32_u24 v4, {GP}, v{vJ}
    v_lshl_add_u32 v4, v{vG}, 4, v4
    v_add_u32 v{vRA}, s46, v4
    s_bfe_u32 s39, s36, 0x10001
    s_and_b32 s40, s36, 1
    s_lshl_b32 s48, s39, 15
    s_lshl_b32 s47, s40, 8
    s_add_u32 s48, s48, s47
    s_add_u32 s48, s48, {KB0+64-24}
    v_and_b32 v4, 3, v0
    v_sub_u32 v4, 3, v4
    v_mul_u32_u24 v4, {KP}, v4
    v_bfe_u32 v5, v0, 2, 2
    v_lshl_add_u32 v4, v5, 3, v4
    v_bfe_u32 v5, v0, 4, 2
    v_lshl_add_u32 v4, v5, 4, v4
    v_add_u32 v{vA}, s48, v4
    s_mul_i32 s48, s39, {UPITCH}
    s_sub_u32 s48, s48, s47
    s_add_u32 s48, s48, {UO+512+16-192}
    v_and_b32 v4, 15, v0
    v_lshlrev_b32 v4, 5, v4
    v_lshlrev_b32 v5, 4, v5
    v_sub_u32 v4, v4, v5
    v_add_u32 v{vBc}, s48, v4
    s_add_u32 s64, s30, {WS_XG}
    s_addc_u32 s65, s31, 0
    s_mov_b32 s66, {XG_BYTES}
    s_mov_b32 s67, 0x20000
    s_and_b32 s47, s36, 3
    s_lshl_b32 s47, s47, 12
    v_lshl_add_u32 v97, v{vLane}, 4, s47
    s_lshl_b32 s44, s37, 14
    s_mov_b32 s54, {f32(8.0)}
    s_mov_b32 s55, {f32(256.0)}
    s_lshl_b32 s46, s38, 4
    v_mov_b32 v{vDT}, {f32(LOG2E)}
    s_cmp_lt_u32 s36, 4
    s_cbranch_scc1 Lnoprio
    s_setprio 1
    Lnoprio:
    s_waitcnt lgkmcnt(0)
    s_lshr_b32 s52, s52, s46
    s_lshl_b32 s52, s52, 16
    v_mul_f32 v{vDT}, s52, v{vDT}
    v_exp_f32 v{vDT}, v{vDT}
    v_cvt_pk_bf16_f32 v{vDT}, v{vDT}, v{vDT}
    v_and_b32 v{vDT}, s43, v{vDT}
    s_and_b32 s59, s53, s43
    s_lshl_b32 s58, s53, 16
    v_add_f32 v6, v{vDT}, v{vDT}
    """)
    P.stamp(2)
    A(f"""
    s_waitcnt vmcnt(2)
    v_mul_f32 v4, {f32(LOG2E)}, v{vP}
    v_exp_f32 v4, v4
    v_mul_f32 v{b2}, v{vP+1}, v{vDT}
    v_cvt_pk_bf16_f32 v4, v4, v4
    v_and_b32 v4, s43, v4
    v_mul_f32 v{a2}, v4, v{vDT}
    v_mul_f32 v{b2}, 0.15915494, v{b2}
    v_mul_f32 v{a2}, {f32(-LOG2E)}, v{a2}
    """)
    P.stamp(3)
    nb_ = [0]
    vPX, vPS_, vPA = 100, 116, 97
    xp = [f"buffer_load_dwordx4 {v(vPX+4*q,4)}, v{vPA}, s[64:67], s44 offen offset:{1024*q} sc1" for q in range(4)]
    xp += [f"global_load_dwordx4 {v(vPS_+4*q,4)}, v{vPA}, s[30:31] offset:{1024*q} sc1" for q in range(4)]
    def put(src, row, neg):
        r = CV + (nb_[0] & 7); nb_[0] += 1
        x = [f"v_cvt_pk_bf16_f32 v{r}, v{src}, {'-' if neg else ''}v{src+1}", f"ds_write_addtid_b32 v{r} offset:{row*GP}"]
        if nb_[0] == c.prio_mid: x[1] += "\ns_setprio 0"
        if nb_[0] == c.xp_at: x[1] += "\ns_cmp_lt_u32 s36, 4\ns_cbranch_scc1 Lnoxp\n" + "\n".join(xp) + "\nLnoxp:"
        return x
    def spread(puts, work):
        o = []
        while puts or work:
            p = puts.pop(0) if puts else None
            if p: o.append(p[0])
            if work: o += work.pop(0)
            if p: o.append(p[1])
        return o
    GR = 32
    for l in cexp(Hh, a2, b2, "s54", tA): A(l)
    A(f"v_mov_b32 v{CV+8}, 0x3f80\nds_write_addtid_b32 v{CV+8}")
    for l in cmul(Hh+2, Hh, Hh) + cmul(Hh+4, Hh+2, Hh) + cmul(W4, Hh+2, Hh+2): A(l)
    ex = merge(cexp(w1, a2, b2, None, tB), cexp(w256, a2, b2, "s55", tC))
    ex += ["s_waitcnt vmcnt(0)", f"v_mul_f32 v{G}, v{vP+2}, v6", f"v_mul_f32 v{G+1}, v{vP+3}, v6",
           "v_min_u32 v5, 255, v0\nv_lshlrev_b32 v6, 4, v5", "v_lshlrev_b32 v5, 3, v5",
           f"global_load_dwordx4 {v(vTB,4)}, v6, s[62:63] offset:-2048", f"global_load_dwordx2 {v(vTB+4,2)}, v5, s[62:63] offset:2048"]
    ex += cmul(w2, w1, w1) + cmul(G+2, G, w1) + cmul(w512, w256, w256)
    cur = [Hh, Hh+2, Hh+4, W4]; nxt = [HT, HT+2, HT+4, HT+6]; alt = [G2, G2+2, G2+4, G2+6]
    j = 1
    while j < 32:
        pend = [put(cur[r], j + r, False) for r in range(4) if j + r < 32]
        wk = [cmul(nxt[r], cur[r], W4) + [ex.pop(0) for _ in range(1) if ex] for r in range(4) if j + 4 + r < 32]
        if j + 4 >= 32: wk = [cmul(G+2*i, G+2*(i-2), w2) for i in range(2, 5)]
        for l in spread(pend, wk): A(l)
        cur, nxt = nxt, (alt if nxt[0] == HT else [HT, HT+2, HT+4, HT+6])
        j += 4
    assert not ex
    wk = [cmul(G+2*i, G+2*(i-2), w2) for i in range(5, 8)] + [cmul(G2+2*k, G+4*k, w256) for k in range(4)] + [cmul(G2+8, G, w512)]
    for l in spread([put(G+2*i, GR+i, True) for i in range(8)], wk): A(l)
    wk = [cmul(G2+10, G+8, w512), cmul(G2+12, G2, w512), cmul(G2+14, G2+4, w512), cmul(G, G2+8, w512), cmul(G+2, G2+12, w512), cmul(G+4, G, w512), cmul(G+6, G+2, w512), cmul(G+8, G+4, w512)]
    for l in spread([put(G2+2*i, GR+8+i, True) for i in range(8)], wk): A(l)
    for l in spread([put(G+2*i, GR+16+i, True) for i in range(5)], []): A(l)
    P.stamp(4)
    A(f"s_cmp_ge_u32 s36, 4\ns_cbranch_scc1 {nw}\ns_branch Lmw\n.p2align 12")
    target("Lmw")
    vACC, vEA, FR, TA_ = 8, 30, 100, 44
    tabprep = [f"s_lshl_b32 s46, s36, 15", f"v_lshl_add_u32 v4, v{vJ}, 2, s46", f"v_mul_u32_u24 v5, {4*TP}, v{vG}", "v_add_u32 v5, v5, v4", f"v_xor_b32 v7, 1, v{vG}"]
    tmin = []
    for b in range(4):
        o0 = 2 * b * TP + 128; o1 = 4 * (b & 1) * TP + 256 + 128 * (b >> 1)
        tabprep += [f"v_mul_u32_u24 v{TA_+b}, {abs(o1-o0)}, v{vG if o1 > o0 else 7}", f"v_add_u32 v{TA_+b}, v{TA_+b}, v4"]
        tmin.append(min(o0, o1))
    tabprep += [f"v_lshl_add_u32 v{TA_+4}, v{vG}, 9, v4", "s_waitcnt vmcnt(0)"]
    for r in range(11):
        tabprep += [f"v_and_b32 v{vEA+r}, 0xffff, v{vTB+(r>>1)}" if r % 2 == 0 else f"v_lshrrev_b32 v{vEA+r}, 16, v{vTB+(r>>1)}"]
    tabprep += ["v_cmp_ne_u32 s[44:45], 0, v0", f"v_lshlrev_b32 v6, 4, v0"]
    A("s_waitcnt lgkmcnt(0)\ns_barrier")
    P.stamp(5)
    def frd(n):
        b = FR + 8 * (n & 7); o = (n >> 3) * REG + 32 * (n & 7)
        return f"ds_read_b128 {v(b,4)}, v{vRA} offset:{GR*GP+o}\nds_read_b128 {v(b+4,4)}, v{vRA} offset:{o}"
    for n in range(6): A(frd(n))
    for n in range(16):
        b0 = FR + 8 * (n & 7)
        A(f"s_waitcnt lgkmcnt({2*min(5, 15-n)})\nv_mfma_f32_32x32x16_bf16 {v(vACC,16)}, {v(b0,4)}, {v(b0+4,4)}, {'0' if n == 0 else v(vACC,16)}")
        if n + 6 < 16: A(frd(n + 6))
        for l in tabprep[2*n:2*n+2]: A(l)
    assert len(tabprep) <= 32
    vW, vR, vO = 97, 98, 99
    A(f"""
    s_lshl_b32 s46, s36, 12
    s_add_u32 s46, s46, {PARO}
    v_lshl_add_u32 v{vW}, v{vLane}, 4, s46
    v_xor_b32 v{vR}, 0x1000, v{vW}
    s_lshl_b32 s46, s40, 10
    s_lshl_b32 s47, s39, 15
    s_add_u32 s47, s47, s46
    v_lshl_add_u32 v3, v{vLane}, 4, s47
    """)
    for b in range(4): A(f"ds_write_b32 v5, v{vACC+b} offset:{TP*b}")
    for b in range(4): A(f"ds_write_b32 v{TA_+b}, v{vACC+4+b} offset:{tmin[b]}")
    A(f"s_mov_b32 exec_hi, 1\nds_write_b32 v{TA_+4}, v{vACC+8} offset:512\ns_mov_b32 exec_hi, 0")
    for b in range(1, 4): A(f"ds_write_b32 v{TA_+4}, v{vACC+8+b} offset:{512+128*b}")
    A("s_mov_b32 exec_hi, -1\ns_waitcnt lgkmcnt(0)\ns_barrier")
    P.stamp(6)
    EV, CB = 100, 44
    for r in range(11): A(f"ds_read2st64_b32 {v(EV+2*r,2)}, v{vEA+r} offset0:0 offset1:128\nv_add_u32 v{vEA+r}, 0x10000, v{vEA+r}")
    for r in range(11): A(f"ds_read2st64_b32 {v(EV+22+2*r,2)}, v{vEA+r} offset0:0 offset1:128")
    for ch in range(2):
        E = EV + 22 * ch
        A(f"s_waitcnt lgkmcnt({11 if ch == 0 else 4})")
        for r in range(11): A(f"v_add_f32 v{E+2*r}, v{E+2*r}, v{E+2*r+1}")
        for r in range(3): A(f"v_cndmask_b32 v{E+2*r}, 0, v{E+2*r}, s[44:45]")
        for cp in range(4):
            b = CB + 16 * ch + 4 * cp
            for k in range(4):
                r0 = 3 - cp + 2 * k
                A(f"v_cvt_pk_bf16_f32 v{b+k}, v{E+2*r0}, v{E+2*r0+2}")
            A(f"ds_write_b128 v6, {v(b,4)} offset:{KB0+64+32768*ch+cp*KP}")
    P.stamp(7)
    A("s_waitcnt lgkmcnt(0)\ns_barrier")
    P.stamp(8)
    A(f"s_setprio {c.cprio}")
    AC = 8
    FBs = [40 + 8 * k for k in range(6)] + [100 + 8 * k for k in range(6)]
    def rd(Gi):
        r, n = Gi >> 3, Gi & 7
        b = FBs[Gi % 12]
        return [f"ds_read_b64 {v(b,2)}, v{vA} offset:{512*n+64*r}", f"ds_read_b64 {v(b+2,2)}, v{vA} offset:{512*n+64*r+8}",
                f"ds_read_b128 {v(b+4,4)}, v{vBc} offset:{512*n+64*(3-r)}"]
    def send(t): return f"s_mov_b64 exec, s[{48+2*(t&1)}:{49+2*(t&1)}]\nds_write_b128 v{vW}, {v(AC+4*t,4)} offset:{1024*(t>>1)}\ns_mov_b64 exec, -1"
    for Gi in range(4):
        for l in rd(Gi): A(l)
    A(f"""
    s_lshl_b32 s46, s37, 2
    s_add_u32 s46, s46, s39
    s_lshl_b32 s46, s46, 12
    s_lshl_b32 s47, s40, 9
    s_add_u32 s46, s46, s47
    s_add_u32 s46, s46, {WS_XG}
    v_and_b32 v4, 15, v0
    v_bfe_u32 v5, v0, 4, 2
    v_lshlrev_b32 v4, 5, v4
    v_lshrrev_b32 v6, 1, v5
    v_lshl_add_u32 v4, v6, 4, v4
    v_and_b32 v5, 1, v5
    v_lshl_add_u32 v4, v5, 10, v4
    v_add_u32 v{vO}, s46, v4
    """)
    started = set()
    def cm(r, a, b):
        t = a + b
        cc = v(AC + 4 * t, 4) if t in started else "0"
        started.add(t)
        return f"v_mfma_f32_16x16x32_bf16 {v(AC+4*t,4)}, {v(FBs[(8*r+a)%12],4)}, {v(FBs[(8*r+b)%12]+4,4)}, {cc}"
    def grp(n): return [(a, b) for a in range(n + 1) for b in range(n + 1) if max(a, b) == n and a + b <= 7]
    rq = []; nrd = 12; known = 0
    for Gi in range(28):
        r, n = Gi >> 3, Gi & 7
        rq += rd(Gi + 4)
        while nrd < 3 * (Gi + 1) + c.cmin: A(rq.pop(0)); nrd += 1
        if known < 3 * (Gi + 1):
            want = 3 * (Gi + 1)
            if n in c.cmerge and Gi > 3: want = min(want + 3, nrd - 3)
            A(f"s_waitcnt lgkmcnt({nrd - want})"); known = want
        for (a_, b_) in grp(n):
            A(cm(r, a_, b_))
            if rq: A(rq.pop(0)); nrd += 1
    for l in rq: A(l)
    PR, PP = 148, 116
    odd = A.label("odd"); jn = A.label("jn")
    A(f"s_cmp_eq_u32 s40, 1\ns_cbranch_scc1 {odd}")
    for par in range(2):
        if par:
            for _ in range(c.x_pad // 4): A("s_nop 0")
            target(odd)
        snd = [t for t in range(8) if t % 2 != par]
        def sw(t): return f"ds_write_b128 v{vW}, {v(AC+4*t,4)} offset:{1024*(t>>1)}"
        rest = [p for n in range(4, 8) for p in grp(n)]
        first = [p for p in rest if (p[0] + p[1]) % 2 != par]; last = [p for p in rest if (p[0] + p[1]) % 2 == par]
        A("s_waitcnt lgkmcnt(9)"); got = 4
        for k, p in enumerate(first):
            if max(p) > got: A(f"s_waitcnt lgkmcnt({2 if k > 3 else 3*(7-max(p)) + (1 if k > 1 else 0)})"); got = 7 if k > 3 else max(p)
            A(cm(3, *p))
            if k == 1: A(sw(snd[0]))
            if k == 3: A(sw(snd[1]))
        if got < 7: A("s_waitcnt lgkmcnt(2)")
        for k, p in enumerate(last):
            A(cm(3, *p))
            if k == 2: A(sw(snd[2]))
            if k == 7: A(sw(snd[3]))
        if par == 0: P.stamp(9)
        else: P.stamp(9)
        A("s_waitcnt lgkmcnt(0)\ns_barrier")
        for q in range(4): A(f"ds_read_b128 {v(PR+4*q,4)}, v{vR} offset:{1024*q}\nds_read_b128 {v(PP+4*q,4)}, v3 offset:{2048*q}")
        for q in range(4):
            A(f"s_waitcnt lgkmcnt({6-2*q})")
            k = AC + 4 * (2 * q + par)
            for h in range(2): A(f"v_pk_add_f32 {v(PR+4*q+2*h,2)}, {v(PR+4*q+2*h,2)}, {v(PP+4*q+2*h,2)}")
            for h in range(2): A(f"v_pk_add_f32 {v(PR+4*q+2*h,2)}, {v(PR+4*q+2*h,2)}, {v(k+2*h,2)}")
            o_ = 132 + 2 * q
            A(f"v_cvt_pk_bf16_f32 v{o_}, v{PR+4*q}, v{PR+4*q+1}\nv_cvt_pk_bf16_f32 v{o_+1}, v{PR+4*q+2}, v{PR+4*q+3}")
            if q & 1:
                A(f"v_permlane16_swap_b32 v{o_-2}, v{o_}\nv_permlane16_swap_b32 v{o_-1}, v{o_+1}")
                A(f"global_store_dwordx4 v{vO}, {v(o_-2,4)}, s[30:31] offset:{1024*(q-1)} sc0 sc1")
        if not par: A(f"s_branch {jn}")
    A(f"{jn}:")
    P.stamp(10)
    vB, vAa, vS, vCR, vCA = 8, 10, 12, 14, 16
    vX = 18
    CN, CA, MB = 24, 32, 38
    F = [48, 64, 80]
    ACC = 96
    T1, T2, OUT = 48, 56, 64
    def csetup():
        A(ffn_ids)
        A(f"""
        s_and_b32 s40, s36, 1
        s_bfe_u32 s41, s36, 0x10001
        s_lshr_b32 s49, s36, 2
        v_bfe_u32 v2, v{vLane}, 2, 2
        v_bfe_u32 v3, v{vLane}, 4, 1
        v_lshrrev_b32 v4, 5, v{vLane}
        v_and_b32 v6, 3, v{vLane}
        v_lshl_add_u32 v5, v4, 3, v2
        v_lshlrev_b32 v7, 8, v5
        v_lshl_add_u32 v7, v6, 3, v7
        v_lshl_add_u32 v7, v3, 5, v7
        s_lshl_b32 s42, s40, 1
        s_add_u32 s42, s42, s41
        v_xor_b32 v{vB}, s42, v2
        v_lshl_add_u32 v{vB}, v{vB}, 6, v7
        v_xor_b32 v{vB+1}, 64, v{vB}
        v_add_u32 v17, 0x10000, v{vB}
        v_add_u32 v46, 0x10000, v{vB+1}
        s_lshl_b32 s42, s34, 1
        s_add_u32 s42, s42, s40
        v_xor_b32 v{vX}, s42, v2
        v_lshl_add_u32 v{vX}, v{vX}, 6, v7
        v_lshlrev_b32 v7, 7, v5
        v_lshl_add_u32 v7, v6, 3, v7
        v_lshl_add_u32 v7, v3, 12, v7
        v_lshrrev_b32 v5, 1, v2
        v_lshl_add_u32 v5, v3, 1, v5
        s_lshl_b32 s42, s41, 1
        v_xor_b32 v5, s42, v5
        v_lshl_add_u32 v7, v5, 5, v7
        v_add_u32 v{vAa}, {12*BLK}, v7
        v_xor_b32 v{vAa+1}, 32, v{vAa}
        s_lshl_b32 s42, s39, 2
        s_lshl_b32 s43, s40, 1
        s_add_u32 s42, s42, s43
        s_add_u32 s43, s42, s41
        s_xor_b32 s44, s43, 1
        s_lshl_b32 s45, s38, 3
        s_lshl_b32 s46, s41, 1
        s_add_u32 s45, s45, s46
        s_lshl_b32 s46, s49, 2
        s_add_u32 s45, s45, s46
        s_lshl_b32 s46, s45, 7
        s_add_u32 s45, s45, {WS_ACT // 1024}
        s_mul_i32 s43, s43, 112
        s_mul_i32 s44, s44, 112
        s_add_u32 s43, s43, s45
        s_add_u32 s44, s44, s45
        s_lshl_b32 s43, s43, 10
        s_lshl_b32 s44, s44, 10
        v_lshl_add_u32 v{vS}, v{vLane}, 4, s43
        v_lshl_add_u32 v{vS+1}, v{vLane}, 4, s44
        v_and_b32 v5, 15, v{vLane}
        v_mul_u32_u24 v7, {F_*8}, v3
        v_lshl_add_u32 v5, v5, 3, v7
        s_add_u32 s46, s46, {WS_CS}
        v_add_u32 v{vCA}, s46, v5
        v_and_b32 v5, 31, v{vLane}
        s_lshl_b32 s42, s40, 1
        s_add_u32 s42, s42, s41
        s_lshl_b32 s43, s42, 9
        s_add_u32 s43, s43, {CON}
        v_lshl_add_u32 v{vCR}, v5, 4, s43
        v_xor_b32 v{vCR+1}, 512, v{vCR}
        s_lshl_b32 s43, s39, 11
        s_lshl_b32 s44, s41, 8
        s_add_u32 s43, s43, s44
        s_add_u32 s43, s43, {WS_FLAGS}
        s_lshl_b32 s44, s34, 10
        s_add_u32 s59, s43, s44
        s_lshl_b32 s44, s40, 10
        s_add_u32 s58, s43, s44
        s_lshl_b32 s44, s49, 9
        s_add_u32 s58, s58, s44
        v_mov_b32 v{CA+4}, 0
        v_mov_b32 v{CA+5}, 0
        v_mov_b32 v{MB+2}, 0
        v_mov_b32 v{MB+3}, 0
        v_mov_b32 v{MB+6}, 0
        v_mov_b32 v{MB+7}, 0
        v_cmp_eq_u32 s[52:53], 0, v4
        s_mov_b32 s47, 0x3f803f80
        s_mov_b32 s48, 0xffff0000
        """)
    caload = [f"global_load_dwordx2 {v(CA,2)}, v{vCA}, s[30:31] sc1", f"global_load_dwordx2 {v(CA+2,2)}, v{vCA}, s[30:31] offset:128 sc1"]
    def preads(p, j):
        s, ks = j >> 1, j & 1
        f = F[j % 3]
        ho = (slot[("H", s)] % 8) * BLK + 4096 * ks
        wo = (slot[("W", 14 * p + s)] - 12) * BLK + 2048 * ks
        o = []
        for kind, i in (("B", 0), ("A", 0), ("B", 1), ("A", 1)):
            ab = vB + i if s < 8 else (17, 46)[i]
            if kind == "B": o += [f"ds_read_b64_tr_b16 {v(f+8+4*i,2)}, v{ab} offset:{ho}", f"ds_read_b64_tr_b16 {v(f+10+4*i,2)}, v{ab} offset:{ho+1024}"]
            else: o += [f"ds_read_b64_tr_b16 {v(f+4*i,2)}, v{vAa+i} offset:{wo}", f"ds_read_b64_tr_b16 {v(f+2+4*i,2)}, v{vAa+i} offset:{wo+512}"]
        return o
    def pmfma(j, first=False):
        f = F[j % 3]
        return [f"v_mfma_f32_32x32x16_bf16 {v(ACC+32*t+16*rt,16)}, {v(f+4*t,4)}, {v(f+8+4*rt,4)}, {'0' if first else v(ACC+32*t+16*rt,16)}" for (t, rt) in ((0, 0), (0, 1), (1, 0), (1, 1))]
    def corr(first):
        return [f"v_mfma_f32_32x32x16_bf16 {v(ACC+32*t+16*rt,16)}, {v(CA+2*t,4)}, {v(MB+4*rt,4)}, {'0' if first else v(ACC+32*t+16*rt,16)}" for t in range(2) for rt in range(2)]
    mkmb = [f"v_cndmask_b32 v{MB+4*rt+k}, 0, v{CN+4*rt+3}, s[52:53]" for rt in range(2) for k in range(2)]
    def inter(m, r):
        per_ = (len(r) + 3) // 4
        for i in range(4):
            A(m[i])
            for l in r[per_*i:per_*(i+1)]: A(l)
    def pstep(p, s):
        for h in range(2):
            A("s_waitcnt lgkmcnt(8)")
            inter(pmfma(2*s - 2 + h, s == 1 and h == 0), preads(p, 2*s + h))
        k = s - c.ca_load if p == 0 else 14 + s - c.cs2[1] - 1
        if k in (0, 1): A(caload[k])
    def epi(t, rt, n, packed):
        a = ACC + 32 * t + 16 * rt
        cn = CN + 4 * rt
        o_ = OUT + 4 * (n & 1)
        L = []
        if packed:
            L += [f"v_pk_mul_f32 {v(T1+2*q,2)}, {v(a+2*q,2)}, {v(a+2*q,2)}" for q in range(4)]
            L += [f"v_pk_fma_f32 {v(T1+2*q,2)}, {v(T1+2*q,2)}, {v(cn,2)}, {v(cn,2)} op_sel:[0,1,0] op_sel_hi:[1,1,0]" for q in range(4)]
            L += [f"v_pk_mul_f32 {v(T1+2*q,2)}, {v(T1+2*q,2)}, {v(a+2*q,2)}" for q in range(4)]
            L += [f"v_exp_f32 v{T1+q}, v{T1+q}" for q in range(8)]
            L += [f"v_pk_mul_f32 {v(T2+2*q,2)}, {v(a+2*q,2)}, {v(a+8+2*q,2)}" for q in range(4)]
            L += [f"v_pk_fma_f32 {v(T1+2*q,2)}, {v(T1+2*q,2)}, {v(cn+2,2)}, {v(cn+2,2)} op_sel_hi:[1,0,0]" for q in range(4)]
            L += [f"v_rcp_f32 v{T1+q}, v{T1+q}" for q in range(8)]
            L += [f"v_pk_mul_f32 {v(T2+2*q,2)}, {v(T2+2*q,2)}, {v(T1+2*q,2)}" for q in range(4)]
            L += [f"v_cvt_pk_bf16_f32 v{o_+q}, v{T2+2*q}, v{T2+2*q+1}" for q in range(4)]
        else:
            def st(q):
                return [f"v_mul_f32 v{T1+q}, v{a+q}, v{a+q}", f"v_fma_f32 v{T1+q}, v{T1+q}, v{cn+1}, v{cn}", f"v_mul_f32 v{T1+q}, v{T1+q}, v{a+q}",
                        f"v_exp_f32 v{T1+q}, v{T1+q}", f"v_mul_f32 v{T2+q}, v{a+q}, v{a+8+q}", f"v_fma_f32 v{T1+q}, v{T1+q}, v{cn+2}, v{cn+2}",
                        f"v_rcp_f32 v{T1+q}, v{T1+q}", f"v_mul_f32 v{T2+q}, v{T2+q}, v{T1+q}"]
            for q0 in range(0, 8, c.il):
                xs = [st(q) for q in range(q0, q0 + c.il)]
                for k in range(8): L += [x[k] for x in xs]
                L += [f"v_cvt_pk_bf16_f32 v{o_+q//2}, v{T2+q}, v{T2+q+1}" for q in range(q0, q0 + c.il, 2)]
        L += [f"global_store_dwordx4 v{vS+rt}, {v(o_,4)}, s[30:31] offset:{1024*t} {c.stflag}"]
        return L
    def cost(l): return 2 if l.startswith(("v_exp", "v_rcp", "v_sqrt")) else c.stcost if l.startswith("global_store") else 1
    def signal(t, later=None):
        A(f"s_mov_b32 s70, 1\ns_waitcnt vmcnt({2-2*t if later is None else later})\ns_atomic_add s70, s[30:31], s58\ns_add_u32 s58, s58, 128")
    def poll_issue(r, off):
        A(f"s_mov_b32 s{r}, 0\ns_add_u32 s68, s59, {off}\ns_atomic_add s{r}, s[30:31], s68 glc")
    def poll_wait(r, off, inline=False):
        pl = A.label("poll"); ok = A.label("ok")
        if inline:
            A(f"s_mov_b32 s45, 0\n{pl}:\ns_waitcnt lgkmcnt(0)\ns_cmp_ge_u32 s{r}, 14\ns_cbranch_scc1 {ok}")
            poll_issue(r, off)
            A(f"s_add_u32 s45, s45, 1\ns_cmp_lt_u32 s45, {SPIN}\ns_cbranch_scc1 {pl}\ns_waitcnt lgkmcnt(0)\n{ok}:")
            return
        A(f"s_waitcnt lgkmcnt(0)\ns_cmp_lt_u32 s{r}, 14\ns_cbranch_scc1 {pl}\n{ok}:")
        with Cold():
            A(f"{pl}:\ns_mov_b32 s45, 0\n{pl}b:")
            poll_issue(r, off)
            A(f"s_add_u32 s45, s45, 1\ns_waitcnt lgkmcnt(0)\ns_cmp_ge_u32 s{r}, 14\ns_cbranch_scc1 {ok}\ns_cmp_lt_u32 s45, {SPIN}\ns_cbranch_scc1 {pl}b\ns_branch {ok}")
    PA_, PB_ = 69, 71
    Q = Bars([0, 14, c.drain0[1] + 1, 29], 13)
    AC2, ID, HF = 80, 160, 72
    csetup()
    if c.emode: A(f"s_waitcnt vmcnt(0)\ns_sleep {c.emode}")
    A("s_waitcnt vmcnt(0)\ns_barrier")
    P.stamp(11)
    A(f"""
    s_lshl_b32 s43, s35, 1
    s_add_u32 s43, s43, s41
    s_sub_u32 s43, s43, s38
    s_cselect_b32 s44, 14, 0
    s_add_u32 s43, s43, s44
    s_cmp_ge_u32 s43, 12
    s_cselect_b32 s44, {2 if c.w8 else 0}, 0
    s_add_u32 s43, s43, s44
    s_lshl_b32 s43, s43, 13
    v_add_u32 v{vX}, s43, v{vX}
    v_lshlrev_b32 v7, 3, v4
    v_sub_u32 v7, v5, v7
    v_mov_b32 v{vX+1}, 0x3f80
    v_mov_b32 v{vX+2}, 1.0
    """)
    for j in range(2):
        for i in range(4):
            d0 = 16 * j + 2 * i
            A(f"v_cmp_eq_u32 vcc, {d0}, v7\nv_cmp_eq_u32 s[50:51], {d0+1}, v7\nv_cndmask_b32 v{ID+4*j+i}, 0, v{vX+1}, vcc\nv_cndmask_b32 v{ID+4*j+i}, v{ID+4*j+i}, v{vX+2}, s[50:51]")
    A("s_setprio 2")
    Q.bar()
    P.stamp(12)
    for l in preads(0, 0) + preads(0, 1): A(l)
    for s in range(1, 14):
        Q.bar(); pstep(0, s)
    Q.bar()
    r = [f"ds_read_b128 {v(CN+4*i,4)}, v{vCR+i}" for i in range(2)] + [f"ds_read_b64_tr_b16 {v(HF+2*i,2)}, v{vX} offset:{4096*(i>>1)+1024*(i&1)}" for i in range(4)]
    A("s_waitcnt lgkmcnt(8)"); inter(pmfma(26), r)
    A("s_waitcnt vmcnt(0) lgkmcnt(4)"); inter(pmfma(27), mkmb)
    for l in corr(False): A(l)
    A("s_waitcnt lgkmcnt(0)")
    A("s_setprio 0")
    E1 = []
    for n in range(4): E1 += epi(n >> 1, n & 1, n, c.e1_packed)
    tot = sum(cost(x) for x in E1); per1 = tot / (c.e1_last - c.e1_first + 1); bud = 0.0
    vD, vT = 8, 14
    gsetup = f"""
    v_lshl_add_u32 v7, v4, 2, v2
    v_lshlrev_b32 v7, 7, v7
    v_lshrrev_b32 v{vD}, 1, v2
    v_xor_b32 v{vD}, s41, v{vD}
    v_lshl_add_u32 v7, v{vD}, 6, v7
    v_lshl_add_u32 v7, v3, 5, v7
    v_lshl_add_u32 v7, v6, 3, v7
    s_lshl_b32 s43, s41, 12
    v_add_u32 v{vD}, s43, v7
    v_xor_b32 v{vD+1}, 64, v{vD}
    v_add_u32 v{vD+2}, 0x10000, v{vD}
    v_add_u32 v{vD+3}, 0x10000, v{vD+1}
    v_lshlrev_b32 v{vT}, 4, v{vLane}
    """
    gsetup2 = f"""
    s_lshl_b32 s43, s39, 2
    s_lshl_b32 s44, s34, 1
    s_add_u32 s43, s43, s44
    s_add_u32 s43, s43, s40
    s_mul_i32 s55, s43, {112*1024}
    s_mul_i32 s43, s43, {32*896}
    s_lshl_b32 s44, s35, 7
    s_add_u32 s43, s43, s44
    s_lshl_b32 s44, s41, 6
    s_add_u32 s43, s43, s44
    v_mul_u32_u24 v5, 896, v5
    v_lshl_add_u32 v5, v4, 4, v5
    v_add_u32 v5, s43, v5
    s_lshl_b32 s44, s41, 11
    s_add_u32 s55, s55, s44
    s_lshl_b32 s4, s33, 13
    s_add_u32 s4, s4, s55
    s_add_u32 s54, s55, {14*8192}
    s_add_u32 s64, s30, {WS_ACT}
    s_addc_u32 s65, s31, 0
    s_mov_b32 s66, {ACT_BYTES}
    s_mov_b32 s67, 0x20000
    """
    gsetup3 = "\n".join(f"s_add_u32 s{4+k}, s{3+k}, 8192\ns_cmp_ge_u32 s{4+k}, s54\ns_cselect_b32 s{4+k}, s55, s{4+k}" for k in range(1, 14))
    TRQ = [96 + 4 * k for k in range(18)] + [16, 20, 24, 28]
    DB = [32, 40, 48, 56]
    AO = [AC2, 64]
    seq = [(14 * hf + b, j) for hf in range(2) for j in range(2) for b in range(14)]
    cons = [(b, j) for b in range(14) for j in range(2)] + seq[28:]
    freeq = list(TRQ); treg = {}
    def tload(n):
        b, j = seq[n]
        if (b, j) not in treg: treg[(b, j)] = freeq.pop(0)
        o = []
        if n == 28: o += [f"v_add_u32 v15, 4096, v{vT}"]
        if c.x_notl and n >= 28: return o
        o += [f"buffer_load_dwordx4 {v(treg[(b, j)],4)}, v{vT if n < 28 else 15}, s[64:67], s{4+b%14} offen offset:{1024*j} sc1"]
        return o
    nst = 0; early = 0
    assert c.drain0[1] <= c.chkA and c.e1_last + 3 <= c.chkA and sum(c.earlyT) <= 14
    for i in range(15, 29):
        Q.bar()
        if i == c.drain0[0]:
            assert nst >= 2
            signal(0, nst - 2)
        if i >= c.e1_first:
            bud += per1
            while E1 and (bud > 0 or i == c.e1_last):
                x = E1.pop(0); A(x); bud -= cost(x)
                if x.startswith("global_store"): nst += 1
        if i in c.cs2:
            sk = A.label("cs2")
            A(f"s_cmp_lg_u32 s36, 0\ns_cbranch_scc1 {sk}")
            ld = f"global_load_dword v47, v{MB+2}, s[28:29] offset:128 sc1"
            if i == c.cs2[0]: A(ld)
            else: A(f"s_mov_b32 s45, 0\n{sk}p:\ns_waitcnt vmcnt(0)\nv_cmp_gt_u32 vcc, 32, v47\ns_cbranch_vccz {sk}\ns_sleep {c.cs_back}\n{ld}\ns_add_u32 s45, s45, 1\ns_cmp_lt_u32 s45, {SPIN}\ns_cbranch_scc1 {sk}p")
            A(f"{sk}:")
        if i == c.pollA: poll_issue(PA_, 0)
        if i == c.e1_last + 1: A(gsetup)
        if i == c.e1_last + 2: A(gsetup2)
        if i == c.e1_last + 3: A(gsetup3)
        if i == c.chkA: A("s_waitcnt lgkmcnt(0)")
        if i == c.drain0[1]:
            signal(1)
            A(f"v_add_u32 v{vD+4}, 0x20000, v{vD}\nv_add_u32 v{vD+5}, 0x20000, v{vD+1}")
        if i == c.poll0: poll_issue(PB_, 128)
        if 0 <= i - c.chkA < len(c.earlyT):
            sk = A.label("et")
            A(f"s_cmp_lt_u32 s{PA_}, 14\ns_cbranch_scc1 {sk}")
            for _ in range(c.earlyT[i - c.chkA]):
                for l in tload(early): A(l)
                early += 1
            A(f"{sk}:")
    Q.bar()
    A(f"v_mfma_f32_32x32x16_bf16 {v(AC2,16)}, {v(ID,4)}, {v(HF,4)}, 0")
    A(f"v_mfma_f32_32x32x16_bf16 {v(AC2,16)}, {v(ID+4,4)}, {v(HF+4,4)}, {v(AC2,16)}")
    sk = A.label("et")
    A(f"s_cmp_lt_u32 s{PA_}, 14\ns_cbranch_scc1 {sk}c\n{sk}:")
    with Cold():
        A(f"{sk}c:")
        poll_wait(PA_, 0, True)
        for n in range(early):
            for l in tload(n): A(l)
        A(f"s_branch {sk}")
    def dreads(n):
        b, j = cons[n]
        sd = slot[("D", b)]; f = DB[n & 3]
        o = []
        for nt in range(2):
            do = (sd % 8) * BLK + 2048 * j
            ad = vD + 2 * (sd // 8) + nt
            o += [f"ds_read_b64_tr_b16 {v(f+4*nt,2)}, v{ad} offset:{do}", f"ds_read_b64_tr_b16 {v(f+4*nt+2,2)}, v{ad} offset:{do+1024}"]
        return o
    def gm(n):
        f = DB[n & 3]
        return [f"v_mfma_f32_32x32x16_bf16 {v(AO[nt],16)}, {v(f+4*nt,4)}, {v(treg[cons[n]],4)}, {'0' if (n == 0 and nt == 1) else v(AO[nt],16)}" for nt in (1, 0)]
    issued = early; mk = 0
    while issued < 14:
        for l in tload(issued): A(l)
        issued += 1
    poll_wait(PB_, 128, True)
    Q.mark(mk); mk += 1
    lim = 28
    for n in range(56):
        if n == 14 and not c.auxpoll: A("s_waitcnt lgkmcnt(0)\ns_barrier")
        for y in (c.ya_at, c.yb_at):
            if n == y:
                if c.auxpoll and y == c.ya_at and y < 16: A("s_waitcnt lgkmcnt(0)")
                A("s_barrier")
                Q.mark(mk); mk += 1
                lim += 14
        k = 99 if n == 0 else c.pace.get(n, c.pace1 if n < 28 else c.pace2)
        while issued < lim and freeq and k > (2 if c.tpost and n else 0):
            for l in tload(issued): A(l)
            issued += 1; k -= 1
        assert seq.index(cons[n]) < issued
        if n == 0:
            for l in dreads(0) + dreads(1): A(l)
        if n == c.g_pre:
            if c.xe: A("s_barrier")
            Q.mark(mk); mk += 1
        if c.auxpoll and n == 32: A("s_barrier")
        r = dreads(n + 2) if n + 2 < 56 else []
        A(f"s_waitcnt vmcnt({issued-1-seq.index(cons[n])}) lgkmcnt({4 if n < 55 else 0})")
        if n in (28, 42): Q.mark(mk); mk += 1
        m = gm(n)
        for i in range(2):
            A(m[i])
            if c.tpost and issued < lim and freeq and k > 1 - i:
                for l in tload(issued): A(l)
                issued += 1
            for l in r[2*i:2*i+2]: A(l)
        freeq.append(treg[cons[n]])
    assert 14 <= c.ya_at <= 26 and c.ya_at <= c.yb_at <= 32 and c.yb_at >= (20 if c.auxpoll else 24)
    while mk < 6: Q.mark(mk); mk += 1
    Q.mark(6)
    assert all(slot[("D", b)] not in (8, 9) for b in range(11, 28))
    A(f"""
    s_lshl_b32 s43, s36, 12
    s_add_u32 s43, s43, {8*BLK}
    v_lshl_add_u32 v2, v{vLane}, 4, s43
    v_xor_b32 v3, 0x2000, v2
    """)
    for q in range(4): A(f"ds_write_b128 v2, {v(AO[1]+4*q,4)} offset:{1024*q}")
    A("s_waitcnt lgkmcnt(0)\ns_barrier")
    for q in range(4): A(f"ds_read_b128 {v(32+4*q,4)}, v3 offset:{1024*q}")
    for hq in range(2):
        A(f"s_waitcnt lgkmcnt({2-2*hq})")
        for q in range(4*hq, 4*hq+4): A(f"v_pk_add_f32 {v(AC2+2*q,2)}, {v(AC2+2*q,2)}, {v(32+2*q,2)}")
        for q in range(4*hq, 4*hq+4): A(f"v_cvt_pk_bf16_f32 v{48+q}, v{AC2+2*q}, v{AC2+2*q+1}")
        A(f"v_permlane32_swap_b32 v{48+4*hq}, v{48+4*hq+2}\nv_permlane32_swap_b32 v{48+4*hq+1}, v{48+4*hq+3}")
        A(f"global_store_dwordx4 v5, {v(48+4*hq,4)}, s[26:27] offset:{32*hq} {c.outflag}")
    Q.fin(7)
    A("s_endpgm")
    target(nw)
    A(f"s_and_b32 s46, s36, 3\ns_mov_b32 s45, 0\nv_mov_b32 v11, {TAGA}")
    def xpoll():
        for l in xp: A(l)
    A("s_waitcnt lgkmcnt(0)\ns_barrier")
    P.stamp(5)
    A(f"""
    ds_read_b32 v11, v11
    s_lshl_b32 s47, s46, 10
    s_add_u32 s47, s47, {UO+512}
    v_xor_b32 v9, 3, v{vLane}
    v_lshl_add_u32 v9, v9, 2, s47
    s_lshl_b32 s47, s46, 11
    v_lshrrev_b32 v5, 3, v{vLane}
    v_lshl_add_u32 v5, v5, 4, s47
    v_bfe_u32 v6, v{vLane}, 1, 2
    v_lshl_add_u32 v5, v6, 8, v5
    v_and_b32 v6, 1, v{vLane}
    v_lshl_add_u32 v10, v6, 3, v5
    """)
    if not c.xp_at:
        if c.poll_late: A(f"s_sleep {c.poll_late}")
        xpoll()
    if not c.xp_chk:
        A(f"s_mov_b32 s45, 1\ns_barrier\ns_setprio {c.nprio}")
    pl = A.label("xp"); ok = A.label("xok"); nb1 = A.label("xnb")
    A(f"{pl}:\ns_waitcnt vmcnt(0) lgkmcnt(0)\nv_min3_u32 v4, v{vPX+1}, v{vPX+3}, v11\nv_max3_u32 v5, v{vPX+1}, v{vPX+3}, v11")
    for q in range(1, 8): A(f"v_min3_u32 v4, v4, v{vPX+4*q+1}, v{vPX+4*q+3}\nv_max3_u32 v5, v5, v{vPX+4*q+1}, v{vPX+4*q+3}")
    assert not c.xp_chk
    A(f"v_cmp_ne_u32 vcc, v4, v5\ns_cbranch_vccnz {pl}c\n{ok}:")
    with Cold():
        A(f"{pl}c:\ns_add_u32 s45, s45, 1\ns_cmp_gt_u32 s45, {SPIN}\ns_cbranch_scc1 {ok}")
        if c.xmask:
            for q in range(8):
                A(f"v_cmp_ne_u32 vcc, v{vPX+4*q+1}, v11\nv_cmp_ne_u32 s[50:51], v{vPX+4*q+3}, v11\ns_or_b64 exec, vcc, s[50:51]\ns_cbranch_execz {pl}m{q}\n{xp[q]}\n{pl}m{q}:\ns_mov_b64 exec, -1")
        else: xpoll()
        A(f"s_branch {pl}")
    P.stamp(6)
    if c.x_cnt: A("s_waitcnt lgkmcnt(0)\ns_mul_i32 s74, s45, 100\ns_add_u32 s74, s74, s72")
    NU, PRE, UB = 16, 32, 48
    for half in range(2):
        st = []
        for r in range(4 * half, 4 * half + 4):
            S = vPS_ + 2 * r; X = vPX + 2 * r
            t = 60 + 4 * (r & 3)
            st.append([f"v_and_b32 v{t+2}, s43, v{S}", f"v_rcp_f32 v{t+2}, v{t+2}", f"v_lshlrev_b32 v{t}, 16, v{S}",
                  f"v_lshlrev_b32 v{PRE+2*r}, 16, v{X}", f"v_and_b32 v{PRE+2*r+1}, s43, v{X}",
                  f"v_pk_add_f32 {v(NU+2*r,2)}, {v(PRE+2*r,2)}, {v(t,2)} op_sel_hi:[1,0] neg_lo:[0,1] neg_hi:[0,1]" if c.npk else f"v_sub_f32 v{NU+2*r}, v{PRE+2*r}, v{t}\nv_sub_f32 v{NU+2*r+1}, v{PRE+2*r+1}, v{t}",
                  f"v_cvt_pk_bf16_f32 v{NU+2*r+1}, v{NU+2*r}, v{NU+2*r+1}",
                  f"v_lshlrev_b32 v{NU+2*r}, 16, v{NU+2*r+1}", f"v_and_b32 v{NU+2*r+1}, s43, v{NU+2*r+1}",
                  f"v_pk_mul_f32 {v(NU+2*r,2)}, {v(NU+2*r,2)}, {v(t+2,2)} op_sel_hi:[1,0]" if c.npk else f"v_mul_f32 v{NU+2*r}, v{NU+2*r}, v{t+2}\nv_mul_f32 v{NU+2*r+1}, v{NU+2*r+1}, v{t+2}"])
        for l in merge(*st): A(l)
        for ch in range(2):
            for k in (2 * half, 2 * half + 1): A(f"v_cvt_pk_bf16_f32 v{UB+4*ch+k}, v{NU+4*k+2+ch}, v{NU+4*k+ch}")
    P.stamp(7)
    for half in range(2):
        for ch in range(2):
            A(f"ds_write2st64_b32 v9, v{UB+4*ch+2*half}, v{UB+4*ch+2*half+1} offset0:{ch*UPITCH//256+2*half} offset1:{ch*UPITCH//256+2*half+1}")
    A("s_setprio 0\ns_waitcnt lgkmcnt(0)\ns_barrier")
    P.stamp(8)
    if c.x_quietN: A("s_sleep 60")
    PO = 60
    for ch in range(2):
        for k in range(4):
            A(f"v_lshlrev_b32 v4, 16, v{UB+4*ch+k}\nv_and_b32 v5, s43, v{UB+4*ch+k}")
            A(f"v_fma_f32 v{PO+8*ch+2*k+1}, v4, s{58+ch}, v{PRE+4*k+2+ch}\nv_fma_f32 v{PO+8*ch+2*k}, v5, s{58+ch}, v{PRE+4*k+ch}")
            A(f"ds_write_b64 v10, {v(PO+8*ch+2*k,2)} offset:{32768*ch+1024*(k>>1)+128*(k&1)}")
    A("v_mov_b32 v90, v11")
    csetup()
    Q = Bars([0, c.gat_check, c.gat_check + 1, 14, 28, 29], 10)
    ST, GA = 18, 96
    vPS, vGA = 22, 23
    A(f"""
    s_mul_i32 s43, s39, {14*1024}
    s_lshl_b32 s44, s42, 8
    s_add_u32 s43, s43, s44
    s_add_u32 s43, s43, {WS_PS}
    v_lshl_add_u32 v{vPS}, v5, 3, s43
    v_mul_u32_u24 v7, 7168, v4
    v_add3_u32 v{vGA}, v{vPS}, v7, 64
    v_add_u32 v{vGA}, {3072-64}, v{vGA}
    s_lshl_b32 s44, s38, 10
    v_add_u32 v{vPS}, s44, v{vPS}
    """)
    nb = A.label("nb"); pz = A.label("pz"); pzo = A.label("pzo")
    pzl = "global_load_dwordx4 v[48:51], v47, s[30:31] sc1\nglobal_load_dwordx4 v[52:55], v47, s[30:31] offset:16 sc1"
    A(f"""
    s_cmp_lg_u32 s36, 4
    s_cbranch_scc1 {nb}a
    v_min_u32 v47, 55, v{vLane}
    v_lshlrev_b32 v47, 5, v47
    v_add_u32 v47, {WS_PZ}, v47
    s_mov_b32 s45, 0
    {pzl}
    {nb}a:
    """)
    P.stamp(9)
    A(f"""
    s_waitcnt lgkmcnt(0)
    s_barrier
    s_cmp_lg_u32 s36, 4
    s_cbranch_scc1 {nb}
    {pz}:
    s_waitcnt vmcnt(0)
    v_min3_u32 v56, v48, v49, v90
    v_max3_u32 v57, v48, v49, v90
    v_min3_u32 v56, v50, v51, v56
    v_max3_u32 v57, v50, v51, v57
    v_min3_u32 v56, v52, v53, v56
    v_max3_u32 v57, v52, v53, v57
    v_min3_u32 v56, v54, v55, v56
    v_max3_u32 v57, v54, v55, v57
    v_cmp_ne_u32 vcc, v56, v57
    s_cbranch_vccz {pzo}
    s_sleep {c.pz_sleep}
    {pzl}
    s_add_u32 s45, s45, 1
    s_cmp_lt_u32 s45, {SPIN}
    s_cbranch_scc1 {pz}
    {pzo}:
    s_cmp_lg_u32 s2, 0
    s_cbranch_scc1 {nb}
    v_mov_b32 v47, {WS_E}
    s_mov_b64 exec, 1
    global_store_dword v47, v90, s[30:31]
    s_mov_b64 exec, -1
    {nb}:
    s_barrier
    """)
    def gat(js=range(7)):
        for j in js: A(f"global_load_dwordx2 {v(GA+2*j,2)}, v{vGA}, s[30:31] offset:{1024*j-3072} sc1")
    S, Qv = GA, GA + 1
    work = [f"v_add_f32 v{GA+k}, v{GA+k}, v{GA+2*j+k}" for j in range(1, 7) for k in range(2)]
    work += [f"v_mov_b32 v{GA+2}, v{GA}", f"v_mov_b32 v{GA+3}, v{GA+1}", f"v_permlane32_swap_b32 v{GA}, v{GA+2}", f"v_permlane32_swap_b32 v{GA+1}, v{GA+3}",
             f"v_add_f32 v{GA}, v{GA}, v{GA+2}", f"v_add_f32 v{GA+1}, v{GA+1}, v{GA+3}"]
    work += [l.strip() for l in f"""
    v_mul_f32 v{S}, {f32(1.0/448)}, v{S}
    v_mul_f32 v{Qv}, {f32(1.0/448)}, v{Qv}
    v_fma_f32 v{Qv}, -v{S}, v{S}, v{Qv}
    v_max_f32 v{Qv}, 0, v{Qv}
    v_cvt_pk_bf16_f32 v{CN+3}, -v{S}, -v{S}
    v_cvt_pk_bf16_f32 v{Qv}, v{Qv}, v{Qv}
    v_and_b32 v{Qv}, s48, v{Qv}
    v_add_f32 v{Qv}, {f32(1e-5)}, v{Qv}
    v_cvt_pk_bf16_f32 v{Qv}, v{Qv}, v{Qv}
    v_and_b32 v{Qv}, s48, v{Qv}
    v_sqrt_f32 v{Qv}, v{Qv}
    v_cvt_pk_bf16_f32 v{Qv}, v{Qv}, v{Qv}
    v_and_b32 v{Qv}, s48, v{Qv}
    v_rcp_f32 v{S}, v{Qv}
    v_mul_f32 v{CN+2}, v{Qv}, v{Qv}
    v_mul_f32 v{CN}, {f32(GK0)}, v{S}
    v_mul_f32 v{CN+1}, v{S}, v{S}
    v_mul_f32 v{CN+1}, v{CN+1}, v{S}
    v_mul_f32 v{CN+1}, {f32(GK1)}, v{CN+1}
    ds_write_b128 v{vCR}, {v(CN,4)}
    """.strip().split("\n")]
    nwi = c.con_write - c.gat_check
    wper = (len(work) + nwi - 1) // nwi
    for i in range(14):
        Q.bar()
        if i == 0:
            for k in range(4): A(f"ds_read_b64_tr_b16 {v(F[0]+2*k,2)}, v{vB} offset:{4096*(k>>1)+1024*(k&1)}")
        if i == 1:
            A("s_waitcnt lgkmcnt(0)")
            for k in range(8):
                z = k < 2
                A(f"v_dot2_f32_bf16 v{ST+(k&1)}, v{F[0]+k}, s47, {'0' if z else 'v%d' % (ST+(k&1))}\nv_dot2_f32_bf16 v{ST+2+(k&1)}, v{F[0]+k}, v{F[0]+k}, {'0' if z else 'v%d' % (ST+2+(k&1))}")
        if i == 2:
            A(f"""
            v_add_f32 v{ST}, v{ST}, v{ST+1}
            v_add_f32 v{ST+1}, v{ST+2}, v{ST+3}
            v_mov_b32 v{ST+2}, v{ST}
            v_mov_b32 v{ST+3}, v{ST+1}
            v_permlane32_swap_b32 v{ST}, v{ST+2}
            v_permlane32_swap_b32 v{ST+1}, v{ST+3}
            v_add_f32 v{ST}, v{ST}, v{ST+2}
            v_add_f32 v{ST+1}, v{ST+1}, v{ST+3}
            v_or_b32 v{ST+1}, 1, v{ST+1}
            s_mov_b32 exec_hi, 0
            global_store_dwordx2 v{vPS}, {v(ST,2)}, s[30:31] sc0 sc1
            s_mov_b32 exec_hi, -1
            """)
        if i in (c.cs_issue, c.ca_load - 1):
            sk = A.label("css")
            A(f"s_cmp_lg_u32 s36, 4\ns_cbranch_scc1 {sk}")
            if i == c.cs_issue: A(f"global_load_dword v47, v{MB+2}, s[28:29] sc1")
            else:
                pl = A.label("cs")
                A(f"s_mov_b32 s45, 0\n{pl}:\ns_waitcnt vmcnt(0)\nv_cmp_gt_u32 vcc, 32, v47\ns_cbranch_vccz {sk}\ns_sleep {c.cs_back}\nglobal_load_dword v47, v{MB+2}, s[28:29] sc1\ns_add_u32 s45, s45, 1\ns_cmp_lt_u32 s45, {SPIN}\ns_cbranch_scc1 {pl}")
            A(f"{sk}:")
        k0 = i - (c.gat_issue - len(c.gat_split) + 1)
        if 0 <= k0 < len(c.gat_split) and not c.x_nogat: gat(range(sum(c.gat_split[:k0]), sum(c.gat_split[:k0+1])))
        if i == c.gat_check and not c.x_nogat:
            pl = A.label("gp"); ok = A.label("gok")
            A(f"s_mov_b32 s45, 0\n{pl}:\ns_waitcnt vmcnt(0)\nv_min3_u32 v7, v{GA+1}, v{GA+3}, v{GA+5}\nv_min3_u32 v7, v7, v{GA+7}, v{GA+9}\nv_min3_u32 v7, v7, v{GA+11}, v{GA+13}")
            A(f"v_cmp_eq_u32 vcc, 0, v7\ns_cbranch_vccnz {pl}c\n{ok}:")
            with Cold():
                A(f"{pl}c:\ns_add_u32 s45, s45, 1\ns_cmp_ge_u32 s45, {SPIN}\ns_cbranch_scc1 {ok}")
                gat()
                A(f"s_branch {pl}")
        if c.gat_check < i <= c.con_write:
            for l in work[:wper]: A(l)
            work = work[wper:]
        if i == 13:
            assert not work
            A("s_waitcnt vmcnt(0) lgkmcnt(0)")
    Q.bar()
    A(f"ds_read_b128 {v(CN+4,4)}, v{vCR+1}")
    for l in preads(1, 0): A(l)
    A("s_waitcnt lgkmcnt(8)")
    for l in mkmb + preads(1, 1): A(l)
    A(f"s_setprio {c.prioB}")
    for s in range(1, 14):
        Q.bar(); pstep(1, s)
    Q.bar()
    A("s_waitcnt lgkmcnt(8)")
    for l in pmfma(26): A(l)
    A("s_waitcnt lgkmcnt(0)")
    Q.bar()
    A("s_waitcnt vmcnt(0)")
    m27, cr = pmfma(27), corr(False)
    for k in range(4): A(m27[k]); A(cr[k])
    for n in range(4):
        L = epi(n >> 1, n & 1, n, True)
        for l in L[:-1]: A(l)
        if n == 3 and c.sig_early: signal(0, 1)
        A(L[-1])
    Q.mark(0)
    A("s_setprio 0")
    if c.xe: A("s_barrier")
    if not c.sig_early: signal(0)
    Q.mark(1)
    if c.auxpoll:
        if c.selfrd:
            A(f"s_cmp_lg_u32 s40, s34\ns_cbranch_scc1 Lsr1\nglobal_load_dwordx4 v[96:99], v{vS}, s[30:31] sc1\nglobal_load_dwordx4 v[100:103], v{vS+1}, s[30:31] sc1\ns_waitcnt vmcnt(2)\ns_branch Lsr2\nLsr1:\ns_waitcnt vmcnt(0)\nLsr2:")
            signal(1, 2)
            A(f"s_cmp_lg_u32 s40, s34\ns_cbranch_scc1 Lsr3\nglobal_load_dwordx4 v[96:99], v{vS}, s[30:31] offset:1024 sc1\nglobal_load_dwordx4 v[100:103], v{vS+1}, s[30:31] offset:1024 sc1\nLsr3:")
        else: signal(1)
        Q.mark(2)
        A("s_barrier")
        Q.mark(3)
        A("s_barrier\ns_barrier")
        Q.mark(4)
    else:
        if c.pa_early: poll_issue(PA_, 512)
        signal(1)
        Q.mark(2)
        if not c.pa_early: poll_issue(PA_, 512)
        A("s_barrier")
        poll_wait(PA_, 512, True)
        poll_issue(PB_, 640)
        Q.mark(3)
        A("s_barrier")
        poll_wait(PB_, 640, True)
        Q.mark(4)
        A("s_barrier")
    Q.fin(5)
    A("s_waitcnt lgkmcnt(0)\ns_endpgm")
    A(f".p2align 3\n{auxt}:")
    PA.stamp(1)
    srd(A, 64, 30, XG_BYTES, WS_XG)
    A(f"""
    v_and_b32 v4, 15, v{vLane}
    v_lshrrev_b32 v5, 4, v{vLane}
    v_lshl_add_u32 v6, v4, 8, s46
    v_lshl_add_u32 v6, v5, 2, v6
    v_and_b32 v7, 7, v4
    v_lshl_add_u32 v6, v7, 4, v6
    v_lshlrev_b32 v9, 14, v5
    v_lshl_add_u32 v9, v4, 4, v9
    s_lshl_b32 s46, s36, 2
    s_add_u32 s46, s46, {TAGA}
    v_mov_b32 v2, s46
    """)
    for k in range(1, 8): A(f"v_xor_b32 v{80+k}, {16*k}, v6")
    A("s_waitcnt lgkmcnt(0)\ns_add_u32 s57, s57, 1\ns_and_b32 s57, s57, 0xffff\ns_or_b32 s57, s57, 0x7f810000")
    for k in range(16): A(f"v_mov_b32 v{vXG+2*k+1}, s57")
    A(f"s_mov_b64 exec, 1\nds_write_b32 v2, v{vXG+1}\ns_mov_b64 exec, -1\ns_waitcnt vmcnt(0)")
    PA.stamp(2)
    for k in range(8):
        ad = 6 if k == 0 else 80 + k
        A(f"ds_read_b32 v{vXG+4*k}, v{ad}\nds_read_b32 v{vXG+4*k+2}, v{ad} offset:128")
    for k in range(8):
        A(f"s_waitcnt lgkmcnt({14-2*k})\nbuffer_store_dwordx4 {v(vXG+4*k,4)}, v9, s[64:67], s51 offen sc0 sc1")
        if k < 7: A(f"s_add_u32 s51, s51, {4*16384}")
    PA.stamp(3)
    A(f"""
    v_mov_b32 v24, 0
    v_mov_b32 v25, 0
    s_lshl_b32 s43, s2, 1
    s_add_u32 s43, s43, s36
    s_lshl_b32 s44, s43, 9
    s_add_u32 s44, s44, {WS_PS}
    v_lshl_add_u32 v3, v{vLane}, 3, s44
    global_store_dwordx2 v3, v[24:25], s[30:31] sc0 sc1
    s_and_b32 s44, s43, 255
    s_lshl_b32 s44, s44, 7
    s_add_u32 s44, s44, {WS_FLAGS}
    v_mov_b32 v4, s44
    s_mov_b64 exec, 1
    global_store_dword v4, v24, s[30:31] sc0 sc1
    s_mov_b64 exec, -1
    s_lshl_b32 s44, s43, 2
    s_add_u32 s44, s44, {WS_PZ}
    v_mov_b32 v22, s44
    v_mov_b32 v23, s57
    s_setprio 0
    """)
    if c.warm:
        A("s_cmp_eq_u32 s36, 1\ns_cbranch_scc1 Lwm1")
        for lab in ("Lmw", nw, odd): A(f"s_call_b64 s[96:97], {lab}w")
        A("s_branch Lwm2\nLwm1:")
        for k in range(1, 4): A(f"s_call_b64 s[96:97], Lpw{k}")
        A("Lwm2:")
    A("s_barrier")
    if c.warm:
        A("s_cmp_eq_u32 s36, 1\ns_cbranch_scc1 Lwm3")
        for k in range(4, c.npg + 1, 2): A(f"s_call_b64 s[96:97], Lpw{k}")
        A("s_branch Lwm4\nLwm3:")
        for k in range(5, c.npg + 1, 2): A(f"s_call_b64 s[96:97], Lpw{k}")
        A("Lwm4:")
    aW, aD, aH = 8, 12, 8
    sW, sD, eW, eD = 41, 42, 45, 46
    def daddr():
        A(ffn_ids)
        A(f"""
        v_lshrrev_b32 v6, 3, v{vLane}
        v_and_b32 v7, 7, v{vLane}
        v_and_b32 v5, 2, v6
        v_lshlrev_b32 v4, 1, v5
        v_xor_b32 v4, v4, v7
        v_mul_u32_u24 v3, 896, v6
        v_lshl_add_u32 v{aD}, v4, 4, v3
        v_add_u32 v{aD+1}, {1*(8*896-1024)}, v{aD}
        v_add_u32 v{aD+2}, {2*(8*896-1024)}, v{aD}
        v_add_u32 v{aD+3}, {3*(8*896-1024)}, v{aD}
        s_lshl_b32 s{eD}, s35, 7
        s_mul_i32 s32, s36, {32*896}
        s_add_u32 s{eD}, s{eD}, s32
        s_mul_i32 s{sD}, s33, {128*896}
        s_add_u32 s{sD}, s{sD}, s{eD}
        s_add_u32 s{eD}, s{eD}, {14*128*896}
        s_lshl_b32 s32, s36, 12
        v_lshl_add_u32 v16, v{vLane}, 4, s32
        v_add_u32 v17, 0x10000, v16
        v_add_u32 v18, 0x20000, v16
        s_lshl_b32 s59, s39, 11
        s_lshl_b32 s58, s34, 10
        s_add_u32 s59, s59, s58
        s_lshl_b32 s58, s36, 8
        s_add_u32 s59, s59, s58
        s_add_u32 s59, s59, {WS_FLAGS}
        s_lshl_b32 s43, s39, 1
        s_add_u32 s43, s43, s34
        s_mul_i32 s43, s43, {224*1024}
        s_lshl_b32 s44, s36, 11
        s_add_u32 s43, s43, s44
        s_add_u32 s43, s43, {WS_ACT+4096}
        v_bfe_u32 v3, v{vLane}, 3, 1
        v_add_u32 v3, s33, v3
        v_cmp_gt_u32 vcc, 14, v3
        v_cndmask_b32 v3, 0, v3, vcc
        v_lshlrev_b32 v3, 13, v3
        v_bfe_u32 v4, v{vLane}, 4, 1
        v_mul_u32_u24 v4, {112*1024}, v4
        v_add3_u32 v3, v3, v4, s43
        v_lshl_add_u32 v19, v7, 7, v3
        """)
        srd(A, 60, 24, W_BYTES)
    def fifo_load(first, n, reg0):
        if c.x_nopre: return
        hf = 64 * 896 if first >= 14 else 0
        assert first >= 14 or first + n <= 14
        A(f"s_add_u32 s43, s{sD}, {hf + (first % 14)*128*896}\ns_add_u32 s44, s{eD}, {hf}")
        for b in range(n):
            A(f"s_cmp_ge_u32 s43, s44\ns_cselect_b32 s34, {14*128*896}, 0\ns_sub_u32 s43, s43, s34")
            for i in range(4): A(f"buffer_load_dwordx4 {v(reg0+16*b+4*i,4)}, v{aD+i}, s[60:63], s43 offen offset:{1024*i}")
            A(f"s_add_u32 s43, s43, {128*896}")
            if c.fdepth is not None: A(f"s_waitcnt vmcnt({c.fdepth})")
    def fifo_put(first, n, reg0):
        if c.x_noput: return
        for b in range(n):
            sl = slot[("D", first + b)]
            for i in range(4): A(f"ds_write_b128 v{16+sl//8}, {v(reg0+16*b+4*i,4)} offset:{(sl%8)*BLK+1024*i}")
    daddr()
    A(f"""
    v_xor_b32 v4, v5, v7
    s_lshl_b32 s43, s36, 2
    v_xor_b32 v4, s43, v4
    v_mul_u32_u24 v3, 3584, v6
    v_lshl_add_u32 v{aW}, v4, 4, v3
    v_add_u32 v{aW+1}, {1*(8*3584-1024)}, v{aW}
    v_add_u32 v{aW+2}, {2*(8*3584-1024)}, v{aW}
    v_add_u32 v{aW+3}, {3*(8*3584-1024)}, v{aW}
    s_lshl_b32 s{eW}, s38, 8
    s_mul_i32 s{sW}, s38, {32*3584}
    s_add_u32 s{sW}, s{sW}, s{eW}
    s_add_u32 s{eW}, s{eW}, {14*32*3584}
    s_cmp_eq_u32 s36, 0
    s_cselect_b32 s20, s20, s22
    s_cselect_b32 s21, s21, s23
    """)
    srd(A, 52, 20, W_BYTES)
    A(f"""
    v_mov_b32 v20, 0
    v_mov_b32 v21, 0
    v_lshrrev_b32 v4, 4, v{vLane}
    v_mul_u32_u24 v4, {KP}, v4
    v_and_b32 v5, 15, v{vLane}
    v_lshl_add_u32 v4, v5, 2, v4
    s_lshl_b32 s43, s36, 15
    v_add_u32 v4, s43, v4
    s_mul_i32 s43, s36, {UPITCH}
    s_add_u32 s43, s43, {UO}
    v_lshl_add_u32 v3, v{vLane}, 3, s43
    """)
    A("s_waitcnt vmcnt(0)\ns_mov_b64 exec, 1\nglobal_store_dword v22, v23, s[30:31] sc0 sc1\ns_mov_b64 exec, -1")
    A(f"s_barrier\nds_write_b32 v4, v20 offset:{KB0}\nds_write_b64 v3, v[20:21]")
    if c.lf_at == 'B': fifo_load(14, 6, 24)
    A("s_waitcnt lgkmcnt(0)\ns_barrier")
    def dma(kind, idx, i):
        if kind == "F":
            if i == 0:
                A(f"s_cmp_ge_u32 s43, s44\ns_cselect_b32 s35, {14*128*896}, 0\ns_sub_u32 s43, s43, s35")
            A(f"buffer_load_dwordx4 {v(24+16*(idx-14)+4*i,4)}, v{aD+i}, s[60:63], s43 offen offset:{1024*i}")
            if i == 3: A(f"s_add_u32 s43, s43, {128*896}")
            return
        base_ = slot[(kind, idx)] * BLK
        a0, r0, s, e, step = {"W": (aW, 52, sW, eW, 32*3584), "D": (aD, 60, sD, eD, 128*896), "H": (4, 48, 40, 47, HS)}[kind]
        if i == 0:
            if idx == 14:
                A(f"s_add_u32 s{s}, s{s}, 128\ns_add_u32 s{e}, s{e}, 128")
            A(f"s_add_u32 m0, s32, {base_}\ns_add_u32 s33, s{s}, {step}")
        A(f"buffer_load_dwordx4 v{a0+i}, s[{r0}:{r0+3}], s{s} offen offset:{1024*i}{' sc1' if kind == 'H' else ''} lds")
        if i == 0: A(f"s_cmp_ge_u32 s33, s{e}\ns_cselect_b32 s34, {14*step}, 0")
        if i == 3: A(f"s_sub_u32 s{s}, s33, s34")
    if c.x_quietL: A('s_sleep 60')
    for x in issue[-2]: dma(*x)
    fifo_load(14, c.lf_c, 24)
    A(f"""
    v_lshrrev_b32 v2, 4, v{vLane}
    v_and_b32 v3, 15, v{vLane}
    v_lshlrev_b32 v4, 2, v2
    v_xor_b32 v4, v4, v3
    v_lshlrev_b32 v4, 4, v4
    v_and_b32 v3, 1, v2
    v_lshl_add_u32 v4, v3, 12, v4
    v_lshrrev_b32 v2, 1, v2
    v_lshl_add_u32 v4, v2, 14, v4
    v_add_u32 v5, {1*(32768-1024)}, v4
    v_add_u32 v6, {2*(32768-1024)}, v4
    v_add_u32 v7, {3*(32768-1024)}, v4
    s_lshl_b32 s47, s39, 8
    s_lshl_b32 s43, s36, 17
    s_add_u32 s47, s47, s43
    s_add_u32 s40, s38, {c.h0}
    s_cmp_ge_u32 s40, 14
    s_cselect_b32 s43, 14, 0
    s_sub_u32 s40, s40, s43
    s_lshl_b32 s40, s40, 18
    s_add_u32 s40, s40, s47
    s_add_u32 s47, s47, {14*HS}
    """)
    srd(A, 48, 30, XG_BYTES, WS_XG)
    PA.stamp(4)
    A("s_barrier")
    fifo_load(14 + c.lf_c, c.lf_d, 24 + 16 * c.lf_c)
    assert c.nlf == 6
    A("s_barrier")
    for x in issue[-1]: dma(*x)
    if c.nlf > 6: fifo_load(20 - c.nlf, c.nlf - 6, 120)
    A(f"s_waitcnt vmcnt({len(issue[-1]) + 4 * (c.lf_c + c.lf_d)})\ns_barrier")
    for i in range(0, 29):
        for x in issue[i]: dma(*x)
        if i == 3: A(f"s_waitcnt vmcnt({sum(len(issue[k]) for k in range(4))})")
        if wait[i] is not None: A(f"s_waitcnt vmcnt({min(63, wait[i])})")
        A("s_barrier")
    if c.nlf > 6: fifo_put(20 - c.nlf, c.nlf - 6, 120)
    if c.xe:
        A("s_barrier")
        fifo_put(14, 3, 24)
        A("s_barrier")
        fifo_put(17, 3, 72)
    elif c.auxpoll:
        assert c.yb_at <= 26 and c.nlf == 6
        fifo_put(14, 6, 24)
        A("s_barrier")
        poll_issue(PB_, 640); poll_wait(PB_, 640, True)
        if c.touch & 2: A("global_load_dword v2, v19, s[30:31] offset:1024 sc1\ns_barrier")
    else:
        assert c.yb_at <= 26
        fifo_put(14, c.put_0, 24)
        A(f"s_waitcnt lgkmcnt({min(15, 4 * c.put_0)})\ns_barrier")
        fifo_put(14 + c.put_0, c.put_l, 24 + 16 * c.put_0)
        A("s_barrier")
        fifo_put(14 + c.put_0 + c.put_l, 6 - c.put_0 - c.put_l, 24 + 16 * (c.put_0 + c.put_l))
    A("s_waitcnt lgkmcnt(0)")
    if c.phase == 1: Prof(A, 3).flush(5)
    A("s_endpgm")
    A(f".p2align 3\n{auxs}:")
    PA.stamp(1)
    a0 = 90
    A(f"s_mov_b32 s42, 0x3f803f80\nv_and_b32 v4, 56, v{vLane}\ns_lshl_b32 s46, s47, 6\nv_add_u32 v4, s46, v4\nv_mov_b32 v2, {TAGA}")
    A("s_waitcnt lgkmcnt(0)\ns_add_u32 s57, s56, 1\ns_and_b32 s57, s57, 0xffff\ns_or_b32 s57, s57, 0x7f810000\ns_mov_b32 s45, 0")
    for i in range(28):
        z = i < 2
        if i % 4 == 0: A(f"s_waitcnt vmcnt({6-i//4})")
        if i == 4: PA.stamp(2)
        if i == 24: A("ds_read_b64 v[6:7], v2")
        A(f"v_dot2_f32_bf16 v{a0+(i&1)}, v{vRow+i}, s42, {'0' if z else 'v%d' % (a0+(i&1))}")
        A(f"v_dot2_f32_bf16 v{a0+2+(i&1)}, v{vRow+i}, v{vRow+i}, {'0' if z else 'v%d' % (a0+2+(i&1))}")
    A(f"v_add_f32 v{a0}, v{a0}, v{a0+1}\nv_add_f32 v{a0+2}, v{a0+2}, v{a0+3}")
    for op in ("quad_perm:[1,0,3,2]", "quad_perm:[2,3,0,1]", "row_half_mirror"):
        A(f"v_add_f32_dpp v{a0}, v{a0}, v{a0} {op}{DPP}\nv_add_f32_dpp v{a0+2}, v{a0+2}, v{a0+2} {op}{DPP}")
    A(f"""
    v_mul_f32 v{a0}, {f32(1.0/448)}, v{a0}
    v_mul_f32 v{a0+2}, {f32(1.0/448)}, v{a0+2}
    v_fma_f32 v{a0+2}, -v{a0}, v{a0}, v{a0+2}
    v_max_f32 v{a0+2}, 0, v{a0+2}
    v_cvt_pk_bf16_f32 v{a0+2}, v{a0+2}, v{a0+2}
    v_and_b32 v{a0+2}, s43, v{a0+2}
    v_add_f32 v{a0+2}, {f32(1e-5)}, v{a0+2}
    v_cvt_pk_bf16_f32 v{a0+2}, v{a0+2}, v{a0+2}
    v_and_b32 v{a0+2}, s43, v{a0+2}
    v_sqrt_f32 v{a0+2}, v{a0+2}
    v_mov_b32 v{a0+1}, s57
    v_cvt_pk_bf16_f32 v{a0}, v{a0}, v{a0+2}
    s_cmp_ge_u32 s2, 224
    s_cbranch_scc1 Ltg2
    Ltg:
    s_waitcnt lgkmcnt(0)
    v_xor_b32 v6, s57, v6
    v_xor_b32 v7, s57, v7
    v_or_b32 v6, v6, v7
    v_cmp_ne_u32 vcc, 0, v6
    s_cbranch_vccz Ltg2
    ds_read_b64 v[6:7], v2
    s_add_u32 s45, s45, 1
    s_cmp_lt_u32 s45, {SPIN}
    s_cbranch_scc1 Ltg
    Ltg2:
    s_mov_b32 exec_lo, 0x01010101
    s_mov_b32 exec_hi, 0x01010101
    global_store_dwordx2 v4, {v(a0,2)}, s[30:31] sc0 sc1
    s_mov_b64 exec, -1
    """)
    PA.stamp(3)
    if base.PROF and c.phase == 1:
        A(f"s_branch {hold}x\n{hold}:")
        for k in (1, 2, 3): PA.stamp(k)
        A(f"{hold}x:")
    else: A(f"{hold}:")
    A(f"s_setprio 0\ns_barrier\ns_cmp_ge_u32 s2, 224\ns_cbranch_scc1 {end}")
    daddr()
    sH, eH, sV = 40, 41, 47
    VR = 20
    A(f"""
    v_lshrrev_b32 v6, 4, v{vLane}
    v_and_b32 v7, 15, v{vLane}
    v_lshlrev_b32 v5, 2, v6
    v_xor_b32 v5, v5, v7
    v_lshlrev_b32 v5, 4, v5
    v_and_b32 v7, 1, v6
    v_lshl_add_u32 v5, v7, 12, v5
    v_lshrrev_b32 v6, 1, v6
    v_lshl_add_u32 v{aH}, v6, 14, v5
    v_add_u32 v{aH+1}, {1*(32768-1024)}, v{aH}
    v_add_u32 v{aH+2}, {2*(32768-1024)}, v{aH}
    v_add_u32 v{aH+3}, {3*(32768-1024)}, v{aH}
    s_lshl_b32 s{eH}, s39, 8
    s_lshl_b32 s43, s36, 17
    s_add_u32 s{eH}, s{eH}, s43
    s_lshl_b32 s{sH}, s38, 18
    s_add_u32 s{sH}, s{sH}, s{eH}
    s_add_u32 s{eH}, s{eH}, {14*HS}
    s_mov_b32 s56, 0x7f810000
    s_mov_b32 s{sV}, s{sH}
    """)
    srd(A, 48, 30, XG_BYTES, WS_XG)
    A("s_barrier")
    if c.hf_at == 'B':
        fifo_load(20, 3, 40)
    A("s_barrier")
    if c.x_quietL: A('s_sleep 60')
    if c.hf_at == 'B': fifo_load(23, 5, 88)
    elif c.hf_at == 'C': fifo_load(20, 8, 40)
    else: fifo_load(20, c.hf_c, 40)
    PA.stamp(4)
    A(f"s_barrier\ns_barrier\ns_setprio {c.hprio}")
    def hblock(s, m0expr):
        A(f"s_add_u32 m0, {m0expr}\ns_add_u32 s33, s{s}, {HS}")
        for i in range(4):
            A(f"buffer_load_dwordx4 v{aH+i}, s[48:51], s{s} offen offset:{1024*i} sc1 lds")
            if i == 0: A(f"s_cmp_ge_u32 s33, s{eH}\ns_cselect_b32 s34, {14*HS}, 0")
        A(f"s_sub_u32 s{s}, s33, s34")
    nH = [0]
    def hissue(k):
        for _ in range(k):
            if nH[0] < 14:
                hblock(sH, f"s32, {slot[('H', nH[0])]*BLK}"); nH[0] += 1
    def vread(b):
        if b < nH[0]: A(f"s_waitcnt vmcnt({4*(nH[0]-1-b)})")
        for i in range(4): A(f"ds_read_b128 {v(VR+4*i,4)}, v{16+b//8} offset:{(slot[('H', b)]%8)*BLK+1024*i}")
    def vcheck(b):
        ck = A.label("hv"); ok = A.label("hok"); rp = A.label("hrp")
        last = b + 1 if c.rep_one else max(nH[0], b + 1)
        if c.w8 and b < 12: last = min(last, 12)
        sb = slot[('H', b)]
        A(f"""
        s_mov_b32 s45, 0
        {ck}:
        s_waitcnt lgkmcnt(0)
        v_max3_i32 v2, v{VR+1}, v{VR+3}, v{VR+5}
        v_max3_i32 v3, v{VR+7}, v{VR+9}, v{VR+11}
        v_max3_i32 v2, v2, v{VR+13}, v{VR+15}
        v_max_i32 v2, v2, v3
        v_cmp_le_i32 vcc, s56, v2
        {"s_cmp_eq_u32 s45, 0" if c.x_force else ""}
        {f"s_cbranch_scc1 {rp}f" if c.x_force else ""}
        s_cbranch_vccnz {rp}f
        """)
        cx = Cold(); cx.__enter__()
        A(f"""
        {rp}f:
        {f"s_sleep {c.backoff}" if c.backoff else ""}
        s_add_u32 s45, s45, 1
        s_cmp_ge_u32 s45, {SPIN}
        s_cbranch_scc1 {ok}
        s_mov_b32 s43, s{sV}
        s_add_u32 s44, s32, {sb*BLK}
        s_add_u32 s35, s32, {(sb+last-b)*BLK}
        {rp}:
        """)
        hblock(43, "s44, 0")
        A(f"s_add_u32 s44, s44, {BLK}\ns_cmp_lt_u32 s44, s35\ns_cbranch_scc1 {rp}\ns_waitcnt vmcnt({4*(last-1-b) if last == nH[0] else 0})")
        for i in range(4): A(f"ds_read_b128 {v(VR+4*i,4)}, v{16+b//8} offset:{(sb%8)*BLK+1024*i}")
        A(f"s_branch {ck}")
        cx.__exit__()
        A(f"{ok}:\ns_add_u32 s{sV}, s{sV}, {HS}\ns_cmp_ge_u32 s{sV}, s{eH}\ns_cselect_b32 s34, {14*HS}, 0\ns_sub_u32 s{sV}, s{sV}, s34")
    if c.probe:
        hissue(c.probe); vread(0); vcheck(0); hissue(c.h0 - c.probe); vread(1)
    else:
        hissue(c.h0); vread(0); vcheck(0); vread(1)
    A("s_barrier")
    hs = [0] * 14 if c.hl else list(c.hiss) + [1] * 14
    for i in range(0, 13):
        vcheck(i + 1)
        k = hs.pop(0)
        assert i >= 3 or nH[0] + k <= 12
        if i + 2 < 14:
            if nH[0] - (i + 2) < c.hnear: hissue(k); k = 0
            vread(i + 2)
        hissue(k)
        kf = c.hf_c + i - c.hf_p
        if c.hf_at == 'P' and c.hf_c <= kf < 8: fifo_load(20 + kf, 1, 40 + 16 * kf)
        A("s_barrier")
    if c.hf_at == 'P':
        kf = max(c.hf_c, c.hf_c + 13 - c.hf_p)
        if kf < 8: fifo_load(20 + kf, 8 - kf, 40 + 16 * kf)
    assert nH[0] == 14 or c.hl
    lp = A.label("hb")
    A(f"s_setprio 0\ns_mov_b32 s45, {18 if c.xe else 16 if c.auxpoll else 17}\n{lp}:\ns_barrier\ns_sub_u32 s45, s45, 1\ns_cmp_lg_u32 s45, 0\ns_cbranch_scc1 {lp}")
    A("s_waitcnt vmcnt(0)")
    if c.auxpoll:
        if c.psleep: A(f"s_sleep {c.psleep}")
        poll_issue(PA_, 512); poll_wait(PA_, 512, True)
        if c.touch & 1: A("global_load_dword v2, v19, s[30:31] sc1")
        A("s_barrier")
        fifo_put(20, c.put_a, 40)
        A("s_barrier")
        fifo_put(20 + c.put_a, 8 - c.put_a, 40 + 16 * c.put_a)
    else:
        fifo_put(20, c.put_a, 40)
        A("s_barrier")
        fifo_put(20 + c.put_a, 8 - c.put_a, 40 + 16 * c.put_a)
    A("s_waitcnt lgkmcnt(0)")
    if c.phase == 1: Prof(A, 3).flush(5)
    A(f"{end}:\ns_endpgm")
    A.L.extend(cold)
    A(f".p2align 3\n{hlp}:")
    if c.phase == 0: base.PROF = False
    gen_helper(A, c, Prof(A, 4))
    def rnd(l):
        u = np.float32(max(l, 0)).view(np.uint32)
        u = (int(u) + 0x7FFF + ((int(u) >> 16) & 1)) & 0xFFFF0000
        return int(np.uint32(u).view(np.float32))
    ad = [[(rnd(8 * b - 3 + r) & 7) * TP + (rnd(8 * b - 3 + r) >> 3) * 4 for r in range(12)] for b in range(256)]
    A(f".p2align 7\n.type {tab},@object\n{tab}:")
    for b in range(256): A(".long " + ", ".join("0x%08x" % (ad[b][2*k] | ad[b][2*k+1] << 16) for k in range(4)))
    for b in range(256): A(".long " + ", ".join("0x%08x" % (ad[b][2*k] | ad[b][2*k+1] << 16) for k in range(4, 6)))
    A(f".size {tab}, {256*24}")
    return kernel_desc(name, 168, 102)
```

```python
from fx import *
import f1_v5
variant("o", phase=0, mod=f1_v5)
variant("a", phase=0)
variant("b", phase=0, cs2=(23,25))
variant("c", phase=0, cs_issue=5, ca_load=9)
variant("a1", phase=1)
variant("n1", prof=False)
```

```python
from base import *
import base
from ka import load_ptrs, cmul, cexp
import numpy as np
WS_E = 0x4000
WS_PZ = 0x5000
WS_XG = 0xA00000
XG_BYTES = 224 * 16384
REG = 16384
TP, GP = 1056, 272
KP = 4160
KB0 = 8704
UO, UPITCH = 74240, 4608
PARO = 98304
XT = 140288
TAGA = XT + 8192
BLK = 8192
NSL = 20
CON = 19 * BLK
F_LDS = NSL * BLK
GK0 = -2.0 * LOG2E * 0.7978845608028654
GK1 = GK0 * 0.044715
SPIN = 1 << 18
HS = 16 * 16384

class Cfg:
    code_bytes = 49152
    prio_mid = 26
    poll_late = 0
    e1_first, e1_last = 15, 21
    e1_packed = False
    drain0 = (21, 25)
    pollA, chkA = 24, 27
    earlyT = (4, 1)
    poll0 = 28
    ya_at, yb_at = 18, 25
    put_a = 5
    pace1, pace2, pace = 2, 1, {}
    pa_early = False
    g_pre = 0
    tdepth, tdepth2 = 22, 16
    gate_ahead = {14: 14, 28: 4, 42: 12}
    pollT1 = (20, 28)
    capP = 8
    caps = {}
    gat_issue, gat_check = 8, 10
    con_write = 12
    il = 2
    stflag = 'sc0 sc1'
    prioB = 2
    h0 = 5
    hiss = (1, 2, 1, 1, 1, 1, 1)
    ca_load = 11
    cs_issue = 7
    hdepth = 1
    fdepth = None
    x_delay = 0
    x_force = False
    backoff = 4
    rep_one = False
    x_nocs = False
    sweepW = False
    sweepD = False
    hramp = 0
    xp_chk = False
    npk = True
    lfifo = (8, 14)
    hprio = 3
    pz_sleep = 4
    hnear = 3
    lf_at = 'C'
    hf_at = 'P'
    poi_at = '0'
    wide_h = True
    xp_at = 0
    gat_split = (3, 4)
    x_nogat = False
    cprio = 3
    nprio = 2
    auxprio = 3
    x_nopre = False
    emode = 0
    csort = True
    probe = 1
    x_quietN = False
    x_quietL = False
    cmin = 5
    cmerge = (0, 2, 4, 6)
    w8 = False
    nlf = 6
    outflag = ''
    hl = True
    x_pad = 0
    wsoff = 0
    hf_c = 4
    hf_p = 10
    xmask = True
    auxpoll = False
    sig_early = False
    psleep = 0
    tpost = True
    cs_back = 16
    wtouch = 0
    wt_at = 'A'
    hseq = True
    hbar2 = False
    lf_c = 3
    lf_d = 0
    lf_i = (7, 12, 13, 14, 27, 28)
    touch = 0
    x_noput = False
    x_notl = False
    selfrd = False
    sweepU = 3
    hsleep = 0
    cs2 = (22, 24)
    hwait = None
    x_nocp = False
    warm = False
    npg = 5
    stcost = 8
    xe = False
    x_cnt = False
    put_0, put_l = 6, 0
    x_fine = None
    phase = 1

def schedule(c):
    need = {("W", s): s for s in range(28)}
    last_use = {("W", s): s + 1 for s in range(28)}
    for t in range(28): last_use[("D", t)] = 1000
    hslot = [sl + (2 if c.w8 and sl >= 12 else 0) for sl in range(14)]
    w0 = 12 if c.w8 else 14
    free_at = {sl: (16 + sl if sl < w0 else -2 if sl >= 14 else -1) for sl in range(NSL)}
    slot = {("H", k): hslot[k] for k in range(14)}
    issue = {i: [] for i in range(-2, 29)}
    n = dict(W=0, D=0, H=c.h0 if c.hl else 14)
    for k in range(n["H"], 14): need[("H", k)] = k - 2; last_use[("H", k)] = 15 + k
    nd = 20 - c.nlf
    cur = None
    def pick(i):
        nW, nD = n["W"], n["D"]
        wf = [sl for sl in range(w0, NSL) if free_at[sl] <= i and (sl != 19 or i >= 15 or nW + 1 < c.con_write)]
        canH = n["H"] < 14 and i >= 0 and (not c.w8 or n["H"] < 12 or i >= n["H"] - 10)
        if canH and (n["H"] - 2 <= nW or not wf): return ("H", n["H"]), hslot[n["H"]]
        if nW < 28 and wf: return ("W", nW), wf[0]
        fr = [sl for sl in range(NSL) if free_at[sl] <= i and (sl < w0 or nW == 28)]
        if fr and nD < nd: return ("D", nD), fr[0]
        return None
    for i in range(-2, 29):
        cap = 24 if i < 0 else c.caps.get(i, c.capP)
        while cap > 0:
            if cur is None:
                p = pick(i)
                if p is None: break
                b, sl = p
                slot[b] = sl; free_at[sl] = last_use[b] + 1; n[b[0]] += 1
                if c.w8 and b in (("W", 0), ("W", 1)): free_at[sl] = 28 + b[1]
                cur = [b, 0]
            issue[i].append((cur[0][0], cur[0][1], cur[1])); cur[1] += 1; cap -= 1
            if cur[1] == 4: cur = None
    assert n["D"] == nd and cur is None
    rest = sorted((sl for sl in range(NSL) if free_at[sl] < 1000), key=lambda sl: free_at[sl])
    assert len(rest) == c.nlf
    for k, sl in enumerate(rest): slot[("D", nd + k)] = sl
    for t in range(20, 28): slot[("D", t)] = slot[("D", t - 20)]
    for k in range(c.lf_c + c.lf_d, 6): issue[c.lf_i[k - c.lf_c - c.lf_d]] += [("F", 14 + k, q) for q in range(4)]
    order = [b for i in range(0, 29) for b in issue[i]]
    pos = {b: k for k, b in enumerate(order)}
    wait = {}
    cnt = 0
    for i in range(0, 29):
        cnt += len(issue[i])
        req = [b for b in need if need[b] == i + 1 and b + (3,) in pos]
        wait[i] = None if not req else cnt - 1 - max(pos[b + (3,)] for b in req)
        if i == 28: wait[i] = 0
        assert wait[i] is None or wait[i] >= 0, (i, req)
    return issue, slot, wait

def gen_helper(A, c, P):
    A(f"""
    s_cmp_eq_u32 s36, 9
    s_cbranch_scc1 Lhe
    s_sub_u32 s44, s2, 224
    s_lshr_b32 s45, s44, 3
    s_bfe_u32 s46, s44, 0x20001
    s_lshl_b32 s46, s46, 2
    s_add_u32 s46, s46, s45
    s_and_b32 s44, s44, 1
    s_cmp_ge_u32 s46, 14
    s_cselect_b32 s47, 2, 0
    s_sub_u32 s46, s46, s47
    v_and_b32 v1, 7, v0
    v_lshrrev_b32 v2, 3, v0
    v_mul_u32_u24 v2, 3584, v2
    v_lshl_add_u32 v2, v1, 4, v2
    s_cmp_ge_u32 s46, 7
    s_cselect_b32 s47, 7, 0
    s_waitcnt lgkmcnt(0)
    s_cselect_b32 s48, s22, s20
    s_cselect_b32 s49, s23, s21
    s_sub_u32 s46, s46, s47
    s_mul_i32 s50, s44, 7
    s_add_u32 s46, s46, s50
    s_lshl_b32 s47, s47, 1
    s_add_u32 s52, s46, s47
    s_lshl_b32 s55, s46, 8
    s_mov_b32 s50, {W_BYTES}
    s_mov_b32 s51, 0x20000
    s_lshr_b32 s54, s52, 1
    s_mul_i32 s54, s54, {128*896}
    s_and_b32 s53, s52, 1
    s_lshl_b32 s53, s53, 3
    s_add_u32 s53, s53, s36
    s_mul_i32 s53, s53, {28*128}
    s_add_u32 s54, s54, s53
    s_add_u32 s54, s54, {64*896}
    v_and_b32 v3, 63, v0
    v_min_u32 v3, 27, v3
    v_lshl_add_u32 v3, v3, 7, s54
    v_lshrrev_b32 v12, 6, v0
    v_lshlrev_b32 v12, 8, v12
    v_lshl_add_u32 v12, v1, 5, v12
    v_and_b32 v14, 63, v0
    v_lshlrev_b32 v13, 2, v14
    s_lshl_b32 s46, s52, 10
    s_add_u32 s46, s46, {WS_CS}
    v_lshl_add_u32 v14, v14, 3, s46
    s_mov_b32 s42, 0x00003f80
    s_mov_b32 s43, 0x3f800000
    s_mov_b32 s41, 0xffff0000
    s_mov_b32 s56, 0
    """)
    if c.hsleep: A(f"s_sleep {c.hsleep}")
    A("s_barrier")
    if c.hbar2: A("s_barrier")
    A("s_cmp_eq_u32 s36, 8\ns_cbranch_scc1 Lhf")
    for h in range(2):
        A(f"s_mov_b32 s47, s55")
        for p in range(7):
            A(f"buffer_load_dwordx4 {v(40+28*h+4*p,4)}, v2, s[48:51], s47 offen offset:{128*h}")
            if p < 6: A("s_add_u32 s47, s47, %d" % (64 * 3584))
        if not c.wtouch & 4: A(f"global_load_dword v{100+h}, v3, s[24:25]")
        if h == 0:
            A(f"v_subrev_u32 v3, {64*896}, v3")
            if c.hseq: A("s_waitcnt vmcnt(3)")
    A(f"s_waitcnt vmcnt({7 if c.wtouch & 4 else 9})\nLhl:")
    for p in range(7):
        for q in range(4):
            for hl in range(2):
                acc = 4 + 2 * q + hl
                A(f"v_dot2_f32_bf16 v{acc}, v{40+4*p+q}, s{42+hl}, {'0' if p == 0 else 'v%d' % acc}")
    for q in range(8): A(f"v_add_f32_dpp v{4+q}, v{4+q}, v{4+q} row_ror:8{DPP}")
    for op in ("v_permlane16_swap_b32", "v_permlane32_swap_b32"):
        for q in range(8): A(f"v_mov_b32 v{16+q}, v{4+q}")
        for q in range(8): A(f"{op} v{4+q}, v{16+q}")
        for q in range(8): A(f"v_add_f32 v{4+q}, v{4+q}, v{16+q}")
    A(f"""
    s_mov_b64 exec, 0xff
    ds_write_b128 v12, v[4:7]
    ds_write_b128 v12, v[8:11] offset:16
    s_mov_b64 exec, -1
    s_waitcnt lgkmcnt(0)
    s_barrier
    s_cmp_lg_u32 s56, 0
    s_cbranch_scc1 Lhe
    s_mov_b32 s56, 1
    v_add_u32 v12, 2048, v12
    s_waitcnt vmcnt({0 if c.wtouch & 4 else 1})
    """)
    for k in range(28): A(f"v_mov_b32 v{40+k}, v{68+k}")
    A(f"""
    s_branch Lhl
    Lhf:
    s_barrier
    ds_read2st64_b32 v[4:5], v13 offset0:0 offset1:1
    ds_read2st64_b32 v[6:7], v13 offset0:2 offset1:3
    ds_read2st64_b32 v[8:9], v13 offset0:4 offset1:5
    ds_read2st64_b32 v[10:11], v13 offset0:6 offset1:7
    s_waitcnt lgkmcnt(0)
    v_pk_add_f32 v[4:5], v[4:5], v[6:7]
    v_pk_add_f32 v[8:9], v[8:9], v[10:11]
    v_pk_add_f32 v[4:5], v[4:5], v[8:9]
    v_add_f32 v4, v4, v5
    v_cvt_pk_bf16_f32 v5, v4, v4
    v_and_b32 v5, s41, v5
    v_sub_f32 v6, v4, v5
    v_cvt_pk_bf16_f32 v8, v5, v6
    v_and_b32 v7, s41, v8
    v_sub_f32 v6, v6, v7
    v_cvt_pk_bf16_f32 v9, v6, 0
    global_store_dwordx2 v14, v[8:9], s[30:31] sc0 sc1
    s_mov_b32 s46, 1
    s_waitcnt vmcnt(0)
    s_atomic_add s46, s[28:29], s56
    v_add_u32 v14, 512, v14
    v_add_u32 v13, 2048, v13
    s_add_u32 s56, s56, 128
    """)
    if base.PROF: A("s_mov_b32 s74, s76\ns_memrealtime s[76:77]")
    A("s_waitcnt lgkmcnt(0)\ns_cmp_lt_u32 s56, 256\ns_cbranch_scc1 Lhf")
    P.flush(3)
    A("Lhe:\ns_endpgm")

def gen(A, name, c=Cfg, verbose=False):
    issue, slot, wait = schedule(c)
    if verbose:
        for i in range(-2, 29): print(i, ' '.join(k + str(j) + '.' + str(q) for k, j, q in issue[i]), wait.get(i))
        print({k: x for k, x in slot.items() if k[0] == "D"})
    kernel_head(A, name)
    end = A.label("end"); hlp = A.label("hlp"); kw_ = A.label("kw"); nw = A.label("nw"); tab = A.label("tab")
    auxt = A.label("auxt"); auxs = A.label("auxs"); til = A.label("til"); hold = A.label("hold")
    P0 = Prof(A, 1)
    class PH:
        def __init__(s, ph, kid=1): s.on = c.phase == ph; s.P = Prof(A, kid)
        def stamp(s, i):
            if s.on: s.P.stamp(i)
    P = PH(1); PA = PH(1, 3)
    class Bars:
        def __init__(s, marks, n1, kid=1): s.n = 0; s.marks = c.x_fine or marks; s.on = c.phase == 2; s.n1 = n1; s.P = Prof(A, kid)
        def bar(s):
            A("s_barrier")
            if s.on and s.n in s.marks: s.P.stamp(1 + s.marks.index(s.n))
            s.n += 1
        def mark(s, k):
            if s.on and not c.x_fine: s.P.stamp(1 + len(s.marks) + k)
        def fin(s, k=0):
            if c.phase == 0:
                if s.n1 == 13: s.P.flush(1)
                return
            if not s.on: s.P.flush(s.n1); return
            k = 0 if c.x_fine else k
            s.P.stamp(1 + len(s.marks) + k); s.P.flush(2 + len(s.marks) + k)
    cold = []
    class Cold:
        def __enter__(s): s.keep = A.L; A.L = []
        def __exit__(s, *a): cold.extend(A.L); A.L = s.keep
    wst = []
    def target(lab):
        wst.append(lab)
        A(f".p2align 6\n{lab}w:\ns_setpc_b64 s[96:97]\ns_nop 0\n{lab}:")
    A(f"s_cmp_ge_u32 s2, 256\ns_cbranch_scc1 {end}")
    P0.stamp(0)
    load_ptrs(A)
    A(f"s_getpc_b64 s[60:61]\nLpc:")
    vLane, vG, vJ = 1, 2, 3
    per = (c.code_bytes // 128 + 63) // 64
    vRow, vXG = 16, 48
    ffn_ids = """
    s_and_b32 s37, s2, 7
    s_lshr_b32 s38, s2, 3
    s_and_b32 s40, s38, 3
    s_lshr_b32 s39, s37, 1
    s_lshl_b32 s39, s39, 2
    s_add_u32 s39, s39, s40
    s_and_b32 s34, s37, 1
    s_lshr_b32 s35, s38, 2
    s_mul_i32 s38, s34, 7
    s_add_u32 s38, s38, s35
    s_mul_i32 s33, s40, 3
    s_lshl_b32 s37, s35, 1
    s_add_u32 s33, s33, s37
    s_cmp_ge_u32 s33, 14
    s_cselect_b32 s37, 14, 0
    s_sub_u32 s33, s33, s37
    """
    A(f"""
    v_lshrrev_b32 v4, 6, v0
    v_and_b32 v{vLane}, 63, v0
    s_and_b32 s37, s2, 7
    v_readfirstlane_b32 s36, v4
    s_mul_i32 s37, s37, 28
    s_lshr_b32 s38, s2, 3
    s_add_u32 s37, s37, s38
    s_mov_b32 s43, 0xffff0000
    s_cmp_lt_u32 s36, 8
    s_cbranch_scc1 {kw_}
    s_setprio {c.auxprio}
    v_lshrrev_b32 v5, 3, v{vLane}
    v_and_b32 v6, 7, v{vLane}
    v_mul_u32_u24 v7, 896, v5
    s_cmp_lt_u32 s36, 10
    s_cbranch_scc1 {til}
    s_and_b32 s36, s36, 1
    s_lshr_b32 s62, s2, 2
    s_and_b32 s62, s62, 62
    s_add_u32 s62, s62, s36
    s_mul_i32 s62, s62, {per*128}
    v_min_u32 v10, {per-1}, v{vLane}
    v_lshl_add_u32 v10, v10, 7, s62
    v_min_u32 v10, Lcode_end-Lpc-4, v10
    global_load_dword v99, v10, s[60:61]
    s_and_b32 s47, s2, 7
    s_lshl_b32 s47, s47, 5
    s_add_u32 s47, s47, s38
    s_mul_i32 s48, s47, {8*896}
    v_lshl_add_u32 v8, v6, 4, v7
    v_add_u32 v8, s48, v8
    s_cmp_eq_u32 s36, 1
    s_waitcnt lgkmcnt(0)
    s_cbranch_scc1 {hold}
    s_load_dword s56, s[30:31], {WS_E}
    """)
    for i in range(7): A(f"global_load_dwordx4 {v(vRow+4*i,4)}, v8, s[4:5] offset:{128*i}")
    A(f"""
    s_branch {auxs}
    {til}:
    s_cmp_ge_u32 s2, 224
    s_cbranch_scc1 {hlp}
    s_and_b32 s36, s36, 1
    s_mul_i32 s46, s37, 9363
    s_lshr_b32 s46, s46, 16
    s_mul_i32 s47, s46, 7
    s_sub_u32 s47, s37, s47
    s_lshl_b32 s46, s46, 1
    s_add_u32 s46, s46, s36
    s_mul_i32 s49, s46, {32*896}
    s_lshl_b32 s48, s47, 7
    s_add_u32 s49, s49, s48
    s_lshl_b32 s47, s47, 19
    s_lshl_b32 s46, s46, 8
    s_add_u32 s51, s47, s46
    s_lshl_b32 s46, s36, 12
    s_add_u32 s46, s46, {XT}
    s_mov_b32 m0, s46
    v_lshrrev_b32 v4, 1, v5
    v_xor_b32 v4, v4, v6
    v_lshl_add_u32 v12, v4, 4, v7
    v_xor_b32 v4, 4, v4
    v_lshl_add_u32 v13, v4, 4, v7
    v_add_u32 v13, {8*896-1024}, v13
    v_add_u32 v14, {16*896-2048}, v12
    v_add_u32 v15, {16*896-2048}, v13
    s_mov_b32 s34, {X_BYTES}
    s_mov_b32 s35, 0x20000
    s_waitcnt lgkmcnt(0)
    s_mov_b32 s32, s4
    s_mov_b32 s33, s5
    """)
    for i in range(4): A(f"buffer_load_dwordx4 v{12+i}, s[32:35], s49 offen offset:{1024*i} lds")
    A(f"s_load_dword s57, s[30:31], {WS_E}")
    A(f"s_branch {auxt}\n{kw_}:\ns_cmp_ge_u32 s2, 224\ns_cbranch_scc1 {hlp}")
    vP, vDT = 8, 12
    a2, b2 = 14, 15
    w1, w256, w2, w512 = 16, 18, 20, 22
    tA, tB, tC = 24, 26, 28
    G, G2, Hh, W4, HT, CV = 30, 46, 62, 68, 70, 78
    vTB, vA, vBc, vRA = 88, 94, 95, 96
    A(f"""
    v_mov_b32 v{vP}, 0
    v_mov_b32 v{vP+1}, 0
    v_mov_b32 v{vP+2}, 0
    v_mov_b32 v{vP+3}, 0
    s_lshl_b32 s48, s37, 10
    v_lshl_add_u32 v4, v0, 1, s48
    s_lshl_b32 s48, s37, 2
    s_lshl_b32 s56, s36, 14
    s_mov_b32 m0, s56
    s_lshr_b32 s38, s36, 2
    s_add_u32 s62, s60, {tab}-Lpc+2048
    s_addc_u32 s63, s61, 0
    s_waitcnt lgkmcnt(0)
    s_load_dword s52, s[14:15], s48
    global_load_short_d16_hi v{vP}, v4, s[6:7]
    global_load_short_d16_hi v{vP+1}, v4, s[8:9]
    global_load_short_d16_hi v{vP+2}, v4, s[10:11]
    global_load_short_d16_hi v{vP+3}, v4, s[12:13]
    s_load_dword s53, s[16:17], s48
    """)
    P.stamp(1)
    A(f"""
    v_bfe_u32 v{vG}, v0, 5, 1
    v_and_b32 v{vJ}, 31, v0
    s_lshl_b32 s46, s36, 15
    v_mul_u32_u24 v4, {GP}, v{vJ}
    v_lshl_add_u32 v4, v{vG}, 4, v4
    v_add_u32 v{vRA}, s46, v4
    s_bfe_u32 s39, s36, 0x10001
    s_and_b32 s40, s36, 1
    s_lshl_b32 s48, s39, 15
    s_lshl_b32 s47, s40, 8
    s_add_u32 s48, s48, s47
    s_add_u32 s48, s48, {KB0+64-24}
    v_and_b32 v4, 3, v0
    v_sub_u32 v4, 3, v4
    v_mul_u32_u24 v4, {KP}, v4
    v_bfe_u32 v5, v0, 2, 2
    v_lshl_add_u32 v4, v5, 3, v4
    v_bfe_u32 v5, v0, 4, 2
    v_lshl_add_u32 v4, v5, 4, v4
    v_add_u32 v{vA}, s48, v4
    s_mul_i32 s48, s39, {UPITCH}
    s_sub_u32 s48, s48, s47
    s_add_u32 s48, s48, {UO+512+16-192}
    v_and_b32 v4, 15, v0
    v_lshlrev_b32 v4, 5, v4
    v_lshlrev_b32 v5, 4, v5
    v_sub_u32 v4, v4, v5
    v_add_u32 v{vBc}, s48, v4
    s_add_u32 s64, s30, {WS_XG}
    s_addc_u32 s65, s31, 0
    s_mov_b32 s66, {XG_BYTES}
    s_mov_b32 s67, 0x20000
    s_and_b32 s47, s36, 3
    s_lshl_b32 s47, s47, 12
    v_lshl_add_u32 v97, v{vLane}, 4, s47
    s_lshl_b32 s44, s37, 14
    s_mov_b32 s54, {f32(8.0)}
    s_mov_b32 s55, {f32(256.0)}
    s_lshl_b32 s46, s38, 4
    v_mov_b32 v{vDT}, {f32(LOG2E)}
    s_cmp_lt_u32 s36, 4
    s_cbranch_scc1 Lnoprio
    s_setprio 1
    Lnoprio:
    s_waitcnt lgkmcnt(0)
    s_lshr_b32 s52, s52, s46
    s_lshl_b32 s52, s52, 16
    v_mul_f32 v{vDT}, s52, v{vDT}
    v_exp_f32 v{vDT}, v{vDT}
    v_cvt_pk_bf16_f32 v{vDT}, v{vDT}, v{vDT}
    v_and_b32 v{vDT}, s43, v{vDT}
    s_and_b32 s59, s53, s43
    s_lshl_b32 s58, s53, 16
    v_add_f32 v6, v{vDT}, v{vDT}
    """)
    P.stamp(2)
    A(f"""
    s_waitcnt vmcnt(2)
    v_mul_f32 v4, {f32(LOG2E)}, v{vP}
    v_exp_f32 v4, v4
    v_mul_f32 v{b2}, v{vP+1}, v{vDT}
    v_cvt_pk_bf16_f32 v4, v4, v4
    v_and_b32 v4, s43, v4
    v_mul_f32 v{a2}, v4, v{vDT}
    v_mul_f32 v{b2}, 0.15915494, v{b2}
    v_mul_f32 v{a2}, {f32(-LOG2E)}, v{a2}
    """)
    P.stamp(3)
    nb_ = [0]
    vPX, vPS_, vPA = 100, 116, 97
    xp = [f"buffer_load_dwordx4 {v(vPX+4*q,4)}, v{vPA}, s[64:67], s44 offen offset:{1024*q} sc1" for q in range(4)]
    xp += [f"global_load_dwordx4 {v(vPS_+4*q,4)}, v{vPA}, s[30:31] offset:{1024*q} sc1" for q in range(4)]
    def put(src, row, neg):
        r = CV + (nb_[0] & 7); nb_[0] += 1
        x = [f"v_cvt_pk_bf16_f32 v{r}, v{src}, {'-' if neg else ''}v{src+1}", f"ds_write_addtid_b32 v{r} offset:{row*GP}"]
        if nb_[0] == c.prio_mid: x[1] += "\ns_setprio 0"
        if nb_[0] == c.xp_at: x[1] += "\ns_cmp_lt_u32 s36, 4\ns_cbranch_scc1 Lnoxp\n" + "\n".join(xp) + "\nLnoxp:"
        return x
    def spread(puts, work):
        o = []
        while puts or work:
            p = puts.pop(0) if puts else None
            if p: o.append(p[0])
            if work: o += work.pop(0)
            if p: o.append(p[1])
        return o
    GR = 32
    for l in cexp(Hh, a2, b2, "s54", tA): A(l)
    A(f"v_mov_b32 v{CV+8}, 0x3f80\nds_write_addtid_b32 v{CV+8}")
    for l in cmul(Hh+2, Hh, Hh) + cmul(Hh+4, Hh+2, Hh) + cmul(W4, Hh+2, Hh+2): A(l)
    ex = merge(cexp(w1, a2, b2, None, tB), cexp(w256, a2, b2, "s55", tC))
    ex += ["s_waitcnt vmcnt(0)", f"v_mul_f32 v{G}, v{vP+2}, v6", f"v_mul_f32 v{G+1}, v{vP+3}, v6",
           "v_min_u32 v5, 255, v0\nv_lshlrev_b32 v6, 4, v5", "v_lshlrev_b32 v5, 3, v5",
           f"global_load_dwordx4 {v(vTB,4)}, v6, s[62:63] offset:-2048", f"global_load_dwordx2 {v(vTB+4,2)}, v5, s[62:63] offset:2048"]
    ex += cmul(w2, w1, w1) + cmul(G+2, G, w1) + cmul(w512, w256, w256)
    cur = [Hh, Hh+2, Hh+4, W4]; nxt = [HT, HT+2, HT+4, HT+6]; alt = [G2, G2+2, G2+4, G2+6]
    j = 1
    while j < 32:
        pend = [put(cur[r], j + r, False) for r in range(4) if j + r < 32]
        wk = [cmul(nxt[r], cur[r], W4) + [ex.pop(0) for _ in range(1) if ex] for r in range(4) if j + 4 + r < 32]
        if j + 4 >= 32: wk = [cmul(G+2*i, G+2*(i-2), w2) for i in range(2, 5)]
        for l in spread(pend, wk): A(l)
        cur, nxt = nxt, (alt if nxt[0] == HT else [HT, HT+2, HT+4, HT+6])
        j += 4
    assert not ex
    wk = [cmul(G+2*i, G+2*(i-2), w2) for i in range(5, 8)] + [cmul(G2+2*k, G+4*k, w256) for k in range(4)] + [cmul(G2+8, G, w512)]
    for l in spread([put(G+2*i, GR+i, True) for i in range(8)], wk): A(l)
    wk = [cmul(G2+10, G+8, w512), cmul(G2+12, G2, w512), cmul(G2+14, G2+4, w512), cmul(G, G2+8, w512), cmul(G+2, G2+12, w512), cmul(G+4, G, w512), cmul(G+6, G+2, w512), cmul(G+8, G+4, w512)]
    for l in spread([put(G2+2*i, GR+8+i, True) for i in range(8)], wk): A(l)
    for l in spread([put(G+2*i, GR+16+i, True) for i in range(5)], []): A(l)
    P.stamp(4)
    A(f"s_cmp_ge_u32 s36, 4\ns_cbranch_scc1 {nw}\ns_branch Lmw\n.p2align 12")
    target("Lmw")
    vACC, vEA, FR, TA_ = 8, 30, 100, 44
    tabprep = [f"s_lshl_b32 s46, s36, 15", f"v_lshl_add_u32 v4, v{vJ}, 2, s46", f"v_mul_u32_u24 v5, {4*TP}, v{vG}", "v_add_u32 v5, v5, v4", f"v_xor_b32 v7, 1, v{vG}"]
    tmin = []
    for b in range(4):
        o0 = 2 * b * TP + 128; o1 = 4 * (b & 1) * TP + 256 + 128 * (b >> 1)
        tabprep += [f"v_mul_u32_u24 v{TA_+b}, {abs(o1-o0)}, v{vG if o1 > o0 else 7}", f"v_add_u32 v{TA_+b}, v{TA_+b}, v4"]
        tmin.append(min(o0, o1))
    tabprep += [f"v_lshl_add_u32 v{TA_+4}, v{vG}, 9, v4", "s_waitcnt vmcnt(0)"]
    for r in range(11):
        tabprep += [f"v_and_b32 v{vEA+r}, 0xffff, v{vTB+(r>>1)}" if r % 2 == 0 else f"v_lshrrev_b32 v{vEA+r}, 16, v{vTB+(r>>1)}"]
    tabprep += ["v_cmp_ne_u32 s[44:45], 0, v0", f"v_lshlrev_b32 v6, 4, v0"]
    A("s_waitcnt lgkmcnt(0)\ns_barrier")
    P.stamp(5)
    def frd(n):
        b = FR + 8 * (n & 7); o = (n >> 3) * REG + 32 * (n & 7)
        return f"ds_read_b128 {v(b,4)}, v{vRA} offset:{GR*GP+o}\nds_read_b128 {v(b+4,4)}, v{vRA} offset:{o}"
    for n in range(6): A(frd(n))
    for n in range(16):
        b0 = FR + 8 * (n & 7)
        A(f"s_waitcnt lgkmcnt({2*min(5, 15-n)})\nv_mfma_f32_32x32x16_bf16 {v(vACC,16)}, {v(b0,4)}, {v(b0+4,4)}, {'0' if n == 0 else v(vACC,16)}")
        if n + 6 < 16: A(frd(n + 6))
        for l in tabprep[2*n:2*n+2]: A(l)
    assert len(tabprep) <= 32
    vW, vR, vO = 97, 98, 99
    A(f"""
    s_lshl_b32 s46, s36, 12
    s_add_u32 s46, s46, {PARO}
    v_lshl_add_u32 v{vW}, v{vLane}, 4, s46
    v_xor_b32 v{vR}, 0x1000, v{vW}
    s_lshl_b32 s46, s40, 10
    s_lshl_b32 s47, s39, 15
    s_add_u32 s47, s47, s46
    v_lshl_add_u32 v3, v{vLane}, 4, s47
    """)
    for b in range(4): A(f"ds_write_b32 v5, v{vACC+b} offset:{TP*b}")
    for b in range(4): A(f"ds_write_b32 v{TA_+b}, v{vACC+4+b} offset:{tmin[b]}")
    A(f"s_mov_b32 exec_hi, 1\nds_write_b32 v{TA_+4}, v{vACC+8} offset:512\ns_mov_b32 exec_hi, 0")
    for b in range(1, 4): A(f"ds_write_b32 v{TA_+4}, v{vACC+8+b} offset:{512+128*b}")
    A("s_mov_b32 exec_hi, -1\ns_waitcnt lgkmcnt(0)\ns_barrier")
    P.stamp(6)
    EV, CB = 100, 44
    for r in range(11): A(f"ds_read2st64_b32 {v(EV+2*r,2)}, v{vEA+r} offset0:0 offset1:128\nv_add_u32 v{vEA+r}, 0x10000, v{vEA+r}")
    for r in range(11): A(f"ds_read2st64_b32 {v(EV+22+2*r,2)}, v{vEA+r} offset0:0 offset1:128")
    for ch in range(2):
        E = EV + 22 * ch
        A(f"s_waitcnt lgkmcnt({11 if ch == 0 else 4})")
        for r in range(11): A(f"v_add_f32 v{E+2*r}, v{E+2*r}, v{E+2*r+1}")
        for r in range(3): A(f"v_cndmask_b32 v{E+2*r}, 0, v{E+2*r}, s[44:45]")
        for cp in range(4):
            b = CB + 16 * ch + 4 * cp
            for k in range(4):
                r0 = 3 - cp + 2 * k
                A(f"v_cvt_pk_bf16_f32 v{b+k}, v{E+2*r0}, v{E+2*r0+2}")
            A(f"ds_write_b128 v6, {v(b,4)} offset:{KB0+64+32768*ch+cp*KP}")
    P.stamp(7)
    A("s_waitcnt lgkmcnt(0)\ns_barrier")
    P.stamp(8)
    A(f"s_setprio {c.cprio}")
    AC = 8
    FBs = [40 + 8 * k for k in range(6)] + [100 + 8 * k for k in range(6)]
    def rd(Gi):
        r, n = Gi >> 3, Gi & 7
        b = FBs[Gi % 12]
        return [f"ds_read_b64 {v(b,2)}, v{vA} offset:{512*n+64*r}", f"ds_read_b64 {v(b+2,2)}, v{vA} offset:{512*n+64*r+8}",
                f"ds_read_b128 {v(b+4,4)}, v{vBc} offset:{512*n+64*(3-r)}"]
    def send(t): return f"s_mov_b64 exec, s[{48+2*(t&1)}:{49+2*(t&1)}]\nds_write_b128 v{vW}, {v(AC+4*t,4)} offset:{1024*(t>>1)}\ns_mov_b64 exec, -1"
    for Gi in range(4):
        for l in rd(Gi): A(l)
    A(f"""
    s_lshl_b32 s46, s37, 2
    s_add_u32 s46, s46, s39
    s_lshl_b32 s46, s46, 12
    s_lshl_b32 s47, s40, 9
    s_add_u32 s46, s46, s47
    s_add_u32 s46, s46, {WS_XG}
    v_and_b32 v4, 15, v0
    v_bfe_u32 v5, v0, 4, 2
    v_lshlrev_b32 v4, 5, v4
    v_lshrrev_b32 v6, 1, v5
    v_lshl_add_u32 v4, v6, 4, v4
    v_and_b32 v5, 1, v5
    v_lshl_add_u32 v4, v5, 10, v4
    v_add_u32 v{vO}, s46, v4
    """)
    started = set()
    def cm(r, a, b):
        t = a + b
        cc = v(AC + 4 * t, 4) if t in started else "0"
        started.add(t)
        return f"v_mfma_f32_16x16x32_bf16 {v(AC+4*t,4)}, {v(FBs[(8*r+a)%12],4)}, {v(FBs[(8*r+b)%12]+4,4)}, {cc}"
    def grp(n): return [(a, b) for a in range(n + 1) for b in range(n + 1) if max(a, b) == n and a + b <= 7]
    rq = []; nrd = 12; known = 0
    for Gi in range(28):
        r, n = Gi >> 3, Gi & 7
        rq += rd(Gi + 4)
        while nrd < 3 * (Gi + 1) + c.cmin: A(rq.pop(0)); nrd += 1
        if known < 3 * (Gi + 1):
            want = 3 * (Gi + 1)
            if n in c.cmerge and Gi > 3: want = min(want + 3, nrd - 3)
            A(f"s_waitcnt lgkmcnt({nrd - want})"); known = want
        for (a_, b_) in grp(n):
            A(cm(r, a_, b_))
            if rq: A(rq.pop(0)); nrd += 1
    for l in rq: A(l)
    PR, PP = 148, 116
    odd = A.label("odd"); jn = A.label("jn")
    A(f"s_cmp_eq_u32 s40, 1\ns_cbranch_scc1 {odd}")
    for par in range(2):
        if par:
            for _ in range(c.x_pad // 4): A("s_nop 0")
            target(odd)
        snd = [t for t in range(8) if t % 2 != par]
        def sw(t): return f"ds_write_b128 v{vW}, {v(AC+4*t,4)} offset:{1024*(t>>1)}"
        rest = [p for n in range(4, 8) for p in grp(n)]
        first = [p for p in rest if (p[0] + p[1]) % 2 != par]; last = [p for p in rest if (p[0] + p[1]) % 2 == par]
        A("s_waitcnt lgkmcnt(9)"); got = 4
        for k, p in enumerate(first):
            if max(p) > got: A(f"s_waitcnt lgkmcnt({2 if k > 3 else 3*(7-max(p)) + (1 if k > 1 else 0)})"); got = 7 if k > 3 else max(p)
            A(cm(3, *p))
            if k == 1: A(sw(snd[0]))
            if k == 3: A(sw(snd[1]))
        if got < 7: A("s_waitcnt lgkmcnt(2)")
        for k, p in enumerate(last):
            A(cm(3, *p))
            if k == 2: A(sw(snd[2]))
            if k == 7: A(sw(snd[3]))
        if par == 0: P.stamp(9)
        else: P.stamp(9)
        A("s_waitcnt lgkmcnt(0)\ns_barrier")
        for q in range(4): A(f"ds_read_b128 {v(PR+4*q,4)}, v{vR} offset:{1024*q}\nds_read_b128 {v(PP+4*q,4)}, v3 offset:{2048*q}")
        for q in range(4):
            A(f"s_waitcnt lgkmcnt({6-2*q})")
            k = AC + 4 * (2 * q + par)
            for h in range(2): A(f"v_pk_add_f32 {v(PR+4*q+2*h,2)}, {v(PR+4*q+2*h,2)}, {v(PP+4*q+2*h,2)}")
            for h in range(2): A(f"v_pk_add_f32 {v(PR+4*q+2*h,2)}, {v(PR+4*q+2*h,2)}, {v(k+2*h,2)}")
            o_ = 132 + 2 * q
            A(f"v_cvt_pk_bf16_f32 v{o_}, v{PR+4*q}, v{PR+4*q+1}\nv_cvt_pk_bf16_f32 v{o_+1}, v{PR+4*q+2}, v{PR+4*q+3}")
            if q & 1:
                A(f"v_permlane16_swap_b32 v{o_-2}, v{o_}\nv_permlane16_swap_b32 v{o_-1}, v{o_+1}")
                A(f"global_store_dwordx4 v{vO}, {v(o_-2,4)}, s[30:31] offset:{1024*(q-1)} sc0 sc1")
        if not par: A(f"s_branch {jn}")
    A(f"{jn}:")
    P.stamp(10)
    vB, vAa, vS, vCR, vCA = 8, 10, 12, 14, 16
    vX = 18
    CN, CA, MB = 24, 32, 38
    F = [48, 64, 80]
    ACC = 96
    T1, T2, OUT = 48, 56, 64
    def csetup():
        A(ffn_ids)
        A(f"""
        s_and_b32 s40, s36, 1
        s_bfe_u32 s41, s36, 0x10001
        s_lshr_b32 s49, s36, 2
        v_bfe_u32 v2, v{vLane}, 2, 2
        v_bfe_u32 v3, v{vLane}, 4, 1
        v_lshrrev_b32 v4, 5, v{vLane}
        v_and_b32 v6, 3, v{vLane}
        v_lshl_add_u32 v5, v4, 3, v2
        v_lshlrev_b32 v7, 8, v5
        v_lshl_add_u32 v7, v6, 3, v7
        v_lshl_add_u32 v7, v3, 5, v7
        s_lshl_b32 s42, s40, 1
        s_add_u32 s42, s42, s41
        v_xor_b32 v{vB}, s42, v2
        v_lshl_add_u32 v{vB}, v{vB}, 6, v7
        v_xor_b32 v{vB+1}, 64, v{vB}
        v_add_u32 v17, 0x10000, v{vB}
        v_add_u32 v46, 0x10000, v{vB+1}
        s_lshl_b32 s42, s34, 1
        s_add_u32 s42, s42, s40
        v_xor_b32 v{vX}, s42, v2
        v_lshl_add_u32 v{vX}, v{vX}, 6, v7
        v_lshlrev_b32 v7, 7, v5
        v_lshl_add_u32 v7, v6, 3, v7
        v_lshl_add_u32 v7, v3, 12, v7
        v_lshrrev_b32 v5, 1, v2
        v_lshl_add_u32 v5, v3, 1, v5
        s_lshl_b32 s42, s41, 1
        v_xor_b32 v5, s42, v5
        v_lshl_add_u32 v7, v5, 5, v7
        v_add_u32 v{vAa}, {12*BLK}, v7
        v_xor_b32 v{vAa+1}, 32, v{vAa}
        s_lshl_b32 s42, s39, 2
        s_lshl_b32 s43, s40, 1
        s_add_u32 s42, s42, s43
        s_add_u32 s43, s42, s41
        s_xor_b32 s44, s43, 1
        s_lshl_b32 s45, s38, 3
        s_lshl_b32 s46, s41, 1
        s_add_u32 s45, s45, s46
        s_lshl_b32 s46, s49, 2
        s_add_u32 s45, s45, s46
        s_lshl_b32 s46, s45, 7
        s_add_u32 s45, s45, {WS_ACT // 1024}
        s_mul_i32 s43, s43, 112
        s_mul_i32 s44, s44, 112
        s_add_u32 s43, s43, s45
        s_add_u32 s44, s44, s45
        s_lshl_b32 s43, s43, 10
        s_lshl_b32 s44, s44, 10
        v_lshl_add_u32 v{vS}, v{vLane}, 4, s43
        v_lshl_add_u32 v{vS+1}, v{vLane}, 4, s44
        v_and_b32 v5, 15, v{vLane}
        v_mul_u32_u24 v7, {F_*8}, v3
        v_lshl_add_u32 v5, v5, 3, v7
        s_add_u32 s46, s46, {WS_CS}
        v_add_u32 v{vCA}, s46, v5
        v_and_b32 v5, 31, v{vLane}
        s_lshl_b32 s42, s40, 1
        s_add_u32 s42, s42, s41
        s_lshl_b32 s43, s42, 9
        s_add_u32 s43, s43, {CON}
        v_lshl_add_u32 v{vCR}, v5, 4, s43
        v_xor_b32 v{vCR+1}, 512, v{vCR}
        s_lshl_b32 s43, s39, 11
        s_lshl_b32 s44, s41, 8
        s_add_u32 s43, s43, s44
        s_add_u32 s43, s43, {WS_FLAGS}
        s_lshl_b32 s44, s34, 10
        s_add_u32 s59, s43, s44
        s_lshl_b32 s44, s40, 10
        s_add_u32 s58, s43, s44
        s_lshl_b32 s44, s49, 9
        s_add_u32 s58, s58, s44
        v_mov_b32 v{CA+4}, 0
        v_mov_b32 v{CA+5}, 0
        v_mov_b32 v{MB+2}, 0
        v_mov_b32 v{MB+3}, 0
        v_mov_b32 v{MB+6}, 0
        v_mov_b32 v{MB+7}, 0
        v_cmp_eq_u32 s[52:53], 0, v4
        s_mov_b32 s47, 0x3f803f80
        s_mov_b32 s48, 0xffff0000
        """)
    caload = [f"global_load_dwordx2 {v(CA,2)}, v{vCA}, s[30:31] sc1", f"global_load_dwordx2 {v(CA+2,2)}, v{vCA}, s[30:31] offset:128 sc1"]
    def preads(p, j):
        s, ks = j >> 1, j & 1
        f = F[j % 3]
        ho = (slot[("H", s)] % 8) * BLK + 4096 * ks
        wo = (slot[("W", 14 * p + s)] - 12) * BLK + 2048 * ks
        o = []
        for kind, i in (("B", 0), ("A", 0), ("B", 1), ("A", 1)):
            ab = vB + i if s < 8 else (17, 46)[i]
            if kind == "B": o += [f"ds_read_b64_tr_b16 {v(f+8+4*i,2)}, v{ab} offset:{ho}", f"ds_read_b64_tr_b16 {v(f+10+4*i,2)}, v{ab} offset:{ho+1024}"]
            else: o += [f"ds_read_b64_tr_b16 {v(f+4*i,2)}, v{vAa+i} offset:{wo}", f"ds_read_b64_tr_b16 {v(f+2+4*i,2)}, v{vAa+i} offset:{wo+512}"]
        return o
    def pmfma(j, first=False):
        f = F[j % 3]
        return [f"v_mfma_f32_32x32x16_bf16 {v(ACC+32*t+16*rt,16)}, {v(f+4*t,4)}, {v(f+8+4*rt,4)}, {'0' if first else v(ACC+32*t+16*rt,16)}" for (t, rt) in ((0, 0), (0, 1), (1, 0), (1, 1))]
    def corr(first):
        return [f"v_mfma_f32_32x32x16_bf16 {v(ACC+32*t+16*rt,16)}, {v(CA+2*t,4)}, {v(MB+4*rt,4)}, {'0' if first else v(ACC+32*t+16*rt,16)}" for t in range(2) for rt in range(2)]
    mkmb = [f"v_cndmask_b32 v{MB+4*rt+k}, 0, v{CN+4*rt+3}, s[52:53]" for rt in range(2) for k in range(2)]
    def inter(m, r):
        per_ = (len(r) + 3) // 4
        for i in range(4):
            A(m[i])
            for l in r[per_*i:per_*(i+1)]: A(l)
    def pstep(p, s):
        for h in range(2):
            A("s_waitcnt lgkmcnt(8)")
            inter(pmfma(2*s - 2 + h, s == 1 and h == 0), preads(p, 2*s + h))
        k = s - c.ca_load if p == 0 else 14 + s - c.cs2[1] - 1
        if k in (0, 1): A(caload[k])
    def epi(t, rt, n, packed):
        a = ACC + 32 * t + 16 * rt
        cn = CN + 4 * rt
        o_ = OUT + 4 * (n & 1)
        L = []
        if packed:
            L += [f"v_pk_mul_f32 {v(T1+2*q,2)}, {v(a+2*q,2)}, {v(a+2*q,2)}" for q in range(4)]
            L += [f"v_pk_fma_f32 {v(T1+2*q,2)}, {v(T1+2*q,2)}, {v(cn,2)}, {v(cn,2)} op_sel:[0,1,0] op_sel_hi:[1,1,0]" for q in range(4)]
            L += [f"v_pk_mul_f32 {v(T1+2*q,2)}, {v(T1+2*q,2)}, {v(a+2*q,2)}" for q in range(4)]
            L += [f"v_exp_f32 v{T1+q}, v{T1+q}" for q in range(8)]
            L += [f"v_pk_mul_f32 {v(T2+2*q,2)}, {v(a+2*q,2)}, {v(a+8+2*q,2)}" for q in range(4)]
            L += [f"v_pk_fma_f32 {v(T1+2*q,2)}, {v(T1+2*q,2)}, {v(cn+2,2)}, {v(cn+2,2)} op_sel_hi:[1,0,0]" for q in range(4)]
            L += [f"v_rcp_f32 v{T1+q}, v{T1+q}" for q in range(8)]
            L += [f"v_pk_mul_f32 {v(T2+2*q,2)}, {v(T2+2*q,2)}, {v(T1+2*q,2)}" for q in range(4)]
            L += [f"v_cvt_pk_bf16_f32 v{o_+q}, v{T2+2*q}, v{T2+2*q+1}" for q in range(4)]
        else:
            def st(q):
                return [f"v_mul_f32 v{T1+q}, v{a+q}, v{a+q}", f"v_fma_f32 v{T1+q}, v{T1+q}, v{cn+1}, v{cn}", f"v_mul_f32 v{T1+q}, v{T1+q}, v{a+q}",
                        f"v_exp_f32 v{T1+q}, v{T1+q}", f"v_mul_f32 v{T2+q}, v{a+q}, v{a+8+q}", f"v_fma_f32 v{T1+q}, v{T1+q}, v{cn+2}, v{cn+2}",
                        f"v_rcp_f32 v{T1+q}, v{T1+q}", f"v_mul_f32 v{T2+q}, v{T2+q}, v{T1+q}"]
            for q0 in range(0, 8, c.il):
                xs = [st(q) for q in range(q0, q0 + c.il)]
                for k in range(8): L += [x[k] for x in xs]
                L += [f"v_cvt_pk_bf16_f32 v{o_+q//2}, v{T2+q}, v{T2+q+1}" for q in range(q0, q0 + c.il, 2)]
        L += [f"global_store_dwordx4 v{vS+rt}, {v(o_,4)}, s[30:31] offset:{1024*t} {c.stflag}"]
        return L
    def cost(l): return 2 if l.startswith(("v_exp", "v_rcp", "v_sqrt")) else c.stcost if l.startswith("global_store") else 1
    def signal(t, later=None):
        A(f"s_mov_b32 s70, 1\ns_waitcnt vmcnt({2-2*t if later is None else later})\ns_atomic_add s70, s[30:31], s58\ns_add_u32 s58, s58, 128")
    def poll_issue(r, off):
        A(f"s_mov_b32 s{r}, 0\ns_add_u32 s68, s59, {off}\ns_atomic_add s{r}, s[30:31], s68 glc")
    def poll_wait(r, off, inline=False):
        pl = A.label("poll"); ok = A.label("ok")
        if inline:
            A(f"s_mov_b32 s45, 0\n{pl}:\ns_waitcnt lgkmcnt(0)\ns_cmp_ge_u32 s{r}, 14\ns_cbranch_scc1 {ok}")
            poll_issue(r, off)
            A(f"s_add_u32 s45, s45, 1\ns_cmp_lt_u32 s45, {SPIN}\ns_cbranch_scc1 {pl}\ns_waitcnt lgkmcnt(0)\n{ok}:")
            return
        A(f"s_waitcnt lgkmcnt(0)\ns_cmp_lt_u32 s{r}, 14\ns_cbranch_scc1 {pl}\n{ok}:")
        with Cold():
            A(f"{pl}:\ns_mov_b32 s45, 0\n{pl}b:")
            poll_issue(r, off)
            A(f"s_add_u32 s45, s45, 1\ns_waitcnt lgkmcnt(0)\ns_cmp_ge_u32 s{r}, 14\ns_cbranch_scc1 {ok}\ns_cmp_lt_u32 s45, {SPIN}\ns_cbranch_scc1 {pl}b\ns_branch {ok}")
    PA_, PB_ = 69, 71
    Q = Bars([0, 14, c.drain0[1] + 1, 29], 13)
    AC2, ID, HF = 80, 160, 72
    csetup()
    if c.emode: A(f"s_waitcnt vmcnt(0)\ns_sleep {c.emode}")
    A("s_waitcnt vmcnt(0)\ns_barrier")
    P.stamp(11)
    A(f"""
    s_lshl_b32 s43, s35, 1
    s_add_u32 s43, s43, s41
    s_sub_u32 s43, s43, s38
    s_cselect_b32 s44, 14, 0
    s_add_u32 s43, s43, s44
    s_cmp_ge_u32 s43, 12
    s_cselect_b32 s44, {2 if c.w8 else 0}, 0
    s_add_u32 s43, s43, s44
    s_lshl_b32 s43, s43, 13
    v_add_u32 v{vX}, s43, v{vX}
    v_lshlrev_b32 v7, 3, v4
    v_sub_u32 v7, v5, v7
    v_mov_b32 v{vX+1}, 0x3f80
    v_mov_b32 v{vX+2}, 1.0
    """)
    for j in range(2):
        for i in range(4):
            d0 = 16 * j + 2 * i
            A(f"v_cmp_eq_u32 vcc, {d0}, v7\nv_cmp_eq_u32 s[50:51], {d0+1}, v7\nv_cndmask_b32 v{ID+4*j+i}, 0, v{vX+1}, vcc\nv_cndmask_b32 v{ID+4*j+i}, v{ID+4*j+i}, v{vX+2}, s[50:51]")
    A("s_setprio 2")
    Q.bar()
    P.stamp(12)
    for l in preads(0, 0) + preads(0, 1): A(l)
    for s in range(1, 14):
        Q.bar(); pstep(0, s)
    Q.bar()
    r = [f"ds_read_b128 {v(CN+4*i,4)}, v{vCR+i}" for i in range(2)] + [f"ds_read_b64_tr_b16 {v(HF+2*i,2)}, v{vX} offset:{4096*(i>>1)+1024*(i&1)}" for i in range(4)]
    A("s_waitcnt lgkmcnt(8)"); inter(pmfma(26), r)
    A("s_waitcnt vmcnt(0) lgkmcnt(4)"); inter(pmfma(27), mkmb)
    for l in corr(False): A(l)
    A("s_waitcnt lgkmcnt(0)")
    A("s_setprio 0")
    E1 = []
    for n in range(4): E1 += epi(n >> 1, n & 1, n, c.e1_packed)
    tot = sum(cost(x) for x in E1); per1 = tot / (c.e1_last - c.e1_first + 1); bud = 0.0
    vD, vT = 8, 14
    gsetup = f"""
    v_lshl_add_u32 v7, v4, 2, v2
    v_lshlrev_b32 v7, 7, v7
    v_lshrrev_b32 v{vD}, 1, v2
    v_xor_b32 v{vD}, s41, v{vD}
    v_lshl_add_u32 v7, v{vD}, 6, v7
    v_lshl_add_u32 v7, v3, 5, v7
    v_lshl_add_u32 v7, v6, 3, v7
    s_lshl_b32 s43, s41, 12
    v_add_u32 v{vD}, s43, v7
    v_xor_b32 v{vD+1}, 64, v{vD}
    v_add_u32 v{vD+2}, 0x10000, v{vD}
    v_add_u32 v{vD+3}, 0x10000, v{vD+1}
    v_lshlrev_b32 v{vT}, 4, v{vLane}
    """
    gsetup2 = f"""
    s_lshl_b32 s43, s39, 2
    s_lshl_b32 s44, s34, 1
    s_add_u32 s43, s43, s44
    s_add_u32 s43, s43, s40
    s_mul_i32 s55, s43, {112*1024}
    s_mul_i32 s43, s43, {32*896}
    s_lshl_b32 s44, s35, 7
    s_add_u32 s43, s43, s44
    s_lshl_b32 s44, s41, 6
    s_add_u32 s43, s43, s44
    v_mul_u32_u24 v5, 896, v5
    v_lshl_add_u32 v5, v4, 4, v5
    v_add_u32 v5, s43, v5
    s_lshl_b32 s44, s41, 11
    s_add_u32 s55, s55, s44
    s_lshl_b32 s4, s33, 13
    s_add_u32 s4, s4, s55
    s_add_u32 s54, s55, {14*8192}
    s_add_u32 s64, s30, {WS_ACT}
    s_addc_u32 s65, s31, 0
    s_mov_b32 s66, {ACT_BYTES}
    s_mov_b32 s67, 0x20000
    """
    gsetup3 = "\n".join(f"s_add_u32 s{4+k}, s{3+k}, 8192\ns_cmp_ge_u32 s{4+k}, s54\ns_cselect_b32 s{4+k}, s55, s{4+k}" for k in range(1, 14))
    TRQ = [96 + 4 * k for k in range(18)] + [16, 20, 24, 28]
    DB = [32, 40, 48, 56]
    AO = [AC2, 64]
    seq = [(14 * hf + b, j) for hf in range(2) for j in range(2) for b in range(14)]
    cons = [(b, j) for b in range(14) for j in range(2)] + seq[28:]
    freeq = list(TRQ); treg = {}
    def tload(n):
        b, j = seq[n]
        if (b, j) not in treg: treg[(b, j)] = freeq.pop(0)
        o = []
        if n == 28: o += [f"v_add_u32 v15, 4096, v{vT}"]
        if c.x_notl and n >= 28: return o
        o += [f"buffer_load_dwordx4 {v(treg[(b, j)],4)}, v{vT if n < 28 else 15}, s[64:67], s{4+b%14} offen offset:{1024*j} sc1"]
        return o
    nst = 0; early = 0
    assert c.drain0[1] <= c.chkA and c.e1_last + 3 <= c.chkA and sum(c.earlyT) <= 14
    for i in range(15, 29):
        Q.bar()
        if i == c.drain0[0]:
            assert nst >= 2
            signal(0, nst - 2)
        if i >= c.e1_first:
            bud += per1
            while E1 and (bud > 0 or i == c.e1_last):
                x = E1.pop(0); A(x); bud -= cost(x)
                if x.startswith("global_store"): nst += 1
        if i in c.cs2:
            sk = A.label("cs2")
            A(f"s_cmp_lg_u32 s36, 0\ns_cbranch_scc1 {sk}")
            ld = f"global_load_dword v47, v{MB+2}, s[28:29] offset:128 sc1"
            if i == c.cs2[0]: A(ld)
            else: A(f"s_mov_b32 s45, 0\n{sk}p:\ns_waitcnt vmcnt(0)\nv_cmp_gt_u32 vcc, 32, v47\ns_cbranch_vccz {sk}\ns_sleep {c.cs_back}\n{ld}\ns_add_u32 s45, s45, 1\ns_cmp_lt_u32 s45, {SPIN}\ns_cbranch_scc1 {sk}p")
            A(f"{sk}:")
        if i == c.pollA: poll_issue(PA_, 0)
        if i == c.e1_last + 1: A(gsetup)
        if i == c.e1_last + 2: A(gsetup2)
        if i == c.e1_last + 3: A(gsetup3)
        if i == c.chkA: A("s_waitcnt lgkmcnt(0)")
        if i == c.drain0[1]:
            signal(1)
            A(f"v_add_u32 v{vD+4}, 0x20000, v{vD}\nv_add_u32 v{vD+5}, 0x20000, v{vD+1}")
        if i == c.poll0: poll_issue(PB_, 128)
        if 0 <= i - c.chkA < len(c.earlyT):
            sk = A.label("et")
            A(f"s_cmp_lt_u32 s{PA_}, 14\ns_cbranch_scc1 {sk}")
            for _ in range(c.earlyT[i - c.chkA]):
                for l in tload(early): A(l)
                early += 1
            A(f"{sk}:")
    Q.bar()
    A(f"v_mfma_f32_32x32x16_bf16 {v(AC2,16)}, {v(ID,4)}, {v(HF,4)}, 0")
    A(f"v_mfma_f32_32x32x16_bf16 {v(AC2,16)}, {v(ID+4,4)}, {v(HF+4,4)}, {v(AC2,16)}")
    sk = A.label("et")
    A(f"s_cmp_lt_u32 s{PA_}, 14\ns_cbranch_scc1 {sk}c\n{sk}:")
    with Cold():
        A(f"{sk}c:")
        poll_wait(PA_, 0, True)
        for n in range(early):
            for l in tload(n): A(l)
        A(f"s_branch {sk}")
    def dreads(n):
        b, j = cons[n]
        sd = slot[("D", b)]; f = DB[n & 3]
        o = []
        for nt in range(2):
            do = (sd % 8) * BLK + 2048 * j
            ad = vD + 2 * (sd // 8) + nt
            o += [f"ds_read_b64_tr_b16 {v(f+4*nt,2)}, v{ad} offset:{do}", f"ds_read_b64_tr_b16 {v(f+4*nt+2,2)}, v{ad} offset:{do+1024}"]
        return o
    def gm(n):
        f = DB[n & 3]
        return [f"v_mfma_f32_32x32x16_bf16 {v(AO[nt],16)}, {v(f+4*nt,4)}, {v(treg[cons[n]],4)}, {'0' if (n == 0 and nt == 1) else v(AO[nt],16)}" for nt in (1, 0)]
    issued = early; mk = 0
    while issued < 14:
        for l in tload(issued): A(l)
        issued += 1
    poll_wait(PB_, 128, True)
    Q.mark(mk); mk += 1
    lim = 28
    for n in range(56):
        if n == 14 and not c.auxpoll: A("s_waitcnt lgkmcnt(0)\ns_barrier")
        for y in (c.ya_at, c.yb_at):
            if n == y:
                if c.auxpoll and y == c.ya_at and y < 16: A("s_waitcnt lgkmcnt(0)")
                A("s_barrier")
                Q.mark(mk); mk += 1
                lim += 14
        k = 99 if n == 0 else c.pace.get(n, c.pace1 if n < 28 else c.pace2)
        while issued < lim and freeq and k > (2 if c.tpost and n else 0):
            for l in tload(issued): A(l)
            issued += 1; k -= 1
        assert seq.index(cons[n]) < issued
        if n == 0:
            for l in dreads(0) + dreads(1): A(l)
        if n == c.g_pre:
            if c.xe: A("s_barrier")
            Q.mark(mk); mk += 1
        if c.auxpoll and n == 32: A("s_barrier")
        r = dreads(n + 2) if n + 2 < 56 else []
        A(f"s_waitcnt vmcnt({issued-1-seq.index(cons[n])}) lgkmcnt({4 if n < 55 else 0})")
        if n in (28, 42): Q.mark(mk); mk += 1
        m = gm(n)
        for i in range(2):
            A(m[i])
            if c.tpost and issued < lim and freeq and k > 1 - i:
                for l in tload(issued): A(l)
                issued += 1
            for l in r[2*i:2*i+2]: A(l)
        freeq.append(treg[cons[n]])
    assert 14 <= c.ya_at <= 26 and c.ya_at <= c.yb_at <= 32 and c.yb_at >= (20 if c.auxpoll else 24)
    while mk < 6: Q.mark(mk); mk += 1
    Q.mark(6)
    assert all(slot[("D", b)] not in (8, 9) for b in range(11, 28))
    A(f"""
    s_lshl_b32 s43, s36, 12
    s_add_u32 s43, s43, {8*BLK}
    v_lshl_add_u32 v2, v{vLane}, 4, s43
    v_xor_b32 v3, 0x2000, v2
    """)
    for q in range(4): A(f"ds_write_b128 v2, {v(AO[1]+4*q,4)} offset:{1024*q}")
    A("s_waitcnt lgkmcnt(0)\ns_barrier")
    for q in range(4): A(f"ds_read_b128 {v(32+4*q,4)}, v3 offset:{1024*q}")
    for hq in range(2):
        A(f"s_waitcnt lgkmcnt({2-2*hq})")
        for q in range(4*hq, 4*hq+4): A(f"v_pk_add_f32 {v(AC2+2*q,2)}, {v(AC2+2*q,2)}, {v(32+2*q,2)}")
        for q in range(4*hq, 4*hq+4): A(f"v_cvt_pk_bf16_f32 v{48+q}, v{AC2+2*q}, v{AC2+2*q+1}")
        A(f"v_permlane32_swap_b32 v{48+4*hq}, v{48+4*hq+2}\nv_permlane32_swap_b32 v{48+4*hq+1}, v{48+4*hq+3}")
        A(f"global_store_dwordx4 v5, {v(48+4*hq,4)}, s[26:27] offset:{32*hq} {c.outflag}")
    Q.fin(7)
    A("s_endpgm")
    target(nw)
    A(f"s_and_b32 s46, s36, 3\ns_mov_b32 s45, 0\nv_mov_b32 v11, {TAGA}")
    def xpoll():
        for l in xp: A(l)
    A("s_waitcnt lgkmcnt(0)\ns_barrier")
    P.stamp(5)
    A(f"""
    ds_read_b32 v11, v11
    s_lshl_b32 s47, s46, 10
    s_add_u32 s47, s47, {UO+512}
    v_xor_b32 v9, 3, v{vLane}
    v_lshl_add_u32 v9, v9, 2, s47
    s_lshl_b32 s47, s46, 11
    v_lshrrev_b32 v5, 3, v{vLane}
    v_lshl_add_u32 v5, v5, 4, s47
    v_bfe_u32 v6, v{vLane}, 1, 2
    v_lshl_add_u32 v5, v6, 8, v5
    v_and_b32 v6, 1, v{vLane}
    v_lshl_add_u32 v10, v6, 3, v5
    """)
    if not c.xp_at:
        if c.poll_late: A(f"s_sleep {c.poll_late}")
        xpoll()
    if not c.xp_chk:
        A(f"s_mov_b32 s45, 1\ns_barrier\ns_setprio {c.nprio}")
    pl = A.label("xp"); ok = A.label("xok"); nb1 = A.label("xnb")
    A(f"{pl}:\ns_waitcnt vmcnt(0) lgkmcnt(0)\nv_min3_u32 v4, v{vPX+1}, v{vPX+3}, v11\nv_max3_u32 v5, v{vPX+1}, v{vPX+3}, v11")
    for q in range(1, 8): A(f"v_min3_u32 v4, v4, v{vPX+4*q+1}, v{vPX+4*q+3}\nv_max3_u32 v5, v5, v{vPX+4*q+1}, v{vPX+4*q+3}")
    assert not c.xp_chk
    A(f"v_cmp_ne_u32 vcc, v4, v5\ns_cbranch_vccnz {pl}c\n{ok}:")
    with Cold():
        A(f"{pl}c:\ns_add_u32 s45, s45, 1\ns_cmp_gt_u32 s45, {SPIN}\ns_cbranch_scc1 {ok}")
        if c.xmask:
            for q in range(8):
                A(f"v_cmp_ne_u32 vcc, v{vPX+4*q+1}, v11\nv_cmp_ne_u32 s[50:51], v{vPX+4*q+3}, v11\ns_or_b64 exec, vcc, s[50:51]\ns_cbranch_execz {pl}m{q}\n{xp[q]}\n{pl}m{q}:\ns_mov_b64 exec, -1")
        else: xpoll()
        A(f"s_branch {pl}")
    P.stamp(6)
    if c.x_cnt: A("s_waitcnt lgkmcnt(0)\ns_mul_i32 s74, s45, 100\ns_add_u32 s74, s74, s72")
    NU, PRE, UB = 16, 32, 48
    for half in range(2):
        st = []
        for r in range(4 * half, 4 * half + 4):
            S = vPS_ + 2 * r; X = vPX + 2 * r
            t = 60 + 4 * (r & 3)
            st.append([f"v_and_b32 v{t+2}, s43, v{S}", f"v_rcp_f32 v{t+2}, v{t+2}", f"v_lshlrev_b32 v{t}, 16, v{S}",
                  f"v_lshlrev_b32 v{PRE+2*r}, 16, v{X}", f"v_and_b32 v{PRE+2*r+1}, s43, v{X}",
                  f"v_pk_add_f32 {v(NU+2*r,2)}, {v(PRE+2*r,2)}, {v(t,2)} op_sel_hi:[1,0] neg_lo:[0,1] neg_hi:[0,1]" if c.npk else f"v_sub_f32 v{NU+2*r}, v{PRE+2*r}, v{t}\nv_sub_f32 v{NU+2*r+1}, v{PRE+2*r+1}, v{t}",
                  f"v_cvt_pk_bf16_f32 v{NU+2*r+1}, v{NU+2*r}, v{NU+2*r+1}",
                  f"v_lshlrev_b32 v{NU+2*r}, 16, v{NU+2*r+1}", f"v_and_b32 v{NU+2*r+1}, s43, v{NU+2*r+1}",
                  f"v_pk_mul_f32 {v(NU+2*r,2)}, {v(NU+2*r,2)}, {v(t+2,2)} op_sel_hi:[1,0]" if c.npk else f"v_mul_f32 v{NU+2*r}, v{NU+2*r}, v{t+2}\nv_mul_f32 v{NU+2*r+1}, v{NU+2*r+1}, v{t+2}"])
        for l in merge(*st): A(l)
        for ch in range(2):
            for k in (2 * half, 2 * half + 1): A(f"v_cvt_pk_bf16_f32 v{UB+4*ch+k}, v{NU+4*k+2+ch}, v{NU+4*k+ch}")
    P.stamp(7)
    for half in range(2):
        for ch in range(2):
            A(f"ds_write2st64_b32 v9, v{UB+4*ch+2*half}, v{UB+4*ch+2*half+1} offset0:{ch*UPITCH//256+2*half} offset1:{ch*UPITCH//256+2*half+1}")
    A("s_setprio 0\ns_waitcnt lgkmcnt(0)\ns_barrier")
    P.stamp(8)
    if c.x_quietN: A("s_sleep 60")
    PO = 60
    for ch in range(2):
        for k in range(4):
            A(f"v_lshlrev_b32 v4, 16, v{UB+4*ch+k}\nv_and_b32 v5, s43, v{UB+4*ch+k}")
            A(f"v_fma_f32 v{PO+8*ch+2*k+1}, v4, s{58+ch}, v{PRE+4*k+2+ch}\nv_fma_f32 v{PO+8*ch+2*k}, v5, s{58+ch}, v{PRE+4*k+ch}")
            A(f"ds_write_b64 v10, {v(PO+8*ch+2*k,2)} offset:{32768*ch+1024*(k>>1)+128*(k&1)}")
    A("v_mov_b32 v90, v11")
    csetup()
    Q = Bars([0, c.gat_check, c.gat_check + 1, 14, 28, 29], 10)
    ST, GA = 18, 96
    vPS, vGA = 22, 23
    A(f"""
    s_mul_i32 s43, s39, {14*1024}
    s_lshl_b32 s44, s42, 8
    s_add_u32 s43, s43, s44
    s_add_u32 s43, s43, {WS_PS}
    v_lshl_add_u32 v{vPS}, v5, 3, s43
    v_mul_u32_u24 v7, 7168, v4
    v_add3_u32 v{vGA}, v{vPS}, v7, 64
    v_add_u32 v{vGA}, {3072-64}, v{vGA}
    s_lshl_b32 s44, s38, 10
    v_add_u32 v{vPS}, s44, v{vPS}
    """)
    nb = A.label("nb"); pz = A.label("pz"); pzo = A.label("pzo")
    pzl = "global_load_dwordx4 v[48:51], v47, s[30:31] sc1\nglobal_load_dwordx4 v[52:55], v47, s[30:31] offset:16 sc1"
    A(f"""
    s_cmp_lg_u32 s36, 4
    s_cbranch_scc1 {nb}a
    v_min_u32 v47, 55, v{vLane}
    v_lshlrev_b32 v47, 5, v47
    v_add_u32 v47, {WS_PZ}, v47
    s_mov_b32 s45, 0
    {pzl}
    {nb}a:
    """)
    P.stamp(9)
    A(f"""
    s_waitcnt lgkmcnt(0)
    s_barrier
    s_cmp_lg_u32 s36, 4
    s_cbranch_scc1 {nb}
    {pz}:
    s_waitcnt vmcnt(0)
    v_min3_u32 v56, v48, v49, v90
    v_max3_u32 v57, v48, v49, v90
    v_min3_u32 v56, v50, v51, v56
    v_max3_u32 v57, v50, v51, v57
    v_min3_u32 v56, v52, v53, v56
    v_max3_u32 v57, v52, v53, v57
    v_min3_u32 v56, v54, v55, v56
    v_max3_u32 v57, v54, v55, v57
    v_cmp_ne_u32 vcc, v56, v57
    s_cbranch_vccz {pzo}
    s_sleep {c.pz_sleep}
    {pzl}
    s_add_u32 s45, s45, 1
    s_cmp_lt_u32 s45, {SPIN}
    s_cbranch_scc1 {pz}
    {pzo}:
    s_cmp_lg_u32 s2, 0
    s_cbranch_scc1 {nb}
    v_mov_b32 v47, {WS_E}
    s_mov_b64 exec, 1
    global_store_dword v47, v90, s[30:31]
    s_mov_b64 exec, -1
    {nb}:
    s_barrier
    """)
    def gat(js=range(7)):
        for j in js: A(f"global_load_dwordx2 {v(GA+2*j,2)}, v{vGA}, s[30:31] offset:{1024*j-3072} sc1")
    S, Qv = GA, GA + 1
    work = [f"v_add_f32 v{GA+k}, v{GA+k}, v{GA+2*j+k}" for j in range(1, 7) for k in range(2)]
    work += [f"v_mov_b32 v{GA+2}, v{GA}", f"v_mov_b32 v{GA+3}, v{GA+1}", f"v_permlane32_swap_b32 v{GA}, v{GA+2}", f"v_permlane32_swap_b32 v{GA+1}, v{GA+3}",
             f"v_add_f32 v{GA}, v{GA}, v{GA+2}", f"v_add_f32 v{GA+1}, v{GA+1}, v{GA+3}"]
    work += [l.strip() for l in f"""
    v_mul_f32 v{S}, {f32(1.0/448)}, v{S}
    v_mul_f32 v{Qv}, {f32(1.0/448)}, v{Qv}
    v_fma_f32 v{Qv}, -v{S}, v{S}, v{Qv}
    v_max_f32 v{Qv}, 0, v{Qv}
    v_cvt_pk_bf16_f32 v{CN+3}, -v{S}, -v{S}
    v_cvt_pk_bf16_f32 v{Qv}, v{Qv}, v{Qv}
    v_and_b32 v{Qv}, s48, v{Qv}
    v_add_f32 v{Qv}, {f32(1e-5)}, v{Qv}
    v_cvt_pk_bf16_f32 v{Qv}, v{Qv}, v{Qv}
    v_and_b32 v{Qv}, s48, v{Qv}
    v_sqrt_f32 v{Qv}, v{Qv}
    v_cvt_pk_bf16_f32 v{Qv}, v{Qv}, v{Qv}
    v_and_b32 v{Qv}, s48, v{Qv}
    v_rcp_f32 v{S}, v{Qv}
    v_mul_f32 v{CN+2}, v{Qv}, v{Qv}
    v_mul_f32 v{CN}, {f32(GK0)}, v{S}
    v_mul_f32 v{CN+1}, v{S}, v{S}
    v_mul_f32 v{CN+1}, v{CN+1}, v{S}
    v_mul_f32 v{CN+1}, {f32(GK1)}, v{CN+1}
    ds_write_b128 v{vCR}, {v(CN,4)}
    """.strip().split("\n")]
    nwi = c.con_write - c.gat_check
    wper = (len(work) + nwi - 1) // nwi
    for i in range(14):
        Q.bar()
        if i == 0:
            for k in range(4): A(f"ds_read_b64_tr_b16 {v(F[0]+2*k,2)}, v{vB} offset:{4096*(k>>1)+1024*(k&1)}")
        if i == 1:
            A("s_waitcnt lgkmcnt(0)")
            for k in range(8):
                z = k < 2
                A(f"v_dot2_f32_bf16 v{ST+(k&1)}, v{F[0]+k}, s47, {'0' if z else 'v%d' % (ST+(k&1))}\nv_dot2_f32_bf16 v{ST+2+(k&1)}, v{F[0]+k}, v{F[0]+k}, {'0' if z else 'v%d' % (ST+2+(k&1))}")
        if i == 2:
            A(f"""
            v_add_f32 v{ST}, v{ST}, v{ST+1}
            v_add_f32 v{ST+1}, v{ST+2}, v{ST+3}
            v_mov_b32 v{ST+2}, v{ST}
            v_mov_b32 v{ST+3}, v{ST+1}
            v_permlane32_swap_b32 v{ST}, v{ST+2}
            v_permlane32_swap_b32 v{ST+1}, v{ST+3}
            v_add_f32 v{ST}, v{ST}, v{ST+2}
            v_add_f32 v{ST+1}, v{ST+1}, v{ST+3}
            v_or_b32 v{ST+1}, 1, v{ST+1}
            s_mov_b32 exec_hi, 0
            global_store_dwordx2 v{vPS}, {v(ST,2)}, s[30:31] sc0 sc1
            s_mov_b32 exec_hi, -1
            """)
        if i in (c.cs_issue, c.ca_load - 1):
            sk = A.label("css")
            A(f"s_cmp_lg_u32 s36, 4\ns_cbranch_scc1 {sk}")
            if i == c.cs_issue: A(f"global_load_dword v47, v{MB+2}, s[28:29] sc1")
            else:
                pl = A.label("cs")
                A(f"s_mov_b32 s45, 0\n{pl}:\ns_waitcnt vmcnt(0)\nv_cmp_gt_u32 vcc, 32, v47\ns_cbranch_vccz {sk}\ns_sleep {c.cs_back}\nglobal_load_dword v47, v{MB+2}, s[28:29] sc1\ns_add_u32 s45, s45, 1\ns_cmp_lt_u32 s45, {SPIN}\ns_cbranch_scc1 {pl}")
            A(f"{sk}:")
        k0 = i - (c.gat_issue - len(c.gat_split) + 1)
        if 0 <= k0 < len(c.gat_split) and not c.x_nogat: gat(range(sum(c.gat_split[:k0]), sum(c.gat_split[:k0+1])))
        if i == c.gat_check and not c.x_nogat:
            pl = A.label("gp"); ok = A.label("gok")
            A(f"s_mov_b32 s45, 0\n{pl}:\ns_waitcnt vmcnt(0)\nv_min3_u32 v7, v{GA+1}, v{GA+3}, v{GA+5}\nv_min3_u32 v7, v7, v{GA+7}, v{GA+9}\nv_min3_u32 v7, v7, v{GA+11}, v{GA+13}")
            A(f"v_cmp_eq_u32 vcc, 0, v7\ns_cbranch_vccnz {pl}c\n{ok}:")
            with Cold():
                A(f"{pl}c:\ns_add_u32 s45, s45, 1\ns_cmp_ge_u32 s45, {SPIN}\ns_cbranch_scc1 {ok}")
                gat()
                A(f"s_branch {pl}")
        if c.gat_check < i <= c.con_write:
            for l in work[:wper]: A(l)
            work = work[wper:]
        if i == 13:
            assert not work
            A("s_waitcnt vmcnt(0) lgkmcnt(0)")
    Q.bar()
    A(f"ds_read_b128 {v(CN+4,4)}, v{vCR+1}")
    for l in preads(1, 0): A(l)
    A("s_waitcnt lgkmcnt(8)")
    for l in mkmb + preads(1, 1): A(l)
    A(f"s_setprio {c.prioB}")
    for s in range(1, 14):
        Q.bar(); pstep(1, s)
    Q.bar()
    A("s_waitcnt lgkmcnt(8)")
    for l in pmfma(26): A(l)
    A("s_waitcnt lgkmcnt(0)")
    Q.bar()
    A("s_waitcnt vmcnt(0)")
    m27, cr = pmfma(27), corr(False)
    for k in range(4): A(m27[k]); A(cr[k])
    for n in range(4):
        L = epi(n >> 1, n & 1, n, True)
        for l in L[:-1]: A(l)
        if n == 3 and c.sig_early: signal(0, 1)
        A(L[-1])
    Q.mark(0)
    A("s_setprio 0")
    if c.xe: A("s_barrier")
    if not c.sig_early: signal(0)
    Q.mark(1)
    if c.auxpoll:
        if c.selfrd:
            A(f"s_cmp_lg_u32 s40, s34\ns_cbranch_scc1 Lsr1\nglobal_load_dwordx4 v[96:99], v{vS}, s[30:31] sc1\nglobal_load_dwordx4 v[100:103], v{vS+1}, s[30:31] sc1\ns_waitcnt vmcnt(2)\ns_branch Lsr2\nLsr1:\ns_waitcnt vmcnt(0)\nLsr2:")
            signal(1, 2)
            A(f"s_cmp_lg_u32 s40, s34\ns_cbranch_scc1 Lsr3\nglobal_load_dwordx4 v[96:99], v{vS}, s[30:31] offset:1024 sc1\nglobal_load_dwordx4 v[100:103], v{vS+1}, s[30:31] offset:1024 sc1\nLsr3:")
        else: signal(1)
        Q.mark(2)
        A("s_barrier")
        Q.mark(3)
        A("s_barrier\ns_barrier")
        Q.mark(4)
    else:
        if c.pa_early: poll_issue(PA_, 512)
        signal(1)
        Q.mark(2)
        if not c.pa_early: poll_issue(PA_, 512)
        A("s_barrier")
        poll_wait(PA_, 512, True)
        poll_issue(PB_, 640)
        Q.mark(3)
        A("s_barrier")
        poll_wait(PB_, 640, True)
        Q.mark(4)
        A("s_barrier")
    Q.fin(5)
    A("s_waitcnt lgkmcnt(0)\ns_endpgm")
    A(f".p2align 3\n{auxt}:")
    PA.stamp(1)
    srd(A, 64, 30, XG_BYTES, WS_XG)
    A(f"""
    v_and_b32 v4, 15, v{vLane}
    v_lshrrev_b32 v5, 4, v{vLane}
    v_lshl_add_u32 v6, v4, 8, s46
    v_lshl_add_u32 v6, v5, 2, v6
    v_and_b32 v7, 7, v4
    v_lshl_add_u32 v6, v7, 4, v6
    v_lshlrev_b32 v9, 14, v5
    v_lshl_add_u32 v9, v4, 4, v9
    s_lshl_b32 s46, s36, 2
    s_add_u32 s46, s46, {TAGA}
    v_mov_b32 v2, s46
    """)
    for k in range(1, 8): A(f"v_xor_b32 v{80+k}, {16*k}, v6")
    A("s_waitcnt lgkmcnt(0)\ns_add_u32 s57, s57, 1\ns_and_b32 s57, s57, 0xffff\ns_or_b32 s57, s57, 0x7f810000")
    for k in range(16): A(f"v_mov_b32 v{vXG+2*k+1}, s57")
    A(f"s_mov_b64 exec, 1\nds_write_b32 v2, v{vXG+1}\ns_mov_b64 exec, -1\ns_waitcnt vmcnt(0)")
    PA.stamp(2)
    for k in range(8):
        ad = 6 if k == 0 else 80 + k
        A(f"ds_read_b32 v{vXG+4*k}, v{ad}\nds_read_b32 v{vXG+4*k+2}, v{ad} offset:128")
    for k in range(8):
        A(f"s_waitcnt lgkmcnt({14-2*k})\nbuffer_store_dwordx4 {v(vXG+4*k,4)}, v9, s[64:67], s51 offen sc0 sc1")
        if k < 7: A(f"s_add_u32 s51, s51, {4*16384}")
    PA.stamp(3)
    A(f"""
    v_mov_b32 v24, 0
    v_mov_b32 v25, 0
    s_lshl_b32 s43, s2, 1
    s_add_u32 s43, s43, s36
    s_lshl_b32 s44, s43, 9
    s_add_u32 s44, s44, {WS_PS}
    v_lshl_add_u32 v3, v{vLane}, 3, s44
    global_store_dwordx2 v3, v[24:25], s[30:31] sc0 sc1
    s_and_b32 s44, s43, 255
    s_lshl_b32 s44, s44, 7
    s_add_u32 s44, s44, {WS_FLAGS}
    v_mov_b32 v4, s44
    s_mov_b64 exec, 1
    global_store_dword v4, v24, s[30:31] sc0 sc1
    s_mov_b64 exec, -1
    s_lshl_b32 s44, s43, 2
    s_add_u32 s44, s44, {WS_PZ}
    v_mov_b32 v22, s44
    v_mov_b32 v23, s57
    s_setprio 0
    """)
    if c.warm:
        A("s_cmp_eq_u32 s36, 1\ns_cbranch_scc1 Lwm1")
        for lab in ("Lmw", nw, odd): A(f"s_call_b64 s[96:97], {lab}w")
        A("s_branch Lwm2\nLwm1:")
        for k in range(1, 4): A(f"s_call_b64 s[96:97], Lpw{k}")
        A("Lwm2:")
    A("s_barrier")
    if c.warm:
        A("s_cmp_eq_u32 s36, 1\ns_cbranch_scc1 Lwm3")
        for k in range(4, c.npg + 1, 2): A(f"s_call_b64 s[96:97], Lpw{k}")
        A("s_branch Lwm4\nLwm3:")
        for k in range(5, c.npg + 1, 2): A(f"s_call_b64 s[96:97], Lpw{k}")
        A("Lwm4:")
    aW, aD, aH = 8, 12, 8
    sW, sD, eW, eD = 41, 42, 45, 46
    def daddr():
        A(ffn_ids)
        A(f"""
        v_lshrrev_b32 v6, 3, v{vLane}
        v_and_b32 v7, 7, v{vLane}
        v_and_b32 v5, 2, v6
        v_lshlrev_b32 v4, 1, v5
        v_xor_b32 v4, v4, v7
        v_mul_u32_u24 v3, 896, v6
        v_lshl_add_u32 v{aD}, v4, 4, v3
        v_add_u32 v{aD+1}, {1*(8*896-1024)}, v{aD}
        v_add_u32 v{aD+2}, {2*(8*896-1024)}, v{aD}
        v_add_u32 v{aD+3}, {3*(8*896-1024)}, v{aD}
        s_lshl_b32 s{eD}, s35, 7
        s_mul_i32 s32, s36, {32*896}
        s_add_u32 s{eD}, s{eD}, s32
        s_mul_i32 s{sD}, s33, {128*896}
        s_add_u32 s{sD}, s{sD}, s{eD}
        s_add_u32 s{eD}, s{eD}, {14*128*896}
        s_lshl_b32 s32, s36, 12
        v_lshl_add_u32 v16, v{vLane}, 4, s32
        v_add_u32 v17, 0x10000, v16
        v_add_u32 v18, 0x20000, v16
        s_lshl_b32 s59, s39, 11
        s_lshl_b32 s58, s34, 10
        s_add_u32 s59, s59, s58
        s_lshl_b32 s58, s36, 8
        s_add_u32 s59, s59, s58
        s_add_u32 s59, s59, {WS_FLAGS}
        s_lshl_b32 s43, s39, 1
        s_add_u32 s43, s43, s34
        s_mul_i32 s43, s43, {224*1024}
        s_lshl_b32 s44, s36, 11
        s_add_u32 s43, s43, s44
        s_add_u32 s43, s43, {WS_ACT+4096}
        v_bfe_u32 v3, v{vLane}, 3, 1
        v_add_u32 v3, s33, v3
        v_cmp_gt_u32 vcc, 14, v3
        v_cndmask_b32 v3, 0, v3, vcc
        v_lshlrev_b32 v3, 13, v3
        v_bfe_u32 v4, v{vLane}, 4, 1
        v_mul_u32_u24 v4, {112*1024}, v4
        v_add3_u32 v3, v3, v4, s43
        v_lshl_add_u32 v19, v7, 7, v3
        """)
        srd(A, 60, 24, W_BYTES)
    def fifo_load(first, n, reg0):
        if c.x_nopre: return
        hf = 64 * 896 if first >= 14 else 0
        assert first >= 14 or first + n <= 14
        A(f"s_add_u32 s43, s{sD}, {hf + (first % 14)*128*896}\ns_add_u32 s44, s{eD}, {hf}")
        for b in range(n):
            A(f"s_cmp_ge_u32 s43, s44\ns_cselect_b32 s34, {14*128*896}, 0\ns_sub_u32 s43, s43, s34")
            for i in range(4): A(f"buffer_load_dwordx4 {v(reg0+16*b+4*i,4)}, v{aD+i}, s[60:63], s43 offen offset:{1024*i}")
            A(f"s_add_u32 s43, s43, {128*896}")
            if c.fdepth is not None: A(f"s_waitcnt vmcnt({c.fdepth})")
    def fifo_put(first, n, reg0):
        if c.x_noput: return
        for b in range(n):
            sl = slot[("D", first + b)]
            for i in range(4): A(f"ds_write_b128 v{16+sl//8}, {v(reg0+16*b+4*i,4)} offset:{(sl%8)*BLK+1024*i}")
    daddr()
    A(f"""
    v_xor_b32 v4, v5, v7
    s_lshl_b32 s43, s36, 2
    v_xor_b32 v4, s43, v4
    v_mul_u32_u24 v3, 3584, v6
    v_lshl_add_u32 v{aW}, v4, 4, v3
    v_add_u32 v{aW+1}, {1*(8*3584-1024)}, v{aW}
    v_add_u32 v{aW+2}, {2*(8*3584-1024)}, v{aW}
    v_add_u32 v{aW+3}, {3*(8*3584-1024)}, v{aW}
    s_lshl_b32 s{eW}, s38, 8
    s_mul_i32 s{sW}, s38, {32*3584}
    s_add_u32 s{sW}, s{sW}, s{eW}
    s_add_u32 s{eW}, s{eW}, {14*32*3584}
    s_cmp_eq_u32 s36, 0
    s_cselect_b32 s20, s20, s22
    s_cselect_b32 s21, s21, s23
    """)
    srd(A, 52, 20, W_BYTES)
    A(f"""
    v_mov_b32 v20, 0
    v_mov_b32 v21, 0
    v_lshrrev_b32 v4, 4, v{vLane}
    v_mul_u32_u24 v4, {KP}, v4
    v_and_b32 v5, 15, v{vLane}
    v_lshl_add_u32 v4, v5, 2, v4
    s_lshl_b32 s43, s36, 15
    v_add_u32 v4, s43, v4
    s_mul_i32 s43, s36, {UPITCH}
    s_add_u32 s43, s43, {UO}
    v_lshl_add_u32 v3, v{vLane}, 3, s43
    """)
    A("s_waitcnt vmcnt(0)\ns_mov_b64 exec, 1\nglobal_store_dword v22, v23, s[30:31] sc0 sc1\ns_mov_b64 exec, -1")
    A(f"s_barrier\nds_write_b32 v4, v20 offset:{KB0}\nds_write_b64 v3, v[20:21]")
    if c.lf_at == 'B': fifo_load(14, 6, 24)
    A("s_waitcnt lgkmcnt(0)\ns_barrier")
    def dma(kind, idx, i):
        if kind == "F":
            if i == 0:
                A(f"s_cmp_ge_u32 s43, s44\ns_cselect_b32 s35, {14*128*896}, 0\ns_sub_u32 s43, s43, s35")
            A(f"buffer_load_dwordx4 {v(24+16*(idx-14)+4*i,4)}, v{aD+i}, s[60:63], s43 offen offset:{1024*i}")
            if i == 3: A(f"s_add_u32 s43, s43, {128*896}")
            return
        base_ = slot[(kind, idx)] * BLK
        a0, r0, s, e, step = {"W": (aW, 52, sW, eW, 32*3584), "D": (aD, 60, sD, eD, 128*896), "H": (4, 48, 40, 47, HS)}[kind]
        if i == 0:
            if idx == 14:
                A(f"s_add_u32 s{s}, s{s}, 128\ns_add_u32 s{e}, s{e}, 128")
            A(f"s_add_u32 m0, s32, {base_}\ns_add_u32 s33, s{s}, {step}")
        A(f"buffer_load_dwordx4 v{a0+i}, s[{r0}:{r0+3}], s{s} offen offset:{1024*i}{' sc1' if kind == 'H' else ''} lds")
        if i == 0: A(f"s_cmp_ge_u32 s33, s{e}\ns_cselect_b32 s34, {14*step}, 0")
        if i == 3: A(f"s_sub_u32 s{s}, s33, s34")
    if c.x_quietL: A('s_sleep 60')
    for x in issue[-2]: dma(*x)
    fifo_load(14, c.lf_c, 24)
    A(f"""
    v_lshrrev_b32 v2, 4, v{vLane}
    v_and_b32 v3, 15, v{vLane}
    v_lshlrev_b32 v4, 2, v2
    v_xor_b32 v4, v4, v3
    v_lshlrev_b32 v4, 4, v4
    v_and_b32 v3, 1, v2
    v_lshl_add_u32 v4, v3, 12, v4
    v_lshrrev_b32 v2, 1, v2
    v_lshl_add_u32 v4, v2, 14, v4
    v_add_u32 v5, {1*(32768-1024)}, v4
    v_add_u32 v6, {2*(32768-1024)}, v4
    v_add_u32 v7, {3*(32768-1024)}, v4
    s_lshl_b32 s47, s39, 8
    s_lshl_b32 s43, s36, 17
    s_add_u32 s47, s47, s43
    s_add_u32 s40, s38, {c.h0}
    s_cmp_ge_u32 s40, 14
    s_cselect_b32 s43, 14, 0
    s_sub_u32 s40, s40, s43
    s_lshl_b32 s40, s40, 18
    s_add_u32 s40, s40, s47
    s_add_u32 s47, s47, {14*HS}
    """)
    srd(A, 48, 30, XG_BYTES, WS_XG)
    PA.stamp(4)
    A("s_barrier")
    fifo_load(14 + c.lf_c, c.lf_d, 24 + 16 * c.lf_c)
    assert c.nlf == 6
    A("s_barrier")
    for x in issue[-1]: dma(*x)
    if c.nlf > 6: fifo_load(20 - c.nlf, c.nlf - 6, 120)
    A(f"s_waitcnt vmcnt({len(issue[-1]) + 4 * (c.lf_c + c.lf_d)})\ns_barrier")
    for i in range(0, 29):
        for x in issue[i]: dma(*x)
        if i == 3: A(f"s_waitcnt vmcnt({sum(len(issue[k]) for k in range(4))})")
        if wait[i] is not None: A(f"s_waitcnt vmcnt({min(63, wait[i])})")
        A("s_barrier")
    if c.nlf > 6: fifo_put(20 - c.nlf, c.nlf - 6, 120)
    if c.xe:
        A("s_barrier")
        fifo_put(14, 3, 24)
        A("s_barrier")
        fifo_put(17, 3, 72)
    elif c.auxpoll:
        assert c.yb_at <= 26 and c.nlf == 6
        fifo_put(14, 6, 24)
        A("s_barrier")
        poll_issue(PB_, 640); poll_wait(PB_, 640, True)
        if c.touch & 2: A("global_load_dword v2, v19, s[30:31] offset:1024 sc1\ns_barrier")
    else:
        assert c.yb_at <= 26
        fifo_put(14, c.put_0, 24)
        A(f"s_waitcnt lgkmcnt({min(15, 4 * c.put_0)})\ns_barrier")
        fifo_put(14 + c.put_0, c.put_l, 24 + 16 * c.put_0)
        A("s_barrier")
        fifo_put(14 + c.put_0 + c.put_l, 6 - c.put_0 - c.put_l, 24 + 16 * (c.put_0 + c.put_l))
    A("s_waitcnt lgkmcnt(0)")
    if c.phase == 1: Prof(A, 3).flush(5)
    A("s_endpgm")
    A(f".p2align 3\n{auxs}:")
    PA.stamp(1)
    a0 = 90
    A(f"s_mov_b32 s42, 0x3f803f80\nv_and_b32 v4, 56, v{vLane}\ns_lshl_b32 s46, s47, 6\nv_add_u32 v4, s46, v4\nv_mov_b32 v2, {TAGA}")
    A("s_waitcnt lgkmcnt(0)\ns_add_u32 s57, s56, 1\ns_and_b32 s57, s57, 0xffff\ns_or_b32 s57, s57, 0x7f810000\ns_mov_b32 s45, 0")
    for i in range(28):
        z = i < 2
        if i % 4 == 0: A(f"s_waitcnt vmcnt({6-i//4})")
        if i == 4: PA.stamp(2)
        if i == 24: A("ds_read_b64 v[6:7], v2")
        A(f"v_dot2_f32_bf16 v{a0+(i&1)}, v{vRow+i}, s42, {'0' if z else 'v%d' % (a0+(i&1))}")
        A(f"v_dot2_f32_bf16 v{a0+2+(i&1)}, v{vRow+i}, v{vRow+i}, {'0' if z else 'v%d' % (a0+2+(i&1))}")
    A(f"v_add_f32 v{a0}, v{a0}, v{a0+1}\nv_add_f32 v{a0+2}, v{a0+2}, v{a0+3}")
    for op in ("quad_perm:[1,0,3,2]", "quad_perm:[2,3,0,1]", "row_half_mirror"):
        A(f"v_add_f32_dpp v{a0}, v{a0}, v{a0} {op}{DPP}\nv_add_f32_dpp v{a0+2}, v{a0+2}, v{a0+2} {op}{DPP}")
    A(f"""
    v_mul_f32 v{a0}, {f32(1.0/448)}, v{a0}
    v_mul_f32 v{a0+2}, {f32(1.0/448)}, v{a0+2}
    v_fma_f32 v{a0+2}, -v{a0}, v{a0}, v{a0+2}
    v_max_f32 v{a0+2}, 0, v{a0+2}
    v_cvt_pk_bf16_f32 v{a0+2}, v{a0+2}, v{a0+2}
    v_and_b32 v{a0+2}, s43, v{a0+2}
    v_add_f32 v{a0+2}, {f32(1e-5)}, v{a0+2}
    v_cvt_pk_bf16_f32 v{a0+2}, v{a0+2}, v{a0+2}
    v_and_b32 v{a0+2}, s43, v{a0+2}
    v_sqrt_f32 v{a0+2}, v{a0+2}
    v_mov_b32 v{a0+1}, s57
    v_cvt_pk_bf16_f32 v{a0}, v{a0}, v{a0+2}
    s_cmp_ge_u32 s2, 224
    s_cbranch_scc1 Ltg2
    Ltg:
    s_waitcnt lgkmcnt(0)
    v_xor_b32 v6, s57, v6
    v_xor_b32 v7, s57, v7
    v_or_b32 v6, v6, v7
    v_cmp_ne_u32 vcc, 0, v6
    s_cbranch_vccz Ltg2
    ds_read_b64 v[6:7], v2
    s_add_u32 s45, s45, 1
    s_cmp_lt_u32 s45, {SPIN}
    s_cbranch_scc1 Ltg
    Ltg2:
    s_mov_b32 exec_lo, 0x01010101
    s_mov_b32 exec_hi, 0x01010101
    global_store_dwordx2 v4, {v(a0,2)}, s[30:31] sc0 sc1
    s_mov_b64 exec, -1
    """)
    PA.stamp(3)
    if base.PROF and c.phase == 1:
        A(f"s_branch {hold}x\n{hold}:")
        for k in (1, 2, 3): PA.stamp(k)
        A(f"{hold}x:")
    else: A(f"{hold}:")
    A(f"s_setprio 0\ns_barrier\ns_cmp_ge_u32 s2, 224\ns_cbranch_scc1 {end}")
    daddr()
    sH, eH, sV = 40, 41, 47
    VR = 20
    A(f"""
    v_lshrrev_b32 v6, 4, v{vLane}
    v_and_b32 v7, 15, v{vLane}
    v_lshlrev_b32 v5, 2, v6
    v_xor_b32 v5, v5, v7
    v_lshlrev_b32 v5, 4, v5
    v_and_b32 v7, 1, v6
    v_lshl_add_u32 v5, v7, 12, v5
    v_lshrrev_b32 v6, 1, v6
    v_lshl_add_u32 v{aH}, v6, 14, v5
    v_add_u32 v{aH+1}, {1*(32768-1024)}, v{aH}
    v_add_u32 v{aH+2}, {2*(32768-1024)}, v{aH}
    v_add_u32 v{aH+3}, {3*(32768-1024)}, v{aH}
    s_lshl_b32 s{eH}, s39, 8
    s_lshl_b32 s43, s36, 17
    s_add_u32 s{eH}, s{eH}, s43
    s_lshl_b32 s{sH}, s38, 18
    s_add_u32 s{sH}, s{sH}, s{eH}
    s_add_u32 s{eH}, s{eH}, {14*HS}
    s_mov_b32 s56, 0x7f810000
    s_mov_b32 s{sV}, s{sH}
    """)
    srd(A, 48, 30, XG_BYTES, WS_XG)
    def wtouch():
        A(f"s_lshl_b32 s43, s2, 1\ns_add_u32 s43, s43, s36\ns_mul_i32 s43, s43, {28*128}\nv_min_u32 v2, 27, v{vLane}\nv_lshl_add_u32 v2, v2, 7, s43")
        for k in range(3):
            if c.wtouch >> k & 1: A(f"global_load_dword v{36+k}, v2, s[{20+2*k}:{21+2*k}]")
    if c.wt_at == 'A': wtouch()
    A("s_barrier")
    if c.wt_at == 'B': wtouch()
    if c.hf_at == 'B':
        fifo_load(20, 3, 40)
    A("s_barrier")
    if c.wt_at == 'C': wtouch()
    if c.hf_at == 'B': fifo_load(23, 5, 88)
    elif c.hf_at == 'C': fifo_load(20, 8, 40)
    else: fifo_load(20, c.hf_c, 40)
    PA.stamp(4)
    A(f"s_barrier\ns_barrier\ns_setprio {c.hprio}")
    def hblock(s, m0expr):
        A(f"s_add_u32 m0, {m0expr}\ns_add_u32 s33, s{s}, {HS}")
        for i in range(4):
            A(f"buffer_load_dwordx4 v{aH+i}, s[48:51], s{s} offen offset:{1024*i} sc1 lds")
            if i == 0: A(f"s_cmp_ge_u32 s33, s{eH}\ns_cselect_b32 s34, {14*HS}, 0")
        A(f"s_sub_u32 s{s}, s33, s34")
    nH = [0]
    def hissue(k):
        for _ in range(k):
            if nH[0] < 14:
                hblock(sH, f"s32, {slot[('H', nH[0])]*BLK}"); nH[0] += 1
    def vread(b):
        if b < nH[0]: A(f"s_waitcnt vmcnt({4*(nH[0]-1-b)})")
        for i in range(4): A(f"ds_read_b128 {v(VR+4*i,4)}, v{16+b//8} offset:{(slot[('H', b)]%8)*BLK+1024*i}")
    def vcheck(b):
        ck = A.label("hv"); ok = A.label("hok"); rp = A.label("hrp")
        last = b + 1 if c.rep_one else max(nH[0], b + 1)
        if c.w8 and b < 12: last = min(last, 12)
        sb = slot[('H', b)]
        A(f"""
        s_mov_b32 s45, 0
        {ck}:
        s_waitcnt lgkmcnt(0)
        v_max3_i32 v2, v{VR+1}, v{VR+3}, v{VR+5}
        v_max3_i32 v3, v{VR+7}, v{VR+9}, v{VR+11}
        v_max3_i32 v2, v2, v{VR+13}, v{VR+15}
        v_max_i32 v2, v2, v3
        v_cmp_le_i32 vcc, s56, v2
        {"s_cmp_eq_u32 s45, 0" if c.x_force else ""}
        {f"s_cbranch_scc1 {rp}f" if c.x_force else ""}
        s_cbranch_vccnz {rp}f
        """)
        cx = Cold(); cx.__enter__()
        A(f"""
        {rp}f:
        {f"s_sleep {c.backoff}" if c.backoff else ""}
        s_add_u32 s45, s45, 1
        s_cmp_ge_u32 s45, {SPIN}
        s_cbranch_scc1 {ok}
        s_mov_b32 s43, s{sV}
        s_add_u32 s44, s32, {sb*BLK}
        s_add_u32 s35, s32, {(sb+last-b)*BLK}
        {rp}:
        """)
        hblock(43, "s44, 0")
        A(f"s_add_u32 s44, s44, {BLK}\ns_cmp_lt_u32 s44, s35\ns_cbranch_scc1 {rp}\ns_waitcnt vmcnt({4*(last-1-b) if last == nH[0] else 0})")
        for i in range(4): A(f"ds_read_b128 {v(VR+4*i,4)}, v{16+b//8} offset:{(sb%8)*BLK+1024*i}")
        A(f"s_branch {ck}")
        cx.__exit__()
        A(f"{ok}:\ns_add_u32 s{sV}, s{sV}, {HS}\ns_cmp_ge_u32 s{sV}, s{eH}\ns_cselect_b32 s34, {14*HS}, 0\ns_sub_u32 s{sV}, s{sV}, s34")
    if c.probe:
        hissue(c.probe); vread(0); vcheck(0); hissue(c.h0 - c.probe); vread(1)
    else:
        hissue(c.h0); vread(0); vcheck(0); vread(1)
    A("s_barrier")
    hs = [0] * 14 if c.hl else list(c.hiss) + [1] * 14
    for i in range(0, 13):
        vcheck(i + 1)
        k = hs.pop(0)
        assert i >= 3 or nH[0] + k <= 12
        if i + 2 < 14:
            if nH[0] - (i + 2) < c.hnear: hissue(k); k = 0
            vread(i + 2)
        hissue(k)
        kf = c.hf_c + i - c.hf_p
        if c.hf_at == 'P' and c.hf_c <= kf < 8: fifo_load(20 + kf, 1, 40 + 16 * kf)
        A("s_barrier")
    if c.hf_at == 'P':
        kf = max(c.hf_c, c.hf_c + 13 - c.hf_p)
        if kf < 8: fifo_load(20 + kf, 8 - kf, 40 + 16 * kf)
    assert nH[0] == 14 or c.hl
    lp = A.label("hb")
    A(f"s_setprio 0\ns_mov_b32 s45, {18 if c.xe else 16 if c.auxpoll else 17}\n{lp}:\ns_barrier\ns_sub_u32 s45, s45, 1\ns_cmp_lg_u32 s45, 0\ns_cbranch_scc1 {lp}")
    A("s_waitcnt vmcnt(0)")
    if c.auxpoll:
        if c.psleep: A(f"s_sleep {c.psleep}")
        poll_issue(PA_, 512); poll_wait(PA_, 512, True)
        if c.touch & 1: A("global_load_dword v2, v19, s[30:31] sc1")
        A("s_barrier")
        fifo_put(20, c.put_a, 40)
        A("s_barrier")
        fifo_put(20 + c.put_a, 8 - c.put_a, 40 + 16 * c.put_a)
    else:
        fifo_put(20, c.put_a, 40)
        A("s_barrier")
        fifo_put(20 + c.put_a, 8 - c.put_a, 40 + 16 * c.put_a)
    A("s_waitcnt lgkmcnt(0)")
    if c.phase == 1: Prof(A, 3).flush(5)
    A(f"{end}:\ns_endpgm")
    A.L.extend(cold)
    A(f".p2align 3\n{hlp}:")
    if c.phase == 0: base.PROF = False
    gen_helper(A, c, Prof(A, 4))
    def rnd(l):
        u = np.float32(max(l, 0)).view(np.uint32)
        u = (int(u) + 0x7FFF + ((int(u) >> 16) & 1)) & 0xFFFF0000
        return int(np.uint32(u).view(np.float32))
    ad = [[(rnd(8 * b - 3 + r) & 7) * TP + (rnd(8 * b - 3 + r) >> 3) * 4 for r in range(12)] for b in range(256)]
    A(f".p2align 7\n.type {tab},@object\n{tab}:")
    for b in range(256): A(".long " + ", ".join("0x%08x" % (ad[b][2*k] | ad[b][2*k+1] << 16) for k in range(4)))
    for b in range(256): A(".long " + ", ".join("0x%08x" % (ad[b][2*k] | ad[b][2*k+1] << 16) for k in range(4, 6)))
    A(f".size {tab}, {256*24}")
    return kernel_desc(name, 168, 102)
```

```python
from base import *
import base
from ka import load_ptrs, cmul, cexp
import numpy as np
WS_E = 0x4000
WS_PZ = 0x5000
WS_XG = 0xA00000
XG_BYTES = 224 * 16384
REG = 16384
TP, GP = 1056, 272
KP = 4160
KB0 = 8704
UO, UPITCH = 74240, 4608
PARO = 98304
XT = 140288
TAGA = XT + 8192
BLK = 8192
NSL = 20
CON = 19 * BLK
F_LDS = NSL * BLK
GK0 = -2.0 * LOG2E * 0.7978845608028654
GK1 = GK0 * 0.044715
SPIN = 1 << 18
HS = 16 * 16384

class Cfg:
    code_bytes = 49152
    prio_mid = 26
    poll_late = 0
    e1_first, e1_last = 15, 21
    e1_packed = False
    drain0 = (21, 25)
    pollA, chkA = 24, 27
    earlyT = (4, 1)
    poll0 = 28
    ya_at, yb_at = 17, 24
    put_a = 5
    pace1, pace2, pace = 2, 1, {}
    pa_early = False
    g_pre = 0
    tdepth, tdepth2 = 22, 16
    gate_ahead = {14: 14, 28: 4, 42: 12}
    pollT1 = (20, 28)
    capP = 8
    caps = {}
    gat_issue, gat_check = 8, 10
    con_write = 12
    il = 2
    stflag = 'sc0 sc1'
    prioB = 2
    h0 = 5
    hiss = (1, 2, 1, 1, 1, 1, 1)
    ca_load = 11
    cs_issue = 7
    hdepth = 1
    fdepth = None
    x_delay = 0
    x_force = False
    backoff = 4
    rep_one = False
    x_nocs = False
    sweepW = False
    sweepD = False
    hramp = 0
    xp_chk = False
    npk = True
    lfifo = (8, 14)
    hprio = 3
    pz_sleep = 4
    hnear = 3
    lf_at = 'C'
    hf_at = 'P'
    poi_at = '0'
    wide_h = True
    xp_at = 0
    gat_split = (3, 4)
    x_nogat = False
    cprio = 3
    nprio = 2
    auxprio = 3
    x_nopre = False
    emode = 0
    csort = True
    probe = 1
    x_quietN = False
    x_quietL = False
    cmin = 5
    cmerge = (0, 2, 4, 6)
    w8 = False
    nlf = 6
    outflag = ''
    hl = True
    x_pad = 0
    wsoff = 0
    hf_c = 4
    hf_p = 10
    xmask = True
    auxpoll = False
    sig_early = False
    psleep = 0
    tpost = True
    cs_back = 16
    wtouch = 0
    wt_at = 'A'
    hseq = True
    hbar2 = False
    fast0 = False
    fin_ov = 3
    nstage = True
    x16 = ''
    e2pk = 4
    xe_at = 4
    tdep0 = 8
    corr_at = 27
    lf_c = 3
    lf_d = 0
    lf_i = (7, 12, 13, 14, 27, 28)
    touch = 0
    x_noput = False
    x_notl = False
    selfrd = False
    sweepU = 3
    hsleep = 0
    cs2 = (17, 20)
    hwait = None
    x_nocp = False
    warm = True
    npg = 5
    stcost = 8
    xe = False
    x_cnt = False
    put_0, put_l = 6, 0
    x_fine = None
    phase = 1

def schedule(c):
    need = {("W", s): s for s in range(28)}
    last_use = {("W", s): s + 1 for s in range(28)}
    for t in range(28): last_use[("D", t)] = 1000
    hslot = [sl + (2 if c.w8 and sl >= 12 else 0) for sl in range(14)]
    w0 = 12 if c.w8 else 14
    free_at = {sl: (16 + sl if sl < w0 else -2 if sl >= 14 else -1) for sl in range(NSL)}
    slot = {("H", k): hslot[k] for k in range(14)}
    issue = {i: [] for i in range(-2, 29)}
    n = dict(W=0, D=0, H=c.h0 if c.hl else 14)
    for k in range(n["H"], 14): need[("H", k)] = k - 2; last_use[("H", k)] = 15 + k
    nd = 20 - c.nlf
    cur = None
    def pick(i):
        nW, nD = n["W"], n["D"]
        wf = [sl for sl in range(w0, NSL) if free_at[sl] <= i and (sl != 19 or i >= 15 or nW + 1 < c.con_write)]
        canH = n["H"] < 14 and i >= 0 and (not c.w8 or n["H"] < 12 or i >= n["H"] - 10)
        if canH and (n["H"] - 2 <= nW or not wf): return ("H", n["H"]), hslot[n["H"]]
        if nW < 28 and wf: return ("W", nW), wf[0]
        fr = [sl for sl in range(NSL) if free_at[sl] <= i and (sl < w0 or nW == 28)]
        if fr and nD < nd: return ("D", nD), fr[0]
        return None
    for i in range(-2, 29):
        cap = 24 if i < 0 else c.caps.get(i, c.capP)
        while cap > 0:
            if cur is None:
                p = pick(i)
                if p is None: break
                b, sl = p
                slot[b] = sl; free_at[sl] = last_use[b] + 1; n[b[0]] += 1
                if c.w8 and b in (("W", 0), ("W", 1)): free_at[sl] = 28 + b[1]
                cur = [b, 0]
            issue[i].append((cur[0][0], cur[0][1], cur[1])); cur[1] += 1; cap -= 1
            if cur[1] == 4: cur = None
    assert n["D"] == nd and cur is None
    rest = sorted((sl for sl in range(NSL) if free_at[sl] < 1000), key=lambda sl: free_at[sl])
    assert len(rest) == c.nlf
    for k, sl in enumerate(rest): slot[("D", nd + k)] = sl
    for t in range(20, 28): slot[("D", t)] = slot[("D", t - 20)]
    for k in range(c.lf_c + c.lf_d, 6): issue[c.lf_i[k - c.lf_c - c.lf_d]] += [("F", 14 + k, q) for q in range(4)]
    order = [b for i in range(0, 29) for b in issue[i]]
    pos = {b: k for k, b in enumerate(order)}
    wait = {}
    cnt = 0
    for i in range(0, 29):
        cnt += len(issue[i])
        req = [b for b in need if need[b] == i + 1 and b + (3,) in pos]
        wait[i] = None if not req else cnt - 1 - max(pos[b + (3,)] for b in req)
        if i == 28: wait[i] = 0
        assert wait[i] is None or wait[i] >= 0, (i, req)
    return issue, slot, wait

def gen_helper(A, c, P):
    A(f"""
    s_cmp_eq_u32 s36, 9
    s_cbranch_scc1 Lhe
    s_sub_u32 s44, s2, 224
    s_lshr_b32 s45, s44, 3
    s_bfe_u32 s46, s44, 0x20001
    s_lshl_b32 s46, s46, 2
    s_add_u32 s46, s46, s45
    s_and_b32 s44, s44, 1
    s_cmp_ge_u32 s46, 14
    s_cselect_b32 s47, 2, 0
    s_sub_u32 s46, s46, s47
    v_and_b32 v1, 7, v0
    v_lshrrev_b32 v2, 3, v0
    v_mul_u32_u24 v2, 3584, v2
    v_lshl_add_u32 v2, v1, 4, v2
    s_cmp_ge_u32 s46, 7
    s_cselect_b32 s47, 7, 0
    s_waitcnt lgkmcnt(0)
    s_cselect_b32 s48, s22, s20
    s_cselect_b32 s49, s23, s21
    s_sub_u32 s46, s46, s47
    s_mul_i32 s50, s44, 7
    s_add_u32 s46, s46, s50
    s_lshl_b32 s47, s47, 1
    s_add_u32 s52, s46, s47
    s_lshl_b32 s55, s46, 8
    s_mov_b32 s50, {W_BYTES}
    s_mov_b32 s51, 0x20000
    s_lshr_b32 s54, s52, 1
    s_mul_i32 s54, s54, {128*896}
    s_and_b32 s53, s52, 1
    s_lshl_b32 s53, s53, 3
    s_add_u32 s53, s53, s36
    s_mul_i32 s53, s53, {28*128}
    s_add_u32 s54, s54, s53
    s_add_u32 s54, s54, {64*896}
    v_and_b32 v3, 63, v0
    v_min_u32 v3, 27, v3
    v_lshl_add_u32 v3, v3, 7, s54
    v_lshrrev_b32 v12, 6, v0
    v_lshlrev_b32 v12, 8, v12
    v_lshl_add_u32 v12, v1, 5, v12
    v_and_b32 v14, 63, v0
    v_lshlrev_b32 v13, 2, v14
    s_lshl_b32 s46, s52, 10
    s_add_u32 s46, s46, {WS_CS}
    v_lshl_add_u32 v14, v14, 3, s46
    s_mov_b32 s42, 0x00003f80
    s_mov_b32 s43, 0x3f800000
    s_mov_b32 s41, 0xffff0000
    s_mov_b32 s56, 0
    """)
    if c.hsleep: A(f"s_sleep {c.hsleep}")
    A("s_barrier")
    if c.hbar2: A("s_barrier")
    A("s_cmp_eq_u32 s36, 8\ns_cbranch_scc1 Lhf")
    for h in range(2):
        A(f"s_mov_b32 s47, s55")
        for p in range(7):
            A(f"buffer_load_dwordx4 {v(40+28*h+4*p,4)}, v2, s[48:51], s47 offen offset:{128*h}")
            if p < 6: A("s_add_u32 s47, s47, %d" % (64 * 3584))
        if not c.wtouch & 4: A(f"global_load_dword v{100+h}, v3, s[24:25]")
        if h == 0:
            A(f"v_subrev_u32 v3, {64*896}, v3")
            if c.hseq: A("s_waitcnt vmcnt(3)")
    A(f"s_waitcnt vmcnt({7 if c.wtouch & 4 else 9})\nLhl:")
    for p in range(7):
        for q in range(4):
            for hl in range(2):
                acc = 4 + 2 * q + hl
                A(f"v_dot2_f32_bf16 v{acc}, v{40+4*p+q}, s{42+hl}, {'0' if p == 0 else 'v%d' % acc}")
    for q in range(8): A(f"v_add_f32_dpp v{4+q}, v{4+q}, v{4+q} row_ror:8{DPP}")
    for op in ("v_permlane16_swap_b32", "v_permlane32_swap_b32"):
        for q in range(8): A(f"v_mov_b32 v{16+q}, v{4+q}")
        for q in range(8): A(f"{op} v{4+q}, v{16+q}")
        for q in range(8): A(f"v_add_f32 v{4+q}, v{4+q}, v{16+q}")
    A(f"""
    s_mov_b64 exec, 0xff
    ds_write_b128 v12, v[4:7]
    ds_write_b128 v12, v[8:11] offset:16
    s_mov_b64 exec, -1
    s_waitcnt lgkmcnt(0)
    s_barrier
    s_cmp_lg_u32 s56, 0
    s_cbranch_scc1 Lhe
    s_mov_b32 s56, 1
    v_add_u32 v12, 2048, v12
    s_waitcnt vmcnt({0 if c.wtouch & 4 else 1})
    """)
    for k in range(28): A(f"v_mov_b32 v{40+k}, v{68+k}")
    A(f"""
    s_branch Lhl
    Lhf:
    s_barrier
    ds_read2st64_b32 v[4:5], v13 offset0:0 offset1:1
    ds_read2st64_b32 v[6:7], v13 offset0:2 offset1:3
    ds_read2st64_b32 v[8:9], v13 offset0:4 offset1:5
    ds_read2st64_b32 v[10:11], v13 offset0:6 offset1:7
    s_waitcnt lgkmcnt(0)
    v_pk_add_f32 v[4:5], v[4:5], v[6:7]
    v_pk_add_f32 v[8:9], v[8:9], v[10:11]
    v_pk_add_f32 v[4:5], v[4:5], v[8:9]
    v_add_f32 v4, v4, v5
    v_cvt_pk_bf16_f32 v5, v4, v4
    v_and_b32 v5, s41, v5
    v_sub_f32 v6, v4, v5
    v_cvt_pk_bf16_f32 v8, v5, v6
    v_and_b32 v7, s41, v8
    v_sub_f32 v6, v6, v7
    v_cvt_pk_bf16_f32 v9, v6, 0
    global_store_dwordx2 v14, v[8:9], s[30:31] sc0 sc1
    s_mov_b32 s46, 1
    s_waitcnt vmcnt(0)
    s_atomic_add s46, s[28:29], s56
    v_add_u32 v14, 512, v14
    v_add_u32 v13, 2048, v13
    s_add_u32 s56, s56, 128
    """)
    if base.PROF: A("s_mov_b32 s74, s76\ns_memrealtime s[76:77]")
    A("s_waitcnt lgkmcnt(0)\ns_cmp_lt_u32 s56, 256\ns_cbranch_scc1 Lhf")
    P.flush(3)
    A("Lhe:\ns_endpgm")

def gen(A, name, c=Cfg, verbose=False):
    issue, slot, wait = schedule(c)
    if verbose:
        for i in range(-2, 29): print(i, ' '.join(k + str(j) + '.' + str(q) for k, j, q in issue[i]), wait.get(i))
        print({k: x for k, x in slot.items() if k[0] == "D"})
    kernel_head(A, name)
    end = A.label("end"); hlp = A.label("hlp"); kw_ = A.label("kw"); nw = A.label("nw"); tab = A.label("tab")
    auxt = A.label("auxt"); auxs = A.label("auxs"); til = A.label("til"); hold = A.label("hold")
    P0 = Prof(A, 1)
    class PH:
        def __init__(s, ph, kid=1): s.on = c.phase == ph; s.P = Prof(A, kid)
        def stamp(s, i):
            if s.on: s.P.stamp(i)
    P = PH(1); PA = PH(1, 3)
    class Bars:
        def __init__(s, marks, n1, kid=1): s.n = 0; s.marks = c.x_fine or marks; s.on = c.phase == 2; s.n1 = n1; s.P = Prof(A, kid)
        def bar(s):
            A("s_barrier")
            if s.on and s.n in s.marks: s.P.stamp(1 + s.marks.index(s.n))
            s.n += 1
        def mark(s, k):
            if s.on and not c.x_fine: s.P.stamp(1 + len(s.marks) + k)
        def fin(s, k=0):
            if c.phase == 0:
                if s.n1 == 13: s.P.flush(1)
                return
            if not s.on: s.P.flush(s.n1); return
            k = 0 if c.x_fine else k
            s.P.stamp(1 + len(s.marks) + k); s.P.flush(2 + len(s.marks) + k)
    cold = []
    class Cold:
        def __enter__(s): s.keep = A.L; A.L = []
        def __exit__(s, *a): cold.extend(A.L); A.L = s.keep
    wst = []
    def target(lab):
        wst.append(lab)
        A(f".p2align 6\n{lab}w:\ns_setpc_b64 s[96:97]\ns_nop 0\n{lab}:")
    A(f"s_cmp_ge_u32 s2, 256\ns_cbranch_scc1 {end}")
    P0.stamp(0)
    load_ptrs(A)
    A(f"s_getpc_b64 s[60:61]\nLpc:")
    vLane, vG, vJ = 1, 2, 3
    per = (c.code_bytes // 128 + 63) // 64
    vRow, vXG = 16, 48
    ffn_ids = """
    s_and_b32 s37, s2, 7
    s_lshr_b32 s38, s2, 3
    s_and_b32 s40, s38, 3
    s_lshr_b32 s39, s37, 1
    s_lshl_b32 s39, s39, 2
    s_add_u32 s39, s39, s40
    s_and_b32 s34, s37, 1
    s_lshr_b32 s35, s38, 2
    s_mul_i32 s38, s34, 7
    s_add_u32 s38, s38, s35
    s_mul_i32 s33, s40, 3
    s_lshl_b32 s37, s35, 1
    s_add_u32 s33, s33, s37
    s_cmp_ge_u32 s33, 14
    s_cselect_b32 s37, 14, 0
    s_sub_u32 s33, s33, s37
    """
    A(f"""
    v_lshrrev_b32 v4, 6, v0
    v_and_b32 v{vLane}, 63, v0
    s_and_b32 s37, s2, 7
    v_readfirstlane_b32 s36, v4
    s_mul_i32 s37, s37, 28
    s_lshr_b32 s38, s2, 3
    s_add_u32 s37, s37, s38
    s_mov_b32 s43, 0xffff0000
    s_cmp_lt_u32 s36, 8
    s_cbranch_scc1 {kw_}
    s_setprio {c.auxprio}
    v_lshrrev_b32 v5, 3, v{vLane}
    v_and_b32 v6, 7, v{vLane}
    v_mul_u32_u24 v7, 896, v5
    s_cmp_lt_u32 s36, 10
    s_cbranch_scc1 {til}
    s_and_b32 s36, s36, 1
    s_lshr_b32 s62, s2, 2
    s_and_b32 s62, s62, 62
    s_add_u32 s62, s62, s36
    s_mul_i32 s62, s62, {per*128}
    v_min_u32 v10, {per-1}, v{vLane}
    v_lshl_add_u32 v10, v10, 7, s62
    v_min_u32 v10, Lcode_end-Lpc-4, v10
    global_load_dword v99, v10, s[60:61]
    s_and_b32 s47, s2, 7
    s_lshl_b32 s47, s47, 5
    s_add_u32 s47, s47, s38
    s_mul_i32 s48, s47, {8*896}
    v_lshl_add_u32 v8, v6, 4, v7
    v_add_u32 v8, s48, v8
    s_cmp_eq_u32 s36, 1
    s_waitcnt lgkmcnt(0)
    s_cbranch_scc1 {hold}
    s_load_dword s56, s[30:31], {WS_E}
    """)
    for i in range(7): A(f"global_load_dwordx4 {v(vRow+4*i,4)}, v8, s[4:5] offset:{128*i}")
    A(f"""
    s_branch {auxs}
    {til}:
    s_cmp_ge_u32 s2, 224
    s_cbranch_scc1 {hlp}
    s_and_b32 s36, s36, 1
    s_mul_i32 s46, s37, 9363
    s_lshr_b32 s46, s46, 16
    s_mul_i32 s47, s46, 7
    s_sub_u32 s47, s37, s47
    s_lshl_b32 s46, s46, 1
    s_add_u32 s46, s46, s36
    s_mul_i32 s49, s46, {32*896}
    s_lshl_b32 s48, s47, 7
    s_add_u32 s49, s49, s48
    s_lshl_b32 s47, s47, 19
    s_lshl_b32 s46, s46, 8
    s_add_u32 s51, s47, s46
    s_lshl_b32 s46, s36, 12
    s_add_u32 s46, s46, {XT}
    s_mov_b32 m0, s46
    v_lshrrev_b32 v4, 1, v5
    v_xor_b32 v4, v4, v6
    v_lshl_add_u32 v12, v4, 4, v7
    v_xor_b32 v4, 4, v4
    v_lshl_add_u32 v13, v4, 4, v7
    v_add_u32 v13, {8*896-1024}, v13
    v_add_u32 v14, {16*896-2048}, v12
    v_add_u32 v15, {16*896-2048}, v13
    s_mov_b32 s34, {X_BYTES}
    s_mov_b32 s35, 0x20000
    s_waitcnt lgkmcnt(0)
    s_mov_b32 s32, s4
    s_mov_b32 s33, s5
    """)
    for i in range(4): A(f"buffer_load_dwordx4 v{12+i}, s[32:35], s49 offen offset:{1024*i} lds")
    A(f"s_load_dword s57, s[30:31], {WS_E}")
    A(f"s_branch {auxt}\n{kw_}:\ns_cmp_ge_u32 s2, 224\ns_cbranch_scc1 {hlp}")
    vP, vDT = 8, 12
    a2, b2 = 14, 15
    w1, w256, w2, w512 = 16, 18, 20, 22
    tA, tB, tC = 24, 26, 28
    G, G2, Hh, W4, HT, CV = 30, 46, 62, 68, 70, 78
    vTB, vA, vBc, vRA = 88, 94, 95, 96
    A(f"""
    v_mov_b32 v{vP}, 0
    v_mov_b32 v{vP+1}, 0
    v_mov_b32 v{vP+2}, 0
    v_mov_b32 v{vP+3}, 0
    s_lshl_b32 s48, s37, 10
    v_lshl_add_u32 v4, v0, 1, s48
    s_lshl_b32 s48, s37, 2
    s_lshl_b32 s56, s36, 14
    s_mov_b32 m0, s56
    s_lshr_b32 s38, s36, 2
    s_add_u32 s62, s60, {tab}-Lpc+2048
    s_addc_u32 s63, s61, 0
    s_waitcnt lgkmcnt(0)
    s_load_dword s52, s[14:15], s48
    global_load_short_d16_hi v{vP}, v4, s[6:7]
    global_load_short_d16_hi v{vP+1}, v4, s[8:9]
    global_load_short_d16_hi v{vP+2}, v4, s[10:11]
    global_load_short_d16_hi v{vP+3}, v4, s[12:13]
    s_load_dword s53, s[16:17], s48
    """)
    P.stamp(1)
    A(f"""
    v_bfe_u32 v{vG}, v0, 5, 1
    v_and_b32 v{vJ}, 31, v0
    s_lshl_b32 s46, s36, 15
    v_mul_u32_u24 v4, {GP}, v{vJ}
    v_lshl_add_u32 v4, v{vG}, 4, v4
    v_add_u32 v{vRA}, s46, v4
    s_bfe_u32 s39, s36, 0x10001
    s_and_b32 s40, s36, 1
    s_lshl_b32 s48, s39, 15
    s_lshl_b32 s47, s40, 8
    s_add_u32 s48, s48, s47
    s_add_u32 s48, s48, {KB0+64-24}
    v_and_b32 v4, 3, v0
    v_sub_u32 v4, 3, v4
    v_mul_u32_u24 v4, {KP}, v4
    v_bfe_u32 v5, v0, 2, 2
    v_lshl_add_u32 v4, v5, 3, v4
    v_bfe_u32 v5, v0, 4, 2
    v_lshl_add_u32 v4, v5, 4, v4
    v_add_u32 v{vA}, s48, v4
    s_mul_i32 s48, s39, {UPITCH}
    s_sub_u32 s48, s48, s47
    s_add_u32 s48, s48, {UO+512+16-192}
    v_and_b32 v4, 15, v0
    v_lshlrev_b32 v4, 5, v4
    v_lshlrev_b32 v5, 4, v5
    v_sub_u32 v4, v4, v5
    v_add_u32 v{vBc}, s48, v4
    s_add_u32 s64, s30, {WS_XG}
    s_addc_u32 s65, s31, 0
    s_mov_b32 s66, {XG_BYTES}
    s_mov_b32 s67, 0x20000
    s_and_b32 s47, s36, 3
    s_lshl_b32 s47, s47, 12
    v_lshl_add_u32 v97, v{vLane}, 4, s47
    s_lshl_b32 s44, s37, 14
    s_mov_b32 s54, {f32(8.0)}
    s_mov_b32 s55, {f32(256.0)}
    s_lshl_b32 s46, s38, 4
    v_mov_b32 v{vDT}, {f32(LOG2E)}
    s_cmp_lt_u32 s36, 4
    s_cbranch_scc1 Lnoprio
    s_setprio 1
    Lnoprio:
    s_waitcnt lgkmcnt(0)
    s_lshr_b32 s52, s52, s46
    s_lshl_b32 s52, s52, 16
    v_mul_f32 v{vDT}, s52, v{vDT}
    v_exp_f32 v{vDT}, v{vDT}
    v_cvt_pk_bf16_f32 v{vDT}, v{vDT}, v{vDT}
    v_and_b32 v{vDT}, s43, v{vDT}
    s_and_b32 s59, s53, s43
    s_lshl_b32 s58, s53, 16
    v_add_f32 v6, v{vDT}, v{vDT}
    """)
    P.stamp(2)
    A(f"""
    s_waitcnt vmcnt(2)
    v_mul_f32 v4, {f32(LOG2E)}, v{vP}
    v_exp_f32 v4, v4
    v_mul_f32 v{b2}, v{vP+1}, v{vDT}
    v_cvt_pk_bf16_f32 v4, v4, v4
    v_and_b32 v4, s43, v4
    v_mul_f32 v{a2}, v4, v{vDT}
    v_mul_f32 v{b2}, 0.15915494, v{b2}
    v_mul_f32 v{a2}, {f32(-LOG2E)}, v{a2}
    """)
    P.stamp(3)
    nb_ = [0]
    vPX, vPS_, vPA = 100, 116, 97
    xp = [f"buffer_load_dwordx4 {v(vPX+4*q,4)}, v{vPA}, s[64:67], s44 offen offset:{1024*q} sc1" for q in range(4)]
    xp += [f"global_load_dwordx4 {v(vPS_+4*q,4)}, v{vPA}, s[30:31] offset:{1024*q} sc1" for q in range(4)]
    xord = [4, 5, 0, 1, 6, 7, 2, 3]
    def put(src, row, neg):
        r = CV + (nb_[0] & 7); nb_[0] += 1
        x = [f"v_cvt_pk_bf16_f32 v{r}, v{src}, {'-' if neg else ''}v{src+1}", f"ds_write_addtid_b32 v{r} offset:{row*GP}"]
        if nb_[0] == c.prio_mid: x[1] += "\ns_setprio 0"
        if nb_[0] == c.xp_at: x[1] += "\ns_cmp_lt_u32 s36, 4\ns_cbranch_scc1 Lnoxp\n" + "\n".join(xp) + "\nLnoxp:"
        return x
    def spread(puts, work):
        o = []
        while puts or work:
            p = puts.pop(0) if puts else None
            if p: o.append(p[0])
            if work: o += work.pop(0)
            if p: o.append(p[1])
        return o
    GR = 32
    for l in cexp(Hh, a2, b2, "s54", tA): A(l)
    A(f"v_mov_b32 v{CV+8}, 0x3f80\nds_write_addtid_b32 v{CV+8}")
    for l in cmul(Hh+2, Hh, Hh) + cmul(Hh+4, Hh+2, Hh) + cmul(W4, Hh+2, Hh+2): A(l)
    ex = merge(cexp(w1, a2, b2, None, tB), cexp(w256, a2, b2, "s55", tC))
    ex += ["s_waitcnt vmcnt(0)", f"v_mul_f32 v{G}, v{vP+2}, v6", f"v_mul_f32 v{G+1}, v{vP+3}, v6",
           "v_min_u32 v5, 255, v0\nv_lshlrev_b32 v6, 4, v5", "v_lshlrev_b32 v5, 3, v5",
           f"global_load_dwordx4 {v(vTB,4)}, v6, s[62:63] offset:-2048", f"global_load_dwordx2 {v(vTB+4,2)}, v5, s[62:63] offset:2048"]
    ex += cmul(w2, w1, w1) + cmul(G+2, G, w1) + cmul(w512, w256, w256)
    cur = [Hh, Hh+2, Hh+4, W4]; nxt = [HT, HT+2, HT+4, HT+6]; alt = [G2, G2+2, G2+4, G2+6]
    j = 1
    while j < 32:
        pend = [put(cur[r], j + r, False) for r in range(4) if j + r < 32]
        wk = [cmul(nxt[r], cur[r], W4) + [ex.pop(0) for _ in range(1) if ex] for r in range(4) if j + 4 + r < 32]
        if j + 4 >= 32: wk = [cmul(G+2*i, G+2*(i-2), w2) for i in range(2, 5)]
        for l in spread(pend, wk): A(l)
        cur, nxt = nxt, (alt if nxt[0] == HT else [HT, HT+2, HT+4, HT+6])
        j += 4
    assert not ex
    wk = [cmul(G+2*i, G+2*(i-2), w2) for i in range(5, 8)] + [cmul(G2+2*k, G+4*k, w256) for k in range(4)] + [cmul(G2+8, G, w512)]
    for l in spread([put(G+2*i, GR+i, True) for i in range(8)], wk): A(l)
    wk = [cmul(G2+10, G+8, w512), cmul(G2+12, G2, w512), cmul(G2+14, G2+4, w512), cmul(G, G2+8, w512), cmul(G+2, G2+12, w512), cmul(G+4, G, w512), cmul(G+6, G+2, w512), cmul(G+8, G+4, w512)]
    for l in spread([put(G2+2*i, GR+8+i, True) for i in range(8)], wk): A(l)
    for l in spread([put(G+2*i, GR+16+i, True) for i in range(5)], []): A(l)
    P.stamp(4)
    A(f"s_cmp_ge_u32 s36, 4\ns_cbranch_scc1 {nw}\ns_branch Lmw\n.p2align 12")
    target("Lmw")
    vACC, vEA, FR, TA_ = 8, 30, 100, 44
    tabprep = [f"s_lshl_b32 s46, s36, 15", f"v_lshl_add_u32 v4, v{vJ}, 2, s46", f"v_mul_u32_u24 v5, {4*TP}, v{vG}", "v_add_u32 v5, v5, v4", f"v_xor_b32 v7, 1, v{vG}"]
    tmin = []
    for b in range(4):
        o0 = 2 * b * TP + 128; o1 = 4 * (b & 1) * TP + 256 + 128 * (b >> 1)
        tabprep += [f"v_mul_u32_u24 v{TA_+b}, {abs(o1-o0)}, v{vG if o1 > o0 else 7}", f"v_add_u32 v{TA_+b}, v{TA_+b}, v4"]
        tmin.append(min(o0, o1))
    tabprep += [f"v_lshl_add_u32 v{TA_+4}, v{vG}, 9, v4", "s_waitcnt vmcnt(0)"]
    for r in range(11):
        tabprep += [f"v_and_b32 v{vEA+r}, 0xffff, v{vTB+(r>>1)}" if r % 2 == 0 else f"v_lshrrev_b32 v{vEA+r}, 16, v{vTB+(r>>1)}"]
    tabprep += ["v_cmp_ne_u32 s[44:45], 0, v0", f"v_lshlrev_b32 v6, 4, v0"]
    A("s_waitcnt lgkmcnt(0)\ns_barrier")
    P.stamp(5)
    def frd(n):
        b = FR + 8 * (n & 7); o = (n >> 3) * REG + 32 * (n & 7)
        return f"ds_read_b128 {v(b,4)}, v{vRA} offset:{GR*GP+o}\nds_read_b128 {v(b+4,4)}, v{vRA} offset:{o}"
    for n in range(6): A(frd(n))
    for n in range(16):
        b0 = FR + 8 * (n & 7)
        A(f"s_waitcnt lgkmcnt({2*min(5, 15-n)})\nv_mfma_f32_32x32x16_bf16 {v(vACC,16)}, {v(b0,4)}, {v(b0+4,4)}, {'0' if n == 0 else v(vACC,16)}")
        if n + 6 < 16: A(frd(n + 6))
        for l in tabprep[2*n:2*n+2]: A(l)
    assert len(tabprep) <= 32
    vW, vR, vO = 97, 98, 99
    A(f"""
    s_lshl_b32 s46, s36, 12
    s_add_u32 s46, s46, {PARO}
    v_lshl_add_u32 v{vW}, v{vLane}, 4, s46
    v_xor_b32 v{vR}, 0x1000, v{vW}
    s_lshl_b32 s46, s40, 10
    s_lshl_b32 s47, s39, 15
    s_add_u32 s47, s47, s46
    v_lshl_add_u32 v3, v{vLane}, 4, s47
    """)
    for b in range(4): A(f"ds_write_b32 v5, v{vACC+b} offset:{TP*b}")
    for b in range(4): A(f"ds_write_b32 v{TA_+b}, v{vACC+4+b} offset:{tmin[b]}")
    A(f"s_mov_b32 exec_hi, 1\nds_write_b32 v{TA_+4}, v{vACC+8} offset:512\ns_mov_b32 exec_hi, 0")
    for b in range(1, 4): A(f"ds_write_b32 v{TA_+4}, v{vACC+8+b} offset:{512+128*b}")
    A("s_mov_b32 exec_hi, -1\ns_waitcnt lgkmcnt(0)\ns_barrier")
    P.stamp(6)
    EV, CB = 100, 44
    for r in range(11): A(f"ds_read2st64_b32 {v(EV+2*r,2)}, v{vEA+r} offset0:0 offset1:128\nv_add_u32 v{vEA+r}, 0x10000, v{vEA+r}")
    for r in range(11): A(f"ds_read2st64_b32 {v(EV+22+2*r,2)}, v{vEA+r} offset0:0 offset1:128")
    for ch in range(2):
        E = EV + 22 * ch
        A(f"s_waitcnt lgkmcnt({11 if ch == 0 else 4})")
        for r in range(11): A(f"v_add_f32 v{E+2*r}, v{E+2*r}, v{E+2*r+1}")
        for r in range(3): A(f"v_cndmask_b32 v{E+2*r}, 0, v{E+2*r}, s[44:45]")
        for cp in range(4):
            b = CB + 16 * ch + 4 * cp
            for k in range(4):
                r0 = 3 - cp + 2 * k
                A(f"v_cvt_pk_bf16_f32 v{b+k}, v{E+2*r0}, v{E+2*r0+2}")
            A(f"ds_write_b128 v6, {v(b,4)} offset:{KB0+64+32768*ch+cp*KP}")
    P.stamp(7)
    A("s_waitcnt lgkmcnt(0)\ns_barrier")
    P.stamp(8)
    A(f"s_setprio {c.cprio}")
    AC = 8
    FBs = [40 + 8 * k for k in range(6)] + [100 + 8 * k for k in range(6)]
    def rd(Gi):
        r, n = Gi >> 3, Gi & 7
        b = FBs[Gi % 12]
        return [f"ds_read_b64 {v(b,2)}, v{vA} offset:{512*n+64*r}", f"ds_read_b64 {v(b+2,2)}, v{vA} offset:{512*n+64*r+8}",
                f"ds_read_b128 {v(b+4,4)}, v{vBc} offset:{512*n+64*(3-r)}"]
    def send(t): return f"s_mov_b64 exec, s[{48+2*(t&1)}:{49+2*(t&1)}]\nds_write_b128 v{vW}, {v(AC+4*t,4)} offset:{1024*(t>>1)}\ns_mov_b64 exec, -1"
    for Gi in range(4):
        for l in rd(Gi): A(l)
    A(f"""
    s_lshl_b32 s46, s37, 2
    s_add_u32 s46, s46, s39
    s_lshl_b32 s46, s46, 12
    s_lshl_b32 s47, s40, 9
    s_add_u32 s46, s46, s47
    s_add_u32 s46, s46, {WS_XG}
    v_and_b32 v4, 15, v0
    v_bfe_u32 v5, v0, 4, 2
    v_lshlrev_b32 v4, 5, v4
    v_lshrrev_b32 v6, 1, v5
    v_lshl_add_u32 v4, v6, 4, v4
    v_and_b32 v5, 1, v5
    v_lshl_add_u32 v4, v5, 10, v4
    v_add_u32 v{vO}, s46, v4
    """)
    started = set()
    def cm(r, a, b):
        t = a + b
        cc = v(AC + 4 * t, 4) if t in started else "0"
        started.add(t)
        return f"v_mfma_f32_16x16x32_bf16 {v(AC+4*t,4)}, {v(FBs[(8*r+a)%12],4)}, {v(FBs[(8*r+b)%12]+4,4)}, {cc}"
    def grp(n): return [(a, b) for a in range(n + 1) for b in range(n + 1) if max(a, b) == n and a + b <= 7]
    rq = []; nrd = 12; known = 0
    for Gi in range(28):
        r, n = Gi >> 3, Gi & 7
        rq += rd(Gi + 4)
        while nrd < 3 * (Gi + 1) + c.cmin: A(rq.pop(0)); nrd += 1
        if known < 3 * (Gi + 1):
            want = 3 * (Gi + 1)
            if n in c.cmerge and Gi > 3: want = min(want + 3, nrd - 3)
            A(f"s_waitcnt lgkmcnt({nrd - want})"); known = want
        for (a_, b_) in grp(n):
            A(cm(r, a_, b_))
            if rq: A(rq.pop(0)); nrd += 1
    for l in rq: A(l)
    PR, PP = 148, 116
    odd = A.label("odd"); jn = A.label("jn")
    A(f"s_cmp_eq_u32 s40, 1\ns_cbranch_scc1 {odd}")
    for par in range(2):
        if par:
            for _ in range(c.x_pad // 4): A("s_nop 0")
            target(odd)
        snd = [t for t in range(8) if t % 2 != par]
        def sw(t): return f"ds_write_b128 v{vW}, {v(AC+4*t,4)} offset:{1024*(t>>1)}"
        rest = [p for n in range(4, 8) for p in grp(n)]
        first = [p for p in rest if (p[0] + p[1]) % 2 != par]; last = [p for p in rest if (p[0] + p[1]) % 2 == par]
        A("s_waitcnt lgkmcnt(9)"); got = 4
        for k, p in enumerate(first):
            if max(p) > got: A(f"s_waitcnt lgkmcnt({2 if k > 3 else 3*(7-max(p)) + (1 if k > 1 else 0)})"); got = 7 if k > 3 else max(p)
            A(cm(3, *p))
            if k == 1: A(sw(snd[0]))
            if k == 3: A(sw(snd[1]))
        if got < 7: A("s_waitcnt lgkmcnt(2)")
        for k, p in enumerate(last):
            A(cm(3, *p))
            if k == 2: A(sw(snd[2]))
            if k == 7: A(sw(snd[3]))
        if par == 0: P.stamp(9)
        else: P.stamp(9)
        A("s_waitcnt lgkmcnt(0)\ns_barrier")
        for q in range(4): A(f"ds_read_b128 {v(PR+4*q,4)}, v{vR} offset:{1024*q}\nds_read_b128 {v(PP+4*q,4)}, v3 offset:{2048*q}")
        for q in range(4):
            A(f"s_waitcnt lgkmcnt({6-2*q})")
            k = AC + 4 * (2 * q + par)
            for h in range(2): A(f"v_pk_add_f32 {v(PR+4*q+2*h,2)}, {v(PR+4*q+2*h,2)}, {v(PP+4*q+2*h,2)}")
            for h in range(2): A(f"v_pk_add_f32 {v(PR+4*q+2*h,2)}, {v(PR+4*q+2*h,2)}, {v(k+2*h,2)}")
            o_ = 132 + 2 * q
            A(f"v_cvt_pk_bf16_f32 v{o_}, v{PR+4*q}, v{PR+4*q+1}\nv_cvt_pk_bf16_f32 v{o_+1}, v{PR+4*q+2}, v{PR+4*q+3}")
            if q & 1:
                A(f"v_permlane16_swap_b32 v{o_-2}, v{o_}\nv_permlane16_swap_b32 v{o_-1}, v{o_+1}")
                A(f"global_store_dwordx4 v{vO}, {v(o_-2,4)}, s[30:31] offset:{1024*(q-1)} sc0 sc1")
        if not par: A(f"s_branch {jn}")
    A(f"{jn}:")
    P.stamp(10)
    vB, vAa, vS, vCR, vCA = 8, 10, 12, 14, 16
    vX = 18
    CN, CA, MB = 24, 32, 38
    F = [48, 64, 80]
    ACC = 96
    T1, T2, OUT = 48, 56, 64
    def csetup():
        A(ffn_ids)
        A(f"""
        s_and_b32 s40, s36, 1
        s_bfe_u32 s41, s36, 0x10001
        s_lshr_b32 s49, s36, 2
        v_bfe_u32 v2, v{vLane}, 2, 2
        v_bfe_u32 v3, v{vLane}, 4, 1
        v_lshrrev_b32 v4, 5, v{vLane}
        v_and_b32 v6, 3, v{vLane}
        v_lshl_add_u32 v5, v4, 3, v2
        v_lshlrev_b32 v7, 8, v5
        v_lshl_add_u32 v7, v6, 3, v7
        v_lshl_add_u32 v7, v3, 5, v7
        s_lshl_b32 s42, s40, 1
        s_add_u32 s42, s42, s41
        v_xor_b32 v{vB}, s42, v2
        v_lshl_add_u32 v{vB}, v{vB}, 6, v7
        v_xor_b32 v{vB+1}, 64, v{vB}
        v_add_u32 v17, 0x10000, v{vB}
        v_add_u32 v46, 0x10000, v{vB+1}
        s_lshl_b32 s42, s34, 1
        s_add_u32 s42, s42, s40
        v_xor_b32 v{vX}, s42, v2
        v_lshl_add_u32 v{vX}, v{vX}, 6, v7
        v_lshlrev_b32 v7, 7, v5
        v_lshl_add_u32 v7, v6, 3, v7
        v_lshl_add_u32 v7, v3, 12, v7
        v_lshrrev_b32 v5, 1, v2
        v_lshl_add_u32 v5, v3, 1, v5
        s_lshl_b32 s42, s41, 1
        v_xor_b32 v5, s42, v5
        v_lshl_add_u32 v7, v5, 5, v7
        v_add_u32 v{vAa}, {12*BLK}, v7
        v_xor_b32 v{vAa+1}, 32, v{vAa}
        s_lshl_b32 s42, s39, 2
        s_lshl_b32 s43, s40, 1
        s_add_u32 s42, s42, s43
        s_add_u32 s43, s42, s41
        s_xor_b32 s44, s43, 1
        s_lshl_b32 s45, s38, 3
        s_lshl_b32 s46, s41, 1
        s_add_u32 s45, s45, s46
        s_lshl_b32 s46, s49, 2
        s_add_u32 s45, s45, s46
        s_lshl_b32 s46, s45, 7
        s_add_u32 s45, s45, {WS_ACT // 1024}
        s_mul_i32 s43, s43, 112
        s_mul_i32 s44, s44, 112
        s_add_u32 s43, s43, s45
        s_add_u32 s44, s44, s45
        s_lshl_b32 s43, s43, 10
        s_lshl_b32 s44, s44, 10
        v_lshl_add_u32 v{vS}, v{vLane}, 4, s43
        v_lshl_add_u32 v{vS+1}, v{vLane}, 4, s44
        v_and_b32 v5, 15, v{vLane}
        v_mul_u32_u24 v7, {F_*8}, v3
        v_lshl_add_u32 v5, v5, 3, v7
        s_add_u32 s46, s46, {WS_CS}
        v_add_u32 v{vCA}, s46, v5
        v_and_b32 v5, 31, v{vLane}
        s_lshl_b32 s42, s40, 1
        s_add_u32 s42, s42, s41
        s_lshl_b32 s43, s42, 9
        s_add_u32 s43, s43, {CON}
        v_lshl_add_u32 v{vCR}, v5, 4, s43
        v_xor_b32 v{vCR+1}, 512, v{vCR}
        s_lshl_b32 s43, s39, 11
        s_lshl_b32 s44, s41, 8
        s_add_u32 s43, s43, s44
        s_add_u32 s43, s43, {WS_FLAGS}
        s_lshl_b32 s44, s34, 10
        s_add_u32 s59, s43, s44
        s_lshl_b32 s44, s40, 10
        s_add_u32 s58, s43, s44
        s_lshl_b32 s44, s49, 9
        s_add_u32 s58, s58, s44
        v_mov_b32 v{CA+4}, 0
        v_mov_b32 v{CA+5}, 0
        v_mov_b32 v{MB+2}, 0
        v_mov_b32 v{MB+3}, 0
        v_mov_b32 v{MB+6}, 0
        v_mov_b32 v{MB+7}, 0
        v_cmp_eq_u32 s[52:53], 0, v4
        s_mov_b32 s47, 0x3f803f80
        s_mov_b32 s48, 0xffff0000
        """)
    caload = [f"global_load_dwordx2 {v(CA,2)}, v{vCA}, s[30:31] sc1", f"global_load_dwordx2 {v(CA+2,2)}, v{vCA}, s[30:31] offset:128 sc1"]
    def preads(p, j):
        s, ks = j >> 1, j & 1
        f = F[j % 3]
        ho = (slot[("H", s)] % 8) * BLK + 4096 * ks
        wo = (slot[("W", 14 * p + s)] - 12) * BLK + 2048 * ks
        o = []
        for kind, i in (("B", 0), ("A", 0), ("B", 1), ("A", 1)):
            ab = vB + i if s < 8 else (17, 46)[i]
            if kind == "B": o += [f"ds_read_b64_tr_b16 {v(f+8+4*i,2)}, v{ab} offset:{ho}", f"ds_read_b64_tr_b16 {v(f+10+4*i,2)}, v{ab} offset:{ho+1024}"]
            else: o += [f"ds_read_b64_tr_b16 {v(f+4*i,2)}, v{vAa+i} offset:{wo}", f"ds_read_b64_tr_b16 {v(f+2+4*i,2)}, v{vAa+i} offset:{wo+512}"]
        return o
    def pmfma(j, first=False, p=None):
        f = F[j % 3]
        if p is not None and str(p) in c.x16:
            o = []
            for k, (t, rt) in enumerate(((0, 0), (0, 1), (1, 0), (1, 1))):
                a = ACC + 32 * t + 16 * rt + 8 * (j & 1)
                o.append(f"v_mfma_f32_16x16x32_bf16 {v(a,4)}, {v(f+4*t,4)}, {v(f+8+4*rt,4)}, {v(a,4)}\nv_mfma_f32_16x16x32_bf16 {v(a+4,4)}, {v(f+4*(t^1),4)}, {v(f+8+4*rt,4)}, {v(a+4,4)}")
            return o
        return [f"v_mfma_f32_32x32x16_bf16 {v(ACC+32*t+16*rt,16)}, {v(f+4*t,4)}, {v(f+8+4*rt,4)}, {'0' if first else v(ACC+32*t+16*rt,16)}" for (t, rt) in ((0, 0), (0, 1), (1, 0), (1, 1))]
    def corr(first):
        return [f"v_mfma_f32_32x32x16_bf16 {v(ACC+32*t+16*rt,16)}, {v(CA+2*t,4)}, {v(MB+4*rt,4)}, {'0' if first else v(ACC+32*t+16*rt,16)}" for t in range(2) for rt in range(2)]
    mkmb = [f"v_cndmask_b32 v{MB+4*rt+k}, 0, v{CN+4*rt+3}, s[52:53]" for rt in range(2) for k in range(2)]
    def inter(m, r):
        per_ = (len(r) + 3) // 4
        for i in range(4):
            A(m[i])
            for l in r[per_*i:per_*(i+1)]: A(l)
    def pstep(p, s):
        for h in range(2):
            A("s_waitcnt lgkmcnt(8)")
            inter(pmfma(2*s - 2 + h, s == 1 and h == 0, p if s > 1 else None), preads(p, 2*s + h))
        k = s - c.ca_load if p == 0 else 14 + s - c.cs2[1] - 1
        if k in (0, 1): A(caload[k])
    def epi(t, rt, n, packed):
        a = ACC + 32 * t + 16 * rt
        cn = CN + 4 * rt
        o_ = OUT + 4 * (n & 1)
        L = []
        if packed:
            L += [f"v_pk_mul_f32 {v(T1+2*q,2)}, {v(a+2*q,2)}, {v(a+2*q,2)}" for q in range(4)]
            L += [f"v_pk_fma_f32 {v(T1+2*q,2)}, {v(T1+2*q,2)}, {v(cn,2)}, {v(cn,2)} op_sel:[0,1,0] op_sel_hi:[1,1,0]" for q in range(4)]
            L += [f"v_pk_mul_f32 {v(T1+2*q,2)}, {v(T1+2*q,2)}, {v(a+2*q,2)}" for q in range(4)]
            L += [f"v_exp_f32 v{T1+q}, v{T1+q}" for q in range(8)]
            L += [f"v_pk_mul_f32 {v(T2+2*q,2)}, {v(a+2*q,2)}, {v(a+8+2*q,2)}" for q in range(4)]
            L += [f"v_pk_fma_f32 {v(T1+2*q,2)}, {v(T1+2*q,2)}, {v(cn+2,2)}, {v(cn+2,2)} op_sel_hi:[1,0,0]" for q in range(4)]
            L += [f"v_rcp_f32 v{T1+q}, v{T1+q}" for q in range(8)]
            L += [f"v_pk_mul_f32 {v(T2+2*q,2)}, {v(T2+2*q,2)}, {v(T1+2*q,2)}" for q in range(4)]
            L += [f"v_cvt_pk_bf16_f32 v{o_+q}, v{T2+2*q}, v{T2+2*q+1}" for q in range(4)]
        else:
            def st(q):
                return [f"v_mul_f32 v{T1+q}, v{a+q}, v{a+q}", f"v_fma_f32 v{T1+q}, v{T1+q}, v{cn+1}, v{cn}", f"v_mul_f32 v{T1+q}, v{T1+q}, v{a+q}",
                        f"v_exp_f32 v{T1+q}, v{T1+q}", f"v_mul_f32 v{T2+q}, v{a+q}, v{a+8+q}", f"v_fma_f32 v{T1+q}, v{T1+q}, v{cn+2}, v{cn+2}",
                        f"v_rcp_f32 v{T1+q}, v{T1+q}", f"v_mul_f32 v{T2+q}, v{T2+q}, v{T1+q}"]
            for q0 in range(0, 8, c.il):
                xs = [st(q) for q in range(q0, q0 + c.il)]
                for k in range(8): L += [x[k] for x in xs]
                L += [f"v_cvt_pk_bf16_f32 v{o_+q//2}, v{T2+q}, v{T2+q+1}" for q in range(q0, q0 + c.il, 2)]
        L += [f"global_store_dwordx4 v{vS+rt}, {v(o_,4)}, s[30:31] offset:{1024*t} {c.stflag}"]
        return L
    def cost(l): return 2 if l.startswith(("v_exp", "v_rcp", "v_sqrt")) else c.stcost if l.startswith("global_store") else 1
    def signal(t, later=None):
        A(f"s_mov_b32 s70, 1\ns_waitcnt vmcnt({2-2*t if later is None else later})\ns_atomic_add s70, s[30:31], s58\ns_add_u32 s58, s58, 128")
    def poll_issue(r, off):
        A(f"s_mov_b32 s{r}, 0\ns_add_u32 s68, s59, {off}\ns_atomic_add s{r}, s[30:31], s68 glc")
    def poll_wait(r, off, inline=False):
        pl = A.label("poll"); ok = A.label("ok")
        if inline:
            A(f"s_mov_b32 s45, 0\n{pl}:\ns_waitcnt lgkmcnt(0)\ns_cmp_ge_u32 s{r}, 14\ns_cbranch_scc1 {ok}")
            poll_issue(r, off)
            A(f"s_add_u32 s45, s45, 1\ns_cmp_lt_u32 s45, {SPIN}\ns_cbranch_scc1 {pl}\ns_waitcnt lgkmcnt(0)\n{ok}:")
            return
        A(f"s_waitcnt lgkmcnt(0)\ns_cmp_lt_u32 s{r}, 14\ns_cbranch_scc1 {pl}\n{ok}:")
        with Cold():
            A(f"{pl}:\ns_mov_b32 s45, 0\n{pl}b:")
            poll_issue(r, off)
            A(f"s_add_u32 s45, s45, 1\ns_waitcnt lgkmcnt(0)\ns_cmp_ge_u32 s{r}, 14\ns_cbranch_scc1 {ok}\ns_cmp_lt_u32 s45, {SPIN}\ns_cbranch_scc1 {pl}b\ns_branch {ok}")
    PA_, PB_ = 69, 71
    Q = Bars([0, 14, c.drain0[1] + 1, 29], 13)
    AC2, ID, HF = 80, 160, 72
    csetup()
    if c.emode: A(f"s_waitcnt vmcnt(0)\ns_sleep {c.emode}")
    A("s_waitcnt vmcnt(0)\ns_barrier")
    P.stamp(11)
    A(f"""
    s_lshl_b32 s43, s35, 1
    s_add_u32 s43, s43, s41
    s_sub_u32 s43, s43, s38
    s_cselect_b32 s44, 14, 0
    s_add_u32 s43, s43, s44
    s_cmp_ge_u32 s43, 12
    s_cselect_b32 s44, {2 if c.w8 else 0}, 0
    s_add_u32 s43, s43, s44
    s_lshl_b32 s43, s43, 13
    v_add_u32 v{vX}, s43, v{vX}
    v_lshlrev_b32 v7, 3, v4
    v_sub_u32 v7, v5, v7
    v_mov_b32 v{vX+1}, 0x3f80
    v_mov_b32 v{vX+2}, 1.0
    """)
    for j in range(2):
        for i in range(4):
            d0 = 16 * j + 2 * i
            A(f"v_cmp_eq_u32 vcc, {d0}, v7\nv_cmp_eq_u32 s[50:51], {d0+1}, v7\nv_cndmask_b32 v{ID+4*j+i}, 0, v{vX+1}, vcc\nv_cndmask_b32 v{ID+4*j+i}, v{ID+4*j+i}, v{vX+2}, s[50:51]")
    A("s_setprio 2")
    Q.bar()
    P.stamp(12)
    for l in preads(0, 0) + preads(0, 1): A(l)
    if c.fast0:
        A("s_waitcnt lgkmcnt(8)")
        for l in pmfma(0, True): A(l)
        A("s_waitcnt lgkmcnt(0)")
        for l in pmfma(1): A(l)
        Q.bar()
        for l in preads(0, 2) + preads(0, 3): A(l)
    for s in range(2 if c.fast0 else 1, 14):
        Q.bar(); pstep(0, s)
    Q.bar()
    r = [f"ds_read_b128 {v(CN+4*i,4)}, v{vCR+i}" for i in range(2)] + [f"ds_read_b64_tr_b16 {v(HF+2*i,2)}, v{vX} offset:{4096*(i>>1)+1024*(i&1)}" for i in range(4)]
    A("s_waitcnt lgkmcnt(8)"); inter(pmfma(26), r)
    A("s_waitcnt vmcnt(0) lgkmcnt(4)"); inter(pmfma(27), mkmb)
    for l in corr(False): A(l)
    A("s_waitcnt lgkmcnt(0)")
    A("s_setprio 0")
    E1 = []
    for n in range(4): E1 += epi(n >> 1, n & 1, n, c.e1_packed)
    tot = sum(cost(x) for x in E1); per1 = tot / (c.e1_last - c.e1_first + 1); bud = 0.0
    vD, vT = 8, 14
    gsetup = f"""
    v_lshl_add_u32 v7, v4, 2, v2
    v_lshlrev_b32 v7, 7, v7
    v_lshrrev_b32 v{vD}, 1, v2
    v_xor_b32 v{vD}, s41, v{vD}
    v_lshl_add_u32 v7, v{vD}, 6, v7
    v_lshl_add_u32 v7, v3, 5, v7
    v_lshl_add_u32 v7, v6, 3, v7
    s_lshl_b32 s43, s41, 12
    v_add_u32 v{vD}, s43, v7
    v_xor_b32 v{vD+1}, 64, v{vD}
    v_add_u32 v{vD+2}, 0x10000, v{vD}
    v_add_u32 v{vD+3}, 0x10000, v{vD+1}
    v_lshlrev_b32 v{vT}, 4, v{vLane}
    """
    gsetup2 = f"""
    s_lshl_b32 s43, s39, 2
    s_lshl_b32 s44, s34, 1
    s_add_u32 s43, s43, s44
    s_add_u32 s43, s43, s40
    s_mul_i32 s55, s43, {112*1024}
    s_mul_i32 s43, s43, {32*896}
    s_lshl_b32 s44, s35, 7
    s_add_u32 s43, s43, s44
    s_lshl_b32 s44, s41, 6
    s_add_u32 s43, s43, s44
    v_mul_u32_u24 v5, 896, v5
    v_lshl_add_u32 v5, v4, 4, v5
    v_add_u32 v5, s43, v5
    s_lshl_b32 s44, s41, 11
    s_add_u32 s55, s55, s44
    s_lshl_b32 s4, s33, 13
    s_add_u32 s4, s4, s55
    s_add_u32 s54, s55, {14*8192}
    s_add_u32 s64, s30, {WS_ACT}
    s_addc_u32 s65, s31, 0
    s_mov_b32 s66, {ACT_BYTES}
    s_mov_b32 s67, 0x20000
    """
    gsetup3 = "\n".join(f"s_add_u32 s{4+k}, s{3+k}, 8192\ns_cmp_ge_u32 s{4+k}, s54\ns_cselect_b32 s{4+k}, s55, s{4+k}" for k in range(1, 14))
    TRQ = [96 + 4 * k for k in range(18)] + [16, 20, 24, 28]
    DB = [32, 40, 48, 56]
    AO = [AC2, 64]
    seq = [(14 * hf + b, j) for hf in range(2) for j in range(2) for b in range(14)]
    cons = [(b, j) for b in range(14) for j in range(2)] + seq[28:]
    freeq = list(TRQ); treg = {}
    def tload(n):
        b, j = seq[n]
        if (b, j) not in treg: treg[(b, j)] = freeq.pop(0)
        o = []
        if n == 28: o += [f"v_add_u32 v15, 4096, v{vT}"]
        if c.x_notl and n >= 28: return o
        o += [f"buffer_load_dwordx4 {v(treg[(b, j)],4)}, v{vT if n < 28 else 15}, s[64:67], s{4+b%14} offen offset:{1024*j} sc1"]
        return o
    nst = 0; early = 0
    assert c.cs2[1] <= 25
    assert c.drain0[1] <= c.chkA and c.e1_last + 3 <= c.chkA and sum(c.earlyT) <= 14
    for i in range(15, 29):
        Q.bar()
        if i == c.drain0[0]:
            assert nst >= 2
            signal(0, nst - 2)
        if i >= c.e1_first:
            bud += per1
            while E1 and (bud > 0 or i == c.e1_last):
                x = E1.pop(0); A(x); bud -= cost(x)
                if x.startswith("global_store"): nst += 1
        if i == c.pollA: poll_issue(PA_, 0)
        if i == c.e1_last + 1: A(gsetup)
        if i == c.e1_last + 2: A(gsetup2)
        if i == c.e1_last + 3: A(gsetup3)
        if i == c.chkA: A("s_waitcnt lgkmcnt(0)")
        if i == c.drain0[1]:
            signal(1)
            A(f"v_add_u32 v{vD+4}, 0x20000, v{vD}\nv_add_u32 v{vD+5}, 0x20000, v{vD+1}")
        if i == c.poll0: poll_issue(PB_, 128)
        if 0 <= i - c.chkA < len(c.earlyT):
            sk = A.label("et")
            A(f"s_cmp_lt_u32 s{PA_}, 14\ns_cbranch_scc1 {sk}")
            for _ in range(c.earlyT[i - c.chkA]):
                for l in tload(early): A(l)
                early += 1
            A(f"{sk}:")
    Q.bar()
    A(f"v_mfma_f32_32x32x16_bf16 {v(AC2,16)}, {v(ID,4)}, {v(HF,4)}, 0")
    A(f"v_mfma_f32_32x32x16_bf16 {v(AC2,16)}, {v(ID+4,4)}, {v(HF+4,4)}, {v(AC2,16)}")
    sk = A.label("et")
    A(f"s_cmp_lt_u32 s{PA_}, 14\ns_cbranch_scc1 {sk}c\n{sk}:")
    with Cold():
        A(f"{sk}c:")
        poll_wait(PA_, 0, True)
        for n in range(early):
            for l in tload(n): A(l)
        A(f"s_branch {sk}")
    def dreads(n):
        b, j = cons[n]
        sd = slot[("D", b)]; f = DB[n & 3]
        o = []
        for nt in range(2):
            do = (sd % 8) * BLK + 2048 * j
            ad = vD + 2 * (sd // 8) + nt
            o += [f"ds_read_b64_tr_b16 {v(f+4*nt,2)}, v{ad} offset:{do}", f"ds_read_b64_tr_b16 {v(f+4*nt+2,2)}, v{ad} offset:{do+1024}"]
        return o
    def gm(n):
        f = DB[n & 3]
        if 'g' in c.x16 and 0 < n < 52:
            return [f"v_mfma_f32_16x16x32_bf16 {v(AO[nt]+8*(n&1),4)}, {v(f+4*nt,4)}, {v(treg[cons[n]],4)}, {v(AO[nt]+8*(n&1),4)}\nv_mfma_f32_16x16x32_bf16 {v(AO[nt]+8*(n&1)+4,4)}, {v(f+4*(nt^1),4)}, {v(treg[cons[n]],4)}, {v(AO[nt]+8*(n&1)+4,4)}" for nt in (1, 0)]
        return [f"v_mfma_f32_32x32x16_bf16 {v(AO[nt],16)}, {v(f+4*nt,4)}, {v(treg[cons[n]],4)}, {'0' if (n == 0 and nt == 1) else v(AO[nt],16)}" for nt in (1, 0)]
    issued = early; mk = 0
    while issued < 14:
        for l in tload(issued): A(l)
        issued += 1
        if issued > c.tdep0: A(f"s_waitcnt vmcnt({c.tdep0})")
    poll_wait(PB_, 128, True)
    Q.mark(mk); mk += 1
    lim = 28; late = []
    for n in range(56):
        if n == 14 and not c.auxpoll: A("s_waitcnt lgkmcnt(0)\ns_barrier")
        for y in (c.ya_at, c.yb_at):
            if n == y:
                if c.auxpoll and y == c.ya_at and y < 16: A("s_waitcnt lgkmcnt(0)")
                A("s_barrier")
                Q.mark(mk); mk += 1
                lim += 14
        k = 99 if n == 0 else c.pace.get(n, c.pace1 if n < 28 else c.pace2)
        while issued < lim and freeq and k > (2 if c.tpost and n else 0):
            for l in tload(issued): A(l)
            issued += 1; k -= 1
            if n == 0 and c.tdep0 < 22: A(f"s_waitcnt vmcnt({c.tdep0})")
        assert seq.index(cons[n]) < issued
        if n == 0:
            for l in dreads(0) + dreads(1): A(l)
        if n == c.g_pre:
            if c.xe: A("s_barrier")
            Q.mark(mk); mk += 1
        if c.auxpoll and n == 32: A("s_barrier")
        r = dreads(n + 2) if n + 2 < 56 else []
        A(f"s_waitcnt vmcnt({issued-1-seq.index(cons[n])}) lgkmcnt({4 if n < 55 else 0})")
        if n in (28, 42): Q.mark(mk); mk += 1
        m = gm(n)
        if n >= 56 - c.fin_ov:
            A(m[0]); late.append(m[1])
            for l in r: A(l)
            continue
        for i in range(2):
            A(m[i])
            if c.tpost and issued < lim and freeq and k > 1 - i:
                for l in tload(issued): A(l)
                issued += 1
            for l in r[2*i:2*i+2]: A(l)
        freeq.append(treg[cons[n]])
    assert 14 <= c.ya_at <= 26 and c.ya_at <= c.yb_at <= 32 and c.yb_at >= (20 if c.auxpoll else 24)
    while mk < 6: Q.mark(mk); mk += 1
    Q.mark(6)
    XR = 64
    assert all(slot[("D", b)] not in (8, 9) for b in range(11, 28))
    A(f"""
    s_lshl_b32 s43, s36, 12
    s_add_u32 s43, s43, {8*BLK}
    v_lshl_add_u32 v2, v{vLane}, 4, s43
    v_xor_b32 v3, 0x2000, v2
    """)
    if late: A(late.pop(0))
    for q in range(4):
        A(f"ds_write_b128 v2, {v(AO[1]+4*q,4)} offset:{1024*q}")
        if late and q in (0, 2): A(late.pop(0))
    assert not late
    A("s_waitcnt lgkmcnt(0)\ns_barrier")
    for q in range(4): A(f"ds_read_b128 {v(XR+4*q,4)}, v3 offset:{1024*q}")
    for hq in range(2):
        A(f"s_waitcnt lgkmcnt({2-2*hq})")
        for q in range(4*hq, 4*hq+4): A(f"v_pk_add_f32 {v(AC2+2*q,2)}, {v(AC2+2*q,2)}, {v(XR+2*q,2)}")
        for q in range(4*hq, 4*hq+4): A(f"v_cvt_pk_bf16_f32 v{48+q}, v{AC2+2*q}, v{AC2+2*q+1}")
        A(f"v_permlane32_swap_b32 v{48+4*hq}, v{48+4*hq+2}\nv_permlane32_swap_b32 v{48+4*hq+1}, v{48+4*hq+3}")
        A(f"global_store_dwordx4 v5, {v(48+4*hq,4)}, s[26:27] offset:{32*hq} {c.outflag}")
    Q.fin(7)
    A("s_endpgm")
    target(nw)
    A(f"s_and_b32 s46, s36, 3\ns_mov_b32 s45, 0\nv_mov_b32 v11, {TAGA}")
    def xpoll():
        for k in xord: A(xp[k])
    A("s_waitcnt lgkmcnt(0)\ns_barrier")
    P.stamp(5)
    A(f"""
    ds_read_b32 v11, v11
    s_lshl_b32 s47, s46, 10
    s_add_u32 s47, s47, {UO+512}
    v_xor_b32 v9, 3, v{vLane}
    v_lshl_add_u32 v9, v9, 2, s47
    s_lshl_b32 s47, s46, 11
    v_lshrrev_b32 v5, 3, v{vLane}
    v_lshl_add_u32 v5, v5, 4, s47
    v_bfe_u32 v6, v{vLane}, 1, 2
    v_lshl_add_u32 v5, v6, 8, v5
    v_and_b32 v6, 1, v{vLane}
    v_lshl_add_u32 v10, v6, 3, v5
    """)
    if not c.xp_at:
        if c.poll_late: A(f"s_sleep {c.poll_late}")
        xpoll()
    if not c.xp_chk:
        A(f"s_mov_b32 s45, 1\ns_barrier\ns_setprio {c.nprio}")
    pl = A.label("xp"); ok = A.label("xok"); nb1 = A.label("xnb")
    def tagcheck():
        A(f"{'' if c.nstage else pl + ':'}\ns_waitcnt vmcnt(0) lgkmcnt(0)\nv_min3_u32 v4, v{vPX+1}, v{vPX+3}, v11\nv_max3_u32 v5, v{vPX+1}, v{vPX+3}, v11")
        for q in range(1, 8): A(f"v_min3_u32 v4, v4, v{vPX+4*q+1}, v{vPX+4*q+3}\nv_max3_u32 v5, v5, v{vPX+4*q+1}, v{vPX+4*q+3}")
        assert not c.xp_chk
        A(f"v_cmp_ne_u32 vcc, v4, v5\ns_cbranch_vccnz {pl}c\n{ok}:")
        with Cold():
            A(f"{pl}c:\ns_add_u32 s45, s45, 1\ns_cmp_gt_u32 s45, {SPIN}\ns_cbranch_scc1 {ok}")
            if c.xmask:
                for q in range(8):
                    A(f"v_cmp_ne_u32 vcc, v{vPX+4*q+1}, v11\nv_cmp_ne_u32 s[50:51], v{vPX+4*q+3}, v11\ns_or_b64 exec, vcc, s[50:51]\ns_cbranch_execz {pl}m{q}\n{xp[q]}\n{pl}m{q}:\ns_mov_b64 exec, -1")
            else: xpoll()
            A(f"s_waitcnt vmcnt(0)\ns_branch {pl}")
    if c.nstage: A(f"s_waitcnt vmcnt(4)\n{pl}:")
    else: tagcheck()
    P.stamp(6)
    if c.x_cnt: A("s_waitcnt lgkmcnt(0)\ns_mul_i32 s74, s45, 100\ns_add_u32 s74, s74, s72")
    NU, PRE, UB = 16, 32, 48
    for half in range(2):
        st = []
        if half == 1 and c.nstage: tagcheck()
        for r in range(4 * half, 4 * half + 4):
            S = vPS_ + 2 * r; X = vPX + 2 * r
            t = 60 + 4 * (r & 3)
            st.append([f"v_and_b32 v{t+2}, s43, v{S}", f"v_rcp_f32 v{t+2}, v{t+2}", f"v_lshlrev_b32 v{t}, 16, v{S}",
                  f"v_lshlrev_b32 v{PRE+2*r}, 16, v{X}", f"v_and_b32 v{PRE+2*r+1}, s43, v{X}",
                  f"v_pk_add_f32 {v(NU+2*r,2)}, {v(PRE+2*r,2)}, {v(t,2)} op_sel_hi:[1,0] neg_lo:[0,1] neg_hi:[0,1]" if c.npk else f"v_sub_f32 v{NU+2*r}, v{PRE+2*r}, v{t}\nv_sub_f32 v{NU+2*r+1}, v{PRE+2*r+1}, v{t}",
                  f"v_cvt_pk_bf16_f32 v{NU+2*r+1}, v{NU+2*r}, v{NU+2*r+1}",
                  f"v_lshlrev_b32 v{NU+2*r}, 16, v{NU+2*r+1}", f"v_and_b32 v{NU+2*r+1}, s43, v{NU+2*r+1}",
                  f"v_pk_mul_f32 {v(NU+2*r,2)}, {v(NU+2*r,2)}, {v(t+2,2)} op_sel_hi:[1,0]" if c.npk else f"v_mul_f32 v{NU+2*r}, v{NU+2*r}, v{t+2}\nv_mul_f32 v{NU+2*r+1}, v{NU+2*r+1}, v{t+2}"])
        for l in merge(*st): A(l)
        for ch in range(2):
            for k in (2 * half, 2 * half + 1): A(f"v_cvt_pk_bf16_f32 v{UB+4*ch+k}, v{NU+4*k+2+ch}, v{NU+4*k+ch}")
    P.stamp(7)
    for half in range(2):
        for ch in range(2):
            A(f"ds_write2st64_b32 v9, v{UB+4*ch+2*half}, v{UB+4*ch+2*half+1} offset0:{ch*UPITCH//256+2*half} offset1:{ch*UPITCH//256+2*half+1}")
    A("s_setprio 0\ns_waitcnt lgkmcnt(0)\ns_barrier")
    P.stamp(8)
    if c.x_quietN: A("s_sleep 60")
    PO = 60
    for ch in range(2):
        for k in range(4):
            A(f"v_lshlrev_b32 v4, 16, v{UB+4*ch+k}\nv_and_b32 v5, s43, v{UB+4*ch+k}")
            A(f"v_fma_f32 v{PO+8*ch+2*k+1}, v4, s{58+ch}, v{PRE+4*k+2+ch}\nv_fma_f32 v{PO+8*ch+2*k}, v5, s{58+ch}, v{PRE+4*k+ch}")
            A(f"ds_write_b64 v10, {v(PO+8*ch+2*k,2)} offset:{32768*ch+1024*(k>>1)+128*(k&1)}")
    A("v_mov_b32 v90, v11")
    csetup()
    Q = Bars([0, c.gat_check, c.gat_check + 1, 14, 28, 29], 10)
    ST, GA = 18, 96
    vPS, vGA = 22, 23
    A(f"""
    s_mul_i32 s43, s39, {14*1024}
    s_lshl_b32 s44, s42, 8
    s_add_u32 s43, s43, s44
    s_add_u32 s43, s43, {WS_PS}
    v_lshl_add_u32 v{vPS}, v5, 3, s43
    v_mul_u32_u24 v7, 7168, v4
    v_add3_u32 v{vGA}, v{vPS}, v7, 64
    v_add_u32 v{vGA}, {3072-64}, v{vGA}
    s_lshl_b32 s44, s38, 10
    v_add_u32 v{vPS}, s44, v{vPS}
    """)
    nb = A.label("nb"); pz = A.label("pz"); pzo = A.label("pzo")
    pzl = "global_load_dwordx4 v[48:51], v47, s[30:31] sc1\nglobal_load_dwordx4 v[52:55], v47, s[30:31] offset:16 sc1"
    A(f"""
    s_cmp_lg_u32 s36, 4
    s_cbranch_scc1 {nb}a
    v_min_u32 v47, 55, v{vLane}
    v_lshlrev_b32 v47, 5, v47
    v_add_u32 v47, {WS_PZ}, v47
    s_mov_b32 s45, 0
    {pzl}
    {nb}a:
    """)
    P.stamp(9)
    A(f"""
    s_waitcnt lgkmcnt(0)
    s_barrier
    s_cmp_lg_u32 s36, 4
    s_cbranch_scc1 {nb}
    {pz}:
    s_waitcnt vmcnt(0)
    v_min3_u32 v56, v48, v49, v90
    v_max3_u32 v57, v48, v49, v90
    v_min3_u32 v56, v50, v51, v56
    v_max3_u32 v57, v50, v51, v57
    v_min3_u32 v56, v52, v53, v56
    v_max3_u32 v57, v52, v53, v57
    v_min3_u32 v56, v54, v55, v56
    v_max3_u32 v57, v54, v55, v57
    v_cmp_ne_u32 vcc, v56, v57
    s_cbranch_vccz {pzo}
    s_sleep {c.pz_sleep}
    {pzl}
    s_add_u32 s45, s45, 1
    s_cmp_lt_u32 s45, {SPIN}
    s_cbranch_scc1 {pz}
    {pzo}:
    s_cmp_lg_u32 s2, 0
    s_cbranch_scc1 {nb}
    v_mov_b32 v47, {WS_E}
    s_mov_b64 exec, 1
    global_store_dword v47, v90, s[30:31]
    s_mov_b64 exec, -1
    {nb}:
    s_barrier
    """)
    def gat(js=range(7)):
        for j in js: A(f"global_load_dwordx2 {v(GA+2*j,2)}, v{vGA}, s[30:31] offset:{1024*j-3072} sc1")
    S, Qv = GA, GA + 1
    work = [f"v_add_f32 v{GA+k}, v{GA+k}, v{GA+2*j+k}" for j in range(1, 7) for k in range(2)]
    work += [f"v_mov_b32 v{GA+2}, v{GA}", f"v_mov_b32 v{GA+3}, v{GA+1}", f"v_permlane32_swap_b32 v{GA}, v{GA+2}", f"v_permlane32_swap_b32 v{GA+1}, v{GA+3}",
             f"v_add_f32 v{GA}, v{GA}, v{GA+2}", f"v_add_f32 v{GA+1}, v{GA+1}, v{GA+3}"]
    work += [l.strip() for l in f"""
    v_mul_f32 v{S}, {f32(1.0/448)}, v{S}
    v_mul_f32 v{Qv}, {f32(1.0/448)}, v{Qv}
    v_fma_f32 v{Qv}, -v{S}, v{S}, v{Qv}
    v_max_f32 v{Qv}, 0, v{Qv}
    v_cvt_pk_bf16_f32 v{CN+3}, -v{S}, -v{S}
    v_cvt_pk_bf16_f32 v{Qv}, v{Qv}, v{Qv}
    v_and_b32 v{Qv}, s48, v{Qv}
    v_add_f32 v{Qv}, {f32(1e-5)}, v{Qv}
    v_cvt_pk_bf16_f32 v{Qv}, v{Qv}, v{Qv}
    v_and_b32 v{Qv}, s48, v{Qv}
    v_sqrt_f32 v{Qv}, v{Qv}
    v_cvt_pk_bf16_f32 v{Qv}, v{Qv}, v{Qv}
    v_and_b32 v{Qv}, s48, v{Qv}
    v_rcp_f32 v{S}, v{Qv}
    v_mul_f32 v{CN+2}, v{Qv}, v{Qv}
    v_mul_f32 v{CN}, {f32(GK0)}, v{S}
    v_mul_f32 v{CN+1}, v{S}, v{S}
    v_mul_f32 v{CN+1}, v{CN+1}, v{S}
    v_mul_f32 v{CN+1}, {f32(GK1)}, v{CN+1}
    ds_write_b128 v{vCR}, {v(CN,4)}
    """.strip().split("\n")]
    nwi = c.con_write - c.gat_check
    wper = (len(work) + nwi - 1) // nwi
    for i in range(14):
        Q.bar()
        if i == 0:
            for k in range(4): A(f"ds_read_b64_tr_b16 {v(F[0]+2*k,2)}, v{vB} offset:{4096*(k>>1)+1024*(k&1)}")
        if i == (0 if c.fast0 else 1):
            A("s_waitcnt lgkmcnt(0)")
            for k in range(8):
                z = k < 2
                A(f"v_dot2_f32_bf16 v{ST+(k&1)}, v{F[0]+k}, s47, {'0' if z else 'v%d' % (ST+(k&1))}\nv_dot2_f32_bf16 v{ST+2+(k&1)}, v{F[0]+k}, v{F[0]+k}, {'0' if z else 'v%d' % (ST+2+(k&1))}")
        if i == (0 if c.fast0 else 2):
            A(f"""
            v_add_f32 v{ST}, v{ST}, v{ST+1}
            v_add_f32 v{ST+1}, v{ST+2}, v{ST+3}
            v_mov_b32 v{ST+2}, v{ST}
            v_mov_b32 v{ST+3}, v{ST+1}
            v_permlane32_swap_b32 v{ST}, v{ST+2}
            v_permlane32_swap_b32 v{ST+1}, v{ST+3}
            v_add_f32 v{ST}, v{ST}, v{ST+2}
            v_add_f32 v{ST+1}, v{ST+1}, v{ST+3}
            v_or_b32 v{ST+1}, 1, v{ST+1}
            s_mov_b32 exec_hi, 0
            global_store_dwordx2 v{vPS}, {v(ST,2)}, s[30:31] sc0 sc1
            s_mov_b32 exec_hi, -1
            """)
        if i in (c.cs_issue, c.ca_load - 1):
            sk = A.label("css")
            A(f"s_cmp_lg_u32 s36, 4\ns_cbranch_scc1 {sk}")
            if i == c.cs_issue: A(f"global_load_dword v47, v{MB+2}, s[28:29] sc1")
            else:
                pl = A.label("cs")
                A(f"s_mov_b32 s45, 0\n{pl}:\ns_waitcnt vmcnt(0)\nv_cmp_gt_u32 vcc, 32, v47\ns_cbranch_vccz {sk}\ns_sleep {c.cs_back}\nglobal_load_dword v47, v{MB+2}, s[28:29] sc1\ns_add_u32 s45, s45, 1\ns_cmp_lt_u32 s45, {SPIN}\ns_cbranch_scc1 {pl}")
            A(f"{sk}:")
        k0 = i - (c.gat_issue - len(c.gat_split) + 1)
        if 0 <= k0 < len(c.gat_split) and not c.x_nogat: gat(range(sum(c.gat_split[:k0]), sum(c.gat_split[:k0+1])))
        if i == c.gat_check and not c.x_nogat:
            pl = A.label("gp"); ok = A.label("gok")
            A(f"s_mov_b32 s45, 0\n{pl}:\ns_waitcnt vmcnt(0)\nv_min3_u32 v7, v{GA+1}, v{GA+3}, v{GA+5}\nv_min3_u32 v7, v7, v{GA+7}, v{GA+9}\nv_min3_u32 v7, v7, v{GA+11}, v{GA+13}")
            A(f"v_cmp_eq_u32 vcc, 0, v7\ns_cbranch_vccnz {pl}c\n{ok}:")
            with Cold():
                A(f"{pl}c:\ns_add_u32 s45, s45, 1\ns_cmp_ge_u32 s45, {SPIN}\ns_cbranch_scc1 {ok}")
                gat()
                A(f"s_branch {pl}")
        if c.gat_check < i <= c.con_write:
            for l in work[:wper]: A(l)
            work = work[wper:]
        if i == 13:
            assert not work
            A("s_waitcnt vmcnt(0) lgkmcnt(0)")
    Q.bar()
    A(f"ds_read_b128 {v(CN+4,4)}, v{vCR+1}")
    for l in preads(1, 0): A(l)
    A("s_waitcnt lgkmcnt(8)")
    for l in mkmb + preads(1, 1): A(l)
    A(f"s_setprio {c.prioB}")
    assert c.cs2[1] + 2 < c.corr_at
    for s in range(1, 14):
        Q.bar(); pstep(1, s)
        if 14 + s == c.corr_at:
            A("s_waitcnt vmcnt(0)")
            for l in corr(False): A(l)
    Q.bar()
    A("s_waitcnt lgkmcnt(8)")
    for l in pmfma(26): A(l)
    A("s_waitcnt lgkmcnt(0)")
    Q.bar()
    for l in pmfma(27): A(l)
    for n in range(4):
        L = epi(n >> 1, n & 1, n, n < c.e2pk)
        if c.xe and n == c.xe_at: A("s_barrier")
        for l in L[:-1]: A(l)
        if n == 3 and c.sig_early: signal(0, 1)
        A(L[-1])
    Q.mark(0)
    A("s_setprio 0")
    if c.xe and c.xe_at == 4: A("s_barrier")
    if not c.sig_early: signal(0)
    Q.mark(1)
    if c.auxpoll:
        if c.selfrd:
            A(f"s_cmp_lg_u32 s40, s34\ns_cbranch_scc1 Lsr1\nglobal_load_dwordx4 v[96:99], v{vS}, s[30:31] sc1\nglobal_load_dwordx4 v[100:103], v{vS+1}, s[30:31] sc1\ns_waitcnt vmcnt(2)\ns_branch Lsr2\nLsr1:\ns_waitcnt vmcnt(0)\nLsr2:")
            signal(1, 2)
            A(f"s_cmp_lg_u32 s40, s34\ns_cbranch_scc1 Lsr3\nglobal_load_dwordx4 v[96:99], v{vS}, s[30:31] offset:1024 sc1\nglobal_load_dwordx4 v[100:103], v{vS+1}, s[30:31] offset:1024 sc1\nLsr3:")
        else: signal(1)
        Q.mark(2)
        A("s_barrier")
        Q.mark(3)
        A("s_barrier\ns_barrier")
        Q.mark(4)
    else:
        if c.pa_early: poll_issue(PA_, 512)
        signal(1)
        Q.mark(2)
        if not c.pa_early: poll_issue(PA_, 512)
        A("s_barrier")
        poll_wait(PA_, 512, True)
        poll_issue(PB_, 640)
        Q.mark(3)
        A("s_barrier")
        poll_wait(PB_, 640, True)
        Q.mark(4)
        A("s_barrier")
    Q.fin(5)
    A("s_waitcnt lgkmcnt(0)\ns_endpgm")
    A(f".p2align 3\n{auxt}:")
    PA.stamp(1)
    srd(A, 64, 30, XG_BYTES, WS_XG)
    A(f"""
    v_and_b32 v4, 15, v{vLane}
    v_lshrrev_b32 v5, 4, v{vLane}
    v_lshl_add_u32 v6, v4, 8, s46
    v_lshl_add_u32 v6, v5, 2, v6
    v_and_b32 v7, 7, v4
    v_lshl_add_u32 v6, v7, 4, v6
    v_lshlrev_b32 v9, 14, v5
    v_lshl_add_u32 v9, v4, 4, v9
    s_lshl_b32 s46, s36, 2
    s_add_u32 s46, s46, {TAGA}
    v_mov_b32 v2, s46
    """)
    for k in range(1, 8): A(f"v_xor_b32 v{80+k}, {16*k}, v6")
    A("s_waitcnt lgkmcnt(0)\ns_add_u32 s57, s57, 1\ns_and_b32 s57, s57, 0xffff\ns_or_b32 s57, s57, 0x7f810000")
    for k in range(16): A(f"v_mov_b32 v{vXG+2*k+1}, s57")
    A(f"s_mov_b64 exec, 1\nds_write_b32 v2, v{vXG+1}\ns_mov_b64 exec, -1\ns_waitcnt vmcnt(0)")
    PA.stamp(2)
    for k in range(8):
        ad = 6 if k == 0 else 80 + k
        A(f"ds_read_b32 v{vXG+4*k}, v{ad}\nds_read_b32 v{vXG+4*k+2}, v{ad} offset:128")
    for k in range(8):
        A(f"s_waitcnt lgkmcnt({14-2*k})\nbuffer_store_dwordx4 {v(vXG+4*k,4)}, v9, s[64:67], s51 offen sc0 sc1")
        if k < 7: A(f"s_add_u32 s51, s51, {4*16384}")
    PA.stamp(3)
    A(f"""
    v_mov_b32 v24, 0
    v_mov_b32 v25, 0
    s_lshl_b32 s43, s2, 1
    s_add_u32 s43, s43, s36
    s_lshl_b32 s44, s43, 9
    s_add_u32 s44, s44, {WS_PS}
    v_lshl_add_u32 v3, v{vLane}, 3, s44
    global_store_dwordx2 v3, v[24:25], s[30:31] sc0 sc1
    s_and_b32 s44, s43, 255
    s_lshl_b32 s44, s44, 7
    s_add_u32 s44, s44, {WS_FLAGS}
    v_mov_b32 v4, s44
    s_mov_b64 exec, 1
    global_store_dword v4, v24, s[30:31] sc0 sc1
    s_mov_b64 exec, -1
    s_lshl_b32 s44, s43, 2
    s_add_u32 s44, s44, {WS_PZ}
    v_mov_b32 v22, s44
    v_mov_b32 v23, s57
    s_setprio 0
    """)
    if c.warm:
        A("s_cmp_eq_u32 s36, 1\ns_cbranch_scc1 Lwm1")
        for lab in ("Lmw", nw, odd): A(f"s_call_b64 s[96:97], {lab}w")
        A("s_branch Lwm2\nLwm1:")
        for k in range(1, 4): A(f"s_call_b64 s[96:97], Lpw{k}")
        A("Lwm2:")
    A("s_barrier")
    if c.warm:
        A("s_cmp_eq_u32 s36, 1\ns_cbranch_scc1 Lwm3")
        for k in range(4, c.npg + 1, 2): A(f"s_call_b64 s[96:97], Lpw{k}")
        A("s_branch Lwm4\nLwm3:")
        for k in range(5, c.npg + 1, 2): A(f"s_call_b64 s[96:97], Lpw{k}")
        A("Lwm4:")
    aW, aD, aH = 8, 12, 8
    sW, sD, eW, eD = 41, 42, 45, 46
    def daddr():
        A(ffn_ids)
        A(f"""
        v_lshrrev_b32 v6, 3, v{vLane}
        v_and_b32 v7, 7, v{vLane}
        v_and_b32 v5, 2, v6
        v_lshlrev_b32 v4, 1, v5
        v_xor_b32 v4, v4, v7
        v_mul_u32_u24 v3, 896, v6
        v_lshl_add_u32 v{aD}, v4, 4, v3
        v_add_u32 v{aD+1}, {1*(8*896-1024)}, v{aD}
        v_add_u32 v{aD+2}, {2*(8*896-1024)}, v{aD}
        v_add_u32 v{aD+3}, {3*(8*896-1024)}, v{aD}
        s_lshl_b32 s{eD}, s35, 7
        s_mul_i32 s32, s36, {32*896}
        s_add_u32 s{eD}, s{eD}, s32
        s_mul_i32 s{sD}, s33, {128*896}
        s_add_u32 s{sD}, s{sD}, s{eD}
        s_add_u32 s{eD}, s{eD}, {14*128*896}
        s_lshl_b32 s32, s36, 12
        v_lshl_add_u32 v16, v{vLane}, 4, s32
        v_add_u32 v17, 0x10000, v16
        v_add_u32 v18, 0x20000, v16
        s_lshl_b32 s59, s39, 11
        s_lshl_b32 s58, s34, 10
        s_add_u32 s59, s59, s58
        s_lshl_b32 s58, s36, 8
        s_add_u32 s59, s59, s58
        s_add_u32 s59, s59, {WS_FLAGS}
        s_lshl_b32 s43, s39, 1
        s_add_u32 s43, s43, s34
        s_mul_i32 s43, s43, {224*1024}
        s_lshl_b32 s44, s36, 11
        s_add_u32 s43, s43, s44
        s_add_u32 s43, s43, {WS_ACT+4096}
        v_bfe_u32 v3, v{vLane}, 3, 1
        v_add_u32 v3, s33, v3
        v_cmp_gt_u32 vcc, 14, v3
        v_cndmask_b32 v3, 0, v3, vcc
        v_lshlrev_b32 v3, 13, v3
        v_bfe_u32 v4, v{vLane}, 4, 1
        v_mul_u32_u24 v4, {112*1024}, v4
        v_add3_u32 v3, v3, v4, s43
        v_lshl_add_u32 v19, v7, 7, v3
        """)
        srd(A, 60, 24, W_BYTES)
    def fifo_load(first, n, reg0):
        if c.x_nopre: return
        hf = 64 * 896 if first >= 14 else 0
        assert first >= 14 or first + n <= 14
        A(f"s_add_u32 s43, s{sD}, {hf + (first % 14)*128*896}\ns_add_u32 s44, s{eD}, {hf}")
        for b in range(n):
            A(f"s_cmp_ge_u32 s43, s44\ns_cselect_b32 s34, {14*128*896}, 0\ns_sub_u32 s43, s43, s34")
            for i in range(4): A(f"buffer_load_dwordx4 {v(reg0+16*b+4*i,4)}, v{aD+i}, s[60:63], s43 offen offset:{1024*i}")
            A(f"s_add_u32 s43, s43, {128*896}")
            if c.fdepth is not None: A(f"s_waitcnt vmcnt({c.fdepth})")
    def fifo_put(first, n, reg0):
        if c.x_noput: return
        for b in range(n):
            sl = slot[("D", first + b)]
            for i in range(4): A(f"ds_write_b128 v{16+sl//8}, {v(reg0+16*b+4*i,4)} offset:{(sl%8)*BLK+1024*i}")
    daddr()
    A(f"""
    v_xor_b32 v4, v5, v7
    s_lshl_b32 s43, s36, 2
    v_xor_b32 v4, s43, v4
    v_mul_u32_u24 v3, 3584, v6
    v_lshl_add_u32 v{aW}, v4, 4, v3
    v_add_u32 v{aW+1}, {1*(8*3584-1024)}, v{aW}
    v_add_u32 v{aW+2}, {2*(8*3584-1024)}, v{aW}
    v_add_u32 v{aW+3}, {3*(8*3584-1024)}, v{aW}
    s_lshl_b32 s{eW}, s38, 8
    s_mul_i32 s{sW}, s38, {32*3584}
    s_add_u32 s{sW}, s{sW}, s{eW}
    s_add_u32 s{eW}, s{eW}, {14*32*3584}
    s_cmp_eq_u32 s36, 0
    s_cselect_b32 s20, s20, s22
    s_cselect_b32 s21, s21, s23
    """)
    srd(A, 52, 20, W_BYTES)
    A(f"""
    v_mov_b32 v20, 0
    v_mov_b32 v21, 0
    v_lshrrev_b32 v4, 4, v{vLane}
    v_mul_u32_u24 v4, {KP}, v4
    v_and_b32 v5, 15, v{vLane}
    v_lshl_add_u32 v4, v5, 2, v4
    s_lshl_b32 s43, s36, 15
    v_add_u32 v4, s43, v4
    s_mul_i32 s43, s36, {UPITCH}
    s_add_u32 s43, s43, {UO}
    v_lshl_add_u32 v3, v{vLane}, 3, s43
    """)
    A("s_waitcnt vmcnt(0)\ns_mov_b64 exec, 1\nglobal_store_dword v22, v23, s[30:31] sc0 sc1\ns_mov_b64 exec, -1")
    A(f"s_barrier\nds_write_b32 v4, v20 offset:{KB0}\nds_write_b64 v3, v[20:21]")
    if c.lf_at == 'B': fifo_load(14, 6, 24)
    A("s_waitcnt lgkmcnt(0)\ns_barrier")
    def dma(kind, idx, i):
        if kind == "F":
            if i == 0:
                A(f"s_cmp_ge_u32 s43, s44\ns_cselect_b32 s35, {14*128*896}, 0\ns_sub_u32 s43, s43, s35")
            A(f"buffer_load_dwordx4 {v(24+16*(idx-14)+4*i,4)}, v{aD+i}, s[60:63], s43 offen offset:{1024*i}")
            if i == 3: A(f"s_add_u32 s43, s43, {128*896}")
            return
        base_ = slot[(kind, idx)] * BLK
        a0, r0, s, e, step = {"W": (aW, 52, sW, eW, 32*3584), "D": (aD, 60, sD, eD, 128*896), "H": (4, 48, 40, 47, HS)}[kind]
        if i == 0:
            if idx == 14:
                A(f"s_add_u32 s{s}, s{s}, 128\ns_add_u32 s{e}, s{e}, 128")
            A(f"s_add_u32 m0, s32, {base_}\ns_add_u32 s33, s{s}, {step}")
        A(f"buffer_load_dwordx4 v{a0+i}, s[{r0}:{r0+3}], s{s} offen offset:{1024*i}{' sc1' if kind == 'H' else ''} lds")
        if i == 0: A(f"s_cmp_ge_u32 s33, s{e}\ns_cselect_b32 s34, {14*step}, 0")
        if i == 3: A(f"s_sub_u32 s{s}, s33, s34")
    if c.x_quietL: A('s_sleep 60')
    for x in issue[-2]: dma(*x)
    fifo_load(14, c.lf_c, 24)
    A(f"""
    v_lshrrev_b32 v2, 4, v{vLane}
    v_and_b32 v3, 15, v{vLane}
    v_lshlrev_b32 v4, 2, v2
    v_xor_b32 v4, v4, v3
    v_lshlrev_b32 v4, 4, v4
    v_and_b32 v3, 1, v2
    v_lshl_add_u32 v4, v3, 12, v4
    v_lshrrev_b32 v2, 1, v2
    v_lshl_add_u32 v4, v2, 14, v4
    v_add_u32 v5, {1*(32768-1024)}, v4
    v_add_u32 v6, {2*(32768-1024)}, v4
    v_add_u32 v7, {3*(32768-1024)}, v4
    s_lshl_b32 s47, s39, 8
    s_lshl_b32 s43, s36, 17
    s_add_u32 s47, s47, s43
    s_add_u32 s40, s38, {c.h0}
    s_cmp_ge_u32 s40, 14
    s_cselect_b32 s43, 14, 0
    s_sub_u32 s40, s40, s43
    s_lshl_b32 s40, s40, 18
    s_add_u32 s40, s40, s47
    s_add_u32 s47, s47, {14*HS}
    """)
    srd(A, 48, 30, XG_BYTES, WS_XG)
    PA.stamp(4)
    A("s_barrier")
    fifo_load(14 + c.lf_c, c.lf_d, 24 + 16 * c.lf_c)
    assert c.nlf == 6
    A("s_barrier")
    for x in issue[-1]: dma(*x)
    if c.nlf > 6: fifo_load(20 - c.nlf, c.nlf - 6, 120)
    A(f"s_waitcnt vmcnt({len(issue[-1]) + 4 * (c.lf_c + c.lf_d)})\ns_barrier")
    for i in range(0, 29):
        for x in issue[i]: dma(*x)
        if i == 3: A(f"s_waitcnt vmcnt({sum(len(issue[k]) for k in range(4))})")
        if wait[i] is not None: A(f"s_waitcnt vmcnt({min(63, wait[i])})")
        A("s_barrier")
    if c.nlf > 6: fifo_put(20 - c.nlf, c.nlf - 6, 120)
    if c.xe:
        A("s_barrier")
        fifo_put(14, 3, 24)
        A("s_barrier")
        fifo_put(17, 3, 72)
    elif c.auxpoll:
        assert c.yb_at <= 26 and c.nlf == 6
        fifo_put(14, 6, 24)
        A("s_barrier")
        poll_issue(PB_, 640); poll_wait(PB_, 640, True)
        if c.touch & 2: A("global_load_dword v2, v19, s[30:31] offset:1024 sc1\ns_barrier")
    else:
        assert c.yb_at <= 26
        fifo_put(14, c.put_0, 24)
        A(f"s_waitcnt lgkmcnt({min(15, 4 * c.put_0)})\ns_barrier")
        fifo_put(14 + c.put_0, c.put_l, 24 + 16 * c.put_0)
        A("s_barrier")
        fifo_put(14 + c.put_0 + c.put_l, 6 - c.put_0 - c.put_l, 24 + 16 * (c.put_0 + c.put_l))
    A("s_waitcnt lgkmcnt(0)")
    if c.phase == 1: Prof(A, 3).flush(5)
    A("s_endpgm")
    A(f".p2align 3\n{auxs}:")
    PA.stamp(1)
    a0 = 90
    A(f"s_mov_b32 s42, 0x3f803f80\nv_and_b32 v4, 56, v{vLane}\ns_lshl_b32 s46, s47, 6\nv_add_u32 v4, s46, v4\nv_mov_b32 v2, {TAGA}")
    A("s_waitcnt lgkmcnt(0)\ns_add_u32 s57, s56, 1\ns_and_b32 s57, s57, 0xffff\ns_or_b32 s57, s57, 0x7f810000\ns_mov_b32 s45, 0")
    for i in range(28):
        z = i < 2
        if i % 4 == 0: A(f"s_waitcnt vmcnt({6-i//4})")
        if i == 4: PA.stamp(2)
        if i == 24: A("ds_read_b64 v[6:7], v2")
        A(f"v_dot2_f32_bf16 v{a0+(i&1)}, v{vRow+i}, s42, {'0' if z else 'v%d' % (a0+(i&1))}")
        A(f"v_dot2_f32_bf16 v{a0+2+(i&1)}, v{vRow+i}, v{vRow+i}, {'0' if z else 'v%d' % (a0+2+(i&1))}")
    A(f"v_add_f32 v{a0}, v{a0}, v{a0+1}\nv_add_f32 v{a0+2}, v{a0+2}, v{a0+3}")
    for op in ("quad_perm:[1,0,3,2]", "quad_perm:[2,3,0,1]", "row_half_mirror"):
        A(f"v_add_f32_dpp v{a0}, v{a0}, v{a0} {op}{DPP}\nv_add_f32_dpp v{a0+2}, v{a0+2}, v{a0+2} {op}{DPP}")
    A(f"""
    v_mul_f32 v{a0}, {f32(1.0/448)}, v{a0}
    v_mul_f32 v{a0+2}, {f32(1.0/448)}, v{a0+2}
    v_fma_f32 v{a0+2}, -v{a0}, v{a0}, v{a0+2}
    v_max_f32 v{a0+2}, 0, v{a0+2}
    v_cvt_pk_bf16_f32 v{a0+2}, v{a0+2}, v{a0+2}
    v_and_b32 v{a0+2}, s43, v{a0+2}
    v_add_f32 v{a0+2}, {f32(1e-5)}, v{a0+2}
    v_cvt_pk_bf16_f32 v{a0+2}, v{a0+2}, v{a0+2}
    v_and_b32 v{a0+2}, s43, v{a0+2}
    v_sqrt_f32 v{a0+2}, v{a0+2}
    v_mov_b32 v{a0+1}, s57
    v_cvt_pk_bf16_f32 v{a0}, v{a0}, v{a0+2}
    s_cmp_ge_u32 s2, 224
    s_cbranch_scc1 Ltg2
    Ltg:
    s_waitcnt lgkmcnt(0)
    v_xor_b32 v6, s57, v6
    v_xor_b32 v7, s57, v7
    v_or_b32 v6, v6, v7
    v_cmp_ne_u32 vcc, 0, v6
    s_cbranch_vccz Ltg2
    ds_read_b64 v[6:7], v2
    s_add_u32 s45, s45, 1
    s_cmp_lt_u32 s45, {SPIN}
    s_cbranch_scc1 Ltg
    Ltg2:
    s_mov_b32 exec_lo, 0x01010101
    s_mov_b32 exec_hi, 0x01010101
    global_store_dwordx2 v4, {v(a0,2)}, s[30:31] sc0 sc1
    s_mov_b64 exec, -1
    """)
    PA.stamp(3)
    if base.PROF and c.phase == 1:
        A(f"s_branch {hold}x\n{hold}:")
        for k in (1, 2, 3): PA.stamp(k)
        A(f"{hold}x:")
    else: A(f"{hold}:")
    A(f"s_setprio 0\ns_barrier\ns_cmp_ge_u32 s2, 224\ns_cbranch_scc1 {end}")
    daddr()
    sH, eH, sV = 40, 41, 47
    VR = 20
    A(f"""
    v_lshrrev_b32 v6, 4, v{vLane}
    v_and_b32 v7, 15, v{vLane}
    v_lshlrev_b32 v5, 2, v6
    v_xor_b32 v5, v5, v7
    v_lshlrev_b32 v5, 4, v5
    v_and_b32 v7, 1, v6
    v_lshl_add_u32 v5, v7, 12, v5
    v_lshrrev_b32 v6, 1, v6
    v_lshl_add_u32 v{aH}, v6, 14, v5
    v_add_u32 v{aH+1}, {1*(32768-1024)}, v{aH}
    v_add_u32 v{aH+2}, {2*(32768-1024)}, v{aH}
    v_add_u32 v{aH+3}, {3*(32768-1024)}, v{aH}
    s_lshl_b32 s{eH}, s39, 8
    s_lshl_b32 s43, s36, 17
    s_add_u32 s{eH}, s{eH}, s43
    s_lshl_b32 s{sH}, s38, 18
    s_add_u32 s{sH}, s{sH}, s{eH}
    s_add_u32 s{eH}, s{eH}, {14*HS}
    s_mov_b32 s56, 0x7f810000
    s_mov_b32 s{sV}, s{sH}
    """)
    srd(A, 48, 30, XG_BYTES, WS_XG)
    def wtouch():
        A(f"s_lshl_b32 s43, s2, 1\ns_add_u32 s43, s43, s36\ns_mul_i32 s43, s43, {28*128}\nv_min_u32 v2, 27, v{vLane}\nv_lshl_add_u32 v2, v2, 7, s43")
        for k in range(3):
            if c.wtouch >> k & 1: A(f"global_load_dword v{36+k}, v2, s[{20+2*k}:{21+2*k}]")
    if c.wt_at == 'A': wtouch()
    A("s_barrier")
    if c.wt_at == 'B': wtouch()
    if c.hf_at == 'B':
        fifo_load(20, 3, 40)
    A("s_barrier")
    if c.wt_at == 'C': wtouch()
    if c.hf_at == 'B': fifo_load(23, 5, 88)
    elif c.hf_at == 'C': fifo_load(20, 8, 40)
    else: fifo_load(20, c.hf_c, 40)
    PA.stamp(4)
    A(f"s_barrier\ns_barrier\ns_setprio {c.hprio}")
    def hblock(s, m0expr):
        A(f"s_add_u32 m0, {m0expr}\ns_add_u32 s33, s{s}, {HS}")
        for i in range(4):
            A(f"buffer_load_dwordx4 v{aH+i}, s[48:51], s{s} offen offset:{1024*i} sc1 lds")
            if i == 0: A(f"s_cmp_ge_u32 s33, s{eH}\ns_cselect_b32 s34, {14*HS}, 0")
        A(f"s_sub_u32 s{s}, s33, s34")
    nH = [0]
    def hissue(k):
        for _ in range(k):
            if nH[0] < 14:
                hblock(sH, f"s32, {slot[('H', nH[0])]*BLK}"); nH[0] += 1
    def vread(b):
        if b < nH[0]: A(f"s_waitcnt vmcnt({4*(nH[0]-1-b)})")
        for i in range(4): A(f"ds_read_b128 {v(VR+4*i,4)}, v{16+b//8} offset:{(slot[('H', b)]%8)*BLK+1024*i}")
    def vcheck(b):
        ck = A.label("hv"); ok = A.label("hok"); rp = A.label("hrp")
        last = b + 1 if c.rep_one else max(nH[0], b + 1)
        if c.w8 and b < 12: last = min(last, 12)
        sb = slot[('H', b)]
        A(f"""
        s_mov_b32 s45, 0
        {ck}:
        s_waitcnt lgkmcnt(0)
        v_max3_i32 v2, v{VR+1}, v{VR+3}, v{VR+5}
        v_max3_i32 v3, v{VR+7}, v{VR+9}, v{VR+11}
        v_max3_i32 v2, v2, v{VR+13}, v{VR+15}
        v_max_i32 v2, v2, v3
        v_cmp_le_i32 vcc, s56, v2
        {"s_cmp_eq_u32 s45, 0" if c.x_force else ""}
        {f"s_cbranch_scc1 {rp}f" if c.x_force else ""}
        s_cbranch_vccnz {rp}f
        """)
        cx = Cold(); cx.__enter__()
        A(f"""
        {rp}f:
        {f"s_sleep {c.backoff}" if c.backoff else ""}
        s_add_u32 s45, s45, 1
        s_cmp_ge_u32 s45, {SPIN}
        s_cbranch_scc1 {ok}
        s_mov_b32 s43, s{sV}
        s_add_u32 s44, s32, {sb*BLK}
        s_add_u32 s35, s32, {(sb+last-b)*BLK}
        {rp}:
        """)
        hblock(43, "s44, 0")
        A(f"s_add_u32 s44, s44, {BLK}\ns_cmp_lt_u32 s44, s35\ns_cbranch_scc1 {rp}\ns_waitcnt vmcnt({4*(last-1-b) if last == nH[0] else 0})")
        for i in range(4): A(f"ds_read_b128 {v(VR+4*i,4)}, v{16+b//8} offset:{(sb%8)*BLK+1024*i}")
        A(f"s_branch {ck}")
        cx.__exit__()
        A(f"{ok}:\ns_add_u32 s{sV}, s{sV}, {HS}\ns_cmp_ge_u32 s{sV}, s{eH}\ns_cselect_b32 s34, {14*HS}, 0\ns_sub_u32 s{sV}, s{sV}, s34")
    if c.probe:
        hissue(c.probe); vread(0); vcheck(0)
        if c.fast0: A("s_barrier")
        hissue(c.h0 - c.probe); vread(1)
    else:
        hissue(c.h0); vread(0); vcheck(0); vread(1)
    if not c.fast0: A("s_barrier")
    hs = [0] * 14 if c.hl else list(c.hiss) + [1] * 14
    for i in range(0, 13):
        vcheck(i + 1)
        k = hs.pop(0)
        assert i >= 3 or nH[0] + k <= 12
        if i + 2 < 14:
            if nH[0] - (i + 2) < c.hnear: hissue(k); k = 0
            vread(i + 2)
        hissue(k)
        kf = c.hf_c + i - c.hf_p
        if c.hf_at == 'P' and c.hf_c <= kf < 8: fifo_load(20 + kf, 1, 40 + 16 * kf)
        A("s_barrier")
    if c.hf_at == 'P':
        kf = max(c.hf_c, c.hf_c + 13 - c.hf_p)
        if kf < 8: fifo_load(20 + kf, 8 - kf, 40 + 16 * kf)
    assert nH[0] == 14 or c.hl
    A("s_setprio 0\nv_mov_b32 v2, 0")
    for i in range(13, 29 + (2 if c.xe else 0 if c.auxpoll else 1)):
        if i in c.cs2:
            sk = A.label("cs2")
            A(f"s_cmp_lg_u32 s36, 0\ns_cbranch_scc1 {sk}")
            ld = "global_load_dword v3, v2, s[28:29] offset:128 sc1"
            if i == c.cs2[0]: A(ld)
            else: A(f"s_mov_b32 s45, 0\n{sk}p:\ns_waitcnt vmcnt(0)\nv_cmp_gt_u32 vcc, 32, v3\ns_cbranch_vccz {sk}\ns_sleep {c.cs_back}\n{ld}\ns_add_u32 s45, s45, 1\ns_cmp_lt_u32 s45, {SPIN}\ns_cbranch_scc1 {sk}p")
            A(f"{sk}:")
        A("s_barrier")
    A("s_waitcnt vmcnt(0)")
    if c.auxpoll:
        if c.psleep: A(f"s_sleep {c.psleep}")
        poll_issue(PA_, 512); poll_wait(PA_, 512, True)
        if c.touch & 1: A("global_load_dword v2, v19, s[30:31] sc1")
        A("s_barrier")
        fifo_put(20, c.put_a, 40)
        A("s_barrier")
        fifo_put(20 + c.put_a, 8 - c.put_a, 40 + 16 * c.put_a)
    else:
        fifo_put(20, c.put_a, 40)
        A("s_barrier")
        fifo_put(20 + c.put_a, 8 - c.put_a, 40 + 16 * c.put_a)
    A("s_waitcnt lgkmcnt(0)")
    if c.phase == 1: Prof(A, 3).flush(5)
    A(f"{end}:\ns_endpgm")
    A.L.extend(cold)
    A(f".p2align 3\n{hlp}:")
    if c.phase == 0: base.PROF = False
    gen_helper(A, c, Prof(A, 4))
    def rnd(l):
        u = np.float32(max(l, 0)).view(np.uint32)
        u = (int(u) + 0x7FFF + ((int(u) >> 16) & 1)) & 0xFFFF0000
        return int(np.uint32(u).view(np.float32))
    ad = [[(rnd(8 * b - 3 + r) & 7) * TP + (rnd(8 * b - 3 + r) >> 3) * 4 for r in range(12)] for b in range(256)]
    A(f".p2align 7\n.type {tab},@object\n{tab}:")
    for b in range(256): A(".long " + ", ".join("0x%08x" % (ad[b][2*k] | ad[b][2*k+1] << 16) for k in range(4)))
    for b in range(256): A(".long " + ", ".join("0x%08x" % (ad[b][2*k] | ad[b][2*k+1] << 16) for k in range(4, 6)))
    A(f".size {tab}, {256*24}")
    return kernel_desc(name, 168, 102)
```

```python
from base import *
import base
from ka import load_ptrs, cmul, cexp
import numpy as np
WS_E = 0x4000
WS_PZ = 0x5000
WS_XG = 0xA01000
XG_BYTES = 224 * 16384
REG = 16384
TP, GP = 1056, 272
KP = 4160
KB0 = 8704
UO, UPITCH = 74240, 4608
PARO = 98304
XT = 140288
TAGA = XT + 8192
BLK = 8192
NSL = 20
CON = 19 * BLK
F_LDS = NSL * BLK
GK0 = -2.0 * LOG2E * 0.7978845608028654
GK1 = GK0 * 0.044715
SPIN = 1 << 18
HS = 16 * 16384

class Cfg:
    code_bytes = 49152
    prio_mid = 26
    poll_late = 0
    e1_first, e1_last = 15, 21
    e1_packed = False
    drain0 = (21, 25)
    pollA, chkA = 24, 27
    earlyT = (4, 1)
    poll0 = 28
    ya_at, yb_at = 17, 24
    put_a = 3
    pace1, pace2, pace = 2, 1, {}
    pa_early = False
    g_pre = 0
    tdepth, tdepth2 = 22, 16
    gate_ahead = {14: 14, 28: 4, 42: 12}
    pollT1 = (20, 28)
    capP = 8
    caps = {}
    gat_issue, gat_check = 8, 10
    con_write = 12
    il = 2
    stflag = 'sc0 sc1'
    prioB = 2
    h0 = 5
    hiss = (1, 2, 1, 1, 1, 1, 1)
    ca_load = 11
    cs_issue = 7
    hdepth = 1
    fdepth = None
    x_delay = 0
    x_force = False
    backoff = 4
    rep_one = False
    x_nocs = False
    sweepW = False
    sweepD = False
    hramp = 0
    xp_chk = False
    npk = True
    lfifo = (8, 14)
    hprio = 3
    pz_sleep = 4
    hnear = 3
    lf_at = 'C'
    hf_at = 'P'
    poi_at = '0'
    wide_h = True
    xp_at = 0
    gat_split = (3, 4)
    x_nogat = False
    cprio = 3
    nprio = 2
    auxprio = 3
    x_nopre = False
    emode = 0
    csort = True
    probe = 1
    x_quietN = False
    x_quietL = False
    cmin = 5
    cmerge = (0, 2, 4, 6)
    w8 = False
    nlf = 6
    outflag = ''
    hl = True
    x_pad = 0
    wsoff = 0
    hf_c = 4
    hf_p = 10
    xmask = True
    auxpoll = False
    sig_early = False
    psleep = 0
    tpost = True
    cs_back = 16
    wtouch = 0
    wt_at = 'A'
    hseq = True
    hbar2 = False
    fast0 = False
    fin_ov = 3
    nstage = True
    x16 = ''
    e2pk = 4
    xe_at = 4
    ptouch = True
    stouch = 0
    sgran = 21
    pt2 = False
    dlate = False
    tdep0 = 8
    corr_at = 27
    lf_c = 3
    lf_d = 0
    lf_i = (7, 12, 13, 14, 27, 28)
    touch = 0
    x_noput = False
    x_notl = False
    selfrd = False
    sweepU = 3
    hsleep = 0
    cs2 = (17, 20)
    hwait = None
    x_nocp = False
    warm = True
    npg = 5
    stcost = 8
    xe = True
    x_cnt = False
    put_0, put_l = 6, 0
    x_fine = None
    phase = 1

def schedule(c):
    need = {("W", s): s for s in range(28)}
    last_use = {("W", s): s + 1 for s in range(28)}
    for t in range(28): last_use[("D", t)] = 1000
    hslot = [sl + (2 if c.w8 and sl >= 12 else 0) for sl in range(14)]
    w0 = 12 if c.w8 else 14
    free_at = {sl: (16 + sl if sl < w0 else -2 if sl >= 14 else -1) for sl in range(NSL)}
    slot = {("H", k): hslot[k] for k in range(14)}
    issue = {i: [] for i in range(-2, 29)}
    n = dict(W=0, D=0, H=c.h0 if c.hl else 14)
    for k in range(n["H"], 14): need[("H", k)] = k - 2; last_use[("H", k)] = 15 + k
    nd = 20 - c.nlf
    cur = None
    def pick(i):
        nW, nD = n["W"], n["D"]
        wf = [sl for sl in range(w0, NSL) if free_at[sl] <= i and (sl != 19 or i >= 15 or nW + 1 < c.con_write)]
        canH = n["H"] < 14 and i >= 0 and (not c.w8 or n["H"] < 12 or i >= n["H"] - 10)
        if canH and (n["H"] - 2 <= nW or not wf): return ("H", n["H"]), hslot[n["H"]]
        if nW < 28 and wf: return ("W", nW), wf[0]
        fr = [sl for sl in range(NSL) if free_at[sl] <= i and (sl < w0 or nW == 28)]
        if fr and nD < nd: return ("D", nD), fr[0]
        return None
    for i in range(-2, 29):
        cap = 24 if i < 0 else c.caps.get(i, c.capP)
        while cap > 0:
            if cur is None:
                p = pick(i)
                if p is None: break
                b, sl = p
                slot[b] = sl; free_at[sl] = last_use[b] + 1; n[b[0]] += 1
                if c.w8 and b in (("W", 0), ("W", 1)): free_at[sl] = 28 + b[1]
                cur = [b, 0]
            issue[i].append((cur[0][0], cur[0][1], cur[1])); cur[1] += 1; cap -= 1
            if cur[1] == 4: cur = None
    assert n["D"] == nd and cur is None
    rest = sorted((sl for sl in range(NSL) if free_at[sl] < 1000), key=lambda sl: free_at[sl])
    assert len(rest) == c.nlf
    for k, sl in enumerate(rest): slot[("D", nd + k)] = sl
    for t in range(20, 28): slot[("D", t)] = slot[("D", t - 20)]
    for k in range(c.lf_c + c.lf_d, 6): issue[c.lf_i[k - c.lf_c - c.lf_d]] += [("F", 14 + k, q) for q in range(4)]
    order = [b for i in range(0, 29) for b in issue[i]]
    pos = {b: k for k, b in enumerate(order)}
    wait = {}
    cnt = 0
    for i in range(0, 29):
        cnt += len(issue[i])
        req = [b for b in need if need[b] == i + 1 and b + (3,) in pos]
        wait[i] = None if not req else cnt - 1 - max(pos[b + (3,)] for b in req)
        if i == 28: wait[i] = 0
        assert wait[i] is None or wait[i] >= 0, (i, req)
    return issue, slot, wait

def wsadd(c): return f"s_add_u32 s30, s30, {c.wsoff}\ns_addc_u32 s31, s31, 0" if c.wsoff else ""

def gen_helper(A, c, P):
    A(f"""
    s_cmp_eq_u32 s36, 9
    s_cbranch_scc1 Lhe
    s_sub_u32 s44, s2, 224
    s_lshr_b32 s45, s44, 3
    s_bfe_u32 s46, s44, 0x20001
    s_lshl_b32 s46, s46, 2
    s_add_u32 s46, s46, s45
    s_and_b32 s44, s44, 1
    s_cmp_ge_u32 s46, 14
    s_cselect_b32 s47, 2, 0
    s_sub_u32 s46, s46, s47
    v_and_b32 v1, 7, v0
    v_lshrrev_b32 v2, 3, v0
    v_mul_u32_u24 v2, 3584, v2
    v_lshl_add_u32 v2, v1, 4, v2
    s_cmp_ge_u32 s46, 7
    s_cselect_b32 s47, 7, 0
    s_waitcnt lgkmcnt(0)
    s_cselect_b32 s48, s22, s20
    s_cselect_b32 s49, s23, s21
    {wsadd(c)}
    s_sub_u32 s46, s46, s47
    s_mul_i32 s50, s44, 7
    s_add_u32 s46, s46, s50
    s_lshl_b32 s47, s47, 1
    s_add_u32 s52, s46, s47
    s_lshl_b32 s55, s46, 8
    s_mov_b32 s50, {W_BYTES}
    s_mov_b32 s51, 0x20000
    s_lshr_b32 s54, s52, 1
    s_mul_i32 s54, s54, {128*896}
    s_and_b32 s53, s52, 1
    s_lshl_b32 s53, s53, 3
    s_add_u32 s53, s53, s36
    s_mul_i32 s53, s53, {28*128}
    s_add_u32 s54, s54, s53
    s_add_u32 s54, s54, {64*896}
    v_and_b32 v3, 63, v0
    v_min_u32 v3, 27, v3
    v_lshl_add_u32 v3, v3, 7, s54
    v_lshrrev_b32 v12, 6, v0
    v_lshlrev_b32 v12, 8, v12
    v_lshl_add_u32 v12, v1, 5, v12
    v_and_b32 v14, 63, v0
    v_lshlrev_b32 v13, 2, v14
    s_lshl_b32 s46, s52, 10
    s_add_u32 s46, s46, {WS_CS}
    v_lshl_add_u32 v14, v14, 3, s46
    s_mov_b32 s42, 0x00003f80
    s_mov_b32 s43, 0x3f800000
    s_mov_b32 s41, 0xffff0000
    s_mov_b32 s56, 0
    """)
    if c.hsleep: A(f"s_sleep {c.hsleep}")
    A("s_barrier")
    if c.hbar2: A("s_barrier")
    A("s_cmp_eq_u32 s36, 8\ns_cbranch_scc1 Lhf")
    for h in range(2):
        A(f"s_mov_b32 s47, s55")
        for p in range(7):
            A(f"buffer_load_dwordx4 {v(40+28*h+4*p,4)}, v2, s[48:51], s47 offen offset:{128*h}")
            if p < 6: A("s_add_u32 s47, s47, %d" % (64 * 3584))
        if not c.wtouch & 4: A(f"global_load_dword v{100+h}, v3, s[24:25]")
        if h == 0:
            A(f"v_subrev_u32 v3, {64*896}, v3")
            if c.hseq: A("s_waitcnt vmcnt(3)")
    A(f"s_waitcnt vmcnt({7 if c.wtouch & 4 else 9})\nLhl:")
    for p in range(7):
        for q in range(4):
            for hl in range(2):
                acc = 4 + 2 * q + hl
                A(f"v_dot2_f32_bf16 v{acc}, v{40+4*p+q}, s{42+hl}, {'0' if p == 0 else 'v%d' % acc}")
    for q in range(8): A(f"v_add_f32_dpp v{4+q}, v{4+q}, v{4+q} row_ror:8{DPP}")
    for op in ("v_permlane16_swap_b32", "v_permlane32_swap_b32"):
        for q in range(8): A(f"v_mov_b32 v{16+q}, v{4+q}")
        for q in range(8): A(f"{op} v{4+q}, v{16+q}")
        for q in range(8): A(f"v_add_f32 v{4+q}, v{4+q}, v{16+q}")
    A(f"""
    s_mov_b64 exec, 0xff
    ds_write_b128 v12, v[4:7]
    ds_write_b128 v12, v[8:11] offset:16
    s_mov_b64 exec, -1
    s_waitcnt lgkmcnt(0)
    s_barrier
    s_cmp_lg_u32 s56, 0
    s_cbranch_scc1 Lhe
    s_mov_b32 s56, 1
    v_add_u32 v12, 2048, v12
    s_waitcnt vmcnt({0 if c.wtouch & 4 else 1})
    """)
    for k in range(28): A(f"v_mov_b32 v{40+k}, v{68+k}")
    A(f"""
    s_branch Lhl
    Lhf:
    s_barrier
    ds_read2st64_b32 v[4:5], v13 offset0:0 offset1:1
    ds_read2st64_b32 v[6:7], v13 offset0:2 offset1:3
    ds_read2st64_b32 v[8:9], v13 offset0:4 offset1:5
    ds_read2st64_b32 v[10:11], v13 offset0:6 offset1:7
    s_waitcnt lgkmcnt(0)
    v_pk_add_f32 v[4:5], v[4:5], v[6:7]
    v_pk_add_f32 v[8:9], v[8:9], v[10:11]
    v_pk_add_f32 v[4:5], v[4:5], v[8:9]
    v_add_f32 v4, v4, v5
    v_cvt_pk_bf16_f32 v5, v4, v4
    v_and_b32 v5, s41, v5
    v_sub_f32 v6, v4, v5
    v_cvt_pk_bf16_f32 v8, v5, v6
    v_and_b32 v7, s41, v8
    v_sub_f32 v6, v6, v7
    v_cvt_pk_bf16_f32 v9, v6, 0
    global_store_dwordx2 v14, v[8:9], s[30:31] sc0 sc1
    s_mov_b32 s46, 1
    s_waitcnt vmcnt(0)
    s_atomic_add s46, s[28:29], s56
    v_add_u32 v14, 512, v14
    v_add_u32 v13, 2048, v13
    s_add_u32 s56, s56, 128
    """)
    if base.PROF: A("s_mov_b32 s74, s76\ns_memrealtime s[76:77]")
    A("s_waitcnt lgkmcnt(0)\ns_cmp_lt_u32 s56, 256\ns_cbranch_scc1 Lhf")
    P.flush(3)
    A("Lhe:\ns_endpgm")

def gen(A, name, c=Cfg, verbose=False):
    issue, slot, wait = schedule(c)
    if verbose:
        for i in range(-2, 29): print(i, ' '.join(k + str(j) + '.' + str(q) for k, j, q in issue[i]), wait.get(i))
        print({k: x for k, x in slot.items() if k[0] == "D"})
    kernel_head(A, name)
    end = A.label("end"); hlp = A.label("hlp"); kw_ = A.label("kw"); nw = A.label("nw"); tab = A.label("tab")
    auxt = A.label("auxt"); auxs = A.label("auxs"); til = A.label("til"); hold = A.label("hold")
    P0 = Prof(A, 1)
    class PH:
        def __init__(s, ph, kid=1): s.on = c.phase == ph; s.P = Prof(A, kid)
        def stamp(s, i):
            if s.on: s.P.stamp(i)
    P = PH(1); PA = PH(1, 3)
    class Bars:
        def __init__(s, marks, n1, kid=1): s.n = 0; s.marks = c.x_fine or marks; s.on = c.phase == 2; s.n1 = n1; s.P = Prof(A, kid)
        def bar(s):
            A("s_barrier")
            if s.on and s.n in s.marks: s.P.stamp(1 + s.marks.index(s.n))
            s.n += 1
        def mark(s, k):
            if s.on and not c.x_fine: s.P.stamp(1 + len(s.marks) + k)
        def fin(s, k=0):
            if c.phase == 0:
                if s.n1 == 13: s.P.flush(1)
                return
            if not s.on: s.P.flush(s.n1); return
            k = 0 if c.x_fine else k
            s.P.stamp(1 + len(s.marks) + k); s.P.flush(2 + len(s.marks) + k)
    cold = []
    class Cold:
        def __enter__(s): s.keep = A.L; A.L = []
        def __exit__(s, *a): cold.extend(A.L); A.L = s.keep
    wst = []
    def target(lab):
        wst.append(lab)
        A(f".p2align 6\n{lab}w:\ns_setpc_b64 s[96:97]\ns_nop 0\n{lab}:")
    A(f"s_cmp_ge_u32 s2, 256\ns_cbranch_scc1 {end}")
    P0.stamp(0)
    load_ptrs(A)
    A(f"s_getpc_b64 s[60:61]\nLpc:")
    vLane, vG, vJ = 1, 2, 3
    per = (c.code_bytes // 128 + 63) // 64
    vRow, vXG = 16, 48
    ffn_ids = """
    s_and_b32 s37, s2, 7
    s_lshr_b32 s38, s2, 3
    s_and_b32 s40, s38, 3
    s_lshr_b32 s39, s37, 1
    s_lshl_b32 s39, s39, 2
    s_add_u32 s39, s39, s40
    s_and_b32 s34, s37, 1
    s_lshr_b32 s35, s38, 2
    s_mul_i32 s38, s34, 7
    s_add_u32 s38, s38, s35
    s_mul_i32 s33, s40, 3
    s_lshl_b32 s37, s35, 1
    s_add_u32 s33, s33, s37
    s_cmp_ge_u32 s33, 14
    s_cselect_b32 s37, 14, 0
    s_sub_u32 s33, s33, s37
    """
    A(f"""
    v_lshrrev_b32 v4, 6, v0
    v_and_b32 v{vLane}, 63, v0
    s_and_b32 s37, s2, 7
    v_readfirstlane_b32 s36, v4
    s_mul_i32 s37, s37, 28
    s_lshr_b32 s38, s2, 3
    s_add_u32 s37, s37, s38
    s_mov_b32 s43, 0xffff0000
    s_cmp_lt_u32 s36, 8
    s_cbranch_scc1 {kw_}
    s_setprio {c.auxprio}
    v_lshrrev_b32 v5, 3, v{vLane}
    v_and_b32 v6, 7, v{vLane}
    v_mul_u32_u24 v7, 896, v5
    s_cmp_lt_u32 s36, 10
    s_cbranch_scc1 {til}
    s_and_b32 s36, s36, 1
    s_lshr_b32 s62, s2, 2
    s_and_b32 s62, s62, 62
    s_add_u32 s62, s62, s36
    s_mul_i32 s62, s62, {per*128}
    v_min_u32 v10, {per-1}, v{vLane}
    v_lshl_add_u32 v10, v10, 7, s62
    v_min_u32 v10, Lcode_end-Lpc-4, v10
    global_load_dword v99, v10, s[60:61]
    s_and_b32 s47, s2, 7
    s_lshl_b32 s47, s47, 5
    s_add_u32 s47, s47, s38
    s_mul_i32 s48, s47, {8*896}
    v_lshl_add_u32 v8, v6, 4, v7
    v_add_u32 v8, s48, v8
    s_waitcnt lgkmcnt(0)
    {wsadd(c)}
    s_cmp_eq_u32 s36, 1
    s_cbranch_scc1 {hold}t
    s_load_dword s56, s[30:31], {WS_E}
    """)
    for i in range(7): A(f"global_load_dwordx4 {v(vRow+4*i,4)}, v8, s[4:5] offset:{128*i}")
    A(f"""
    s_branch {auxs}
    {til}:
    s_cmp_ge_u32 s2, 224
    s_cbranch_scc1 {hlp}
    s_and_b32 s36, s36, 1
    s_mul_i32 s46, s37, 9363
    s_lshr_b32 s46, s46, 16
    s_mul_i32 s47, s46, 7
    s_sub_u32 s47, s37, s47
    s_lshl_b32 s46, s46, 1
    s_add_u32 s46, s46, s36
    s_mul_i32 s49, s46, {32*896}
    s_lshl_b32 s48, s47, 7
    s_add_u32 s49, s49, s48
    s_lshl_b32 s47, s47, 19
    s_lshl_b32 s46, s46, 8
    s_add_u32 s51, s47, s46
    s_lshl_b32 s46, s36, 12
    s_add_u32 s46, s46, {XT}
    s_mov_b32 m0, s46
    v_lshrrev_b32 v4, 1, v5
    v_xor_b32 v4, v4, v6
    v_lshl_add_u32 v12, v4, 4, v7
    v_xor_b32 v4, 4, v4
    v_lshl_add_u32 v13, v4, 4, v7
    v_add_u32 v13, {8*896-1024}, v13
    v_add_u32 v14, {16*896-2048}, v12
    v_add_u32 v15, {16*896-2048}, v13
    s_mov_b32 s34, {X_BYTES}
    s_mov_b32 s35, 0x20000
    s_waitcnt lgkmcnt(0)
    s_mov_b32 s32, s4
    s_mov_b32 s33, s5
    """)
    for i in range(4): A(f"buffer_load_dwordx4 v{12+i}, s[32:35], s49 offen offset:{1024*i} lds")
    A(f"{wsadd(c)}\ns_load_dword s57, s[30:31], {WS_E}")
    A(f"s_branch {auxt}\n{kw_}:\ns_cmp_ge_u32 s2, 224\ns_cbranch_scc1 {hlp}")
    vP, vDT = 8, 12
    a2, b2 = 14, 15
    w1, w256, w2, w512 = 16, 18, 20, 22
    tA, tB, tC = 24, 26, 28
    G, G2, Hh, W4, HT, CV = 30, 46, 62, 68, 70, 78
    vTB, vA, vBc, vRA = 88, 94, 95, 96
    A(f"""
    v_mov_b32 v{vP}, 0
    v_mov_b32 v{vP+1}, 0
    v_mov_b32 v{vP+2}, 0
    v_mov_b32 v{vP+3}, 0
    s_lshl_b32 s48, s37, 10
    v_lshl_add_u32 v4, v0, 1, s48
    s_lshl_b32 s48, s37, 2
    s_lshl_b32 s56, s36, 14
    s_mov_b32 m0, s56
    s_lshr_b32 s38, s36, 2
    s_add_u32 s62, s60, {tab}-Lpc+2048
    s_addc_u32 s63, s61, 0
    s_waitcnt lgkmcnt(0)
    s_load_dword s52, s[14:15], s48
    global_load_short_d16_hi v{vP}, v4, s[6:7]
    global_load_short_d16_hi v{vP+1}, v4, s[8:9]
    global_load_short_d16_hi v{vP+2}, v4, s[10:11]
    global_load_short_d16_hi v{vP+3}, v4, s[12:13]
    {'' if c.dlate else 's_load_dword s53, s[16:17], s48'}
    {wsadd(c)}
    """)
    P.stamp(1)
    A(f"""
    v_bfe_u32 v{vG}, v0, 5, 1
    v_and_b32 v{vJ}, 31, v0
    s_lshl_b32 s46, s36, 15
    v_mul_u32_u24 v4, {GP}, v{vJ}
    v_lshl_add_u32 v4, v{vG}, 4, v4
    v_add_u32 v{vRA}, s46, v4
    s_bfe_u32 s39, s36, 0x10001
    s_and_b32 s40, s36, 1
    s_lshl_b32 s48, s39, 15
    s_lshl_b32 s47, s40, 8
    s_add_u32 s48, s48, s47
    s_add_u32 s48, s48, {KB0+64-24}
    v_and_b32 v4, 3, v0
    v_sub_u32 v4, 3, v4
    v_mul_u32_u24 v4, {KP}, v4
    v_bfe_u32 v5, v0, 2, 2
    v_lshl_add_u32 v4, v5, 3, v4
    v_bfe_u32 v5, v0, 4, 2
    v_lshl_add_u32 v4, v5, 4, v4
    v_add_u32 v{vA}, s48, v4
    s_mul_i32 s48, s39, {UPITCH}
    s_sub_u32 s48, s48, s47
    s_add_u32 s48, s48, {UO+512+16-192}
    v_and_b32 v4, 15, v0
    v_lshlrev_b32 v4, 5, v4
    v_lshlrev_b32 v5, 4, v5
    v_sub_u32 v4, v4, v5
    v_add_u32 v{vBc}, s48, v4
    s_add_u32 s64, s30, {WS_XG}
    s_addc_u32 s65, s31, 0
    s_mov_b32 s66, {XG_BYTES}
    s_mov_b32 s67, 0x20000
    s_and_b32 s47, s36, 3
    s_lshl_b32 s47, s47, 12
    v_lshl_add_u32 v97, v{vLane}, 4, s47
    s_lshl_b32 s44, s37, 14
    s_mov_b32 s54, {f32(8.0)}
    s_mov_b32 s55, {f32(256.0)}
    s_lshl_b32 s46, s38, 4
    v_mov_b32 v{vDT}, {f32(LOG2E)}
    s_cmp_lt_u32 s36, 4
    s_cbranch_scc1 Lnoprio
    s_setprio 1
    Lnoprio:
    s_waitcnt lgkmcnt(0)
    s_lshr_b32 s52, s52, s46
    s_lshl_b32 s52, s52, 16
    v_mul_f32 v{vDT}, s52, v{vDT}
    v_exp_f32 v{vDT}, v{vDT}
    v_cvt_pk_bf16_f32 v{vDT}, v{vDT}, v{vDT}
    v_and_b32 v{vDT}, s43, v{vDT}
    v_add_f32 v6, v{vDT}, v{vDT}
    """)
    P.stamp(2)
    A(f"""
    s_waitcnt vmcnt(2)
    v_mul_f32 v4, {f32(LOG2E)}, v{vP}
    v_exp_f32 v4, v4
    v_mul_f32 v{b2}, v{vP+1}, v{vDT}
    v_cvt_pk_bf16_f32 v4, v4, v4
    v_and_b32 v4, s43, v4
    v_mul_f32 v{a2}, v4, v{vDT}
    v_mul_f32 v{b2}, 0.15915494, v{b2}
    v_mul_f32 v{a2}, {f32(-LOG2E)}, v{a2}
    """)
    P.stamp(3)
    nb_ = [0]
    vPX, vPS_, vPA = 100, 116, 97
    xp = [f"buffer_load_dwordx4 {v(vPX+4*q,4)}, v{vPA}, s[64:67], s44 offen offset:{1024*q} sc1" for q in range(4)]
    xp += [f"global_load_dwordx4 {v(vPS_+4*q,4)}, v{vPA}, s[30:31] offset:{1024*q} sc1" for q in range(4)]
    xord = [4, 5, 0, 1, 6, 7, 2, 3]
    def put(src, row, neg):
        r = CV + (nb_[0] & 7); nb_[0] += 1
        x = [f"v_cvt_pk_bf16_f32 v{r}, v{src}, {'-' if neg else ''}v{src+1}", f"ds_write_addtid_b32 v{r} offset:{row*GP}"]
        if nb_[0] == c.prio_mid: x[1] += "\ns_setprio 0"
        if nb_[0] == c.xp_at: x[1] += "\ns_cmp_lt_u32 s36, 4\ns_cbranch_scc1 Lnoxp\n" + "\n".join(xp) + "\nLnoxp:"
        return x
    def spread(puts, work):
        o = []
        while puts or work:
            p = puts.pop(0) if puts else None
            if p: o.append(p[0])
            if work: o += work.pop(0)
            if p: o.append(p[1])
        return o
    GR = 32
    for l in cexp(Hh, a2, b2, "s54", tA): A(l)
    A(f"v_mov_b32 v{CV+8}, 0x3f80\nds_write_addtid_b32 v{CV+8}")
    for l in cmul(Hh+2, Hh, Hh) + cmul(Hh+4, Hh+2, Hh) + cmul(W4, Hh+2, Hh+2): A(l)
    ex = merge(cexp(w1, a2, b2, None, tB), cexp(w256, a2, b2, "s55", tC))
    ex += ["s_waitcnt vmcnt(0)", f"v_mul_f32 v{G}, v{vP+2}, v6", f"v_mul_f32 v{G+1}, v{vP+3}, v6",
           "v_min_u32 v5, 255, v0\nv_lshlrev_b32 v6, 4, v5", "v_lshlrev_b32 v5, 3, v5",
           f"global_load_dwordx4 {v(vTB,4)}, v6, s[62:63] offset:-2048", f"global_load_dwordx2 {v(vTB+4,2)}, v5, s[62:63] offset:2048"]
    ex += cmul(w2, w1, w1) + cmul(G+2, G, w1) + cmul(w512, w256, w256)
    cur = [Hh, Hh+2, Hh+4, W4]; nxt = [HT, HT+2, HT+4, HT+6]; alt = [G2, G2+2, G2+4, G2+6]
    j = 1
    while j < 32:
        pend = [put(cur[r], j + r, False) for r in range(4) if j + r < 32]
        wk = [cmul(nxt[r], cur[r], W4) + [ex.pop(0) for _ in range(1) if ex] for r in range(4) if j + 4 + r < 32]
        if j + 4 >= 32: wk = [cmul(G+2*i, G+2*(i-2), w2) for i in range(2, 5)]
        for l in spread(pend, wk): A(l)
        cur, nxt = nxt, (alt if nxt[0] == HT else [HT, HT+2, HT+4, HT+6])
        j += 4
    assert not ex
    wk = [cmul(G+2*i, G+2*(i-2), w2) for i in range(5, 8)] + [cmul(G2+2*k, G+4*k, w256) for k in range(4)] + [cmul(G2+8, G, w512)]
    for l in spread([put(G+2*i, GR+i, True) for i in range(8)], wk): A(l)
    wk = [cmul(G2+10, G+8, w512), cmul(G2+12, G2, w512), cmul(G2+14, G2+4, w512), cmul(G, G2+8, w512), cmul(G+2, G2+12, w512), cmul(G+4, G, w512), cmul(G+6, G+2, w512), cmul(G+8, G+4, w512)]
    for l in spread([put(G2+2*i, GR+8+i, True) for i in range(8)], wk): A(l)
    for l in spread([put(G+2*i, GR+16+i, True) for i in range(5)], []): A(l)
    P.stamp(4)
    A(f"s_cmp_ge_u32 s36, 4\ns_cbranch_scc1 {nw}\ns_branch Lmw\n.p2align 12")
    target("Lmw")
    vACC, vEA, FR, TA_ = 8, 30, 100, 44
    tabprep = [f"s_lshl_b32 s46, s36, 15", f"v_lshl_add_u32 v4, v{vJ}, 2, s46", f"v_mul_u32_u24 v5, {4*TP}, v{vG}", "v_add_u32 v5, v5, v4", f"v_xor_b32 v7, 1, v{vG}"]
    tmin = []
    for b in range(4):
        o0 = 2 * b * TP + 128; o1 = 4 * (b & 1) * TP + 256 + 128 * (b >> 1)
        tabprep += [f"v_mul_u32_u24 v{TA_+b}, {abs(o1-o0)}, v{vG if o1 > o0 else 7}", f"v_add_u32 v{TA_+b}, v{TA_+b}, v4"]
        tmin.append(min(o0, o1))
    tabprep += [f"v_lshl_add_u32 v{TA_+4}, v{vG}, 9, v4", "s_waitcnt vmcnt(0)"]
    for r in range(11):
        tabprep += [f"v_and_b32 v{vEA+r}, 0xffff, v{vTB+(r>>1)}" if r % 2 == 0 else f"v_lshrrev_b32 v{vEA+r}, 16, v{vTB+(r>>1)}"]
    tabprep += ["v_cmp_ne_u32 s[44:45], 0, v0", f"v_lshlrev_b32 v6, 4, v0"]
    A("s_waitcnt lgkmcnt(0)\ns_barrier")
    P.stamp(5)
    def frd(n):
        b = FR + 8 * (n & 7); o = (n >> 3) * REG + 32 * (n & 7)
        return f"ds_read_b128 {v(b,4)}, v{vRA} offset:{GR*GP+o}\nds_read_b128 {v(b+4,4)}, v{vRA} offset:{o}"
    for n in range(6): A(frd(n))
    for n in range(16):
        b0 = FR + 8 * (n & 7)
        A(f"s_waitcnt lgkmcnt({2*min(5, 15-n)})\nv_mfma_f32_32x32x16_bf16 {v(vACC,16)}, {v(b0,4)}, {v(b0+4,4)}, {'0' if n == 0 else v(vACC,16)}")
        if n + 6 < 16: A(frd(n + 6))
        for l in tabprep[2*n:2*n+2]: A(l)
    assert len(tabprep) <= 32
    vW, vR, vO = 97, 98, 99
    A(f"""
    s_lshl_b32 s46, s36, 12
    s_add_u32 s46, s46, {PARO}
    v_lshl_add_u32 v{vW}, v{vLane}, 4, s46
    v_xor_b32 v{vR}, 0x1000, v{vW}
    s_lshl_b32 s46, s40, 10
    s_lshl_b32 s47, s39, 15
    s_add_u32 s47, s47, s46
    v_lshl_add_u32 v3, v{vLane}, 4, s47
    """)
    for b in range(4): A(f"ds_write_b32 v5, v{vACC+b} offset:{TP*b}")
    for b in range(4): A(f"ds_write_b32 v{TA_+b}, v{vACC+4+b} offset:{tmin[b]}")
    A(f"s_mov_b32 exec_hi, 1\nds_write_b32 v{TA_+4}, v{vACC+8} offset:512\ns_mov_b32 exec_hi, 0")
    for b in range(1, 4): A(f"ds_write_b32 v{TA_+4}, v{vACC+8+b} offset:{512+128*b}")
    A("s_mov_b32 exec_hi, -1\ns_waitcnt lgkmcnt(0)\ns_barrier")
    P.stamp(6)
    EV, CB = 100, 44
    for r in range(11): A(f"ds_read2st64_b32 {v(EV+2*r,2)}, v{vEA+r} offset0:0 offset1:128\nv_add_u32 v{vEA+r}, 0x10000, v{vEA+r}")
    for r in range(11): A(f"ds_read2st64_b32 {v(EV+22+2*r,2)}, v{vEA+r} offset0:0 offset1:128")
    for ch in range(2):
        E = EV + 22 * ch
        A(f"s_waitcnt lgkmcnt({11 if ch == 0 else 4})")
        for r in range(11): A(f"v_add_f32 v{E+2*r}, v{E+2*r}, v{E+2*r+1}")
        for r in range(3): A(f"v_cndmask_b32 v{E+2*r}, 0, v{E+2*r}, s[44:45]")
        for cp in range(4):
            b = CB + 16 * ch + 4 * cp
            for k in range(4):
                r0 = 3 - cp + 2 * k
                A(f"v_cvt_pk_bf16_f32 v{b+k}, v{E+2*r0}, v{E+2*r0+2}")
            A(f"ds_write_b128 v6, {v(b,4)} offset:{KB0+64+32768*ch+cp*KP}")
    P.stamp(7)
    A("s_waitcnt lgkmcnt(0)\ns_barrier")
    P.stamp(8)
    A(f"s_setprio {c.cprio}")
    AC = 8
    FBs = [40 + 8 * k for k in range(6)] + [100 + 8 * k for k in range(6)]
    def rd(Gi):
        r, n = Gi >> 3, Gi & 7
        b = FBs[Gi % 12]
        return [f"ds_read_b64 {v(b,2)}, v{vA} offset:{512*n+64*r}", f"ds_read_b64 {v(b+2,2)}, v{vA} offset:{512*n+64*r+8}",
                f"ds_read_b128 {v(b+4,4)}, v{vBc} offset:{512*n+64*(3-r)}"]
    def send(t): return f"s_mov_b64 exec, s[{48+2*(t&1)}:{49+2*(t&1)}]\nds_write_b128 v{vW}, {v(AC+4*t,4)} offset:{1024*(t>>1)}\ns_mov_b64 exec, -1"
    for Gi in range(4):
        for l in rd(Gi): A(l)
    A(f"""
    s_lshl_b32 s46, s37, 2
    s_add_u32 s46, s46, s39
    s_lshl_b32 s46, s46, 12
    s_lshl_b32 s47, s40, 9
    s_add_u32 s46, s46, s47
    s_add_u32 s46, s46, {WS_XG}
    v_and_b32 v4, 15, v0
    v_bfe_u32 v5, v0, 4, 2
    v_lshlrev_b32 v4, 5, v4
    v_lshrrev_b32 v6, 1, v5
    v_lshl_add_u32 v4, v6, 4, v4
    v_and_b32 v5, 1, v5
    v_lshl_add_u32 v4, v5, 10, v4
    v_add_u32 v{vO}, s46, v4
    """)
    started = set()
    def cm(r, a, b):
        t = a + b
        cc = v(AC + 4 * t, 4) if t in started else "0"
        started.add(t)
        return f"v_mfma_f32_16x16x32_bf16 {v(AC+4*t,4)}, {v(FBs[(8*r+a)%12],4)}, {v(FBs[(8*r+b)%12]+4,4)}, {cc}"
    def grp(n): return [(a, b) for a in range(n + 1) for b in range(n + 1) if max(a, b) == n and a + b <= 7]
    rq = []; nrd = 12; known = 0
    for Gi in range(28):
        r, n = Gi >> 3, Gi & 7
        rq += rd(Gi + 4)
        while nrd < 3 * (Gi + 1) + c.cmin: A(rq.pop(0)); nrd += 1
        if known < 3 * (Gi + 1):
            want = 3 * (Gi + 1)
            if n in c.cmerge and Gi > 3: want = min(want + 3, nrd - 3)
            A(f"s_waitcnt lgkmcnt({nrd - want})"); known = want
        for (a_, b_) in grp(n):
            A(cm(r, a_, b_))
            if rq: A(rq.pop(0)); nrd += 1
    for l in rq: A(l)
    PR, PP = 148, 116
    odd = A.label("odd"); jn = A.label("jn")
    A(f"s_cmp_eq_u32 s40, 1\ns_cbranch_scc1 {odd}")
    for par in range(2):
        if par:
            for _ in range(c.x_pad // 4): A("s_nop 0")
            target(odd)
        snd = [t for t in range(8) if t % 2 != par]
        def sw(t): return f"ds_write_b128 v{vW}, {v(AC+4*t,4)} offset:{1024*(t>>1)}"
        rest = [p for n in range(4, 8) for p in grp(n)]
        first = [p for p in rest if (p[0] + p[1]) % 2 != par]; last = [p for p in rest if (p[0] + p[1]) % 2 == par]
        A("s_waitcnt lgkmcnt(9)"); got = 4
        for k, p in enumerate(first):
            if max(p) > got: A(f"s_waitcnt lgkmcnt({2 if k > 3 else 3*(7-max(p)) + (1 if k > 1 else 0)})"); got = 7 if k > 3 else max(p)
            A(cm(3, *p))
            if k == 1: A(sw(snd[0]))
            if k == 3: A(sw(snd[1]))
        if got < 7: A("s_waitcnt lgkmcnt(2)")
        for k, p in enumerate(last):
            A(cm(3, *p))
            if k == 2: A(sw(snd[2]))
            if k == 7: A(sw(snd[3]))
        if par == 0: P.stamp(9)
        else: P.stamp(9)
        A("s_waitcnt lgkmcnt(0)\ns_barrier")
        for q in range(4): A(f"ds_read_b128 {v(PR+4*q,4)}, v{vR} offset:{1024*q}\nds_read_b128 {v(PP+4*q,4)}, v3 offset:{2048*q}")
        for q in range(4):
            A(f"s_waitcnt lgkmcnt({6-2*q})")
            k = AC + 4 * (2 * q + par)
            for h in range(2): A(f"v_pk_add_f32 {v(PR+4*q+2*h,2)}, {v(PR+4*q+2*h,2)}, {v(PP+4*q+2*h,2)}")
            for h in range(2): A(f"v_pk_add_f32 {v(PR+4*q+2*h,2)}, {v(PR+4*q+2*h,2)}, {v(k+2*h,2)}")
            o_ = 132 + 2 * q
            A(f"v_cvt_pk_bf16_f32 v{o_}, v{PR+4*q}, v{PR+4*q+1}\nv_cvt_pk_bf16_f32 v{o_+1}, v{PR+4*q+2}, v{PR+4*q+3}")
            if q & 1:
                A(f"v_permlane16_swap_b32 v{o_-2}, v{o_}\nv_permlane16_swap_b32 v{o_-1}, v{o_+1}")
                A(f"global_store_dwordx4 v{vO}, {v(o_-2,4)}, s[30:31] offset:{1024*(q-1)} sc0 sc1")
        if not par: A(f"s_branch {jn}")
    A(f"{jn}:")
    P.stamp(10)
    vB, vAa, vS, vCR, vCA = 8, 10, 12, 14, 16
    vX = 18
    CN, CA, MB = 24, 32, 38
    F = [48, 64, 80]
    ACC = 96
    T1, T2, OUT = 48, 56, 64
    def csetup():
        A(ffn_ids)
        A(f"""
        s_and_b32 s40, s36, 1
        s_bfe_u32 s41, s36, 0x10001
        s_lshr_b32 s49, s36, 2
        v_bfe_u32 v2, v{vLane}, 2, 2
        v_bfe_u32 v3, v{vLane}, 4, 1
        v_lshrrev_b32 v4, 5, v{vLane}
        v_and_b32 v6, 3, v{vLane}
        v_lshl_add_u32 v5, v4, 3, v2
        v_lshlrev_b32 v7, 8, v5
        v_lshl_add_u32 v7, v6, 3, v7
        v_lshl_add_u32 v7, v3, 5, v7
        s_lshl_b32 s42, s40, 1
        s_add_u32 s42, s42, s41
        v_xor_b32 v{vB}, s42, v2
        v_lshl_add_u32 v{vB}, v{vB}, 6, v7
        v_xor_b32 v{vB+1}, 64, v{vB}
        v_add_u32 v17, 0x10000, v{vB}
        v_add_u32 v46, 0x10000, v{vB+1}
        s_lshl_b32 s42, s34, 1
        s_add_u32 s42, s42, s40
        v_xor_b32 v{vX}, s42, v2
        v_lshl_add_u32 v{vX}, v{vX}, 6, v7
        v_lshlrev_b32 v7, 7, v5
        v_lshl_add_u32 v7, v6, 3, v7
        v_lshl_add_u32 v7, v3, 12, v7
        v_lshrrev_b32 v5, 1, v2
        v_lshl_add_u32 v5, v3, 1, v5
        s_lshl_b32 s42, s41, 1
        v_xor_b32 v5, s42, v5
        v_lshl_add_u32 v7, v5, 5, v7
        v_add_u32 v{vAa}, {12*BLK}, v7
        v_xor_b32 v{vAa+1}, 32, v{vAa}
        s_lshl_b32 s42, s39, 2
        s_lshl_b32 s43, s40, 1
        s_add_u32 s42, s42, s43
        s_add_u32 s43, s42, s41
        s_xor_b32 s44, s43, 1
        s_lshl_b32 s45, s38, 3
        s_lshl_b32 s46, s41, 1
        s_add_u32 s45, s45, s46
        s_lshl_b32 s46, s49, 2
        s_add_u32 s45, s45, s46
        s_lshl_b32 s46, s45, 7
        s_add_u32 s45, s45, {WS_ACT // 1024}
        s_mul_i32 s43, s43, 112
        s_mul_i32 s44, s44, 112
        s_add_u32 s43, s43, s45
        s_add_u32 s44, s44, s45
        s_lshl_b32 s43, s43, 10
        s_lshl_b32 s44, s44, 10
        v_lshl_add_u32 v{vS}, v{vLane}, 4, s43
        v_lshl_add_u32 v{vS+1}, v{vLane}, 4, s44
        v_and_b32 v5, 15, v{vLane}
        v_mul_u32_u24 v7, {F_*8}, v3
        v_lshl_add_u32 v5, v5, 3, v7
        s_add_u32 s46, s46, {WS_CS}
        v_add_u32 v{vCA}, s46, v5
        v_and_b32 v5, 31, v{vLane}
        s_lshl_b32 s42, s40, 1
        s_add_u32 s42, s42, s41
        s_lshl_b32 s43, s42, 9
        s_add_u32 s43, s43, {CON}
        v_lshl_add_u32 v{vCR}, v5, 4, s43
        v_xor_b32 v{vCR+1}, 512, v{vCR}
        s_lshl_b32 s43, s39, 11
        s_lshl_b32 s44, s41, 8
        s_add_u32 s43, s43, s44
        s_add_u32 s43, s43, {WS_FLAGS}
        s_lshl_b32 s44, s34, 10
        s_add_u32 s59, s43, s44
        s_lshl_b32 s44, s40, 10
        s_add_u32 s58, s43, s44
        s_lshl_b32 s44, s49, 9
        s_add_u32 s58, s58, s44
        v_mov_b32 v{CA+4}, 0
        v_mov_b32 v{CA+5}, 0
        v_mov_b32 v{MB+2}, 0
        v_mov_b32 v{MB+3}, 0
        v_mov_b32 v{MB+6}, 0
        v_mov_b32 v{MB+7}, 0
        v_cmp_eq_u32 s[52:53], 0, v4
        s_mov_b32 s47, 0x3f803f80
        s_mov_b32 s48, 0xffff0000
        """)
    caload = [f"global_load_dwordx2 {v(CA,2)}, v{vCA}, s[30:31] sc1", f"global_load_dwordx2 {v(CA+2,2)}, v{vCA}, s[30:31] offset:128 sc1"]
    def preads(p, j):
        s, ks = j >> 1, j & 1
        f = F[j % 3]
        ho = (slot[("H", s)] % 8) * BLK + 4096 * ks
        wo = (slot[("W", 14 * p + s)] - 12) * BLK + 2048 * ks
        o = []
        for kind, i in (("B", 0), ("A", 0), ("B", 1), ("A", 1)):
            ab = vB + i if s < 8 else (17, 46)[i]
            if kind == "B": o += [f"ds_read_b64_tr_b16 {v(f+8+4*i,2)}, v{ab} offset:{ho}", f"ds_read_b64_tr_b16 {v(f+10+4*i,2)}, v{ab} offset:{ho+1024}"]
            else: o += [f"ds_read_b64_tr_b16 {v(f+4*i,2)}, v{vAa+i} offset:{wo}", f"ds_read_b64_tr_b16 {v(f+2+4*i,2)}, v{vAa+i} offset:{wo+512}"]
        return o
    def pmfma(j, first=False, p=None):
        f = F[j % 3]
        if p is not None and str(p) in c.x16:
            o = []
            for k, (t, rt) in enumerate(((0, 0), (0, 1), (1, 0), (1, 1))):
                a = ACC + 32 * t + 16 * rt + 8 * (j & 1)
                o.append(f"v_mfma_f32_16x16x32_bf16 {v(a,4)}, {v(f+4*t,4)}, {v(f+8+4*rt,4)}, {v(a,4)}\nv_mfma_f32_16x16x32_bf16 {v(a+4,4)}, {v(f+4*(t^1),4)}, {v(f+8+4*rt,4)}, {v(a+4,4)}")
            return o
        return [f"v_mfma_f32_32x32x16_bf16 {v(ACC+32*t+16*rt,16)}, {v(f+4*t,4)}, {v(f+8+4*rt,4)}, {'0' if first else v(ACC+32*t+16*rt,16)}" for (t, rt) in ((0, 0), (0, 1), (1, 0), (1, 1))]
    def corr(first):
        return [f"v_mfma_f32_32x32x16_bf16 {v(ACC+32*t+16*rt,16)}, {v(CA+2*t,4)}, {v(MB+4*rt,4)}, {'0' if first else v(ACC+32*t+16*rt,16)}" for t in range(2) for rt in range(2)]
    mkmb = [f"v_cndmask_b32 v{MB+4*rt+k}, 0, v{CN+4*rt+3}, s[52:53]" for rt in range(2) for k in range(2)]
    def inter(m, r):
        per_ = (len(r) + 3) // 4
        for i in range(4):
            A(m[i])
            for l in r[per_*i:per_*(i+1)]: A(l)
    def pstep(p, s):
        for h in range(2):
            A("s_waitcnt lgkmcnt(8)")
            inter(pmfma(2*s - 2 + h, s == 1 and h == 0, p if s > 1 else None), preads(p, 2*s + h))
        k = s - c.ca_load if p == 0 else 14 + s - c.cs2[1] - 1
        if k in (0, 1): A(caload[k])
    def epi(t, rt, n, packed):
        a = ACC + 32 * t + 16 * rt
        cn = CN + 4 * rt
        o_ = OUT + 4 * (n & 1)
        L = []
        if packed:
            L += [f"v_pk_mul_f32 {v(T1+2*q,2)}, {v(a+2*q,2)}, {v(a+2*q,2)}" for q in range(4)]
            L += [f"v_pk_fma_f32 {v(T1+2*q,2)}, {v(T1+2*q,2)}, {v(cn,2)}, {v(cn,2)} op_sel:[0,1,0] op_sel_hi:[1,1,0]" for q in range(4)]
            L += [f"v_pk_mul_f32 {v(T1+2*q,2)}, {v(T1+2*q,2)}, {v(a+2*q,2)}" for q in range(4)]
            L += [f"v_exp_f32 v{T1+q}, v{T1+q}" for q in range(8)]
            L += [f"v_pk_mul_f32 {v(T2+2*q,2)}, {v(a+2*q,2)}, {v(a+8+2*q,2)}" for q in range(4)]
            L += [f"v_pk_fma_f32 {v(T1+2*q,2)}, {v(T1+2*q,2)}, {v(cn+2,2)}, {v(cn+2,2)} op_sel_hi:[1,0,0]" for q in range(4)]
            L += [f"v_rcp_f32 v{T1+q}, v{T1+q}" for q in range(8)]
            L += [f"v_pk_mul_f32 {v(T2+2*q,2)}, {v(T2+2*q,2)}, {v(T1+2*q,2)}" for q in range(4)]
            L += [f"v_cvt_pk_bf16_f32 v{o_+q}, v{T2+2*q}, v{T2+2*q+1}" for q in range(4)]
        else:
            def st(q):
                return [f"v_mul_f32 v{T1+q}, v{a+q}, v{a+q}", f"v_fma_f32 v{T1+q}, v{T1+q}, v{cn+1}, v{cn}", f"v_mul_f32 v{T1+q}, v{T1+q}, v{a+q}",
                        f"v_exp_f32 v{T1+q}, v{T1+q}", f"v_mul_f32 v{T2+q}, v{a+q}, v{a+8+q}", f"v_fma_f32 v{T1+q}, v{T1+q}, v{cn+2}, v{cn+2}",
                        f"v_rcp_f32 v{T1+q}, v{T1+q}", f"v_mul_f32 v{T2+q}, v{T2+q}, v{T1+q}"]
            for q0 in range(0, 8, c.il):
                xs = [st(q) for q in range(q0, q0 + c.il)]
                for k in range(8): L += [x[k] for x in xs]
                L += [f"v_cvt_pk_bf16_f32 v{o_+q//2}, v{T2+q}, v{T2+q+1}" for q in range(q0, q0 + c.il, 2)]
        L += [f"global_store_dwordx4 v{vS+rt}, {v(o_,4)}, s[30:31] offset:{1024*t} {c.stflag}"]
        return L
    def cost(l): return 2 if l.startswith(("v_exp", "v_rcp", "v_sqrt")) else c.stcost if l.startswith("global_store") else 1
    def signal(t, later=None):
        A(f"s_mov_b32 s70, 1\ns_waitcnt vmcnt({2-2*t if later is None else later})\ns_atomic_add s70, s[30:31], s58\ns_add_u32 s58, s58, 128")
    def poll_issue(r, off):
        A(f"s_mov_b32 s{r}, 0\ns_add_u32 s68, s59, {off}\ns_atomic_add s{r}, s[30:31], s68 glc")
    def poll_wait(r, off, inline=False):
        pl = A.label("poll"); ok = A.label("ok")
        if inline:
            A(f"s_mov_b32 s45, 0\n{pl}:\ns_waitcnt lgkmcnt(0)\ns_cmp_ge_u32 s{r}, 14\ns_cbranch_scc1 {ok}")
            poll_issue(r, off)
            A(f"s_add_u32 s45, s45, 1\ns_cmp_lt_u32 s45, {SPIN}\ns_cbranch_scc1 {pl}\ns_waitcnt lgkmcnt(0)\n{ok}:")
            return
        A(f"s_waitcnt lgkmcnt(0)\ns_cmp_lt_u32 s{r}, 14\ns_cbranch_scc1 {pl}\n{ok}:")
        with Cold():
            A(f"{pl}:\ns_mov_b32 s45, 0\n{pl}b:")
            poll_issue(r, off)
            A(f"s_add_u32 s45, s45, 1\ns_waitcnt lgkmcnt(0)\ns_cmp_ge_u32 s{r}, 14\ns_cbranch_scc1 {ok}\ns_cmp_lt_u32 s45, {SPIN}\ns_cbranch_scc1 {pl}b\ns_branch {ok}")
    PA_, PB_ = 69, 71
    Q = Bars([0, 14, c.drain0[1] + 1, 29], 13)
    AC2, ID, HF = 80, 160, 72
    csetup()
    if c.emode: A(f"s_waitcnt vmcnt(0)\ns_sleep {c.emode}")
    A("s_waitcnt vmcnt(0)\ns_barrier")
    P.stamp(11)
    A(f"""
    s_lshl_b32 s43, s35, 1
    s_add_u32 s43, s43, s41
    s_sub_u32 s43, s43, s38
    s_cselect_b32 s44, 14, 0
    s_add_u32 s43, s43, s44
    s_cmp_ge_u32 s43, 12
    s_cselect_b32 s44, {2 if c.w8 else 0}, 0
    s_add_u32 s43, s43, s44
    s_lshl_b32 s43, s43, 13
    v_add_u32 v{vX}, s43, v{vX}
    v_lshlrev_b32 v7, 3, v4
    v_sub_u32 v7, v5, v7
    v_mov_b32 v{vX+1}, 0x3f80
    v_mov_b32 v{vX+2}, 1.0
    """)
    for j in range(2):
        for i in range(4):
            d0 = 16 * j + 2 * i
            A(f"v_cmp_eq_u32 vcc, {d0}, v7\nv_cmp_eq_u32 s[50:51], {d0+1}, v7\nv_cndmask_b32 v{ID+4*j+i}, 0, v{vX+1}, vcc\nv_cndmask_b32 v{ID+4*j+i}, v{ID+4*j+i}, v{vX+2}, s[50:51]")
    A("s_setprio 2")
    Q.bar()
    P.stamp(12)
    for l in preads(0, 0) + preads(0, 1): A(l)
    if c.fast0:
        A("s_waitcnt lgkmcnt(8)")
        for l in pmfma(0, True): A(l)
        A("s_waitcnt lgkmcnt(0)")
        for l in pmfma(1): A(l)
        Q.bar()
        for l in preads(0, 2) + preads(0, 3): A(l)
    for s in range(2 if c.fast0 else 1, 14):
        Q.bar(); pstep(0, s)
    Q.bar()
    r = [f"ds_read_b128 {v(CN+4*i,4)}, v{vCR+i}" for i in range(2)] + [f"ds_read_b64_tr_b16 {v(HF+2*i,2)}, v{vX} offset:{4096*(i>>1)+1024*(i&1)}" for i in range(4)]
    A("s_waitcnt lgkmcnt(8)"); inter(pmfma(26), r)
    A("s_waitcnt vmcnt(0) lgkmcnt(4)"); inter(pmfma(27), mkmb)
    for l in corr(False): A(l)
    A("s_waitcnt lgkmcnt(0)")
    A("s_setprio 0")
    E1 = []
    for n in range(4): E1 += epi(n >> 1, n & 1, n, c.e1_packed)
    tot = sum(cost(x) for x in E1); per1 = tot / (c.e1_last - c.e1_first + 1); bud = 0.0
    vD, vT = 8, 14
    gsetup = f"""
    v_lshl_add_u32 v7, v4, 2, v2
    v_lshlrev_b32 v7, 7, v7
    v_lshrrev_b32 v{vD}, 1, v2
    v_xor_b32 v{vD}, s41, v{vD}
    v_lshl_add_u32 v7, v{vD}, 6, v7
    v_lshl_add_u32 v7, v3, 5, v7
    v_lshl_add_u32 v7, v6, 3, v7
    s_lshl_b32 s43, s41, 12
    v_add_u32 v{vD}, s43, v7
    v_xor_b32 v{vD+1}, 64, v{vD}
    v_add_u32 v{vD+2}, 0x10000, v{vD}
    v_add_u32 v{vD+3}, 0x10000, v{vD+1}
    v_lshlrev_b32 v{vT}, 4, v{vLane}
    """
    gsetup2 = f"""
    s_lshl_b32 s43, s39, 2
    s_lshl_b32 s44, s34, 1
    s_add_u32 s43, s43, s44
    s_add_u32 s43, s43, s40
    s_mul_i32 s55, s43, {112*1024}
    s_mul_i32 s43, s43, {32*896}
    s_lshl_b32 s44, s35, 7
    s_add_u32 s43, s43, s44
    s_lshl_b32 s44, s41, 6
    s_add_u32 s43, s43, s44
    v_mul_u32_u24 v5, 896, v5
    v_lshl_add_u32 v5, v4, 4, v5
    v_add_u32 v5, s43, v5
    s_lshl_b32 s44, s41, 11
    s_add_u32 s55, s55, s44
    s_lshl_b32 s4, s33, 13
    s_add_u32 s4, s4, s55
    s_add_u32 s54, s55, {14*8192}
    s_add_u32 s64, s30, {WS_ACT}
    s_addc_u32 s65, s31, 0
    s_mov_b32 s66, {ACT_BYTES}
    s_mov_b32 s67, 0x20000
    """
    gsetup3 = "\n".join(f"s_add_u32 s{4+k}, s{3+k}, 8192\ns_cmp_ge_u32 s{4+k}, s54\ns_cselect_b32 s{4+k}, s55, s{4+k}" for k in range(1, 14))
    TRQ = [96 + 4 * k for k in range(18)] + [16, 20, 24, 28]
    DB = [32, 40, 48, 56]
    AO = [AC2, 64]
    seq = [(14 * hf + b, j) for hf in range(2) for j in range(2) for b in range(14)]
    cons = [(b, j) for b in range(14) for j in range(2)] + seq[28:]
    freeq = list(TRQ); treg = {}
    def tload(n):
        b, j = seq[n]
        if (b, j) not in treg: treg[(b, j)] = freeq.pop(0)
        o = []
        if n == 28: o += [f"v_add_u32 v15, 4096, v{vT}"]
        if c.x_notl and n >= 28: return o
        o += [f"buffer_load_dwordx4 {v(treg[(b, j)],4)}, v{vT if n < 28 else 15}, s[64:67], s{4+b%14} offen offset:{1024*j} sc1"]
        return o
    nst = 0; early = 0
    assert c.cs2[1] <= 25
    assert c.drain0[1] <= c.chkA and c.e1_last + 3 <= c.chkA and sum(c.earlyT) <= 14
    for i in range(15, 29):
        Q.bar()
        if i == c.drain0[0]:
            assert nst >= 2
            signal(0, nst - 2)
        if i >= c.e1_first:
            bud += per1
            while E1 and (bud > 0 or i == c.e1_last):
                x = E1.pop(0); A(x); bud -= cost(x)
                if x.startswith("global_store"): nst += 1
        if i == c.pollA: poll_issue(PA_, 0)
        if i == c.e1_last + 1: A(gsetup)
        if i == c.e1_last + 2: A(gsetup2)
        if i == c.e1_last + 3: A(gsetup3)
        if i == c.chkA: A("s_waitcnt lgkmcnt(0)")
        if i == c.drain0[1]:
            signal(1)
            A(f"v_add_u32 v{vD+4}, 0x20000, v{vD}\nv_add_u32 v{vD+5}, 0x20000, v{vD+1}")
        if i == c.poll0: poll_issue(PB_, 128)
        if 0 <= i - c.chkA < len(c.earlyT):
            sk = A.label("et")
            A(f"s_cmp_lt_u32 s{PA_}, 14\ns_cbranch_scc1 {sk}")
            for _ in range(c.earlyT[i - c.chkA]):
                for l in tload(early): A(l)
                early += 1
            A(f"{sk}:")
    Q.bar()
    A(f"v_mfma_f32_32x32x16_bf16 {v(AC2,16)}, {v(ID,4)}, {v(HF,4)}, 0")
    A(f"v_mfma_f32_32x32x16_bf16 {v(AC2,16)}, {v(ID+4,4)}, {v(HF+4,4)}, {v(AC2,16)}")
    sk = A.label("et")
    A(f"s_cmp_lt_u32 s{PA_}, 14\ns_cbranch_scc1 {sk}c\n{sk}:")
    with Cold():
        A(f"{sk}c:")
        poll_wait(PA_, 0, True)
        for n in range(early):
            for l in tload(n): A(l)
        A(f"s_branch {sk}")
    def dreads(n):
        b, j = cons[n]
        sd = slot[("D", b)]; f = DB[n & 3]
        o = []
        for nt in range(2):
            do = (sd % 8) * BLK + 2048 * j
            ad = vD + 2 * (sd // 8) + nt
            o += [f"ds_read_b64_tr_b16 {v(f+4*nt,2)}, v{ad} offset:{do}", f"ds_read_b64_tr_b16 {v(f+4*nt+2,2)}, v{ad} offset:{do+1024}"]
        return o
    def gm(n):
        f = DB[n & 3]
        if 'g' in c.x16 and 0 < n < 52:
            return [f"v_mfma_f32_16x16x32_bf16 {v(AO[nt]+8*(n&1),4)}, {v(f+4*nt,4)}, {v(treg[cons[n]],4)}, {v(AO[nt]+8*(n&1),4)}\nv_mfma_f32_16x16x32_bf16 {v(AO[nt]+8*(n&1)+4,4)}, {v(f+4*(nt^1),4)}, {v(treg[cons[n]],4)}, {v(AO[nt]+8*(n&1)+4,4)}" for nt in (1, 0)]
        return [f"v_mfma_f32_32x32x16_bf16 {v(AO[nt],16)}, {v(f+4*nt,4)}, {v(treg[cons[n]],4)}, {'0' if (n == 0 and nt == 1) else v(AO[nt],16)}" for nt in (1, 0)]
    issued = early; mk = 0
    while issued < 14:
        for l in tload(issued): A(l)
        issued += 1
        if issued > c.tdep0: A(f"s_waitcnt vmcnt({c.tdep0})")
    poll_wait(PB_, 128, True)
    Q.mark(mk); mk += 1
    lim = 28; late = []
    for n in range(56):
        if n == 14 and not c.auxpoll: A("s_waitcnt lgkmcnt(0)\ns_barrier")
        for y in (c.ya_at, c.yb_at):
            if n == y:
                if c.auxpoll and y == c.ya_at and y < 16: A("s_waitcnt lgkmcnt(0)")
                A("s_barrier")
                Q.mark(mk); mk += 1
                lim += 14
        k = 99 if n == 0 else c.pace.get(n, c.pace1 if n < 28 else c.pace2)
        while issued < lim and freeq and k > (2 if c.tpost and n else 0):
            for l in tload(issued): A(l)
            issued += 1; k -= 1
            if n == 0 and c.tdep0 < 22: A(f"s_waitcnt vmcnt({c.tdep0})")
        assert seq.index(cons[n]) < issued
        if n == 0:
            for l in dreads(0) + dreads(1): A(l)
        if n == c.g_pre:
            if c.xe: A("s_barrier")
            Q.mark(mk); mk += 1
        if c.auxpoll and n == 32: A("s_barrier")
        r = dreads(n + 2) if n + 2 < 56 else []
        A(f"s_waitcnt vmcnt({issued-1-seq.index(cons[n])}) lgkmcnt({4 if n < 55 else 0})")
        if n in (28, 42): Q.mark(mk); mk += 1
        m = gm(n)
        if n >= 56 - c.fin_ov:
            A(m[0]); late.append(m[1])
            for l in r: A(l)
            continue
        for i in range(2):
            A(m[i])
            if c.tpost and issued < lim and freeq and k > 1 - i:
                for l in tload(issued): A(l)
                issued += 1
            for l in r[2*i:2*i+2]: A(l)
        freeq.append(treg[cons[n]])
    assert 14 <= c.ya_at <= 26 and c.ya_at <= c.yb_at <= 32 and c.yb_at >= (20 if c.auxpoll else 24)
    while mk < 6: Q.mark(mk); mk += 1
    Q.mark(6)
    XR = 64
    assert all(slot[("D", b)] not in (8, 9) for b in range(11, 28))
    A(f"""
    s_lshl_b32 s43, s36, 12
    s_add_u32 s43, s43, {8*BLK}
    v_lshl_add_u32 v2, v{vLane}, 4, s43
    v_xor_b32 v3, 0x2000, v2
    """)
    if late: A(late.pop(0))
    for q in range(4):
        A(f"ds_write_b128 v2, {v(AO[1]+4*q,4)} offset:{1024*q}")
        if late and q in (0, 2): A(late.pop(0))
    assert not late
    A("s_waitcnt lgkmcnt(0)\ns_barrier")
    for q in range(4): A(f"ds_read_b128 {v(XR+4*q,4)}, v3 offset:{1024*q}")
    for hq in range(2):
        A(f"s_waitcnt lgkmcnt({2-2*hq})")
        for q in range(4*hq, 4*hq+4): A(f"v_pk_add_f32 {v(AC2+2*q,2)}, {v(AC2+2*q,2)}, {v(XR+2*q,2)}")
        for q in range(4*hq, 4*hq+4): A(f"v_cvt_pk_bf16_f32 v{48+q}, v{AC2+2*q}, v{AC2+2*q+1}")
        A(f"v_permlane32_swap_b32 v{48+4*hq}, v{48+4*hq+2}\nv_permlane32_swap_b32 v{48+4*hq+1}, v{48+4*hq+3}")
        A(f"global_store_dwordx4 v5, {v(48+4*hq,4)}, s[26:27] offset:{32*hq} {c.outflag}")
    Q.fin(7)
    A("s_endpgm")
    target(nw)
    A(f"s_and_b32 s46, s36, 3\ns_mov_b32 s45, 0\nv_mov_b32 v11, {TAGA}")
    def xpoll():
        for k in xord: A(xp[k])
    A("s_waitcnt lgkmcnt(0)\ns_barrier")
    P.stamp(5)
    A(f"""
    ds_read_b32 v11, v11
    s_lshl_b32 s47, s37, 2
    {'s_load_dword s53, s[16:17], s47' if c.dlate else ''}
    s_lshl_b32 s47, s46, 10
    s_add_u32 s47, s47, {UO+512}
    v_xor_b32 v9, 3, v{vLane}
    v_lshl_add_u32 v9, v9, 2, s47
    s_lshl_b32 s47, s46, 11
    v_lshrrev_b32 v5, 3, v{vLane}
    v_lshl_add_u32 v5, v5, 4, s47
    v_bfe_u32 v6, v{vLane}, 1, 2
    v_lshl_add_u32 v5, v6, 8, v5
    v_and_b32 v6, 1, v{vLane}
    v_lshl_add_u32 v10, v6, 3, v5
    """)
    if not c.xp_at:
        if c.poll_late: A(f"s_sleep {c.poll_late}")
        xpoll()
    if not c.xp_chk:
        A(f"s_mov_b32 s45, 1\ns_barrier\ns_setprio {c.nprio}")
    pl = A.label("xp"); ok = A.label("xok"); nb1 = A.label("xnb")
    def tagcheck():
        A(f"{'' if c.nstage else pl + ':'}\ns_waitcnt vmcnt(0) lgkmcnt(0)\nv_min3_u32 v4, v{vPX+1}, v{vPX+3}, v11\nv_max3_u32 v5, v{vPX+1}, v{vPX+3}, v11")
        for q in range(1, 8): A(f"v_min3_u32 v4, v4, v{vPX+4*q+1}, v{vPX+4*q+3}\nv_max3_u32 v5, v5, v{vPX+4*q+1}, v{vPX+4*q+3}")
        assert not c.xp_chk
        A(f"v_cmp_ne_u32 vcc, v4, v5\ns_cbranch_vccnz {pl}c\n{ok}:")
        with Cold():
            A(f"{pl}c:\ns_add_u32 s45, s45, 1\ns_cmp_gt_u32 s45, {SPIN}\ns_cbranch_scc1 {ok}")
            if c.xmask:
                for q in range(8):
                    A(f"v_cmp_ne_u32 vcc, v{vPX+4*q+1}, v11\nv_cmp_ne_u32 s[50:51], v{vPX+4*q+3}, v11\ns_or_b64 exec, vcc, s[50:51]\ns_cbranch_execz {pl}m{q}\n{xp[q]}\n{pl}m{q}:\ns_mov_b64 exec, -1")
            else: xpoll()
            A(f"s_waitcnt vmcnt(0)\ns_branch {pl}")
    if c.nstage: A(f"s_waitcnt vmcnt(4)\n{pl}:")
    else: tagcheck()
    P.stamp(6)
    if c.x_cnt: A("s_waitcnt lgkmcnt(0)\ns_mul_i32 s74, s45, 100\ns_add_u32 s74, s74, s72")
    NU, PRE, UB = 16, 32, 48
    for half in range(2):
        st = []
        if half == 1 and c.nstage: tagcheck()
        for r in range(4 * half, 4 * half + 4):
            S = vPS_ + 2 * r; X = vPX + 2 * r
            t = 60 + 4 * (r & 3)
            st.append([f"v_and_b32 v{t+2}, s43, v{S}", f"v_rcp_f32 v{t+2}, v{t+2}", f"v_lshlrev_b32 v{t}, 16, v{S}",
                  f"v_lshlrev_b32 v{PRE+2*r}, 16, v{X}", f"v_and_b32 v{PRE+2*r+1}, s43, v{X}",
                  f"v_pk_add_f32 {v(NU+2*r,2)}, {v(PRE+2*r,2)}, {v(t,2)} op_sel_hi:[1,0] neg_lo:[0,1] neg_hi:[0,1]" if c.npk else f"v_sub_f32 v{NU+2*r}, v{PRE+2*r}, v{t}\nv_sub_f32 v{NU+2*r+1}, v{PRE+2*r+1}, v{t}",
                  f"v_cvt_pk_bf16_f32 v{NU+2*r+1}, v{NU+2*r}, v{NU+2*r+1}",
                  f"v_lshlrev_b32 v{NU+2*r}, 16, v{NU+2*r+1}", f"v_and_b32 v{NU+2*r+1}, s43, v{NU+2*r+1}",
                  f"v_pk_mul_f32 {v(NU+2*r,2)}, {v(NU+2*r,2)}, {v(t+2,2)} op_sel_hi:[1,0]" if c.npk else f"v_mul_f32 v{NU+2*r}, v{NU+2*r}, v{t+2}\nv_mul_f32 v{NU+2*r+1}, v{NU+2*r+1}, v{t+2}"])
        for l in merge(*st): A(l)
        for ch in range(2):
            for k in (2 * half, 2 * half + 1): A(f"v_cvt_pk_bf16_f32 v{UB+4*ch+k}, v{NU+4*k+2+ch}, v{NU+4*k+ch}")
    P.stamp(7)
    for half in range(2):
        for ch in range(2):
            A(f"ds_write2st64_b32 v9, v{UB+4*ch+2*half}, v{UB+4*ch+2*half+1} offset0:{ch*UPITCH//256+2*half} offset1:{ch*UPITCH//256+2*half+1}")
    A("s_setprio 0\ns_waitcnt lgkmcnt(0)\ns_barrier")
    P.stamp(8)
    if c.x_quietN: A("s_sleep 60")
    PO = 60
    A("s_and_b32 s59, s53, s43\ns_lshl_b32 s58, s53, 16")
    for ch in range(2):
        for k in range(4):
            A(f"v_lshlrev_b32 v4, 16, v{UB+4*ch+k}\nv_and_b32 v5, s43, v{UB+4*ch+k}")
            A(f"v_fma_f32 v{PO+8*ch+2*k+1}, v4, s{58+ch}, v{PRE+4*k+2+ch}\nv_fma_f32 v{PO+8*ch+2*k}, v5, s{58+ch}, v{PRE+4*k+ch}")
            A(f"ds_write_b64 v10, {v(PO+8*ch+2*k,2)} offset:{32768*ch+1024*(k>>1)+128*(k&1)}")
    A("v_mov_b32 v90, v11")
    csetup()
    Q = Bars([0, c.gat_check, c.gat_check + 1, 14, 28, 29], 10)
    ST, GA = 18, 96
    vPS, vGA = 22, 23
    A(f"""
    s_mul_i32 s43, s39, {14*1024}
    s_lshl_b32 s44, s42, 8
    s_add_u32 s43, s43, s44
    s_add_u32 s43, s43, {WS_PS}
    v_lshl_add_u32 v{vPS}, v5, 3, s43
    v_mul_u32_u24 v7, 7168, v4
    v_add3_u32 v{vGA}, v{vPS}, v7, 64
    v_add_u32 v{vGA}, {3072-64}, v{vGA}
    s_lshl_b32 s44, s38, 10
    v_add_u32 v{vPS}, s44, v{vPS}
    """)
    nb = A.label("nb"); pz = A.label("pz"); pzo = A.label("pzo")
    pzl = "global_load_dwordx4 v[48:51], v47, s[30:31] sc1\nglobal_load_dwordx4 v[52:55], v47, s[30:31] offset:16 sc1"
    A(f"""
    s_cmp_lg_u32 s36, 4
    s_cbranch_scc1 {nb}a
    v_min_u32 v47, 55, v{vLane}
    v_lshlrev_b32 v47, 5, v47
    v_add_u32 v47, {WS_PZ}, v47
    s_mov_b32 s45, 0
    {pzl}
    {nb}a:
    """)
    P.stamp(9)
    A(f"""
    s_waitcnt lgkmcnt(0)
    s_barrier
    s_cmp_lg_u32 s36, 4
    s_cbranch_scc1 {nb}
    {pz}:
    s_waitcnt vmcnt(0)
    v_min3_u32 v56, v48, v49, v90
    v_max3_u32 v57, v48, v49, v90
    v_min3_u32 v56, v50, v51, v56
    v_max3_u32 v57, v50, v51, v57
    v_min3_u32 v56, v52, v53, v56
    v_max3_u32 v57, v52, v53, v57
    v_min3_u32 v56, v54, v55, v56
    v_max3_u32 v57, v54, v55, v57
    v_cmp_ne_u32 vcc, v56, v57
    s_cbranch_vccz {pzo}
    s_sleep {c.pz_sleep}
    {pzl}
    s_add_u32 s45, s45, 1
    s_cmp_lt_u32 s45, {SPIN}
    s_cbranch_scc1 {pz}
    {pzo}:
    s_cmp_lg_u32 s2, 0
    s_cbranch_scc1 {nb}
    v_mov_b32 v47, {WS_E}
    s_mov_b64 exec, 1
    global_store_dword v47, v90, s[30:31]
    s_mov_b64 exec, -1
    {nb}:
    s_barrier
    """)
    def gat(js=range(7)):
        for j in js: A(f"global_load_dwordx2 {v(GA+2*j,2)}, v{vGA}, s[30:31] offset:{1024*j-3072} sc1")
    S, Qv = GA, GA + 1
    work = [f"v_add_f32 v{GA+k}, v{GA+k}, v{GA+2*j+k}" for j in range(1, 7) for k in range(2)]
    work += [f"v_mov_b32 v{GA+2}, v{GA}", f"v_mov_b32 v{GA+3}, v{GA+1}", f"v_permlane32_swap_b32 v{GA}, v{GA+2}", f"v_permlane32_swap_b32 v{GA+1}, v{GA+3}",
             f"v_add_f32 v{GA}, v{GA}, v{GA+2}", f"v_add_f32 v{GA+1}, v{GA+1}, v{GA+3}"]
    work += [l.strip() for l in f"""
    v_mul_f32 v{S}, {f32(1.0/448)}, v{S}
    v_mul_f32 v{Qv}, {f32(1.0/448)}, v{Qv}
    v_fma_f32 v{Qv}, -v{S}, v{S}, v{Qv}
    v_max_f32 v{Qv}, 0, v{Qv}
    v_cvt_pk_bf16_f32 v{CN+3}, -v{S}, -v{S}
    v_cvt_pk_bf16_f32 v{Qv}, v{Qv}, v{Qv}
    v_and_b32 v{Qv}, s48, v{Qv}
    v_add_f32 v{Qv}, {f32(1e-5)}, v{Qv}
    v_cvt_pk_bf16_f32 v{Qv}, v{Qv}, v{Qv}
    v_and_b32 v{Qv}, s48, v{Qv}
    v_sqrt_f32 v{Qv}, v{Qv}
    v_cvt_pk_bf16_f32 v{Qv}, v{Qv}, v{Qv}
    v_and_b32 v{Qv}, s48, v{Qv}
    v_rcp_f32 v{S}, v{Qv}
    v_mul_f32 v{CN+2}, v{Qv}, v{Qv}
    v_mul_f32 v{CN}, {f32(GK0)}, v{S}
    v_mul_f32 v{CN+1}, v{S}, v{S}
    v_mul_f32 v{CN+1}, v{CN+1}, v{S}
    v_mul_f32 v{CN+1}, {f32(GK1)}, v{CN+1}
    ds_write_b128 v{vCR}, {v(CN,4)}
    """.strip().split("\n")]
    nwi = c.con_write - c.gat_check
    wper = (len(work) + nwi - 1) // nwi
    for i in range(14):
        Q.bar()
        if i == 0:
            for k in range(4): A(f"ds_read_b64_tr_b16 {v(F[0]+2*k,2)}, v{vB} offset:{4096*(k>>1)+1024*(k&1)}")
        if i == (0 if c.fast0 else 1):
            A("s_waitcnt lgkmcnt(0)")
            for k in range(8):
                z = k < 2
                A(f"v_dot2_f32_bf16 v{ST+(k&1)}, v{F[0]+k}, s47, {'0' if z else 'v%d' % (ST+(k&1))}\nv_dot2_f32_bf16 v{ST+2+(k&1)}, v{F[0]+k}, v{F[0]+k}, {'0' if z else 'v%d' % (ST+2+(k&1))}")
        if i == (0 if c.fast0 else 2):
            A(f"""
            v_add_f32 v{ST}, v{ST}, v{ST+1}
            v_add_f32 v{ST+1}, v{ST+2}, v{ST+3}
            v_mov_b32 v{ST+2}, v{ST}
            v_mov_b32 v{ST+3}, v{ST+1}
            v_permlane32_swap_b32 v{ST}, v{ST+2}
            v_permlane32_swap_b32 v{ST+1}, v{ST+3}
            v_add_f32 v{ST}, v{ST}, v{ST+2}
            v_add_f32 v{ST+1}, v{ST+1}, v{ST+3}
            v_or_b32 v{ST+1}, 1, v{ST+1}
            s_mov_b32 exec_hi, 0
            global_store_dwordx2 v{vPS}, {v(ST,2)}, s[30:31] sc0 sc1
            s_mov_b32 exec_hi, -1
            """)
        if i in (c.cs_issue, c.ca_load - 1):
            sk = A.label("css")
            A(f"s_cmp_lg_u32 s36, 4\ns_cbranch_scc1 {sk}")
            if i == c.cs_issue: A(f"global_load_dword v47, v{MB+2}, s[28:29] sc1")
            else:
                pl = A.label("cs")
                A(f"s_mov_b32 s45, 0\n{pl}:\ns_waitcnt vmcnt(0)\nv_cmp_gt_u32 vcc, 32, v47\ns_cbranch_vccz {sk}\ns_sleep {c.cs_back}\nglobal_load_dword v47, v{MB+2}, s[28:29] sc1\ns_add_u32 s45, s45, 1\ns_cmp_lt_u32 s45, {SPIN}\ns_cbranch_scc1 {pl}")
            A(f"{sk}:")
        k0 = i - (c.gat_issue - len(c.gat_split) + 1)
        if 0 <= k0 < len(c.gat_split) and not c.x_nogat: gat(range(sum(c.gat_split[:k0]), sum(c.gat_split[:k0+1])))
        if i == c.gat_check and not c.x_nogat:
            pl = A.label("gp"); ok = A.label("gok")
            A(f"s_mov_b32 s45, 0\n{pl}:\ns_waitcnt vmcnt(0)\nv_min3_u32 v7, v{GA+1}, v{GA+3}, v{GA+5}\nv_min3_u32 v7, v7, v{GA+7}, v{GA+9}\nv_min3_u32 v7, v7, v{GA+11}, v{GA+13}")
            A(f"v_cmp_eq_u32 vcc, 0, v7\ns_cbranch_vccnz {pl}c\n{ok}:")
            with Cold():
                A(f"{pl}c:\ns_add_u32 s45, s45, 1\ns_cmp_ge_u32 s45, {SPIN}\ns_cbranch_scc1 {ok}")
                gat()
                A(f"s_branch {pl}")
        if c.gat_check < i <= c.con_write:
            for l in work[:wper]: A(l)
            work = work[wper:]
        if i == 13:
            assert not work
            A("s_waitcnt vmcnt(0) lgkmcnt(0)")
    Q.bar()
    A(f"ds_read_b128 {v(CN+4,4)}, v{vCR+1}")
    for l in preads(1, 0): A(l)
    A("s_waitcnt lgkmcnt(8)")
    for l in mkmb + preads(1, 1): A(l)
    A(f"s_setprio {c.prioB}")
    assert c.cs2[1] + 2 < c.corr_at
    for s in range(1, 14):
        Q.bar(); pstep(1, s)
        if 14 + s == c.corr_at:
            A("s_waitcnt vmcnt(0)")
            for l in corr(False): A(l)
    Q.bar()
    A("s_waitcnt lgkmcnt(8)")
    for l in pmfma(26): A(l)
    A("s_waitcnt lgkmcnt(0)")
    Q.bar()
    for l in pmfma(27): A(l)
    for n in range(4):
        L = epi(n >> 1, n & 1, n, n < c.e2pk)
        if c.xe and n == c.xe_at: A("s_barrier")
        for l in L[:-1]: A(l)
        if n == 3 and c.sig_early: signal(0, 1)
        A(L[-1])
    Q.mark(0)
    A("s_setprio 0")
    if c.xe and c.xe_at == 4: A("s_barrier")
    if not c.sig_early: signal(0)
    Q.mark(1)
    if c.auxpoll:
        if c.selfrd:
            A(f"s_cmp_lg_u32 s40, s34\ns_cbranch_scc1 Lsr1\nglobal_load_dwordx4 v[96:99], v{vS}, s[30:31] sc1\nglobal_load_dwordx4 v[100:103], v{vS+1}, s[30:31] sc1\ns_waitcnt vmcnt(2)\ns_branch Lsr2\nLsr1:\ns_waitcnt vmcnt(0)\nLsr2:")
            signal(1, 2)
            A(f"s_cmp_lg_u32 s40, s34\ns_cbranch_scc1 Lsr3\nglobal_load_dwordx4 v[96:99], v{vS}, s[30:31] offset:1024 sc1\nglobal_load_dwordx4 v[100:103], v{vS+1}, s[30:31] offset:1024 sc1\nLsr3:")
        else: signal(1)
        Q.mark(2)
        A("s_barrier")
        Q.mark(3)
        A("s_barrier\ns_barrier")
        Q.mark(4)
    else:
        if c.pa_early: poll_issue(PA_, 512)
        signal(1)
        Q.mark(2)
        if not c.pa_early: poll_issue(PA_, 512)
        A("s_barrier")
        poll_wait(PA_, 512, True)
        poll_issue(PB_, 640)
        Q.mark(3)
        A("s_barrier")
        poll_wait(PB_, 640, True)
        Q.mark(4)
        A("s_barrier")
    Q.fin(5)
    A("s_waitcnt lgkmcnt(0)\ns_endpgm")
    A(f".p2align 3\n{auxt}:")
    PA.stamp(1)
    srd(A, 64, 30, XG_BYTES, WS_XG)
    A(f"""
    v_and_b32 v4, 15, v{vLane}
    v_lshrrev_b32 v5, 4, v{vLane}
    v_lshl_add_u32 v6, v4, 8, s46
    v_lshl_add_u32 v6, v5, 2, v6
    v_and_b32 v7, 7, v4
    v_lshl_add_u32 v6, v7, 4, v6
    v_lshlrev_b32 v9, 14, v5
    v_lshl_add_u32 v9, v4, 4, v9
    s_lshl_b32 s46, s36, 2
    s_add_u32 s46, s46, {TAGA}
    v_mov_b32 v2, s46
    """)
    for k in range(1, 8): A(f"v_xor_b32 v{80+k}, {16*k}, v6")
    A("s_waitcnt lgkmcnt(0)\ns_add_u32 s57, s57, 1\ns_and_b32 s57, s57, 0xffff\ns_or_b32 s57, s57, 0x7f810000")
    for k in range(16): A(f"v_mov_b32 v{vXG+2*k+1}, s57")
    A(f"s_mov_b64 exec, 1\nds_write_b32 v2, v{vXG+1}\ns_mov_b64 exec, -1\ns_waitcnt vmcnt(0)")
    PA.stamp(2)
    for k in range(8):
        ad = 6 if k == 0 else 80 + k
        A(f"ds_read_b32 v{vXG+4*k}, v{ad}\nds_read_b32 v{vXG+4*k+2}, v{ad} offset:128")
    for k in range(8):
        A(f"s_waitcnt lgkmcnt({14-2*k})\nbuffer_store_dwordx4 {v(vXG+4*k,4)}, v9, s[64:67], s51 offen sc0 sc1")
        if k < 7: A(f"s_add_u32 s51, s51, {4*16384}")
    PA.stamp(3)
    A(f"""
    v_mov_b32 v24, 0
    v_mov_b32 v25, 0
    s_lshl_b32 s43, s2, 1
    s_add_u32 s43, s43, s36
    s_lshl_b32 s44, s43, 9
    s_add_u32 s44, s44, {WS_PS}
    v_lshl_add_u32 v3, v{vLane}, 3, s44
    global_store_dwordx2 v3, v[24:25], s[30:31] sc0 sc1
    s_and_b32 s44, s43, 255
    s_lshl_b32 s44, s44, 7
    s_add_u32 s44, s44, {WS_FLAGS}
    v_mov_b32 v4, s44
    s_mov_b64 exec, 1
    global_store_dword v4, v24, s[30:31] sc0 sc1
    s_mov_b64 exec, -1
    s_lshl_b32 s44, s43, 2
    s_add_u32 s44, s44, {WS_PZ}
    v_mov_b32 v22, s44
    v_mov_b32 v23, s57
    s_setprio 0
    """)
    if c.warm:
        A("s_cmp_eq_u32 s36, 1\ns_cbranch_scc1 Lwm1")
        for lab in ("Lmw", nw, odd): A(f"s_call_b64 s[96:97], {lab}w")
        A("s_branch Lwm2\nLwm1:")
        for k in range(1, 4): A(f"s_call_b64 s[96:97], Lpw{k}")
        A("Lwm2:")
    A("s_barrier")
    if c.warm:
        A("s_cmp_eq_u32 s36, 1\ns_cbranch_scc1 Lwm3")
        for k in range(4, c.npg + 1, 2): A(f"s_call_b64 s[96:97], Lpw{k}")
        A("s_branch Lwm4\nLwm3:")
        for k in range(5, c.npg + 1, 2): A(f"s_call_b64 s[96:97], Lpw{k}")
        A("Lwm4:")
    aW, aD, aH = 8, 12, 8
    sW, sD, eW, eD = 41, 42, 45, 46
    def daddr():
        A(ffn_ids)
        A(f"""
        v_lshrrev_b32 v6, 3, v{vLane}
        v_and_b32 v7, 7, v{vLane}
        v_and_b32 v5, 2, v6
        v_lshlrev_b32 v4, 1, v5
        v_xor_b32 v4, v4, v7
        v_mul_u32_u24 v3, 896, v6
        v_lshl_add_u32 v{aD}, v4, 4, v3
        v_add_u32 v{aD+1}, {1*(8*896-1024)}, v{aD}
        v_add_u32 v{aD+2}, {2*(8*896-1024)}, v{aD}
        v_add_u32 v{aD+3}, {3*(8*896-1024)}, v{aD}
        s_lshl_b32 s{eD}, s35, 7
        s_mul_i32 s32, s36, {32*896}
        s_add_u32 s{eD}, s{eD}, s32
        s_mul_i32 s{sD}, s33, {128*896}
        s_add_u32 s{sD}, s{sD}, s{eD}
        s_add_u32 s{eD}, s{eD}, {14*128*896}
        s_lshl_b32 s32, s36, 12
        v_lshl_add_u32 v16, v{vLane}, 4, s32
        v_add_u32 v17, 0x10000, v16
        v_add_u32 v18, 0x20000, v16
        s_lshl_b32 s59, s39, 11
        s_lshl_b32 s58, s34, 10
        s_add_u32 s59, s59, s58
        s_lshl_b32 s58, s36, 8
        s_add_u32 s59, s59, s58
        s_add_u32 s59, s59, {WS_FLAGS}
        s_lshl_b32 s43, s39, 1
        s_add_u32 s43, s43, s34
        s_mul_i32 s43, s43, {224*1024}
        s_lshl_b32 s44, s36, 11
        s_add_u32 s43, s43, s44
        s_add_u32 s43, s43, {WS_ACT+4096}
        v_bfe_u32 v3, v{vLane}, 3, 1
        v_add_u32 v3, s33, v3
        v_cmp_gt_u32 vcc, 14, v3
        v_cndmask_b32 v3, 0, v3, vcc
        v_lshlrev_b32 v3, 13, v3
        v_bfe_u32 v4, v{vLane}, 4, 1
        v_mul_u32_u24 v4, {112*1024}, v4
        v_add3_u32 v3, v3, v4, s43
        v_lshl_add_u32 v19, v7, 7, v3
        """)
        srd(A, 60, 24, W_BYTES)
    def fifo_load(first, n, reg0):
        if c.x_nopre: return
        hf = 64 * 896 if first >= 14 else 0
        assert first >= 14 or first + n <= 14
        A(f"s_add_u32 s43, s{sD}, {hf + (first % 14)*128*896}\ns_add_u32 s44, s{eD}, {hf}")
        for b in range(n):
            A(f"s_cmp_ge_u32 s43, s44\ns_cselect_b32 s34, {14*128*896}, 0\ns_sub_u32 s43, s43, s34")
            for i in range(4): A(f"buffer_load_dwordx4 {v(reg0+16*b+4*i,4)}, v{aD+i}, s[60:63], s43 offen offset:{1024*i}")
            A(f"s_add_u32 s43, s43, {128*896}")
            if c.fdepth is not None: A(f"s_waitcnt vmcnt({c.fdepth})")
    def fifo_put(first, n, reg0):
        if c.x_noput: return
        for b in range(n):
            sl = slot[("D", first + b)]
            for i in range(4): A(f"ds_write_b128 v{16+sl//8}, {v(reg0+16*b+4*i,4)} offset:{(sl%8)*BLK+1024*i}")
    daddr()
    A(f"""
    v_xor_b32 v4, v5, v7
    s_lshl_b32 s43, s36, 2
    v_xor_b32 v4, s43, v4
    v_mul_u32_u24 v3, 3584, v6
    v_lshl_add_u32 v{aW}, v4, 4, v3
    v_add_u32 v{aW+1}, {1*(8*3584-1024)}, v{aW}
    v_add_u32 v{aW+2}, {2*(8*3584-1024)}, v{aW}
    v_add_u32 v{aW+3}, {3*(8*3584-1024)}, v{aW}
    s_lshl_b32 s{eW}, s38, 8
    s_mul_i32 s{sW}, s38, {32*3584}
    s_add_u32 s{sW}, s{sW}, s{eW}
    s_add_u32 s{eW}, s{eW}, {14*32*3584}
    s_cmp_eq_u32 s36, 0
    s_cselect_b32 s20, s20, s22
    s_cselect_b32 s21, s21, s23
    """)
    srd(A, 52, 20, W_BYTES)
    A(f"""
    v_mov_b32 v20, 0
    v_mov_b32 v21, 0
    v_lshrrev_b32 v4, 4, v{vLane}
    v_mul_u32_u24 v4, {KP}, v4
    v_and_b32 v5, 15, v{vLane}
    v_lshl_add_u32 v4, v5, 2, v4
    s_lshl_b32 s43, s36, 15
    v_add_u32 v4, s43, v4
    s_mul_i32 s43, s36, {UPITCH}
    s_add_u32 s43, s43, {UO}
    v_lshl_add_u32 v3, v{vLane}, 3, s43
    """)
    A("s_waitcnt vmcnt(0)\ns_mov_b64 exec, 1\nglobal_store_dword v22, v23, s[30:31] sc0 sc1\ns_mov_b64 exec, -1")
    A(f"s_barrier\nds_write_b32 v4, v20 offset:{KB0}\nds_write_b64 v3, v[20:21]")
    if c.lf_at == 'B': fifo_load(14, 6, 24)
    A("s_waitcnt lgkmcnt(0)\ns_barrier")
    def dma(kind, idx, i):
        if kind == "F":
            if i == 0:
                A(f"s_cmp_ge_u32 s43, s44\ns_cselect_b32 s35, {14*128*896}, 0\ns_sub_u32 s43, s43, s35")
            A(f"buffer_load_dwordx4 {v(24+16*(idx-14)+4*i,4)}, v{aD+i}, s[60:63], s43 offen offset:{1024*i}")
            if i == 3: A(f"s_add_u32 s43, s43, {128*896}")
            return
        base_ = slot[(kind, idx)] * BLK
        a0, r0, s, e, step = {"W": (aW, 52, sW, eW, 32*3584), "D": (aD, 60, sD, eD, 128*896), "H": (4, 48, 40, 47, HS)}[kind]
        if i == 0:
            if idx == 14:
                A(f"s_add_u32 s{s}, s{s}, 128\ns_add_u32 s{e}, s{e}, 128")
            A(f"s_add_u32 m0, s32, {base_}\ns_add_u32 s33, s{s}, {step}")
        A(f"buffer_load_dwordx4 v{a0+i}, s[{r0}:{r0+3}], s{s} offen offset:{1024*i}{' sc1' if kind == 'H' else ''} lds")
        if i == 0: A(f"s_cmp_ge_u32 s33, s{e}\ns_cselect_b32 s34, {14*step}, 0")
        if i == 3: A(f"s_sub_u32 s{s}, s33, s34")
    if c.x_quietL: A('s_sleep 60')
    for x in issue[-2]: dma(*x)
    fifo_load(14, c.lf_c, 24)
    A(f"""
    v_lshrrev_b32 v2, 4, v{vLane}
    v_and_b32 v3, 15, v{vLane}
    v_lshlrev_b32 v4, 2, v2
    v_xor_b32 v4, v4, v3
    v_lshlrev_b32 v4, 4, v4
    v_and_b32 v3, 1, v2
    v_lshl_add_u32 v4, v3, 12, v4
    v_lshrrev_b32 v2, 1, v2
    v_lshl_add_u32 v4, v2, 14, v4
    v_add_u32 v5, {1*(32768-1024)}, v4
    v_add_u32 v6, {2*(32768-1024)}, v4
    v_add_u32 v7, {3*(32768-1024)}, v4
    s_lshl_b32 s47, s39, 8
    s_lshl_b32 s43, s36, 17
    s_add_u32 s47, s47, s43
    s_add_u32 s40, s38, {c.h0}
    s_cmp_ge_u32 s40, 14
    s_cselect_b32 s43, 14, 0
    s_sub_u32 s40, s40, s43
    s_lshl_b32 s40, s40, 18
    s_add_u32 s40, s40, s47
    s_add_u32 s47, s47, {14*HS}
    """)
    srd(A, 48, 30, XG_BYTES, WS_XG)
    PA.stamp(4)
    A("s_barrier")
    fifo_load(14 + c.lf_c, c.lf_d, 24 + 16 * c.lf_c)
    assert c.nlf == 6
    A("s_barrier")
    for x in issue[-1]: dma(*x)
    if c.nlf > 6: fifo_load(20 - c.nlf, c.nlf - 6, 120)
    A(f"s_waitcnt vmcnt({len(issue[-1]) + 4 * (c.lf_c + c.lf_d)})\ns_barrier")
    for i in range(0, 29):
        for x in issue[i]: dma(*x)
        if i == 3: A(f"s_waitcnt vmcnt({sum(len(issue[k]) for k in range(4))})")
        if wait[i] is not None: A(f"s_waitcnt vmcnt({min(63, wait[i])})")
        A("s_barrier")
    if c.nlf > 6: fifo_put(20 - c.nlf, c.nlf - 6, 120)
    if c.xe:
        A("s_barrier")
        fifo_put(14, 3, 24)
        A("s_barrier")
        fifo_put(17, 3, 72)
    elif c.auxpoll:
        assert c.yb_at <= 26 and c.nlf == 6
        fifo_put(14, 6, 24)
        A("s_barrier")
        poll_issue(PB_, 640); poll_wait(PB_, 640, True)
        if c.touch & 2: A("global_load_dword v2, v19, s[30:31] offset:1024 sc1\ns_barrier")
    else:
        assert c.yb_at <= 26
        fifo_put(14, c.put_0, 24)
        A(f"s_waitcnt lgkmcnt({min(15, 4 * c.put_0)})\ns_barrier")
        fifo_put(14 + c.put_0, c.put_l, 24 + 16 * c.put_0)
        A("s_barrier")
        fifo_put(14 + c.put_0 + c.put_l, 6 - c.put_0 - c.put_l, 24 + 16 * (c.put_0 + c.put_l))
    A("s_waitcnt lgkmcnt(0)")
    if c.phase == 1: Prof(A, 3).flush(5)
    A("s_endpgm")
    A(f"{hold}t:")
    if c.stouch & 1:
        A(f"v_mov_b32 v2, 0x6000\nv_mov_b32 v3, 0xA00000\nv_mov_b32 v4, 0xDFFF80\nv_mov_b32 v5, 0xE40000")
        for k in range(4): A(f"global_load_dword v{86+k}, v{(3, 4, 2, 5)[k]}, s[30:31]")
    if c.stouch & 2:
        A(f"v_and_b32 v2, 1, v{vLane}\nv_mul_u32_u24 v2, {W_BYTES - 128}, v2")
        for k in range(3): A(f"global_load_dword v{92+k}, v2, s[{20+2*k}:{21+2*k}]")
    if c.stouch & 4:
        A(f"s_mov_b32 s46, {WS_FLAGS + 0x7f00}\ns_load_dword s46, s[30:31], s46\nv_mov_b32 v3, 64\nglobal_load_dword v95, v3, s[28:29] sc1\ns_waitcnt lgkmcnt(0)")
    A(f"s_branch {hold}")
    A(f".p2align 3\n{auxs}:")
    PA.stamp(1)
    a0 = 90
    A(f"s_mov_b32 s42, 0x3f803f80\nv_and_b32 v4, 56, v{vLane}\ns_lshl_b32 s46, s47, 6\nv_add_u32 v4, s46, v4\nv_mov_b32 v2, {TAGA}")
    A("s_waitcnt lgkmcnt(0)\ns_add_u32 s57, s56, 1\ns_and_b32 s57, s57, 0xffff\ns_or_b32 s57, s57, 0x7f810000\ns_mov_b32 s45, 0")
    for i in range(28):
        z = i < 2
        if i % 4 == 0: A(f"s_waitcnt vmcnt({6-i//4})")
        if i == 4: PA.stamp(2)
        if i == 24: A("ds_read_b64 v[6:7], v2")
        A(f"v_dot2_f32_bf16 v{a0+(i&1)}, v{vRow+i}, s42, {'0' if z else 'v%d' % (a0+(i&1))}")
        A(f"v_dot2_f32_bf16 v{a0+2+(i&1)}, v{vRow+i}, v{vRow+i}, {'0' if z else 'v%d' % (a0+2+(i&1))}")
    A(f"v_add_f32 v{a0}, v{a0}, v{a0+1}\nv_add_f32 v{a0+2}, v{a0+2}, v{a0+3}")
    for op in ("quad_perm:[1,0,3,2]", "quad_perm:[2,3,0,1]", "row_half_mirror"):
        A(f"v_add_f32_dpp v{a0}, v{a0}, v{a0} {op}{DPP}\nv_add_f32_dpp v{a0+2}, v{a0+2}, v{a0+2} {op}{DPP}")
    A(f"""
    v_mul_f32 v{a0}, {f32(1.0/448)}, v{a0}
    v_mul_f32 v{a0+2}, {f32(1.0/448)}, v{a0+2}
    v_fma_f32 v{a0+2}, -v{a0}, v{a0}, v{a0+2}
    v_max_f32 v{a0+2}, 0, v{a0+2}
    v_cvt_pk_bf16_f32 v{a0+2}, v{a0+2}, v{a0+2}
    v_and_b32 v{a0+2}, s43, v{a0+2}
    v_add_f32 v{a0+2}, {f32(1e-5)}, v{a0+2}
    v_cvt_pk_bf16_f32 v{a0+2}, v{a0+2}, v{a0+2}
    v_and_b32 v{a0+2}, s43, v{a0+2}
    v_sqrt_f32 v{a0+2}, v{a0+2}
    v_mov_b32 v{a0+1}, s57
    v_cvt_pk_bf16_f32 v{a0}, v{a0}, v{a0+2}
    s_cmp_ge_u32 s2, 224
    s_cbranch_scc1 Ltg2
    Ltg:
    s_waitcnt lgkmcnt(0)
    v_xor_b32 v6, s57, v6
    v_xor_b32 v7, s57, v7
    v_or_b32 v6, v6, v7
    v_cmp_ne_u32 vcc, 0, v6
    s_cbranch_vccz Ltg2
    ds_read_b64 v[6:7], v2
    s_add_u32 s45, s45, 1
    s_cmp_lt_u32 s45, {SPIN}
    s_cbranch_scc1 Ltg
    Ltg2:
    s_mov_b32 exec_lo, 0x01010101
    s_mov_b32 exec_hi, 0x01010101
    global_store_dwordx2 v4, {v(a0,2)}, s[30:31] sc0 sc1
    s_mov_b64 exec, -1
    """)
    PA.stamp(3)
    if base.PROF and c.phase == 1:
        A(f"s_branch {hold}x\n{hold}:")
        for k in (1, 2, 3): PA.stamp(k)
        A(f"{hold}x:")
    else: A(f"{hold}:")
    A(f"s_setprio 0\ns_barrier\ns_cmp_ge_u32 s2, 224\ns_cbranch_scc1 {end}")
    daddr()
    sH, eH, sV = 40, 41, 47
    VR = 20
    A(f"""
    v_lshrrev_b32 v6, 4, v{vLane}
    v_and_b32 v7, 15, v{vLane}
    v_lshlrev_b32 v5, 2, v6
    v_xor_b32 v5, v5, v7
    v_lshlrev_b32 v5, 4, v5
    v_and_b32 v7, 1, v6
    v_lshl_add_u32 v5, v7, 12, v5
    v_lshrrev_b32 v6, 1, v6
    v_lshl_add_u32 v{aH}, v6, 14, v5
    v_add_u32 v{aH+1}, {1*(32768-1024)}, v{aH}
    v_add_u32 v{aH+2}, {2*(32768-1024)}, v{aH}
    v_add_u32 v{aH+3}, {3*(32768-1024)}, v{aH}
    s_lshl_b32 s{eH}, s39, 8
    s_lshl_b32 s43, s36, 17
    s_add_u32 s{eH}, s{eH}, s43
    s_lshl_b32 s{sH}, s38, 18
    s_add_u32 s{sH}, s{sH}, s{eH}
    s_add_u32 s{eH}, s{eH}, {14*HS}
    s_mov_b32 s56, 0x7f810000
    s_mov_b32 s{sV}, s{sH}
    """)
    srd(A, 48, 30, XG_BYTES, WS_XG)
    def wtouch():
        A(f"s_lshl_b32 s43, s2, 1\ns_add_u32 s43, s43, s36\ns_mul_i32 s43, s43, {28*128}\nv_min_u32 v2, 27, v{vLane}\nv_lshl_add_u32 v2, v2, 7, s43")
        for k in range(3):
            if c.wtouch >> k & 1: A(f"global_load_dword v{36+k}, v2, s[{20+2*k}:{21+2*k}]")
    if c.wt_at == 'A': wtouch()
    A("s_barrier")
    if c.wt_at == 'B': wtouch()
    if c.hf_at == 'B':
        fifo_load(20, 3, 40)
    A("s_barrier")
    if c.wt_at == 'C': wtouch()
    if c.ptouch:
        A(f"""
        s_mul_i32 s43, s39, {4*112*1024}
        s_add_u32 s43, s43, {WS_ACT}
        v_and_b32 v2, 7, v{vLane}
        v_min_u32 v2, 6, v2
        v_lshl_add_u32 v2, v2, 16, s43
        global_load_dword v36, v2, s[30:31]
        s_and_b32 s44, s2, 1
        s_lshl_b32 s43, s39, 1
        s_add_u32 s43, s43, s44
        s_mul_i32 s43, s43, {64*896}
        s_lshr_b32 s44, s2, 5
        s_lshl_b32 s44, s44, 7
        s_add_u32 s43, s43, s44
        v_and_b32 v2, 1, v{vLane}
        v_mul_u32_u24 v2, {63*896}, v2
        v_add_u32 v2, s43, v2
        global_load_dword v37, v2, s[26:27]
        """)
        if c.pt2: A(f"s_mov_b32 s43, {WS_FLAGS + 0x7f40}\ns_load_dword s57, s[30:31], s43\nv_mov_b32 v3, 64\nglobal_load_dword v38, v3, s[28:29] sc1")
    if c.hf_at == 'B': fifo_load(23, 5, 88)
    elif c.hf_at == 'C': fifo_load(20, 8, 40)
    else: fifo_load(20, c.hf_c, 40)
    PA.stamp(4)
    A(f"s_barrier\ns_barrier\ns_setprio {c.hprio}")
    def hblock(s, m0expr):
        A(f"s_add_u32 m0, {m0expr}\ns_add_u32 s33, s{s}, {HS}")
        for i in range(4):
            A(f"buffer_load_dwordx4 v{aH+i}, s[48:51], s{s} offen offset:{1024*i} sc1 lds")
            if i == 0: A(f"s_cmp_ge_u32 s33, s{eH}\ns_cselect_b32 s34, {14*HS}, 0")
        A(f"s_sub_u32 s{s}, s33, s34")
    nH = [0]
    def hissue(k):
        for _ in range(k):
            if nH[0] < 14:
                hblock(sH, f"s32, {slot[('H', nH[0])]*BLK}"); nH[0] += 1
    def vread(b):
        if b < nH[0]: A(f"s_waitcnt vmcnt({4*(nH[0]-1-b)})")
        for i in range(4): A(f"ds_read_b128 {v(VR+4*i,4)}, v{16+b//8} offset:{(slot[('H', b)]%8)*BLK+1024*i}")
    def vcheck(b):
        ck = A.label("hv"); ok = A.label("hok"); rp = A.label("hrp")
        last = b + 1 if c.rep_one else max(nH[0], b + 1)
        if c.w8 and b < 12: last = min(last, 12)
        sb = slot[('H', b)]
        A(f"""
        s_mov_b32 s45, 0
        {ck}:
        s_waitcnt lgkmcnt(0)
        v_max3_i32 v2, v{VR+1}, v{VR+3}, v{VR+5}
        v_max3_i32 v3, v{VR+7}, v{VR+9}, v{VR+11}
        v_max3_i32 v2, v2, v{VR+13}, v{VR+15}
        v_max_i32 v2, v2, v3
        v_cmp_le_i32 vcc, s56, v2
        {"s_cmp_eq_u32 s45, 0" if c.x_force else ""}
        {f"s_cbranch_scc1 {rp}f" if c.x_force else ""}
        s_cbranch_vccnz {rp}f
        """)
        cx = Cold(); cx.__enter__()
        A(f"""
        {rp}f:
        {f"s_sleep {c.backoff}" if c.backoff else ""}
        s_add_u32 s45, s45, 1
        s_cmp_ge_u32 s45, {SPIN}
        s_cbranch_scc1 {ok}
        s_mov_b32 s43, s{sV}
        s_add_u32 s44, s32, {sb*BLK}
        s_add_u32 s35, s32, {(sb+last-b)*BLK}
        {rp}:
        """)
        hblock(43, "s44, 0")
        A(f"s_add_u32 s44, s44, {BLK}\ns_cmp_lt_u32 s44, s35\ns_cbranch_scc1 {rp}\ns_waitcnt vmcnt({4*(last-1-b) if last == nH[0] else 0})")
        for i in range(4): A(f"ds_read_b128 {v(VR+4*i,4)}, v{16+b//8} offset:{(sb%8)*BLK+1024*i}")
        A(f"s_branch {ck}")
        cx.__exit__()
        A(f"{ok}:\ns_add_u32 s{sV}, s{sV}, {HS}\ns_cmp_ge_u32 s{sV}, s{eH}\ns_cselect_b32 s34, {14*HS}, 0\ns_sub_u32 s{sV}, s{sV}, s34")
    if c.probe:
        hissue(c.probe); vread(0); vcheck(0)
        if c.fast0: A("s_barrier")
        hissue(c.h0 - c.probe); vread(1)
    else:
        hissue(c.h0); vread(0); vcheck(0); vread(1)
    if not c.fast0: A("s_barrier")
    hs = [0] * 14 if c.hl else list(c.hiss) + [1] * 14
    for i in range(0, 13):
        vcheck(i + 1)
        k = hs.pop(0)
        assert i >= 3 or nH[0] + k <= 12
        if i + 2 < 14:
            if nH[0] - (i + 2) < c.hnear: hissue(k); k = 0
            vread(i + 2)
        hissue(k)
        kf = c.hf_c + i - c.hf_p
        if c.hf_at == 'P' and c.hf_c <= kf < 8: fifo_load(20 + kf, 1, 40 + 16 * kf)
        A("s_barrier")
    if c.hf_at == 'P':
        kf = max(c.hf_c, c.hf_c + 13 - c.hf_p)
        if kf < 8: fifo_load(20 + kf, 8 - kf, 40 + 16 * kf)
    assert nH[0] == 14 or c.hl
    A("s_setprio 0\nv_mov_b32 v2, 0")
    for i in range(13, 29 + (2 if c.xe else 0 if c.auxpoll else 1)):
        if i in c.cs2:
            sk = A.label("cs2")
            A(f"s_cmp_lg_u32 s36, 0\ns_cbranch_scc1 {sk}")
            ld = "global_load_dword v3, v2, s[28:29] offset:128 sc1"
            if i == c.cs2[0]: A(ld)
            else: A(f"s_mov_b32 s45, 0\n{sk}p:\ns_waitcnt vmcnt(0)\nv_cmp_gt_u32 vcc, 32, v3\ns_cbranch_vccz {sk}\ns_sleep {c.cs_back}\n{ld}\ns_add_u32 s45, s45, 1\ns_cmp_lt_u32 s45, {SPIN}\ns_cbranch_scc1 {sk}p")
            A(f"{sk}:")
        A("s_barrier")
    A("s_waitcnt vmcnt(0)")
    if c.auxpoll:
        if c.psleep: A(f"s_sleep {c.psleep}")
        poll_issue(PA_, 512); poll_wait(PA_, 512, True)
        if c.touch & 1: A("global_load_dword v2, v19, s[30:31] sc1")
        A("s_barrier")
        fifo_put(20, c.put_a, 40)
        A("s_barrier")
        fifo_put(20 + c.put_a, 8 - c.put_a, 40 + 16 * c.put_a)
    else:
        fifo_put(20, c.put_a, 40)
        A("s_barrier")
        fifo_put(20 + c.put_a, 8 - c.put_a, 40 + 16 * c.put_a)
    A("s_waitcnt lgkmcnt(0)")
    if c.phase == 1: Prof(A, 3).flush(5)
    A(f"{end}:\ns_endpgm")
    A.L.extend(cold)
    A(f".p2align 3\n{hlp}:")
    if c.phase == 0: base.PROF = False
    gen_helper(A, c, Prof(A, 4))
    def rnd(l):
        u = np.float32(max(l, 0)).view(np.uint32)
        u = (int(u) + 0x7FFF + ((int(u) >> 16) & 1)) & 0xFFFF0000
        return int(np.uint32(u).view(np.float32))
    ad = [[(rnd(8 * b - 3 + r) & 7) * TP + (rnd(8 * b - 3 + r) >> 3) * 4 for r in range(12)] for b in range(256)]
    A(f".p2align 7\n.type {tab},@object\n{tab}:")
    for b in range(256): A(".long " + ", ".join("0x%08x" % (ad[b][2*k] | ad[b][2*k+1] << 16) for k in range(4)))
    for b in range(256): A(".long " + ", ".join("0x%08x" % (ad[b][2*k] | ad[b][2*k+1] << 16) for k in range(4, 6)))
    A(f".size {tab}, {256*24}")
    return kernel_desc(name, 168, 102)
```

```python
from base import *
import base
from ka import load_ptrs, cmul, cexp
import numpy as np
WS_E = 0x4000
WS_PZ = 0x5000
WS_XG = 0xA01000
XG_BYTES = 224 * 16384
REG = 16384
TP, GP = 1056, 272
KP = 4160
KB0 = 8704
UO, UPITCH = 74240, 4608
PARO = 98304
XT = 140288
TAGA = XT + 8192
BLK = 8192
NSL = 20
CON = 19 * BLK
F_LDS = NSL * BLK
GK0 = -2.0 * LOG2E * 0.7978845608028654
GK1 = GK0 * 0.044715
SPIN = 1 << 18
HS = 16 * 16384

class Cfg:
    code_bytes = 49152
    prio_mid = 26
    poll_late = 0
    e1_first, e1_last = 15, 21
    e1_packed = False
    drain0 = (21, 25)
    pollA, chkA = 24, 27
    earlyT = (4, 1)
    poll0 = 28
    ya_at, yb_at = 17, 24
    put_a = 3
    pace1, pace2, pace = 2, 1, {}
    pa_early = False
    g_pre = 0
    tdepth, tdepth2 = 22, 16
    gate_ahead = {14: 14, 28: 4, 42: 12}
    pollT1 = (20, 28)
    capP = 8
    caps = {}
    gat_issue, gat_check = 8, 10
    con_write = 12
    il = 2
    stflag = 'sc0 sc1'
    prioB = 2
    h0 = 5
    hiss = (1, 2, 1, 1, 1, 1, 1)
    ca_load = 11
    cs_issue = 7
    hdepth = 1
    fdepth = None
    x_delay = 0
    x_force = False
    backoff = 4
    rep_one = False
    x_nocs = False
    sweepW = False
    sweepD = False
    hramp = 0
    xp_chk = False
    npk = True
    lfifo = (8, 14)
    hprio = 3
    pz_sleep = 4
    hnear = 3
    lf_at = 'C'
    hf_at = 'P'
    poi_at = '0'
    wide_h = True
    xp_at = 0
    gat_split = (3, 4)
    x_nogat = False
    cprio = 3
    nprio = 2
    auxprio = 3
    x_nopre = False
    emode = 0
    csort = True
    probe = 1
    x_quietN = False
    x_quietL = False
    cmin = 5
    cmerge = (0, 2, 4, 6)
    w8 = False
    nlf = 6
    outflag = ''
    hl = True
    x_pad = 0
    wsoff = 0
    hf_c = 4
    hf_p = 10
    xmask = True
    auxpoll = False
    sig_early = False
    psleep = 0
    tpost = True
    cs_back = 16
    wtouch = 0
    wt_at = 'A'
    hseq = True
    hbar2 = False
    fast0 = False
    fin_ov = 3
    nstage = True
    x16 = ''
    e2pk = 4
    xe_at = 4
    ptouch = True
    stouch = 0
    sgran = 21
    auxfirst = False
    kfirst = True
    auxprio0 = 3
    cpearly = True
    xback = 0
    revrow = True
    ppair = False
    x_sdelay = 0
    wpre = 3
    x_pre = 0
    xsflag = 'sc0 sc1'
    pt2 = True
    dlate = True
    tdep0 = 8
    corr_at = 27
    lf_c = 3
    lf_d = 0
    lf_i = (7, 12, 13, 14, 27, 28)
    touch = 0
    x_noput = False
    x_notl = False
    selfrd = False
    sweepU = 3
    hsleep = 0
    cs2 = (17, 20)
    hwait = None
    x_nocp = False
    warm = True
    npg = 5
    stcost = 8
    xe = True
    x_cnt = False
    put_0, put_l = 6, 0
    x_fine = None
    phase = 1

def schedule(c):
    need = {("W", s): s for s in range(28)}
    last_use = {("W", s): s + 1 for s in range(28)}
    for t in range(28): last_use[("D", t)] = 1000
    hslot = [sl + (2 if c.w8 and sl >= 12 else 0) for sl in range(14)]
    w0 = 12 if c.w8 else 14
    free_at = {sl: (16 + sl if sl < w0 else -2 if sl >= 14 else -1) for sl in range(NSL)}
    slot = {("H", k): hslot[k] for k in range(14)}
    issue = {i: [] for i in range(-2, 29)}
    n = dict(W=0, D=0, H=c.h0 if c.hl else 14)
    for k in range(n["H"], 14): need[("H", k)] = k - 2; last_use[("H", k)] = 15 + k
    nd = 20 - c.nlf
    cur = None
    def pick(i):
        nW, nD = n["W"], n["D"]
        wf = [sl for sl in range(w0, NSL) if free_at[sl] <= i and (sl != 19 or i >= 15 or nW + 1 < c.con_write)]
        canH = n["H"] < 14 and i >= 0 and (not c.w8 or n["H"] < 12 or i >= n["H"] - 10)
        if canH and (n["H"] - 2 <= nW or not wf): return ("H", n["H"]), hslot[n["H"]]
        if nW < 28 and wf: return ("W", nW), wf[0]
        fr = [sl for sl in range(NSL) if free_at[sl] <= i and (sl < w0 or nW == 28)]
        if fr and nD < nd: return ("D", nD), fr[0]
        return None
    for i in range(-2, 29):
        cap = 24 if i < 0 else c.caps.get(i, c.capP)
        while cap > 0:
            if cur is None:
                p = pick(i)
                if p is None: break
                b, sl = p
                slot[b] = sl; free_at[sl] = last_use[b] + 1; n[b[0]] += 1
                if c.w8 and b in (("W", 0), ("W", 1)): free_at[sl] = 28 + b[1]
                cur = [b, 0]
            issue[i].append((cur[0][0], cur[0][1], cur[1])); cur[1] += 1; cap -= 1
            if cur[1] == 4: cur = None
    assert n["D"] == nd and cur is None
    rest = sorted((sl for sl in range(NSL) if free_at[sl] < 1000), key=lambda sl: free_at[sl])
    assert len(rest) == c.nlf
    for k, sl in enumerate(rest): slot[("D", nd + k)] = sl
    for t in range(20, 28): slot[("D", t)] = slot[("D", t - 20)]
    for k in range(c.lf_c + c.lf_d, 6): issue[c.lf_i[k - c.lf_c - c.lf_d]] += [("F", 14 + k, q) for q in range(4)]
    order = [b for i in range(0, 29) for b in issue[i]]
    pos = {b: k for k, b in enumerate(order)}
    wait = {}
    cnt = 0
    for i in range(0, 29):
        cnt += len(issue[i])
        req = [b for b in need if need[b] == i + 1 and b + (3,) in pos]
        wait[i] = None if not req else cnt - 1 - max(pos[b + (3,)] for b in req)
        if i == 28: wait[i] = 0
        assert wait[i] is None or wait[i] >= 0, (i, req)
    return issue, slot, wait

def wsadd(c): return f"s_add_u32 s30, s30, {c.wsoff}\ns_addc_u32 s31, s31, 0" if c.wsoff else ""

def gen_helper(A, c, P):
    A(f"""
    s_cmp_eq_u32 s36, 9
    s_cbranch_scc1 Lhe
    s_sub_u32 s44, s2, 224
    s_lshr_b32 s45, s44, 3
    s_bfe_u32 s46, s44, 0x20001
    s_lshl_b32 s46, s46, 2
    s_add_u32 s46, s46, s45
    s_and_b32 s44, s44, 1
    s_cmp_ge_u32 s46, 14
    s_cselect_b32 s47, 2, 0
    s_sub_u32 s46, s46, s47
    v_and_b32 v1, 7, v0
    v_lshrrev_b32 v2, 3, v0
    v_mul_u32_u24 v2, 3584, v2
    v_lshl_add_u32 v2, v1, 4, v2
    s_cmp_ge_u32 s46, 7
    s_cselect_b32 s47, 7, 0
    s_waitcnt lgkmcnt(0)
    s_cselect_b32 s48, s22, s20
    s_cselect_b32 s49, s23, s21
    {wsadd(c)}
    s_sub_u32 s46, s46, s47
    s_mul_i32 s50, s44, 7
    s_add_u32 s46, s46, s50
    s_lshl_b32 s47, s47, 1
    s_add_u32 s52, s46, s47
    s_lshl_b32 s55, s46, 8
    s_mov_b32 s50, {W_BYTES}
    s_mov_b32 s51, 0x20000
    s_lshr_b32 s54, s52, 1
    s_mul_i32 s54, s54, {128*896}
    s_and_b32 s53, s52, 1
    s_lshl_b32 s53, s53, 3
    s_add_u32 s53, s53, s36
    s_mul_i32 s53, s53, {28*128}
    s_add_u32 s54, s54, s53
    s_add_u32 s54, s54, {64*896}
    v_and_b32 v3, 63, v0
    v_min_u32 v3, 27, v3
    v_lshl_add_u32 v3, v3, 7, s54
    v_lshrrev_b32 v12, 6, v0
    v_lshlrev_b32 v12, 8, v12
    v_lshl_add_u32 v12, v1, 5, v12
    v_and_b32 v14, 63, v0
    v_lshlrev_b32 v13, 2, v14
    s_lshl_b32 s46, s52, 10
    s_add_u32 s46, s46, {WS_CS}
    v_lshl_add_u32 v14, v14, 3, s46
    s_mov_b32 s42, 0x00003f80
    s_mov_b32 s43, 0x3f800000
    s_mov_b32 s41, 0xffff0000
    s_mov_b32 s56, 0
    """)
    if c.hsleep: A(f"s_sleep {c.hsleep}")
    A("s_barrier")
    if c.hbar2: A("s_barrier")
    A("s_cmp_eq_u32 s36, 8\ns_cbranch_scc1 Lhf")
    for h in range(2):
        A(f"s_mov_b32 s47, s55")
        for p in range(7):
            A(f"buffer_load_dwordx4 {v(40+28*h+4*p,4)}, v2, s[48:51], s47 offen offset:{128*h}")
            if p < 6: A("s_add_u32 s47, s47, %d" % (64 * 3584))
        if not c.wtouch & 4: A(f"global_load_dword v{100+h}, v3, s[24:25]")
        if h == 0:
            A(f"v_subrev_u32 v3, {64*896}, v3")
            if c.hseq: A("s_waitcnt vmcnt(3)")
    A(f"s_waitcnt vmcnt({7 if c.wtouch & 4 else 9})\nLhl:")
    for p in range(7):
        for q in range(4):
            for hl in range(2):
                acc = 4 + 2 * q + hl
                A(f"v_dot2_f32_bf16 v{acc}, v{40+4*p+q}, s{42+hl}, {'0' if p == 0 else 'v%d' % acc}")
    for q in range(8): A(f"v_add_f32_dpp v{4+q}, v{4+q}, v{4+q} row_ror:8{DPP}")
    for op in ("v_permlane16_swap_b32", "v_permlane32_swap_b32"):
        for q in range(8): A(f"v_mov_b32 v{16+q}, v{4+q}")
        for q in range(8): A(f"{op} v{4+q}, v{16+q}")
        for q in range(8): A(f"v_add_f32 v{4+q}, v{4+q}, v{16+q}")
    A(f"""
    s_mov_b64 exec, 0xff
    ds_write_b128 v12, v[4:7]
    ds_write_b128 v12, v[8:11] offset:16
    s_mov_b64 exec, -1
    s_waitcnt lgkmcnt(0)
    s_barrier
    s_cmp_lg_u32 s56, 0
    s_cbranch_scc1 Lhe
    s_mov_b32 s56, 1
    v_add_u32 v12, 2048, v12
    s_waitcnt vmcnt({0 if c.wtouch & 4 else 1})
    """)
    for k in range(28): A(f"v_mov_b32 v{40+k}, v{68+k}")
    A(f"""
    s_branch Lhl
    Lhf:
    s_barrier
    ds_read2st64_b32 v[4:5], v13 offset0:0 offset1:1
    ds_read2st64_b32 v[6:7], v13 offset0:2 offset1:3
    ds_read2st64_b32 v[8:9], v13 offset0:4 offset1:5
    ds_read2st64_b32 v[10:11], v13 offset0:6 offset1:7
    s_waitcnt lgkmcnt(0)
    v_pk_add_f32 v[4:5], v[4:5], v[6:7]
    v_pk_add_f32 v[8:9], v[8:9], v[10:11]
    v_pk_add_f32 v[4:5], v[4:5], v[8:9]
    v_add_f32 v4, v4, v5
    v_cvt_pk_bf16_f32 v5, v4, v4
    v_and_b32 v5, s41, v5
    v_sub_f32 v6, v4, v5
    v_cvt_pk_bf16_f32 v8, v5, v6
    v_and_b32 v7, s41, v8
    v_sub_f32 v6, v6, v7
    v_cvt_pk_bf16_f32 v9, v6, 0
    global_store_dwordx2 v14, v[8:9], s[30:31] sc0 sc1
    s_mov_b32 s46, 1
    s_waitcnt vmcnt(0)
    s_atomic_add s46, s[28:29], s56
    v_add_u32 v14, 512, v14
    v_add_u32 v13, 2048, v13
    s_add_u32 s56, s56, 128
    """)
    if base.PROF: A("s_mov_b32 s74, s76\ns_memrealtime s[76:77]")
    A("s_waitcnt lgkmcnt(0)\ns_cmp_lt_u32 s56, 256\ns_cbranch_scc1 Lhf")
    P.flush(3)
    A("Lhe:\ns_endpgm")

def gen(A, name, c=Cfg, verbose=False):
    issue, slot, wait = schedule(c)
    if verbose:
        for i in range(-2, 29): print(i, ' '.join(k + str(j) + '.' + str(q) for k, j, q in issue[i]), wait.get(i))
        print({k: x for k, x in slot.items() if k[0] == "D"})
    kernel_head(A, name)
    end = A.label("end"); hlp = A.label("hlp"); kw_ = A.label("kw"); nw = A.label("nw"); tab = A.label("tab")
    auxt = A.label("auxt"); auxs = A.label("auxs"); til = A.label("til"); hold = A.label("hold")
    P0 = Prof(A, 1)
    class PH:
        def __init__(s, ph, kid=1): s.on = c.phase == ph; s.P = Prof(A, kid)
        def stamp(s, i):
            if s.on: s.P.stamp(i)
    P = PH(1); PA = PH(1, 3)
    class Bars:
        def __init__(s, marks, n1, kid=1): s.n = 0; s.marks = c.x_fine or marks; s.on = c.phase == 2; s.n1 = n1; s.P = Prof(A, kid)
        def bar(s):
            A("s_barrier")
            if s.on and s.n in s.marks: s.P.stamp(1 + s.marks.index(s.n))
            s.n += 1
        def mark(s, k):
            if s.on and not c.x_fine: s.P.stamp(1 + len(s.marks) + k)
        def fin(s, k=0):
            if c.phase == 0:
                if s.n1 == 13: s.P.flush(1)
                return
            if not s.on: s.P.flush(s.n1); return
            k = 0 if c.x_fine else k
            s.P.stamp(1 + len(s.marks) + k); s.P.flush(2 + len(s.marks) + k)
    cold = []
    class Cold:
        def __enter__(s): s.keep = A.L; A.L = []
        def __exit__(s, *a): cold.extend(A.L); A.L = s.keep
    wst = []
    def target(lab):
        wst.append(lab)
        A(f".p2align 6\n{lab}w:\ns_setpc_b64 s[96:97]\ns_nop 0\n{lab}:")
    A(f"s_cmp_ge_u32 s2, 256\ns_cbranch_scc1 {end}")
    P0.stamp(0)
    load_ptrs(A)
    A(f"s_getpc_b64 s[60:61]\nLpc:")
    vLane, vG, vJ = 1, 2, 3
    per = (c.code_bytes // 128 + 63) // 64
    vRow, vXG = 16, 48
    ffn_ids = """
    s_and_b32 s37, s2, 7
    s_lshr_b32 s38, s2, 3
    s_and_b32 s40, s38, 3
    s_lshr_b32 s39, s37, 1
    s_lshl_b32 s39, s39, 2
    s_add_u32 s39, s39, s40
    s_and_b32 s34, s37, 1
    s_lshr_b32 s35, s38, 2
    s_mul_i32 s38, s34, 7
    s_add_u32 s38, s38, s35
    s_mul_i32 s33, s40, 3
    s_lshl_b32 s37, s35, 1
    s_add_u32 s33, s33, s37
    s_cmp_ge_u32 s33, 14
    s_cselect_b32 s37, 14, 0
    s_sub_u32 s33, s33, s37
    """
    if c.cpearly:
        A(f"""
        s_lshr_b32 s62, s2, 3
        s_mul_i32 s62, s62, {2*per*128}
        v_lshl_add_u32 v2, v0, 7, s62
        v_min_u32 v2, Lcode_end-Lpc-4, v2
        v_cmp_gt_u32 vcc, {2*per}, v0
        s_and_saveexec_b64 s[62:63], vcc
        s_cbranch_execz Lcpx
        global_load_dword v167, v2, s[60:61]
        Lcpx:
        s_mov_b64 exec, -1
        """)
    if c.auxfirst: A("v_add_u32 v2, 512, v0\nv_subrev_u32 v0, 256, v0\nv_min_u32 v0, v0, v2")
    A(f"""
    v_lshrrev_b32 v4, 6, v0
    v_and_b32 v{vLane}, 63, v0
    s_and_b32 s37, s2, 7
    v_readfirstlane_b32 s36, v4
    s_mul_i32 s37, s37, 28
    s_lshr_b32 s38, s2, 3
    s_add_u32 s37, s37, s38
    s_mov_b32 s43, 0xffff0000
    """)
    vP = 8
    def kissue():
        A(f"""
        v_mov_b32 v{vP}, 0
        v_mov_b32 v{vP+1}, 0
        v_mov_b32 v{vP+2}, 0
        v_mov_b32 v{vP+3}, 0
        s_lshl_b32 s48, s37, 10
        v_lshl_add_u32 v4, v0, 1, s48
        s_lshl_b32 s48, s37, 2
        s_lshl_b32 s56, s36, 14
        s_mov_b32 m0, s56
        s_lshr_b32 s38, s36, 2
        s_add_u32 s62, s60, {tab}-Lpc+2048
        s_addc_u32 s63, s61, 0
        s_waitcnt lgkmcnt(0)
        s_load_dword s52, s[14:15], s48
        global_load_short_d16_hi v{vP}, v4, s[6:7]
        global_load_short_d16_hi v{vP+1}, v4, s[8:9]
        global_load_short_d16_hi v{vP+2}, v4, s[10:11]
        global_load_short_d16_hi v{vP+3}, v4, s[12:13]
        {'' if c.dlate else 's_load_dword s53, s[16:17], s48'}
        {wsadd(c)}
        """)
    if c.kfirst:
        A(f"s_cmp_ge_u32 s36, 8\ns_cbranch_scc1 Laux\ns_cmp_ge_u32 s2, 224\ns_cbranch_scc1 {hlp}")
        kissue()
        A(f"s_branch {kw_}\nLaux:")
    else: A(f"s_cmp_lt_u32 s36, 8\ns_cbranch_scc1 {kw_}")
    A(f"""
    s_setprio {c.auxprio0}
    v_lshrrev_b32 v5, 3, v{vLane}
    v_and_b32 v6, 7, v{vLane}
    v_mul_u32_u24 v7, 896, v5
    s_cmp_lt_u32 s36, 10
    s_cbranch_scc1 {til}
    s_and_b32 s36, s36, 1
    """)
    if not c.cpearly: A(f"""
    s_lshr_b32 s62, s2, 2
    s_and_b32 s62, s62, 62
    s_add_u32 s62, s62, s36
    s_mul_i32 s62, s62, {per*128}
    v_min_u32 v10, {per-1}, v{vLane}
    v_lshl_add_u32 v10, v10, 7, s62
    v_min_u32 v10, Lcode_end-Lpc-4, v10
    global_load_dword v99, v10, s[60:61]
    """)
    A(f"""
    s_and_b32 s47, s2, 7
    s_lshl_b32 s47, s47, 5
    s_add_u32 s47, s47, s38
    {"s_xor_b32 s47, s47, 31" if c.revrow else ""}
    s_mul_i32 s48, s47, {8*896}
    v_lshl_add_u32 v8, v6, 4, v7
    v_add_u32 v8, s48, v8
    s_waitcnt lgkmcnt(0)
    {wsadd(c)}
    s_cmp_eq_u32 s36, 1
    s_cbranch_scc1 {hold}t
    s_load_dword s56, s[30:31], {WS_E}
    """)
    for i in range(7): A(f"global_load_dwordx4 {v(vRow+4*i,4)}, v8, s[4:5] offset:{128*i}")
    A(f"""
    s_branch {auxs}
    {til}:
    s_cmp_ge_u32 s2, 224
    s_cbranch_scc1 {hlp}
    s_and_b32 s36, s36, 1
    s_mul_i32 s46, s37, 9363
    s_lshr_b32 s46, s46, 16
    s_mul_i32 s47, s46, 7
    s_sub_u32 s47, s37, s47
    s_lshl_b32 s46, s46, 1
    s_add_u32 s46, s46, s36
    s_mul_i32 s49, s46, {32*896}
    s_lshl_b32 s48, s47, 7
    s_add_u32 s49, s49, s48
    s_lshl_b32 s47, s47, 19
    s_lshl_b32 s46, s46, 8
    s_add_u32 s51, s47, s46
    s_lshl_b32 s46, s36, 12
    s_add_u32 s46, s46, {XT}
    s_mov_b32 m0, s46
    v_lshrrev_b32 v4, 1, v5
    v_xor_b32 v4, v4, v6
    v_lshl_add_u32 v12, v4, 4, v7
    v_xor_b32 v4, 4, v4
    v_lshl_add_u32 v13, v4, 4, v7
    v_add_u32 v13, {8*896-1024}, v13
    v_add_u32 v14, {16*896-2048}, v12
    v_add_u32 v15, {16*896-2048}, v13
    s_mov_b32 s34, {X_BYTES}
    s_mov_b32 s35, 0x20000
    s_waitcnt lgkmcnt(0)
    s_mov_b32 s32, s4
    s_mov_b32 s33, s5
    """)
    for i in range(4): A(f"buffer_load_dwordx4 v{12+i}, s[32:35], s49 offen offset:{1024*i} lds")
    A(f"{wsadd(c)}\ns_load_dword s57, s[30:31], {WS_E}")
    A(f"s_branch {auxt}\n{kw_}:")
    if not c.kfirst: A(f"s_cmp_ge_u32 s2, 224\ns_cbranch_scc1 {hlp}")
    vP, vDT = 8, 12
    a2, b2 = 14, 15
    w1, w256, w2, w512 = 16, 18, 20, 22
    tA, tB, tC = 24, 26, 28
    G, G2, Hh, W4, HT, CV = 30, 46, 62, 68, 70, 78
    vTB, vA, vBc, vRA = 88, 94, 95, 96
    if not c.kfirst: kissue()
    P.stamp(1)
    A(f"""
    v_bfe_u32 v{vG}, v0, 5, 1
    v_and_b32 v{vJ}, 31, v0
    s_lshl_b32 s46, s36, 15
    v_mul_u32_u24 v4, {GP}, v{vJ}
    v_lshl_add_u32 v4, v{vG}, 4, v4
    v_add_u32 v{vRA}, s46, v4
    s_bfe_u32 s39, s36, 0x10001
    s_and_b32 s40, s36, 1
    s_lshl_b32 s48, s39, 15
    s_lshl_b32 s47, s40, 8
    s_add_u32 s48, s48, s47
    s_add_u32 s48, s48, {KB0+64-24}
    v_and_b32 v4, 3, v0
    v_sub_u32 v4, 3, v4
    v_mul_u32_u24 v4, {KP}, v4
    v_bfe_u32 v5, v0, 2, 2
    v_lshl_add_u32 v4, v5, 3, v4
    v_bfe_u32 v5, v0, 4, 2
    v_lshl_add_u32 v4, v5, 4, v4
    v_add_u32 v{vA}, s48, v4
    s_mul_i32 s48, s39, {UPITCH}
    s_sub_u32 s48, s48, s47
    s_add_u32 s48, s48, {UO+512+16-192}
    v_and_b32 v4, 15, v0
    v_lshlrev_b32 v4, 5, v4
    v_lshlrev_b32 v5, 4, v5
    v_sub_u32 v4, v4, v5
    v_add_u32 v{vBc}, s48, v4
    s_add_u32 s64, s30, {WS_XG}
    s_addc_u32 s65, s31, 0
    s_mov_b32 s66, {XG_BYTES}
    s_mov_b32 s67, 0x20000
    s_and_b32 s47, s36, 3
    s_lshl_b32 s47, s47, 12
    v_lshl_add_u32 v97, v{vLane}, 4, s47
    s_lshl_b32 s44, s37, 14
    s_mov_b32 s54, {f32(8.0)}
    s_mov_b32 s55, {f32(256.0)}
    s_lshl_b32 s46, s38, 4
    v_mov_b32 v{vDT}, {f32(LOG2E)}
    s_cmp_lt_u32 s36, 4
    s_cbranch_scc1 Lnoprio
    s_setprio 1
    Lnoprio:
    s_waitcnt lgkmcnt(0)
    s_lshr_b32 s52, s52, s46
    s_lshl_b32 s52, s52, 16
    v_mul_f32 v{vDT}, s52, v{vDT}
    v_exp_f32 v{vDT}, v{vDT}
    v_cvt_pk_bf16_f32 v{vDT}, v{vDT}, v{vDT}
    v_and_b32 v{vDT}, s43, v{vDT}
    v_add_f32 v6, v{vDT}, v{vDT}
    """)
    P.stamp(2)
    A(f"""
    s_waitcnt vmcnt(2)
    v_mul_f32 v4, {f32(LOG2E)}, v{vP}
    v_exp_f32 v4, v4
    v_mul_f32 v{b2}, v{vP+1}, v{vDT}
    v_cvt_pk_bf16_f32 v4, v4, v4
    v_and_b32 v4, s43, v4
    v_mul_f32 v{a2}, v4, v{vDT}
    v_mul_f32 v{b2}, 0.15915494, v{b2}
    v_mul_f32 v{a2}, {f32(-LOG2E)}, v{a2}
    """)
    P.stamp(3)
    nb_ = [0]
    vPX, vPS_, vPA = 100, 116, 97
    xp = [f"buffer_load_dwordx4 {v(vPX+4*q,4)}, v{vPA}, s[64:67], s44 offen offset:{1024*q} sc1" for q in range(4)]
    xp += [f"global_load_dwordx4 {v(vPS_+4*q,4)}, v{vPA}, s[30:31] offset:{1024*q} sc1" for q in range(4)]
    xord = [4, 5, 0, 1, 6, 7, 2, 3]
    def put(src, row, neg):
        r = CV + (nb_[0] & 7); nb_[0] += 1
        x = [f"v_cvt_pk_bf16_f32 v{r}, v{src}, {'-' if neg else ''}v{src+1}", f"ds_write_addtid_b32 v{r} offset:{row*GP}"]
        if nb_[0] == c.prio_mid: x[1] += "\ns_setprio 0"
        if nb_[0] == c.xp_at: x[1] += "\ns_cmp_lt_u32 s36, 4\ns_cbranch_scc1 Lnoxp\n" + "\n".join(xp) + "\nLnoxp:"
        return x
    def spread(puts, work):
        o = []
        while puts or work:
            p = puts.pop(0) if puts else None
            if p: o.append(p[0])
            if work: o += work.pop(0)
            if p: o.append(p[1])
        return o
    GR = 32
    for l in cexp(Hh, a2, b2, "s54", tA): A(l)
    A(f"v_mov_b32 v{CV+8}, 0x3f80\nds_write_addtid_b32 v{CV+8}")
    for l in cmul(Hh+2, Hh, Hh) + cmul(Hh+4, Hh+2, Hh) + cmul(W4, Hh+2, Hh+2): A(l)
    ex = merge(cexp(w1, a2, b2, None, tB), cexp(w256, a2, b2, "s55", tC))
    ex += ["s_waitcnt vmcnt(0)", f"v_mul_f32 v{G}, v{vP+2}, v6", f"v_mul_f32 v{G+1}, v{vP+3}, v6",
           "v_min_u32 v5, 255, v0\nv_lshlrev_b32 v6, 4, v5", "v_lshlrev_b32 v5, 3, v5",
           f"global_load_dwordx4 {v(vTB,4)}, v6, s[62:63] offset:-2048", f"global_load_dwordx2 {v(vTB+4,2)}, v5, s[62:63] offset:2048"]
    ex += cmul(w2, w1, w1) + cmul(G+2, G, w1) + cmul(w512, w256, w256)
    cur = [Hh, Hh+2, Hh+4, W4]; nxt = [HT, HT+2, HT+4, HT+6]; alt = [G2, G2+2, G2+4, G2+6]
    j = 1
    while j < 32:
        pend = [put(cur[r], j + r, False) for r in range(4) if j + r < 32]
        wk = [cmul(nxt[r], cur[r], W4) + [ex.pop(0) for _ in range(1) if ex] for r in range(4) if j + 4 + r < 32]
        if j + 4 >= 32: wk = [cmul(G+2*i, G+2*(i-2), w2) for i in range(2, 5)]
        for l in spread(pend, wk): A(l)
        cur, nxt = nxt, (alt if nxt[0] == HT else [HT, HT+2, HT+4, HT+6])
        j += 4
    assert not ex
    wk = [cmul(G+2*i, G+2*(i-2), w2) for i in range(5, 8)] + [cmul(G2+2*k, G+4*k, w256) for k in range(4)] + [cmul(G2+8, G, w512)]
    for l in spread([put(G+2*i, GR+i, True) for i in range(8)], wk): A(l)
    wk = [cmul(G2+10, G+8, w512), cmul(G2+12, G2, w512), cmul(G2+14, G2+4, w512), cmul(G, G2+8, w512), cmul(G+2, G2+12, w512), cmul(G+4, G, w512), cmul(G+6, G+2, w512), cmul(G+8, G+4, w512)]
    for l in spread([put(G2+2*i, GR+8+i, True) for i in range(8)], wk): A(l)
    for l in spread([put(G+2*i, GR+16+i, True) for i in range(5)], []): A(l)
    P.stamp(4)
    A(f"s_cmp_ge_u32 s36, 4\ns_cbranch_scc1 {nw}\ns_branch Lmw\n.p2align 12")
    target("Lmw")
    vACC, vEA, FR, TA_ = 8, 30, 100, 44
    tabprep = [f"s_lshl_b32 s46, s36, 15", f"v_lshl_add_u32 v4, v{vJ}, 2, s46", f"v_mul_u32_u24 v5, {4*TP}, v{vG}", "v_add_u32 v5, v5, v4", f"v_xor_b32 v7, 1, v{vG}"]
    tmin = []
    for b in range(4):
        o0 = 2 * b * TP + 128; o1 = 4 * (b & 1) * TP + 256 + 128 * (b >> 1)
        tabprep += [f"v_mul_u32_u24 v{TA_+b}, {abs(o1-o0)}, v{vG if o1 > o0 else 7}", f"v_add_u32 v{TA_+b}, v{TA_+b}, v4"]
        tmin.append(min(o0, o1))
    tabprep += [f"v_lshl_add_u32 v{TA_+4}, v{vG}, 9, v4", "s_waitcnt vmcnt(0)"]
    for r in range(11):
        tabprep += [f"v_and_b32 v{vEA+r}, 0xffff, v{vTB+(r>>1)}" if r % 2 == 0 else f"v_lshrrev_b32 v{vEA+r}, 16, v{vTB+(r>>1)}"]
    tabprep += ["v_cmp_ne_u32 s[44:45], 0, v0", f"v_lshlrev_b32 v6, 4, v0"]
    A("s_waitcnt lgkmcnt(0)\ns_barrier")
    P.stamp(5)
    def frd(n):
        b = FR + 8 * (n & 7); o = (n >> 3) * REG + 32 * (n & 7)
        return f"ds_read_b128 {v(b,4)}, v{vRA} offset:{GR*GP+o}\nds_read_b128 {v(b+4,4)}, v{vRA} offset:{o}"
    for n in range(6): A(frd(n))
    for n in range(16):
        b0 = FR + 8 * (n & 7)
        A(f"s_waitcnt lgkmcnt({2*min(5, 15-n)})\nv_mfma_f32_32x32x16_bf16 {v(vACC,16)}, {v(b0,4)}, {v(b0+4,4)}, {'0' if n == 0 else v(vACC,16)}")
        if n + 6 < 16: A(frd(n + 6))
        for l in tabprep[2*n:2*n+2]: A(l)
    assert len(tabprep) <= 32
    vW, vR, vO = 97, 98, 99
    A(f"""
    s_lshl_b32 s46, s36, 12
    s_add_u32 s46, s46, {PARO}
    v_lshl_add_u32 v{vW}, v{vLane}, 4, s46
    v_xor_b32 v{vR}, 0x1000, v{vW}
    s_lshl_b32 s46, s40, 10
    s_lshl_b32 s47, s39, 15
    s_add_u32 s47, s47, s46
    v_lshl_add_u32 v3, v{vLane}, 4, s47
    """)
    for b in range(4): A(f"ds_write_b32 v5, v{vACC+b} offset:{TP*b}")
    for b in range(4): A(f"ds_write_b32 v{TA_+b}, v{vACC+4+b} offset:{tmin[b]}")
    A(f"s_mov_b32 exec_hi, 1\nds_write_b32 v{TA_+4}, v{vACC+8} offset:512\ns_mov_b32 exec_hi, 0")
    for b in range(1, 4): A(f"ds_write_b32 v{TA_+4}, v{vACC+8+b} offset:{512+128*b}")
    A("s_mov_b32 exec_hi, -1\ns_waitcnt lgkmcnt(0)\ns_barrier")
    P.stamp(6)
    EV, CB = 100, 44
    for r in range(11): A(f"ds_read2st64_b32 {v(EV+2*r,2)}, v{vEA+r} offset0:0 offset1:128\nv_add_u32 v{vEA+r}, 0x10000, v{vEA+r}")
    for r in range(11): A(f"ds_read2st64_b32 {v(EV+22+2*r,2)}, v{vEA+r} offset0:0 offset1:128")
    for ch in range(2):
        E = EV + 22 * ch
        A(f"s_waitcnt lgkmcnt({11 if ch == 0 else 4})")
        for r in range(11): A(f"v_add_f32 v{E+2*r}, v{E+2*r}, v{E+2*r+1}")
        for r in range(3): A(f"v_cndmask_b32 v{E+2*r}, 0, v{E+2*r}, s[44:45]")
        for cp in range(4):
            b = CB + 16 * ch + 4 * cp
            for k in range(4):
                r0 = 3 - cp + 2 * k
                A(f"v_cvt_pk_bf16_f32 v{b+k}, v{E+2*r0}, v{E+2*r0+2}")
            A(f"ds_write_b128 v6, {v(b,4)} offset:{KB0+64+32768*ch+cp*KP}")
    P.stamp(7)
    A("s_waitcnt lgkmcnt(0)\ns_barrier")
    P.stamp(8)
    A(f"s_setprio {c.cprio}")
    AC = 8
    FBs = [40 + 8 * k for k in range(6)] + [100 + 8 * k for k in range(6)]
    def rd(Gi):
        r, n = Gi >> 3, Gi & 7
        b = FBs[Gi % 12]
        return [f"ds_read_b64 {v(b,2)}, v{vA} offset:{512*n+64*r}", f"ds_read_b64 {v(b+2,2)}, v{vA} offset:{512*n+64*r+8}",
                f"ds_read_b128 {v(b+4,4)}, v{vBc} offset:{512*n+64*(3-r)}"]
    def send(t): return f"s_mov_b64 exec, s[{48+2*(t&1)}:{49+2*(t&1)}]\nds_write_b128 v{vW}, {v(AC+4*t,4)} offset:{1024*(t>>1)}\ns_mov_b64 exec, -1"
    for Gi in range(4):
        for l in rd(Gi): A(l)
    A(f"""
    s_lshl_b32 s46, s37, 2
    s_add_u32 s46, s46, s39
    s_lshl_b32 s46, s46, 12
    s_lshl_b32 s47, s40, 9
    s_add_u32 s46, s46, s47
    s_add_u32 s46, s46, {WS_XG}
    v_and_b32 v4, 15, v0
    v_bfe_u32 v5, v0, 4, 2
    v_lshlrev_b32 v4, 5, v4
    v_lshrrev_b32 v6, 1, v5
    v_lshl_add_u32 v4, v6, 4, v4
    v_and_b32 v5, 1, v5
    v_lshl_add_u32 v4, v5, 10, v4
    v_add_u32 v{vO}, s46, v4
    """)
    started = set()
    def cm(r, a, b):
        t = a + b
        cc = v(AC + 4 * t, 4) if t in started else "0"
        started.add(t)
        return f"v_mfma_f32_16x16x32_bf16 {v(AC+4*t,4)}, {v(FBs[(8*r+a)%12],4)}, {v(FBs[(8*r+b)%12]+4,4)}, {cc}"
    def grp(n): return [(a, b) for a in range(n + 1) for b in range(n + 1) if max(a, b) == n and a + b <= 7]
    rq = []; nrd = 12; known = 0
    for Gi in range(28):
        r, n = Gi >> 3, Gi & 7
        rq += rd(Gi + 4)
        while nrd < 3 * (Gi + 1) + c.cmin: A(rq.pop(0)); nrd += 1
        if known < 3 * (Gi + 1):
            want = 3 * (Gi + 1)
            if n in c.cmerge and Gi > 3: want = min(want + 3, nrd - 3)
            A(f"s_waitcnt lgkmcnt({nrd - want})"); known = want
        for (a_, b_) in grp(n):
            A(cm(r, a_, b_))
            if rq: A(rq.pop(0)); nrd += 1
    for l in rq: A(l)
    PR, PP = 148, 116
    odd = A.label("odd"); jn = A.label("jn")
    A(f"s_cmp_eq_u32 s40, 1\ns_cbranch_scc1 {odd}")
    for par in range(2):
        if par:
            for _ in range(c.x_pad // 4): A("s_nop 0")
            target(odd)
        snd = [t for t in range(8) if t % 2 != par]
        def sw(t): return f"ds_write_b128 v{vW}, {v(AC+4*t,4)} offset:{1024*(t>>1)}"
        rest = [p for n in range(4, 8) for p in grp(n)]
        first = [p for p in rest if (p[0] + p[1]) % 2 != par]; last = [p for p in rest if (p[0] + p[1]) % 2 == par]
        A("s_waitcnt lgkmcnt(9)"); got = 4
        for k, p in enumerate(first):
            if max(p) > got: A(f"s_waitcnt lgkmcnt({2 if k > 3 else 3*(7-max(p)) + (1 if k > 1 else 0)})"); got = 7 if k > 3 else max(p)
            A(cm(3, *p))
            if k == 1: A(sw(snd[0]))
            if k == 3: A(sw(snd[1]))
        if got < 7: A("s_waitcnt lgkmcnt(2)")
        for k, p in enumerate(last):
            A(cm(3, *p))
            if k == 2: A(sw(snd[2]))
            if k == 7: A(sw(snd[3]))
        if par == 0: P.stamp(9)
        else: P.stamp(9)
        A("s_waitcnt lgkmcnt(0)\ns_barrier")
        for q in range(4): A(f"ds_read_b128 {v(PR+4*q,4)}, v{vR} offset:{1024*q}\nds_read_b128 {v(PP+4*q,4)}, v3 offset:{2048*q}")
        for q in range(4):
            A(f"s_waitcnt lgkmcnt({6-2*q})")
            k = AC + 4 * (2 * q + par)
            for h in range(2): A(f"v_pk_add_f32 {v(PR+4*q+2*h,2)}, {v(PR+4*q+2*h,2)}, {v(PP+4*q+2*h,2)}")
            for h in range(2): A(f"v_pk_add_f32 {v(PR+4*q+2*h,2)}, {v(PR+4*q+2*h,2)}, {v(k+2*h,2)}")
            o_ = 132 + 2 * q
            A(f"v_cvt_pk_bf16_f32 v{o_}, v{PR+4*q}, v{PR+4*q+1}\nv_cvt_pk_bf16_f32 v{o_+1}, v{PR+4*q+2}, v{PR+4*q+3}")
            if q & 1:
                A(f"v_permlane16_swap_b32 v{o_-2}, v{o_}\nv_permlane16_swap_b32 v{o_-1}, v{o_+1}")
                A(f"global_store_dwordx4 v{vO}, {v(o_-2,4)}, s[30:31] offset:{1024*(q-1)} sc0 sc1")
        if not par: A(f"s_branch {jn}")
    A(f"{jn}:")
    P.stamp(10)
    vB, vAa, vS, vCR, vCA = 8, 10, 12, 14, 16
    vX = 18
    CN, CA, MB = 24, 32, 38
    F = [48, 64, 80]
    ACC = 96
    T1, T2, OUT = 48, 56, 64
    def csetup():
        A(ffn_ids)
        A(f"""
        s_and_b32 s40, s36, 1
        s_bfe_u32 s41, s36, 0x10001
        s_lshr_b32 s49, s36, 2
        v_bfe_u32 v2, v{vLane}, 2, 2
        v_bfe_u32 v3, v{vLane}, 4, 1
        v_lshrrev_b32 v4, 5, v{vLane}
        v_and_b32 v6, 3, v{vLane}
        v_lshl_add_u32 v5, v4, 3, v2
        v_lshlrev_b32 v7, 8, v5
        v_lshl_add_u32 v7, v6, 3, v7
        v_lshl_add_u32 v7, v3, 5, v7
        s_lshl_b32 s42, s40, 1
        s_add_u32 s42, s42, s41
        v_xor_b32 v{vB}, s42, v2
        v_lshl_add_u32 v{vB}, v{vB}, 6, v7
        v_xor_b32 v{vB+1}, 64, v{vB}
        v_add_u32 v17, 0x10000, v{vB}
        v_add_u32 v46, 0x10000, v{vB+1}
        s_lshl_b32 s42, s34, 1
        s_add_u32 s42, s42, s40
        v_xor_b32 v{vX}, s42, v2
        v_lshl_add_u32 v{vX}, v{vX}, 6, v7
        v_lshlrev_b32 v7, 7, v5
        v_lshl_add_u32 v7, v6, 3, v7
        v_lshl_add_u32 v7, v3, 12, v7
        v_lshrrev_b32 v5, 1, v2
        v_lshl_add_u32 v5, v3, 1, v5
        s_lshl_b32 s42, s41, 1
        v_xor_b32 v5, s42, v5
        v_lshl_add_u32 v7, v5, 5, v7
        v_add_u32 v{vAa}, {12*BLK}, v7
        v_xor_b32 v{vAa+1}, 32, v{vAa}
        s_lshl_b32 s42, s39, 2
        s_lshl_b32 s43, s40, 1
        s_add_u32 s42, s42, s43
        s_add_u32 s43, s42, s41
        s_xor_b32 s44, s43, 1
        s_lshl_b32 s45, s38, 3
        s_lshl_b32 s46, s41, 1
        s_add_u32 s45, s45, s46
        s_lshl_b32 s46, s49, 2
        s_add_u32 s45, s45, s46
        s_lshl_b32 s46, s45, 7
        s_add_u32 s45, s45, {WS_ACT // 1024}
        s_mul_i32 s43, s43, 112
        s_mul_i32 s44, s44, 112
        s_add_u32 s43, s43, s45
        s_add_u32 s44, s44, s45
        s_lshl_b32 s43, s43, 10
        s_lshl_b32 s44, s44, 10
        v_lshl_add_u32 v{vS}, v{vLane}, 4, s43
        v_lshl_add_u32 v{vS+1}, v{vLane}, 4, s44
        v_and_b32 v5, 15, v{vLane}
        v_mul_u32_u24 v7, {F_*8}, v3
        v_lshl_add_u32 v5, v5, 3, v7
        s_add_u32 s46, s46, {WS_CS}
        v_add_u32 v{vCA}, s46, v5
        v_and_b32 v5, 31, v{vLane}
        s_lshl_b32 s42, s40, 1
        s_add_u32 s42, s42, s41
        s_lshl_b32 s43, s42, 9
        s_add_u32 s43, s43, {CON}
        v_lshl_add_u32 v{vCR}, v5, 4, s43
        v_xor_b32 v{vCR+1}, 512, v{vCR}
        s_lshl_b32 s43, s39, 11
        s_lshl_b32 s44, s41, 8
        s_add_u32 s43, s43, s44
        s_add_u32 s43, s43, {WS_FLAGS}
        s_lshl_b32 s44, s34, 10
        s_add_u32 s59, s43, s44
        s_lshl_b32 s44, s40, 10
        s_add_u32 s58, s43, s44
        s_lshl_b32 s44, s49, 9
        s_add_u32 s58, s58, s44
        v_mov_b32 v{CA+4}, 0
        v_mov_b32 v{CA+5}, 0
        v_mov_b32 v{MB+2}, 0
        v_mov_b32 v{MB+3}, 0
        v_mov_b32 v{MB+6}, 0
        v_mov_b32 v{MB+7}, 0
        v_cmp_eq_u32 s[52:53], 0, v4
        s_mov_b32 s47, 0x3f803f80
        s_mov_b32 s48, 0xffff0000
        """)
    caload = [f"global_load_dwordx2 {v(CA,2)}, v{vCA}, s[30:31] sc1", f"global_load_dwordx2 {v(CA+2,2)}, v{vCA}, s[30:31] offset:128 sc1"]
    def preads(p, j):
        s, ks = j >> 1, j & 1
        f = F[j % 3]
        ho = (slot[("H", s)] % 8) * BLK + 4096 * ks
        wo = (slot[("W", 14 * p + s)] - 12) * BLK + 2048 * ks
        o = []
        for kind, i in (("B", 0), ("A", 0), ("B", 1), ("A", 1)):
            ab = vB + i if s < 8 else (17, 46)[i]
            if kind == "B": o += [f"ds_read_b64_tr_b16 {v(f+8+4*i,2)}, v{ab} offset:{ho}", f"ds_read_b64_tr_b16 {v(f+10+4*i,2)}, v{ab} offset:{ho+1024}"]
            else: o += [f"ds_read_b64_tr_b16 {v(f+4*i,2)}, v{vAa+i} offset:{wo}", f"ds_read_b64_tr_b16 {v(f+2+4*i,2)}, v{vAa+i} offset:{wo+512}"]
        return o
    def pmfma(j, first=False, p=None):
        f = F[j % 3]
        if p is not None and str(p) in c.x16:
            o = []
            for k, (t, rt) in enumerate(((0, 0), (0, 1), (1, 0), (1, 1))):
                a = ACC + 32 * t + 16 * rt + 8 * (j & 1)
                o.append(f"v_mfma_f32_16x16x32_bf16 {v(a,4)}, {v(f+4*t,4)}, {v(f+8+4*rt,4)}, {v(a,4)}\nv_mfma_f32_16x16x32_bf16 {v(a+4,4)}, {v(f+4*(t^1),4)}, {v(f+8+4*rt,4)}, {v(a+4,4)}")
            return o
        return [f"v_mfma_f32_32x32x16_bf16 {v(ACC+32*t+16*rt,16)}, {v(f+4*t,4)}, {v(f+8+4*rt,4)}, {'0' if first else v(ACC+32*t+16*rt,16)}" for (t, rt) in ((0, 0), (0, 1), (1, 0), (1, 1))]
    def corr(first):
        return [f"v_mfma_f32_32x32x16_bf16 {v(ACC+32*t+16*rt,16)}, {v(CA+2*t,4)}, {v(MB+4*rt,4)}, {'0' if first else v(ACC+32*t+16*rt,16)}" for t in range(2) for rt in range(2)]
    mkmb = [f"v_cndmask_b32 v{MB+4*rt+k}, 0, v{CN+4*rt+3}, s[52:53]" for rt in range(2) for k in range(2)]
    def inter(m, r):
        per_ = (len(r) + 3) // 4
        for i in range(4):
            A(m[i])
            for l in r[per_*i:per_*(i+1)]: A(l)
    def pstep(p, s):
        for h in range(2):
            A("s_waitcnt lgkmcnt(8)")
            inter(pmfma(2*s - 2 + h, s == 1 and h == 0, p if s > 1 else None), preads(p, 2*s + h))
        k = s - c.ca_load if p == 0 else 14 + s - c.cs2[1] - 1
        if k in (0, 1): A(caload[k])
    def epi(t, rt, n, packed):
        a = ACC + 32 * t + 16 * rt
        cn = CN + 4 * rt
        o_ = OUT + 4 * (n & 1)
        L = []
        if packed:
            L += [f"v_pk_mul_f32 {v(T1+2*q,2)}, {v(a+2*q,2)}, {v(a+2*q,2)}" for q in range(4)]
            L += [f"v_pk_fma_f32 {v(T1+2*q,2)}, {v(T1+2*q,2)}, {v(cn,2)}, {v(cn,2)} op_sel:[0,1,0] op_sel_hi:[1,1,0]" for q in range(4)]
            L += [f"v_pk_mul_f32 {v(T1+2*q,2)}, {v(T1+2*q,2)}, {v(a+2*q,2)}" for q in range(4)]
            L += [f"v_exp_f32 v{T1+q}, v{T1+q}" for q in range(8)]
            L += [f"v_pk_mul_f32 {v(T2+2*q,2)}, {v(a+2*q,2)}, {v(a+8+2*q,2)}" for q in range(4)]
            L += [f"v_pk_fma_f32 {v(T1+2*q,2)}, {v(T1+2*q,2)}, {v(cn+2,2)}, {v(cn+2,2)} op_sel_hi:[1,0,0]" for q in range(4)]
            L += [f"v_rcp_f32 v{T1+q}, v{T1+q}" for q in range(8)]
            L += [f"v_pk_mul_f32 {v(T2+2*q,2)}, {v(T2+2*q,2)}, {v(T1+2*q,2)}" for q in range(4)]
            L += [f"v_cvt_pk_bf16_f32 v{o_+q}, v{T2+2*q}, v{T2+2*q+1}" for q in range(4)]
        else:
            def st(q):
                return [f"v_mul_f32 v{T1+q}, v{a+q}, v{a+q}", f"v_fma_f32 v{T1+q}, v{T1+q}, v{cn+1}, v{cn}", f"v_mul_f32 v{T1+q}, v{T1+q}, v{a+q}",
                        f"v_exp_f32 v{T1+q}, v{T1+q}", f"v_mul_f32 v{T2+q}, v{a+q}, v{a+8+q}", f"v_fma_f32 v{T1+q}, v{T1+q}, v{cn+2}, v{cn+2}",
                        f"v_rcp_f32 v{T1+q}, v{T1+q}", f"v_mul_f32 v{T2+q}, v{T2+q}, v{T1+q}"]
            for q0 in range(0, 8, c.il):
                xs = [st(q) for q in range(q0, q0 + c.il)]
                for k in range(8): L += [x[k] for x in xs]
                L += [f"v_cvt_pk_bf16_f32 v{o_+q//2}, v{T2+q}, v{T2+q+1}" for q in range(q0, q0 + c.il, 2)]
        L += [f"global_store_dwordx4 v{vS+rt}, {v(o_,4)}, s[30:31] offset:{1024*t} {c.stflag}"]
        return L
    def cost(l): return 2 if l.startswith(("v_exp", "v_rcp", "v_sqrt")) else c.stcost if l.startswith("global_store") else 1
    def signal(t, later=None):
        A(f"s_mov_b32 s70, 1\ns_waitcnt vmcnt({2-2*t if later is None else later})\ns_atomic_add s70, s[30:31], s58\ns_add_u32 s58, s58, 128")
    def poll_issue(r, off):
        A(f"s_mov_b32 s{r}, 0\ns_add_u32 s68, s59, {off}\ns_atomic_add s{r}, s[30:31], s68 glc")
    def poll_wait(r, off, inline=False):
        pl = A.label("poll"); ok = A.label("ok")
        if inline:
            A(f"s_mov_b32 s45, 0\n{pl}:\ns_waitcnt lgkmcnt(0)\ns_cmp_ge_u32 s{r}, 14\ns_cbranch_scc1 {ok}")
            poll_issue(r, off)
            A(f"s_add_u32 s45, s45, 1\ns_cmp_lt_u32 s45, {SPIN}\ns_cbranch_scc1 {pl}\ns_waitcnt lgkmcnt(0)\n{ok}:")
            return
        A(f"s_waitcnt lgkmcnt(0)\ns_cmp_lt_u32 s{r}, 14\ns_cbranch_scc1 {pl}\n{ok}:")
        with Cold():
            A(f"{pl}:\ns_mov_b32 s45, 0\n{pl}b:")
            poll_issue(r, off)
            A(f"s_add_u32 s45, s45, 1\ns_waitcnt lgkmcnt(0)\ns_cmp_ge_u32 s{r}, 14\ns_cbranch_scc1 {ok}\ns_cmp_lt_u32 s45, {SPIN}\ns_cbranch_scc1 {pl}b\ns_branch {ok}")
    PA_, PB_ = 69, 71
    Q = Bars([0, 14, c.drain0[1] + 1, 29], 13)
    AC2, ID, HF = 80, 160, 72
    csetup()
    if c.emode: A(f"s_waitcnt vmcnt(0)\ns_sleep {c.emode}")
    A("s_waitcnt vmcnt(0)\ns_barrier")
    P.stamp(11)
    A(f"""
    s_lshl_b32 s43, s35, 1
    s_add_u32 s43, s43, s41
    s_sub_u32 s43, s43, s38
    s_cselect_b32 s44, 14, 0
    s_add_u32 s43, s43, s44
    s_cmp_ge_u32 s43, 12
    s_cselect_b32 s44, {2 if c.w8 else 0}, 0
    s_add_u32 s43, s43, s44
    s_lshl_b32 s43, s43, 13
    v_add_u32 v{vX}, s43, v{vX}
    v_lshlrev_b32 v7, 3, v4
    v_sub_u32 v7, v5, v7
    v_mov_b32 v{vX+1}, 0x3f80
    v_mov_b32 v{vX+2}, 1.0
    """)
    for j in range(2):
        for i in range(4):
            d0 = 16 * j + 2 * i
            A(f"v_cmp_eq_u32 vcc, {d0}, v7\nv_cmp_eq_u32 s[50:51], {d0+1}, v7\nv_cndmask_b32 v{ID+4*j+i}, 0, v{vX+1}, vcc\nv_cndmask_b32 v{ID+4*j+i}, v{ID+4*j+i}, v{vX+2}, s[50:51]")
    A("s_setprio 2")
    Q.bar()
    P.stamp(12)
    for l in preads(0, 0) + preads(0, 1): A(l)
    if c.fast0:
        A("s_waitcnt lgkmcnt(8)")
        for l in pmfma(0, True): A(l)
        A("s_waitcnt lgkmcnt(0)")
        for l in pmfma(1): A(l)
        Q.bar()
        for l in preads(0, 2) + preads(0, 3): A(l)
    for s in range(2 if c.fast0 else 1, 14):
        Q.bar(); pstep(0, s)
    Q.bar()
    r = [f"ds_read_b128 {v(CN+4*i,4)}, v{vCR+i}" for i in range(2)] + [f"ds_read_b64_tr_b16 {v(HF+2*i,2)}, v{vX} offset:{4096*(i>>1)+1024*(i&1)}" for i in range(4)]
    A("s_waitcnt lgkmcnt(8)"); inter(pmfma(26), r)
    A("s_waitcnt vmcnt(0) lgkmcnt(4)"); inter(pmfma(27), mkmb)
    for l in corr(False): A(l)
    A("s_waitcnt lgkmcnt(0)")
    A("s_setprio 0")
    E1 = []
    for n in range(4): E1 += epi(n >> 1, n & 1, n, c.e1_packed)
    tot = sum(cost(x) for x in E1); per1 = tot / (c.e1_last - c.e1_first + 1); bud = 0.0
    vD, vT = 8, 14
    gsetup = f"""
    v_lshl_add_u32 v7, v4, 2, v2
    v_lshlrev_b32 v7, 7, v7
    v_lshrrev_b32 v{vD}, 1, v2
    v_xor_b32 v{vD}, s41, v{vD}
    v_lshl_add_u32 v7, v{vD}, 6, v7
    v_lshl_add_u32 v7, v3, 5, v7
    v_lshl_add_u32 v7, v6, 3, v7
    s_lshl_b32 s43, s41, 12
    v_add_u32 v{vD}, s43, v7
    v_xor_b32 v{vD+1}, 64, v{vD}
    v_add_u32 v{vD+2}, 0x10000, v{vD}
    v_add_u32 v{vD+3}, 0x10000, v{vD+1}
    v_lshlrev_b32 v{vT}, 4, v{vLane}
    """
    gsetup2 = f"""
    s_lshl_b32 s43, s39, 2
    s_lshl_b32 s44, s34, 1
    s_add_u32 s43, s43, s44
    s_add_u32 s43, s43, s40
    s_mul_i32 s55, s43, {112*1024}
    s_mul_i32 s43, s43, {32*896}
    s_lshl_b32 s44, s35, 7
    s_add_u32 s43, s43, s44
    s_lshl_b32 s44, s41, 6
    s_add_u32 s43, s43, s44
    v_mul_u32_u24 v5, 896, v5
    v_lshl_add_u32 v5, v4, 4, v5
    v_add_u32 v5, s43, v5
    s_lshl_b32 s44, s41, 11
    s_add_u32 s55, s55, s44
    s_lshl_b32 s4, s33, 13
    s_add_u32 s4, s4, s55
    s_add_u32 s54, s55, {14*8192}
    s_add_u32 s64, s30, {WS_ACT}
    s_addc_u32 s65, s31, 0
    s_mov_b32 s66, {ACT_BYTES}
    s_mov_b32 s67, 0x20000
    """
    gsetup3 = "\n".join(f"s_add_u32 s{4+k}, s{3+k}, 8192\ns_cmp_ge_u32 s{4+k}, s54\ns_cselect_b32 s{4+k}, s55, s{4+k}" for k in range(1, 14))
    TRQ = [96 + 4 * k for k in range(18)] + [16, 20, 24, 28]
    DB = [32, 40, 48, 56]
    AO = [AC2, 64]
    seq = [(14 * hf + b, j) for hf in range(2) for j in range(2) for b in range(14)]
    cons = [(b, j) for b in range(14) for j in range(2)] + seq[28:]
    freeq = list(TRQ); treg = {}
    def tload(n):
        b, j = seq[n]
        if (b, j) not in treg: treg[(b, j)] = freeq.pop(0)
        o = []
        if n == 28: o += [f"v_add_u32 v15, 4096, v{vT}"]
        if c.x_notl and n >= 28: return o
        o += [f"buffer_load_dwordx4 {v(treg[(b, j)],4)}, v{vT if n < 28 else 15}, s[64:67], s{4+b%14} offen offset:{1024*j} sc1"]
        return o
    nst = 0; early = 0
    assert c.cs2[1] <= 25
    assert c.drain0[1] <= c.chkA and c.e1_last + 3 <= c.chkA and sum(c.earlyT) <= 14
    for i in range(15, 29):
        Q.bar()
        if i == c.drain0[0]:
            assert nst >= 2
            signal(0, nst - 2)
        if i >= c.e1_first:
            bud += per1
            while E1 and (bud > 0 or i == c.e1_last):
                x = E1.pop(0); A(x); bud -= cost(x)
                if x.startswith("global_store"): nst += 1
        if i == c.pollA: poll_issue(PA_, 0)
        if i == c.e1_last + 1: A(gsetup)
        if i == c.e1_last + 2: A(gsetup2)
        if i == c.e1_last + 3: A(gsetup3)
        if i == c.chkA: A("s_waitcnt lgkmcnt(0)")
        if i == c.drain0[1]:
            signal(1)
            A(f"v_add_u32 v{vD+4}, 0x20000, v{vD}\nv_add_u32 v{vD+5}, 0x20000, v{vD+1}")
        if i == c.poll0: poll_issue(PB_, 128)
        if 0 <= i - c.chkA < len(c.earlyT):
            sk = A.label("et")
            A(f"s_cmp_lt_u32 s{PA_}, 14\ns_cbranch_scc1 {sk}")
            for _ in range(c.earlyT[i - c.chkA]):
                for l in tload(early): A(l)
                early += 1
            A(f"{sk}:")
    Q.bar()
    A(f"v_mfma_f32_32x32x16_bf16 {v(AC2,16)}, {v(ID,4)}, {v(HF,4)}, 0")
    A(f"v_mfma_f32_32x32x16_bf16 {v(AC2,16)}, {v(ID+4,4)}, {v(HF+4,4)}, {v(AC2,16)}")
    sk = A.label("et")
    A(f"s_cmp_lt_u32 s{PA_}, 14\ns_cbranch_scc1 {sk}c\n{sk}:")
    with Cold():
        A(f"{sk}c:")
        poll_wait(PA_, 0, True)
        for n in range(early):
            for l in tload(n): A(l)
        A(f"s_branch {sk}")
    def dreads(n):
        b, j = cons[n]
        sd = slot[("D", b)]; f = DB[n & 3]
        o = []
        for nt in range(2):
            do = (sd % 8) * BLK + 2048 * j
            ad = vD + 2 * (sd // 8) + nt
            o += [f"ds_read_b64_tr_b16 {v(f+4*nt,2)}, v{ad} offset:{do}", f"ds_read_b64_tr_b16 {v(f+4*nt+2,2)}, v{ad} offset:{do+1024}"]
        return o
    def gm(n):
        f = DB[n & 3]
        if 'g' in c.x16 and 0 < n < 52:
            return [f"v_mfma_f32_16x16x32_bf16 {v(AO[nt]+8*(n&1),4)}, {v(f+4*nt,4)}, {v(treg[cons[n]],4)}, {v(AO[nt]+8*(n&1),4)}\nv_mfma_f32_16x16x32_bf16 {v(AO[nt]+8*(n&1)+4,4)}, {v(f+4*(nt^1),4)}, {v(treg[cons[n]],4)}, {v(AO[nt]+8*(n&1)+4,4)}" for nt in (1, 0)]
        return [f"v_mfma_f32_32x32x16_bf16 {v(AO[nt],16)}, {v(f+4*nt,4)}, {v(treg[cons[n]],4)}, {'0' if (n == 0 and nt == 1) else v(AO[nt],16)}" for nt in (1, 0)]
    issued = early; mk = 0
    while issued < 14:
        for l in tload(issued): A(l)
        issued += 1
        if issued > c.tdep0: A(f"s_waitcnt vmcnt({c.tdep0})")
    poll_wait(PB_, 128, True)
    Q.mark(mk); mk += 1
    lim = 28; late = []
    for n in range(56):
        if n == 14 and not c.auxpoll: A("s_waitcnt lgkmcnt(0)\ns_barrier")
        for y in (c.ya_at, c.yb_at):
            if n == y:
                if c.auxpoll and y == c.ya_at and y < 16: A("s_waitcnt lgkmcnt(0)")
                A("s_barrier")
                Q.mark(mk); mk += 1
                lim += 14
        k = 99 if n == 0 else c.pace.get(n, c.pace1 if n < 28 else c.pace2)
        while issued < lim and freeq and k > (2 if c.tpost and n else 0):
            for l in tload(issued): A(l)
            issued += 1; k -= 1
            if n == 0 and c.tdep0 < 22: A(f"s_waitcnt vmcnt({c.tdep0})")
        assert seq.index(cons[n]) < issued
        if n == 0:
            for l in dreads(0) + dreads(1): A(l)
        if n == c.g_pre:
            if c.xe: A("s_barrier")
            Q.mark(mk); mk += 1
        if c.auxpoll and n == 32: A("s_barrier")
        r = dreads(n + 2) if n + 2 < 56 else []
        A(f"s_waitcnt vmcnt({issued-1-seq.index(cons[n])}) lgkmcnt({4 if n < 55 else 0})")
        if n in (28, 42): Q.mark(mk); mk += 1
        m = gm(n)
        if n >= 56 - c.fin_ov:
            A(m[0]); late.append(m[1])
            for l in r: A(l)
            continue
        for i in range(2):
            A(m[i])
            if c.tpost and issued < lim and freeq and k > 1 - i:
                for l in tload(issued): A(l)
                issued += 1
            for l in r[2*i:2*i+2]: A(l)
        freeq.append(treg[cons[n]])
    assert 14 <= c.ya_at <= 26 and c.ya_at <= c.yb_at <= 32 and c.yb_at >= (20 if c.auxpoll else 24)
    while mk < 6: Q.mark(mk); mk += 1
    Q.mark(6)
    XR = 64
    assert all(slot[("D", b)] not in (8, 9) for b in range(11, 28))
    A(f"""
    s_lshl_b32 s43, s36, 12
    s_add_u32 s43, s43, {8*BLK}
    v_lshl_add_u32 v2, v{vLane}, 4, s43
    v_xor_b32 v3, 0x2000, v2
    """)
    if late: A(late.pop(0))
    for q in range(4):
        A(f"ds_write_b128 v2, {v(AO[1]+4*q,4)} offset:{1024*q}")
        if late and q in (0, 2): A(late.pop(0))
    assert not late
    A("s_waitcnt lgkmcnt(0)\ns_barrier")
    for q in range(4): A(f"ds_read_b128 {v(XR+4*q,4)}, v3 offset:{1024*q}")
    for hq in range(2):
        A(f"s_waitcnt lgkmcnt({2-2*hq})")
        for q in range(4*hq, 4*hq+4): A(f"v_pk_add_f32 {v(AC2+2*q,2)}, {v(AC2+2*q,2)}, {v(XR+2*q,2)}")
        for q in range(4*hq, 4*hq+4): A(f"v_cvt_pk_bf16_f32 v{48+q}, v{AC2+2*q}, v{AC2+2*q+1}")
        A(f"v_permlane32_swap_b32 v{48+4*hq}, v{48+4*hq+2}\nv_permlane32_swap_b32 v{48+4*hq+1}, v{48+4*hq+3}")
        A(f"global_store_dwordx4 v5, {v(48+4*hq,4)}, s[26:27] offset:{32*hq} {c.outflag}")
    Q.fin(7)
    A("s_endpgm")
    target(nw)
    A(f"s_and_b32 s46, s36, 3\ns_mov_b32 s45, 0\nv_mov_b32 v11, {TAGA}")
    def xpoll():
        for k in xord: A(xp[k])
    A("s_waitcnt lgkmcnt(0)\ns_barrier")
    P.stamp(5)
    A(f"""
    ds_read_b32 v11, v11
    s_lshl_b32 s47, s37, 2
    {'s_load_dword s53, s[16:17], s47' if c.dlate else ''}
    s_lshl_b32 s47, s46, 10
    s_add_u32 s47, s47, {UO+512}
    v_xor_b32 v9, 3, v{vLane}
    v_lshl_add_u32 v9, v9, 2, s47
    s_lshl_b32 s47, s46, 11
    v_lshrrev_b32 v5, 3, v{vLane}
    v_lshl_add_u32 v5, v5, 4, s47
    v_bfe_u32 v6, v{vLane}, 1, 2
    v_lshl_add_u32 v5, v6, 8, v5
    v_and_b32 v6, 1, v{vLane}
    v_lshl_add_u32 v10, v6, 3, v5
    """)
    if not c.xp_at:
        if c.poll_late: A(f"s_sleep {c.poll_late}")
        xpoll()
    if not c.xp_chk:
        A(f"s_mov_b32 s45, 1\ns_barrier\ns_setprio {c.nprio}")
    pl = A.label("xp"); ok = A.label("xok"); nb1 = A.label("xnb")
    def tagcheck():
        A(f"{'' if c.nstage else pl + ':'}\ns_waitcnt vmcnt(0) lgkmcnt(0)\nv_min3_u32 v4, v{vPX+1}, v{vPX+3}, v11\nv_max3_u32 v5, v{vPX+1}, v{vPX+3}, v11")
        for q in range(1, 8): A(f"v_min3_u32 v4, v4, v{vPX+4*q+1}, v{vPX+4*q+3}\nv_max3_u32 v5, v5, v{vPX+4*q+1}, v{vPX+4*q+3}")
        assert not c.xp_chk
        A(f"v_cmp_ne_u32 vcc, v4, v5\ns_cbranch_vccnz {pl}c\n{ok}:")
        with Cold():
            A(f"{pl}c:\ns_add_u32 s45, s45, 1\ns_cmp_gt_u32 s45, {SPIN}\ns_cbranch_scc1 {ok}")
            if c.xback: A(f"s_sleep {c.xback}")
            if c.xmask:
                for q in range(8):
                    A(f"v_cmp_ne_u32 vcc, v{vPX+4*q+1}, v11\nv_cmp_ne_u32 s[50:51], v{vPX+4*q+3}, v11\ns_or_b64 exec, vcc, s[50:51]\ns_cbranch_execz {pl}m{q}\n{xp[q]}\n{pl}m{q}:\ns_mov_b64 exec, -1")
            else: xpoll()
            A(f"s_waitcnt vmcnt(0)\ns_branch {pl}")
    if c.nstage: A(f"s_waitcnt vmcnt(4)\n{pl}:")
    else: tagcheck()
    P.stamp(6)
    if c.x_cnt: A("s_waitcnt lgkmcnt(0)\ns_mul_i32 s74, s45, 100\ns_add_u32 s74, s74, s72")
    NU, PRE, UB = 16, 32, 48
    for half in range(2):
        st = []
        if half == 1 and c.nstage: tagcheck()
        for r in range(4 * half, 4 * half + 4):
            S = vPS_ + 2 * r; X = vPX + 2 * r
            t = 60 + 4 * (r & 3)
            st.append([f"v_and_b32 v{t+2}, s43, v{S}", f"v_rcp_f32 v{t+2}, v{t+2}", f"v_lshlrev_b32 v{t}, 16, v{S}",
                  f"v_lshlrev_b32 v{PRE+2*r}, 16, v{X}", f"v_and_b32 v{PRE+2*r+1}, s43, v{X}",
                  f"v_pk_add_f32 {v(NU+2*r,2)}, {v(PRE+2*r,2)}, {v(t,2)} op_sel_hi:[1,0] neg_lo:[0,1] neg_hi:[0,1]" if c.npk else f"v_sub_f32 v{NU+2*r}, v{PRE+2*r}, v{t}\nv_sub_f32 v{NU+2*r+1}, v{PRE+2*r+1}, v{t}",
                  f"v_cvt_pk_bf16_f32 v{NU+2*r+1}, v{NU+2*r}, v{NU+2*r+1}",
                  f"v_lshlrev_b32 v{NU+2*r}, 16, v{NU+2*r+1}", f"v_and_b32 v{NU+2*r+1}, s43, v{NU+2*r+1}",
                  f"v_pk_mul_f32 {v(NU+2*r,2)}, {v(NU+2*r,2)}, {v(t+2,2)} op_sel_hi:[1,0]" if c.npk else f"v_mul_f32 v{NU+2*r}, v{NU+2*r}, v{t+2}\nv_mul_f32 v{NU+2*r+1}, v{NU+2*r+1}, v{t+2}"])
        for l in merge(*st): A(l)
        for ch in range(2):
            for k in (2 * half, 2 * half + 1): A(f"v_cvt_pk_bf16_f32 v{UB+4*ch+k}, v{NU+4*k+2+ch}, v{NU+4*k+ch}")
    P.stamp(7)
    for half in range(2):
        for ch in range(2):
            A(f"ds_write2st64_b32 v9, v{UB+4*ch+2*half}, v{UB+4*ch+2*half+1} offset0:{ch*UPITCH//256+2*half} offset1:{ch*UPITCH//256+2*half+1}")
    A("s_setprio 0\ns_waitcnt lgkmcnt(0)\ns_barrier")
    P.stamp(8)
    if c.x_quietN: A("s_sleep 60")
    PO = 60
    A("s_and_b32 s59, s53, s43\ns_lshl_b32 s58, s53, 16")
    for ch in range(2):
        for k in range(4):
            A(f"v_lshlrev_b32 v4, 16, v{UB+4*ch+k}\nv_and_b32 v5, s43, v{UB+4*ch+k}")
            A(f"v_fma_f32 v{PO+8*ch+2*k+1}, v4, s{58+ch}, v{PRE+4*k+2+ch}\nv_fma_f32 v{PO+8*ch+2*k}, v5, s{58+ch}, v{PRE+4*k+ch}")
            A(f"ds_write_b64 v10, {v(PO+8*ch+2*k,2)} offset:{32768*ch+1024*(k>>1)+128*(k&1)}")
    A("v_mov_b32 v90, v11")
    csetup()
    Q = Bars([0, c.gat_check, c.gat_check + 1, 14, 28, 29], 10)
    ST, GA = 18, 96
    vPS, vGA = 22, 23
    A(f"""
    s_mul_i32 s43, s39, {14*1024}
    s_lshl_b32 s44, s42, 8
    s_add_u32 s43, s43, s44
    s_add_u32 s43, s43, {WS_PS}
    v_lshl_add_u32 v{vPS}, v5, 3, s43
    v_mul_u32_u24 v7, 7168, v4
    v_add3_u32 v{vGA}, v{vPS}, v7, 64
    v_add_u32 v{vGA}, {3072-64}, v{vGA}
    s_lshl_b32 s44, s38, 10
    v_add_u32 v{vPS}, s44, v{vPS}
    """)
    nb = A.label("nb"); pz = A.label("pz"); pzo = A.label("pzo")
    pzl = "global_load_dwordx4 v[48:51], v47, s[30:31] sc1\nglobal_load_dwordx4 v[52:55], v47, s[30:31] offset:16 sc1"
    A(f"""
    s_cmp_lg_u32 s36, 4
    s_cbranch_scc1 {nb}a
    v_min_u32 v47, 55, v{vLane}
    v_lshlrev_b32 v47, 5, v47
    v_add_u32 v47, {WS_PZ}, v47
    s_mov_b32 s45, 0
    {pzl}
    {nb}a:
    """)
    P.stamp(9)
    A(f"""
    s_waitcnt lgkmcnt(0)
    s_barrier
    s_cmp_lg_u32 s36, 4
    s_cbranch_scc1 {nb}
    {pz}:
    s_waitcnt vmcnt(0)
    v_min3_u32 v56, v48, v49, v90
    v_max3_u32 v57, v48, v49, v90
    v_min3_u32 v56, v50, v51, v56
    v_max3_u32 v57, v50, v51, v57
    v_min3_u32 v56, v52, v53, v56
    v_max3_u32 v57, v52, v53, v57
    v_min3_u32 v56, v54, v55, v56
    v_max3_u32 v57, v54, v55, v57
    v_cmp_ne_u32 vcc, v56, v57
    s_cbranch_vccz {pzo}
    s_sleep {c.pz_sleep}
    {pzl}
    s_add_u32 s45, s45, 1
    s_cmp_lt_u32 s45, {SPIN}
    s_cbranch_scc1 {pz}
    {pzo}:
    s_cmp_lg_u32 s2, 0
    s_cbranch_scc1 {nb}
    v_mov_b32 v47, {WS_E}
    s_mov_b64 exec, 1
    global_store_dword v47, v90, s[30:31]
    s_mov_b64 exec, -1
    {nb}:
    s_barrier
    """)
    def gat(js=range(7)):
        for j in js: A(f"global_load_dwordx2 {v(GA+2*j,2)}, v{vGA}, s[30:31] offset:{1024*j-3072} sc1")
    S, Qv = GA, GA + 1
    work = [f"v_add_f32 v{GA+k}, v{GA+k}, v{GA+2*j+k}" for j in range(1, 7) for k in range(2)]
    work += [f"v_mov_b32 v{GA+2}, v{GA}", f"v_mov_b32 v{GA+3}, v{GA+1}", f"v_permlane32_swap_b32 v{GA}, v{GA+2}", f"v_permlane32_swap_b32 v{GA+1}, v{GA+3}",
             f"v_add_f32 v{GA}, v{GA}, v{GA+2}", f"v_add_f32 v{GA+1}, v{GA+1}, v{GA+3}"]
    work += [l.strip() for l in f"""
    v_mul_f32 v{S}, {f32(1.0/448)}, v{S}
    v_mul_f32 v{Qv}, {f32(1.0/448)}, v{Qv}
    v_fma_f32 v{Qv}, -v{S}, v{S}, v{Qv}
    v_max_f32 v{Qv}, 0, v{Qv}
    v_cvt_pk_bf16_f32 v{CN+3}, -v{S}, -v{S}
    v_cvt_pk_bf16_f32 v{Qv}, v{Qv}, v{Qv}
    v_and_b32 v{Qv}, s48, v{Qv}
    v_add_f32 v{Qv}, {f32(1e-5)}, v{Qv}
    v_cvt_pk_bf16_f32 v{Qv}, v{Qv}, v{Qv}
    v_and_b32 v{Qv}, s48, v{Qv}
    v_sqrt_f32 v{Qv}, v{Qv}
    v_cvt_pk_bf16_f32 v{Qv}, v{Qv}, v{Qv}
    v_and_b32 v{Qv}, s48, v{Qv}
    v_rcp_f32 v{S}, v{Qv}
    v_mul_f32 v{CN+2}, v{Qv}, v{Qv}
    v_mul_f32 v{CN}, {f32(GK0)}, v{S}
    v_mul_f32 v{CN+1}, v{S}, v{S}
    v_mul_f32 v{CN+1}, v{CN+1}, v{S}
    v_mul_f32 v{CN+1}, {f32(GK1)}, v{CN+1}
    ds_write_b128 v{vCR}, {v(CN,4)}
    """.strip().split("\n")]
    nwi = c.con_write - c.gat_check
    wper = (len(work) + nwi - 1) // nwi
    for i in range(14):
        Q.bar()
        if i == 0:
            for k in range(4): A(f"ds_read_b64_tr_b16 {v(F[0]+2*k,2)}, v{vB} offset:{4096*(k>>1)+1024*(k&1)}")
        if i == (0 if c.fast0 else 1):
            A("s_waitcnt lgkmcnt(0)")
            for k in range(8):
                z = k < 2
                A(f"v_dot2_f32_bf16 v{ST+(k&1)}, v{F[0]+k}, s47, {'0' if z else 'v%d' % (ST+(k&1))}\nv_dot2_f32_bf16 v{ST+2+(k&1)}, v{F[0]+k}, v{F[0]+k}, {'0' if z else 'v%d' % (ST+2+(k&1))}")
        if i == (0 if c.fast0 else 2):
            A(f"""
            v_add_f32 v{ST}, v{ST}, v{ST+1}
            v_add_f32 v{ST+1}, v{ST+2}, v{ST+3}
            v_mov_b32 v{ST+2}, v{ST}
            v_mov_b32 v{ST+3}, v{ST+1}
            v_permlane32_swap_b32 v{ST}, v{ST+2}
            v_permlane32_swap_b32 v{ST+1}, v{ST+3}
            v_add_f32 v{ST}, v{ST}, v{ST+2}
            v_add_f32 v{ST+1}, v{ST+1}, v{ST+3}
            v_or_b32 v{ST+1}, 1, v{ST+1}
            s_mov_b32 exec_hi, 0
            global_store_dwordx2 v{vPS}, {v(ST,2)}, s[30:31] sc0 sc1
            s_mov_b32 exec_hi, -1
            """)
        if i in (c.cs_issue, c.ca_load - 1):
            sk = A.label("css")
            A(f"s_cmp_lg_u32 s36, 4\ns_cbranch_scc1 {sk}")
            if i == c.cs_issue: A(f"global_load_dword v47, v{MB+2}, s[28:29] sc1")
            else:
                pl = A.label("cs")
                A(f"s_mov_b32 s45, 0\n{pl}:\ns_waitcnt vmcnt(0)\nv_cmp_gt_u32 vcc, 32, v47\ns_cbranch_vccz {sk}\ns_sleep {c.cs_back}\nglobal_load_dword v47, v{MB+2}, s[28:29] sc1\ns_add_u32 s45, s45, 1\ns_cmp_lt_u32 s45, {SPIN}\ns_cbranch_scc1 {pl}")
            A(f"{sk}:")
        k0 = i - (c.gat_issue - len(c.gat_split) + 1)
        if 0 <= k0 < len(c.gat_split) and not c.x_nogat: gat(range(sum(c.gat_split[:k0]), sum(c.gat_split[:k0+1])))
        if i == c.gat_check and not c.x_nogat:
            pl = A.label("gp"); ok = A.label("gok")
            A(f"s_mov_b32 s45, 0\n{pl}:\ns_waitcnt vmcnt(0)\nv_min3_u32 v7, v{GA+1}, v{GA+3}, v{GA+5}\nv_min3_u32 v7, v7, v{GA+7}, v{GA+9}\nv_min3_u32 v7, v7, v{GA+11}, v{GA+13}")
            A(f"v_cmp_eq_u32 vcc, 0, v7\ns_cbranch_vccnz {pl}c\n{ok}:")
            with Cold():
                A(f"{pl}c:\ns_add_u32 s45, s45, 1\ns_cmp_ge_u32 s45, {SPIN}\ns_cbranch_scc1 {ok}")
                gat()
                A(f"s_branch {pl}")
        if c.gat_check < i <= c.con_write:
            for l in work[:wper]: A(l)
            work = work[wper:]
        if i == 13:
            assert not work
            A("s_waitcnt vmcnt(0) lgkmcnt(0)")
    Q.bar()
    A(f"ds_read_b128 {v(CN+4,4)}, v{vCR+1}")
    for l in preads(1, 0): A(l)
    A("s_waitcnt lgkmcnt(8)")
    for l in mkmb + preads(1, 1): A(l)
    A(f"s_setprio {c.prioB}")
    assert c.cs2[1] + 2 < c.corr_at
    for s in range(1, 14):
        Q.bar(); pstep(1, s)
        if 14 + s == c.corr_at:
            A("s_waitcnt vmcnt(0)")
            for l in corr(False): A(l)
    Q.bar()
    A("s_waitcnt lgkmcnt(8)")
    for l in pmfma(26): A(l)
    A("s_waitcnt lgkmcnt(0)")
    Q.bar()
    for l in pmfma(27): A(l)
    for n in range(4):
        L = epi(n >> 1, n & 1, n, n < c.e2pk)
        if c.xe and n == c.xe_at: A("s_barrier")
        for l in L[:-1]: A(l)
        if n == 3 and c.sig_early: signal(0, 1)
        A(L[-1])
    Q.mark(0)
    A("s_setprio 0")
    if c.xe and c.xe_at == 4: A("s_barrier")
    if not c.sig_early: signal(0)
    Q.mark(1)
    if c.auxpoll:
        if c.selfrd:
            A(f"s_cmp_lg_u32 s40, s34\ns_cbranch_scc1 Lsr1\nglobal_load_dwordx4 v[96:99], v{vS}, s[30:31] sc1\nglobal_load_dwordx4 v[100:103], v{vS+1}, s[30:31] sc1\ns_waitcnt vmcnt(2)\ns_branch Lsr2\nLsr1:\ns_waitcnt vmcnt(0)\nLsr2:")
            signal(1, 2)
            A(f"s_cmp_lg_u32 s40, s34\ns_cbranch_scc1 Lsr3\nglobal_load_dwordx4 v[96:99], v{vS}, s[30:31] offset:1024 sc1\nglobal_load_dwordx4 v[100:103], v{vS+1}, s[30:31] offset:1024 sc1\nLsr3:")
        else: signal(1)
        Q.mark(2)
        A("s_barrier")
        Q.mark(3)
        A("s_barrier\ns_barrier")
        Q.mark(4)
    else:
        if c.pa_early: poll_issue(PA_, 512)
        signal(1)
        Q.mark(2)
        if not c.pa_early: poll_issue(PA_, 512)
        A("s_barrier")
        poll_wait(PA_, 512, True)
        poll_issue(PB_, 640)
        Q.mark(3)
        A("s_barrier")
        poll_wait(PB_, 640, True)
        Q.mark(4)
        A("s_barrier")
    Q.fin(5)
    A("s_waitcnt lgkmcnt(0)\ns_endpgm")
    A(f".p2align 3\n{auxt}:\ns_setprio {c.auxprio}")
    PA.stamp(1)
    srd(A, 64, 30, XG_BYTES, WS_XG)
    A(f"""
    v_and_b32 v4, 15, v{vLane}
    v_lshrrev_b32 v5, 4, v{vLane}
    v_lshl_add_u32 v6, v4, 8, s46
    v_lshl_add_u32 v6, v5, 2, v6
    v_and_b32 v7, 7, v4
    v_lshl_add_u32 v6, v7, 4, v6
    v_lshlrev_b32 v9, 14, v5
    v_lshl_add_u32 v9, v4, 4, v9
    s_lshl_b32 s46, s36, 2
    s_add_u32 s46, s46, {TAGA}
    v_mov_b32 v2, s46
    """)
    for k in range(1, 8): A(f"v_xor_b32 v{80+k}, {16*k}, v6")
    A("s_waitcnt lgkmcnt(0)\ns_add_u32 s57, s57, 1\ns_and_b32 s57, s57, 0xffff\ns_or_b32 s57, s57, 0x7f810000")
    for k in range(16): A(f"v_mov_b32 v{vXG+2*k+1}, s57")
    wl = (["Lmww", nw + "w", odd + "w", "Lpw4"], ["Lpw3", "Lpw1", "Lpw5", "Lpw2"])
    def calls(lo, hi):
        if not c.warm or not wl[0][lo:hi]: return
        l1 = A.label("wm"); l2 = A.label("wm")
        A(f"s_cmp_eq_u32 s36, 1\ns_cbranch_scc1 {l1}")
        for lab in wl[0][lo:hi]: A(f"s_call_b64 s[96:97], {lab}")
        A(f"s_branch {l2}\n{l1}:")
        for lab in wl[1][lo:hi]: A(f"s_call_b64 s[96:97], {lab}")
        A(f"{l2}:")
    A(f"s_mov_b64 exec, 1\nds_write_b32 v2, v{vXG+1}\ns_mov_b64 exec, -1")
    calls(0, c.wpre)
    if c.x_pre: A(f"s_sleep {c.x_pre}")
    A("s_waitcnt vmcnt(0)")
    PA.stamp(2)
    if c.x_sdelay: A(f"s_sleep {c.x_sdelay}")
    for k in range(8):
        ad = 6 if k == 0 else 80 + k
        A(f"ds_read_b32 v{vXG+4*k}, v{ad}\nds_read_b32 v{vXG+4*k+2}, v{ad} offset:128")
    for k in range(8):
        A(f"s_waitcnt lgkmcnt({14-2*k})\nbuffer_store_dwordx4 {v(vXG+4*k,4)}, v9, s[64:67], s51 offen {c.xsflag}")
        if k < 7: A(f"s_add_u32 s51, s51, {4*16384}")
    PA.stamp(3)
    A(f"""
    v_mov_b32 v24, 0
    v_mov_b32 v25, 0
    s_lshl_b32 s43, s2, 1
    s_add_u32 s43, s43, s36
    s_lshl_b32 s44, s43, 9
    s_add_u32 s44, s44, {WS_PS}
    v_lshl_add_u32 v3, v{vLane}, 3, s44
    global_store_dwordx2 v3, v[24:25], s[30:31] sc0 sc1
    s_and_b32 s44, s43, 255
    s_lshl_b32 s44, s44, 7
    s_add_u32 s44, s44, {WS_FLAGS}
    v_mov_b32 v4, s44
    s_mov_b64 exec, 1
    global_store_dword v4, v24, s[30:31] sc0 sc1
    s_mov_b64 exec, -1
    s_lshl_b32 s44, s43, 2
    s_add_u32 s44, s44, {WS_PZ}
    v_mov_b32 v22, s44
    v_mov_b32 v23, s57
    s_setprio 0
    """)
    calls(c.wpre, 3)
    A("s_barrier")
    calls(max(c.wpre, 3), 9)
    aW, aD, aH = 8, 12, 8
    sW, sD, eW, eD = 41, 42, 45, 46
    def daddr():
        A(ffn_ids)
        A(f"""
        v_lshrrev_b32 v6, 3, v{vLane}
        v_and_b32 v7, 7, v{vLane}
        v_and_b32 v5, 2, v6
        v_lshlrev_b32 v4, 1, v5
        v_xor_b32 v4, v4, v7
        v_mul_u32_u24 v3, 896, v6
        v_lshl_add_u32 v{aD}, v4, 4, v3
        v_add_u32 v{aD+1}, {1*(8*896-1024)}, v{aD}
        v_add_u32 v{aD+2}, {2*(8*896-1024)}, v{aD}
        v_add_u32 v{aD+3}, {3*(8*896-1024)}, v{aD}
        s_lshl_b32 s{eD}, s35, 7
        s_mul_i32 s32, s36, {32*896}
        s_add_u32 s{eD}, s{eD}, s32
        s_mul_i32 s{sD}, s33, {128*896}
        s_add_u32 s{sD}, s{sD}, s{eD}
        s_add_u32 s{eD}, s{eD}, {14*128*896}
        s_lshl_b32 s32, s36, 12
        v_lshl_add_u32 v16, v{vLane}, 4, s32
        v_add_u32 v17, 0x10000, v16
        v_add_u32 v18, 0x20000, v16
        s_lshl_b32 s59, s39, 11
        s_lshl_b32 s58, s34, 10
        s_add_u32 s59, s59, s58
        s_lshl_b32 s58, s36, 8
        s_add_u32 s59, s59, s58
        s_add_u32 s59, s59, {WS_FLAGS}
        s_lshl_b32 s43, s39, 1
        s_add_u32 s43, s43, s34
        s_mul_i32 s43, s43, {224*1024}
        s_lshl_b32 s44, s36, 11
        s_add_u32 s43, s43, s44
        s_add_u32 s43, s43, {WS_ACT+4096}
        v_bfe_u32 v3, v{vLane}, 3, 1
        v_add_u32 v3, s33, v3
        v_cmp_gt_u32 vcc, 14, v3
        v_cndmask_b32 v3, 0, v3, vcc
        v_lshlrev_b32 v3, 13, v3
        v_bfe_u32 v4, v{vLane}, 4, 1
        v_mul_u32_u24 v4, {112*1024}, v4
        v_add3_u32 v3, v3, v4, s43
        v_lshl_add_u32 v19, v7, 7, v3
        """)
        srd(A, 60, 24, W_BYTES)
    def fifo_load(first, n, reg0):
        if c.x_nopre: return
        hf = 64 * 896 if first >= 14 else 0
        assert first >= 14 or first + n <= 14
        A(f"s_add_u32 s43, s{sD}, {hf + (first % 14)*128*896}\ns_add_u32 s44, s{eD}, {hf}")
        for b in range(n):
            A(f"s_cmp_ge_u32 s43, s44\ns_cselect_b32 s34, {14*128*896}, 0\ns_sub_u32 s43, s43, s34")
            for i in range(4): A(f"buffer_load_dwordx4 {v(reg0+16*b+4*i,4)}, v{aD+i}, s[60:63], s43 offen offset:{1024*i}")
            A(f"s_add_u32 s43, s43, {128*896}")
            if c.fdepth is not None: A(f"s_waitcnt vmcnt({c.fdepth})")
    def fifo_put(first, n, reg0):
        if c.x_noput: return
        for b in range(n):
            sl = slot[("D", first + b)]
            for i in range(4): A(f"ds_write_b128 v{16+sl//8}, {v(reg0+16*b+4*i,4)} offset:{(sl%8)*BLK+1024*i}")
    daddr()
    A(f"""
    v_xor_b32 v4, v5, v7
    s_lshl_b32 s43, s36, 2
    v_xor_b32 v4, s43, v4
    v_mul_u32_u24 v3, 3584, v6
    v_lshl_add_u32 v{aW}, v4, 4, v3
    v_add_u32 v{aW+1}, {1*(8*3584-1024)}, v{aW}
    v_add_u32 v{aW+2}, {2*(8*3584-1024)}, v{aW}
    v_add_u32 v{aW+3}, {3*(8*3584-1024)}, v{aW}
    s_lshl_b32 s{eW}, s38, 8
    s_mul_i32 s{sW}, s38, {32*3584}
    s_add_u32 s{sW}, s{sW}, s{eW}
    s_add_u32 s{eW}, s{eW}, {14*32*3584}
    s_cmp_eq_u32 s36, 0
    s_cselect_b32 s20, s20, s22
    s_cselect_b32 s21, s21, s23
    """)
    srd(A, 52, 20, W_BYTES)
    A(f"""
    v_mov_b32 v20, 0
    v_mov_b32 v21, 0
    v_lshrrev_b32 v4, 4, v{vLane}
    v_mul_u32_u24 v4, {KP}, v4
    v_and_b32 v5, 15, v{vLane}
    v_lshl_add_u32 v4, v5, 2, v4
    s_lshl_b32 s43, s36, 15
    v_add_u32 v4, s43, v4
    s_mul_i32 s43, s36, {UPITCH}
    s_add_u32 s43, s43, {UO}
    v_lshl_add_u32 v3, v{vLane}, 3, s43
    """)
    A(f"s_barrier\nds_write_b32 v4, v20 offset:{KB0}\nds_write_b64 v3, v[20:21]")
    A("s_waitcnt vmcnt(0)\ns_mov_b64 exec, 1\nglobal_store_dword v22, v23, s[30:31] sc0 sc1\ns_mov_b64 exec, -1")
    A("s_waitcnt lgkmcnt(0)\ns_barrier")
    def dma(kind, idx, i):
        if kind == "F":
            if i == 0:
                A(f"s_cmp_ge_u32 s43, s44\ns_cselect_b32 s35, {14*128*896}, 0\ns_sub_u32 s43, s43, s35")
            A(f"buffer_load_dwordx4 {v(24+16*(idx-14)+4*i,4)}, v{aD+i}, s[60:63], s43 offen offset:{1024*i}")
            if i == 3: A(f"s_add_u32 s43, s43, {128*896}")
            return
        base_ = slot[(kind, idx)] * BLK
        a0, r0, s, e, step = {"W": (aW, 52, sW, eW, 32*3584), "D": (aD, 60, sD, eD, 128*896), "H": (4, 48, 40, 47, HS)}[kind]
        if i == 0:
            if idx == 14:
                A(f"s_add_u32 s{s}, s{s}, 128\ns_add_u32 s{e}, s{e}, 128")
            A(f"s_add_u32 m0, s32, {base_}\ns_add_u32 s33, s{s}, {step}")
        A(f"buffer_load_dwordx4 v{a0+i}, s[{r0}:{r0+3}], s{s} offen offset:{1024*i}{' sc1' if kind == 'H' else ''} lds")
        if i == 0: A(f"s_cmp_ge_u32 s33, s{e}\ns_cselect_b32 s34, {14*step}, 0")
        if i == 3: A(f"s_sub_u32 s{s}, s33, s34")
    if c.x_quietL: A('s_sleep 60')
    for x in issue[-2]: dma(*x)
    fifo_load(14, c.lf_c, 24)
    A(f"""
    v_lshrrev_b32 v2, 4, v{vLane}
    v_and_b32 v3, 15, v{vLane}
    v_lshlrev_b32 v4, 2, v2
    v_xor_b32 v4, v4, v3
    v_lshlrev_b32 v4, 4, v4
    v_and_b32 v3, 1, v2
    v_lshl_add_u32 v4, v3, 12, v4
    v_lshrrev_b32 v2, 1, v2
    v_lshl_add_u32 v4, v2, 14, v4
    v_add_u32 v5, {1*(32768-1024)}, v4
    v_add_u32 v6, {2*(32768-1024)}, v4
    v_add_u32 v7, {3*(32768-1024)}, v4
    s_lshl_b32 s47, s39, 8
    s_lshl_b32 s43, s36, 17
    s_add_u32 s47, s47, s43
    s_add_u32 s40, s38, {c.h0}
    s_cmp_ge_u32 s40, 14
    s_cselect_b32 s43, 14, 0
    s_sub_u32 s40, s40, s43
    s_lshl_b32 s40, s40, 18
    s_add_u32 s40, s40, s47
    s_add_u32 s47, s47, {14*HS}
    """)
    srd(A, 48, 30, XG_BYTES, WS_XG)
    PA.stamp(4)
    A("s_barrier")
    fifo_load(14 + c.lf_c, c.lf_d, 24 + 16 * c.lf_c)
    assert c.nlf == 6
    A("s_barrier")
    for x in issue[-1]: dma(*x)
    if c.nlf > 6: fifo_load(20 - c.nlf, c.nlf - 6, 120)
    A(f"s_waitcnt vmcnt({len(issue[-1]) + 4 * (c.lf_c + c.lf_d)})\ns_barrier")
    for i in range(0, 29):
        for x in issue[i]: dma(*x)
        if i == 3: A(f"s_waitcnt vmcnt({sum(len(issue[k]) for k in range(4))})")
        if wait[i] is not None: A(f"s_waitcnt vmcnt({min(63, wait[i])})")
        A("s_barrier")
    if c.nlf > 6: fifo_put(20 - c.nlf, c.nlf - 6, 120)
    if c.xe:
        A("s_barrier")
        fifo_put(14, 3, 24)
        A("s_barrier")
        fifo_put(17, 3, 72)
    elif c.auxpoll:
        assert c.yb_at <= 26 and c.nlf == 6
        fifo_put(14, 6, 24)
        A("s_barrier")
        poll_issue(PB_, 640); poll_wait(PB_, 640, True)
        if c.touch & 2: A("global_load_dword v2, v19, s[30:31] offset:1024 sc1\ns_barrier")
    else:
        assert c.yb_at <= 26
        fifo_put(14, c.put_0, 24)
        A(f"s_waitcnt lgkmcnt({min(15, 4 * c.put_0)})\ns_barrier")
        fifo_put(14 + c.put_0, c.put_l, 24 + 16 * c.put_0)
        A("s_barrier")
        fifo_put(14 + c.put_0 + c.put_l, 6 - c.put_0 - c.put_l, 24 + 16 * (c.put_0 + c.put_l))
    A("s_waitcnt lgkmcnt(0)")
    if c.phase == 1: Prof(A, 3).flush(5)
    A("s_endpgm")
    A(f"{hold}t:")
    if c.ppair:
        A(f"""
        s_cmp_ge_u32 s38, 14
        s_cbranch_scc1 {hold}
        s_lshl_b32 s46, s38, 1
        s_sub_u32 s46, s37, s46
        s_add_u32 s46, s46, 27
        s_lshl_b32 s46, s46, 10
        v_lshl_add_u32 v2, v6, 7, s46
        """)
        for k in range(4): A(f"global_load_dword v{86+k}, v2, s[{6+2*k}:{7+2*k}]")
    if c.stouch & 1:
        A(f"v_mov_b32 v2, 0x6000\nv_mov_b32 v3, 0xA00000\nv_mov_b32 v4, 0xDFFF80\nv_mov_b32 v5, 0xE40000")
        for k in range(4): A(f"global_load_dword v{86+k}, v{(3, 4, 2, 5)[k]}, s[30:31]")
    if c.stouch & 2:
        A(f"v_and_b32 v2, 1, v{vLane}\nv_mul_u32_u24 v2, {W_BYTES - 128}, v2")
        for k in range(3): A(f"global_load_dword v{92+k}, v2, s[{20+2*k}:{21+2*k}]")
    if c.stouch & 4:
        A(f"s_mov_b32 s46, {WS_FLAGS + 0x7f00}\ns_load_dword s46, s[30:31], s46\nv_mov_b32 v3, 64\nglobal_load_dword v95, v3, s[28:29] sc1\ns_waitcnt lgkmcnt(0)")
    A(f"s_branch {hold}")
    A(f".p2align 3\n{auxs}:\ns_setprio {c.auxprio}")
    PA.stamp(1)
    a0 = 90
    A(f"s_mov_b32 s42, 0x3f803f80\nv_and_b32 v4, 56, v{vLane}\ns_lshl_b32 s46, s47, 6\nv_add_u32 v4, s46, v4\nv_mov_b32 v2, {TAGA}")
    A("s_waitcnt lgkmcnt(0)\ns_add_u32 s57, s56, 1\ns_and_b32 s57, s57, 0xffff\ns_or_b32 s57, s57, 0x7f810000\ns_mov_b32 s45, 0")
    for i in range(28):
        z = i < 2
        if i % 4 == 0: A(f"s_waitcnt vmcnt({6-i//4})")
        if i == 4: PA.stamp(2)
        if i == 24: A("ds_read_b64 v[6:7], v2")
        A(f"v_dot2_f32_bf16 v{a0+(i&1)}, v{vRow+i}, s42, {'0' if z else 'v%d' % (a0+(i&1))}")
        A(f"v_dot2_f32_bf16 v{a0+2+(i&1)}, v{vRow+i}, v{vRow+i}, {'0' if z else 'v%d' % (a0+2+(i&1))}")
    A(f"v_add_f32 v{a0}, v{a0}, v{a0+1}\nv_add_f32 v{a0+2}, v{a0+2}, v{a0+3}")
    for op in ("quad_perm:[1,0,3,2]", "quad_perm:[2,3,0,1]", "row_half_mirror"):
        A(f"v_add_f32_dpp v{a0}, v{a0}, v{a0} {op}{DPP}\nv_add_f32_dpp v{a0+2}, v{a0+2}, v{a0+2} {op}{DPP}")
    A(f"""
    v_mul_f32 v{a0}, {f32(1.0/448)}, v{a0}
    v_mul_f32 v{a0+2}, {f32(1.0/448)}, v{a0+2}
    v_fma_f32 v{a0+2}, -v{a0}, v{a0}, v{a0+2}
    v_max_f32 v{a0+2}, 0, v{a0+2}
    v_cvt_pk_bf16_f32 v{a0+2}, v{a0+2}, v{a0+2}
    v_and_b32 v{a0+2}, s43, v{a0+2}
    v_add_f32 v{a0+2}, {f32(1e-5)}, v{a0+2}
    v_cvt_pk_bf16_f32 v{a0+2}, v{a0+2}, v{a0+2}
    v_and_b32 v{a0+2}, s43, v{a0+2}
    v_sqrt_f32 v{a0+2}, v{a0+2}
    v_mov_b32 v{a0+1}, s57
    v_cvt_pk_bf16_f32 v{a0}, v{a0}, v{a0+2}
    s_cmp_ge_u32 s2, 224
    s_cbranch_scc1 Ltg2
    Ltg:
    s_waitcnt lgkmcnt(0)
    v_xor_b32 v6, s57, v6
    v_xor_b32 v7, s57, v7
    v_or_b32 v6, v6, v7
    v_cmp_ne_u32 vcc, 0, v6
    s_cbranch_vccz Ltg2
    ds_read_b64 v[6:7], v2
    s_add_u32 s45, s45, 1
    s_cmp_lt_u32 s45, {SPIN}
    s_cbranch_scc1 Ltg
    Ltg2:
    s_mov_b32 exec_lo, 0x01010101
    s_mov_b32 exec_hi, 0x01010101
    global_store_dwordx2 v4, {v(a0,2)}, s[30:31] sc0 sc1
    s_mov_b64 exec, -1
    """)
    PA.stamp(3)
    if base.PROF and c.phase == 1:
        A(f"s_branch {hold}x\n{hold}:")
        for k in (1, 2, 3): PA.stamp(k)
        A(f"{hold}x:")
    else: A(f"{hold}:")
    A(f"s_setprio 0\ns_barrier\ns_cmp_ge_u32 s2, 224\ns_cbranch_scc1 {end}")
    daddr()
    sH, eH, sV = 40, 41, 47
    VR = 20
    A(f"""
    v_lshrrev_b32 v6, 4, v{vLane}
    v_and_b32 v7, 15, v{vLane}
    v_lshlrev_b32 v5, 2, v6
    v_xor_b32 v5, v5, v7
    v_lshlrev_b32 v5, 4, v5
    v_and_b32 v7, 1, v6
    v_lshl_add_u32 v5, v7, 12, v5
    v_lshrrev_b32 v6, 1, v6
    v_lshl_add_u32 v{aH}, v6, 14, v5
    v_add_u32 v{aH+1}, {1*(32768-1024)}, v{aH}
    v_add_u32 v{aH+2}, {2*(32768-1024)}, v{aH}
    v_add_u32 v{aH+3}, {3*(32768-1024)}, v{aH}
    s_lshl_b32 s{eH}, s39, 8
    s_lshl_b32 s43, s36, 17
    s_add_u32 s{eH}, s{eH}, s43
    s_lshl_b32 s{sH}, s38, 18
    s_add_u32 s{sH}, s{sH}, s{eH}
    s_add_u32 s{eH}, s{eH}, {14*HS}
    s_mov_b32 s56, 0x7f810000
    s_mov_b32 s{sV}, s{sH}
    """)
    srd(A, 48, 30, XG_BYTES, WS_XG)
    def wtouch():
        A(f"s_lshl_b32 s43, s2, 1\ns_add_u32 s43, s43, s36\ns_mul_i32 s43, s43, {28*128}\nv_min_u32 v2, 27, v{vLane}\nv_lshl_add_u32 v2, v2, 7, s43")
        for k in range(3):
            if c.wtouch >> k & 1: A(f"global_load_dword v{36+k}, v2, s[{20+2*k}:{21+2*k}]")
    if c.wt_at == 'A': wtouch()
    A("s_barrier")
    if c.wt_at == 'B': wtouch()
    if c.hf_at == 'B':
        fifo_load(20, 3, 40)
    A("s_barrier")
    if c.wt_at == 'C': wtouch()
    if c.ptouch:
        A(f"""
        s_mul_i32 s43, s39, {4*112*1024}
        s_add_u32 s43, s43, {WS_ACT}
        v_and_b32 v2, 7, v{vLane}
        v_min_u32 v2, 6, v2
        v_lshl_add_u32 v2, v2, 16, s43
        global_load_dword v36, v2, s[30:31]
        s_and_b32 s44, s2, 1
        s_lshl_b32 s43, s39, 1
        s_add_u32 s43, s43, s44
        s_mul_i32 s43, s43, {64*896}
        s_lshr_b32 s44, s2, 5
        s_lshl_b32 s44, s44, 7
        s_add_u32 s43, s43, s44
        v_and_b32 v2, 1, v{vLane}
        v_mul_u32_u24 v2, {63*896}, v2
        v_add_u32 v2, s43, v2
        global_load_dword v37, v2, s[26:27]
        """)
        if c.pt2: A(f"s_mov_b32 s43, {WS_FLAGS + 0x40000}\ns_load_dword s57, s[30:31], s43")
    if c.hf_at == 'B': fifo_load(23, 5, 88)
    elif c.hf_at == 'C': fifo_load(20, 8, 40)
    else: fifo_load(20, c.hf_c, 40)
    PA.stamp(4)
    A(f"s_barrier\ns_barrier\ns_setprio {c.hprio}")
    def hblock(s, m0expr):
        A(f"s_add_u32 m0, {m0expr}\ns_add_u32 s33, s{s}, {HS}")
        for i in range(4):
            A(f"buffer_load_dwordx4 v{aH+i}, s[48:51], s{s} offen offset:{1024*i} sc1 lds")
            if i == 0: A(f"s_cmp_ge_u32 s33, s{eH}\ns_cselect_b32 s34, {14*HS}, 0")
        A(f"s_sub_u32 s{s}, s33, s34")
    nH = [0]
    def hissue(k):
        for _ in range(k):
            if nH[0] < 14:
                hblock(sH, f"s32, {slot[('H', nH[0])]*BLK}"); nH[0] += 1
    def vread(b):
        if b < nH[0]: A(f"s_waitcnt vmcnt({4*(nH[0]-1-b)})")
        for i in range(4): A(f"ds_read_b128 {v(VR+4*i,4)}, v{16+b//8} offset:{(slot[('H', b)]%8)*BLK+1024*i}")
    def vcheck(b):
        ck = A.label("hv"); ok = A.label("hok"); rp = A.label("hrp")
        last = b + 1 if c.rep_one else max(nH[0], b + 1)
        if c.w8 and b < 12: last = min(last, 12)
        sb = slot[('H', b)]
        A(f"""
        s_mov_b32 s45, 0
        {ck}:
        s_waitcnt lgkmcnt(0)
        v_max3_i32 v2, v{VR+1}, v{VR+3}, v{VR+5}
        v_max3_i32 v3, v{VR+7}, v{VR+9}, v{VR+11}
        v_max3_i32 v2, v2, v{VR+13}, v{VR+15}
        v_max_i32 v2, v2, v3
        v_cmp_le_i32 vcc, s56, v2
        {"s_cmp_eq_u32 s45, 0" if c.x_force else ""}
        {f"s_cbranch_scc1 {rp}f" if c.x_force else ""}
        s_cbranch_vccnz {rp}f
        """)
        cx = Cold(); cx.__enter__()
        A(f"""
        {rp}f:
        {f"s_sleep {c.backoff}" if c.backoff else ""}
        s_add_u32 s45, s45, 1
        s_cmp_ge_u32 s45, {SPIN}
        s_cbranch_scc1 {ok}
        s_mov_b32 s43, s{sV}
        s_add_u32 s44, s32, {sb*BLK}
        s_add_u32 s35, s32, {(sb+last-b)*BLK}
        {rp}:
        """)
        hblock(43, "s44, 0")
        A(f"s_add_u32 s44, s44, {BLK}\ns_cmp_lt_u32 s44, s35\ns_cbranch_scc1 {rp}\ns_waitcnt vmcnt({4*(last-1-b) if last == nH[0] else 0})")
        for i in range(4): A(f"ds_read_b128 {v(VR+4*i,4)}, v{16+b//8} offset:{(sb%8)*BLK+1024*i}")
        A(f"s_branch {ck}")
        cx.__exit__()
        A(f"{ok}:\ns_add_u32 s{sV}, s{sV}, {HS}\ns_cmp_ge_u32 s{sV}, s{eH}\ns_cselect_b32 s34, {14*HS}, 0\ns_sub_u32 s{sV}, s{sV}, s34")
    if c.probe:
        hissue(c.probe); vread(0); vcheck(0)
        if c.fast0: A("s_barrier")
        hissue(c.h0 - c.probe); vread(1)
    else:
        hissue(c.h0); vread(0); vcheck(0); vread(1)
    if not c.fast0: A("s_barrier")
    hs = [0] * 14 if c.hl else list(c.hiss) + [1] * 14
    for i in range(0, 13):
        vcheck(i + 1)
        k = hs.pop(0)
        assert i >= 3 or nH[0] + k <= 12
        if i + 2 < 14:
            if nH[0] - (i + 2) < c.hnear: hissue(k); k = 0
            vread(i + 2)
        hissue(k)
        kf = c.hf_c + i - c.hf_p
        if c.hf_at == 'P' and c.hf_c <= kf < 8: fifo_load(20 + kf, 1, 40 + 16 * kf)
        A("s_barrier")
    if c.hf_at == 'P':
        kf = max(c.hf_c, c.hf_c + 13 - c.hf_p)
        if kf < 8: fifo_load(20 + kf, 8 - kf, 40 + 16 * kf)
    assert nH[0] == 14 or c.hl
    A("s_setprio 0\nv_mov_b32 v2, 0")
    for i in range(13, 29 + (2 if c.xe else 0 if c.auxpoll else 1)):
        if i in c.cs2:
            sk = A.label("cs2")
            A(f"s_cmp_lg_u32 s36, 0\ns_cbranch_scc1 {sk}")
            ld = "global_load_dword v3, v2, s[28:29] offset:128 sc1"
            if i == c.cs2[0]: A(ld)
            else: A(f"s_mov_b32 s45, 0\n{sk}p:\ns_waitcnt vmcnt(0)\nv_cmp_gt_u32 vcc, 32, v3\ns_cbranch_vccz {sk}\ns_sleep {c.cs_back}\n{ld}\ns_add_u32 s45, s45, 1\ns_cmp_lt_u32 s45, {SPIN}\ns_cbranch_scc1 {sk}p")
            A(f"{sk}:")
        A("s_barrier")
    A("s_waitcnt vmcnt(0)")
    if c.auxpoll:
        if c.psleep: A(f"s_sleep {c.psleep}")
        poll_issue(PA_, 512); poll_wait(PA_, 512, True)
        if c.touch & 1: A("global_load_dword v2, v19, s[30:31] sc1")
        A("s_barrier")
        fifo_put(20, c.put_a, 40)
        A("s_barrier")
        fifo_put(20 + c.put_a, 8 - c.put_a, 40 + 16 * c.put_a)
    else:
        fifo_put(20, c.put_a, 40)
        A("s_barrier")
        fifo_put(20 + c.put_a, 8 - c.put_a, 40 + 16 * c.put_a)
    A("s_waitcnt lgkmcnt(0)")
    if c.phase == 1: Prof(A, 3).flush(5)
    A(f"{end}:\ns_endpgm")
    A.L.extend(cold)
    A(f".p2align 3\n{hlp}:")
    if c.phase == 0: base.PROF = False
    gen_helper(A, c, Prof(A, 4))
    def rnd(l):
        u = np.float32(max(l, 0)).view(np.uint32)
        u = (int(u) + 0x7FFF + ((int(u) >> 16) & 1)) & 0xFFFF0000
        return int(np.uint32(u).view(np.float32))
    ad = [[(rnd(8 * b - 3 + r) & 7) * TP + (rnd(8 * b - 3 + r) >> 3) * 4 for r in range(12)] for b in range(256)]
    A(f".p2align 7\n.type {tab},@object\n{tab}:")
    for b in range(256): A(".long " + ", ".join("0x%08x" % (ad[b][2*k] | ad[b][2*k+1] << 16) for k in range(4)))
    for b in range(256): A(".long " + ", ".join("0x%08x" % (ad[b][2*k] | ad[b][2*k+1] << 16) for k in range(4, 6)))
    A(f".size {tab}, {256*24}")
    return kernel_desc(name, 168, 102)
```

```python
from fx import *
variant("n1", prof=False, wpre=3)
variant("n2", prof=False, wpre=4, revrow=False)
V = dict(a={}, b=dict(wpre=2), c=dict(wpre=4), d=dict(wpre=4, revrow=False), e=dict(wpre=4, x_pre=4), f=dict(wpre=4, poll_late=3))
for k, x in V.items(): variant(k, phase=0, **x)
```

```python
from fx import *
variant("a", phase=0)
variant("b", phase=0, pt2=False)
variant("c", phase=0, ptouch=False)
variant("d", phase=0, wpre=4)
variant("e", phase=0, wpre=0)
variant("n1", prof=False)
variant("n2", prof=False, wpre=4)
```

```python
from base import *
import base
from ka import load_ptrs, cmul, cexp
import numpy as np
WS_E = 0x4000
WS_PZ = 0x5000
WS_XG = 0xA01000
XG_BYTES = 224 * 16384
REG = 16384
TP, GP = 1056, 272
KP = 4160
KB0 = 8704
UO, UPITCH = 74240, 4608
PARO = 98304
XT = 140288
TAGA = XT + 8192
BLK = 8192
NSL = 20
CON = 19 * BLK
F_LDS = NSL * BLK
GK0 = -2.0 * LOG2E * 0.7978845608028654
GK1 = GK0 * 0.044715
SPIN = 1 << 18
HS = 16 * 16384

class Cfg:
    code_bytes = 49152
    prio_mid = 26
    poll_late = 0
    e1_first, e1_last = 15, 20
    e1_packed = False
    drain0 = (20, 23)
    pollA, chkA = 24, 27
    earlyT = (6, 2)
    poll0 = 27
    ya_at, yb_at = 17, 24
    put_a = 3
    pace1, pace2, pace = 2, 1, {}
    pa_early = False
    g_pre = 0
    tdepth, tdepth2 = 22, 16
    gate_ahead = {14: 14, 28: 4, 42: 12}
    pollT1 = (20, 28)
    capP = 8
    caps = {**{i: 6 for i in range(16, 26)}, 26: 4}
    gat_issue, gat_check = 8, 11
    con_write = 13
    il = 2
    stflag = 'sc0 sc1'
    prioB = 2
    h0 = 5
    hiss = (1, 2, 1, 1, 1, 1, 1)
    ca_load = 9
    cs_issue = 5
    hdepth = 1
    fdepth = None
    x_delay = 0
    x_force = False
    backoff = 4
    rep_one = False
    x_nocs = False
    sweepW = False
    sweepD = False
    hramp = 0
    xp_chk = False
    npk = True
    lfifo = (8, 14)
    hprio = 3
    pz_sleep = 4
    hnear = 3
    lf_at = 'C'
    hf_at = 'P'
    poi_at = '0'
    wide_h = True
    xp_at = 0
    gat_split = (7,)
    x_nogat = False
    cprio = 3
    nprio = 2
    auxprio = 3
    x_nopre = False
    emode = 0
    csort = True
    probe = 1
    x_quietN = False
    x_quietL = False
    cmin = 5
    cmerge = (0, 2, 4, 6)
    w8 = False
    nlf = 6
    outflag = ''
    hl = True
    x_pad = 0
    wsoff = 0
    hf_c = 4
    hf_p = 10
    xmask = True
    auxpoll = False
    sig_early = False
    psleep = 0
    tpost = True
    cs_back = 16
    wtouch = 0
    wt_at = 'A'
    hseq = True
    hbar2 = False
    fast0 = False
    fin_ov = 3
    nstage = True
    x16 = ''
    e2pk = 4
    xe_at = 4
    ptouch = True
    stouch = 0
    sgran = 21
    auxfirst = False
    kfirst = True
    auxprio0 = 3
    cpearly = True
    xback = 0
    revrow = True
    ppair = False
    x_sdelay = 0
    wpre = 4
    x_pre = 0
    dist = ((3, 3, 2, 0), (3, 3, 2, 0))
    st_i = (0, 1)
    gs_at = (1, 2, 3)
    put_i = (29,) * 6
    dgap = 4
    caw2 = 26
    xsflag = 'sc0 sc1'
    pt2 = True
    dlate = True
    tdep0 = 8
    corr_at = 27
    lf_c = 3
    lf_d = 0
    lf_i = (7, 12, 13, 14, 27, 28)
    touch = 0
    x_noput = False
    x_notl = False
    selfrd = False
    sweepU = 3
    hsleep = 0
    cs2 = (17, 21)
    hwait = None
    x_nocp = False
    warm = True
    npg = 5
    stcost = 8
    xe = True
    x_cnt = False
    put_0, put_l = 6, 0
    x_fine = None
    phase = 1

def schedule(c):
    need = {("W", s): s for s in range(28)}
    last_use = {("W", s): s + 1 for s in range(28)}
    for t in range(28): last_use[("D", t)] = 1000
    hslot = [sl + (2 if c.w8 and sl >= 12 else 0) for sl in range(14)]
    w0 = 12 if c.w8 else 14
    free_at = {sl: (16 + sl if sl < w0 else -2 if sl >= 14 else -1) for sl in range(NSL)}
    slot = {("H", k): hslot[k] for k in range(14)}
    issue = {i: [] for i in range(-2, 29)}
    n = dict(W=0, D=0, H=c.h0 if c.hl else 14)
    for k in range(n["H"], 14): need[("H", k)] = k - 2; last_use[("H", k)] = 15 + k
    nd = 8
    cur = None
    def pick(i):
        nW, nD = n["W"], n["D"]
        wf = [sl for sl in range(w0, NSL) if free_at[sl] <= i and (sl != 19 or i >= 15 or nW + 1 < c.con_write)]
        canH = n["H"] < 14 and i >= 0 and (not c.w8 or n["H"] < 12 or i >= n["H"] - 10)
        if canH and (n["H"] - 2 <= nW or not wf): return ("H", n["H"]), hslot[n["H"]]
        if nW < 28 and wf: return ("W", nW), wf[0]
        fr = [sl for sl in range(NSL) if free_at[sl] <= i and (sl < w0 or nW == 28)]
        if fr and nD < nd: return ("D", nD), fr[0]
        return None
    for i in range(-2, 29):
        cap = 24 if i < 0 else c.caps.get(i, c.capP)
        while cap > 0:
            if cur is None:
                p = pick(i)
                if p is None: break
                b, sl = p
                slot[b] = sl; free_at[sl] = last_use[b] + 1; n[b[0]] += 1
                if c.w8 and b in (("W", 0), ("W", 1)): free_at[sl] = 28 + b[1]
                cur = [b, 0]
            issue[i].append((cur[0][0], cur[0][1], cur[1])); cur[1] += 1; cap -= 1
            if cur[1] == 4: cur = None
    assert n["D"] == nd and cur is None
    rest = sorted((sl for sl in range(NSL) if free_at[sl] < 1000), key=lambda sl: (free_at[sl], sl))
    assert len(rest) == 12
    x = [sl for sl in rest if free_at[sl] <= c.caw2][-1]
    slot['X'] = x
    rest.remove(x); rest.insert(6, x)
    for k, sl in enumerate(rest): slot[("D", nd + k)] = sl
    for k in range(6): assert free_at[rest[k]] <= c.put_i[k], (k, free_at[rest[k]])
    for t in range(20, 28): slot[("D", t)] = slot[("D", t - 20)]
    for k in range(c.lf_c + c.lf_d, 6): issue[c.lf_i[k - c.lf_c - c.lf_d]] += [("F", 8 + k, q) for q in range(4)]
    order = [b for i in range(0, 29) for b in issue[i]]
    pos = {b: k for k, b in enumerate(order)}
    wait = {}
    cnt = 0
    for i in range(0, 29):
        cnt += len(issue[i])
        req = [b for b in need if need[b] == i + 1 and b + (3,) in pos]
        wait[i] = None if not req else cnt - 1 - max(pos[b + (3,)] for b in req)
        if i == 28: wait[i] = cnt - 1 - pos[("D", 7, 3)]
        assert wait[i] is None or wait[i] >= 0, (i, req)
    return issue, slot, wait

def wsadd(c): return f"s_add_u32 s30, s30, {c.wsoff}\ns_addc_u32 s31, s31, 0" if c.wsoff else ""

def gen_helper(A, c, P):
    A(f"""
    s_cmp_eq_u32 s36, 9
    s_cbranch_scc1 Lhe
    s_sub_u32 s44, s2, 224
    s_lshr_b32 s45, s44, 3
    s_bfe_u32 s46, s44, 0x20001
    s_lshl_b32 s46, s46, 2
    s_add_u32 s46, s46, s45
    s_and_b32 s44, s44, 1
    s_cmp_ge_u32 s46, 14
    s_cselect_b32 s47, 2, 0
    s_sub_u32 s46, s46, s47
    v_and_b32 v1, 7, v0
    v_lshrrev_b32 v2, 3, v0
    v_mul_u32_u24 v2, 3584, v2
    v_lshl_add_u32 v2, v1, 4, v2
    s_cmp_ge_u32 s46, 7
    s_cselect_b32 s47, 7, 0
    s_waitcnt lgkmcnt(0)
    s_cselect_b32 s48, s22, s20
    s_cselect_b32 s49, s23, s21
    {wsadd(c)}
    s_sub_u32 s46, s46, s47
    s_mul_i32 s50, s44, 7
    s_add_u32 s46, s46, s50
    s_lshl_b32 s47, s47, 1
    s_add_u32 s52, s46, s47
    s_lshl_b32 s55, s46, 8
    s_mov_b32 s50, {W_BYTES}
    s_mov_b32 s51, 0x20000
    s_lshr_b32 s54, s52, 1
    s_mul_i32 s54, s54, {128*896}
    s_and_b32 s53, s52, 1
    s_lshl_b32 s53, s53, 3
    s_add_u32 s53, s53, s36
    s_mul_i32 s53, s53, {28*128}
    s_add_u32 s54, s54, s53
    s_add_u32 s54, s54, {64*896}
    v_and_b32 v3, 63, v0
    v_min_u32 v3, 27, v3
    v_lshl_add_u32 v3, v3, 7, s54
    v_lshrrev_b32 v12, 6, v0
    v_lshlrev_b32 v12, 8, v12
    v_lshl_add_u32 v12, v1, 5, v12
    v_and_b32 v14, 63, v0
    v_lshlrev_b32 v13, 2, v14
    s_lshl_b32 s46, s52, 10
    s_add_u32 s46, s46, {WS_CS}
    v_lshl_add_u32 v14, v14, 3, s46
    s_mov_b32 s42, 0x00003f80
    s_mov_b32 s43, 0x3f800000
    s_mov_b32 s41, 0xffff0000
    s_mov_b32 s56, 0
    """)
    if c.hsleep: A(f"s_sleep {c.hsleep}")
    A("s_barrier")
    if c.hbar2: A("s_barrier")
    A("s_cmp_eq_u32 s36, 8\ns_cbranch_scc1 Lhf")
    for h in range(2):
        A(f"s_mov_b32 s47, s55")
        for p in range(7):
            A(f"buffer_load_dwordx4 {v(40+28*h+4*p,4)}, v2, s[48:51], s47 offen offset:{128*h}")
            if p < 6: A("s_add_u32 s47, s47, %d" % (64 * 3584))
        if not c.wtouch & 4: A(f"global_load_dword v{100+h}, v3, s[24:25]")
        if h == 0:
            A(f"v_subrev_u32 v3, {64*896}, v3")
            if c.hseq: A("s_waitcnt vmcnt(3)")
    A(f"s_waitcnt vmcnt({7 if c.wtouch & 4 else 9})\nLhl:")
    for p in range(7):
        for q in range(4):
            for hl in range(2):
                acc = 4 + 2 * q + hl
                A(f"v_dot2_f32_bf16 v{acc}, v{40+4*p+q}, s{42+hl}, {'0' if p == 0 else 'v%d' % acc}")
    for q in range(8): A(f"v_add_f32_dpp v{4+q}, v{4+q}, v{4+q} row_ror:8{DPP}")
    for op in ("v_permlane16_swap_b32", "v_permlane32_swap_b32"):
        for q in range(8): A(f"v_mov_b32 v{16+q}, v{4+q}")
        for q in range(8): A(f"{op} v{4+q}, v{16+q}")
        for q in range(8): A(f"v_add_f32 v{4+q}, v{4+q}, v{16+q}")
    A(f"""
    s_mov_b64 exec, 0xff
    ds_write_b128 v12, v[4:7]
    ds_write_b128 v12, v[8:11] offset:16
    s_mov_b64 exec, -1
    s_waitcnt lgkmcnt(0)
    s_barrier
    s_cmp_lg_u32 s56, 0
    s_cbranch_scc1 Lhs
    s_mov_b32 s56, 1
    v_add_u32 v12, 2048, v12
    s_waitcnt vmcnt({0 if c.wtouch & 4 else 1})
    """)
    for k in range(28): A(f"v_mov_b32 v{40+k}, v{68+k}")
    A(f"""
    s_branch Lhl
    Lhf:
    s_barrier
    ds_read2st64_b32 v[4:5], v13 offset0:0 offset1:1
    ds_read2st64_b32 v[6:7], v13 offset0:2 offset1:3
    ds_read2st64_b32 v[8:9], v13 offset0:4 offset1:5
    ds_read2st64_b32 v[10:11], v13 offset0:6 offset1:7
    s_waitcnt lgkmcnt(0)
    v_pk_add_f32 v[4:5], v[4:5], v[6:7]
    v_pk_add_f32 v[8:9], v[8:9], v[10:11]
    v_pk_add_f32 v[4:5], v[4:5], v[8:9]
    v_add_f32 v4, v4, v5
    v_cvt_pk_bf16_f32 v5, v4, v4
    v_and_b32 v5, s41, v5
    v_sub_f32 v6, v4, v5
    v_cvt_pk_bf16_f32 v8, v5, v6
    v_and_b32 v7, s41, v8
    v_sub_f32 v6, v6, v7
    v_cvt_pk_bf16_f32 v9, v6, 0
    global_store_dwordx2 v14, v[8:9], s[30:31] sc0 sc1
    s_mov_b32 s46, 1
    s_waitcnt vmcnt(0)
    s_atomic_add s46, s[28:29], s56
    v_add_u32 v14, 512, v14
    v_add_u32 v13, 2048, v13
    s_add_u32 s56, s56, 128
    """)
    if base.PROF: A("s_mov_b32 s74, s76\ns_memrealtime s[76:77]")
    A("s_waitcnt lgkmcnt(0)\ns_cmp_lt_u32 s56, 256\ns_cbranch_scc1 Lhf")
    P.flush(3)
    A("Lhe:\ns_endpgm\nLhs:")
    if c.sweepD or c.sweepW:
        A(f"""
        s_cmp_ge_u32 s36, 7
        s_cbranch_scc1 Lhe
        s_mul_i32 s46, s45, {128*896}
        v_lshl_add_u32 v4, v0, 7, s46
        """)
        for k in range(4 if c.sweepD else 0):
            if k == 3: A("s_cmp_ge_u32 s45, 2\ns_cbranch_scc1 Lhw")
            A(f"global_load_dword v8, v4, s[24:25]\nv_add_u32 v4, {4*128*896}, v4\ns_waitcnt vmcnt({c.hdepth})")
        A("Lhw:")
        if c.sweepW:
            A(f"""
            v_lshrrev_b32 v2, 3, v0
            v_mul_u32_u24 v2, 3584, v2
            v_and_b32 v3, 7, v0
            v_min_u32 v3, 6, v3
            v_lshl_add_u32 v2, v3, 8, v2
            s_mul_i32 s46, s45, {112*3584}
            s_mul_i32 s47, s44, 1792
            s_add_u32 s46, s46, s47
            v_add_u32 v2, s46, v2
            v_add_u32 v3, {56*3584}, v2
            """)
            for m in (20, 22):
                for r in (2, 3): A(f"global_load_dword v8, v{r}, s[{m}:{m+1}] offset:128\ns_waitcnt vmcnt({c.hdepth})")
    A("s_endpgm")

def gen(A, name, c=Cfg, verbose=False):
    issue, slot, wait = schedule(c)
    if verbose:
        for i in range(-2, 29): print(i, ' '.join(k + str(j) + '.' + str(q) for k, j, q in issue[i]), wait.get(i))
        print({k: x for k, x in slot.items() if k[0] in "DX"})
    kernel_head(A, name)
    end = A.label("end"); hlp = A.label("hlp"); kw_ = A.label("kw"); nw = A.label("nw"); tab = A.label("tab")
    auxt = A.label("auxt"); auxs = A.label("auxs"); til = A.label("til"); hold = A.label("hold")
    P0 = Prof(A, 1)
    class PH:
        def __init__(s, ph, kid=1): s.on = c.phase == ph; s.P = Prof(A, kid)
        def stamp(s, i):
            if s.on: s.P.stamp(i)
    P = PH(1); PA = PH(1, 3)
    class Bars:
        def __init__(s, marks, n1, kid=1): s.n = 0; s.marks = c.x_fine or marks; s.on = c.phase == 2; s.n1 = n1; s.P = Prof(A, kid)
        def bar(s):
            A("s_barrier")
            if s.on and s.n in s.marks: s.P.stamp(1 + s.marks.index(s.n))
            s.n += 1
        def mark(s, k):
            if s.on and not c.x_fine: s.P.stamp(1 + len(s.marks) + k)
        def fin(s, k=0):
            if c.phase == 0:
                if s.n1 == 13: s.P.flush(1)
                return
            if not s.on: s.P.flush(s.n1); return
            k = 0 if c.x_fine else k
            s.P.stamp(1 + len(s.marks) + k); s.P.flush(2 + len(s.marks) + k)
    cold = []
    class Cold:
        def __enter__(s): s.keep = A.L; A.L = []
        def __exit__(s, *a): cold.extend(A.L); A.L = s.keep
    wst = []
    def target(lab):
        wst.append(lab)
        A(f".p2align 6\n{lab}w:\ns_setpc_b64 s[96:97]\ns_nop 0\n{lab}:")
    A(f"s_cmp_ge_u32 s2, 256\ns_cbranch_scc1 {end}")
    P0.stamp(0)
    load_ptrs(A)
    A(f"s_getpc_b64 s[60:61]\nLpc:")
    vLane, vG, vJ = 1, 2, 3
    per = (c.code_bytes // 128 + 63) // 64
    vRow, vXG = 16, 48
    ffn_ids = """
    s_and_b32 s37, s2, 7
    s_lshr_b32 s38, s2, 3
    s_and_b32 s40, s38, 3
    s_lshr_b32 s39, s37, 1
    s_lshl_b32 s39, s39, 2
    s_add_u32 s39, s39, s40
    s_and_b32 s34, s37, 1
    s_lshr_b32 s35, s38, 2
    s_mul_i32 s38, s34, 7
    s_add_u32 s38, s38, s35
    s_mul_i32 s33, s40, 3
    s_lshl_b32 s37, s35, 1
    s_add_u32 s33, s33, s37
    s_cmp_ge_u32 s33, 14
    s_cselect_b32 s37, 14, 0
    s_sub_u32 s33, s33, s37
    """
    if c.cpearly:
        A(f"""
        s_lshr_b32 s62, s2, 3
        s_mul_i32 s62, s62, {2*per*128}
        v_lshl_add_u32 v2, v0, 7, s62
        v_min_u32 v2, Lcode_end-Lpc-4, v2
        v_cmp_gt_u32 vcc, {2*per}, v0
        s_and_saveexec_b64 s[62:63], vcc
        s_cbranch_execz Lcpx
        global_load_dword v167, v2, s[60:61]
        Lcpx:
        s_mov_b64 exec, -1
        """)
    if c.auxfirst: A("v_add_u32 v2, 512, v0\nv_subrev_u32 v0, 256, v0\nv_min_u32 v0, v0, v2")
    A(f"""
    v_lshrrev_b32 v4, 6, v0
    v_and_b32 v{vLane}, 63, v0
    s_and_b32 s37, s2, 7
    v_readfirstlane_b32 s36, v4
    s_mul_i32 s37, s37, 28
    s_lshr_b32 s38, s2, 3
    s_add_u32 s37, s37, s38
    s_mov_b32 s43, 0xffff0000
    """)
    vP = 8
    def kissue():
        A(f"""
        v_mov_b32 v{vP}, 0
        v_mov_b32 v{vP+1}, 0
        v_mov_b32 v{vP+2}, 0
        v_mov_b32 v{vP+3}, 0
        s_lshl_b32 s48, s37, 10
        v_lshl_add_u32 v4, v0, 1, s48
        s_lshl_b32 s48, s37, 2
        s_lshl_b32 s56, s36, 14
        s_mov_b32 m0, s56
        s_lshr_b32 s38, s36, 2
        s_add_u32 s62, s60, {tab}-Lpc+2048
        s_addc_u32 s63, s61, 0
        s_waitcnt lgkmcnt(0)
        s_load_dword s52, s[14:15], s48
        global_load_short_d16_hi v{vP}, v4, s[6:7]
        global_load_short_d16_hi v{vP+1}, v4, s[8:9]
        global_load_short_d16_hi v{vP+2}, v4, s[10:11]
        global_load_short_d16_hi v{vP+3}, v4, s[12:13]
        {'' if c.dlate else 's_load_dword s53, s[16:17], s48'}
        {wsadd(c)}
        """)
    if c.kfirst:
        A(f"s_cmp_ge_u32 s36, 8\ns_cbranch_scc1 Laux\ns_cmp_ge_u32 s2, 224\ns_cbranch_scc1 {hlp}")
        kissue()
        A(f"s_branch {kw_}\nLaux:")
    else: A(f"s_cmp_lt_u32 s36, 8\ns_cbranch_scc1 {kw_}")
    A(f"""
    s_setprio {c.auxprio0}
    v_lshrrev_b32 v5, 3, v{vLane}
    v_and_b32 v6, 7, v{vLane}
    v_mul_u32_u24 v7, 896, v5
    s_cmp_lt_u32 s36, 10
    s_cbranch_scc1 {til}
    s_and_b32 s36, s36, 1
    """)
    if not c.cpearly: A(f"""
    s_lshr_b32 s62, s2, 2
    s_and_b32 s62, s62, 62
    s_add_u32 s62, s62, s36
    s_mul_i32 s62, s62, {per*128}
    v_min_u32 v10, {per-1}, v{vLane}
    v_lshl_add_u32 v10, v10, 7, s62
    v_min_u32 v10, Lcode_end-Lpc-4, v10
    global_load_dword v99, v10, s[60:61]
    """)
    A(f"""
    s_and_b32 s47, s2, 7
    s_lshl_b32 s47, s47, 5
    s_add_u32 s47, s47, s38
    {"s_xor_b32 s47, s47, 31" if c.revrow else ""}
    s_mul_i32 s48, s47, {8*896}
    v_lshl_add_u32 v8, v6, 4, v7
    v_add_u32 v8, s48, v8
    s_waitcnt lgkmcnt(0)
    {wsadd(c)}
    s_cmp_eq_u32 s36, 1
    s_cbranch_scc1 {hold}t
    s_load_dword s56, s[30:31], {WS_E}
    """)
    for i in range(7): A(f"global_load_dwordx4 {v(vRow+4*i,4)}, v8, s[4:5] offset:{128*i}")
    A(f"""
    s_branch {auxs}
    {til}:
    s_cmp_ge_u32 s2, 224
    s_cbranch_scc1 {hlp}
    s_and_b32 s36, s36, 1
    s_mul_i32 s46, s37, 9363
    s_lshr_b32 s46, s46, 16
    s_mul_i32 s47, s46, 7
    s_sub_u32 s47, s37, s47
    s_lshl_b32 s46, s46, 1
    s_add_u32 s46, s46, s36
    s_mul_i32 s49, s46, {32*896}
    s_lshl_b32 s48, s47, 7
    s_add_u32 s49, s49, s48
    s_lshl_b32 s47, s47, 19
    s_lshl_b32 s46, s46, 8
    s_add_u32 s51, s47, s46
    s_lshl_b32 s46, s36, 12
    s_add_u32 s46, s46, {XT}
    s_mov_b32 m0, s46
    v_lshrrev_b32 v4, 1, v5
    v_xor_b32 v4, v4, v6
    v_lshl_add_u32 v12, v4, 4, v7
    v_xor_b32 v4, 4, v4
    v_lshl_add_u32 v13, v4, 4, v7
    v_add_u32 v13, {8*896-1024}, v13
    v_add_u32 v14, {16*896-2048}, v12
    v_add_u32 v15, {16*896-2048}, v13
    s_mov_b32 s34, {X_BYTES}
    s_mov_b32 s35, 0x20000
    s_waitcnt lgkmcnt(0)
    s_mov_b32 s32, s4
    s_mov_b32 s33, s5
    """)
    for i in range(4): A(f"buffer_load_dwordx4 v{12+i}, s[32:35], s49 offen offset:{1024*i} lds")
    A(f"{wsadd(c)}\ns_load_dword s57, s[30:31], {WS_E}")
    A(f"s_branch {auxt}\n{kw_}:")
    if not c.kfirst: A(f"s_cmp_ge_u32 s2, 224\ns_cbranch_scc1 {hlp}")
    vP, vDT = 8, 12
    a2, b2 = 14, 15
    w1, w256, w2, w512 = 16, 18, 20, 22
    tA, tB, tC = 24, 26, 28
    G, G2, Hh, W4, HT, CV = 30, 46, 62, 68, 70, 78
    vTB, vA, vBc, vRA = 88, 94, 95, 96
    if not c.kfirst: kissue()
    P.stamp(1)
    A(f"""
    v_bfe_u32 v{vG}, v0, 5, 1
    v_and_b32 v{vJ}, 31, v0
    s_lshl_b32 s46, s36, 15
    v_mul_u32_u24 v4, {GP}, v{vJ}
    v_lshl_add_u32 v4, v{vG}, 4, v4
    v_add_u32 v{vRA}, s46, v4
    s_bfe_u32 s39, s36, 0x10001
    s_and_b32 s40, s36, 1
    s_lshl_b32 s48, s39, 15
    s_lshl_b32 s47, s40, 8
    s_add_u32 s48, s48, s47
    s_add_u32 s48, s48, {KB0+64-24}
    v_and_b32 v4, 3, v0
    v_sub_u32 v4, 3, v4
    v_mul_u32_u24 v4, {KP}, v4
    v_bfe_u32 v5, v0, 2, 2
    v_lshl_add_u32 v4, v5, 3, v4
    v_bfe_u32 v5, v0, 4, 2
    v_lshl_add_u32 v4, v5, 4, v4
    v_add_u32 v{vA}, s48, v4
    s_mul_i32 s48, s39, {UPITCH}
    s_sub_u32 s48, s48, s47
    s_add_u32 s48, s48, {UO+512+16-192}
    v_and_b32 v4, 15, v0
    v_lshlrev_b32 v4, 5, v4
    v_lshlrev_b32 v5, 4, v5
    v_sub_u32 v4, v4, v5
    v_add_u32 v{vBc}, s48, v4
    s_add_u32 s64, s30, {WS_XG}
    s_addc_u32 s65, s31, 0
    s_mov_b32 s66, {XG_BYTES}
    s_mov_b32 s67, 0x20000
    s_and_b32 s47, s36, 3
    s_lshl_b32 s47, s47, 12
    v_lshl_add_u32 v97, v{vLane}, 4, s47
    s_lshl_b32 s44, s37, 14
    s_mov_b32 s54, {f32(8.0)}
    s_mov_b32 s55, {f32(256.0)}
    s_lshl_b32 s46, s38, 4
    v_mov_b32 v{vDT}, {f32(LOG2E)}
    s_cmp_lt_u32 s36, 4
    s_cbranch_scc1 Lnoprio
    s_setprio 1
    Lnoprio:
    s_waitcnt lgkmcnt(0)
    s_lshr_b32 s52, s52, s46
    s_lshl_b32 s52, s52, 16
    v_mul_f32 v{vDT}, s52, v{vDT}
    v_exp_f32 v{vDT}, v{vDT}
    v_cvt_pk_bf16_f32 v{vDT}, v{vDT}, v{vDT}
    v_and_b32 v{vDT}, s43, v{vDT}
    v_add_f32 v6, v{vDT}, v{vDT}
    """)
    P.stamp(2)
    A(f"""
    s_waitcnt vmcnt(2)
    v_mul_f32 v4, {f32(LOG2E)}, v{vP}
    v_exp_f32 v4, v4
    v_mul_f32 v{b2}, v{vP+1}, v{vDT}
    v_cvt_pk_bf16_f32 v4, v4, v4
    v_and_b32 v4, s43, v4
    v_mul_f32 v{a2}, v4, v{vDT}
    v_mul_f32 v{b2}, 0.15915494, v{b2}
    v_mul_f32 v{a2}, {f32(-LOG2E)}, v{a2}
    """)
    P.stamp(3)
    nb_ = [0]
    vPX, vPS_, vPA = 100, 116, 97
    xp = [f"buffer_load_dwordx4 {v(vPX+4*q,4)}, v{vPA}, s[64:67], s44 offen offset:{1024*q} sc1" for q in range(4)]
    xp += [f"global_load_dwordx4 {v(vPS_+4*q,4)}, v{vPA}, s[30:31] offset:{1024*q} sc1" for q in range(4)]
    xord = [4, 5, 0, 1, 6, 7, 2, 3]
    def put(src, row, neg):
        r = CV + (nb_[0] & 7); nb_[0] += 1
        x = [f"v_cvt_pk_bf16_f32 v{r}, v{src}, {'-' if neg else ''}v{src+1}", f"ds_write_addtid_b32 v{r} offset:{row*GP}"]
        if nb_[0] == c.prio_mid: x[1] += "\ns_setprio 0"
        if nb_[0] == c.xp_at: x[1] += "\ns_cmp_lt_u32 s36, 4\ns_cbranch_scc1 Lnoxp\n" + "\n".join(xp) + "\nLnoxp:"
        return x
    def spread(puts, work):
        o = []
        while puts or work:
            p = puts.pop(0) if puts else None
            if p: o.append(p[0])
            if work: o += work.pop(0)
            if p: o.append(p[1])
        return o
    GR = 32
    for l in cexp(Hh, a2, b2, "s54", tA): A(l)
    A(f"v_mov_b32 v{CV+8}, 0x3f80\nds_write_addtid_b32 v{CV+8}")
    for l in cmul(Hh+2, Hh, Hh) + cmul(Hh+4, Hh+2, Hh) + cmul(W4, Hh+2, Hh+2): A(l)
    ex = merge(cexp(w1, a2, b2, None, tB), cexp(w256, a2, b2, "s55", tC))
    ex += ["s_waitcnt vmcnt(0)", f"v_mul_f32 v{G}, v{vP+2}, v6", f"v_mul_f32 v{G+1}, v{vP+3}, v6",
           "v_min_u32 v5, 255, v0\nv_lshlrev_b32 v6, 4, v5", "v_lshlrev_b32 v5, 3, v5",
           f"global_load_dwordx4 {v(vTB,4)}, v6, s[62:63] offset:-2048", f"global_load_dwordx2 {v(vTB+4,2)}, v5, s[62:63] offset:2048"]
    ex += cmul(w2, w1, w1) + cmul(G+2, G, w1) + cmul(w512, w256, w256)
    cur = [Hh, Hh+2, Hh+4, W4]; nxt = [HT, HT+2, HT+4, HT+6]; alt = [G2, G2+2, G2+4, G2+6]
    j = 1
    while j < 32:
        pend = [put(cur[r], j + r, False) for r in range(4) if j + r < 32]
        wk = [cmul(nxt[r], cur[r], W4) + [ex.pop(0) for _ in range(1) if ex] for r in range(4) if j + 4 + r < 32]
        if j + 4 >= 32: wk = [cmul(G+2*i, G+2*(i-2), w2) for i in range(2, 5)]
        for l in spread(pend, wk): A(l)
        cur, nxt = nxt, (alt if nxt[0] == HT else [HT, HT+2, HT+4, HT+6])
        j += 4
    assert not ex
    wk = [cmul(G+2*i, G+2*(i-2), w2) for i in range(5, 8)] + [cmul(G2+2*k, G+4*k, w256) for k in range(4)] + [cmul(G2+8, G, w512)]
    for l in spread([put(G+2*i, GR+i, True) for i in range(8)], wk): A(l)
    wk = [cmul(G2+10, G+8, w512), cmul(G2+12, G2, w512), cmul(G2+14, G2+4, w512), cmul(G, G2+8, w512), cmul(G+2, G2+12, w512), cmul(G+4, G, w512), cmul(G+6, G+2, w512), cmul(G+8, G+4, w512)]
    for l in spread([put(G2+2*i, GR+8+i, True) for i in range(8)], wk): A(l)
    for l in spread([put(G+2*i, GR+16+i, True) for i in range(5)], []): A(l)
    P.stamp(4)
    A(f"s_cmp_ge_u32 s36, 4\ns_cbranch_scc1 {nw}\ns_branch Lmw\n.p2align 12")
    target("Lmw")
    vACC, vEA, FR, TA_ = 8, 30, 100, 44
    tabprep = [f"s_lshl_b32 s46, s36, 15", f"v_lshl_add_u32 v4, v{vJ}, 2, s46", f"v_mul_u32_u24 v5, {4*TP}, v{vG}", "v_add_u32 v5, v5, v4", f"v_xor_b32 v7, 1, v{vG}"]
    tmin = []
    for b in range(4):
        o0 = 2 * b * TP + 128; o1 = 4 * (b & 1) * TP + 256 + 128 * (b >> 1)
        tabprep += [f"v_mul_u32_u24 v{TA_+b}, {abs(o1-o0)}, v{vG if o1 > o0 else 7}", f"v_add_u32 v{TA_+b}, v{TA_+b}, v4"]
        tmin.append(min(o0, o1))
    tabprep += [f"v_lshl_add_u32 v{TA_+4}, v{vG}, 9, v4", "s_waitcnt vmcnt(0)"]
    for r in range(11):
        tabprep += [f"v_and_b32 v{vEA+r}, 0xffff, v{vTB+(r>>1)}" if r % 2 == 0 else f"v_lshrrev_b32 v{vEA+r}, 16, v{vTB+(r>>1)}"]
    tabprep += ["v_cmp_ne_u32 s[44:45], 0, v0", f"v_lshlrev_b32 v6, 4, v0"]
    A("s_waitcnt lgkmcnt(0)\ns_barrier")
    P.stamp(5)
    def frd(n):
        b = FR + 8 * (n & 7); o = (n >> 3) * REG + 32 * (n & 7)
        return f"ds_read_b128 {v(b,4)}, v{vRA} offset:{GR*GP+o}\nds_read_b128 {v(b+4,4)}, v{vRA} offset:{o}"
    for n in range(6): A(frd(n))
    for n in range(16):
        b0 = FR + 8 * (n & 7)
        A(f"s_waitcnt lgkmcnt({2*min(5, 15-n)})\nv_mfma_f32_32x32x16_bf16 {v(vACC,16)}, {v(b0,4)}, {v(b0+4,4)}, {'0' if n == 0 else v(vACC,16)}")
        if n + 6 < 16: A(frd(n + 6))
        for l in tabprep[2*n:2*n+2]: A(l)
    assert len(tabprep) <= 32
    vW, vR, vO = 97, 98, 99
    A(f"""
    s_lshl_b32 s46, s36, 12
    s_add_u32 s46, s46, {PARO}
    v_lshl_add_u32 v{vW}, v{vLane}, 4, s46
    v_xor_b32 v{vR}, 0x1000, v{vW}
    s_lshl_b32 s46, s40, 10
    s_lshl_b32 s47, s39, 15
    s_add_u32 s47, s47, s46
    v_lshl_add_u32 v3, v{vLane}, 4, s47
    """)
    for b in range(4): A(f"ds_write_b32 v5, v{vACC+b} offset:{TP*b}")
    for b in range(4): A(f"ds_write_b32 v{TA_+b}, v{vACC+4+b} offset:{tmin[b]}")
    A(f"s_mov_b32 exec_hi, 1\nds_write_b32 v{TA_+4}, v{vACC+8} offset:512\ns_mov_b32 exec_hi, 0")
    for b in range(1, 4): A(f"ds_write_b32 v{TA_+4}, v{vACC+8+b} offset:{512+128*b}")
    A("s_mov_b32 exec_hi, -1\ns_waitcnt lgkmcnt(0)\ns_barrier")
    P.stamp(6)
    EV, CB = 100, 44
    for r in range(11): A(f"ds_read2st64_b32 {v(EV+2*r,2)}, v{vEA+r} offset0:0 offset1:128\nv_add_u32 v{vEA+r}, 0x10000, v{vEA+r}")
    for r in range(11): A(f"ds_read2st64_b32 {v(EV+22+2*r,2)}, v{vEA+r} offset0:0 offset1:128")
    for ch in range(2):
        E = EV + 22 * ch
        A(f"s_waitcnt lgkmcnt({11 if ch == 0 else 4})")
        for r in range(11): A(f"v_add_f32 v{E+2*r}, v{E+2*r}, v{E+2*r+1}")
        for r in range(3): A(f"v_cndmask_b32 v{E+2*r}, 0, v{E+2*r}, s[44:45]")
        for cp in range(4):
            b = CB + 16 * ch + 4 * cp
            for k in range(4):
                r0 = 3 - cp + 2 * k
                A(f"v_cvt_pk_bf16_f32 v{b+k}, v{E+2*r0}, v{E+2*r0+2}")
            A(f"ds_write_b128 v6, {v(b,4)} offset:{KB0+64+32768*ch+cp*KP}")
    P.stamp(7)
    A("s_waitcnt lgkmcnt(0)\ns_barrier")
    P.stamp(8)
    A(f"s_setprio {c.cprio}")
    AC = 8
    FBs = [40 + 8 * k for k in range(6)] + [100 + 8 * k for k in range(6)]
    def rd(Gi):
        r, n = Gi >> 3, Gi & 7
        b = FBs[Gi % 12]
        return [f"ds_read_b64 {v(b,2)}, v{vA} offset:{512*n+64*r}", f"ds_read_b64 {v(b+2,2)}, v{vA} offset:{512*n+64*r+8}",
                f"ds_read_b128 {v(b+4,4)}, v{vBc} offset:{512*n+64*(3-r)}"]
    def send(t): return f"s_mov_b64 exec, s[{48+2*(t&1)}:{49+2*(t&1)}]\nds_write_b128 v{vW}, {v(AC+4*t,4)} offset:{1024*(t>>1)}\ns_mov_b64 exec, -1"
    for Gi in range(4):
        for l in rd(Gi): A(l)
    A(f"""
    s_lshl_b32 s46, s37, 2
    s_add_u32 s46, s46, s39
    s_lshl_b32 s46, s46, 12
    s_lshl_b32 s47, s40, 9
    s_add_u32 s46, s46, s47
    s_add_u32 s46, s46, {WS_XG}
    v_and_b32 v4, 15, v0
    v_bfe_u32 v5, v0, 4, 2
    v_lshlrev_b32 v4, 5, v4
    v_lshrrev_b32 v6, 1, v5
    v_lshl_add_u32 v4, v6, 4, v4
    v_and_b32 v5, 1, v5
    v_lshl_add_u32 v4, v5, 10, v4
    v_add_u32 v{vO}, s46, v4
    """)
    started = set()
    def cm(r, a, b):
        t = a + b
        cc = v(AC + 4 * t, 4) if t in started else "0"
        started.add(t)
        return f"v_mfma_f32_16x16x32_bf16 {v(AC+4*t,4)}, {v(FBs[(8*r+a)%12],4)}, {v(FBs[(8*r+b)%12]+4,4)}, {cc}"
    def grp(n): return [(a, b) for a in range(n + 1) for b in range(n + 1) if max(a, b) == n and a + b <= 7]
    rq = []; nrd = 12; known = 0
    for Gi in range(28):
        r, n = Gi >> 3, Gi & 7
        rq += rd(Gi + 4)
        while nrd < 3 * (Gi + 1) + c.cmin: A(rq.pop(0)); nrd += 1
        if known < 3 * (Gi + 1):
            want = 3 * (Gi + 1)
            if n in c.cmerge and Gi > 3: want = min(want + 3, nrd - 3)
            A(f"s_waitcnt lgkmcnt({nrd - want})"); known = want
        for (a_, b_) in grp(n):
            A(cm(r, a_, b_))
            if rq: A(rq.pop(0)); nrd += 1
    for l in rq: A(l)
    PR, PP = 148, 116
    odd = A.label("odd"); jn = A.label("jn")
    A(f"s_cmp_eq_u32 s40, 1\ns_cbranch_scc1 {odd}")
    for par in range(2):
        if par:
            for _ in range(c.x_pad // 4): A("s_nop 0")
            target(odd)
        snd = [t for t in range(8) if t % 2 != par]
        def sw(t): return f"ds_write_b128 v{vW}, {v(AC+4*t,4)} offset:{1024*(t>>1)}"
        rest = [p for n in range(4, 8) for p in grp(n)]
        first = [p for p in rest if (p[0] + p[1]) % 2 != par]; last = [p for p in rest if (p[0] + p[1]) % 2 == par]
        A("s_waitcnt lgkmcnt(9)"); got = 4
        for k, p in enumerate(first):
            if max(p) > got: A(f"s_waitcnt lgkmcnt({2 if k > 3 else 3*(7-max(p)) + (1 if k > 1 else 0)})"); got = 7 if k > 3 else max(p)
            A(cm(3, *p))
            if k == 1: A(sw(snd[0]))
            if k == 3: A(sw(snd[1]))
        if got < 7: A("s_waitcnt lgkmcnt(2)")
        for k, p in enumerate(last):
            A(cm(3, *p))
            if k == 2: A(sw(snd[2]))
            if k == 7: A(sw(snd[3]))
        if par == 0: P.stamp(9)
        else: P.stamp(9)
        A("s_waitcnt lgkmcnt(0)\ns_barrier")
        for q in range(4): A(f"ds_read_b128 {v(PR+4*q,4)}, v{vR} offset:{1024*q}\nds_read_b128 {v(PP+4*q,4)}, v3 offset:{2048*q}")
        for q in range(4):
            A(f"s_waitcnt lgkmcnt({6-2*q})")
            k = AC + 4 * (2 * q + par)
            for h in range(2): A(f"v_pk_add_f32 {v(PR+4*q+2*h,2)}, {v(PR+4*q+2*h,2)}, {v(PP+4*q+2*h,2)}")
            for h in range(2): A(f"v_pk_add_f32 {v(PR+4*q+2*h,2)}, {v(PR+4*q+2*h,2)}, {v(k+2*h,2)}")
            o_ = 132 + 2 * q
            A(f"v_cvt_pk_bf16_f32 v{o_}, v{PR+4*q}, v{PR+4*q+1}\nv_cvt_pk_bf16_f32 v{o_+1}, v{PR+4*q+2}, v{PR+4*q+3}")
            if q & 1:
                A(f"v_permlane16_swap_b32 v{o_-2}, v{o_}\nv_permlane16_swap_b32 v{o_-1}, v{o_+1}")
                A(f"global_store_dwordx4 v{vO}, {v(o_-2,4)}, s[30:31] offset:{1024*(q-1)} sc0 sc1")
        if not par: A(f"s_branch {jn}")
    A(f"{jn}:")
    P.stamp(10)
    vB, vAa, vS, vCR, vCA = 8, 10, 12, 14, 16
    vX = 18
    CN, CA, MB = 24, 32, 38
    F = [48, 64, 80]
    ACC = 96
    T1, T2, OUT = 48, 56, 64
    def csetup():
        A(ffn_ids)
        A(f"""
        s_and_b32 s40, s36, 1
        s_bfe_u32 s41, s36, 0x10001
        s_lshr_b32 s49, s36, 2
        v_bfe_u32 v2, v{vLane}, 2, 2
        v_bfe_u32 v3, v{vLane}, 4, 1
        v_lshrrev_b32 v4, 5, v{vLane}
        v_and_b32 v6, 3, v{vLane}
        v_lshl_add_u32 v5, v4, 3, v2
        v_lshlrev_b32 v7, 8, v5
        v_lshl_add_u32 v7, v6, 3, v7
        v_lshl_add_u32 v7, v3, 5, v7
        s_lshl_b32 s42, s40, 1
        s_add_u32 s42, s42, s41
        v_xor_b32 v{vB}, s42, v2
        v_lshl_add_u32 v{vB}, v{vB}, 6, v7
        v_xor_b32 v{vB+1}, 64, v{vB}
        v_add_u32 v17, 0x10000, v{vB}
        v_add_u32 v46, 0x10000, v{vB+1}
        s_lshl_b32 s42, s34, 1
        s_add_u32 s42, s42, s40
        v_xor_b32 v{vX}, s42, v2
        v_lshl_add_u32 v{vX}, v{vX}, 6, v7
        v_lshlrev_b32 v7, 7, v5
        v_lshl_add_u32 v7, v6, 3, v7
        v_lshl_add_u32 v7, v3, 12, v7
        v_lshrrev_b32 v5, 1, v2
        v_lshl_add_u32 v5, v3, 1, v5
        s_lshl_b32 s42, s41, 1
        v_xor_b32 v5, s42, v5
        v_lshl_add_u32 v7, v5, 5, v7
        v_add_u32 v{vAa}, {12*BLK}, v7
        v_xor_b32 v{vAa+1}, 32, v{vAa}
        s_lshl_b32 s42, s39, 2
        s_lshl_b32 s43, s40, 1
        s_add_u32 s42, s42, s43
        s_add_u32 s43, s42, s41
        s_xor_b32 s44, s43, 1
        s_lshl_b32 s45, s38, 3
        s_lshl_b32 s46, s41, 1
        s_add_u32 s45, s45, s46
        s_lshl_b32 s46, s49, 2
        s_add_u32 s45, s45, s46
        s_lshl_b32 s46, s45, 7
        s_add_u32 s45, s45, {WS_ACT // 1024}
        s_mul_i32 s43, s43, 112
        s_mul_i32 s44, s44, 112
        s_add_u32 s43, s43, s45
        s_add_u32 s44, s44, s45
        s_lshl_b32 s43, s43, 10
        s_lshl_b32 s44, s44, 10
        v_lshl_add_u32 v{vS}, v{vLane}, 4, s43
        v_lshl_add_u32 v{vS+1}, v{vLane}, 4, s44
        v_and_b32 v5, 15, v{vLane}
        v_mul_u32_u24 v7, {F_*8}, v3
        v_lshl_add_u32 v5, v5, 3, v7
        s_add_u32 s46, s46, {WS_CS}
        v_add_u32 v{vCA}, s46, v5
        v_and_b32 v5, 31, v{vLane}
        s_lshl_b32 s42, s40, 1
        s_add_u32 s42, s42, s41
        s_lshl_b32 s43, s42, 9
        s_add_u32 s43, s43, {CON}
        v_lshl_add_u32 v{vCR}, v5, 4, s43
        v_xor_b32 v{vCR+1}, 512, v{vCR}
        s_lshl_b32 s43, s39, 11
        s_lshl_b32 s44, s41, 8
        s_add_u32 s43, s43, s44
        s_add_u32 s43, s43, {WS_FLAGS}
        s_lshl_b32 s44, s34, 10
        s_add_u32 s59, s43, s44
        s_lshl_b32 s44, s40, 10
        s_add_u32 s58, s43, s44
        s_lshl_b32 s44, s49, 9
        s_add_u32 s58, s58, s44
        v_mov_b32 v{CA+4}, 0
        v_mov_b32 v{CA+5}, 0
        v_mov_b32 v{MB+2}, 0
        v_mov_b32 v{MB+3}, 0
        v_mov_b32 v{MB+6}, 0
        v_mov_b32 v{MB+7}, 0
        v_cmp_eq_u32 s[52:53], 0, v4
        s_mov_b32 s47, 0x3f803f80
        s_mov_b32 s48, 0xffff0000
        """)
    def caload(o): A(f"global_load_dwordx2 {v(CA,2)}, v{vCA}, s[30:31] offset:{o} sc1\nglobal_load_dwordx2 {v(CA+2,2)}, v{vCA}, s[30:31] offset:{o+128} sc1")
    def caaddr(r, base_): A(f"s_lshl_b32 s43, s42, 10\ns_add_u32 s43, s43, {base_}\nv_lshl_add_u32 v{r}, v{vLane}, 4, s43")
    def preads(p, j):
        s, ks = j >> 1, j & 1
        f = F[j % 3]
        ho = (slot[("H", s)] % 8) * BLK + 4096 * ks
        wo = (slot[("W", 14 * p + s)] - 12) * BLK + 2048 * ks
        o = []
        for kind, i in (("B", 0), ("A", 0), ("B", 1), ("A", 1)):
            ab = vB + i if s < 8 else (17, 46)[i]
            if kind == "B": o += [f"ds_read_b64_tr_b16 {v(f+8+4*i,2)}, v{ab} offset:{ho}", f"ds_read_b64_tr_b16 {v(f+10+4*i,2)}, v{ab} offset:{ho+1024}"]
            else: o += [f"ds_read_b64_tr_b16 {v(f+4*i,2)}, v{vAa+i} offset:{wo}", f"ds_read_b64_tr_b16 {v(f+2+4*i,2)}, v{vAa+i} offset:{wo+512}"]
        return o
    def pmfma(j, first=False, p=None):
        f = F[j % 3]
        if p is not None and str(p) in c.x16:
            o = []
            for k, (t, rt) in enumerate(((0, 0), (0, 1), (1, 0), (1, 1))):
                a = ACC + 32 * t + 16 * rt + 8 * (j & 1)
                o.append(f"v_mfma_f32_16x16x32_bf16 {v(a,4)}, {v(f+4*t,4)}, {v(f+8+4*rt,4)}, {v(a,4)}\nv_mfma_f32_16x16x32_bf16 {v(a+4,4)}, {v(f+4*(t^1),4)}, {v(f+8+4*rt,4)}, {v(a+4,4)}")
            return o
        return [f"v_mfma_f32_32x32x16_bf16 {v(ACC+32*t+16*rt,16)}, {v(f+4*t,4)}, {v(f+8+4*rt,4)}, {'0' if first else v(ACC+32*t+16*rt,16)}" for (t, rt) in ((0, 0), (0, 1), (1, 0), (1, 1))]
    def corr(first):
        return [f"v_mfma_f32_32x32x16_bf16 {v(ACC+32*t+16*rt,16)}, {v(CA+2*t,4)}, {v(MB+4*rt,4)}, {'0' if first else v(ACC+32*t+16*rt,16)}" for t in range(2) for rt in range(2)]
    mkmb = [f"v_cndmask_b32 v{MB+4*rt+k}, 0, v{CN+4*rt+3}, s[52:53]" for rt in range(2) for k in range(2)]
    def inter(m, r, dist=None):
        per_ = (len(r) + 3) // 4
        dist = dist or (per_,) * 4
        r = list(r)
        for i in range(4):
            A(m[i])
            for l in r[:dist[i]]: A(l)
            r = r[dist[i]:]
        assert not r
    def pstep(p, s):
        for h in range(2):
            A("s_waitcnt lgkmcnt(8)")
            inter(pmfma(2*s - 2 + h, s == 1 and h == 0, p if s > 1 else None), preads(p, 2*s + h), c.dist[h])
    def epi(t, rt, n, packed):
        a = ACC + 32 * t + 16 * rt
        cn = CN + 4 * rt
        o_ = OUT + 4 * (n & 1)
        L = []
        if packed:
            L += [f"v_pk_mul_f32 {v(T1+2*q,2)}, {v(a+2*q,2)}, {v(a+2*q,2)}" for q in range(4)]
            L += [f"v_pk_fma_f32 {v(T1+2*q,2)}, {v(T1+2*q,2)}, {v(cn,2)}, {v(cn,2)} op_sel:[0,1,0] op_sel_hi:[1,1,0]" for q in range(4)]
            L += [f"v_pk_mul_f32 {v(T1+2*q,2)}, {v(T1+2*q,2)}, {v(a+2*q,2)}" for q in range(4)]
            L += [f"v_exp_f32 v{T1+q}, v{T1+q}" for q in range(8)]
            L += [f"v_pk_mul_f32 {v(T2+2*q,2)}, {v(a+2*q,2)}, {v(a+8+2*q,2)}" for q in range(4)]
            L += [f"v_pk_fma_f32 {v(T1+2*q,2)}, {v(T1+2*q,2)}, {v(cn+2,2)}, {v(cn+2,2)} op_sel_hi:[1,0,0]" for q in range(4)]
            L += [f"v_rcp_f32 v{T1+q}, v{T1+q}" for q in range(8)]
            L += [f"v_pk_mul_f32 {v(T2+2*q,2)}, {v(T2+2*q,2)}, {v(T1+2*q,2)}" for q in range(4)]
            L += [f"v_cvt_pk_bf16_f32 v{o_+q}, v{T2+2*q}, v{T2+2*q+1}" for q in range(4)]
        else:
            def st(q):
                return [f"v_mul_f32 v{T1+q}, v{a+q}, v{a+q}", f"v_fma_f32 v{T1+q}, v{T1+q}, v{cn+1}, v{cn}", f"v_mul_f32 v{T1+q}, v{T1+q}, v{a+q}",
                        f"v_exp_f32 v{T1+q}, v{T1+q}", f"v_mul_f32 v{T2+q}, v{a+q}, v{a+8+q}", f"v_fma_f32 v{T1+q}, v{T1+q}, v{cn+2}, v{cn+2}",
                        f"v_rcp_f32 v{T1+q}, v{T1+q}", f"v_mul_f32 v{T2+q}, v{T2+q}, v{T1+q}"]
            for q0 in range(0, 8, c.il):
                xs = [st(q) for q in range(q0, q0 + c.il)]
                for k in range(8): L += [x[k] for x in xs]
                L += [f"v_cvt_pk_bf16_f32 v{o_+q//2}, v{T2+q}, v{T2+q+1}" for q in range(q0, q0 + c.il, 2)]
        L += [f"global_store_dwordx4 v{vS+rt}, {v(o_,4)}, s[30:31] offset:{1024*t} {c.stflag}"]
        return L
    def cost(l): return 2 if l.startswith(("v_exp", "v_rcp", "v_sqrt")) else c.stcost if l.startswith("global_store") else 1
    def signal(t, later=None):
        A(f"s_mov_b32 s70, 1\ns_waitcnt vmcnt({2-2*t if later is None else later})\ns_atomic_add s70, s[30:31], s58\ns_add_u32 s58, s58, 128")
    def poll_issue(r, off):
        A(f"s_mov_b32 s{r}, 0\ns_add_u32 s68, s59, {off}\ns_atomic_add s{r}, s[30:31], s68 glc")
    def poll_wait(r, off, inline=False):
        pl = A.label("poll"); ok = A.label("ok")
        if inline:
            A(f"s_mov_b32 s45, 0\n{pl}:\ns_waitcnt lgkmcnt(0)\ns_cmp_ge_u32 s{r}, 14\ns_cbranch_scc1 {ok}")
            poll_issue(r, off)
            A(f"s_add_u32 s45, s45, 1\ns_cmp_lt_u32 s45, {SPIN}\ns_cbranch_scc1 {pl}\ns_waitcnt lgkmcnt(0)\n{ok}:")
            return
        A(f"s_waitcnt lgkmcnt(0)\ns_cmp_lt_u32 s{r}, 14\ns_cbranch_scc1 {pl}\n{ok}:")
        with Cold():
            A(f"{pl}:\ns_mov_b32 s45, 0\n{pl}b:")
            poll_issue(r, off)
            A(f"s_add_u32 s45, s45, 1\ns_waitcnt lgkmcnt(0)\ns_cmp_ge_u32 s{r}, 14\ns_cbranch_scc1 {ok}\ns_cmp_lt_u32 s45, {SPIN}\ns_cbranch_scc1 {pl}b\ns_branch {ok}")
    PA_, PB_ = 69, 71
    Q = Bars([0, 14, c.drain0[1] + 1, 29], 13)
    AC2, ID, HF = 80, 160, 72
    csetup()
    if c.emode: A(f"s_waitcnt vmcnt(0)\ns_sleep {c.emode}")
    A("s_waitcnt vmcnt(0)\ns_barrier")
    P.stamp(11)
    A(f"""
    s_lshl_b32 s43, s35, 1
    s_add_u32 s43, s43, s41
    s_sub_u32 s43, s43, s38
    s_cselect_b32 s44, 14, 0
    s_add_u32 s43, s43, s44
    s_cmp_ge_u32 s43, 12
    s_cselect_b32 s44, {2 if c.w8 else 0}, 0
    s_add_u32 s43, s43, s44
    s_lshl_b32 s43, s43, 13
    v_add_u32 v{vX}, s43, v{vX}
    v_lshlrev_b32 v7, 3, v4
    v_sub_u32 v7, v5, v7
    v_mov_b32 v{vX+1}, 0x3f80
    v_mov_b32 v{vX+2}, 1.0
    """)
    for j in range(2):
        for i in range(4):
            d0 = 16 * j + 2 * i
            A(f"v_cmp_eq_u32 vcc, {d0}, v7\nv_cmp_eq_u32 s[50:51], {d0+1}, v7\nv_cndmask_b32 v{ID+4*j+i}, 0, v{vX+1}, vcc\nv_cndmask_b32 v{ID+4*j+i}, v{ID+4*j+i}, v{vX+2}, s[50:51]")
    caaddr(47, CON + 2048)
    A("s_setprio 2")
    Q.bar()
    P.stamp(12)
    for l in preads(0, 0) + preads(0, 1): A(l)
    if c.fast0:
        A("s_waitcnt lgkmcnt(8)")
        for l in pmfma(0, True): A(l)
        A("s_waitcnt lgkmcnt(0)")
        for l in pmfma(1): A(l)
        Q.bar()
        for l in preads(0, 2) + preads(0, 3): A(l)
    for s in range(2 if c.fast0 else 1, 14):
        Q.bar(); pstep(0, s)
    Q.bar()
    r = [f"ds_read_b128 {v(CA,4)}, v47"] + [f"ds_read_b128 {v(CN+4*i,4)}, v{vCR+i}" for i in range(2)] + [f"ds_read_b64_tr_b16 {v(HF+2*i,2)}, v{vX} offset:{4096*(i>>1)+1024*(i&1)}" for i in range(4)]
    A("s_waitcnt lgkmcnt(8)"); inter(pmfma(26), r)
    A("s_waitcnt lgkmcnt(4)"); inter(pmfma(27), mkmb)
    for l in corr(False): A(l)
    A("s_waitcnt lgkmcnt(0)")
    A("s_setprio 0")
    E1 = []
    for n in range(4): E1 += epi(n >> 1, n & 1, n, c.e1_packed)
    tot = sum(cost(x) for x in E1); per1 = tot / (c.e1_last - c.e1_first + 1); bud = 0.0
    vD, vT = 8, 14
    gsetup = f"""
    v_lshl_add_u32 v7, v4, 2, v2
    v_lshlrev_b32 v7, 7, v7
    v_lshrrev_b32 v{vD}, 1, v2
    v_xor_b32 v{vD}, s41, v{vD}
    v_lshl_add_u32 v7, v{vD}, 6, v7
    v_lshl_add_u32 v7, v3, 5, v7
    v_lshl_add_u32 v7, v6, 3, v7
    s_lshl_b32 s43, s41, 12
    v_add_u32 v{vD}, s43, v7
    v_xor_b32 v{vD+1}, 64, v{vD}
    v_add_u32 v{vD+2}, 0x10000, v{vD}
    v_add_u32 v{vD+3}, 0x10000, v{vD+1}
    v_lshlrev_b32 v{vT}, 4, v{vLane}
    """
    gsetup2 = f"""
    s_lshl_b32 s43, s39, 2
    s_lshl_b32 s44, s34, 1
    s_add_u32 s43, s43, s44
    s_add_u32 s43, s43, s40
    s_mul_i32 s55, s43, {112*1024}
    s_mul_i32 s43, s43, {32*896}
    s_lshl_b32 s44, s35, 7
    s_add_u32 s43, s43, s44
    s_lshl_b32 s44, s41, 6
    s_add_u32 s43, s43, s44
    v_mul_u32_u24 v5, 896, v5
    v_lshl_add_u32 v5, v4, 4, v5
    v_add_u32 v5, s43, v5
    s_lshl_b32 s44, s41, 11
    s_add_u32 s55, s55, s44
    s_lshl_b32 s4, s33, 13
    s_add_u32 s4, s4, s55
    s_add_u32 s54, s55, {14*8192}
    s_add_u32 s64, s30, {WS_ACT}
    s_addc_u32 s65, s31, 0
    s_mov_b32 s66, {ACT_BYTES}
    s_mov_b32 s67, 0x20000
    """
    gsetup3 = "\n".join(f"s_add_u32 s{4+k}, s{3+k}, 8192\ns_cmp_ge_u32 s{4+k}, s54\ns_cselect_b32 s{4+k}, s55, s{4+k}" for k in range(1, 14))
    TRQ = [96 + 4 * k for k in range(18)] + [16, 20, 24, 28]
    DB = [32, 40, 48, 56]
    AO = [AC2, 64]
    seq = [(14 * hf + b, j) for hf in range(2) for j in range(2) for b in range(14)]
    cons = [(b, j) for b in range(14) for j in range(2)] + seq[28:]
    freeq = list(TRQ); treg = {}
    def tload(n):
        b, j = seq[n]
        if (b, j) not in treg: treg[(b, j)] = freeq.pop(0)
        o = []
        if n == 28: o += [f"v_add_u32 v15, 4096, v{vT}"]
        if c.x_notl and n >= 28: return o
        o += [f"buffer_load_dwordx4 {v(treg[(b, j)],4)}, v{vT if n < 28 else 15}, s[64:67], s{4+b%14} offen offset:{1024*j} sc1"]
        return o
    nst = 0; early = 0
    assert c.cs2[1] + 1 < c.caw2 < c.chkA <= 27
    assert c.drain0[1] <= c.chkA and c.e1_last + 3 <= c.chkA and sum(c.earlyT) <= 14
    for i in range(15, 29):
        Q.bar()
        if i == c.drain0[0]:
            assert nst >= 2
            signal(0, nst - 2)
        if i >= c.e1_first:
            bud += per1
            while E1 and (bud > 0 or i == c.e1_last):
                x = E1.pop(0); A(x); bud -= cost(x)
                if x.startswith("global_store"): nst += 1
        if i == c.cs2[1] + 1:
            assert i > c.drain0[0] and i > c.e1_last
            caload(512); caaddr(47, slot['X'] * BLK)
        if i == c.caw2: A(f"s_waitcnt vmcnt(0)\nds_write_b128 v47, {v(CA,4)}")
        if i == c.pollA: poll_issue(PA_, 0)
        if i == c.e1_last + c.gs_at[0]: A(gsetup)
        if i == c.e1_last + c.gs_at[1]: A(gsetup2)
        if i == c.e1_last + c.gs_at[2]: A(gsetup3)
        if i == c.chkA: A("s_waitcnt lgkmcnt(0)")
        if i == c.drain0[1]:
            signal(1)
        if i == c.chkA - 1: A(f"v_add_u32 v{vD+4}, 0x20000, v{vD}\nv_add_u32 v{vD+5}, 0x20000, v{vD+1}")
        if i == c.poll0: poll_issue(PB_, 128)
        if 0 <= i - c.chkA < len(c.earlyT):
            sk = A.label("et")
            A(f"s_cmp_lt_u32 s{PA_}, 14\ns_cbranch_scc1 {sk}")
            for _ in range(c.earlyT[i - c.chkA]):
                for l in tload(early): A(l)
                early += 1
            A(f"{sk}:")
    Q.bar()
    A(f"v_mfma_f32_32x32x16_bf16 {v(AC2,16)}, {v(ID,4)}, {v(HF,4)}, 0")
    A(f"v_mfma_f32_32x32x16_bf16 {v(AC2,16)}, {v(ID+4,4)}, {v(HF+4,4)}, {v(AC2,16)}")
    sk = A.label("et")
    A(f"s_cmp_lt_u32 s{PA_}, 14\ns_cbranch_scc1 {sk}c\n{sk}:")
    with Cold():
        A(f"{sk}c:")
        poll_wait(PA_, 0, True)
        for n in range(early):
            for l in tload(n): A(l)
        A(f"s_branch {sk}")
    def dreads(n):
        b, j = cons[n]
        sd = slot[("D", b)]; f = DB[n & 3]
        o = []
        for nt in range(2):
            do = (sd % 8) * BLK + 2048 * j
            ad = vD + 2 * (sd // 8) + nt
            o += [f"ds_read_b64_tr_b16 {v(f+4*nt,2)}, v{ad} offset:{do}", f"ds_read_b64_tr_b16 {v(f+4*nt+2,2)}, v{ad} offset:{do+1024}"]
        return o
    def gm(n):
        f = DB[n & 3]
        if 'g' in c.x16 and 0 < n < 52:
            return [f"v_mfma_f32_16x16x32_bf16 {v(AO[nt]+8*(n&1),4)}, {v(f+4*nt,4)}, {v(treg[cons[n]],4)}, {v(AO[nt]+8*(n&1),4)}\nv_mfma_f32_16x16x32_bf16 {v(AO[nt]+8*(n&1)+4,4)}, {v(f+4*(nt^1),4)}, {v(treg[cons[n]],4)}, {v(AO[nt]+8*(n&1)+4,4)}" for nt in (1, 0)]
        return [f"v_mfma_f32_32x32x16_bf16 {v(AO[nt],16)}, {v(f+4*nt,4)}, {v(treg[cons[n]],4)}, {'0' if (n == 0 and nt == 1) else v(AO[nt],16)}" for nt in (1, 0)]
    issued = early; mk = 0
    while issued < 14:
        for l in tload(issued): A(l)
        issued += 1
        if issued > c.tdep0: A(f"s_waitcnt vmcnt({c.tdep0})")
    poll_wait(PB_, 128, True)
    Q.mark(mk); mk += 1
    lim = 28; late = []
    for n in range(56):
        if n == 14 and not c.auxpoll: A("s_waitcnt lgkmcnt(0)\ns_barrier")
        for y in (c.ya_at, c.yb_at):
            if n == y:
                if c.auxpoll and y == c.ya_at and y < 16: A("s_waitcnt lgkmcnt(0)")
                A("s_barrier")
                Q.mark(mk); mk += 1
                lim += 14
        k = 99 if n == 0 else c.pace.get(n, c.pace1 if n < 28 else c.pace2)
        while issued < lim and freeq and k > (2 if c.tpost and n else 0):
            for l in tload(issued): A(l)
            issued += 1; k -= 1
            if n == 0 and c.tdep0 < 22: A(f"s_waitcnt vmcnt({c.tdep0})")
        assert seq.index(cons[n]) < issued
        if n == 0:
            for l in dreads(0) + dreads(1): A(l)
        if n == c.g_pre:
            if c.xe: A("s_barrier")
            Q.mark(mk); mk += 1
        if c.auxpoll and n == 32: A("s_barrier")
        r = dreads(n + 2) if n + 2 < 56 else []
        A(f"s_waitcnt vmcnt({issued-1-seq.index(cons[n])}) lgkmcnt({4 if n < 55 else 0})")
        if n in (28, 42): Q.mark(mk); mk += 1
        m = gm(n)
        if n >= 56 - c.fin_ov:
            A(m[0]); late.append(m[1])
            for l in r: A(l)
            continue
        for i in range(2):
            A(m[i])
            if c.tpost and issued < lim and freeq and k > 1 - i:
                for l in tload(issued): A(l)
                issued += 1
            for l in r[2*i:2*i+2]: A(l)
        freeq.append(treg[cons[n]])
    assert 14 <= c.ya_at <= 26 and c.ya_at <= c.yb_at <= 32 and c.yb_at >= (20 if c.auxpoll else 24)
    while mk < 6: Q.mark(mk); mk += 1
    Q.mark(6)
    XR = 64
    assert c.yb_at <= 26 and all(slot[("D", b)] not in (8, 9) for b in range(11, 28))
    A(f"""
    s_lshl_b32 s43, s36, 12
    s_add_u32 s43, s43, {8*BLK}
    v_lshl_add_u32 v2, v{vLane}, 4, s43
    v_xor_b32 v3, 0x2000, v2
    """)
    if late: A(late.pop(0))
    for q in range(4):
        A(f"ds_write_b128 v2, {v(AO[1]+4*q,4)} offset:{1024*q}")
        if late and q in (0, 2): A(late.pop(0))
    assert not late
    A("s_waitcnt lgkmcnt(0)\ns_barrier")
    for q in range(4): A(f"ds_read_b128 {v(XR+4*q,4)}, v3 offset:{1024*q}")
    for hq in range(2):
        A(f"s_waitcnt lgkmcnt({2-2*hq})")
        for q in range(4*hq, 4*hq+4): A(f"v_pk_add_f32 {v(AC2+2*q,2)}, {v(AC2+2*q,2)}, {v(XR+2*q,2)}")
        for q in range(4*hq, 4*hq+4): A(f"v_cvt_pk_bf16_f32 v{48+q}, v{AC2+2*q}, v{AC2+2*q+1}")
        A(f"v_permlane32_swap_b32 v{48+4*hq}, v{48+4*hq+2}\nv_permlane32_swap_b32 v{48+4*hq+1}, v{48+4*hq+3}")
        A(f"global_store_dwordx4 v5, {v(48+4*hq,4)}, s[26:27] offset:{32*hq} {c.outflag}")
    Q.fin(7)
    A("s_endpgm")
    target(nw)
    A(f"s_and_b32 s46, s36, 3\ns_mov_b32 s45, 0\nv_mov_b32 v11, {TAGA}")
    def xpoll():
        for k in xord: A(xp[k])
    A("s_waitcnt lgkmcnt(0)\ns_barrier")
    P.stamp(5)
    A(f"""
    ds_read_b32 v11, v11
    s_lshl_b32 s47, s37, 2
    {'s_load_dword s53, s[16:17], s47' if c.dlate else ''}
    s_lshl_b32 s47, s46, 10
    s_add_u32 s47, s47, {UO+512}
    v_xor_b32 v9, 3, v{vLane}
    v_lshl_add_u32 v9, v9, 2, s47
    s_lshl_b32 s47, s46, 11
    v_lshrrev_b32 v5, 3, v{vLane}
    v_lshl_add_u32 v5, v5, 4, s47
    v_bfe_u32 v6, v{vLane}, 1, 2
    v_lshl_add_u32 v5, v6, 8, v5
    v_and_b32 v6, 1, v{vLane}
    v_lshl_add_u32 v10, v6, 3, v5
    """)
    if not c.xp_at:
        if c.poll_late: A(f"s_sleep {c.poll_late}")
        xpoll()
    if not c.xp_chk:
        A(f"s_mov_b32 s45, 1\ns_barrier\ns_setprio {c.nprio}")
    pl = A.label("xp"); ok = A.label("xok"); nb1 = A.label("xnb")
    def tagcheck():
        A(f"{'' if c.nstage else pl + ':'}\ns_waitcnt vmcnt(0) lgkmcnt(0)\nv_min3_u32 v4, v{vPX+1}, v{vPX+3}, v11\nv_max3_u32 v5, v{vPX+1}, v{vPX+3}, v11")
        for q in range(1, 8): A(f"v_min3_u32 v4, v4, v{vPX+4*q+1}, v{vPX+4*q+3}\nv_max3_u32 v5, v5, v{vPX+4*q+1}, v{vPX+4*q+3}")
        assert not c.xp_chk
        A(f"v_cmp_ne_u32 vcc, v4, v5\ns_cbranch_vccnz {pl}c\n{ok}:")
        with Cold():
            A(f"{pl}c:\ns_add_u32 s45, s45, 1\ns_cmp_gt_u32 s45, {SPIN}\ns_cbranch_scc1 {ok}")
            if c.xback: A(f"s_sleep {c.xback}")
            if c.xmask:
                for q in range(8):
                    A(f"v_cmp_ne_u32 vcc, v{vPX+4*q+1}, v11\nv_cmp_ne_u32 s[50:51], v{vPX+4*q+3}, v11\ns_or_b64 exec, vcc, s[50:51]\ns_cbranch_execz {pl}m{q}\n{xp[q]}\n{pl}m{q}:\ns_mov_b64 exec, -1")
            else: xpoll()
            A(f"s_waitcnt vmcnt(0)\ns_branch {pl}")
    if c.nstage: A(f"s_waitcnt vmcnt(4)\n{pl}:")
    else: tagcheck()
    P.stamp(6)
    if c.x_cnt: A("s_waitcnt lgkmcnt(0)\ns_mul_i32 s74, s45, 100\ns_add_u32 s74, s74, s72")
    NU, PRE, UB = 16, 32, 48
    for half in range(2):
        st = []
        if half == 1 and c.nstage: tagcheck()
        for r in range(4 * half, 4 * half + 4):
            S = vPS_ + 2 * r; X = vPX + 2 * r
            t = 60 + 4 * (r & 3)
            st.append([f"v_and_b32 v{t+2}, s43, v{S}", f"v_rcp_f32 v{t+2}, v{t+2}", f"v_lshlrev_b32 v{t}, 16, v{S}",
                  f"v_lshlrev_b32 v{PRE+2*r}, 16, v{X}", f"v_and_b32 v{PRE+2*r+1}, s43, v{X}",
                  f"v_pk_add_f32 {v(NU+2*r,2)}, {v(PRE+2*r,2)}, {v(t,2)} op_sel_hi:[1,0] neg_lo:[0,1] neg_hi:[0,1]" if c.npk else f"v_sub_f32 v{NU+2*r}, v{PRE+2*r}, v{t}\nv_sub_f32 v{NU+2*r+1}, v{PRE+2*r+1}, v{t}",
                  f"v_cvt_pk_bf16_f32 v{NU+2*r+1}, v{NU+2*r}, v{NU+2*r+1}",
                  f"v_lshlrev_b32 v{NU+2*r}, 16, v{NU+2*r+1}", f"v_and_b32 v{NU+2*r+1}, s43, v{NU+2*r+1}",
                  f"v_pk_mul_f32 {v(NU+2*r,2)}, {v(NU+2*r,2)}, {v(t+2,2)} op_sel_hi:[1,0]" if c.npk else f"v_mul_f32 v{NU+2*r}, v{NU+2*r}, v{t+2}\nv_mul_f32 v{NU+2*r+1}, v{NU+2*r+1}, v{t+2}"])
        for l in merge(*st): A(l)
        for ch in range(2):
            for k in (2 * half, 2 * half + 1): A(f"v_cvt_pk_bf16_f32 v{UB+4*ch+k}, v{NU+4*k+2+ch}, v{NU+4*k+ch}")
    P.stamp(7)
    for half in range(2):
        for ch in range(2):
            A(f"ds_write2st64_b32 v9, v{UB+4*ch+2*half}, v{UB+4*ch+2*half+1} offset0:{ch*UPITCH//256+2*half} offset1:{ch*UPITCH//256+2*half+1}")
    A("s_setprio 0\ns_waitcnt lgkmcnt(0)\ns_barrier")
    P.stamp(8)
    if c.x_quietN: A("s_sleep 60")
    PO = 60
    A("s_and_b32 s59, s53, s43\ns_lshl_b32 s58, s53, 16")
    for ch in range(2):
        for k in range(4):
            A(f"v_lshlrev_b32 v4, 16, v{UB+4*ch+k}\nv_and_b32 v5, s43, v{UB+4*ch+k}")
            A(f"v_fma_f32 v{PO+8*ch+2*k+1}, v4, s{58+ch}, v{PRE+4*k+2+ch}\nv_fma_f32 v{PO+8*ch+2*k}, v5, s{58+ch}, v{PRE+4*k+ch}")
            A(f"ds_write_b64 v10, {v(PO+8*ch+2*k,2)} offset:{32768*ch+1024*(k>>1)+128*(k&1)}")
    A("v_mov_b32 v90, v11")
    csetup()
    Q = Bars([0, c.gat_check, c.gat_check + 1, 14, 28, 29], 10)
    ST, GA = 18, 96
    vPS, vGA = 22, 23
    A(f"""
    s_mul_i32 s43, s39, {14*1024}
    s_lshl_b32 s44, s42, 8
    s_add_u32 s43, s43, s44
    s_add_u32 s43, s43, {WS_PS}
    v_lshl_add_u32 v{vPS}, v5, 3, s43
    v_mul_u32_u24 v7, 7168, v4
    v_add3_u32 v{vGA}, v{vPS}, v7, 64
    v_add_u32 v{vGA}, {3072-64}, v{vGA}
    s_lshl_b32 s44, s38, 10
    v_add_u32 v{vPS}, s44, v{vPS}
    """)
    nb = A.label("nb"); pz = A.label("pz"); pzo = A.label("pzo")
    pzl = "global_load_dwordx4 v[48:51], v47, s[30:31] sc1\nglobal_load_dwordx4 v[52:55], v47, s[30:31] offset:16 sc1"
    A(f"""
    s_cmp_lg_u32 s36, 4
    s_cbranch_scc1 {nb}a
    v_min_u32 v47, 55, v{vLane}
    v_lshlrev_b32 v47, 5, v47
    v_add_u32 v47, {WS_PZ}, v47
    s_mov_b32 s45, 0
    {pzl}
    {nb}a:
    """)
    P.stamp(9)
    A(f"""
    s_waitcnt lgkmcnt(0)
    s_barrier
    s_cmp_lg_u32 s36, 4
    s_cbranch_scc1 {nb}
    {pz}:
    s_waitcnt vmcnt(0)
    v_min3_u32 v56, v48, v49, v90
    v_max3_u32 v57, v48, v49, v90
    v_min3_u32 v56, v50, v51, v56
    v_max3_u32 v57, v50, v51, v57
    v_min3_u32 v56, v52, v53, v56
    v_max3_u32 v57, v52, v53, v57
    v_min3_u32 v56, v54, v55, v56
    v_max3_u32 v57, v54, v55, v57
    v_cmp_ne_u32 vcc, v56, v57
    s_cbranch_vccz {pzo}
    s_sleep {c.pz_sleep}
    {pzl}
    s_add_u32 s45, s45, 1
    s_cmp_lt_u32 s45, {SPIN}
    s_cbranch_scc1 {pz}
    {pzo}:
    s_cmp_lg_u32 s2, 0
    s_cbranch_scc1 {nb}
    v_mov_b32 v47, {WS_E}
    s_mov_b64 exec, 1
    global_store_dword v47, v90, s[30:31]
    s_mov_b64 exec, -1
    {nb}:
    s_barrier
    """)
    def gat(js=range(7)):
        for j in js: A(f"global_load_dwordx2 {v(GA+2*j,2)}, v{vGA}, s[30:31] offset:{1024*j-3072} sc1")
    S, Qv = GA, GA + 1
    work = [f"v_add_f32 v{GA+k}, v{GA+k}, v{GA+2*j+k}" for j in range(1, 7) for k in range(2)]
    work += [f"v_mov_b32 v{GA+2}, v{GA}", f"v_mov_b32 v{GA+3}, v{GA+1}", f"v_permlane32_swap_b32 v{GA}, v{GA+2}", f"v_permlane32_swap_b32 v{GA+1}, v{GA+3}",
             f"v_add_f32 v{GA}, v{GA}, v{GA+2}", f"v_add_f32 v{GA+1}, v{GA+1}, v{GA+3}"]
    work += [l.strip() for l in f"""
    v_mul_f32 v{S}, {f32(1.0/448)}, v{S}
    v_mul_f32 v{Qv}, {f32(1.0/448)}, v{Qv}
    v_fma_f32 v{Qv}, -v{S}, v{S}, v{Qv}
    v_max_f32 v{Qv}, 0, v{Qv}
    v_cvt_pk_bf16_f32 v{CN+3}, -v{S}, -v{S}
    v_cvt_pk_bf16_f32 v{Qv}, v{Qv}, v{Qv}
    v_and_b32 v{Qv}, s48, v{Qv}
    v_add_f32 v{Qv}, {f32(1e-5)}, v{Qv}
    v_cvt_pk_bf16_f32 v{Qv}, v{Qv}, v{Qv}
    v_and_b32 v{Qv}, s48, v{Qv}
    v_sqrt_f32 v{Qv}, v{Qv}
    v_cvt_pk_bf16_f32 v{Qv}, v{Qv}, v{Qv}
    v_and_b32 v{Qv}, s48, v{Qv}
    v_rcp_f32 v{S}, v{Qv}
    v_mul_f32 v{CN+2}, v{Qv}, v{Qv}
    v_mul_f32 v{CN}, {f32(GK0)}, v{S}
    v_mul_f32 v{CN+1}, v{S}, v{S}
    v_mul_f32 v{CN+1}, v{CN+1}, v{S}
    v_mul_f32 v{CN+1}, {f32(GK1)}, v{CN+1}
    ds_write_b128 v{vCR}, {v(CN,4)}
    """.strip().split("\n")]
    nwi = c.con_write - c.gat_check
    wper = (len(work) + nwi - 1) // nwi
    for i in range(14):
        Q.bar()
        if i == 0:
            for k in range(4): A(f"ds_read_b64_tr_b16 {v(F[0]+2*k,2)}, v{vB} offset:{4096*(k>>1)+1024*(k&1)}")
        if i == (0 if c.fast0 else c.st_i[0]):
            A("s_waitcnt lgkmcnt(0)")
            for k in range(8):
                z = k < 2
                A(f"v_dot2_f32_bf16 v{ST+(k&1)}, v{F[0]+k}, s47, {'0' if z else 'v%d' % (ST+(k&1))}\nv_dot2_f32_bf16 v{ST+2+(k&1)}, v{F[0]+k}, v{F[0]+k}, {'0' if z else 'v%d' % (ST+2+(k&1))}")
        if i == (0 if c.fast0 else c.st_i[1]):
            A(f"""
            v_add_f32 v{ST}, v{ST}, v{ST+1}
            v_add_f32 v{ST+1}, v{ST+2}, v{ST+3}
            v_mov_b32 v{ST+2}, v{ST}
            v_mov_b32 v{ST+3}, v{ST+1}
            v_permlane32_swap_b32 v{ST}, v{ST+2}
            v_permlane32_swap_b32 v{ST+1}, v{ST+3}
            v_add_f32 v{ST}, v{ST}, v{ST+2}
            v_add_f32 v{ST+1}, v{ST+1}, v{ST+3}
            v_or_b32 v{ST+1}, 1, v{ST+1}
            s_mov_b32 exec_hi, 0
            global_store_dwordx2 v{vPS}, {v(ST,2)}, s[30:31] sc0 sc1
            s_mov_b32 exec_hi, -1
            """)
        if i in (c.cs_issue, c.ca_load - 1):
            sk = A.label("css")
            A(f"s_cmp_lg_u32 s36, 4\ns_cbranch_scc1 {sk}")
            if i == c.cs_issue: A(f"global_load_dword v47, v{MB+2}, s[28:29] sc1")
            else:
                pl = A.label("cs")
                A(f"s_mov_b32 s45, 0\n{pl}:\ns_waitcnt vmcnt(0)\nv_cmp_gt_u32 vcc, 32, v47\ns_cbranch_vccz {sk}\ns_sleep {c.cs_back}\nglobal_load_dword v47, v{MB+2}, s[28:29] sc1\ns_add_u32 s45, s45, 1\ns_cmp_lt_u32 s45, {SPIN}\ns_cbranch_scc1 {pl}")
            A(f"{sk}:")
        k0 = i - (c.gat_issue - len(c.gat_split) + 1)
        if 0 <= k0 < len(c.gat_split) and not c.x_nogat: gat(range(sum(c.gat_split[:k0]), sum(c.gat_split[:k0+1])))
        if i == c.gat_check and not c.x_nogat:
            pl = A.label("gp"); ok = A.label("gok")
            A(f"s_mov_b32 s45, 0\n{pl}:\ns_waitcnt vmcnt(0)\nv_min3_u32 v7, v{GA+1}, v{GA+3}, v{GA+5}\nv_min3_u32 v7, v7, v{GA+7}, v{GA+9}\nv_min3_u32 v7, v7, v{GA+11}, v{GA+13}")
            A(f"v_cmp_eq_u32 vcc, 0, v7\ns_cbranch_vccnz {pl}c\n{ok}:")
            with Cold():
                A(f"{pl}c:\ns_add_u32 s45, s45, 1\ns_cmp_ge_u32 s45, {SPIN}\ns_cbranch_scc1 {ok}")
                gat()
                A(f"s_branch {pl}")
        if i == c.ca_load: caload(-512); caaddr(18, CON + 2048)
        if c.gat_check < i <= c.con_write:
            for l in work[:wper]: A(l)
            work = work[wper:]
        if i == c.con_write:
            assert c.ca_load < i
            A(f"s_waitcnt vmcnt(0)\nds_write_b128 v18, {v(CA,4)}")
            caaddr(19, slot['X'] * BLK)
        if i == 13:
            assert not work
            A("s_waitcnt vmcnt(0) lgkmcnt(0)")
    Q.bar()
    A(f"ds_read_b128 {v(CN+4,4)}, v{vCR+1}")
    for l in preads(1, 0): A(l)
    A("s_waitcnt lgkmcnt(8)")
    for l in mkmb + preads(1, 1): A(l)
    A(f"s_setprio {c.prioB}")
    for s in range(1, 14):
        Q.bar(); pstep(1, s)
    Q.bar()
    A(f"ds_read_b128 {v(CA,4)}, v19\ns_waitcnt lgkmcnt(9)")
    for l in pmfma(26): A(l)
    A("s_waitcnt lgkmcnt(0)")
    Q.bar()
    m27, cr = pmfma(27), corr(False)
    for k in range(4): A(m27[k]); A(cr[k])
    for n in range(4):
        L = epi(n >> 1, n & 1, n, n < c.e2pk)
        if c.xe and n == c.xe_at: A("s_barrier")
        for l in L[:-1]: A(l)
        if n == 3 and c.sig_early: signal(0, 1)
        A(L[-1])
    Q.mark(0)
    A("s_setprio 0")
    if c.xe and c.xe_at == 4: A("s_barrier")
    if not c.sig_early: signal(0)
    Q.mark(1)
    if c.auxpoll:
        if c.selfrd:
            A(f"s_cmp_lg_u32 s40, s34\ns_cbranch_scc1 Lsr1\nglobal_load_dwordx4 v[96:99], v{vS}, s[30:31] sc1\nglobal_load_dwordx4 v[100:103], v{vS+1}, s[30:31] sc1\ns_waitcnt vmcnt(2)\ns_branch Lsr2\nLsr1:\ns_waitcnt vmcnt(0)\nLsr2:")
            signal(1, 2)
            A(f"s_cmp_lg_u32 s40, s34\ns_cbranch_scc1 Lsr3\nglobal_load_dwordx4 v[96:99], v{vS}, s[30:31] offset:1024 sc1\nglobal_load_dwordx4 v[100:103], v{vS+1}, s[30:31] offset:1024 sc1\nLsr3:")
        else: signal(1)
        Q.mark(2)
        A("s_barrier")
        Q.mark(3)
        A("s_barrier\ns_barrier")
        Q.mark(4)
    else:
        if c.pa_early: poll_issue(PA_, 512)
        signal(1)
        Q.mark(2)
        if not c.pa_early: poll_issue(PA_, 512)
        A("s_barrier")
        poll_wait(PA_, 512, True)
        poll_issue(PB_, 640)
        Q.mark(3)
        A("s_barrier")
        poll_wait(PB_, 640, True)
        Q.mark(4)
        A("s_barrier")
    Q.fin(5)
    A("s_waitcnt lgkmcnt(0)\ns_endpgm")
    A(f".p2align 3\n{auxt}:\ns_setprio {c.auxprio}")
    PA.stamp(1)
    srd(A, 64, 30, XG_BYTES, WS_XG)
    A(f"""
    v_and_b32 v4, 15, v{vLane}
    v_lshrrev_b32 v5, 4, v{vLane}
    v_lshl_add_u32 v6, v4, 8, s46
    v_lshl_add_u32 v6, v5, 2, v6
    v_and_b32 v7, 7, v4
    v_lshl_add_u32 v6, v7, 4, v6
    v_lshlrev_b32 v9, 14, v5
    v_lshl_add_u32 v9, v4, 4, v9
    s_lshl_b32 s46, s36, 2
    s_add_u32 s46, s46, {TAGA}
    v_mov_b32 v2, s46
    """)
    for k in range(1, 8): A(f"v_xor_b32 v{80+k}, {16*k}, v6")
    A("s_waitcnt lgkmcnt(0)\ns_add_u32 s57, s57, 1\ns_and_b32 s57, s57, 0xffff\ns_or_b32 s57, s57, 0x7f810000")
    for k in range(16): A(f"v_mov_b32 v{vXG+2*k+1}, s57")
    wl = (["Lmww", nw + "w", odd + "w", "Lpw4"], ["Lpw3", "Lpw1", "Lpw5", "Lpw2"])
    def calls(lo, hi):
        if not c.warm or not wl[0][lo:hi]: return
        l1 = A.label("wm"); l2 = A.label("wm")
        A(f"s_cmp_eq_u32 s36, 1\ns_cbranch_scc1 {l1}")
        for lab in wl[0][lo:hi]: A(f"s_call_b64 s[96:97], {lab}")
        A(f"s_branch {l2}\n{l1}:")
        for lab in wl[1][lo:hi]: A(f"s_call_b64 s[96:97], {lab}")
        A(f"{l2}:")
    A(f"s_mov_b64 exec, 1\nds_write_b32 v2, v{vXG+1}\ns_mov_b64 exec, -1")
    calls(0, c.wpre)
    if c.x_pre: A(f"s_sleep {c.x_pre}")
    A("s_waitcnt vmcnt(0)")
    PA.stamp(2)
    if c.x_sdelay: A(f"s_sleep {c.x_sdelay}")
    for k in range(8):
        ad = 6 if k == 0 else 80 + k
        A(f"ds_read_b32 v{vXG+4*k}, v{ad}\nds_read_b32 v{vXG+4*k+2}, v{ad} offset:128")
    for k in range(8):
        A(f"s_waitcnt lgkmcnt({14-2*k})\nbuffer_store_dwordx4 {v(vXG+4*k,4)}, v9, s[64:67], s51 offen {c.xsflag}")
        if k < 7: A(f"s_add_u32 s51, s51, {4*16384}")
    PA.stamp(3)
    A(f"""
    v_mov_b32 v24, 0
    v_mov_b32 v25, 0
    s_lshl_b32 s43, s2, 1
    s_add_u32 s43, s43, s36
    s_lshl_b32 s44, s43, 9
    s_add_u32 s44, s44, {WS_PS}
    v_lshl_add_u32 v3, v{vLane}, 3, s44
    global_store_dwordx2 v3, v[24:25], s[30:31] sc0 sc1
    s_and_b32 s44, s43, 255
    s_lshl_b32 s44, s44, 7
    s_add_u32 s44, s44, {WS_FLAGS}
    v_mov_b32 v4, s44
    s_mov_b64 exec, 1
    global_store_dword v4, v24, s[30:31] sc0 sc1
    s_mov_b64 exec, -1
    s_lshl_b32 s44, s43, 2
    s_add_u32 s44, s44, {WS_PZ}
    v_mov_b32 v22, s44
    v_mov_b32 v23, s57
    s_setprio 0
    """)
    calls(c.wpre, 3)
    A("s_barrier")
    calls(max(c.wpre, 3), 9)
    aW, aD, aH = 8, 12, 8
    sW, sD, eW, eD = 41, 42, 45, 46
    def daddr():
        A(ffn_ids)
        A(f"""
        v_lshrrev_b32 v6, 3, v{vLane}
        v_and_b32 v7, 7, v{vLane}
        v_and_b32 v5, 2, v6
        v_lshlrev_b32 v4, 1, v5
        v_xor_b32 v4, v4, v7
        v_mul_u32_u24 v3, 896, v6
        v_lshl_add_u32 v{aD}, v4, 4, v3
        v_add_u32 v{aD+1}, {1*(8*896-1024)}, v{aD}
        v_add_u32 v{aD+2}, {2*(8*896-1024)}, v{aD}
        v_add_u32 v{aD+3}, {3*(8*896-1024)}, v{aD}
        s_lshl_b32 s{eD}, s35, 7
        s_mul_i32 s32, s36, {32*896}
        s_add_u32 s{eD}, s{eD}, s32
        s_mul_i32 s{sD}, s33, {128*896}
        s_add_u32 s{sD}, s{sD}, s{eD}
        s_add_u32 s{eD}, s{eD}, {14*128*896}
        s_lshl_b32 s32, s36, 12
        v_lshl_add_u32 v16, v{vLane}, 4, s32
        v_add_u32 v17, 0x10000, v16
        v_add_u32 v18, 0x20000, v16
        s_lshl_b32 s59, s39, 11
        s_lshl_b32 s58, s34, 10
        s_add_u32 s59, s59, s58
        s_lshl_b32 s58, s36, 8
        s_add_u32 s59, s59, s58
        s_add_u32 s59, s59, {WS_FLAGS}
        s_lshl_b32 s43, s39, 1
        s_add_u32 s43, s43, s34
        s_mul_i32 s43, s43, {224*1024}
        s_lshl_b32 s44, s36, 11
        s_add_u32 s43, s43, s44
        s_add_u32 s43, s43, {WS_ACT+4096}
        v_bfe_u32 v3, v{vLane}, 3, 1
        v_add_u32 v3, s33, v3
        v_cmp_gt_u32 vcc, 14, v3
        v_cndmask_b32 v3, 0, v3, vcc
        v_lshlrev_b32 v3, 13, v3
        v_bfe_u32 v4, v{vLane}, 4, 1
        v_mul_u32_u24 v4, {112*1024}, v4
        v_add3_u32 v3, v3, v4, s43
        v_lshl_add_u32 v19, v7, 7, v3
        """)
        srd(A, 60, 24, W_BYTES)
    def fifo_load(first, n, reg0):
        if c.x_nopre: return
        hf = 64 * 896 if first >= 14 else 0
        assert first >= 14 or first + n <= 14
        A(f"s_add_u32 s43, s{sD}, {hf + (first % 14)*128*896}\ns_add_u32 s44, s{eD}, {hf}")
        for b in range(n):
            A(f"s_cmp_ge_u32 s43, s44\ns_cselect_b32 s34, {14*128*896}, 0\ns_sub_u32 s43, s43, s34")
            for i in range(4): A(f"buffer_load_dwordx4 {v(reg0+16*b+4*i,4)}, v{aD+i}, s[60:63], s43 offen offset:{1024*i}")
            A(f"s_add_u32 s43, s43, {128*896}")
            if c.fdepth is not None: A(f"s_waitcnt vmcnt({c.fdepth})")
    def fifo_put(first, n, reg0):
        if c.x_noput: return
        for b in range(n):
            sl = slot[("D", first + b)]
            for i in range(4): A(f"ds_write_b128 v{16+sl//8}, {v(reg0+16*b+4*i,4)} offset:{(sl%8)*BLK+1024*i}")
    daddr()
    A(f"""
    v_xor_b32 v4, v5, v7
    s_lshl_b32 s43, s36, 2
    v_xor_b32 v4, s43, v4
    v_mul_u32_u24 v3, 3584, v6
    v_lshl_add_u32 v{aW}, v4, 4, v3
    v_add_u32 v{aW+1}, {1*(8*3584-1024)}, v{aW}
    v_add_u32 v{aW+2}, {2*(8*3584-1024)}, v{aW}
    v_add_u32 v{aW+3}, {3*(8*3584-1024)}, v{aW}
    s_lshl_b32 s{eW}, s38, 8
    s_mul_i32 s{sW}, s38, {32*3584}
    s_add_u32 s{sW}, s{sW}, s{eW}
    s_add_u32 s{eW}, s{eW}, {14*32*3584}
    s_cmp_eq_u32 s36, 0
    s_cselect_b32 s20, s20, s22
    s_cselect_b32 s21, s21, s23
    """)
    srd(A, 52, 20, W_BYTES)
    A(f"""
    v_mov_b32 v20, 0
    v_mov_b32 v21, 0
    v_lshrrev_b32 v4, 4, v{vLane}
    v_mul_u32_u24 v4, {KP}, v4
    v_and_b32 v5, 15, v{vLane}
    v_lshl_add_u32 v4, v5, 2, v4
    s_lshl_b32 s43, s36, 15
    v_add_u32 v4, s43, v4
    s_mul_i32 s43, s36, {UPITCH}
    s_add_u32 s43, s43, {UO}
    v_lshl_add_u32 v3, v{vLane}, 3, s43
    """)
    A(f"s_barrier\nds_write_b32 v4, v20 offset:{KB0}\nds_write_b64 v3, v[20:21]")
    A("s_waitcnt vmcnt(0)\ns_mov_b64 exec, 1\nglobal_store_dword v22, v23, s[30:31] sc0 sc1\ns_mov_b64 exec, -1")
    A("s_waitcnt lgkmcnt(0)\ns_barrier")
    def dma(kind, idx, i):
        if kind == "F":
            if i == 0:
                A(f"s_cmp_ge_u32 s43, s44\ns_cselect_b32 s35, {14*128*896}, 0\ns_sub_u32 s43, s43, s35")
            A(f"buffer_load_dwordx4 {v(24+16*(idx-8)+4*i,4)}, v{aD+i}, s[60:63], s43 offen offset:{1024*i}")
            if i == 3: A(f"s_add_u32 s43, s43, {128*896}")
            return
        base_ = slot[(kind, idx)] * BLK
        a0, r0, s, e, step = {"W": (aW, 52, sW, eW, 32*3584), "D": (aD, 60, sD, eD, 128*896), "H": (4, 48, 40, 47, HS)}[kind]
        if i == 0:
            if idx == 14:
                A(f"s_add_u32 s{s}, s{s}, 128\ns_add_u32 s{e}, s{e}, 128" if kind == "W" else f"s_mov_b32 s{s}, s56\ns_add_u32 s{e}, s{e}, {64*896}")
            A(f"s_add_u32 m0, s32, {base_}\ns_add_u32 s33, s{s}, {step}")
        A(f"buffer_load_dwordx4 v{a0+i}, s[{r0}:{r0+3}], s{s} offen offset:{1024*i}{' sc1' if kind == 'H' else ''} lds")
        if i == 0: A(f"s_cmp_ge_u32 s33, s{e}\ns_cselect_b32 s34, {14*step}, 0")
        if i == 3: A(f"s_sub_u32 s{s}, s33, s34")
    if c.x_quietL: A('s_sleep 60')
    for x in issue[-2]: dma(*x)
    A(f"s_add_u32 s56, s{sD}, {64*896}")
    fifo_load(8, c.lf_c, 24)
    A(f"""
    v_lshrrev_b32 v2, 4, v{vLane}
    v_and_b32 v3, 15, v{vLane}
    v_lshlrev_b32 v4, 2, v2
    v_xor_b32 v4, v4, v3
    v_lshlrev_b32 v4, 4, v4
    v_and_b32 v3, 1, v2
    v_lshl_add_u32 v4, v3, 12, v4
    v_lshrrev_b32 v2, 1, v2
    v_lshl_add_u32 v4, v2, 14, v4
    v_add_u32 v5, {1*(32768-1024)}, v4
    v_add_u32 v6, {2*(32768-1024)}, v4
    v_add_u32 v7, {3*(32768-1024)}, v4
    s_lshl_b32 s47, s39, 8
    s_lshl_b32 s43, s36, 17
    s_add_u32 s47, s47, s43
    s_add_u32 s40, s38, {c.h0}
    s_cmp_ge_u32 s40, 14
    s_cselect_b32 s43, 14, 0
    s_sub_u32 s40, s40, s43
    s_lshl_b32 s40, s40, 18
    s_add_u32 s40, s40, s47
    s_add_u32 s47, s47, {14*HS}
    """)
    srd(A, 48, 30, XG_BYTES, WS_XG)
    PA.stamp(4)
    A("s_barrier")
    if c.lf_c < 6: fifo_load(8 + c.lf_c, c.lf_d, 24 + 16 * c.lf_c)
    assert c.nlf == 6
    A("s_barrier")
    for x in issue[-1]: dma(*x)
    if c.nlf > 6: fifo_load(20 - c.nlf, c.nlf - 6, 120)
    A(f"s_waitcnt vmcnt({len(issue[-1]) + 4 * (c.lf_c + c.lf_d)})\ns_barrier")
    for i in range(0, 29):
        for x in issue[i]: dma(*x)
        if i == 3: A(f"s_waitcnt vmcnt({sum(len(issue[k]) for k in range(4))})")
        for k in range(6):
            if c.put_i[k] == i: fifo_put(8 + k, 1, 24 + 16 * k)
        if wait[i] is not None: A(f"s_waitcnt vmcnt({min(63, wait[i])})")
        A("s_barrier")
    assert c.xe and not c.auxpoll and max(c.lf_i[:6 - c.lf_c - c.lf_d], default=0) < 20
    for k in range(6):
        if c.put_i[k] == 29: fifo_put(8 + k, 1, 24 + 16 * k)
    A("s_barrier")
    for k in range(6):
        if c.put_i[k] == 30: fifo_put(8 + k, 1, 24 + 16 * k)
    for b_ in range(14, 20):
        if b_ == 14 + c.dgap: A("s_waitcnt lgkmcnt(0)\ns_barrier")
        for q in range(4): dma("D", b_, q)
    if c.dgap == 6: A("s_waitcnt lgkmcnt(0)\ns_barrier")
    A("s_barrier\ns_waitcnt vmcnt(0)")
    if c.phase == 1: Prof(A, 3).flush(5)
    A("s_endpgm")
    A(f"{hold}t:")
    if c.ppair:
        A(f"""
        s_cmp_ge_u32 s38, 14
        s_cbranch_scc1 {hold}
        s_lshl_b32 s46, s38, 1
        s_sub_u32 s46, s37, s46
        s_add_u32 s46, s46, 27
        s_lshl_b32 s46, s46, 10
        v_lshl_add_u32 v2, v6, 7, s46
        """)
        for k in range(4): A(f"global_load_dword v{86+k}, v2, s[{6+2*k}:{7+2*k}]")
    if c.stouch & 1:
        A(f"v_mov_b32 v2, 0x6000\nv_mov_b32 v3, 0xA00000\nv_mov_b32 v4, 0xDFFF80\nv_mov_b32 v5, 0xE40000")
        for k in range(4): A(f"global_load_dword v{86+k}, v{(3, 4, 2, 5)[k]}, s[30:31]")
    if c.stouch & 2:
        A(f"v_and_b32 v2, 1, v{vLane}\nv_mul_u32_u24 v2, {W_BYTES - 128}, v2")
        for k in range(3): A(f"global_load_dword v{92+k}, v2, s[{20+2*k}:{21+2*k}]")
    if c.stouch & 4:
        A(f"s_mov_b32 s46, {WS_FLAGS + 0x7f00}\ns_load_dword s46, s[30:31], s46\nv_mov_b32 v3, 64\nglobal_load_dword v95, v3, s[28:29] sc1\ns_waitcnt lgkmcnt(0)")
    A(f"s_branch {hold}")
    A(f".p2align 3\n{auxs}:\ns_setprio {c.auxprio}")
    PA.stamp(1)
    a0 = 90
    A(f"s_mov_b32 s42, 0x3f803f80\nv_and_b32 v4, 56, v{vLane}\ns_lshl_b32 s46, s47, 6\nv_add_u32 v4, s46, v4\nv_mov_b32 v2, {TAGA}")
    A("s_waitcnt lgkmcnt(0)\ns_add_u32 s57, s56, 1\ns_and_b32 s57, s57, 0xffff\ns_or_b32 s57, s57, 0x7f810000\ns_mov_b32 s45, 0")
    for i in range(28):
        z = i < 2
        if i % 4 == 0: A(f"s_waitcnt vmcnt({6-i//4})")
        if i == 4: PA.stamp(2)
        if i == 24: A("ds_read_b64 v[6:7], v2")
        A(f"v_dot2_f32_bf16 v{a0+(i&1)}, v{vRow+i}, s42, {'0' if z else 'v%d' % (a0+(i&1))}")
        A(f"v_dot2_f32_bf16 v{a0+2+(i&1)}, v{vRow+i}, v{vRow+i}, {'0' if z else 'v%d' % (a0+2+(i&1))}")
    A(f"v_add_f32 v{a0}, v{a0}, v{a0+1}\nv_add_f32 v{a0+2}, v{a0+2}, v{a0+3}")
    for op in ("quad_perm:[1,0,3,2]", "quad_perm:[2,3,0,1]", "row_half_mirror"):
        A(f"v_add_f32_dpp v{a0}, v{a0}, v{a0} {op}{DPP}\nv_add_f32_dpp v{a0+2}, v{a0+2}, v{a0+2} {op}{DPP}")
    A(f"""
    v_mul_f32 v{a0}, {f32(1.0/448)}, v{a0}
    v_mul_f32 v{a0+2}, {f32(1.0/448)}, v{a0+2}
    v_fma_f32 v{a0+2}, -v{a0}, v{a0}, v{a0+2}
    v_max_f32 v{a0+2}, 0, v{a0+2}
    v_cvt_pk_bf16_f32 v{a0+2}, v{a0+2}, v{a0+2}
    v_and_b32 v{a0+2}, s43, v{a0+2}
    v_add_f32 v{a0+2}, {f32(1e-5)}, v{a0+2}
    v_cvt_pk_bf16_f32 v{a0+2}, v{a0+2}, v{a0+2}
    v_and_b32 v{a0+2}, s43, v{a0+2}
    v_sqrt_f32 v{a0+2}, v{a0+2}
    v_mov_b32 v{a0+1}, s57
    v_cvt_pk_bf16_f32 v{a0}, v{a0}, v{a0+2}
    s_cmp_ge_u32 s2, 224
    s_cbranch_scc1 Ltg2
    Ltg:
    s_waitcnt lgkmcnt(0)
    v_xor_b32 v6, s57, v6
    v_xor_b32 v7, s57, v7
    v_or_b32 v6, v6, v7
    v_cmp_ne_u32 vcc, 0, v6
    s_cbranch_vccz Ltg2
    ds_read_b64 v[6:7], v2
    s_add_u32 s45, s45, 1
    s_cmp_lt_u32 s45, {SPIN}
    s_cbranch_scc1 Ltg
    Ltg2:
    s_mov_b32 exec_lo, 0x01010101
    s_mov_b32 exec_hi, 0x01010101
    global_store_dwordx2 v4, {v(a0,2)}, s[30:31] sc0 sc1
    s_mov_b64 exec, -1
    """)
    PA.stamp(3)
    if base.PROF and c.phase == 1:
        A(f"s_branch {hold}x\n{hold}:")
        for k in (1, 2, 3): PA.stamp(k)
        A(f"{hold}x:")
    else: A(f"{hold}:")
    A(f"s_setprio 0\ns_barrier\ns_cmp_ge_u32 s2, 224\ns_cbranch_scc1 {end}")
    daddr()
    sH, eH, sV = 40, 41, 47
    VR = 20
    A(f"""
    v_lshrrev_b32 v6, 4, v{vLane}
    v_and_b32 v7, 15, v{vLane}
    v_lshlrev_b32 v5, 2, v6
    v_xor_b32 v5, v5, v7
    v_lshlrev_b32 v5, 4, v5
    v_and_b32 v7, 1, v6
    v_lshl_add_u32 v5, v7, 12, v5
    v_lshrrev_b32 v6, 1, v6
    v_lshl_add_u32 v{aH}, v6, 14, v5
    v_add_u32 v{aH+1}, {1*(32768-1024)}, v{aH}
    v_add_u32 v{aH+2}, {2*(32768-1024)}, v{aH}
    v_add_u32 v{aH+3}, {3*(32768-1024)}, v{aH}
    s_lshl_b32 s{eH}, s39, 8
    s_lshl_b32 s43, s36, 17
    s_add_u32 s{eH}, s{eH}, s43
    s_lshl_b32 s{sH}, s38, 18
    s_add_u32 s{sH}, s{sH}, s{eH}
    s_add_u32 s{eH}, s{eH}, {14*HS}
    s_mov_b32 s56, 0x7f810000
    s_mov_b32 s{sV}, s{sH}
    """)
    srd(A, 48, 30, XG_BYTES, WS_XG)
    def wtouch():
        A(f"s_lshl_b32 s43, s2, 1\ns_add_u32 s43, s43, s36\ns_mul_i32 s43, s43, {28*128}\nv_min_u32 v2, 27, v{vLane}\nv_lshl_add_u32 v2, v2, 7, s43")
        for k in range(3):
            if c.wtouch >> k & 1: A(f"global_load_dword v{36+k}, v2, s[{20+2*k}:{21+2*k}]")
    if c.wt_at == 'A': wtouch()
    A("s_barrier")
    if c.wt_at == 'B': wtouch()
    if c.hf_at == 'B':
        fifo_load(20, 3, 40)
    A("s_barrier")
    if c.wt_at == 'C': wtouch()
    if c.ptouch:
        A(f"""
        s_mul_i32 s43, s39, {4*112*1024}
        s_add_u32 s43, s43, {WS_ACT}
        v_and_b32 v2, 7, v{vLane}
        v_min_u32 v2, 6, v2
        v_lshl_add_u32 v2, v2, 16, s43
        global_load_dword v36, v2, s[30:31]
        s_and_b32 s44, s2, 1
        s_lshl_b32 s43, s39, 1
        s_add_u32 s43, s43, s44
        s_mul_i32 s43, s43, {64*896}
        s_lshr_b32 s44, s2, 5
        s_lshl_b32 s44, s44, 7
        s_add_u32 s43, s43, s44
        v_and_b32 v2, 1, v{vLane}
        v_mul_u32_u24 v2, {63*896}, v2
        v_add_u32 v2, s43, v2
        global_load_dword v37, v2, s[26:27]
        """)
        if c.pt2: A(f"s_mov_b32 s43, {WS_FLAGS + 0x40000}\ns_load_dword s57, s[30:31], s43")
    if c.hf_at == 'B': fifo_load(23, 5, 88)
    elif c.hf_at == 'C': fifo_load(20, 8, 40)
    else: fifo_load(20, c.hf_c, 40)
    PA.stamp(4)
    A(f"s_barrier\ns_barrier\ns_setprio {c.hprio}")
    def hblock(s, m0expr):
        A(f"s_add_u32 m0, {m0expr}\ns_add_u32 s33, s{s}, {HS}")
        for i in range(4):
            A(f"buffer_load_dwordx4 v{aH+i}, s[48:51], s{s} offen offset:{1024*i} sc1 lds")
            if i == 0: A(f"s_cmp_ge_u32 s33, s{eH}\ns_cselect_b32 s34, {14*HS}, 0")
        A(f"s_sub_u32 s{s}, s33, s34")
    nH = [0]
    def hissue(k):
        for _ in range(k):
            if nH[0] < 14:
                hblock(sH, f"s32, {slot[('H', nH[0])]*BLK}"); nH[0] += 1
    def vread(b):
        if b < nH[0]: A(f"s_waitcnt vmcnt({4*(nH[0]-1-b)})")
        for i in range(4): A(f"ds_read_b128 {v(VR+4*i,4)}, v{16+b//8} offset:{(slot[('H', b)]%8)*BLK+1024*i}")
    def vcheck(b):
        ck = A.label("hv"); ok = A.label("hok"); rp = A.label("hrp")
        last = b + 1 if c.rep_one else max(nH[0], b + 1)
        if c.w8 and b < 12: last = min(last, 12)
        sb = slot[('H', b)]
        A(f"""
        s_mov_b32 s45, 0
        {ck}:
        s_waitcnt lgkmcnt(0)
        v_max3_i32 v2, v{VR+1}, v{VR+3}, v{VR+5}
        v_max3_i32 v3, v{VR+7}, v{VR+9}, v{VR+11}
        v_max3_i32 v2, v2, v{VR+13}, v{VR+15}
        v_max_i32 v2, v2, v3
        v_cmp_le_i32 vcc, s56, v2
        {"s_cmp_eq_u32 s45, 0" if c.x_force else ""}
        {f"s_cbranch_scc1 {rp}f" if c.x_force else ""}
        s_cbranch_vccnz {rp}f
        """)
        cx = Cold(); cx.__enter__()
        A(f"""
        {rp}f:
        {f"s_sleep {c.backoff}" if c.backoff else ""}
        s_add_u32 s45, s45, 1
        s_cmp_ge_u32 s45, {SPIN}
        s_cbranch_scc1 {ok}
        s_mov_b32 s43, s{sV}
        s_add_u32 s44, s32, {sb*BLK}
        s_add_u32 s35, s32, {(sb+last-b)*BLK}
        {rp}:
        """)
        hblock(43, "s44, 0")
        A(f"s_add_u32 s44, s44, {BLK}\ns_cmp_lt_u32 s44, s35\ns_cbranch_scc1 {rp}\ns_waitcnt vmcnt({4*(last-1-b) if last == nH[0] else 0})")
        for i in range(4): A(f"ds_read_b128 {v(VR+4*i,4)}, v{16+b//8} offset:{(sb%8)*BLK+1024*i}")
        A(f"s_branch {ck}")
        cx.__exit__()
        A(f"{ok}:\ns_add_u32 s{sV}, s{sV}, {HS}\ns_cmp_ge_u32 s{sV}, s{eH}\ns_cselect_b32 s34, {14*HS}, 0\ns_sub_u32 s{sV}, s{sV}, s34")
    if c.probe:
        hissue(c.probe); vread(0); vcheck(0)
        if c.fast0: A("s_barrier")
        hissue(c.h0 - c.probe); vread(1)
    else:
        hissue(c.h0); vread(0); vcheck(0); vread(1)
    if not c.fast0: A("s_barrier")
    hs = [0] * 14 if c.hl else list(c.hiss) + [1] * 14
    for i in range(0, 13):
        vcheck(i + 1)
        k = hs.pop(0)
        assert i >= 3 or nH[0] + k <= 12
        if i + 2 < 14:
            if nH[0] - (i + 2) < c.hnear: hissue(k); k = 0
            vread(i + 2)
        hissue(k)
        kf = c.hf_c + i - c.hf_p
        if c.hf_at == 'P' and c.hf_c <= kf < 8: fifo_load(20 + kf, 1, 40 + 16 * kf)
        A("s_barrier")
    if c.hf_at == 'P':
        kf = max(c.hf_c, c.hf_c + 13 - c.hf_p)
        if kf < 8: fifo_load(20 + kf, 8 - kf, 40 + 16 * kf)
    assert nH[0] == 14 or c.hl
    A("s_setprio 0\nv_mov_b32 v2, 0")
    for i in range(13, 29 + (2 if c.xe else 0 if c.auxpoll else 1)):
        if i in c.cs2:
            sk = A.label("cs2")
            A(f"s_cmp_lg_u32 s36, 0\ns_cbranch_scc1 {sk}")
            ld = "global_load_dword v3, v2, s[28:29] offset:128 sc1"
            if i == c.cs2[0]: A(ld)
            else: A(f"s_mov_b32 s45, 0\n{sk}p:\ns_waitcnt vmcnt(0)\nv_cmp_gt_u32 vcc, 32, v3\ns_cbranch_vccz {sk}\ns_sleep {c.cs_back}\n{ld}\ns_add_u32 s45, s45, 1\ns_cmp_lt_u32 s45, {SPIN}\ns_cbranch_scc1 {sk}p")
            A(f"{sk}:")
        A("s_barrier")
    A("s_waitcnt vmcnt(0)")
    if c.auxpoll:
        if c.psleep: A(f"s_sleep {c.psleep}")
        poll_issue(PA_, 512); poll_wait(PA_, 512, True)
        if c.touch & 1: A("global_load_dword v2, v19, s[30:31] sc1")
        A("s_barrier")
        fifo_put(20, c.put_a, 40)
        A("s_barrier")
        fifo_put(20 + c.put_a, 8 - c.put_a, 40 + 16 * c.put_a)
    else:
        fifo_put(20, c.put_a, 40)
        A("s_barrier")
        fifo_put(20 + c.put_a, 8 - c.put_a, 40 + 16 * c.put_a)
    A("s_waitcnt lgkmcnt(0)")
    if c.phase == 1: Prof(A, 3).flush(5)
    A(f"{end}:\ns_endpgm")
    A.L.extend(cold)
    A(f".p2align 3\n{hlp}:")
    if c.phase == 0: base.PROF = False
    gen_helper(A, c, Prof(A, 4))
    def rnd(l):
        u = np.float32(max(l, 0)).view(np.uint32)
        u = (int(u) + 0x7FFF + ((int(u) >> 16) & 1)) & 0xFFFF0000
        return int(np.uint32(u).view(np.float32))
    ad = [[(rnd(8 * b - 3 + r) & 7) * TP + (rnd(8 * b - 3 + r) >> 3) * 4 for r in range(12)] for b in range(256)]
    A(f".p2align 7\n.type {tab},@object\n{tab}:")
    for b in range(256): A(".long " + ", ".join("0x%08x" % (ad[b][2*k] | ad[b][2*k+1] << 16) for k in range(4)))
    for b in range(256): A(".long " + ", ".join("0x%08x" % (ad[b][2*k] | ad[b][2*k+1] << 16) for k in range(4, 6)))
    A(f".size {tab}, {256*24}")
    return kernel_desc(name, 168, 102)
```

```python
from fx import *
V = dict(a={}, b=dict(ya_at=15, yb_at=24), c=dict(dgap=6), d=dict(dgap=2), e=dict(put_a=2), f=dict(lf_c=5, lf_i=(7,), hf_c=4), g=dict(lf_c=3, lf_i=(7,14,15), hf_c=5, hf_p=9), h=dict(gat_split=(3,4), gat_issue=8, gat_check=10, con_write=12, ca_load=11, cs_issue=6), i=dict(pa_early=True), j=dict(pace1=1, pace={17:2,18:2,19:2}, yb_at=26))
for k, x in V.items(): variant(k, phase=0, **x)
variant("n1", prof=False)
```
